```python
import torch

def _softmax(x, axis=-1):
    return torch.softmax(x, dim=axis)
def _gelu(x):
    return torch.nn.functional.gelu(x, approximate="tanh")
def _silu(x):
    return torch.nn.functional.silu(x)
def _sigmoid(x):
    return torch.sigmoid(x)
def _layernorm(x, axis=-1, eps=1e-5):
    m = x.mean(dim=axis, keepdim=True)
    v = x.var(dim=axis, keepdim=True, unbiased=False)
    return (x - m) / torch.sqrt(v + eps)
def _scatter_add(tgt, idx, src, axis=0):
    return tgt.clone().index_add_(axis, idx, src)
def _segment_sum(src, seg, n):
    out = torch.zeros((n,) + src.shape[1:], dtype=src.dtype)
    return out.index_add_(0, seg, src)
def _pad(x, pw):
    flat = tuple(v for pair in reversed(pw) for v in pair)
    return torch.nn.functional.pad(x, flat)

kernel_name = 'standalone__mpnn_edge_mlp__graph'

def setup_inputs():

    _w = (lambda a: (lambda t: t.to(torch.bfloat16) if t.is_floating_point() else t)(torch.as_tensor(a)))
    N, deg, D, De = 25000, 32, 64, max(16, 1)
    E = N * deg
    return {
        "x": _w((lambda *s: torch.randn(*s, dtype=torch.bfloat16) * 0.05)(N, D)),
        "e_attr": _w((lambda *s: torch.randn(*s, dtype=torch.bfloat16) * 0.4)(E, De)),
        "src": _w((lambda lo, hi, *s: torch.randint(lo, hi, s))(0, N, E).to(torch.int64)),
        "dst": _w((lambda lo, hi, *s: torch.randint(lo, hi, s))(0, N, E).to(torch.int64)),
        "w_msg": _w((lambda *s: torch.randn(*s, dtype=torch.bfloat16) * 0.4)(2 * D + De, D)),
        "w_upd": _w((lambda *s: torch.randn(*s, dtype=torch.bfloat16) * 0.05)(2 * D, D)),
    }

def reference(x, e_attr, src, dst, w_msg, w_upd):
    N, D = x.shape
    m_in = torch.concatenate([x[src], x[dst], e_attr], axis=-1)
    msg = _silu(m_in @ w_msg)
    agg = _segment_sum(msg, dst, N)
    return _silu(torch.concatenate([x, agg], axis=-1) @ w_upd)
```

```python
class Regs:
    def __init__(self, prefix, start, limit):
        self.p = prefix; self.n = start; self.limit = limit; self.names = {}
    def alloc(self, name, count=1, align=1):
        n = (self.n + align - 1) // align * align
        assert n + count <= self.limit, f"out of {self.p} regs at {name}: {n}+{count}"
        self.names[name] = (n, count); self.n = n + count
        return n
def v(n, c=1):
    return f"v{n}" if c == 1 else f"v[{n}:{n+c-1}]"
def s(n, c=1):
    return f"s{n}" if c == 1 else f"s[{n}:{n+c-1}]"
class Asm:
    def __init__(self): self.L = []
    def __call__(self, txt):
        for l in txt.strip("\n").split("\n"):
            l = l.strip()
            if l: self.L.append(("" if l.endswith(":") or l.startswith(".") else "    ") + l)
    def text(self): return "\n".join(self.L) + "\n"
def srd(a, d, base, nbytes):
    a(f"s_mov_b32 s{d}, s{base}\ns_mov_b32 s{d+1}, s{base+1}\ns_mov_b32 s{d+2}, {nbytes}\ns_mov_b32 s{d+3}, 0x20000")
def srd_off(a, d, base, off, nbytes):
    a(f"s_add_u32 s{d}, s{base}, {off}\ns_addc_u32 s{d+1}, s{base+1}, 0\ns_mov_b32 s{d+2}, {nbytes}\ns_mov_b32 s{d+3}, 0x20000")
def wave_scan(a, r):
    for sh in (1, 2, 4, 8):
        a(f"s_nop 1\nv_add_u32_dpp v{r}, v{r}, v{r} row_shr:{sh} row_mask:0xf bank_mask:0xf bound_ctrl:0")
    a(f"s_nop 1\nv_add_u32_dpp v{r}, v{r}, v{r} row_bcast:15 row_mask:0xa bank_mask:0xf")
    a(f"s_nop 1\nv_add_u32_dpp v{r}, v{r}, v{r} row_bcast:31 row_mask:0xc bank_mask:0xf")
def kdesc(name, vgpr, sgpr=96):
    acc = (vgpr + 3) // 4 * 4
    return f""".amdhsa_kernel {name}
  .amdhsa_next_free_vgpr {vgpr}
  .amdhsa_next_free_sgpr {sgpr}
  .amdhsa_accum_offset {acc}
  .amdhsa_group_segment_fixed_size 0
  .amdhsa_kernarg_size 72
  .amdhsa_user_sgpr_count 2
  .amdhsa_user_sgpr_kernarg_segment_ptr 1
  .amdhsa_system_sgpr_workgroup_id_x 1
.end_amdhsa_kernel
"""
```

```python
import sys, struct
from asmlib import *

OPT = dict(fold=True, eflags="nt", idxflags="nt", xpf=True, stflags="")
for arg in sys.argv[2:]:
    k, val = arg.split("=")
    OPT[k] = {"True": True, "False": False}.get(val, val.replace("+", " "))

NCH, CH = 250, 3200
WS_REC, WS_O, WS_WF = 0, 0x400000, 0x600000
LOG2E = 1.4426950408889634
def f32(x): return "0x%08x" % struct.unpack("<I", struct.pack("<f", x))[0]

a = Asm()
SORT_LDS = 4096 + 128 + CH * 4
def gen_sort():
    a(".p2align 8\nsort_kernel:")
    a("""
    s_cmp_ge_u32 s2, 253
    s_cbranch_scc1 S_END
    s_load_dwordx4 s[4:7], s[0:1], 16
    s_load_dwordx2 s[8:9], s[0:1], 0
    s_load_dwordx2 s[10:11], s[0:1], 64
    s_load_dwordx4 s[12:15], s[0:1], 32
    s_cmp_ge_u32 s2, 250
    s_cbranch_scc1 S_WPREP
    v_lshlrev_b32 v2, 2, v0
    v_mov_b32 v3, 0
    ds_write_b32 v2, v3
    s_mul_i32 s3, s2, 12800
    v_lshl_add_u32 v1, v0, 4, s3
    v_cmp_gt_u32 vcc, 800, v0
    s_mov_b64 s[40:41], vcc
    v_mov_b32 v12, 0x80000000
    v_cndmask_b32 v1, v12, v1, vcc
    s_lshr_b32 s36, s2, 3
    s_mul_i32 s36, s36, 102400
    v_lshl_add_u32 v13, v0, 7, s36
    v_cndmask_b32 v13, v12, v13, vcc
    s_waitcnt lgkmcnt(0)
    """)
    srd(a, 16, 4, 3200000)
    srd(a, 20, 6, 3200000)
    srd(a, 24, 10, 0x800000)
    srd(a, 28, 8, 3200000)
    fl = OPT["idxflags"]
    a(f"""
    buffer_load_dwordx4 v[4:7], v1, s[20:23], 0 offen {fl}
    buffer_load_dwordx4 v[8:11], v1, s[16:19], 0 offen {fl}
    """)
    npf = 0
    if OPT["xpf"]:
        a("buffer_load_dword v14, v13, s[28:31], 0 offen"); npf = 1
    a(f"""
    v_mov_b32 v15, 1
    v_lshlrev_b32 v16, 17, v0
    s_barrier
    s_waitcnt vmcnt({npf+1})
    """)
    for i in range(4):
        a(f"""
        v_mul_u32_u24 v{20+i}, 5243, v{4+i}
        v_lshrrev_b32 v{20+i}, 17, v{20+i}
        v_mul_u32_u24 v{28+i}, 25, v{20+i}
        v_sub_u32 v{28+i}, v{4+i}, v{28+i}
        v_lshlrev_b32 v{20+i}, 2, v{20+i}
        """)
    a("s_mov_b64 exec, s[40:41]")
    for i in range(4):
        a(f"ds_add_rtn_u32 v{24+i}, v{20+i}, v15")
    a(f"s_mov_b64 exec, -1\ns_waitcnt vmcnt({npf})")
    for i in range(4):
        a(f"""
        v_lshl_or_b32 v{28+i}, v{28+i}, 27, v{8+i}
        v_add_u32 v17, {i<<15}, v16
        v_or_b32 v{28+i}, v{28+i}, v17
        """)
    a("""
    s_waitcnt lgkmcnt(0)
    s_barrier
    ds_read_b32 v32, v2
    v_lshrrev_b32 v34, 6, v0
    v_lshlrev_b32 v35, 2, v34
    v_readfirstlane_b32 s37, v34
    s_waitcnt lgkmcnt(0)
    v_mov_b32 v33, v32
    """)
    wave_scan(a, 33)
    a("""
    s_mov_b32 exec_lo, 0
    s_mov_b32 exec_hi, 0x80000000
    ds_write_b32 v35, v33 offset:4096
    s_mov_b64 exec, -1
    v_and_b32 v36, 15, v0
    v_lshlrev_b32 v36, 2, v36
    s_waitcnt lgkmcnt(0)
    s_barrier
    ds_read_b32 v37, v36 offset:4096
    s_waitcnt lgkmcnt(0)
    v_mov_b32 v38, v37
    """)
    for sh in (1, 2, 4, 8):
        a(f"s_nop 1\nv_add_u32_dpp v38, v38, v38 row_shr:{sh} row_mask:0xf bank_mask:0xf bound_ctrl:0")
    st = OPT["stflags"]
    a(f"""
    v_sub_u32 v38, v38, v37
    s_nop 0
    v_readlane_b32 s38, v38, s37
    v_sub_u32 v33, v33, v32
    s_nop 1
    v_add_u32 v33, s38, v33
    ds_write_b32 v2, v33
    v_lshl_or_b32 v39, v32, 16, v33
    s_lshl_b32 s39, s2, 12
    s_add_u32 s39, s39, {WS_O}
    buffer_store_dword v39, v2, s[24:27], s39 offen {st}
    s_waitcnt lgkmcnt(0)
    s_barrier
    s_mov_b64 exec, s[40:41]
    """)
    for i in range(4):
        a(f"ds_read_b32 v{40+i}, v{20+i}")
    for i in range(4):
        a(f"""
        s_waitcnt lgkmcnt({3})
        v_add_lshl_u32 v{40+i}, v{40+i}, v{24+i}, 2
        ds_write_b32 v{40+i}, v{28+i} offset:4224
        """)
    a(f"""
    s_mov_b64 exec, -1
    v_lshlrev_b32 v44, 4, v0
    s_waitcnt lgkmcnt(0)
    s_barrier
    s_mov_b64 exec, s[40:41]
    ds_read_b128 v[48:51], v44 offset:4224
    s_mov_b64 exec, -1
    s_waitcnt lgkmcnt(0)
    buffer_store_dwordx4 v[48:51], v1, s[24:27], 0 offen {st}
    s_endpgm
    """)
    scale = -LOG2E if OPT["fold"] else 1.0
    a(f"""
    S_WPREP:
    v_lshrrev_b32 v1, 6, v0
    s_nop 0
    v_readfirstlane_b32 s3, v1
    s_sub_u32 s16, s2, 250
    s_lshl_b32 s16, s16, 4
    s_add_u32 s3, s3, s16
    s_cmp_ge_u32 s3, 34
    s_cbranch_scc1 S_END
    v_and_b32 v1, 31, v0
    v_bfe_u32 v2, v0, 5, 1
    s_waitcnt lgkmcnt(0)
    s_mov_b32 s22, 18432
    s_mov_b32 s23, 0x20000
    s_cmp_ge_u32 s3, 18
    s_cbranch_scc1 S_WUPD
    s_mov_b32 s20, s12
    s_mov_b32 s21, s13
    s_lshr_b32 s30, s3, 1
    s_and_b32 s31, s3, 1
    s_lshl_b32 s31, s31, 5
    v_add_u32 v3, s31, v1
    s_mov_b32 s32, 8
    s_mov_b32 s33, 512
    s_mov_b32 s34, {f32(scale)}
    s_branch S_WLOAD
    S_WUPD:
    s_mov_b32 s20, s14
    s_mov_b32 s21, s15
    s_mov_b32 s22, 16384
    s_sub_u32 s35, s3, 18
    s_and_b32 s30, s35, 7
    s_lshr_b32 s31, s35, 3
    s_lshl_b32 s31, s31, 5
    v_bfe_u32 v4, v1, 2, 1
    v_lshlrev_b32 v4, 4, v4
    v_lshrrev_b32 v5, 3, v1
    v_lshl_add_u32 v4, v5, 2, v4
    v_and_b32 v5, 3, v1
    v_add3_u32 v3, v4, v5, s31
    s_cmp_ge_u32 s30, 4
    s_cselect_b32 s32, 4, 8
    s_mov_b32 s33, 512
    s_cselect_b32 s33, 1024, s33
    s_mov_b32 s34, 1.0
    S_WLOAD:
    s_lshl_b32 s30, s30, 4
    v_mul_lo_u32 v4, v2, s32
    v_add_u32 v4, s30, v4
    v_lshlrev_b32 v4, 7, v4
    v_lshl_add_u32 v4, v3, 1, v4
    """)
    for i in range(8):
        so = "0" if i < 4 else "s33"
        a(f"buffer_load_ushort v{8+i}, v4, s[20:23], {so} offen offset:{(i&3)*128}")
    srd(a, 24, 10, 0x800000)
    a(f"""
    v_and_b32 v5, 63, v0
    v_lshlrev_b32 v5, 4, v5
    s_lshl_b32 s35, s3, 10
    s_add_u32 s35, s35, {WS_WF}
    s_waitcnt vmcnt(0)
    """)
    for i in range(8):
        a(f"v_lshlrev_b32 v{8+i}, 16, v{8+i}\nv_mul_f32 v{8+i}, s34, v{8+i}")
    for i in range(4):
        a(f"v_cvt_pk_bf16_f32 v{16+i}, v{8+2*i}, v{9+2*i}")
    a("""
    buffer_store_dwordx4 v[16:19], v5, s[24:27], s35 offen
    S_END:
    s_endpgm
    """)

CAP, PAD = 512, 160
LW = (CAP + PAD) * 4
L_XR = 0
L_LS = 65536
L_LE = L_LS + 8 * LW
L_SM = L_LE + 8 * LW
L_XD = L_SM + 8 * 2560
MAIN_LDS = L_XD + 4 * 4608

def interleave(M, V, O):
    out = []
    mi = 0
    for i in range(len(V) + 1):
        while mi < len(M) and M[mi][1] <= i:
            out.append(M[mi][0]); out += O.get(mi, []); mi += 1
        if i < len(V): out.append(V[i])
    assert mi == len(M)
    return out

def gen_main():
    R = Regs("v", 1, 256)
    lane = R.alloc("lane");
    vLS = R.alloc("vLS"); vLE = R.alloc("vLE")
    cS = R.alloc("cS"); cXD = R.alloc("cXD"); cSR = R.alloc("cSR"); h16 = R.alloc("h16")
    one = R.alloc("one"); zero = R.alloc("zero")
    dl = R.alloc("dl", 2); sad = R.alloc("sad"); xda = R.alloc("xda"); ead = R.alloc("ead")
    g0 = R.alloc("g0"); g1 = R.alloc("g1"); p0 = R.alloc("p0"); p1 = R.alloc("p1"); c0 = R.alloc("c0"); c1 = R.alloc("c1")
    XA = R.alloc("XA", 4); CX = R.alloc("CX", 4); RR = R.alloc("RR", 4)
    S4 = R.alloc("S4", 4, 4)
    T = R.alloc("T", 8, 4); P = R.alloc("P", 8, 4); SF = R.alloc("SF", 8, 4)
    FX = R.alloc("FX", 16, 4); FD = R.alloc("FD", 16, 4); E = R.alloc("E", 16, 4)
    D = R.alloc("D", 32, 4); AG = R.alloc("AG", 32, 4); W = R.alloc("W", 72, 4)
    def Wf(ks, nh): return v(W + (ks * 2 + nh) * 4, 4)
    sX, sE, sREC, sO, sWF, sOUT = 16, 20, 24, 28, 32, 36
    sW, sP, sSUB, sGS, sN, sBASE, sCNT, sT, sXRB, sTMP, sTMP2, sM31 = 40, 41, 42, 43, 44, 45, 46, 47, 48, 49, 50, 51
    a(".p2align 8\nmain_kernel:")
    a(f"""
    s_and_b32 s3, s2, 7
    s_lshr_b32 s4, s2, 3
    s_mul_i32 s5, s3, 125
    s_add_u32 s6, s5, 125
    s_lshr_b32 s5, s5, 2
    s_lshr_b32 s6, s6, 2
    s_add_u32 s3, s5, s4
    s_cmp_ge_u32 s3, s6
    s_cbranch_scc1 M_END
    s_load_dwordx4 s[4:7], s[0:1], 0
    s_load_dwordx2 s[8:9], s[0:1], 48
    s_load_dwordx2 s[10:11], s[0:1], 64
    v_lshrrev_b32 v{T}, 6, v0
    v_and_b32 v{lane}, 63, v0
    v_readfirstlane_b32 s{sW}, v{T}
    s_nop 3
    s_and_b32 s{sP}, s{sW}, 1
    s_lshr_b32 s{sSUB}, s{sW}, 1
    s_lshl_b32 s{sGS}, s3, 2
    s_add_u32 s{sGS}, s{sGS}, s{sSUB}
    s_lshl_b32 s{sXRB}, s{sW}, 13
    s_mov_b32 s{sM31}, 31
    s_lshl_b32 s{sTMP}, s{sP}, 12
    s_lshl_b32 s{sTMP2}, s{sGS}, 2
    s_add_u32 s{sTMP}, s{sTMP}, s{sTMP2}
    v_lshlrev_b32 v{T}, 14, v{lane}
    v_add_u32 v{T}, s{sTMP}, v{T}
    v_add_u32 v{T+1}, 8192, v{T}
    s_waitcnt lgkmcnt(0)
    """)
    srd_off(a, sO, 10, WS_O, NCH * 4096)
    a(f"""
    buffer_load_dword v{c0}, v{T}, s[{sO}:{sO+3}], 0 offen
    buffer_load_dword v{c1}, v{T+1}, s[{sO}:{sO+3}], 0 offen
    """)
    srd(a, sX, 4, 3200000)
    srd(a, sE, 6, 25600000)
    srd(a, sREC, 10, 3200000)
    srd_off(a, sWF, 10, WS_WF, 34 * 1024)
    srd(a, sOUT, 8, 3200000)
    a(f"""
    s_mul_i32 s{sTMP}, s{sGS}, 3200
    s_lshl_b32 s{sTMP2}, s{sP}, 11
    v_lshlrev_b32 v{T+2}, 4, v{lane}
    v_add_u32 v{T+4}, s{sTMP2}, v{T+2}
    v_add_u32 v{T+5}, 1024, v{T+4}
    v_mov_b32 v{T+6}, 0x80000000
    v_cmp_gt_u32 vcc, 3200, v{T+5}
    s_nop 1
    v_cndmask_b32 v{T+5}, v{T+6}, v{T+5}, vcc
    buffer_load_dwordx4 {v(FX,4)}, v{T+4}, s[{sX}:{sX+3}], s{sTMP} offen
    buffer_load_dwordx4 {v(FX+4,4)}, v{T+5}, s[{sX}:{sX+3}], s{sTMP} offen
    """)
    for f in range(18):
        if f % 4 == 0: a(f"s_mov_b32 s{sTMP2}, {f*1024}")
        a(f"buffer_load_dwordx4 {v(W+4*f,4)}, v{T+2}, s[{sWF}:{sWF+3}], s{sTMP2} offen offset:{(f%4)*1024}")
    m, h, t0, t1, t2 = P, P+1, P+2, P+3, P+4
    a(f"""
    v_and_b32 v{m}, 31, v{lane}
    v_lshrrev_b32 v{h}, 5, v{lane}
    v_lshlrev_b32 v{h16}, 4, v{h}
    v_mov_b32 v{one}, 0x3f80
    v_mov_b32 v{zero}, 0
    s_mul_i32 s{sTMP}, s{sW}, {LW}
    s_add_u32 s{sTMP2}, s{sTMP}, {L_LS}
    v_lshrrev_b32 v{t0}, 3, v{lane}
    v_lshlrev_b32 v{vLS}, 4, v{t0}
    v_add_u32 v{vLS}, s{sTMP2}, v{vLS}
    s_add_u32 s{sTMP2}, s{sTMP}, {L_LE}
    v_lshlrev_b32 v{vLE}, 2, v{m}
    v_add_u32 v{vLE}, s{sTMP2}, v{vLE}
    """)
    a(f"""
    v_and_b32 v{t1}, 4, v{t0}
    v_and_b32 v{t2}, 7, v{lane}
    v_xor_b32 v{t1}, v{t1}, v{t2}
    """)
    for i in range(4):
        a(f"v_xor_b32 v{CX+i}, {i}, v{t1}\nv_lshlrev_b32 v{CX+i}, 4, v{CX+i}")
    a(f"""
    v_and_b32 v{t0}, 3, v{m}
    v_lshrrev_b32 v{t1}, 2, v{m}
    v_lshl_add_u32 v{t1}, v{t0}, 3, v{t1}
    v_lshlrev_b32 v{t1}, 7, v{t1}
    v_add_u32 v{t1}, s{sXRB}, v{t1}
    v_lshrrev_b32 v{t2}, 4, v{m}
    v_lshl_or_b32 v{t0}, v{t2}, 2, v{t0}
    v_xor_b32 v{t0}, v{t0}, v{h}
    """)
    for sx in range(4):
        a(f"v_xor_b32 v{XA+sx}, {2*sx}, v{t0}\nv_lshl_add_u32 v{XA+sx}, v{XA+sx}, 4, v{t1}")
    a(f"""
    s_mul_i32 s{sTMP}, s{sW}, 2560
    s_add_u32 s{sTMP}, s{sTMP}, {L_SM}
    v_and_b32 v{t0}, 19, v{m}
    v_and_b32 v{t1}, 4, v{m}
    v_lshl_or_b32 v{t0}, v{t1}, 1, v{t0}
    v_and_b32 v{t1}, 8, v{m}
    v_lshrrev_b32 v{t1}, 1, v{t1}
    v_or_b32 v{t0}, v{t0}, v{t1}
    v_lshlrev_b32 v{t0}, 1, v{t0}
    v_add_u32 v{cS}, s{sTMP}, v{t0}
    v_mul_u32_u24 v{t0}, 80, v{m}
    v_add3_u32 v{cSR}, v{t0}, v{h16}, s{sTMP}
    v_mul_u32_u24 v{t0}, 40, v{lane}
    v_add_u32 v{t0}, s{sTMP}, v{t0}
    v_mov_b32 v{T+6}, 0
    v_mov_b32 v{T+7}, 0
    """)
    for i in range(5):
        a(f"ds_write_b64 v{t0}, {v(T+6,2)} offset:{8*i}")
    a(f"""
    s_mul_i32 s{sTMP}, s{sSUB}, 4608
    s_add_u32 s{sTMP}, s{sTMP}, {L_XD}
    v_add_u32 v{cXD}, s{sTMP}, v{h16}
    s_mul_i32 s{sTMP2}, s{sP}, {16*144}
    s_add_u32 s{sTMP}, s{sTMP}, s{sTMP2}
    v_lshrrev_b32 v{t0}, 3, v{lane}
    v_mul_u32_u24 v{t0}, 144, v{t0}
    v_and_b32 v{t1}, 7, v{lane}
    v_lshl_add_u32 v{t0}, v{t1}, 4, v{t0}
    v_add_u32 v{t0}, s{sTMP}, v{t0}
    """)
    for i in range(32):
        a(f"v_mov_b32 v{AG+i}, 0")
    a(f"""
    v_lshl_add_u32 v{t1}, v{lane}, 2, s{sP}
    v_mul_u32_u24 v{g0}, {CH}, v{t1}
    v_lshl_or_b32 v{g0}, v{t1}, 20, v{g0}
    v_add_u32 v{g1}, {2*CH + (2<<20)}, v{g0}
    s_waitcnt vmcnt(20)
    v_and_b32 v{t1}, 0xffff, v{c0}
    v_add_u32 v{g0}, v{g0}, v{t1}
    v_and_b32 v{t1}, 0xffff, v{c1}
    v_add_u32 v{g1}, v{g1}, v{t1}
    v_lshrrev_b32 v{c0}, 16, v{c0}
    v_lshrrev_b32 v{c1}, 16, v{c1}
    v_add_u32 v{p1}, v{c0}, v{c1}
    """)
    wave_scan(a, p1)
    a(f"""
    s_nop 0
    v_readlane_b32 s{sN}, v{p1}, 63
    v_sub_u32 v{p1}, v{p1}, v{c1}
    v_sub_u32 v{p0}, v{p1}, v{c0}
    s_waitcnt vmcnt(18)
    ds_write_b128 v{t0}, {v(FX,4)}
    ds_write_b128 v{t0}, {v(FX+4,4)} offset:{8*144}
    s_mov_b32 s{sBASE}, 0
    s_waitcnt lgkmcnt(0)
    s_barrier
    M_BATCH:
    s_cmp_ge_u32 s{sBASE}, s{sN}
    s_cbranch_scc1 M_EPI
    s_sub_u32 s{sCNT}, s{sN}, s{sBASE}
    s_min_u32 s{sCNT}, s{sCNT}, {CAP}
    s_add_u32 s{sT}, s{sCNT}, 31
    s_lshr_b32 s{sT}, s{sT}, 5
    s_mul_i32 s{sTMP}, s{sW}, {LW}
    s_add_u32 s{sTMP}, s{sTMP}, {L_LS}
    """)
    A0, E0, V0, A1, E1, V1, tt = D, D+1, D+2, D+3, D+4, D+5, D+6
    for (pp, cc, gg, A, EE, VV) in ((p0, c0, g0, A0, E0, V0), (p1, c1, g1, A1, E1, V1)):
        a(f"""
        v_subrev_u32 v{tt}, s{sBASE}, v{pp}
        v_max_i32 v{A}, 0, v{tt}
        v_add_u32 v{EE}, v{tt}, v{cc}
        v_min_i32 v{EE}, {CAP}, v{EE}
        v_sub_u32 v{VV}, v{A}, v{tt}
        v_add_u32 v{VV}, v{VV}, v{gg}
        v_lshl_add_u32 v{A}, v{A}, 2, s{sTMP}
        v_lshl_add_u32 v{EE}, v{EE}, 2, s{sTMP}
        """)
    a(f"""
    M_EXP:
    v_cmp_lt_i32 vcc, v{A0}, v{E0}
    v_cmp_lt_i32 s[52:53], v{A1}, v{E1}
    s_mov_b64 exec, vcc
    ds_write_b32 v{A0}, v{V0}
    s_mov_b64 exec, s[52:53]
    ds_write_b32 v{A1}, v{V1}
    s_mov_b64 exec, -1
    v_add_u32 v{A0}, 4, v{A0}
    v_add_u32 v{A1}, 4, v{A1}
    v_add_u32 v{V0}, 1, v{V0}
    v_add_u32 v{V1}, 1, v{V1}
    s_or_b64 s[52:53], s[52:53], vcc
    s_cbranch_scc1 M_EXP
    """)
    qa, G, RC, oob = D+7, D+8, D+16, D+24
    a(f"v_lshl_add_u32 v{qa}, v{lane}, 2, s{sTMP}\nv_mov_b32 v{oob}, 0x80000000")
    for i in range(8):
        a(f"ds_read_b32 v{G+i}, v{qa} offset:{256*i}")
    for i in range(8):
        a(f"""
        s_sub_i32 s{sTMP2}, s{sCNT}, {64*i}
        v_cmp_gt_i32 s[{54+2*i}:{55+2*i}], s{sTMP2}, v{lane}
        s_waitcnt lgkmcnt({7-i})
        v_and_b32 v{tt}, 0xfffff, v{G+i}
        v_lshlrev_b32 v{tt}, 2, v{tt}
        v_cndmask_b32 v{tt}, v{oob}, v{tt}, s[{54+2*i}:{55+2*i}]
        buffer_load_dword v{RC+i}, v{tt}, s[{sREC}:{sREC+3}], 0 offen
        v_lshrrev_b32 v{G+i}, 20, v{G+i}
        v_mul_u32_u24 v{G+i}, {CH}, v{G+i}
        """)
    a(f"""
    v_mov_b32 v{D+25}, 0x8000001f
    ds_write_b32 v{qa}, v{oob} offset:{CAP*4}
    ds_write_b32 v{qa}, v{oob} offset:{CAP*4+256}
    ds_write_b32 v{qa}, v{oob} offset:{CAP*4+384}
    ds_write_b32 v{qa}, v{D+25} offset:{8*LW+CAP*4}
    ds_write_b32 v{qa}, v{D+25} offset:{8*LW+CAP*4+256}
    ds_write_b32 v{qa}, v{D+25} offset:{8*LW+CAP*4+384}
    """)
    for i in range(8):
        a(f"""
        s_waitcnt vmcnt({7-i})
        v_and_b32 v{tt}, 0x7fff, v{RC+i}
        v_lshlrev_b32 v{tt}, 7, v{tt}
        v_cndmask_b32 v{tt}, v{oob}, v{tt}, s[{54+2*i}:{55+2*i}]
        ds_write_b32 v{qa}, v{tt} offset:{256*i}
        v_bfe_u32 v{D+26}, v{RC+i}, 15, 12
        v_add_u32 v{G+i}, v{G+i}, v{D+26}
        v_alignbit_b32 v{G+i}, v{G+i}, v{RC+i}, 27
        v_cndmask_b32 v{G+i}, v{D+25}, v{G+i}, s[{54+2*i}:{55+2*i}]
        ds_write_b32 v{qa}, v{G+i} offset:{8*LW+256*i}
        """)
    ef = OPT["eflags"]
    def e_issue(tile_slot):
        return [f"v_bfi_b32 v{ead}, s{sM31}, v{h16}, v{RR+tile_slot}"], \
               [f"buffer_load_dwordx4 {v(E+4*tile_slot,4)}, v{ead}, s[{sE}:{sE+3}], 0 offen {ef}"]
    def x_addr():
        return [f"v_add_u32 v{S4+i}, v{S4+i}, v{CX+i}" for i in range(4)]
    def x_dma(slot):
        o = []
        for i in range(4):
            o += [f"s_add_u32 m0, s{sXRB}, {slot*4096+i*1024}", "s_nop 0",
                  f"buffer_load_dwordx4 v{S4+i}, s[{sX}:{sX+3}], 0 offen lds"]
        return o
    for j in range(4):
        a(f"ds_read_b32 v{RR+j}, v{vLE} offset:{128*j}")
    a(f"ds_read_b128 {v(S4,4)}, v{vLS}")
    a(f"ds_read_b128 {v(T,4)}, v{vLS} offset:128")
    a(f"ds_read_b128 {v(T+4,4)}, v{vLS} offset:256")
    a("s_waitcnt lgkmcnt(0)")
    def emit(l): a("\n".join(l))
    emit(sum(e_issue(0), [])); emit(x_addr()); emit(x_dma(0))
    emit(sum(e_issue(1), []))
    for i in range(4): a(f"v_add_u32 v{S4+i}, v{T+i}, v{CX+i}")
    emit(x_dma(1)); emit(sum(e_issue(2), []))
    a(f"""
    v_and_b32 v{dl}, 31, v{RR}
    v_mad_u32_u24 v{xda}, v{dl}, s70, v{cXD}
    """.replace("s70", "s70"))
    a.L.insert(len(a.L) - 2, "    s_mov_b32 s70, 144")
    a.L.insert(len(a.L) - 2, "    s_mov_b32 s71, 80")
    for sx in range(4): a(f"ds_read_b128 {v(FD+4*sx,4)}, v{xda} offset:{32*sx}")
    a("s_waitcnt vmcnt(6)")
    for sx in range(4): a(f"ds_read_b128 {v(FX+4*sx,4)}, v{XA+sx}")
    a("s_waitcnt lgkmcnt(0)")
    def chain(nh, eslot):
        Dh = v(D + 16 * nh, 16)
        ops = [(FD + 4 * sx, 4 + sx) for sx in range(4)] + [(E + 4 * eslot, 8)] + [(FX + 4 * sx, sx) for sx in range(4)]
        return [f"v_mfma_f32_32x32x16_bf16 {Dh}, {v(fr,4)}, {Wf(ks,nh)}, {'0' if n == 0 else Dh}" for n, (fr, ks) in enumerate(ops)]
    emit(chain(0, 0))
    for i in range(4): a(f"v_add_u32 v{S4+i}, v{T+4+i}, v{CX+i}")
    emit(x_dma(0)); emit(sum(e_issue(3), []))
    a("s_nop 7")
    def silu_block(nh, q):
        Db = D + 16 * nh + 8 * q
        o = []
        if OPT["fold"]:
            o += [f"v_exp_f32 v{T+i}, v{Db+i}" for i in range(8)]
        else:
            o += [f"v_mul_f32 v{T+i}, s72, v{Db+i}" for i in range(8)]
            o += [f"v_exp_f32 v{T+i}, v{T+i}" for i in range(8)]
        o += [f"v_add_f32 v{T+i}, 1.0, v{T+i}" for i in range(8)]
        o += [f"v_rcp_f32 v{T+i}, v{T+i}" for i in range(8)]
        o += [f"v_mul_f32 v{T+i}, v{Db+i}, v{T+i}" for i in range(8)]
        o += [f"v_cvt_pk_bf16_f32 v{P+4*q+i}, v{T+2*i}, v{T+2*i+1}" for i in range(4)]
        return o
    def seg(nh, q):
        Ah = v(AG + 16 * nh, 16)
        return f"v_mfma_f32_32x32x16_bf16 {Ah}, {v(P+4*q,4)}, {v(SF+4*q,4)}, {Ah}"
    def cost(l): return 8 if l.startswith(("v_exp", "v_rcp")) else 4
    def phase(silu_nh, chain_ops, pre, after, extraV):
        b0, b1 = silu_block(silu_nh, 0), silu_block(silu_nh, 1)
        V = b0 + b1
        n0 = len(b0)
        tot = sum(cost(l) for l in V)
        cum = [0]
        for l in V: cum.append(cum[-1] + cost(l))
        def pos_at(frac):
            for i, c in enumerate(cum):
                if c >= frac * tot: return i
            return len(V)
        order = [("g", 0), ("g", 1), ("g", 2), ("g", 3), ("g", 4), ("g", 5), ("s", 0), ("g", 6), ("g", 7), ("g", 8), ("s", 1)]
        M = []; O = {}
        for n, (kind, idx) in enumerate(order):
            p_ = pos_at(n / 10.6)
            if kind == "g":
                M.append((chain_ops[idx], p_)); O[n] = after.get(idx, [])
            elif idx == 0:
                assert p_ >= n0 + 2
                M.append((seg(silu_nh, 0), p_)); O[n] = after.get("s0", [])
            else:
                M.append(("s_nop 1\n" + seg(silu_nh, 1), len(V)))
        assert len(V) - M[9][1] >= 9, (len(V), M[9][1])
        out = interleave(M, V, O)
        return pre + out
    a("s_mov_b32 s72, " + f32(-LOG2E))
    a("M_LOOP:")
    for u in range(4):
        pre = [f"v_mad_u32_u24 v{sad}, v{dl+(u&1)}, s71, v{cS}",
               f"v_and_b32 v{dl+((u+1)&1)}, 31, v{RR+((u+1)&3)}",
               f"ds_write_b16 v{sad}, v{one}",
               f"ds_read_b128 {v(SF,4)}, v{cSR}",
               f"ds_read_b128 {v(SF+4,4)}, v{cSR} offset:32",
               f"ds_write_b16 v{sad}, v{zero}",
               f"v_mad_u32_u24 v{xda}, v{dl+((u+1)&1)}, s70, v{cXD}"]
        after = {}
        for sx in range(4):
            after[sx] = [f"ds_read_b128 {v(FD+4*sx,4)}, v{xda} offset:{32*sx}"]
        slot = (u + 1) & 1
        after[4] = [f"ds_read_b32 v{RR+u}, v{vLE} offset:{128*(u+4)}",
                    f"ds_read_b128 {v(S4,4)}, v{vLS} offset:{128*(u+3)}"]
        after[5] = ["s_waitcnt vmcnt(6) lgkmcnt(7)", f"ds_read_b128 {v(FX,4)}, v{XA} offset:{slot*4096}"]
        for sx in range(1, 4):
            after[5 + sx] = [f"ds_read_b128 {v(FX+4*sx,4)}, v{XA+sx} offset:{slot*4096}"]
        emit(phase(0, chain(1, u), pre, after, None))
        ea, el = e_issue(u)
        dm = x_dma(slot)
        pre = ["s_waitcnt lgkmcnt(4)"]
        after = {0: x_addr() + ea, 2: ["s_waitcnt lgkmcnt(0)"] + dm[0:3], 3: dm[3:6], 4: dm[6:9], 5: dm[9:12], 6: el}
        if u == 3:
            after[7] = [f"v_add_u32 v{vLS}, 512, v{vLS}", f"v_add_u32 v{vLE}, 512, v{vLE}"]
        emit(phase(1, chain(0, (u + 1) & 3), pre, after, None))
        a(f"s_sub_u32 s{sT}, s{sT}, 1\ns_cmp_eq_u32 s{sT}, 0")
        a("s_cbranch_scc1 M_BEND" if u < 3 else "s_cbranch_scc0 M_LOOP")
    a(f"""
    M_BEND:
    s_waitcnt vmcnt(0) lgkmcnt(0)
    s_add_u32 s{sBASE}, s{sBASE}, {CAP}
    s_mul_i32 s{sTMP}, s{sW}, {LW}
    s_add_u32 s{sTMP2}, s{sTMP}, {L_LS}
    v_lshrrev_b32 v{vLS}, 3, v{lane}
    v_lshlrev_b32 v{vLS}, 4, v{vLS}
    v_add_u32 v{vLS}, s{sTMP2}, v{vLS}
    s_add_u32 s{sTMP2}, s{sTMP}, {L_LE}
    v_and_b32 v{vLE}, 31, v{lane}
    v_lshlrev_b32 v{vLE}, 2, v{vLE}
    v_add_u32 v{vLE}, s{sTMP2}, v{vLE}
    s_nop 7
    s_branch M_BATCH
    M_EPI:
    s_waitcnt vmcnt(0)
    v_lshlrev_b32 v{T}, 4, v{lane}
    s_lshl_b32 s{sTMP}, s{sP}, 13
    s_add_u32 s{sTMP}, s{sTMP}, {18*1024}
    s_add_u32 s{sTMP2}, s{sTMP}, 4096
    """)
    for f in range(8):
        a(f"buffer_load_dwordx4 {v(W+4*f,4)}, v{T}, s[{sWF}:{sWF+3}], s{sTMP if f < 4 else sTMP2} offen offset:{(f%4)*1024}")
    a(f"v_add_u32 v{T+1}, s{sXRB}, v{T}\nv_xor_b32 v{T+2}, 8192, v{T+1}")
    for i in range(8):
        a(f"ds_write_b128 v{T+1}, {v(AG+4*i,4)} offset:{1024*i}")
    a(f"""
    v_and_b32 v{T+3}, 31, v{lane}
    v_mul_u32_u24 v{T+4}, 144, v{T+3}
    v_add_u32 v{T+4}, v{T+4}, v{cXD}
    """)
    for sx in range(4):
        a(f"ds_read_b128 {v(FX+4*sx,4)}, v{T+4} offset:{32*sx}")
    a("s_waitcnt lgkmcnt(0)\ns_barrier")
    for i in range(8):
        a(f"ds_read_b128 {v(D+4*i,4)}, v{T+2} offset:{1024*i}")
    a(f"""
    s_mov_b32 s72, {f32(-LOG2E)}
    s_mov_b32 s73, {f32(-1.0/LOG2E if OPT['fold'] else 1.0)}
    s_mul_i32 s{sTMP}, s{sGS}, 3200
    s_lshl_b32 s{sTMP2}, s{sP}, 6
    s_add_u32 s{sTMP}, s{sTMP}, s{sTMP2}
    v_lshlrev_b32 v{T+5}, 7, v{T+3}
    v_lshl_add_u32 v{T+5}, v{h16}, 1, v{T+5}
    v_mov_b32 v{T+6}, 0x80000000
    v_cmp_gt_u32 vcc, 25, v{T+3}
    s_nop 1
    v_cndmask_b32 v{T+5}, v{T+6}, v{T+5}, vcc
    s_waitcnt lgkmcnt(0)
    """)
    for i in range(32):
        a(f"v_add_f32 v{AG+i}, v{AG+i}, v{D+i}\nv_mul_f32 v{AG+i}, s73, v{AG+i}")
    for i in range(16):
        a(f"v_cvt_pk_bf16_f32 v{FD+i}, v{AG+2*i}, v{AG+2*i+1}")
    a("s_waitcnt vmcnt(0)\ns_nop 1")
    for st in range(8):
        src = FX + 4 * st if st < 4 else FD + 4 * (st - 4)
        a(f"v_mfma_f32_32x32x16_bf16 {v(D,16)}, {v(W+4*st,4)}, {v(src,4)}, {'0' if st == 0 else v(D,16)}")
    a("s_nop 15")
    for i in range(16): a(f"v_mul_f32 v{AG+i}, s72, v{D+i}")
    for i in range(16): a(f"v_exp_f32 v{AG+i}, v{AG+i}")
    for i in range(16): a(f"v_add_f32 v{AG+i}, 1.0, v{AG+i}")
    for i in range(16): a(f"v_rcp_f32 v{AG+i}, v{AG+i}")
    for i in range(16): a(f"v_mul_f32 v{AG+i}, v{D+i}, v{AG+i}")
    for i in range(8): a(f"v_cvt_pk_bf16_f32 v{FD+i}, v{AG+2*i}, v{AG+2*i+1}")
    a(f"""
    buffer_store_dwordx4 {v(FD,4)}, v{T+5}, s[{sOUT}:{sOUT+3}], s{sTMP} offen
    buffer_store_dwordx4 {v(FD+4,4)}, v{T+5}, s[{sOUT}:{sOUT+3}], s{sTMP} offen offset:16
    M_END:
    s_endpgm
    """)
    return R.n

hdr = f"""; MPNN edge-MLP + segment-sum + node update, two launches:
; @launch kernel=sort_kernel grid=(253,1,1) block=(1024,1,1) lds={SORT_LDS}
; @launch kernel=main_kernel grid=(256,1,1) block=(512,1,1) lds={MAIN_LDS}
.amdgcn_target "amdgcn-amd-amdhsa--gfx950"
.text
.globl sort_kernel
.type sort_kernel,@function
.globl main_kernel
.type main_kernel,@function
"""
gen_sort()
nv = gen_main()
txt = hdr + a.text() + '.section .rodata,"a"\n.p2align 6\n' + kdesc("sort_kernel", 56) + ".p2align 6\n" + kdesc("main_kernel", 256)
open(sys.argv[1], "w").write(txt)
print("main vgprs", nv, "lds", MAIN_LDS, SORT_LDS)
```

```python
class Regs:
    def __init__(self, prefix, start, limit):
        self.p = prefix; self.n = start; self.limit = limit; self.names = {}
    def alloc(self, name, count=1, align=1):
        n = (self.n + align - 1) // align * align
        assert n + count <= self.limit, f"out of {self.p} regs at {name}: {n}+{count}"
        self.names[name] = (n, count); self.n = n + count
        return n
def v(n, c=1):
    return f"v{n}" if c == 1 else f"v[{n}:{n+c-1}]"
def s(n, c=1):
    return f"s{n}" if c == 1 else f"s[{n}:{n+c-1}]"
class Asm:
    def __init__(self): self.L = []
    def __call__(self, txt):
        for l in txt.strip("\n").split("\n"):
            l = l.strip()
            if l.startswith("@stamp"):
                i = int(l.split()[1])
                if getattr(self, "stamps", False):
                    self.L.append(f"    s_memrealtime s[{76+2*i}:{77+2*i}]"); self.L.append("    s_waitcnt lgkmcnt(0)")
                continue
            if l: self.L.append(("" if l.endswith(":") or l.startswith(".") else "    ") + l)
    def text(self): return "\n".join(self.L) + "\n"
def srd(a, d, base, nbytes):
    a(f"s_mov_b32 s{d}, s{base}\ns_mov_b32 s{d+1}, s{base+1}\ns_mov_b32 s{d+2}, {nbytes}\ns_mov_b32 s{d+3}, 0x20000")
def srd_off(a, d, base, off, nbytes):
    a(f"s_add_u32 s{d}, s{base}, {off}\ns_addc_u32 s{d+1}, s{base+1}, 0\ns_mov_b32 s{d+2}, {nbytes}\ns_mov_b32 s{d+3}, 0x20000")
def wave_scan(a, r):
    for sh in (1, 2, 4, 8):
        a(f"s_nop 1\nv_add_u32_dpp v{r}, v{r}, v{r} row_shr:{sh} row_mask:0xf bank_mask:0xf bound_ctrl:0")
    a(f"s_nop 1\nv_add_u32_dpp v{r}, v{r}, v{r} row_bcast:15 row_mask:0xa bank_mask:0xf")
    a(f"s_nop 1\nv_add_u32_dpp v{r}, v{r}, v{r} row_bcast:31 row_mask:0xc bank_mask:0xf")
def kdesc(name, vgpr, sgpr=96):
    acc = (vgpr + 3) // 4 * 4
    return f""".amdhsa_kernel {name}
  .amdhsa_next_free_vgpr {vgpr}
  .amdhsa_next_free_sgpr {sgpr}
  .amdhsa_accum_offset {acc}
  .amdhsa_group_segment_fixed_size 0
  .amdhsa_kernarg_size 72
  .amdhsa_user_sgpr_count 2
  .amdhsa_user_sgpr_kernarg_segment_ptr 1
  .amdhsa_system_sgpr_workgroup_id_x 1
.end_amdhsa_kernel
"""
```

```python
import sys, struct
from asmlib import *

OPT = dict(stamp=False, fold=True, eflags="nt", idxflags="nt", xpf=True, stflags="")
for arg in sys.argv[2:]:
    k, val = arg.split("=")
    OPT[k] = {"True": True, "False": False}.get(val, val.replace("+", " "))

NCH, CH = 250, 3200
WS_REC, WS_O, WS_WF = 0, 0x400000, 0x600000
LOG2E = 1.4426950408889634
def f32(x): return "0x%08x" % struct.unpack("<I", struct.pack("<f", x))[0]

a = Asm()
WS_ST = 0x700000
a.stamps = OPT["stamp"]
def stamp(i):
    if OPT["stamp"]: a(f"s_memrealtime s[{76+2*i}:{77+2*i}]")
def stamp_out(n, wid_sgpr_expr, base_sgpr, region):
    if not OPT["stamp"]: return
    a("s_waitcnt lgkmcnt(0)")
    a(wid_sgpr_expr)
    a(f"s_lshl_b32 s74, s74, 6\ns_add_u32 s74, s74, {WS_ST+region}\ns_add_u32 s92, s{base_sgpr}, s74\ns_addc_u32 s93, s{base_sgpr+1}, 0\nv_mov_b32 v0, 0")
    for i in range(n):
        a(f"v_mov_b32 v1, s{76+2*i}\nglobal_store_dword v0, v1, s[92:93] offset:{4*i}")
SORT_LDS = 4096 + 128 + CH * 4
def gen_sort():
    a(".p2align 8\nsort_kernel:")
    a("""
    s_cmp_ge_u32 s2, 253
    s_cbranch_scc1 S_END
    s_load_dwordx4 s[4:7], s[0:1], 16
    s_load_dwordx2 s[8:9], s[0:1], 0
    s_load_dwordx2 s[10:11], s[0:1], 64
    s_load_dwordx4 s[12:15], s[0:1], 32
    s_cmp_ge_u32 s2, 250
    s_cbranch_scc1 S_WPREP
    @stamp 0
    v_lshlrev_b32 v2, 2, v0
    v_mov_b32 v3, 0
    ds_write_b32 v2, v3
    s_mul_i32 s3, s2, 12800
    v_lshl_add_u32 v1, v0, 4, s3
    v_cmp_gt_u32 vcc, 800, v0
    s_mov_b64 s[40:41], vcc
    v_mov_b32 v12, 0x80000000
    v_cndmask_b32 v1, v12, v1, vcc
    s_lshr_b32 s36, s2, 3
    s_mul_i32 s36, s36, 102400
    v_lshl_add_u32 v13, v0, 7, s36
    v_cndmask_b32 v13, v12, v13, vcc
    s_waitcnt lgkmcnt(0)
    """)
    srd(a, 16, 4, 3200000)
    srd(a, 20, 6, 3200000)
    srd(a, 24, 10, 0x800000)
    srd(a, 28, 8, 3200000)
    fl = OPT["idxflags"]
    a(f"""
    buffer_load_dwordx4 v[4:7], v1, s[20:23], 0 offen {fl}
    buffer_load_dwordx4 v[8:11], v1, s[16:19], 0 offen {fl}
    """)
    npf = 0
    if OPT["xpf"]:
        a("buffer_load_dword v14, v13, s[28:31], 0 offen"); npf = 1
    a(f"""
    v_mov_b32 v15, 1
    v_lshlrev_b32 v16, 17, v0
    s_barrier
    s_waitcnt vmcnt({npf+1})
    @stamp 1
    """)
    for i in range(4):
        a(f"""
        v_mul_u32_u24 v{20+i}, 5243, v{4+i}
        v_lshrrev_b32 v{20+i}, 17, v{20+i}
        v_mul_u32_u24 v{28+i}, 25, v{20+i}
        v_sub_u32 v{28+i}, v{4+i}, v{28+i}
        v_lshlrev_b32 v{20+i}, 2, v{20+i}
        """)
    a("s_mov_b64 exec, s[40:41]")
    for i in range(4):
        a(f"ds_add_rtn_u32 v{24+i}, v{20+i}, v15")
    a(f"s_mov_b64 exec, -1\ns_waitcnt vmcnt({npf})")
    for i in range(4):
        a(f"""
        v_lshl_or_b32 v{28+i}, v{28+i}, 27, v{8+i}
        v_add_u32 v17, {i<<15}, v16
        v_or_b32 v{28+i}, v{28+i}, v17
        """)
    a("""
    s_waitcnt lgkmcnt(0)
    s_barrier
    @stamp 2
    ds_read_b32 v32, v2
    v_lshrrev_b32 v34, 6, v0
    v_lshlrev_b32 v35, 2, v34
    v_readfirstlane_b32 s37, v34
    s_waitcnt lgkmcnt(0)
    v_mov_b32 v33, v32
    """)
    wave_scan(a, 33)
    a("""
    s_mov_b32 exec_lo, 0
    s_mov_b32 exec_hi, 0x80000000
    ds_write_b32 v35, v33 offset:4096
    s_mov_b64 exec, -1
    v_and_b32 v36, 15, v0
    v_lshlrev_b32 v36, 2, v36
    s_waitcnt lgkmcnt(0)
    s_barrier
    ds_read_b32 v37, v36 offset:4096
    s_waitcnt lgkmcnt(0)
    v_mov_b32 v38, v37
    """)
    for sh in (1, 2, 4, 8):
        a(f"s_nop 1\nv_add_u32_dpp v38, v38, v38 row_shr:{sh} row_mask:0xf bank_mask:0xf bound_ctrl:0")
    st = OPT["stflags"]
    a(f"""
    v_sub_u32 v38, v38, v37
    s_nop 0
    v_readlane_b32 s38, v38, s37
    v_sub_u32 v33, v33, v32
    s_nop 1
    v_add_u32 v33, s38, v33
    ds_write_b32 v2, v33
    v_lshl_or_b32 v39, v32, 16, v33
    s_lshl_b32 s39, s2, 12
    s_add_u32 s39, s39, {WS_O}
    buffer_store_dword v39, v2, s[24:27], s39 offen {st}
    s_waitcnt lgkmcnt(0)
    s_barrier
    @stamp 3
    s_mov_b64 exec, s[40:41]
    """)
    for i in range(4):
        a(f"ds_read_b32 v{40+i}, v{20+i}")
    for i in range(4):
        a(f"""
        s_waitcnt lgkmcnt({3})
        v_add_lshl_u32 v{40+i}, v{40+i}, v{24+i}, 2
        ds_write_b32 v{40+i}, v{28+i} offset:4224
        """)
    a(f"""
    s_mov_b64 exec, -1
    v_lshlrev_b32 v44, 4, v0
    s_waitcnt lgkmcnt(0)
    s_barrier
    s_mov_b64 exec, s[40:41]
    ds_read_b128 v[48:51], v44 offset:4224
    s_mov_b64 exec, -1
    s_waitcnt lgkmcnt(0)
    buffer_store_dwordx4 v[48:51], v1, s[24:27], 0 offen {st}
    @stamp 4
    """)
    if OPT["stamp"]: a("s_waitcnt vmcnt(0)\n@stamp 5")
    stamp_out(6, "s_lshl_b32 s74, s2, 4\ns_add_u32 s74, s74, s37", 10, 0)
    a("s_endpgm")
    scale = -LOG2E if OPT["fold"] else 1.0
    a(f"""
    S_WPREP:
    v_lshrrev_b32 v1, 6, v0
    s_nop 0
    v_readfirstlane_b32 s3, v1
    s_sub_u32 s16, s2, 250
    s_lshl_b32 s16, s16, 4
    s_add_u32 s3, s3, s16
    s_cmp_ge_u32 s3, 34
    s_cbranch_scc1 S_END
    v_and_b32 v1, 31, v0
    v_bfe_u32 v2, v0, 5, 1
    s_waitcnt lgkmcnt(0)
    s_mov_b32 s22, 18432
    s_mov_b32 s23, 0x20000
    s_cmp_ge_u32 s3, 18
    s_cbranch_scc1 S_WUPD
    s_mov_b32 s20, s12
    s_mov_b32 s21, s13
    s_lshr_b32 s30, s3, 1
    s_and_b32 s31, s3, 1
    s_lshl_b32 s31, s31, 5
    v_add_u32 v3, s31, v1
    s_mov_b32 s32, 8
    s_mov_b32 s33, 512
    s_mov_b32 s34, {f32(scale)}
    s_branch S_WLOAD
    S_WUPD:
    s_mov_b32 s20, s14
    s_mov_b32 s21, s15
    s_mov_b32 s22, 16384
    s_sub_u32 s35, s3, 18
    s_and_b32 s30, s35, 7
    s_lshr_b32 s31, s35, 3
    s_lshl_b32 s31, s31, 5
    v_bfe_u32 v4, v1, 2, 1
    v_lshlrev_b32 v4, 4, v4
    v_lshrrev_b32 v5, 3, v1
    v_lshl_add_u32 v4, v5, 2, v4
    v_and_b32 v5, 3, v1
    v_add3_u32 v3, v4, v5, s31
    s_cmp_ge_u32 s30, 4
    s_cselect_b32 s32, 4, 8
    s_mov_b32 s33, 512
    s_cselect_b32 s33, 1024, s33
    s_mov_b32 s34, 1.0
    S_WLOAD:
    s_lshl_b32 s30, s30, 4
    v_mul_lo_u32 v4, v2, s32
    v_add_u32 v4, s30, v4
    v_lshlrev_b32 v4, 7, v4
    v_lshl_add_u32 v4, v3, 1, v4
    """)
    for i in range(8):
        so = "0" if i < 4 else "s33"
        a(f"buffer_load_ushort v{8+i}, v4, s[20:23], {so} offen offset:{(i&3)*128}")
    srd(a, 24, 10, 0x800000)
    a(f"""
    v_and_b32 v5, 63, v0
    v_lshlrev_b32 v5, 4, v5
    s_lshl_b32 s35, s3, 10
    s_add_u32 s35, s35, {WS_WF}
    s_waitcnt vmcnt(0)
    """)
    for i in range(8):
        a(f"v_lshlrev_b32 v{8+i}, 16, v{8+i}\nv_mul_f32 v{8+i}, s34, v{8+i}")
    for i in range(4):
        a(f"v_cvt_pk_bf16_f32 v{16+i}, v{8+2*i}, v{9+2*i}")
    a("""
    buffer_store_dwordx4 v[16:19], v5, s[24:27], s35 offen
    S_END:
    s_endpgm
    """)

CAP, PAD = 512, 160
LW = (CAP + PAD) * 4
L_XR = 0
L_LS = 65536
L_LE = L_LS + 8 * LW
L_SM = L_LE + 8 * LW
L_XD = L_SM + 8 * 2560
MAIN_LDS = L_XD + 4 * 4608

def interleave(M, V, O):
    out = []
    mi = 0
    for i in range(len(V) + 1):
        while mi < len(M) and M[mi][1] <= i:
            out.append(M[mi][0]); out += O.get(mi, []); mi += 1
        if i < len(V): out.append(V[i])
    assert mi == len(M)
    return out

def gen_main():
    R = Regs("v", 1, 256)
    lane = R.alloc("lane");
    vLS = R.alloc("vLS"); vLE = R.alloc("vLE")
    cS = R.alloc("cS"); cXD = R.alloc("cXD"); cSR = R.alloc("cSR"); h16 = R.alloc("h16")
    one = R.alloc("one"); zero = R.alloc("zero")
    dl = R.alloc("dl", 2); sad = R.alloc("sad"); xda = R.alloc("xda"); ead = R.alloc("ead")
    g0 = R.alloc("g0"); g1 = R.alloc("g1"); p0 = R.alloc("p0"); p1 = R.alloc("p1"); c0 = R.alloc("c0"); c1 = R.alloc("c1")
    XA = R.alloc("XA", 4); CX = R.alloc("CX", 4); RR = R.alloc("RR", 4)
    S4 = R.alloc("S4", 4, 4)
    T = R.alloc("T", 8, 4); P = R.alloc("P", 8, 4); SF = R.alloc("SF", 8, 4)
    FX = R.alloc("FX", 16, 4); FD = R.alloc("FD", 16, 4); E = R.alloc("E", 16, 4)
    D = R.alloc("D", 32, 4); AG = R.alloc("AG", 32, 4); W = R.alloc("W", 72, 4)
    def Wf(ks, nh): return v(W + (ks * 2 + nh) * 4, 4)
    sX, sE, sREC, sO, sWF, sOUT = 16, 20, 24, 28, 32, 36
    sW, sP, sSUB, sGS, sN, sBASE, sCNT, sT, sXRB, sTMP, sTMP2, sM31 = 40, 41, 42, 43, 44, 45, 46, 47, 48, 49, 50, 51
    a(".p2align 8\nmain_kernel:")
    a(f"""
    s_and_b32 s3, s2, 7
    s_lshr_b32 s4, s2, 3
    s_mul_i32 s5, s3, 125
    s_add_u32 s6, s5, 125
    s_lshr_b32 s5, s5, 2
    s_lshr_b32 s6, s6, 2
    s_add_u32 s3, s5, s4
    s_cmp_ge_u32 s3, s6
    s_cbranch_scc1 M_END
    @stamp 0
    s_load_dwordx4 s[4:7], s[0:1], 0
    s_load_dwordx2 s[8:9], s[0:1], 48
    s_load_dwordx2 s[10:11], s[0:1], 64
    v_lshrrev_b32 v{T}, 6, v0
    v_and_b32 v{lane}, 63, v0
    v_readfirstlane_b32 s{sW}, v{T}
    s_nop 3
    s_and_b32 s{sP}, s{sW}, 1
    s_lshr_b32 s{sSUB}, s{sW}, 1
    s_lshl_b32 s{sGS}, s3, 2
    s_add_u32 s{sGS}, s{sGS}, s{sSUB}
    s_lshl_b32 s{sXRB}, s{sW}, 13
    s_mov_b32 s{sM31}, 31
    s_lshl_b32 s{sTMP}, s{sP}, 12
    s_lshl_b32 s{sTMP2}, s{sGS}, 2
    s_add_u32 s{sTMP}, s{sTMP}, s{sTMP2}
    v_lshlrev_b32 v{T}, 14, v{lane}
    v_add_u32 v{T}, s{sTMP}, v{T}
    v_add_u32 v{T+1}, 8192, v{T}
    s_waitcnt lgkmcnt(0)
    """)
    srd_off(a, sO, 10, WS_O, NCH * 4096)
    a(f"""
    buffer_load_dword v{c0}, v{T}, s[{sO}:{sO+3}], 0 offen
    buffer_load_dword v{c1}, v{T+1}, s[{sO}:{sO+3}], 0 offen
    """)
    srd(a, sX, 4, 3200000)
    srd(a, sE, 6, 25600000)
    srd(a, sREC, 10, 3200000)
    srd_off(a, sWF, 10, WS_WF, 34 * 1024)
    srd(a, sOUT, 8, 3200000)
    a(f"""
    s_mul_i32 s{sTMP}, s{sGS}, 3200
    s_lshl_b32 s{sTMP2}, s{sP}, 11
    v_lshlrev_b32 v{T+2}, 4, v{lane}
    v_add_u32 v{T+4}, s{sTMP2}, v{T+2}
    v_add_u32 v{T+5}, 1024, v{T+4}
    v_mov_b32 v{T+6}, 0x80000000
    v_cmp_gt_u32 vcc, 3200, v{T+5}
    s_nop 1
    v_cndmask_b32 v{T+5}, v{T+6}, v{T+5}, vcc
    buffer_load_dwordx4 {v(FX,4)}, v{T+4}, s[{sX}:{sX+3}], s{sTMP} offen
    buffer_load_dwordx4 {v(FX+4,4)}, v{T+5}, s[{sX}:{sX+3}], s{sTMP} offen
    """)
    for f in range(18):
        if f % 4 == 0: a(f"s_mov_b32 s{sTMP2}, {f*1024}")
        a(f"buffer_load_dwordx4 {v(W+4*f,4)}, v{T+2}, s[{sWF}:{sWF+3}], s{sTMP2} offen offset:{(f%4)*1024}")
    m, h, t0, t1, t2 = P, P+1, P+2, P+3, P+4
    a(f"""
    v_and_b32 v{m}, 31, v{lane}
    v_lshrrev_b32 v{h}, 5, v{lane}
    v_lshlrev_b32 v{h16}, 4, v{h}
    v_mov_b32 v{one}, 0x3f80
    v_mov_b32 v{zero}, 0
    s_mul_i32 s{sTMP}, s{sW}, {LW}
    s_add_u32 s{sTMP2}, s{sTMP}, {L_LS}
    v_lshrrev_b32 v{t0}, 3, v{lane}
    v_lshlrev_b32 v{vLS}, 4, v{t0}
    v_add_u32 v{vLS}, s{sTMP2}, v{vLS}
    s_add_u32 s{sTMP2}, s{sTMP}, {L_LE}
    v_lshlrev_b32 v{vLE}, 2, v{m}
    v_add_u32 v{vLE}, s{sTMP2}, v{vLE}
    """)
    a(f"""
    v_and_b32 v{t1}, 4, v{t0}
    v_and_b32 v{t2}, 7, v{lane}
    v_xor_b32 v{t1}, v{t1}, v{t2}
    """)
    for i in range(4):
        a(f"v_xor_b32 v{CX+i}, {i}, v{t1}\nv_lshlrev_b32 v{CX+i}, 4, v{CX+i}")
    a(f"""
    v_and_b32 v{t0}, 3, v{m}
    v_lshrrev_b32 v{t1}, 2, v{m}
    v_lshl_add_u32 v{t1}, v{t0}, 3, v{t1}
    v_lshlrev_b32 v{t1}, 7, v{t1}
    v_add_u32 v{t1}, s{sXRB}, v{t1}
    v_lshrrev_b32 v{t2}, 4, v{m}
    v_lshl_or_b32 v{t0}, v{t2}, 2, v{t0}
    v_xor_b32 v{t0}, v{t0}, v{h}
    """)
    for sx in range(4):
        a(f"v_xor_b32 v{XA+sx}, {2*sx}, v{t0}\nv_lshl_add_u32 v{XA+sx}, v{XA+sx}, 4, v{t1}")
    a(f"""
    s_mul_i32 s{sTMP}, s{sW}, 2560
    s_add_u32 s{sTMP}, s{sTMP}, {L_SM}
    v_and_b32 v{t0}, 19, v{m}
    v_and_b32 v{t1}, 4, v{m}
    v_lshl_or_b32 v{t0}, v{t1}, 1, v{t0}
    v_and_b32 v{t1}, 8, v{m}
    v_lshrrev_b32 v{t1}, 1, v{t1}
    v_or_b32 v{t0}, v{t0}, v{t1}
    v_lshlrev_b32 v{t0}, 1, v{t0}
    v_add_u32 v{cS}, s{sTMP}, v{t0}
    v_mul_u32_u24 v{t0}, 80, v{m}
    v_add3_u32 v{cSR}, v{t0}, v{h16}, s{sTMP}
    v_mul_u32_u24 v{t0}, 40, v{lane}
    v_add_u32 v{t0}, s{sTMP}, v{t0}
    v_mov_b32 v{T+6}, 0
    v_mov_b32 v{T+7}, 0
    """)
    for i in range(5):
        a(f"ds_write_b64 v{t0}, {v(T+6,2)} offset:{8*i}")
    a(f"""
    s_mul_i32 s{sTMP}, s{sSUB}, 4608
    s_add_u32 s{sTMP}, s{sTMP}, {L_XD}
    v_add_u32 v{cXD}, s{sTMP}, v{h16}
    s_mul_i32 s{sTMP2}, s{sP}, {16*144}
    s_add_u32 s{sTMP}, s{sTMP}, s{sTMP2}
    v_lshrrev_b32 v{t0}, 3, v{lane}
    v_mul_u32_u24 v{t0}, 144, v{t0}
    v_and_b32 v{t1}, 7, v{lane}
    v_lshl_add_u32 v{t0}, v{t1}, 4, v{t0}
    v_add_u32 v{t0}, s{sTMP}, v{t0}
    """)
    for i in range(32):
        a(f"v_mov_b32 v{AG+i}, 0")
    a(f"""
    v_lshl_add_u32 v{t1}, v{lane}, 2, s{sP}
    v_mul_u32_u24 v{g0}, {CH}, v{t1}
    v_lshl_or_b32 v{g0}, v{t1}, 20, v{g0}
    v_add_u32 v{g1}, {2*CH + (2<<20)}, v{g0}
    s_waitcnt vmcnt(20)
    @stamp 1
    v_and_b32 v{t1}, 0xffff, v{c0}
    v_add_u32 v{g0}, v{g0}, v{t1}
    v_and_b32 v{t1}, 0xffff, v{c1}
    v_add_u32 v{g1}, v{g1}, v{t1}
    v_lshrrev_b32 v{c0}, 16, v{c0}
    v_lshrrev_b32 v{c1}, 16, v{c1}
    v_add_u32 v{p1}, v{c0}, v{c1}
    """)
    wave_scan(a, p1)
    a(f"""
    s_nop 0
    v_readlane_b32 s{sN}, v{p1}, 63
    v_sub_u32 v{p1}, v{p1}, v{c1}
    v_sub_u32 v{p0}, v{p1}, v{c0}
    s_waitcnt vmcnt(18)
    ds_write_b128 v{t0}, {v(FX,4)}
    ds_write_b128 v{t0}, {v(FX+4,4)} offset:{8*144}
    s_mov_b32 s{sBASE}, 0
    s_waitcnt lgkmcnt(0)
    s_barrier
    @stamp 2
    M_BATCH:
    s_cmp_ge_u32 s{sBASE}, s{sN}
    s_cbranch_scc1 M_EPI
    s_sub_u32 s{sCNT}, s{sN}, s{sBASE}
    s_min_u32 s{sCNT}, s{sCNT}, {CAP}
    s_add_u32 s{sT}, s{sCNT}, 31
    s_lshr_b32 s{sT}, s{sT}, 5
    s_mul_i32 s{sTMP}, s{sW}, {LW}
    s_add_u32 s{sTMP}, s{sTMP}, {L_LS}
    """)
    A0, E0, V0, A1, E1, V1, tt = D, D+1, D+2, D+3, D+4, D+5, D+6
    for (pp, cc, gg, A, EE, VV) in ((p0, c0, g0, A0, E0, V0), (p1, c1, g1, A1, E1, V1)):
        a(f"""
        v_subrev_u32 v{tt}, s{sBASE}, v{pp}
        v_max_i32 v{A}, 0, v{tt}
        v_add_u32 v{EE}, v{tt}, v{cc}
        v_min_i32 v{EE}, {CAP}, v{EE}
        v_sub_u32 v{VV}, v{A}, v{tt}
        v_add_u32 v{VV}, v{VV}, v{gg}
        v_lshl_add_u32 v{A}, v{A}, 2, s{sTMP}
        v_lshl_add_u32 v{EE}, v{EE}, 2, s{sTMP}
        """)
    a(f"""
    M_EXP:
    v_cmp_lt_i32 vcc, v{A0}, v{E0}
    v_cmp_lt_i32 s[52:53], v{A1}, v{E1}
    s_mov_b64 exec, vcc
    ds_write_b32 v{A0}, v{V0}
    s_mov_b64 exec, s[52:53]
    ds_write_b32 v{A1}, v{V1}
    s_mov_b64 exec, -1
    v_add_u32 v{A0}, 4, v{A0}
    v_add_u32 v{A1}, 4, v{A1}
    v_add_u32 v{V0}, 1, v{V0}
    v_add_u32 v{V1}, 1, v{V1}
    s_or_b64 s[52:53], s[52:53], vcc
    s_cbranch_scc1 M_EXP
    """)
    qa, G, RC, oob = D+7, D+8, D+16, D+24
    a(f"v_lshl_add_u32 v{qa}, v{lane}, 2, s{sTMP}\nv_mov_b32 v{oob}, 0x80000000")
    for i in range(8):
        a(f"ds_read_b32 v{G+i}, v{qa} offset:{256*i}")
    for i in range(8):
        a(f"""
        s_sub_i32 s{sTMP2}, s{sCNT}, {64*i}
        v_cmp_gt_i32 s[{54+2*i}:{55+2*i}], s{sTMP2}, v{lane}
        s_waitcnt lgkmcnt({7-i})
        v_and_b32 v{tt}, 0xfffff, v{G+i}
        v_lshlrev_b32 v{tt}, 2, v{tt}
        v_cndmask_b32 v{tt}, v{oob}, v{tt}, s[{54+2*i}:{55+2*i}]
        buffer_load_dword v{RC+i}, v{tt}, s[{sREC}:{sREC+3}], 0 offen
        v_lshrrev_b32 v{G+i}, 20, v{G+i}
        v_mul_u32_u24 v{G+i}, {CH}, v{G+i}
        """)
    a(f"""
    v_mov_b32 v{D+25}, 0x8000001f
    ds_write_b32 v{qa}, v{oob} offset:{CAP*4}
    ds_write_b32 v{qa}, v{oob} offset:{CAP*4+256}
    ds_write_b32 v{qa}, v{oob} offset:{CAP*4+384}
    ds_write_b32 v{qa}, v{D+25} offset:{8*LW+CAP*4}
    ds_write_b32 v{qa}, v{D+25} offset:{8*LW+CAP*4+256}
    ds_write_b32 v{qa}, v{D+25} offset:{8*LW+CAP*4+384}
    """)
    for i in range(8):
        a(f"""
        s_waitcnt vmcnt({7-i})
        v_and_b32 v{tt}, 0x7fff, v{RC+i}
        v_lshlrev_b32 v{tt}, 7, v{tt}
        v_cndmask_b32 v{tt}, v{oob}, v{tt}, s[{54+2*i}:{55+2*i}]
        ds_write_b32 v{qa}, v{tt} offset:{256*i}
        v_bfe_u32 v{D+26}, v{RC+i}, 15, 12
        v_add_u32 v{G+i}, v{G+i}, v{D+26}
        v_alignbit_b32 v{G+i}, v{G+i}, v{RC+i}, 27
        v_cndmask_b32 v{G+i}, v{D+25}, v{G+i}, s[{54+2*i}:{55+2*i}]
        ds_write_b32 v{qa}, v{G+i} offset:{8*LW+256*i}
        """)
    ef = OPT["eflags"]
    def e_issue(tile_slot):
        return [f"v_bfi_b32 v{ead}, s{sM31}, v{h16}, v{RR+tile_slot}"], \
               [f"buffer_load_dwordx4 {v(E+4*tile_slot,4)}, v{ead}, s[{sE}:{sE+3}], 0 offen {ef}"]
    def x_addr():
        return [f"v_add_u32 v{S4+i}, v{S4+i}, v{CX+i}" for i in range(4)]
    def x_dma(slot):
        o = []
        for i in range(4):
            o += [f"s_add_u32 m0, s{sXRB}, {slot*4096+i*1024}", "s_nop 0",
                  f"buffer_load_dwordx4 v{S4+i}, s[{sX}:{sX+3}], 0 offen lds"]
        return o
    a("@stamp 3")
    for j in range(4):
        a(f"ds_read_b32 v{RR+j}, v{vLE} offset:{128*j}")
    a(f"ds_read_b128 {v(S4,4)}, v{vLS}")
    a(f"ds_read_b128 {v(T,4)}, v{vLS} offset:128")
    a(f"ds_read_b128 {v(T+4,4)}, v{vLS} offset:256")
    a("s_waitcnt lgkmcnt(0)")
    def emit(l): a("\n".join(l))
    emit(sum(e_issue(0), [])); emit(x_addr()); emit(x_dma(0))
    emit(sum(e_issue(1), []))
    for i in range(4): a(f"v_add_u32 v{S4+i}, v{T+i}, v{CX+i}")
    emit(x_dma(1)); emit(sum(e_issue(2), []))
    a(f"""
    v_and_b32 v{dl}, 31, v{RR}
    v_mad_u32_u24 v{xda}, v{dl}, s70, v{cXD}
    """.replace("s70", "s70"))
    a.L.insert(len(a.L) - 2, "    s_mov_b32 s70, 144")
    a.L.insert(len(a.L) - 2, "    s_mov_b32 s71, 80")
    for sx in range(4): a(f"ds_read_b128 {v(FD+4*sx,4)}, v{xda} offset:{32*sx}")
    a("s_waitcnt vmcnt(6)")
    for sx in range(4): a(f"ds_read_b128 {v(FX+4*sx,4)}, v{XA+sx}")
    a("s_waitcnt lgkmcnt(0)")
    def chain(nh, eslot):
        Dh = v(D + 16 * nh, 16)
        ops = [(FD + 4 * sx, 4 + sx) for sx in range(4)] + [(E + 4 * eslot, 8)] + [(FX + 4 * sx, sx) for sx in range(4)]
        return [f"v_mfma_f32_32x32x16_bf16 {Dh}, {v(fr,4)}, {Wf(ks,nh)}, {'0' if n == 0 else Dh}" for n, (fr, ks) in enumerate(ops)]
    emit(chain(0, 0))
    for i in range(4): a(f"v_add_u32 v{S4+i}, v{T+4+i}, v{CX+i}")
    emit(x_dma(0)); emit(sum(e_issue(3), []))
    a("s_nop 7")
    def silu_block(nh, q):
        Db = D + 16 * nh + 8 * q
        o = []
        if OPT["fold"]:
            o += [f"v_exp_f32 v{T+i}, v{Db+i}" for i in range(8)]
        else:
            o += [f"v_mul_f32 v{T+i}, s72, v{Db+i}" for i in range(8)]
            o += [f"v_exp_f32 v{T+i}, v{T+i}" for i in range(8)]
        o += [f"v_add_f32 v{T+i}, 1.0, v{T+i}" for i in range(8)]
        o += [f"v_rcp_f32 v{T+i}, v{T+i}" for i in range(8)]
        o += [f"v_mul_f32 v{T+i}, v{Db+i}, v{T+i}" for i in range(8)]
        o += [f"v_cvt_pk_bf16_f32 v{P+4*q+i}, v{T+2*i}, v{T+2*i+1}" for i in range(4)]
        return o
    def seg(nh, q):
        Ah = v(AG + 16 * nh, 16)
        return f"v_mfma_f32_32x32x16_bf16 {Ah}, {v(P+4*q,4)}, {v(SF+4*q,4)}, {Ah}"
    def cost(l): return 8 if l.startswith(("v_exp", "v_rcp")) else 4
    def phase(silu_nh, chain_ops, pre, after, extraV):
        b0, b1 = silu_block(silu_nh, 0), silu_block(silu_nh, 1)
        V = b0 + b1
        n0 = len(b0)
        tot = sum(cost(l) for l in V)
        cum = [0]
        for l in V: cum.append(cum[-1] + cost(l))
        def pos_at(frac):
            for i, c in enumerate(cum):
                if c >= frac * tot: return i
            return len(V)
        order = [("g", 0), ("g", 1), ("g", 2), ("g", 3), ("g", 4), ("g", 5), ("s", 0), ("g", 6), ("g", 7), ("g", 8), ("s", 1)]
        M = []; O = {}
        for n, (kind, idx) in enumerate(order):
            p_ = pos_at(n / 10.6)
            if kind == "g":
                M.append((chain_ops[idx], p_)); O[n] = after.get(idx, [])
            elif idx == 0:
                assert p_ >= n0 + 2
                M.append((seg(silu_nh, 0), p_)); O[n] = after.get("s0", [])
            else:
                M.append(("s_nop 1\n" + seg(silu_nh, 1), len(V)))
        assert len(V) - M[9][1] >= 9, (len(V), M[9][1])
        out = interleave(M, V, O)
        return pre + out
    a("s_mov_b32 s72, " + f32(-LOG2E))
    a("@stamp 4")
    if OPT["stamp"]: a(f"s_mov_b32 s90, s{sT}")
    a("M_LOOP:")
    for u in range(4):
        pre = [f"v_mad_u32_u24 v{sad}, v{dl+(u&1)}, s71, v{cS}",
               f"v_and_b32 v{dl+((u+1)&1)}, 31, v{RR+((u+1)&3)}",
               f"ds_write_b16 v{sad}, v{one}",
               f"ds_read_b128 {v(SF,4)}, v{cSR}",
               f"ds_read_b128 {v(SF+4,4)}, v{cSR} offset:32",
               f"ds_write_b16 v{sad}, v{zero}",
               f"v_mad_u32_u24 v{xda}, v{dl+((u+1)&1)}, s70, v{cXD}"]
        after = {}
        for sx in range(4):
            after[sx] = [f"ds_read_b128 {v(FD+4*sx,4)}, v{xda} offset:{32*sx}"]
        slot = (u + 1) & 1
        after[4] = [f"ds_read_b32 v{RR+u}, v{vLE} offset:{128*(u+4)}",
                    f"ds_read_b128 {v(S4,4)}, v{vLS} offset:{128*(u+3)}"]
        after[5] = ["s_waitcnt vmcnt(6) lgkmcnt(7)", f"ds_read_b128 {v(FX,4)}, v{XA} offset:{slot*4096}"]
        for sx in range(1, 4):
            after[5 + sx] = [f"ds_read_b128 {v(FX+4*sx,4)}, v{XA+sx} offset:{slot*4096}"]
        emit(phase(0, chain(1, u), pre, after, None))
        ea, el = e_issue(u)
        dm = x_dma(slot)
        pre = ["s_waitcnt lgkmcnt(4)"]
        after = {0: x_addr() + ea, 2: ["s_waitcnt lgkmcnt(0)"] + dm[0:3], 3: dm[3:6], 4: dm[6:9], 5: dm[9:12], 6: el}
        if u == 3:
            after[7] = [f"v_add_u32 v{vLS}, 512, v{vLS}", f"v_add_u32 v{vLE}, 512, v{vLE}"]
        emit(phase(1, chain(0, (u + 1) & 3), pre, after, None))
        a(f"s_sub_u32 s{sT}, s{sT}, 1\ns_cmp_eq_u32 s{sT}, 0")
        a("s_cbranch_scc1 M_BEND" if u < 3 else "s_cbranch_scc0 M_LOOP")
    a(f"""
    M_BEND:
    s_waitcnt vmcnt(0) lgkmcnt(0)
    s_add_u32 s{sBASE}, s{sBASE}, {CAP}
    s_mul_i32 s{sTMP}, s{sW}, {LW}
    s_add_u32 s{sTMP2}, s{sTMP}, {L_LS}
    v_lshrrev_b32 v{vLS}, 3, v{lane}
    v_lshlrev_b32 v{vLS}, 4, v{vLS}
    v_add_u32 v{vLS}, s{sTMP2}, v{vLS}
    s_add_u32 s{sTMP2}, s{sTMP}, {L_LE}
    v_and_b32 v{vLE}, 31, v{lane}
    v_lshlrev_b32 v{vLE}, 2, v{vLE}
    v_add_u32 v{vLE}, s{sTMP2}, v{vLE}
    s_nop 7
    s_branch M_BATCH
    M_EPI:
    @stamp 5
    s_waitcnt vmcnt(0)
    v_lshlrev_b32 v{T}, 4, v{lane}
    s_lshl_b32 s{sTMP}, s{sP}, 13
    s_add_u32 s{sTMP}, s{sTMP}, {18*1024}
    s_add_u32 s{sTMP2}, s{sTMP}, 4096
    """)
    for f in range(8):
        a(f"buffer_load_dwordx4 {v(W+4*f,4)}, v{T}, s[{sWF}:{sWF+3}], s{sTMP if f < 4 else sTMP2} offen offset:{(f%4)*1024}")
    a(f"v_add_u32 v{T+1}, s{sXRB}, v{T}\nv_xor_b32 v{T+2}, 8192, v{T+1}")
    for i in range(8):
        a(f"ds_write_b128 v{T+1}, {v(AG+4*i,4)} offset:{1024*i}")
    a(f"""
    v_and_b32 v{T+3}, 31, v{lane}
    v_mul_u32_u24 v{T+4}, 144, v{T+3}
    v_add_u32 v{T+4}, v{T+4}, v{cXD}
    """)
    for sx in range(4):
        a(f"ds_read_b128 {v(FX+4*sx,4)}, v{T+4} offset:{32*sx}")
    a("s_waitcnt lgkmcnt(0)\ns_barrier")
    for i in range(8):
        a(f"ds_read_b128 {v(D+4*i,4)}, v{T+2} offset:{1024*i}")
    a(f"""
    s_mov_b32 s72, {f32(-LOG2E)}
    s_mov_b32 s73, {f32(-1.0/LOG2E if OPT['fold'] else 1.0)}
    s_mul_i32 s{sTMP}, s{sGS}, 3200
    s_lshl_b32 s{sTMP2}, s{sP}, 6
    s_add_u32 s{sTMP}, s{sTMP}, s{sTMP2}
    v_lshlrev_b32 v{T+5}, 7, v{T+3}
    v_lshl_add_u32 v{T+5}, v{h16}, 1, v{T+5}
    v_mov_b32 v{T+6}, 0x80000000
    v_cmp_gt_u32 vcc, 25, v{T+3}
    s_nop 1
    v_cndmask_b32 v{T+5}, v{T+6}, v{T+5}, vcc
    s_waitcnt lgkmcnt(0)
    """)
    for i in range(32):
        a(f"v_add_f32 v{AG+i}, v{AG+i}, v{D+i}\nv_mul_f32 v{AG+i}, s73, v{AG+i}")
    for i in range(16):
        a(f"v_cvt_pk_bf16_f32 v{FD+i}, v{AG+2*i}, v{AG+2*i+1}")
    a("s_waitcnt vmcnt(0)\ns_nop 1")
    for st in range(8):
        src = FX + 4 * st if st < 4 else FD + 4 * (st - 4)
        a(f"v_mfma_f32_32x32x16_bf16 {v(D,16)}, {v(W+4*st,4)}, {v(src,4)}, {'0' if st == 0 else v(D,16)}")
    a("s_nop 15")
    for i in range(16): a(f"v_mul_f32 v{AG+i}, s72, v{D+i}")
    for i in range(16): a(f"v_exp_f32 v{AG+i}, v{AG+i}")
    for i in range(16): a(f"v_add_f32 v{AG+i}, 1.0, v{AG+i}")
    for i in range(16): a(f"v_rcp_f32 v{AG+i}, v{AG+i}")
    for i in range(16): a(f"v_mul_f32 v{AG+i}, v{D+i}, v{AG+i}")
    for i in range(8): a(f"v_cvt_pk_bf16_f32 v{FD+i}, v{AG+2*i}, v{AG+2*i+1}")
    a(f"""
    buffer_store_dwordx4 {v(FD,4)}, v{T+5}, s[{sOUT}:{sOUT+3}], s{sTMP} offen
    buffer_store_dwordx4 {v(FD+4,4)}, v{T+5}, s[{sOUT}:{sOUT+3}], s{sTMP} offen offset:16
    """)
    if OPT["stamp"]: a("s_waitcnt vmcnt(0)\n@stamp 6")
    stamp_out(8, f"s_lshl_b32 s74, s2, 3\ns_add_u32 s74, s74, s{sW}", 10, 0x80000)
    a("M_END:\ns_endpgm")
    return R.n

hdr = f"""; MPNN edge-MLP + segment-sum + node update, two launches:
; @launch kernel=sort_kernel grid=(253,1,1) block=(1024,1,1) lds={SORT_LDS}
; @launch kernel=main_kernel grid=(256,1,1) block=(512,1,1) lds={MAIN_LDS}
.amdgcn_target "amdgcn-amd-amdhsa--gfx950"
.text
.globl sort_kernel
.type sort_kernel,@function
.globl main_kernel
.type main_kernel,@function
"""
gen_sort()
nv = gen_main()
txt = hdr + a.text() + '.section .rodata,"a"\n.p2align 6\n' + kdesc("sort_kernel", 56) + ".p2align 6\n" + kdesc("main_kernel", 256)
open(sys.argv[1], "w").write(txt)
print("main vgprs", nv, "lds", MAIN_LDS, SORT_LDS)
```

```python
import sys, struct
from asmlib import *

OPT = dict(stamp=False, fold=True, eflags="nt", idxflags="nt", xpf=True, stflags="")
for arg in sys.argv[2:]:
    k, val = arg.split("=")
    OPT[k] = {"True": True, "False": False}.get(val, val.replace("+", " "))

NCH, CH = 250, 3200
WS_REC, WS_O, WS_WF = 0, 0x400000, 0x600000
LOG2E = 1.4426950408889634
def f32(x): return "0x%08x" % struct.unpack("<I", struct.pack("<f", x))[0]

a = Asm()
WS_ST = 0x700000
a.stamps = OPT["stamp"]
def stamp(i):
    if OPT["stamp"]: a(f"s_memrealtime s[{76+2*i}:{77+2*i}]")
def stamp_out(n, wid_sgpr_expr, base_sgpr, region):
    if not OPT["stamp"]: return
    if OPT["stamp"] == "dbg":
        first = region == 0
        if first: a("s_cmp_lg_u32 s37, 0\ns_cbranch_scc1 S_END")
        a("s_load_dwordx2 s[92:93], s[0:1], 56\ns_waitcnt lgkmcnt(0)")
        if first: a("s_add_u32 s92, s92, 512\ns_addc_u32 s93, s93, 0")
        a("v_mov_b32 v0, 0\ns_mov_b64 exec, 1")
        base = 0 if first else 7
        a(f"s_not_b32 s74, s76\nv_mov_b32 v1, s74\nglobal_atomic_umax v0, v1, s[92:93] offset:{4*base}")
        for i in range(min(n, 7)):
            a(f"v_mov_b32 v1, s{76+2*i}\nglobal_atomic_umax v0, v1, s[92:93] offset:{4*(base+1+i)}")
        return
    a("s_waitcnt lgkmcnt(0)")
    a(wid_sgpr_expr)
    a(f"s_lshl_b32 s74, s74, 6\ns_add_u32 s74, s74, {WS_ST+region}\ns_add_u32 s92, s{base_sgpr}, s74\ns_addc_u32 s93, s{base_sgpr+1}, 0\nv_mov_b32 v0, 0")
    for i in range(n):
        a(f"v_mov_b32 v1, s{76+2*i}\nglobal_store_dword v0, v1, s[92:93] offset:{4*i}")
SORT_LDS = 4096 + 128 + CH * 4
def gen_sort():
    a(".p2align 8\nsort_kernel:")
    a("""
    s_cmp_ge_u32 s2, 253
    s_cbranch_scc1 S_END
    s_load_dwordx4 s[4:7], s[0:1], 16
    s_load_dwordx2 s[8:9], s[0:1], 0
    s_load_dwordx2 s[10:11], s[0:1], 64
    s_load_dwordx4 s[12:15], s[0:1], 32
    s_cmp_ge_u32 s2, 250
    s_cbranch_scc1 S_WPREP
    @stamp 0
    v_lshlrev_b32 v2, 2, v0
    v_mov_b32 v3, 0
    ds_write_b32 v2, v3
    s_mul_i32 s3, s2, 12800
    v_lshl_add_u32 v1, v0, 4, s3
    v_cmp_gt_u32 vcc, 800, v0
    s_mov_b64 s[40:41], vcc
    v_mov_b32 v12, 0x80000000
    v_cndmask_b32 v1, v12, v1, vcc
    s_lshr_b32 s36, s2, 3
    s_mul_i32 s36, s36, 102400
    v_lshl_add_u32 v13, v0, 7, s36
    v_cndmask_b32 v13, v12, v13, vcc
    s_waitcnt lgkmcnt(0)
    """)
    srd(a, 16, 4, 3200000)
    srd(a, 20, 6, 3200000)
    srd(a, 24, 10, 0x800000)
    srd(a, 28, 8, 3200000)
    fl = OPT["idxflags"]
    a(f"""
    buffer_load_dwordx4 v[4:7], v1, s[20:23], 0 offen {fl}
    buffer_load_dwordx4 v[8:11], v1, s[16:19], 0 offen {fl}
    """)
    npf = 0
    if OPT["xpf"]:
        a("buffer_load_dword v14, v13, s[28:31], 0 offen"); npf = 1
    a(f"""
    v_mov_b32 v15, 1
    v_lshlrev_b32 v16, 17, v0
    s_barrier
    s_waitcnt vmcnt({npf+1})
    @stamp 1
    """)
    for i in range(4):
        a(f"""
        v_mul_u32_u24 v{20+i}, 5243, v{4+i}
        v_lshrrev_b32 v{20+i}, 17, v{20+i}
        v_mul_u32_u24 v{28+i}, 25, v{20+i}
        v_sub_u32 v{28+i}, v{4+i}, v{28+i}
        v_lshlrev_b32 v{20+i}, 2, v{20+i}
        """)
    a("s_mov_b64 exec, s[40:41]")
    for i in range(4):
        a(f"ds_add_rtn_u32 v{24+i}, v{20+i}, v15")
    a(f"s_mov_b64 exec, -1\ns_waitcnt vmcnt({npf})")
    for i in range(4):
        a(f"""
        v_lshl_or_b32 v{28+i}, v{28+i}, 27, v{8+i}
        v_add_u32 v17, {i<<15}, v16
        v_or_b32 v{28+i}, v{28+i}, v17
        """)
    a("""
    s_waitcnt lgkmcnt(0)
    s_barrier
    @stamp 2
    ds_read_b32 v32, v2
    v_lshrrev_b32 v34, 6, v0
    v_lshlrev_b32 v35, 2, v34
    v_readfirstlane_b32 s37, v34
    s_waitcnt lgkmcnt(0)
    v_mov_b32 v33, v32
    """)
    wave_scan(a, 33)
    a("""
    s_mov_b32 exec_lo, 0
    s_mov_b32 exec_hi, 0x80000000
    ds_write_b32 v35, v33 offset:4096
    s_mov_b64 exec, -1
    v_and_b32 v36, 15, v0
    v_lshlrev_b32 v36, 2, v36
    s_waitcnt lgkmcnt(0)
    s_barrier
    ds_read_b32 v37, v36 offset:4096
    s_waitcnt lgkmcnt(0)
    v_mov_b32 v38, v37
    """)
    for sh in (1, 2, 4, 8):
        a(f"s_nop 1\nv_add_u32_dpp v38, v38, v38 row_shr:{sh} row_mask:0xf bank_mask:0xf bound_ctrl:0")
    st = OPT["stflags"]
    a(f"""
    v_sub_u32 v38, v38, v37
    s_nop 0
    v_readlane_b32 s38, v38, s37
    v_sub_u32 v33, v33, v32
    s_nop 1
    v_add_u32 v33, s38, v33
    ds_write_b32 v2, v33
    v_lshl_or_b32 v39, v32, 16, v33
    s_lshl_b32 s39, s2, 12
    s_add_u32 s39, s39, {WS_O}
    buffer_store_dword v39, v2, s[24:27], s39 offen {st}
    s_waitcnt lgkmcnt(0)
    s_barrier
    @stamp 3
    s_mov_b64 exec, s[40:41]
    """)
    for i in range(4):
        a(f"ds_read_b32 v{40+i}, v{20+i}")
    for i in range(4):
        a(f"""
        s_waitcnt lgkmcnt({3})
        v_add_lshl_u32 v{40+i}, v{40+i}, v{24+i}, 2
        ds_write_b32 v{40+i}, v{28+i} offset:4224
        """)
    a(f"""
    s_mov_b64 exec, -1
    v_lshlrev_b32 v44, 4, v0
    s_waitcnt lgkmcnt(0)
    s_barrier
    s_mov_b64 exec, s[40:41]
    ds_read_b128 v[48:51], v44 offset:4224
    s_mov_b64 exec, -1
    s_waitcnt lgkmcnt(0)
    buffer_store_dwordx4 v[48:51], v1, s[24:27], 0 offen {st}
    @stamp 4
    """)
    if OPT["stamp"]: a("s_waitcnt vmcnt(0)\n@stamp 5")
    stamp_out(6, "s_lshl_b32 s74, s2, 4\ns_add_u32 s74, s74, s37", 10, 0)
    a("s_endpgm")
    scale = -LOG2E if OPT["fold"] else 1.0
    a(f"""
    S_WPREP:
    v_lshrrev_b32 v1, 6, v0
    s_nop 0
    v_readfirstlane_b32 s3, v1
    s_sub_u32 s16, s2, 250
    s_lshl_b32 s16, s16, 4
    s_add_u32 s3, s3, s16
    s_cmp_ge_u32 s3, 34
    s_cbranch_scc1 S_END
    v_and_b32 v1, 31, v0
    v_bfe_u32 v2, v0, 5, 1
    s_waitcnt lgkmcnt(0)
    s_mov_b32 s22, 18432
    s_mov_b32 s23, 0x20000
    s_cmp_ge_u32 s3, 18
    s_cbranch_scc1 S_WUPD
    s_mov_b32 s20, s12
    s_mov_b32 s21, s13
    s_lshr_b32 s30, s3, 1
    s_and_b32 s31, s3, 1
    s_lshl_b32 s31, s31, 5
    v_add_u32 v3, s31, v1
    s_mov_b32 s32, 8
    s_mov_b32 s33, 512
    s_mov_b32 s34, {f32(scale)}
    s_branch S_WLOAD
    S_WUPD:
    s_mov_b32 s20, s14
    s_mov_b32 s21, s15
    s_mov_b32 s22, 16384
    s_sub_u32 s35, s3, 18
    s_and_b32 s30, s35, 7
    s_lshr_b32 s31, s35, 3
    s_lshl_b32 s31, s31, 5
    v_bfe_u32 v4, v1, 2, 1
    v_lshlrev_b32 v4, 4, v4
    v_lshrrev_b32 v5, 3, v1
    v_lshl_add_u32 v4, v5, 2, v4
    v_and_b32 v5, 3, v1
    v_add3_u32 v3, v4, v5, s31
    s_cmp_ge_u32 s30, 4
    s_cselect_b32 s32, 4, 8
    s_mov_b32 s33, 512
    s_cselect_b32 s33, 1024, s33
    s_mov_b32 s34, 1.0
    S_WLOAD:
    s_lshl_b32 s30, s30, 4
    v_mul_lo_u32 v4, v2, s32
    v_add_u32 v4, s30, v4
    v_lshlrev_b32 v4, 7, v4
    v_lshl_add_u32 v4, v3, 1, v4
    """)
    for i in range(8):
        so = "0" if i < 4 else "s33"
        a(f"buffer_load_ushort v{8+i}, v4, s[20:23], {so} offen offset:{(i&3)*128}")
    srd(a, 24, 10, 0x800000)
    a(f"""
    v_and_b32 v5, 63, v0
    v_lshlrev_b32 v5, 4, v5
    s_lshl_b32 s35, s3, 10
    s_add_u32 s35, s35, {WS_WF}
    s_waitcnt vmcnt(0)
    """)
    for i in range(8):
        a(f"v_lshlrev_b32 v{8+i}, 16, v{8+i}\nv_mul_f32 v{8+i}, s34, v{8+i}")
    for i in range(4):
        a(f"v_cvt_pk_bf16_f32 v{16+i}, v{8+2*i}, v{9+2*i}")
    a("""
    buffer_store_dwordx4 v[16:19], v5, s[24:27], s35 offen
    S_END:
    s_endpgm
    """)

CAP, PAD = 512, 160
LW = (CAP + PAD) * 4
L_XR = 0
L_LS = 65536
L_LE = L_LS + 8 * LW
L_SM = L_LE + 8 * LW
L_XD = L_SM + 8 * 2560
MAIN_LDS = L_XD + 4 * 4608

def interleave(M, V, O):
    out = []
    mi = 0
    for i in range(len(V) + 1):
        while mi < len(M) and M[mi][1] <= i:
            out.append(M[mi][0]); out += O.get(mi, []); mi += 1
        if i < len(V): out.append(V[i])
    assert mi == len(M)
    return out

def gen_main():
    R = Regs("v", 1, 256)
    lane = R.alloc("lane");
    vLS = R.alloc("vLS"); vLE = R.alloc("vLE")
    cS = R.alloc("cS"); cXD = R.alloc("cXD"); cSR = R.alloc("cSR"); h16 = R.alloc("h16")
    one = R.alloc("one"); zero = R.alloc("zero")
    dl = R.alloc("dl", 2); sad = R.alloc("sad"); xda = R.alloc("xda"); ead = R.alloc("ead")
    g0 = R.alloc("g0"); g1 = R.alloc("g1"); p0 = R.alloc("p0"); p1 = R.alloc("p1"); c0 = R.alloc("c0"); c1 = R.alloc("c1")
    XA = R.alloc("XA", 4); CX = R.alloc("CX", 4); RR = R.alloc("RR", 4)
    S4 = R.alloc("S4", 4, 4)
    T = R.alloc("T", 8, 4); P = R.alloc("P", 8, 4); SF = R.alloc("SF", 8, 4)
    FX = R.alloc("FX", 16, 4); FD = R.alloc("FD", 16, 4); E = R.alloc("E", 16, 4)
    D = R.alloc("D", 32, 4); AG = R.alloc("AG", 32, 4); W = R.alloc("W", 72, 4)
    def Wf(ks, nh): return v(W + (ks * 2 + nh) * 4, 4)
    sX, sE, sREC, sO, sWF, sOUT = 16, 20, 24, 28, 32, 36
    sW, sP, sSUB, sGS, sN, sBASE, sCNT, sT, sXRB, sTMP, sTMP2, sM31 = 40, 41, 42, 43, 44, 45, 46, 47, 48, 49, 50, 51
    a(".p2align 8\nmain_kernel:")
    a(f"""
    s_and_b32 s3, s2, 7
    s_lshr_b32 s4, s2, 3
    s_mul_i32 s5, s3, 125
    s_add_u32 s6, s5, 125
    s_lshr_b32 s5, s5, 2
    s_lshr_b32 s6, s6, 2
    s_add_u32 s3, s5, s4
    s_cmp_ge_u32 s3, s6
    s_cbranch_scc1 M_END
    @stamp 0
    s_load_dwordx4 s[4:7], s[0:1], 0
    s_load_dwordx2 s[8:9], s[0:1], 48
    s_load_dwordx2 s[10:11], s[0:1], 64
    v_lshrrev_b32 v{T}, 6, v0
    v_and_b32 v{lane}, 63, v0
    v_readfirstlane_b32 s{sW}, v{T}
    s_nop 3
    s_and_b32 s{sP}, s{sW}, 1
    s_lshr_b32 s{sSUB}, s{sW}, 1
    s_lshl_b32 s{sGS}, s3, 2
    s_add_u32 s{sGS}, s{sGS}, s{sSUB}
    s_lshl_b32 s{sXRB}, s{sW}, 13
    s_mov_b32 s{sM31}, 31
    s_lshl_b32 s{sTMP}, s{sP}, 12
    s_lshl_b32 s{sTMP2}, s{sGS}, 2
    s_add_u32 s{sTMP}, s{sTMP}, s{sTMP2}
    v_lshlrev_b32 v{T}, 14, v{lane}
    v_add_u32 v{T}, s{sTMP}, v{T}
    v_add_u32 v{T+1}, 8192, v{T}
    s_waitcnt lgkmcnt(0)
    """)
    srd_off(a, sO, 10, WS_O, NCH * 4096)
    a(f"""
    buffer_load_dword v{c0}, v{T}, s[{sO}:{sO+3}], 0 offen
    buffer_load_dword v{c1}, v{T+1}, s[{sO}:{sO+3}], 0 offen
    """)
    srd(a, sX, 4, 3200000)
    srd(a, sE, 6, 25600000)
    srd(a, sREC, 10, 3200000)
    srd_off(a, sWF, 10, WS_WF, 34 * 1024)
    srd(a, sOUT, 8, 3200000)
    a(f"""
    s_mul_i32 s{sTMP}, s{sGS}, 3200
    s_lshl_b32 s{sTMP2}, s{sP}, 11
    v_lshlrev_b32 v{T+2}, 4, v{lane}
    v_add_u32 v{T+4}, s{sTMP2}, v{T+2}
    v_add_u32 v{T+5}, 1024, v{T+4}
    v_mov_b32 v{T+6}, 0x80000000
    v_cmp_gt_u32 vcc, 3200, v{T+5}
    s_nop 1
    v_cndmask_b32 v{T+5}, v{T+6}, v{T+5}, vcc
    buffer_load_dwordx4 {v(FX,4)}, v{T+4}, s[{sX}:{sX+3}], s{sTMP} offen
    buffer_load_dwordx4 {v(FX+4,4)}, v{T+5}, s[{sX}:{sX+3}], s{sTMP} offen
    """)
    for f in range(18):
        if f % 4 == 0: a(f"s_mov_b32 s{sTMP2}, {f*1024}")
        a(f"buffer_load_dwordx4 {v(W+4*f,4)}, v{T+2}, s[{sWF}:{sWF+3}], s{sTMP2} offen offset:{(f%4)*1024}")
    m, h, t0, t1, t2 = P, P+1, P+2, P+3, P+4
    a(f"""
    v_and_b32 v{m}, 31, v{lane}
    v_lshrrev_b32 v{h}, 5, v{lane}
    v_lshlrev_b32 v{h16}, 4, v{h}
    v_mov_b32 v{one}, 0x3f80
    v_mov_b32 v{zero}, 0
    s_mul_i32 s{sTMP}, s{sW}, {LW}
    s_add_u32 s{sTMP2}, s{sTMP}, {L_LS}
    v_lshrrev_b32 v{t0}, 3, v{lane}
    v_lshlrev_b32 v{vLS}, 4, v{t0}
    v_add_u32 v{vLS}, s{sTMP2}, v{vLS}
    s_add_u32 s{sTMP2}, s{sTMP}, {L_LE}
    v_lshlrev_b32 v{vLE}, 2, v{m}
    v_add_u32 v{vLE}, s{sTMP2}, v{vLE}
    """)
    a(f"""
    v_and_b32 v{t1}, 4, v{t0}
    v_and_b32 v{t2}, 7, v{lane}
    v_xor_b32 v{t1}, v{t1}, v{t2}
    """)
    for i in range(4):
        a(f"v_xor_b32 v{CX+i}, {i}, v{t1}\nv_lshlrev_b32 v{CX+i}, 4, v{CX+i}")
    a(f"""
    v_and_b32 v{t0}, 3, v{m}
    v_lshrrev_b32 v{t1}, 2, v{m}
    v_lshl_add_u32 v{t1}, v{t0}, 3, v{t1}
    v_lshlrev_b32 v{t1}, 7, v{t1}
    v_add_u32 v{t1}, s{sXRB}, v{t1}
    v_lshrrev_b32 v{t2}, 4, v{m}
    v_lshl_or_b32 v{t0}, v{t2}, 2, v{t0}
    v_xor_b32 v{t0}, v{t0}, v{h}
    """)
    for sx in range(4):
        a(f"v_xor_b32 v{XA+sx}, {2*sx}, v{t0}\nv_lshl_add_u32 v{XA+sx}, v{XA+sx}, 4, v{t1}")
    a(f"""
    s_mul_i32 s{sTMP}, s{sW}, 2560
    s_add_u32 s{sTMP}, s{sTMP}, {L_SM}
    v_and_b32 v{t0}, 19, v{m}
    v_and_b32 v{t1}, 4, v{m}
    v_lshl_or_b32 v{t0}, v{t1}, 1, v{t0}
    v_and_b32 v{t1}, 8, v{m}
    v_lshrrev_b32 v{t1}, 1, v{t1}
    v_or_b32 v{t0}, v{t0}, v{t1}
    v_lshlrev_b32 v{t0}, 1, v{t0}
    v_add_u32 v{cS}, s{sTMP}, v{t0}
    v_mul_u32_u24 v{t0}, 80, v{m}
    v_add3_u32 v{cSR}, v{t0}, v{h16}, s{sTMP}
    v_mul_u32_u24 v{t0}, 40, v{lane}
    v_add_u32 v{t0}, s{sTMP}, v{t0}
    v_mov_b32 v{T+6}, 0
    v_mov_b32 v{T+7}, 0
    """)
    for i in range(5):
        a(f"ds_write_b64 v{t0}, {v(T+6,2)} offset:{8*i}")
    a(f"""
    s_mul_i32 s{sTMP}, s{sSUB}, 4608
    s_add_u32 s{sTMP}, s{sTMP}, {L_XD}
    v_add_u32 v{cXD}, s{sTMP}, v{h16}
    s_mul_i32 s{sTMP2}, s{sP}, {16*144}
    s_add_u32 s{sTMP}, s{sTMP}, s{sTMP2}
    v_lshrrev_b32 v{t0}, 3, v{lane}
    v_mul_u32_u24 v{t0}, 144, v{t0}
    v_and_b32 v{t1}, 7, v{lane}
    v_lshl_add_u32 v{t0}, v{t1}, 4, v{t0}
    v_add_u32 v{t0}, s{sTMP}, v{t0}
    """)
    for i in range(32):
        a(f"v_mov_b32 v{AG+i}, 0")
    a(f"""
    v_lshl_add_u32 v{t1}, v{lane}, 2, s{sP}
    v_mul_u32_u24 v{g0}, {CH}, v{t1}
    v_lshl_or_b32 v{g0}, v{t1}, 20, v{g0}
    v_add_u32 v{g1}, {2*CH + (2<<20)}, v{g0}
    s_waitcnt vmcnt(20)
    @stamp 1
    v_and_b32 v{t1}, 0xffff, v{c0}
    v_add_u32 v{g0}, v{g0}, v{t1}
    v_and_b32 v{t1}, 0xffff, v{c1}
    v_add_u32 v{g1}, v{g1}, v{t1}
    v_lshrrev_b32 v{c0}, 16, v{c0}
    v_lshrrev_b32 v{c1}, 16, v{c1}
    v_add_u32 v{p1}, v{c0}, v{c1}
    """)
    wave_scan(a, p1)
    a(f"""
    s_nop 0
    v_readlane_b32 s{sN}, v{p1}, 63
    v_sub_u32 v{p1}, v{p1}, v{c1}
    v_sub_u32 v{p0}, v{p1}, v{c0}
    s_waitcnt vmcnt(18)
    ds_write_b128 v{t0}, {v(FX,4)}
    ds_write_b128 v{t0}, {v(FX+4,4)} offset:{8*144}
    s_mov_b32 s{sBASE}, 0
    s_waitcnt lgkmcnt(0)
    s_barrier
    @stamp 2
    M_BATCH:
    s_cmp_ge_u32 s{sBASE}, s{sN}
    s_cbranch_scc1 M_EPI
    s_sub_u32 s{sCNT}, s{sN}, s{sBASE}
    s_min_u32 s{sCNT}, s{sCNT}, {CAP}
    s_add_u32 s{sT}, s{sCNT}, 31
    s_lshr_b32 s{sT}, s{sT}, 5
    s_mul_i32 s{sTMP}, s{sW}, {LW}
    s_add_u32 s{sTMP}, s{sTMP}, {L_LS}
    """)
    A0, E0, V0, A1, E1, V1, tt = D, D+1, D+2, D+3, D+4, D+5, D+6
    for (pp, cc, gg, A, EE, VV) in ((p0, c0, g0, A0, E0, V0), (p1, c1, g1, A1, E1, V1)):
        a(f"""
        v_subrev_u32 v{tt}, s{sBASE}, v{pp}
        v_max_i32 v{A}, 0, v{tt}
        v_add_u32 v{EE}, v{tt}, v{cc}
        v_min_i32 v{EE}, {CAP}, v{EE}
        v_sub_u32 v{VV}, v{A}, v{tt}
        v_add_u32 v{VV}, v{VV}, v{gg}
        v_lshl_add_u32 v{A}, v{A}, 2, s{sTMP}
        v_lshl_add_u32 v{EE}, v{EE}, 2, s{sTMP}
        """)
    a(f"""
    M_EXP:
    v_cmp_lt_i32 vcc, v{A0}, v{E0}
    v_cmp_lt_i32 s[52:53], v{A1}, v{E1}
    s_mov_b64 exec, vcc
    ds_write_b32 v{A0}, v{V0}
    s_mov_b64 exec, s[52:53]
    ds_write_b32 v{A1}, v{V1}
    s_mov_b64 exec, -1
    v_add_u32 v{A0}, 4, v{A0}
    v_add_u32 v{A1}, 4, v{A1}
    v_add_u32 v{V0}, 1, v{V0}
    v_add_u32 v{V1}, 1, v{V1}
    s_or_b64 s[52:53], s[52:53], vcc
    s_cbranch_scc1 M_EXP
    """)
    qa, G, RC, oob = D+7, D+8, D+16, D+24
    a(f"v_lshl_add_u32 v{qa}, v{lane}, 2, s{sTMP}\nv_mov_b32 v{oob}, 0x80000000")
    for i in range(8):
        a(f"ds_read_b32 v{G+i}, v{qa} offset:{256*i}")
    for i in range(8):
        a(f"""
        s_sub_i32 s{sTMP2}, s{sCNT}, {64*i}
        v_cmp_gt_i32 s[{54+2*i}:{55+2*i}], s{sTMP2}, v{lane}
        s_waitcnt lgkmcnt({7-i})
        v_and_b32 v{tt}, 0xfffff, v{G+i}
        v_lshlrev_b32 v{tt}, 2, v{tt}
        v_cndmask_b32 v{tt}, v{oob}, v{tt}, s[{54+2*i}:{55+2*i}]
        buffer_load_dword v{RC+i}, v{tt}, s[{sREC}:{sREC+3}], 0 offen
        v_lshrrev_b32 v{G+i}, 20, v{G+i}
        v_mul_u32_u24 v{G+i}, {CH}, v{G+i}
        """)
    a(f"""
    v_mov_b32 v{D+25}, 0x8000001f
    ds_write_b32 v{qa}, v{oob} offset:{CAP*4}
    ds_write_b32 v{qa}, v{oob} offset:{CAP*4+256}
    ds_write_b32 v{qa}, v{oob} offset:{CAP*4+384}
    ds_write_b32 v{qa}, v{D+25} offset:{8*LW+CAP*4}
    ds_write_b32 v{qa}, v{D+25} offset:{8*LW+CAP*4+256}
    ds_write_b32 v{qa}, v{D+25} offset:{8*LW+CAP*4+384}
    """)
    for i in range(8):
        a(f"""
        s_waitcnt vmcnt({7-i})
        v_and_b32 v{tt}, 0x7fff, v{RC+i}
        v_lshlrev_b32 v{tt}, 7, v{tt}
        v_cndmask_b32 v{tt}, v{oob}, v{tt}, s[{54+2*i}:{55+2*i}]
        ds_write_b32 v{qa}, v{tt} offset:{256*i}
        v_bfe_u32 v{D+26}, v{RC+i}, 15, 12
        v_add_u32 v{G+i}, v{G+i}, v{D+26}
        v_alignbit_b32 v{G+i}, v{G+i}, v{RC+i}, 27
        v_cndmask_b32 v{G+i}, v{D+25}, v{G+i}, s[{54+2*i}:{55+2*i}]
        ds_write_b32 v{qa}, v{G+i} offset:{8*LW+256*i}
        """)
    ef = OPT["eflags"]
    def e_issue(tile_slot):
        return [f"v_bfi_b32 v{ead}, s{sM31}, v{h16}, v{RR+tile_slot}"], \
               [f"buffer_load_dwordx4 {v(E+4*tile_slot,4)}, v{ead}, s[{sE}:{sE+3}], 0 offen {ef}"]
    def x_addr():
        return [f"v_add_u32 v{S4+i}, v{S4+i}, v{CX+i}" for i in range(4)]
    def x_dma(slot):
        o = []
        for i in range(4):
            o += [f"s_add_u32 m0, s{sXRB}, {slot*4096+i*1024}", "s_nop 0",
                  f"buffer_load_dwordx4 v{S4+i}, s[{sX}:{sX+3}], 0 offen lds"]
        return o
    a("@stamp 3")
    for j in range(4):
        a(f"ds_read_b32 v{RR+j}, v{vLE} offset:{128*j}")
    a(f"ds_read_b128 {v(S4,4)}, v{vLS}")
    a(f"ds_read_b128 {v(T,4)}, v{vLS} offset:128")
    a(f"ds_read_b128 {v(T+4,4)}, v{vLS} offset:256")
    a("s_waitcnt lgkmcnt(0)")
    def emit(l): a("\n".join(l))
    emit(sum(e_issue(0), [])); emit(x_addr()); emit(x_dma(0))
    emit(sum(e_issue(1), []))
    for i in range(4): a(f"v_add_u32 v{S4+i}, v{T+i}, v{CX+i}")
    emit(x_dma(1)); emit(sum(e_issue(2), []))
    a(f"""
    v_and_b32 v{dl}, 31, v{RR}
    v_mad_u32_u24 v{xda}, v{dl}, s70, v{cXD}
    """.replace("s70", "s70"))
    a.L.insert(len(a.L) - 2, "    s_mov_b32 s70, 144")
    a.L.insert(len(a.L) - 2, "    s_mov_b32 s71, 80")
    for sx in range(4): a(f"ds_read_b128 {v(FD+4*sx,4)}, v{xda} offset:{32*sx}")
    a("s_waitcnt vmcnt(6)")
    for sx in range(4): a(f"ds_read_b128 {v(FX+4*sx,4)}, v{XA+sx}")
    a("s_waitcnt lgkmcnt(0)")
    def chain(nh, eslot):
        Dh = v(D + 16 * nh, 16)
        ops = [(FD + 4 * sx, 4 + sx) for sx in range(4)] + [(E + 4 * eslot, 8)] + [(FX + 4 * sx, sx) for sx in range(4)]
        return [f"v_mfma_f32_32x32x16_bf16 {Dh}, {v(fr,4)}, {Wf(ks,nh)}, {'0' if n == 0 else Dh}" for n, (fr, ks) in enumerate(ops)]
    emit(chain(0, 0))
    for i in range(4): a(f"v_add_u32 v{S4+i}, v{T+4+i}, v{CX+i}")
    emit(x_dma(0)); emit(sum(e_issue(3), []))
    a("s_nop 7")
    def silu_block(nh, q):
        Db = D + 16 * nh + 8 * q
        o = []
        if OPT["fold"]:
            o += [f"v_exp_f32 v{T+i}, v{Db+i}" for i in range(8)]
        else:
            o += [f"v_mul_f32 v{T+i}, s72, v{Db+i}" for i in range(8)]
            o += [f"v_exp_f32 v{T+i}, v{T+i}" for i in range(8)]
        o += [f"v_add_f32 v{T+i}, 1.0, v{T+i}" for i in range(8)]
        o += [f"v_rcp_f32 v{T+i}, v{T+i}" for i in range(8)]
        o += [f"v_mul_f32 v{T+i}, v{Db+i}, v{T+i}" for i in range(8)]
        o += [f"v_cvt_pk_bf16_f32 v{P+4*q+i}, v{T+2*i}, v{T+2*i+1}" for i in range(4)]
        return o
    def seg(nh, q):
        Ah = v(AG + 16 * nh, 16)
        return f"v_mfma_f32_32x32x16_bf16 {Ah}, {v(P+4*q,4)}, {v(SF+4*q,4)}, {Ah}"
    def cost(l): return 8 if l.startswith(("v_exp", "v_rcp")) else 4
    def phase(silu_nh, chain_ops, pre, after, extraV):
        b0, b1 = silu_block(silu_nh, 0), silu_block(silu_nh, 1)
        V = b0 + b1
        n0 = len(b0)
        tot = sum(cost(l) for l in V)
        cum = [0]
        for l in V: cum.append(cum[-1] + cost(l))
        def pos_at(frac):
            for i, c in enumerate(cum):
                if c >= frac * tot: return i
            return len(V)
        order = [("g", 0), ("g", 1), ("g", 2), ("g", 3), ("g", 4), ("g", 5), ("s", 0), ("g", 6), ("g", 7), ("g", 8), ("s", 1)]
        M = []; O = {}
        for n, (kind, idx) in enumerate(order):
            p_ = pos_at(n / 10.6)
            if kind == "g":
                M.append((chain_ops[idx], p_)); O[n] = after.get(idx, [])
            elif idx == 0:
                assert p_ >= n0 + 2
                M.append((seg(silu_nh, 0), p_)); O[n] = after.get("s0", [])
            else:
                M.append(("s_nop 1\n" + seg(silu_nh, 1), len(V)))
        assert len(V) - M[9][1] >= 9, (len(V), M[9][1])
        out = interleave(M, V, O)
        return pre + out
    a("s_mov_b32 s72, " + f32(-LOG2E))
    a("@stamp 4")
    if OPT["stamp"]: a(f"s_mov_b32 s90, s{sT}")
    a("M_LOOP:")
    for u in range(4):
        pre = [f"v_mad_u32_u24 v{sad}, v{dl+(u&1)}, s71, v{cS}",
               f"v_and_b32 v{dl+((u+1)&1)}, 31, v{RR+((u+1)&3)}",
               f"ds_write_b16 v{sad}, v{one}",
               f"ds_read_b128 {v(SF,4)}, v{cSR}",
               f"ds_read_b128 {v(SF+4,4)}, v{cSR} offset:32",
               f"ds_write_b16 v{sad}, v{zero}",
               f"v_mad_u32_u24 v{xda}, v{dl+((u+1)&1)}, s70, v{cXD}"]
        after = {}
        for sx in range(4):
            after[sx] = [f"ds_read_b128 {v(FD+4*sx,4)}, v{xda} offset:{32*sx}"]
        slot = (u + 1) & 1
        after[4] = [f"ds_read_b32 v{RR+u}, v{vLE} offset:{128*(u+4)}",
                    f"ds_read_b128 {v(S4,4)}, v{vLS} offset:{128*(u+3)}"]
        after[5] = ["s_waitcnt vmcnt(6) lgkmcnt(7)", f"ds_read_b128 {v(FX,4)}, v{XA} offset:{slot*4096}"]
        for sx in range(1, 4):
            after[5 + sx] = [f"ds_read_b128 {v(FX+4*sx,4)}, v{XA+sx} offset:{slot*4096}"]
        emit(phase(0, chain(1, u), pre, after, None))
        ea, el = e_issue(u)
        dm = x_dma(slot)
        pre = ["s_waitcnt lgkmcnt(4)"]
        after = {0: x_addr() + ea, 2: ["s_waitcnt lgkmcnt(0)"] + dm[0:3], 3: dm[3:6], 4: dm[6:9], 5: dm[9:12], 6: el}
        if u == 3:
            after[7] = [f"v_add_u32 v{vLS}, 512, v{vLS}", f"v_add_u32 v{vLE}, 512, v{vLE}"]
        emit(phase(1, chain(0, (u + 1) & 3), pre, after, None))
        a(f"s_sub_u32 s{sT}, s{sT}, 1\ns_cmp_eq_u32 s{sT}, 0")
        a("s_cbranch_scc1 M_BEND" if u < 3 else "s_cbranch_scc0 M_LOOP")
    a(f"""
    M_BEND:
    s_waitcnt vmcnt(0) lgkmcnt(0)
    s_add_u32 s{sBASE}, s{sBASE}, {CAP}
    s_mul_i32 s{sTMP}, s{sW}, {LW}
    s_add_u32 s{sTMP2}, s{sTMP}, {L_LS}
    v_lshrrev_b32 v{vLS}, 3, v{lane}
    v_lshlrev_b32 v{vLS}, 4, v{vLS}
    v_add_u32 v{vLS}, s{sTMP2}, v{vLS}
    s_add_u32 s{sTMP2}, s{sTMP}, {L_LE}
    v_and_b32 v{vLE}, 31, v{lane}
    v_lshlrev_b32 v{vLE}, 2, v{vLE}
    v_add_u32 v{vLE}, s{sTMP2}, v{vLE}
    s_nop 7
    s_branch M_BATCH
    M_EPI:
    @stamp 5
    s_waitcnt vmcnt(0)
    v_lshlrev_b32 v{T}, 4, v{lane}
    s_lshl_b32 s{sTMP}, s{sP}, 13
    s_add_u32 s{sTMP}, s{sTMP}, {18*1024}
    s_add_u32 s{sTMP2}, s{sTMP}, 4096
    """)
    for f in range(8):
        a(f"buffer_load_dwordx4 {v(W+4*f,4)}, v{T}, s[{sWF}:{sWF+3}], s{sTMP if f < 4 else sTMP2} offen offset:{(f%4)*1024}")
    a(f"v_add_u32 v{T+1}, s{sXRB}, v{T}\nv_xor_b32 v{T+2}, 8192, v{T+1}")
    for i in range(8):
        a(f"ds_write_b128 v{T+1}, {v(AG+4*i,4)} offset:{1024*i}")
    a(f"""
    v_and_b32 v{T+3}, 31, v{lane}
    v_mul_u32_u24 v{T+4}, 144, v{T+3}
    v_add_u32 v{T+4}, v{T+4}, v{cXD}
    """)
    for sx in range(4):
        a(f"ds_read_b128 {v(FX+4*sx,4)}, v{T+4} offset:{32*sx}")
    a("s_waitcnt lgkmcnt(0)\ns_barrier")
    for i in range(8):
        a(f"ds_read_b128 {v(D+4*i,4)}, v{T+2} offset:{1024*i}")
    a(f"""
    s_mov_b32 s72, {f32(-LOG2E)}
    s_mov_b32 s73, {f32(-1.0/LOG2E if OPT['fold'] else 1.0)}
    s_mul_i32 s{sTMP}, s{sGS}, 3200
    s_lshl_b32 s{sTMP2}, s{sP}, 6
    s_add_u32 s{sTMP}, s{sTMP}, s{sTMP2}
    v_lshlrev_b32 v{T+5}, 7, v{T+3}
    v_lshl_add_u32 v{T+5}, v{h16}, 1, v{T+5}
    v_mov_b32 v{T+6}, 0x80000000
    v_cmp_gt_u32 vcc, 25, v{T+3}
    s_nop 1
    v_cndmask_b32 v{T+5}, v{T+6}, v{T+5}, vcc
    s_waitcnt lgkmcnt(0)
    """)
    for i in range(32):
        a(f"v_add_f32 v{AG+i}, v{AG+i}, v{D+i}\nv_mul_f32 v{AG+i}, s73, v{AG+i}")
    for i in range(16):
        a(f"v_cvt_pk_bf16_f32 v{FD+i}, v{AG+2*i}, v{AG+2*i+1}")
    a("s_waitcnt vmcnt(0)\ns_nop 1")
    for st in range(8):
        src = FX + 4 * st if st < 4 else FD + 4 * (st - 4)
        a(f"v_mfma_f32_32x32x16_bf16 {v(D,16)}, {v(W+4*st,4)}, {v(src,4)}, {'0' if st == 0 else v(D,16)}")
    a("s_nop 15")
    for i in range(16): a(f"v_mul_f32 v{AG+i}, s72, v{D+i}")
    for i in range(16): a(f"v_exp_f32 v{AG+i}, v{AG+i}")
    for i in range(16): a(f"v_add_f32 v{AG+i}, 1.0, v{AG+i}")
    for i in range(16): a(f"v_rcp_f32 v{AG+i}, v{AG+i}")
    for i in range(16): a(f"v_mul_f32 v{AG+i}, v{D+i}, v{AG+i}")
    for i in range(8): a(f"v_cvt_pk_bf16_f32 v{FD+i}, v{AG+2*i}, v{AG+2*i+1}")
    a(f"""
    buffer_store_dwordx4 {v(FD,4)}, v{T+5}, s[{sOUT}:{sOUT+3}], s{sTMP} offen
    buffer_store_dwordx4 {v(FD+4,4)}, v{T+5}, s[{sOUT}:{sOUT+3}], s{sTMP} offen offset:16
    """)
    if OPT["stamp"]: a("s_waitcnt vmcnt(0)\n@stamp 6")
    stamp_out(8, f"s_lshl_b32 s74, s2, 3\ns_add_u32 s74, s74, s{sW}", 10, 0x80000)
    a("M_END:\ns_endpgm")
    return R.n

hdr = f"""; MPNN edge-MLP + segment-sum + node update, two launches:
; @launch kernel=sort_kernel grid=(253,1,1) block=(1024,1,1) lds={SORT_LDS}
; @launch kernel=main_kernel grid=(256,1,1) block=(512,1,1) lds={MAIN_LDS}
.amdgcn_target "amdgcn-amd-amdhsa--gfx950"
.text
.globl sort_kernel
.type sort_kernel,@function
.globl main_kernel
.type main_kernel,@function
"""
gen_sort()
nv = gen_main()
txt = hdr + a.text() + '.section .rodata,"a"\n.p2align 6\n' + kdesc("sort_kernel", 56) + ".p2align 6\n" + kdesc("main_kernel", 256)
open(sys.argv[1], "w").write(txt)
print("main vgprs", nv, "lds", MAIN_LDS, SORT_LDS)
```

```python
import sys
src = open(sys.argv[1]).read().replace("; @launch grid=", "; @launch kernel=standalone__mpnn_edge_mlp__graph_kernel grid=")
A = sys.argv[3].split(":"); B = sys.argv[4].split(":")
NW = {0: 250*16, 1: 256*8}
def red(spec, sreg):
    op, region, idx = spec[0], int(spec[1]), int(spec[2])
    base = 0x700000 + region*0x80000 + idx*4
    o = f"v_mov_b32 v2, {'-1' if op=='min' else '0'}\n"
    o += f"s_mov_b32 s20, {base}\n"
    n = NW[region]//64
    lab = f"DL{sreg}"
    o += f"s_mov_b32 s21, {n}\nv_mov_b32 v6, v0\n{lab}:\nbuffer_load_dword v3, v1, s[8:11], s20 offen sc0 sc1\n"
    if region == 1 and "lds=147456" in src:
        o += """v_lshrrev_b32 v7, 3, v6
v_and_b32 v8, 7, v7
v_lshrrev_b32 v7, 3, v7
v_mul_u32_u24 v8, 125, v8
v_add_u32 v9, 125, v8
v_lshrrev_b32 v8, 2, v8
v_lshrrev_b32 v9, 2, v9
v_add_u32 v7, v7, v8
v_cmp_lt_u32 vcc, v7, v9
s_waitcnt vmcnt(0)
s_nop 1
v_cndmask_b32 v3, v2, v3, vcc
"""
    o += f"s_waitcnt vmcnt(0)\nv_{op}_u32 v2, v2, v3\nv_add_u32 v6, 64, v6\ns_add_u32 s20, s20, 4096\ns_sub_u32 s21, s21, 1\ns_cmp_lg_u32 s21, 0\ns_cbranch_scc1 {lab}\n"
    o += f"s_nop 1\nv_readlane_b32 s{sreg}, v2, 0\n"
    for l in range(1, 64):
        o += f"v_readlane_b32 s22, v2, {l}\ns_nop 0\ns_{op}_u32 s{sreg}, s{sreg}, s22\n"
    return o
k = """.p2align 8
diag_kernel:
s_cmp_ge_u32 s2, 1
s_cbranch_scc1 DEND
s_load_dwordx2 s[4:5], s[0:1], 64
s_waitcnt lgkmcnt(0)
s_mov_b32 s8, s4
s_mov_b32 s9, s5
s_mov_b32 s10, 0x1000000
s_mov_b32 s11, 0x20000
v_lshlrev_b32 v1, 6, v0
""" + red(A, 30) + red(B, 31) + """
s_sub_u32 s32, s31, s30
s_min_u32 s32, s32, 20000
s_mul_i32 s32, s32, 20
s_memrealtime s[34:35]
s_waitcnt lgkmcnt(0)
DSPIN:
s_memrealtime s[36:37]
s_waitcnt lgkmcnt(0)
s_sub_u32 s38, s36, s34
s_cmp_lt_u32 s38, s32
s_cbranch_scc1 DSPIN
DEND:
s_endpgm
"""
kd = """.p2align 6
.amdhsa_kernel diag_kernel
  .amdhsa_next_free_vgpr 16
  .amdhsa_next_free_sgpr 48
  .amdhsa_accum_offset 16
  .amdhsa_group_segment_fixed_size 0
  .amdhsa_kernarg_size 72
  .amdhsa_user_sgpr_count 2
  .amdhsa_user_sgpr_kernarg_segment_ptr 1
  .amdhsa_system_sgpr_workgroup_id_x 1
.end_amdhsa_kernel
"""
lines = src.split("\n")
last = max(i for i, l in enumerate(lines) if l.startswith("; @launch"))
lines.insert(last + 1, "; @launch kernel=diag_kernel grid=(1,1,1) block=(64,1,1) lds=0")
src = "\n".join(lines).replace('.section .rodata', k + '.section .rodata', 1) + kd
open(sys.argv[2], "w").write(src)
```

```python
import sys, struct
from asmlib import *

OPT = dict(wlate=False, mpf=False, stamp=False, fold=True, eflags="nt", idxflags="nt", xpf=True, stflags="")
for arg in sys.argv[2:]:
    k, val = arg.split("=")
    OPT[k] = {"True": True, "False": False}.get(val, val.replace("+", " "))

NCH, CH = 250, 3200
WS_REC, WS_O, WS_WF = 0, 0x400000, 0x600000
LOG2E = 1.4426950408889634
def f32(x): return "0x%08x" % struct.unpack("<I", struct.pack("<f", x))[0]

a = Asm()
WS_ST = 0x700000
a.stamps = OPT["stamp"]
def stamp(i):
    if OPT["stamp"]: a(f"s_memrealtime s[{76+2*i}:{77+2*i}]")
def stamp_out(n, wid_sgpr_expr, base_sgpr, region):
    if not OPT["stamp"]: return
    if OPT["stamp"] == "dbg":
        first = region == 0
        if first: a("s_cmp_lg_u32 s37, 0\ns_cbranch_scc1 S_END")
        a("s_load_dwordx2 s[92:93], s[0:1], 56\ns_waitcnt lgkmcnt(0)")
        if first: a("s_add_u32 s92, s92, 512\ns_addc_u32 s93, s93, 0")
        a("v_mov_b32 v0, 0\ns_mov_b64 exec, 1")
        base = 0 if first else 7
        a(f"s_not_b32 s74, s76\nv_mov_b32 v1, s74\nglobal_atomic_umax v0, v1, s[92:93] offset:{4*base}")
        for i in range(min(n, 7)):
            a(f"v_mov_b32 v1, s{76+2*i}\nglobal_atomic_umax v0, v1, s[92:93] offset:{4*(base+1+i)}")
        return
    a("s_waitcnt lgkmcnt(0)")
    a(wid_sgpr_expr)
    a(f"s_lshl_b32 s74, s74, 6\ns_add_u32 s74, s74, {WS_ST+region}\ns_add_u32 s92, s{base_sgpr}, s74\ns_addc_u32 s93, s{base_sgpr+1}, 0\nv_mov_b32 v0, 0")
    for i in range(n):
        a(f"v_mov_b32 v1, s{76+2*i}\nglobal_store_dword v0, v1, s[92:93] offset:{4*i}")
SORT_LDS = 4096 + 128 + CH * 4
def gen_sort():
    a(".p2align 8\nsort_kernel:")
    a("""
    s_cmp_ge_u32 s2, 253
    s_cbranch_scc1 S_END
    s_load_dwordx4 s[4:7], s[0:1], 16
    s_load_dwordx2 s[8:9], s[0:1], 0
    s_load_dwordx2 s[10:11], s[0:1], 64
    s_load_dwordx4 s[12:15], s[0:1], 32
    s_cmp_ge_u32 s2, 250
    s_cbranch_scc1 S_WPREP
    @stamp 0
    v_lshlrev_b32 v2, 2, v0
    v_mov_b32 v3, 0
    ds_write_b32 v2, v3
    s_mul_i32 s3, s2, 12800
    v_lshl_add_u32 v1, v0, 4, s3
    v_cmp_gt_u32 vcc, 800, v0
    s_mov_b64 s[40:41], vcc
    v_mov_b32 v12, 0x80000000
    v_cndmask_b32 v1, v12, v1, vcc
    s_lshr_b32 s36, s2, 3
    s_mul_i32 s36, s36, 102400
    v_lshl_add_u32 v13, v0, 7, s36
    v_cndmask_b32 v13, v12, v13, vcc
    s_waitcnt lgkmcnt(0)
    """)
    srd(a, 16, 4, 3200000)
    srd(a, 20, 6, 3200000)
    srd(a, 24, 10, 0x800000)
    srd(a, 28, 8, 3200000)
    fl = OPT["idxflags"]
    a(f"""
    buffer_load_dwordx4 v[4:7], v1, s[20:23], 0 offen {fl}
    buffer_load_dwordx4 v[8:11], v1, s[16:19], 0 offen {fl}
    """)
    npf = 0
    if OPT["xpf"]:
        a("buffer_load_dword v14, v13, s[28:31], 0 offen"); npf = 1
    a(f"""
    v_mov_b32 v15, 1
    v_lshlrev_b32 v16, 17, v0
    s_barrier
    s_waitcnt vmcnt({npf+1})
    @stamp 1
    """)
    for i in range(4):
        a(f"""
        v_mul_u32_u24 v{20+i}, 5243, v{4+i}
        v_lshrrev_b32 v{20+i}, 17, v{20+i}
        v_mul_u32_u24 v{28+i}, 25, v{20+i}
        v_sub_u32 v{28+i}, v{4+i}, v{28+i}
        v_lshlrev_b32 v{20+i}, 2, v{20+i}
        """)
    a("s_mov_b64 exec, s[40:41]")
    for i in range(4):
        a(f"ds_add_rtn_u32 v{24+i}, v{20+i}, v15")
    a(f"s_mov_b64 exec, -1\ns_waitcnt vmcnt({npf})")
    for i in range(4):
        a(f"""
        v_lshl_or_b32 v{28+i}, v{28+i}, 27, v{8+i}
        v_add_u32 v17, {i<<15}, v16
        v_or_b32 v{28+i}, v{28+i}, v17
        """)
    a("""
    s_waitcnt lgkmcnt(0)
    s_barrier
    @stamp 2
    ds_read_b32 v32, v2
    v_lshrrev_b32 v34, 6, v0
    v_lshlrev_b32 v35, 2, v34
    v_readfirstlane_b32 s37, v34
    s_waitcnt lgkmcnt(0)
    v_mov_b32 v33, v32
    """)
    wave_scan(a, 33)
    a("""
    s_mov_b32 exec_lo, 0
    s_mov_b32 exec_hi, 0x80000000
    ds_write_b32 v35, v33 offset:4096
    s_mov_b64 exec, -1
    v_and_b32 v36, 15, v0
    v_lshlrev_b32 v36, 2, v36
    s_waitcnt lgkmcnt(0)
    s_barrier
    ds_read_b32 v37, v36 offset:4096
    s_waitcnt lgkmcnt(0)
    v_mov_b32 v38, v37
    """)
    for sh in (1, 2, 4, 8):
        a(f"s_nop 1\nv_add_u32_dpp v38, v38, v38 row_shr:{sh} row_mask:0xf bank_mask:0xf bound_ctrl:0")
    st = OPT["stflags"]
    a(f"""
    v_sub_u32 v38, v38, v37
    s_nop 0
    v_readlane_b32 s38, v38, s37
    v_sub_u32 v33, v33, v32
    s_nop 1
    v_add_u32 v33, s38, v33
    ds_write_b32 v2, v33
    v_lshl_or_b32 v39, v32, 16, v33
    s_lshl_b32 s39, s2, 12
    s_add_u32 s39, s39, {WS_O}
    buffer_store_dword v39, v2, s[24:27], s39 offen {st}
    s_waitcnt lgkmcnt(0)
    s_barrier
    @stamp 3
    s_mov_b64 exec, s[40:41]
    """)
    for i in range(4):
        a(f"ds_read_b32 v{40+i}, v{20+i}")
    for i in range(4):
        a(f"""
        s_waitcnt lgkmcnt({3})
        v_add_lshl_u32 v{40+i}, v{40+i}, v{24+i}, 2
        ds_write_b32 v{40+i}, v{28+i} offset:4224
        """)
    a(f"""
    s_mov_b64 exec, -1
    v_lshlrev_b32 v44, 4, v0
    s_waitcnt lgkmcnt(0)
    s_barrier
    s_mov_b64 exec, s[40:41]
    ds_read_b128 v[48:51], v44 offset:4224
    s_mov_b64 exec, -1
    s_waitcnt lgkmcnt(0)
    buffer_store_dwordx4 v[48:51], v1, s[24:27], 0 offen {st}
    @stamp 4
    """)
    if OPT["stamp"]: a("s_waitcnt vmcnt(0)\n@stamp 5")
    stamp_out(6, "s_lshl_b32 s74, s2, 4\ns_add_u32 s74, s74, s37", 10, 0)
    a("s_endpgm")
    scale = -LOG2E if OPT["fold"] else 1.0
    a(f"""
    S_WPREP:
    v_lshrrev_b32 v1, 6, v0
    s_nop 0
    v_readfirstlane_b32 s3, v1
    s_sub_u32 s16, s2, 250
    s_lshl_b32 s16, s16, 4
    s_add_u32 s3, s3, s16
    s_cmp_ge_u32 s3, 34
    s_cbranch_scc1 S_END
    v_and_b32 v1, 31, v0
    v_bfe_u32 v2, v0, 5, 1
    s_waitcnt lgkmcnt(0)
    s_mov_b32 s22, 18432
    s_mov_b32 s23, 0x20000
    s_cmp_ge_u32 s3, 18
    s_cbranch_scc1 S_WUPD
    s_mov_b32 s20, s12
    s_mov_b32 s21, s13
    s_lshr_b32 s30, s3, 1
    s_and_b32 s31, s3, 1
    s_lshl_b32 s31, s31, 5
    v_add_u32 v3, s31, v1
    s_mov_b32 s32, 8
    s_mov_b32 s33, 512
    s_mov_b32 s34, {f32(scale)}
    s_branch S_WLOAD
    S_WUPD:
    s_mov_b32 s20, s14
    s_mov_b32 s21, s15
    s_mov_b32 s22, 16384
    s_sub_u32 s35, s3, 18
    s_and_b32 s30, s35, 7
    s_lshr_b32 s31, s35, 3
    s_lshl_b32 s31, s31, 5
    v_bfe_u32 v4, v1, 2, 1
    v_lshlrev_b32 v4, 4, v4
    v_lshrrev_b32 v5, 3, v1
    v_lshl_add_u32 v4, v5, 2, v4
    v_and_b32 v5, 3, v1
    v_add3_u32 v3, v4, v5, s31
    s_cmp_ge_u32 s30, 4
    s_cselect_b32 s32, 4, 8
    s_mov_b32 s33, 512
    s_cselect_b32 s33, 1024, s33
    s_mov_b32 s34, 1.0
    S_WLOAD:
    s_lshl_b32 s30, s30, 4
    v_mul_lo_u32 v4, v2, s32
    v_add_u32 v4, s30, v4
    v_lshlrev_b32 v4, 7, v4
    v_lshl_add_u32 v4, v3, 1, v4
    """)
    for i in range(8):
        so = "0" if i < 4 else "s33"
        a(f"buffer_load_ushort v{8+i}, v4, s[20:23], {so} offen offset:{(i&3)*128}")
    srd(a, 24, 10, 0x800000)
    a(f"""
    v_and_b32 v5, 63, v0
    v_lshlrev_b32 v5, 4, v5
    s_lshl_b32 s35, s3, 10
    s_add_u32 s35, s35, {WS_WF}
    s_waitcnt vmcnt(0)
    """)
    for i in range(8):
        a(f"v_lshlrev_b32 v{8+i}, 16, v{8+i}\nv_mul_f32 v{8+i}, s34, v{8+i}")
    for i in range(4):
        a(f"v_cvt_pk_bf16_f32 v{16+i}, v{8+2*i}, v{9+2*i}")
    a("""
    buffer_store_dwordx4 v[16:19], v5, s[24:27], s35 offen
    S_END:
    s_endpgm
    """)

CAP, PAD = 512, 160
LW = (CAP + PAD) * 4
L_XR = 0
L_LS = 65536
L_LE = L_LS + 8 * LW
L_SM = L_LE + 8 * LW
L_XD = L_SM + 8 * 2560
MAIN_LDS = L_XD + 4 * 4608

def interleave(M, V, O):
    out = []
    mi = 0
    for i in range(len(V) + 1):
        while mi < len(M) and M[mi][1] <= i:
            out.append(M[mi][0]); out += O.get(mi, []); mi += 1
        if i < len(V): out.append(V[i])
    assert mi == len(M)
    return out

def gen_main():
    R = Regs("v", 1, 256)
    lane = R.alloc("lane");
    vLS = R.alloc("vLS"); vLE = R.alloc("vLE")
    cS = R.alloc("cS"); cXD = R.alloc("cXD"); cSR = R.alloc("cSR"); h16 = R.alloc("h16")
    one = R.alloc("one"); zero = R.alloc("zero")
    dl = R.alloc("dl", 2); sad = R.alloc("sad"); xda = R.alloc("xda"); ead = R.alloc("ead")
    g0 = R.alloc("g0"); g1 = R.alloc("g1"); p0 = R.alloc("p0"); p1 = R.alloc("p1"); c0 = R.alloc("c0"); c1 = R.alloc("c1")
    XA = R.alloc("XA", 4); CX = R.alloc("CX", 4); RR = R.alloc("RR", 4)
    S4 = R.alloc("S4", 4, 4)
    T = R.alloc("T", 8, 4); P = R.alloc("P", 8, 4); SF = R.alloc("SF", 8, 4)
    FX = R.alloc("FX", 16, 4); FD = R.alloc("FD", 16, 4); E = R.alloc("E", 16, 4)
    D = R.alloc("D", 32, 4); AG = R.alloc("AG", 32, 4); W = R.alloc("W", 72, 4)
    def Wf(ks, nh): return v(W + (ks * 2 + nh) * 4, 4)
    sX, sE, sREC, sO, sWF, sOUT = 16, 20, 24, 28, 32, 36
    sW, sP, sSUB, sGS, sN, sBASE, sCNT, sT, sXRB, sTMP, sTMP2, sM31 = 40, 41, 42, 43, 44, 45, 46, 47, 48, 49, 50, 51
    a(".p2align 8\nmain_kernel:")
    a(f"""
    s_and_b32 s3, s2, 7
    s_lshr_b32 s4, s2, 3
    s_mul_i32 s5, s3, 125
    s_add_u32 s6, s5, 125
    s_lshr_b32 s5, s5, 2
    s_lshr_b32 s6, s6, 2
    s_add_u32 s3, s5, s4
    s_cmp_ge_u32 s3, s6
    s_cbranch_scc1 M_END
    @stamp 0
    s_load_dwordx4 s[4:7], s[0:1], 0
    s_load_dwordx2 s[8:9], s[0:1], 48
    s_load_dwordx2 s[10:11], s[0:1], 64
    v_lshrrev_b32 v{T}, 6, v0
    v_and_b32 v{lane}, 63, v0
    v_readfirstlane_b32 s{sW}, v{T}
    s_nop 3
    s_and_b32 s{sP}, s{sW}, 1
    s_lshr_b32 s{sSUB}, s{sW}, 1
    s_lshl_b32 s{sGS}, s3, 2
    s_add_u32 s{sGS}, s{sGS}, s{sSUB}
    s_lshl_b32 s{sXRB}, s{sW}, 13
    s_mov_b32 s{sM31}, 31
    s_lshl_b32 s{sTMP}, s{sP}, 12
    s_lshl_b32 s{sTMP2}, s{sGS}, 2
    s_add_u32 s{sTMP}, s{sTMP}, s{sTMP2}
    v_lshlrev_b32 v{T}, 14, v{lane}
    v_add_u32 v{T}, s{sTMP}, v{T}
    v_add_u32 v{T+1}, 8192, v{T}
    s_waitcnt lgkmcnt(0)
    """)
    srd_off(a, sO, 10, WS_O, NCH * 4096)
    a(f"""
    buffer_load_dword v{c0}, v{T}, s[{sO}:{sO+3}], 0 offen
    buffer_load_dword v{c1}, v{T+1}, s[{sO}:{sO+3}], 0 offen
    """)
    srd(a, sX, 4, 3200000)
    srd(a, sE, 6, 25600000)
    srd(a, sREC, 10, 3200000)
    srd_off(a, sWF, 10, WS_WF, 34 * 1024)
    srd(a, sOUT, 8, 3200000)
    a(f"""
    s_mul_i32 s{sTMP}, s{sGS}, 3200
    s_lshl_b32 s{sTMP2}, s{sP}, 11
    v_lshlrev_b32 v{T+2}, 4, v{lane}
    v_add_u32 v{T+4}, s{sTMP2}, v{T+2}
    v_add_u32 v{T+5}, 1024, v{T+4}
    v_mov_b32 v{T+6}, 0x80000000
    v_cmp_gt_u32 vcc, 3200, v{T+5}
    s_nop 1
    v_cndmask_b32 v{T+5}, v{T+6}, v{T+5}, vcc
    buffer_load_dwordx4 {v(FX,4)}, v{T+4}, s[{sX}:{sX+3}], s{sTMP} offen
    buffer_load_dwordx4 {v(FX+4,4)}, v{T+5}, s[{sX}:{sX+3}], s{sTMP} offen
    """)
    def wloads(areg):
        for f in range(18):
            if f % 4 == 0: a(f"s_mov_b32 s75, {f*1024}")
            a(f"buffer_load_dwordx4 {v(W+4*f,4)}, v{areg}, s[{sWF}:{sWF+3}], s75 offen offset:{(f%4)*1024}")
    n_early = 0
    if OPT["mpf"]:
        a(f"""
        s_lshr_b32 s75, s2, 3
        s_mul_i32 s75, s75, 102400
        v_lshlrev_b32 v{T+7}, 7, v0
        buffer_load_dword v{E}, v{T+7}, s[{sX}:{sX+3}], s75 offen
        s_add_u32 s75, s75, 65536
        v_cmp_gt_u32 vcc, 288, v0
        s_nop 1
        v_cndmask_b32 v{T+7}, v{T+6}, v{T+7}, vcc
        buffer_load_dword v{E}, v{T+7}, s[{sX}:{sX+3}], s75 offen
        """)
        n_early += 2
    if not OPT["wlate"]:
        wloads(T+2); n_early += 18
    m, h, t0, t1, t2 = P, P+1, P+2, P+3, P+4
    a(f"""
    v_and_b32 v{m}, 31, v{lane}
    v_lshrrev_b32 v{h}, 5, v{lane}
    v_lshlrev_b32 v{h16}, 4, v{h}
    v_mov_b32 v{one}, 0x3f80
    v_mov_b32 v{zero}, 0
    s_mul_i32 s{sTMP}, s{sW}, {LW}
    s_add_u32 s{sTMP2}, s{sTMP}, {L_LS}
    v_lshrrev_b32 v{t0}, 3, v{lane}
    v_lshlrev_b32 v{vLS}, 4, v{t0}
    v_add_u32 v{vLS}, s{sTMP2}, v{vLS}
    s_add_u32 s{sTMP2}, s{sTMP}, {L_LE}
    v_lshlrev_b32 v{vLE}, 2, v{m}
    v_add_u32 v{vLE}, s{sTMP2}, v{vLE}
    """)
    a(f"""
    v_and_b32 v{t1}, 4, v{t0}
    v_and_b32 v{t2}, 7, v{lane}
    v_xor_b32 v{t1}, v{t1}, v{t2}
    """)
    for i in range(4):
        a(f"v_xor_b32 v{CX+i}, {i}, v{t1}\nv_lshlrev_b32 v{CX+i}, 4, v{CX+i}")
    a(f"""
    v_and_b32 v{t0}, 3, v{m}
    v_lshrrev_b32 v{t1}, 2, v{m}
    v_lshl_add_u32 v{t1}, v{t0}, 3, v{t1}
    v_lshlrev_b32 v{t1}, 7, v{t1}
    v_add_u32 v{t1}, s{sXRB}, v{t1}
    v_lshrrev_b32 v{t2}, 4, v{m}
    v_lshl_or_b32 v{t0}, v{t2}, 2, v{t0}
    v_xor_b32 v{t0}, v{t0}, v{h}
    """)
    for sx in range(4):
        a(f"v_xor_b32 v{XA+sx}, {2*sx}, v{t0}\nv_lshl_add_u32 v{XA+sx}, v{XA+sx}, 4, v{t1}")
    a(f"""
    s_mul_i32 s{sTMP}, s{sW}, 2560
    s_add_u32 s{sTMP}, s{sTMP}, {L_SM}
    v_and_b32 v{t0}, 19, v{m}
    v_and_b32 v{t1}, 4, v{m}
    v_lshl_or_b32 v{t0}, v{t1}, 1, v{t0}
    v_and_b32 v{t1}, 8, v{m}
    v_lshrrev_b32 v{t1}, 1, v{t1}
    v_or_b32 v{t0}, v{t0}, v{t1}
    v_lshlrev_b32 v{t0}, 1, v{t0}
    v_add_u32 v{cS}, s{sTMP}, v{t0}
    v_mul_u32_u24 v{t0}, 80, v{m}
    v_add3_u32 v{cSR}, v{t0}, v{h16}, s{sTMP}
    v_mul_u32_u24 v{t0}, 40, v{lane}
    v_add_u32 v{t0}, s{sTMP}, v{t0}
    v_mov_b32 v{T+6}, 0
    v_mov_b32 v{T+7}, 0
    """)
    for i in range(5):
        a(f"ds_write_b64 v{t0}, {v(T+6,2)} offset:{8*i}")
    a(f"""
    s_mul_i32 s{sTMP}, s{sSUB}, 4608
    s_add_u32 s{sTMP}, s{sTMP}, {L_XD}
    v_add_u32 v{cXD}, s{sTMP}, v{h16}
    s_mul_i32 s{sTMP2}, s{sP}, {16*144}
    s_add_u32 s{sTMP}, s{sTMP}, s{sTMP2}
    v_lshrrev_b32 v{t0}, 3, v{lane}
    v_mul_u32_u24 v{t0}, 144, v{t0}
    v_and_b32 v{t1}, 7, v{lane}
    v_lshl_add_u32 v{t0}, v{t1}, 4, v{t0}
    v_add_u32 v{t0}, s{sTMP}, v{t0}
    """)
    for i in range(32):
        a(f"v_mov_b32 v{AG+i}, 0")
    a(f"""
    v_lshl_add_u32 v{t1}, v{lane}, 2, s{sP}
    v_mul_u32_u24 v{g0}, {CH}, v{t1}
    v_lshl_or_b32 v{g0}, v{t1}, 20, v{g0}
    v_add_u32 v{g1}, {2*CH + (2<<20)}, v{g0}
    s_waitcnt vmcnt({n_early+2})
    @stamp 1
    v_and_b32 v{t1}, 0xffff, v{c0}
    v_add_u32 v{g0}, v{g0}, v{t1}
    v_and_b32 v{t1}, 0xffff, v{c1}
    v_add_u32 v{g1}, v{g1}, v{t1}
    v_lshrrev_b32 v{c0}, 16, v{c0}
    v_lshrrev_b32 v{c1}, 16, v{c1}
    v_add_u32 v{p1}, v{c0}, v{c1}
    """)
    wave_scan(a, p1)
    a(f"""
    s_nop 0
    v_readlane_b32 s{sN}, v{p1}, 63
    v_sub_u32 v{p1}, v{p1}, v{c1}
    v_sub_u32 v{p0}, v{p1}, v{c0}
    s_waitcnt vmcnt({n_early})
    ds_write_b128 v{t0}, {v(FX,4)}
    ds_write_b128 v{t0}, {v(FX+4,4)} offset:{8*144}
    s_mov_b32 s{sBASE}, 0
    s_waitcnt lgkmcnt(0)
    s_barrier
    @stamp 2
    M_BATCH:
    s_cmp_ge_u32 s{sBASE}, s{sN}
    s_cbranch_scc1 M_EPI
    s_sub_u32 s{sCNT}, s{sN}, s{sBASE}
    s_min_u32 s{sCNT}, s{sCNT}, {CAP}
    s_add_u32 s{sT}, s{sCNT}, 31
    s_lshr_b32 s{sT}, s{sT}, 5
    s_mul_i32 s{sTMP}, s{sW}, {LW}
    s_add_u32 s{sTMP}, s{sTMP}, {L_LS}
    """)
    A0, E0, V0, A1, E1, V1, tt = D, D+1, D+2, D+3, D+4, D+5, D+6
    for (pp, cc, gg, A, EE, VV) in ((p0, c0, g0, A0, E0, V0), (p1, c1, g1, A1, E1, V1)):
        a(f"""
        v_subrev_u32 v{tt}, s{sBASE}, v{pp}
        v_max_i32 v{A}, 0, v{tt}
        v_add_u32 v{EE}, v{tt}, v{cc}
        v_min_i32 v{EE}, {CAP}, v{EE}
        v_sub_u32 v{VV}, v{A}, v{tt}
        v_add_u32 v{VV}, v{VV}, v{gg}
        v_lshl_add_u32 v{A}, v{A}, 2, s{sTMP}
        v_lshl_add_u32 v{EE}, v{EE}, 2, s{sTMP}
        """)
    a(f"""
    M_EXP:
    v_cmp_lt_i32 vcc, v{A0}, v{E0}
    v_cmp_lt_i32 s[52:53], v{A1}, v{E1}
    s_mov_b64 exec, vcc
    ds_write_b32 v{A0}, v{V0}
    s_mov_b64 exec, s[52:53]
    ds_write_b32 v{A1}, v{V1}
    s_mov_b64 exec, -1
    v_add_u32 v{A0}, 4, v{A0}
    v_add_u32 v{A1}, 4, v{A1}
    v_add_u32 v{V0}, 1, v{V0}
    v_add_u32 v{V1}, 1, v{V1}
    s_or_b64 s[52:53], s[52:53], vcc
    s_cbranch_scc1 M_EXP
    """)
    qa, G, RC, oob = D+7, D+8, D+16, D+24
    a(f"v_lshl_add_u32 v{qa}, v{lane}, 2, s{sTMP}\nv_mov_b32 v{oob}, 0x80000000")
    for i in range(8):
        a(f"ds_read_b32 v{G+i}, v{qa} offset:{256*i}")
    for i in range(8):
        a(f"""
        s_sub_i32 s{sTMP2}, s{sCNT}, {64*i}
        v_cmp_gt_i32 s[{54+2*i}:{55+2*i}], s{sTMP2}, v{lane}
        s_waitcnt lgkmcnt({7-i})
        v_and_b32 v{tt}, 0xfffff, v{G+i}
        v_lshlrev_b32 v{tt}, 2, v{tt}
        v_cndmask_b32 v{tt}, v{oob}, v{tt}, s[{54+2*i}:{55+2*i}]
        buffer_load_dword v{RC+i}, v{tt}, s[{sREC}:{sREC+3}], 0 offen
        v_lshrrev_b32 v{G+i}, 20, v{G+i}
        v_mul_u32_u24 v{G+i}, {CH}, v{G+i}
        """)
    nl = 0
    if OPT["wlate"]:
        a(f"v_lshlrev_b32 v{D+27}, 4, v{lane}"); wloads(D+27); nl = 18
    a(f"""
    v_mov_b32 v{D+25}, 0x8000001f
    ds_write_b32 v{qa}, v{oob} offset:{CAP*4}
    ds_write_b32 v{qa}, v{oob} offset:{CAP*4+256}
    ds_write_b32 v{qa}, v{oob} offset:{CAP*4+384}
    ds_write_b32 v{qa}, v{D+25} offset:{8*LW+CAP*4}
    ds_write_b32 v{qa}, v{D+25} offset:{8*LW+CAP*4+256}
    ds_write_b32 v{qa}, v{D+25} offset:{8*LW+CAP*4+384}
    """)
    for i in range(8):
        a(f"""
        s_waitcnt vmcnt({7-i+nl})
        v_and_b32 v{tt}, 0x7fff, v{RC+i}
        v_lshlrev_b32 v{tt}, 7, v{tt}
        v_cndmask_b32 v{tt}, v{oob}, v{tt}, s[{54+2*i}:{55+2*i}]
        ds_write_b32 v{qa}, v{tt} offset:{256*i}
        v_bfe_u32 v{D+26}, v{RC+i}, 15, 12
        v_add_u32 v{G+i}, v{G+i}, v{D+26}
        v_alignbit_b32 v{G+i}, v{G+i}, v{RC+i}, 27
        v_cndmask_b32 v{G+i}, v{D+25}, v{G+i}, s[{54+2*i}:{55+2*i}]
        ds_write_b32 v{qa}, v{G+i} offset:{8*LW+256*i}
        """)
    ef = OPT["eflags"]
    def e_issue(tile_slot):
        return [f"v_bfi_b32 v{ead}, s{sM31}, v{h16}, v{RR+tile_slot}"], \
               [f"buffer_load_dwordx4 {v(E+4*tile_slot,4)}, v{ead}, s[{sE}:{sE+3}], 0 offen {ef}"]
    def x_addr():
        return [f"v_add_u32 v{S4+i}, v{S4+i}, v{CX+i}" for i in range(4)]
    def x_dma(slot):
        o = []
        for i in range(4):
            o += [f"s_add_u32 m0, s{sXRB}, {slot*4096+i*1024}", "s_nop 0",
                  f"buffer_load_dwordx4 v{S4+i}, s[{sX}:{sX+3}], 0 offen lds"]
        return o
    a("@stamp 3")
    for j in range(4):
        a(f"ds_read_b32 v{RR+j}, v{vLE} offset:{128*j}")
    a(f"ds_read_b128 {v(S4,4)}, v{vLS}")
    a(f"ds_read_b128 {v(T,4)}, v{vLS} offset:128")
    a(f"ds_read_b128 {v(T+4,4)}, v{vLS} offset:256")
    a("s_waitcnt lgkmcnt(0)")
    def emit(l): a("\n".join(l))
    emit(sum(e_issue(0), [])); emit(x_addr()); emit(x_dma(0))
    emit(sum(e_issue(1), []))
    for i in range(4): a(f"v_add_u32 v{S4+i}, v{T+i}, v{CX+i}")
    emit(x_dma(1)); emit(sum(e_issue(2), []))
    a(f"""
    v_and_b32 v{dl}, 31, v{RR}
    v_mad_u32_u24 v{xda}, v{dl}, s70, v{cXD}
    """.replace("s70", "s70"))
    a.L.insert(len(a.L) - 2, "    s_mov_b32 s70, 144")
    a.L.insert(len(a.L) - 2, "    s_mov_b32 s71, 80")
    for sx in range(4): a(f"ds_read_b128 {v(FD+4*sx,4)}, v{xda} offset:{32*sx}")
    a("s_waitcnt vmcnt(6)")
    for sx in range(4): a(f"ds_read_b128 {v(FX+4*sx,4)}, v{XA+sx}")
    a("s_waitcnt lgkmcnt(0)")
    def chain(nh, eslot):
        Dh = v(D + 16 * nh, 16)
        ops = [(FD + 4 * sx, 4 + sx) for sx in range(4)] + [(E + 4 * eslot, 8)] + [(FX + 4 * sx, sx) for sx in range(4)]
        return [f"v_mfma_f32_32x32x16_bf16 {Dh}, {v(fr,4)}, {Wf(ks,nh)}, {'0' if n == 0 else Dh}" for n, (fr, ks) in enumerate(ops)]
    emit(chain(0, 0))
    for i in range(4): a(f"v_add_u32 v{S4+i}, v{T+4+i}, v{CX+i}")
    emit(x_dma(0)); emit(sum(e_issue(3), []))
    a("s_nop 7")
    def silu_block(nh, q):
        Db = D + 16 * nh + 8 * q
        o = []
        if OPT["fold"]:
            o += [f"v_exp_f32 v{T+i}, v{Db+i}" for i in range(8)]
        else:
            o += [f"v_mul_f32 v{T+i}, s72, v{Db+i}" for i in range(8)]
            o += [f"v_exp_f32 v{T+i}, v{T+i}" for i in range(8)]
        o += [f"v_add_f32 v{T+i}, 1.0, v{T+i}" for i in range(8)]
        o += [f"v_rcp_f32 v{T+i}, v{T+i}" for i in range(8)]
        o += [f"v_mul_f32 v{T+i}, v{Db+i}, v{T+i}" for i in range(8)]
        o += [f"v_cvt_pk_bf16_f32 v{P+4*q+i}, v{T+2*i}, v{T+2*i+1}" for i in range(4)]
        return o
    def seg(nh, q):
        Ah = v(AG + 16 * nh, 16)
        return f"v_mfma_f32_32x32x16_bf16 {Ah}, {v(P+4*q,4)}, {v(SF+4*q,4)}, {Ah}"
    def cost(l): return 8 if l.startswith(("v_exp", "v_rcp")) else 4
    def phase(silu_nh, chain_ops, pre, after, extraV):
        b0, b1 = silu_block(silu_nh, 0), silu_block(silu_nh, 1)
        V = b0 + b1
        n0 = len(b0)
        tot = sum(cost(l) for l in V)
        cum = [0]
        for l in V: cum.append(cum[-1] + cost(l))
        def pos_at(frac):
            for i, c in enumerate(cum):
                if c >= frac * tot: return i
            return len(V)
        order = [("g", 0), ("g", 1), ("g", 2), ("g", 3), ("g", 4), ("g", 5), ("s", 0), ("g", 6), ("g", 7), ("g", 8), ("s", 1)]
        M = []; O = {}
        for n, (kind, idx) in enumerate(order):
            p_ = pos_at(n / 10.6)
            if kind == "g":
                M.append((chain_ops[idx], p_)); O[n] = after.get(idx, [])
            elif idx == 0:
                assert p_ >= n0 + 2
                M.append((seg(silu_nh, 0), p_)); O[n] = after.get("s0", [])
            else:
                M.append(("s_nop 1\n" + seg(silu_nh, 1), len(V)))
        assert len(V) - M[9][1] >= 9, (len(V), M[9][1])
        out = interleave(M, V, O)
        return pre + out
    a("s_mov_b32 s72, " + f32(-LOG2E))
    a("@stamp 4")
    if OPT["stamp"]: a(f"s_mov_b32 s90, s{sT}")
    a("M_LOOP:")
    for u in range(4):
        pre = [f"v_mad_u32_u24 v{sad}, v{dl+(u&1)}, s71, v{cS}",
               f"v_and_b32 v{dl+((u+1)&1)}, 31, v{RR+((u+1)&3)}",
               f"ds_write_b16 v{sad}, v{one}",
               f"ds_read_b128 {v(SF,4)}, v{cSR}",
               f"ds_read_b128 {v(SF+4,4)}, v{cSR} offset:32",
               f"ds_write_b16 v{sad}, v{zero}",
               f"v_mad_u32_u24 v{xda}, v{dl+((u+1)&1)}, s70, v{cXD}"]
        after = {}
        for sx in range(4):
            after[sx] = [f"ds_read_b128 {v(FD+4*sx,4)}, v{xda} offset:{32*sx}"]
        slot = (u + 1) & 1
        after[4] = [f"ds_read_b32 v{RR+u}, v{vLE} offset:{128*(u+4)}",
                    f"ds_read_b128 {v(S4,4)}, v{vLS} offset:{128*(u+3)}"]
        after[5] = ["s_waitcnt vmcnt(6) lgkmcnt(7)", f"ds_read_b128 {v(FX,4)}, v{XA} offset:{slot*4096}"]
        for sx in range(1, 4):
            after[5 + sx] = [f"ds_read_b128 {v(FX+4*sx,4)}, v{XA+sx} offset:{slot*4096}"]
        emit(phase(0, chain(1, u), pre, after, None))
        ea, el = e_issue(u)
        dm = x_dma(slot)
        pre = ["s_waitcnt lgkmcnt(4)"]
        after = {0: x_addr() + ea, 2: ["s_waitcnt lgkmcnt(0)"] + dm[0:3], 3: dm[3:6], 4: dm[6:9], 5: dm[9:12], 6: el}
        if u == 3:
            after[7] = [f"v_add_u32 v{vLS}, 512, v{vLS}", f"v_add_u32 v{vLE}, 512, v{vLE}"]
        emit(phase(1, chain(0, (u + 1) & 3), pre, after, None))
        a(f"s_sub_u32 s{sT}, s{sT}, 1\ns_cmp_eq_u32 s{sT}, 0")
        a("s_cbranch_scc1 M_BEND" if u < 3 else "s_cbranch_scc0 M_LOOP")
    a(f"""
    M_BEND:
    s_waitcnt vmcnt(0) lgkmcnt(0)
    s_add_u32 s{sBASE}, s{sBASE}, {CAP}
    s_mul_i32 s{sTMP}, s{sW}, {LW}
    s_add_u32 s{sTMP2}, s{sTMP}, {L_LS}
    v_lshrrev_b32 v{vLS}, 3, v{lane}
    v_lshlrev_b32 v{vLS}, 4, v{vLS}
    v_add_u32 v{vLS}, s{sTMP2}, v{vLS}
    s_add_u32 s{sTMP2}, s{sTMP}, {L_LE}
    v_and_b32 v{vLE}, 31, v{lane}
    v_lshlrev_b32 v{vLE}, 2, v{vLE}
    v_add_u32 v{vLE}, s{sTMP2}, v{vLE}
    s_nop 7
    s_branch M_BATCH
    M_EPI:
    @stamp 5
    s_waitcnt vmcnt(0)
    v_lshlrev_b32 v{T}, 4, v{lane}
    s_lshl_b32 s{sTMP}, s{sP}, 13
    s_add_u32 s{sTMP}, s{sTMP}, {18*1024}
    s_add_u32 s{sTMP2}, s{sTMP}, 4096
    """)
    for f in range(8):
        a(f"buffer_load_dwordx4 {v(W+4*f,4)}, v{T}, s[{sWF}:{sWF+3}], s{sTMP if f < 4 else sTMP2} offen offset:{(f%4)*1024}")
    a(f"v_add_u32 v{T+1}, s{sXRB}, v{T}\nv_xor_b32 v{T+2}, 8192, v{T+1}")
    for i in range(8):
        a(f"ds_write_b128 v{T+1}, {v(AG+4*i,4)} offset:{1024*i}")
    a(f"""
    v_and_b32 v{T+3}, 31, v{lane}
    v_mul_u32_u24 v{T+4}, 144, v{T+3}
    v_add_u32 v{T+4}, v{T+4}, v{cXD}
    """)
    for sx in range(4):
        a(f"ds_read_b128 {v(FX+4*sx,4)}, v{T+4} offset:{32*sx}")
    a("s_waitcnt lgkmcnt(0)\ns_barrier")
    for i in range(8):
        a(f"ds_read_b128 {v(D+4*i,4)}, v{T+2} offset:{1024*i}")
    a(f"""
    s_mov_b32 s72, {f32(-LOG2E)}
    s_mov_b32 s73, {f32(-1.0/LOG2E if OPT['fold'] else 1.0)}
    s_mul_i32 s{sTMP}, s{sGS}, 3200
    s_lshl_b32 s{sTMP2}, s{sP}, 6
    s_add_u32 s{sTMP}, s{sTMP}, s{sTMP2}
    v_lshlrev_b32 v{T+5}, 7, v{T+3}
    v_lshl_add_u32 v{T+5}, v{h16}, 1, v{T+5}
    v_mov_b32 v{T+6}, 0x80000000
    v_cmp_gt_u32 vcc, 25, v{T+3}
    s_nop 1
    v_cndmask_b32 v{T+5}, v{T+6}, v{T+5}, vcc
    s_waitcnt lgkmcnt(0)
    """)
    for i in range(32):
        a(f"v_add_f32 v{AG+i}, v{AG+i}, v{D+i}\nv_mul_f32 v{AG+i}, s73, v{AG+i}")
    for i in range(16):
        a(f"v_cvt_pk_bf16_f32 v{FD+i}, v{AG+2*i}, v{AG+2*i+1}")
    a("s_waitcnt vmcnt(0)\ns_nop 1")
    for st in range(8):
        src = FX + 4 * st if st < 4 else FD + 4 * (st - 4)
        a(f"v_mfma_f32_32x32x16_bf16 {v(D,16)}, {v(W+4*st,4)}, {v(src,4)}, {'0' if st == 0 else v(D,16)}")
    a("s_nop 15")
    for i in range(16): a(f"v_mul_f32 v{AG+i}, s72, v{D+i}")
    for i in range(16): a(f"v_exp_f32 v{AG+i}, v{AG+i}")
    for i in range(16): a(f"v_add_f32 v{AG+i}, 1.0, v{AG+i}")
    for i in range(16): a(f"v_rcp_f32 v{AG+i}, v{AG+i}")
    for i in range(16): a(f"v_mul_f32 v{AG+i}, v{D+i}, v{AG+i}")
    for i in range(8): a(f"v_cvt_pk_bf16_f32 v{FD+i}, v{AG+2*i}, v{AG+2*i+1}")
    a(f"""
    buffer_store_dwordx4 {v(FD,4)}, v{T+5}, s[{sOUT}:{sOUT+3}], s{sTMP} offen
    buffer_store_dwordx4 {v(FD+4,4)}, v{T+5}, s[{sOUT}:{sOUT+3}], s{sTMP} offen offset:16
    """)
    if OPT["stamp"]: a("s_waitcnt vmcnt(0)\n@stamp 6")
    stamp_out(8, f"s_lshl_b32 s74, s2, 3\ns_add_u32 s74, s74, s{sW}", 10, 0x80000)
    a("M_END:\ns_endpgm")
    return R.n

hdr = f"""; MPNN edge-MLP + segment-sum + node update, two launches:
; @launch kernel=sort_kernel grid=(253,1,1) block=(1024,1,1) lds={SORT_LDS}
; @launch kernel=main_kernel grid=(256,1,1) block=(512,1,1) lds={MAIN_LDS}
.amdgcn_target "amdgcn-amd-amdhsa--gfx950"
.text
.globl sort_kernel
.type sort_kernel,@function
.globl main_kernel
.type main_kernel,@function
"""
gen_sort()
nv = gen_main()
txt = hdr + a.text() + '.section .rodata,"a"\n.p2align 6\n' + kdesc("sort_kernel", 56) + ".p2align 6\n" + kdesc("main_kernel", 256)
open(sys.argv[1], "w").write(txt)
print("main vgprs", nv, "lds", MAIN_LDS, SORT_LDS)
```

```python
class Regs:
    def __init__(self, prefix, start, limit):
        self.p = prefix; self.n = start; self.limit = limit; self.names = {}
    def alloc(self, name, count=1, align=1):
        n = (self.n + align - 1) // align * align
        assert n + count <= self.limit, f"out of {self.p} regs at {name}: {n}+{count}"
        self.names[name] = (n, count); self.n = n + count
        return n
def v(n, c=1):
    return f"v{n}" if c == 1 else f"v[{n}:{n+c-1}]"
def s(n, c=1):
    return f"s{n}" if c == 1 else f"s[{n}:{n+c-1}]"
class Asm:
    def __init__(self): self.L = []
    def __call__(self, txt):
        for l in txt.strip("\n").split("\n"):
            l = l.strip()
            if l.startswith("@cyc"):
                if getattr(self, "stamps", False):
                    self.L.append("    s_memtime s[96:97]"); self.L.append("    s_waitcnt lgkmcnt(0)")
                continue
            if l.startswith("@stamp"):
                i = int(l.split()[1])
                if getattr(self, "stamps", False):
                    self.L.append(f"    s_memrealtime s[{76+2*i}:{77+2*i}]"); self.L.append("    s_waitcnt lgkmcnt(0)")
                continue
            if l: self.L.append(("" if l.endswith(":") or l.startswith(".") else "    ") + l)
    def text(self): return "\n".join(self.L) + "\n"
def srd(a, d, base, nbytes):
    a(f"s_mov_b32 s{d}, s{base}\ns_mov_b32 s{d+1}, s{base+1}\ns_mov_b32 s{d+2}, {nbytes}\ns_mov_b32 s{d+3}, 0x20000")
def srd_off(a, d, base, off, nbytes):
    a(f"s_add_u32 s{d}, s{base}, {off}\ns_addc_u32 s{d+1}, s{base+1}, 0\ns_mov_b32 s{d+2}, {nbytes}\ns_mov_b32 s{d+3}, 0x20000")
def wave_scan(a, r):
    for sh in (1, 2, 4, 8):
        a(f"s_nop 1\nv_add_u32_dpp v{r}, v{r}, v{r} row_shr:{sh} row_mask:0xf bank_mask:0xf bound_ctrl:0")
    a(f"s_nop 1\nv_add_u32_dpp v{r}, v{r}, v{r} row_bcast:15 row_mask:0xa bank_mask:0xf")
    a(f"s_nop 1\nv_add_u32_dpp v{r}, v{r}, v{r} row_bcast:31 row_mask:0xc bank_mask:0xf")
def kdesc(name, vgpr, sgpr=96):
    acc = (vgpr + 3) // 4 * 4
    return f""".amdhsa_kernel {name}
  .amdhsa_next_free_vgpr {vgpr}
  .amdhsa_next_free_sgpr {sgpr}
  .amdhsa_accum_offset {acc}
  .amdhsa_group_segment_fixed_size 0
  .amdhsa_kernarg_size 72
  .amdhsa_user_sgpr_count 2
  .amdhsa_user_sgpr_kernarg_segment_ptr 1
  .amdhsa_system_sgpr_workgroup_id_x 1
.end_amdhsa_kernel
"""
```

```python
import sys, struct
from asmlib import *

OPT = dict(abl="", wlate=False, mpf=False, stamp=False, fold=True, eflags="nt", idxflags="nt", xpf=True, stflags="")
for arg in sys.argv[2:]:
    k, val = arg.split("=")
    OPT[k] = {"True": True, "False": False}.get(val, val.replace("+", " "))

NCH, CH = 250, 3200
WS_REC, WS_O, WS_WF = 0, 0x400000, 0x600000
LOG2E = 1.4426950408889634
def f32(x): return "0x%08x" % struct.unpack("<I", struct.pack("<f", x))[0]

a = Asm()
WS_ST = 0x700000
a.stamps = OPT["stamp"]
def stamp(i):
    if OPT["stamp"]: a(f"s_memrealtime s[{76+2*i}:{77+2*i}]")
def stamp_out(n, wid_sgpr_expr, base_sgpr, region):
    if not OPT["stamp"]: return
    if OPT["stamp"] == "dbg":
        first = region == 0
        if first: a("s_cmp_lg_u32 s37, 0\ns_cbranch_scc1 S_END")
        a("s_load_dwordx2 s[92:93], s[0:1], 56\ns_waitcnt lgkmcnt(0)")
        if first: a("s_add_u32 s92, s92, 512\ns_addc_u32 s93, s93, 0")
        a("v_mov_b32 v0, 0\ns_mov_b64 exec, 1")
        base = 0 if first else 7
        a(f"s_not_b32 s74, s76\nv_mov_b32 v1, s74\nglobal_atomic_umax v0, v1, s[92:93] offset:{4*base}")
        for i in range(min(n, 7)):
            a(f"v_mov_b32 v1, s{76+2*i}\nglobal_atomic_umax v0, v1, s[92:93] offset:{4*(base+1+i)}")
        return
    a("s_waitcnt lgkmcnt(0)")
    a(wid_sgpr_expr)
    a(f"s_lshl_b32 s74, s74, 6\ns_add_u32 s74, s74, {WS_ST+region}\ns_add_u32 s92, s{base_sgpr}, s74\ns_addc_u32 s93, s{base_sgpr+1}, 0\nv_mov_b32 v0, 0")
    for i in range(n):
        a(f"v_mov_b32 v1, s{76+2*i}\nglobal_store_dword v0, v1, s[92:93] offset:{4*i}")
    if n == 8: a("s_sub_u32 s96, s96, s94\nv_mov_b32 v1, s96\nglobal_store_dword v0, v1, s[92:93] offset:32")
SORT_LDS = 4096 + 128 + CH * 4
def gen_sort():
    a(".p2align 8\nsort_kernel:")
    a("""
    s_cmp_ge_u32 s2, 253
    s_cbranch_scc1 S_END
    s_load_dwordx4 s[4:7], s[0:1], 16
    s_load_dwordx2 s[8:9], s[0:1], 0
    s_load_dwordx2 s[10:11], s[0:1], 64
    s_load_dwordx4 s[12:15], s[0:1], 32
    s_cmp_ge_u32 s2, 250
    s_cbranch_scc1 S_WPREP
    @stamp 0
    v_lshlrev_b32 v2, 2, v0
    v_mov_b32 v3, 0
    ds_write_b32 v2, v3
    s_mul_i32 s3, s2, 12800
    v_lshl_add_u32 v1, v0, 4, s3
    v_cmp_gt_u32 vcc, 800, v0
    s_mov_b64 s[40:41], vcc
    v_mov_b32 v12, 0x80000000
    v_cndmask_b32 v1, v12, v1, vcc
    s_lshr_b32 s36, s2, 3
    s_mul_i32 s36, s36, 102400
    v_lshl_add_u32 v13, v0, 7, s36
    v_cndmask_b32 v13, v12, v13, vcc
    s_waitcnt lgkmcnt(0)
    """)
    srd(a, 16, 4, 3200000)
    srd(a, 20, 6, 3200000)
    srd(a, 24, 10, 0x800000)
    srd(a, 28, 8, 3200000)
    fl = OPT["idxflags"]
    a(f"""
    buffer_load_dwordx4 v[4:7], v1, s[20:23], 0 offen {fl}
    buffer_load_dwordx4 v[8:11], v1, s[16:19], 0 offen {fl}
    """)
    npf = 0
    if OPT["xpf"]:
        a("buffer_load_dword v14, v13, s[28:31], 0 offen"); npf = 1
    a(f"""
    v_mov_b32 v15, 1
    v_lshlrev_b32 v16, 17, v0
    s_barrier
    s_waitcnt vmcnt({npf+1})
    @stamp 1
    """)
    for i in range(4):
        a(f"""
        v_mul_u32_u24 v{20+i}, 5243, v{4+i}
        v_lshrrev_b32 v{20+i}, 17, v{20+i}
        v_mul_u32_u24 v{28+i}, 25, v{20+i}
        v_sub_u32 v{28+i}, v{4+i}, v{28+i}
        v_lshlrev_b32 v{20+i}, 2, v{20+i}
        """)
    a("s_mov_b64 exec, s[40:41]")
    for i in range(4):
        a(f"ds_add_rtn_u32 v{24+i}, v{20+i}, v15")
    a(f"s_mov_b64 exec, -1\ns_waitcnt vmcnt({npf})")
    for i in range(4):
        a(f"""
        v_lshl_or_b32 v{28+i}, v{28+i}, 27, v{8+i}
        v_add_u32 v17, {i<<15}, v16
        v_or_b32 v{28+i}, v{28+i}, v17
        """)
    a("""
    s_waitcnt lgkmcnt(0)
    s_barrier
    @stamp 2
    ds_read_b32 v32, v2
    v_lshrrev_b32 v34, 6, v0
    v_lshlrev_b32 v35, 2, v34
    v_readfirstlane_b32 s37, v34
    s_waitcnt lgkmcnt(0)
    v_mov_b32 v33, v32
    """)
    wave_scan(a, 33)
    a("""
    s_mov_b32 exec_lo, 0
    s_mov_b32 exec_hi, 0x80000000
    ds_write_b32 v35, v33 offset:4096
    s_mov_b64 exec, -1
    v_and_b32 v36, 15, v0
    v_lshlrev_b32 v36, 2, v36
    s_waitcnt lgkmcnt(0)
    s_barrier
    ds_read_b32 v37, v36 offset:4096
    s_waitcnt lgkmcnt(0)
    v_mov_b32 v38, v37
    """)
    for sh in (1, 2, 4, 8):
        a(f"s_nop 1\nv_add_u32_dpp v38, v38, v38 row_shr:{sh} row_mask:0xf bank_mask:0xf bound_ctrl:0")
    st = OPT["stflags"]
    a(f"""
    v_sub_u32 v38, v38, v37
    s_nop 0
    v_readlane_b32 s38, v38, s37
    v_sub_u32 v33, v33, v32
    s_nop 1
    v_add_u32 v33, s38, v33
    ds_write_b32 v2, v33
    v_lshl_or_b32 v39, v32, 16, v33
    s_lshl_b32 s39, s2, 12
    s_add_u32 s39, s39, {WS_O}
    buffer_store_dword v39, v2, s[24:27], s39 offen {st}
    s_waitcnt lgkmcnt(0)
    s_barrier
    @stamp 3
    s_mov_b64 exec, s[40:41]
    """)
    for i in range(4):
        a(f"ds_read_b32 v{40+i}, v{20+i}")
    for i in range(4):
        a(f"""
        s_waitcnt lgkmcnt({3})
        v_add_lshl_u32 v{40+i}, v{40+i}, v{24+i}, 2
        ds_write_b32 v{40+i}, v{28+i} offset:4224
        """)
    a(f"""
    s_mov_b64 exec, -1
    v_lshlrev_b32 v44, 4, v0
    s_waitcnt lgkmcnt(0)
    s_barrier
    s_mov_b64 exec, s[40:41]
    ds_read_b128 v[48:51], v44 offset:4224
    s_mov_b64 exec, -1
    s_waitcnt lgkmcnt(0)
    buffer_store_dwordx4 v[48:51], v1, s[24:27], 0 offen {st}
    @stamp 4
    """)
    if OPT["stamp"]: a("s_waitcnt vmcnt(0)\n@stamp 5")
    stamp_out(6, "s_lshl_b32 s74, s2, 4\ns_add_u32 s74, s74, s37", 10, 0)
    a("s_endpgm")
    scale = -LOG2E if OPT["fold"] else 1.0
    a(f"""
    S_WPREP:
    v_lshrrev_b32 v1, 6, v0
    s_nop 0
    v_readfirstlane_b32 s3, v1
    s_sub_u32 s16, s2, 250
    s_lshl_b32 s16, s16, 4
    s_add_u32 s3, s3, s16
    s_cmp_ge_u32 s3, 34
    s_cbranch_scc1 S_END
    v_and_b32 v1, 31, v0
    v_bfe_u32 v2, v0, 5, 1
    s_waitcnt lgkmcnt(0)
    s_mov_b32 s22, 18432
    s_mov_b32 s23, 0x20000
    s_cmp_ge_u32 s3, 18
    s_cbranch_scc1 S_WUPD
    s_mov_b32 s20, s12
    s_mov_b32 s21, s13
    s_lshr_b32 s30, s3, 1
    s_and_b32 s31, s3, 1
    s_lshl_b32 s31, s31, 5
    v_add_u32 v3, s31, v1
    s_mov_b32 s32, 8
    s_mov_b32 s33, 512
    s_mov_b32 s34, {f32(scale)}
    s_branch S_WLOAD
    S_WUPD:
    s_mov_b32 s20, s14
    s_mov_b32 s21, s15
    s_mov_b32 s22, 16384
    s_sub_u32 s35, s3, 18
    s_and_b32 s30, s35, 7
    s_lshr_b32 s31, s35, 3
    s_lshl_b32 s31, s31, 5
    v_bfe_u32 v4, v1, 2, 1
    v_lshlrev_b32 v4, 4, v4
    v_lshrrev_b32 v5, 3, v1
    v_lshl_add_u32 v4, v5, 2, v4
    v_and_b32 v5, 3, v1
    v_add3_u32 v3, v4, v5, s31
    s_cmp_ge_u32 s30, 4
    s_cselect_b32 s32, 4, 8
    s_mov_b32 s33, 512
    s_cselect_b32 s33, 1024, s33
    s_mov_b32 s34, 1.0
    S_WLOAD:
    s_lshl_b32 s30, s30, 4
    v_mul_lo_u32 v4, v2, s32
    v_add_u32 v4, s30, v4
    v_lshlrev_b32 v4, 7, v4
    v_lshl_add_u32 v4, v3, 1, v4
    """)
    for i in range(8):
        so = "0" if i < 4 else "s33"
        a(f"buffer_load_ushort v{8+i}, v4, s[20:23], {so} offen offset:{(i&3)*128}")
    srd(a, 24, 10, 0x800000)
    a(f"""
    v_and_b32 v5, 63, v0
    v_lshlrev_b32 v5, 4, v5
    s_lshl_b32 s35, s3, 10
    s_add_u32 s35, s35, {WS_WF}
    s_waitcnt vmcnt(0)
    """)
    for i in range(8):
        a(f"v_lshlrev_b32 v{8+i}, 16, v{8+i}\nv_mul_f32 v{8+i}, s34, v{8+i}")
    for i in range(4):
        a(f"v_cvt_pk_bf16_f32 v{16+i}, v{8+2*i}, v{9+2*i}")
    a("""
    buffer_store_dwordx4 v[16:19], v5, s[24:27], s35 offen
    S_END:
    s_endpgm
    """)

CAP, PAD = 512, 160
LW = (CAP + PAD) * 4
L_XR = 0
L_LS = 65536
L_LE = L_LS + 8 * LW
L_SM = L_LE + 8 * LW
L_XD = L_SM + 8 * 2560
MAIN_LDS = L_XD + 4 * 4608

def interleave(M, V, O):
    out = []
    mi = 0
    for i in range(len(V) + 1):
        while mi < len(M) and M[mi][1] <= i:
            out.append(M[mi][0]); out += O.get(mi, []); mi += 1
        if i < len(V): out.append(V[i])
    assert mi == len(M)
    return out

def gen_main():
    R = Regs("v", 1, 256)
    lane = R.alloc("lane");
    vLS = R.alloc("vLS"); vLE = R.alloc("vLE")
    cS = R.alloc("cS"); cXD = R.alloc("cXD"); cSR = R.alloc("cSR"); h16 = R.alloc("h16")
    one = R.alloc("one"); zero = R.alloc("zero")
    dl = R.alloc("dl", 2); sad = R.alloc("sad"); xda = R.alloc("xda"); ead = R.alloc("ead")
    g0 = R.alloc("g0"); g1 = R.alloc("g1"); p0 = R.alloc("p0"); p1 = R.alloc("p1"); c0 = R.alloc("c0"); c1 = R.alloc("c1")
    XA = R.alloc("XA", 4); CX = R.alloc("CX", 4); RR = R.alloc("RR", 4)
    S4 = R.alloc("S4", 4, 4)
    T = R.alloc("T", 8, 4); P = R.alloc("P", 8, 4); SF = R.alloc("SF", 8, 4)
    FX = R.alloc("FX", 16, 4); FD = R.alloc("FD", 16, 4); E = R.alloc("E", 16, 4)
    D = R.alloc("D", 32, 4); AG = R.alloc("AG", 32, 4); W = R.alloc("W", 72, 4)
    def Wf(ks, nh): return v(W + (ks * 2 + nh) * 4, 4)
    sX, sE, sREC, sO, sWF, sOUT = 16, 20, 24, 28, 32, 36
    sW, sP, sSUB, sGS, sN, sBASE, sCNT, sT, sXRB, sTMP, sTMP2, sM31 = 40, 41, 42, 43, 44, 45, 46, 47, 48, 49, 50, 51
    a(".p2align 8\nmain_kernel:")
    a(f"""
    s_and_b32 s3, s2, 7
    s_lshr_b32 s4, s2, 3
    s_mul_i32 s5, s3, 125
    s_add_u32 s6, s5, 125
    s_lshr_b32 s5, s5, 2
    s_lshr_b32 s6, s6, 2
    s_add_u32 s3, s5, s4
    s_cmp_ge_u32 s3, s6
    s_cbranch_scc1 M_END
    @stamp 0
    s_load_dwordx4 s[4:7], s[0:1], 0
    s_load_dwordx2 s[8:9], s[0:1], 48
    s_load_dwordx2 s[10:11], s[0:1], 64
    v_lshrrev_b32 v{T}, 6, v0
    v_and_b32 v{lane}, 63, v0
    v_readfirstlane_b32 s{sW}, v{T}
    s_nop 3
    s_and_b32 s{sP}, s{sW}, 1
    s_lshr_b32 s{sSUB}, s{sW}, 1
    s_lshl_b32 s{sGS}, s3, 2
    s_add_u32 s{sGS}, s{sGS}, s{sSUB}
    s_lshl_b32 s{sXRB}, s{sW}, 13
    s_mov_b32 s{sM31}, 31
    s_lshl_b32 s{sTMP}, s{sP}, 12
    s_lshl_b32 s{sTMP2}, s{sGS}, 2
    s_add_u32 s{sTMP}, s{sTMP}, s{sTMP2}
    v_lshlrev_b32 v{T}, 14, v{lane}
    v_add_u32 v{T}, s{sTMP}, v{T}
    v_add_u32 v{T+1}, 8192, v{T}
    s_waitcnt lgkmcnt(0)
    """)
    srd_off(a, sO, 10, WS_O, NCH * 4096)
    a(f"""
    buffer_load_dword v{c0}, v{T}, s[{sO}:{sO+3}], 0 offen
    buffer_load_dword v{c1}, v{T+1}, s[{sO}:{sO+3}], 0 offen
    """)
    srd(a, sX, 4, 3200000)
    srd(a, sE, 6, 0 if "noe" in OPT["abl"] else 25600000)
    srd(a, sREC, 10, 3200000)
    srd_off(a, sWF, 10, WS_WF, 34 * 1024)
    srd(a, sOUT, 8, 3200000)
    a(f"""
    s_mul_i32 s{sTMP}, s{sGS}, 3200
    s_lshl_b32 s{sTMP2}, s{sP}, 11
    v_lshlrev_b32 v{T+2}, 4, v{lane}
    v_add_u32 v{T+4}, s{sTMP2}, v{T+2}
    v_add_u32 v{T+5}, 1024, v{T+4}
    v_mov_b32 v{T+6}, 0x80000000
    v_cmp_gt_u32 vcc, 3200, v{T+5}
    s_nop 1
    v_cndmask_b32 v{T+5}, v{T+6}, v{T+5}, vcc
    buffer_load_dwordx4 {v(FX,4)}, v{T+4}, s[{sX}:{sX+3}], s{sTMP} offen
    buffer_load_dwordx4 {v(FX+4,4)}, v{T+5}, s[{sX}:{sX+3}], s{sTMP} offen
    """)
    def wloads(areg):
        for f in range(18):
            if f % 4 == 0: a(f"s_mov_b32 s75, {f*1024}")
            a(f"buffer_load_dwordx4 {v(W+4*f,4)}, v{areg}, s[{sWF}:{sWF+3}], s75 offen offset:{(f%4)*1024}")
    n_early = 0
    if OPT["mpf"]:
        a(f"""
        s_lshr_b32 s75, s2, 3
        s_mul_i32 s75, s75, 102400
        v_lshlrev_b32 v{T+7}, 7, v0
        buffer_load_dword v{E}, v{T+7}, s[{sX}:{sX+3}], s75 offen
        s_add_u32 s75, s75, 65536
        v_cmp_gt_u32 vcc, 288, v0
        s_nop 1
        v_cndmask_b32 v{T+7}, v{T+6}, v{T+7}, vcc
        buffer_load_dword v{E}, v{T+7}, s[{sX}:{sX+3}], s75 offen
        """)
        n_early += 2
    if not OPT["wlate"]:
        wloads(T+2); n_early += 18
    m, h, t0, t1, t2 = P, P+1, P+2, P+3, P+4
    a(f"""
    v_and_b32 v{m}, 31, v{lane}
    v_lshrrev_b32 v{h}, 5, v{lane}
    v_lshlrev_b32 v{h16}, 4, v{h}
    v_mov_b32 v{one}, 0x3f80
    v_mov_b32 v{zero}, 0
    s_mul_i32 s{sTMP}, s{sW}, {LW}
    s_add_u32 s{sTMP2}, s{sTMP}, {L_LS}
    v_lshrrev_b32 v{t0}, 3, v{lane}
    v_lshlrev_b32 v{vLS}, 4, v{t0}
    v_add_u32 v{vLS}, s{sTMP2}, v{vLS}
    s_add_u32 s{sTMP2}, s{sTMP}, {L_LE}
    v_lshlrev_b32 v{vLE}, 2, v{m}
    v_add_u32 v{vLE}, s{sTMP2}, v{vLE}
    """)
    a(f"""
    v_and_b32 v{t1}, 4, v{t0}
    v_and_b32 v{t2}, 7, v{lane}
    v_xor_b32 v{t1}, v{t1}, v{t2}
    """)
    for i in range(4):
        a(f"v_xor_b32 v{CX+i}, {i}, v{t1}\nv_lshlrev_b32 v{CX+i}, 4, v{CX+i}")
    a(f"""
    v_and_b32 v{t0}, 3, v{m}
    v_lshrrev_b32 v{t1}, 2, v{m}
    v_lshl_add_u32 v{t1}, v{t0}, 3, v{t1}
    v_lshlrev_b32 v{t1}, 7, v{t1}
    v_add_u32 v{t1}, s{sXRB}, v{t1}
    v_lshrrev_b32 v{t2}, 4, v{m}
    v_lshl_or_b32 v{t0}, v{t2}, 2, v{t0}
    v_xor_b32 v{t0}, v{t0}, v{h}
    """)
    for sx in range(4):
        a(f"v_xor_b32 v{XA+sx}, {2*sx}, v{t0}\nv_lshl_add_u32 v{XA+sx}, v{XA+sx}, 4, v{t1}")
    a(f"""
    s_mul_i32 s{sTMP}, s{sW}, 2560
    s_add_u32 s{sTMP}, s{sTMP}, {L_SM}
    v_and_b32 v{t0}, 19, v{m}
    v_and_b32 v{t1}, 4, v{m}
    v_lshl_or_b32 v{t0}, v{t1}, 1, v{t0}
    v_and_b32 v{t1}, 8, v{m}
    v_lshrrev_b32 v{t1}, 1, v{t1}
    v_or_b32 v{t0}, v{t0}, v{t1}
    v_lshlrev_b32 v{t0}, 1, v{t0}
    v_add_u32 v{cS}, s{sTMP}, v{t0}
    v_mul_u32_u24 v{t0}, 80, v{m}
    v_add3_u32 v{cSR}, v{t0}, v{h16}, s{sTMP}
    v_mul_u32_u24 v{t0}, 40, v{lane}
    v_add_u32 v{t0}, s{sTMP}, v{t0}
    v_mov_b32 v{T+6}, 0
    v_mov_b32 v{T+7}, 0
    """)
    for i in range(5):
        a(f"ds_write_b64 v{t0}, {v(T+6,2)} offset:{8*i}")
    a(f"""
    s_mul_i32 s{sTMP}, s{sSUB}, 4608
    s_add_u32 s{sTMP}, s{sTMP}, {L_XD}
    v_add_u32 v{cXD}, s{sTMP}, v{h16}
    s_mul_i32 s{sTMP2}, s{sP}, {16*144}
    s_add_u32 s{sTMP}, s{sTMP}, s{sTMP2}
    v_lshrrev_b32 v{t0}, 3, v{lane}
    v_mul_u32_u24 v{t0}, 144, v{t0}
    v_and_b32 v{t1}, 7, v{lane}
    v_lshl_add_u32 v{t0}, v{t1}, 4, v{t0}
    v_add_u32 v{t0}, s{sTMP}, v{t0}
    """)
    for i in range(32):
        a(f"v_mov_b32 v{AG+i}, 0")
    a(f"""
    v_lshl_add_u32 v{t1}, v{lane}, 2, s{sP}
    v_mul_u32_u24 v{g0}, {CH}, v{t1}
    v_lshl_or_b32 v{g0}, v{t1}, 20, v{g0}
    v_add_u32 v{g1}, {2*CH + (2<<20)}, v{g0}
    s_waitcnt vmcnt({n_early+2})
    @stamp 1
    v_and_b32 v{t1}, 0xffff, v{c0}
    v_add_u32 v{g0}, v{g0}, v{t1}
    v_and_b32 v{t1}, 0xffff, v{c1}
    v_add_u32 v{g1}, v{g1}, v{t1}
    v_lshrrev_b32 v{c0}, 16, v{c0}
    v_lshrrev_b32 v{c1}, 16, v{c1}
    v_add_u32 v{p1}, v{c0}, v{c1}
    """)
    wave_scan(a, p1)
    a(f"""
    s_nop 0
    v_readlane_b32 s{sN}, v{p1}, 63
    v_sub_u32 v{p1}, v{p1}, v{c1}
    v_sub_u32 v{p0}, v{p1}, v{c0}
    s_waitcnt vmcnt({n_early})
    ds_write_b128 v{t0}, {v(FX,4)}
    ds_write_b128 v{t0}, {v(FX+4,4)} offset:{8*144}
    s_mov_b32 s{sBASE}, 0
    s_waitcnt lgkmcnt(0)
    s_barrier
    @stamp 2
    M_BATCH:
    s_cmp_ge_u32 s{sBASE}, s{sN}
    s_cbranch_scc1 M_EPI
    s_sub_u32 s{sCNT}, s{sN}, s{sBASE}
    s_min_u32 s{sCNT}, s{sCNT}, {CAP}
    s_add_u32 s{sT}, s{sCNT}, 31
    s_lshr_b32 s{sT}, s{sT}, 5
    s_mul_i32 s{sTMP}, s{sW}, {LW}
    s_add_u32 s{sTMP}, s{sTMP}, {L_LS}
    """)
    A0, E0, V0, A1, E1, V1, tt = D, D+1, D+2, D+3, D+4, D+5, D+6
    for (pp, cc, gg, A, EE, VV) in ((p0, c0, g0, A0, E0, V0), (p1, c1, g1, A1, E1, V1)):
        a(f"""
        v_subrev_u32 v{tt}, s{sBASE}, v{pp}
        v_max_i32 v{A}, 0, v{tt}
        v_add_u32 v{EE}, v{tt}, v{cc}
        v_min_i32 v{EE}, {CAP}, v{EE}
        v_sub_u32 v{VV}, v{A}, v{tt}
        v_add_u32 v{VV}, v{VV}, v{gg}
        v_lshl_add_u32 v{A}, v{A}, 2, s{sTMP}
        v_lshl_add_u32 v{EE}, v{EE}, 2, s{sTMP}
        """)
    a(f"""
    M_EXP:
    v_cmp_lt_i32 vcc, v{A0}, v{E0}
    v_cmp_lt_i32 s[52:53], v{A1}, v{E1}
    s_mov_b64 exec, vcc
    ds_write_b32 v{A0}, v{V0}
    s_mov_b64 exec, s[52:53]
    ds_write_b32 v{A1}, v{V1}
    s_mov_b64 exec, -1
    v_add_u32 v{A0}, 4, v{A0}
    v_add_u32 v{A1}, 4, v{A1}
    v_add_u32 v{V0}, 1, v{V0}
    v_add_u32 v{V1}, 1, v{V1}
    s_or_b64 s[52:53], s[52:53], vcc
    s_cbranch_scc1 M_EXP
    """)
    qa, G, RC, oob = D+7, D+8, D+16, D+24
    a(f"v_lshl_add_u32 v{qa}, v{lane}, 2, s{sTMP}\nv_mov_b32 v{oob}, 0x80000000")
    for i in range(8):
        a(f"ds_read_b32 v{G+i}, v{qa} offset:{256*i}")
    for i in range(8):
        a(f"""
        s_sub_i32 s{sTMP2}, s{sCNT}, {64*i}
        v_cmp_gt_i32 s[{54+2*i}:{55+2*i}], s{sTMP2}, v{lane}
        s_waitcnt lgkmcnt({7-i})
        v_and_b32 v{tt}, 0xfffff, v{G+i}
        v_lshlrev_b32 v{tt}, 2, v{tt}
        v_cndmask_b32 v{tt}, v{oob}, v{tt}, s[{54+2*i}:{55+2*i}]
        buffer_load_dword v{RC+i}, v{tt}, s[{sREC}:{sREC+3}], 0 offen
        v_lshrrev_b32 v{G+i}, 20, v{G+i}
        v_mul_u32_u24 v{G+i}, {CH}, v{G+i}
        """)
    nl = 0
    if OPT["wlate"]:
        a(f"v_lshlrev_b32 v{D+27}, 4, v{lane}"); wloads(D+27); nl = 18
    a(f"""
    v_mov_b32 v{D+25}, 0x8000001f
    ds_write_b32 v{qa}, v{oob} offset:{CAP*4}
    ds_write_b32 v{qa}, v{oob} offset:{CAP*4+256}
    ds_write_b32 v{qa}, v{oob} offset:{CAP*4+384}
    ds_write_b32 v{qa}, v{D+25} offset:{8*LW+CAP*4}
    ds_write_b32 v{qa}, v{D+25} offset:{8*LW+CAP*4+256}
    ds_write_b32 v{qa}, v{D+25} offset:{8*LW+CAP*4+384}
    """)
    for i in range(8):
        a(f"""
        s_waitcnt vmcnt({7-i+nl})
        v_and_b32 v{tt}, 0x7fff, v{RC+i}
        v_lshlrev_b32 v{tt}, 7, v{tt}
        v_cndmask_b32 v{tt}, v{oob}, v{tt}, s[{54+2*i}:{55+2*i}]
        ds_write_b32 v{qa}, v{tt} offset:{256*i}
        v_bfe_u32 v{D+26}, v{RC+i}, 15, 12
        v_add_u32 v{G+i}, v{G+i}, v{D+26}
        v_alignbit_b32 v{G+i}, v{G+i}, v{RC+i}, 27
        v_cndmask_b32 v{G+i}, v{D+25}, v{G+i}, s[{54+2*i}:{55+2*i}]
        ds_write_b32 v{qa}, v{G+i} offset:{8*LW+256*i}
        """)
    ef = OPT["eflags"]
    def e_issue(tile_slot):
        return [f"v_bfi_b32 v{ead}, s{sM31}, v{h16}, v{RR+tile_slot}"], \
               [f"buffer_load_dwordx4 {v(E+4*tile_slot,4)}, v{ead}, s[{sE}:{sE+3}], 0 offen {ef}"]
    def x_addr():
        return [f"v_add_u32 v{S4+i}, v{S4+i}, v{CX+i}" for i in range(4)]
    def x_dma(slot):
        o = []
        for i in range(4):
            o += [f"s_add_u32 m0, s{sXRB}, {slot*4096+i*1024}", "s_nop 0",
                  f"buffer_load_dwordx4 v{S4+i}, s[{sX}:{sX+3}], 0 offen lds"]
        return o
    a("@stamp 3")
    if "nox" in OPT["abl"]: a(f"s_mov_b32 s{sX+2}, 0")
    for j in range(4):
        a(f"ds_read_b32 v{RR+j}, v{vLE} offset:{128*j}")
    a(f"ds_read_b128 {v(S4,4)}, v{vLS}")
    a(f"ds_read_b128 {v(T,4)}, v{vLS} offset:128")
    a(f"ds_read_b128 {v(T+4,4)}, v{vLS} offset:256")
    a("s_waitcnt lgkmcnt(0)")
    def emit(l): a("\n".join(l))
    emit(sum(e_issue(0), [])); emit(x_addr()); emit(x_dma(0))
    emit(sum(e_issue(1), []))
    for i in range(4): a(f"v_add_u32 v{S4+i}, v{T+i}, v{CX+i}")
    emit(x_dma(1)); emit(sum(e_issue(2), []))
    a(f"""
    v_and_b32 v{dl}, 31, v{RR}
    v_mad_u32_u24 v{xda}, v{dl}, s70, v{cXD}
    """.replace("s70", "s70"))
    a.L.insert(len(a.L) - 2, "    s_mov_b32 s70, 144")
    a.L.insert(len(a.L) - 2, "    s_mov_b32 s71, 80")
    for sx in range(4): a(f"ds_read_b128 {v(FD+4*sx,4)}, v{xda} offset:{32*sx}")
    a("s_waitcnt vmcnt(6)")
    for sx in range(4): a(f"ds_read_b128 {v(FX+4*sx,4)}, v{XA+sx}")
    a("s_waitcnt lgkmcnt(0)")
    def chain(nh, eslot):
        Dh = v(D + 16 * nh, 16)
        ops = [(FD + 4 * sx, 4 + sx) for sx in range(4)] + [(E + 4 * eslot, 8)] + [(FX + 4 * sx, sx) for sx in range(4)]
        return [f"v_mfma_f32_32x32x16_bf16 {Dh}, {v(fr,4)}, {Wf(ks,nh)}, {'0' if n == 0 else Dh}" for n, (fr, ks) in enumerate(ops)]
    emit(chain(0, 0))
    for i in range(4): a(f"v_add_u32 v{S4+i}, v{T+4+i}, v{CX+i}")
    emit(x_dma(0)); emit(sum(e_issue(3), []))
    a("s_nop 7")
    def silu_block(nh, q):
        Db = D + 16 * nh + 8 * q
        o = []
        if OPT["fold"]:
            o += [f"v_exp_f32 v{T+i}, v{Db+i}" for i in range(8)]
        else:
            o += [f"v_mul_f32 v{T+i}, s72, v{Db+i}" for i in range(8)]
            o += [f"v_exp_f32 v{T+i}, v{T+i}" for i in range(8)]
        o += [f"v_add_f32 v{T+i}, 1.0, v{T+i}" for i in range(8)]
        o += [f"v_rcp_f32 v{T+i}, v{T+i}" for i in range(8)]
        o += [f"v_mul_f32 v{T+i}, v{Db+i}, v{T+i}" for i in range(8)]
        o += [f"v_cvt_pk_bf16_f32 v{P+4*q+i}, v{T+2*i}, v{T+2*i+1}" for i in range(4)]
        return o
    def seg(nh, q):
        Ah = v(AG + 16 * nh, 16)
        return f"v_mfma_f32_32x32x16_bf16 {Ah}, {v(P+4*q,4)}, {v(SF+4*q,4)}, {Ah}"
    def cost(l): return 8 if l.startswith(("v_exp", "v_rcp")) else 4
    def phase(silu_nh, chain_ops, pre, after, extraV):
        b0, b1 = silu_block(silu_nh, 0), silu_block(silu_nh, 1)
        V = b0 + b1
        n0 = len(b0)
        tot = sum(cost(l) for l in V)
        cum = [0]
        for l in V: cum.append(cum[-1] + cost(l))
        def pos_at(frac):
            for i, c in enumerate(cum):
                if c >= frac * tot: return i
            return len(V)
        order = [("g", 0), ("g", 1), ("g", 2), ("g", 3), ("g", 4), ("g", 5), ("s", 0), ("g", 6), ("g", 7), ("g", 8), ("s", 1)]
        M = []; O = {}
        for n, (kind, idx) in enumerate(order):
            p_ = pos_at(n / 10.6)
            if kind == "g":
                M.append((chain_ops[idx], p_)); O[n] = after.get(idx, [])
            elif idx == 0:
                assert p_ >= n0 + 2
                M.append((seg(silu_nh, 0), p_)); O[n] = after.get("s0", [])
            else:
                M.append(("s_nop 1\n" + seg(silu_nh, 1), len(V)))
        assert len(V) - M[9][1] >= 9, (len(V), M[9][1])
        out = interleave(M, V, O)
        if "nocomp" in OPT["abl"]:
            out = [l for l in out if not any(k in l for k in ("v_exp", "v_rcp", "v_mul_f32", "v_add_f32", "v_cvt", "v_mfma"))]
        if "notrans" in OPT["abl"]:
            out = [l for l in out if not any(k in l for k in ("v_exp", "v_rcp", "v_mul_f32", "v_add_f32", "v_cvt"))]
        return pre + out
    a("s_mov_b32 s72, " + f32(-LOG2E))
    a("@stamp 4")
    if OPT["stamp"]: a(f"s_mov_b32 s90, s{sT}\ns_memtime s[94:95]\ns_waitcnt lgkmcnt(0)")
    a("M_LOOP:")
    for u in range(4):
        pre = [f"v_mad_u32_u24 v{sad}, v{dl+(u&1)}, s71, v{cS}",
               f"v_and_b32 v{dl+((u+1)&1)}, 31, v{RR+((u+1)&3)}",
               f"ds_write_b16 v{sad}, v{one}",
               f"ds_read_b128 {v(SF,4)}, v{cSR}",
               f"ds_read_b128 {v(SF+4,4)}, v{cSR} offset:32",
               f"ds_write_b16 v{sad}, v{zero}",
               f"v_mad_u32_u24 v{xda}, v{dl+((u+1)&1)}, s70, v{cXD}"]
        after = {}
        for sx in range(4):
            after[sx] = [f"ds_read_b128 {v(FD+4*sx,4)}, v{xda} offset:{32*sx}"]
        slot = (u + 1) & 1
        after[4] = [f"ds_read_b32 v{RR+u}, v{vLE} offset:{128*(u+4)}",
                    f"ds_read_b128 {v(S4,4)}, v{vLS} offset:{128*(u+3)}"]
        after[5] = ["s_waitcnt vmcnt(6) lgkmcnt(7)", f"ds_read_b128 {v(FX,4)}, v{XA} offset:{slot*4096}"]
        for sx in range(1, 4):
            after[5 + sx] = [f"ds_read_b128 {v(FX+4*sx,4)}, v{XA+sx} offset:{slot*4096}"]
        emit(phase(0, chain(1, u), pre, after, None))
        ea, el = e_issue(u)
        dm = x_dma(slot)
        pre = ["s_waitcnt lgkmcnt(4)"]
        after = {0: x_addr() + ea, 2: ["s_waitcnt lgkmcnt(0)"] + dm[0:3], 3: dm[3:6], 4: dm[6:9], 5: dm[9:12], 6: el}
        if u == 3:
            after[7] = [f"v_add_u32 v{vLS}, 512, v{vLS}", f"v_add_u32 v{vLE}, 512, v{vLE}"]
        emit(phase(1, chain(0, (u + 1) & 3), pre, after, None))
        a(f"s_sub_u32 s{sT}, s{sT}, 1\ns_cmp_eq_u32 s{sT}, 0")
        a("s_cbranch_scc1 M_BEND" if u < 3 else "s_cbranch_scc0 M_LOOP")
    a(f"""
    M_BEND:
    s_waitcnt vmcnt(0) lgkmcnt(0)
    s_add_u32 s{sBASE}, s{sBASE}, {CAP}
    s_mul_i32 s{sTMP}, s{sW}, {LW}
    s_add_u32 s{sTMP2}, s{sTMP}, {L_LS}
    v_lshrrev_b32 v{vLS}, 3, v{lane}
    v_lshlrev_b32 v{vLS}, 4, v{vLS}
    v_add_u32 v{vLS}, s{sTMP2}, v{vLS}
    s_add_u32 s{sTMP2}, s{sTMP}, {L_LE}
    v_and_b32 v{vLE}, 31, v{lane}
    v_lshlrev_b32 v{vLE}, 2, v{vLE}
    v_add_u32 v{vLE}, s{sTMP2}, v{vLE}
    s_nop 7
    s_branch M_BATCH
    M_EPI:
    @stamp 5
    @cyc
    s_waitcnt vmcnt(0)
    v_lshlrev_b32 v{T}, 4, v{lane}
    s_lshl_b32 s{sTMP}, s{sP}, 13
    s_add_u32 s{sTMP}, s{sTMP}, {18*1024}
    s_add_u32 s{sTMP2}, s{sTMP}, 4096
    """)
    for f in range(8):
        a(f"buffer_load_dwordx4 {v(W+4*f,4)}, v{T}, s[{sWF}:{sWF+3}], s{sTMP if f < 4 else sTMP2} offen offset:{(f%4)*1024}")
    a(f"v_add_u32 v{T+1}, s{sXRB}, v{T}\nv_xor_b32 v{T+2}, 8192, v{T+1}")
    for i in range(8):
        a(f"ds_write_b128 v{T+1}, {v(AG+4*i,4)} offset:{1024*i}")
    a(f"""
    v_and_b32 v{T+3}, 31, v{lane}
    v_mul_u32_u24 v{T+4}, 144, v{T+3}
    v_add_u32 v{T+4}, v{T+4}, v{cXD}
    """)
    for sx in range(4):
        a(f"ds_read_b128 {v(FX+4*sx,4)}, v{T+4} offset:{32*sx}")
    a("s_waitcnt lgkmcnt(0)\ns_barrier")
    for i in range(8):
        a(f"ds_read_b128 {v(D+4*i,4)}, v{T+2} offset:{1024*i}")
    a(f"""
    s_mov_b32 s72, {f32(-LOG2E)}
    s_mov_b32 s73, {f32(-1.0/LOG2E if OPT['fold'] else 1.0)}
    s_mul_i32 s{sTMP}, s{sGS}, 3200
    s_lshl_b32 s{sTMP2}, s{sP}, 6
    s_add_u32 s{sTMP}, s{sTMP}, s{sTMP2}
    v_lshlrev_b32 v{T+5}, 7, v{T+3}
    v_lshl_add_u32 v{T+5}, v{h16}, 1, v{T+5}
    v_mov_b32 v{T+6}, 0x80000000
    v_cmp_gt_u32 vcc, 25, v{T+3}
    s_nop 1
    v_cndmask_b32 v{T+5}, v{T+6}, v{T+5}, vcc
    s_waitcnt lgkmcnt(0)
    """)
    for i in range(32):
        a(f"v_add_f32 v{AG+i}, v{AG+i}, v{D+i}\nv_mul_f32 v{AG+i}, s73, v{AG+i}")
    for i in range(16):
        a(f"v_cvt_pk_bf16_f32 v{FD+i}, v{AG+2*i}, v{AG+2*i+1}")
    a("s_waitcnt vmcnt(0)\ns_nop 1")
    for st in range(8):
        src = FX + 4 * st if st < 4 else FD + 4 * (st - 4)
        a(f"v_mfma_f32_32x32x16_bf16 {v(D,16)}, {v(W+4*st,4)}, {v(src,4)}, {'0' if st == 0 else v(D,16)}")
    a("s_nop 15")
    for i in range(16): a(f"v_mul_f32 v{AG+i}, s72, v{D+i}")
    for i in range(16): a(f"v_exp_f32 v{AG+i}, v{AG+i}")
    for i in range(16): a(f"v_add_f32 v{AG+i}, 1.0, v{AG+i}")
    for i in range(16): a(f"v_rcp_f32 v{AG+i}, v{AG+i}")
    for i in range(16): a(f"v_mul_f32 v{AG+i}, v{D+i}, v{AG+i}")
    for i in range(8): a(f"v_cvt_pk_bf16_f32 v{FD+i}, v{AG+2*i}, v{AG+2*i+1}")
    a(f"""
    buffer_store_dwordx4 {v(FD,4)}, v{T+5}, s[{sOUT}:{sOUT+3}], s{sTMP} offen
    buffer_store_dwordx4 {v(FD+4,4)}, v{T+5}, s[{sOUT}:{sOUT+3}], s{sTMP} offen offset:16
    """)
    if OPT["stamp"]: a("s_waitcnt vmcnt(0)\n@stamp 6")
    stamp_out(8, f"s_lshl_b32 s74, s2, 3\ns_add_u32 s74, s74, s{sW}", 10, 0x80000)
    a("M_END:\ns_endpgm")
    return R.n

hdr = f"""; MPNN edge-MLP + segment-sum + node update, two launches:
; @launch kernel=sort_kernel grid=(253,1,1) block=(1024,1,1) lds={SORT_LDS}
; @launch kernel=main_kernel grid=(256,1,1) block=(512,1,1) lds={MAIN_LDS}
.amdgcn_target "amdgcn-amd-amdhsa--gfx950"
.text
.globl sort_kernel
.type sort_kernel,@function
.globl main_kernel
.type main_kernel,@function
"""
gen_sort()
nv = gen_main()
txt = hdr + a.text() + '.section .rodata,"a"\n.p2align 6\n' + kdesc("sort_kernel", 56) + ".p2align 6\n" + kdesc("main_kernel", 256, 100 if OPT["stamp"] else 96)
open(sys.argv[1], "w").write(txt)
print("main vgprs", nv, "lds", MAIN_LDS, SORT_LDS)
```

```python
import sys, struct
from asmlib import *

OPT = dict(abl="", stamp=False, eflags="", idxflags="", stflags="sc1", pk=True, prio=False, M0=1600)
for arg in sys.argv[2:]:
    k, val = arg.split("=")
    OPT[k] = {"True": True, "False": False}.get(val, val.replace("+", " "))
M0 = int(OPT["M0"])

NCH, CH = 250, 3200
WS_REC, WS_O, WS_WF, WS_ST = 0, 0x400000, 0x600000, 0x700000
LOG2E = 1.4426950408889634
def f32(x): return "0x%08x" % struct.unpack("<I", struct.pack("<f", x))[0]

a = Asm()
a.stamps = OPT["stamp"]
def stamp_out(n, wid_sgpr_expr, base_sgpr, region):
    if not OPT["stamp"]: return
    a("s_waitcnt lgkmcnt(0)")
    a(wid_sgpr_expr)
    a(f"s_lshl_b32 s74, s74, 6\ns_add_u32 s74, s74, {WS_ST+region}\ns_add_u32 s92, s{base_sgpr}, s74\ns_addc_u32 s93, s{base_sgpr+1}, 0\nv_mov_b32 v0, 0")
    for i in range(n):
        a(f"v_mov_b32 v1, s{76+2*i}\nglobal_store_dword v0, v1, s[92:93] offset:{4*i}")
    if n == 8: a("s_sub_u32 s96, s96, s94\nv_mov_b32 v1, s96\nglobal_store_dword v0, v1, s[92:93] offset:32\nv_mov_b32 v1, s98\nglobal_store_dword v0, v1, s[92:93] offset:36")
def emit(l): a("\n".join(l))

SORT_LDS = 4096 + 128 + CH * 4
def gen_sort():
    a(".p2align 8\nsort_kernel:")
    a(f"""
    s_cmp_ge_u32 s2, 253
    s_cbranch_scc1 S_END
    s_load_dwordx4 s[4:7], s[0:1], 16
    s_load_dwordx2 s[10:11], s[0:1], 64
    s_load_dwordx4 s[12:15], s[0:1], 32
    s_cmp_ge_u32 s2, 250
    s_cbranch_scc1 S_WPREP
    @stamp 0
    v_lshlrev_b32 v2, 2, v0
    v_mov_b32 v3, 0
    ds_write_b32 v2, v3
    s_mul_i32 s3, s2, 12800
    v_lshl_add_u32 v1, v0, 4, s3
    v_cmp_gt_u32 vcc, 800, v0
    s_mov_b64 s[40:41], vcc
    v_mov_b32 v12, 0x80000000
    v_cndmask_b32 v1, v12, v1, vcc
    s_waitcnt lgkmcnt(0)
    """)
    srd(a, 20, 6, 3200000)
    fl = OPT["idxflags"]
    a(f"buffer_load_dwordx4 v[4:7], v1, s[20:23], 0 offen {fl}")
    srd(a, 16, 4, 3200000)
    a(f"buffer_load_dwordx4 v[8:11], v1, s[16:19], 0 offen {fl}")
    srd(a, 24, 10, 0x800000)
    a(f"""
    v_mov_b32 v15, 1
    v_cmp_le_u32 vcc, {M0//4}, v0
    v_mov_b32 v13, 2048
    v_subrev_u32 v14, {M0}, v2
    v_cndmask_b32 v13, 0, v13, vcc
    v_cndmask_b32 v16, v2, v14, vcc
    v_lshlrev_b32 v16, 15, v16
    v_and_b32 v45, 0x1fe, v0
    v_lshlrev_b32 v45, 11, v45
    v_and_b32 v46, 1, v0
    v_lshl_or_b32 v45, v46, 3, v45
    v_lshrrev_b32 v46, 9, v0
    v_lshl_or_b32 v45, v46, 2, v45
    s_and_b32 s39, s2, 7
    s_lshl_b32 s39, s39, 5
    s_lshr_b32 s38, s2, 3
    s_add_u32 s39, s39, s38
    s_lshl_b32 s39, s39, 4
    s_add_u32 s39, s39, {WS_O}
    s_barrier
    s_waitcnt vmcnt(1)
    @stamp 1
    """)
    for i in range(4):
        a(f"""
        v_mul_u32_u24 v{20+i}, 1342, v{4+i}
        v_lshrrev_b32 v{20+i}, 16, v{20+i}
        v_lshl_add_u32 v{20+i}, v{20+i}, 2, v13
        """)
    a("s_mov_b64 exec, s[40:41]")
    for i in range(4):
        a(f"ds_add_rtn_u32 v{24+i}, v{20+i}, v15")
    a(f"s_mov_b64 exec, -1\ns_waitcnt vmcnt(0)")
    for i in range(4):
        a(f"""
        v_lshl_or_b32 v{28+i}, v{4+i}, 26, v{8+i}
        v_add_u32 v17, {i<<15}, v16
        v_or_b32 v{28+i}, v{28+i}, v17
        """)
    a("""
    s_waitcnt lgkmcnt(0)
    s_barrier
    @stamp 2
    ds_read_b32 v32, v2
    v_lshrrev_b32 v34, 6, v0
    v_lshlrev_b32 v35, 2, v34
    v_readfirstlane_b32 s37, v34
    s_waitcnt lgkmcnt(0)
    v_mov_b32 v33, v32
    """)
    wave_scan(a, 33)
    a("""
    s_mov_b32 exec_lo, 0
    s_mov_b32 exec_hi, 0x80000000
    ds_write_b32 v35, v33 offset:4096
    s_mov_b64 exec, -1
    v_and_b32 v36, 15, v0
    v_lshlrev_b32 v36, 2, v36
    s_waitcnt lgkmcnt(0)
    s_barrier
    ds_read_b32 v37, v36 offset:4096
    s_waitcnt lgkmcnt(0)
    v_mov_b32 v38, v37
    """)
    for sh in (1, 2, 4, 8):
        a(f"s_nop 1\nv_add_u32_dpp v38, v38, v38 row_shr:{sh} row_mask:0xf bank_mask:0xf bound_ctrl:0")
    st = OPT["stflags"]
    a(f"""
    v_sub_u32 v38, v38, v37
    s_nop 0
    v_readlane_b32 s38, v38, s37
    v_sub_u32 v33, v33, v32
    s_nop 1
    v_add_u32 v33, s38, v33
    ds_write_b32 v2, v33
    v_lshl_or_b32 v39, v32, 16, v33
    buffer_store_dword v39, v45, s[24:27], s39 offen
    s_waitcnt lgkmcnt(0)
    s_barrier
    @stamp 3
    s_mov_b64 exec, s[40:41]
    """)
    for i in range(4):
        a(f"ds_read_b32 v{40+i}, v{20+i}")
    for i in range(4):
        a(f"""
        s_waitcnt lgkmcnt({3})
        v_add_lshl_u32 v{40+i}, v{40+i}, v{24+i}, 2
        ds_write_b32 v{40+i}, v{28+i} offset:4224
        """)
    a(f"""
    s_mov_b64 exec, -1
    v_lshlrev_b32 v44, 4, v0
    s_waitcnt lgkmcnt(0)
    s_barrier
    s_mov_b64 exec, s[40:41]
    ds_read_b128 v[48:51], v44 offset:4224
    s_mov_b64 exec, -1
    s_waitcnt lgkmcnt(0)
    buffer_store_dwordx4 v[48:51], v1, s[24:27], 0 offen {st}
    @stamp 4
    """)
    if OPT["stamp"]: a("s_waitcnt vmcnt(0)\n@stamp 5")
    stamp_out(6, "s_lshl_b32 s74, s2, 4\ns_add_u32 s74, s74, s37", 10, 0)
    a("s_endpgm")
    a(f"""
    S_WPREP:
    v_lshrrev_b32 v1, 6, v0
    s_nop 0
    v_readfirstlane_b32 s3, v1
    s_sub_u32 s16, s2, 250
    s_lshl_b32 s16, s16, 4
    s_add_u32 s3, s3, s16
    s_cmp_ge_u32 s3, 34
    s_cbranch_scc1 S_END
    v_and_b32 v1, 31, v0
    v_bfe_u32 v2, v0, 5, 1
    s_waitcnt lgkmcnt(0)
    s_mov_b32 s22, 18432
    s_mov_b32 s23, 0x20000
    s_cmp_ge_u32 s3, 18
    s_cbranch_scc1 S_WUPD
    s_mov_b32 s20, s12
    s_mov_b32 s21, s13
    s_lshr_b32 s30, s3, 1
    s_and_b32 s31, s3, 1
    s_lshl_b32 s31, s31, 5
    v_add_u32 v3, s31, v1
    s_mov_b32 s34, {f32(-LOG2E)}
    s_lshr_b32 s35, s3, 3
    s_cmp_eq_u32 s35, 1
    s_cselect_b32 s34, 1.0, s34
    s_branch S_WLOAD
    S_WUPD:
    s_mov_b32 s20, s14
    s_mov_b32 s21, s15
    s_mov_b32 s22, 16384
    s_sub_u32 s35, s3, 18
    s_and_b32 s30, s35, 7
    s_lshr_b32 s31, s35, 3
    s_lshl_b32 s31, s31, 5
    v_bfe_u32 v4, v1, 2, 1
    v_lshlrev_b32 v4, 4, v4
    v_lshrrev_b32 v5, 3, v1
    v_lshl_add_u32 v4, v5, 2, v4
    v_and_b32 v5, 3, v1
    v_add3_u32 v3, v4, v5, s31
    s_mov_b32 s34, 1.0
    S_WLOAD:
    s_lshl_b32 s30, s30, 4
    v_lshlrev_b32 v4, 3, v2
    v_add_u32 v4, s30, v4
    v_lshlrev_b32 v4, 7, v4
    v_lshl_add_u32 v4, v3, 1, v4
    """)
    for i in range(8):
        a(f"buffer_load_ushort v{8+i}, v4, s[20:23], 0 offen offset:{i*128}")
    srd(a, 24, 10, 0x800000)
    a(f"""
    v_and_b32 v5, 63, v0
    v_lshlrev_b32 v5, 4, v5
    s_lshl_b32 s35, s3, 10
    s_add_u32 s35, s35, {WS_WF}
    s_waitcnt vmcnt(0)
    """)
    for i in range(8):
        a(f"v_lshlrev_b32 v{8+i}, 16, v{8+i}\nv_mul_f32 v{8+i}, s34, v{8+i}")
    for i in range(4):
        a(f"v_cvt_pk_bf16_f32 v{16+i}, v{8+2*i}, v{9+2*i}")
    a("""
    buffer_store_dwordx4 v[16:19], v5, s[24:27], s35 offen
    S_END:
    s_endpgm
    """)

LMAX = 18
LT = LMAX + 4
GS = LT * 128
XRS = 8704
L_XR = 0
L_LS = 8 * XRS
L_LE = L_LS + 8 * GS
L_XD = L_LE + 8 * GS
L_WL = L_XD + 128 * 144
L_DEG = L_WL + 18432
L_CNT = L_DEG + 512
L_NT = L_CNT + 128
L_MX = L_NT + 16
L_BAS = L_MX + 16
L_TB = L_BAS + 128
MAIN_LDS = 163840
assert L_TB + 1024 <= MAIN_LDS and L_DEG % 16 == 0
WS_SP = 0x1000000
DUMMY = 0xC0000062

def gen_main():
    R = Regs("v", 1, 256)
    lane = R.alloc("lane"); vLS = R.alloc("vLS"); vLE = R.alloc("vLE"); h16 = R.alloc("h16")
    aga = R.alloc("aga"); ead = R.alloc("ead")
    g0 = R.alloc("g0"); g1 = R.alloc("g1"); p0 = R.alloc("p0"); p1 = R.alloc("p1"); c0 = R.alloc("c0"); c1 = R.alloc("c1")
    vC = R.alloc("vC", 2, 2)
    XA = R.alloc("XA", 4); CX = R.alloc("CX", 4); RR = R.alloc("RR", 4)
    S4 = R.alloc("S4", 4, 4); T = R.alloc("T", 8, 4); U = R.alloc("U", 8, 4)
    FX = R.alloc("FX", 16, 4); E = R.alloc("E", 16, 4)
    D = R.alloc("D", 32, 4); Q = R.alloc("Q", 32, 4); AG = R.alloc("AG", 32, 4); W = R.alloc("W", 40, 4)
    def W1f(ks, nh): return v(W + (ks * 2 + nh) * 4, 4)
    def W3f(nh): return v(W + 32 + nh * 4, 4)
    sX, sE, sREC, sO, sWF, sOUT = 16, 20, 24, 28, 32, 36
    sW, sTY, sS0, sNB, sN, sBASE, sCNT, sT, sXRB, sA, sB, sCAP = 40, 41, 42, 43, 44, 45, 46, 47, 48, 49, 50, 51
    sSS, sSO, sNMAX, sG, sL, sM7, sB30 = 70, 71, 72, 73, 12, 13, 14
    a(".p2align 8\nmain_kernel:")
    a(f"""
    s_cmp_ge_u32 s2, 256
    s_cbranch_scc1 M_END
    s_load_dwordx2 s[10:11], s[0:1], 64
    s_load_dwordx4 s[4:7], s[0:1], 0
    s_load_dwordx2 s[8:9], s[0:1], 48
    @stamp 0
    s_and_b32 s3, s2, 7
    s_lshl_b32 s3, s3, 5
    s_lshr_b32 s{sA}, s2, 3
    s_add_u32 s3, s3, s{sA}
    v_lshrrev_b32 v{T}, 6, v0
    v_and_b32 v{lane}, 63, v0
    v_readfirstlane_b32 s{sW}, v{T}
    v_lshlrev_b32 v{T}, 5, v{lane}
    s_lshl_b32 s{sA}, s3, 12
    s_and_b32 s{sB}, s{sW}, 3
    s_lshl_b32 s{sB}, s{sB}, 2
    s_add_u32 s{sA}, s{sA}, s{sB}
    s_lshr_b32 s{sB}, s{sW}, 2
    s_lshl_b32 s{sB}, s{sB}, 11
    s_add_u32 s{sA}, s{sA}, s{sB}
    s_waitcnt lgkmcnt(0)
    """)
    srd_off(a, sO, 10, WS_O, 256 * 4096)
    a(f"""
    buffer_load_dword v{c0}, v{T}, s[{sO}:{sO+3}], s{sA} offen
    buffer_load_dword v{c1}, v{T}, s[{sO}:{sO+3}], s{sA} offen offset:16
    """)
    srd(a, sX, 4, 3200000)
    a(f"""
    s_and_b32 s{sTY}, s{sW}, 1
    s_lshl_b32 s{sA}, s3, 17
    s_add_u32 s{sA}, s{sA}, 1341
    s_mul_hi_u32 s{sS0}, s{sA}, 3200423
    s_add_u32 s{sA}, s{sA}, 65536
    s_mul_hi_u32 s{sSS}, s{sA}, 3200423
    s_add_u32 s{sA}, s{sA}, 65536
    s_mul_hi_u32 s{sNB}, s{sA}, 3200423
    s_min_u32 s{sNB}, s{sNB}, 25000
    s_sub_u32 s{sNB}, s{sNB}, s{sS0}
    s_bitcmp1_b32 s{sW}, 1
    s_cselect_b32 s{sSS}, s{sSS}, s{sS0}
    s_sub_u32 s{sSO}, s{sSS}, s{sS0}
    s_lshl_b32 s{sA}, s{sS0}, 7
    s_lshl_b32 s{sB}, s{sNB}, 7
    v_lshlrev_b32 v{T+2}, 4, v0
    v_add_u32 v{T+3}, 8192, v{T+2}
    v_mov_b32 v{T+6}, 0x80000000
    v_cmp_gt_u32 vcc, s{sB}, v{T+3}
    s_nop 1
    v_cndmask_b32 v{T+3}, v{T+6}, v{T+3}, vcc
    buffer_load_dwordx4 {v(FX,4)}, v{T+2}, s[{sX}:{sX+3}], s{sA} offen
    buffer_load_dwordx4 {v(FX+4,4)}, v{T+3}, s[{sX}:{sX+3}], s{sA} offen
    """)
    srd(a, sE, 6, 0 if "noe" in OPT["abl"] else 25600000)
    srd(a, sREC, 10, 3200000)
    srd_off(a, sWF, 10, WS_WF, 34 * 1024)
    srd(a, sOUT, 8, 3200000)
    def wstage(first, count, lab):
        a(f"v_lshlrev_b32 v{T+7}, 4, v{lane}\ns_lshl_b32 s{sA}, s{sW}, 10\ns_add_u32 s{sB}, s{sA}, {first*1024}")
        for j in range((count + 7) // 8):
            if (j + 1) * 8 > count: a(f"s_cmp_ge_u32 s{sW}, {count - 8*j}\ns_cbranch_scc1 {lab}")
            a(f"s_add_u32 m0, s{sA}, {L_WL + j*8192}\ns_nop 0\nbuffer_load_dwordx4 v{T+7}, s[{sWF}:{sWF+3}], s{sB} offen lds\ns_add_u32 s{sB}, s{sB}, 8192")
        a(f"{lab}:")
    for i in range(4): a(f"v_mov_b32 v{U+4+i}, {DUMMY}")
    a(f"""
    v_add_u32 v{T+5}, {L_LS}, v{T+2}
    v_lshlrev_b32 v{T+4}, 2, v0
    v_add_u32 v{T+4}, {L_DEG}, v{T+4}
    v_mov_b32 v{U}, 0
    ds_write_b32 v{T+4}, v{U}
    """)
    def prefill(lab):
        assert 16 * GS == 5 * 8192 + 4096
        for i in range(5): a(f"ds_write_b128 v{T+5}, {v(U+4,4)} offset:{8192*i}")
        a(f"s_cmp_ge_u32 s{sW}, 4\ns_cbranch_scc1 {lab}\nds_write_b128 v{T+5}, {v(U+4,4)} offset:{8192*5}\n{lab}:")
    prefill("M_PF0")
    m, h, t0, t1, t2 = D, D+1, D+2, D+3, D+4
    a(f"""
    s_sub_u32 s{sG}, 11, s{sW}
    s_cmp_lt_u32 s{sW}, 4
    s_cselect_b32 s{sG}, s{sW}, s{sG}
    s_mul_i32 s{sXRB}, s{sG}, {XRS}
    s_mov_b32 s{sM7}, 0xffffff80
    s_mov_b32 s{sB30}, 0x40000000
    s_mov_b32 s{sCAP}, 512
    s_mov_b32 s{sBASE}, 0
    v_and_b32 v{m}, 31, v{lane}
    v_lshrrev_b32 v{h}, 5, v{lane}
    v_lshlrev_b32 v{h16}, 4, v{h}
    v_lshrrev_b32 v{t0}, 3, v{lane}
    v_and_b32 v{t1}, 4, v{t0}
    v_and_b32 v{t2}, 7, v{lane}
    v_xor_b32 v{t1}, v{t1}, v{t2}
    """)
    for i in range(4):
        a(f"v_xor_b32 v{CX+i}, {i}, v{t1}\nv_lshlrev_b32 v{CX+i}, 4, v{CX+i}")
    a(f"""
    v_and_b32 v{t0}, 3, v{m}
    v_lshrrev_b32 v{t1}, 2, v{m}
    v_lshl_add_u32 v{t1}, v{t0}, 3, v{t1}
    v_lshlrev_b32 v{t1}, 7, v{t1}
    v_add_u32 v{t1}, s{sXRB}, v{t1}
    v_lshrrev_b32 v{t2}, 4, v{m}
    v_lshl_or_b32 v{t0}, v{t2}, 2, v{t0}
    v_xor_b32 v{t0}, v{t0}, v{h}
    """)
    for sx in range(4):
        a(f"v_xor_b32 v{XA+sx}, {2*sx}, v{t0}\nv_lshl_add_u32 v{XA+sx}, v{XA+sx}, 4, v{t1}")
    a(f"""
    s_lshr_b32 s{sA}, s{sW}, 2
    s_lshl_b32 s{sA}, s{sA}, 2
    v_and_b32 v{t0}, 15, v{lane}
    v_lshlrev_b32 v{t0}, 4, v{t0}
    v_lshrrev_b32 v{t1}, 4, v{lane}
    v_add3_u32 v{t0}, v{t0}, v{t1}, s{sA}
    v_mul_u32_u24 v{g0}, {CH}, v{t0}
    v_lshl_or_b32 v{g0}, v{t0}, 20, v{g0}
    v_add_u32 v{g1}, {8*CH + (8<<20)}, v{g0}
    v_cmp_gt_u32 vcc, {NCH-8}, v{t0}
    v_lshrrev_b32 v{t1}, 3, v0
    v_mul_u32_u24 v{t1}, 144, v{t1}
    v_and_b32 v{t2}, 7, v0
    v_lshl_add_u32 v{t1}, v{t2}, 4, v{t1}
    v_add_u32 v{t1}, {L_XD}, v{t1}
    s_waitcnt vmcnt(2)
    @stamp 1
    v_cndmask_b32 v{c1}, 0, v{c1}, vcc
    v_and_b32 v{t2}, 0xffff, v{c0}
    v_add_u32 v{g0}, v{g0}, v{t2}
    v_and_b32 v{t2}, 0xffff, v{c1}
    v_add_u32 v{g1}, v{g1}, v{t2}
    v_lshrrev_b32 v{c0}, 16, v{c0}
    v_lshrrev_b32 v{c1}, 16, v{c1}
    v_add_u32 v{p1}, v{c0}, v{c1}
    """)
    wave_scan(a, p1)
    a(f"""
    s_nop 0
    v_readlane_b32 s{sN}, v{p1}, 63
    v_sub_u32 v{p1}, v{p1}, v{c1}
    v_sub_u32 v{p0}, v{p1}, v{c0}
    s_waitcnt vmcnt(0)
    ds_write_b128 v{t1}, {v(FX,4)}
    ds_write_b128 v{t1}, {v(FX+4,4)} offset:{64*144}
    M_BATCH:
    """)
    wstage(0, 18, "M_WS0")
    a(f"""
    s_sub_i32 s{sCNT}, s{sN}, s{sBASE}
    s_max_i32 s{sCNT}, s{sCNT}, 0
    s_min_u32 s{sCNT}, s{sCNT}, s{sCAP}
    """)
    A0, E0, V0, A1, E1, V1, tt = T, T+1, T+2, T+3, T+4, T+5, T+6
    for (pp, cc, gg, A, EE, VV) in ((p0, c0, g0, A0, E0, V0), (p1, c1, g1, A1, E1, V1)):
        a(f"""
        v_subrev_u32 v{tt}, s{sBASE}, v{pp}
        v_max_i32 v{A}, 0, v{tt}
        v_add_u32 v{EE}, v{tt}, v{cc}
        v_min_i32 v{EE}, s{sCAP}, v{EE}
        v_sub_u32 v{VV}, v{A}, v{tt}
        v_add_u32 v{VV}, v{VV}, v{gg}
        v_lshl_add_u32 v{A}, v{A}, 2, s{sXRB}
        v_lshl_add_u32 v{EE}, v{EE}, 2, s{sXRB}
        """)
    a(f"""
    M_EXP:
    v_cmp_lt_i32 vcc, v{A0}, v{E0}
    v_cmp_lt_i32 s[52:53], v{A1}, v{E1}
    s_mov_b64 exec, vcc
    ds_write_b32 v{A0}, v{V0}
    s_mov_b64 exec, s[52:53]
    ds_write_b32 v{A1}, v{V1}
    s_mov_b64 exec, -1
    v_add_u32 v{A0}, 4, v{A0}
    v_add_u32 v{A1}, 4, v{A1}
    v_add_u32 v{V0}, 1, v{V0}
    v_add_u32 v{V1}, 1, v{V1}
    s_or_b64 s[52:53], s[52:53], vcc
    s_cbranch_scc1 M_EXP
    """)
    qa, oob = T+7, U
    G, RC, ND, RK, TB = D, D+8, D+16, D+24, Q
    def mk(i): return f"s[{54+2*i}:{55+2*i}]"
    a(f"v_lshl_add_u32 v{qa}, v{lane}, 2, s{sXRB}\nv_mov_b32 v{oob}, 0x80000000\ns_mul_i32 s{sB}, s{sTY}, {M0}")
    for i in range(8):
        a(f"ds_read_b32 v{G+i}, v{qa} offset:{256*i}")
    for i in range(8):
        a(f"""
        s_sub_i32 s{sA}, s{sCNT}, {64*i}
        v_cmp_gt_i32 {mk(i)}, s{sA}, v{lane}
        s_waitcnt lgkmcnt({7-i})
        v_and_b32 v{tt}, 0xfffff, v{G+i}
        v_lshlrev_b32 v{tt}, 2, v{tt}
        v_cndmask_b32 v{tt}, v{oob}, v{tt}, {mk(i)}
        buffer_load_dword v{RC+i}, v{tt}, s[{sREC}:{sREC+3}], 0 offen
        """)
    for i in range(8):
        a(f"v_lshrrev_b32 v{G+i}, 20, v{G+i}\nv_mul_u32_u24 v{G+i}, {CH}, v{G+i}\nv_add_u32 v{G+i}, s{sB}, v{G+i}")
    a(f"""
    v_mov_b32 v{U+1}, 1
    v_mov_b32 v{U+2}, {L_NT}
    v_mov_b32 v{U+3}, s{sCNT}
    v_mov_b32 v{U+4}, s{sN}
    s_waitcnt lgkmcnt(0)
    s_barrier
    s_mov_b64 exec, 1
    ds_add_u32 v{U+2}, v{U+3}
    ds_max_u32 v{U+2}, v{U+4} offset:16
    s_mov_b64 exec, -1
    @stamp 2
    """)
    for i in range(8):
        a(f"""
        s_waitcnt vmcnt({7-i})
        v_lshrrev_b32 v{ND+i}, 26, v{RC+i}
        v_subrev_u32 v{ND+i}, s{sSS}, v{ND+i}
        v_and_b32 v{ND+i}, 63, v{ND+i}
        v_add_u32 v{ND+i}, s{sSO}, v{ND+i}
        v_lshlrev_b32 v{tt}, 2, v{ND+i}
        v_add_u32 v{tt}, {L_DEG}, v{tt}
        s_mov_b64 exec, {mk(i)}
        ds_add_rtn_u32 v{RK+i}, v{tt}, v{U+1}
        s_mov_b64 exec, -1
        """)
    for i in range(8):
        a(f"""
        v_bfe_u32 v{tt}, v{RC+i}, 15, 11
        v_add_lshl_u32 v{G+i}, v{G+i}, v{tt}, 5
        v_and_b32 v{RC+i}, 0x7fff, v{RC+i}
        v_lshl_or_b32 v{RC+i}, v{RC+i}, 7, v{ND+i}
        v_lshlrev_b32 v{ND+i}, 3, v{ND+i}
        v_add_u32 v{ND+i}, {L_TB}, v{ND+i}
        """)
    a(f"""
    s_waitcnt lgkmcnt(0)
    s_barrier
    s_cmp_lg_u32 s{sW}, 0
    s_cbranch_scc1 M_P4E
    """)
    d0, d1, f0, f1, k0, k1, vL, vR, ks, a4, l0, l1, o0, o1, cn, ci = [Q + i for i in range(16)]
    r0, hi0, r1, hi1 = Q+16, Q+17, Q+18, Q+19
    a(f"""
    v_lshlrev_b32 v{a4}, 2, v{lane}
    v_add_u32 v{a4}, {L_DEG}, v{a4}
    ds_read2st64_b32 {v(d0,2)}, v{a4} offset0:0 offset1:1
    ds_read_b32 v{ks}, v{U+2}
    s_waitcnt lgkmcnt(0)
    v_readfirstlane_b32 s{sL}, v{ks}
    v_cvt_f32_u32 v{f0}, v{d0}
    v_cvt_f32_u32 v{f1}, v{d1}
    s_lshr_b32 s{sL}, s{sL}, 8
    s_add_u32 s{sL}, s{sL}, 2
    M_LS:
    s_add_u32 s{sL}, s{sL}, 1
    s_cmp_gt_u32 s{sL}, {LMAX}
    s_cbranch_scc1 M_P4W
    v_cvt_f32_u32 v{vL}, s{sL}
    v_rcp_f32 v{vR}, v{vL}
    v_add_f32 v{vL}, -0.5, v{vL}
    v_add_f32 v{k0}, v{f0}, v{vL}
    v_add_f32 v{k1}, v{f1}, v{vL}
    v_mul_f32 v{k0}, v{k0}, v{vR}
    v_mul_f32 v{k1}, v{k1}, v{vR}
    v_cvt_u32_f32 v{k0}, v{k0}
    v_cvt_u32_f32 v{k1}, v{k1}
    v_add_u32 v{ks}, v{k0}, v{k1}
    """)
    wave_scan(a, ks)
    a(f"""
    s_nop 0
    v_readlane_b32 s{sA}, v{ks}, 63
    s_nop 0
    s_cmp_gt_u32 s{sA}, 256
    s_cbranch_scc1 M_LS
    v_cvt_f32_u32 v{l0}, v{k0}
    v_cvt_f32_u32 v{l1}, v{k1}
    v_rcp_f32 v{r0}, v{l0}
    v_rcp_f32 v{r1}, v{l1}
    v_add_f32 v{l0}, v{l0}, v{f0}
    v_add_f32 v{l1}, v{l1}, v{f1}
    v_add_f32 v{l0}, -0.5, v{l0}
    v_add_f32 v{l1}, -0.5, v{l1}
    v_mul_f32 v{l0}, v{l0}, v{r0}
    v_mul_f32 v{l1}, v{l1}, v{r1}
    v_cvt_u32_f32 v{l0}, v{l0}
    v_cvt_u32_f32 v{l1}, v{l1}
    v_mov_b32 v{ci}, {L_CNT}
    v_lshl_add_u32 v{l0}, v{l0}, 2, v{ci}
    v_lshl_add_u32 v{l1}, v{l1}, 2, v{ci}
    ds_add_rtn_u32 v{o0}, v{l0}, v{k0}
    ds_add_rtn_u32 v{o1}, v{l1}, v{k1}
    v_and_b32 v{vL}, 31, v{lane}
    v_sub_u32 v{vL}, 31, v{vL}
    v_lshl_add_u32 v{ci}, v{vL}, 2, v{ci}
    ds_read_b32 v{cn}, v{ci}
    v_lshlrev_b32 v{hi0}, 16, v{k0}
    v_lshlrev_b32 v{hi1}, 16, v{k1}
    v_lshlrev_b32 v{a4}, 3, v{lane}
    v_add_u32 v{a4}, {L_TB}, v{a4}
    s_waitcnt lgkmcnt(0)
    v_mov_b32 v{ks}, v{cn}
    """)
    for sh in (1, 2, 4, 8):
        a(f"s_nop 1\nv_add_u32_dpp v{ks}, v{ks}, v{ks} row_shr:{sh} row_mask:0xf bank_mask:0xf bound_ctrl:0")
    a(f"""
    s_nop 1
    v_add_u32_dpp v{ks}, v{ks}, v{ks} row_bcast:15 row_mask:0xa bank_mask:0xf
    v_sub_u32 v{ks}, v{ks}, v{cn}
    ds_write_b32 v{ci}, v{ks} offset:{L_BAS-L_CNT}
    ds_read_b32 v{d0}, v{l0} offset:{L_BAS-L_CNT}
    ds_read_b32 v{d1}, v{l1} offset:{L_BAS-L_CNT}
    s_waitcnt lgkmcnt(0)
    v_add3_u32 v{hi0}, v{hi0}, v{o0}, v{d0}
    v_add3_u32 v{hi1}, v{hi1}, v{o1}, v{d1}
    ds_write_b64 v{a4}, {v(r0,2)}
    ds_write_b64 v{a4}, {v(r1,2)} offset:512
    M_P4W:
    v_mov_b32 v{ks}, s{sL}
    ds_write_b32 v{U+2}, v{ks} offset:20
    M_P4E:
    v_lshlrev_b32 v{tt}, 4, v{lane}
    v_add_u32 v{tt}, {L_WL}, v{tt}
    """)
    for f in range(18):
        dst = W + 4*f if f < 8 else (AG + 4*(f-8) if f < 16 else W + 32 + 4*(f-16))
        a(f"ds_read_b128 {v(dst,4)}, v{tt} offset:{1024*f}")
    a(f"""
    s_waitcnt lgkmcnt(0)
    s_barrier
    ds_read_b64 {v(U+4,2)}, v{U+2} offset:16
    v_and_b32 v{tt}, 31, v{lane}
    v_lshlrev_b32 v{tt}, 2, v{tt}
    v_add_u32 v{tt}, {L_CNT}, v{tt}
    ds_read_b32 v{U+6}, v{tt}
    ds_read_b32 v{U+7}, v{tt} offset:{L_BAS-L_CNT}
    """)
    for i in range(8):
        a(f"ds_read_b64 {v(TB+2*i,2)}, v{ND+i}")
    for i in range(8):
        a(f"v_cvt_f32_u32 v{ND+i}, v{RK+i}\nv_add_f32 v{ND+i}, 0.5, v{ND+i}")
    a(f"""
    s_lshl_b32 s{sA}, s{sG}, 5
    s_waitcnt lgkmcnt(8)
    v_readfirstlane_b32 s{sNMAX}, v{U+4}
    v_readfirstlane_b32 s{sL}, v{U+5}
    v_add_u32 v{U+6}, v{U+6}, v{U+7}
    v_cmp_ge_u32 vcc, s{sA}, v{U+7}
    v_cmp_lt_u32 s[52:53], s{sA}, v{U+6}
    s_and_b64 s[52:53], s[52:53], vcc
    s_ff1_i32_b32 s{sT}, s52
    s_max_i32 s{sT}, s{sT}, 0
    s_cmp_le_u32 s{sL}, {LMAX}
    s_cbranch_scc1 M_P5
    s_mov_b32 s{sCAP}, 256
    s_waitcnt vmcnt(0) lgkmcnt(0)
    s_barrier
    s_branch M_REZ
    M_P5:
    """)
    wstage(18, 16, "M_WS1")
    a(f"s_mov_b32 s{sA}, {GS}")
    for i in range(8):
        rk, hi = TB + 2*i, TB + 2*i + 1
        a(f"""
        s_waitcnt lgkmcnt({min(15, 7-i+2*i)})
        v_mul_f32 v{ND+i}, v{ND+i}, v{rk}
        v_cvt_u32_f32 v{ND+i}, v{ND+i}
        v_lshrrev_b32 v{rk}, 16, v{hi}
        v_mul_u32_u24 v{rk}, v{rk}, v{ND+i}
        v_and_b32 v{hi}, 0xffff, v{hi}
        v_add_u32 v{hi}, v{hi}, v{RK+i}
        v_sub_u32 v{hi}, v{hi}, v{rk}
        v_lshrrev_b32 v{rk}, 5, v{hi}
        v_and_b32 v{hi}, 31, v{hi}
        v_lshl_add_u32 v{ND+i}, v{ND+i}, 5, v{hi}
        v_lshlrev_b32 v{ND+i}, 2, v{ND+i}
        v_mad_u32_u24 v{ND+i}, v{rk}, s{sA}, v{ND+i}
        v_add_u32 v{ND+i}, {L_LS}, v{ND+i}
        s_mov_b64 exec, {mk(i)}
        ds_write_b32 v{ND+i}, v{RC+i}
        ds_write_b32 v{ND+i}, v{G+i} offset:{8*GS}
        s_mov_b64 exec, -1
        """)
    a(f"""
    s_mul_i32 s{sA}, s{sG}, {GS}
    s_add_u32 s{sA}, s{sA}, {L_LS}
    v_lshrrev_b32 v{vLS}, 3, v{lane}
    v_lshlrev_b32 v{vLS}, 4, v{vLS}
    v_add_u32 v{vLS}, s{sA}, v{vLS}
    v_and_b32 v{vLE}, 31, v{lane}
    v_lshlrev_b32 v{vLE}, 2, v{vLE}
    v_add_u32 v{vLE}, s{sA}, v{vLE}
    s_waitcnt lgkmcnt(0)
    s_barrier
    @stamp 3
    s_cmp_eq_u32 s{sT}, 0
    s_cbranch_scc1 M_BEND
    """)
    if "nox" in OPT["abl"]: a(f"s_mov_b32 s{sX+2}, 0")
    ef = OPT["eflags"]
    LEO = 8 * GS
    def e_addr(sl): return f"v_add_u32 v{ead}, v{h16}, v{RR+sl}"
    def e_load(sl): return f"buffer_load_dwordx4 {v(E+4*sl,4)}, v{ead}, s[{sE}:{sE+3}], 0 offen {ef}"
    def x_addr(src): return [f"v_and_or_b32 v{S4+i}, v{src+i}, s{sM7}, v{CX+i}" for i in range(4)]
    def x_dma(slot, nop=True):
        o = []
        for i in range(4):
            o += [f"s_add_u32 m0, s{sXRB}, {slot*4096+i*1024}"] + (["s_nop 0"] if nop else []) + \
                 [f"buffer_load_dwordx4 v{S4+i}, s[{sX}:{sX+3}], 0 offen lds"]
        return o
    a(f"ds_read_b32 v{RR}, v{vLE} offset:{LEO}\nds_read_b128 {v(S4,4)}, v{vLS}\nds_read_b32 v{aga}, v{vLE}")
    for j in range(1, 4): a(f"ds_read_b32 v{RR+j}, v{vLE} offset:{LEO+128*j}")
    a(f"ds_read_b128 {v(T,4)}, v{vLS} offset:128\nds_read_b128 {v(T+4,4)}, v{vLS} offset:256")
    a("s_waitcnt lgkmcnt(5)")
    emit([e_addr(0), e_load(0)] + x_addr(S4) + x_dma(0))
    a(f"""
    v_and_b32 v{aga}, 127, v{aga}
    v_mul_u32_u24 v{U}, 144, v{aga}
    v_add3_u32 v{U}, v{U}, v{h16}, s{sA}
    """.replace(f"s{sA}", "s75"))
    a.L.insert(len(a.L) - 3, f"    s_mov_b32 s75, {L_XD}")
    for sx in range(4): a(f"ds_read_b128 {v(FX+4*sx,4)}, v{U} offset:{32*sx}")
    a(f"""
    s_waitcnt lgkmcnt(4)
    """)
    emit([e_addr(1), e_load(1)] + x_addr(T) + x_dma(1) + [e_addr(2), e_load(2)])
    a("s_waitcnt lgkmcnt(0)")
    for nh in range(2):
        for sx in range(4):
            a(f"v_mfma_f32_32x32x16_bf16 {v(Q+16*nh,16)}, {v(AG+(sx*2+nh)*4,4)}, {v(FX+4*sx,4)}, {'0' if sx == 0 else v(Q+16*nh,16)}")
    for i in range(32): a(f"v_mov_b32 v{AG+i}, 0")
    a(f"s_mov_b32 s75, {f32(-LOG2E)}")
    for i in range(32): a(f"v_mul_f32 v{Q+i}, s75, v{Q+i}")
    a("s_waitcnt vmcnt(6)")
    for sx in range(4): a(f"ds_read_b128 {v(FX+4*sx,4)}, v{XA+sx}")
    a("s_waitcnt lgkmcnt(0)")
    def chain(nh, eslot):
        Dh = v(D + 16 * nh, 16)
        return [f"v_mfma_f32_32x32x16_bf16 {Dh}, {W3f(nh)}, {v(E+4*eslot,4)}, {v(Q+16*nh,16)}"] + \
               [f"v_mfma_f32_32x32x16_bf16 {Dh}, {W1f(sx,nh)}, {v(FX+4*sx,4)}, {Dh}" for sx in range(4)]
    emit(chain(0, 0))
    emit(x_addr(T+4) + x_dma(0) + [e_addr(3), e_load(3)])
    a("@stamp 4")
    if OPT["stamp"]: a(f"s_mov_b32 s90, s{sT}\ns_mov_b32 s98, s{sL}\ns_memtime s[94:95]\ns_waitcnt lgkmcnt(0)")
    def phase(nh, mf, fill):
        Db, Ab = D + 16*nh, AG + 16*nh
        seq = []
        for q in range(2):
            ex = [f"v_exp_f32 v{T+i}, v{Db+8*q+i}" for i in range(8)]
            rc = [f"v_rcp_f32 v{T+i}, v{T+i}" for i in range(8)]
            if OPT["pk"]:
                ad = [f"v_pk_add_f32 {v(T+2*i,2)}, {v(T+2*i,2)}, {v(vC,2)} op_sel_hi:[1,0]" for i in range(4)]
                fm = [f"v_pk_fma_f32 {v(Ab+8*q+2*i,2)}, {v(Db+8*q+2*i,2)}, {v(T+2*i,2)}, {v(Ab+8*q+2*i,2)}" for i in range(4)]
            else:
                ad = [f"v_add_f32 v{T+i}, v{vC}, v{T+i}" for i in range(8)]
                fm = [f"v_fmac_f32 v{Ab+8*q+i}, v{Db+8*q+i}, v{T+i}" for i in range(8)]
            if q == 0: seq += [mf[0]] + ex[:3] + [mf[1]] + ex[3:] + ad + [mf[2]] + rc[:3] + [mf[3]] + rc[3:] + fm
            else: seq += [mf[4]] + ex + ad + rc + fm
        res = []; n = 0
        for l in seq:
            res.append(l)
            if l.startswith(("v_exp", "v_rcp")):
                res += fill.get(n, []); n += 1
        if "nocomp" in OPT["abl"]:
            res = [l + ("\ns_nop 0" if " m0," in l else "") for l in res if not l.startswith(("v_exp", "v_rcp", "v_pk", "v_add_f32", "v_fmac", "v_mfma"))]
        return res
    a("M_LOOP:")
    for u in range(4):
        slot = (u + 1) & 1
        if OPT["prio"]: a("s_setprio 1")
        fill = {0: [f"v_and_or_b32 v{vC}, v{RR+u}, s{sB30}, 1.0"],
                1: [f"ds_read_b32 v{RR+u}, v{vLE} offset:{LEO+128*(u+4)}"],
                2: [f"ds_read_b128 {v(S4,4)}, v{vLS} offset:{128*(u+3)}"],
                16: ["s_waitcnt vmcnt(6)"]}
        for sx in range(4): fill[17+sx] = [f"ds_read_b128 {v(FX+4*sx,4)}, v{XA+sx} offset:{slot*4096}"]
        xa = x_addr(S4)
        fill[24] = ["s_waitcnt lgkmcnt(4)", xa[0]]; fill[25] = [xa[1]]; fill[26] = [xa[2]]; fill[27] = [xa[3]]; fill[28] = [e_addr(u)]
        emit(phase(0, chain(1, u), fill))
        if OPT["prio"]: a("s_setprio 0")
        dm = x_dma(slot, nop=False)
        fill = {0: ["s_waitcnt lgkmcnt(0)"]}
        for i in range(8): fill[1+i] = [dm[i]]
        fill[9] = [e_load(u)]
        if u == 3: fill[12] = [f"v_add_u32 v{vLS}, 512, v{vLS}"]; fill[13] = [f"v_add_u32 v{vLE}, 512, v{vLE}"]
        fill[30] = [f"s_sub_u32 s{sT}, s{sT}, 1"]; fill[31] = [f"s_cmp_eq_u32 s{sT}, 0"]
        emit(phase(1, chain(0, (u + 1) & 3), fill))
        a("s_cbranch_scc1 M_FLUSH" if u < 3 else "s_cbranch_scc0 M_LOOP")
    a("M_FLUSH:\n@stamp 5\n@cyc")
    a(f"""
    v_and_b32 v{T}, 31, v{lane}
    v_mul_u32_u24 v{T}, 272, v{T}
    v_add3_u32 v{T}, v{T}, v{h16}, s{sXRB}
    s_waitcnt vmcnt(0)
    """)
    for i in range(8):
        a(f"ds_write_b128 v{T}, {v(AG+4*i,4)} offset:{32*i}")
    nn, ca, kk = T+3, T+2, T+1
    a(f"""
    M_BEND:
    s_lshr_b32 s{sA}, s{sW}, 1
    s_lshl_b32 s{sA}, s{sA}, 5
    v_and_b32 v{nn}, 31, v{lane}
    v_add_u32 v{nn}, s{sA}, v{nn}
    v_lshlrev_b32 v{ca}, 3, v{nn}
    v_add_u32 v{ca}, {L_TB}, v{ca}
    ds_read_b32 v{kk}, v{ca} offset:4
    v_mul_u32_u24 v{T+4}, 144, v{nn}
    s_mov_b32 s75, {L_XD}
    v_add3_u32 v{T+4}, v{T+4}, v{h16}, s75
    """)
    for sx in range(4):
        a(f"ds_read_b128 {v(FX+4*sx,4)}, v{T+4} offset:{32*sx}")
    a(f"""
    s_lshl_b32 s{sA}, s2, 3
    s_add_u32 s{sA}, s{sA}, s{sW}
    s_lshl_b32 s{sA}, s{sA}, 13
    v_lshlrev_b32 v{T+7}, 4, v{lane}
    v_add_u32 v{T+6}, s{sA}, v{T+7}
    v_add_u32 v{T+5}, 4096, v{T+6}
    s_waitcnt vmcnt(0) lgkmcnt(0)
    """)
    for i in range(32): a(f"v_mov_b32 v{AG+i}, 0\nv_mov_b32 v{D+i}, 0\nv_mov_b32 v{Q+i}, 0")
    a(f"""
    v_and_b32 v{ca}, 0xffff, v{kk}
    v_lshrrev_b32 v{kk}, 16, v{kk}
    v_mul_u32_u24 v{ca}, 272, v{ca}
    v_lshl_add_u32 v{ca}, v{h16}, 1, v{ca}
    v_cmp_lt_u32 s[54:55], 0, v{kk}
    v_cmp_lt_u32 s[56:57], 1, v{kk}
    v_cmp_lt_u32 s[58:59], 2, v{kk}
    v_cmp_lt_u32 vcc, 3, v{kk}
    s_lshl_b32 s{sA}, s{sTY}, 13
    s_add_u32 s{sA}, s{sA}, {L_WL}
    v_add_u32 v{T+7}, s{sA}, v{T+7}
    s_barrier
    """)
    for j, buf in enumerate((AG, D, Q)):
        a(f"s_mov_b64 exec, s[{54+2*j}:{55+2*j}]")
        for i in range(8):
            a(f"ds_read_b128 {v(buf+4*i,4)}, v{ca} offset:{272*j + 64*(i>>1) + 16*(i&1)}")
    a("s_mov_b64 exec, -1")
    for f in range(8):
        a(f"ds_read_b128 {v(W+4*f,4)}, v{T+7} offset:{1024*f}")
    a("s_waitcnt lgkmcnt(15)\ns_waitcnt lgkmcnt(8)")
    for i in range(16): a(f"v_pk_add_f32 {v(AG+2*i,2)}, {v(AG+2*i,2)}, {v(D+2*i,2)}")
    for i in range(16): a(f"v_pk_add_f32 {v(AG+2*i,2)}, {v(AG+2*i,2)}, {v(Q+2*i,2)}")
    a(f"""
    s_cbranch_vccz M_SUMD
    s_mov_b32 s{sA}, 3
    M_SUML:
    s_mov_b64 exec, vcc
    """)
    for i in range(8):
        a(f"ds_read_b128 {v(D+4*i,4)}, v{ca} offset:{272*3 + 64*(i>>1) + 16*(i&1)}")
    a(f"s_add_u32 s{sA}, s{sA}, 1\nv_add_u32 v{ca}, 272, v{ca}\ns_waitcnt lgkmcnt(0)")
    for i in range(16): a(f"v_pk_add_f32 {v(AG+2*i,2)}, {v(AG+2*i,2)}, {v(D+2*i,2)}")
    a(f"""
    s_mov_b64 exec, -1
    v_cmp_lt_u32 vcc, s{sA}, v{kk}
    s_nop 4
    s_cbranch_vccnz M_SUML
    M_SUMD:
    s_cmp_eq_u32 s{sBASE}, 0
    s_cbranch_scc1 M_NOLD
    """)
    srd_off(a, sO, 10, WS_SP, 2048 * 8192)
    for i in range(8):
        a(f"buffer_load_dwordx4 {v(D+4*i,4)}, v{T+6 if i < 4 else T+5}, s[{sO}:{sO+3}], 0 offen offset:{1024*(i%4)} sc0 sc1")
    a("s_waitcnt vmcnt(0)")
    for i in range(16): a(f"v_pk_add_f32 {v(AG+2*i,2)}, {v(AG+2*i,2)}, {v(D+2*i,2)}")
    a(f"""
    M_NOLD:
    s_add_u32 s{sBASE}, s{sBASE}, s{sCAP}
    s_cmp_ge_u32 s{sBASE}, s{sNMAX}
    s_cbranch_scc1 M_EPI
    """)
    srd_off(a, sO, 10, WS_SP, 2048 * 8192)
    for i in range(8):
        a(f"buffer_store_dwordx4 {v(AG+4*i,4)}, v{T+6 if i < 4 else T+5}, s[{sO}:{sO+3}], 0 offen offset:{1024*(i%4)} sc0 sc1")
    a(f"""
    s_waitcnt vmcnt(0) lgkmcnt(0)
    s_barrier
    v_lshlrev_b32 v{T+5}, 4, v0
    v_add_u32 v{T+5}, {L_LS}, v{T+5}
    """)
    for i in range(4): a(f"v_mov_b32 v{U+4+i}, {DUMMY}")
    prefill("M_PF1")
    a(f"""
    M_REZ:
    v_lshlrev_b32 v{T}, 2, v0
    v_add_u32 v{T}, {L_DEG}, v{T}
    v_mov_b32 v{T+1}, 0
    v_cmp_gt_u32 vcc, {(L_MX-L_DEG)//4}, v0
    s_mov_b64 exec, vcc
    ds_write_b32 v{T}, v{T+1}
    s_mov_b64 exec, -1
    s_branch M_BATCH
    M_EPI:
    s_lshl_b32 s{sA}, s{sS0}, 7
    s_lshl_b32 s{sB}, s{sTY}, 6
    s_add_u32 s{sA}, s{sA}, s{sB}
    v_lshlrev_b32 v{T+5}, 7, v{nn}
    v_lshl_add_u32 v{T+5}, v{h16}, 1, v{T+5}
    v_mov_b32 v{T+6}, 0x80000000
    v_cmp_gt_u32 vcc, s{sNB}, v{nn}
    s_mov_b32 s74, {f32(-LOG2E)}
    s_mov_b32 s75, {f32(-1.0/LOG2E)}
    v_cndmask_b32 v{T+5}, v{T+6}, v{T+5}, vcc
    s_waitcnt lgkmcnt(0)
    """)
    for st in range(4):
        a(f"v_mfma_f32_32x32x16_bf16 {v(D,16)}, {v(W+4*st,4)}, {v(FX+4*st,4)}, {'0' if st == 0 else v(D,16)}")
    for st in range(4):
        for i in range(8): a(f"v_mul_f32 v{AG+8*st+i}, s75, v{AG+8*st+i}")
        for i in range(4): a(f"v_cvt_pk_bf16_f32 v{E+4*st+i}, v{AG+8*st+2*i}, v{AG+8*st+2*i+1}")
        a(f"s_nop 1\nv_mfma_f32_32x32x16_bf16 {v(D,16)}, {v(W+16+4*st,4)}, {v(E+4*st,4)}, {v(D,16)}")
    a("s_nop 15")
    for i in range(16): a(f"v_mul_f32 v{AG+i}, s74, v{D+i}")
    for i in range(16): a(f"v_exp_f32 v{AG+i}, v{AG+i}")
    for i in range(16): a(f"v_add_f32 v{AG+i}, 1.0, v{AG+i}")
    for i in range(16): a(f"v_rcp_f32 v{AG+i}, v{AG+i}")
    for i in range(16): a(f"v_mul_f32 v{AG+i}, v{D+i}, v{AG+i}")
    for i in range(8): a(f"v_cvt_pk_bf16_f32 v{FX+i}, v{AG+2*i}, v{AG+2*i+1}")
    a(f"""
    buffer_store_dwordx4 {v(FX,4)}, v{T+5}, s[{sOUT}:{sOUT+3}], s{sA} offen
    buffer_store_dwordx4 {v(FX+4,4)}, v{T+5}, s[{sOUT}:{sOUT+3}], s{sA} offen offset:16
    """)
    if OPT["stamp"]: a("s_waitcnt vmcnt(0)\n@stamp 6")
    stamp_out(8, f"s_lshl_b32 s74, s2, 3\ns_add_u32 s74, s74, s{sW}", 10, 0x80000)
    a("M_END:\ns_endpgm")
    return R.n

hdr = f"""; MPNN edge-MLP + segment-sum + node update, two launches:
; @launch kernel=sort_kernel grid=(253,1,1) block=(1024,1,1) lds={SORT_LDS}
; @launch kernel=main_kernel grid=(256,1,1) block=(512,1,1) lds={MAIN_LDS}
.amdgcn_target "amdgcn-amd-amdhsa--gfx950"
.text
.globl sort_kernel
.type sort_kernel,@function
.globl main_kernel
.type main_kernel,@function
"""
gen_sort()
nv = gen_main()
txt = hdr + a.text() + '.section .rodata,"a"\n.p2align 6\n' + kdesc("sort_kernel", 56) + ".p2align 6\n" + kdesc("main_kernel", 256, 100 if OPT["stamp"] else 96)
open(sys.argv[1], "w").write(txt)
print("main vgprs", nv, "lds", MAIN_LDS, SORT_LDS, "L_TB end", L_TB + 1024)
```

```python
import sys, struct
from asmlib import *

OPT = dict(abl="", stamp=False, eflags="", mflags="", idxflags="", stflags="sc1", emst="sc1", eld="", pk=True, M0=1920, empf=True, mper=3, Y=False, xpf=0, mpf1=0, mpf2=0)
for arg in sys.argv[2:]:
    k, val = arg.split("=")
    OPT[k] = {"True": True, "False": False}.get(val, val.replace("+", " "))
M0 = int(OPT["M0"]); MPER = int(OPT["mper"])
assert M0 % 32 == 0 and M0 <= 2048 and 3200 - M0 <= 2048

NCH, CH = 250, 3200
WS_REC, WS_O, WS_WF, WS_ST, WS_SP, WS_EM = 0, 0x400000, 0x600000, 0x700000, 0x1000000, 0x2000000
LOG2E = 1.4426950408889634
def f32(x): return "0x%08x" % struct.unpack("<I", struct.pack("<f", x))[0]

a = Asm()
a.stamps = OPT["stamp"]
def stamp_out(n, wid_sgpr_expr, base_sgpr, region):
    if not OPT["stamp"]: return
    a("s_waitcnt lgkmcnt(0)")
    a(wid_sgpr_expr)
    a(f"s_lshl_b32 s74, s74, 6\ns_add_u32 s74, s74, {WS_ST+region}\ns_add_u32 s92, s{base_sgpr}, s74\ns_addc_u32 s93, s{base_sgpr+1}, 0\nv_mov_b32 v0, 0")
    for i in range(n):
        a(f"v_mov_b32 v1, s{76+2*i}\nglobal_store_dword v0, v1, s[92:93] offset:{4*i}")
    if n == 8: a("s_sub_u32 s96, s96, s94\nv_mov_b32 v1, s96\nglobal_store_dword v0, v1, s[92:93] offset:32\nv_mov_b32 v1, s98\nglobal_store_dword v0, v1, s[92:93] offset:36")
def emit(l): a("\n".join(l))

def resolve(stream):
    out = []; vm = []; lg = []
    for it in stream:
        if isinstance(it, tuple) and it[0] == "@W":
            parts = []
            if it[1] is not None:
                idx = max(i for i, t in enumerate(vm) if t == it[1]); n = len(vm) - 1 - idx
                assert n <= 63; parts.append(f"vmcnt({n})")
            if it[2] is not None:
                idx = max(i for i, t in enumerate(lg) if t == it[2]); n = len(lg) - 1 - idx
                parts.append(f"lgkmcnt({min(n, 15)})")
            out.append("s_waitcnt " + " ".join(parts)); continue
        txt, tag = it if isinstance(it, tuple) else (it, None)
        if txt.startswith("buffer_"): vm.append(tag)
        if txt.startswith("ds_"): lg.append(tag)
        out.append(txt)
    return out

S_SRT = 4224
S_E = 17408
YM = OPT["Y"]
SORT_LDS = S_E + (0 if YM else M0 * 32)
def gen_sort():
    a(".p2align 8\nsort_kernel:")
    a(f"""
    s_cmp_ge_u32 s2, 253
    s_cbranch_scc1 S_END
    s_load_dwordx4 s[4:7], s[0:1], 16
    s_load_dwordx2 s[8:9], s[0:1], 8
    s_load_dwordx2 s[10:11], s[0:1], 64
    s_load_dwordx4 s[12:15], s[0:1], 32
    s_load_dwordx2 s[44:45], s[0:1], 0
    s_cmp_ge_u32 s2, 250
    s_cbranch_scc1 S_WPREP
    @stamp 0
    v_lshlrev_b32 v2, 2, v0
    v_mov_b32 v3, 0
    ds_write_b32 v2, v3
    s_mul_i32 s3, s2, 12800
    v_lshlrev_b32 v44, 4, v0
    v_add_u32 v1, s3, v44
    v_cmp_gt_u32 vcc, 800, v0
    s_mov_b64 s[40:41], vcc
    v_mov_b32 v12, 0x80000000
    v_cndmask_b32 v1, v12, v1, vcc
    v_lshrrev_b32 v34, 6, v0
    v_lshlrev_b32 v35, 2, v34
    v_readfirstlane_b32 s37, v34
    s_waitcnt lgkmcnt(0)
    """)
    srd(a, 20, 6, 3200000)
    fl = OPT["idxflags"]
    a(f"buffer_load_dwordx4 v[4:7], v1, s[20:23], 0 offen {fl}")
    srd(a, 16, 4, 3200000)
    a(f"buffer_load_dwordx4 v[8:11], v1, s[16:19], 0 offen {fl}")
    srd(a, 28, 8, 25600000)
    npiece = 0 if YM else M0 // 32
    nr = (npiece + 15) // 16
    a(f"s_mul_i32 s42, s2, {CH*32}\ns_lshl_b32 s43, s37, 10")
    for r in range(nr):
        if (r + 1) * 16 > npiece:
            a(f"s_cmp_ge_u32 s37, {npiece - 16*r}\ns_cbranch_scc1 S_DMAD")
        a(f"s_add_u32 m0, s43, {S_E + r*16384}\ns_nop 0\nbuffer_load_dwordx4 v44, s[28:31], s42 offen {OPT['eld']} lds\ns_add_u32 s42, s42, 16384")
    a("S_DMAD:")
    srd(a, 24, 10, 0x800000)
    a(f"""
    v_mov_b32 v15, 1
    v_cmp_le_u32 vcc, {M0//4}, v0
    v_mov_b32 v13, 2048
    v_subrev_u32 v14, {M0}, v2
    v_cndmask_b32 v13, 0, v13, vcc
    v_cndmask_b32 v16, v2, v14, vcc
    v_mov_b32 v47, {(2048-M0)*4}
    v_cndmask_b32 v47, 0, v47, vcc
    v_lshlrev_b32 v16, 21, v16
    s_lshl_b32 s3, s2, 14
    v_add3_u32 v47, v47, v44, s3
    v_cndmask_b32 v47, v12, v47, s[40:41]
    v_and_b32 v45, 0x1fe, v0
    v_lshlrev_b32 v45, 11, v45
    v_and_b32 v46, 1, v0
    v_lshl_or_b32 v45, v46, 3, v45
    v_lshrrev_b32 v46, 9, v0
    v_lshl_or_b32 v45, v46, 2, v45
    v_mul_u32_u24 v46, {2048-M0}, v46
    s_and_b32 s39, s2, 7
    s_lshl_b32 s39, s39, 5
    s_lshr_b32 s38, s2, 3
    s_add_u32 s39, s39, s38
    s_lshl_b32 s39, s39, 4
    s_add_u32 s39, s39, {WS_O}
    s_barrier
    s_waitcnt vmcnt({nr if npiece % 16 == 0 else nr-1})
    @stamp 1
    """)
    for i in range(4):
        a(f"""
        v_mul_u32_u24 v{20+i}, 1342, v{4+i}
        v_lshrrev_b32 v{20+i}, 16, v{20+i}
        v_lshl_add_u32 v{20+i}, v{20+i}, 2, v13
        """)
    a("s_mov_b64 exec, s[40:41]")
    for i in range(4):
        a(f"ds_add_rtn_u32 v{24+i}, v{20+i}, v15")
    a(f"s_mov_b64 exec, -1")
    XPF = int(OPT["xpf"])
    def sort_xpf():
        srd(a, 48, 44, 3200000)
        a(f"""
        s_lshr_b32 s46, s2, 3
        s_mul_i32 s46, s46, 102400
        v_lshlrev_b32 v52, 7, v0
        v_cmp_gt_u32 vcc, {XPF}, v0
        s_nop 1
        v_cndmask_b32 v52, v12, v52, vcc
        buffer_load_dword v53, v52, s[48:51], s46 offen
        """)
    for i in range(4):
        a(f"""
        v_and_b32 v{28+i}, 63, v{4+i}
        v_lshl_or_b32 v{28+i}, v{8+i}, 6, v{28+i}
        v_add_u32 v17, {i<<21}, v16
        v_or_b32 v{28+i}, v{28+i}, v17
        """)
    a("""
    s_waitcnt lgkmcnt(0)
    s_barrier
    @stamp 2
    ds_read_b32 v32, v2
    """)
    if XPF: sort_xpf()
    a("""
    s_waitcnt lgkmcnt(0)
    v_mov_b32 v33, v32
    """)
    wave_scan(a, 33)
    a("""
    s_mov_b32 exec_lo, 0
    s_mov_b32 exec_hi, 0x80000000
    ds_write_b32 v35, v33 offset:4096
    s_mov_b64 exec, -1
    v_and_b32 v36, 15, v0
    v_lshlrev_b32 v36, 2, v36
    s_waitcnt lgkmcnt(0)
    s_barrier
    ds_read_b32 v37, v36 offset:4096
    s_waitcnt lgkmcnt(0)
    v_mov_b32 v38, v37
    """)
    for sh in (1, 2, 4, 8):
        a(f"s_nop 1\nv_add_u32_dpp v38, v38, v38 row_shr:{sh} row_mask:0xf bank_mask:0xf bound_ctrl:0")
    st = OPT["stflags"]
    a(f"""
    v_sub_u32 v38, v38, v37
    s_nop 0
    v_readlane_b32 s38, v38, s37
    v_sub_u32 v33, v33, v32
    s_nop 1
    v_add_u32 v33, s38, v33
    ds_write_b32 v2, v33
    v_add_u32 v39, v33, v46
    v_lshl_or_b32 v39, v32, 16, v39
    buffer_store_dword v39, v45, s[24:27], s39 offen
    s_waitcnt lgkmcnt(0)
    s_barrier
    @stamp 3
    s_mov_b64 exec, s[40:41]
    """)
    for i in range(4):
        a(f"ds_read_b32 v{40+i}, v{20+i}")
    for i in range(4):
        a(f"""
        s_waitcnt lgkmcnt({3})
        v_add_lshl_u32 v{40+i}, v{40+i}, v{24+i}, 2
        ds_write_b32 v{40+i}, v{28+i} offset:{S_SRT}
        """)
    no = 0 if YM else (M0 + 511) // 512
    a(f"""
    s_mov_b64 exec, -1
    v_lshrrev_b32 v4, 1, v0
    v_lshlrev_b32 v4, 2, v4
    v_and_b32 v5, 1, v0
    v_lshlrev_b32 v5, 4, v5
    """)
    srd_off(a, 28, 10, WS_EM, NCH * 131072)
    a(f"""
    s_lshl_b32 s42, s2, 17
    v_cmp_gt_u32 vcc, {(M0 - 512*(no-1))*2}, v0
    s_waitcnt vmcnt({2 if XPF else 1}) lgkmcnt(0)
    s_barrier
    @stamp 4
    v_cndmask_b32 v6, v12, v44, vcc
    """)
    for r in range(no):
        a(f"ds_read_b32 v{8+r}, v4 offset:{S_SRT + r*2048}")
    a(f"s_mov_b64 exec, s[40:41]\nds_read_b128 v[48:51], v44 offset:{S_SRT}\ns_mov_b64 exec, -1")
    for r in range(no):
        a(f"""
        s_waitcnt lgkmcnt({no})
        v_lshrrev_b32 v{8+r}, 21, v{8+r}
        v_lshl_add_u32 v{8+r}, v{8+r}, 5, v5
        ds_read_b128 v[{16+4*r}:{19+4*r}], v{8+r} offset:{S_E}
        """)
    a(f"s_waitcnt lgkmcnt({no})\nbuffer_store_dwordx4 v[48:51], v47, s[24:27], 0 offen {st}")
    for r in range(no):
        a(f"""
        s_waitcnt lgkmcnt({no-1-r})
        buffer_store_dwordx4 v[{16+4*r}:{19+4*r}], v{6 if r == no-1 else 44}, s[28:31], s42 offen {OPT['emst']}
        s_add_u32 s42, s42, 16384
        """)
    if OPT["stamp"]: a("s_waitcnt vmcnt(0)\n@stamp 5")
    stamp_out(6, "s_lshl_b32 s74, s2, 4\ns_add_u32 s74, s74, s37", 10, 0)
    a("s_endpgm")
    a(f"""
    S_WPREP:
    v_lshrrev_b32 v1, 6, v0
    s_nop 0
    v_readfirstlane_b32 s3, v1
    s_sub_u32 s16, s2, 250
    s_lshl_b32 s16, s16, 4
    s_add_u32 s3, s3, s16
    s_cmp_ge_u32 s3, 34
    s_cbranch_scc1 S_END
    v_and_b32 v1, 31, v0
    v_bfe_u32 v2, v0, 5, 1
    s_waitcnt lgkmcnt(0)
    s_mov_b32 s22, 18432
    s_mov_b32 s23, 0x20000
    s_cmp_ge_u32 s3, 18
    s_cbranch_scc1 S_WUPD
    s_mov_b32 s20, s12
    s_mov_b32 s21, s13
    s_lshr_b32 s30, s3, 1
    s_and_b32 s31, s3, 1
    s_lshl_b32 s31, s31, 5
    v_add_u32 v3, s31, v1
    s_mov_b32 s34, {f32(-LOG2E)}
    s_lshr_b32 s35, s3, 3
    s_cmp_eq_u32 s35, 1
    s_cselect_b32 s34, 1.0, s34
    s_branch S_WLOAD
    S_WUPD:
    s_mov_b32 s20, s14
    s_mov_b32 s21, s15
    s_mov_b32 s22, 16384
    s_sub_u32 s35, s3, 18
    s_and_b32 s30, s35, 7
    s_lshr_b32 s31, s35, 3
    s_lshl_b32 s31, s31, 5
    v_bfe_u32 v4, v1, 2, 1
    v_lshlrev_b32 v4, 4, v4
    v_lshrrev_b32 v5, 3, v1
    v_lshl_add_u32 v4, v5, 2, v4
    v_and_b32 v5, 3, v1
    v_add3_u32 v3, v4, v5, s31
    s_mov_b32 s34, 1.0
    S_WLOAD:
    s_lshl_b32 s30, s30, 4
    v_lshlrev_b32 v4, 3, v2
    v_add_u32 v4, s30, v4
    v_lshlrev_b32 v4, 7, v4
    v_lshl_add_u32 v4, v3, 1, v4
    """)
    for i in range(8):
        a(f"buffer_load_ushort v{8+i}, v4, s[20:23], 0 offen offset:{i*128}")
    srd(a, 24, 10, 0x800000)
    a(f"""
    v_and_b32 v5, 63, v0
    v_lshlrev_b32 v5, 4, v5
    s_lshl_b32 s35, s3, 10
    s_add_u32 s35, s35, {WS_WF}
    s_waitcnt vmcnt(0)
    """)
    for i in range(8):
        a(f"v_lshlrev_b32 v{8+i}, 16, v{8+i}\nv_mul_f32 v{8+i}, s34, v{8+i}")
    for i in range(4):
        a(f"v_cvt_pk_bf16_f32 v{16+i}, v{8+2*i}, v{9+2*i}")
    a("""
    buffer_store_dwordx4 v[16:19], v5, s[24:27], s35 offen
    S_END:
    s_endpgm
    """)

LMAX = 18
L_TB = 0
L_CNT = 2048
L_NT = L_CNT + 128
L_MX = L_NT + 16
L_BAS = L_MX + 16
L_ZR = 2560
L_LS = 3072
LSZ = LMAX * 1024
L_LE = L_LS + LSZ
L_XD = L_LE + LSZ
L_WL = L_XD + 128 * 144
L_XR = L_WL + 34 * 1024
XRS = 8704
MAIN_LDS = L_XR + 8 * XRS
assert MAIN_LDS <= 163840 and L_XR % 256 == 0
DUMMY = 0xC0000000
DFLAG = 1 << 24

def gen_main():
    R = Regs("v", 1, 256)
    vLS = R.alloc("vLS"); vLE = R.alloc("vLE")
    vCr = R.alloc("vCr", 5)
    RP = R.alloc("RP", 8, 2)
    XA = R.alloc("XA", 4); CX = R.alloc("CX", 4)
    S4 = R.alloc("S4", 4, 4); T = R.alloc("T", 8, 4)
    FX = R.alloc("FX", 16, 4); E = R.alloc("E", 64, 4)
    D = R.alloc("D", 32, 4); Q = R.alloc("Q", 32, 4); AG = R.alloc("AG", 32, 4); W = R.alloc("W", 40, 4)
    h16 = RP + 1
    def W1f(ks, nh): return v(W + (ks * 2 + nh) * 4, 4)
    def W3f(nh): return v(W + 32 + nh * 4, 4)
    def Es(t): return v(E + 4 * (t % 16), 4)
    sX, sE, sREC, sEM, sWF, sOUT = 16, 20, 24, 28, 32, 36
    sW, sSB, sS0, sS1, sN, sBASE, sCNT, sT, sXRB, sA, sB, sCAP = 40, 41, 42, 43, 44, 45, 46, 47, 48, 49, 50, 51
    sS2, sOA, sNMAX, sG, sL, sM7, sB30, sDF = 70, 71, 72, 73, 12, 13, 14, 15
    lane, c0, c1, g0, g1, p0, p1, xw, tt, qa = [E + i for i in (0, 2, 3, 4, 5, 6, 7, 8, 9, 10)]
    G, RC, NA, RK = D, D + 8, D + 16, D + 24
    TBv = E + 16
    TM = E + 48
    a(".p2align 8\nmain_kernel:")
    a(f"""
    s_cmp_ge_u32 s2, 256
    s_cbranch_scc1 M_END
    s_load_dwordx2 s[10:11], s[0:1], 64
    s_load_dwordx4 s[4:7], s[0:1], 0
    s_load_dwordx2 s[8:9], s[0:1], 48
    @stamp 0
    s_and_b32 s3, s2, 7
    s_lshl_b32 s3, s3, 5
    s_lshr_b32 s{sA}, s2, 3
    s_add_u32 s3, s3, s{sA}
    v_lshrrev_b32 v{T}, 6, v0
    v_and_b32 v{lane}, 63, v0
    v_readfirstlane_b32 s{sW}, v{T}
    v_lshlrev_b32 v{T+7}, 4, v{lane}
    s_lshl_b32 s{sOA}, s3, 12
    s_and_b32 s{sSB}, s{sW}, 1
    s_lshl_b32 s{sB}, s{sSB}, 3
    s_add_u32 s{sOA}, s{sOA}, s{sB}
    s_lshr_b32 s{sB}, s{sW}, 1
    s_lshl_b32 s{sB}, s{sB}, 10
    s_add_u32 s{sOA}, s{sOA}, s{sB}
    s_add_u32 s{sOA}, s{sOA}, {WS_O}
    s_mov_b32 s{sREC+2}, 0x600000
    s_mov_b32 s{sREC+3}, 0x20000
    s_waitcnt lgkmcnt(0)
    s_mov_b32 s{sREC}, s10
    s_mov_b32 s{sREC+1}, s11
    buffer_load_dwordx2 {v(c0,2)}, v{T+7}, s[{sREC}:{sREC+3}], s{sOA} offen
    """)
    srd_off(a, sWF, 10, WS_WF, 34 * 1024)
    a(f"s_lshl_b32 s{sA}, s{sW}, 10\ns_mov_b32 s{sB}, s{sA}")
    for j in range(5):
        if j == 4: a(f"s_cmp_ge_u32 s{sW}, 2\ns_cbranch_scc1 M_WS0")
        a(f"s_add_u32 m0, s{sA}, {L_WL + j*8192}\ns_nop 0\nbuffer_load_dwordx4 v{T+7}, s[{sWF}:{sWF+3}], s{sB} offen lds\ns_add_u32 s{sB}, s{sB}, 8192")
    a("M_WS0:")
    srd(a, sX, 4, 3200000)
    t0, t1, t2, t3, t4 = T, T+1, T+2, T+3, T+4
    a(f"""
    s_lshl_b32 s{sA}, s3, 17
    s_add_u32 s{sA}, s{sA}, 1341
    s_mul_hi_u32 s{sS0}, s{sA}, 3200423
    s_add_u32 s{sA}, s{sA}, 65536
    s_mul_hi_u32 s{sS1}, s{sA}, 3200423
    s_add_u32 s{sA}, s{sA}, 65536
    s_mul_hi_u32 s{sS2}, s{sA}, 3200423
    s_min_u32 s{sS2}, s{sS2}, 25000
    v_and_b32 v{t0}, 8, v0
    v_cmp_ne_u32 vcc, 0, v{t0}
    v_mov_b32 v{t0}, s{sS0}
    v_mov_b32 v{t1}, s{sS1}
    v_mov_b32 v{t2}, s{sS2}
    v_cndmask_b32 v{t0}, v{t0}, v{t1}, vcc
    v_cndmask_b32 v{t1}, v{t1}, v{t2}, vcc
    v_lshrrev_b32 v{t2}, 4, v0
    v_sub_u32 v{t2}, v{t2}, v{t0}
    v_add_u32 v{t3}, 32, v{t2}
    v_and_b32 v{t2}, 63, v{t2}
    v_and_b32 v{t3}, 63, v{t3}
    v_add_u32 v{t2}, v{t2}, v{t0}
    v_add_u32 v{t3}, v{t3}, v{t0}
    v_cmp_lt_u32 vcc, v{t2}, v{t1}
    v_cmp_lt_u32 s[52:53], v{t3}, v{t1}
    v_and_b32 v{t4}, 7, v0
    v_lshlrev_b32 v{t4}, 4, v{t4}
    v_lshl_add_u32 v{t2}, v{t2}, 7, v{t4}
    v_lshl_add_u32 v{t3}, v{t3}, 7, v{t4}
    v_mov_b32 v{t0}, 0x80000000
    v_cndmask_b32 v{t2}, v{t0}, v{t2}, vcc
    v_cndmask_b32 v{t3}, v{t0}, v{t3}, s[52:53]
    buffer_load_dwordx4 {v(FX,4)}, v{t2}, s[{sX}:{sX+3}], 0 offen
    buffer_load_dwordx4 {v(FX+4,4)}, v{t3}, s[{sX}:{sX+3}], 0 offen
    v_lshrrev_b32 v{xw}, 3, v0
    v_mul_u32_u24 v{xw}, 144, v{xw}
    v_add_u32 v{xw}, v{xw}, v{t4}
    """)
    MPF1, MPF2 = int(OPT["mpf1"]), int(OPT["mpf2"])
    XP0 = int(OPT["xpf"])
    def main_xpf(first, count, tmp, dst):
        a(f"""
        s_lshr_b32 s75, s2, 3
        s_mul_i32 s75, s75, 102400
        s_add_u32 s75, s75, {first*128}
        v_lshrrev_b32 v{tmp}, 6, v0
        v_and_b32 v{dst}, 63, v0
        v_lshl_add_u32 v{tmp}, v{dst}, 3, v{tmp}
        v_cmp_gt_u32 vcc, {count}, v{tmp}
        v_lshlrev_b32 v{tmp}, 7, v{tmp}
        v_mov_b32 v{dst}, 0x80000000
        v_cndmask_b32 v{tmp}, v{dst}, v{tmp}, vcc
        buffer_load_dword v{dst}, v{tmp}, s[{sX}:{sX+3}], s75 offen
        """)
    if MPF1: main_xpf(XP0, MPF1, E+60, E+61)
    ne = 0 if "noe" in OPT["abl"] else 1
    a(f"""
    s_sub_u32 s{sE}, s6, {DFLAG*32}
    s_subb_u32 s{sE+1}, s7, 0
    s_or_b32 s{sE+1}, s{sE+1}, {32<<16}
    s_mov_b32 s{sE+2}, {(DFLAG + 800000) * ne}
    s_mov_b32 s{sE+3}, 0x20000
    s_add_u32 s{sEM}, s10, {WS_EM}
    s_addc_u32 s{sEM+1}, s11, 0
    s_or_b32 s{sEM+1}, s{sEM+1}, {32<<16}
    s_mov_b32 s{sEM+2}, {NCH*4096 * (0 if "nom" in OPT["abl"] else 1)}
    s_mov_b32 s{sEM+3}, 0x20000
    """)
    srd(a, sOUT, 8, 3200000)
    def init_lds(lab, first):
        for i in range(4): a(f"v_mov_b32 v{Q+i}, {DUMMY}")
        a(f"""
        v_lshlrev_b32 v{Q+4}, 4, v0
        v_lshlrev_b32 v{Q+5}, 3, v0
        v_mov_b32 v{Q+6}, 0
        v_mov_b32 v{Q+7}, 0
        v_cmp_gt_u32 vcc, {(L_LS if first else L_MX)//8}, v0
        """)
        assert 2 * LSZ == 4 * 8192 + 4096
        for i in range(4): a(f"ds_write_b128 v{Q+4}, {v(Q,4)} offset:{L_LS+8192*i}")
        a(f"""
        s_mov_b64 exec, vcc
        ds_write_b64 v{Q+5}, {v(Q+6,2)}
        s_mov_b64 exec, -1
        s_cmp_ge_u32 s{sW}, 4
        s_cbranch_scc1 {lab}
        ds_write_b128 v{Q+4}, {v(Q,4)} offset:{L_LS+8192*4}
        {lab}:
        """)
    init_lds("M_PF0", True)
    m, h = T+5, T+6
    a(f"""
    s_sub_u32 s{sG}, 11, s{sW}
    s_cmp_lt_u32 s{sW}, 4
    s_cselect_b32 s{sG}, s{sW}, s{sG}
    s_mul_i32 s{sXRB}, s{sG}, {XRS}
    s_add_u32 s{sXRB}, s{sXRB}, {L_XR}
    s_mov_b32 s{sM7}, 0xffffff80
    s_mov_b32 s{sB30}, 0x40000000
    s_mov_b32 s{sDF}, {DFLAG}
    s_mov_b32 s{sCAP}, 512
    s_mov_b32 s{sBASE}, 0
    v_and_b32 v{m}, 31, v{lane}
    v_lshrrev_b32 v{h}, 5, v{lane}
    v_lshlrev_b32 v{RP+1}, 4, v{h}
    v_mov_b32 v{RP+3}, v{RP+1}
    v_mov_b32 v{RP+5}, v{RP+1}
    v_mov_b32 v{RP+7}, v{RP+1}
    v_lshrrev_b32 v{t0}, 3, v{lane}
    s_lshl_b32 s{sA}, s{sG}, 7
    v_lshl_add_u32 v{vLS}, v{t0}, 4, s{sA}
    v_lshl_add_u32 v{vLE}, v{m}, 2, s{sA}
    v_and_b32 v{t1}, 4, v{t0}
    v_and_b32 v{t2}, 7, v{lane}
    v_xor_b32 v{t1}, v{t1}, v{t2}
    """)
    for i in range(4):
        a(f"v_xor_b32 v{CX+i}, {i}, v{t1}\nv_lshlrev_b32 v{CX+i}, 4, v{CX+i}")
    a(f"""
    v_and_b32 v{t0}, 3, v{m}
    v_lshrrev_b32 v{t1}, 2, v{m}
    v_lshl_add_u32 v{t1}, v{t0}, 3, v{t1}
    v_lshlrev_b32 v{t1}, 7, v{t1}
    v_add_u32 v{t1}, s{sXRB}, v{t1}
    v_lshrrev_b32 v{t2}, 4, v{m}
    v_lshl_or_b32 v{t0}, v{t2}, 2, v{t0}
    v_xor_b32 v{t0}, v{t0}, v{h}
    """)
    for sx in range(4):
        a(f"v_xor_b32 v{XA+sx}, {2*sx}, v{t0}\nv_lshl_add_u32 v{XA+sx}, v{XA+sx}, 4, v{t1}")
    a(f"""
    s_waitcnt lgkmcnt(0)
    s_barrier
    s_waitcnt vmcnt({7 if MPF1 else 6})
    M_BATCH:
    @stamp 1
    s_and_b32 s{sA}, s{sW}, 6
    v_lshl_add_u32 v{t0}, v{m}, 3, v{h}
    v_add_u32 v{t0}, s{sA}, v{t0}
    v_cmp_gt_u32 vcc, {NCH}, v{t0}
    v_lshlrev_b32 v{t0}, 12, v{t0}
    v_mov_b32 v{t1}, 0xffff
    v_cndmask_b32 v{c0}, 0, v{c0}, vcc
    v_cndmask_b32 v{c1}, 0, v{c1}, vcc
    v_and_or_b32 v{g0}, v{c0}, v{t1}, v{t0}
    v_and_or_b32 v{g1}, v{c1}, v{t1}, v{t0}
    v_lshrrev_b32 v{c0}, 16, v{c0}
    v_lshrrev_b32 v{c1}, 16, v{c1}
    v_add_u32 v{p1}, v{c0}, v{c1}
    """)
    wave_scan(a, p1)
    a(f"""
    s_nop 0
    v_readlane_b32 s{sN}, v{p1}, 63
    v_sub_u32 v{p1}, v{p1}, v{c1}
    v_sub_u32 v{p0}, v{p1}, v{c0}
    """)
    for n, (pp, cc, gg) in enumerate(((p0, c0, g0), (p1, c1, g1))):
        a(f"""
        v_subrev_u32 v{tt}, s{sBASE}, v{pp}
        v_max_i32 v{pp}, 0, v{tt}
        v_add_u32 v{cc}, v{tt}, v{cc}
        v_min_i32 v{cc}, s{sCAP}, v{cc}
        v_sub_u32 v{cc}, v{cc}, v{pp}
        v_sub_u32 v{tt}, v{pp}, v{tt}
        v_add_u32 v{gg}, v{gg}, v{tt}
        v_lshl_add_u32 v{pp}, v{pp}, 2, s{sXRB}
        M_EXP{n}:
        """)
        for r in range(4):
            a(f"v_cmpx_lt_i32 vcc, {r}, v{cc}\nds_write_b32 v{pp}, v{gg} offset:{4*r}\nv_add_u32 v{gg}, 1, v{gg}")
        a(f"""
        v_add_u32 v{pp}, 16, v{pp}
        v_subrev_u32 v{cc}, 4, v{cc}
        s_cbranch_execnz M_EXP{n}
        s_mov_b64 exec, -1
        """)
    def mk(i): return f"s[{54+2*i}:{55+2*i}]"
    a(f"""
    s_sub_i32 s{sCNT}, s{sN}, s{sBASE}
    s_max_i32 s{sCNT}, s{sCNT}, 0
    s_min_u32 s{sCNT}, s{sCNT}, s{sCAP}
    v_lshl_add_u32 v{qa}, v{lane}, 2, s{sXRB}
    """)
    for i in range(8):
        a(f"ds_read_b32 v{G+i}, v{qa} offset:{256*i}")
    for i in range(8):
        a(f"s_sub_i32 s{sA}, s{sCNT}, {64*i}\nv_cmp_gt_i32 {mk(i)}, s{sA}, v{lane}")
    for i in range(8):
        a(f"""
        s_waitcnt lgkmcnt({7-i})
        v_lshlrev_b32 v{tt}, 2, v{G+i}
        s_mov_b64 exec, {mk(i)}
        buffer_load_dword v{RC+i}, v{tt}, s[{sREC}:{sREC+3}], 0 offen
        s_mov_b64 exec, -1
        """)
    npf = 0
    for i in range(8):
        a(f"v_bfe_i32 v{TM+i}, v{G+i}, 11, 1")
        if OPT["empf"] and not YM:
            a(f"""
            v_or_b32 v{tt}, v{TM+i}, v{G+i}
            s_mov_b64 exec, {mk(i)}
            buffer_load_dword v{E+15}, v{tt}, s[{sEM}:{sEM+3}], 0 idxen {OPT['mflags']}
            s_mov_b64 exec, -1
            """)
            npf += 1
    one, nta, fl0 = E+11, E+12, E+13
    a(f"""
    v_mov_b32 v{one}, 1
    v_mov_b32 v{nta}, 0
    v_mov_b32 v{fl0}, s{sCNT}
    v_mov_b32 v{fl0+1}, s{sN}
    s_mov_b64 exec, 1
    ds_add_u32 v{nta}, v{fl0} offset:{L_NT}
    ds_max_u32 v{nta}, v{fl0+1} offset:{L_MX}
    s_mov_b64 exec, -1
    s_lshl_b32 s{sA}, s{sSB}, 4
    s_mov_b32 s{sB}, {CH}
    """)
    for i in range(8):
        a(f"v_lshrrev_b32 v{TBv+i}, 12, v{G+i}")
    a("@stamp 2")
    for i in range(8):
        a(f"""
        s_waitcnt vmcnt({7-i+npf})
        v_and_b32 v{NA+i}, 63, v{RC+i}
        v_lshl_add_u32 v{NA+i}, v{NA+i}, 5, s{sA}
        s_mov_b64 exec, {mk(i)}
        ds_add_rtn_u32 v{RK+i}, v{NA+i}, v{one} offset:{L_TB+12}
        s_mov_b64 exec, -1
        """)
    a(f"""
    s_cmp_lg_u32 s{sBASE}, 0
    s_cbranch_scc1 M_NOXD
    ds_write_b128 v{xw}, {v(FX,4)} offset:{L_XD}
    ds_write_b128 v{xw}, {v(FX+4,4)} offset:{L_XD+64*144}
    M_NOXD:
    s_cmp_eq_u32 s{sW}, 0
    s_cbranch_scc1 M_PK0
    """)
    def pack():
        for i in range(8):
            a(f"""
            v_lshrrev_b32 v{tt}, 21, v{RC+i}
            v_mad_u32_u24 v{tt}, v{TBv+i}, s{sB}, v{tt}
            {f"v_and_b32 v{TM+i}, {M0}, v{TM+i}" if YM else f"v_add_u32 v{tt}, {M0 + DFLAG}, v{tt}"}
            {f"v_add3_u32 v{G+i}, v{TM+i}, v{tt}, s{sDF}" if YM else f"v_bfi_b32 v{G+i}, v{TM+i}, v{tt}, v{G+i}"}
            v_lshl_or_b32 v{RC+i}, v{RC+i}, 1, s{sSB}
            v_and_b32 v{RC+i}, 0x3fffff, v{RC+i}
            """)
    def wread():
        if MPF2: main_xpf(XP0 + MPF1, MPF2, E+60, E+61)
        a(f"v_lshlrev_b32 v{tt}, 4, v{lane}\nv_add_u32 v{tt}, {L_WL}, v{tt}")
        for f in range(18):
            dst = W + 4*f if f < 8 else (AG + 4*(f-8) if f < 16 else W + 32 + 4*(f-16))
            a(f"ds_read_b128 {v(dst,4)}, v{tt} offset:{1024*f}")
    a("s_waitcnt lgkmcnt(0)\ns_barrier")
    wread(); pack()
    a("s_barrier\ns_branch M_P4E")
    d0, d1, f0, f1, k0, k1, vL, vR, ks, a4, l0, l1, o0, o1, cn, ci = [Q + i for i in range(16)]
    m0_, A0, B0, m1_, A1, B1 = Q+16, Q+17, Q+18, Q+20, Q+21, Q+22
    a(f"""
    M_PK0:
    v_lshlrev_b32 v{a4}, 4, v{lane}
    s_waitcnt lgkmcnt(0)
    s_barrier
    ds_read_b32 v{ks}, v{nta} offset:{L_NT}
    ds_read_b32 v{d0}, v{a4} offset:{L_TB+12}
    ds_read_b32 v{d1}, v{a4} offset:{L_TB+12+1024}
    v_and_b32 v{ci}, 31, v{lane}
    v_sub_u32 v{ci}, 31, v{ci}
    v_lshlrev_b32 v{ci}, 2, v{ci}
    s_mov_b32 s75, {f32(4194304.0)}
    s_waitcnt lgkmcnt(0)
    v_readfirstlane_b32 s{sL}, v{ks}
    v_cvt_f32_u32 v{f0}, v{d0}
    v_cvt_f32_u32 v{f1}, v{d1}
    s_lshr_b32 s{sL}, s{sL}, 8
    s_add_u32 s{sL}, s{sL}, 2
    M_LS:
    s_add_u32 s{sL}, s{sL}, 1
    s_cmp_gt_u32 s{sL}, {LMAX}
    s_cbranch_scc1 M_P4W
    v_cvt_f32_u32 v{vL}, s{sL}
    v_rcp_f32 v{vR}, v{vL}
    v_add_f32 v{vL}, -0.5, v{vL}
    v_add_f32 v{k0}, v{f0}, v{vL}
    v_add_f32 v{k1}, v{f1}, v{vL}
    v_mul_f32 v{k0}, v{k0}, v{vR}
    v_mul_f32 v{k1}, v{k1}, v{vR}
    v_cvt_u32_f32 v{k0}, v{k0}
    v_cvt_u32_f32 v{k1}, v{k1}
    v_add_u32 v{ks}, v{k0}, v{k1}
    """)
    fillers = [f"v_cvt_f32_u32 v{l0}, v{k0}", f"v_cvt_f32_u32 v{l1}, v{k1}",
               f"v_rcp_f32 v{m0_}, v{l0}", f"v_rcp_f32 v{m1_}, v{l1}",
               f"v_add_f32 v{l0}, v{l0}, v{f0}", f"v_add_f32 v{l1}, v{l1}, v{f1}",
               f"v_add_f32 v{l0}, -0.5, v{l0}", f"v_add_f32 v{l1}, -0.5, v{l1}",
               f"v_mul_f32 v{l0}, v{l0}, v{m0_}", f"v_mul_f32 v{l1}, v{l1}, v{m1_}",
               f"v_cvt_u32_f32 v{l0}, v{l0}", f"v_cvt_u32_f32 v{l1}, v{l1}"]
    steps = [f"row_shr:{sh} row_mask:0xf bank_mask:0xf bound_ctrl:0" for sh in (1, 2, 4, 8)] + ["row_bcast:15 row_mask:0xa bank_mask:0xf", "row_bcast:31 row_mask:0xc bank_mask:0xf"]
    for n, stp in enumerate(steps):
        a(f"{fillers[2*n]}\n{fillers[2*n+1]}\nv_add_u32_dpp v{ks}, v{ks}, v{ks} {stp}")
    a(f"""
    v_lshlrev_b32 v{l0}, 2, v{l0}
    v_readlane_b32 s{sA}, v{ks}, 63
    v_lshlrev_b32 v{l1}, 2, v{l1}
    s_cmp_gt_u32 s{sA}, 256
    s_cbranch_scc1 M_LS
    ds_add_rtn_u32 v{o0}, v{l0}, v{k0} offset:{L_CNT}
    ds_add_rtn_u32 v{o1}, v{l1}, v{k1} offset:{L_CNT}
    ds_read_b32 v{cn}, v{ci} offset:{L_CNT}
    v_mul_f32 v{m0_}, s75, v{m0_}
    v_mul_f32 v{m1_}, s75, v{m1_}
    v_cvt_u32_f32 v{m0_}, v{m0_}
    v_cvt_u32_f32 v{m1_}, v{m1_}
    v_add_u32 v{m0_}, 2, v{m0_}
    v_add_u32 v{m1_}, 2, v{m1_}
    v_lshlrev_b32 v{B0}, 2, v{k0}
    v_lshlrev_b32 v{B1}, 2, v{k1}
    v_sub_u32 v{B0}, 1024, v{B0}
    v_sub_u32 v{B1}, 1024, v{B1}
    v_sub_u32 v{l0}, 124, v{l0}
    v_sub_u32 v{l1}, 124, v{l1}
    s_waitcnt lgkmcnt(0)
    v_mov_b32 v{ks}, v{cn}
    """)
    for stp in steps[:5]:
        a(f"s_nop 1\nv_add_u32_dpp v{ks}, v{ks}, v{ks} {stp}")
    a(f"""
    v_sub_u32 v{ks}, v{ks}, v{cn}
    ds_bpermute_b32 v{d0}, v{l0}, v{ks}
    ds_bpermute_b32 v{d1}, v{l1}, v{ks}
    ds_write_b32 v{ci}, v{ks} offset:{L_BAS}
    s_waitcnt lgkmcnt(1)
    v_add_lshl_u32 v{A0}, v{o0}, v{d0}, 2
    v_add_lshl_u32 v{A1}, v{o1}, v{d1}, 2
    ds_write_b96 v{a4}, {v(m0_,3)} offset:{L_TB}
    ds_write_b96 v{a4}, {v(m1_,3)} offset:{L_TB+1024}
    M_P4W:
    v_mov_b32 v{ks}, s{sL}
    ds_write_b32 v{nta}, v{ks} offset:{L_MX+4}
    s_waitcnt lgkmcnt(0)
    s_barrier
    """)
    wread(); pack()
    u0 = Q
    a(f"""
    M_P4E:
    ds_read_b64 {v(u0,2)}, v{nta} offset:{L_MX}
    v_and_b32 v{tt}, 31, v{lane}
    v_lshlrev_b32 v{tt}, 2, v{tt}
    ds_read_b32 v{u0+2}, v{tt} offset:{L_CNT}
    ds_read_b32 v{u0+3}, v{tt} offset:{L_BAS}
    """)
    for i in range(8):
        a(f"ds_read_b96 {v(TBv+4*i,3)}, v{NA+i} offset:{L_TB}")
    a(f"""
    s_lshl_b32 s{sA}, s{sG}, 5
    s_waitcnt lgkmcnt(8)
    v_readfirstlane_b32 s{sNMAX}, v{u0}
    v_readfirstlane_b32 s{sL}, v{u0+1}
    v_add_u32 v{u0+2}, v{u0+2}, v{u0+3}
    v_cmp_ge_u32 vcc, s{sA}, v{u0+3}
    v_cmp_lt_u32 s[52:53], s{sA}, v{u0+2}
    s_and_b64 s[52:53], s[52:53], vcc
    s_ff1_i32_b32 s{sT}, s52
    s_max_i32 s{sT}, s{sT}, 0
    s_cmp_le_u32 s{sL}, {LMAX}
    s_cbranch_scc1 M_P5
    s_mov_b32 s{sCAP}, 256
    s_branch M_AGAIN
    M_P5:
    """)
    for i in range(8):
        mm, AA, BB = TBv + 4*i, TBv + 4*i + 1, TBv + 4*i + 2
        a(f"""
        s_waitcnt lgkmcnt(7)
        v_mul_u32_u24 v{mm}, v{mm}, v{RK+i}
        v_lshl_add_u32 v{AA}, v{RK+i}, 2, v{AA}
        v_lshrrev_b32 v{mm}, 22, v{mm}
        v_mad_u32_u24 v{AA}, v{mm}, v{BB}, v{AA}
        s_mov_b64 exec, {mk(i)}
        ds_write2st64_b32 v{AA}, v{RC+i}, v{G+i} offset0:{L_LS//256} offset1:{L_LE//256}
        s_mov_b64 exec, -1
        """)
    a(f"""
    s_waitcnt lgkmcnt(0)
    s_barrier
    @stamp 3
    s_cmp_eq_u32 s{sT}, 0
    s_cbranch_scc1 M_BEND
    """)
    if "nox" in OPT["abl"]: a(f"s_mov_b32 s{sX+2}, 0")
    S = []
    ef, mf_ = OPT["eflags"], OPT["mflags"]
    def le_read(t, p): return (f"ds_read_b32 v{RP+2*p}, v{vLE} offset:{L_LE+1024*t}", f"le{p}")
    def ls_read(t, dst): return (f"ds_read_b128 {v(dst,4)}, v{vLS} offset:{L_LS+1024*t}", f"ls{t}")
    def m_load(t, p): return (f"buffer_load_dwordx4 {Es(t)}, {v(RP+2*p,2)}, s[{sEM}:{sEM+3}], 0 idxen offen {mf_}", f"M{t}")
    def d_pre(t, p): return [f"v_cmp_le_u32 vcc, s{sDF}, v{RP+2*p}", f"v_and_or_b32 v{vCr+t%5}, v{RP+2*p}, s{sB30}, 1.0"]
    def d_load(t, p): return ["s_mov_b64 exec, vcc", (f"buffer_load_dwordx4 {Es(t)}, {v(RP+2*p,2)}, s[{sE}:{sE+3}], 0 idxen offen {ef}", f"D{t}"), "s_mov_b64 exec, -1"]
    def x_addr(src): return [f"v_and_or_b32 v{S4+i}, v{src+i}, s{sM7}, v{CX+i}" for i in range(4)]
    def x_dma(t, nop=True):
        o = []
        for i in range(4):
            o += [f"s_add_u32 m0, s{sXRB}, {(t&1)*4096+i*1024}"] + (["s_nop 0"] if nop else []) + \
                 [(f"buffer_load_dwordx4 v{S4+i}, s[{sX}:{sX+3}], 0 offen lds", f"X{t}")]
        return o
    def fx_read(t, sx): return (f"ds_read_b128 {v(FX+4*sx,4)}, v{XA+sx} offset:{(t&1)*4096}", f"fx{t}")
    def chain(nh, t):
        Dh = v(D + 16 * nh, 16)
        return [f"v_mfma_f32_32x32x16_bf16 {Dh}, {W3f(nh)}, {Es(t)}, {v(Q+16*nh,16)}"] + \
               [f"v_mfma_f32_32x32x16_bf16 {Dh}, {W1f(sx,nh)}, {v(FX+4*sx,4)}, {Dh}" for sx in range(4)]
    nd = D
    S += [ls_read(0, S4), le_read(0, 0), (f"ds_read_b32 v{nd}, v{vLE} offset:{L_LS}", "nd"), le_read(1, 1), ls_read(1, T), le_read(2, 2), ls_read(2, T+4), le_read(3, 3)]
    S += [("@W", None, "le0")] + x_addr(S4) + x_dma(0) + [m_load(0, 0)] + d_pre(0, 0) + d_load(0, 0)
    S += [("@W", None, "nd"), f"v_and_b32 v{nd}, 127, v{nd}", f"v_mul_u32_u24 v{nd}, 144, v{nd}", f"v_add_u32 v{nd}, v{nd}, v{h16}"]
    S += [(f"ds_read_b128 {v(FX+4*sx,4)}, v{nd} offset:{L_XD+32*sx}", "xd") for sx in range(4)]
    S += [("@W", None, "ls1"), m_load(1, 1)] + d_pre(1, 1) + d_load(1, 1) + x_addr(T) + x_dma(1)
    S += [("@W", None, "le3"), m_load(2, 2)] + d_pre(2, 2) + d_load(2, 2) + [m_load(3, 3)]
    S += [le_read(4, 0), le_read(5, 1), le_read(6, 2), ("@W", None, "xd")]
    for nh in range(2):
        for sx in range(4):
            S.append(f"v_mfma_f32_32x32x16_bf16 {v(Q+16*nh,16)}, {v(AG+(sx*2+nh)*4,4)}, {v(FX+4*sx,4)}, {'0' if sx == 0 else v(Q+16*nh,16)}")
    S += [f"v_mov_b32 v{AG+i}, 0" for i in range(32)]
    S += [f"s_mov_b32 s75, {f32(-LOG2E)}"] + [f"v_mul_f32 v{Q+i}, s75, v{Q+i}" for i in range(32)]
    S += [("@W", "D0", None)] + [fx_read(0, sx) for sx in range(4)] + x_addr(T+4) + [("@W", None, "fx0")]
    S += chain(0, 0) + x_dma(2) + d_pre(3, 3) + d_load(3, 3) + [m_load(4, 0), m_load(5, 1), m_load(6, 2)]
    if OPT["stamp"]: S += ["@stamp 4", f"s_mov_b32 s90, s{sT}", f"s_mov_b32 s98, s{sL}", "s_memtime s[94:95]", "s_waitcnt lgkmcnt(0)"]
    def phase(nh, t, mf, fill):
        Db, Ab = D + 16*nh, AG + 16*nh
        c = vCr + t % 5
        cp = f"{v(c & ~1, 2)} " + ("op_sel_hi:[1,0]" if c % 2 == 0 else "op_sel:[0,1] op_sel_hi:[1,1]")
        seq = []
        mf = mf + [None] * (5 - len(mf))
        for q in range(2):
            ex = [f"v_exp_f32 v{T+i}, v{Db+8*q+i}" for i in range(8)]
            rc = [f"v_rcp_f32 v{T+i}, v{T+i}" for i in range(8)]
            if OPT["pk"]:
                ad = [f"v_pk_add_f32 {v(T+2*i,2)}, {v(T+2*i,2)}, {cp}" for i in range(4)]
                fm = [f"v_pk_fma_f32 {v(Ab+8*q+2*i,2)}, {v(Db+8*q+2*i,2)}, {v(T+2*i,2)}, {v(Ab+8*q+2*i,2)}" for i in range(4)]
            else:
                ad = [f"v_add_f32 v{T+i}, v{c}, v{T+i}" for i in range(8)]
                fm = [f"v_fmac_f32 v{Ab+8*q+i}, v{Db+8*q+i}, v{T+i}" for i in range(8)]
            if q == 0: seq += [mf[0]] + ex[:3] + [mf[1]] + ex[3:] + ad + [mf[2]] + rc[:3] + [mf[3]] + rc[3:] + fm
            else: seq += [mf[4]] + ex + ad + rc + fm
        res = []; n = 0
        for l in seq:
            if l is None: continue
            res.append(l)
            if l.startswith(("v_exp", "v_rcp")):
                res += fill.get(n, []); n += 1
        if "nocomp" in OPT["abl"]:
            r2 = []
            for l in res:
                if isinstance(l, str) and l.startswith(("v_exp", "v_rcp", "v_pk", "v_add_f32", "v_fmac", "v_mfma")): continue
                r2.append(l)
                if isinstance(l, str) and " m0," in l: r2.append("s_nop 0")
            res = r2
        return res
    mnext = 7
    for t in range(LMAX):
        ms = []
        while not YM and len(ms) < MPER and mnext < LMAX and mnext - 16 <= t - 1: ms.append(mnext); mnext += 1
        assert YM or t + 4 >= LMAX or t + 4 < mnext - len(ms) or t + 4 in ms
        fill = {}
        pos = 0
        for j, mt in enumerate(ms): fill[pos] = [le_read(mt, j)]; pos += 1
        if t + 4 < LMAX: fill[pos] = [le_read(t + 4, 3)]; pos += 1
        if t + 3 < LMAX: fill[pos] = [ls_read(t + 3, S4)]; pos += 1
        for j, mt in enumerate(ms):
            fill[10 + 2*j] = ([("@W", None, f"le{len(ms)-1}")] if j == 0 else []) + [m_load(mt, j)]
        if t + 1 < LMAX:
            fill[16] = [("@W", f"X{t+1}", None)]
            for sx in range(4): fill[17+sx] = [fx_read(t + 1, sx)]
        if t + 3 < LMAX:
            xa = x_addr(S4)
            fill[24] = [("@W", None, f"ls{t+3}"), xa[0]]; fill[25] = [xa[1]]; fill[26] = [xa[2]]; fill[27] = [xa[3]]
        S += phase(0, t, chain(1, t), fill)
        fill = {}
        if t + 1 < LMAX: fill[0] = [("@W", None, f"fx{t+1}")]
        if t + 3 < LMAX:
            dm = x_dma(t + 3, nop=False)
            for i in range(8): fill[1+i] = [dm[i]]
        if t + 4 < LMAX:
            dp = d_pre(t + 4, 3)
            fill[9] = [dp[0]]; fill[12] = d_load(t + 4, 3); fill[13] = [dp[1]]
        fill[31] = [f"s_cmp_eq_u32 s{sT}, {t+1}"]
        S += phase(1, t, chain(0, t + 1) if t + 1 < LMAX else [], fill)
        if t + 1 < LMAX: S.append("s_cbranch_scc1 M_FLUSH")
    if YM:
        S2 = []
        for it in S:
            txt = it[0] if isinstance(it, tuple) else it
            if isinstance(it, tuple) and it[0] != "@W" and it[1] and it[1].startswith("M"): continue
            if txt.startswith(("s_mov_b64 exec", "v_cmp_le_u32 vcc")): continue
            S2.append(it)
        S = S2
    emit(resolve(S))
    a("M_FLUSH:\n@stamp 5\n@cyc")
    a(f"""
    v_and_b32 v{T}, 31, v0
    v_mul_u32_u24 v{T}, 272, v{T}
    v_add3_u32 v{T}, v{T}, v{h16}, s{sXRB}
    s_waitcnt vmcnt(0)
    """)
    for i in range(8):
        a(f"ds_write_b128 v{T}, {v(AG+4*i,4)} offset:{32*i}")
    nn, kk, ca0, ca1, ca2, zr = T+3, T+1, S4, S4+1, S4+2, S4+3
    a(f"""
    M_BEND:
    s_lshr_b32 s{sA}, s{sW}, 1
    s_lshl_b32 s{sA}, s{sA}, 5
    v_and_b32 v{nn}, 31, v0
    v_add_u32 v{nn}, s{sA}, v{nn}
    v_lshlrev_b32 v{T+2}, 4, v{nn}
    ds_read2_b32 {v(T,2)}, v{T+2} offset0:1 offset1:2
    v_mul_u32_u24 v{T+4}, 144, v{nn}
    v_add_u32 v{T+4}, v{T+4}, v{h16}
    v_and_b32 v{T+7}, 63, v0
    v_lshlrev_b32 v{T+7}, 4, v{T+7}
    s_lshl_b32 s{sA}, s{sSB}, 13
    s_add_u32 s{sA}, s{sA}, {L_WL + 18*1024}
    v_add_u32 v{T+5}, s{sA}, v{T+7}
    s_waitcnt vmcnt(0)
    """)
    for sx in range(4):
        a(f"ds_read_b128 {v(FX+4*sx,4)}, v{T+4} offset:{L_XD+32*sx}")
    for f in range(8):
        a(f"ds_read_b128 {v(W+4*f,4)}, v{T+5} offset:{1024*f}")
    a(f"""
    s_waitcnt lgkmcnt(12)
    v_mul_u32_u24 v{ca0}, 68, v{T}
    v_lshl_add_u32 v{ca0}, v{h16}, 1, v{ca0}
    v_add_u32 v{ca0}, {L_XR}, v{ca0}
    v_mov_b32 v{zr}, {L_ZR}
    v_cmp_gt_u32 s[56:57], s{sA}, v{kk}
    v_cmp_gt_u32 s[58:59], s{sB}, v{kk}
    v_add_u32 v{ca1}, 272, v{ca0}
    v_add_u32 v{ca2}, 544, v{ca0}
    v_add_u32 v{T+6}, 816, v{ca0}
    v_cmp_gt_u32 vcc, 0x400, v{kk}
    v_cndmask_b32 v{ca1}, v{zr}, v{ca1}, s[56:57]
    v_cndmask_b32 v{ca2}, v{zr}, v{ca2}, s[58:59]
    v_cndmask_b32 v{ca0}, v{zr}, v{ca0}, vcc
    v_cmp_gt_u32 vcc, 0x3f4, v{kk}
    s_waitcnt lgkmcnt(0)
    """.replace(f"s_waitcnt lgkmcnt(12)\n", f"s_mov_b32 s{sA}, 0x3fc\n    s_mov_b32 s{sB}, 0x3f8\n    s_waitcnt lgkmcnt(12)\n"))
    for st in range(4):
        a(f"v_mfma_f32_32x32x16_bf16 {v(E,16)}, {v(W+4*st,4)}, {v(FX+4*st,4)}, {'0' if st == 0 else v(E,16)}")
    a("s_barrier")
    for i in range(8):
        for buf, ca in ((AG, ca0), (D, ca1), (Q, ca2)):
            a(f"ds_read_b128 {v(buf+4*i,4)}, v{ca} offset:{64*(i>>1) + 16*(i&1)}")
    for i in range(8):
        a(f"s_waitcnt lgkmcnt({min(15, 21-3*i)})")
        for j in range(2): a(f"v_pk_add_f32 {v(AG+4*i+2*j,2)}, {v(AG+4*i+2*j,2)}, {v(D+4*i+2*j,2)}")
        for j in range(2): a(f"v_pk_add_f32 {v(AG+4*i+2*j,2)}, {v(AG+4*i+2*j,2)}, {v(Q+4*i+2*j,2)}")
    a(f"""
    s_cbranch_vccz M_SUMD
    s_mov_b32 s{sA}, 0x3f4
    M_SUML:
    s_mov_b64 exec, vcc
    """)
    for i in range(8):
        a(f"ds_read_b128 {v(D+4*i,4)}, v{T+6} offset:{64*(i>>1) + 16*(i&1)}")
    a(f"s_sub_u32 s{sA}, s{sA}, 4\nv_add_u32 v{T+6}, 272, v{T+6}\ns_waitcnt lgkmcnt(0)")
    for i in range(16): a(f"v_pk_add_f32 {v(AG+2*i,2)}, {v(AG+2*i,2)}, {v(D+2*i,2)}")
    a(f"""
    s_mov_b64 exec, -1
    v_cmp_gt_i32 vcc, s{sA}, v{kk}
    s_nop 4
    s_cbranch_vccnz M_SUML
    M_SUMD:
    s_cmp_le_u32 s{sNMAX}, s{sCAP}
    s_cbranch_scc1 M_EPI
    """)
    srd_off(a, sWF, 10, WS_SP, 2048 * 8192)
    a(f"""
    s_lshl_b32 s{sA}, s2, 3
    s_add_u32 s{sA}, s{sA}, s{sW}
    s_lshl_b32 s{sA}, s{sA}, 13
    s_add_u32 s{sB}, s{sA}, 4096
    s_cmp_eq_u32 s{sBASE}, 0
    s_cbranch_scc1 M_NOLD
    """)
    for i in range(8):
        a(f"buffer_load_dwordx4 {v(D+4*i,4)}, v{T+7}, s[{sWF}:{sWF+3}], s{sA if i < 4 else sB} offen offset:{1024*(i%4)} sc0 sc1")
    a("s_waitcnt vmcnt(0)")
    for i in range(16): a(f"v_pk_add_f32 {v(AG+2*i,2)}, {v(AG+2*i,2)}, {v(D+2*i,2)}")
    a(f"""
    M_NOLD:
    s_add_u32 s{sBASE}, s{sBASE}, s{sCAP}
    s_cmp_ge_u32 s{sBASE}, s{sNMAX}
    s_cbranch_scc1 M_EPI
    """)
    for i in range(8):
        a(f"buffer_store_dwordx4 {v(AG+4*i,4)}, v{T+7}, s[{sWF}:{sWF+3}], s{sA if i < 4 else sB} offen offset:{1024*(i%4)} sc0 sc1")
    a(f"""
    M_AGAIN:
    s_waitcnt vmcnt(0) lgkmcnt(0)
    s_barrier
    v_and_b32 v{lane}, 63, v0
    v_lshlrev_b32 v{T+7}, 4, v{lane}
    buffer_load_dwordx2 {v(c0,2)}, v{T+7}, s[{sREC}:{sREC+3}], s{sOA} offen
    v_and_b32 v{m}, 31, v{lane}
    v_lshrrev_b32 v{h}, 5, v{lane}
    """)
    init_lds("M_PF1", False)
    a(f"""
    s_waitcnt vmcnt(0) lgkmcnt(0)
    s_barrier
    s_branch M_BATCH
    M_EPI:
    v_and_b32 v{T}, 1, v{nn}
    v_cmp_ne_u32 vcc, 0, v{T}
    v_mov_b32 v{T}, s{sS0}
    v_mov_b32 v{T+1}, s{sS1}
    v_mov_b32 v{T+2}, s{sS2}
    v_cndmask_b32 v{T}, v{T}, v{T+1}, vcc
    v_cndmask_b32 v{T+1}, v{T+1}, v{T+2}, vcc
    v_lshrrev_b32 v{T+2}, 1, v{nn}
    v_sub_u32 v{T+2}, v{T+2}, v{T}
    v_and_b32 v{T+2}, 63, v{T+2}
    v_add_u32 v{T+2}, v{T+2}, v{T}
    v_cmp_lt_u32 vcc, v{T+2}, v{T+1}
    v_lshlrev_b32 v{T+5}, 7, v{T+2}
    v_lshl_add_u32 v{T+5}, v{h16}, 1, v{T+5}
    v_mov_b32 v{T+6}, 0x80000000
    s_lshl_b32 s{sA}, s{sSB}, 6
    s_mov_b32 s74, {f32(-LOG2E)}
    s_mov_b32 s75, {f32(-1.0/LOG2E)}
    v_cndmask_b32 v{T+5}, v{T+6}, v{T+5}, vcc
    """)
    for st in range(4):
        for i in range(8): a(f"v_mul_f32 v{AG+8*st+i}, s75, v{AG+8*st+i}")
        for i in range(4): a(f"v_cvt_pk_bf16_f32 v{FX+4*st+i}, v{AG+8*st+2*i}, v{AG+8*st+2*i+1}")
        a(f"s_nop 1\nv_mfma_f32_32x32x16_bf16 {v(E,16)}, {v(W+16+4*st,4)}, {v(FX+4*st,4)}, {v(E,16)}")
    a("s_nop 15")
    for i in range(16): a(f"v_mul_f32 v{AG+i}, s74, v{E+i}")
    for i in range(16): a(f"v_exp_f32 v{AG+i}, v{AG+i}")
    for i in range(16): a(f"v_add_f32 v{AG+i}, 1.0, v{AG+i}")
    for i in range(16): a(f"v_rcp_f32 v{AG+i}, v{AG+i}")
    for i in range(16): a(f"v_mul_f32 v{AG+i}, v{E+i}, v{AG+i}")
    for i in range(8): a(f"v_cvt_pk_bf16_f32 v{D+i}, v{AG+2*i}, v{AG+2*i+1}")
    a(f"""
    buffer_store_dwordx4 {v(D,4)}, v{T+5}, s[{sOUT}:{sOUT+3}], s{sA} offen
    buffer_store_dwordx4 {v(D+4,4)}, v{T+5}, s[{sOUT}:{sOUT+3}], s{sA} offen offset:16
    """)
    if OPT["stamp"]: a("s_waitcnt vmcnt(0)\n@stamp 6")
    stamp_out(8, f"s_lshl_b32 s74, s2, 3\ns_add_u32 s74, s74, s{sW}", 10, 0x80000)
    a("M_END:\ns_endpgm")
    return R.n

hdr = f"""; MPNN edge-MLP + segment-sum + node update, two launches:
; @launch kernel=sort_kernel grid=(253,1,1) block=(1024,1,1) lds={SORT_LDS}
; @launch kernel=main_kernel grid=(256,1,1) block=(512,1,1) lds={MAIN_LDS}
.amdgcn_target "amdgcn-amd-amdhsa--gfx950"
.text
.globl sort_kernel
.type sort_kernel,@function
.globl main_kernel
.type main_kernel,@function
"""
gen_sort()
nv = gen_main()
txt = hdr + a.text() + '.section .rodata,"a"\n.p2align 6\n' + kdesc("sort_kernel", 56) + ".p2align 6\n" + kdesc("main_kernel", 256, 100 if OPT["stamp"] else 96)
open(sys.argv[1], "w").write(txt)
print("main vgprs", nv, "lds", MAIN_LDS, SORT_LDS)
```

```python
class Regs:
    def __init__(self, prefix, start, limit):
        self.p = prefix; self.n = start; self.limit = limit; self.names = {}
    def alloc(self, name, count=1, align=1):
        n = (self.n + align - 1) // align * align
        assert n + count <= self.limit, f"out of {self.p} regs at {name}: {n}+{count}"
        self.names[name] = (n, count); self.n = n + count
        return n
def v(n, c=1):
    return f"v{n}" if c == 1 else f"v[{n}:{n+c-1}]"
def s(n, c=1):
    return f"s{n}" if c == 1 else f"s[{n}:{n+c-1}]"
class Asm:
    def __init__(self): self.L = []
    def __call__(self, txt):
        for l in txt.strip("\n").split("\n"):
            l = l.strip()
            if l.startswith("@cyc"):
                if getattr(self, "stamps", False):
                    self.L.append("    s_memtime s[96:97]"); self.L.append("    s_waitcnt lgkmcnt(0)")
                continue
            if l.startswith(("@stamp", "@pstamp", "@estamp")):
                i = int(l.split()[1])
                mode = getattr(self, "stamps", False)
                if l.startswith("@pstamp"): on = mode == "pro"
                elif l.startswith("@estamp"): on = mode == "epi"
                else: on = mode and (not getattr(self, "inmain", False) or mode is True or (mode == "pro" and i < 3) or (mode == "epi" and i in (0, 6)))
                if on:
                    self.L.append(f"    s_memrealtime s[{76+2*i}:{77+2*i}]"); self.L.append("    s_waitcnt lgkmcnt(0)")
                continue
            if l: self.L.append(("" if l.endswith(":") or l.startswith(".") else "    ") + l)
    def text(self): return "\n".join(self.L) + "\n"
def srd(a, d, base, nbytes):
    a(f"s_mov_b32 s{d}, s{base}\ns_mov_b32 s{d+1}, s{base+1}\ns_mov_b32 s{d+2}, {nbytes}\ns_mov_b32 s{d+3}, 0x20000")
def srd_off(a, d, base, off, nbytes):
    a(f"s_add_u32 s{d}, s{base}, {off}\ns_addc_u32 s{d+1}, s{base+1}, 0\ns_mov_b32 s{d+2}, {nbytes}\ns_mov_b32 s{d+3}, 0x20000")
def wave_scan(a, r):
    for sh in (1, 2, 4, 8):
        a(f"s_nop 1\nv_add_u32_dpp v{r}, v{r}, v{r} row_shr:{sh} row_mask:0xf bank_mask:0xf bound_ctrl:0")
    a(f"s_nop 1\nv_add_u32_dpp v{r}, v{r}, v{r} row_bcast:15 row_mask:0xa bank_mask:0xf")
    a(f"s_nop 1\nv_add_u32_dpp v{r}, v{r}, v{r} row_bcast:31 row_mask:0xc bank_mask:0xf")
def kdesc(name, vgpr, sgpr=96):
    acc = (vgpr + 3) // 4 * 4
    return f""".amdhsa_kernel {name}
  .amdhsa_next_free_vgpr {vgpr}
  .amdhsa_next_free_sgpr {sgpr}
  .amdhsa_accum_offset {acc}
  .amdhsa_group_segment_fixed_size 0
  .amdhsa_kernarg_size 72
  .amdhsa_user_sgpr_count 2
  .amdhsa_user_sgpr_kernarg_segment_ptr 1
  .amdhsa_system_sgpr_workgroup_id_x 1
.end_amdhsa_kernel
"""
```

```python
import sys, struct
from asmlib import *

OPT = dict(abl="", stamp=False, eflags="", mflags="", idxflags="", stflags="sc1", emst="sc1", eld="", pk=True, M0=1920, empf=True, mper=3, Y=False, xpf=0, mpf1=0, mpf2=0, prio=0)
for arg in sys.argv[2:]:
    k, val = arg.split("=")
    OPT[k] = {"True": True, "False": False}.get(val, val.replace("+", " "))
M0 = int(OPT["M0"]); MPER = int(OPT["mper"])
assert M0 % 32 == 0 and M0 <= 2048 and 3200 - M0 <= 2048

NCH, CH = 250, 3200
WS_REC, WS_O, WS_WF, WS_ST, WS_SP, WS_EM = 0, 0x400000, 0x600000, 0x700000, 0x1000000, 0x2000000
LOG2E = 1.4426950408889634
def f32(x): return "0x%08x" % struct.unpack("<I", struct.pack("<f", x))[0]

a = Asm()
a.stamps = OPT["stamp"]
def stamp_out(n, wid_sgpr_expr, base_sgpr, region):
    if not OPT["stamp"]: return
    a("s_waitcnt lgkmcnt(0)")
    a(wid_sgpr_expr)
    a(f"s_lshl_b32 s74, s74, 6\ns_add_u32 s74, s74, {WS_ST+region}\ns_add_u32 s92, s{base_sgpr}, s74\ns_addc_u32 s93, s{base_sgpr+1}, 0\nv_mov_b32 v0, 0")
    for i in range(n):
        a(f"v_mov_b32 v1, s{76+2*i}\nglobal_store_dword v0, v1, s[92:93] offset:{4*i}")
    if n == 8: a("s_sub_u32 s96, s96, s94\nv_mov_b32 v1, s96\nglobal_store_dword v0, v1, s[92:93] offset:32\nv_mov_b32 v1, s98\nglobal_store_dword v0, v1, s[92:93] offset:36")
def emit(l): a("\n".join(l))

def resolve(stream):
    out = []; vm = []; lg = []
    for it in stream:
        if isinstance(it, tuple) and it[0] == "@W":
            parts = []
            if it[1] is not None:
                idx = max(i for i, t in enumerate(vm) if t == it[1]); n = len(vm) - 1 - idx
                assert n <= 63; parts.append(f"vmcnt({n})")
            if it[2] is not None:
                idx = max(i for i, t in enumerate(lg) if t == it[2]); n = len(lg) - 1 - idx
                parts.append(f"lgkmcnt({min(n, 15)})")
            out.append("s_waitcnt " + " ".join(parts)); continue
        txt, tag = it if isinstance(it, tuple) else (it, None)
        if txt.startswith("buffer_"): vm.append(tag)
        if txt.startswith("ds_"): lg.append(tag)
        out.append(txt)
    return out

S_SRT = 4224
S_E = 17408
YM = OPT["Y"]
SORT_LDS = S_E + (0 if YM else M0 * 32)
def gen_sort():
    a(".p2align 8\nsort_kernel:")
    a(f"""
    s_cmp_ge_u32 s2, 253
    s_cbranch_scc1 S_END
    s_load_dwordx4 s[4:7], s[0:1], 16
    s_load_dwordx2 s[8:9], s[0:1], 8
    s_load_dwordx2 s[10:11], s[0:1], 64
    s_load_dwordx4 s[12:15], s[0:1], 32
    s_load_dwordx2 s[44:45], s[0:1], 0
    s_cmp_ge_u32 s2, 250
    s_cbranch_scc1 S_WPREP
    @stamp 0
    v_lshlrev_b32 v2, 2, v0
    v_mov_b32 v3, 0
    ds_write_b32 v2, v3
    s_mul_i32 s3, s2, 12800
    v_lshlrev_b32 v44, 4, v0
    v_add_u32 v1, s3, v44
    v_cmp_gt_u32 vcc, 800, v0
    s_mov_b64 s[40:41], vcc
    v_mov_b32 v12, 0x80000000
    v_cndmask_b32 v1, v12, v1, vcc
    v_lshrrev_b32 v34, 6, v0
    v_lshlrev_b32 v35, 2, v34
    v_readfirstlane_b32 s37, v34
    s_waitcnt lgkmcnt(0)
    """)
    srd(a, 20, 6, 3200000)
    fl = OPT["idxflags"]
    a(f"buffer_load_dwordx4 v[4:7], v1, s[20:23], 0 offen {fl}")
    srd(a, 16, 4, 3200000)
    a(f"buffer_load_dwordx4 v[8:11], v1, s[16:19], 0 offen {fl}")
    srd(a, 24, 10, 0x800000)
    a(f"""
    v_mov_b32 v15, 1
    v_cmp_le_u32 vcc, {M0//4}, v0
    v_mov_b32 v13, 2048
    v_subrev_u32 v14, {M0}, v2
    v_cndmask_b32 v13, 0, v13, vcc
    v_cndmask_b32 v16, v2, v14, vcc
    v_mov_b32 v47, {(2048-M0)*4}
    v_cndmask_b32 v47, 0, v47, vcc
    v_lshlrev_b32 v16, 21, v16
    s_lshl_b32 s3, s2, 14
    v_add3_u32 v47, v47, v44, s3
    v_cndmask_b32 v47, v12, v47, s[40:41]
    v_and_b32 v45, 0x1fe, v0
    v_lshlrev_b32 v45, 11, v45
    v_and_b32 v46, 1, v0
    v_lshl_or_b32 v45, v46, 3, v45
    v_lshrrev_b32 v46, 9, v0
    v_lshl_or_b32 v45, v46, 2, v45
    v_mul_u32_u24 v46, {2048-M0}, v46
    s_and_b32 s39, s2, 7
    s_lshl_b32 s39, s39, 5
    s_lshr_b32 s38, s2, 3
    s_add_u32 s39, s39, s38
    s_lshl_b32 s39, s39, 4
    s_add_u32 s39, s39, {WS_O}
    s_barrier
    """)
    srd(a, 28, 8, 25600000)
    npiece = 0 if YM else M0 // 32
    nr = (npiece + 15) // 16
    a(f"s_mul_i32 s42, s2, {CH*32}\ns_lshl_b32 s43, s37, 10")
    for r in range(nr):
        if (r + 1) * 16 > npiece:
            a(f"s_cmp_ge_u32 s37, {npiece - 16*r}\ns_cbranch_scc1 S_DMAD")
        a(f"s_add_u32 m0, s43, {S_E + r*16384}\ns_nop 0\nbuffer_load_dwordx4 v44, s[28:31], s42 offen {OPT['eld']} lds\ns_add_u32 s42, s42, 16384")
    a("S_DMAD:")
    a(f"""
    s_waitcnt vmcnt({nr if npiece % 16 == 0 else nr-1})
    @stamp 1
    """)
    for i in range(4):
        a(f"""
        v_mul_u32_u24 v{20+i}, 1342, v{4+i}
        v_lshrrev_b32 v{20+i}, 16, v{20+i}
        v_lshl_add_u32 v{20+i}, v{20+i}, 2, v13
        """)
    a("s_mov_b64 exec, s[40:41]")
    for i in range(4):
        a(f"ds_add_rtn_u32 v{24+i}, v{20+i}, v15")
    a(f"s_mov_b64 exec, -1")
    XPF = int(OPT["xpf"])
    def sort_xpf():
        srd(a, 48, 44, 3200000)
        a(f"""
        s_lshr_b32 s46, s2, 3
        s_mul_i32 s46, s46, 102400
        v_lshlrev_b32 v52, 7, v0
        v_cmp_gt_u32 vcc, {XPF}, v0
        s_nop 1
        v_cndmask_b32 v52, v12, v52, vcc
        buffer_load_dword v53, v52, s[48:51], s46 offen
        """)
    for i in range(4):
        a(f"""
        v_and_b32 v{28+i}, 63, v{4+i}
        v_lshl_or_b32 v{28+i}, v{8+i}, 6, v{28+i}
        v_add_u32 v17, {i<<21}, v16
        v_or_b32 v{28+i}, v{28+i}, v17
        """)
    a("""
    s_waitcnt lgkmcnt(0)
    s_barrier
    @stamp 2
    ds_read_b32 v32, v2
    """)
    if XPF: sort_xpf()
    a("""
    s_waitcnt lgkmcnt(0)
    v_mov_b32 v33, v32
    """)
    wave_scan(a, 33)
    a("""
    s_mov_b32 exec_lo, 0
    s_mov_b32 exec_hi, 0x80000000
    ds_write_b32 v35, v33 offset:4096
    s_mov_b64 exec, -1
    v_and_b32 v36, 15, v0
    v_lshlrev_b32 v36, 2, v36
    s_waitcnt lgkmcnt(0)
    s_barrier
    ds_read_b32 v37, v36 offset:4096
    s_waitcnt lgkmcnt(0)
    v_mov_b32 v38, v37
    """)
    for sh in (1, 2, 4, 8):
        a(f"s_nop 1\nv_add_u32_dpp v38, v38, v38 row_shr:{sh} row_mask:0xf bank_mask:0xf bound_ctrl:0")
    st = OPT["stflags"]
    a(f"""
    v_sub_u32 v38, v38, v37
    s_nop 0
    v_readlane_b32 s38, v38, s37
    v_sub_u32 v33, v33, v32
    s_nop 1
    v_add_u32 v33, s38, v33
    ds_write_b32 v2, v33
    v_add_u32 v39, v33, v46
    v_lshl_or_b32 v39, v32, 16, v39
    buffer_store_dword v39, v45, s[24:27], s39 offen
    s_waitcnt lgkmcnt(0)
    s_barrier
    @stamp 3
    s_mov_b64 exec, s[40:41]
    """)
    for i in range(4):
        a(f"ds_read_b32 v{40+i}, v{20+i}")
    for i in range(4):
        a(f"""
        s_waitcnt lgkmcnt({3})
        v_add_lshl_u32 v{40+i}, v{40+i}, v{24+i}, 2
        ds_write_b32 v{40+i}, v{28+i} offset:{S_SRT}
        """)
    no = 0 if YM else (M0 + 511) // 512
    a(f"""
    s_mov_b64 exec, -1
    v_lshrrev_b32 v4, 1, v0
    v_lshlrev_b32 v4, 2, v4
    v_and_b32 v5, 1, v0
    v_lshlrev_b32 v5, 4, v5
    """)
    srd_off(a, 28, 10, WS_EM, NCH * 131072)
    a(f"""
    s_lshl_b32 s42, s2, 17
    v_cmp_gt_u32 vcc, {(M0 - 512*(no-1))*2}, v0
    s_waitcnt vmcnt({2 if XPF else 1}) lgkmcnt(0)
    s_barrier
    @stamp 4
    v_cndmask_b32 v6, v12, v44, vcc
    """)
    for r in range(no):
        a(f"ds_read_b32 v{8+r}, v4 offset:{S_SRT + r*2048}")
    a(f"s_mov_b64 exec, s[40:41]\nds_read_b128 v[48:51], v44 offset:{S_SRT}\ns_mov_b64 exec, -1")
    for r in range(no):
        a(f"""
        s_waitcnt lgkmcnt({no})
        v_lshrrev_b32 v{8+r}, 21, v{8+r}
        v_lshl_add_u32 v{8+r}, v{8+r}, 5, v5
        ds_read_b128 v[{16+4*r}:{19+4*r}], v{8+r} offset:{S_E}
        """)
    a(f"s_waitcnt lgkmcnt({no})\nbuffer_store_dwordx4 v[48:51], v47, s[24:27], 0 offen {st}")
    for r in range(no):
        a(f"""
        s_waitcnt lgkmcnt({no-1-r})
        buffer_store_dwordx4 v[{16+4*r}:{19+4*r}], v{6 if r == no-1 else 44}, s[28:31], s42 offen {OPT['emst']}
        s_add_u32 s42, s42, 16384
        """)
    if OPT["stamp"]: a("s_waitcnt vmcnt(0)\n@stamp 5")
    stamp_out(6, "s_lshl_b32 s74, s2, 4\ns_add_u32 s74, s74, s37", 10, 0)
    a("s_endpgm")
    a(f"""
    S_WPREP:
    v_lshrrev_b32 v1, 6, v0
    s_nop 0
    v_readfirstlane_b32 s3, v1
    s_sub_u32 s16, s2, 250
    s_lshl_b32 s16, s16, 4
    s_add_u32 s3, s3, s16
    s_cmp_ge_u32 s3, 34
    s_cbranch_scc1 S_END
    v_and_b32 v1, 31, v0
    v_bfe_u32 v2, v0, 5, 1
    s_waitcnt lgkmcnt(0)
    s_mov_b32 s22, 18432
    s_mov_b32 s23, 0x20000
    s_cmp_ge_u32 s3, 18
    s_cbranch_scc1 S_WUPD
    s_mov_b32 s20, s12
    s_mov_b32 s21, s13
    s_lshr_b32 s30, s3, 1
    s_and_b32 s31, s3, 1
    s_lshl_b32 s31, s31, 5
    v_add_u32 v3, s31, v1
    s_mov_b32 s34, {f32(-LOG2E)}
    s_branch S_WLOAD
    S_WUPD:
    s_mov_b32 s20, s14
    s_mov_b32 s21, s15
    s_mov_b32 s22, 16384
    s_sub_u32 s35, s3, 18
    s_and_b32 s30, s35, 7
    s_lshr_b32 s31, s35, 3
    s_lshl_b32 s31, s31, 5
    v_bfe_u32 v4, v1, 2, 1
    v_lshlrev_b32 v4, 4, v4
    v_lshrrev_b32 v5, 3, v1
    v_lshl_add_u32 v4, v5, 2, v4
    v_and_b32 v5, 3, v1
    v_add3_u32 v3, v4, v5, s31
    s_mov_b32 s34, 1.0
    S_WLOAD:
    s_lshl_b32 s30, s30, 4
    v_lshlrev_b32 v4, 3, v2
    v_add_u32 v4, s30, v4
    v_lshlrev_b32 v4, 7, v4
    v_lshl_add_u32 v4, v3, 1, v4
    """)
    for i in range(8):
        a(f"buffer_load_ushort v{8+i}, v4, s[20:23], 0 offen offset:{i*128}")
    srd(a, 24, 10, 0x800000)
    a(f"""
    v_and_b32 v5, 63, v0
    v_lshlrev_b32 v5, 4, v5
    s_lshl_b32 s35, s3, 10
    s_add_u32 s35, s35, {WS_WF}
    s_waitcnt vmcnt(0)
    """)
    for i in range(8):
        a(f"v_lshlrev_b32 v{8+i}, 16, v{8+i}\nv_mul_f32 v{8+i}, s34, v{8+i}")
    for i in range(4):
        a(f"v_cvt_pk_bf16_f32 v{16+i}, v{8+2*i}, v{9+2*i}")
    a("""
    buffer_store_dwordx4 v[16:19], v5, s[24:27], s35 offen
    S_END:
    s_endpgm
    """)

LMAX = 18
L_TB = 0
L_CNT = 1024
L_NT = L_CNT + 128
L_MX = L_NT + 16
L_BAS = L_MX + 16
L_ZR = 1536
L_LS = 2048
LSZ = LMAX * 1024
L_LE = L_LS + LSZ
L_XD = L_LE + LSZ
L_WL = L_XD + 128 * 144
L_XR = L_WL + 34 * 1024
XRS = 8704
MAIN_LDS = L_XR + 8 * XRS
assert MAIN_LDS <= 163840 and L_XR % 256 == 0
GLS = 2176
L_C8 = 114688
C8O = 4096
assert L_XR + 8 * GLS <= L_C8 and L_C8 % 4096 == 0
L_FE = L_LS
DUMMY = 0xC0000000
DFLAG = 1 << 24

def gen_main():
    R = Regs("v", 1, 256)
    vLS = R.alloc("vLS"); vLE = R.alloc("vLE")
    vCr = R.alloc("vCr", 5)
    RP = R.alloc("RP", 8, 2)
    XA = R.alloc("XA", 4); CX = R.alloc("CX", 4)
    S4 = R.alloc("S4", 4, 4); T = R.alloc("T", 8, 4)
    FX = R.alloc("FX", 16, 4); E = R.alloc("E", 64, 4)
    D = R.alloc("D", 32, 4); Q = R.alloc("Q", 32, 4); AG = R.alloc("AG", 32, 4); W = R.alloc("W", 40, 4)
    h16 = RP + 1
    def W1f(ks, nh): return v(W + (ks * 2 + nh) * 4, 4)
    def W3f(nh): return v(W + 32 + nh * 4, 4)
    def Es(t): return v(E + 4 * (t % 16), 4)
    sX, sE, sREC, sEM, sWF, sOUT = 16, 20, 24, 28, 32, 36
    sW, sSB, sS0, sS1, sN, sBASE, sCNT, sT, sXRB, sA, sB, sCAP = 40, 41, 42, 43, 44, 45, 46, 47, 48, 49, 50, 51
    sS2, sGL, sNMAX, sG, sL, sM7, sB30, sDF = 70, 71, 72, 73, 12, 13, 14, 15
    lane, kk12, c0, c1, g0, g1, p0, p1, xw, tt, qa, one, nta, fl0 = [E + i for i in range(14)]
    G, RC, NA, RK = D, D + 8, D + 16, D + 24
    TBv = E + 16
    OFv = E + 32
    KK = E + 40
    TM = E + 48
    CA = E + 56
    t0, t1, t2, t3, t4, m, h = T, T+1, T+2, T+3, T+4, T+5, T+6
    def mk(i): return f"s[{54+2*i}:{55+2*i}]"
    ORD = list(range(7, -1, -1))
    def skip(lab):
        a(f"s_cmp_le_u32 s{sCNT}, 384\ns_cbranch_scc1 {lab}6\ns_cmp_le_u32 s{sCNT}, 448\ns_cbranch_scc1 {lab}7")
    def after(lab, i):
        if i >= 6: a(f"{lab}{i}:")
    ne = 0 if "noe" in OPT["abl"] else 1
    def consts():
        a(f"""
        s_sub_u32 s{sE}, s6, {DFLAG*32}
        s_subb_u32 s{sE+1}, s7, 0
        s_or_b32 s{sE+1}, s{sE+1}, {32<<16}
        s_mov_b32 s{sE+2}, {(DFLAG + 800000) * ne}
        s_mov_b32 s{sE+3}, 0x20000
        s_add_u32 s{sEM}, s10, {WS_EM}
        s_addc_u32 s{sEM+1}, s11, 0
        s_or_b32 s{sEM+1}, s{sEM+1}, {32<<16}
        s_mov_b32 s{sEM+2}, {NCH*4096 * (0 if "nom" in OPT["abl"] else 1)}
        s_mov_b32 s{sEM+3}, 0x20000
        s_sub_u32 s{sG}, 11, s{sW}
        s_cmp_lt_u32 s{sW}, 4
        s_cselect_b32 s{sG}, s{sW}, s{sG}
        s_mul_i32 s{sXRB}, s{sG}, {XRS}
        s_add_u32 s{sXRB}, s{sXRB}, {L_XR}
        s_mov_b32 s{sM7}, 0xffffff80
        s_mov_b32 s{sB30}, 0x40000000
        s_mov_b32 s{sDF}, {DFLAG}
        v_lshlrev_b32 v{RP+1}, 4, v{h}
        v_lshlrev_b32 v{RP+3}, 4, v{h}
        v_lshlrev_b32 v{RP+5}, 4, v{h}
        v_lshlrev_b32 v{RP+7}, 4, v{h}
        v_lshrrev_b32 v{t0}, 3, v{lane}
        s_lshl_b32 s{sA}, s{sG}, 7
        v_lshl_add_u32 v{vLS}, v{t0}, 4, s{sA}
        v_lshl_add_u32 v{vLE}, v{m}, 2, s{sA}
        v_and_b32 v{t1}, 4, v{t0}
        v_and_b32 v{t2}, 7, v{lane}
        v_xor_b32 v{t1}, v{t1}, v{t2}
        v_lshlrev_b32 v{CX}, 4, v{t1}
        v_xor_b32 v{CX+1}, 16, v{CX}
        v_xor_b32 v{CX+2}, 32, v{CX}
        v_xor_b32 v{CX+3}, 48, v{CX}
        v_and_b32 v{t0}, 3, v{m}
        v_lshrrev_b32 v{t1}, 2, v{m}
        v_lshl_add_u32 v{t1}, v{t0}, 3, v{t1}
        v_lshlrev_b32 v{t1}, 7, v{t1}
        v_add_u32 v{t1}, s{sXRB}, v{t1}
        v_lshrrev_b32 v{t2}, 4, v{m}
        v_lshl_or_b32 v{t0}, v{t2}, 2, v{t0}
        v_xor_b32 v{t0}, v{t0}, v{h}
        v_lshl_add_u32 v{XA}, v{t0}, 4, v{t1}
        v_xor_b32 v{XA+1}, 32, v{XA}
        v_xor_b32 v{XA+2}, 64, v{XA}
        v_xor_b32 v{XA+3}, 0x60, v{XA}
        """)
    a.inmain = True
    a(".p2align 8\nmain_kernel:")
    a(f"""
    s_cmp_ge_u32 s2, 256
    s_cbranch_scc1 M_END
    s_load_dwordx2 s[10:11], s[0:1], 64
    s_load_dwordx4 s[4:7], s[0:1], 0
    s_load_dwordx2 s[8:9], s[0:1], 48
    @stamp 0
    s_and_b32 s3, s2, 7
    s_lshl_b32 s3, s3, 5
    s_lshr_b32 s{sA}, s2, 3
    s_add_u32 s3, s3, s{sA}
    v_lshrrev_b32 v{T}, 6, v0
    s_mov_b32 s{sCAP}, 512
    v_readfirstlane_b32 s{sW}, v{T}
    s_mov_b32 s{sBASE}, 0
    s_mov_b32 s{sREC+2}, {0x600000//4}
    s_mov_b32 s{sREC+3}, 0x20000
    s_and_b32 s{sSB}, s{sW}, 1
    s_mul_i32 s{sGL}, s{sW}, {GLS}
    s_add_u32 s{sGL}, s{sGL}, {L_XR}
    s_waitcnt lgkmcnt(0)
    s_mov_b32 s{sREC}, s10
    s_or_b32 s{sREC+1}, s11, {4<<16}
    M_BATCH:
    s_setprio 2
    s_lshl_b32 s{sA}, s3, 10
    s_lshl_b32 s{sB}, s{sSB}, 1
    s_add_u32 s{sA}, s{sA}, s{sB}
    s_lshr_b32 s{sB}, s{sW}, 1
    s_lshl_b32 s{sB}, s{sB}, 8
    s_add_u32 s{sA}, s{sA}, s{sB}
    s_add_u32 s{sA}, s{sA}, {WS_O//4}
    v_and_b32 v{lane}, 63, v0
    v_lshl_add_u32 v{tt}, v{lane}, 2, s{sA}
    v_add_u32 v{qa}, 1, v{tt}
    buffer_load_dword v{c0}, v{tt}, s[{sREC}:{sREC+3}], 0 idxen
    buffer_load_dword v{c1}, v{qa}, s[{sREC}:{sREC+3}], 0 idxen
    """)
    srd_off(a, sWF, 10, WS_WF, 34 * 1024)
    a(f"v_lshlrev_b32 v{T+7}, 4, v{lane}\ns_lshl_b32 s{sA}, s{sW}, 10\ns_mov_b32 s{sB}, s{sA}")
    for j in range(5):
        if j == 4: a(f"s_and_b32 s{sA}, s{sA}, 1024\ns_add_u32 s{sB}, s{sA}, 32768")
        a(f"s_add_u32 m0, s{sA}, {L_WL + j*8192}\ns_nop 0\nbuffer_load_dwordx4 v{T+7}, s[{sWF}:{sWF+3}], s{sB} offen lds\ns_add_u32 s{sB}, s{sB}, 8192")
    a(f"""
    v_lshlrev_b32 v{Q+5}, 3, v0
    v_mov_b32 v{Q+6}, 0
    v_mov_b32 v{Q+7}, 0
    v_add_u32 v{Q+8}, {L_C8}, v{Q+5}
    v_lshlrev_b32 v{Q+5}, 2, v0
    ds_write_b64 v{Q+8}, {v(Q+6,2)}
    ds_write_b32 v{Q+5}, v{Q+6}
    s_and_b32 s{sA}, s{sW}, 6
    v_and_b32 v{m}, 31, v{lane}
    v_lshrrev_b32 v{h}, 5, v{lane}
    v_lshl_add_u32 v{kk12}, v{m}, 3, v{h}
    v_add_u32 v{kk12}, s{sA}, v{kk12}
    v_cmp_gt_u32 vcc, {NCH}, v{kk12}
    v_lshlrev_b32 v{kk12}, 12, v{kk12}
    v_mov_b32 v{t1}, 0xffff
    v_lshl_add_u32 v{qa}, v{lane}, 2, s{sGL}
    s_waitcnt lgkmcnt(0)
    s_barrier
    s_waitcnt vmcnt(5)
    @stamp 1
    v_cndmask_b32 v{c0}, 0, v{c0}, vcc
    v_cndmask_b32 v{c1}, 0, v{c1}, vcc
    v_add_u32 v{p1}, v{c0}, v{c1}
    v_lshrrev_b32 v{p1}, 16, v{p1}
    """)
    assert L_LS // 8 == 256
    steps = [f"row_shr:{sh} row_mask:0xf bank_mask:0xf bound_ctrl:0" for sh in (1, 2, 4, 8)] + ["row_bcast:15 row_mask:0xa bank_mask:0xf", "row_bcast:31 row_mask:0xc bank_mask:0xf"]
    fl = [f"v_and_or_b32 v{g0}, v{c0}, v{t1}, v{kk12}\nv_and_or_b32 v{g1}, v{c1}, v{t1}, v{kk12}",
          f"v_lshrrev_b32 v{c0}, 16, v{c0}\nv_lshrrev_b32 v{c1}, 16, v{c1}", "s_nop 1", "s_nop 1", "s_nop 1", "s_nop 1"]
    for n, stp in enumerate(steps):
        a(f"{fl[n]}\nv_add_u32_dpp v{p1}, v{p1}, v{p1} {stp}")
    a(f"""
    s_nop 0
    v_readlane_b32 s{sN}, v{p1}, 63
    v_sub_u32 v{p1}, v{p1}, v{c1}
    v_sub_u32 v{p0}, v{p1}, v{c0}
    s_mov_b32 s{sCNT}, s{sN}
    s_add_u32 s{sA}, s{sN}, s{sBASE}
    s_cmp_le_u32 s{sA}, s{sCAP}
    s_cbranch_scc0 M_WIN
    s_cmp_eq_u32 s{sBASE}, 0
    s_cbranch_scc1 M_NOWIN
    M_WIN:
    s_sub_i32 s{sCNT}, s{sN}, s{sBASE}
    s_max_i32 s{sCNT}, s{sCNT}, 0
    s_min_u32 s{sCNT}, s{sCNT}, s{sCAP}
    """)
    for (pp, cc, gg) in ((p0, c0, g0), (p1, c1, g1)):
        a(f"""
        v_subrev_u32 v{tt}, s{sBASE}, v{pp}
        v_max_i32 v{pp}, 0, v{tt}
        v_add_u32 v{cc}, v{tt}, v{cc}
        v_min_i32 v{cc}, s{sCAP}, v{cc}
        v_sub_u32 v{cc}, v{cc}, v{pp}
        v_sub_u32 v{tt}, v{pp}, v{tt}
        v_add_u32 v{gg}, v{gg}, v{tt}
        """)
    a("M_NOWIN:")
    pa, ca_, ga, gb = t0, t1, t2, t3
    for n, (pp, cc, gg) in enumerate(((p0, c0, g0), (p1, c1, g1))):
        a(f"""
        v_lshl_add_u32 v{pp}, v{pp}, 2, s{sGL}
        v_add_u32 v{ga}, 1, v{gg}
        v_add_u32 v{gb}, 2, v{gg}
        v_mov_b32 v{ca_}, v{cc}
        v_mov_b32 v{pa}, v{pp}
        M_EXP{n}:
        """)
        for r in (1, 3, 5, 7):
            a(f"v_cmpx_lt_i32 vcc, {r}, v{ca_}\nds_write2_b32 v{pa}, v{ga}, v{gb} offset0:{r} offset1:{r+1}\nv_add_u32 v{ga}, 2, v{ga}\nv_add_u32 v{gb}, 2, v{gb}")
        a(f"""
        v_cmpx_lt_i32 vcc, 9, v{ca_}
        v_add_u32 v{pa}, 32, v{pa}
        v_subrev_u32 v{ca_}, 8, v{ca_}
        s_cbranch_execnz M_EXP{n}
        s_mov_b64 exec, -1
        """)
    a(f"""
    v_cmpx_lt_i32 vcc, 0, v{c0}
    ds_write_b32 v{p0}, v{g0}
    s_mov_b64 exec, -1
    v_cmpx_lt_i32 vcc, 0, v{c1}
    ds_write_b32 v{p1}, v{g1}
    s_mov_b64 exec, -1
    """)
    for i in ORD:
        a(f"ds_read_b32 v{G+i}, v{qa} offset:{256*i}")
    for i in ORD:
        a(f"s_sub_i32 s{sA}, s{sCNT}, {64*i}\nv_cmp_gt_i32 {mk(i)}, s{sA}, v{lane}")
    skip("M_GA")
    for i in ORD:
        a(f"""
        s_mov_b64 exec, {mk(i)}
        s_waitcnt lgkmcnt({i})
        buffer_load_dword v{RC+i}, v{G+i}, s[{sREC}:{sREC+3}], 0 idxen
        """)
        after("M_GA", i)
    a("s_mov_b64 exec, -1\n@stamp 2")
    a("s_setprio 0")
    for i in range(4): a(f"v_mov_b32 v{Q+i}, {DUMMY}")
    a(f"v_lshlrev_b32 v{Q+4}, 4, v0\nv_lshlrev_b32 v{Q+5}, 3, v0")
    assert 2 * LSZ == 4 * 8192 + 4096
    for i in range(4): a(f"ds_write_b128 v{Q+4}, {v(Q,4)} offset:{L_LS+8192*i}")
    a(f"ds_write_b64 v{Q+5}, {v(Q,2)} offset:{L_LS+8192*4}")
    srd(a, sX, 4, 3200000)
    a(f"""
    s_lshl_b32 s{sA}, s3, 17
    s_add_u32 s{sA}, s{sA}, 1341
    s_mul_hi_u32 s{sS0}, s{sA}, 3200423
    s_add_u32 s{sA}, s{sA}, 65536
    s_mul_hi_u32 s{sS1}, s{sA}, 3200423
    s_add_u32 s{sA}, s{sA}, 65536
    s_mul_hi_u32 s{sS2}, s{sA}, 3200423
    s_min_u32 s{sS2}, s{sS2}, 25000
    v_and_b32 v{t0}, 8, v0
    v_cmp_ne_u32 vcc, 0, v{t0}
    v_mov_b32 v{t0}, s{sS0}
    v_mov_b32 v{t1}, s{sS1}
    v_mov_b32 v{t2}, s{sS2}
    v_cndmask_b32 v{t0}, v{t0}, v{t1}, vcc
    v_cndmask_b32 v{t1}, v{t1}, v{t2}, vcc
    v_lshrrev_b32 v{t2}, 4, v0
    v_sub_u32 v{t2}, v{t2}, v{t0}
    v_add_u32 v{t3}, 32, v{t2}
    v_and_b32 v{t2}, 63, v{t2}
    v_and_b32 v{t3}, 63, v{t3}
    v_add_u32 v{t2}, v{t2}, v{t0}
    v_add_u32 v{t3}, v{t3}, v{t0}
    v_cmp_lt_u32 vcc, v{t2}, v{t1}
    v_cmp_lt_u32 s[52:53], v{t3}, v{t1}
    v_and_b32 v{t4}, 7, v0
    v_lshlrev_b32 v{t4}, 4, v{t4}
    v_lshl_add_u32 v{t2}, v{t2}, 7, v{t4}
    v_lshl_add_u32 v{t3}, v{t3}, 7, v{t4}
    v_mov_b32 v{t0}, 0x80000000
    v_cndmask_b32 v{t2}, v{t0}, v{t2}, vcc
    v_cndmask_b32 v{t3}, v{t0}, v{t3}, s[52:53]
    buffer_load_dwordx4 {v(FX,4)}, v{t2}, s[{sX}:{sX+3}], 0 offen
    buffer_load_dwordx4 {v(FX+4,4)}, v{t3}, s[{sX}:{sX+3}], 0 offen
    v_lshrrev_b32 v{xw}, 3, v0
    v_mul_u32_u24 v{xw}, 144, v{xw}
    v_add_u32 v{xw}, v{xw}, v{t4}
    """)
    consts()
    a(f"""
    v_mov_b32 v{one}, 1
    v_mov_b32 v{nta}, 0
    v_mov_b32 v{fl0}, s{sCNT}
    v_mov_b32 v{fl0+1}, s{sN}
    s_lshl_b32 s{sA}, s{sSB}, 9
    s_lshl_b32 s75, s{sSB}, 8
    s_add_u32 s75, s75, {L_C8}
    s_movk_i32 s{sB}, 0xe00
    s_setprio 2
    s_mov_b64 exec, 1
    ds_add_u32 v{nta}, v{fl0} offset:{L_NT}
    ds_max_u32 v{nta}, v{fl0+1} offset:{L_MX}
    """)
    skip("M_RK")
    for i in ORD:
        a(f"""
        s_mov_b64 exec, {mk(i)}
        s_waitcnt vmcnt({i+2})
        v_and_b32 v{NA+i}, 63, v{RC+i}
        v_lshrrev_b32 v{tt}, 9, v{RC+i}
        v_lshl_add_u32 v{CA+i}, v{NA+i}, 2, s75
        v_and_or_b32 v{CA+i}, v{tt}, s{sB}, v{CA+i}
        ds_add_rtn_u32 v{RK+i}, v{CA+i}, v{one}
        v_lshl_add_u32 v{NA+i}, v{NA+i}, 3, s{sA}
        """)
        after("M_RK", i)
    def pack(lab):
        a(f"s_movk_i32 s{sB}, {CH}")
        skip(lab)
        for i in ORD:
            a(f"""
            v_lshrrev_b32 v{KK+i}, 12, v{G+i}
            v_lshrrev_b32 v{tt}, 21, v{RC+i}
            v_bfe_i32 v{TM+i}, v{G+i}, 11, 1
            v_mad_u32_u24 v{tt}, v{KK+i}, s{sB}, v{tt}
            {f"v_and_b32 v{TM+i}, {M0}, v{TM+i}" if YM else f"v_add_u32 v{tt}, {M0 + DFLAG}, v{tt}"}
            {f"v_add3_u32 v{G+i}, v{TM+i}, v{tt}, s{sDF}" if YM else f"v_bfi_b32 v{G+i}, v{TM+i}, v{tt}, v{G+i}"}
            v_lshl_or_b32 v{RC+i}, v{RC+i}, 1, s{sSB}
            v_and_b32 v{RC+i}, 0x3fffff, v{RC+i}
            """)
            if OPT["empf"] and not YM and lab != "M_PA":
                a(f"s_mov_b64 exec, {mk(i)}\nbuffer_load_dword v{vCr+4}, v{G+i}, s[{sEM}:{sEM+3}], 0 idxen {OPT['mflags']}\ns_mov_b64 exec, -1")
            after(lab, i)
    def xdwrite():
        a(f"""
        s_waitcnt vmcnt(0)
        ds_write_b128 v{xw}, {v(FX,4)} offset:{L_XD}
        ds_write_b128 v{xw}, {v(FX+4,4)} offset:{L_XD+64*144}
        """)
    a(f"""
    s_mov_b64 exec, -1
    @pstamp 3
    s_cmp_eq_u32 s{sW}, 0
    s_cbranch_scc1 M_PK0
    s_lshl_b32 s{sA}, s{sW}, 8
    s_add_u32 s{sA}, s{sA}, {L_C8 - 256}
    v_lshl_add_u32 v{Q+16}, v{lane}, 2, s{sA}
    v_mov_b32 v{Q+8}, 0
    s_waitcnt lgkmcnt(0)
    s_barrier
    @pstamp 4
    s_cmp_gt_u32 s{sW}, 2
    s_cbranch_scc1 M_NOPFX
    """)
    for j in range(3): a(f"ds_read2st64_b32 {v(Q+2*j,2)}, v{Q+16} offset0:{4*j} offset1:{4*j+2}")
    a(f"s_waitcnt lgkmcnt(0)\nv_mov_b32 v{Q+9}, v{Q}")
    for j in range(1, 6): a(f"v_add_u32 v{Q+9+j}, v{Q+8+j}, v{Q+j}")
    for j in range(4): a(f"ds_write2st64_b32 v{Q+16}, v{Q+8+2*j}, v{Q+9+2*j} offset0:{16+4*j} offset1:{16+4*j+2}")
    a("M_NOPFX:")
    a("s_setprio 0"); xdwrite(); pack("M_PB")
    a("s_waitcnt lgkmcnt(0)\ns_barrier\ns_branch M_P4E")
    d0, d1, f0, f1, k0, k1, vL, vR, ks, a4, l0, l1, o0, o1, cn, ci = [Q + i for i in range(16)]
    m0_, B0, m1_, B1 = Q+16, Q+17, Q+18, Q+19
    a("M_PK0:")
    a("s_setprio 0"); pack("M_PA"); a("s_setprio 3")
    a(f"""
    v_lshlrev_b32 v{a4}, 3, v{lane}
    v_lshlrev_b32 v{cn}, 2, v{lane}
    v_add_u32 v{cn}, {L_C8}, v{cn}
    v_sub_u32 v{ci}, 31, v{m}
    v_lshlrev_b32 v{ci}, 2, v{ci}
    s_mov_b32 s75, {f32(4194304.0)}
    s_waitcnt lgkmcnt(0)
    s_barrier
    @pstamp 4
    ds_read_b32 v{ks}, v{nta} offset:{L_NT}
    """)
    for j in range(7): a(f"ds_read2st64_b32 {v(AG+2*j,2)}, v{cn} offset0:{2*j} offset1:{2*j+1}")
    a(f"""
    s_waitcnt lgkmcnt(4)
    v_readfirstlane_b32 s{sL}, v{ks}
    v_add3_u32 v{d0}, v{AG}, v{AG+2}, v{AG+4}
    v_add3_u32 v{d1}, v{AG+1}, v{AG+3}, v{AG+5}
    s_lshr_b32 s{sL}, s{sL}, 8
    s_add_u32 s{sL}, s{sL}, 2
    s_waitcnt lgkmcnt(0)
    v_add3_u32 v{d0}, v{d0}, v{AG+6}, v{AG+8}
    v_add3_u32 v{d1}, v{d1}, v{AG+7}, v{AG+9}
    v_add3_u32 v{d0}, v{d0}, v{AG+10}, v{AG+12}
    v_add3_u32 v{d1}, v{d1}, v{AG+11}, v{AG+13}
    v_cvt_f32_u32 v{f0}, v{d0}
    v_cvt_f32_u32 v{f1}, v{d1}
    M_LS:
    s_add_u32 s{sL}, s{sL}, 1
    s_cmp_gt_u32 s{sL}, {LMAX}
    s_cbranch_scc1 M_P4W
    v_cvt_f32_u32 v{vL}, s{sL}
    v_rcp_f32 v{vR}, v{vL}
    v_add_f32 v{vL}, -0.5, v{vL}
    v_add_f32 v{k0}, v{f0}, v{vL}
    v_add_f32 v{k1}, v{f1}, v{vL}
    v_mul_f32 v{k0}, v{k0}, v{vR}
    v_mul_f32 v{k1}, v{k1}, v{vR}
    v_cvt_u32_f32 v{k0}, v{k0}
    v_cvt_u32_f32 v{k1}, v{k1}
    v_add_u32 v{ks}, v{k0}, v{k1}
    """)
    fillers = [f"v_cvt_f32_u32 v{l0}, v{k0}", f"v_cvt_f32_u32 v{l1}, v{k1}",
               f"v_rcp_f32 v{m0_}, v{l0}", f"v_rcp_f32 v{m1_}, v{l1}",
               f"v_add_f32 v{l0}, v{l0}, v{f0}", f"v_add_f32 v{l1}, v{l1}, v{f1}",
               f"v_add_f32 v{l0}, -0.5, v{l0}", f"v_add_f32 v{l1}, -0.5, v{l1}",
               f"v_mul_f32 v{l0}, v{l0}, v{m0_}", f"v_mul_f32 v{l1}, v{l1}, v{m1_}",
               f"v_cvt_u32_f32 v{l0}, v{l0}", f"v_cvt_u32_f32 v{l1}, v{l1}"]
    for n, stp in enumerate(steps):
        a(f"{fillers[2*n]}\n{fillers[2*n+1]}\nv_add_u32_dpp v{ks}, v{ks}, v{ks} {stp}")
    a(f"""
    v_lshlrev_b32 v{l0}, 2, v{l0}
    v_readlane_b32 s{sA}, v{ks}, 63
    v_lshlrev_b32 v{l1}, 2, v{l1}
    s_cmp_gt_u32 s{sA}, 256
    s_cbranch_scc1 M_LS
    ds_add_rtn_u32 v{o0}, v{l0}, v{k0} offset:{L_CNT}
    ds_add_rtn_u32 v{o1}, v{l1}, v{k1} offset:{L_CNT}
    ds_read_b32 v{cn}, v{ci} offset:{L_CNT}
    v_mul_f32 v{m0_}, s75, v{m0_}
    v_mul_f32 v{m1_}, s75, v{m1_}
    v_cvt_u32_f32 v{m0_}, v{m0_}
    v_cvt_u32_f32 v{m1_}, v{m1_}
    v_add_u32 v{m0_}, 2, v{m0_}
    v_add_u32 v{m1_}, 2, v{m1_}
    v_lshlrev_b32 v{B0}, 2, v{k0}
    v_lshlrev_b32 v{B1}, 2, v{k1}
    v_sub_u32 v{B0}, 1024, v{B0}
    v_sub_u32 v{B1}, 1024, v{B1}
    v_sub_u32 v{l0}, 124, v{l0}
    v_sub_u32 v{l1}, 124, v{l1}
    s_waitcnt lgkmcnt(0)
    v_mov_b32 v{ks}, v{cn}
    """)
    for stp in steps[:5]:
        a(f"s_nop 1\nv_add_u32_dpp v{ks}, v{ks}, v{ks} {stp}")
    a(f"""
    v_sub_u32 v{ks}, v{ks}, v{cn}
    ds_bpermute_b32 v{d0}, v{l0}, v{ks}
    ds_bpermute_b32 v{d1}, v{l1}, v{ks}
    ds_write_b32 v{ci}, v{ks} offset:{L_BAS}
    s_waitcnt lgkmcnt(1)
    v_add_u32 v{o0}, v{o0}, v{d0}
    v_add_u32 v{o1}, v{o1}, v{d1}
    v_lshl_or_b32 v{m0_}, v{o0}, 24, v{m0_}
    v_lshl_or_b32 v{m1_}, v{o1}, 24, v{m1_}
    ds_write2st64_b64 v{a4}, {v(m0_,2)}, {v(m1_,2)} offset0:0 offset1:1
    M_P4W:
    v_mov_b32 v{ks}, s{sL}
    ds_write_b32 v{nta}, v{ks} offset:{L_MX+4}
    """)
    xdwrite()
    u0 = Q
    a(f"""
    s_waitcnt lgkmcnt(0)
    s_barrier
    M_P4E:
    s_setprio 0
    @pstamp 5
    ds_read_b64 {v(u0,2)}, v{nta} offset:{L_MX}
    v_lshlrev_b32 v{tt}, 2, v{m}
    ds_read_b32 v{u0+2}, v{tt} offset:{L_CNT}
    ds_read_b32 v{u0+3}, v{tt} offset:{L_BAS}
    """)
    skip("M_TR")
    for i in ORD:
        a(f"s_mov_b64 exec, {mk(i)}\nds_read_b64 {v(TBv+2*i,2)}, v{NA+i} offset:{L_TB}\nds_read_b32 v{OFv+i}, v{CA+i} offset:{C8O}")
        after("M_TR", i)
    a(f"""
    s_mov_b64 exec, -1
    s_lshl_b32 s{sA}, s{sG}, 5
    s_waitcnt lgkmcnt(12)
    v_readfirstlane_b32 s{sNMAX}, v{u0}
    v_readfirstlane_b32 s{sL}, v{u0+1}
    v_add_u32 v{u0+2}, v{u0+2}, v{u0+3}
    v_cmp_ge_u32 vcc, s{sA}, v{u0+3}
    v_cmp_lt_u32 s[52:53], s{sA}, v{u0+2}
    s_and_b64 s[52:53], s[52:53], vcc
    s_ff1_i32_b32 s{sT}, s52
    s_max_i32 s{sT}, s{sT}, 0
    s_cmp_le_u32 s{sL}, {LMAX}
    s_cbranch_scc1 M_P5
    s_mov_b32 s{sCAP}, 256
    s_branch M_AGAIN
    M_P5:
    """)
    skip("M_SC")
    for i in ORD:
        mm, BB = TBv + 2*i, TBv + 2*i + 1
        a(f"""
        s_mov_b64 exec, {mk(i)}
        s_waitcnt lgkmcnt({2*i + max(0, 5-i)})
        v_add_u32 v{RK+i}, v{RK+i}, v{OFv+i}
        v_lshrrev_b32 v{tt}, 24, v{mm}
        v_mul_u32_u24 v{mm}, v{mm}, v{RK+i}
        v_add_lshl_u32 v{tt}, v{tt}, v{RK+i}, 2
        v_lshrrev_b32 v{mm}, 22, v{mm}
        v_mad_u32_u24 v{tt}, v{mm}, v{BB}, v{tt}
        ds_write2st64_b32 v{tt}, v{RC+i}, v{G+i} offset0:{L_LS//256} offset1:{L_LE//256}
        """)
        after("M_SC", i)
    a(f"""
    s_mov_b64 exec, -1
    v_add_u32 v{T+7}, {L_WL}, v{T+7}
    s_waitcnt lgkmcnt(0)
    s_barrier
    @stamp 3
    @pstamp 6
    s_cmp_eq_u32 s{sT}, 0
    s_cbranch_scc1 M_BEND
    """)
    if "nox" in OPT["abl"]: a(f"s_mov_b32 s{sX+2}, 0")
    S = []
    ef, mf_ = OPT["eflags"], OPT["mflags"]
    def le_read(t, p): return (f"ds_read_b32 v{RP+2*p}, v{vLE} offset:{L_LE+1024*t}", f"le{p}")
    def ls_read(t, dst): return (f"ds_read_b128 {v(dst,4)}, v{vLS} offset:{L_LS+1024*t}", f"ls{t}")
    def m_load(t, p): return (f"buffer_load_dwordx4 {Es(t)}, {v(RP+2*p,2)}, s[{sEM}:{sEM+3}], 0 idxen offen {mf_}", f"M{t}")
    def d_pre(t, p): return [f"v_cmp_le_u32 vcc, s{sDF}, v{RP+2*p}", f"v_and_or_b32 v{vCr+t%5}, v{RP+2*p}, s{sB30}, 1.0"]
    def d_load(t, p): return ["s_mov_b64 exec, vcc", (f"buffer_load_dwordx4 {Es(t)}, {v(RP+2*p,2)}, s[{sE}:{sE+3}], 0 idxen offen {ef}", f"D{t}"), "s_mov_b64 exec, -1"]
    def x_addr(src): return [f"v_and_or_b32 v{S4+i}, v{src+i}, s{sM7}, v{CX+i}" for i in range(4)]
    def x_dma(t, nop=True):
        o = []
        for i in range(4):
            o += [f"s_add_u32 m0, s{sXRB}, {(t&1)*4096+i*1024}"] + (["s_nop 0"] if nop else []) + \
                 [(f"buffer_load_dwordx4 v{S4+i}, s[{sX}:{sX+3}], 0 offen lds", f"X{t}")]
        return o
    def fx_read(t, sx): return (f"ds_read_b128 {v(FX+4*sx,4)}, v{XA+sx} offset:{(t&1)*4096}", f"fx{t}")
    def chain(nh, t):
        Dh = v(D + 16 * nh, 16)
        return [f"v_mfma_f32_32x32x16_bf16 {Dh}, {W3f(nh)}, {Es(t)}, {v(Q+16*nh,16)}"] + \
               [f"v_mfma_f32_32x32x16_bf16 {Dh}, {W1f(sx,nh)}, {v(FX+4*sx,4)}, {Dh}" for sx in range(4)]
    nd, L1, L2 = D, D + 4, D + 8
    def wr(f):
        dst = W + 4*f if f < 8 else (AG + 4*(f-8) if f < 16 else W + 32 + 4*(f-16))
        return (f"ds_read_b128 {v(dst,4)}, v{T+7} offset:{1024*f}", f"w{f}")
    S += [ls_read(0, S4), le_read(0, 0), (f"ds_read_b32 v{nd}, v{vLE} offset:{L_LS}", "nd"), le_read(1, 1), ls_read(1, L1), le_read(2, 2), ls_read(2, L2), le_read(3, 3)]
    S += [("@W", None, "nd"), f"v_and_b32 v{nd}, 127, v{nd}", f"v_mul_u32_u24 v{nd}, 144, v{nd}", f"v_add_u32 v{nd}, v{nd}, v{h16}"] + x_addr(S4)
    S += [(f"ds_read_b128 {v(FX+4*sx,4)}, v{nd} offset:{L_XD+32*sx}", "xd") for sx in range(4)]
    dm = x_dma(0, nop=False)
    wq = [8, 10, 12, 14, 9, 11, 13, 15, 16, 0, 2, 4, 6, 17, 1, 3, 5, 7]
    for i in range(4): S += [dm[2*i], wr(wq[i]), dm[2*i+1]]
    S += [m_load(0, 0)] + d_pre(0, 0) + d_load(0, 0)
    S += [("@W", None, "le3"), m_load(1, 1)] + d_pre(1, 1) + d_load(1, 1) + x_addr(L1)
    dm = x_dma(1, nop=False)
    for i in range(4): S += [dm[2*i], wr(wq[4+i]), dm[2*i+1]]
    S += [m_load(2, 2)] + d_pre(2, 2) + d_load(2, 2) + [m_load(3, 3)]
    S += [le_read(4, 0), le_read(5, 1), le_read(6, 2), ("@W", None, "w15")]
    k = 8
    for nh in range(2):
        for sx in range(4):
            S.append(f"v_mfma_f32_32x32x16_bf16 {v(Q+16*nh,16)}, {v(AG+(sx*2+nh)*4,4)}, {v(FX+4*sx,4)}, {'0' if sx == 0 else v(Q+16*nh,16)}")
            S.append(wr(wq[k])); k += 1
    S += [wr(wq[16]), wr(wq[17])]
    S += [("@W", "D0", None)] + [fx_read(0, sx) for sx in range(4)] + x_addr(L2) + [("@W", None, "fx0")]
    S += chain(0, 0) + x_dma(2) + d_pre(3, 3) + d_load(3, 3) + [m_load(4, 0), m_load(5, 1), m_load(6, 2)]
    if OPT["stamp"]: S += ["@stamp 4", f"s_mov_b32 s90, s{sT}", f"s_mov_b32 s98, s{sL}", "s_memtime s[94:95]", "s_waitcnt lgkmcnt(0)"]
    def phase(nh, t, mf, fill):
        Db, Ab = D + 16*nh, AG + 16*nh
        c = vCr + t % 5
        cp = f"{v(c & ~1, 2)} " + ("op_sel_hi:[1,0]" if c % 2 == 0 else "op_sel:[0,1] op_sel_hi:[1,1]")
        seq = []
        mf = mf + [None] * (5 - len(mf))
        for q in range(2):
            ex = [f"v_exp_f32 v{T+i}, v{Db+8*q+i}" for i in range(8)]
            rc = [f"v_rcp_f32 v{T+i}, v{T+i}" for i in range(8)]
            if OPT["pk"]:
                ad = [f"v_pk_add_f32 {v(T+2*i,2)}, {v(T+2*i,2)}, {cp}" for i in range(4)]
                fm = [f"v_pk_fma_f32 {v(Ab+8*q+2*i,2)}, {v(Db+8*q+2*i,2)}, {v(T+2*i,2)}, {v(Ab+8*q+2*i,2)}" for i in range(4)]
                if t == 0: fm = [f"v_pk_mul_f32 {v(Ab+8*q+2*i,2)}, {v(Db+8*q+2*i,2)}, {v(T+2*i,2)}" for i in range(4)]
            else:
                ad = [f"v_add_f32 v{T+i}, v{c}, v{T+i}" for i in range(8)]
                fm = [f"v_fmac_f32 v{Ab+8*q+i}, v{Db+8*q+i}, v{T+i}" for i in range(8)]
                if t == 0: fm = [f"v_mul_f32 v{Ab+8*q+i}, v{Db+8*q+i}, v{T+i}" for i in range(8)]
            if q == 0: seq += [mf[0]] + ex[:3] + [mf[1]] + ex[3:] + ad + [mf[2]] + rc[:3] + [mf[3]] + rc[3:] + fm
            else: seq += [mf[4]] + ex + ad + rc + fm
        res = []; n = 0
        for l in seq:
            if l is None: continue
            res.append(l)
            if l.startswith(("v_exp", "v_rcp")):
                res += fill.get(n, []); n += 1
        if "nocomp" in OPT["abl"]:
            r2 = []
            for l in res:
                if isinstance(l, str) and l.startswith(("v_exp", "v_rcp", "v_pk", "v_add_f32", "v_fmac", "v_mfma")): continue
                r2.append(l)
                if isinstance(l, str) and " m0," in l: r2.append("s_nop 0")
            res = r2
        return res
    mnext = 7
    for t in range(LMAX):
        ms = []
        while not YM and len(ms) < MPER and mnext < LMAX and mnext - 16 <= t - 1: ms.append(mnext); mnext += 1
        assert YM or t + 4 >= LMAX or t + 4 < mnext - len(ms) or t + 4 in ms
        fill = {}
        pos = 0
        for j, mt in enumerate(ms): fill[pos] = [le_read(mt, j)]; pos += 1
        if t + 4 < LMAX: fill[pos] = [le_read(t + 4, 3)]; pos += 1
        if t + 3 < LMAX: fill[pos] = [ls_read(t + 3, S4)]; pos += 1
        for j, mt in enumerate(ms):
            fill[10 + 2*j] = ([("@W", None, f"le{len(ms)-1}")] if j == 0 else []) + [m_load(mt, j)]
        if t + 1 < LMAX:
            fill[16] = [("@W", f"X{t+1}", None)]
            for sx in range(4): fill[17+sx] = [fx_read(t + 1, sx)]
        if t + 3 < LMAX:
            xa = x_addr(S4)
            fill[24] = [("@W", None, f"ls{t+3}"), xa[0]]; fill[25] = [xa[1]]; fill[26] = [xa[2]]; fill[27] = [xa[3]]
        if int(OPT["prio"]) == 1: S.append("s_setprio 1")
        S += phase(0, t, chain(1, t), fill)
        if int(OPT["prio"]) == 1: S.append("s_setprio 0")
        fill = {}
        if t + 1 < LMAX: fill[0] = [("@W", None, f"fx{t+1}")]
        if t + 3 < LMAX:
            dm = x_dma(t + 3, nop=False)
            for i in range(8): fill[1+i] = [dm[i]]
        if t + 4 < LMAX:
            dp = d_pre(t + 4, 3)
            fill[9] = [dp[0]]; fill[12] = d_load(t + 4, 3); fill[13] = [dp[1]]
        fill[31] = [f"s_cmp_eq_u32 s{sT}, {t+1}"]
        S += phase(1, t, chain(0, t + 1) if t + 1 < LMAX else [], fill)
        if t + 1 < LMAX: S.append("s_cbranch_scc1 M_FLUSH")
    if YM:
        S2 = []
        for it in S:
            txt = it[0] if isinstance(it, tuple) else it
            if isinstance(it, tuple) and it[0] != "@W" and it[1] and it[1].startswith("M"): continue
            if txt.startswith(("s_mov_b64 exec", "v_cmp_le_u32 vcc")): continue
            S2.append(it)
        S = S2
    emit(resolve(S))
    a("M_FLUSH:\n@stamp 5\n@estamp 1\n@cyc")
    a(f"""
    v_and_b32 v{T}, 31, v0
    v_mul_u32_u24 v{T}, 272, v{T}
    v_add3_u32 v{T}, v{T}, v{h16}, s{sXRB}
    s_waitcnt vmcnt(0)
    """)
    for i in range(8):
        a(f"ds_write_b128 v{T}, {v(AG+4*i,4)} offset:{32*i}")
    nn, kk, ca0, ca1, ca2, zr, l16, oa, ca3, fa = T+2, T+1, S4, S4+1, S4+2, S4+3, T+7, T+5, T+6, T+3
    A0, A1, A2, OWN, PAR = D, D + 16, Q, Q + 16, Q + 24
    a(f"""
    M_BEND:
    s_lshr_b32 s{sA}, s{sW}, 1
    s_lshl_b32 s{sA}, s{sA}, 5
    v_and_b32 v{nn}, 31, v0
    v_add_u32 v{nn}, s{sA}, v{nn}
    v_and_b32 v{ca0}, 1, v0
    v_lshrrev_b32 v{ca1}, 1, v{nn}
    v_lshl_add_u32 v{ca2}, v{ca0}, 6, v{ca1}
    v_lshlrev_b32 v{ca2}, 3, v{ca2}
    ds_read_b64 {v(T,2)}, v{ca2} offset:{L_TB}
    v_mul_u32_u24 v{T+4}, 144, v{nn}
    v_add_u32 v{T+4}, v{T+4}, v{h16}
    v_and_b32 v{l16}, 63, v0
    v_lshlrev_b32 v{l16}, 4, v{l16}
    s_lshl_b32 s{sA}, s{sSB}, 13
    s_add_u32 s{sA}, s{sA}, {L_WL + 18*1024}
    v_add_u32 v{oa}, s{sA}, v{l16}
    s_lshl_b32 s{sB}, s{sSB}, 11
    v_add_u32 v{ca3}, s{sB}, v{oa}
    v_subrev_u32 v{fa}, s{sB}, v{oa}
    s_waitcnt vmcnt(0)
    """)
    for sx in range(4):
        a(f"ds_read_b128 {v(FX+4*sx,4)}, v{T+4} offset:{L_XD+32*sx}\nds_read_b128 {v(W+4*sx,4)}, v{oa} offset:{1024*sx}")
    a(f"""
    ds_read_b128 {v(W+16,4)}, v{ca3} offset:4096
    ds_read_b128 {v(W+20,4)}, v{ca3} offset:5120
    ds_read_b128 {v(W+24,4)}, v{fa} offset:6144
    ds_read_b128 {v(W+28,4)}, v{fa} offset:7168
    v_cmp_ne_u32 vcc, 0, v{ca0}
    v_mov_b32 v{ca0}, s{sS0}
    v_mov_b32 v{ca2}, s{sS1}
    v_mov_b32 v{zr}, s{sS2}
    v_cndmask_b32 v{ca0}, v{ca0}, v{ca2}, vcc
    v_cndmask_b32 v{ca2}, v{ca2}, v{zr}, vcc
    v_sub_u32 v{ca1}, v{ca1}, v{ca0}
    v_and_b32 v{ca1}, 63, v{ca1}
    v_add_u32 v{ca1}, v{ca1}, v{ca0}
    v_cmp_lt_u32 vcc, v{ca1}, v{ca2}
    v_lshlrev_b32 v{oa}, 7, v{ca1}
    v_lshl_add_u32 v{oa}, v{h16}, 1, v{oa}
    v_mov_b32 v{zr}, 0x80000000
    v_cndmask_b32 v{oa}, v{zr}, v{oa}, vcc
    s_lshl_b32 s{sA}, s{sSB}, 7
    s_add_u32 s{sA}, s{sA}, {L_XR}
    s_movk_i32 s{sB}, 0x3fc
    s_movk_i32 s75, 0x3f8
    s_waitcnt lgkmcnt(12)
    v_lshrrev_b32 v{ca0}, 24, v{T}
    v_mul_u32_u24 v{ca0}, 272, v{ca0}
    v_lshl_add_u32 v{ca0}, v{h16}, 1, v{ca0}
    v_add_u32 v{ca0}, s{sA}, v{ca0}
    v_mov_b32 v{zr}, {L_ZR}
    v_cmp_gt_u32 s[56:57], s{sB}, v{kk}
    v_cmp_gt_u32 s[58:59], s75, v{kk}
    v_add_u32 v{ca1}, 272, v{ca0}
    v_add_u32 v{ca2}, 544, v{ca0}
    v_add_u32 v{ca3}, 816, v{ca0}
    v_cmp_gt_u32 vcc, 0x400, v{kk}
    v_cndmask_b32 v{ca1}, v{zr}, v{ca1}, s[56:57]
    v_cndmask_b32 v{ca2}, v{zr}, v{ca2}, s[58:59]
    v_cndmask_b32 v{ca0}, v{zr}, v{ca0}, vcc
    v_cmp_gt_u32 vcc, 0x3f4, v{kk}
    @estamp 2
    s_barrier
    @estamp 3
    """)
    offs = (0, 16, 64, 80)
    for i in range(4):
        for buf, ca in ((A0, ca0), (A1, ca1), (A2, ca2)):
            a(f"ds_read_b128 {v(buf+4*i,4)}, v{ca} offset:{offs[i]}")
    a(f"""
    s_lshl_b32 s{sA}, s{sW}, 11
    v_add_u32 v{fa}, s{sA}, v{l16}
    s_mov_b32 s74, {f32(-1.0/LOG2E)}
    s_mov_b32 s75, {f32(-1.0/LOG2E)}
    s_waitcnt lgkmcnt(12)
    """)
    srd(a, sOUT, 8, 3200000)
    for st in range(4):
        a(f"v_mfma_f32_32x32x16_bf16 {v(E,16)}, {v(W+4*st,4)}, {v(FX+4*st,4)}, {'0' if st == 0 else v(E,16)}")
    for i in range(4):
        a(f"s_waitcnt lgkmcnt({9-3*i})")
        for j in range(4): a(f"v_add_f32 v{A0+4*i+j}, v{A0+4*i+j}, v{A1+4*i+j}")
        for j in range(4): a(f"v_add_f32 v{A0+4*i+j}, v{A0+4*i+j}, v{A2+4*i+j}")
    a(f"""
    s_cbranch_vccz M_SUMD
    s_movk_i32 s{sA}, 0x3f4
    M_SUML:
    s_mov_b64 exec, vcc
    """)
    for i in range(4):
        a(f"ds_read_b128 {v(A1+4*i,4)}, v{ca3} offset:{offs[i]}")
    a(f"s_sub_u32 s{sA}, s{sA}, 4\nv_add_u32 v{ca3}, 272, v{ca3}\ns_waitcnt lgkmcnt(0)")
    for i in range(8): a(f"v_pk_add_f32 {v(A0+2*i,2)}, {v(A0+2*i,2)}, {v(A1+2*i,2)}")
    a(f"""
    s_mov_b64 exec, -1
    v_cmp_gt_i32 vcc, s{sA}, v{kk}
    s_nop 4
    s_cbranch_vccnz M_SUML
    M_SUMD:
    s_cmp_le_u32 s{sNMAX}, s{sCAP}
    s_cbranch_scc1 M_EPI
    """)
    srd_off(a, sWF, 10, WS_SP, 2048 * 4096)
    a(f"""
    s_lshl_b32 s{sA}, s2, 3
    s_add_u32 s{sA}, s{sA}, s{sW}
    s_lshl_b32 s{sA}, s{sA}, 12
    s_cmp_eq_u32 s{sBASE}, 0
    s_cbranch_scc1 M_NOLD
    """)
    for i in range(4):
        a(f"buffer_load_dwordx4 {v(A1+4*i,4)}, v{l16}, s[{sWF}:{sWF+3}], s{sA} offen offset:{1024*i} sc0 sc1")
    a("s_waitcnt vmcnt(0)")
    for i in range(8): a(f"v_pk_add_f32 {v(A0+2*i,2)}, {v(A0+2*i,2)}, {v(A1+2*i,2)}")
    a(f"""
    M_NOLD:
    s_add_u32 s{sBASE}, s{sBASE}, s{sCAP}
    s_cmp_ge_u32 s{sBASE}, s{sNMAX}
    s_cbranch_scc1 M_EPI
    """)
    for i in range(4):
        a(f"buffer_store_dwordx4 {v(A0+4*i,4)}, v{l16}, s[{sWF}:{sWF+3}], s{sA} offen offset:{1024*i} sc0 sc1")
    a(f"""
    M_AGAIN:
    s_waitcnt vmcnt(0) lgkmcnt(0)
    s_barrier
    s_branch M_BATCH
    M_EPI:
    """)
    for i in range(8): a(f"v_pk_mul_f32 {v(A0+2*i,2)}, {v(A0+2*i,2)}, s[74:75]")
    for i in range(8): a(f"v_cvt_pk_bf16_f32 v{OWN+i}, v{A0+2*i}, v{A0+2*i+1}")
    a(f"""
    ds_write_b128 v{fa}, {v(OWN,4)} offset:{L_FE}
    ds_write_b128 v{fa}, {v(OWN+4,4)} offset:{L_FE+1024}
    v_xor_b32 v{fa}, 0x800, v{fa}
    v_mfma_f32_32x32x16_bf16 {v(E,16)}, {v(W+16,4)}, {v(OWN,4)}, {v(E,16)}
    v_mfma_f32_32x32x16_bf16 {v(E,16)}, {v(W+20,4)}, {v(OWN+4,4)}, {v(E,16)}
    s_lshl_b32 s{sA}, s{sSB}, 6
    s_mov_b32 s74, {f32(-LOG2E)}
    s_mov_b32 s75, {f32(-LOG2E)}
    s_waitcnt lgkmcnt(0)
    s_barrier
    @estamp 4
    ds_read_b128 {v(PAR,4)}, v{fa} offset:{L_FE}
    ds_read_b128 {v(PAR+4,4)}, v{fa} offset:{L_FE+1024}
    s_waitcnt lgkmcnt(1)
    v_mfma_f32_32x32x16_bf16 {v(E,16)}, {v(W+24,4)}, {v(PAR,4)}, {v(E,16)}
    s_waitcnt lgkmcnt(0)
    v_mfma_f32_32x32x16_bf16 {v(E,16)}, {v(W+28,4)}, {v(PAR+4,4)}, {v(E,16)}
    s_nop 11
    """)
    for q in range(2):
        b = 8 * q
        for i in range(4): a(f"v_pk_mul_f32 {v(AG+b+2*i,2)}, {v(E+b+2*i,2)}, s[74:75]")
        for i in range(8): a(f"v_exp_f32 v{AG+b+i}, v{AG+b+i}")
        for i in range(4): a(f"v_pk_add_f32 {v(AG+b+2*i,2)}, {v(AG+b+2*i,2)}, 1.0 op_sel_hi:[1,0]")
        for i in range(8): a(f"v_rcp_f32 v{AG+b+i}, v{AG+b+i}")
        for i in range(4): a(f"v_pk_mul_f32 {v(AG+b+2*i,2)}, {v(E+b+2*i,2)}, {v(AG+b+2*i,2)}")
        for i in range(4): a(f"v_cvt_pk_bf16_f32 v{D+4*q+i}, v{AG+b+2*i}, v{AG+b+2*i+1}")
        a(f"buffer_store_dwordx4 {v(D+4*q,4)}, v{oa}, s[{sOUT}:{sOUT+3}], s{sA} offen offset:{16*q}")
    if OPT["stamp"]: a("@estamp 5\ns_waitcnt vmcnt(0)\n@stamp 6")
    stamp_out(8, f"s_lshl_b32 s74, s2, 3\ns_add_u32 s74, s74, s{sW}", 10, 0x80000)
    a("M_END:\ns_endpgm")
    return R.n

hdr = f"""; MPNN edge-MLP + segment-sum + node update, two launches:
; @launch kernel=sort_kernel grid=(253,1,1) block=(1024,1,1) lds={SORT_LDS}
; @launch kernel=main_kernel grid=(256,1,1) block=(512,1,1) lds={MAIN_LDS}
.amdgcn_target "amdgcn-amd-amdhsa--gfx950"
.text
.globl sort_kernel
.type sort_kernel,@function
.globl main_kernel
.type main_kernel,@function
"""
gen_sort()
nv = gen_main()
txt = hdr + a.text() + '.section .rodata,"a"\n.p2align 6\n' + kdesc("sort_kernel", 56) + ".p2align 6\n" + kdesc("main_kernel", 256, 100 if OPT["stamp"] else 96)
open(sys.argv[1], "w").write(txt)
print("main vgprs", nv, "lds", MAIN_LDS, SORT_LDS)
```

```python
import sys, struct
from asmlib import *

OPT = dict(abl="", stamp=False, eflags="", mflags="", idxflags="", stflags="sc1", emst="sc1", eld="", pk=True, M0=1920, empf=True, mper=3, Y=False, xpf=0, mpf1=0, mpf2=0, prio=0, oflags="", otflags="", epf=0, xw=0)
for arg in sys.argv[2:]:
    k, val = arg.split("=")
    OPT[k] = {"True": True, "False": False}.get(val, val.replace("+", " "))
M0 = int(OPT["M0"]); MPER = int(OPT["mper"])
assert M0 % 32 == 0 and M0 <= 2048 and 3200 - M0 <= 2048

NCH, CH = 250, 3200
WS_REC, WS_O, WS_WF, WS_ST, WS_SP, WS_EM = 0, 0x400000, 0x600000, 0x700000, 0x1000000, 0x2000000
LOG2E = 1.4426950408889634
def f32(x): return "0x%08x" % struct.unpack("<I", struct.pack("<f", x))[0]

a = Asm()
a.stamps = OPT["stamp"]
def stamp_out(n, wid_sgpr_expr, base_sgpr, region):
    if not OPT["stamp"]: return
    a("s_waitcnt lgkmcnt(0)")
    a(wid_sgpr_expr)
    a(f"s_lshl_b32 s74, s74, 6\ns_add_u32 s74, s74, {WS_ST+region}\ns_add_u32 s92, s{base_sgpr}, s74\ns_addc_u32 s93, s{base_sgpr+1}, 0\nv_mov_b32 v0, 0")
    for i in range(n):
        a(f"v_mov_b32 v1, s{76+2*i}\nglobal_store_dword v0, v1, s[92:93] offset:{4*i}")
    if n == 8: a("s_sub_u32 s96, s96, s94\nv_mov_b32 v1, s96\nglobal_store_dword v0, v1, s[92:93] offset:32\nv_mov_b32 v1, s98\nglobal_store_dword v0, v1, s[92:93] offset:36")
def emit(l): a("\n".join(l))

def resolve(stream):
    out = []; vm = []; lg = []
    for it in stream:
        if isinstance(it, tuple) and it[0] == "@W":
            parts = []
            if it[1] is not None:
                idx = max(i for i, t in enumerate(vm) if t == it[1]); n = len(vm) - 1 - idx
                assert n <= 63; parts.append(f"vmcnt({n})")
            if it[2] is not None:
                idx = max(i for i, t in enumerate(lg) if t == it[2]); n = len(lg) - 1 - idx
                parts.append(f"lgkmcnt({min(n, 15)})")
            out.append("s_waitcnt " + " ".join(parts)); continue
        txt, tag = it if isinstance(it, tuple) else (it, None)
        if txt.startswith("buffer_"): vm.append(tag)
        if txt.startswith("ds_"): lg.append(tag)
        out.append(txt)
    return out

S_SRT = 4224
S_E = 17408
YM = OPT["Y"]
SORT_LDS = S_E + (0 if YM else M0 * 32)
def gen_sort():
    a(".p2align 8\nsort_kernel:")
    a(f"""
    s_cmp_ge_u32 s2, 253
    s_cbranch_scc1 S_END
    s_load_dwordx4 s[4:7], s[0:1], 16
    s_load_dwordx2 s[8:9], s[0:1], 8
    s_load_dwordx2 s[10:11], s[0:1], 64
    s_load_dwordx4 s[12:15], s[0:1], 32
    s_load_dwordx2 s[44:45], s[0:1], 0
    s_cmp_ge_u32 s2, 250
    s_cbranch_scc1 S_WPREP
    @stamp 0
    v_lshlrev_b32 v2, 2, v0
    v_mov_b32 v3, 0
    ds_write_b32 v2, v3
    s_mul_i32 s3, s2, 12800
    v_lshlrev_b32 v44, 4, v0
    v_add_u32 v1, s3, v44
    v_cmp_gt_u32 vcc, 800, v0
    s_mov_b64 s[40:41], vcc
    v_mov_b32 v12, 0x80000000
    v_cndmask_b32 v1, v12, v1, vcc
    v_lshrrev_b32 v34, 6, v0
    v_lshlrev_b32 v35, 2, v34
    v_readfirstlane_b32 s37, v34
    s_waitcnt lgkmcnt(0)
    """)
    srd(a, 20, 6, 3200000)
    fl = OPT["idxflags"]
    a(f"buffer_load_dwordx4 v[4:7], v1, s[20:23], 0 offen {fl}")
    srd(a, 16, 4, 3200000)
    a(f"buffer_load_dwordx4 v[8:11], v1, s[16:19], 0 offen {fl}")
    srd(a, 24, 10, 0x800000)
    a(f"""
    v_mov_b32 v15, 1
    v_cmp_le_u32 vcc, {M0//4}, v0
    v_mov_b32 v13, 2048
    v_subrev_u32 v14, {M0}, v2
    v_cndmask_b32 v13, 0, v13, vcc
    v_cndmask_b32 v16, v2, v14, vcc
    v_mov_b32 v47, {(2048-M0)*4}
    v_cndmask_b32 v47, 0, v47, vcc
    v_lshlrev_b32 v16, 21, v16
    s_lshl_b32 s3, s2, 14
    v_add3_u32 v47, v47, v44, s3
    v_cndmask_b32 v47, v12, v47, s[40:41]
    v_and_b32 v45, 0x1fe, v0
    v_lshlrev_b32 v45, 11, v45
    v_and_b32 v46, 1, v0
    v_lshl_or_b32 v45, v46, 3, v45
    v_lshrrev_b32 v46, 9, v0
    v_lshl_or_b32 v45, v46, 2, v45
    v_mul_u32_u24 v46, {2048-M0}, v46
    s_and_b32 s39, s2, 7
    s_lshl_b32 s39, s39, 5
    s_lshr_b32 s38, s2, 3
    s_add_u32 s39, s39, s38
    s_lshl_b32 s39, s39, 4
    s_add_u32 s39, s39, {WS_O}
    s_barrier
    """)
    srd(a, 28, 8, 25600000)
    npiece = 0 if YM else M0 // 32
    nr = (npiece + 15) // 16
    a(f"s_mul_i32 s42, s2, {CH*32}\ns_lshl_b32 s43, s37, 10")
    for r in range(nr):
        if (r + 1) * 16 > npiece:
            a(f"s_cmp_ge_u32 s37, {npiece - 16*r}\ns_cbranch_scc1 S_DMAD")
        a(f"s_add_u32 m0, s43, {S_E + r*16384}\ns_nop 0\nbuffer_load_dwordx4 v44, s[28:31], s42 offen {OPT['eld']} lds\ns_add_u32 s42, s42, 16384")
    a("S_DMAD:")
    a(f"""
    s_waitcnt vmcnt({nr if npiece % 16 == 0 else nr-1})
    @stamp 1
    """)
    for i in range(4):
        a(f"""
        v_mul_u32_u24 v{20+i}, 1342, v{4+i}
        v_lshrrev_b32 v{20+i}, 16, v{20+i}
        v_lshl_add_u32 v{20+i}, v{20+i}, 2, v13
        """)
    a("s_mov_b64 exec, s[40:41]")
    for i in range(4):
        a(f"ds_add_rtn_u32 v{24+i}, v{20+i}, v15")
    a(f"s_mov_b64 exec, -1")
    XPF = int(OPT["xpf"])
    def sort_xpf():
        srd(a, 48, 44, 3200000)
        a(f"""
        s_lshr_b32 s46, s2, 3
        s_mul_i32 s46, s46, 102400
        v_lshlrev_b32 v52, 7, v0
        v_cmp_gt_u32 vcc, {XPF}, v0
        s_nop 1
        v_cndmask_b32 v52, v12, v52, vcc
        buffer_load_dword v53, v52, s[48:51], s46 offen
        """)
    for i in range(4):
        a(f"""
        v_and_b32 v{28+i}, 63, v{4+i}
        v_lshl_or_b32 v{28+i}, v{8+i}, 6, v{28+i}
        v_add_u32 v17, {i<<21}, v16
        v_or_b32 v{28+i}, v{28+i}, v17
        """)
    a("""
    s_waitcnt lgkmcnt(0)
    s_barrier
    @stamp 2
    ds_read_b32 v32, v2
    """)
    if XPF: sort_xpf()
    a("""
    s_waitcnt lgkmcnt(0)
    v_mov_b32 v33, v32
    """)
    wave_scan(a, 33)
    a("""
    s_mov_b32 exec_lo, 0
    s_mov_b32 exec_hi, 0x80000000
    ds_write_b32 v35, v33 offset:4096
    s_mov_b64 exec, -1
    v_and_b32 v36, 15, v0
    v_lshlrev_b32 v36, 2, v36
    s_waitcnt lgkmcnt(0)
    s_barrier
    ds_read_b32 v37, v36 offset:4096
    s_waitcnt lgkmcnt(0)
    v_mov_b32 v38, v37
    """)
    for sh in (1, 2, 4, 8):
        a(f"s_nop 1\nv_add_u32_dpp v38, v38, v38 row_shr:{sh} row_mask:0xf bank_mask:0xf bound_ctrl:0")
    st = OPT["stflags"]
    a(f"""
    v_sub_u32 v38, v38, v37
    s_nop 0
    v_readlane_b32 s38, v38, s37
    v_sub_u32 v33, v33, v32
    s_nop 1
    v_add_u32 v33, s38, v33
    ds_write_b32 v2, v33
    v_add_u32 v39, v33, v46
    v_lshl_or_b32 v39, v32, 16, v39
    buffer_store_dword v39, v45, s[24:27], s39 offen {OPT['otflags']}
    s_waitcnt lgkmcnt(0)
    s_barrier
    @stamp 3
    s_mov_b64 exec, s[40:41]
    """)
    for i in range(4):
        a(f"ds_read_b32 v{40+i}, v{20+i}")
    for i in range(4):
        a(f"""
        s_waitcnt lgkmcnt({3})
        v_add_lshl_u32 v{40+i}, v{40+i}, v{24+i}, 2
        ds_write_b32 v{40+i}, v{28+i} offset:{S_SRT}
        """)
    no = 0 if YM else (M0 + 511) // 512
    a(f"""
    s_mov_b64 exec, -1
    v_lshrrev_b32 v4, 1, v0
    v_lshlrev_b32 v4, 2, v4
    v_and_b32 v5, 1, v0
    v_lshlrev_b32 v5, 4, v5
    """)
    srd_off(a, 28, 10, WS_EM, NCH * 131072)
    a(f"""
    s_lshl_b32 s42, s2, 17
    v_cmp_gt_u32 vcc, {(M0 - 512*(no-1))*2}, v0
    s_waitcnt vmcnt({2 if XPF else 1}) lgkmcnt(0)
    s_barrier
    @stamp 4
    v_cndmask_b32 v6, v12, v44, vcc
    """)
    for r in range(no):
        a(f"ds_read_b32 v{8+r}, v4 offset:{S_SRT + r*2048}")
    a(f"s_mov_b64 exec, s[40:41]\nds_read_b128 v[48:51], v44 offset:{S_SRT}\ns_mov_b64 exec, -1")
    for r in range(no):
        a(f"""
        s_waitcnt lgkmcnt({no})
        v_lshrrev_b32 v{8+r}, 21, v{8+r}
        v_lshl_add_u32 v{8+r}, v{8+r}, 5, v5
        ds_read_b128 v[{16+4*r}:{19+4*r}], v{8+r} offset:{S_E}
        """)
    a(f"s_waitcnt lgkmcnt({no})\nbuffer_store_dwordx4 v[48:51], v47, s[24:27], 0 offen {st}")
    for r in range(no):
        a(f"""
        s_waitcnt lgkmcnt({no-1-r})
        buffer_store_dwordx4 v[{16+4*r}:{19+4*r}], v{6 if r == no-1 else 44}, s[28:31], s42 offen {OPT['emst']}
        s_add_u32 s42, s42, 16384
        """)
    if OPT["stamp"]: a("s_waitcnt vmcnt(0)\n@stamp 5")
    stamp_out(6, "s_lshl_b32 s74, s2, 4\ns_add_u32 s74, s74, s37", 10, 0)
    a("s_endpgm")
    a(f"""
    S_WPREP:
    v_lshrrev_b32 v1, 6, v0
    s_nop 0
    v_readfirstlane_b32 s3, v1
    s_sub_u32 s16, s2, 250
    s_lshl_b32 s16, s16, 4
    s_add_u32 s3, s3, s16
    s_cmp_ge_u32 s3, 34
    s_cbranch_scc1 S_END
    v_and_b32 v1, 31, v0
    v_bfe_u32 v2, v0, 5, 1
    s_waitcnt lgkmcnt(0)
    s_mov_b32 s22, 18432
    s_mov_b32 s23, 0x20000
    s_cmp_ge_u32 s3, 18
    s_cbranch_scc1 S_WUPD
    s_mov_b32 s20, s12
    s_mov_b32 s21, s13
    s_lshr_b32 s30, s3, 1
    s_and_b32 s31, s3, 1
    s_lshl_b32 s31, s31, 5
    v_add_u32 v3, s31, v1
    s_mov_b32 s34, {f32(-LOG2E)}
    s_branch S_WLOAD
    S_WUPD:
    s_mov_b32 s20, s14
    s_mov_b32 s21, s15
    s_mov_b32 s22, 16384
    s_sub_u32 s35, s3, 18
    s_and_b32 s30, s35, 7
    s_lshr_b32 s31, s35, 3
    s_lshl_b32 s31, s31, 5
    v_bfe_u32 v4, v1, 2, 1
    v_lshlrev_b32 v4, 4, v4
    v_lshrrev_b32 v5, 3, v1
    v_lshl_add_u32 v4, v5, 2, v4
    v_and_b32 v5, 3, v1
    v_add3_u32 v3, v4, v5, s31
    s_mov_b32 s34, 1.0
    S_WLOAD:
    s_lshl_b32 s30, s30, 4
    v_lshlrev_b32 v4, 3, v2
    v_add_u32 v4, s30, v4
    v_lshlrev_b32 v4, 7, v4
    v_lshl_add_u32 v4, v3, 1, v4
    """)
    for i in range(8):
        a(f"buffer_load_ushort v{8+i}, v4, s[20:23], 0 offen offset:{i*128}")
    srd(a, 24, 10, 0x800000)
    a(f"""
    v_and_b32 v5, 63, v0
    v_lshlrev_b32 v5, 4, v5
    s_lshl_b32 s35, s3, 10
    s_add_u32 s35, s35, {WS_WF}
    s_waitcnt vmcnt(0)
    """)
    for i in range(8):
        a(f"v_lshlrev_b32 v{8+i}, 16, v{8+i}\nv_mul_f32 v{8+i}, s34, v{8+i}")
    for i in range(4):
        a(f"v_cvt_pk_bf16_f32 v{16+i}, v{8+2*i}, v{9+2*i}")
    a("""
    buffer_store_dwordx4 v[16:19], v5, s[24:27], s35 offen
    S_END:
    s_endpgm
    """)

LMAX = 18
L_TB = 0
L_CNT = 1024
L_NT = L_CNT + 128
L_MX = L_NT + 16
L_BAS = L_MX + 16
L_ZR = 1536
L_LS = 2048
LSZ = LMAX * 1024
L_LE = L_LS + LSZ
L_XD = L_LE + LSZ
L_WL = L_XD + 128 * 144
L_XR = L_WL + 34 * 1024
XRS = 8704
MAIN_LDS = L_XR + 8 * XRS
assert MAIN_LDS <= 163840 and L_XR % 256 == 0
GLS = 2176
L_C8 = 114688
C8O = 4096
assert L_XR + 8 * GLS <= L_C8 and L_C8 % 4096 == 0
L_FE = L_LS
DUMMY = 0xC0000000
DFLAG = 1 << 24

def gen_main():
    R = Regs("v", 1, 256)
    vLS = R.alloc("vLS"); vLE = R.alloc("vLE")
    vCr = R.alloc("vCr", 5)
    RP = R.alloc("RP", 8, 2)
    XA = R.alloc("XA", 4); CX = R.alloc("CX", 4)
    S4 = R.alloc("S4", 4, 4); T = R.alloc("T", 8, 4)
    FX = R.alloc("FX", 16, 4); E = R.alloc("E", 64, 4)
    D = R.alloc("D", 32, 4); Q = R.alloc("Q", 32, 4); AG = R.alloc("AG", 32, 4); W = R.alloc("W", 40, 4)
    h16 = RP + 1
    def W1f(ks, nh): return v(W + (ks * 2 + nh) * 4, 4)
    def W3f(nh): return v(W + 32 + nh * 4, 4)
    def Es(t): return v(E + 4 * (t % 16), 4)
    sX, sE, sREC, sEM, sWF, sOUT = 16, 20, 24, 28, 32, 36
    sW, sSB, sS0, sS1, sN, sBASE, sCNT, sT, sXRB, sA, sB, sCAP = 40, 41, 42, 43, 44, 45, 46, 47, 48, 49, 50, 51
    sS2, sGL, sNMAX, sG, sL, sM7, sB30, sDF = 70, 71, 72, 73, 12, 13, 14, 15
    lane, kk12, c0, c1, g0, g1, p0, p1, xw, tt, qa, one, nta, fl0 = [E + i for i in range(14)]
    G, RC, NA, RK = D, D + 8, D + 16, D + 24
    TBv = E + 16
    OFv = E + 32
    KK = E + 40
    TM = E + 48
    CA = E + 56
    t0, t1, t2, t3, t4, m, h = T, T+1, T+2, T+3, T+4, T+5, T+6
    def mk(i): return f"s[{54+2*i}:{55+2*i}]"
    ORD = list(range(7, -1, -1))
    def skip(lab):
        a(f"s_cmp_le_u32 s{sCNT}, 384\ns_cbranch_scc1 {lab}6\ns_cmp_le_u32 s{sCNT}, 448\ns_cbranch_scc1 {lab}7")
    def after(lab, i):
        if i >= 6: a(f"{lab}{i}:")
    ne = 0 if "noe" in OPT["abl"] else 1
    def consts():
        a(f"""
        s_sub_u32 s{sE}, s6, {DFLAG*32}
        s_subb_u32 s{sE+1}, s7, 0
        s_or_b32 s{sE+1}, s{sE+1}, {32<<16}
        s_mov_b32 s{sE+2}, {(DFLAG + 800000) * ne}
        s_mov_b32 s{sE+3}, 0x20000
        s_add_u32 s{sEM}, s10, {WS_EM}
        s_addc_u32 s{sEM+1}, s11, 0
        s_or_b32 s{sEM+1}, s{sEM+1}, {32<<16}
        s_mov_b32 s{sEM+2}, {NCH*4096 * (0 if "nom" in OPT["abl"] else 1)}
        s_mov_b32 s{sEM+3}, 0x20000
        s_sub_u32 s{sG}, 11, s{sW}
        s_cmp_lt_u32 s{sW}, 4
        s_cselect_b32 s{sG}, s{sW}, s{sG}
        s_mul_i32 s{sXRB}, s{sG}, {XRS}
        s_add_u32 s{sXRB}, s{sXRB}, {L_XR}
        s_mov_b32 s{sM7}, 0xffffff80
        s_mov_b32 s{sB30}, 0x40000000
        s_mov_b32 s{sDF}, {DFLAG}
        v_lshlrev_b32 v{RP+1}, 4, v{h}
        v_lshlrev_b32 v{RP+3}, 4, v{h}
        v_lshlrev_b32 v{RP+5}, 4, v{h}
        v_lshlrev_b32 v{RP+7}, 4, v{h}
        v_lshrrev_b32 v{t0}, 3, v{lane}
        s_lshl_b32 s{sA}, s{sG}, 7
        v_lshl_add_u32 v{vLS}, v{t0}, 4, s{sA}
        v_lshl_add_u32 v{vLE}, v{m}, 2, s{sA}
        v_and_b32 v{t1}, 4, v{t0}
        v_and_b32 v{t2}, 7, v{lane}
        v_xor_b32 v{t1}, v{t1}, v{t2}
        v_lshlrev_b32 v{CX}, 4, v{t1}
        v_xor_b32 v{CX+1}, 16, v{CX}
        v_xor_b32 v{CX+2}, 32, v{CX}
        v_xor_b32 v{CX+3}, 48, v{CX}
        v_and_b32 v{t0}, 3, v{m}
        v_lshrrev_b32 v{t1}, 2, v{m}
        v_lshl_add_u32 v{t1}, v{t0}, 3, v{t1}
        v_lshlrev_b32 v{t1}, 7, v{t1}
        v_add_u32 v{t1}, s{sXRB}, v{t1}
        v_lshrrev_b32 v{t2}, 4, v{m}
        v_lshl_or_b32 v{t0}, v{t2}, 2, v{t0}
        v_xor_b32 v{t0}, v{t0}, v{h}
        v_lshl_add_u32 v{XA}, v{t0}, 4, v{t1}
        v_xor_b32 v{XA+1}, 32, v{XA}
        v_xor_b32 v{XA+2}, 64, v{XA}
        v_xor_b32 v{XA+3}, 0x60, v{XA}
        """)
    a.inmain = True
    a(".p2align 8\nmain_kernel:")
    a(f"""
    s_cmp_ge_u32 s2, 256
    s_cbranch_scc1 M_END
    s_load_dwordx2 s[10:11], s[0:1], 64
    s_load_dwordx4 s[4:7], s[0:1], 0
    s_load_dwordx2 s[8:9], s[0:1], 48
    @stamp 0
    s_and_b32 s3, s2, 7
    s_lshl_b32 s3, s3, 5
    s_lshr_b32 s{sA}, s2, 3
    s_add_u32 s3, s3, s{sA}
    v_lshrrev_b32 v{T}, 6, v0
    s_mov_b32 s{sCAP}, 512
    v_readfirstlane_b32 s{sW}, v{T}
    s_mov_b32 s{sBASE}, 0
    s_mov_b32 s{sREC+2}, {0x600000//4}
    s_mov_b32 s{sREC+3}, 0x20000
    s_and_b32 s{sSB}, s{sW}, 1
    s_mul_i32 s{sGL}, s{sW}, {GLS}
    s_add_u32 s{sGL}, s{sGL}, {L_XR}
    s_waitcnt lgkmcnt(0)
    s_mov_b32 s{sREC}, s10
    s_or_b32 s{sREC+1}, s11, {4<<16}
    M_BATCH:
    s_setprio 2
    s_lshl_b32 s{sA}, s3, 10
    s_lshl_b32 s{sB}, s{sSB}, 1
    s_add_u32 s{sA}, s{sA}, s{sB}
    s_lshr_b32 s{sB}, s{sW}, 1
    s_lshl_b32 s{sB}, s{sB}, 8
    s_add_u32 s{sA}, s{sA}, s{sB}
    s_add_u32 s{sA}, s{sA}, {WS_O//4}
    v_and_b32 v{lane}, 63, v0
    v_lshl_add_u32 v{tt}, v{lane}, 2, s{sA}
    v_add_u32 v{qa}, 1, v{tt}
    buffer_load_dword v{c0}, v{tt}, s[{sREC}:{sREC+3}], 0 idxen
    buffer_load_dword v{c1}, v{qa}, s[{sREC}:{sREC+3}], 0 idxen
    """)
    srd_off(a, sWF, 10, WS_WF, 34 * 1024)
    a(f"v_lshlrev_b32 v{T+7}, 4, v{lane}\ns_lshl_b32 s{sA}, s{sW}, 10\ns_mov_b32 s{sB}, s{sA}")
    for j in range(5):
        if j == 4: a(f"s_and_b32 s{sA}, s{sA}, 1024\ns_add_u32 s{sB}, s{sA}, 32768")
        a(f"s_add_u32 m0, s{sA}, {L_WL + j*8192}\ns_nop 0\nbuffer_load_dwordx4 v{T+7}, s[{sWF}:{sWF+3}], s{sB} offen lds\ns_add_u32 s{sB}, s{sB}, 8192")
    XW = int(OPT["xw"])
    if XW:
        srd(a, sX, 4, 3200000)
        a(f"""
        s_lshr_b32 s75, s2, 3
        s_mul_i32 s75, s75, {XW*128}
        v_lshrrev_b32 v{Q}, 6, v0
        v_lshl_add_u32 v{Q}, v{lane}, 3, v{Q}
        v_cmp_gt_u32 vcc, {XW}, v{Q}
        v_lshlrev_b32 v{Q}, 7, v{Q}
        s_mov_b64 exec, vcc
        buffer_load_dword v{vCr+4}, v{Q}, s[{sX}:{sX+3}], s75 offen
        s_mov_b64 exec, -1
        """)
    a(f"""
    v_lshlrev_b32 v{Q+5}, 3, v0
    v_mov_b32 v{Q+6}, 0
    v_mov_b32 v{Q+7}, 0
    v_add_u32 v{Q+8}, {L_C8}, v{Q+5}
    v_lshlrev_b32 v{Q+5}, 2, v0
    ds_write_b64 v{Q+8}, {v(Q+6,2)}
    ds_write_b32 v{Q+5}, v{Q+6}
    s_and_b32 s{sA}, s{sW}, 6
    v_and_b32 v{m}, 31, v{lane}
    v_lshrrev_b32 v{h}, 5, v{lane}
    v_lshl_add_u32 v{kk12}, v{m}, 3, v{h}
    v_add_u32 v{kk12}, s{sA}, v{kk12}
    v_cmp_gt_u32 vcc, {NCH}, v{kk12}
    v_lshlrev_b32 v{kk12}, 12, v{kk12}
    v_mov_b32 v{t1}, 0xffff
    v_lshl_add_u32 v{qa}, v{lane}, 2, s{sGL}
    s_waitcnt lgkmcnt(0)
    s_barrier
    s_waitcnt vmcnt({6 if XW else 5})
    @stamp 1
    v_cndmask_b32 v{c0}, 0, v{c0}, vcc
    v_cndmask_b32 v{c1}, 0, v{c1}, vcc
    v_add_u32 v{p1}, v{c0}, v{c1}
    v_lshrrev_b32 v{p1}, 16, v{p1}
    """)
    assert L_LS // 8 == 256
    steps = [f"row_shr:{sh} row_mask:0xf bank_mask:0xf bound_ctrl:0" for sh in (1, 2, 4, 8)] + ["row_bcast:15 row_mask:0xa bank_mask:0xf", "row_bcast:31 row_mask:0xc bank_mask:0xf"]
    fl = [f"v_and_or_b32 v{g0}, v{c0}, v{t1}, v{kk12}\nv_and_or_b32 v{g1}, v{c1}, v{t1}, v{kk12}",
          f"v_lshrrev_b32 v{c0}, 16, v{c0}\nv_lshrrev_b32 v{c1}, 16, v{c1}", "s_nop 1", "s_nop 1", "s_nop 1", "s_nop 1"]
    for n, stp in enumerate(steps):
        a(f"{fl[n]}\nv_add_u32_dpp v{p1}, v{p1}, v{p1} {stp}")
    a(f"""
    s_nop 0
    v_readlane_b32 s{sN}, v{p1}, 63
    v_sub_u32 v{p1}, v{p1}, v{c1}
    v_sub_u32 v{p0}, v{p1}, v{c0}
    s_mov_b32 s{sCNT}, s{sN}
    s_add_u32 s{sA}, s{sN}, s{sBASE}
    s_cmp_le_u32 s{sA}, s{sCAP}
    s_cbranch_scc0 M_WIN
    s_cmp_eq_u32 s{sBASE}, 0
    s_cbranch_scc1 M_NOWIN
    M_WIN:
    s_sub_i32 s{sCNT}, s{sN}, s{sBASE}
    s_max_i32 s{sCNT}, s{sCNT}, 0
    s_min_u32 s{sCNT}, s{sCNT}, s{sCAP}
    """)
    for (pp, cc, gg) in ((p0, c0, g0), (p1, c1, g1)):
        a(f"""
        v_subrev_u32 v{tt}, s{sBASE}, v{pp}
        v_max_i32 v{pp}, 0, v{tt}
        v_add_u32 v{cc}, v{tt}, v{cc}
        v_min_i32 v{cc}, s{sCAP}, v{cc}
        v_sub_u32 v{cc}, v{cc}, v{pp}
        v_sub_u32 v{tt}, v{pp}, v{tt}
        v_add_u32 v{gg}, v{gg}, v{tt}
        """)
    a("M_NOWIN:")
    pa, ca_, ga, gb = t0, t1, t2, t3
    for n, (pp, cc, gg) in enumerate(((p0, c0, g0), (p1, c1, g1))):
        a(f"""
        v_lshl_add_u32 v{pp}, v{pp}, 2, s{sGL}
        v_add_u32 v{ga}, 1, v{gg}
        v_add_u32 v{gb}, 2, v{gg}
        v_mov_b32 v{ca_}, v{cc}
        v_mov_b32 v{pa}, v{pp}
        M_EXP{n}:
        """)
        for r in (1, 3, 5, 7):
            a(f"v_cmpx_lt_i32 vcc, {r}, v{ca_}\nds_write2_b32 v{pa}, v{ga}, v{gb} offset0:{r} offset1:{r+1}\nv_add_u32 v{ga}, 2, v{ga}\nv_add_u32 v{gb}, 2, v{gb}")
        a(f"""
        v_cmpx_lt_i32 vcc, 9, v{ca_}
        v_add_u32 v{pa}, 32, v{pa}
        v_subrev_u32 v{ca_}, 8, v{ca_}
        s_cbranch_execnz M_EXP{n}
        s_mov_b64 exec, -1
        """)
    a(f"""
    v_cmpx_lt_i32 vcc, 0, v{c0}
    ds_write_b32 v{p0}, v{g0}
    s_mov_b64 exec, -1
    v_cmpx_lt_i32 vcc, 0, v{c1}
    ds_write_b32 v{p1}, v{g1}
    s_mov_b64 exec, -1
    """)
    for i in ORD:
        a(f"ds_read_b32 v{G+i}, v{qa} offset:{256*i}")
    for i in ORD:
        a(f"s_sub_i32 s{sA}, s{sCNT}, {64*i}\nv_cmp_gt_i32 {mk(i)}, s{sA}, v{lane}")
    skip("M_GA")
    for i in ORD:
        a(f"""
        s_mov_b64 exec, {mk(i)}
        s_waitcnt lgkmcnt({i})
        buffer_load_dword v{RC+i}, v{G+i}, s[{sREC}:{sREC+3}], 0 idxen
        """)
        after("M_GA", i)
    a("s_mov_b64 exec, -1\n@stamp 2")
    a("s_setprio 0")
    for i in range(4): a(f"v_mov_b32 v{Q+i}, {DUMMY}")
    a(f"v_lshlrev_b32 v{Q+4}, 4, v0\nv_lshlrev_b32 v{Q+5}, 3, v0")
    assert 2 * LSZ == 4 * 8192 + 4096
    for i in range(4): a(f"ds_write_b128 v{Q+4}, {v(Q,4)} offset:{L_LS+8192*i}")
    a(f"ds_write_b64 v{Q+5}, {v(Q,2)} offset:{L_LS+8192*4}")
    srd(a, sX, 4, 3200000)
    a(f"""
    s_lshl_b32 s{sA}, s3, 17
    s_add_u32 s{sA}, s{sA}, 1341
    s_mul_hi_u32 s{sS0}, s{sA}, 3200423
    s_add_u32 s{sA}, s{sA}, 65536
    s_mul_hi_u32 s{sS1}, s{sA}, 3200423
    s_add_u32 s{sA}, s{sA}, 65536
    s_mul_hi_u32 s{sS2}, s{sA}, 3200423
    s_min_u32 s{sS2}, s{sS2}, 25000
    v_and_b32 v{t0}, 8, v0
    v_cmp_ne_u32 vcc, 0, v{t0}
    v_mov_b32 v{t0}, s{sS0}
    v_mov_b32 v{t1}, s{sS1}
    v_mov_b32 v{t2}, s{sS2}
    v_cndmask_b32 v{t0}, v{t0}, v{t1}, vcc
    v_cndmask_b32 v{t1}, v{t1}, v{t2}, vcc
    v_lshrrev_b32 v{t2}, 4, v0
    v_sub_u32 v{t2}, v{t2}, v{t0}
    v_add_u32 v{t3}, 32, v{t2}
    v_and_b32 v{t2}, 63, v{t2}
    v_and_b32 v{t3}, 63, v{t3}
    v_add_u32 v{t2}, v{t2}, v{t0}
    v_add_u32 v{t3}, v{t3}, v{t0}
    v_cmp_lt_u32 vcc, v{t2}, v{t1}
    v_cmp_lt_u32 s[52:53], v{t3}, v{t1}
    v_and_b32 v{t4}, 7, v0
    v_lshlrev_b32 v{t4}, 4, v{t4}
    v_lshl_add_u32 v{t2}, v{t2}, 7, v{t4}
    v_lshl_add_u32 v{t3}, v{t3}, 7, v{t4}
    v_mov_b32 v{t0}, 0x80000000
    v_cndmask_b32 v{t2}, v{t0}, v{t2}, vcc
    v_cndmask_b32 v{t3}, v{t0}, v{t3}, s[52:53]
    buffer_load_dwordx4 {v(FX,4)}, v{t2}, s[{sX}:{sX+3}], 0 offen
    buffer_load_dwordx4 {v(FX+4,4)}, v{t3}, s[{sX}:{sX+3}], 0 offen
    v_lshrrev_b32 v{xw}, 3, v0
    v_mul_u32_u24 v{xw}, 144, v{xw}
    v_add_u32 v{xw}, v{xw}, v{t4}
    """)
    consts()
    a(f"""
    v_mov_b32 v{one}, 1
    v_mov_b32 v{nta}, 0
    v_mov_b32 v{fl0}, s{sCNT}
    v_mov_b32 v{fl0+1}, s{sN}
    s_lshl_b32 s{sA}, s{sSB}, 9
    s_lshl_b32 s75, s{sSB}, 8
    s_add_u32 s75, s75, {L_C8}
    s_movk_i32 s{sB}, 0xe00
    s_setprio 2
    s_mov_b64 exec, 1
    ds_add_u32 v{nta}, v{fl0} offset:{L_NT}
    ds_max_u32 v{nta}, v{fl0+1} offset:{L_MX}
    """)
    skip("M_RK")
    for i in ORD:
        a(f"""
        s_mov_b64 exec, {mk(i)}
        s_waitcnt vmcnt({i+2})
        v_and_b32 v{NA+i}, 63, v{RC+i}
        v_lshrrev_b32 v{tt}, 9, v{RC+i}
        v_lshl_add_u32 v{CA+i}, v{NA+i}, 2, s75
        v_and_or_b32 v{CA+i}, v{tt}, s{sB}, v{CA+i}
        ds_add_rtn_u32 v{RK+i}, v{CA+i}, v{one}
        v_lshl_add_u32 v{NA+i}, v{NA+i}, 3, s{sA}
        """)
        after("M_RK", i)
    def pack(lab):
        a(f"s_movk_i32 s{sB}, {CH}\ns_mov_b32 s74, {int(OPT['epf'])*128}")
        skip(lab)
        for i in ORD:
            a(f"""
            v_lshrrev_b32 v{KK+i}, 12, v{G+i}
            v_lshrrev_b32 v{tt}, 21, v{RC+i}
            v_bfe_i32 v{TM+i}, v{G+i}, 11, 1
            v_mad_u32_u24 v{tt}, v{KK+i}, s{sB}, v{tt}
            {f"v_and_b32 v{TM+i}, {M0}, v{TM+i}" if YM else f"v_add_u32 v{tt}, {M0 + DFLAG}, v{tt}"}
            {f"v_add3_u32 v{G+i}, v{TM+i}, v{tt}, s{sDF}" if YM else f"v_bfi_b32 v{G+i}, v{TM+i}, v{tt}, v{G+i}"}
            v_lshl_or_b32 v{RC+i}, v{RC+i}, 1, s{sSB}
            v_and_b32 v{RC+i}, 0x3fffff, v{RC+i}
            """)
            if int(OPT["epf"]) and lab != "M_PA":
                a(f"s_mov_b64 exec, {mk(i)}\nv_cmpx_gt_u32 vcc, s74, v{RC+i}\nbuffer_load_dword v{vCr+4}, v{G+i}, s[{sE}:{sE+3}], 0 idxen\ns_mov_b64 exec, -1")
            if OPT["empf"] and not YM and lab != "M_PA":
                a(f"s_mov_b64 exec, {mk(i)}\nbuffer_load_dword v{vCr+4}, v{G+i}, s[{sEM}:{sEM+3}], 0 idxen {OPT['mflags']}\ns_mov_b64 exec, -1")
            after(lab, i)
    def xdwrite():
        a(f"""
        s_waitcnt vmcnt(0)
        ds_write_b128 v{xw}, {v(FX,4)} offset:{L_XD}
        ds_write_b128 v{xw}, {v(FX+4,4)} offset:{L_XD+64*144}
        """)
    a(f"""
    s_mov_b64 exec, -1
    @pstamp 3
    s_cmp_eq_u32 s{sW}, 0
    s_cbranch_scc1 M_PK0
    s_lshl_b32 s{sA}, s{sW}, 8
    s_add_u32 s{sA}, s{sA}, {L_C8 - 256}
    v_lshl_add_u32 v{Q+16}, v{lane}, 2, s{sA}
    v_mov_b32 v{Q+8}, 0
    s_waitcnt lgkmcnt(0)
    s_barrier
    @pstamp 4
    s_cmp_gt_u32 s{sW}, 2
    s_cbranch_scc1 M_NOPFX
    """)
    for j in range(3): a(f"ds_read2st64_b32 {v(Q+2*j,2)}, v{Q+16} offset0:{4*j} offset1:{4*j+2}")
    a(f"s_waitcnt lgkmcnt(0)\nv_mov_b32 v{Q+9}, v{Q}")
    for j in range(1, 6): a(f"v_add_u32 v{Q+9+j}, v{Q+8+j}, v{Q+j}")
    for j in range(4): a(f"ds_write2st64_b32 v{Q+16}, v{Q+8+2*j}, v{Q+9+2*j} offset0:{16+4*j} offset1:{16+4*j+2}")
    a("M_NOPFX:")
    a("s_setprio 0"); xdwrite(); pack("M_PB")
    a("s_waitcnt lgkmcnt(0)\ns_barrier\ns_branch M_P4E")
    d0, d1, f0, f1, k0, k1, vL, vR, ks, a4, l0, l1, o0, o1, cn, ci = [Q + i for i in range(16)]
    m0_, B0, m1_, B1 = Q+16, Q+17, Q+18, Q+19
    a("M_PK0:")
    a("s_setprio 0"); pack("M_PA"); a("s_setprio 3")
    a(f"""
    v_lshlrev_b32 v{a4}, 3, v{lane}
    v_lshlrev_b32 v{cn}, 2, v{lane}
    v_add_u32 v{cn}, {L_C8}, v{cn}
    v_sub_u32 v{ci}, 31, v{m}
    v_lshlrev_b32 v{ci}, 2, v{ci}
    s_mov_b32 s75, {f32(4194304.0)}
    s_waitcnt lgkmcnt(0)
    s_barrier
    @pstamp 4
    ds_read_b32 v{ks}, v{nta} offset:{L_NT}
    """)
    for j in range(7): a(f"ds_read2st64_b32 {v(AG+2*j,2)}, v{cn} offset0:{2*j} offset1:{2*j+1}")
    a(f"""
    s_waitcnt lgkmcnt(4)
    v_readfirstlane_b32 s{sL}, v{ks}
    v_add3_u32 v{d0}, v{AG}, v{AG+2}, v{AG+4}
    v_add3_u32 v{d1}, v{AG+1}, v{AG+3}, v{AG+5}
    s_lshr_b32 s{sL}, s{sL}, 8
    s_add_u32 s{sL}, s{sL}, 2
    s_waitcnt lgkmcnt(0)
    v_add3_u32 v{d0}, v{d0}, v{AG+6}, v{AG+8}
    v_add3_u32 v{d1}, v{d1}, v{AG+7}, v{AG+9}
    v_add3_u32 v{d0}, v{d0}, v{AG+10}, v{AG+12}
    v_add3_u32 v{d1}, v{d1}, v{AG+11}, v{AG+13}
    v_cvt_f32_u32 v{f0}, v{d0}
    v_cvt_f32_u32 v{f1}, v{d1}
    M_LS:
    s_add_u32 s{sL}, s{sL}, 1
    s_cmp_gt_u32 s{sL}, {LMAX}
    s_cbranch_scc1 M_P4W
    v_cvt_f32_u32 v{vL}, s{sL}
    v_rcp_f32 v{vR}, v{vL}
    v_add_f32 v{vL}, -0.5, v{vL}
    v_add_f32 v{k0}, v{f0}, v{vL}
    v_add_f32 v{k1}, v{f1}, v{vL}
    v_mul_f32 v{k0}, v{k0}, v{vR}
    v_mul_f32 v{k1}, v{k1}, v{vR}
    v_cvt_u32_f32 v{k0}, v{k0}
    v_cvt_u32_f32 v{k1}, v{k1}
    v_add_u32 v{ks}, v{k0}, v{k1}
    """)
    fillers = [f"v_cvt_f32_u32 v{l0}, v{k0}", f"v_cvt_f32_u32 v{l1}, v{k1}",
               f"v_rcp_f32 v{m0_}, v{l0}", f"v_rcp_f32 v{m1_}, v{l1}",
               f"v_add_f32 v{l0}, v{l0}, v{f0}", f"v_add_f32 v{l1}, v{l1}, v{f1}",
               f"v_add_f32 v{l0}, -0.5, v{l0}", f"v_add_f32 v{l1}, -0.5, v{l1}",
               f"v_mul_f32 v{l0}, v{l0}, v{m0_}", f"v_mul_f32 v{l1}, v{l1}, v{m1_}",
               f"v_cvt_u32_f32 v{l0}, v{l0}", f"v_cvt_u32_f32 v{l1}, v{l1}"]
    for n, stp in enumerate(steps):
        a(f"{fillers[2*n]}\n{fillers[2*n+1]}\nv_add_u32_dpp v{ks}, v{ks}, v{ks} {stp}")
    a(f"""
    v_lshlrev_b32 v{l0}, 2, v{l0}
    v_readlane_b32 s{sA}, v{ks}, 63
    v_lshlrev_b32 v{l1}, 2, v{l1}
    s_cmp_gt_u32 s{sA}, 256
    s_cbranch_scc1 M_LS
    ds_add_rtn_u32 v{o0}, v{l0}, v{k0} offset:{L_CNT}
    ds_add_rtn_u32 v{o1}, v{l1}, v{k1} offset:{L_CNT}
    ds_read_b32 v{cn}, v{ci} offset:{L_CNT}
    v_mul_f32 v{m0_}, s75, v{m0_}
    v_mul_f32 v{m1_}, s75, v{m1_}
    v_cvt_u32_f32 v{m0_}, v{m0_}
    v_cvt_u32_f32 v{m1_}, v{m1_}
    v_add_u32 v{m0_}, 2, v{m0_}
    v_add_u32 v{m1_}, 2, v{m1_}
    v_lshlrev_b32 v{B0}, 2, v{k0}
    v_lshlrev_b32 v{B1}, 2, v{k1}
    v_sub_u32 v{B0}, 1024, v{B0}
    v_sub_u32 v{B1}, 1024, v{B1}
    v_sub_u32 v{l0}, 124, v{l0}
    v_sub_u32 v{l1}, 124, v{l1}
    s_waitcnt lgkmcnt(0)
    v_mov_b32 v{ks}, v{cn}
    """)
    for stp in steps[:5]:
        a(f"s_nop 1\nv_add_u32_dpp v{ks}, v{ks}, v{ks} {stp}")
    a(f"""
    v_sub_u32 v{ks}, v{ks}, v{cn}
    ds_bpermute_b32 v{d0}, v{l0}, v{ks}
    ds_bpermute_b32 v{d1}, v{l1}, v{ks}
    ds_write_b32 v{ci}, v{ks} offset:{L_BAS}
    s_waitcnt lgkmcnt(1)
    v_add_u32 v{o0}, v{o0}, v{d0}
    v_add_u32 v{o1}, v{o1}, v{d1}
    v_lshl_or_b32 v{m0_}, v{o0}, 24, v{m0_}
    v_lshl_or_b32 v{m1_}, v{o1}, 24, v{m1_}
    ds_write2st64_b64 v{a4}, {v(m0_,2)}, {v(m1_,2)} offset0:0 offset1:1
    M_P4W:
    v_mov_b32 v{ks}, s{sL}
    ds_write_b32 v{nta}, v{ks} offset:{L_MX+4}
    """)
    xdwrite()
    u0 = Q
    a(f"""
    s_waitcnt lgkmcnt(0)
    s_barrier
    M_P4E:
    s_setprio 0
    @pstamp 5
    ds_read_b64 {v(u0,2)}, v{nta} offset:{L_MX}
    v_lshlrev_b32 v{tt}, 2, v{m}
    ds_read_b32 v{u0+2}, v{tt} offset:{L_CNT}
    ds_read_b32 v{u0+3}, v{tt} offset:{L_BAS}
    """)
    skip("M_TR")
    for i in ORD:
        a(f"s_mov_b64 exec, {mk(i)}\nds_read_b64 {v(TBv+2*i,2)}, v{NA+i} offset:{L_TB}\nds_read_b32 v{OFv+i}, v{CA+i} offset:{C8O}")
        after("M_TR", i)
    a(f"""
    s_mov_b64 exec, -1
    s_lshl_b32 s{sA}, s{sG}, 5
    s_waitcnt lgkmcnt(12)
    v_readfirstlane_b32 s{sNMAX}, v{u0}
    v_readfirstlane_b32 s{sL}, v{u0+1}
    v_add_u32 v{u0+2}, v{u0+2}, v{u0+3}
    v_cmp_ge_u32 vcc, s{sA}, v{u0+3}
    v_cmp_lt_u32 s[52:53], s{sA}, v{u0+2}
    s_and_b64 s[52:53], s[52:53], vcc
    s_ff1_i32_b32 s{sT}, s52
    s_max_i32 s{sT}, s{sT}, 0
    s_cmp_le_u32 s{sL}, {LMAX}
    s_cbranch_scc1 M_P5
    s_mov_b32 s{sCAP}, 256
    s_branch M_AGAIN
    M_P5:
    """)
    skip("M_SC")
    for i in ORD:
        mm, BB = TBv + 2*i, TBv + 2*i + 1
        a(f"""
        s_mov_b64 exec, {mk(i)}
        s_waitcnt lgkmcnt({2*i + max(0, 5-i)})
        v_add_u32 v{RK+i}, v{RK+i}, v{OFv+i}
        v_lshrrev_b32 v{tt}, 24, v{mm}
        v_mul_u32_u24 v{mm}, v{mm}, v{RK+i}
        v_add_lshl_u32 v{tt}, v{tt}, v{RK+i}, 2
        v_lshrrev_b32 v{mm}, 22, v{mm}
        v_mad_u32_u24 v{tt}, v{mm}, v{BB}, v{tt}
        ds_write2st64_b32 v{tt}, v{RC+i}, v{G+i} offset0:{L_LS//256} offset1:{L_LE//256}
        """)
        after("M_SC", i)
    a(f"""
    s_mov_b64 exec, -1
    v_add_u32 v{T+7}, {L_WL}, v{T+7}
    s_waitcnt lgkmcnt(0)
    s_barrier
    @stamp 3
    @pstamp 6
    s_cmp_eq_u32 s{sT}, 0
    s_cbranch_scc1 M_BEND
    """)
    if "nox" in OPT["abl"]: a(f"s_mov_b32 s{sX+2}, 0")
    S = []
    ef, mf_ = OPT["eflags"], OPT["mflags"]
    def le_read(t, p): return (f"ds_read_b32 v{RP+2*p}, v{vLE} offset:{L_LE+1024*t}", f"le{p}")
    def ls_read(t, dst): return (f"ds_read_b128 {v(dst,4)}, v{vLS} offset:{L_LS+1024*t}", f"ls{t}")
    def m_load(t, p): return (f"buffer_load_dwordx4 {Es(t)}, {v(RP+2*p,2)}, s[{sEM}:{sEM+3}], 0 idxen offen {mf_}", f"M{t}")
    def d_pre(t, p): return [f"v_cmp_le_u32 vcc, s{sDF}, v{RP+2*p}", f"v_and_or_b32 v{vCr+t%5}, v{RP+2*p}, s{sB30}, 1.0"]
    def d_load(t, p): return ["s_mov_b64 exec, vcc", (f"buffer_load_dwordx4 {Es(t)}, {v(RP+2*p,2)}, s[{sE}:{sE+3}], 0 idxen offen {ef}", f"D{t}"), "s_mov_b64 exec, -1"]
    def x_addr(src): return [f"v_and_or_b32 v{S4+i}, v{src+i}, s{sM7}, v{CX+i}" for i in range(4)]
    def x_dma(t, nop=True):
        o = []
        for i in range(4):
            o += [f"s_add_u32 m0, s{sXRB}, {(t&1)*4096+i*1024}"] + (["s_nop 0"] if nop else []) + \
                 [(f"buffer_load_dwordx4 v{S4+i}, s[{sX}:{sX+3}], 0 offen lds", f"X{t}")]
        return o
    def fx_read(t, sx): return (f"ds_read_b128 {v(FX+4*sx,4)}, v{XA+sx} offset:{(t&1)*4096}", f"fx{t}")
    def chain(nh, t):
        Dh = v(D + 16 * nh, 16)
        return [f"v_mfma_f32_32x32x16_bf16 {Dh}, {W3f(nh)}, {Es(t)}, {v(Q+16*nh,16)}"] + \
               [f"v_mfma_f32_32x32x16_bf16 {Dh}, {W1f(sx,nh)}, {v(FX+4*sx,4)}, {Dh}" for sx in range(4)]
    nd, L1, L2 = D, D + 4, D + 8
    def wr(f):
        dst = W + 4*f if f < 8 else (AG + 4*(f-8) if f < 16 else W + 32 + 4*(f-16))
        return (f"ds_read_b128 {v(dst,4)}, v{T+7} offset:{1024*f}", f"w{f}")
    S += [ls_read(0, S4), le_read(0, 0), (f"ds_read_b32 v{nd}, v{vLE} offset:{L_LS}", "nd"), le_read(1, 1), ls_read(1, L1), le_read(2, 2), ls_read(2, L2), le_read(3, 3)]
    S += [("@W", None, "nd"), f"v_and_b32 v{nd}, 127, v{nd}", f"v_mul_u32_u24 v{nd}, 144, v{nd}", f"v_add_u32 v{nd}, v{nd}, v{h16}"] + x_addr(S4)
    S += [(f"ds_read_b128 {v(FX+4*sx,4)}, v{nd} offset:{L_XD+32*sx}", "xd") for sx in range(4)]
    dm = x_dma(0, nop=False)
    wq = [8, 10, 12, 14, 9, 11, 13, 15, 16, 0, 2, 4, 6, 17, 1, 3, 5, 7]
    for i in range(4): S += [dm[2*i], wr(wq[i]), dm[2*i+1]]
    S += [m_load(0, 0)] + d_pre(0, 0) + d_load(0, 0)
    S += [("@W", None, "le3"), m_load(1, 1)] + d_pre(1, 1) + d_load(1, 1) + x_addr(L1)
    dm = x_dma(1, nop=False)
    for i in range(4): S += [dm[2*i], wr(wq[4+i]), dm[2*i+1]]
    S += [m_load(2, 2)] + d_pre(2, 2) + d_load(2, 2) + [m_load(3, 3)]
    S += [le_read(4, 0), le_read(5, 1), le_read(6, 2), ("@W", None, "w15")]
    k = 8
    for nh in range(2):
        for sx in range(4):
            S.append(f"v_mfma_f32_32x32x16_bf16 {v(Q+16*nh,16)}, {v(AG+(sx*2+nh)*4,4)}, {v(FX+4*sx,4)}, {'0' if sx == 0 else v(Q+16*nh,16)}")
            S.append(wr(wq[k])); k += 1
    S += [wr(wq[16]), wr(wq[17])]
    S += [("@W", "D0", None)] + [fx_read(0, sx) for sx in range(4)] + x_addr(L2) + [("@W", None, "fx0")]
    S += chain(0, 0) + x_dma(2) + d_pre(3, 3) + d_load(3, 3) + [m_load(4, 0), m_load(5, 1), m_load(6, 2)]
    if OPT["stamp"]: S += ["@stamp 4", f"s_mov_b32 s90, s{sT}", f"s_mov_b32 s98, s{sL}", "s_memtime s[94:95]", "s_waitcnt lgkmcnt(0)"]
    def phase(nh, t, mf, fill):
        Db, Ab = D + 16*nh, AG + 16*nh
        c = vCr + t % 5
        cp = f"{v(c & ~1, 2)} " + ("op_sel_hi:[1,0]" if c % 2 == 0 else "op_sel:[0,1] op_sel_hi:[1,1]")
        seq = []
        mf = mf + [None] * (5 - len(mf))
        for q in range(2):
            ex = [f"v_exp_f32 v{T+i}, v{Db+8*q+i}" for i in range(8)]
            rc = [f"v_rcp_f32 v{T+i}, v{T+i}" for i in range(8)]
            if OPT["pk"]:
                ad = [f"v_pk_add_f32 {v(T+2*i,2)}, {v(T+2*i,2)}, {cp}" for i in range(4)]
                fm = [f"v_pk_fma_f32 {v(Ab+8*q+2*i,2)}, {v(Db+8*q+2*i,2)}, {v(T+2*i,2)}, {v(Ab+8*q+2*i,2)}" for i in range(4)]
                if t == 0: fm = [f"v_pk_mul_f32 {v(Ab+8*q+2*i,2)}, {v(Db+8*q+2*i,2)}, {v(T+2*i,2)}" for i in range(4)]
            else:
                ad = [f"v_add_f32 v{T+i}, v{c}, v{T+i}" for i in range(8)]
                fm = [f"v_fmac_f32 v{Ab+8*q+i}, v{Db+8*q+i}, v{T+i}" for i in range(8)]
                if t == 0: fm = [f"v_mul_f32 v{Ab+8*q+i}, v{Db+8*q+i}, v{T+i}" for i in range(8)]
            if q == 0: seq += [mf[0]] + ex[:3] + [mf[1]] + ex[3:] + ad + [mf[2]] + rc[:3] + [mf[3]] + rc[3:] + fm
            else: seq += [mf[4]] + ex + ad + rc + fm
        res = []; n = 0
        for l in seq:
            if l is None: continue
            res.append(l)
            if l.startswith(("v_exp", "v_rcp")):
                res += fill.get(n, []); n += 1
        if "nocomp" in OPT["abl"]:
            r2 = []
            for l in res:
                if isinstance(l, str) and l.startswith(("v_exp", "v_rcp", "v_pk", "v_add_f32", "v_fmac", "v_mfma")): continue
                r2.append(l)
                if isinstance(l, str) and " m0," in l: r2.append("s_nop 0")
            res = r2
        return res
    mnext = 7
    for t in range(LMAX):
        ms = []
        while not YM and len(ms) < MPER and mnext < LMAX and mnext - 16 <= t - 1: ms.append(mnext); mnext += 1
        assert YM or t + 4 >= LMAX or t + 4 < mnext - len(ms) or t + 4 in ms
        fill = {}
        pos = 0
        for j, mt in enumerate(ms): fill[pos] = [le_read(mt, j)]; pos += 1
        if t + 4 < LMAX: fill[pos] = [le_read(t + 4, 3)]; pos += 1
        if t + 3 < LMAX: fill[pos] = [ls_read(t + 3, S4)]; pos += 1
        for j, mt in enumerate(ms):
            fill[10 + 2*j] = ([("@W", None, f"le{len(ms)-1}")] if j == 0 else []) + [m_load(mt, j)]
        if t + 1 < LMAX:
            fill[16] = [("@W", f"X{t+1}", None)]
            for sx in range(4): fill[17+sx] = [fx_read(t + 1, sx)]
        if t + 3 < LMAX:
            xa = x_addr(S4)
            fill[24] = [("@W", None, f"ls{t+3}"), xa[0]]; fill[25] = [xa[1]]; fill[26] = [xa[2]]; fill[27] = [xa[3]]
        if int(OPT["prio"]) == 1: S.append("s_setprio 1")
        S += phase(0, t, chain(1, t), fill)
        if int(OPT["prio"]) == 1: S.append("s_setprio 0")
        fill = {}
        if t + 1 < LMAX: fill[0] = [("@W", None, f"fx{t+1}")]
        if t + 3 < LMAX:
            dm = x_dma(t + 3, nop=False)
            for i in range(8): fill[1+i] = [dm[i]]
        if t + 4 < LMAX:
            dp = d_pre(t + 4, 3)
            fill[9] = [dp[0]]; fill[12] = d_load(t + 4, 3); fill[13] = [dp[1]]
        fill[31] = [f"s_cmp_eq_u32 s{sT}, {t+1}"]
        S += phase(1, t, chain(0, t + 1) if t + 1 < LMAX else [], fill)
        if t + 1 < LMAX: S.append("s_cbranch_scc1 M_FLUSH")
    if YM:
        S2 = []
        for it in S:
            txt = it[0] if isinstance(it, tuple) else it
            if isinstance(it, tuple) and it[0] != "@W" and it[1] and it[1].startswith("M"): continue
            if txt.startswith(("s_mov_b64 exec", "v_cmp_le_u32 vcc")): continue
            S2.append(it)
        S = S2
    emit(resolve(S))
    a("M_FLUSH:\n@stamp 5\n@estamp 1\n@cyc")
    a(f"""
    v_and_b32 v{T}, 31, v0
    v_mul_u32_u24 v{T}, 272, v{T}
    v_add3_u32 v{T}, v{T}, v{h16}, s{sXRB}
    s_waitcnt vmcnt(0)
    """)
    for i in range(8):
        a(f"ds_write_b128 v{T}, {v(AG+4*i,4)} offset:{32*i}")
    nn, kk, ca0, ca1, ca2, zr, l16, oa, ca3, fa = T+2, T+1, S4, S4+1, S4+2, S4+3, T+7, T+5, T+6, T+3
    A0, A1, A2, OWN, PAR = D, D + 16, Q, Q + 16, Q + 24
    a(f"""
    M_BEND:
    s_lshr_b32 s{sA}, s{sW}, 1
    s_lshl_b32 s{sA}, s{sA}, 5
    v_and_b32 v{nn}, 31, v0
    v_add_u32 v{nn}, s{sA}, v{nn}
    v_and_b32 v{ca0}, 1, v0
    v_lshrrev_b32 v{ca1}, 1, v{nn}
    v_lshl_add_u32 v{ca2}, v{ca0}, 6, v{ca1}
    v_lshlrev_b32 v{ca2}, 3, v{ca2}
    ds_read_b64 {v(T,2)}, v{ca2} offset:{L_TB}
    v_mul_u32_u24 v{T+4}, 144, v{nn}
    v_add_u32 v{T+4}, v{T+4}, v{h16}
    v_and_b32 v{l16}, 63, v0
    v_lshlrev_b32 v{l16}, 4, v{l16}
    s_lshl_b32 s{sA}, s{sSB}, 13
    s_add_u32 s{sA}, s{sA}, {L_WL + 18*1024}
    v_add_u32 v{oa}, s{sA}, v{l16}
    s_lshl_b32 s{sB}, s{sSB}, 11
    v_add_u32 v{ca3}, s{sB}, v{oa}
    v_subrev_u32 v{fa}, s{sB}, v{oa}
    s_waitcnt vmcnt(0)
    """)
    for sx in range(4):
        a(f"ds_read_b128 {v(FX+4*sx,4)}, v{T+4} offset:{L_XD+32*sx}\nds_read_b128 {v(W+4*sx,4)}, v{oa} offset:{1024*sx}")
    a(f"""
    ds_read_b128 {v(W+16,4)}, v{ca3} offset:4096
    ds_read_b128 {v(W+20,4)}, v{ca3} offset:5120
    ds_read_b128 {v(W+24,4)}, v{fa} offset:6144
    ds_read_b128 {v(W+28,4)}, v{fa} offset:7168
    v_cmp_ne_u32 vcc, 0, v{ca0}
    v_mov_b32 v{ca0}, s{sS0}
    v_mov_b32 v{ca2}, s{sS1}
    v_mov_b32 v{zr}, s{sS2}
    v_cndmask_b32 v{ca0}, v{ca0}, v{ca2}, vcc
    v_cndmask_b32 v{ca2}, v{ca2}, v{zr}, vcc
    v_sub_u32 v{ca1}, v{ca1}, v{ca0}
    v_and_b32 v{ca1}, 63, v{ca1}
    v_add_u32 v{ca1}, v{ca1}, v{ca0}
    v_cmp_lt_u32 vcc, v{ca1}, v{ca2}
    v_lshlrev_b32 v{oa}, 7, v{ca1}
    v_lshl_add_u32 v{oa}, v{h16}, 1, v{oa}
    v_mov_b32 v{zr}, 0x80000000
    v_cndmask_b32 v{oa}, v{zr}, v{oa}, vcc
    s_lshl_b32 s{sA}, s{sSB}, 7
    s_add_u32 s{sA}, s{sA}, {L_XR}
    s_movk_i32 s{sB}, 0x3fc
    s_movk_i32 s75, 0x3f8
    s_waitcnt lgkmcnt(12)
    v_lshrrev_b32 v{ca0}, 24, v{T}
    v_mul_u32_u24 v{ca0}, 272, v{ca0}
    v_lshl_add_u32 v{ca0}, v{h16}, 1, v{ca0}
    v_add_u32 v{ca0}, s{sA}, v{ca0}
    v_mov_b32 v{zr}, {L_ZR}
    v_cmp_gt_u32 s[56:57], s{sB}, v{kk}
    v_cmp_gt_u32 s[58:59], s75, v{kk}
    v_add_u32 v{ca1}, 272, v{ca0}
    v_add_u32 v{ca2}, 544, v{ca0}
    v_add_u32 v{ca3}, 816, v{ca0}
    v_cmp_gt_u32 vcc, 0x400, v{kk}
    v_cndmask_b32 v{ca1}, v{zr}, v{ca1}, s[56:57]
    v_cndmask_b32 v{ca2}, v{zr}, v{ca2}, s[58:59]
    v_cndmask_b32 v{ca0}, v{zr}, v{ca0}, vcc
    v_cmp_gt_u32 vcc, 0x3f4, v{kk}
    @estamp 2
    s_barrier
    @estamp 3
    """)
    offs = (0, 16, 64, 80)
    for i in range(4):
        for buf, ca in ((A0, ca0), (A1, ca1), (A2, ca2)):
            a(f"ds_read_b128 {v(buf+4*i,4)}, v{ca} offset:{offs[i]}")
    a(f"""
    s_lshl_b32 s{sA}, s{sW}, 11
    v_add_u32 v{fa}, s{sA}, v{l16}
    s_mov_b32 s74, {f32(-1.0/LOG2E)}
    s_mov_b32 s75, {f32(-1.0/LOG2E)}
    s_waitcnt lgkmcnt(12)
    """)
    srd(a, sOUT, 8, 3200000)
    for st in range(4):
        a(f"v_mfma_f32_32x32x16_bf16 {v(E,16)}, {v(W+4*st,4)}, {v(FX+4*st,4)}, {'0' if st == 0 else v(E,16)}")
    for i in range(4):
        a(f"s_waitcnt lgkmcnt({9-3*i})")
        for j in range(4): a(f"v_add_f32 v{A0+4*i+j}, v{A0+4*i+j}, v{A1+4*i+j}")
        for j in range(4): a(f"v_add_f32 v{A0+4*i+j}, v{A0+4*i+j}, v{A2+4*i+j}")
    a(f"""
    s_cbranch_vccz M_SUMD
    s_movk_i32 s{sA}, 0x3f4
    M_SUML:
    s_mov_b64 exec, vcc
    """)
    for i in range(4):
        a(f"ds_read_b128 {v(A1+4*i,4)}, v{ca3} offset:{offs[i]}")
    a(f"s_sub_u32 s{sA}, s{sA}, 4\nv_add_u32 v{ca3}, 272, v{ca3}\ns_waitcnt lgkmcnt(0)")
    for i in range(8): a(f"v_pk_add_f32 {v(A0+2*i,2)}, {v(A0+2*i,2)}, {v(A1+2*i,2)}")
    a(f"""
    s_mov_b64 exec, -1
    v_cmp_gt_i32 vcc, s{sA}, v{kk}
    s_nop 4
    s_cbranch_vccnz M_SUML
    M_SUMD:
    s_cmp_le_u32 s{sNMAX}, s{sCAP}
    s_cbranch_scc1 M_EPI
    """)
    srd_off(a, sWF, 10, WS_SP, 2048 * 4096)
    a(f"""
    s_lshl_b32 s{sA}, s2, 3
    s_add_u32 s{sA}, s{sA}, s{sW}
    s_lshl_b32 s{sA}, s{sA}, 12
    s_cmp_eq_u32 s{sBASE}, 0
    s_cbranch_scc1 M_NOLD
    """)
    for i in range(4):
        a(f"buffer_load_dwordx4 {v(A1+4*i,4)}, v{l16}, s[{sWF}:{sWF+3}], s{sA} offen offset:{1024*i} sc0 sc1")
    a("s_waitcnt vmcnt(0)")
    for i in range(8): a(f"v_pk_add_f32 {v(A0+2*i,2)}, {v(A0+2*i,2)}, {v(A1+2*i,2)}")
    a(f"""
    M_NOLD:
    s_add_u32 s{sBASE}, s{sBASE}, s{sCAP}
    s_cmp_ge_u32 s{sBASE}, s{sNMAX}
    s_cbranch_scc1 M_EPI
    """)
    for i in range(4):
        a(f"buffer_store_dwordx4 {v(A0+4*i,4)}, v{l16}, s[{sWF}:{sWF+3}], s{sA} offen offset:{1024*i} sc0 sc1")
    a(f"""
    M_AGAIN:
    s_waitcnt vmcnt(0) lgkmcnt(0)
    s_barrier
    s_branch M_BATCH
    M_EPI:
    """)
    for i in range(8): a(f"v_pk_mul_f32 {v(A0+2*i,2)}, {v(A0+2*i,2)}, s[74:75]")
    for i in range(8): a(f"v_cvt_pk_bf16_f32 v{OWN+i}, v{A0+2*i}, v{A0+2*i+1}")
    a(f"""
    ds_write_b128 v{fa}, {v(OWN,4)} offset:{L_FE}
    ds_write_b128 v{fa}, {v(OWN+4,4)} offset:{L_FE+1024}
    v_xor_b32 v{fa}, 0x800, v{fa}
    v_mfma_f32_32x32x16_bf16 {v(E,16)}, {v(W+16,4)}, {v(OWN,4)}, {v(E,16)}
    v_mfma_f32_32x32x16_bf16 {v(E,16)}, {v(W+20,4)}, {v(OWN+4,4)}, {v(E,16)}
    s_lshl_b32 s{sA}, s{sSB}, 6
    s_mov_b32 s74, {f32(-LOG2E)}
    s_mov_b32 s75, {f32(-LOG2E)}
    s_waitcnt lgkmcnt(0)
    s_barrier
    @estamp 4
    ds_read_b128 {v(PAR,4)}, v{fa} offset:{L_FE}
    ds_read_b128 {v(PAR+4,4)}, v{fa} offset:{L_FE+1024}
    s_waitcnt lgkmcnt(1)
    v_mfma_f32_32x32x16_bf16 {v(E,16)}, {v(W+24,4)}, {v(PAR,4)}, {v(E,16)}
    s_waitcnt lgkmcnt(0)
    v_mfma_f32_32x32x16_bf16 {v(E,16)}, {v(W+28,4)}, {v(PAR+4,4)}, {v(E,16)}
    s_nop 11
    """)
    for q in range(2):
        b = 8 * q
        for i in range(4): a(f"v_pk_mul_f32 {v(AG+b+2*i,2)}, {v(E+b+2*i,2)}, s[74:75]")
        for i in range(8): a(f"v_exp_f32 v{AG+b+i}, v{AG+b+i}")
        for i in range(4): a(f"v_pk_add_f32 {v(AG+b+2*i,2)}, {v(AG+b+2*i,2)}, 1.0 op_sel_hi:[1,0]")
        for i in range(8): a(f"v_rcp_f32 v{AG+b+i}, v{AG+b+i}")
        for i in range(4): a(f"v_pk_mul_f32 {v(AG+b+2*i,2)}, {v(E+b+2*i,2)}, {v(AG+b+2*i,2)}")
        for i in range(4): a(f"v_cvt_pk_bf16_f32 v{D+4*q+i}, v{AG+b+2*i}, v{AG+b+2*i+1}")
        a(f"buffer_store_dwordx4 {v(D+4*q,4)}, v{oa}, s[{sOUT}:{sOUT+3}], s{sA} offen offset:{16*q} {OPT['oflags']}")
    if OPT["stamp"]: a("@estamp 5\ns_waitcnt vmcnt(0)\n@stamp 6")
    stamp_out(8, f"s_lshl_b32 s74, s2, 3\ns_add_u32 s74, s74, s{sW}", 10, 0x80000)
    a("M_END:\ns_endpgm")
    return R.n

hdr = f"""; MPNN edge-MLP + segment-sum + node update, two launches:
; @launch kernel=sort_kernel grid=(253,1,1) block=(1024,1,1) lds={SORT_LDS}
; @launch kernel=main_kernel grid=(256,1,1) block=(512,1,1) lds={MAIN_LDS}
.amdgcn_target "amdgcn-amd-amdhsa--gfx950"
.text
.globl sort_kernel
.type sort_kernel,@function
.globl main_kernel
.type main_kernel,@function
"""
gen_sort()
nv = gen_main()
txt = hdr + a.text() + '.section .rodata,"a"\n.p2align 6\n' + kdesc("sort_kernel", 56) + ".p2align 6\n" + kdesc("main_kernel", 256, 100 if OPT["stamp"] else 96)
open(sys.argv[1], "w").write(txt)
print("main vgprs", nv, "lds", MAIN_LDS, SORT_LDS)
```

```python
import sys, struct
from asmlib import *

OPT = dict(abl="", stamp=False, eflags="", mflags="", idxflags="", stflags="sc1", emst="sc1", eld="", pk=True, M0=1536, empf=True, mper=3, Y=False, xpf=0, mpf1=0, mpf2=0, prio=0, oflags="", otflags="", epf=0, xw=0, ns1=3)
for arg in sys.argv[2:]:
    k, val = arg.split("=")
    OPT[k] = {"True": True, "False": False}.get(val, val.replace("+", " "))
M0 = int(OPT["M0"]); MPER = int(OPT["mper"])
assert M0 % 32 == 0 and M0 <= 2048 and 3200 - M0 <= 2048

NCH, CH = 250, 3200
WS_REC, WS_O, WS_WF, WS_ST, WS_SP, WS_EM = 0, 0x400000, 0x600000, 0x700000, 0x1000000, 0x2000000
LOG2E = 1.4426950408889634
def f32(x): return "0x%08x" % struct.unpack("<I", struct.pack("<f", x))[0]

a = Asm()
a.stamps = OPT["stamp"]
def stamp_out(n, wid_sgpr_expr, base_sgpr, region):
    if not OPT["stamp"]: return
    a("s_waitcnt lgkmcnt(0)")
    a(wid_sgpr_expr)
    a(f"s_lshl_b32 s74, s74, 6\ns_add_u32 s74, s74, {WS_ST+region}\ns_add_u32 s92, s{base_sgpr}, s74\ns_addc_u32 s93, s{base_sgpr+1}, 0\nv_mov_b32 v0, 0")
    for i in range(n):
        a(f"v_mov_b32 v1, s{76+2*i}\nglobal_store_dword v0, v1, s[92:93] offset:{4*i}")
    if n == 8: a("s_sub_u32 s96, s96, s94\nv_mov_b32 v1, s96\nglobal_store_dword v0, v1, s[92:93] offset:32\nv_mov_b32 v1, s98\nglobal_store_dword v0, v1, s[92:93] offset:36")
def emit(l): a("\n".join(l))

def resolve(stream):
    out = []; vm = []; lg = []
    for it in stream:
        if isinstance(it, tuple) and it[0] == "@W":
            parts = []
            if it[1] is not None:
                idx = max(i for i, t in enumerate(vm) if t == it[1]); n = len(vm) - 1 - idx
                assert n <= 63; parts.append(f"vmcnt({n})")
            if it[2] is not None:
                idx = max(i for i, t in enumerate(lg) if t == it[2]); n = len(lg) - 1 - idx
                parts.append(f"lgkmcnt({min(n, 15)})")
            out.append("s_waitcnt " + " ".join(parts)); continue
        txt, tag = it if isinstance(it, tuple) else (it, None)
        if txt.startswith("buffer_"): vm.append(tag)
        if txt.startswith("ds_"): lg.append(tag)
        out.append(txt)
    return out

S_SRT = 4224
S_E = 17408
YM = OPT["Y"]
SORT_LDS = S_E + (0 if YM else M0 * 32)
def gen_sort():
    a(".p2align 8\nsort_kernel:")
    a(f"""
    s_cmp_ge_u32 s2, 253
    s_cbranch_scc1 S_END
    s_load_dwordx4 s[4:7], s[0:1], 16
    s_load_dwordx2 s[8:9], s[0:1], 8
    s_load_dwordx2 s[10:11], s[0:1], 64
    s_load_dwordx4 s[12:15], s[0:1], 32
    s_load_dwordx2 s[44:45], s[0:1], 0
    s_cmp_ge_u32 s2, 250
    s_cbranch_scc1 S_WPREP
    @stamp 0
    v_lshlrev_b32 v2, 2, v0
    v_mov_b32 v3, 0
    ds_write_b32 v2, v3
    s_mul_i32 s3, s2, 12800
    v_lshlrev_b32 v44, 4, v0
    v_add_u32 v1, s3, v44
    v_cmp_gt_u32 vcc, 800, v0
    s_mov_b64 s[40:41], vcc
    v_mov_b32 v12, 0x80000000
    v_cndmask_b32 v1, v12, v1, vcc
    v_lshrrev_b32 v34, 6, v0
    v_lshlrev_b32 v35, 2, v34
    v_readfirstlane_b32 s37, v34
    s_waitcnt lgkmcnt(0)
    """)
    srd(a, 20, 6, 3200000)
    fl = OPT["idxflags"]
    a(f"buffer_load_dwordx4 v[4:7], v1, s[20:23], 0 offen {fl}")
    srd(a, 16, 4, 3200000)
    a(f"buffer_load_dwordx4 v[8:11], v1, s[16:19], 0 offen {fl}")
    srd(a, 24, 10, 0x800000)
    a(f"""
    v_mov_b32 v15, 1
    v_cmp_le_u32 vcc, {M0//4}, v0
    v_mov_b32 v13, 2048
    v_subrev_u32 v14, {M0}, v2
    v_cndmask_b32 v13, 0, v13, vcc
    v_cndmask_b32 v16, v2, v14, vcc
    v_mov_b32 v47, {(2048-M0)*4}
    v_cndmask_b32 v47, 0, v47, vcc
    v_lshlrev_b32 v16, 21, v16
    s_lshl_b32 s3, s2, 14
    v_add3_u32 v47, v47, v44, s3
    v_cndmask_b32 v47, v12, v47, s[40:41]
    v_and_b32 v45, 0x1fe, v0
    v_lshlrev_b32 v45, 11, v45
    v_and_b32 v46, 1, v0
    v_lshl_or_b32 v45, v46, 3, v45
    v_lshrrev_b32 v46, 9, v0
    v_lshl_or_b32 v45, v46, 2, v45
    v_mul_u32_u24 v46, {2048-M0}, v46
    s_and_b32 s39, s2, 7
    s_lshl_b32 s39, s39, 5
    s_lshr_b32 s38, s2, 3
    s_add_u32 s39, s39, s38
    s_lshl_b32 s39, s39, 4
    s_add_u32 s39, s39, {WS_O}
    s_barrier
    """)
    srd(a, 28, 8, 25600000)
    npiece = 0 if YM else M0 // 32
    nr = (npiece + 15) // 16
    a(f"s_mul_i32 s42, s2, {CH*32}\ns_lshl_b32 s43, s37, 10")
    for r in range(nr):
        if (r + 1) * 16 > npiece:
            a(f"s_cmp_ge_u32 s37, {npiece - 16*r}\ns_cbranch_scc1 S_DMAD")
        a(f"s_add_u32 m0, s43, {S_E + r*16384}\ns_nop 0\nbuffer_load_dwordx4 v44, s[28:31], s42 offen {OPT['eld']} lds\ns_add_u32 s42, s42, 16384")
    a("S_DMAD:")
    a(f"""
    s_waitcnt vmcnt({nr if npiece % 16 == 0 else nr-1})
    @stamp 1
    """)
    for i in range(4):
        a(f"""
        v_mul_u32_u24 v{4+i}, 1342, v{4+i}
        v_lshrrev_b32 v{20+i}, 16, v{4+i}
        v_lshl_add_u32 v{20+i}, v{20+i}, 2, v13
        """)
    a("s_mov_b64 exec, s[40:41]")
    for i in range(4):
        a(f"ds_add_rtn_u32 v{24+i}, v{20+i}, v15")
    a(f"s_mov_b64 exec, -1")
    XPF = int(OPT["xpf"])
    def sort_xpf():
        srd(a, 48, 44, 3200000)
        a(f"""
        s_lshr_b32 s46, s2, 3
        s_mul_i32 s46, s46, 102400
        v_lshlrev_b32 v52, 7, v0
        v_cmp_gt_u32 vcc, {XPF}, v0
        s_nop 1
        v_cndmask_b32 v52, v12, v52, vcc
        buffer_load_dword v53, v52, s[48:51], s46 offen
        """)
    for i in range(4):
        a(f"""
        v_and_b32 v{28+i}, 0xffff, v{4+i}
        v_mul_u32_u24 v{28+i}, 6251, v{28+i}
        v_lshrrev_b32 v{28+i}, 23, v{28+i}
        v_lshl_or_b32 v{28+i}, v{8+i}, 6, v{28+i}
        v_add_u32 v17, {i<<21}, v16
        v_or_b32 v{28+i}, v{28+i}, v17
        """)
    a("""
    s_waitcnt lgkmcnt(0)
    s_barrier
    @stamp 2
    ds_read_b32 v32, v2
    """)
    if XPF: sort_xpf()
    a("""
    s_waitcnt lgkmcnt(0)
    v_mov_b32 v33, v32
    """)
    wave_scan(a, 33)
    a("""
    s_mov_b32 exec_lo, 0
    s_mov_b32 exec_hi, 0x80000000
    ds_write_b32 v35, v33 offset:4096
    s_mov_b64 exec, -1
    v_and_b32 v36, 15, v0
    v_lshlrev_b32 v36, 2, v36
    s_waitcnt lgkmcnt(0)
    s_barrier
    ds_read_b32 v37, v36 offset:4096
    s_waitcnt lgkmcnt(0)
    v_mov_b32 v38, v37
    """)
    for sh in (1, 2, 4, 8):
        a(f"s_nop 1\nv_add_u32_dpp v38, v38, v38 row_shr:{sh} row_mask:0xf bank_mask:0xf bound_ctrl:0")
    st = OPT["stflags"]
    a(f"""
    v_sub_u32 v38, v38, v37
    s_nop 0
    v_readlane_b32 s38, v38, s37
    v_sub_u32 v33, v33, v32
    s_nop 1
    v_add_u32 v33, s38, v33
    ds_write_b32 v2, v33
    v_add_u32 v39, v33, v46
    v_lshl_or_b32 v39, v32, 16, v39
    buffer_store_dword v39, v45, s[24:27], s39 offen {OPT['otflags']}
    s_waitcnt lgkmcnt(0)
    s_barrier
    @stamp 3
    s_mov_b64 exec, s[40:41]
    """)
    for i in range(4):
        a(f"ds_read_b32 v{40+i}, v{20+i}")
    for i in range(4):
        a(f"""
        s_waitcnt lgkmcnt({3})
        v_add_lshl_u32 v{40+i}, v{40+i}, v{24+i}, 2
        ds_write_b32 v{40+i}, v{28+i} offset:{S_SRT}
        """)
    no = 0 if YM else (M0 + 511) // 512
    a(f"""
    s_mov_b64 exec, -1
    v_lshrrev_b32 v4, 1, v0
    v_lshlrev_b32 v4, 2, v4
    v_and_b32 v5, 1, v0
    v_lshlrev_b32 v5, 4, v5
    """)
    srd_off(a, 28, 10, WS_EM, NCH * 131072)
    a(f"""
    s_lshl_b32 s42, s2, 17
    v_cmp_gt_u32 vcc, {(M0 - 512*(no-1))*2}, v0
    s_waitcnt vmcnt({2 if XPF else 1}) lgkmcnt(0)
    s_barrier
    @stamp 4
    v_cndmask_b32 v6, v12, v44, vcc
    """)
    for r in range(no):
        a(f"ds_read_b32 v{8+r}, v4 offset:{S_SRT + r*2048}")
    a(f"s_mov_b64 exec, s[40:41]\nds_read_b128 v[48:51], v44 offset:{S_SRT}\ns_mov_b64 exec, -1")
    for r in range(no):
        a(f"""
        s_waitcnt lgkmcnt({no})
        v_lshrrev_b32 v{8+r}, 21, v{8+r}
        v_lshl_add_u32 v{8+r}, v{8+r}, 5, v5
        ds_read_b128 v[{16+4*r}:{19+4*r}], v{8+r} offset:{S_E}
        """)
    a(f"s_waitcnt lgkmcnt({no})\nbuffer_store_dwordx4 v[48:51], v47, s[24:27], 0 offen {st}")
    for r in range(no):
        a(f"""
        s_waitcnt lgkmcnt({no-1-r})
        buffer_store_dwordx4 v[{16+4*r}:{19+4*r}], v{6 if r == no-1 else 44}, s[28:31], s42 offen {OPT['emst']}
        s_add_u32 s42, s42, 16384
        """)
    if OPT["stamp"]: a("s_waitcnt vmcnt(0)\n@stamp 5")
    stamp_out(6, "s_lshl_b32 s74, s2, 4\ns_add_u32 s74, s74, s37", 10, 0)
    a("s_endpgm")
    a(f"""
    S_WPREP:
    v_lshrrev_b32 v1, 6, v0
    s_nop 0
    v_readfirstlane_b32 s3, v1
    s_sub_u32 s16, s2, 250
    s_lshl_b32 s16, s16, 4
    s_add_u32 s3, s3, s16
    s_cmp_ge_u32 s3, 34
    s_cbranch_scc1 S_END
    v_and_b32 v1, 31, v0
    v_bfe_u32 v2, v0, 5, 1
    s_waitcnt lgkmcnt(0)
    s_mov_b32 s22, 18432
    s_mov_b32 s23, 0x20000
    s_cmp_ge_u32 s3, 18
    s_cbranch_scc1 S_WUPD
    s_mov_b32 s20, s12
    s_mov_b32 s21, s13
    s_lshr_b32 s30, s3, 1
    s_and_b32 s31, s3, 1
    s_lshl_b32 s31, s31, 5
    v_add_u32 v3, s31, v1
    s_mov_b32 s34, {f32(-LOG2E)}
    s_branch S_WLOAD
    S_WUPD:
    s_mov_b32 s20, s14
    s_mov_b32 s21, s15
    s_mov_b32 s22, 16384
    s_sub_u32 s35, s3, 18
    s_and_b32 s30, s35, 7
    s_lshr_b32 s31, s35, 3
    s_lshl_b32 s31, s31, 5
    v_bfe_u32 v4, v1, 2, 1
    v_lshlrev_b32 v4, 4, v4
    v_lshrrev_b32 v5, 3, v1
    v_lshl_add_u32 v4, v5, 2, v4
    v_and_b32 v5, 3, v1
    v_add3_u32 v3, v4, v5, s31
    s_mov_b32 s34, 1.0
    S_WLOAD:
    s_lshl_b32 s30, s30, 4
    v_lshlrev_b32 v4, 3, v2
    v_add_u32 v4, s30, v4
    v_lshlrev_b32 v4, 7, v4
    v_lshl_add_u32 v4, v3, 1, v4
    """)
    for i in range(8):
        a(f"buffer_load_ushort v{8+i}, v4, s[20:23], 0 offen offset:{i*128}")
    srd(a, 24, 10, 0x800000)
    a(f"""
    v_and_b32 v5, 63, v0
    v_lshlrev_b32 v5, 4, v5
    s_lshl_b32 s35, s3, 10
    s_add_u32 s35, s35, {WS_WF}
    s_waitcnt vmcnt(0)
    """)
    for i in range(8):
        a(f"v_lshlrev_b32 v{8+i}, 16, v{8+i}\nv_mul_f32 v{8+i}, s34, v{8+i}")
    for i in range(4):
        a(f"v_cvt_pk_bf16_f32 v{16+i}, v{8+2*i}, v{9+2*i}")
    a("""
    buffer_store_dwordx4 v[16:19], v5, s[24:27], s35 offen
    S_END:
    s_endpgm
    """)

LMAX = 17
L_TB = 0
L_CNT = 1024
L_NT = L_CNT + 128
L_MX = L_NT + 16
L_BAS = L_MX + 16
L_ZR = 1536
L_LS = 2048
LSZ = LMAX * 1024
L_LE = L_LS + LSZ
L_ST = L_LE + LSZ
SCAP = 224
L_XR = L_ST + 8 * SCAP * 32
XRS = 8704
MAIN_LDS = L_XR + 8 * XRS
assert MAIN_LDS <= 163840 and L_XR % 4096 == 0
L_C8 = L_XR
C8O = 4096
L_GL = L_XR + 8192
GLS = 2176
L_WL = L_GL + 8 * GLS
assert L_WL + 34 * 1024 <= MAIN_LDS
L_FE = L_LS
DUMMY = 0xC0000000
DFLAG = 1 << 24

def gen_main():
    R = Regs("v", 1, 256)
    vLS = R.alloc("vLS"); vLE = R.alloc("vLE")
    vCr = R.alloc("vCr", 5)
    RP = R.alloc("RP", 8, 2)
    XA = R.alloc("XA", 4); CX = R.alloc("CX", 4)
    S4 = R.alloc("S4", 4, 4); T = R.alloc("T", 8, 4)
    FX = R.alloc("FX", 16, 4); E = R.alloc("E", 16, 4)
    D = R.alloc("D", 32, 4); Q = R.alloc("Q", 32, 4); AG = R.alloc("AG", 32, 4); W = R.alloc("W", 40, 4)
    U0 = R.alloc("U0", 16, 4); WU = R.alloc("WU", 16, 4); EP = R.alloc("EP", 16, 4); sa = R.alloc("sa"); junk = R.alloc("junk")
    h16 = RP + 1
    def W1f(ks, nh): return v(W + (ks * 2 + nh) * 4, 4)
    def W3f(nh): return v(W + 32 + nh * 4, 4)
    def Es(t): return v(E + 4 * (t % 4), 4)
    sX, sE, sREC, sEM, sWF, sOUT = 16, 20, 24, 28, 32, 36
    sW, sSB, sS0, sSO, sN, sBASE, sCNT, sT, sXRB, sA, sB, sCAP = 40, 41, 42, 43, 44, 45, 46, 47, 48, 49, 50, 51
    sNB, sGL, sNMAX, sG, sL, sM7, sB30, sDF, sNS = 70, 71, 72, 73, 12, 13, 14, 15, 3
    sBK = 75
    lane, kk12, c0, c1, g0, g1, p0, p1, l16, tt, qa, one, nta, fl0 = [E + i for i in range(14)]
    G, RC, NA, RK = D, D + 8, D + 16, D + 24
    TBv = FX
    OFv, CA = EP, EP + 8
    XF = Q + 16
    t0, t1, t2, t3, t4, m, h = T, T+1, T+2, T+3, T+4, T+5, T+6
    def mk(i): return f"s[{54+2*i}:{55+2*i}]"
    ORD = list(range(7, -1, -1))
    def skip(lab):
        a(f"s_cmp_le_u32 s{sCNT}, 384\ns_cbranch_scc1 {lab}6\ns_cmp_le_u32 s{sCNT}, 448\ns_cbranch_scc1 {lab}7")
    def after(lab, i):
        if i >= 6: a(f"{lab}{i}:")
    ne = 0 if "noe" in OPT["abl"] else 1
    steps = [f"row_shr:{sh} row_mask:0xf bank_mask:0xf bound_ctrl:0" for sh in (1, 2, 4, 8)] + ["row_bcast:15 row_mask:0xa bank_mask:0xf", "row_bcast:31 row_mask:0xc bank_mask:0xf"]
    a.inmain = True
    a(".p2align 8\nmain_kernel:")
    a(f"""
    s_cmp_ge_u32 s2, 256
    s_cbranch_scc1 M_END
    s_load_dwordx2 s[10:11], s[0:1], 64
    s_load_dwordx4 s[4:7], s[0:1], 0
    s_load_dwordx2 s[8:9], s[0:1], 48
    @stamp 0
    v_lshrrev_b32 v{T}, 6, v0
    s_mov_b32 s{sCAP}, 512
    v_readfirstlane_b32 s{sW}, v{T}
    s_mov_b32 s{sBASE}, 0
    s_mov_b32 s{sREC+2}, {0x600000//4}
    s_mov_b32 s{sREC+3}, 0x20000
    s_and_b32 s{sSB}, s{sW}, 1
    s_mul_i32 s{sGL}, s{sW}, {GLS}
    s_add_u32 s{sGL}, s{sGL}, {L_GL}
    M_BATCH:
    s_setprio 2
    s_and_b32 s74, s2, 7
    s_lshl_b32 s74, s74, 5
    s_lshr_b32 s{sA}, s2, 3
    s_add_u32 s74, s74, s{sA}
    s_lshl_b32 s{sA}, s74, 10
    s_lshl_b32 s{sB}, s{sSB}, 1
    s_add_u32 s{sA}, s{sA}, s{sB}
    s_lshr_b32 s{sB}, s{sW}, 1
    s_lshl_b32 s{sB}, s{sB}, 8
    s_add_u32 s{sA}, s{sA}, s{sB}
    s_add_u32 s{sA}, s{sA}, {WS_O//4}
    v_and_b32 v{lane}, 63, v0
    v_lshl_add_u32 v{tt}, v{lane}, 2, s{sA}
    v_add_u32 v{qa}, 1, v{tt}
    s_waitcnt lgkmcnt(0)
    s_mov_b32 s{sREC}, s10
    s_or_b32 s{sREC+1}, s11, {4<<16}
    buffer_load_dword v{c0}, v{tt}, s[{sREC}:{sREC+3}], 0 idxen
    buffer_load_dword v{c1}, v{qa}, s[{sREC}:{sREC+3}], 0 idxen
    """)
    srd_off(a, sWF, 10, WS_WF, 34 * 1024)
    a(f"v_lshlrev_b32 v{l16}, 4, v{lane}\ns_lshl_b32 s{sA}, s{sW}, 10\ns_mov_b32 s{sB}, s{sA}")
    for j in range(5):
        if j == 4: a(f"s_and_b32 s{sA}, s{sA}, 1024\ns_add_u32 s{sB}, s{sA}, 32768")
        a(f"s_add_u32 m0, s{sA}, {L_WL + j*8192}\ns_nop 0\nbuffer_load_dwordx4 v{l16}, s[{sWF}:{sWF+3}], s{sB} offen lds\ns_add_u32 s{sB}, s{sB}, 8192")
    srd(a, sX, 4, 3200000)
    a(f"""
    s_lshl_b32 s{sA}, s74, 17
    s_add_u32 s{sA}, s{sA}, 1341
    s_mul_hi_u32 s{sS0}, s{sA}, 3200423
    s_add_u32 s{sA}, s{sA}, 65536
    s_mul_hi_u32 s{sSO}, s{sA}, 3200423
    s_add_u32 s{sA}, s{sA}, 65536
    s_mul_hi_u32 s{sNB}, s{sA}, 3200423
    s_min_u32 s{sNB}, s{sNB}, 25000
    s_sub_u32 s{sNB}, s{sNB}, s{sS0}
    s_sub_u32 s{sSO}, s{sSO}, s{sS0}
    s_mul_i32 s{sSO}, s{sSO}, s{sSB}
    s_lshl_b32 s{sS0}, s{sS0}, 7
    """)
    a(f"""
    v_lshrrev_b32 v{t0}, 4, v{lane}
    v_xor_b32 v{t0}, v{t0}, v{lane}
    v_and_b32 v{t0}, 7, v{t0}
    v_and_b32 v{t1}, 0x380, v{l16}
    v_lshl_or_b32 v{t0}, v{t0}, 4, v{t1}
    v_xor_b32 v{t1}, 64, v{t0}
    s_mul_i32 s{sL}, s{sW}, {SCAP*32}
    s_add_u32 s{sL}, s{sL}, {L_ST}
    s_add_u32 m0, s{sL}, 5120
    s_lshl_b32 s{sB}, s{sW}, 11
    s_add_u32 s{sB}, s{sB}, s{sS0}
    buffer_load_dwordx4 v{t0}, s[{sX}:{sX+3}], s{sB} offen lds
    buffer_load_dwordx4 v{t1}, s[{sX}:{sX+3}], s{sB} offen offset:1024 lds
    """)
    a(f"""
    v_and_b32 v{m}, 31, v{lane}
    v_lshrrev_b32 v{h}, 5, v{lane}
    v_lshlrev_b32 v{RP+1}, 4, v{h}
    v_lshlrev_b32 v{Q+5}, 3, v0
    v_mov_b32 v{Q+6}, 0
    v_mov_b32 v{Q+7}, 0
    v_add_u32 v{Q+8}, {L_C8}, v{Q+5}
    v_lshlrev_b32 v{Q+5}, 2, v0
    ds_write_b64 v{Q+8}, {v(Q+6,2)}
    ds_write_b32 v{Q+5}, v{Q+6}
    s_and_b32 s{sA}, s{sW}, 6
    v_lshl_add_u32 v{kk12}, v{m}, 3, v{h}
    v_add_u32 v{kk12}, s{sA}, v{kk12}
    v_cmp_gt_u32 vcc, {NCH}, v{kk12}
    v_lshlrev_b32 v{kk12}, 12, v{kk12}
    v_mov_b32 v{t1}, 0xffff
    v_lshl_add_u32 v{qa}, v{lane}, 2, s{sGL}
    s_waitcnt vmcnt(7)
    @stamp 1
    v_cndmask_b32 v{c0}, 0, v{c0}, vcc
    v_cndmask_b32 v{c1}, 0, v{c1}, vcc
    v_lshrrev_b32 v{p0}, 16, v{c0}
    v_lshrrev_b32 v{p1}, 16, v{c1}
    """)
    fl = [f"v_and_or_b32 v{g0}, v{c0}, v{t1}, v{kk12}", f"v_and_or_b32 v{g1}, v{c1}, v{t1}, v{kk12}",
          f"v_lshrrev_b32 v{c0}, 16, v{c0}", f"v_lshrrev_b32 v{c1}, 16, v{c1}", "s_nop 0", "s_nop 0"]
    for n, stp in enumerate(steps):
        a(f"{fl[n]}\nv_add_u32_dpp v{p0}, v{p0}, v{p0} {stp}\nv_add_u32_dpp v{p1}, v{p1}, v{p1} {stp}")
    a(f"""
    v_readlane_b32 s{sNS}, v{p0}, 63
    v_readlane_b32 s{sN}, v{p1}, 63
    v_sub_u32 v{p0}, v{p0}, v{c0}
    v_sub_u32 v{p1}, v{p1}, v{c1}
    s_add_u32 s{sN}, s{sN}, s{sNS}
    v_add_u32 v{p1}, s{sNS}, v{p1}
    s_mov_b32 s{sCNT}, s{sN}
    s_add_u32 s{sA}, s{sN}, s{sBASE}
    s_cmp_le_u32 s{sA}, s{sCAP}
    s_cbranch_scc0 M_WIN
    s_cmp_eq_u32 s{sBASE}, 0
    s_cbranch_scc1 M_NOWIN
    M_WIN:
    s_sub_i32 s{sCNT}, s{sN}, s{sBASE}
    s_max_i32 s{sCNT}, s{sCNT}, 0
    s_min_u32 s{sCNT}, s{sCNT}, s{sCAP}
    s_sub_i32 s{sNS}, s{sNS}, s{sBASE}
    s_max_i32 s{sNS}, s{sNS}, 0
    """)
    for (pp, cc, gg) in ((p0, c0, g0), (p1, c1, g1)):
        a(f"""
        v_subrev_u32 v{tt}, s{sBASE}, v{pp}
        v_max_i32 v{pp}, 0, v{tt}
        v_add_u32 v{cc}, v{tt}, v{cc}
        v_min_i32 v{cc}, s{sCAP}, v{cc}
        v_sub_u32 v{cc}, v{cc}, v{pp}
        v_sub_u32 v{tt}, v{pp}, v{tt}
        v_add_u32 v{gg}, v{gg}, v{tt}
        """)
    a(f"M_NOWIN:\ns_min_u32 s{sNS}, s{sNS}, {0 if YM else SCAP}")
    pa, ca_, ga, gb = t0, t1, t2, t3
    for n, (pp, cc, gg) in enumerate(((p0, c0, g0), (p1, c1, g1))):
        a(f"""
        v_lshl_add_u32 v{pp}, v{pp}, 2, s{sGL}
        v_add_u32 v{ga}, 1, v{gg}
        v_add_u32 v{gb}, 2, v{gg}
        v_mov_b32 v{ca_}, v{cc}
        v_mov_b32 v{pa}, v{pp}
        M_EXP{n}:
        """)
        for r in (1, 3, 5, 7):
            a(f"v_cmpx_lt_i32 vcc, {r}, v{ca_}\nds_write2_b32 v{pa}, v{ga}, v{gb} offset0:{r} offset1:{r+1}\nv_add_u32 v{ga}, 2, v{ga}\nv_add_u32 v{gb}, 2, v{gb}")
        a(f"""
        v_cmpx_lt_i32 vcc, 9, v{ca_}
        v_add_u32 v{pa}, 32, v{pa}
        v_subrev_u32 v{ca_}, 8, v{ca_}
        s_cbranch_execnz M_EXP{n}
        s_mov_b64 exec, -1
        """)
    a(f"""
    v_cmpx_lt_i32 vcc, 0, v{c0}
    ds_write_b32 v{p0}, v{g0}
    s_mov_b64 exec, -1
    v_cmpx_lt_i32 vcc, 0, v{c1}
    ds_write_b32 v{p1}, v{g1}
    s_mov_b64 exec, -1
    """)
    for i in ORD:
        a(f"ds_read_b32 v{G+i}, v{qa} offset:{256*i}")
    SG = U0
    a(f"v_lshrrev_b32 v{t0}, 1, v{lane}\nv_lshl_add_u32 v{t1}, v{t0}, 2, s{sGL}")
    for j in range(7):
        a(f"ds_read_b32 v{SG+j}, v{t1} offset:{128*j}")
    for i in ORD:
        a(f"s_sub_i32 s{sA}, s{sCNT}, {64*i}\nv_cmp_gt_i32 {mk(i)}, s{sA}, v{lane}")
    a("s_waitcnt vmcnt(0)")
    skip("M_GA")
    for i in ORD:
        a(f"""
        s_mov_b64 exec, {mk(i)}
        s_waitcnt lgkmcnt({i+7})
        buffer_load_dword v{RC+i}, v{G+i}, s[{sREC}:{sREC+3}], 0 idxen
        """)
        after("M_GA", i)
    a(f"""
    s_mov_b64 exec, -1
    @stamp 2
    s_setprio 0
    """)
    for i in range(4): a(f"v_mov_b32 v{S4+i}, {DUMMY}")
    a(f"v_lshlrev_b32 v{t0}, 4, v0\nv_lshlrev_b32 v{t1}, 2, v0")
    assert 2 * LSZ == 4 * 8192 + 2048
    for i in range(4): a(f"ds_write_b128 v{t0}, {v(S4,4)} offset:{L_LS+8192*i}")
    a(f"""
    ds_write_b32 v{t1}, v{S4} offset:{L_LS+8192*4}
    s_mov_b32 s{sB}, s{sL}
    s_sub_u32 s{sE}, s6, {DFLAG*32}
    s_subb_u32 s{sE+1}, s7, 0
    s_or_b32 s{sE+1}, s{sE+1}, {32<<16}
    s_mov_b32 s{sE+2}, {(DFLAG + 800000) * ne}
    s_mov_b32 s{sE+3}, 0x20000
    s_sub_u32 s{sG}, 11, s{sW}
    s_cmp_lt_u32 s{sW}, 4
    s_cselect_b32 s{sG}, s{sW}, s{sG}
    s_mul_i32 s{sXRB}, s{sG}, {XRS}
    s_add_u32 s{sXRB}, s{sXRB}, {L_XR}
    s_mov_b32 s{sM7}, 0xffffff80
    s_mov_b32 s{sB30}, 0x40000000
    s_mov_b32 s{sDF}, {DFLAG}
    v_mov_b32 v{RP+3}, v{h16}
    v_mov_b32 v{RP+5}, v{h16}
    v_mov_b32 v{RP+7}, v{h16}
    v_lshrrev_b32 v{t0}, 3, v{lane}
    s_lshl_b32 s{sA}, s{sG}, 7
    v_lshl_add_u32 v{vLS}, v{t0}, 4, s{sA}
    v_lshl_add_u32 v{vLE}, v{m}, 2, s{sA}
    v_and_b32 v{t3}, 1, v{t0}
    v_lshlrev_b32 v{t3}, 4, v{t3}
    v_lshl_add_u32 v{sa}, v{lane}, 5, v{t3}
    v_add_u32 v{sa}, s{sB}, v{sa}
    v_and_b32 v{t1}, 4, v{t0}
    v_and_b32 v{t2}, 7, v{lane}
    v_xor_b32 v{t1}, v{t1}, v{t2}
    v_lshlrev_b32 v{CX}, 4, v{t1}
    v_xor_b32 v{CX+1}, 16, v{CX}
    v_xor_b32 v{CX+2}, 32, v{CX}
    v_xor_b32 v{CX+3}, 48, v{CX}
    v_and_b32 v{t0}, 3, v{m}
    v_lshrrev_b32 v{t1}, 2, v{m}
    v_lshl_add_u32 v{t1}, v{t0}, 3, v{t1}
    v_lshlrev_b32 v{t1}, 7, v{t1}
    v_add_u32 v{t1}, s{sXRB}, v{t1}
    v_lshrrev_b32 v{t2}, 4, v{m}
    v_lshl_or_b32 v{t0}, v{t2}, 2, v{t0}
    v_xor_b32 v{t0}, v{t0}, v{h}
    v_lshl_add_u32 v{XA}, v{t0}, 4, v{t1}
    v_xor_b32 v{XA+1}, 32, v{XA}
    v_xor_b32 v{XA+2}, 64, v{XA}
    v_xor_b32 v{XA+3}, 0x60, v{XA}
    v_mov_b32 v{one}, 1
    v_mov_b32 v{nta}, 0
    v_mov_b32 v{fl0}, s{sCNT}
    v_mov_b32 v{fl0+1}, s{sN}
    v_lshrrev_b32 v{t2}, 4, v{lane}
    v_xor_b32 v{t2}, v{t2}, v{lane}
    v_and_b32 v{t2}, 1, v{t2}
    v_lshlrev_b32 v{t2}, 4, v{t2}
    v_lshrrev_b32 v{t4}, 1, v{lane}
    v_bfe_u32 v{t0}, v{m}, 1, 3
    v_xor_b32 v{t0}, v{t0}, v{h}
    v_lshlrev_b32 v{t0}, 4, v{t0}
    v_and_b32 v{t1}, 15, v{m}
    v_lshl_or_b32 v{t0}, v{t1}, 7, v{t0}
    v_lshrrev_b32 v{t1}, 4, v{m}
    v_mul_u32_u24 v{t1}, {SCAP*32}, v{t1}
    s_and_b32 s{sA}, s{sW}, 6
    s_mul_i32 s{sA}, s{sA}, {SCAP*32}
    v_add3_u32 v{t0}, v{t0}, v{t1}, s{sA}
    """)
    srd_off(a, sEM, 10, WS_EM, 0 if "nom" in OPT["abl"] else NCH * 131072)
    a("s_waitcnt lgkmcnt(5)")
    for j in range(7): a(f"v_lshl_add_u32 v{SG+j}, v{SG+j}, 5, v{t2}")
    a("s_setprio 2\ns_barrier")
    def stage(js):
        for j in js:
            a(f"""
            s_sub_i32 s{sA}, s{sNS}, {32*j}
            s_add_u32 m0, s{sL}, {1024*j}
            v_cmpx_gt_i32 vcc, s{sA}, v{t4}
            buffer_load_dwordx4 v{SG+j}, s[{sEM}:{sEM+3}], 0 offen {OPT['mflags']} lds
            """)
        a("s_mov_b64 exec, -1")
    NS1 = int(OPT["ns1"])
    assert NS1 <= 5
    for sx in range(4):
        a(f"ds_read_b128 {v(XF+4*sx,4)}, v{t0} offset:{L_ST+5120}" + (f"\nv_xor_b32 v{t0}, {(32, 96, 32)[sx]}, v{t0}" if sx < 3 else ""))
    stage(range(NS1))
    def wread():
        a(f"""
        s_lshl_b32 s{sA}, s{sSB}, 13
        s_add_u32 s{sA}, s{sA}, {L_WL + 18*1024}
        v_add_u32 v{t0}, s{sA}, v{l16}
        s_lshl_b32 s{sA}, s{sSB}, 11
        v_add_u32 v{t1}, s{sA}, v{t0}
        v_subrev_u32 v{t2}, s{sA}, v{t0}
        v_add_u32 v{t3}, {L_WL}, v{l16}
        """)
        for sx in range(4): a(f"ds_read_b128 {v(FX+4*sx,4)}, v{t0} offset:{1024*sx}")
        a(f"""
        ds_read_b128 {v(WU,4)}, v{t1} offset:4096
        ds_read_b128 {v(WU+4,4)}, v{t1} offset:5120
        ds_read_b128 {v(WU+8,4)}, v{t2} offset:6144
        ds_read_b128 {v(WU+12,4)}, v{t2} offset:7168
        """)
        for f in range(18):
            dst = W + 4*f if f < 8 else (AG + 4*(f-8) if f < 16 else W + 32 + 4*(f-16))
            a(f"ds_read_b128 {v(dst,4)}, v{t3} offset:{1024*f}")
            if f == 6:
                a("s_waitcnt lgkmcnt(11)")
                for st in range(4):
                    a(f"v_mfma_f32_32x32x16_bf16 {v(U0,16)}, {v(FX+4*st,4)}, {v(XF+4*st,4)}, {'0' if st == 0 else v(U0,16)}")
    a(f"""
    s_mov_b32 s75, {L_C8}
    s_movk_i32 s{sB}, 0xe00
    s_mov_b64 exec, 1
    ds_add_u32 v{nta}, v{fl0} offset:{L_NT}
    ds_max_u32 v{nta}, v{fl0+1} offset:{L_MX}
    """)
    skip("M_RK")
    for i in ORD:
        a(f"""
        s_mov_b64 exec, {mk(i)}
        s_waitcnt vmcnt({i+NS1})
        v_and_b32 v{NA+i}, 63, v{RC+i}
        v_lshrrev_b32 v{tt}, 9, v{RC+i}
        v_add_u32 v{NA+i}, s{sSO}, v{NA+i}
        v_lshl_add_u32 v{CA+i}, v{NA+i}, 2, s75
        v_and_or_b32 v{CA+i}, v{tt}, s{sB}, v{CA+i}
        ds_add_rtn_u32 v{RK+i}, v{CA+i}, v{one}
        """)
        after("M_RK", i)
    EPF = int(OPT["epf"])
    def pack(lab):
        a(f"s_movk_i32 s{sB}, {CH}\ns_mov_b32 s74, {EPF*128}")
        skip(lab)
        for i in ORD:
            a(f"""
            v_lshrrev_b32 v{t0}, 12, v{G+i}
            v_lshrrev_b32 v{tt}, 21, v{RC+i}
            v_bfe_i32 v{t1}, v{G+i}, 11, 1
            v_mad_u32_u24 v{tt}, v{t0}, s{sB}, v{tt}
            v_and_b32 v{t1}, {M0}, v{t1}
            v_bfe_u32 v{RC+i}, v{RC+i}, 6, 15
            v_add3_u32 v{G+i}, v{t1}, v{tt}, s{sDF}
            v_lshl_add_u32 v{RC+i}, v{RC+i}, 7, v{NA+i}
            v_lshlrev_b32 v{NA+i}, 3, v{NA+i}
            """)
            if i < 4:
                a(f"""
                s_sub_i32 s{sA}, s{sNS}, {64*i}
                v_cmp_gt_i32 vcc, s{sA}, v{lane}
                v_add_u32 v{tt}, {2048*i}, v{sa}
                s_nop 0
                v_cndmask_b32 v{G+i}, v{G+i}, v{tt}, vcc
                """)
            after(lab, i)
    a(f"""
    s_mov_b64 exec, -1
    @pstamp 3
    s_cmp_eq_u32 s{sW}, 0
    s_cbranch_scc1 M_PK0
    s_lshl_b32 s{sA}, s{sW}, 8
    s_add_u32 s{sA}, s{sA}, {L_C8 - 256}
    v_lshl_add_u32 v{S4}, v{lane}, 2, s{sA}
    v_mov_b32 v{Q+8}, 0
    s_waitcnt lgkmcnt(0)
    s_barrier
    @pstamp 4
    s_cmp_gt_u32 s{sW}, 2
    s_cbranch_scc1 M_NOPFX
    """)
    for j in range(3): a(f"ds_read2st64_b32 {v(Q+2*j,2)}, v{S4} offset0:{4*j} offset1:{4*j+2}")
    a(f"s_waitcnt lgkmcnt(0)\nv_mov_b32 v{Q+9}, v{Q}")
    for j in range(1, 6): a(f"v_add_u32 v{Q+9+j}, v{Q+8+j}, v{Q+j}")
    for j in range(4): a(f"ds_write2st64_b32 v{S4}, v{Q+8+2*j}, v{Q+9+2*j} offset0:{16+4*j} offset1:{16+4*j+2}")
    a("M_NOPFX:\ns_setprio 0")
    stage(range(NS1, 7)); pack("M_PB")
    a("s_waitcnt lgkmcnt(0)\ns_barrier\ns_branch M_P4E")
    d0, d1, f0, f1, k0, k1, vL, vR, ks, a4, l0, l1, o0, o1, cn, ci = [Q + i for i in range(16)]
    m0_, B0, m1_, B1 = S4, S4+1, S4+2, S4+3
    a(f"M_PK0:\ns_mov_b32 s{sT}, s{sL}")
    a(f"""
    s_setprio 3
    v_lshlrev_b32 v{a4}, 3, v{lane}
    v_lshlrev_b32 v{cn}, 2, v{lane}
    v_add_u32 v{cn}, {L_C8}, v{cn}
    v_sub_u32 v{ci}, 31, v{m}
    v_lshlrev_b32 v{ci}, 2, v{ci}
    s_mov_b32 s75, {f32(4194304.0)}
    s_waitcnt lgkmcnt(0)
    s_barrier
    @pstamp 4
    ds_read_b32 v{ks}, v{nta} offset:{L_NT}
    """)
    for j in range(7): a(f"ds_read2st64_b32 {v(FX+2*j,2)}, v{cn} offset0:{2*j} offset1:{2*j+1}")
    a(f"""
    s_waitcnt lgkmcnt(4)
    v_readfirstlane_b32 s{sL}, v{ks}
    v_add3_u32 v{d0}, v{FX}, v{FX+2}, v{FX+4}
    v_add3_u32 v{d1}, v{FX+1}, v{FX+3}, v{FX+5}
    s_lshr_b32 s{sL}, s{sL}, 8
    s_add_u32 s{sL}, s{sL}, 2
    s_waitcnt lgkmcnt(0)
    v_add3_u32 v{d0}, v{d0}, v{FX+6}, v{FX+8}
    v_add3_u32 v{d1}, v{d1}, v{FX+7}, v{FX+9}
    v_add3_u32 v{d0}, v{d0}, v{FX+10}, v{FX+12}
    v_add3_u32 v{d1}, v{d1}, v{FX+11}, v{FX+13}
    v_cvt_f32_u32 v{f0}, v{d0}
    v_cvt_f32_u32 v{f1}, v{d1}
    M_LS:
    s_add_u32 s{sL}, s{sL}, 1
    s_cmp_gt_u32 s{sL}, {LMAX}
    s_cbranch_scc1 M_P4W
    v_cvt_f32_u32 v{vL}, s{sL}
    v_rcp_f32 v{vR}, v{vL}
    v_add_f32 v{vL}, -0.5, v{vL}
    v_add_f32 v{k0}, v{f0}, v{vL}
    v_add_f32 v{k1}, v{f1}, v{vL}
    v_mul_f32 v{k0}, v{k0}, v{vR}
    v_mul_f32 v{k1}, v{k1}, v{vR}
    v_cvt_u32_f32 v{k0}, v{k0}
    v_cvt_u32_f32 v{k1}, v{k1}
    v_add_u32 v{ks}, v{k0}, v{k1}
    """)
    fillers = [f"v_cvt_f32_u32 v{l0}, v{k0}", f"v_cvt_f32_u32 v{l1}, v{k1}",
               f"v_rcp_f32 v{m0_}, v{l0}", f"v_rcp_f32 v{m1_}, v{l1}",
               f"v_add_f32 v{l0}, v{l0}, v{f0}", f"v_add_f32 v{l1}, v{l1}, v{f1}",
               f"v_add_f32 v{l0}, -0.5, v{l0}", f"v_add_f32 v{l1}, -0.5, v{l1}",
               f"v_mul_f32 v{l0}, v{l0}, v{m0_}", f"v_mul_f32 v{l1}, v{l1}, v{m1_}",
               f"v_cvt_u32_f32 v{l0}, v{l0}", f"v_cvt_u32_f32 v{l1}, v{l1}"]
    for n, stp in enumerate(steps):
        a(f"{fillers[2*n]}\n{fillers[2*n+1]}\nv_add_u32_dpp v{ks}, v{ks}, v{ks} {stp}")
    a(f"""
    v_lshlrev_b32 v{l0}, 2, v{l0}
    v_readlane_b32 s{sA}, v{ks}, 63
    v_lshlrev_b32 v{l1}, 2, v{l1}
    s_cmp_gt_u32 s{sA}, 256
    s_cbranch_scc1 M_LS
    ds_add_rtn_u32 v{o0}, v{l0}, v{k0} offset:{L_CNT}
    ds_add_rtn_u32 v{o1}, v{l1}, v{k1} offset:{L_CNT}
    ds_read_b32 v{cn}, v{ci} offset:{L_CNT}
    v_mul_f32 v{m0_}, s75, v{m0_}
    v_mul_f32 v{m1_}, s75, v{m1_}
    v_cvt_u32_f32 v{m0_}, v{m0_}
    v_cvt_u32_f32 v{m1_}, v{m1_}
    v_add_u32 v{m0_}, 2, v{m0_}
    v_add_u32 v{m1_}, 2, v{m1_}
    v_lshlrev_b32 v{B0}, 2, v{k0}
    v_lshlrev_b32 v{B1}, 2, v{k1}
    v_sub_u32 v{B0}, 1024, v{B0}
    v_sub_u32 v{B1}, 1024, v{B1}
    v_sub_u32 v{l0}, 124, v{l0}
    v_sub_u32 v{l1}, 124, v{l1}
    s_waitcnt lgkmcnt(0)
    v_mov_b32 v{ks}, v{cn}
    """)
    for stp in steps[:5]:
        a(f"s_nop 1\nv_add_u32_dpp v{ks}, v{ks}, v{ks} {stp}")
    a(f"""
    v_sub_u32 v{ks}, v{ks}, v{cn}
    ds_bpermute_b32 v{d0}, v{l0}, v{ks}
    ds_bpermute_b32 v{d1}, v{l1}, v{ks}
    ds_write_b32 v{ci}, v{ks} offset:{L_BAS}
    s_waitcnt lgkmcnt(1)
    v_add_u32 v{o0}, v{o0}, v{d0}
    v_add_u32 v{o1}, v{o1}, v{d1}
    v_lshl_or_b32 v{m0_}, v{o0}, 24, v{m0_}
    v_lshl_or_b32 v{m1_}, v{o1}, 24, v{m1_}
    ds_write2st64_b64 v{a4}, {v(m0_,2)}, {v(m1_,2)} offset0:0 offset1:1
    M_P4W:
    v_mov_b32 v{ks}, s{sL}
    ds_write_b32 v{nta}, v{ks} offset:{L_MX+4}
    s_waitcnt lgkmcnt(0)
    s_barrier
    """)
    a(f"s_mov_b32 s{sL}, s{sT}")
    stage(range(NS1, 7)); pack("M_PA")
    u0, nn = Q, Q + 6
    a(f"""
    M_P4E:
    @pstamp 5
    ds_read_b64 {v(u0,2)}, v{nta} offset:{L_MX}
    v_lshlrev_b32 v{tt}, 2, v{m}
    ds_read_b32 v{u0+2}, v{tt} offset:{L_CNT}
    ds_read_b32 v{u0+3}, v{tt} offset:{L_BAS}
    s_lshr_b32 s{sA}, s{sW}, 1
    s_lshl_b32 s{sA}, s{sA}, 5
    v_add_u32 v{nn}, s{sA}, v{m}
    v_lshlrev_b32 v{tt}, 3, v{nn}
    ds_read_b64 {v(u0+4,2)}, v{tt} offset:{L_TB}
    """)
    skip("M_TR")
    for i in ORD:
        a(f"s_mov_b64 exec, {mk(i)}\nds_read_b64 {v(TBv+2*i,2)}, v{NA+i} offset:{L_TB}\nds_read_b32 v{OFv+i}, v{CA+i} offset:{C8O}")
        after("M_TR", i)
    a(f"""
    s_mov_b64 exec, -1
    s_lshl_b32 s{sA}, s{sG}, 5
    s_waitcnt lgkmcnt(12)
    v_readfirstlane_b32 s{sNMAX}, v{u0}
    v_readfirstlane_b32 s{sL}, v{u0+1}
    v_add_u32 v{u0+2}, v{u0+2}, v{u0+3}
    v_cmp_ge_u32 vcc, s{sA}, v{u0+3}
    v_cmp_lt_u32 s[52:53], s{sA}, v{u0+2}
    s_and_b64 s[52:53], s[52:53], vcc
    s_ff1_i32_b32 s{sT}, s52
    s_max_i32 s{sT}, s{sT}, 0
    s_cmp_le_u32 s{sL}, {LMAX}
    s_cbranch_scc1 M_P5
    s_mov_b32 s{sCAP}, 256
    s_branch M_AGAIN
    M_P5:
    """)
    skip("M_SC")
    for i in ORD:
        mm, BB = TBv + 2*i, TBv + 2*i + 1
        a(f"""
        s_mov_b64 exec, {mk(i)}
        s_waitcnt lgkmcnt({2*i + max(0, 5-i)})
        v_add_u32 v{RK+i}, v{RK+i}, v{OFv+i}
        v_lshrrev_b32 v{tt}, 24, v{mm}
        v_mul_u32_u24 v{mm}, v{mm}, v{RK+i}
        v_add_lshl_u32 v{tt}, v{tt}, v{RK+i}, 2
        v_lshrrev_b32 v{mm}, 22, v{mm}
        v_mad_u32_u24 v{tt}, v{mm}, v{BB}, v{tt}
        ds_write2st64_b32 v{tt}, v{RC+i}, v{G+i} offset0:{L_LS//256} offset1:{L_LE//256}
        """)
        after("M_SC", i)
    ca0, ca1, ca2, ca3, kk, oa, fa, da, l16e = [EP + i for i in range(9)]
    epi_setup = f"""
    s_lshl_b32 s{sA}, s{sSB}, 7
    s_add_u32 s{sA}, s{sA}, {L_XR}
    s_movk_i32 s{sB}, 0x3fc
    s_movk_i32 s75, 0x3f8
    v_mov_b32 v{kk}, v{u0+5}
    v_lshrrev_b32 v{ca0}, 24, v{u0+4}
    v_mul_u32_u24 v{ca0}, 272, v{ca0}
    v_lshl_add_u32 v{ca0}, v{h16}, 1, v{ca0}
    v_add_u32 v{ca0}, s{sA}, v{ca0}
    v_mov_b32 v{da}, {L_ZR}
    v_cmp_gt_u32 s[56:57], s{sB}, v{kk}
    v_cmp_gt_u32 s[58:59], s75, v{kk}
    v_add_u32 v{ca1}, 272, v{ca0}
    v_add_u32 v{ca2}, 544, v{ca0}
    v_add_u32 v{ca3}, 816, v{ca0}
    v_cmp_gt_u32 vcc, 0x400, v{kk}
    v_cndmask_b32 v{ca1}, v{da}, v{ca1}, s[56:57]
    v_cndmask_b32 v{ca2}, v{da}, v{ca2}, s[58:59]
    v_cndmask_b32 v{ca0}, v{da}, v{ca0}, vcc
    v_cmp_gt_u32 vcc, s{sNB}, v{nn}
    v_lshlrev_b32 v{oa}, 7, v{nn}
    v_lshl_add_u32 v{oa}, v{h16}, 1, v{oa}
    v_mov_b32 v{da}, 0x80000000
    v_cndmask_b32 v{oa}, v{da}, v{oa}, vcc
    s_lshl_b32 s{sA}, s{sW}, 11
    v_mov_b32 v{l16e}, v{l16}
    v_add_u32 v{fa}, s{sA}, v{l16}
    v_mul_u32_u24 v{da}, 272, v{m}
    v_add3_u32 v{da}, v{da}, v{h16}, s{sXRB}
    """
    a("s_mov_b64 exec, -1\ns_setprio 0")
    wread()
    a(epi_setup)
    a(f"""
    s_waitcnt vmcnt(0) lgkmcnt(0)
    s_barrier
    @stamp 3
    @pstamp 6
    s_cmp_eq_u32 s{sT}, 0
    s_cbranch_scc1 M_BEND
    """)
    if "nox" in OPT["abl"]: a(f"s_mov_b32 s{sX+2}, 0")
    S = []
    ef = OPT["eflags"]
    def le_read(t, p): return (f"ds_read_b32 v{RP+2*p}, v{vLE} offset:{L_LE+1024*t}", f"le{t}")
    def ls_read(t, dst): return (f"ds_read_b128 {v(dst,4)}, v{vLS} offset:{L_LS+1024*t}", f"ls{t}")
    def st_addr(p): return f"v_xor_b32 v{sa}, v{RP+2*p}, v{h16}"
    def st_read(t): return (f"ds_read_b128 {Es(t)}, v{sa}", f"st{t}")
    def d_pre(t, p): return [f"v_cmp_le_u32 vcc, s{sDF}, v{RP+2*p}", f"v_and_or_b32 v{vCr+t%5}, v{RP+2*p}, s{sB30}, 1.0"]
    def d_load(t, p): return ["s_mov_b64 exec, vcc", (f"buffer_load_dwordx4 {Es(t)}, {v(RP+2*p,2)}, s[{sE}:{sE+3}], 0 idxen offen {ef}", f"D{t}"), "s_mov_b64 exec, -1"]
    def x_addr(src): return [f"v_and_or_b32 v{S4+i}, v{src+i}, s{sM7}, v{CX+i}" for i in range(4)]
    def x_dma(t, nop=True, reg=None, soff="0", tag=None):
        o = []
        for i in range(4):
            o += [f"s_add_u32 m0, s{sXRB}, {(t&1)*4096+i*1024}"] + (["s_nop 0"] if nop else []) + \
                 [(f"buffer_load_dwordx4 v{(reg or S4)+i}, s[{sX}:{sX+3}], {soff} offen lds", tag or f"X{t}")]
        return o
    def fx_read(t, sx, tag=None): return (f"ds_read_b128 {v(FX+4*sx,4)}, v{XA+sx} offset:{(t&1)*4096}", tag or f"fx{t}")
    def chain(nh, t):
        Dh = v(D + 16 * nh, 16)
        return [f"v_mfma_f32_32x32x16_bf16 {Dh}, {W3f(nh)}, {Es(t)}, {v(Q+16*nh,16)}"] + \
               [f"v_mfma_f32_32x32x16_bf16 {Dh}, {W1f(sx,nh)}, {v(FX+4*sx,4)}, {Dh}" for sx in range(4)]
    XD4, L1, L2 = D, D + 4, D + 8
    S += [ls_read(0, S4)] + [le_read(j, j) for j in range(4)] + [ls_read(1, L1), ls_read(2, L2), ("@W", None, "ls0")]
    for i in range(4): S += [f"v_and_b32 v{XD4+i}, 127, v{S4+i}", f"v_lshl_or_b32 v{XD4+i}, v{XD4+i}, 7, v{CX+i}"]
    S += x_dma(1, reg=XD4, soff=f"s{sS0}", tag="XD") + x_addr(S4) + x_dma(0)
    S += [("@W", None, "le3")]
    for j in range(4): S += [st_addr(j), st_read(j)]
    for j in range(2): S += d_pre(j, j) + [("@W", None, f"st{j}")] + d_load(j, j)
    S += [("@W", "XD", None)] + [fx_read(1, sx, "xd") for sx in range(4)] + x_addr(L1) + [("@W", None, "xd")]
    dm = x_dma(1, nop=False)
    k = 0
    for nh in range(2):
        for sx in range(4):
            S.append(f"v_mfma_f32_32x32x16_bf16 {v(Q+16*nh,16)}, {v(AG+(sx*2+nh)*4,4)}, {v(FX+4*sx,4)}, {'0' if sx == 0 else v(Q+16*nh,16)}")
            S.append(dm[k]); k += 1
    S += d_pre(2, 2) + d_load(2, 2)
    S += [("@W", "D0", None)] + [fx_read(0, sx) for sx in range(4)] + x_addr(L2) + [("@W", None, "fx0")]
    S += chain(0, 0) + x_dma(2) + d_pre(3, 3) + d_load(3, 3)
    if OPT["stamp"]: S += ["@stamp 4", f"s_mov_b32 s90, s{sT}", f"s_mov_b32 s98, s{sL}", "s_memtime s[94:95]", "s_waitcnt lgkmcnt(0)"]
    def phase(nh, t, mf, fill):
        Db, Ab = D + 16*nh, AG + 16*nh
        c = vCr + t % 5
        cp = f"{v(c & ~1, 2)} " + ("op_sel_hi:[1,0]" if c % 2 == 0 else "op_sel:[0,1] op_sel_hi:[1,1]")
        seq = []
        mf = mf + [None] * (5 - len(mf))
        for q in range(2):
            ex = [f"v_exp_f32 v{T+i}, v{Db+8*q+i}" for i in range(8)]
            rc = [f"v_rcp_f32 v{T+i}, v{T+i}" for i in range(8)]
            ad = [f"v_pk_add_f32 {v(T+2*i,2)}, {v(T+2*i,2)}, {cp}" for i in range(4)]
            fm = [f"v_pk_fma_f32 {v(Ab+8*q+2*i,2)}, {v(Db+8*q+2*i,2)}, {v(T+2*i,2)}, {v(Ab+8*q+2*i,2)}" for i in range(4)]
            if t == 0: fm = [f"v_pk_mul_f32 {v(Ab+8*q+2*i,2)}, {v(Db+8*q+2*i,2)}, {v(T+2*i,2)}" for i in range(4)]
            if q == 0: seq += [mf[0]] + ex[:3] + [mf[1]] + ex[3:] + ad + [mf[2]] + rc[:3] + [mf[3]] + rc[3:] + fm
            else: seq += [mf[4]] + ex + ad + rc + fm
        res = []; n = 0
        for l in seq:
            if l is None: continue
            res.append(l)
            if l.startswith(("v_exp", "v_rcp")):
                res += fill.get(n, []); n += 1
        if "nocomp" in OPT["abl"]:
            r2 = []
            for l in res:
                if isinstance(l, str) and l.startswith(("v_exp", "v_rcp", "v_pk", "v_add_f32", "v_fmac", "v_mfma")): continue
                r2.append(l)
                if isinstance(l, str) and " m0," in l: r2.append("s_nop 0")
            res = r2
        return res
    for t in range(LMAX):
        fill = {}
        if t + 4 < LMAX:
            fill[0] = [le_read(t + 4, 0)]
            fill[10] = [("@W", None, f"le{t+4}"), st_addr(0)]; fill[11] = [st_read(t + 4)]
        if t + 3 < LMAX: fill[1] = [ls_read(t + 3, S4)]
        if t + 1 < LMAX:
            fill[16] = [("@W", f"X{t+1}", None)]
            for sx in range(4): fill[17+sx] = [fx_read(t + 1, sx)]
        if t + 3 < LMAX:
            xa = x_addr(S4)
            fill[24] = [("@W", None, f"ls{t+3}"), xa[0]]; fill[25] = [xa[1]]; fill[26] = [xa[2]]; fill[27] = [xa[3]]
        if int(OPT["prio"]) == 1: S.append("s_setprio 1")
        S += phase(0, t, chain(1, t), fill)
        if int(OPT["prio"]) == 1: S.append("s_setprio 0")
        fill = {}
        if t + 1 < LMAX: fill[0] = [("@W", None, f"fx{t+1}")]
        if t + 3 < LMAX:
            dm = x_dma(t + 3, nop=False)
            for i in range(8): fill[1+i] = [dm[i]]
        if t + 4 < LMAX:
            dp = d_pre(t + 4, 0)
            fill[9] = [dp[0]]; fill[12] = d_load(t + 4, 0); fill[13] = [dp[1]]
        fill[31] = [f"s_cmp_eq_u32 s{sT}, {t+1}"]
        S += phase(1, t, chain(0, t + 1) if t + 1 < LMAX else [], fill)
        if t + 1 < LMAX: S.append("s_cbranch_scc1 M_FLUSH")
    emit(resolve(S))
    a("M_FLUSH:\n@stamp 5\n@estamp 1\n@cyc\ns_waitcnt vmcnt(0)")
    for i in range(8):
        a(f"ds_write_b128 v{da}, {v(AG+4*i,4)} offset:{32*i}")
    A0, A1, A2, OWN, PAR = D, D + 16, Q, Q + 16, Q + 24
    a(f"""
    M_BEND:
    v_cmp_gt_u32 vcc, 0x3f4, v{kk}
    s_mov_b32 s74, {f32(-1.0/LOG2E)}
    s_mov_b32 s75, {f32(-1.0/LOG2E)}
    """)
    srd(a, sOUT, 8, 3200000)
    a("s_waitcnt lgkmcnt(0)\n@estamp 2\ns_barrier\n@estamp 3")
    offs = (0, 16, 64, 80)
    for i in range(4):
        for buf, ca in ((A0, ca0), (A1, ca1), (A2, ca2)):
            a(f"ds_read_b128 {v(buf+4*i,4)}, v{ca} offset:{offs[i]}")
    for i in range(4):
        a(f"s_waitcnt lgkmcnt({9-3*i})")
        for j in range(2): a(f"v_pk_add_f32 {v(A0+4*i+2*j,2)}, {v(A0+4*i+2*j,2)}, {v(A1+4*i+2*j,2)}")
        for j in range(2): a(f"v_pk_add_f32 {v(A0+4*i+2*j,2)}, {v(A0+4*i+2*j,2)}, {v(A2+4*i+2*j,2)}")
    a(f"""
    s_cbranch_vccz M_SUMD
    s_movk_i32 s{sA}, 0x3f4
    M_SUML:
    s_mov_b64 exec, vcc
    """)
    for i in range(4):
        a(f"ds_read_b128 {v(A1+4*i,4)}, v{ca3} offset:{offs[i]}")
    a(f"s_sub_u32 s{sA}, s{sA}, 4\nv_add_u32 v{ca3}, 272, v{ca3}\ns_waitcnt lgkmcnt(0)")
    for i in range(8): a(f"v_pk_add_f32 {v(A0+2*i,2)}, {v(A0+2*i,2)}, {v(A1+2*i,2)}")
    a(f"""
    s_mov_b64 exec, -1
    v_cmp_gt_i32 vcc, s{sA}, v{kk}
    s_nop 4
    s_cbranch_vccnz M_SUML
    M_SUMD:
    s_cmp_le_u32 s{sNMAX}, s{sCAP}
    s_cbranch_scc1 M_EPI
    """)
    srd_off(a, sWF, 10, WS_SP, 2048 * 4096)
    a(f"""
    s_lshl_b32 s{sA}, s2, 3
    s_add_u32 s{sA}, s{sA}, s{sW}
    s_lshl_b32 s{sA}, s{sA}, 12
    s_cmp_eq_u32 s{sBASE}, 0
    s_cbranch_scc1 M_NOLD
    """)
    for i in range(4):
        a(f"buffer_load_dwordx4 {v(A1+4*i,4)}, v{l16e}, s[{sWF}:{sWF+3}], s{sA} offen offset:{1024*i} sc0 sc1")
    a("s_waitcnt vmcnt(0)")
    for i in range(8): a(f"v_pk_add_f32 {v(A0+2*i,2)}, {v(A0+2*i,2)}, {v(A1+2*i,2)}")
    a(f"""
    M_NOLD:
    s_add_u32 s{sBASE}, s{sBASE}, s{sCAP}
    s_cmp_ge_u32 s{sBASE}, s{sNMAX}
    s_cbranch_scc1 M_EPI
    """)
    for i in range(4):
        a(f"buffer_store_dwordx4 {v(A0+4*i,4)}, v{l16e}, s[{sWF}:{sWF+3}], s{sA} offen offset:{1024*i} sc0 sc1")
    a(f"""
    M_AGAIN:
    s_waitcnt vmcnt(0) lgkmcnt(0)
    s_barrier
    s_branch M_BATCH
    M_EPI:
    """)
    for i in range(8): a(f"v_pk_mul_f32 {v(A0+2*i,2)}, {v(A0+2*i,2)}, s[74:75]")
    for i in range(8): a(f"v_cvt_pk_bf16_f32 v{OWN+i}, v{A0+2*i}, v{A0+2*i+1}")
    a(f"""
    ds_write_b128 v{fa}, {v(OWN,4)} offset:{L_FE}
    ds_write_b128 v{fa}, {v(OWN+4,4)} offset:{L_FE+1024}
    v_xor_b32 v{fa}, 0x800, v{fa}
    v_mfma_f32_32x32x16_bf16 {v(U0,16)}, {v(WU,4)}, {v(OWN,4)}, {v(U0,16)}
    v_mfma_f32_32x32x16_bf16 {v(U0,16)}, {v(WU+4,4)}, {v(OWN+4,4)}, {v(U0,16)}
    s_lshl_b32 s{sA}, s{sSB}, 6
    s_add_u32 s{sA}, s{sA}, s{sS0}
    s_mov_b32 s74, {f32(-LOG2E)}
    s_mov_b32 s75, {f32(-LOG2E)}
    s_waitcnt lgkmcnt(0)
    s_barrier
    @estamp 4
    ds_read_b128 {v(PAR,4)}, v{fa} offset:{L_FE}
    ds_read_b128 {v(PAR+4,4)}, v{fa} offset:{L_FE+1024}
    s_waitcnt lgkmcnt(1)
    v_mfma_f32_32x32x16_bf16 {v(U0,16)}, {v(WU+8,4)}, {v(PAR,4)}, {v(U0,16)}
    s_waitcnt lgkmcnt(0)
    v_mfma_f32_32x32x16_bf16 {v(U0,16)}, {v(WU+12,4)}, {v(PAR+4,4)}, {v(U0,16)}
    s_nop 11
    """)
    for q in range(2):
        b = 8 * q
        for i in range(4): a(f"v_pk_mul_f32 {v(AG+b+2*i,2)}, {v(U0+b+2*i,2)}, s[74:75]")
        for i in range(8): a(f"v_exp_f32 v{AG+b+i}, v{AG+b+i}")
        for i in range(4): a(f"v_pk_add_f32 {v(AG+b+2*i,2)}, {v(AG+b+2*i,2)}, 1.0 op_sel_hi:[1,0]")
        for i in range(8): a(f"v_rcp_f32 v{AG+b+i}, v{AG+b+i}")
        for i in range(4): a(f"v_pk_mul_f32 {v(AG+b+2*i,2)}, {v(U0+b+2*i,2)}, {v(AG+b+2*i,2)}")
        for i in range(4): a(f"v_cvt_pk_bf16_f32 v{D+4*q+i}, v{AG+b+2*i}, v{AG+b+2*i+1}")
        a(f"buffer_store_dwordx4 {v(D+4*q,4)}, v{oa}, s[{sOUT}:{sOUT+3}], s{sA} offen offset:{16*q} {OPT['oflags']}")
    if OPT["stamp"]: a("@estamp 5\ns_waitcnt vmcnt(0)\n@stamp 6")
    stamp_out(8, f"s_lshl_b32 s74, s2, 3\ns_add_u32 s74, s74, s{sW}", 10, 0x80000)
    a("M_END:\ns_endpgm")
    return R.n

hdr = f"""; MPNN edge-MLP + segment-sum + node update, two launches:
; @launch kernel=sort_kernel grid=(253,1,1) block=(1024,1,1) lds={SORT_LDS}
; @launch kernel=main_kernel grid=(256,1,1) block=(512,1,1) lds={MAIN_LDS}
.amdgcn_target "amdgcn-amd-amdhsa--gfx950"
.text
.globl sort_kernel
.type sort_kernel,@function
.globl main_kernel
.type main_kernel,@function
"""
gen_sort()
nv = gen_main()
txt = hdr + a.text() + '.section .rodata,"a"\n.p2align 6\n' + kdesc("sort_kernel", 56) + ".p2align 6\n" + kdesc("main_kernel", 256, 100 if OPT["stamp"] else 96)
open(sys.argv[1], "w").write(txt)
print("main vgprs", nv, "lds", MAIN_LDS, SORT_LDS)
```

```python
import sys
src = open(sys.argv[1]).read()
k = """.p2align 8
rep_kernel:
s_cmp_ge_u32 s2, 1
s_cbranch_scc1 REND
s_load_dwordx4 s[4:7], s[0:1], 56
s_waitcnt lgkmcnt(0)
s_mov_b32 s8, s6
s_mov_b32 s9, s7
s_mov_b32 s10, 0x1000000
s_mov_b32 s11, 0x20000
v_lshlrev_b32 v1, 6, v0
v_mov_b32 v40, -1
v_mov_b32 v41, 0
v_mov_b32 v42, -1
s_mov_b32 s20, 0x700000
s_mov_b32 s21, 62
RL0:
buffer_load_dword v3, v1, s[8:11], s20 offen sc0 sc1
buffer_load_dword v4, v1, s[8:11], s20 offen offset:20 sc0 sc1
s_waitcnt vmcnt(0)
v_min_u32 v40, v40, v3
v_max_u32 v41, v41, v4
s_add_u32 s20, s20, 4096
s_sub_u32 s21, s21, 1
s_cmp_lg_u32 s21, 0
s_cbranch_scc1 RL0
s_mov_b32 s20, 0x780000
s_mov_b32 s21, 32
RL1:
buffer_load_dword v3, v1, s[8:11], s20 offen sc0 sc1
s_waitcnt vmcnt(0)
v_min_u32 v42, v42, v3
s_add_u32 s20, s20, 4096
s_sub_u32 s21, s21, 1
s_cmp_lg_u32 s21, 0
s_cbranch_scc1 RL1
"""
def red(vr, op, sd):
    o = f"s_nop 1\nv_readlane_b32 s{sd}, v{vr}, 0\n"
    for l in range(1, 64): o += f"v_readlane_b32 s22, v{vr}, {l}\ns_nop 0\ns_{op} s{sd}, s{sd}, s22\n"
    return o
k += red(40, "min_u32", 30) + red(41, "max_u32", 31) + red(42, "min_u32", 32)
for i in range(14): k += f"v_mov_b32 v{16+i}, 0\n"
k += """s_mov_b32 s20, 0x780000
s_mov_b32 s21, 32
RL2:
buffer_load_dwordx4 v[4:7], v1, s[8:11], s20 offen sc0 sc1
buffer_load_dwordx4 v[8:11], v1, s[8:11], s20 offen offset:16 sc0 sc1
s_waitcnt vmcnt(0)
"""
for i in range(7):
    k += f"v_subrev_u32 v{4+i}, s32, v{4+i}\nv_add_u32 v{16+2*i}, v{16+2*i}, v{4+i}\nv_max_u32 v{17+2*i}, v{17+2*i}, v{4+i}\n"
k += """s_add_u32 s20, s20, 4096
s_sub_u32 s21, s21, 1
s_cmp_lg_u32 s21, 0
s_cbranch_scc1 RL2
v_mov_b32 v2, 0
s_sub_u32 s33, s32, s30
s_sub_u32 s34, s31, s30
v_mov_b32 v3, s33
global_store_dword v2, v3, s[4:5]
v_mov_b32 v3, s34
global_store_dword v2, v3, s[4:5] offset:4
"""
for i in range(14):
    k += red(16+i, "add_u32" if i % 2 == 0 else "max_u32", 35)
    if i % 2 == 0: k += "s_lshr_b32 s35, s35, 11\n"
    k += f"v_mov_b32 v3, s35\nglobal_store_dword v2, v3, s[4:5] offset:{8+4*i}\n"
k += "REND:\ns_endpgm\n"
kd = """.p2align 6
.amdhsa_kernel rep_kernel
  .amdhsa_next_free_vgpr 48
  .amdhsa_next_free_sgpr 48
  .amdhsa_accum_offset 48
  .amdhsa_group_segment_fixed_size 0
  .amdhsa_kernarg_size 72
  .amdhsa_user_sgpr_count 2
  .amdhsa_user_sgpr_kernarg_segment_ptr 1
  .amdhsa_system_sgpr_workgroup_id_x 1
.end_amdhsa_kernel
"""
lines = src.split("\n")
last = max(i for i, l in enumerate(lines) if l.startswith("; @launch"))
lines.insert(last + 1, "; @launch kernel=rep_kernel grid=(1,1,1) block=(64,1,1) lds=0")
src = "\n".join(lines).replace('.section .rodata', k + '.section .rodata', 1) + kd
open(sys.argv[2], "w").write(src)
```

```python
import sys, struct
from asmlib import *

OPT = dict(abl="", stamp=False, eflags="", mflags="", idxflags="", stflags="sc1", emst="sc1", eld="", pk=True, M0=1536, empf=True, mper=3, Y=False, xpf=0, mpf1=0, mpf2=0, prio=0, oflags="", otflags="", epf=0, xw=0, ns1=3, cpf=0, cpfs=0)
for arg in sys.argv[2:]:
    k, val = arg.split("=")
    OPT[k] = {"True": True, "False": False}.get(val, val.replace("+", " "))
M0 = int(OPT["M0"]); MPER = int(OPT["mper"])
assert M0 % 32 == 0 and M0 <= 2048 and 3200 - M0 <= 2048

NCH, CH = 250, 3200
WS_REC, WS_O, WS_WF, WS_ST, WS_SP, WS_EM, WS_P = 0, 0x400000, 0x600000, 0x700000, 0x1000000, 0x2000000, 0x800000
LOG2E = 1.4426950408889634
def f32(x): return "0x%08x" % struct.unpack("<I", struct.pack("<f", x))[0]

a = Asm()
a.stamps = OPT["stamp"]
def stamp_out(n, wid_sgpr_expr, base_sgpr, region):
    if not OPT["stamp"]: return
    a("s_waitcnt lgkmcnt(0)")
    a(wid_sgpr_expr)
    a(f"s_lshl_b32 s74, s74, 6\ns_add_u32 s74, s74, {WS_ST+region}\ns_add_u32 s92, s{base_sgpr}, s74\ns_addc_u32 s93, s{base_sgpr+1}, 0\nv_mov_b32 v0, 0")
    for i in range(n):
        a(f"v_mov_b32 v1, s{76+2*i}\nglobal_store_dword v0, v1, s[92:93] offset:{4*i}")
    if n == 8: a("s_sub_u32 s96, s96, s94\nv_mov_b32 v1, s96\nglobal_store_dword v0, v1, s[92:93] offset:32\nv_mov_b32 v1, s98\nglobal_store_dword v0, v1, s[92:93] offset:36")
def emit(l): a("\n".join(l))

def resolve(stream):
    out = []; vm = []; lg = []
    for it in stream:
        if isinstance(it, tuple) and it[0] == "@W":
            parts = []
            if it[1] is not None:
                idx = max(i for i, t in enumerate(vm) if t == it[1]); n = len(vm) - 1 - idx
                assert n <= 63; parts.append(f"vmcnt({n})")
            if it[2] is not None:
                idx = max(i for i, t in enumerate(lg) if t == it[2]); n = len(lg) - 1 - idx
                parts.append(f"lgkmcnt({min(n, 15)})")
            out.append("s_waitcnt " + " ".join(parts)); continue
        txt, tag = it if isinstance(it, tuple) else (it, None)
        if txt.startswith("buffer_"): vm.append(tag)
        if txt.startswith("ds_"): lg.append(tag)
        out.append(txt)
    return out

S_SRT = 4224
S_W1 = 17408
S_XR = S_W1 + 8192
S_E = S_XR + 16384
YM = OPT["Y"]
SORT_LDS = S_E + (0 if YM else M0 * 32)
def gen_sort():
    a(".p2align 8\nsort_kernel:")
    a(f"""
    s_cmp_ge_u32 s2, 253
    s_cbranch_scc1 S_END
    s_load_dwordx4 s[4:7], s[0:1], 16
    s_load_dwordx2 s[8:9], s[0:1], 8
    s_load_dwordx2 s[10:11], s[0:1], 64
    s_load_dwordx4 s[12:15], s[0:1], 32
    s_load_dwordx2 s[44:45], s[0:1], 0
    s_cmp_ge_u32 s2, 250
    s_cbranch_scc1 S_WPREP
    @stamp 0
    v_lshlrev_b32 v2, 2, v0
    v_mov_b32 v3, 0
    ds_write_b32 v2, v3
    s_mul_i32 s3, s2, 12800
    v_lshlrev_b32 v44, 4, v0
    v_add_u32 v1, s3, v44
    v_cmp_gt_u32 vcc, 800, v0
    s_mov_b64 s[40:41], vcc
    v_mov_b32 v12, 0x80000000
    v_cndmask_b32 v1, v12, v1, vcc
    v_lshrrev_b32 v34, 6, v0
    v_lshlrev_b32 v35, 2, v34
    v_readfirstlane_b32 s37, v34
    s_waitcnt lgkmcnt(0)
    """)
    srd(a, 20, 6, 3200000)
    fl = OPT["idxflags"]
    a(f"buffer_load_dwordx4 v[4:7], v1, s[20:23], 0 offen {fl}")
    srd(a, 16, 4, 3200000)
    a(f"buffer_load_dwordx4 v[8:11], v1, s[16:19], 0 offen {fl}")
    a("s_cmp_lt_u32 s37, 12\ns_cbranch_scc1 S_NOP1")
    srd(a, 48, 44, 3200000)
    srd(a, 52, 12, 18432)
    a(f"""
    s_sub_u32 s46, s37, 12
    v_and_b32 v56, 63, v0
    v_lshlrev_b32 v57, 4, v56
    s_lshl_b32 s47, s46, 11
    s_add_u32 m0, s47, {S_W1}
    v_lshrrev_b32 v58, 4, v56
    buffer_load_dwordx4 v57, s[52:55], s47 offen lds
    buffer_load_dwordx4 v57, s[52:55], s47 offen offset:1024 lds
    v_xor_b32 v58, v58, v56
    v_and_b32 v58, 7, v58
    v_and_b32 v59, 0x380, v57
    v_lshl_or_b32 v58, v58, 4, v59
    v_xor_b32 v59, 64, v58
    s_lshl_b32 s47, s46, 12
    s_add_u32 m0, s47, {S_XR}
    s_lshl_b32 s56, s2, 2
    s_add_u32 s56, s56, s46
    s_mul_i32 s56, s56, 3200
    buffer_load_dwordx4 v58, s[48:51], s56 offen lds
    buffer_load_dwordx4 v59, s[48:51], s56 offen offset:1024 lds
    buffer_load_dwordx4 v58, s[48:51], s56 offen offset:2048 lds
    buffer_load_dwordx4 v59, s[48:51], s56 offen offset:3072 lds
    S_NOP1:
    """)
    srd(a, 24, 10, 0x800000)
    a(f"""
    v_mov_b32 v15, 1
    v_cmp_le_u32 vcc, {M0//4}, v0
    v_mov_b32 v13, 2048
    v_subrev_u32 v14, {M0}, v2
    v_cndmask_b32 v13, 0, v13, vcc
    v_cndmask_b32 v16, v2, v14, vcc
    v_mov_b32 v47, {(2048-M0)*4}
    v_cndmask_b32 v47, 0, v47, vcc
    v_lshlrev_b32 v16, 21, v16
    s_lshl_b32 s3, s2, 14
    v_add3_u32 v47, v47, v44, s3
    v_cndmask_b32 v47, v12, v47, s[40:41]
    v_and_b32 v45, 0x1fe, v0
    v_lshlrev_b32 v45, 11, v45
    v_and_b32 v46, 1, v0
    v_lshl_or_b32 v45, v46, 3, v45
    v_lshrrev_b32 v46, 9, v0
    v_lshl_or_b32 v45, v46, 2, v45
    v_mul_u32_u24 v46, {2048-M0}, v46
    s_and_b32 s39, s2, 7
    s_lshl_b32 s39, s39, 5
    s_lshr_b32 s38, s2, 3
    s_add_u32 s39, s39, s38
    s_lshl_b32 s39, s39, 4
    s_add_u32 s39, s39, {WS_O}
    s_barrier
    """)
    srd(a, 28, 8, 25600000)
    npiece = 0 if YM else M0 // 32
    nr = (npiece + 15) // 16
    a(f"s_mul_i32 s42, s2, {CH*32}\ns_lshl_b32 s43, s37, 10")
    for r in range(nr):
        if (r + 1) * 16 > npiece:
            a(f"s_cmp_ge_u32 s37, {npiece - 16*r}\ns_cbranch_scc1 S_DMAD")
        a(f"s_add_u32 m0, s43, {S_E + r*16384}\ns_nop 0\nbuffer_load_dwordx4 v44, s[28:31], s42 offen {OPT['eld']} lds\ns_add_u32 s42, s42, 16384")
    a("S_DMAD:")
    a(f"""
    s_waitcnt vmcnt({nr if npiece % 16 == 0 else nr-1})
    @stamp 1
    """)
    for i in range(4):
        a(f"""
        v_mul_u32_u24 v{4+i}, 1342, v{4+i}
        v_lshrrev_b32 v{20+i}, 16, v{4+i}
        v_lshl_add_u32 v{20+i}, v{20+i}, 2, v13
        """)
    a("s_mov_b64 exec, s[40:41]")
    for i in range(4):
        a(f"ds_add_rtn_u32 v{24+i}, v{20+i}, v15")
    a(f"s_mov_b64 exec, -1")
    XPF = int(OPT["xpf"])
    def sort_xpf():
        srd(a, 48, 44, 3200000)
        a(f"""
        s_lshr_b32 s46, s2, 3
        s_mul_i32 s46, s46, 102400
        v_lshlrev_b32 v52, 7, v0
        v_cmp_gt_u32 vcc, {XPF}, v0
        s_nop 1
        v_cndmask_b32 v52, v12, v52, vcc
        buffer_load_dword v53, v52, s[48:51], s46 offen
        """)
    for i in range(4):
        a(f"""
        v_and_b32 v{28+i}, 0xffff, v{4+i}
        v_mul_u32_u24 v{28+i}, 6251, v{28+i}
        v_lshrrev_b32 v{28+i}, 23, v{28+i}
        v_lshl_or_b32 v{28+i}, v{8+i}, 6, v{28+i}
        v_add_u32 v17, {i<<21}, v16
        v_or_b32 v{28+i}, v{28+i}, v17
        """)
    a("""
    s_waitcnt lgkmcnt(0)
    s_barrier
    @stamp 2
    ds_read_b32 v32, v2
    """)
    if XPF: sort_xpf()
    if int(OPT["cpfs"]):
        a("""
        s_getpc_b64 s[52:53]
        S_PC:
        v_lshlrev_b32 v52, 6, v0
        v_min_u32 v52, M_END-S_PC, v52
        global_load_dword v53, v52, s[52:53]
        """)
        XPF = 1
    a("""
    s_waitcnt lgkmcnt(0)
    v_mov_b32 v33, v32
    """)
    wave_scan(a, 33)
    a("""
    s_mov_b32 exec_lo, 0
    s_mov_b32 exec_hi, 0x80000000
    ds_write_b32 v35, v33 offset:4096
    s_mov_b64 exec, -1
    v_and_b32 v36, 15, v0
    v_lshlrev_b32 v36, 2, v36
    s_waitcnt lgkmcnt(0)
    s_barrier
    ds_read_b32 v37, v36 offset:4096
    s_waitcnt lgkmcnt(0)
    v_mov_b32 v38, v37
    """)
    for sh in (1, 2, 4, 8):
        a(f"s_nop 1\nv_add_u32_dpp v38, v38, v38 row_shr:{sh} row_mask:0xf bank_mask:0xf bound_ctrl:0")
    st = OPT["stflags"]
    a(f"""
    v_sub_u32 v38, v38, v37
    s_nop 0
    v_readlane_b32 s38, v38, s37
    v_sub_u32 v33, v33, v32
    s_nop 1
    v_add_u32 v33, s38, v33
    ds_write_b32 v2, v33
    v_add_u32 v39, v33, v46
    v_lshl_or_b32 v39, v32, 16, v39
    buffer_store_dword v39, v45, s[24:27], s39 offen {OPT['otflags']}
    s_waitcnt lgkmcnt(0)
    s_barrier
    @stamp 3
    s_mov_b64 exec, s[40:41]
    """)
    for i in range(4):
        a(f"ds_read_b32 v{40+i}, v{20+i}")
    for i in range(4):
        a(f"""
        s_waitcnt lgkmcnt({3})
        v_add_lshl_u32 v{40+i}, v{40+i}, v{24+i}, 2
        ds_write_b32 v{40+i}, v{28+i} offset:{S_SRT}
        """)
    no = 0 if YM else (M0 + 511) // 512
    a(f"""
    s_mov_b64 exec, -1
    s_cmp_lt_u32 s37, 12
    s_cbranch_scc1 S_NOP2
    v_and_b32 v57, 31, v56
    v_lshrrev_b32 v58, 5, v56
    v_bfe_u32 v59, v56, 2, 2
    v_lshl_add_u32 v59, v58, 3, v59
    v_lshlrev_b32 v59, 7, v59
    v_and_b32 v60, 1, v56
    v_lshl_add_u32 v59, v60, 5, v59
    v_bfe_u32 v60, v56, 1, 1
    v_lshl_add_u32 v59, v60, 3, v59
    v_and_b32 v60, 16, v56
    v_add_u32 v59, v59, v60
    v_bfe_u32 v60, v57, 1, 3
    v_xor_b32 v60, v60, v58
    v_lshlrev_b32 v60, 4, v60
    v_lshl_or_b32 v60, v57, 7, v60
    v_add_u32 v60, s47, v60
    v_lshlrev_b32 v61, 7, v57
    v_lshl_add_u32 v61, v58, 5, v61
    v_cmp_gt_u32 vcc, 25, v57
    s_mov_b32 s58, {f32(-LOG2E)}
    s_mov_b32 s59, {f32(-LOG2E)}
    v_cndmask_b32 v61, v12, v61, vcc
    """)
    srd_off(a, 52, 10, WS_P, 3200000)
    for sx in range(4):
        a(f"ds_read_b128 v[{64+4*sx}:{67+4*sx}], v60 offset:{S_XR}" + (f"\nv_xor_b32 v60, {(32, 96, 32)[sx]}, v60" if sx < 3 else ""))
    for nh in range(2):
        for sx in range(4):
            for i in range(2):
                r = (80, 32)[nh] + 4*sx + 2*i
                if nh == 1: r = (16, 20, 24, 28)[sx] + 2*i
                a(f"ds_read_b64_tr_b16 v[{r}:{r+1}], v59 offset:{S_W1 + (16*sx+4*i)*128 + nh*64}")
    for nh in range(2):
        a(f"s_waitcnt lgkmcnt({8 - 8*nh})")
        for sx in range(4):
            r = 80 + 4*sx if nh == 0 else 16 + 4*sx
            a(f"v_mfma_f32_32x32x16_bf16 v[{96+16*nh}:{111+16*nh}], v[{r}:{r+3}], v[{64+4*sx}:{67+4*sx}], {'0' if sx == 0 else f'v[{96+16*nh}:{111+16*nh}]'}")
    a("s_nop 7")
    for nh in range(2):
        b = 96 + 16 * nh
        for i in range(8): a(f"v_pk_mul_f32 v[{b+2*i}:{b+2*i+1}], v[{b+2*i}:{b+2*i+1}], s[58:59]")
        for i in range(8): a(f"v_cvt_pk_bf16_f32 v{b+i}, v{b+2*i}, v{b+2*i+1}")
        a(f"buffer_store_dwordx4 v[{b}:{b+3}], v61, s[52:55], s56 offen offset:{64*nh}\nbuffer_store_dwordx4 v[{b+4}:{b+7}], v61, s[52:55], s56 offen offset:{64*nh+16}")
    a(f"""
    s_waitcnt vmcnt(5)
    s_branch S_NOP3
    S_NOP2:
    s_waitcnt vmcnt(1)
    S_NOP3:
    v_lshrrev_b32 v4, 1, v0
    v_lshlrev_b32 v4, 2, v4
    v_and_b32 v5, 1, v0
    v_lshlrev_b32 v5, 4, v5
    """)
    srd_off(a, 28, 10, WS_EM, NCH * 131072)
    a(f"""
    s_lshl_b32 s42, s2, 17
    v_cmp_gt_u32 vcc, {(M0 - 512*(no-1))*2}, v0
    s_waitcnt lgkmcnt(0)
    s_barrier
    @stamp 4
    v_cndmask_b32 v6, v12, v44, vcc
    """)
    for r in range(no):
        a(f"ds_read_b32 v{8+r}, v4 offset:{S_SRT + r*2048}")
    a(f"s_mov_b64 exec, s[40:41]\nds_read_b128 v[48:51], v44 offset:{S_SRT}\ns_mov_b64 exec, -1")
    for r in range(no):
        a(f"""
        s_waitcnt lgkmcnt({no})
        v_lshrrev_b32 v{8+r}, 21, v{8+r}
        v_lshl_add_u32 v{8+r}, v{8+r}, 5, v5
        ds_read_b128 v[{16+4*r}:{19+4*r}], v{8+r} offset:{S_E}
        """)
    a(f"s_waitcnt lgkmcnt({no})\nbuffer_store_dwordx4 v[48:51], v47, s[24:27], 0 offen {st}")
    for r in range(no):
        a(f"""
        s_waitcnt lgkmcnt({no-1-r})
        buffer_store_dwordx4 v[{16+4*r}:{19+4*r}], v{6 if r == no-1 else 44}, s[28:31], s42 offen {OPT['emst']}
        s_add_u32 s42, s42, 16384
        """)
    if OPT["stamp"]: a("s_waitcnt vmcnt(0)\n@stamp 5")
    stamp_out(6, "s_lshl_b32 s74, s2, 4\ns_add_u32 s74, s74, s37", 10, 0)
    a("s_endpgm")
    a(f"""
    S_WPREP:
    v_lshrrev_b32 v1, 6, v0
    s_nop 0
    v_readfirstlane_b32 s3, v1
    s_sub_u32 s16, s2, 250
    s_lshl_b32 s16, s16, 4
    s_add_u32 s3, s3, s16
    s_cmp_ge_u32 s3, 34
    s_cbranch_scc1 S_END
    v_and_b32 v1, 31, v0
    v_bfe_u32 v2, v0, 5, 1
    s_waitcnt lgkmcnt(0)
    s_mov_b32 s22, 18432
    s_mov_b32 s23, 0x20000
    s_cmp_ge_u32 s3, 18
    s_cbranch_scc1 S_WUPD
    s_mov_b32 s20, s12
    s_mov_b32 s21, s13
    s_lshr_b32 s30, s3, 1
    s_and_b32 s31, s3, 1
    s_lshl_b32 s31, s31, 5
    v_add_u32 v3, s31, v1
    s_mov_b32 s34, {f32(-LOG2E)}
    s_branch S_WLOAD
    S_WUPD:
    s_mov_b32 s20, s14
    s_mov_b32 s21, s15
    s_mov_b32 s22, 16384
    s_sub_u32 s35, s3, 18
    s_and_b32 s30, s35, 7
    s_lshr_b32 s31, s35, 3
    s_lshl_b32 s31, s31, 5
    v_bfe_u32 v4, v1, 2, 1
    v_lshlrev_b32 v4, 4, v4
    v_lshrrev_b32 v5, 3, v1
    v_lshl_add_u32 v4, v5, 2, v4
    v_and_b32 v5, 3, v1
    v_add3_u32 v3, v4, v5, s31
    s_mov_b32 s34, 1.0
    S_WLOAD:
    s_lshl_b32 s30, s30, 4
    v_lshlrev_b32 v4, 3, v2
    v_add_u32 v4, s30, v4
    v_lshlrev_b32 v4, 7, v4
    v_lshl_add_u32 v4, v3, 1, v4
    """)
    for i in range(8):
        a(f"buffer_load_ushort v{8+i}, v4, s[20:23], 0 offen offset:{i*128}")
    srd(a, 24, 10, 0x800000)
    a(f"""
    v_and_b32 v5, 63, v0
    v_lshlrev_b32 v5, 4, v5
    s_lshl_b32 s35, s3, 10
    s_add_u32 s35, s35, {WS_WF}
    s_waitcnt vmcnt(0)
    """)
    for i in range(8):
        a(f"v_lshlrev_b32 v{8+i}, 16, v{8+i}\nv_mul_f32 v{8+i}, s34, v{8+i}")
    for i in range(4):
        a(f"v_cvt_pk_bf16_f32 v{16+i}, v{8+2*i}, v{9+2*i}")
    a("""
    s_cmp_ge_u32 s3, 8
    s_cbranch_scc1 S_WST
    s_and_b32 s30, s3, 1
    s_lshl_b32 s30, s30, 4
    v_lshl_add_u32 v6, v2, 3, s30
    v_sub_u32 v6, v1, v6
    v_and_b32 v7, 1, v6
    v_lshlrev_b32 v7, 4, v7
    v_mov_b32 v8, 0x3f80
    v_lshlrev_b32 v7, v7, v8
    v_lshrrev_b32 v6, 1, v6
    """)
    for i in range(4):
        a(f"v_cmp_eq_u32 vcc, {i}, v6\ns_nop 1\nv_cndmask_b32 v{16+i}, 0, v7, vcc")
    a("""
    S_WST:
    buffer_store_dwordx4 v[16:19], v5, s[24:27], s35 offen
    S_END:
    s_endpgm
    """)

LMAX = 17
L_TB = 0
L_CNT = 1024
L_NT = L_CNT + 128
L_MX = L_NT + 16
L_BAS = L_MX + 16
L_ZR = 1536
L_LS = 2048
LSZ = LMAX * 1024
L_LE = L_LS + LSZ
L_ST = L_LE + LSZ
SCAP = 224
L_XR = L_ST + 8 * SCAP * 32
XRS = 8704
MAIN_LDS = L_XR + 8 * XRS
assert MAIN_LDS <= 163840 and L_XR % 4096 == 0
L_C8 = L_XR
C8O = 4096
L_GL = L_XR + 8192
GLS = 2176
L_WL = L_GL + 8 * GLS
assert L_WL + 34 * 1024 <= MAIN_LDS
L_FE = L_LS
DUMMY = 0xC0000000
DFLAG = 1 << 24

def gen_main():
    R = Regs("v", 1, 256)
    vLS = R.alloc("vLS"); vLE = R.alloc("vLE")
    vCr = R.alloc("vCr", 5)
    RP = R.alloc("RP", 8, 2)
    XA = R.alloc("XA", 4); CX = R.alloc("CX", 4)
    S4 = R.alloc("S4", 4, 4); T = R.alloc("T", 8, 4)
    FX = R.alloc("FX", 16, 4); E = R.alloc("E", 16, 4)
    D = R.alloc("D", 32, 4); Q = R.alloc("Q", 32, 4); AG = R.alloc("AG", 32, 4); W = R.alloc("W", 16, 4)
    U0 = R.alloc("U0", 16, 4); WU = R.alloc("WU", 16, 4); EP = R.alloc("EP", 16, 4); sa = R.alloc("sa"); junk = R.alloc("junk")
    h16 = RP + 1
    def Idf(j): return v(W + 4 * j, 4)
    def W3f(nh): return v(W + 8 + nh * 4, 4)
    def Es(t): return v(E + 4 * (t % 4), 4)
    sX, sE, sREC, sEM, sWF, sOUT = 16, 20, 24, 28, 32, 36
    sP = sREC
    sW, sSB, sS0, sSO, sN, sBASE, sCNT, sT, sXRB, sA, sB, sCAP = 40, 41, 42, 43, 44, 45, 46, 47, 48, 49, 50, 51
    sNB, sGL, sNMAX, sG, sL, sM7, sB30, sDF, sNS = 70, 71, 72, 73, 12, 13, 14, 15, 3
    sBK = 75
    lane, kk12, c0, c1, g0, g1, p0, p1, l16, tt, qa, one, nta, fl0 = [E + i for i in range(14)]
    G, RC, NA, RK = D, D + 8, D + 16, D + 24
    TBv = FX
    OFv, CA = EP, EP + 8
    XF = Q + 16
    t0, t1, t2, t3, t4, m, h = T, T+1, T+2, T+3, T+4, T+5, T+6
    def mk(i): return f"s[{54+2*i}:{55+2*i}]"
    ORD = list(range(7, -1, -1))
    def skip(lab):
        a(f"s_cmp_le_u32 s{sCNT}, 384\ns_cbranch_scc1 {lab}6\ns_cmp_le_u32 s{sCNT}, 448\ns_cbranch_scc1 {lab}7")
    def after(lab, i):
        if i >= 6: a(f"{lab}{i}:")
    ne = 0 if "noe" in OPT["abl"] else 1
    steps = [f"row_shr:{sh} row_mask:0xf bank_mask:0xf bound_ctrl:0" for sh in (1, 2, 4, 8)] + ["row_bcast:15 row_mask:0xa bank_mask:0xf", "row_bcast:31 row_mask:0xc bank_mask:0xf"]
    a.inmain = True
    a(".p2align 8\nmain_kernel:")
    a(f"""
    s_cmp_ge_u32 s2, 256
    s_cbranch_scc1 M_END
    s_load_dwordx2 s[10:11], s[0:1], 64
    s_load_dwordx4 s[4:7], s[0:1], 0
    s_load_dwordx2 s[8:9], s[0:1], 48
    @stamp 0
    v_lshrrev_b32 v{T}, 6, v0
    s_mov_b32 s{sCAP}, 512
    v_readfirstlane_b32 s{sW}, v{T}
    s_mov_b32 s{sBASE}, 0
    s_and_b32 s{sSB}, s{sW}, 1
    s_mul_i32 s{sGL}, s{sW}, {GLS}
    s_add_u32 s{sGL}, s{sGL}, {L_GL}
    M_BATCH:
    s_setprio 2
    s_mov_b32 s{sREC+2}, {0x600000//4}
    s_mov_b32 s{sREC+3}, 0x20000
    s_and_b32 s74, s2, 7
    s_lshl_b32 s74, s74, 5
    s_lshr_b32 s{sA}, s2, 3
    s_add_u32 s74, s74, s{sA}
    s_lshl_b32 s{sA}, s74, 10
    s_lshl_b32 s{sB}, s{sSB}, 1
    s_add_u32 s{sA}, s{sA}, s{sB}
    s_lshr_b32 s{sB}, s{sW}, 1
    s_lshl_b32 s{sB}, s{sB}, 8
    s_add_u32 s{sA}, s{sA}, s{sB}
    s_add_u32 s{sA}, s{sA}, {WS_O//4}
    v_and_b32 v{lane}, 63, v0
    v_lshl_add_u32 v{tt}, v{lane}, 2, s{sA}
    v_add_u32 v{qa}, 1, v{tt}
    s_waitcnt lgkmcnt(0)
    s_mov_b32 s{sREC}, s10
    s_or_b32 s{sREC+1}, s11, {4<<16}
    buffer_load_dword v{c0}, v{tt}, s[{sREC}:{sREC+3}], 0 idxen
    buffer_load_dword v{c1}, v{qa}, s[{sREC}:{sREC+3}], 0 idxen
    """)
    XW = int(OPT["xw"])
    if XW:
        srd_off(a, sEM, 10, WS_P, 3200000)
        a(f"""
        s_lshr_b32 s75, s2, 3
        s_mul_i32 s75, s75, {XW*128}
        v_lshl_add_u32 v{junk}, v{lane}, 3, s{sW}
        v_cmp_gt_u32 vcc, {XW}, v{junk}
        v_lshlrev_b32 v{junk}, 7, v{junk}
        s_mov_b64 exec, vcc
        buffer_load_dword v{junk}, v{junk}, s[{sEM}:{sEM+3}], s75 offen
        s_mov_b64 exec, -1
        """)
    CPF = int(OPT["cpf"])
    if CPF:
        a(f"""
        s_getpc_b64 s[52:53]
        M_PC:
        v_lshlrev_b32 v{junk}, 6, v0
        v_min_u32 v{junk}, M_END-M_PC, v{junk}
        global_load_dword v{junk}, v{junk}, s[52:53]
        """)
    srd_off(a, sWF, 10, WS_WF, 34 * 1024)
    a(f"v_lshlrev_b32 v{l16}, 4, v{lane}\ns_lshl_b32 s{sA}, s{sW}, 10\ns_add_u32 s{sB}, s{sA}, 6144")
    for j in range(4):
        if j == 3: a(f"s_and_b32 s{sA}, s{sA}, 3072\ns_add_u32 s{sB}, s{sA}, {30*1024}")
        a(f"s_add_u32 m0, s{sB}, {L_WL}\ns_nop 0\nbuffer_load_dwordx4 v{l16}, s[{sWF}:{sWF+3}], s{sB} offen lds\ns_add_u32 s{sB}, s{sB}, 8192")
    srd(a, sX, 4, 3200000)
    a(f"""
    s_lshl_b32 s{sA}, s74, 17
    s_add_u32 s{sA}, s{sA}, 1341
    s_mul_hi_u32 s{sS0}, s{sA}, 3200423
    s_add_u32 s{sA}, s{sA}, 65536
    s_mul_hi_u32 s{sSO}, s{sA}, 3200423
    s_add_u32 s{sA}, s{sA}, 65536
    s_mul_hi_u32 s{sNB}, s{sA}, 3200423
    s_min_u32 s{sNB}, s{sNB}, 25000
    s_sub_u32 s{sNB}, s{sNB}, s{sS0}
    s_sub_u32 s{sSO}, s{sSO}, s{sS0}
    s_mul_i32 s{sSO}, s{sSO}, s{sSB}
    s_lshl_b32 s{sS0}, s{sS0}, 7
    """)
    a(f"""
    v_lshrrev_b32 v{t0}, 4, v{lane}
    v_xor_b32 v{t0}, v{t0}, v{lane}
    v_and_b32 v{t0}, 7, v{t0}
    v_and_b32 v{t1}, 0x380, v{l16}
    v_lshl_or_b32 v{t0}, v{t0}, 4, v{t1}
    v_xor_b32 v{t1}, 64, v{t0}
    s_mul_i32 s{sL}, s{sW}, {SCAP*32}
    s_add_u32 s{sL}, s{sL}, {L_ST}
    s_add_u32 m0, s{sL}, 5120
    s_lshl_b32 s{sB}, s{sW}, 11
    s_add_u32 s{sB}, s{sB}, s{sS0}
    buffer_load_dwordx4 v{t0}, s[{sX}:{sX+3}], s{sB} offen lds
    buffer_load_dwordx4 v{t1}, s[{sX}:{sX+3}], s{sB} offen offset:1024 lds
    """)
    a(f"""
    v_and_b32 v{m}, 31, v{lane}
    v_lshrrev_b32 v{h}, 5, v{lane}
    v_lshlrev_b32 v{RP+1}, 4, v{h}
    v_lshlrev_b32 v{Q+5}, 3, v0
    v_mov_b32 v{Q+6}, 0
    v_mov_b32 v{Q+7}, 0
    v_add_u32 v{Q+8}, {L_C8}, v{Q+5}
    v_lshlrev_b32 v{Q+5}, 2, v0
    ds_write_b64 v{Q+8}, {v(Q+6,2)}
    ds_write_b32 v{Q+5}, v{Q+6}
    s_and_b32 s{sA}, s{sW}, 6
    v_lshl_add_u32 v{kk12}, v{m}, 3, v{h}
    v_add_u32 v{kk12}, s{sA}, v{kk12}
    v_cmp_gt_u32 vcc, {NCH}, v{kk12}
    v_lshlrev_b32 v{kk12}, 12, v{kk12}
    v_mov_b32 v{t1}, 0xffff
    v_lshl_add_u32 v{qa}, v{lane}, 2, s{sGL}
    s_waitcnt vmcnt({6 + (1 if CPF else 0) + (1 if XW else 0)})
    @stamp 1
    v_cndmask_b32 v{c0}, 0, v{c0}, vcc
    v_cndmask_b32 v{c1}, 0, v{c1}, vcc
    v_lshrrev_b32 v{p0}, 16, v{c0}
    v_lshrrev_b32 v{p1}, 16, v{c1}
    """)
    fl = [f"v_and_or_b32 v{g0}, v{c0}, v{t1}, v{kk12}", f"v_and_or_b32 v{g1}, v{c1}, v{t1}, v{kk12}",
          f"v_lshrrev_b32 v{c0}, 16, v{c0}", f"v_lshrrev_b32 v{c1}, 16, v{c1}", "s_nop 0", "s_nop 0"]
    for n, stp in enumerate(steps):
        a(f"{fl[n]}\nv_add_u32_dpp v{p0}, v{p0}, v{p0} {stp}\nv_add_u32_dpp v{p1}, v{p1}, v{p1} {stp}")
    a(f"""
    v_readlane_b32 s{sNS}, v{p0}, 63
    v_readlane_b32 s{sN}, v{p1}, 63
    v_sub_u32 v{p0}, v{p0}, v{c0}
    v_sub_u32 v{p1}, v{p1}, v{c1}
    s_add_u32 s{sN}, s{sN}, s{sNS}
    v_add_u32 v{p1}, s{sNS}, v{p1}
    s_mov_b32 s{sCNT}, s{sN}
    s_add_u32 s{sA}, s{sN}, s{sBASE}
    s_cmp_le_u32 s{sA}, s{sCAP}
    s_cbranch_scc0 M_WIN
    s_cmp_eq_u32 s{sBASE}, 0
    s_cbranch_scc1 M_NOWIN
    M_WIN:
    s_sub_i32 s{sCNT}, s{sN}, s{sBASE}
    s_max_i32 s{sCNT}, s{sCNT}, 0
    s_min_u32 s{sCNT}, s{sCNT}, s{sCAP}
    s_sub_i32 s{sNS}, s{sNS}, s{sBASE}
    s_max_i32 s{sNS}, s{sNS}, 0
    """)
    for (pp, cc, gg) in ((p0, c0, g0), (p1, c1, g1)):
        a(f"""
        v_subrev_u32 v{tt}, s{sBASE}, v{pp}
        v_max_i32 v{pp}, 0, v{tt}
        v_add_u32 v{cc}, v{tt}, v{cc}
        v_min_i32 v{cc}, s{sCAP}, v{cc}
        v_sub_u32 v{cc}, v{cc}, v{pp}
        v_sub_u32 v{tt}, v{pp}, v{tt}
        v_add_u32 v{gg}, v{gg}, v{tt}
        """)
    a(f"M_NOWIN:\ns_min_u32 s{sNS}, s{sNS}, {0 if YM else SCAP}")
    pa, ca_, ga, gb = t0, t1, t2, t3
    for n, (pp, cc, gg) in enumerate(((p0, c0, g0), (p1, c1, g1))):
        a(f"""
        v_lshl_add_u32 v{pp}, v{pp}, 2, s{sGL}
        v_add_u32 v{ga}, 1, v{gg}
        v_add_u32 v{gb}, 2, v{gg}
        v_mov_b32 v{ca_}, v{cc}
        v_mov_b32 v{pa}, v{pp}
        M_EXP{n}:
        """)
        for r in (1, 3, 5, 7):
            a(f"v_cmpx_lt_i32 vcc, {r}, v{ca_}\nds_write2_b32 v{pa}, v{ga}, v{gb} offset0:{r} offset1:{r+1}\nv_add_u32 v{ga}, 2, v{ga}\nv_add_u32 v{gb}, 2, v{gb}")
        a(f"""
        v_cmpx_lt_i32 vcc, 9, v{ca_}
        v_add_u32 v{pa}, 32, v{pa}
        v_subrev_u32 v{ca_}, 8, v{ca_}
        s_cbranch_execnz M_EXP{n}
        s_mov_b64 exec, -1
        """)
    a(f"""
    v_cmpx_lt_i32 vcc, 0, v{c0}
    ds_write_b32 v{p0}, v{g0}
    s_mov_b64 exec, -1
    v_cmpx_lt_i32 vcc, 0, v{c1}
    ds_write_b32 v{p1}, v{g1}
    s_mov_b64 exec, -1
    """)
    for i in ORD:
        a(f"ds_read_b32 v{G+i}, v{qa} offset:{256*i}")
    SG = U0
    a(f"v_lshrrev_b32 v{t0}, 1, v{lane}\nv_lshl_add_u32 v{t1}, v{t0}, 2, s{sGL}")
    for j in range(7):
        a(f"ds_read_b32 v{SG+j}, v{t1} offset:{128*j}")
    for i in ORD:
        a(f"s_sub_i32 s{sA}, s{sCNT}, {64*i}\nv_cmp_gt_i32 {mk(i)}, s{sA}, v{lane}")
    a("s_waitcnt vmcnt(0)")
    skip("M_GA")
    for i in ORD:
        a(f"""
        s_mov_b64 exec, {mk(i)}
        s_waitcnt lgkmcnt({i+7})
        buffer_load_dword v{RC+i}, v{G+i}, s[{sREC}:{sREC+3}], 0 idxen
        """)
        after("M_GA", i)
    a(f"""
    s_mov_b64 exec, -1
    @stamp 2
    s_setprio 0
    """)
    for i in range(4): a(f"v_mov_b32 v{S4+i}, {DUMMY}")
    a(f"v_lshlrev_b32 v{t0}, 4, v0\nv_lshlrev_b32 v{t1}, 2, v0")
    assert 2 * LSZ == 4 * 8192 + 2048
    for i in range(4): a(f"ds_write_b128 v{t0}, {v(S4,4)} offset:{L_LS+8192*i}")
    a(f"""
    ds_write_b32 v{t1}, v{S4} offset:{L_LS+8192*4}
    s_mov_b32 s{sB}, s{sL}
    s_sub_u32 s{sE}, s6, {DFLAG*32}
    s_subb_u32 s{sE+1}, s7, 0
    s_or_b32 s{sE+1}, s{sE+1}, {32<<16}
    s_mov_b32 s{sE+2}, {(DFLAG + 800000) * ne}
    s_mov_b32 s{sE+3}, 0x20000
    s_sub_u32 s{sG}, 11, s{sW}
    s_cmp_lt_u32 s{sW}, 4
    s_cselect_b32 s{sG}, s{sW}, s{sG}
    s_mul_i32 s{sXRB}, s{sG}, {XRS}
    s_add_u32 s{sXRB}, s{sXRB}, {L_XR}
    s_mov_b32 s{sM7}, 0xffffff80
    s_mov_b32 s{sB30}, 0x40000000
    s_mov_b32 s{sDF}, {DFLAG}
    v_mov_b32 v{RP+3}, v{h16}
    v_mov_b32 v{RP+5}, v{h16}
    v_mov_b32 v{RP+7}, v{h16}
    v_lshrrev_b32 v{t0}, 3, v{lane}
    s_lshl_b32 s{sA}, s{sG}, 7
    v_lshl_add_u32 v{vLS}, v{t0}, 4, s{sA}
    v_lshl_add_u32 v{vLE}, v{m}, 2, s{sA}
    v_and_b32 v{t3}, 1, v{t0}
    v_lshlrev_b32 v{t3}, 4, v{t3}
    v_lshl_add_u32 v{sa}, v{lane}, 5, v{t3}
    v_add_u32 v{sa}, s{sB}, v{sa}
    v_and_b32 v{t1}, 4, v{t0}
    v_and_b32 v{t2}, 7, v{lane}
    v_xor_b32 v{t1}, v{t1}, v{t2}
    v_lshlrev_b32 v{CX}, 4, v{t1}
    v_xor_b32 v{CX+1}, 16, v{CX}
    v_xor_b32 v{CX+2}, 32, v{CX}
    v_xor_b32 v{CX+3}, 48, v{CX}
    v_and_b32 v{t0}, 3, v{m}
    v_lshrrev_b32 v{t1}, 2, v{m}
    v_lshl_add_u32 v{t1}, v{t0}, 3, v{t1}
    v_lshlrev_b32 v{t1}, 7, v{t1}
    v_add_u32 v{t1}, s{sXRB}, v{t1}
    v_lshrrev_b32 v{t2}, 4, v{m}
    v_lshl_or_b32 v{t0}, v{t2}, 2, v{t0}
    v_xor_b32 v{t0}, v{t0}, v{h}
    v_lshl_add_u32 v{XA}, v{t0}, 4, v{t1}
    v_xor_b32 v{XA+1}, 32, v{XA}
    v_xor_b32 v{XA+2}, 64, v{XA}
    v_xor_b32 v{XA+3}, 0x60, v{XA}
    v_mov_b32 v{one}, 1
    v_mov_b32 v{nta}, 0
    v_mov_b32 v{fl0}, s{sCNT}
    v_mov_b32 v{fl0+1}, s{sN}
    v_lshrrev_b32 v{t2}, 4, v{lane}
    v_xor_b32 v{t2}, v{t2}, v{lane}
    v_and_b32 v{t2}, 1, v{t2}
    v_lshlrev_b32 v{t2}, 4, v{t2}
    v_lshrrev_b32 v{t4}, 1, v{lane}
    v_bfe_u32 v{t0}, v{m}, 1, 3
    v_xor_b32 v{t0}, v{t0}, v{h}
    v_lshlrev_b32 v{t0}, 4, v{t0}
    v_and_b32 v{t1}, 15, v{m}
    v_lshl_or_b32 v{t0}, v{t1}, 7, v{t0}
    v_lshrrev_b32 v{t1}, 4, v{m}
    v_mul_u32_u24 v{t1}, {SCAP*32}, v{t1}
    s_and_b32 s{sA}, s{sW}, 6
    s_mul_i32 s{sA}, s{sA}, {SCAP*32}
    v_add3_u32 v{t0}, v{t0}, v{t1}, s{sA}
    """)
    srd_off(a, sEM, 10, WS_EM, 0 if "nom" in OPT["abl"] else NCH * 131072)
    a("s_waitcnt lgkmcnt(5)")
    for j in range(7): a(f"v_lshl_add_u32 v{SG+j}, v{SG+j}, 5, v{t2}")
    a("s_setprio 2\ns_barrier")
    def stage(js):
        for j in js:
            a(f"""
            s_sub_i32 s{sA}, s{sNS}, {32*j}
            s_add_u32 m0, s{sL}, {1024*j}
            v_cmpx_gt_i32 vcc, s{sA}, v{t4}
            buffer_load_dwordx4 v{SG+j}, s[{sEM}:{sEM+3}], 0 offen {OPT['mflags']} lds
            """)
        a("s_mov_b64 exec, -1")
    NS1 = int(OPT["ns1"])
    assert NS1 <= 5
    for sx in range(4):
        a(f"ds_read_b128 {v(XF+4*sx,4)}, v{t0} offset:{L_ST+5120}" + (f"\nv_xor_b32 v{t0}, {(32, 96, 32)[sx]}, v{t0}" if sx < 3 else ""))
    stage(range(NS1))
    def wread():
        a(f"""
        s_lshl_b32 s{sA}, s{sSB}, 13
        s_add_u32 s{sA}, s{sA}, {L_WL + 18*1024}
        v_add_u32 v{t0}, s{sA}, v{l16}
        s_lshl_b32 s{sA}, s{sSB}, 11
        v_add_u32 v{t1}, s{sA}, v{t0}
        v_subrev_u32 v{t2}, s{sA}, v{t0}
        v_add_u32 v{t3}, {L_WL}, v{l16}
        """)
        for sx in range(4): a(f"ds_read_b128 {v(FX+4*sx,4)}, v{t0} offset:{1024*sx}")
        a(f"""
        ds_read_b128 {v(WU,4)}, v{t1} offset:4096
        ds_read_b128 {v(WU+4,4)}, v{t1} offset:5120
        ds_read_b128 {v(WU+8,4)}, v{t2} offset:6144
        ds_read_b128 {v(WU+12,4)}, v{t2} offset:7168
        """)
        for f in range(6, 18):
            dst = W + 4*(f-6) if f < 8 else (AG + 4*(f-8) if f < 16 else W + 8 + 4*(f-16))
            a(f"ds_read_b128 {v(dst,4)}, v{t3} offset:{1024*f}")
            if f == 12:
                a("s_waitcnt lgkmcnt(11)")
                for st in range(4):
                    a(f"v_mfma_f32_32x32x16_bf16 {v(U0,16)}, {v(FX+4*st,4)}, {v(XF+4*st,4)}, {'0' if st == 0 else v(U0,16)}")
    a(f"""
    s_mov_b32 s75, {L_C8}
    s_movk_i32 s{sB}, 0xe00
    s_mov_b64 exec, 1
    ds_add_u32 v{nta}, v{fl0} offset:{L_NT}
    ds_max_u32 v{nta}, v{fl0+1} offset:{L_MX}
    """)
    skip("M_RK")
    for i in ORD:
        a(f"""
        s_mov_b64 exec, {mk(i)}
        s_waitcnt vmcnt({i+NS1})
        v_and_b32 v{NA+i}, 63, v{RC+i}
        v_lshrrev_b32 v{tt}, 9, v{RC+i}
        v_add_u32 v{NA+i}, s{sSO}, v{NA+i}
        v_lshl_add_u32 v{CA+i}, v{NA+i}, 2, s75
        v_and_or_b32 v{CA+i}, v{tt}, s{sB}, v{CA+i}
        ds_add_rtn_u32 v{RK+i}, v{CA+i}, v{one}
        """)
        after("M_RK", i)
    EPF = int(OPT["epf"])
    def pack(lab):
        a(f"s_movk_i32 s{sB}, {CH}\ns_mov_b32 s74, {EPF*128}")
        skip(lab)
        for i in ORD:
            a(f"""
            v_lshrrev_b32 v{t0}, 12, v{G+i}
            v_lshrrev_b32 v{tt}, 21, v{RC+i}
            v_bfe_i32 v{t1}, v{G+i}, 11, 1
            v_mad_u32_u24 v{tt}, v{t0}, s{sB}, v{tt}
            v_and_b32 v{t1}, {M0}, v{t1}
            v_bfe_u32 v{RC+i}, v{RC+i}, 6, 15
            v_add3_u32 v{G+i}, v{t1}, v{tt}, s{sDF}
            v_lshl_add_u32 v{RC+i}, v{RC+i}, 7, v{NA+i}
            v_lshlrev_b32 v{NA+i}, 3, v{NA+i}
            """)
            if i < 4:
                a(f"""
                s_sub_i32 s{sA}, s{sNS}, {64*i}
                v_cmp_gt_i32 vcc, s{sA}, v{lane}
                v_add_u32 v{tt}, {2048*i}, v{sa}
                s_nop 0
                v_cndmask_b32 v{G+i}, v{G+i}, v{tt}, vcc
                """)
            after(lab, i)
    a(f"""
    s_mov_b64 exec, -1
    @pstamp 3
    s_cmp_eq_u32 s{sW}, 0
    s_cbranch_scc1 M_PK0
    s_lshl_b32 s{sA}, s{sW}, 8
    s_add_u32 s{sA}, s{sA}, {L_C8 - 256}
    v_lshl_add_u32 v{S4}, v{lane}, 2, s{sA}
    v_mov_b32 v{Q+8}, 0
    s_waitcnt lgkmcnt(0)
    s_barrier
    @pstamp 4
    s_cmp_gt_u32 s{sW}, 2
    s_cbranch_scc1 M_NOPFX
    """)
    for j in range(3): a(f"ds_read2st64_b32 {v(Q+2*j,2)}, v{S4} offset0:{4*j} offset1:{4*j+2}")
    a(f"s_waitcnt lgkmcnt(0)\nv_mov_b32 v{Q+9}, v{Q}")
    for j in range(1, 6): a(f"v_add_u32 v{Q+9+j}, v{Q+8+j}, v{Q+j}")
    for j in range(4): a(f"ds_write2st64_b32 v{S4}, v{Q+8+2*j}, v{Q+9+2*j} offset0:{16+4*j} offset1:{16+4*j+2}")
    a("M_NOPFX:\ns_setprio 0")
    stage(range(NS1, 7)); pack("M_PB")
    a("s_waitcnt lgkmcnt(0)\ns_barrier\ns_branch M_P4E")
    d0, d1, f0, f1, k0, k1, vL, vR, ks, a4, l0, l1, o0, o1, cn, ci = [Q + i for i in range(16)]
    m0_, B0, m1_, B1 = S4, S4+1, S4+2, S4+3
    a(f"M_PK0:\ns_mov_b32 s{sT}, s{sL}")
    a(f"""
    s_setprio 3
    v_lshlrev_b32 v{a4}, 3, v{lane}
    v_lshlrev_b32 v{cn}, 2, v{lane}
    v_add_u32 v{cn}, {L_C8}, v{cn}
    v_sub_u32 v{ci}, 31, v{m}
    v_lshlrev_b32 v{ci}, 2, v{ci}
    s_mov_b32 s75, {f32(4194304.0)}
    s_waitcnt lgkmcnt(0)
    s_barrier
    @pstamp 4
    ds_read_b32 v{ks}, v{nta} offset:{L_NT}
    """)
    for j in range(7): a(f"ds_read2st64_b32 {v(FX+2*j,2)}, v{cn} offset0:{2*j} offset1:{2*j+1}")
    a(f"""
    s_waitcnt lgkmcnt(4)
    v_readfirstlane_b32 s{sL}, v{ks}
    v_add3_u32 v{d0}, v{FX}, v{FX+2}, v{FX+4}
    v_add3_u32 v{d1}, v{FX+1}, v{FX+3}, v{FX+5}
    s_lshr_b32 s{sL}, s{sL}, 8
    s_add_u32 s{sL}, s{sL}, 2
    s_waitcnt lgkmcnt(0)
    v_add3_u32 v{d0}, v{d0}, v{FX+6}, v{FX+8}
    v_add3_u32 v{d1}, v{d1}, v{FX+7}, v{FX+9}
    v_add3_u32 v{d0}, v{d0}, v{FX+10}, v{FX+12}
    v_add3_u32 v{d1}, v{d1}, v{FX+11}, v{FX+13}
    v_cvt_f32_u32 v{f0}, v{d0}
    v_cvt_f32_u32 v{f1}, v{d1}
    M_LS:
    s_add_u32 s{sL}, s{sL}, 1
    s_cmp_gt_u32 s{sL}, {LMAX}
    s_cbranch_scc1 M_P4W
    v_cvt_f32_u32 v{vL}, s{sL}
    v_rcp_f32 v{vR}, v{vL}
    v_add_f32 v{vL}, -0.5, v{vL}
    v_add_f32 v{k0}, v{f0}, v{vL}
    v_add_f32 v{k1}, v{f1}, v{vL}
    v_mul_f32 v{k0}, v{k0}, v{vR}
    v_mul_f32 v{k1}, v{k1}, v{vR}
    v_cvt_u32_f32 v{k0}, v{k0}
    v_cvt_u32_f32 v{k1}, v{k1}
    v_add_u32 v{ks}, v{k0}, v{k1}
    """)
    fillers = [f"v_cvt_f32_u32 v{l0}, v{k0}", f"v_cvt_f32_u32 v{l1}, v{k1}",
               f"v_rcp_f32 v{m0_}, v{l0}", f"v_rcp_f32 v{m1_}, v{l1}",
               f"v_add_f32 v{l0}, v{l0}, v{f0}", f"v_add_f32 v{l1}, v{l1}, v{f1}",
               f"v_add_f32 v{l0}, -0.5, v{l0}", f"v_add_f32 v{l1}, -0.5, v{l1}",
               f"v_mul_f32 v{l0}, v{l0}, v{m0_}", f"v_mul_f32 v{l1}, v{l1}, v{m1_}",
               f"v_cvt_u32_f32 v{l0}, v{l0}", f"v_cvt_u32_f32 v{l1}, v{l1}"]
    for n, stp in enumerate(steps):
        a(f"{fillers[2*n]}\n{fillers[2*n+1]}\nv_add_u32_dpp v{ks}, v{ks}, v{ks} {stp}")
    a(f"""
    v_lshlrev_b32 v{l0}, 2, v{l0}
    v_readlane_b32 s{sA}, v{ks}, 63
    v_lshlrev_b32 v{l1}, 2, v{l1}
    s_cmp_gt_u32 s{sA}, 256
    s_cbranch_scc1 M_LS
    ds_add_rtn_u32 v{o0}, v{l0}, v{k0} offset:{L_CNT}
    ds_add_rtn_u32 v{o1}, v{l1}, v{k1} offset:{L_CNT}
    ds_read_b32 v{cn}, v{ci} offset:{L_CNT}
    v_mul_f32 v{m0_}, s75, v{m0_}
    v_mul_f32 v{m1_}, s75, v{m1_}
    v_cvt_u32_f32 v{m0_}, v{m0_}
    v_cvt_u32_f32 v{m1_}, v{m1_}
    v_add_u32 v{m0_}, 2, v{m0_}
    v_add_u32 v{m1_}, 2, v{m1_}
    v_lshlrev_b32 v{B0}, 2, v{k0}
    v_lshlrev_b32 v{B1}, 2, v{k1}
    v_sub_u32 v{B0}, 1024, v{B0}
    v_sub_u32 v{B1}, 1024, v{B1}
    v_sub_u32 v{l0}, 124, v{l0}
    v_sub_u32 v{l1}, 124, v{l1}
    s_waitcnt lgkmcnt(0)
    v_mov_b32 v{ks}, v{cn}
    """)
    for stp in steps[:5]:
        a(f"s_nop 1\nv_add_u32_dpp v{ks}, v{ks}, v{ks} {stp}")
    a(f"""
    v_sub_u32 v{ks}, v{ks}, v{cn}
    ds_bpermute_b32 v{d0}, v{l0}, v{ks}
    ds_bpermute_b32 v{d1}, v{l1}, v{ks}
    ds_write_b32 v{ci}, v{ks} offset:{L_BAS}
    s_waitcnt lgkmcnt(1)
    v_add_u32 v{o0}, v{o0}, v{d0}
    v_add_u32 v{o1}, v{o1}, v{d1}
    v_lshl_or_b32 v{m0_}, v{o0}, 24, v{m0_}
    v_lshl_or_b32 v{m1_}, v{o1}, 24, v{m1_}
    ds_write2st64_b64 v{a4}, {v(m0_,2)}, {v(m1_,2)} offset0:0 offset1:1
    M_P4W:
    v_mov_b32 v{ks}, s{sL}
    ds_write_b32 v{nta}, v{ks} offset:{L_MX+4}
    s_waitcnt lgkmcnt(0)
    s_barrier
    """)
    a(f"s_mov_b32 s{sL}, s{sT}")
    stage(range(NS1, 7)); pack("M_PA")
    u0, nn = Q, Q + 6
    a(f"""
    M_P4E:
    @pstamp 5
    ds_read_b64 {v(u0,2)}, v{nta} offset:{L_MX}
    v_lshlrev_b32 v{tt}, 2, v{m}
    ds_read_b32 v{u0+2}, v{tt} offset:{L_CNT}
    ds_read_b32 v{u0+3}, v{tt} offset:{L_BAS}
    s_lshr_b32 s{sA}, s{sW}, 1
    s_lshl_b32 s{sA}, s{sA}, 5
    v_add_u32 v{nn}, s{sA}, v{m}
    v_lshlrev_b32 v{tt}, 3, v{nn}
    ds_read_b64 {v(u0+4,2)}, v{tt} offset:{L_TB}
    """)
    skip("M_TR")
    for i in ORD:
        a(f"s_mov_b64 exec, {mk(i)}\nds_read_b64 {v(TBv+2*i,2)}, v{NA+i} offset:{L_TB}\nds_read_b32 v{OFv+i}, v{CA+i} offset:{C8O}")
        after("M_TR", i)
    a(f"""
    s_mov_b64 exec, -1
    s_lshl_b32 s{sA}, s{sG}, 5
    s_waitcnt lgkmcnt(12)
    v_readfirstlane_b32 s{sNMAX}, v{u0}
    v_readfirstlane_b32 s{sL}, v{u0+1}
    v_add_u32 v{u0+2}, v{u0+2}, v{u0+3}
    v_cmp_ge_u32 vcc, s{sA}, v{u0+3}
    v_cmp_lt_u32 s[52:53], s{sA}, v{u0+2}
    s_and_b64 s[52:53], s[52:53], vcc
    s_ff1_i32_b32 s{sT}, s52
    s_max_i32 s{sT}, s{sT}, 0
    s_cmp_le_u32 s{sL}, {LMAX}
    s_cbranch_scc1 M_P5
    s_mov_b32 s{sCAP}, 256
    s_branch M_AGAIN
    M_P5:
    """)
    skip("M_SC")
    for i in ORD:
        mm, BB = TBv + 2*i, TBv + 2*i + 1
        a(f"""
        s_mov_b64 exec, {mk(i)}
        s_waitcnt lgkmcnt({2*i + max(0, 5-i)})
        v_add_u32 v{RK+i}, v{RK+i}, v{OFv+i}
        v_lshrrev_b32 v{tt}, 24, v{mm}
        v_mul_u32_u24 v{mm}, v{mm}, v{RK+i}
        v_add_lshl_u32 v{tt}, v{tt}, v{RK+i}, 2
        v_lshrrev_b32 v{mm}, 22, v{mm}
        v_mad_u32_u24 v{tt}, v{mm}, v{BB}, v{tt}
        ds_write2st64_b32 v{tt}, v{RC+i}, v{G+i} offset0:{L_LS//256} offset1:{L_LE//256}
        """)
        after("M_SC", i)
    ca0, ca1, ca2, ca3, kk, oa, fa, da, l16e = [EP + i for i in range(9)]
    epi_setup = f"""
    s_lshl_b32 s{sA}, s{sSB}, 7
    s_add_u32 s{sA}, s{sA}, {L_XR}
    s_movk_i32 s{sB}, 0x3fc
    s_movk_i32 s75, 0x3f8
    v_mov_b32 v{kk}, v{u0+5}
    v_lshrrev_b32 v{ca0}, 24, v{u0+4}
    v_mul_u32_u24 v{ca0}, 272, v{ca0}
    v_lshl_add_u32 v{ca0}, v{h16}, 1, v{ca0}
    v_add_u32 v{ca0}, s{sA}, v{ca0}
    v_mov_b32 v{da}, {L_ZR}
    v_cmp_gt_u32 s[56:57], s{sB}, v{kk}
    v_cmp_gt_u32 s[58:59], s75, v{kk}
    v_add_u32 v{ca1}, 272, v{ca0}
    v_add_u32 v{ca2}, 544, v{ca0}
    v_add_u32 v{ca3}, 816, v{ca0}
    v_cmp_gt_u32 vcc, 0x400, v{kk}
    v_cndmask_b32 v{ca1}, v{da}, v{ca1}, s[56:57]
    v_cndmask_b32 v{ca2}, v{da}, v{ca2}, s[58:59]
    v_cndmask_b32 v{ca0}, v{da}, v{ca0}, vcc
    v_cmp_gt_u32 vcc, s{sNB}, v{nn}
    v_lshlrev_b32 v{oa}, 7, v{nn}
    v_lshl_add_u32 v{oa}, v{h16}, 1, v{oa}
    v_mov_b32 v{da}, 0x80000000
    v_cndmask_b32 v{oa}, v{da}, v{oa}, vcc
    s_lshl_b32 s{sA}, s{sW}, 11
    v_mov_b32 v{l16e}, v{l16}
    v_add_u32 v{fa}, s{sA}, v{l16}
    v_mul_u32_u24 v{da}, 272, v{m}
    v_add3_u32 v{da}, v{da}, v{h16}, s{sXRB}
    """
    a("s_mov_b64 exec, -1\ns_setprio 0")
    wread()
    a(epi_setup)
    srd_off(a, sP, 10, WS_P, 0 if "nox" in OPT["abl"] else 3200000)
    a(f"""
    s_waitcnt vmcnt(0) lgkmcnt(0)
    s_barrier
    @stamp 3
    @pstamp 6
    s_cmp_eq_u32 s{sT}, 0
    s_cbranch_scc1 M_BEND
    """)
    S = []
    ef = OPT["eflags"]
    def le_read(t, p): return (f"ds_read_b32 v{RP+2*p}, v{vLE} offset:{L_LE+1024*t}", f"le{t}")
    def ls_read(t, dst): return (f"ds_read_b128 {v(dst,4)}, v{vLS} offset:{L_LS+1024*t}", f"ls{t}")
    def st_addr(p): return f"v_xor_b32 v{sa}, v{RP+2*p}, v{h16}"
    def st_read(t): return (f"ds_read_b128 {Es(t)}, v{sa}", f"st{t}")
    def d_pre(t, p): return [f"v_cmp_le_u32 vcc, s{sDF}, v{RP+2*p}", f"v_and_or_b32 v{vCr+t%5}, v{RP+2*p}, s{sB30}, 1.0"]
    def d_load(t, p): return ["s_mov_b64 exec, vcc", (f"buffer_load_dwordx4 {Es(t)}, {v(RP+2*p,2)}, s[{sE}:{sE+3}], 0 idxen offen {ef}", f"D{t}"), "s_mov_b64 exec, -1"]
    def x_addr(src): return [f"v_and_or_b32 v{S4+i}, v{src+i}, s{sM7}, v{CX+i}" for i in range(4)]
    def x_dma(t, nop=True, reg=None, soff="0", tag=None):
        o = []
        for i in range(4):
            o += [f"s_add_u32 m0, s{sXRB}, {(t&1)*4096+i*1024}"] + (["s_nop 0"] if nop else []) + \
                 [(f"buffer_load_dwordx4 v{(reg or S4)+i}, s[{sX if reg else sP}:{(sX if reg else sP)+3}], {soff} offen lds", tag or f"X{t}")]
        return o
    def fx_read(t, sx, tag=None): return (f"ds_read_b128 {v(FX+4*sx,4)}, v{XA+sx} offset:{(t&1)*4096}", tag or f"fx{t}")
    def chain(nh, t):
        Dh = v(D + 16 * nh, 16)
        return [f"v_mfma_f32_32x32x16_bf16 {Dh}, {W3f(nh)}, {Es(t)}, {v(Q+16*nh,16)}"] + \
               [f"v_mfma_f32_32x32x16_bf16 {Dh}, {Idf(j)}, {v(FX+8*nh+4*j,4)}, {Dh}" for j in range(2)]
    XD4, L1, L2 = D, D + 4, D + 8
    S += [ls_read(0, S4)] + [le_read(j, j) for j in range(4)] + [ls_read(1, L1), ls_read(2, L2), ("@W", None, "ls0")]
    for i in range(4): S += [f"v_and_b32 v{XD4+i}, 127, v{S4+i}", f"v_lshl_or_b32 v{XD4+i}, v{XD4+i}, 7, v{CX+i}"]
    S += x_dma(1, reg=XD4, soff=f"s{sS0}", tag="XD") + x_addr(S4) + x_dma(0)
    S += [("@W", None, "le3")]
    for j in range(4): S += [st_addr(j), st_read(j)]
    for j in range(2): S += d_pre(j, j) + [("@W", None, f"st{j}")] + d_load(j, j)
    S += [("@W", "XD", None)] + [fx_read(1, sx, "xd") for sx in range(4)] + x_addr(L1) + [("@W", None, "xd")]
    dm = x_dma(1, nop=False)
    k = 0
    for nh in range(2):
        for sx in range(4):
            S.append(f"v_mfma_f32_32x32x16_bf16 {v(Q+16*nh,16)}, {v(AG+(sx*2+nh)*4,4)}, {v(FX+4*sx,4)}, {'0' if sx == 0 else v(Q+16*nh,16)}")
            S.append(dm[k]); k += 1
    S += d_pre(2, 2) + d_load(2, 2)
    S += [("@W", "D0", None)] + [fx_read(0, sx) for sx in range(4)] + x_addr(L2) + [("@W", None, "fx0")]
    S += chain(0, 0) + x_dma(2) + d_pre(3, 3) + d_load(3, 3)
    if OPT["stamp"]: S += ["@stamp 4", f"s_mov_b32 s90, s{sT}", f"s_mov_b32 s98, s{sL}", "s_memtime s[94:95]", "s_waitcnt lgkmcnt(0)"]
    def phase(nh, t, mf, fill):
        Db, Ab = D + 16*nh, AG + 16*nh
        c = vCr + t % 5
        cp = f"{v(c & ~1, 2)} " + ("op_sel_hi:[1,0]" if c % 2 == 0 else "op_sel:[0,1] op_sel_hi:[1,1]")
        seq = []
        mf = mf + [None] * (3 - len(mf))
        mf = [mf[0], None, mf[1], None, mf[2]]
        for q in range(2):
            ex = [f"v_exp_f32 v{T+i}, v{Db+8*q+i}" for i in range(8)]
            rc = [f"v_rcp_f32 v{T+i}, v{T+i}" for i in range(8)]
            ad = [f"v_pk_add_f32 {v(T+2*i,2)}, {v(T+2*i,2)}, {cp}" for i in range(4)]
            fm = [f"v_pk_fma_f32 {v(Ab+8*q+2*i,2)}, {v(Db+8*q+2*i,2)}, {v(T+2*i,2)}, {v(Ab+8*q+2*i,2)}" for i in range(4)]
            if t == 0: fm = [f"v_pk_mul_f32 {v(Ab+8*q+2*i,2)}, {v(Db+8*q+2*i,2)}, {v(T+2*i,2)}" for i in range(4)]
            if q == 0: seq += [mf[0]] + ex[:3] + [mf[1]] + ex[3:] + ad + [mf[2]] + rc[:3] + [mf[3]] + rc[3:] + fm
            else: seq += [mf[4]] + ex + ad + rc + fm
        res = []; n = 0
        for l in seq:
            if l is None: continue
            res.append(l)
            if l.startswith(("v_exp", "v_rcp")):
                res += fill.get(n, []); n += 1
        if "nocomp" in OPT["abl"]:
            r2 = []
            for l in res:
                if isinstance(l, str) and l.startswith(("v_exp", "v_rcp", "v_pk", "v_add_f32", "v_fmac", "v_mfma")): continue
                r2.append(l)
                if isinstance(l, str) and " m0," in l: r2.append("s_nop 0")
            res = r2
        return res
    for t in range(LMAX):
        fill = {}
        if t + 4 < LMAX:
            fill[0] = [le_read(t + 4, 0)]
            fill[10] = [("@W", None, f"le{t+4}"), st_addr(0)]; fill[11] = [st_read(t + 4)]
        if t + 3 < LMAX: fill[1] = [ls_read(t + 3, S4)]
        if t + 1 < LMAX:
            fill[16] = [("@W", f"X{t+1}", None)]
            for sx in range(4): fill[17+sx] = [fx_read(t + 1, sx)]
        if t + 3 < LMAX:
            xa = x_addr(S4)
            fill[24] = [("@W", None, f"ls{t+3}"), xa[0]]; fill[25] = [xa[1]]; fill[26] = [xa[2]]; fill[27] = [xa[3]]
        if int(OPT["prio"]) == 1: S.append("s_setprio 1")
        S += phase(0, t, chain(1, t), fill)
        if int(OPT["prio"]) == 1: S.append("s_setprio 0")
        fill = {}
        if t + 1 < LMAX: fill[0] = [("@W", None, f"fx{t+1}")]
        if t + 3 < LMAX:
            dm = x_dma(t + 3, nop=False)
            for i in range(8): fill[1+i] = [dm[i]]
        if t + 4 < LMAX:
            dp = d_pre(t + 4, 0)
            fill[9] = [dp[0]]; fill[12] = d_load(t + 4, 0); fill[13] = [dp[1]]
        fill[31] = [f"s_cmp_eq_u32 s{sT}, {t+1}"]
        S += phase(1, t, chain(0, t + 1) if t + 1 < LMAX else [], fill)
        if t + 1 < LMAX: S.append("s_cbranch_scc1 M_FLUSH")
    emit(resolve(S))
    a("M_FLUSH:\n@stamp 5\n@estamp 1\n@cyc\ns_waitcnt vmcnt(0)")
    for i in range(8):
        a(f"ds_write_b128 v{da}, {v(AG+4*i,4)} offset:{32*i}")
    A0, A1, A2, OWN, PAR = D, D + 16, Q, Q + 16, Q + 24
    a(f"""
    M_BEND:
    v_cmp_gt_u32 vcc, 0x3f4, v{kk}
    s_mov_b32 s74, {f32(-1.0/LOG2E)}
    s_mov_b32 s75, {f32(-1.0/LOG2E)}
    """)
    srd(a, sOUT, 8, 3200000)
    a("s_waitcnt lgkmcnt(0)\n@estamp 2\ns_barrier\n@estamp 3")
    offs = (0, 16, 64, 80)
    for i in range(4):
        for buf, ca in ((A0, ca0), (A1, ca1), (A2, ca2)):
            a(f"ds_read_b128 {v(buf+4*i,4)}, v{ca} offset:{offs[i]}")
    for i in range(4):
        a(f"s_waitcnt lgkmcnt({9-3*i})")
        for j in range(2): a(f"v_pk_add_f32 {v(A0+4*i+2*j,2)}, {v(A0+4*i+2*j,2)}, {v(A1+4*i+2*j,2)}")
        for j in range(2): a(f"v_pk_add_f32 {v(A0+4*i+2*j,2)}, {v(A0+4*i+2*j,2)}, {v(A2+4*i+2*j,2)}")
    a(f"""
    s_cbranch_vccz M_SUMD
    s_movk_i32 s{sA}, 0x3f4
    M_SUML:
    s_mov_b64 exec, vcc
    """)
    for i in range(4):
        a(f"ds_read_b128 {v(A1+4*i,4)}, v{ca3} offset:{offs[i]}")
    a(f"s_sub_u32 s{sA}, s{sA}, 4\nv_add_u32 v{ca3}, 272, v{ca3}\ns_waitcnt lgkmcnt(0)")
    for i in range(8): a(f"v_pk_add_f32 {v(A0+2*i,2)}, {v(A0+2*i,2)}, {v(A1+2*i,2)}")
    a(f"""
    s_mov_b64 exec, -1
    v_cmp_gt_i32 vcc, s{sA}, v{kk}
    s_nop 4
    s_cbranch_vccnz M_SUML
    M_SUMD:
    s_cmp_le_u32 s{sNMAX}, s{sCAP}
    s_cbranch_scc1 M_EPI
    """)
    srd_off(a, sWF, 10, WS_SP, 2048 * 4096)
    a(f"""
    s_lshl_b32 s{sA}, s2, 3
    s_add_u32 s{sA}, s{sA}, s{sW}
    s_lshl_b32 s{sA}, s{sA}, 12
    s_cmp_eq_u32 s{sBASE}, 0
    s_cbranch_scc1 M_NOLD
    """)
    for i in range(4):
        a(f"buffer_load_dwordx4 {v(A1+4*i,4)}, v{l16e}, s[{sWF}:{sWF+3}], s{sA} offen offset:{1024*i} sc0 sc1")
    a("s_waitcnt vmcnt(0)")
    for i in range(8): a(f"v_pk_add_f32 {v(A0+2*i,2)}, {v(A0+2*i,2)}, {v(A1+2*i,2)}")
    a(f"""
    M_NOLD:
    s_add_u32 s{sBASE}, s{sBASE}, s{sCAP}
    s_cmp_ge_u32 s{sBASE}, s{sNMAX}
    s_cbranch_scc1 M_EPI
    """)
    for i in range(4):
        a(f"buffer_store_dwordx4 {v(A0+4*i,4)}, v{l16e}, s[{sWF}:{sWF+3}], s{sA} offen offset:{1024*i} sc0 sc1")
    a(f"""
    M_AGAIN:
    s_waitcnt vmcnt(0) lgkmcnt(0)
    s_barrier
    s_branch M_BATCH
    M_EPI:
    """)
    for i in range(8): a(f"v_pk_mul_f32 {v(A0+2*i,2)}, {v(A0+2*i,2)}, s[74:75]")
    for i in range(8): a(f"v_cvt_pk_bf16_f32 v{OWN+i}, v{A0+2*i}, v{A0+2*i+1}")
    a(f"""
    ds_write_b128 v{fa}, {v(OWN,4)} offset:{L_FE}
    ds_write_b128 v{fa}, {v(OWN+4,4)} offset:{L_FE+1024}
    v_xor_b32 v{fa}, 0x800, v{fa}
    v_mfma_f32_32x32x16_bf16 {v(U0,16)}, {v(WU,4)}, {v(OWN,4)}, {v(U0,16)}
    v_mfma_f32_32x32x16_bf16 {v(U0,16)}, {v(WU+4,4)}, {v(OWN+4,4)}, {v(U0,16)}
    s_lshl_b32 s{sA}, s{sSB}, 6
    s_add_u32 s{sA}, s{sA}, s{sS0}
    s_mov_b32 s74, {f32(-LOG2E)}
    s_mov_b32 s75, {f32(-LOG2E)}
    s_waitcnt lgkmcnt(0)
    s_barrier
    @estamp 4
    ds_read_b128 {v(PAR,4)}, v{fa} offset:{L_FE}
    ds_read_b128 {v(PAR+4,4)}, v{fa} offset:{L_FE+1024}
    s_waitcnt lgkmcnt(1)
    v_mfma_f32_32x32x16_bf16 {v(U0,16)}, {v(WU+8,4)}, {v(PAR,4)}, {v(U0,16)}
    s_waitcnt lgkmcnt(0)
    v_mfma_f32_32x32x16_bf16 {v(U0,16)}, {v(WU+12,4)}, {v(PAR+4,4)}, {v(U0,16)}
    s_nop 11
    """)
    for q in range(2):
        b = 8 * q
        for i in range(4): a(f"v_pk_mul_f32 {v(AG+b+2*i,2)}, {v(U0+b+2*i,2)}, s[74:75]")
        for i in range(8): a(f"v_exp_f32 v{AG+b+i}, v{AG+b+i}")
        for i in range(4): a(f"v_pk_add_f32 {v(AG+b+2*i,2)}, {v(AG+b+2*i,2)}, 1.0 op_sel_hi:[1,0]")
        for i in range(8): a(f"v_rcp_f32 v{AG+b+i}, v{AG+b+i}")
        for i in range(4): a(f"v_pk_mul_f32 {v(AG+b+2*i,2)}, {v(U0+b+2*i,2)}, {v(AG+b+2*i,2)}")
        for i in range(4): a(f"v_cvt_pk_bf16_f32 v{D+4*q+i}, v{AG+b+2*i}, v{AG+b+2*i+1}")
        a(f"buffer_store_dwordx4 {v(D+4*q,4)}, v{oa}, s[{sOUT}:{sOUT+3}], s{sA} offen offset:{16*q} {OPT['oflags']}")
    if OPT["stamp"]: a("@estamp 5\ns_waitcnt vmcnt(0)\n@stamp 6")
    stamp_out(8, f"s_lshl_b32 s74, s2, 3\ns_add_u32 s74, s74, s{sW}", 10, 0x80000)
    a("M_END:\ns_endpgm")
    return R.n

hdr = f"""; MPNN edge-MLP + segment-sum + node update, two launches:
; @launch kernel=sort_kernel grid=(253,1,1) block=(1024,1,1) lds={SORT_LDS}
; @launch kernel=main_kernel grid=(256,1,1) block=(512,1,1) lds={MAIN_LDS}
.amdgcn_target "amdgcn-amd-amdhsa--gfx950"
.text
.globl sort_kernel
.type sort_kernel,@function
.globl main_kernel
.type main_kernel,@function
"""
gen_sort()
nv = gen_main()
txt = hdr + a.text() + '.section .rodata,"a"\n.p2align 6\n' + kdesc("sort_kernel", 128) + ".p2align 6\n" + kdesc("main_kernel", 256, 100 if OPT["stamp"] else 96)
open(sys.argv[1], "w").write(txt)
print("main vgprs", nv, "lds", MAIN_LDS, SORT_LDS)
```

```python
import sys, struct
from asmlib import *

OPT = dict(abl="", stamp=False, eflags="", M0=1664, ns1=3, es='2,3,2,0,0', osl=4, barE=0, prio=0, ld="sc1")
for arg in sys.argv[2:]:
    k, val = arg.split("=")
    OPT[k] = {"True": True, "False": False}.get(val, val.replace("+", " "))
M0 = int(OPT["M0"])
assert M0 % 32 == 0 and M0 <= 1792 and 3200 - M0 <= 2048
LD = OPT["ld"]
KN = "standalone__mpnn_edge_mlp__graph_kernel"

NCH, CH = 250, 3200
WS_REC, WS_O, WS_F2, WS_ST, WS_P, WS_SP, WS_EM = 0, 0x400000, 0x600000, 0x700000, 0x800000, 0x1000000, 0x2000000
LOG2E = 1.4426950408889634
def f32(x): return "0x%08x" % struct.unpack("<I", struct.pack("<f", x))[0]

a = Asm()
MODE = OPT["stamp"]
def stamp(mode, i):
    if MODE == mode or (MODE and mode == "all"):
        a(f"s_memrealtime s[{76+2*i}:{77+2*i}]\ns_waitcnt lgkmcnt(0)")
def emit(l): a("\n".join(l))

def resolve(stream):
    out = []; vm = []; lg = []
    for it in stream:
        if isinstance(it, tuple) and it[0] == "@W":
            parts = []
            if it[1] is not None:
                idx = max(i for i, t in enumerate(vm) if t == it[1]); n = len(vm) - 1 - idx
                assert n <= 63; parts.append(f"vmcnt({n})")
            if it[2] is not None:
                idx = max(i for i, t in enumerate(lg) if t == it[2]); n = len(lg) - 1 - idx
                parts.append(f"lgkmcnt({min(n, 15)})")
            out.append("s_waitcnt " + " ".join(parts)); continue
        txt, tag = it if isinstance(it, tuple) else (it, None)
        if txt.startswith("buffer_"): vm.append(tag)
        if txt.startswith("ds_"): lg.append(tag)
        out.append(txt)
    return out

LMAX = 17
L_TB = 0
L_CNT = 1024
L_NT = L_CNT + 128
L_MX = L_NT + 16
L_BAS = L_MX + 16
L_F2C = 1408
L_ZR = 1536
L_LS = 2048
LSZ = LMAX * 1024
L_LE = L_LS + LSZ
L_ST = L_LE + LSZ
SCAP = 224
L_XR = L_ST + 8 * SCAP * 32
XRS = 8704
MAIN_LDS = L_XR + 8 * XRS
assert MAIN_LDS <= 163840 and L_XR % 4096 == 0
L_C8 = L_XR
C8O = 4096
L_GL = L_XR + 8192
GLS = 2176
S_CNT = L_XR
S_TOT = L_XR + 2048
S_TAG = L_XR + 2112
S_SRT = L_XR + 4096
S_W = L_XR + 17408
S_X = S_W + 34816
assert S_W + 8192 >= L_GL + 8 * GLS and S_SRT + CH * 4 <= S_W and S_X + 16384 <= MAIN_LDS and S_X % 256 == 0
S_PO = L_LS
L_FE = L_LS
DUMMY = 0xC0000000
DFLAG = 1 << 24
SPIN = 200000

def gen():
    R = Regs("v", 1, 256)
    vLS = R.alloc("vLS"); vLE = R.alloc("vLE")
    vCr = R.alloc("vCr", 5)
    RP = R.alloc("RP", 8, 2)
    XA = R.alloc("XA", 4); CX = R.alloc("CX", 4)
    S4 = R.alloc("S4", 4, 4); T = R.alloc("T", 8, 4)
    FX = R.alloc("FX", 16, 4); E = R.alloc("E", 16, 4)
    D = R.alloc("D", 32, 4); Q = R.alloc("Q", 32, 4); AG = R.alloc("AG", 32, 4); W = R.alloc("W", 16, 4)
    U0 = R.alloc("U0", 16, 4); WU = R.alloc("WU", 16, 4); EP = R.alloc("EP", 16, 4)
    SG = R.alloc("SG", 8, 4)
    sa = R.alloc("sa"); lane = R.alloc("lane"); l16 = R.alloc("l16"); m = R.alloc("m"); h = R.alloc("h")
    sac = R.alloc("sac"); lh = R.alloc("lh"); hz = R.alloc("hz"); aN = R.alloc("aN"); one = R.alloc("one"); nta = R.alloc("nta")
    h16 = RP + 1
    def Idf(j): return v(W + 4 * j, 4)
    def W3f(nh): return v(W + 8 + nh * 4, 4)
    def Es(t): return v(E + 4 * (t % 4), 4)
    sX, sE, sREC, sEM, sWS, sP = 16, 20, 24, 28, 32, 36
    sW, sSB, sS0, sSO, sN, sBASE, sCNT, sT, sXRB, sA, sB, sCAP = 40, 41, 42, 43, 44, 45, 46, 47, 48, 49, 50, 51
    sNB, sGL, sNMAX, sG, sL, sM7, sB30, sDF, sNS = 70, 71, 72, 73, 12, 13, 14, 15, 3
    sSTB, sOA, sTAG = 99, 93, 100
    t0, t1, t2, t3, t4, t5, t6, t7 = [T + i for i in range(8)]
    def mk(i): return f"s[{54+2*i}:{55+2*i}]"
    ORD = list(range(7, -1, -1))
    def skip(lab):
        a(f"s_cmp_le_u32 s{sCNT}, 384\ns_cbranch_scc1 {lab}6\ns_cmp_le_u32 s{sCNT}, 448\ns_cbranch_scc1 {lab}7")
    def after(lab, i):
        if i >= 6: a(f"{lab}{i}:")
    ne = 0 if "noe" in OPT["abl"] else 1
    steps = [f"row_shr:{sh} row_mask:0xf bank_mask:0xf bound_ctrl:0" for sh in (1, 2, 4, 8)] + ["row_bcast:15 row_mask:0xa bank_mask:0xf", "row_bcast:31 row_mask:0xc bank_mask:0xf"]

    DS_, SR_, CAD, RNK, REC_ = D, D + 8, D + 16, D + 24, Q
    oA, oB, t16, t4_, inc, shf, idxA, idxB, rA, rB, cntv, stv, nz = [Q + 8 + i for i in range(13)]
    nz = Q + 22
    a(f".p2align 8\n{KN}:")
    a(f"""
    s_cmp_ge_u32 s2, 256
    s_cbranch_scc1 M_END
    s_load_dwordx4 s[56:59], s[0:1], 16
    s_load_dwordx4 s[4:7], s[0:1], 0
    s_load_dwordx4 s[60:63], s[0:1], 32
    s_load_dwordx4 s[8:11], s[0:1], 48
    s_load_dwordx2 s[64:65], s[0:1], 64
    s_memrealtime s[66:67]
    """)
    stamp("all", 0)
    a(f"""
    v_lshrrev_b32 v{t0}, 6, v0
    v_lshlrev_b32 v{t16}, 4, v0
    v_readfirstlane_b32 s{sW}, v{t0}
    s_mul_i32 s{sA}, s2, 12800
    v_add_u32 v{oA}, s{sA}, v{t16}
    v_add_u32 v{oB}, 8192, v{oA}
    v_cmp_gt_u32 vcc, 288, v0
    v_mov_b32 v{hz}, 0x80000000
    v_lshlrev_b32 v{t4_}, 2, v0
    v_cndmask_b32 v{oB}, v{hz}, v{oB}, vcc
    s_mov_b64 s[54:55], vcc
    s_mov_b32 s{sE+2}, 3200000
    s_mov_b32 s{sE+3}, 0x20000
    s_mov_b32 s{sEM+2}, 3200000
    s_mov_b32 s{sEM+3}, 0x20000
    v_mov_b32 v{nta}, 0
    v_add_u32 v{t1}, {S_CNT}, v{t4_}
    ds_write_b32 v{t1}, v{nta}
    ds_write_b32 v{t4_}, v{nta}
    s_waitcnt lgkmcnt(0)
    s_mov_b32 s{sE}, s58
    s_mov_b32 s{sE+1}, s59
    s_mov_b32 s{sEM}, s56
    s_mov_b32 s{sEM+1}, s57
    buffer_load_dwordx4 {v(DS_,4)}, v{oA}, s[{sE}:{sE+3}], 0 offen
    buffer_load_dwordx4 {v(DS_+4,4)}, v{oB}, s[{sE}:{sE+3}], 0 offen
    buffer_load_dwordx4 {v(SR_,4)}, v{oA}, s[{sEM}:{sEM+3}], 0 offen
    buffer_load_dwordx4 {v(SR_+4,4)}, v{oB}, s[{sEM}:{sEM+3}], 0 offen
    """)
    srd(a, sP, 10, 256)
    a(f"""
    s_xor_b32 s{sA}, s{sW}, 7
    s_or_b32 s{sA}, s{sA}, s2
    s_cmp_lg_u32 s{sA}, 0
    s_cbranch_scc1 S_NOTAG
    s_or_b32 s{sA}, s66, 1
    v_mov_b32 v{nz}, s{sA}
    v_mov_b32 v{nz+1}, s67
    s_mov_b64 exec, 1
    buffer_store_dwordx2 {v(nz,2)}, v{nta}, s[{sP}:{sP+3}], 0 offen sc1
    s_mov_b64 exec, -1
    s_waitcnt vmcnt(0)
    S_NOTAG:
    s_mov_b32 s10, s64
    s_mov_b32 s11, s65
    s_and_b32 s74, s2, 7
    s_lshl_b32 s74, s74, 5
    s_lshr_b32 s{sA}, s2, 3
    s_add_u32 s74, s74, s{sA}
    s_and_b32 s{sSB}, s{sW}, 1
    s_lshl_b32 s{sA}, s74, 17
    s_add_u32 s{sA}, s{sA}, 1341
    s_mul_hi_u32 s{sS0}, s{sA}, 3200423
    s_add_u32 s{sA}, s{sA}, 65536
    s_mul_hi_u32 s{sSO}, s{sA}, 3200423
    s_add_u32 s{sA}, s{sA}, 65536
    s_mul_hi_u32 s{sNB}, s{sA}, 3200423
    s_min_u32 s{sNB}, s{sNB}, 25000
    s_sub_u32 s{sNB}, s{sNB}, s{sS0}
    s_sub_u32 s{sSO}, s{sSO}, s{sS0}
    s_mul_i32 s{sSO}, s{sSO}, s{sSB}
    s_lshl_b32 s{sS0}, s{sS0}, 7
    s_lshl_b32 s{sOA}, s74, 5
    s_lshl_b32 s{sA}, s{sSB}, 4
    s_add_u32 s{sOA}, s{sOA}, s{sA}
    s_lshr_b32 s{sA}, s{sW}, 1
    s_lshl_b32 s{sA}, s{sA}, 19
    s_add_u32 s{sOA}, s{sOA}, s{sA}
    s_add_u32 s{sOA}, s{sOA}, {WS_O}
    s_cmp_lt_u32 s2, {NCH}
    s_cselect_b64 s[52:53], -1, 0
    s_and_b64 s[54:55], s[54:55], s[52:53]
    v_and_b32 v{lane}, 63, v0
    v_lshlrev_b32 v{l16}, 4, v{lane}
    v_cmp_le_u32 vcc, {M0//4}, v0
    v_mov_b32 v{inc}, 0x10000
    v_subrev_u32 v{idxA}, {M0}, v{t4_}
    v_cndmask_b32 v{inc}, 1, v{inc}, vcc
    v_cndmask_b32 v{shf}, 0, 16, vcc
    v_cndmask_b32 v{idxA}, v{t4_}, v{idxA}, vcc
    v_lshlrev_b32 v{idxA}, 21, v{idxA}
    v_add_u32 v{idxB}, {2048-M0}, v{t4_}
    v_lshlrev_b32 v{idxB}, 21, v{idxB}
    v_mov_b32 v{rA}, {(2048-M0)*4}
    v_cndmask_b32 v{rA}, 0, v{rA}, vcc
    v_add_u32 v{rA}, v{rA}, v{t16}
    v_add_u32 v{rB}, {8192 + (2048-M0)*4}, v{t16}
    v_cndmask_b32 v{rB}, v{hz}, v{rB}, s[54:55]
    v_mov_b32 v{one}, 0x10000
    s_barrier
    """)
    srd(a, sX, 4, 3200000)
    srd(a, sREC, 6, 25600000)
    srd(a, sWS, 60, 18432)
    npiece = M0 // 32
    nr = (npiece + 7) // 8
    ES = [int(x) for x in OPT["es"].split(",")]
    assert sum(ES) == nr
    EC = [sum(ES[:i]) for i in range(6)]
    def edma(slot):
        for r in range(EC[slot], EC[slot+1]):
            if (r + 1) * 8 > npiece:
                a(f"s_min_u32 s{sT}, s{sT}, {(npiece - 8*r - 1)*1024}")
            a(f"s_add_u32 m0, s{sT}, {L_ST + r*8192}\ns_add_u32 s{sA}, s{sT}, {r*8192}\ns_add_u32 s{sA}, s{sA}, s{sL}\nbuffer_load_dwordx4 v{l16}, s[{sREC}:{sREC+3}], s{sA} offen lds")
    a(f"""
    s_mul_i32 s{sL}, s2, {CH*32}
    s_lshl_b32 s{sT}, s{sW}, 10
    s_add_u32 m0, s{sT}, {S_W}
    v_lshrrev_b32 v{t0}, 4, v{lane}
    buffer_load_dwordx4 v{l16}, s[{sWS}:{sWS+3}], s{sT} offen lds
    v_xor_b32 v{t0}, v{t0}, v{lane}
    v_and_b32 v{t0}, 7, v{t0}
    v_and_b32 v{t1}, 0x380, v{l16}
    v_lshl_or_b32 v{t0}, v{t0}, 4, v{t1}
    v_xor_b32 v{t1}, 64, v{t0}
    s_lshl_b32 s{sA}, s{sW}, 11
    s_add_u32 m0, s{sA}, {S_X}
    s_add_u32 s{sB}, s{sA}, s{sS0}
    buffer_load_dwordx4 v{t0}, s[{sX}:{sX+3}], s{sB} offen lds
    buffer_load_dwordx4 v{t1}, s[{sX}:{sX+3}], s{sB} offen offset:1024 lds
    """)
    edma(0)
    a(f"""
    s_mov_b32 s{sB}, {S_CNT}
    v_add_u32 v{t7}, {S_CNT}, v{t4_}
    s_lshl_b32 s{sA}, s{sW}, 2
    s_add_u32 s{sA}, s{sA}, {S_TOT}
    v_mov_b32 v{t3}, s{sA}
    v_and_b32 v{t4}, 7, v0
    v_lshlrev_b32 v{t4}, 2, v{t4}
    v_add_u32 v{t4}, {S_TOT}, v{t4}
    v_and_b32 v{m}, 31, v{lane}
    v_lshrrev_b32 v{h}, 5, v{lane}
    v_bfe_u32 v{t1}, v{lane}, 2, 2
    v_lshl_add_u32 v{t1}, v{h}, 3, v{t1}
    v_lshlrev_b32 v{t1}, 7, v{t1}
    v_add_u32 v{t1}, {S_W}, v{t1}
    v_and_b32 v{t2}, 3, v{lane}
    v_lshl_add_u32 v{aN}, v{t2}, 3, v{t1}
    v_and_b32 v{t2}, 16, v{lane}
    v_lshl_add_u32 v{aN}, v{t2}, 1, v{aN}
    v_add_u32 v{t1}, v{t1}, v{t2}
    v_and_b32 v{t2}, 1, v{lane}
    v_lshl_add_u32 v{t1}, v{t2}, 5, v{t1}
    v_and_b32 v{t2}, 2, v{lane}
    v_lshl_add_u32 v{t1}, v{t2}, 2, v{t1}
    s_lshl_b32 s{sA}, s{sSB}, 6
    v_add_u32 v{sa}, s{sA}, v{t1}
    v_bfe_u32 v{sac}, v{m}, 1, 3
    v_xor_b32 v{sac}, v{sac}, v{h}
    v_lshlrev_b32 v{sac}, 4, v{sac}
    v_lshl_or_b32 v{sac}, v{m}, 7, v{sac}
    s_lshr_b32 s{sN}, s{sW}, 1
    s_lshl_b32 s{sN}, s{sN}, 12
    v_add_u32 v{sac}, s{sN}, v{sac}
    v_add_u32 v{sac}, {S_X}, v{sac}
    s_lshr_b32 s{sN}, s{sW}, 1
    s_mul_i32 s{sN}, s{sN}, {32*144}
    s_add_u32 s{sA}, s{sA}, s{sN}
    v_mul_u32_u24 v{lh}, 144, v{m}
    v_lshl_add_u32 v{lh}, v{h}, 5, v{lh}
    v_add_u32 v{lh}, s{sA}, v{lh}
    s_mov_b32 s74, {f32(-LOG2E)}
    s_mov_b32 s75, {f32(-LOG2E)}
    s_waitcnt vmcnt({EC[1]+5})
    """)
    stamp("srt", 1)
    for i in range(8):
        a(f"""
        v_mul_u32_u24 v{DS_+i}, 1342, v{DS_+i}
        v_lshrrev_b32 v{CAD+i}, 16, v{DS_+i}
        v_lshl_add_u32 v{CAD+i}, v{CAD+i}, 2, s{sB}
        """)
        if i % 4 == 3:
            a(f"s_mov_b64 exec, {'s[52:53]' if i == 3 else 's[54:55]'}")
            for j in range(i - 3, i + 1): a(f"ds_add_rtn_u32 v{RNK+j}, v{CAD+j}, v{inc if i == 3 else one}")
            a("s_mov_b64 exec, -1")
    edma(1)
    def recs(rng):
        o = []
        for i in rng:
            o += [f"v_and_b32 v{REC_+i}, 0xffff, v{DS_+i}", f"v_mul_u32_u24 v{REC_+i}, 6251, v{REC_+i}", f"v_lshrrev_b32 v{REC_+i}, 23, v{REC_+i}",
                  f"v_lshl_or_b32 v{REC_+i}, v{SR_+i}, 6, v{REC_+i}", f"v_add_u32 v{t2}, {(i%4)<<21}, v{idxA if i < 4 else idxB}", f"v_or_b32 v{REC_+i}, v{REC_+i}, v{t2}"]
        return o
    XF, W1t, Wx, PD = FX, AG, EP, E
    def tr(dst, areg, off):
        a(f"ds_read_b64_tr_b16 {v(dst,2)}, v{areg} offset:{off}\nds_read_b64_tr_b16 {v(dst+2,2)}, v{areg} offset:{off+512}")
    def w2read():
        for sx in range(4):
            for nh in range(2): tr(AG + (2*sx + nh)*4, aN, 8192 + 2048*sx + 64*nh)
    a(f"s_waitcnt vmcnt({EC[2]}) lgkmcnt(0)\ns_barrier")
    stamp("srt", 2)
    a(f"ds_read_b32 v{cntv}, v{t7}")
    for sx in range(4):
        a(f"ds_read_b128 {v(XF+4*sx,4)}, v{sac}" + (f"\nv_xor_b32 v{sac}, {(32, 96, 32)[sx]}, v{sac}" if sx < 3 else ""))
        tr(W1t + 4*sx, sa, 2048*sx)
    a(f"s_waitcnt lgkmcnt(12)\nv_mov_b32 v{stv}, v{cntv}")
    rr = recs(range(2, 4))
    for n, stp in enumerate(steps): a(f"{rr[2*n]}\n{rr[2*n+1]}\nv_add_u32_dpp v{stv}, v{stv}, v{stv} {stp}")
    a(f"""
    s_mov_b32 exec_lo, 0
    s_mov_b32 exec_hi, 0x80000000
    ds_write_b32 v{t3}, v{stv}
    s_mov_b64 exec, -1
    """)
    edma(2)
    a("s_waitcnt lgkmcnt(0)")
    for sx in range(4):
        a(f"v_mfma_f32_32x32x16_bf16 {v(PD,16)}, {v(W1t+4*sx,4)}, {v(XF+4*sx,4)}, {'0' if sx == 0 else v(PD,16)}")
    a(f"""
    s_barrier
    ds_read_b32 v{t5}, v{t4}
    """)
    emit(recs(range(4, 6)))
    a(f"s_waitcnt lgkmcnt(0)\nv_mov_b32 v{t6}, v{t5}")
    rr = recs(range(6, 7))
    for n, sh in enumerate((1, 2, 4)):
        a(f"{rr[2*n]}\n{rr[2*n+1]}\nv_add_u32_dpp v{t6}, v{t6}, v{t6} row_shr:{sh} row_mask:0xf bank_mask:0xf bound_ctrl:0")
    a(f"""
    v_sub_u32 v{t6}, v{t6}, v{t5}
    v_sub_u32 v{stv}, v{stv}, v{cntv}
    v_readlane_b32 s{sA}, v{t6}, s{sW}
    s_mov_b32 s{sB}, {S_SRT}
    s_nop 0
    s_add_u32 s{sA}, s{sA}, {M0<<16}
    v_add_u32 v{stv}, s{sA}, v{stv}
    ds_write_b32 v{t7}, v{stv}
    """)
    for i in range(8): a(f"v_pk_mul_f32 {v(PD+2*i,2)}, {v(PD+2*i,2)}, s[74:75]")
    for i in range(8): a(f"v_cvt_pk_bf16_f32 v{PD+i}, v{PD+2*i}, v{PD+2*i+1}")
    a(f"""
    ds_write_b128 v{lh}, {v(PD,4)} offset:{S_PO}
    ds_write_b128 v{lh}, {v(PD+4,4)} offset:{S_PO+16}
    """)
    edma(3)
    a(f"""
    v_lshrrev_b32 v{t3}, 3, v0
    v_lshl_add_u32 v{t3}, v{t3}, 4, v{t16}
    s_waitcnt lgkmcnt(0)
    s_barrier
    """)
    stamp("srt", 3)
    PO = AG
    for i in range(8): a(f"ds_read_b32 v{E+8+i}, v{CAD+i}")
    a(f"ds_read_b128 {v(PO,4)}, v{t3} offset:{S_PO}\nds_read_b128 {v(PO+4,4)}, v{t3} offset:{S_PO+64*144}")
    emit(recs((0, 1, 7)))
    for i in range(8):
        if i % 4 == 0: a(f"s_mov_b64 exec, {'s[52:53]' if i == 0 else 's[54:55]'}")
        a(f"""
        s_waitcnt lgkmcnt(9)
        v_add_u32 v{DS_+i}, v{E+8+i}, v{RNK+i}
        {f"v_bfe_u32 v{DS_+i}, v{DS_+i}, v{shf}, 16" if i < 4 else f"v_lshrrev_b32 v{DS_+i}, 16, v{DS_+i}"}
        v_lshl_add_u32 v{DS_+i}, v{DS_+i}, 2, s{sB}
        ds_write_b32 v{DS_+i}, v{REC_+i}
        """)
    a("s_mov_b64 exec, -1")
    edma(4)
    OTG = S4
    no = (M0 + 255) // 256
    srd(a, sE, 10, 0x800000 + 3200000)
    srd(a, sEM, 62, 16384)
    a(f"""
    v_mov_b32 v{t4}, v{t16}
    s_lshl_b32 s{sA}, s{sNB}, 7
    v_add_u32 v{t5}, 8192, v{t4}
    v_cmp_gt_u32 vcc, s{sA}, v{t5}
    s_add_u32 s{sB}, s{sS0}, {WS_P}
    v_add_u32 v{t0}, {S_SRT}, v{t16}
    v_cndmask_b32 v{t5}, v{hz}, v{t5}, vcc
    s_waitcnt lgkmcnt(8)
    buffer_store_dwordx4 {v(PO,4)}, v{t4}, s[{sE}:{sE+3}], s{sB} offen sc1
    buffer_store_dwordx4 {v(PO+4,4)}, v{t5}, s[{sE}:{sE+3}], s{sB} offen sc1
    s_lshl_b32 s{sA}, s{sW}, 10
    s_add_u32 s{sA}, s{sA}, 8192
    s_add_u32 m0, s{sA}, {S_W}
    s_lshl_b32 s{sB}, s{sSB}, 10
    buffer_load_dwordx4 v{l16}, s[{sWS}:{sWS+3}], s{sA} offen lds
    s_add_u32 s{sB}, s{sB}, 16384
    s_add_u32 m0, s{sB}, {S_W}
    s_lshl_b32 s{sA}, s{sW}, 11
    buffer_load_dwordx4 v{l16}, s[{sWS}:{sWS+3}], s{sB} offen lds
    s_add_u32 m0, s{sA}, {S_W + 18432}
    s_movk_i32 s{sB}, {(M0 - 256*(no-1))*2}
    buffer_load_dwordx4 v{l16}, s[{sEM}:{sEM+3}], s{sA} offen lds
    buffer_load_dwordx4 v{l16}, s[{sEM}:{sEM+3}], s{sA} offen offset:1024 lds
    buffer_load_dwordx2 {v(OTG+2,2)}, v{nta}, s[{sP}:{sP+3}], 0 offen sc1
    v_cmp_gt_u32 vcc, s{sB}, v0
    v_lshrrev_b32 v{t1}, 1, v0
    v_lshlrev_b32 v{t1}, 2, v{t1}
    v_add_u32 v{t1}, {S_SRT}, v{t1}
    v_and_b32 v{t2}, 1, v0
    v_lshlrev_b32 v{t2}, 4, v{t2}
    v_add_u32 v{OTG}, {(2048-M0)<<16}, v{stv}
    v_mov_b32 v{OTG+1}, v{cntv}
    v_cndmask_b32 v{t6}, v{hz}, v{t4}, vcc
    """)
    srd(a, sWS, 10, 0x800000)
    srd_off(a, sEM, 10, WS_EM, 256 * 131072)
    a(f"""
    s_lshl_b32 s{sA}, s2, 14
    s_waitcnt vmcnt(7) lgkmcnt(0)
    s_barrier
    """)
    stamp("srt", 4)
    EO = D
    for r in range(no): a(f"ds_read_b32 v{SG+r}, v{t1} offset:{1024*r}")
    a(f"ds_read_b128 {v(E,4)}, v{t0}\nds_read_b128 {v(E+4,4)}, v{t0} offset:8192")
    for r in range(no):
        a(f"s_waitcnt lgkmcnt({no+1})\nv_lshrrev_b32 v{SG+r}, 21, v{SG+r}\nv_lshl_add_u32 v{SG+r}, v{SG+r}, 5, v{t2}\nds_read_b128 {v(EO+4*r,4)}, v{SG+r} offset:{L_ST}")
    a(f"""
    s_waitcnt lgkmcnt({no})
    buffer_store_dwordx4 {v(E,4)}, v{rA}, s[{sE}:{sE+3}], s{sA} offen sc1
    buffer_store_dwordx4 {v(E+4,4)}, v{rB}, s[{sE}:{sE+3}], s{sA} offen sc1
    s_lshl_b32 s{sA}, s2, 17
    """)
    for r in range(no):
        a(f"s_waitcnt lgkmcnt({no-1-r})\nbuffer_store_dwordx4 {v(EO+4*r,4)}, v{t6 if r == no-1 else t4}, s[{sEM}:{sEM+3}], s{sA} offen sc1\ns_add_u32 s{sA}, s{sA}, 8192")
    stamp("srt", 5)
    a(f"""
    v_lshlrev_b32 v{t0}, 3, v{h}
    v_sub_u32 v{t0}, v{m}, v{t0}
    v_and_b32 v{t1}, 1, v{t0}
    v_lshlrev_b32 v{t1}, 4, v{t1}
    v_mov_b32 v{t2}, 0x3f80
    v_lshlrev_b32 v{t1}, v{t1}, v{t2}
    v_lshrrev_b32 v{t0}, 1, v{t0}
    """)
    for j in range(2):
        for i in range(4):
            a(f"v_cmp_eq_u32 vcc, {8*j+i}, v{t0}\ns_nop 1\nv_cndmask_b32 v{W+4*j+i}, 0, v{t1}, vcc")
    a(f"""
    s_mov_b32 s{sCAP}, 512
    s_mov_b32 s{sBASE}, 0
    s_mul_i32 s{sGL}, s{sW}, {GLS}
    s_add_u32 s{sGL}, s{sGL}, {L_GL}
    s_mul_i32 s{sSTB}, s{sW}, {SCAP*32}
    s_add_u32 s{sSTB}, s{sSTB}, {L_ST}
    s_mov_b32 s{sREC}, s10
    s_or_b32 s{sREC+1}, s11, {4<<16}
    s_mov_b32 s{sREC+2}, {0x400000//4}
    s_mov_b32 s{sREC+3}, 0x20000
    s_sub_u32 s{sE}, s6, {DFLAG*32}
    s_subb_u32 s{sE+1}, s7, 0
    s_or_b32 s{sE+1}, s{sE+1}, {32<<16}
    s_mov_b32 s{sE+2}, {(DFLAG + 800000) * ne}
    s_mov_b32 s{sE+3}, 0x20000
    s_sub_u32 s{sG}, 11, s{sW}
    s_cmp_lt_u32 s{sW}, 4
    s_cselect_b32 s{sG}, s{sW}, s{sG}
    s_mul_i32 s{sXRB}, s{sG}, {XRS}
    s_add_u32 s{sXRB}, s{sXRB}, {L_XR}
    s_mov_b32 s{sM7}, 0xffffff80
    s_mov_b32 s{sB30}, 0x40000000
    s_mov_b32 s{sDF}, {DFLAG}
    v_lshlrev_b32 v{RP+1}, 4, v{h}
    v_lshlrev_b32 v{RP+3}, 4, v{h}
    v_lshlrev_b32 v{RP+5}, 4, v{h}
    v_lshlrev_b32 v{RP+7}, 4, v{h}
    v_lshrrev_b32 v{t0}, 3, v{lane}
    s_lshl_b32 s{sA}, s{sG}, 7
    v_lshl_add_u32 v{vLS}, v{t0}, 4, s{sA}
    v_lshl_add_u32 v{vLE}, v{m}, 2, s{sA}
    v_and_b32 v{t3}, 1, v{t0}
    v_lshlrev_b32 v{t3}, 4, v{t3}
    v_lshl_add_u32 v{sac}, v{lane}, 5, v{t3}
    v_add_u32 v{sac}, s{sSTB}, v{sac}
    v_and_b32 v{t1}, 4, v{t0}
    v_and_b32 v{t2}, 7, v{lane}
    v_xor_b32 v{t1}, v{t1}, v{t2}
    v_lshlrev_b32 v{CX}, 4, v{t1}
    v_xor_b32 v{CX+1}, 16, v{CX}
    v_xor_b32 v{CX+2}, 32, v{CX}
    v_xor_b32 v{CX+3}, 48, v{CX}
    v_and_b32 v{t0}, 3, v{m}
    v_lshrrev_b32 v{t1}, 2, v{m}
    v_lshl_add_u32 v{t1}, v{t0}, 3, v{t1}
    v_lshlrev_b32 v{t1}, 7, v{t1}
    v_add_u32 v{t1}, s{sXRB}, v{t1}
    v_lshrrev_b32 v{t2}, 4, v{m}
    v_lshl_or_b32 v{t0}, v{t2}, 2, v{t0}
    v_xor_b32 v{t0}, v{t0}, v{h}
    v_lshl_add_u32 v{XA}, v{t0}, 4, v{t1}
    v_xor_b32 v{XA+1}, 32, v{XA}
    v_xor_b32 v{XA+2}, 64, v{XA}
    v_xor_b32 v{XA+3}, 0x60, v{XA}
    v_mov_b32 v{one}, 1
    v_lshrrev_b32 v{lh}, 1, v{lane}
    """)
    a(f"""
    s_lshl_b32 s{sA}, s2, 13
    s_add_u32 s{sA}, s{sA}, {WS_O}
    s_mov_b32 s{sB}, 0
    s_branch S_TAGW
    S_TAGL:
    buffer_load_dwordx2 {v(OTG+2,2)}, v{nta}, s[{sP}:{sP+3}], 0 offen sc1
    s_add_u32 s{sB}, s{sB}, 1
    s_cmp_gt_u32 s{sB}, {SPIN}
    s_cbranch_scc1 M_END
    S_TAGW:
    s_waitcnt vmcnt(0)
    v_readfirstlane_b32 s{sTAG}, v{OTG+2}
    v_readfirstlane_b32 s{sTAG+1}, v{OTG+3}
    s_nop 0
    s_cmp_eq_u32 s{sTAG}, 0
    s_cbranch_scc1 S_TAGL
    v_mov_b32 v{OTG+2}, s{sTAG}
    v_mov_b32 v{OTG+3}, s{sTAG+1}
    s_barrier
    buffer_store_dwordx4 {v(OTG,4)}, v{t4}, s[{sWS}:{sWS+3}], s{sA} offen sc1
    """)
    stamp("top", 1)
    srd_off(a, sP, 10, WS_P, 3200000)
    stamp("srt", 6)
    a(f"s_lshl_b32 s{sB}, s{sSB}, 12\nv_add_u32 v{t2}, s{sB}, v{sa}\nv_subrev_u32 v{t3}, s{sB}, v{sa}")
    for nh in range(2): tr(D + 8 + 4*nh, aN, 128*128 + 64*nh)
    for sx in range(4): tr(Wx + 4*sx, sa, 18432 + 2048*sx)
    a("s_waitcnt lgkmcnt(0)")
    for sx in range(4):
        a(f"v_mfma_f32_32x32x16_bf16 {v(U0,16)}, {v(Wx+4*sx,4)}, {v(XF+4*sx,4)}, {'0' if sx == 0 else v(U0,16)}")
    tr(WU, t2, 18432 + 8192); tr(WU + 4, t2, 18432 + 10240); tr(WU + 8, t3, 18432 + 12288); tr(WU + 12, t3, 18432 + 14336)
    w2read()
    for nh in range(2):
        for i in range(4):
            r = D + 8 + 4*nh + i
            a(f"v_lshlrev_b32 v{t0}, 16, v{r}\nv_and_b32 v{t1}, 0xffff0000, v{r}\nv_pk_mul_f32 {v(t0,2)}, {v(t0,2)}, s[74:75]\nv_cvt_pk_bf16_f32 v{W+8+4*nh+i}, v{t0}, v{t1}")
    OG = E
    kk12, c0, c1, g0, g1, p0, p1, tt, qa, fl0, f2r = [E + 4 + i for i in range(11)]
    fl0 = E + 14; f2r = E + 13
    G, RC, NA, RK = D, D + 8, D + 16, D + 24
    TBv = FX
    OFv, CA = EP, EP + 8
    a(f"""
    M_BATCH:
    v_lshlrev_b32 v{tt}, 13, v{lane}
    v_lshlrev_b32 v{t0}, 3, v0
    v_add_u32 v{t0}, {L_C8}, v{t0}
    v_mov_b32 v{t2}, 0
    v_mov_b32 v{t3}, 0
    ds_write_b64 v{t0}, {v(t2,2)}
    """)
    for i in range(4): a(f"v_mov_b32 v{t4+i}, {DUMMY}")
    a(f"v_lshlrev_b32 v{t0}, 4, v0\nv_lshlrev_b32 v{t1}, 2, v0")
    assert 2 * LSZ == 4 * 8192 + 2048
    for i in range(4): a(f"ds_write_b128 v{t0}, {v(t4,4)} offset:{L_LS+8192*i}")
    a(f"""
    ds_write_b32 v{t1}, v{t4} offset:{L_LS+8192*4}
    s_lshr_b32 s{sA}, s{sW}, 1
    s_lshl_b32 s{sA}, s{sA}, 6
    v_add_lshl_u32 v{kk12}, v{lane}, s{sA}, 12
    v_lshl_add_u32 v{qa}, v{lane}, 2, s{sGL}
    v_mov_b32 v{t1}, 0xffff
    s_mov_b32 s{sA}, 0
    s_setprio 2
    s_branch M_POLL1
    M_POLL:
    s_sleep {OPT["osl"]}
    M_POLL1:
    buffer_load_dwordx4 {v(OG,4)}, v{tt}, s[{sWS}:{sWS+3}], s{sOA} offen sc1
    s_add_u32 s{sA}, s{sA}, 1
    s_cmp_gt_u32 s{sA}, {SPIN}
    s_cbranch_scc1 M_END
    s_waitcnt vmcnt(0)
    v_cmpx_ne_u64 vcc, s[{sTAG}:{sTAG+1}], {v(OG+2,2)}
    s_cbranch_execnz M_POLL
    s_mov_b64 exec, -1
    """)
    stamp("top", 2); stamp("pro", 1)
    a(f"v_and_b32 v{p0}, v{t1}, v{OG+1}\nv_lshrrev_b32 v{p1}, 16, v{OG+1}")
    fl = [f"v_and_or_b32 v{g0}, v{OG}, v{t1}, v{kk12}", f"v_lshrrev_b32 v{g1}, 16, v{OG}", f"v_or_b32 v{g1}, v{g1}, v{kk12}",
          f"v_and_b32 v{c0}, v{t1}, v{OG+1}", f"v_lshrrev_b32 v{c1}, 16, v{OG+1}", "s_nop 0"]
    for n, stp in enumerate(steps):
        a(f"{fl[n]}\nv_add_u32_dpp v{p0}, v{p0}, v{p0} {stp}\nv_add_u32_dpp v{p1}, v{p1}, v{p1} {stp}")
    a(f"""
    v_readlane_b32 s{sNS}, v{p0}, 63
    v_readlane_b32 s{sN}, v{p1}, 63
    v_sub_u32 v{p0}, v{p0}, v{c0}
    v_sub_u32 v{p1}, v{p1}, v{c1}
    s_add_u32 s{sN}, s{sN}, s{sNS}
    v_add_u32 v{p1}, s{sNS}, v{p1}
    s_mov_b32 s{sCNT}, s{sN}
    s_add_u32 s{sA}, s{sN}, s{sBASE}
    s_cmp_le_u32 s{sA}, s{sCAP}
    s_cbranch_scc0 M_WIN
    s_cmp_eq_u32 s{sBASE}, 0
    s_cbranch_scc1 M_NOWIN
    M_WIN:
    s_sub_i32 s{sCNT}, s{sN}, s{sBASE}
    s_max_i32 s{sCNT}, s{sCNT}, 0
    s_min_u32 s{sCNT}, s{sCNT}, s{sCAP}
    s_sub_i32 s{sNS}, s{sNS}, s{sBASE}
    s_max_i32 s{sNS}, s{sNS}, 0
    """)
    for (pp, cc, gg) in ((p0, c0, g0), (p1, c1, g1)):
        a(f"""
        v_subrev_u32 v{tt}, s{sBASE}, v{pp}
        v_max_i32 v{pp}, 0, v{tt}
        v_add_u32 v{cc}, v{tt}, v{cc}
        v_min_i32 v{cc}, s{sCAP}, v{cc}
        v_sub_u32 v{cc}, v{cc}, v{pp}
        v_sub_u32 v{tt}, v{pp}, v{tt}
        v_add_u32 v{gg}, v{gg}, v{tt}
        """)
    a(f"M_NOWIN:\ns_min_u32 s{sNS}, s{sNS}, {SCAP}")
    pa, ca_, ga, gb = t0, t1, t2, t3
    for n, (pp, cc, gg) in enumerate(((p0, c0, g0), (p1, c1, g1))):
        a(f"""
        v_lshl_add_u32 v{pp}, v{pp}, 2, s{sGL}
        v_add_u32 v{ga}, 1, v{gg}
        v_add_u32 v{gb}, 2, v{gg}
        v_mov_b32 v{ca_}, v{cc}
        v_mov_b32 v{pa}, v{pp}
        M_EXP{n}:
        """)
        for r in (1, 3, 5, 7):
            a(f"v_cmpx_lt_i32 vcc, {r}, v{ca_}\nds_write2_b32 v{pa}, v{ga}, v{gb} offset0:{r} offset1:{r+1}\nv_add_u32 v{ga}, 2, v{ga}\nv_add_u32 v{gb}, 2, v{gb}")
        a(f"""
        v_cmpx_lt_i32 vcc, 9, v{ca_}
        v_add_u32 v{pa}, 32, v{pa}
        v_subrev_u32 v{ca_}, 8, v{ca_}
        s_cbranch_execnz M_EXP{n}
        s_mov_b64 exec, -1
        """)
    a(f"""
    v_cmpx_lt_i32 vcc, 0, v{c0}
    ds_write_b32 v{p0}, v{g0}
    s_mov_b64 exec, -1
    v_cmpx_lt_i32 vcc, 0, v{c1}
    ds_write_b32 v{p1}, v{g1}
    s_mov_b64 exec, -1
    """)
    for i in ORD:
        a(f"ds_read_b32 v{G+i}, v{qa} offset:{256*i}")
    a(f"v_lshl_add_u32 v{t1}, v{lh}, 2, s{sGL}")
    for j in range(7):
        a(f"ds_read_b32 v{SG+j}, v{t1} offset:{128*j}")
    for i in ORD:
        a(f"s_sub_i32 s{sA}, s{sCNT}, {64*i}\nv_cmp_gt_i32 {mk(i)}, s{sA}, v{lane}")
    skip("M_GA")
    for i in ORD:
        a(f"""
        s_mov_b64 exec, {mk(i)}
        s_waitcnt lgkmcnt({i+7})
        buffer_load_dword v{RC+i}, v{G+i}, s[{sREC}:{sREC+3}], 0 idxen {LD}
        """)
        after("M_GA", i)
    a("s_mov_b64 exec, -1")
    stamp("pro", 2)
    a(f"""
    v_lshrrev_b32 v{t2}, 4, v{lane}
    v_xor_b32 v{t2}, v{t2}, v{lane}
    v_and_b32 v{t2}, 1, v{t2}
    v_lshlrev_b32 v{t2}, 4, v{t2}
    v_mov_b32 v{fl0}, s{sCNT}
    v_mov_b32 v{fl0+1}, s{sN}
    s_waitcnt lgkmcnt(0)
    """)
    for j in range(7): a(f"v_lshl_add_u32 v{SG+j}, v{SG+j}, 5, v{t2}")
    a("s_barrier")
    def stage(js):
        for j in js:
            a(f"""
            s_sub_i32 s{sA}, s{sNS}, {32*j}
            s_add_u32 m0, s{sSTB}, {1024*j}
            v_cmpx_gt_i32 vcc, s{sA}, v{lh}
            buffer_load_dwordx4 v{SG+j}, s[{sEM}:{sEM+3}], 0 offen {LD} lds
            """)
        a("s_mov_b64 exec, -1")
    NS1 = int(OPT["ns1"])
    stage(range(NS1))
    a(f"""
    s_mov_b32 s75, {L_C8}
    s_movk_i32 s{sB}, 0xe00
    s_mov_b64 exec, 1
    ds_add_u32 v{nta}, v{fl0} offset:{L_NT}
    ds_max_u32 v{nta}, v{fl0+1} offset:{L_MX}
    """)
    skip("M_RK")
    for i in ORD:
        a(f"""
        s_mov_b64 exec, {mk(i)}
        s_waitcnt vmcnt({i+NS1})
        v_and_b32 v{NA+i}, 63, v{RC+i}
        v_lshrrev_b32 v{tt}, 9, v{RC+i}
        v_add_u32 v{NA+i}, s{sSO}, v{NA+i}
        v_lshl_add_u32 v{CA+i}, v{NA+i}, 2, s75
        v_and_or_b32 v{CA+i}, v{tt}, s{sB}, v{CA+i}
        ds_add_rtn_u32 v{RK+i}, v{CA+i}, v{one}
        """)
        after("M_RK", i)
    def pack(lab):
        a(f"s_movk_i32 s{sB}, {CH}")
        skip(lab)
        for i in ORD:
            a(f"""
            v_lshrrev_b32 v{t0}, 12, v{G+i}
            v_lshrrev_b32 v{tt}, 21, v{RC+i}
            v_bfe_i32 v{t1}, v{G+i}, 11, 1
            v_mad_u32_u24 v{tt}, v{t0}, s{sB}, v{tt}
            v_and_b32 v{t1}, {M0}, v{t1}
            v_bfe_u32 v{RC+i}, v{RC+i}, 6, 15
            v_add3_u32 v{G+i}, v{t1}, v{tt}, s{sDF}
            v_lshl_add_u32 v{RC+i}, v{RC+i}, 7, v{NA+i}
            v_lshlrev_b32 v{NA+i}, 3, v{NA+i}
            """)
            if i < 4:
                a(f"""
                s_sub_i32 s{sA}, s{sNS}, {64*i}
                v_cmp_gt_i32 vcc, s{sA}, v{lane}
                v_add_u32 v{tt}, {2048*i}, v{sac}
                s_nop 0
                v_cndmask_b32 v{G+i}, v{G+i}, v{tt}, vcc
                """)
            after(lab, i)
    a("s_mov_b64 exec, -1")
    stamp("pro", 3)
    a(f"""
    s_cmp_eq_u32 s{sW}, 0
    s_cbranch_scc1 M_PK0
    s_lshl_b32 s{sA}, s{sW}, 8
    s_add_u32 s{sA}, s{sA}, {L_C8 - 256}
    v_lshl_add_u32 v{S4}, v{lane}, 2, s{sA}
    v_mov_b32 v{Q+8}, 0
    s_waitcnt lgkmcnt(0)
    s_barrier
    """)
    stamp("pro", 4)
    a(f"s_cmp_gt_u32 s{sW}, 2\ns_cbranch_scc1 M_NOPFX")
    for j in range(3): a(f"ds_read2st64_b32 {v(Q+2*j,2)}, v{S4} offset0:{4*j} offset1:{4*j+2}")
    a(f"s_waitcnt lgkmcnt(0)\nv_mov_b32 v{Q+9}, v{Q}")
    for j in range(1, 6): a(f"v_add_u32 v{Q+9+j}, v{Q+8+j}, v{Q+j}")
    for j in range(4): a(f"ds_write2st64_b32 v{S4}, v{Q+8+2*j}, v{Q+9+2*j} offset0:{16+4*j} offset1:{16+4*j+2}")
    a("M_NOPFX:\ns_setprio 0")
    stage(range(NS1, 7)); pack("M_PB")
    a("s_waitcnt lgkmcnt(0)\ns_barrier\ns_branch M_P4E")
    d0, d1, f0, f1, k0, k1, vL, vR, ks, a4, l0, l1, o0, o1, cn, ci = [Q + i for i in range(16)]
    m0_, B0, m1_, B1 = S4, S4+1, S4+2, S4+3
    a(f"""
    M_PK0:
    s_setprio 3
    v_lshlrev_b32 v{a4}, 3, v{lane}
    v_lshlrev_b32 v{cn}, 2, v{lane}
    v_add_u32 v{cn}, {L_C8}, v{cn}
    v_sub_u32 v{ci}, 31, v{m}
    v_lshlrev_b32 v{ci}, 2, v{ci}
    s_mov_b32 s75, {f32(4194304.0)}
    s_waitcnt lgkmcnt(0)
    s_barrier
    """)
    stamp("pro", 4)
    a(f"ds_read_b32 v{ks}, v{nta} offset:{L_NT}")
    for j in range(7): a(f"ds_read2st64_b32 {v(FX+2*j,2)}, v{cn} offset0:{2*j} offset1:{2*j+1}")
    a(f"""
    s_waitcnt lgkmcnt(4)
    v_readfirstlane_b32 s{sL}, v{ks}
    v_add3_u32 v{d0}, v{FX}, v{FX+2}, v{FX+4}
    v_add3_u32 v{d1}, v{FX+1}, v{FX+3}, v{FX+5}
    s_lshr_b32 s{sL}, s{sL}, 8
    s_add_u32 s{sL}, s{sL}, 2
    s_waitcnt lgkmcnt(0)
    v_add3_u32 v{d0}, v{d0}, v{FX+6}, v{FX+8}
    v_add3_u32 v{d1}, v{d1}, v{FX+7}, v{FX+9}
    v_add3_u32 v{d0}, v{d0}, v{FX+10}, v{FX+12}
    v_add3_u32 v{d1}, v{d1}, v{FX+11}, v{FX+13}
    v_cvt_f32_u32 v{f0}, v{d0}
    v_cvt_f32_u32 v{f1}, v{d1}
    M_LS:
    s_add_u32 s{sL}, s{sL}, 1
    s_cmp_gt_u32 s{sL}, {LMAX}
    s_cbranch_scc1 M_P4W
    v_cvt_f32_u32 v{vL}, s{sL}
    v_rcp_f32 v{vR}, v{vL}
    v_add_f32 v{vL}, -0.5, v{vL}
    v_add_f32 v{k0}, v{f0}, v{vL}
    v_add_f32 v{k1}, v{f1}, v{vL}
    v_mul_f32 v{k0}, v{k0}, v{vR}
    v_mul_f32 v{k1}, v{k1}, v{vR}
    v_cvt_u32_f32 v{k0}, v{k0}
    v_cvt_u32_f32 v{k1}, v{k1}
    v_add_u32 v{ks}, v{k0}, v{k1}
    """)
    fillers = [f"v_cvt_f32_u32 v{l0}, v{k0}", f"v_cvt_f32_u32 v{l1}, v{k1}",
               f"v_rcp_f32 v{m0_}, v{l0}", f"v_rcp_f32 v{m1_}, v{l1}",
               f"v_add_f32 v{l0}, v{l0}, v{f0}", f"v_add_f32 v{l1}, v{l1}, v{f1}",
               f"v_add_f32 v{l0}, -0.5, v{l0}", f"v_add_f32 v{l1}, -0.5, v{l1}",
               f"v_mul_f32 v{l0}, v{l0}, v{m0_}", f"v_mul_f32 v{l1}, v{l1}, v{m1_}",
               f"v_cvt_u32_f32 v{l0}, v{l0}", f"v_cvt_u32_f32 v{l1}, v{l1}"]
    for n, stp in enumerate(steps):
        a(f"{fillers[2*n]}\n{fillers[2*n+1]}\nv_add_u32_dpp v{ks}, v{ks}, v{ks} {stp}")
    a(f"""
    v_lshlrev_b32 v{l0}, 2, v{l0}
    v_readlane_b32 s{sA}, v{ks}, 63
    v_lshlrev_b32 v{l1}, 2, v{l1}
    s_cmp_gt_u32 s{sA}, 256
    s_cbranch_scc1 M_LS
    ds_add_rtn_u32 v{o0}, v{l0}, v{k0} offset:{L_CNT}
    ds_add_rtn_u32 v{o1}, v{l1}, v{k1} offset:{L_CNT}
    ds_read_b32 v{cn}, v{ci} offset:{L_CNT}
    v_mul_f32 v{m0_}, s75, v{m0_}
    v_mul_f32 v{m1_}, s75, v{m1_}
    v_cvt_u32_f32 v{m0_}, v{m0_}
    v_cvt_u32_f32 v{m1_}, v{m1_}
    v_add_u32 v{m0_}, 2, v{m0_}
    v_add_u32 v{m1_}, 2, v{m1_}
    v_lshlrev_b32 v{B0}, 2, v{k0}
    v_lshlrev_b32 v{B1}, 2, v{k1}
    v_sub_u32 v{B0}, 1024, v{B0}
    v_sub_u32 v{B1}, 1024, v{B1}
    v_sub_u32 v{l0}, 124, v{l0}
    v_sub_u32 v{l1}, 124, v{l1}
    s_waitcnt lgkmcnt(0)
    v_mov_b32 v{ks}, v{cn}
    """)
    for stp in steps[:5]:
        a(f"s_nop 1\nv_add_u32_dpp v{ks}, v{ks}, v{ks} {stp}")
    a(f"""
    v_sub_u32 v{ks}, v{ks}, v{cn}
    ds_bpermute_b32 v{d0}, v{l0}, v{ks}
    ds_bpermute_b32 v{d1}, v{l1}, v{ks}
    ds_write_b32 v{ci}, v{ks} offset:{L_BAS}
    s_waitcnt lgkmcnt(1)
    v_add_u32 v{o0}, v{o0}, v{d0}
    v_add_u32 v{o1}, v{o1}, v{d1}
    v_lshl_or_b32 v{m0_}, v{o0}, 24, v{m0_}
    v_lshl_or_b32 v{m1_}, v{o1}, 24, v{m1_}
    ds_write2st64_b64 v{a4}, {v(m0_,2)}, {v(m1_,2)} offset0:0 offset1:1
    M_P4W:
    v_mov_b32 v{ks}, s{sL}
    ds_write_b32 v{nta}, v{ks} offset:{L_MX+4}
    s_waitcnt lgkmcnt(0)
    s_barrier
    """)
    stage(range(NS1, 7)); pack("M_PA")
    u0, nn = SG, SG + 6
    a("M_P4E:")
    stamp("pro", 5)
    a(f"""
    ds_read_b64 {v(u0,2)}, v{nta} offset:{L_MX}
    v_lshlrev_b32 v{tt}, 2, v{m}
    ds_read_b32 v{u0+2}, v{tt} offset:{L_CNT}
    ds_read_b32 v{u0+3}, v{tt} offset:{L_BAS}
    s_lshr_b32 s{sA}, s{sW}, 1
    s_lshl_b32 s{sA}, s{sA}, 5
    v_add_u32 v{nn}, s{sA}, v{m}
    v_lshlrev_b32 v{tt}, 3, v{nn}
    ds_read_b64 {v(u0+4,2)}, v{tt} offset:{L_TB}
    """)
    skip("M_TR")
    for i in ORD:
        a(f"s_mov_b64 exec, {mk(i)}\nds_read_b64 {v(TBv+2*i,2)}, v{NA+i} offset:{L_TB}\nds_read_b32 v{OFv+i}, v{CA+i} offset:{C8O}")
        after("M_TR", i)
    a(f"""
    s_mov_b64 exec, -1
    s_lshl_b32 s{sA}, s{sG}, 5
    s_waitcnt lgkmcnt(12)
    v_readfirstlane_b32 s{sNMAX}, v{u0}
    v_readfirstlane_b32 s{sL}, v{u0+1}
    v_add_u32 v{u0+2}, v{u0+2}, v{u0+3}
    v_cmp_ge_u32 vcc, s{sA}, v{u0+3}
    v_cmp_lt_u32 s[52:53], s{sA}, v{u0+2}
    s_and_b64 s[52:53], s[52:53], vcc
    s_ff1_i32_b32 s{sT}, s52
    s_max_i32 s{sT}, s{sT}, 0
    s_cmp_le_u32 s{sL}, {LMAX}
    s_cbranch_scc1 M_P5
    s_mov_b32 s{sCAP}, 256
    s_branch M_AGAIN
    M_P5:
    """)
    skip("M_SC")
    for i in ORD:
        mm, BB = TBv + 2*i, TBv + 2*i + 1
        a(f"""
        s_mov_b64 exec, {mk(i)}
        s_waitcnt lgkmcnt({2*i + max(0, 5-i)})
        v_add_u32 v{RK+i}, v{RK+i}, v{OFv+i}
        v_lshrrev_b32 v{tt}, 24, v{mm}
        v_mul_u32_u24 v{mm}, v{mm}, v{RK+i}
        v_add_lshl_u32 v{tt}, v{tt}, v{RK+i}, 2
        v_lshrrev_b32 v{mm}, 22, v{mm}
        v_mad_u32_u24 v{tt}, v{mm}, v{BB}, v{tt}
        ds_write2st64_b32 v{tt}, v{RC+i}, v{G+i} offset0:{L_LS//256} offset1:{L_LE//256}
        """)
        after("M_SC", i)
    ca0, ca1, ca2, ca3, kk, oa, fa, da = [EP + i for i in range(8)]
    epi_setup = f"""
    s_lshl_b32 s{sA}, s{sSB}, 7
    s_add_u32 s{sA}, s{sA}, {L_XR}
    s_movk_i32 s{sB}, 0x3fc
    s_movk_i32 s75, 0x3f8
    v_mov_b32 v{kk}, v{u0+5}
    v_lshrrev_b32 v{ca0}, 24, v{u0+4}
    v_mul_u32_u24 v{ca0}, 272, v{ca0}
    v_lshl_add_u32 v{ca0}, v{h16}, 1, v{ca0}
    v_add_u32 v{ca0}, s{sA}, v{ca0}
    v_mov_b32 v{da}, {L_ZR}
    v_cmp_gt_u32 s[56:57], s{sB}, v{kk}
    v_cmp_gt_u32 s[58:59], s75, v{kk}
    v_add_u32 v{ca1}, 272, v{ca0}
    v_add_u32 v{ca2}, 544, v{ca0}
    v_add_u32 v{ca3}, 816, v{ca0}
    v_cmp_gt_u32 vcc, 0x400, v{kk}
    v_cndmask_b32 v{ca1}, v{da}, v{ca1}, s[56:57]
    v_cndmask_b32 v{ca2}, v{da}, v{ca2}, s[58:59]
    v_cndmask_b32 v{ca0}, v{da}, v{ca0}, vcc
    v_cmp_gt_u32 vcc, s{sNB}, v{nn}
    v_lshlrev_b32 v{oa}, 7, v{nn}
    v_lshl_add_u32 v{oa}, v{h16}, 1, v{oa}
    s_lshl_b32 s{sA}, s{sW}, 11
    v_cndmask_b32 v{oa}, v{hz}, v{oa}, vcc
    v_add_u32 v{fa}, s{sA}, v{l16}
    v_mul_u32_u24 v{da}, 272, v{m}
    v_add3_u32 v{da}, v{da}, v{h16}, s{sXRB}
    """
    a(f"""
    s_mov_b64 exec, -1
    s_setprio 0
    """)
    BE = int(OPT["barE"])
    if BE:
        a("s_waitcnt lgkmcnt(0)\ns_barrier")
    else:
        a(epi_setup)
        a("s_waitcnt vmcnt(0) lgkmcnt(0)\ns_barrier")
    stamp("top", 3); stamp("pro", 6)
    if BE:
        a(f"s_cmp_lg_u32 s{sT}, 0\ns_cbranch_scc1 M_GO")
        a(epi_setup)
        a("s_waitcnt vmcnt(0)\ns_barrier\ns_branch M_BEND\nM_GO:")
    else:
        a(f"s_cmp_eq_u32 s{sT}, 0\ns_cbranch_scc1 M_BEND")
    S = []
    ef = OPT["eflags"]
    def le_read(t, p): return (f"ds_read_b32 v{RP+2*p}, v{vLE} offset:{L_LE+1024*t}", f"le{t}")
    def ls_read(t, dst): return (f"ds_read_b128 {v(dst,4)}, v{vLS} offset:{L_LS+1024*t}", f"ls{t}")
    def st_addr(p): return f"v_xor_b32 v{sa}, v{RP+2*p}, v{h16}"
    def st_read(t): return (f"ds_read_b128 {Es(t)}, v{sa}", f"st{t}")
    def d_pre(t, p): return [f"v_cmp_le_u32 vcc, s{sDF}, v{RP+2*p}", f"v_and_or_b32 v{vCr+t%5}, v{RP+2*p}, s{sB30}, 1.0"]
    def d_load(t, p): return ["s_mov_b64 exec, vcc", (f"buffer_load_dwordx4 {Es(t)}, {v(RP+2*p,2)}, s[{sE}:{sE+3}], 0 idxen offen {ef}", f"D{t}"), "s_mov_b64 exec, -1"]
    def x_addr(src): return [f"v_and_or_b32 v{S4+i}, v{src+i}, s{sM7}, v{CX+i}" for i in range(4)]
    def x_dma(t, nop=True, reg=None, soff="0", tag=None):
        o = []
        for i in range(4):
            sr = sX if reg else sP
            o += [f"s_add_u32 m0, s{sXRB}, {(t&1)*4096+i*1024}"] + (["s_nop 0"] if nop else []) + \
                 [(f"buffer_load_dwordx4 v{(reg or S4)+i}, s[{sr}:{sr+3}], {soff} offen {'' if reg else LD} lds", tag or f"X{t}")]
        return o
    def fx_read(t, sx, tag=None): return (f"ds_read_b128 {v(FX+4*sx,4)}, v{XA+sx} offset:{(t&1)*4096}", tag or f"fx{t}")
    def chain(nh, t):
        Dh = v(D + 16 * nh, 16)
        return [f"v_mfma_f32_32x32x16_bf16 {Dh}, {W3f(nh)}, {Es(t)}, {v(Q+16*nh,16)}"] + \
               [f"v_mfma_f32_32x32x16_bf16 {Dh}, {Idf(j)}, {v(FX+8*nh+4*j,4)}, {Dh}" for j in range(2)]
    XD4, L1, L2 = D, D + 4, D + 8
    S += [ls_read(0, S4)] + [le_read(j, j) for j in range(4)] + [ls_read(1, L1), ls_read(2, L2), ("@W", None, "ls0")]
    for i in range(4): S += [f"v_and_b32 v{XD4+i}, 127, v{S4+i}", f"v_lshl_or_b32 v{XD4+i}, v{XD4+i}, 7, v{CX+i}"]
    if BE:
        S += x_dma(1, reg=XD4, soff=f"s{sS0}", tag="XD") + x_addr(S4) + x_dma(0)
        S += [l.strip() for l in epi_setup.strip().split("\n")]
        S += ["s_waitcnt vmcnt(8)", "s_barrier"]
    else:
        S += x_dma(1, reg=XD4, soff=f"s{sS0}", tag="XD") + x_addr(S4) + x_dma(0)
    S += [("@W", None, "le3")]
    for j in range(4): S += [st_addr(j), st_read(j)]
    for j in range(2): S += d_pre(j, j) + [("@W", None, f"st{j}")] + d_load(j, j)
    S += x_addr(L1) + [("@W", "XD", None)] + [fx_read(1, sx, "xd") for sx in range(4)]
    S += [("@W", None, "xd")]
    dm = x_dma(1, nop=False)
    k = 0
    for nh in range(2):
        for sx in range(4):
            S.append(f"v_mfma_f32_32x32x16_bf16 {v(Q+16*nh,16)}, {v(AG+(sx*2+nh)*4,4)}, {v(FX+4*sx,4)}, {'0' if sx == 0 else v(Q+16*nh,16)}")
            S.append(dm[k]); k += 1
    S += d_pre(2, 2) + [("@W", None, "st3")] + d_load(2, 2)
    S += [f"s_mov_b32 s74, {f32(-LOG2E)}", f"s_mov_b32 s75, {f32(-LOG2E)}"]
    S += [("@W", "D0", None)] + [fx_read(0, sx) for sx in range(4)] + x_addr(L2)
    S += [f"v_pk_mul_f32 {v(Q+2*i,2)}, {v(Q+2*i,2)}, s[74:75]" for i in range(16)] + [("@W", None, "fx0")]
    S += chain(0, 0) + x_dma(2) + d_pre(3, 3) + d_load(3, 3)
    if MODE: S += [f"s_mov_b32 s90, s{sT}", f"s_mov_b32 s98, s{sL}", "s_memtime s[94:95]", "s_waitcnt lgkmcnt(0)"]
    if MODE == "top": S += ["s_memrealtime s[84:85]", "s_waitcnt lgkmcnt(0)"]
    def phase(nh, t, mf, fill):
        Db, Ab = D + 16*nh, AG + 16*nh
        c = vCr + t % 5
        cp = f"{v(c & ~1, 2)} " + ("op_sel_hi:[1,0]" if c % 2 == 0 else "op_sel:[0,1] op_sel_hi:[1,1]")
        seq = []
        mf = mf + [None] * (3 - len(mf))
        for q in range(2):
            ex = [f"v_exp_f32 v{T+i}, v{Db+8*q+i}" for i in range(8)]
            rc = [f"v_rcp_f32 v{T+i}, v{T+i}" for i in range(8)]
            ad = [f"v_pk_add_f32 {v(T+2*i,2)}, {v(T+2*i,2)}, {cp}" for i in range(4)]
            fm = [f"v_pk_fma_f32 {v(Ab+8*q+2*i,2)}, {v(Db+8*q+2*i,2)}, {v(T+2*i,2)}, {v(Ab+8*q+2*i,2)}" for i in range(4)]
            if t == 0: fm = [f"v_pk_mul_f32 {v(Ab+8*q+2*i,2)}, {v(Db+8*q+2*i,2)}, {v(T+2*i,2)}" for i in range(4)]
            if q == 0: seq += [mf[0]] + ex + ad + [mf[1]] + rc + fm
            else: seq += [mf[2]] + ex + ad + rc + fm
        res = []; n = 0
        for l in seq:
            if l is None: continue
            res.append(l)
            if l.startswith(("v_exp", "v_rcp")):
                res += fill.get(n, []); n += 1
        return res
    for t in range(LMAX):
        fill = {}
        if t + 4 < LMAX:
            fill[0] = [le_read(t + 4, 0)]
            fill[10] = [("@W", None, f"le{t+4}"), st_addr(0)]; fill[11] = [st_read(t + 4)]
        if t + 3 < LMAX: fill[1] = [ls_read(t + 3, S4)]
        if t + 1 < LMAX:
            fill[16] = [("@W", f"X{t+1}", None)]
            for sx in range(4): fill[17+sx] = [fx_read(t + 1, sx)]
        if t + 3 < LMAX:
            xa = x_addr(S4)
            fill[24] = [("@W", None, f"ls{t+3}"), xa[0]]; fill[25] = [xa[1]]; fill[26] = [xa[2]]; fill[27] = [xa[3]]
        if int(OPT["prio"]) == 1: S.append("s_setprio 1")
        S += phase(0, t, chain(1, t), fill)
        if int(OPT["prio"]) == 1: S.append("s_setprio 0")
        fill = {}
        if t + 1 < LMAX: fill[0] = [("@W", None, f"fx{t+1}")]
        if t + 3 < LMAX:
            dm = x_dma(t + 3, nop=False)
            for i in range(8): fill[1+i] = [dm[i]]
        if t + 4 < LMAX:
            dp = d_pre(t + 4, 0)
            fill[9] = [dp[0]]; fill[12] = d_load(t + 4, 0); fill[13] = [dp[1]]
        fill[31] = [f"s_cmp_eq_u32 s{sT}, {t+1}"]
        S += phase(1, t, chain(0, t + 1) if t + 1 < LMAX else [], fill)
        if t + 1 < LMAX: S.append("s_cbranch_scc1 M_FLUSH")
    emit(resolve(S))
    a("M_FLUSH:")
    stamp("top", 5); stamp("epi", 1)
    if MODE: a("s_memtime s[96:97]\ns_waitcnt lgkmcnt(0)")
    a("s_waitcnt vmcnt(0)")
    for i in range(8):
        a(f"ds_write_b128 v{da}, {v(AG+4*i,4)} offset:{32*i}")
    A0, A1, A2, OWN, PAR = D, D + 16, Q, Q + 16, Q + 24
    a(f"""
    M_BEND:
    v_cmp_gt_u32 vcc, 0x3f4, v{kk}
    s_mov_b32 s74, {f32(-1.0/LOG2E)}
    s_mov_b32 s75, {f32(-1.0/LOG2E)}
    s_waitcnt lgkmcnt(0)
    """)
    stamp("epi", 2)
    a("s_barrier")
    stamp("epi", 3)
    offs = (0, 16, 64, 80)
    for i in range(4):
        for buf, ca in ((A0, ca0), (A1, ca1), (A2, ca2)):
            a(f"ds_read_b128 {v(buf+4*i,4)}, v{ca} offset:{offs[i]}")
    for i in range(4):
        a(f"s_waitcnt lgkmcnt({9-3*i})")
        for j in range(2): a(f"v_pk_add_f32 {v(A0+4*i+2*j,2)}, {v(A0+4*i+2*j,2)}, {v(A1+4*i+2*j,2)}")
        for j in range(2): a(f"v_pk_add_f32 {v(A0+4*i+2*j,2)}, {v(A0+4*i+2*j,2)}, {v(A2+4*i+2*j,2)}")
    a(f"""
    s_cbranch_vccz M_SUMD
    s_movk_i32 s{sA}, 0x3f4
    M_SUML:
    s_mov_b64 exec, vcc
    """)
    for i in range(4):
        a(f"ds_read_b128 {v(A1+4*i,4)}, v{ca3} offset:{offs[i]}")
    a(f"s_sub_u32 s{sA}, s{sA}, 4\nv_add_u32 v{ca3}, 272, v{ca3}\ns_waitcnt lgkmcnt(0)")
    for i in range(8): a(f"v_pk_add_f32 {v(A0+2*i,2)}, {v(A0+2*i,2)}, {v(A1+2*i,2)}")
    a(f"""
    s_mov_b64 exec, -1
    v_cmp_gt_i32 vcc, s{sA}, v{kk}
    s_nop 4
    s_cbranch_vccnz M_SUML
    M_SUMD:
    s_cmp_le_u32 s{sNMAX}, s{sCAP}
    s_cbranch_scc1 M_EPI
    """)
    srd_off(a, 56, 10, WS_SP, 2048 * 4096)
    a(f"""
    s_lshl_b32 s{sA}, s2, 3
    s_add_u32 s{sA}, s{sA}, s{sW}
    s_lshl_b32 s{sA}, s{sA}, 12
    s_cmp_eq_u32 s{sBASE}, 0
    s_cbranch_scc1 M_NOLD
    """)
    for i in range(4):
        a(f"buffer_load_dwordx4 {v(A1+4*i,4)}, v{l16}, s[56:59], s{sA} offen offset:{1024*i} sc0 sc1")
    a("s_waitcnt vmcnt(0)")
    for i in range(8): a(f"v_pk_add_f32 {v(A0+2*i,2)}, {v(A0+2*i,2)}, {v(A1+2*i,2)}")
    a(f"""
    M_NOLD:
    s_add_u32 s{sBASE}, s{sBASE}, s{sCAP}
    s_cmp_ge_u32 s{sBASE}, s{sNMAX}
    s_cbranch_scc1 M_EPI
    """)
    for i in range(4):
        a(f"buffer_store_dwordx4 {v(A0+4*i,4)}, v{l16}, s[56:59], s{sA} offen offset:{1024*i} sc0 sc1")
    a(f"""
    M_AGAIN:
    s_load_dwordx2 s[60:61], s[0:1], 32
    s_waitcnt vmcnt(0) lgkmcnt(0)
    s_barrier
    """)
    srd(a, 56, 60, 18432)
    a(f"""
    s_lshl_b32 s{sA}, s{sW}, 10
    s_add_u32 s{sA}, s{sA}, 8192
    s_add_u32 m0, s{sA}, {S_W}
    v_lshlrev_b32 v{t0}, 2, v0
    buffer_load_dwordx4 v{l16}, s[56:59], s{sA} offen lds
    ds_write_b32 v{t0}, v{nta}
    s_waitcnt vmcnt(0)
    s_barrier
    """)
    w2read()
    a(f"""
    s_waitcnt lgkmcnt(0)
    s_barrier
    s_branch M_BATCH
    M_EPI:
    """)
    srd(a, 56, 8, 3200000)
    for i in range(8): a(f"v_pk_mul_f32 {v(A0+2*i,2)}, {v(A0+2*i,2)}, s[74:75]")
    for i in range(8): a(f"v_cvt_pk_bf16_f32 v{OWN+i}, v{A0+2*i}, v{A0+2*i+1}")
    a(f"""
    ds_write_b128 v{fa}, {v(OWN,4)} offset:{L_FE}
    ds_write_b128 v{fa}, {v(OWN+4,4)} offset:{L_FE+1024}
    v_xor_b32 v{fa}, 0x800, v{fa}
    v_mfma_f32_32x32x16_bf16 {v(U0,16)}, {v(WU,4)}, {v(OWN,4)}, {v(U0,16)}
    v_mfma_f32_32x32x16_bf16 {v(U0,16)}, {v(WU+4,4)}, {v(OWN+4,4)}, {v(U0,16)}
    s_lshl_b32 s{sA}, s{sSB}, 6
    s_add_u32 s{sA}, s{sA}, s{sS0}
    s_mov_b32 s74, {f32(-LOG2E)}
    s_mov_b32 s75, {f32(-LOG2E)}
    s_waitcnt lgkmcnt(0)
    s_barrier
    """)
    stamp("epi", 4)
    a(f"""
    ds_read_b128 {v(PAR,4)}, v{fa} offset:{L_FE}
    ds_read_b128 {v(PAR+4,4)}, v{fa} offset:{L_FE+1024}
    s_waitcnt lgkmcnt(1)
    v_mfma_f32_32x32x16_bf16 {v(U0,16)}, {v(WU+8,4)}, {v(PAR,4)}, {v(U0,16)}
    s_waitcnt lgkmcnt(0)
    v_mfma_f32_32x32x16_bf16 {v(U0,16)}, {v(WU+12,4)}, {v(PAR+4,4)}, {v(U0,16)}
    s_nop 11
    """)
    for q in range(2):
        b = 8 * q
        for i in range(4): a(f"v_pk_mul_f32 {v(AG+b+2*i,2)}, {v(U0+b+2*i,2)}, s[74:75]")
        for i in range(8): a(f"v_exp_f32 v{AG+b+i}, v{AG+b+i}")
        for i in range(4): a(f"v_pk_add_f32 {v(AG+b+2*i,2)}, {v(AG+b+2*i,2)}, 1.0 op_sel_hi:[1,0]")
        for i in range(8): a(f"v_rcp_f32 v{AG+b+i}, v{AG+b+i}")
        for i in range(4): a(f"v_pk_mul_f32 {v(AG+b+2*i,2)}, {v(U0+b+2*i,2)}, {v(AG+b+2*i,2)}")
        for i in range(4): a(f"v_cvt_pk_bf16_f32 v{D+4*q+i}, v{AG+b+2*i}, v{AG+b+2*i+1}")
        a(f"buffer_store_dwordx4 {v(D+4*q,4)}, v{oa}, s[56:59], s{sA} offen offset:{16*q}")
    if MODE:
        stamp("epi", 5)
        a("s_waitcnt vmcnt(0)")
        stamp("top", 6); stamp("epi", 6)
        a(f"s_lshl_b32 s74, s2, 3\ns_add_u32 s74, s74, s{sW}\ns_lshl_b32 s74, s74, 6\ns_add_u32 s74, s74, {WS_ST+0x80000}\ns_add_u32 s52, s10, s74\ns_addc_u32 s53, s11, 0\nv_mov_b32 v0, 0")
        for i in range(8):
            a(f"v_mov_b32 v1, s{76+2*i}\nglobal_store_dword v0, v1, s[52:53] offset:{4*i}")
        a("s_sub_u32 s96, s96, s94\nv_mov_b32 v1, s96\nglobal_store_dword v0, v1, s[52:53] offset:32\nv_mov_b32 v1, s98\nglobal_store_dword v0, v1, s[52:53] offset:36")
    a("M_END:\ns_endpgm")
    return R.n

hdr = f"""; MPNN edge-MLP + segment-sum + node update in one launch of 256 co-resident workgroups:
; @launch grid=(256,1,1) block=(512,1,1) lds={MAIN_LDS}
.amdgcn_target "amdgcn-amd-amdhsa--gfx950"
.text
.globl {KN}
.type {KN},@function
"""
nv = gen()
txt = hdr + a.text() + '.section .rodata,"a"\n.p2align 6\n' + kdesc(KN, 256, 102)
open(sys.argv[1], "w").write(txt)
print("vgprs", nv, "lds", MAIN_LDS)
```

```python
import sys, struct
from asmlib import *

OPT = dict(abl="", stamp=False, eflags="", M0=1280, ns1=3, es='2,3,0', osl=4, xw=0, fst=5, cem=1, Y=False, epf=0, skw=256, xe=0, prio=0, ld="sc1")
for arg in sys.argv[2:]:
    k, val = arg.split("=")
    OPT[k] = {"True": True, "False": False}.get(val, val.replace("+", " "))
M0 = int(OPT["M0"])
assert M0 % 32 == 0 and M0 <= 1376 and 3200 - M0 <= 2048
LD = OPT["ld"]
YM = OPT["Y"]
if YM: OPT["es"] = "0,0,0"; OPT["ns1"] = 0
KN = "standalone__mpnn_edge_mlp__graph_kernel"

NCH, CH = 250, 3200
WS_REC, WS_O, WS_F2, WS_ST, WS_P, WS_SP, WS_EM = 0, 0x440000, 0x680000, 0x700000, 0x800000, 0x1000000, 0x2000000
SKW = int(OPT["skw"])
OTS, RCS, EMS = 8192 + SKW, 16384 + SKW, M0 * 32 + SKW
LOG2E = 1.4426950408889634
def f32(x): return "0x%08x" % struct.unpack("<I", struct.pack("<f", x))[0]

a = Asm()
MODE = OPT["stamp"]
def stamp(mode, i):
    if MODE == mode or (MODE and mode == "all"):
        a(f"s_memrealtime s[{76+2*i}:{77+2*i}]\ns_waitcnt lgkmcnt(0)")
def emit(l): a("\n".join(l))

def resolve(stream):
    out = []; vm = []; lg = []
    for it in stream:
        if isinstance(it, tuple) and it[0] == "@W":
            parts = []
            if it[1] is not None:
                idx = max(i for i, t in enumerate(vm) if t == it[1]); n = len(vm) - 1 - idx
                assert n <= 63; parts.append(f"vmcnt({n})")
            if it[2] is not None:
                idx = max(i for i, t in enumerate(lg) if t == it[2]); n = len(lg) - 1 - idx
                parts.append(f"lgkmcnt({min(n, 15)})")
            out.append("s_waitcnt " + " ".join(parts)); continue
        txt, tag = it if isinstance(it, tuple) else (it, None)
        if txt.startswith("buffer_"): vm.append(tag)
        if txt.startswith("ds_"): lg.append(tag)
        out.append(txt)
    return out

LMAX = 17
L_TB = 0
L_CNT = 1024
L_NT = L_CNT + 128
L_MX = L_NT + 16
L_BAS = L_MX + 16
L_F2C = 1408
L_ZR = 1536
L_LS = 2048
LSZ = LMAX * 1024
L_LE = L_LS + LSZ
L_ST = L_LE + LSZ
SCAP = 224
L_XR = L_ST + 8 * SCAP * 32
XRS = 8704
MAIN_LDS = L_XR + 8 * XRS
assert MAIN_LDS <= 163840 and L_XR % 4096 == 0
L_C8 = L_XR + XRS
C8O = XRS
GLO = 6144
XRO = 4096
S_W = L_LS
S_CNT = L_ST
S_STA = S_CNT + 2048
S_SRT = S_STA + 2048
S_E = S_SRT + CH * 4
assert S_E + M0 * 32 <= L_XR + 4096
L_FE = L_LS
DUMMY = 0xC0000000
DFLAG = 1 << 24
SPIN = 200000

def gen():
    R = Regs("v", 1, 256)
    vLS = R.alloc("vLS"); vLE = R.alloc("vLE")
    vCr = R.alloc("vCr", 5)
    RP = R.alloc("RP", 8, 2)
    XA = R.alloc("XA", 4); CX = R.alloc("CX", 4)
    S4 = R.alloc("S4", 4, 4); T = R.alloc("T", 8, 4)
    FX = R.alloc("FX", 16, 4); E = R.alloc("E", 16, 4)
    D = R.alloc("D", 32, 4); Q = R.alloc("Q", 32, 4); AG = R.alloc("AG", 32, 4); W = R.alloc("W", 16, 4)
    U0 = R.alloc("U0", 16, 4); WU = R.alloc("WU", 16, 4); EP = R.alloc("EP", 16, 4)
    SG = R.alloc("SG", 8, 4)
    sa = R.alloc("sa"); lane = R.alloc("lane"); l16 = R.alloc("l16"); m = R.alloc("m"); h = R.alloc("h")
    sac = R.alloc("sac"); lh = R.alloc("lh"); hz = R.alloc("hz"); aN = R.alloc("aN"); one = R.alloc("one"); nta = R.alloc("nta")
    h16 = RP + 1
    def Idf(j): return v(W + 4 * j, 4)
    def W3f(nh): return v(W + 8 + nh * 4, 4)
    def Es(t): return v(E + 4 * (t % 4), 4)
    sX, sE, sREC, sEM, sWS, sP = 16, 20, 24, 28, 32, 36
    sW, sSB, sS0, sSO, sN, sBASE, sCNT, sT, sXRB, sA, sB, sCAP = 40, 41, 42, 43, 44, 45, 46, 47, 48, 49, 50, 51
    sNB, sGL, sNMAX, sG, sL, sM7, sB30, sDF, sNS = 70, 71, 72, 73, 12, 13, 14, 15, 3
    sSTB, sOA, sTAG = 99, 93, 100
    t0, t1, t2, t3, t4, t5, t6, t7 = [T + i for i in range(8)]
    def mk(i): return f"s[{54+2*i}:{55+2*i}]"
    ORD = list(range(7, -1, -1))
    def skip(lab):
        a(f"s_cmp_le_u32 s{sCNT}, 384\ns_cbranch_scc1 {lab}6\ns_cmp_le_u32 s{sCNT}, 448\ns_cbranch_scc1 {lab}7")
    def after(lab, i):
        if i >= 6: a(f"{lab}{i}:")
    ne = 0 if "noe" in OPT["abl"] else 1
    steps = [f"row_shr:{sh} row_mask:0xf bank_mask:0xf bound_ctrl:0" for sh in (1, 2, 4, 8)] + ["row_bcast:15 row_mask:0xa bank_mask:0xf", "row_bcast:31 row_mask:0xc bank_mask:0xf"]

    DS_, SR_, CAD, RNK, PR_ = D, D + 8, D + 16, D + 24, Q
    oA, oB, t16, t4_, idx, rA, rB = [Q + 8 + i for i in range(7)]
    nz = Q + 16
    CS = Q + 20
    NA_, NB_ = M0 // 4, (CH - M0) // 4
    SDW = "dst_sel:DWORD dst_unused:UNUSED_PAD src0_sel:DWORD src1_sel:"
    a(f".p2align 8\n{KN}:")
    a(f"""
    s_cmp_ge_u32 s2, 256
    s_cbranch_scc1 M_END
    s_load_dwordx4 s[56:59], s[0:1], 16
    s_load_dwordx4 s[4:7], s[0:1], 0
    s_load_dwordx4 s[60:63], s[0:1], 32
    s_load_dwordx4 s[8:11], s[0:1], 48
    s_load_dwordx2 s[64:65], s[0:1], 64
    s_memrealtime s[66:67]
    """)
    stamp("all", 0)
    a(f"""
    s_setprio 2
    v_lshlrev_b32 v{t16}, 4, v0
    v_mov_b32 v{hz}, 0x80000000
    v_cmp_gt_u32 vcc, {NA_}, v0
    s_mul_i32 s{sA}, s2, 12800
    s_mov_b64 s[52:53], vcc
    v_cndmask_b32 v{rA}, v{hz}, v{t16}, vcc
    v_cmp_gt_u32 vcc, {NB_}, v0
    s_add_u32 s{sB}, s{sA}, {M0*4}
    s_mov_b64 s[54:55], vcc
    v_cndmask_b32 v{rB}, v{hz}, v{t16}, vcc
    s_mov_b32 s{sE+2}, 3200000
    s_mov_b32 s{sE+3}, 0x20000
    s_mov_b32 s{sEM+2}, 3200000
    s_mov_b32 s{sEM+3}, 0x20000
    v_lshlrev_b32 v{t4_}, 2, v0
    v_mov_b32 v{nta}, 0
    v_lshrrev_b32 v{t0}, 6, v0
    s_waitcnt lgkmcnt(0)
    s_mov_b32 s{sE}, s58
    s_mov_b32 s{sE+1}, s59
    s_mov_b32 s{sEM}, s56
    s_mov_b32 s{sEM+1}, s57
    buffer_load_dwordx4 {v(DS_,4)}, v{rA}, s[{sE}:{sE+3}], s{sA} offen
    buffer_load_dwordx4 {v(DS_+4,4)}, v{rB}, s[{sE}:{sE+3}], s{sB} offen
    buffer_load_dwordx4 {v(SR_,4)}, v{rA}, s[{sEM}:{sEM+3}], s{sA} offen
    buffer_load_dwordx4 {v(SR_+4,4)}, v{rB}, s[{sEM}:{sEM+3}], s{sB} offen
    ds_write_b32 v{t4_}, v{nta} offset:{S_CNT}
    ds_write_b32 v{t4_}, v{nta}
    v_readfirstlane_b32 s{sW}, v{t0}
    s_setprio 0
    """)
    srd(a, sP, 10, 256)
    a(f"""
    s_xor_b32 s{sA}, s{sW}, 7
    s_or_b32 s{sA}, s{sA}, s2
    s_cmp_lg_u32 s{sA}, 0
    s_cbranch_scc1 S_NOTAG
    s_or_b32 s{sA}, s66, 1
    v_mov_b32 v{nz}, s{sA}
    v_mov_b32 v{nz+1}, s67
    s_mov_b64 exec, 1
    buffer_store_dwordx2 {v(nz,2)}, v{nta}, s[{sP}:{sP+3}], 0 offen sc1
    s_mov_b64 exec, -1
    s_waitcnt vmcnt(0)
    S_NOTAG:
    s_mov_b32 s10, s64
    s_mov_b32 s11, s65
    s_cmp_lt_u32 s2, {NCH}
    s_cselect_b64 s[52:53], s[52:53], 0
    s_cselect_b64 s[54:55], s[54:55], 0
    v_and_b32 v{lane}, 63, v0
    v_lshlrev_b32 v{l16}, 4, v{lane}
    s_mul_i32 s{sL}, s2, {CH*32}
    s_lshl_b32 s{sT}, s{sW}, 10
    """)
    srd(a, sREC, 6, 0 if "nomv" in OPT["abl"] else 25600000)
    a("s_waitcnt lgkmcnt(0)\ns_barrier")
    npiece = 0 if YM else M0 // 32
    nr = (npiece + 7) // 8
    ES = [int(x) for x in OPT["es"].split(",")]
    assert sum(ES) == nr
    EC = [sum(ES[:i]) for i in range(4)]
    def edma(slot):
        for r in range(EC[slot], EC[slot+1]):
            if (r + 1) * 8 > npiece:
                a(f"s_min_u32 s{sT}, s{sT}, {(npiece - 8*r - 1)*1024}")
            a(f"s_add_u32 m0, s{sT}, {S_E + r*8192}\ns_add_u32 s{sA}, s{sT}, {r*8192}\ns_add_u32 s{sA}, s{sA}, s{sL}\nbuffer_load_dwordx4 v{l16}, s[{sREC}:{sREC+3}], s{sA} offen lds")
    edma(0)
    a(f"""
    v_mov_b32 v{one}, 1
    v_mov_b32 v{t7}, 0x10000
    v_lshlrev_b32 v{idx}, 23, v0
    v_add_u32 v{idx}, 9, v{idx}
    v_lshlrev_b32 v{t6}, 5, v{lane}
    s_mov_b32 s{sB}, -49
    s_mov_b32 s{sM7}, {1<<21}
    s_mov_b32 s{sB30}, {2<<21}
    s_mov_b32 s{sDF}, {3<<21}
    s_setprio 2
    s_waitcnt vmcnt({EC[1]+2})
    """)
    stamp("srt", 1)
    for g in range(2):
        for i in range(4*g, 4*g + 4):
            a(f"v_mul_u32_u24 v{PR_+i}, 1338, v{DS_+i}\nv_lshlrev_b32_sdwa v{CAD+i}, 2, v{PR_+i} {SDW}WORD_1")
        a(f"s_mov_b64 exec, {'s[52:53]' if g == 0 else 's[54:55]'}")
        for i in range(4*g, 4*g + 4): a(f"ds_add_rtn_u32 v{RNK+i}, v{CAD+i}, v{one if g == 0 else t7} offset:{S_CNT}")
        a("s_mov_b64 exec, -1")
    a(f"buffer_load_dwordx2 {v(nz,2)}, v{nta}, s[{sP}:{sP+3}], 0 offen sc1")
    def recs(rng):
        o = []
        for i in rng:
            o += [f"v_mad_i32_i16 v{PR_+i}, v{PR_+i}, s{sB}, v{DS_+i} op_sel:[1,0,0,0]", f"v_lshl_add_u32 v{PR_+i}, v{SR_+i}, 6, v{PR_+i}",
                  f"v_add3_u32 v{PR_+i}, v{PR_+i}, v{idx}, {('0', f's{sM7}', f's{sB30}', f's{sDF}')[i%4]}"]
        return o
    a("s_waitcnt lgkmcnt(0)\ns_barrier")
    stamp("srt", 2)
    OTG = S4
    a(f"""
    ds_read_b128 {v(CS,4)}, v{t6} offset:{S_CNT}
    ds_read_b128 {v(CS+4,4)}, v{t6} offset:{S_CNT+16}
    ds_read_b32 v{OTG+1}, v{t4_} offset:{S_CNT}
    s_waitcnt vmcnt({EC[1]+1})
    """)
    emit(recs(range(4)))
    a("s_waitcnt lgkmcnt(1)")
    for j in range(1, 8): a(f"v_add_u32 v{CS+j}, v{CS+j}, v{CS+j-1}")
    a(f"v_mov_b32 v{CS+8}, v{CS+7}")
    rr = recs(range(4, 8))
    for n, stp in enumerate(steps): a(f"{rr[2*n]}\n{rr[2*n+1]}\nv_add_u32_dpp v{CS+8}, v{CS+8}, v{CS+8} {stp}")
    a(f"v_sub_u32 v{CS+8}, v{CS+8}, v{CS+7}\nv_add_u32 v{CS+8}, {M0<<16}, v{CS+8}")
    for j in range(7, 0, -1): a(f"v_add_u32 v{CS+j}, v{CS+j-1}, v{CS+8}")
    a(f"""
    v_mov_b32 v{CS}, v{CS+8}
    ds_write_b128 v{t6}, {v(CS,4)} offset:{S_STA}
    ds_write_b128 v{t6}, {v(CS+4,4)} offset:{S_STA+16}
    """)
    for i in range(8): a(f"ds_read_b32 v{DS_+i}, v{CAD+i} offset:{S_STA}")
    a(f"ds_read_b32 v{OTG}, v{t4_} offset:{S_STA}")
    edma(1)
    for i in range(8):
        if i % 4 == 0: a(f"s_mov_b64 exec, {'s[52:53]' if i == 0 else 's[54:55]'}")
        a(f"""
        s_waitcnt lgkmcnt(8)
        v_add_u32 v{DS_+i}, v{DS_+i}, v{RNK+i}
        v_lshlrev_b32_sdwa v{DS_+i}, 2, v{DS_+i} {SDW}{'WORD_0' if i < 4 else 'WORD_1'}
        ds_write_b32 v{DS_+i}, v{PR_+i} offset:{S_SRT}
        """)
    a("s_mov_b64 exec, -1")
    stamp("srt", 3)
    srd(a, sWS, 10, 0x800000 + 3200000)
    a(f"""
    s_mul_i32 s{sN}, s2, {OTS}
    s_add_u32 s{sN}, s{sN}, {WS_O}
    s_mov_b32 s{sB}, 0
    s_waitcnt vmcnt({ES[1]})
    s_branch S_TAGW
    S_TAGL:
    buffer_load_dwordx2 {v(nz,2)}, v{nta}, s[{sP}:{sP+3}], 0 offen sc1
    s_add_u32 s{sB}, s{sB}, 1
    s_cmp_gt_u32 s{sB}, {SPIN}
    s_cbranch_scc1 M_END
    s_waitcnt vmcnt(0)
    S_TAGW:
    v_readfirstlane_b32 s{sTAG}, v{nz}
    v_readfirstlane_b32 s{sTAG+1}, v{nz+1}
    s_waitcnt lgkmcnt(8)
    s_cmp_eq_u32 s{sTAG}, 0
    s_cbranch_scc1 S_TAGL
    v_add_u32 v{OTG}, {(2048-M0)<<16}, v{OTG}
    v_mov_b32 v{OTG+2}, s{sTAG}
    v_mov_b32 v{OTG+3}, s{sTAG+1}
    buffer_store_dwordx4 {v(OTG,4)}, v{t16}, s[{sWS}:{sWS+3}], s{sN} offen sc1
    """)
    srd(a, sX, 4, 3200000)
    srd(a, sE, 60, 18432)
    srd(a, sEM, 62, 16384)
    def xrows():
        a(f"""
        v_lshrrev_b32 v{t0}, 4, v{lane}
        v_xor_b32 v{t0}, v{t0}, v{lane}
        v_and_b32 v{t0}, 7, v{t0}
        v_and_b32 v{t1}, 0x380, v{l16}
        v_lshl_or_b32 v{t0}, v{t0}, 4, v{t1}
        v_xor_b32 v{t1}, 64, v{t0}
        s_add_u32 m0, s{sGL}, {XRO - GLO}
        s_lshl_b32 s{sA}, s{sW}, 11
        s_add_u32 s{sB}, s{sA}, s{sS0}
        buffer_load_dwordx4 v{t0}, s[{sX}:{sX+3}], s{sB} offen lds
        buffer_load_dwordx4 v{t1}, s[{sX}:{sX+3}], s{sB} offen offset:1024 lds
        """)
    a(f"""
    s_and_b32 s74, s2, 7
    s_lshl_b32 s74, s74, 5
    s_lshr_b32 s{sA}, s2, 3
    s_add_u32 s74, s74, s{sA}
    s_lshl_b32 s{sA}, s74, 17
    s_add_u32 s{sA}, s{sA}, 1337
    s_mul_hi_u32 s{sS0}, s{sA}, 3209991
    s_add_u32 s{sA}, s{sA}, 131072
    s_mul_hi_u32 s{sNB}, s{sA}, 3209991
    s_min_u32 s{sNB}, s{sNB}, 25000
    s_sub_u32 s{sNB}, s{sNB}, s{sS0}
    s_and_b32 s{sSB}, s{sW}, 1
    s_lshl_b32 s{sSO}, s74, 1
    s_add_u32 s{sSO}, s{sSO}, s{sSB}
    s_mul_i32 s{sSO}, s{sSO}, 49
    s_sub_u32 s{sSO}, s{sSO}, s{sS0}
    s_sub_u32 s{sSO}, s{sSO}, 9
    s_lshl_b32 s{sS0}, s{sS0}, 7
    s_mul_i32 s{sGL}, s{sW}, {XRS}
    s_add_u32 s{sGL}, s{sGL}, {L_XR + GLO}
    """)
    xrows()
    a(f"""
    s_add_u32 m0, s{sA}, {S_W}
    s_lshl_b32 s{sB}, s{sSB}, 10
    buffer_load_dwordx4 v{l16}, s[{sE}:{sE+3}], s{sA} offen lds
    buffer_load_dwordx4 v{l16}, s[{sE}:{sE+3}], s{sA} offen offset:1024 lds
    s_add_u32 m0, s{sA}, {S_W + 18432}
    s_add_u32 s{sB}, s{sB}, 16384
    buffer_load_dwordx4 v{l16}, s[{sEM}:{sEM+3}], s{sA} offen lds
    buffer_load_dwordx4 v{l16}, s[{sEM}:{sEM+3}], s{sA} offen offset:1024 lds
    s_add_u32 m0, s{sB}, {S_W}
    v_lshrrev_b32 v{t1}, 1, v0
    buffer_load_dwordx4 v{l16}, s[{sE}:{sE+3}], s{sB} offen lds
    v_lshlrev_b32 v{t1}, 2, v{t1}
    s_waitcnt lgkmcnt(0)
    s_barrier
    """)
    stamp("srt", 4)
    no = 0 if YM else (M0 + 255) // 256
    a(f"ds_read_b128 {v(D,4)}, v{t16} offset:{S_SRT}\nds_read_b128 {v(D+4,4)}, v{t16} offset:{S_SRT+M0*4}")
    for r in range(no): a(f"ds_read_b32 v{SG+r}, v{t1} offset:{S_SRT+1024*r}")
    edma(2)
    a(f"""
    s_mul_i32 s{sA}, s2, {RCS}
    s_add_u32 s{sB}, s{sA}, 8192
    v_and_b32 v{t2}, 1, v0
    v_lshlrev_b32 v{t2}, 4, v{t2}
    s_waitcnt lgkmcnt({no})
    buffer_store_dwordx4 {v(D,4)}, v{rA}, s[{sWS}:{sWS+3}], s{sA} offen sc1
    buffer_store_dwordx4 {v(D+4,4)}, v{rB}, s[{sWS}:{sWS+3}], s{sB} offen sc1
    s_movk_i32 s{sB}, {(M0 - 256*(no-1))*2}
    v_cmp_gt_u32 vcc, s{sB}, v0
    v_mov_b32 v{t4}, v{t16}
    v_and_b32 v{m}, 31, v{lane}
    v_lshrrev_b32 v{h}, 5, v{lane}
    v_cndmask_b32 v{t6}, v{hz}, v{t16}, vcc
    v_lshlrev_b32 v{t0}, 3, v0
    v_add_u32 v{t0}, {L_C8}, v{t0}
    v_mov_b32 v{D+8}, 0
    v_mov_b32 v{D+9}, 0
    ds_write_b64 v{t0}, {v(D+8,2)}
    v_bfe_u32 v{t1}, v{lane}, 2, 2
    v_lshl_add_u32 v{t1}, v{h}, 3, v{t1}
    v_lshlrev_b32 v{t1}, 7, v{t1}
    v_and_b32 v{t3}, 3, v{lane}
    v_lshl_add_u32 v{aN}, v{t3}, 3, v{t1}
    v_and_b32 v{t3}, 16, v{lane}
    v_lshl_add_u32 v{aN}, v{t3}, 1, v{aN}
    v_add_u32 v{t1}, v{t1}, v{t3}
    v_and_b32 v{t3}, 1, v{lane}
    v_lshl_add_u32 v{t1}, v{t3}, 5, v{t1}
    v_and_b32 v{t3}, 2, v{lane}
    v_lshl_add_u32 v{t1}, v{t3}, 2, v{t1}
    s_lshl_b32 s{sA}, s{sSB}, 6
    v_add_u32 v{sa}, s{sA}, v{t1}
    v_bfe_u32 v{sac}, v{m}, 1, 3
    v_xor_b32 v{sac}, v{sac}, v{h}
    v_lshlrev_b32 v{sac}, 4, v{sac}
    v_and_b32 v{t3}, 15, v{m}
    v_lshl_or_b32 v{sac}, v{t3}, 7, v{sac}
    v_lshrrev_b32 v{t3}, 4, v{m}
    v_mul_u32_u24 v{t3}, {XRS}, v{t3}
    s_and_b32 s{sA}, s{sW}, 6
    s_mul_i32 s{sA}, s{sA}, {XRS}
    s_add_u32 s{sA}, s{sA}, {L_XR + XRO}
    v_add3_u32 v{sac}, v{sac}, v{t3}, s{sA}
    s_waitcnt lgkmcnt(1)
    """)
    for r in range(no):
        a(f"v_lshrrev_b32 v{SG+r}, 21, v{SG+r}\nv_lshl_add_u32 v{SG+r}, v{SG+r}, 5, v{t2}")
    srd_off(a, sEM, 10, WS_EM, 0 if "nomv" in OPT["abl"] else 256 * 131072)
    OG = E + 12
    a(f"""
    s_lshl_b32 s{sOA}, s74, 5
    s_lshl_b32 s{sA}, s{sSB}, 4
    s_add_u32 s{sOA}, s{sOA}, s{sA}
    s_lshr_b32 s{sA}, s{sW}, 1
    s_mul_i32 s{sA}, s{sA}, {64*OTS}
    s_add_u32 s{sOA}, s{sOA}, s{sA}
    s_add_u32 s{sOA}, s{sOA}, {WS_O}
    v_mul_u32_u24 v{lh}, {OTS}, v{lane}
    s_mov_b32 s74, {f32(-LOG2E)}
    s_mov_b32 s75, {f32(-LOG2E)}
    s_waitcnt vmcnt(2) lgkmcnt(0)
    s_barrier
    """)
    stamp("srt", 5); stamp("top", 1)
    XF, W1t, Wx, PD, EO = FX, AG, EP, AG + 16, Q
    def tr(dst, areg, off):
        a(f"ds_read_b64_tr_b16 {v(dst,2)}, v{areg} offset:{S_W+off}\nds_read_b64_tr_b16 {v(dst+2,2)}, v{areg} offset:{S_W+off+512}")
    def w2read():
        for sx in range(4):
            for nh in range(2): tr(AG + (2*sx + nh)*4, aN, 8192 + 2048*sx + 64*nh)
    for r in range(no): a(f"ds_read_b128 {v(EO+4*r,4)}, v{SG+r} offset:{S_E}")
    for sx in range(4):
        a(f"ds_read_b128 {v(XF+4*sx,4)}, v{sac}" + (f"\nv_xor_b32 v{sac}, {(32, 96, 32)[sx]}, v{sac}" if sx < 3 else ""))
        tr(W1t + 4*sx, sa, 2048*sx)
    CEM = int(OPT["cem"])
    a(f"s_mul_i32 s{sA}, s2, {EMS}" if CEM else f"s_lshl_b32 s{sA}, s2, 17")
    for r in range(no):
        a(f"s_waitcnt lgkmcnt({min(15, no-1-r+12)})\nbuffer_store_dwordx4 {v(EO+4*r,4)}, v{t6 if r == no-1 else t4}, s[{sEM}:{sEM+3}], s{sA} offen sc1\ns_add_u32 s{sA}, s{sA}, 8192")
    a("s_waitcnt lgkmcnt(0)")
    for sx in range(4):
        a(f"v_mfma_f32_32x32x16_bf16 {v(PD,16)}, {v(W1t+4*sx,4)}, {v(XF+4*sx,4)}, {'0' if sx == 0 else v(PD,16)}")
    a(f"""
    v_mul_u32_u24 v{t0}, 80, v{m}
    v_lshl_add_u32 v{t0}, v{h}, 5, v{t0}
    v_add_u32 v{t0}, s{sGL}, v{t0}
    v_lshrrev_b32 v{t1}, 2, v{lane}
    v_and_b32 v{t2}, 0x30, v{l16}
    v_mul_u32_u24 v{t3}, 80, v{t1}
    v_add3_u32 v{t3}, v{t3}, v{t2}, s{sGL}
    s_lshr_b32 s{sA}, s{sW}, 1
    s_lshl_b32 s{sA}, s{sA}, 5
    v_add_u32 v{t1}, s{sA}, v{t1}
    v_add_u32 v{t5}, 16, v{t1}
    v_cmp_gt_u32 vcc, s{sNB}, v{t1}
    v_cmp_gt_u32 s[52:53], s{sNB}, v{t5}
    v_lshl_add_u32 v{t1}, v{t1}, 7, v{t2}
    v_lshl_add_u32 v{t5}, v{t5}, 7, v{t2}
    v_cndmask_b32 v{t1}, v{hz}, v{t1}, vcc
    v_cndmask_b32 v{t5}, v{hz}, v{t5}, s[52:53]
    s_lshl_b32 s{sA}, s{sSB}, 6
    s_add_u32 s{sA}, s{sA}, s{sS0}
    s_add_u32 s{sA}, s{sA}, {WS_P}
    """)
    for i in range(8): a(f"v_pk_mul_f32 {v(PD+2*i,2)}, {v(PD+2*i,2)}, s[74:75]")
    for i in range(8): a(f"v_cvt_pk_bf16_f32 v{PD+i}, v{PD+2*i}, v{PD+2*i+1}")
    a(f"""
    ds_write_b128 v{t0}, {v(PD,4)}
    ds_write_b128 v{t0}, {v(PD+4,4)} offset:16
    ds_read_b128 {v(D,4)}, v{t3}
    ds_read_b128 {v(D+4,4)}, v{t3} offset:{16*80}
    s_mov_b32 s{sCAP}, 512
    s_mov_b32 s{sBASE}, 0
    s_waitcnt lgkmcnt(1)
    buffer_store_dwordx4 {v(D,4)}, v{t1}, s[{sWS}:{sWS+3}], s{sA} offen sc1
    s_waitcnt lgkmcnt(0)
    buffer_store_dwordx4 {v(D+4,4)}, v{t5}, s[{sWS}:{sWS+3}], s{sA} offen sc1
    s_mov_b32 s92, 1
    s_lshl_b32 s{sN}, s2, {int(OPT["fst"])}
    s_add_u32 s{sN}, s{sN}, {WS_F2}
    """)
    stamp("srt", 6); stamp("syn", 1)
    FST = int(OPT["fst"])
    f2r = E + 9
    a(f"""
    s_cmp_lg_u32 s{sW}, 0
    s_waitcnt vmcnt(0)
    s_barrier
    s_cbranch_scc1 M_NOPUB
    s_mov_b64 exec, 1
    buffer_store_dwordx2 {v(OTG+2,2)}, v{nta}, s[{sWS}:{sWS+3}], s{sN} offen sc1
    s_mov_b64 exec, -1
    M_NOPUB:
    s_nop 7
    buffer_load_dwordx4 {v(OG,4)}, v{lh}, s[{sWS}:{sWS+3}], s{sOA} offen sc1
    """)
    XE = int(OPT["xe"])
    if XE:
        a(f"""
        s_lshr_b32 s{sA}, s2, 3
        s_lshl_b32 s{sA}, s{sA}, 7
        s_add_u32 s{sA}, s{sA}, {WS_P}
        v_lshl_add_u32 v{t0}, v{lane}, 3, s{sW}
        v_cmpx_gt_u32 vcc, {XE}, v{t0}
        v_lshlrev_b32 v{t0}, 12, v{t0}
        buffer_load_dword v{vCr+4}, v{t0}, s[{sWS}:{sWS+3}], s{sA} offen sc1
        s_mov_b64 exec, -1
        """)
    stamp("syn", 2)
    a(f"s_lshl_b32 s{sB}, s{sSB}, 12\nv_add_u32 v{t2}, s{sB}, v{sa}\nv_subrev_u32 v{t3}, s{sB}, v{sa}")
    for nh in range(2): tr(D + 8 + 4*nh, aN, 128*128 + 64*nh)
    for sx in range(4): tr(Wx + 4*sx, sa, 18432 + 2048*sx)
    a("s_waitcnt lgkmcnt(0)")
    for sx in range(4):
        a(f"v_mfma_f32_32x32x16_bf16 {v(U0,16)}, {v(Wx+4*sx,4)}, {v(XF+4*sx,4)}, {'0' if sx == 0 else v(U0,16)}")
    tr(WU, t2, 18432 + 8192); tr(WU + 4, t2, 18432 + 10240); tr(WU + 8, t3, 18432 + 12288); tr(WU + 12, t3, 18432 + 14336)
    w2read()
    for nh in range(2):
        for i in range(4):
            r = D + 8 + 4*nh + i
            a(f"v_lshlrev_b32 v{t0}, 16, v{r}\nv_and_b32 v{t1}, 0xffff0000, v{r}\nv_pk_mul_f32 {v(t0,2)}, {v(t0,2)}, s[74:75]\nv_cvt_pk_bf16_f32 v{W+8+4*nh+i}, v{t0}, v{t1}")
    srd_off(a, sP, 10, WS_P, 3200000)
    a(f"""
    v_lshlrev_b32 v{t0}, 3, v{h}
    v_sub_u32 v{t0}, v{m}, v{t0}
    v_and_b32 v{t1}, 1, v{t0}
    v_lshlrev_b32 v{t1}, 4, v{t1}
    v_mov_b32 v{t2}, 0x3f80
    v_lshlrev_b32 v{t1}, v{t1}, v{t2}
    v_lshrrev_b32 v{t0}, 1, v{t0}
    """)
    for j in range(2):
        for i in range(4):
            a(f"v_cmp_eq_u32 vcc, {8*j+i}, v{t0}\ns_nop 1\nv_cndmask_b32 v{W+4*j+i}, 0, v{t1}, vcc")
    a(f"""
    s_mul_i32 s{sSTB}, s{sW}, {SCAP*32}
    s_add_u32 s{sSTB}, s{sSTB}, {L_ST}
    s_mov_b32 s{sREC}, s10
    s_or_b32 s{sREC+1}, s11, {4<<16}
    s_mov_b32 s{sREC+2}, {WS_O//4}
    s_mov_b32 s{sREC+3}, 0x20000
    s_sub_u32 s{sE}, s6, {DFLAG*32}
    s_subb_u32 s{sE+1}, s7, 0
    s_or_b32 s{sE+1}, s{sE+1}, {32<<16}
    s_mov_b32 s{sE+2}, {(DFLAG + 800000) * ne}
    s_mov_b32 s{sE+3}, 0x20000
    s_sub_u32 s{sG}, 11, s{sW}
    s_cmp_lt_u32 s{sW}, 4
    s_cselect_b32 s{sG}, s{sW}, s{sG}
    s_mul_i32 s{sXRB}, s{sG}, {XRS}
    s_add_u32 s{sXRB}, s{sXRB}, {L_XR}
    s_mov_b32 s{sM7}, 0xffffff80
    s_mov_b32 s{sB30}, 0x40000000
    s_mov_b32 s{sDF}, {DFLAG}
    v_lshlrev_b32 v{RP+1}, 4, v{h}
    v_lshlrev_b32 v{RP+3}, 4, v{h}
    v_lshlrev_b32 v{RP+5}, 4, v{h}
    v_lshlrev_b32 v{RP+7}, 4, v{h}
    v_lshrrev_b32 v{t0}, 3, v{lane}
    s_lshl_b32 s{sA}, s{sG}, 7
    v_lshl_add_u32 v{vLS}, v{t0}, 4, s{sA}
    v_lshl_add_u32 v{vLE}, v{m}, 2, s{sA}
    v_and_b32 v{t3}, 1, v{t0}
    v_lshlrev_b32 v{t3}, 4, v{t3}
    v_lshl_add_u32 v{sac}, v{lane}, 5, v{t3}
    v_add_u32 v{sac}, s{sSTB}, v{sac}
    v_and_b32 v{t1}, 4, v{t0}
    v_and_b32 v{t2}, 7, v{lane}
    v_xor_b32 v{t1}, v{t1}, v{t2}
    v_lshlrev_b32 v{CX}, 4, v{t1}
    v_xor_b32 v{CX+1}, 16, v{CX}
    v_xor_b32 v{CX+2}, 32, v{CX}
    v_xor_b32 v{CX+3}, 48, v{CX}
    v_and_b32 v{t0}, 3, v{m}
    v_lshrrev_b32 v{t1}, 2, v{m}
    v_lshl_add_u32 v{t1}, v{t0}, 3, v{t1}
    v_lshlrev_b32 v{t1}, 7, v{t1}
    v_add_u32 v{t1}, s{sXRB}, v{t1}
    v_lshrrev_b32 v{t2}, 4, v{m}
    v_lshl_or_b32 v{t0}, v{t2}, 2, v{t0}
    v_xor_b32 v{t0}, v{t0}, v{h}
    v_lshl_add_u32 v{XA}, v{t0}, 4, v{t1}
    v_xor_b32 v{XA+1}, 32, v{XA}
    v_xor_b32 v{XA+2}, 64, v{XA}
    v_xor_b32 v{XA+3}, 0x60, v{XA}
    """)
    stamp("syn", 3)
    a(f"s_mov_b32 s{sA}, 0\ns_waitcnt vmcnt({1 if XE else 0})")
    kk12, c0, c1, g0, g1, p0, p1, tt, qa, f2r, fl0 = [E + i for i in range(11)]
    G, RC, NA, RK = D, D + 8, D + 16, D + 24
    TBv = FX
    OFv, CA = EP, EP + 8
    a(f"""
    s_branch M_POLLC
    M_BATCH:
    v_mul_u32_u24 v{lh}, {OTS}, v{lane}
    s_mov_b32 s{sA}, 0
    M_POLL:
    s_sleep {OPT["osl"]}
    buffer_load_dwordx4 {v(OG,4)}, v{lh}, s[{sWS}:{sWS+3}], s{sOA} offen sc1
    s_add_u32 s{sA}, s{sA}, 1
    s_cmp_gt_u32 s{sA}, {SPIN}
    s_cbranch_scc1 M_END
    s_waitcnt vmcnt(0)
    M_POLLC:
    v_cmpx_ne_u64 vcc, s[{sTAG}:{sTAG+1}], {v(OG+2,2)}
    s_cbranch_execnz M_POLL
    s_mov_b64 exec, -1
    s_lshr_b32 s{sA}, s{sW}, 1
    s_lshl_b32 s{sA}, s{sA}, 6
    v_add_lshl_u32 v{kk12}, v{lane}, s{sA}, 12
    v_lshl_add_u32 v{qa}, v{lane}, 2, s{sGL}
    v_mov_b32 v{t1}, 0xffff
    v_lshrrev_b32 v{lh}, 1, v{lane}
    """)
    stamp("pro", 1); stamp("syn", 4)
    a(f"v_and_b32 v{p0}, v{t1}, v{OG+1}\nv_lshrrev_b32 v{p1}, 16, v{OG+1}")
    fl = [f"v_and_or_b32 v{g0}, v{OG}, v{t1}, v{kk12}", f"v_lshrrev_b32 v{g1}, 16, v{OG}", f"v_or_b32 v{g1}, v{g1}, v{kk12}",
          f"v_and_b32 v{c0}, v{t1}, v{OG+1}", f"v_lshrrev_b32 v{c1}, 16, v{OG+1}", "s_nop 0"]
    for n, stp in enumerate(steps):
        a(f"{fl[n]}\nv_add_u32_dpp v{p0}, v{p0}, v{p0} {stp}\nv_add_u32_dpp v{p1}, v{p1}, v{p1} {stp}")
    a(f"""
    v_readlane_b32 s{sNS}, v{p0}, 63
    v_readlane_b32 s{sN}, v{p1}, 63
    v_sub_u32 v{p0}, v{p0}, v{c0}
    v_sub_u32 v{p1}, v{p1}, v{c1}
    s_add_u32 s{sN}, s{sN}, s{sNS}
    v_add_u32 v{p1}, s{sNS}, v{p1}
    s_mov_b32 s{sCNT}, s{sN}
    s_add_u32 s{sA}, s{sN}, s{sBASE}
    s_cmp_le_u32 s{sA}, s{sCAP}
    s_cbranch_scc0 M_WIN
    s_cmp_eq_u32 s{sBASE}, 0
    s_cbranch_scc1 M_NOWIN
    M_WIN:
    s_sub_i32 s{sCNT}, s{sN}, s{sBASE}
    s_max_i32 s{sCNT}, s{sCNT}, 0
    s_min_u32 s{sCNT}, s{sCNT}, s{sCAP}
    s_sub_i32 s{sNS}, s{sNS}, s{sBASE}
    s_max_i32 s{sNS}, s{sNS}, 0
    """)
    for (pp, cc, gg) in ((p0, c0, g0), (p1, c1, g1)):
        a(f"""
        v_subrev_u32 v{tt}, s{sBASE}, v{pp}
        v_max_i32 v{pp}, 0, v{tt}
        v_add_u32 v{cc}, v{tt}, v{cc}
        v_min_i32 v{cc}, s{sCAP}, v{cc}
        v_sub_u32 v{cc}, v{cc}, v{pp}
        v_sub_u32 v{tt}, v{pp}, v{tt}
        v_add_u32 v{gg}, v{gg}, v{tt}
        """)
    a(f"M_NOWIN:\ns_min_u32 s{sNS}, s{sNS}, {0 if YM else SCAP}")
    pa, ca_, ga, gb = t0, t1, t2, t3
    for n, (pp, cc, gg) in enumerate(((p0, c0, g0), (p1, c1, g1))):
        a(f"""
        v_lshl_add_u32 v{pp}, v{pp}, 2, s{sGL}
        v_add_u32 v{ga}, 1, v{gg}
        v_add_u32 v{gb}, 2, v{gg}
        v_mov_b32 v{ca_}, v{cc}
        v_mov_b32 v{pa}, v{pp}
        M_EXP{n}:
        """)
        for r in (1, 3, 5, 7):
            a(f"v_cmpx_lt_i32 vcc, {r}, v{ca_}\nds_write2_b32 v{pa}, v{ga}, v{gb} offset0:{r} offset1:{r+1}\nv_add_u32 v{ga}, 2, v{ga}\nv_add_u32 v{gb}, 2, v{gb}")
        a(f"""
        v_cmpx_lt_i32 vcc, 9, v{ca_}
        v_add_u32 v{pa}, 32, v{pa}
        v_subrev_u32 v{ca_}, 8, v{ca_}
        s_cbranch_execnz M_EXP{n}
        s_mov_b64 exec, -1
        """)
    a(f"""
    v_cmpx_lt_i32 vcc, 0, v{c0}
    ds_write_b32 v{p0}, v{g0}
    s_mov_b64 exec, -1
    v_cmpx_lt_i32 vcc, 0, v{c1}
    ds_write_b32 v{p1}, v{g1}
    s_mov_b64 exec, -1
    """)
    for i in ORD:
        a(f"ds_read_b32 v{G+i}, v{qa} offset:{256*i}")
    a(f"v_lshl_add_u32 v{t1}, v{lh}, 2, s{sGL}")
    for j in range(7):
        a(f"ds_read_b32 v{SG+j}, v{t1} offset:{128*j}")
    for i in ORD:
        a(f"s_sub_i32 s{sA}, s{sCNT}, {64*i}\nv_cmp_gt_i32 {mk(i)}, s{sA}, v{lane}")
    a(f"""
    v_lshrrev_b32 v{t2}, 4, v{lane}
    v_xor_b32 v{t2}, v{t2}, v{lane}
    v_and_b32 v{t2}, 1, v{t2}
    v_lshlrev_b32 v{t2}, 4, v{t2}
    v_mov_b32 v{fl0}, s{sCNT}
    v_mov_b32 v{fl0+1}, s{sN}
    s_waitcnt lgkmcnt(0)
    """)
    if CEM: a(f"s_mov_b32 s{sA}, {EMS//32-4096}")
    for j in range(7):
        if CEM: a(f"v_lshrrev_b32 v{t3}, 12, v{SG+j}\nv_mad_i32_i24 v{SG+j}, v{t3}, s{sA}, v{SG+j}")
        a(f"v_lshl_add_u32 v{SG+j}, v{SG+j}, 5, v{t2}")
    for i in range(8): a(f"v_lshrrev_b32 v{t3}, 12, v{G+i}\nv_mad_u32_u24 v{RC+i}, v{t3}, {SKW//4}, v{G+i}")
    stamp("pro", 2); stamp("syn", 5)
    a(f"""
    s_cmp_eq_u32 s92, 0
    s_cbranch_scc1 M_READY
    s_mov_b32 s92, 0
    """)
    a(f"""
    s_lshr_b32 s{sB}, s{sW}, 1
    s_lshl_b32 s{sB}, s{sB}, {FST+6}
    s_add_u32 s{sB}, s{sB}, {WS_F2}
    v_lshlrev_b32 v{f2r}, {FST}, v{lane}
    s_mov_b32 s{sA}, 0
    s_branch M_FL1
    M_FL:
    s_sleep {OPT["osl"]}
    M_FL1:
    buffer_load_dwordx2 {v(OG,2)}, v{f2r}, s[{sWS}:{sWS+3}], s{sB} offen sc1
    s_add_u32 s{sA}, s{sA}, 1
    s_cmp_gt_u32 s{sA}, {SPIN}
    s_cbranch_scc1 M_END
    s_waitcnt vmcnt(0)
    v_cmpx_ne_u64 vcc, s[{sTAG}:{sTAG+1}], {v(OG,2)}
    s_cbranch_execnz M_FL
    M_READY:
    """)
    stamp("top", 2); stamp("syn", 6)
    skip("M_GA")
    for i in ORD:
        a(f"s_mov_b64 exec, {mk(i)}\nbuffer_load_dword v{RC+i}, v{RC+i}, s[{sREC}:{sREC+3}], 0 idxen {LD}")
        after("M_GA", i)
    a("s_mov_b64 exec, -1")
    for i in range(4): a(f"v_mov_b32 v{t4+i}, {DUMMY}")
    a(f"v_lshlrev_b32 v{t0}, 4, v0\nv_lshlrev_b32 v{t1}, 2, v0\ns_waitcnt lgkmcnt(0)\ns_barrier")
    def stage(js):
        for j in ([] if YM else js):
            a(f"""
            s_sub_i32 s{sA}, s{sNS}, {32*j}
            s_add_u32 m0, s{sSTB}, {1024*j}
            v_cmpx_gt_i32 vcc, s{sA}, v{lh}
            buffer_load_dwordx4 v{SG+j}, s[{sEM}:{sEM+3}], 0 offen {LD} lds
            """)
        a("s_mov_b64 exec, -1")
    NS1 = int(OPT["ns1"])
    stage(range(NS1))
    XW = int(OPT["xw"])
    def pwarm():
        if XW:
            a(f"""
            s_lshr_b32 s{sA}, s2, 3
            s_mul_i32 s{sA}, s{sA}, {XW*128}
            s_add_u32 s{sA}, s{sA}, {XE*4096}
            v_lshl_add_u32 v{tt}, v{lane}, 3, s{sW}
            v_cmpx_gt_u32 vcc, {XW}, v{tt}
            v_lshlrev_b32 v{tt}, 7, v{tt}
            buffer_load_dword v{vCr+4}, v{tt}, s[{sP}:{sP+3}], s{sA} offen sc1
            s_mov_b64 exec, -1
            """)
    assert 2 * LSZ == 4 * 8192 + 2048
    for i in range(4): a(f"ds_write_b128 v{t0}, {v(t4,4)} offset:{L_LS+8192*i}")
    a(f"ds_write_b32 v{t1}, v{t4} offset:{L_LS+8192*4}")
    a(f"""
    s_mov_b32 s75, {L_C8}
    s_mov_b64 exec, 1
    ds_add_u32 v{nta}, v{fl0} offset:{L_NT}
    ds_max_u32 v{nta}, v{fl0+1} offset:{L_MX}
    """)
    skip("M_RK")
    for i in ORD:
        a(f"""
        s_mov_b64 exec, {mk(i)}
        s_waitcnt vmcnt({i+NS1})
        v_and_b32 v{NA+i}, 63, v{RC+i}
        v_bfe_u32 v{tt}, v{RC+i}, 18, 3
        v_add_u32 v{NA+i}, s{sSO}, v{NA+i}
        v_lshl_add_u32 v{CA+i}, v{NA+i}, 2, s75
        v_lshl_add_u32 v{CA+i}, v{tt}, 9, v{CA+i}
        ds_add_rtn_u32 v{RK+i}, v{CA+i}, v{one}
        """)
        after("M_RK", i)
    def pack(lab):
        a(f"s_movk_i32 s{sB}, {CH}\ns_mov_b32 s74, {int(OPT['epf'])*128}")
        skip(lab)
        for i in ORD:
            a(f"""
            v_lshrrev_b32 v{t0}, 12, v{G+i}
            v_lshrrev_b32 v{tt}, 21, v{RC+i}
            v_bfe_i32 v{t1}, v{G+i}, 11, 1
            v_mad_u32_u24 v{tt}, v{t0}, s{sB}, v{tt}
            v_and_b32 v{t1}, {M0}, v{t1}
            v_bfe_u32 v{RC+i}, v{RC+i}, 6, 15
            v_add3_u32 v{G+i}, v{t1}, v{tt}, s{sDF}
            v_lshl_add_u32 v{RC+i}, v{RC+i}, 7, v{NA+i}
            v_lshlrev_b32 v{NA+i}, 3, v{NA+i}
            """)
            if i < 4 and not YM:
                a(f"""
                s_sub_i32 s{sA}, s{sNS}, {64*i}
                v_cmp_gt_i32 vcc, s{sA}, v{lane}
                v_add_u32 v{tt}, {2048*i}, v{sac}
                s_nop 0
                v_cndmask_b32 v{G+i}, v{G+i}, v{tt}, vcc
                """)
            if int(OPT["epf"]):
                a(f"s_mov_b64 exec, {mk(i)}\nv_cmpx_gt_u32 vcc, s74, v{RC+i}" + ("" if YM or i >= 4 else f"\nv_cmpx_le_u32 vcc, s{sDF}, v{G+i}") + f"\nbuffer_load_dword v{vCr+4}, v{G+i}, s[{sE}:{sE+3}], 0 idxen\ns_mov_b64 exec, -1")
            after(lab, i)
    a("s_mov_b64 exec, -1")
    stamp("pro", 3)
    a(f"""
    s_cmp_eq_u32 s{sW}, 0
    s_cbranch_scc1 M_PK0
    s_lshl_b32 s{sA}, s{sW}, 8
    s_add_u32 s{sA}, s{sA}, {L_C8 - 256}
    v_lshl_add_u32 v{S4}, v{lane}, 2, s{sA}
    v_mov_b32 v{Q+8}, 0
    s_waitcnt lgkmcnt(0)
    s_barrier
    """)
    stamp("pro", 4)
    a(f"s_cmp_gt_u32 s{sW}, 2\ns_cbranch_scc1 M_NOPFX")
    for j in range(3): a(f"ds_read2st64_b32 {v(Q+2*j,2)}, v{S4} offset0:{4*j} offset1:{4*j+2}")
    a(f"s_waitcnt lgkmcnt(0)\nv_mov_b32 v{Q+9}, v{Q}")
    for j in range(1, 6): a(f"v_add_u32 v{Q+9+j}, v{Q+8+j}, v{Q+j}")
    for j in range(4): a(f"ds_write2st64_b32 v{S4}, v{Q+8+2*j}, v{Q+9+2*j} offset0:{C8O//256+4*j} offset1:{C8O//256+4*j+2}")
    a("M_NOPFX:\ns_setprio 0")
    stage(range(NS1, 7)); pwarm(); pack("M_PB")
    a("s_waitcnt lgkmcnt(0)\ns_barrier\ns_branch M_P4E")
    d0, d1, f0, f1, k0, k1, vL, vR, ks, a4, l0, l1, o0, o1, cn, ci = [Q + i for i in range(16)]
    m0_, B0, m1_, B1 = S4, S4+1, S4+2, S4+3
    a(f"""
    M_PK0:
    s_setprio 3
    v_lshlrev_b32 v{a4}, 3, v{lane}
    v_lshlrev_b32 v{cn}, 2, v{lane}
    v_add_u32 v{cn}, {L_C8}, v{cn}
    v_sub_u32 v{ci}, 31, v{m}
    v_lshlrev_b32 v{ci}, 2, v{ci}
    s_mov_b32 s75, {f32(4194304.0)}
    s_waitcnt lgkmcnt(0)
    s_barrier
    """)
    stamp("pro", 4)
    a(f"ds_read_b32 v{ks}, v{nta} offset:{L_NT}")
    for j in range(7): a(f"ds_read2st64_b32 {v(FX+2*j,2)}, v{cn} offset0:{2*j} offset1:{2*j+1}")
    a(f"""
    s_waitcnt lgkmcnt(4)
    v_readfirstlane_b32 s{sL}, v{ks}
    v_add3_u32 v{d0}, v{FX}, v{FX+2}, v{FX+4}
    v_add3_u32 v{d1}, v{FX+1}, v{FX+3}, v{FX+5}
    s_lshr_b32 s{sL}, s{sL}, 8
    s_add_u32 s{sL}, s{sL}, 2
    s_waitcnt lgkmcnt(0)
    v_add3_u32 v{d0}, v{d0}, v{FX+6}, v{FX+8}
    v_add3_u32 v{d1}, v{d1}, v{FX+7}, v{FX+9}
    v_add3_u32 v{d0}, v{d0}, v{FX+10}, v{FX+12}
    v_add3_u32 v{d1}, v{d1}, v{FX+11}, v{FX+13}
    v_cvt_f32_u32 v{f0}, v{d0}
    v_cvt_f32_u32 v{f1}, v{d1}
    M_LS:
    s_add_u32 s{sL}, s{sL}, 1
    s_cmp_gt_u32 s{sL}, {LMAX}
    s_cbranch_scc1 M_P4W
    v_cvt_f32_u32 v{vL}, s{sL}
    v_rcp_f32 v{vR}, v{vL}
    v_add_f32 v{vL}, -0.5, v{vL}
    v_add_f32 v{k0}, v{f0}, v{vL}
    v_add_f32 v{k1}, v{f1}, v{vL}
    v_mul_f32 v{k0}, v{k0}, v{vR}
    v_mul_f32 v{k1}, v{k1}, v{vR}
    v_cvt_u32_f32 v{k0}, v{k0}
    v_cvt_u32_f32 v{k1}, v{k1}
    v_add_u32 v{ks}, v{k0}, v{k1}
    """)
    fillers = [f"v_cvt_f32_u32 v{l0}, v{k0}", f"v_cvt_f32_u32 v{l1}, v{k1}",
               f"v_rcp_f32 v{m0_}, v{l0}", f"v_rcp_f32 v{m1_}, v{l1}",
               f"v_add_f32 v{l0}, v{l0}, v{f0}", f"v_add_f32 v{l1}, v{l1}, v{f1}",
               f"v_add_f32 v{l0}, -0.5, v{l0}", f"v_add_f32 v{l1}, -0.5, v{l1}",
               f"v_mul_f32 v{l0}, v{l0}, v{m0_}", f"v_mul_f32 v{l1}, v{l1}, v{m1_}",
               f"v_cvt_u32_f32 v{l0}, v{l0}", f"v_cvt_u32_f32 v{l1}, v{l1}"]
    for n, stp in enumerate(steps):
        a(f"{fillers[2*n]}\n{fillers[2*n+1]}\nv_add_u32_dpp v{ks}, v{ks}, v{ks} {stp}")
    a(f"""
    v_lshlrev_b32 v{l0}, 2, v{l0}
    v_readlane_b32 s{sA}, v{ks}, 63
    v_lshlrev_b32 v{l1}, 2, v{l1}
    s_cmp_gt_u32 s{sA}, 256
    s_cbranch_scc1 M_LS
    ds_add_rtn_u32 v{o0}, v{l0}, v{k0} offset:{L_CNT}
    ds_add_rtn_u32 v{o1}, v{l1}, v{k1} offset:{L_CNT}
    ds_read_b32 v{cn}, v{ci} offset:{L_CNT}
    v_mul_f32 v{m0_}, s75, v{m0_}
    v_mul_f32 v{m1_}, s75, v{m1_}
    v_cvt_u32_f32 v{m0_}, v{m0_}
    v_cvt_u32_f32 v{m1_}, v{m1_}
    v_add_u32 v{m0_}, 2, v{m0_}
    v_add_u32 v{m1_}, 2, v{m1_}
    v_lshlrev_b32 v{B0}, 2, v{k0}
    v_lshlrev_b32 v{B1}, 2, v{k1}
    v_sub_u32 v{B0}, 1024, v{B0}
    v_sub_u32 v{B1}, 1024, v{B1}
    v_sub_u32 v{l0}, 124, v{l0}
    v_sub_u32 v{l1}, 124, v{l1}
    s_waitcnt lgkmcnt(0)
    v_mov_b32 v{ks}, v{cn}
    """)
    for stp in steps[:5]:
        a(f"s_nop 1\nv_add_u32_dpp v{ks}, v{ks}, v{ks} {stp}")
    a(f"""
    v_sub_u32 v{ks}, v{ks}, v{cn}
    ds_bpermute_b32 v{d0}, v{l0}, v{ks}
    ds_bpermute_b32 v{d1}, v{l1}, v{ks}
    ds_write_b32 v{ci}, v{ks} offset:{L_BAS}
    s_waitcnt lgkmcnt(1)
    v_add_u32 v{o0}, v{o0}, v{d0}
    v_add_u32 v{o1}, v{o1}, v{d1}
    v_lshl_or_b32 v{m0_}, v{o0}, 24, v{m0_}
    v_lshl_or_b32 v{m1_}, v{o1}, 24, v{m1_}
    ds_write2st64_b64 v{a4}, {v(m0_,2)}, {v(m1_,2)} offset0:0 offset1:1
    M_P4W:
    v_mov_b32 v{ks}, s{sL}
    ds_write_b32 v{nta}, v{ks} offset:{L_MX+4}
    s_waitcnt lgkmcnt(0)
    s_barrier
    """)
    stage(range(NS1, 7)); pwarm(); pack("M_PA")
    u0, nn = Q + 20, Q + 26
    a("M_P4E:")
    stamp("pro", 5)
    a(f"""
    ds_read_b64 {v(u0,2)}, v{nta} offset:{L_MX}
    v_lshlrev_b32 v{tt}, 2, v{m}
    ds_read_b32 v{u0+2}, v{tt} offset:{L_CNT}
    ds_read_b32 v{u0+3}, v{tt} offset:{L_BAS}
    s_lshr_b32 s{sA}, s{sW}, 1
    s_lshl_b32 s{sA}, s{sA}, 5
    v_add_u32 v{nn}, s{sA}, v{m}
    v_lshlrev_b32 v{tt}, 3, v{nn}
    ds_read_b64 {v(u0+4,2)}, v{tt} offset:{L_TB}
    """)
    skip("M_TR")
    for i in ORD:
        a(f"s_mov_b64 exec, {mk(i)}\nds_read_b64 {v(TBv+2*i,2)}, v{NA+i} offset:{L_TB}\nds_read_b32 v{OFv+i}, v{CA+i} offset:{C8O}")
        after("M_TR", i)
    a(f"""
    s_mov_b64 exec, -1
    s_lshl_b32 s{sA}, s{sG}, 5
    s_waitcnt lgkmcnt(12)
    v_readfirstlane_b32 s{sNMAX}, v{u0}
    v_readfirstlane_b32 s{sL}, v{u0+1}
    v_add_u32 v{u0+2}, v{u0+2}, v{u0+3}
    v_cmp_ge_u32 vcc, s{sA}, v{u0+3}
    v_cmp_lt_u32 s[52:53], s{sA}, v{u0+2}
    s_and_b64 s[52:53], s[52:53], vcc
    s_ff1_i32_b32 s{sT}, s52
    s_max_i32 s{sT}, s{sT}, 0
    s_cmp_le_u32 s{sL}, {LMAX}
    s_cbranch_scc1 M_P5
    s_mov_b32 s{sCAP}, 256
    s_branch M_AGAIN
    M_P5:
    """)
    skip("M_SC")
    for i in ORD:
        mm, BB = TBv + 2*i, TBv + 2*i + 1
        a(f"""
        s_mov_b64 exec, {mk(i)}
        s_waitcnt lgkmcnt({2*i + max(0, 5-i)})
        v_add_u32 v{RK+i}, v{RK+i}, v{OFv+i}
        v_lshrrev_b32 v{tt}, 24, v{mm}
        v_mul_u32_u24 v{mm}, v{mm}, v{RK+i}
        v_add_lshl_u32 v{tt}, v{tt}, v{RK+i}, 2
        v_lshrrev_b32 v{mm}, 22, v{mm}
        v_mad_u32_u24 v{tt}, v{mm}, v{BB}, v{tt}
        ds_write2st64_b32 v{tt}, v{RC+i}, v{G+i} offset0:{L_LS//256} offset1:{L_LE//256}
        """)
        after("M_SC", i)
    ca0, ca1, ca2, ca3, kk, oa, fa, da = [EP + i for i in range(8)]
    epi_setup = f"""
    s_lshl_b32 s{sA}, s{sSB}, 7
    s_add_u32 s{sA}, s{sA}, {L_XR}
    s_movk_i32 s{sB}, 0x3fc
    s_movk_i32 s75, 0x3f8
    v_mov_b32 v{kk}, v{u0+5}
    v_lshrrev_b32 v{ca0}, 24, v{u0+4}
    v_mul_u32_u24 v{ca0}, 272, v{ca0}
    v_lshl_add_u32 v{ca0}, v{h16}, 1, v{ca0}
    v_add_u32 v{ca0}, s{sA}, v{ca0}
    v_mov_b32 v{da}, {L_ZR}
    v_cmp_gt_u32 s[56:57], s{sB}, v{kk}
    v_cmp_gt_u32 s[58:59], s75, v{kk}
    v_add_u32 v{ca1}, 272, v{ca0}
    v_add_u32 v{ca2}, 544, v{ca0}
    v_add_u32 v{ca3}, 816, v{ca0}
    v_cmp_gt_u32 vcc, 0x400, v{kk}
    v_cndmask_b32 v{ca1}, v{da}, v{ca1}, s[56:57]
    v_cndmask_b32 v{ca2}, v{da}, v{ca2}, s[58:59]
    v_cndmask_b32 v{ca0}, v{da}, v{ca0}, vcc
    v_cmp_gt_u32 vcc, s{sNB}, v{nn}
    v_lshlrev_b32 v{oa}, 7, v{nn}
    v_lshl_add_u32 v{oa}, v{h16}, 1, v{oa}
    s_lshl_b32 s{sA}, s{sW}, 11
    v_cndmask_b32 v{oa}, v{hz}, v{oa}, vcc
    v_add_u32 v{fa}, s{sA}, v{l16}
    v_mul_u32_u24 v{da}, 272, v{m}
    v_add3_u32 v{da}, v{da}, v{h16}, s{sXRB}
    """
    a(f"""
    s_mov_b64 exec, -1
    s_setprio 0
    """)
    a("s_waitcnt lgkmcnt(0)\ns_barrier")
    stamp("top", 3); stamp("pro", 6); stamp("pri", 1)
    a(f"s_cmp_lg_u32 s{sT}, 0\ns_cbranch_scc1 M_GO")
    a(epi_setup)
    a("s_waitcnt vmcnt(0)\ns_barrier\ns_branch M_BEND\nM_GO:")
    S = []
    ef = OPT["eflags"]
    def le_read(t, p): return (f"ds_read_b32 v{RP+2*p}, v{vLE} offset:{L_LE+1024*t}", f"le{t}")
    def ls_read(t, dst): return (f"ds_read_b128 {v(dst,4)}, v{vLS} offset:{L_LS+1024*t}", f"ls{t}")
    def st_addr(p): return f"v_xor_b32 v{sa}, v{RP+2*p}, v{h16}"
    def st_read(t): return (f"ds_read_b128 {Es(t)}, v{sa}", f"st{t}")
    def d_pre(t, p): return [f"v_cmp_le_u32 vcc, s{sDF}, v{RP+2*p}", f"v_and_or_b32 v{vCr+t%5}, v{RP+2*p}, s{sB30}, 1.0"]
    def d_load(t, p): return ["s_mov_b64 exec, vcc", (f"buffer_load_dwordx4 {Es(t)}, {v(RP+2*p,2)}, s[{sE}:{sE+3}], 0 idxen offen {ef}", f"D{t}"), "s_mov_b64 exec, -1"]
    def x_addr(src): return [f"v_and_or_b32 v{S4+i}, v{src+i}, s{sM7}, v{CX+i}" for i in range(4)]
    def x_dma(t, nop=True, reg=None, soff="0", tag=None):
        o = []
        for i in range(4):
            sr = sP
            o += [f"s_add_u32 m0, s{sXRB}, {(t&1)*4096+i*1024}"] + (["s_nop 0"] if nop else []) + \
                 [(f"buffer_load_dwordx4 v{(reg or S4)+i}, s[{sr}:{sr+3}], {soff} offen {LD} lds", tag or f"X{t}")]
        return o
    def fx_read(t, sx, tag=None): return (f"ds_read_b128 {v(FX+4*sx,4)}, v{XA+sx} offset:{(t&1)*4096}", tag or f"fx{t}")
    def chain(nh, t):
        Dh = v(D + 16 * nh, 16)
        return [f"v_mfma_f32_32x32x16_bf16 {Dh}, {W3f(nh)}, {Es(t)}, {v(Q+16*nh,16)}"] + \
               [f"v_mfma_f32_32x32x16_bf16 {Dh}, {Idf(j)}, {v(FX+8*nh+4*j,4)}, {Dh}" for j in range(2)]
    nd, L1, L2 = D, D + 4, SG
    def ps(i): return [f"s_memrealtime s[{76+2*i}:{77+2*i}]", "s_waitcnt lgkmcnt(0)"] if MODE == "pri" else []
    S += [ls_read(0, S4), (f"ds_read_b32 v{nd}, v{vLE} offset:{L_LS}", "nd")] + [le_read(j, j) for j in range(4)] + [ls_read(1, L1), ls_read(2, L2), ("@W", None, "nd")]
    S += x_addr(S4)
    xa_ = [f"v_bfe_u32 v{nd+1}, v{nd}, 4, 3", f"v_mul_u32_u24 v{nd+1}, {XRS}, v{nd+1}", f"v_bfe_u32 v{nd+2}, v{nd}, 1, 3", f"v_xor_b32 v{nd+2}, v{nd+2}, v{h}"]
    dm = x_dma(0, nop=False)
    for i in range(4): S += [dm[2*i], xa_[i], dm[2*i+1]]
    S += [f"v_and_b32 v{nd}, 15, v{nd}", f"v_lshl_add_u32 v{nd+1}, v{nd}, 7, v{nd+1}", f"v_lshl_add_u32 v{nd+1}, v{nd+2}, 4, v{nd+1}", f"v_add_u32 v{nd+1}, {L_XR+XRO}, v{nd+1}"]
    for sx in range(4):
        S += [(f"ds_read_b128 {v(FX+4*sx,4)}, v{nd+1}", "xd")] + ([f"v_xor_b32 v{nd+1}, {(32, 96, 32)[sx]}, v{nd+1}"] if sx < 3 else [])
    def dl(j): return d_pre(j, j) + [f"s_not_b64 s[{60+2*j}:{61+2*j}], vcc"] + d_load(j, j)
    S += [("@W", None, "ls2")] + dl(0) + ps(2)
    ep = [l.strip() for l in epi_setup.strip().split("\n")]
    S += ep + x_addr(L1) + [("@W", None, "xd")]
    for nh in range(2):
        for sx in range(4):
            S.append(f"v_mfma_f32_32x32x16_bf16 {v(Q+16*nh,16)}, {v(AG+(sx*2+nh)*4,4)}, {v(FX+4*sx,4)}, {'0' if sx == 0 else v(Q+16*nh,16)}")
    S += ["s_waitcnt vmcnt(5)"] + ps(3) + ["s_barrier"] + ps(4)
    S += [st_addr(0), "s_mov_b64 exec, s[60:61]", st_read(0), "s_mov_b64 exec, -1"]
    for j in range(1, 4): S += [st_addr(j), st_read(j)]
    S += [f"s_mov_b32 s74, {f32(-LOG2E)}", f"s_mov_b32 s75, {f32(-LOG2E)}"]
    S += [("@W", "D0", None)] + ps(5) + [fx_read(0, sx) for sx in range(4)]
    S += [f"v_pk_mul_f32 {v(Q+2*i,2)}, {v(Q+2*i,2)}, s[74:75]" for i in range(16)] + [("@W", None, "fx0")]
    S += chain(0, 0) + d_pre(1, 1) + d_load(1, 1) + x_dma(1) + [f"v_and_or_b32 v{L2+i}, v{L2+i}, s{sM7}, v{CX+i}" for i in range(4)] + ps(6)
    if MODE: S += [f"s_mov_b32 s90, s{sT}", f"s_mov_b32 s98, s{sL}", "s_memtime s[94:95]", "s_waitcnt lgkmcnt(0)"]
    if MODE == "top": S += ["s_memrealtime s[84:85]", "s_waitcnt lgkmcnt(0)"]
    def phase(nh, t, mf, fill):
        Db, Ab = D + 16*nh, AG + 16*nh
        c = vCr + t % 5
        cp = f"{v(c & ~1, 2)} " + ("op_sel_hi:[1,0]" if c % 2 == 0 else "op_sel:[0,1] op_sel_hi:[1,1]")
        seq = []
        mf = mf + [None] * (3 - len(mf))
        for q in range(2):
            ex = [f"v_exp_f32 v{T+i}, v{Db+8*q+i}" for i in range(8)]
            rc = [f"v_rcp_f32 v{T+i}, v{T+i}" for i in range(8)]
            ad = [f"v_pk_add_f32 {v(T+2*i,2)}, {v(T+2*i,2)}, {cp}" for i in range(4)]
            fm = [f"v_pk_fma_f32 {v(Ab+8*q+2*i,2)}, {v(Db+8*q+2*i,2)}, {v(T+2*i,2)}, {v(Ab+8*q+2*i,2)}" for i in range(4)]
            if t == 0: fm = [f"v_pk_mul_f32 {v(Ab+8*q+2*i,2)}, {v(Db+8*q+2*i,2)}, {v(T+2*i,2)}" for i in range(4)]
            if q == 0: seq += [mf[0]] + ex + ad + [mf[1]] + rc + fm
            else: seq += [mf[2]] + ex + ad + rc + fm
        res = []; n = 0
        for l in seq:
            if l is None: continue
            res.append(l)
            if l.startswith(("v_exp", "v_rcp")):
                res += fill.get(n, []); n += 1
        return res
    for t in range(LMAX):
        fill = {}
        if t + 4 < LMAX:
            fill[0] = [le_read(t + 4, 0)]
            fill[10] = [("@W", None, f"le{t+4}"), st_addr(0)]; fill[11] = [st_read(t + 4)]
        if t + 3 < LMAX: fill[1] = [ls_read(t + 3, S4)]
        if t + 1 < LMAX:
            fill[16] = [("@W", f"X{t+1}", None)]
            for sx in range(4): fill[17+sx] = [fx_read(t + 1, sx)]
        if t + 3 < LMAX:
            xa = x_addr(S4)
            fill[24] = [("@W", None, f"ls{t+3}"), xa[0]]; fill[25] = [xa[1]]; fill[26] = [xa[2]]; fill[27] = [xa[3]]
        if t == 0:
            fill[2] = d_pre(2, 2); fill[3] = d_load(2, 2)
            dm = x_dma(2, nop=False, reg=L2)
            for i, pos in enumerate((4, 5, 6, 7, 12, 13, 14, 15)): fill[pos] = [dm[i]]
            fill[28] = d_pre(3, 3); fill[29] = d_load(3, 3)
        if int(OPT["prio"]) == 1: S.append("s_setprio 1")
        S += phase(0, t, chain(1, t), fill)
        if int(OPT["prio"]) == 1: S.append("s_setprio 0")
        fill = {}
        if t + 1 < LMAX: fill[0] = [("@W", None, f"fx{t+1}")]
        if t + 3 < LMAX:
            dm = x_dma(t + 3, nop=False)
            for i in range(8): fill[1+i] = [dm[i]]
        if t + 4 < LMAX:
            dp = d_pre(t + 4, 0)
            fill[9] = [dp[0]]; fill[12] = d_load(t + 4, 0); fill[13] = [dp[1]]
        fill[31] = [f"s_cmp_eq_u32 s{sT}, {t+1}"]
        S += phase(1, t, chain(0, t + 1) if t + 1 < LMAX else [], fill)
        if t + 1 < LMAX: S.append("s_cbranch_scc1 M_FLUSH")
    emit(resolve(S))
    a("M_FLUSH:")
    stamp("top", 5); stamp("epi", 1)
    if MODE: a("s_memtime s[96:97]\ns_waitcnt lgkmcnt(0)")
    a("s_waitcnt vmcnt(0)")
    for i in range(8):
        a(f"ds_write_b128 v{da}, {v(AG+4*i,4)} offset:{32*i}")
    A0, A1, A2, OWN, PAR = D, D + 16, Q, Q + 16, Q + 24
    a(f"""
    M_BEND:
    v_cmp_gt_u32 vcc, 0x3f4, v{kk}
    s_mov_b32 s74, {f32(-1.0/LOG2E)}
    s_mov_b32 s75, {f32(-1.0/LOG2E)}
    s_waitcnt lgkmcnt(0)
    """)
    stamp("epi", 2)
    a("s_barrier")
    stamp("epi", 3)
    offs = (0, 16, 64, 80)
    for i in range(4):
        for buf, ca in ((A0, ca0), (A1, ca1), (A2, ca2)):
            a(f"ds_read_b128 {v(buf+4*i,4)}, v{ca} offset:{offs[i]}")
    for i in range(4):
        a(f"s_waitcnt lgkmcnt({9-3*i})")
        for j in range(2): a(f"v_pk_add_f32 {v(A0+4*i+2*j,2)}, {v(A0+4*i+2*j,2)}, {v(A1+4*i+2*j,2)}")
        for j in range(2): a(f"v_pk_add_f32 {v(A0+4*i+2*j,2)}, {v(A0+4*i+2*j,2)}, {v(A2+4*i+2*j,2)}")
    a(f"""
    s_cbranch_vccz M_SUMD
    s_movk_i32 s{sA}, 0x3f4
    M_SUML:
    s_mov_b64 exec, vcc
    """)
    for i in range(4):
        a(f"ds_read_b128 {v(A1+4*i,4)}, v{ca3} offset:{offs[i]}")
    a(f"s_sub_u32 s{sA}, s{sA}, 4\nv_add_u32 v{ca3}, 272, v{ca3}\ns_waitcnt lgkmcnt(0)")
    for i in range(8): a(f"v_pk_add_f32 {v(A0+2*i,2)}, {v(A0+2*i,2)}, {v(A1+2*i,2)}")
    a(f"""
    s_mov_b64 exec, -1
    v_cmp_gt_i32 vcc, s{sA}, v{kk}
    s_nop 4
    s_cbranch_vccnz M_SUML
    M_SUMD:
    s_cmp_le_u32 s{sNMAX}, s{sCAP}
    s_cbranch_scc1 M_EPI
    """)
    srd_off(a, 56, 10, WS_SP, 2048 * 4096)
    a(f"""
    s_lshl_b32 s{sA}, s2, 3
    s_add_u32 s{sA}, s{sA}, s{sW}
    s_lshl_b32 s{sA}, s{sA}, 12
    s_cmp_eq_u32 s{sBASE}, 0
    s_cbranch_scc1 M_NOLD
    """)
    for i in range(4):
        a(f"buffer_load_dwordx4 {v(A1+4*i,4)}, v{l16}, s[56:59], s{sA} offen offset:{1024*i} sc0 sc1")
    a("s_waitcnt vmcnt(0)")
    for i in range(8): a(f"v_pk_add_f32 {v(A0+2*i,2)}, {v(A0+2*i,2)}, {v(A1+2*i,2)}")
    a(f"""
    M_NOLD:
    s_add_u32 s{sBASE}, s{sBASE}, s{sCAP}
    s_cmp_ge_u32 s{sBASE}, s{sNMAX}
    s_cbranch_scc1 M_EPI
    """)
    for i in range(4):
        a(f"buffer_store_dwordx4 {v(A0+4*i,4)}, v{l16}, s[56:59], s{sA} offen offset:{1024*i} sc0 sc1")
    a(f"""
    M_AGAIN:
    s_load_dwordx2 s[60:61], s[0:1], 32
    s_waitcnt vmcnt(0) lgkmcnt(0)
    s_barrier
    """)
    srd(a, 56, 60, 18432)
    a(f"""
    s_lshl_b32 s{sA}, s{sW}, 10
    s_add_u32 s{sA}, s{sA}, 8192
    s_add_u32 m0, s{sA}, {S_W}
    v_lshlrev_b32 v{t0}, 2, v0
    buffer_load_dwordx4 v{l16}, s[56:59], s{sA} offen lds
    ds_write_b32 v{t0}, v{nta}
    v_add_u32 v{t0}, {L_C8}, v{t0}
    ds_write_b32 v{t0}, v{nta}
    ds_write_b32 v{t0}, v{nta} offset:2048
    """)
    xrows()
    a("s_waitcnt vmcnt(0)\ns_barrier")
    w2read()
    a(f"""
    s_waitcnt lgkmcnt(0)
    s_barrier
    s_branch M_BATCH
    M_EPI:
    """)
    srd(a, 56, 8, 3200000)
    for i in range(8): a(f"v_pk_mul_f32 {v(A0+2*i,2)}, {v(A0+2*i,2)}, s[74:75]")
    for i in range(8): a(f"v_cvt_pk_bf16_f32 v{OWN+i}, v{A0+2*i}, v{A0+2*i+1}")
    a(f"""
    ds_write_b128 v{fa}, {v(OWN,4)} offset:{L_FE}
    ds_write_b128 v{fa}, {v(OWN+4,4)} offset:{L_FE+1024}
    v_xor_b32 v{fa}, 0x800, v{fa}
    v_mfma_f32_32x32x16_bf16 {v(U0,16)}, {v(WU,4)}, {v(OWN,4)}, {v(U0,16)}
    v_mfma_f32_32x32x16_bf16 {v(U0,16)}, {v(WU+4,4)}, {v(OWN+4,4)}, {v(U0,16)}
    s_lshl_b32 s{sA}, s{sSB}, 6
    s_add_u32 s{sA}, s{sA}, s{sS0}
    s_mov_b32 s74, {f32(-LOG2E)}
    s_mov_b32 s75, {f32(-LOG2E)}
    s_waitcnt lgkmcnt(0)
    s_barrier
    """)
    stamp("epi", 4)
    a(f"""
    ds_read_b128 {v(PAR,4)}, v{fa} offset:{L_FE}
    ds_read_b128 {v(PAR+4,4)}, v{fa} offset:{L_FE+1024}
    s_waitcnt lgkmcnt(1)
    v_mfma_f32_32x32x16_bf16 {v(U0,16)}, {v(WU+8,4)}, {v(PAR,4)}, {v(U0,16)}
    s_waitcnt lgkmcnt(0)
    v_mfma_f32_32x32x16_bf16 {v(U0,16)}, {v(WU+12,4)}, {v(PAR+4,4)}, {v(U0,16)}
    s_nop 11
    """)
    for q in range(2):
        b = 8 * q
        for i in range(4): a(f"v_pk_mul_f32 {v(AG+b+2*i,2)}, {v(U0+b+2*i,2)}, s[74:75]")
        for i in range(8): a(f"v_exp_f32 v{AG+b+i}, v{AG+b+i}")
        for i in range(4): a(f"v_pk_add_f32 {v(AG+b+2*i,2)}, {v(AG+b+2*i,2)}, 1.0 op_sel_hi:[1,0]")
        for i in range(8): a(f"v_rcp_f32 v{AG+b+i}, v{AG+b+i}")
        for i in range(4): a(f"v_pk_mul_f32 {v(AG+b+2*i,2)}, {v(U0+b+2*i,2)}, {v(AG+b+2*i,2)}")
        for i in range(4): a(f"v_cvt_pk_bf16_f32 v{D+4*q+i}, v{AG+b+2*i}, v{AG+b+2*i+1}")
        a(f"buffer_store_dwordx4 {v(D+4*q,4)}, v{oa}, s[56:59], s{sA} offen offset:{16*q}")
    if MODE:
        stamp("epi", 5)
        a("s_waitcnt vmcnt(0)")
        stamp("top", 6); stamp("epi", 6)
        a(f"s_lshl_b32 s74, s2, 3\ns_add_u32 s74, s74, s{sW}\ns_lshl_b32 s74, s74, 6\ns_add_u32 s74, s74, {WS_ST+0x80000}\ns_add_u32 s52, s10, s74\ns_addc_u32 s53, s11, 0\nv_mov_b32 v0, 0")
        for i in range(8):
            a(f"v_mov_b32 v1, s{76+2*i}\nglobal_store_dword v0, v1, s[52:53] offset:{4*i}")
        a("s_sub_u32 s96, s96, s94\nv_mov_b32 v1, s96\nglobal_store_dword v0, v1, s[52:53] offset:32\nv_mov_b32 v1, s98\nglobal_store_dword v0, v1, s[52:53] offset:36")
    a("M_END:\ns_endpgm")
    return R.n

hdr = f"""; MPNN edge-MLP + segment-sum + node update in one launch of 256 co-resident workgroups:
; @launch grid=(256,1,1) block=(512,1,1) lds={MAIN_LDS}
.amdgcn_target "amdgcn-amd-amdhsa--gfx950"
.text
.globl {KN}
.type {KN},@function
"""
nv = gen()
txt = hdr + a.text() + '.section .rodata,"a"\n.p2align 6\n' + kdesc(KN, 256, 102)
open(sys.argv[1], "w").write(txt)
print("vgprs", nv, "lds", MAIN_LDS)
```

```python
import sys, struct
from asmlib import *

OPT = dict(abl="", stamp=False, eflags="", M0=1280, ns1=5, es='2,3,0', osl=4, xw=256, fst=5, cem=1, Y=False, epf=0, skw=256, xe=0, tlb=1, prio=0, ld="sc1")
for arg in sys.argv[2:]:
    k, val = arg.split("=")
    OPT[k] = {"True": True, "False": False}.get(val, val.replace("+", " "))
M0 = int(OPT["M0"])
assert M0 % 32 == 0 and M0 <= 1376 and 3200 - M0 <= 2048
LD = OPT["ld"]
YM = OPT["Y"]
if YM: OPT["es"] = "0,0,0"; OPT["ns1"] = 0
KN = "standalone__mpnn_edge_mlp__graph_kernel"

NCH, CH = 250, 3200
WS_REC, WS_O, WS_F2, WS_ST, WS_P, WS_SP, WS_EM = 0, 0x440000, 0x680000, 0x700000, 0x800000, 0x1000000, 0x2000000
SKW = int(OPT["skw"])
OTS, RCS, EMS = 8192 + SKW, 16384 + SKW, M0 * 32 + SKW
LOG2E = 1.4426950408889634
def f32(x): return "0x%08x" % struct.unpack("<I", struct.pack("<f", x))[0]

a = Asm()
MODE = OPT["stamp"]
def stamp(mode, i):
    if MODE == mode or (MODE and mode == "all"):
        a(f"s_memrealtime s[{76+2*i}:{77+2*i}]\ns_waitcnt lgkmcnt(0)")
def emit(l): a("\n".join(l))

def resolve(stream):
    out = []; vm = []; lg = []
    for it in stream:
        if isinstance(it, tuple) and it[0] == "@W":
            parts = []
            if it[1] is not None:
                idx = max(i for i, t in enumerate(vm) if t == it[1]); n = len(vm) - 1 - idx
                assert n <= 63; parts.append(f"vmcnt({n})")
            if it[2] is not None:
                idx = max(i for i, t in enumerate(lg) if t == it[2]); n = len(lg) - 1 - idx
                parts.append(f"lgkmcnt({min(n, 15)})")
            out.append("s_waitcnt " + " ".join(parts)); continue
        txt, tag = it if isinstance(it, tuple) else (it, None)
        if txt.startswith("buffer_"): vm.append(tag)
        if txt.startswith("ds_"): lg.append(tag)
        out.append(txt)
    return out

LMAX = 17
L_TB = 0
L_CNT = 1024
L_NT = L_CNT + 128
L_MX = L_NT + 16
L_BAS = L_MX + 16
L_F2C = 1408
L_ZR = 1536
L_LS = 2048
LSZ = LMAX * 1024
L_LE = L_LS + LSZ
L_ST = L_LE + LSZ
SCAP = 224
L_XR = L_ST + 8 * SCAP * 32
XRS = 8704
MAIN_LDS = L_XR + 8 * XRS
assert MAIN_LDS <= 163840 and L_XR % 4096 == 0
L_C8 = L_XR + XRS
C8O = XRS
GLO = 6144
XRO = 4096
S_W = L_LS
S_CNT = L_ST
S_STA = S_CNT + 2048
S_SRT = S_STA + 2048
S_E = S_SRT + CH * 4
assert S_E + M0 * 32 <= L_XR + 4096
L_FE = L_LS
DUMMY = 0xC0000000
DFLAG = 1 << 24
SPIN = 200000

def gen():
    R = Regs("v", 1, 256)
    vLS = R.alloc("vLS"); vLE = R.alloc("vLE")
    vCr = R.alloc("vCr", 5)
    RP = R.alloc("RP", 8, 2)
    XA = R.alloc("XA", 4); CX = R.alloc("CX", 4)
    S4 = R.alloc("S4", 4, 4); T = R.alloc("T", 8, 4)
    FX = R.alloc("FX", 16, 4); E = R.alloc("E", 16, 4)
    D = R.alloc("D", 32, 4); Q = R.alloc("Q", 32, 4); AG = R.alloc("AG", 32, 4); W = R.alloc("W", 16, 4)
    U0 = R.alloc("U0", 16, 4); WU = R.alloc("WU", 16, 4); EP = R.alloc("EP", 16, 4)
    SG = R.alloc("SG", 8, 4)
    sa = R.alloc("sa"); lane = R.alloc("lane"); l16 = R.alloc("l16"); m = R.alloc("m"); h = R.alloc("h")
    sac = R.alloc("sac"); lh = R.alloc("lh"); hz = R.alloc("hz"); aN = R.alloc("aN"); one = R.alloc("one"); nta = R.alloc("nta")
    h16 = RP + 1
    def Idf(j): return v(W + 4 * j, 4)
    def W3f(nh): return v(W + 8 + nh * 4, 4)
    def Es(t): return v(E + 4 * (t % 4), 4)
    sX, sE, sREC, sEM, sWS, sP = 16, 20, 24, 28, 32, 36
    sW, sSB, sS0, sSO, sN, sBASE, sCNT, sT, sXRB, sA, sB, sCAP = 40, 41, 42, 43, 44, 45, 46, 47, 48, 49, 50, 51
    sNB, sGL, sNMAX, sG, sL, sM7, sB30, sDF, sNS = 70, 71, 72, 73, 12, 13, 14, 15, 3
    sSTB, sOA, sTAG = 99, 93, 100
    t0, t1, t2, t3, t4, t5, t6, t7 = [T + i for i in range(8)]
    def mk(i): return f"s[{54+2*i}:{55+2*i}]"
    ORD = list(range(7, -1, -1))
    def skip(lab):
        a(f"s_cmp_le_u32 s{sCNT}, 384\ns_cbranch_scc1 {lab}6\ns_cmp_le_u32 s{sCNT}, 448\ns_cbranch_scc1 {lab}7")
    def after(lab, i):
        if i >= 6: a(f"{lab}{i}:")
    ne = 0 if "noe" in OPT["abl"] else 1
    steps = [f"row_shr:{sh} row_mask:0xf bank_mask:0xf bound_ctrl:0" for sh in (1, 2, 4, 8)] + ["row_bcast:15 row_mask:0xa bank_mask:0xf", "row_bcast:31 row_mask:0xc bank_mask:0xf"]

    DS_, SR_, CAD, RNK, PR_ = D, D + 8, D + 16, D + 24, Q
    oA, oB, t16, t4_, idx, rA, rB = [Q + 8 + i for i in range(7)]
    nz = Q + 16
    CS = Q + 20
    NA_, NB_ = M0 // 4, (CH - M0) // 4
    SDW = "dst_sel:DWORD dst_unused:UNUSED_PAD src0_sel:DWORD src1_sel:"
    a(f".p2align 8\n{KN}:")
    a(f"""
    s_cmp_ge_u32 s2, 256
    s_cbranch_scc1 M_END
    s_load_dwordx4 s[56:59], s[0:1], 16
    s_load_dwordx4 s[4:7], s[0:1], 0
    s_load_dwordx4 s[60:63], s[0:1], 32
    s_load_dwordx4 s[8:11], s[0:1], 48
    s_load_dwordx2 s[64:65], s[0:1], 64
    s_memrealtime s[66:67]
    """)
    stamp("all", 0)
    a(f"""
    s_setprio 2
    v_lshlrev_b32 v{t16}, 4, v0
    v_mov_b32 v{hz}, 0x80000000
    v_cmp_gt_u32 vcc, {NA_}, v0
    s_mul_i32 s{sA}, s2, 12800
    s_mov_b64 s[52:53], vcc
    v_cndmask_b32 v{rA}, v{hz}, v{t16}, vcc
    v_cmp_gt_u32 vcc, {NB_}, v0
    s_add_u32 s{sB}, s{sA}, {M0*4}
    s_mov_b64 s[54:55], vcc
    v_cndmask_b32 v{rB}, v{hz}, v{t16}, vcc
    s_mov_b32 s{sE+2}, 3200000
    s_mov_b32 s{sE+3}, 0x20000
    s_mov_b32 s{sEM+2}, 3200000
    s_mov_b32 s{sEM+3}, 0x20000
    v_lshlrev_b32 v{t4_}, 2, v0
    v_mov_b32 v{nta}, 0
    v_lshrrev_b32 v{t0}, 6, v0
    s_waitcnt lgkmcnt(0)
    s_mov_b32 s{sE}, s58
    s_mov_b32 s{sE+1}, s59
    s_mov_b32 s{sEM}, s56
    s_mov_b32 s{sEM+1}, s57
    buffer_load_dwordx4 {v(DS_,4)}, v{rA}, s[{sE}:{sE+3}], s{sA} offen
    buffer_load_dwordx4 {v(DS_+4,4)}, v{rB}, s[{sE}:{sE+3}], s{sB} offen
    buffer_load_dwordx4 {v(SR_,4)}, v{rA}, s[{sEM}:{sEM+3}], s{sA} offen
    buffer_load_dwordx4 {v(SR_+4,4)}, v{rB}, s[{sEM}:{sEM+3}], s{sB} offen
    ds_write_b32 v{t4_}, v{nta} offset:{S_CNT}
    ds_write_b32 v{t4_}, v{nta}
    v_readfirstlane_b32 s{sW}, v{t0}
    s_setprio 0
    """)
    srd(a, sP, 10, 256)
    a(f"""
    s_cmp_lt_u32 s2, {NCH}
    s_cbranch_scc1 S_NOTAG
    s_cmp_lg_u32 s{sW}, 0
    s_cbranch_scc1 S_NOTAG
    s_or_b32 s{sA}, s66, 1
    v_mov_b32 v{nz}, s{sA}
    v_mov_b32 v{nz+1}, s67
    v_mov_b32 v{nz+2}, 0
    v_mov_b32 v{nz+3}, 0
    s_mov_b64 exec, 1
    buffer_atomic_cmpswap_x2 {v(nz,4)}, v{nta}, s[{sP}:{sP+3}], 0 offen sc1
    s_mov_b64 exec, -1
    s_waitcnt vmcnt(0)
    S_NOTAG:
    s_mov_b32 s68, s10
    s_mov_b32 s69, s11
    s_mov_b32 s10, s64
    s_mov_b32 s11, s65
    s_cmp_lt_u32 s2, {NCH}
    s_cselect_b64 s[52:53], s[52:53], 0
    s_cselect_b64 s[54:55], s[54:55], 0
    v_and_b32 v{lane}, 63, v0
    v_lshlrev_b32 v{l16}, 4, v{lane}
    s_mul_i32 s{sL}, s2, {CH*32}
    s_lshl_b32 s{sT}, s{sW}, 10
    """)
    srd(a, sREC, 6, 0 if "nomv" in OPT["abl"] else 25600000)
    a("s_waitcnt lgkmcnt(0)\ns_barrier")
    npiece = 0 if YM else M0 // 32
    nr = (npiece + 7) // 8
    ES = [int(x) for x in OPT["es"].split(",")]
    assert sum(ES) == nr
    EC = [sum(ES[:i]) for i in range(4)]
    def edma(slot):
        for r in range(EC[slot], EC[slot+1]):
            if (r + 1) * 8 > npiece:
                a(f"s_min_u32 s{sT}, s{sT}, {(npiece - 8*r - 1)*1024}")
            a(f"s_add_u32 m0, s{sT}, {S_E + r*8192}\ns_add_u32 s{sA}, s{sT}, {r*8192}\ns_add_u32 s{sA}, s{sA}, s{sL}\nbuffer_load_dwordx4 v{l16}, s[{sREC}:{sREC+3}], s{sA} offen lds")
    srd(a, sX, 4, 3200000)
    srd(a, sWS, 60, 18432)
    srd(a, sP, 62, 16384)
    def xrows():
        a(f"""
        v_lshrrev_b32 v{t0}, 4, v{lane}
        v_xor_b32 v{t0}, v{t0}, v{lane}
        v_and_b32 v{t0}, 7, v{t0}
        v_and_b32 v{t1}, 0x380, v{l16}
        v_lshl_or_b32 v{t0}, v{t0}, 4, v{t1}
        v_xor_b32 v{t1}, 64, v{t0}
        s_add_u32 m0, s{sGL}, {XRO - GLO}
        s_lshl_b32 s{sA}, s{sW}, 11
        s_add_u32 s{sB}, s{sA}, s{sS0}
        buffer_load_dwordx4 v{t0}, s[{sX}:{sX+3}], s{sB} offen lds
        buffer_load_dwordx4 v{t1}, s[{sX}:{sX+3}], s{sB} offen offset:1024 lds
        """)
    a(f"""
    s_and_b32 s74, s2, 7
    s_lshl_b32 s74, s74, 5
    s_lshr_b32 s{sA}, s2, 3
    s_add_u32 s74, s74, s{sA}
    s_lshl_b32 s{sA}, s74, 17
    s_add_u32 s{sA}, s{sA}, 1337
    s_mul_hi_u32 s{sS0}, s{sA}, 3209991
    s_add_u32 s{sA}, s{sA}, 131072
    s_mul_hi_u32 s{sNB}, s{sA}, 3209991
    s_min_u32 s{sNB}, s{sNB}, 25000
    s_sub_u32 s{sNB}, s{sNB}, s{sS0}
    s_and_b32 s{sSB}, s{sW}, 1
    s_lshl_b32 s{sSO}, s74, 1
    s_add_u32 s{sSO}, s{sSO}, s{sSB}
    s_mul_i32 s{sSO}, s{sSO}, 49
    s_sub_u32 s{sSO}, s{sSO}, s{sS0}
    s_sub_u32 s{sSO}, s{sSO}, 9
    s_lshl_b32 s{sS0}, s{sS0}, 7
    s_mul_i32 s{sGL}, s{sW}, {XRS}
    s_add_u32 s{sGL}, s{sGL}, {L_XR + GLO}
    """)
    xrows()
    a(f"""
    s_add_u32 m0, s{sA}, {S_W}
    s_lshl_b32 s{sB}, s{sSB}, 10
    buffer_load_dwordx4 v{l16}, s[{sWS}:{sWS+3}], s{sA} offen lds
    buffer_load_dwordx4 v{l16}, s[{sWS}:{sWS+3}], s{sA} offen offset:1024 lds
    s_add_u32 m0, s{sA}, {S_W + 18432}
    s_add_u32 s{sB}, s{sB}, 16384
    buffer_load_dwordx4 v{l16}, s[{sP}:{sP+3}], s{sA} offen lds
    buffer_load_dwordx4 v{l16}, s[{sP}:{sP+3}], s{sA} offen offset:1024 lds
    s_add_u32 m0, s{sB}, {S_W}
    s_nop 0
    buffer_load_dwordx4 v{l16}, s[{sWS}:{sWS+3}], s{sB} offen lds
    """)
    TLB = int(OPT["tlb"])
    srd(a, sWS, 10, 0x4000000)
    if TLB:
        a(f"""
        v_lshl_add_u32 v{t0}, v{lane}, 3, s{sW}
        v_lshlrev_b32 v{t0}, 20, v{t0}
        buffer_load_dword v{vCr+4}, v{t0}, s[{sWS}:{sWS+3}], 0 offen
        """)
    edma(0)
    a(f"""
    v_mov_b32 v{one}, 1
    v_mov_b32 v{t7}, 0x10000
    v_lshlrev_b32 v{idx}, 23, v0
    v_add_u32 v{idx}, 9, v{idx}
    v_lshlrev_b32 v{t6}, 5, v{lane}
    s_mov_b32 s{sB}, -49
    s_mov_b32 s{sM7}, {1<<21}
    s_mov_b32 s{sB30}, {2<<21}
    s_mov_b32 s{sDF}, {3<<21}
    s_setprio 2
    s_waitcnt vmcnt({EC[1]+9+TLB})
    """)
    stamp("srt", 1)
    for g in range(2):
        for i in range(4*g, 4*g + 4):
            a(f"v_mul_u32_u24 v{PR_+i}, 1338, v{DS_+i}\nv_lshlrev_b32_sdwa v{CAD+i}, 2, v{PR_+i} {SDW}WORD_1")
        a(f"s_mov_b64 exec, {'s[52:53]' if g == 0 else 's[54:55]'}")
        for i in range(4*g, 4*g + 4): a(f"ds_add_rtn_u32 v{RNK+i}, v{CAD+i}, v{one if g == 0 else t7} offset:{S_CNT}")
        a("s_mov_b64 exec, -1")
    def recs(rng):
        o = []
        for i in rng:
            o += [f"v_mad_i32_i16 v{PR_+i}, v{PR_+i}, s{sB}, v{DS_+i} op_sel:[1,0,0,0]", f"v_lshl_add_u32 v{PR_+i}, v{SR_+i}, 6, v{PR_+i}",
                  f"v_add3_u32 v{PR_+i}, v{PR_+i}, v{idx}, {('0', f's{sM7}', f's{sB30}', f's{sDF}')[i%4]}"]
        return o
    a("s_waitcnt lgkmcnt(0)\ns_barrier")
    stamp("srt", 2)
    OTG = S4
    a(f"""
    ds_read_b128 {v(CS,4)}, v{t6} offset:{S_CNT}
    ds_read_b128 {v(CS+4,4)}, v{t6} offset:{S_CNT+16}
    ds_read_b32 v{OTG+1}, v{t4_} offset:{S_CNT}
    s_waitcnt vmcnt({EC[1]+7+TLB})
    """)
    emit(recs(range(4)))
    a("s_waitcnt lgkmcnt(1)")
    for j in range(1, 8): a(f"v_add_u32 v{CS+j}, v{CS+j}, v{CS+j-1}")
    a(f"v_mov_b32 v{CS+8}, v{CS+7}")
    rr = recs(range(4, 8))
    for n, stp in enumerate(steps): a(f"{rr[2*n]}\n{rr[2*n+1]}\nv_add_u32_dpp v{CS+8}, v{CS+8}, v{CS+8} {stp}")
    a(f"v_sub_u32 v{CS+8}, v{CS+8}, v{CS+7}\nv_add_u32 v{CS+8}, {M0<<16}, v{CS+8}")
    for j in range(7, 0, -1): a(f"v_add_u32 v{CS+j}, v{CS+j-1}, v{CS+8}")
    a(f"""
    v_mov_b32 v{CS}, v{CS+8}
    ds_write_b128 v{t6}, {v(CS,4)} offset:{S_STA}
    ds_write_b128 v{t6}, {v(CS+4,4)} offset:{S_STA+16}
    """)
    for i in range(8): a(f"ds_read_b32 v{DS_+i}, v{CAD+i} offset:{S_STA}")
    a(f"ds_read_b32 v{OTG}, v{t4_} offset:{S_STA}")
    edma(1)
    for i in range(8):
        if i % 4 == 0: a(f"s_mov_b64 exec, {'s[52:53]' if i == 0 else 's[54:55]'}")
        a(f"""
        s_waitcnt lgkmcnt(8)
        v_add_u32 v{DS_+i}, v{DS_+i}, v{RNK+i}
        v_lshlrev_b32_sdwa v{DS_+i}, 2, v{DS_+i} {SDW}{'WORD_0' if i < 4 else 'WORD_1'}
        ds_write_b32 v{DS_+i}, v{PR_+i} offset:{S_SRT}
        """)
    a("s_mov_b64 exec, -1")
    stamp("srt", 3)
    a(f"s_load_dwordx2 s[{sTAG}:{sTAG+1}], s[68:69], 0")
    a(f"""
    v_lshrrev_b32 v{t1}, 1, v0
    v_lshlrev_b32 v{t1}, 2, v{t1}
    s_waitcnt lgkmcnt(0)
    s_barrier
    """)
    stamp("srt", 4)
    no = 0 if YM else (M0 + 255) // 256
    a(f"ds_read_b128 {v(D,4)}, v{t16} offset:{S_SRT}\nds_read_b128 {v(D+4,4)}, v{t16} offset:{S_SRT+M0*4}")
    for r in range(no): a(f"ds_read_b32 v{SG+r}, v{t1} offset:{S_SRT+1024*r}")
    edma(2)
    a(f"""
    s_mul_i32 s{sA}, s2, {RCS}
    s_add_u32 s{sB}, s{sA}, 8192
    v_and_b32 v{t2}, 1, v0
    v_lshlrev_b32 v{t2}, 4, v{t2}
    s_waitcnt lgkmcnt({no})
    buffer_store_dwordx4 {v(D,4)}, v{rA}, s[{sWS}:{sWS+3}], s{sA} offen sc1
    buffer_store_dwordx4 {v(D+4,4)}, v{rB}, s[{sWS}:{sWS+3}], s{sB} offen sc1
    s_mul_i32 s{sN}, s2, {OTS}
    s_add_u32 s{sN}, s{sN}, {WS_O}
    s_mov_b32 s{sB}, 0
    s_cmp_lg_u32 s{sTAG}, 0
    s_cbranch_scc1 S_TAGD
    S_TAGL:
    s_sleep 8
    global_load_dwordx2 {v(OTG+2,2)}, v{nta}, s[68:69] sc1
    s_add_u32 s{sB}, s{sB}, 1
    s_cmp_gt_u32 s{sB}, {SPIN}
    s_cbranch_scc1 M_END
    s_waitcnt vmcnt(0)
    v_readfirstlane_b32 s{sTAG}, v{OTG+2}
    v_readfirstlane_b32 s{sTAG+1}, v{OTG+3}
    s_nop 0
    s_cmp_eq_u32 s{sTAG}, 0
    s_cbranch_scc1 S_TAGL
    S_TAGD:
    v_add_u32 v{OTG}, {(2048-M0)<<16}, v{OTG}
    v_mov_b32 v{OTG+2}, s{sTAG}
    v_mov_b32 v{OTG+3}, s{sTAG+1}
    buffer_store_dwordx4 {v(OTG,4)}, v{t16}, s[{sWS}:{sWS+3}], s{sN} offen sc1
    s_movk_i32 s{sB}, {(M0 - 256*(no-1))*2}
    v_cmp_gt_u32 vcc, s{sB}, v0
    v_mov_b32 v{t4}, v{t16}
    v_and_b32 v{m}, 31, v{lane}
    v_lshrrev_b32 v{h}, 5, v{lane}
    v_cndmask_b32 v{t6}, v{hz}, v{t16}, vcc
    v_lshlrev_b32 v{t0}, 3, v0
    v_add_u32 v{t0}, {L_C8}, v{t0}
    v_mov_b32 v{D+8}, 0
    v_mov_b32 v{D+9}, 0
    ds_write_b64 v{t0}, {v(D+8,2)}
    v_bfe_u32 v{t1}, v{lane}, 2, 2
    v_lshl_add_u32 v{t1}, v{h}, 3, v{t1}
    v_lshlrev_b32 v{t1}, 7, v{t1}
    v_and_b32 v{t3}, 3, v{lane}
    v_lshl_add_u32 v{aN}, v{t3}, 3, v{t1}
    v_and_b32 v{t3}, 16, v{lane}
    v_lshl_add_u32 v{aN}, v{t3}, 1, v{aN}
    v_add_u32 v{t1}, v{t1}, v{t3}
    v_and_b32 v{t3}, 1, v{lane}
    v_lshl_add_u32 v{t1}, v{t3}, 5, v{t1}
    v_and_b32 v{t3}, 2, v{lane}
    v_lshl_add_u32 v{t1}, v{t3}, 2, v{t1}
    s_lshl_b32 s{sA}, s{sSB}, 6
    v_add_u32 v{sa}, s{sA}, v{t1}
    v_bfe_u32 v{sac}, v{m}, 1, 3
    v_xor_b32 v{sac}, v{sac}, v{h}
    v_lshlrev_b32 v{sac}, 4, v{sac}
    v_and_b32 v{t3}, 15, v{m}
    v_lshl_or_b32 v{sac}, v{t3}, 7, v{sac}
    v_lshrrev_b32 v{t3}, 4, v{m}
    v_mul_u32_u24 v{t3}, {XRS}, v{t3}
    s_and_b32 s{sA}, s{sW}, 6
    s_mul_i32 s{sA}, s{sA}, {XRS}
    s_add_u32 s{sA}, s{sA}, {L_XR + XRO}
    v_add3_u32 v{sac}, v{sac}, v{t3}, s{sA}
    s_waitcnt lgkmcnt(1)
    """)
    for r in range(no):
        a(f"v_lshrrev_b32 v{SG+r}, 21, v{SG+r}\nv_lshl_add_u32 v{SG+r}, v{SG+r}, 5, v{t2}")
    srd_off(a, sEM, 10, WS_EM, 0 if "nomv" in OPT["abl"] else 256 * 131072)
    OG = E + 12
    a(f"""
    s_lshl_b32 s{sOA}, s74, 5
    s_lshl_b32 s{sA}, s{sSB}, 4
    s_add_u32 s{sOA}, s{sOA}, s{sA}
    s_lshr_b32 s{sA}, s{sW}, 1
    s_mul_i32 s{sA}, s{sA}, {64*OTS}
    s_add_u32 s{sOA}, s{sOA}, s{sA}
    s_add_u32 s{sOA}, s{sOA}, {WS_O}
    v_mul_u32_u24 v{lh}, {OTS}, v{lane}
    s_mov_b32 s74, {f32(-LOG2E)}
    s_mov_b32 s75, {f32(-LOG2E)}
    s_waitcnt vmcnt(3) lgkmcnt(0)
    s_barrier
    """)
    stamp("srt", 5); stamp("top", 1)
    XF, W1t, Wx, PD, EO = FX, AG, EP, AG + 16, Q
    def tr(dst, areg, off):
        a(f"ds_read_b64_tr_b16 {v(dst,2)}, v{areg} offset:{S_W+off}\nds_read_b64_tr_b16 {v(dst+2,2)}, v{areg} offset:{S_W+off+512}")
    def w2read():
        for sx in range(4):
            for nh in range(2): tr(AG + (2*sx + nh)*4, aN, 8192 + 2048*sx + 64*nh)
    for r in range(no): a(f"ds_read_b128 {v(EO+4*r,4)}, v{SG+r} offset:{S_E}")
    for sx in range(4):
        a(f"ds_read_b128 {v(XF+4*sx,4)}, v{sac}" + (f"\nv_xor_b32 v{sac}, {(32, 96, 32)[sx]}, v{sac}" if sx < 3 else ""))
        tr(W1t + 4*sx, sa, 2048*sx)
    CEM = int(OPT["cem"])
    a(f"s_mul_i32 s{sA}, s2, {EMS}" if CEM else f"s_lshl_b32 s{sA}, s2, 17")
    for r in range(no):
        a(f"s_waitcnt lgkmcnt({min(15, no-1-r+12)})\nbuffer_store_dwordx4 {v(EO+4*r,4)}, v{t6 if r == no-1 else t4}, s[{sEM}:{sEM+3}], s{sA} offen sc1\ns_add_u32 s{sA}, s{sA}, 8192")
    a("s_waitcnt lgkmcnt(0)")
    for sx in range(4):
        a(f"v_mfma_f32_32x32x16_bf16 {v(PD,16)}, {v(W1t+4*sx,4)}, {v(XF+4*sx,4)}, {'0' if sx == 0 else v(PD,16)}")
    a(f"""
    v_mul_u32_u24 v{t0}, 80, v{m}
    v_lshl_add_u32 v{t0}, v{h}, 5, v{t0}
    v_add_u32 v{t0}, s{sGL}, v{t0}
    v_lshrrev_b32 v{t1}, 2, v{lane}
    v_and_b32 v{t2}, 0x30, v{l16}
    v_mul_u32_u24 v{t3}, 80, v{t1}
    v_add3_u32 v{t3}, v{t3}, v{t2}, s{sGL}
    s_lshr_b32 s{sA}, s{sW}, 1
    s_lshl_b32 s{sA}, s{sA}, 5
    v_add_u32 v{t1}, s{sA}, v{t1}
    v_add_u32 v{t5}, 16, v{t1}
    v_cmp_gt_u32 vcc, s{sNB}, v{t1}
    v_cmp_gt_u32 s[52:53], s{sNB}, v{t5}
    v_lshl_add_u32 v{t1}, v{t1}, 7, v{t2}
    v_lshl_add_u32 v{t5}, v{t5}, 7, v{t2}
    v_cndmask_b32 v{t1}, v{hz}, v{t1}, vcc
    v_cndmask_b32 v{t5}, v{hz}, v{t5}, s[52:53]
    s_lshl_b32 s{sA}, s{sSB}, 6
    s_add_u32 s{sA}, s{sA}, s{sS0}
    s_add_u32 s{sA}, s{sA}, {WS_P}
    """)
    for i in range(8): a(f"v_pk_mul_f32 {v(PD+2*i,2)}, {v(PD+2*i,2)}, s[74:75]")
    for i in range(8): a(f"v_cvt_pk_bf16_f32 v{PD+i}, v{PD+2*i}, v{PD+2*i+1}")
    a(f"""
    ds_write_b128 v{t0}, {v(PD,4)}
    ds_write_b128 v{t0}, {v(PD+4,4)} offset:16
    ds_read_b128 {v(D,4)}, v{t3}
    ds_read_b128 {v(D+4,4)}, v{t3} offset:{16*80}
    s_mov_b32 s{sCAP}, 512
    s_mov_b32 s{sBASE}, 0
    s_waitcnt lgkmcnt(1)
    buffer_store_dwordx4 {v(D,4)}, v{t1}, s[{sWS}:{sWS+3}], s{sA} offen sc1
    s_waitcnt lgkmcnt(0)
    buffer_store_dwordx4 {v(D+4,4)}, v{t5}, s[{sWS}:{sWS+3}], s{sA} offen sc1
    s_mov_b32 s92, 1
    s_lshl_b32 s{sN}, s2, {int(OPT["fst"])}
    s_add_u32 s{sN}, s{sN}, {WS_F2}
    """)
    stamp("srt", 6); stamp("syn", 1)
    FST = int(OPT["fst"])
    f2r = E + 9
    a(f"""
    s_cmp_lg_u32 s{sW}, 0
    s_waitcnt vmcnt(0)
    s_barrier
    s_cbranch_scc1 M_NOPUB
    s_mov_b64 exec, 1
    buffer_store_dwordx2 {v(OTG+2,2)}, v{nta}, s[{sWS}:{sWS+3}], s{sN} offen sc1
    s_mov_b64 exec, -1
    M_NOPUB:
    s_nop 7
    buffer_load_dwordx4 {v(OG,4)}, v{lh}, s[{sWS}:{sWS+3}], s{sOA} offen sc1
    """)
    XE = int(OPT["xe"])
    if XE:
        a(f"""
        s_lshr_b32 s{sA}, s2, 3
        s_lshl_b32 s{sA}, s{sA}, 7
        s_add_u32 s{sA}, s{sA}, {WS_P}
        v_lshl_add_u32 v{t0}, v{lane}, 3, s{sW}
        v_cmpx_gt_u32 vcc, {XE}, v{t0}
        v_lshlrev_b32 v{t0}, 12, v{t0}
        buffer_load_dword v{vCr+4}, v{t0}, s[{sWS}:{sWS+3}], s{sA} offen sc1
        s_mov_b64 exec, -1
        """)
    stamp("syn", 2)
    a(f"s_lshl_b32 s{sB}, s{sSB}, 12\nv_add_u32 v{t2}, s{sB}, v{sa}\nv_subrev_u32 v{t3}, s{sB}, v{sa}")
    for nh in range(2): tr(D + 8 + 4*nh, aN, 128*128 + 64*nh)
    for sx in range(4): tr(Wx + 4*sx, sa, 18432 + 2048*sx)
    a("s_waitcnt lgkmcnt(0)")
    for sx in range(4):
        a(f"v_mfma_f32_32x32x16_bf16 {v(U0,16)}, {v(Wx+4*sx,4)}, {v(XF+4*sx,4)}, {'0' if sx == 0 else v(U0,16)}")
    tr(WU, t2, 18432 + 8192); tr(WU + 4, t2, 18432 + 10240); tr(WU + 8, t3, 18432 + 12288); tr(WU + 12, t3, 18432 + 14336)
    w2read()
    for nh in range(2):
        for i in range(4):
            r = D + 8 + 4*nh + i
            a(f"v_lshlrev_b32 v{t0}, 16, v{r}\nv_and_b32 v{t1}, 0xffff0000, v{r}\nv_pk_mul_f32 {v(t0,2)}, {v(t0,2)}, s[74:75]\nv_cvt_pk_bf16_f32 v{W+8+4*nh+i}, v{t0}, v{t1}")
    srd_off(a, sP, 10, WS_P, 3200000)
    a(f"""
    v_lshlrev_b32 v{t0}, 3, v{h}
    v_sub_u32 v{t0}, v{m}, v{t0}
    v_and_b32 v{t1}, 1, v{t0}
    v_lshlrev_b32 v{t1}, 4, v{t1}
    v_mov_b32 v{t2}, 0x3f80
    v_lshlrev_b32 v{t1}, v{t1}, v{t2}
    v_lshrrev_b32 v{t0}, 1, v{t0}
    """)
    for j in range(2):
        for i in range(4):
            a(f"v_cmp_eq_u32 vcc, {8*j+i}, v{t0}\ns_nop 1\nv_cndmask_b32 v{W+4*j+i}, 0, v{t1}, vcc")
    a(f"""
    s_mul_i32 s{sSTB}, s{sW}, {SCAP*32}
    s_add_u32 s{sSTB}, s{sSTB}, {L_ST}
    s_mov_b32 s{sREC}, s10
    s_or_b32 s{sREC+1}, s11, {4<<16}
    s_mov_b32 s{sREC+2}, {WS_O//4}
    s_mov_b32 s{sREC+3}, 0x20000
    s_sub_u32 s{sE}, s6, {DFLAG*32}
    s_subb_u32 s{sE+1}, s7, 0
    s_or_b32 s{sE+1}, s{sE+1}, {32<<16}
    s_mov_b32 s{sE+2}, {(DFLAG + 800000) * ne}
    s_mov_b32 s{sE+3}, 0x20000
    s_sub_u32 s{sG}, 11, s{sW}
    s_cmp_lt_u32 s{sW}, 4
    s_cselect_b32 s{sG}, s{sW}, s{sG}
    s_mul_i32 s{sXRB}, s{sG}, {XRS}
    s_add_u32 s{sXRB}, s{sXRB}, {L_XR}
    s_mov_b32 s{sM7}, 0xffffff80
    s_mov_b32 s{sB30}, 0x40000000
    s_mov_b32 s{sDF}, {DFLAG}
    v_lshlrev_b32 v{RP+1}, 4, v{h}
    v_lshlrev_b32 v{RP+3}, 4, v{h}
    v_lshlrev_b32 v{RP+5}, 4, v{h}
    v_lshlrev_b32 v{RP+7}, 4, v{h}
    v_lshrrev_b32 v{t0}, 3, v{lane}
    s_lshl_b32 s{sA}, s{sG}, 7
    v_lshl_add_u32 v{vLS}, v{t0}, 4, s{sA}
    v_lshl_add_u32 v{vLE}, v{m}, 2, s{sA}
    v_and_b32 v{t3}, 1, v{t0}
    v_lshlrev_b32 v{t3}, 4, v{t3}
    v_lshl_add_u32 v{sac}, v{lane}, 5, v{t3}
    v_add_u32 v{sac}, s{sSTB}, v{sac}
    v_and_b32 v{t1}, 4, v{t0}
    v_and_b32 v{t2}, 7, v{lane}
    v_xor_b32 v{t1}, v{t1}, v{t2}
    v_lshlrev_b32 v{CX}, 4, v{t1}
    v_xor_b32 v{CX+1}, 16, v{CX}
    v_xor_b32 v{CX+2}, 32, v{CX}
    v_xor_b32 v{CX+3}, 48, v{CX}
    v_and_b32 v{t0}, 3, v{m}
    v_lshrrev_b32 v{t1}, 2, v{m}
    v_lshl_add_u32 v{t1}, v{t0}, 3, v{t1}
    v_lshlrev_b32 v{t1}, 7, v{t1}
    v_add_u32 v{t1}, s{sXRB}, v{t1}
    v_lshrrev_b32 v{t2}, 4, v{m}
    v_lshl_or_b32 v{t0}, v{t2}, 2, v{t0}
    v_xor_b32 v{t0}, v{t0}, v{h}
    v_lshl_add_u32 v{XA}, v{t0}, 4, v{t1}
    v_xor_b32 v{XA+1}, 32, v{XA}
    v_xor_b32 v{XA+2}, 64, v{XA}
    v_xor_b32 v{XA+3}, 0x60, v{XA}
    """)
    stamp("syn", 3)
    a(f"s_mov_b32 s{sA}, 0\ns_waitcnt vmcnt({1 if XE else 0})")
    kk12, c0, c1, g0, g1, p0, p1, tt, qa, f2r, fl0 = [E + i for i in range(11)]
    G, RC, NA, RK = D, D + 8, D + 16, D + 24
    TBv = FX
    OFv, CA = EP, EP + 8
    a(f"""
    s_branch M_POLLC
    M_BATCH:
    v_mul_u32_u24 v{lh}, {OTS}, v{lane}
    s_mov_b32 s{sA}, 0
    M_POLL:
    s_sleep {OPT["osl"]}
    buffer_load_dwordx4 {v(OG,4)}, v{lh}, s[{sWS}:{sWS+3}], s{sOA} offen sc1
    s_add_u32 s{sA}, s{sA}, 1
    s_cmp_gt_u32 s{sA}, {SPIN}
    s_cbranch_scc1 M_END
    s_waitcnt vmcnt(0)
    M_POLLC:
    v_cmpx_ne_u64 vcc, s[{sTAG}:{sTAG+1}], {v(OG+2,2)}
    s_cbranch_execnz M_POLL
    s_mov_b64 exec, -1
    s_lshr_b32 s{sA}, s{sW}, 1
    s_lshl_b32 s{sA}, s{sA}, 6
    v_add_lshl_u32 v{kk12}, v{lane}, s{sA}, 12
    v_lshl_add_u32 v{qa}, v{lane}, 2, s{sGL}
    v_mov_b32 v{t1}, 0xffff
    v_lshrrev_b32 v{lh}, 1, v{lane}
    """)
    stamp("pro", 1); stamp("syn", 4)
    a(f"v_and_b32 v{p0}, v{t1}, v{OG+1}\nv_lshrrev_b32 v{p1}, 16, v{OG+1}")
    fl = [f"v_and_or_b32 v{g0}, v{OG}, v{t1}, v{kk12}", f"v_lshrrev_b32 v{g1}, 16, v{OG}", f"v_or_b32 v{g1}, v{g1}, v{kk12}",
          f"v_and_b32 v{c0}, v{t1}, v{OG+1}", f"v_lshrrev_b32 v{c1}, 16, v{OG+1}", "s_nop 0"]
    for n, stp in enumerate(steps):
        a(f"{fl[n]}\nv_add_u32_dpp v{p0}, v{p0}, v{p0} {stp}\nv_add_u32_dpp v{p1}, v{p1}, v{p1} {stp}")
    a(f"""
    v_readlane_b32 s{sNS}, v{p0}, 63
    v_readlane_b32 s{sN}, v{p1}, 63
    v_sub_u32 v{p0}, v{p0}, v{c0}
    v_sub_u32 v{p1}, v{p1}, v{c1}
    s_add_u32 s{sN}, s{sN}, s{sNS}
    v_add_u32 v{p1}, s{sNS}, v{p1}
    s_mov_b32 s{sCNT}, s{sN}
    s_add_u32 s{sA}, s{sN}, s{sBASE}
    s_cmp_le_u32 s{sA}, s{sCAP}
    s_cbranch_scc0 M_WIN
    s_cmp_eq_u32 s{sBASE}, 0
    s_cbranch_scc1 M_NOWIN
    M_WIN:
    s_sub_i32 s{sCNT}, s{sN}, s{sBASE}
    s_max_i32 s{sCNT}, s{sCNT}, 0
    s_min_u32 s{sCNT}, s{sCNT}, s{sCAP}
    s_sub_i32 s{sNS}, s{sNS}, s{sBASE}
    s_max_i32 s{sNS}, s{sNS}, 0
    """)
    for (pp, cc, gg) in ((p0, c0, g0), (p1, c1, g1)):
        a(f"""
        v_subrev_u32 v{tt}, s{sBASE}, v{pp}
        v_max_i32 v{pp}, 0, v{tt}
        v_add_u32 v{cc}, v{tt}, v{cc}
        v_min_i32 v{cc}, s{sCAP}, v{cc}
        v_sub_u32 v{cc}, v{cc}, v{pp}
        v_sub_u32 v{tt}, v{pp}, v{tt}
        v_add_u32 v{gg}, v{gg}, v{tt}
        """)
    a(f"M_NOWIN:\ns_min_u32 s{sNS}, s{sNS}, {0 if YM else SCAP}")
    pa, ca_, ga, gb = t0, t1, t2, t3
    for n, (pp, cc, gg) in enumerate(((p0, c0, g0), (p1, c1, g1))):
        a(f"""
        v_lshl_add_u32 v{pp}, v{pp}, 2, s{sGL}
        v_add_u32 v{ga}, 1, v{gg}
        v_add_u32 v{gb}, 2, v{gg}
        v_mov_b32 v{ca_}, v{cc}
        v_mov_b32 v{pa}, v{pp}
        M_EXP{n}:
        """)
        for r in (1, 3, 5, 7):
            a(f"v_cmpx_lt_i32 vcc, {r}, v{ca_}\nds_write2_b32 v{pa}, v{ga}, v{gb} offset0:{r} offset1:{r+1}\nv_add_u32 v{ga}, 2, v{ga}\nv_add_u32 v{gb}, 2, v{gb}")
        a(f"""
        v_cmpx_lt_i32 vcc, 9, v{ca_}
        v_add_u32 v{pa}, 32, v{pa}
        v_subrev_u32 v{ca_}, 8, v{ca_}
        s_cbranch_execnz M_EXP{n}
        s_mov_b64 exec, -1
        """)
    a(f"""
    v_cmpx_lt_i32 vcc, 0, v{c0}
    ds_write_b32 v{p0}, v{g0}
    s_mov_b64 exec, -1
    v_cmpx_lt_i32 vcc, 0, v{c1}
    ds_write_b32 v{p1}, v{g1}
    s_mov_b64 exec, -1
    """)
    for i in ORD:
        a(f"ds_read_b32 v{G+i}, v{qa} offset:{256*i}")
    a(f"v_lshl_add_u32 v{t1}, v{lh}, 2, s{sGL}")
    for j in range(7):
        a(f"ds_read_b32 v{SG+j}, v{t1} offset:{128*j}")
    for i in ORD:
        a(f"s_sub_i32 s{sA}, s{sCNT}, {64*i}\nv_cmp_gt_i32 {mk(i)}, s{sA}, v{lane}")
    a(f"""
    v_lshrrev_b32 v{t2}, 4, v{lane}
    v_xor_b32 v{t2}, v{t2}, v{lane}
    v_and_b32 v{t2}, 1, v{t2}
    v_lshlrev_b32 v{t2}, 4, v{t2}
    v_mov_b32 v{fl0}, s{sCNT}
    v_mov_b32 v{fl0+1}, s{sN}
    s_waitcnt lgkmcnt(0)
    """)
    if CEM: a(f"s_mov_b32 s{sA}, {EMS//32-4096}")
    for j in range(7):
        if CEM: a(f"v_lshrrev_b32 v{t3}, 12, v{SG+j}\nv_mad_i32_i24 v{SG+j}, v{t3}, s{sA}, v{SG+j}")
        a(f"v_lshl_add_u32 v{SG+j}, v{SG+j}, 5, v{t2}")
    for i in range(8): a(f"v_lshrrev_b32 v{t3}, 12, v{G+i}\nv_mad_u32_u24 v{RC+i}, v{t3}, {SKW//4}, v{G+i}")
    stamp("pro", 2); stamp("syn", 5)
    a(f"""
    s_cmp_eq_u32 s92, 0
    s_cbranch_scc1 M_READY
    s_mov_b32 s92, 0
    """)
    a(f"""
    s_lshr_b32 s{sB}, s{sW}, 1
    s_lshl_b32 s{sB}, s{sB}, {FST+6}
    s_add_u32 s{sB}, s{sB}, {WS_F2}
    v_lshlrev_b32 v{f2r}, {FST}, v{lane}
    s_mov_b32 s{sA}, 0
    s_branch M_FL1
    M_FL:
    s_sleep {OPT["osl"]}
    M_FL1:
    buffer_load_dwordx2 {v(OG,2)}, v{f2r}, s[{sWS}:{sWS+3}], s{sB} offen sc1
    s_add_u32 s{sA}, s{sA}, 1
    s_cmp_gt_u32 s{sA}, {SPIN}
    s_cbranch_scc1 M_END
    s_waitcnt vmcnt(0)
    v_cmpx_ne_u64 vcc, s[{sTAG}:{sTAG+1}], {v(OG,2)}
    s_cbranch_execnz M_FL
    M_READY:
    """)
    stamp("top", 2); stamp("syn", 6)
    skip("M_GA")
    for i in ORD:
        a(f"s_mov_b64 exec, {mk(i)}\nbuffer_load_dword v{RC+i}, v{RC+i}, s[{sREC}:{sREC+3}], 0 idxen {LD}")
        after("M_GA", i)
    a("s_mov_b64 exec, -1")
    for i in range(4): a(f"v_mov_b32 v{t4+i}, {DUMMY}")
    a(f"v_lshlrev_b32 v{t0}, 4, v0\nv_lshlrev_b32 v{t1}, 2, v0\ns_waitcnt lgkmcnt(0)\ns_barrier")
    def stage(js):
        for j in ([] if YM else js):
            a(f"""
            s_sub_i32 s{sA}, s{sNS}, {32*j}
            s_add_u32 m0, s{sSTB}, {1024*j}
            v_cmpx_gt_i32 vcc, s{sA}, v{lh}
            buffer_load_dwordx4 v{SG+j}, s[{sEM}:{sEM+3}], 0 offen {LD} lds
            """)
        a("s_mov_b64 exec, -1")
    NS1 = int(OPT["ns1"])
    stage(range(NS1))
    XW = int(OPT["xw"])
    def pwarm():
        if XW:
            a(f"""
            s_lshr_b32 s{sA}, s2, 3
            s_mul_i32 s{sA}, s{sA}, {XW*128}
            s_add_u32 s{sA}, s{sA}, {XE*4096}
            v_lshl_add_u32 v{tt}, v{lane}, 3, s{sW}
            v_cmpx_gt_u32 vcc, {XW}, v{tt}
            v_lshlrev_b32 v{tt}, 7, v{tt}
            buffer_load_dword v{vCr+4}, v{tt}, s[{sP}:{sP+3}], s{sA} offen sc1
            s_mov_b64 exec, -1
            """)
    assert 2 * LSZ == 4 * 8192 + 2048
    for i in range(4): a(f"ds_write_b128 v{t0}, {v(t4,4)} offset:{L_LS+8192*i}")
    a(f"ds_write_b32 v{t1}, v{t4} offset:{L_LS+8192*4}")
    a(f"""
    s_mov_b32 s75, {L_C8}
    s_mov_b64 exec, 1
    ds_add_u32 v{nta}, v{fl0} offset:{L_NT}
    ds_max_u32 v{nta}, v{fl0+1} offset:{L_MX}
    """)
    skip("M_RK")
    for i in ORD:
        a(f"""
        s_mov_b64 exec, {mk(i)}
        s_waitcnt vmcnt({i+NS1})
        v_and_b32 v{NA+i}, 63, v{RC+i}
        v_bfe_u32 v{tt}, v{RC+i}, 18, 3
        v_add_u32 v{NA+i}, s{sSO}, v{NA+i}
        v_lshl_add_u32 v{CA+i}, v{NA+i}, 2, s75
        v_lshl_add_u32 v{CA+i}, v{tt}, 9, v{CA+i}
        ds_add_rtn_u32 v{RK+i}, v{CA+i}, v{one}
        """)
        after("M_RK", i)
    def pack(lab):
        a(f"s_movk_i32 s{sB}, {CH}\ns_mov_b32 s74, {int(OPT['epf'])*128}")
        skip(lab)
        for i in ORD:
            a(f"""
            v_lshrrev_b32 v{t0}, 12, v{G+i}
            v_lshrrev_b32 v{tt}, 21, v{RC+i}
            v_bfe_i32 v{t1}, v{G+i}, 11, 1
            v_mad_u32_u24 v{tt}, v{t0}, s{sB}, v{tt}
            v_and_b32 v{t1}, {M0}, v{t1}
            v_bfe_u32 v{RC+i}, v{RC+i}, 6, 15
            v_add3_u32 v{G+i}, v{t1}, v{tt}, s{sDF}
            v_lshl_add_u32 v{RC+i}, v{RC+i}, 7, v{NA+i}
            v_lshlrev_b32 v{NA+i}, 3, v{NA+i}
            """)
            if i < 4 and not YM:
                a(f"""
                s_sub_i32 s{sA}, s{sNS}, {64*i}
                v_cmp_gt_i32 vcc, s{sA}, v{lane}
                v_add_u32 v{tt}, {2048*i}, v{sac}
                s_nop 0
                v_cndmask_b32 v{G+i}, v{G+i}, v{tt}, vcc
                """)
            if int(OPT["epf"]):
                a(f"s_mov_b64 exec, {mk(i)}\nv_cmpx_gt_u32 vcc, s74, v{RC+i}" + ("" if YM or i >= 4 else f"\nv_cmpx_le_u32 vcc, s{sDF}, v{G+i}") + f"\nbuffer_load_dword v{vCr+4}, v{G+i}, s[{sE}:{sE+3}], 0 idxen\ns_mov_b64 exec, -1")
            after(lab, i)
    a("s_mov_b64 exec, -1")
    stamp("pro", 3)
    a(f"""
    s_cmp_eq_u32 s{sW}, 0
    s_cbranch_scc1 M_PK0
    s_lshl_b32 s{sA}, s{sW}, 8
    s_add_u32 s{sA}, s{sA}, {L_C8 - 256}
    v_lshl_add_u32 v{S4}, v{lane}, 2, s{sA}
    v_mov_b32 v{Q+8}, 0
    s_waitcnt lgkmcnt(0)
    s_barrier
    """)
    stamp("pro", 4)
    a(f"s_cmp_gt_u32 s{sW}, 2\ns_cbranch_scc1 M_NOPFX")
    for j in range(3): a(f"ds_read2st64_b32 {v(Q+2*j,2)}, v{S4} offset0:{4*j} offset1:{4*j+2}")
    a(f"s_waitcnt lgkmcnt(0)\nv_mov_b32 v{Q+9}, v{Q}")
    for j in range(1, 6): a(f"v_add_u32 v{Q+9+j}, v{Q+8+j}, v{Q+j}")
    for j in range(4): a(f"ds_write2st64_b32 v{S4}, v{Q+8+2*j}, v{Q+9+2*j} offset0:{C8O//256+4*j} offset1:{C8O//256+4*j+2}")
    a("M_NOPFX:\ns_setprio 0")
    stage(range(NS1, 7)); pwarm(); pack("M_PB")
    a("s_waitcnt lgkmcnt(0)\ns_barrier\ns_branch M_P4E")
    d0, d1, f0, f1, k0, k1, vL, vR, ks, a4, l0, l1, o0, o1, cn, ci = [Q + i for i in range(16)]
    m0_, B0, m1_, B1 = S4, S4+1, S4+2, S4+3
    a(f"""
    M_PK0:
    s_setprio 3
    v_lshlrev_b32 v{a4}, 3, v{lane}
    v_lshlrev_b32 v{cn}, 2, v{lane}
    v_add_u32 v{cn}, {L_C8}, v{cn}
    v_sub_u32 v{ci}, 31, v{m}
    v_lshlrev_b32 v{ci}, 2, v{ci}
    s_mov_b32 s75, {f32(4194304.0)}
    s_waitcnt lgkmcnt(0)
    s_barrier
    """)
    stamp("pro", 4)
    a(f"ds_read_b32 v{ks}, v{nta} offset:{L_NT}")
    for j in range(7): a(f"ds_read2st64_b32 {v(FX+2*j,2)}, v{cn} offset0:{2*j} offset1:{2*j+1}")
    a(f"""
    s_waitcnt lgkmcnt(4)
    v_readfirstlane_b32 s{sL}, v{ks}
    v_add3_u32 v{d0}, v{FX}, v{FX+2}, v{FX+4}
    v_add3_u32 v{d1}, v{FX+1}, v{FX+3}, v{FX+5}
    s_lshr_b32 s{sL}, s{sL}, 8
    s_add_u32 s{sL}, s{sL}, 2
    s_waitcnt lgkmcnt(0)
    v_add3_u32 v{d0}, v{d0}, v{FX+6}, v{FX+8}
    v_add3_u32 v{d1}, v{d1}, v{FX+7}, v{FX+9}
    v_add3_u32 v{d0}, v{d0}, v{FX+10}, v{FX+12}
    v_add3_u32 v{d1}, v{d1}, v{FX+11}, v{FX+13}
    v_cvt_f32_u32 v{f0}, v{d0}
    v_cvt_f32_u32 v{f1}, v{d1}
    M_LS:
    s_add_u32 s{sL}, s{sL}, 1
    s_cmp_gt_u32 s{sL}, {LMAX}
    s_cbranch_scc1 M_P4W
    v_cvt_f32_u32 v{vL}, s{sL}
    v_rcp_f32 v{vR}, v{vL}
    v_add_f32 v{vL}, -0.5, v{vL}
    v_add_f32 v{k0}, v{f0}, v{vL}
    v_add_f32 v{k1}, v{f1}, v{vL}
    v_mul_f32 v{k0}, v{k0}, v{vR}
    v_mul_f32 v{k1}, v{k1}, v{vR}
    v_cvt_u32_f32 v{k0}, v{k0}
    v_cvt_u32_f32 v{k1}, v{k1}
    v_add_u32 v{ks}, v{k0}, v{k1}
    """)
    fillers = [f"v_cvt_f32_u32 v{l0}, v{k0}", f"v_cvt_f32_u32 v{l1}, v{k1}",
               f"v_rcp_f32 v{m0_}, v{l0}", f"v_rcp_f32 v{m1_}, v{l1}",
               f"v_add_f32 v{l0}, v{l0}, v{f0}", f"v_add_f32 v{l1}, v{l1}, v{f1}",
               f"v_add_f32 v{l0}, -0.5, v{l0}", f"v_add_f32 v{l1}, -0.5, v{l1}",
               f"v_mul_f32 v{l0}, v{l0}, v{m0_}", f"v_mul_f32 v{l1}, v{l1}, v{m1_}",
               f"v_cvt_u32_f32 v{l0}, v{l0}", f"v_cvt_u32_f32 v{l1}, v{l1}"]
    for n, stp in enumerate(steps):
        a(f"{fillers[2*n]}\n{fillers[2*n+1]}\nv_add_u32_dpp v{ks}, v{ks}, v{ks} {stp}")
    a(f"""
    v_lshlrev_b32 v{l0}, 2, v{l0}
    v_readlane_b32 s{sA}, v{ks}, 63
    v_lshlrev_b32 v{l1}, 2, v{l1}
    s_cmp_gt_u32 s{sA}, 256
    s_cbranch_scc1 M_LS
    ds_add_rtn_u32 v{o0}, v{l0}, v{k0} offset:{L_CNT}
    ds_add_rtn_u32 v{o1}, v{l1}, v{k1} offset:{L_CNT}
    ds_read_b32 v{cn}, v{ci} offset:{L_CNT}
    v_mul_f32 v{m0_}, s75, v{m0_}
    v_mul_f32 v{m1_}, s75, v{m1_}
    v_cvt_u32_f32 v{m0_}, v{m0_}
    v_cvt_u32_f32 v{m1_}, v{m1_}
    v_add_u32 v{m0_}, 2, v{m0_}
    v_add_u32 v{m1_}, 2, v{m1_}
    v_lshlrev_b32 v{B0}, 2, v{k0}
    v_lshlrev_b32 v{B1}, 2, v{k1}
    v_sub_u32 v{B0}, 1024, v{B0}
    v_sub_u32 v{B1}, 1024, v{B1}
    v_sub_u32 v{l0}, 124, v{l0}
    v_sub_u32 v{l1}, 124, v{l1}
    s_waitcnt lgkmcnt(0)
    v_mov_b32 v{ks}, v{cn}
    """)
    for stp in steps[:5]:
        a(f"s_nop 1\nv_add_u32_dpp v{ks}, v{ks}, v{ks} {stp}")
    a(f"""
    v_sub_u32 v{ks}, v{ks}, v{cn}
    ds_bpermute_b32 v{d0}, v{l0}, v{ks}
    ds_bpermute_b32 v{d1}, v{l1}, v{ks}
    ds_write_b32 v{ci}, v{ks} offset:{L_BAS}
    s_waitcnt lgkmcnt(1)
    v_add_u32 v{o0}, v{o0}, v{d0}
    v_add_u32 v{o1}, v{o1}, v{d1}
    v_lshl_or_b32 v{m0_}, v{o0}, 24, v{m0_}
    v_lshl_or_b32 v{m1_}, v{o1}, 24, v{m1_}
    ds_write2st64_b64 v{a4}, {v(m0_,2)}, {v(m1_,2)} offset0:0 offset1:1
    M_P4W:
    v_mov_b32 v{ks}, s{sL}
    ds_write_b32 v{nta}, v{ks} offset:{L_MX+4}
    s_waitcnt lgkmcnt(0)
    s_barrier
    """)
    stage(range(NS1, 7)); pwarm(); pack("M_PA")
    u0, nn = Q + 20, Q + 26
    a("M_P4E:")
    stamp("pro", 5)
    a(f"""
    ds_read_b64 {v(u0,2)}, v{nta} offset:{L_MX}
    v_lshlrev_b32 v{tt}, 2, v{m}
    ds_read_b32 v{u0+2}, v{tt} offset:{L_CNT}
    ds_read_b32 v{u0+3}, v{tt} offset:{L_BAS}
    s_lshr_b32 s{sA}, s{sW}, 1
    s_lshl_b32 s{sA}, s{sA}, 5
    v_add_u32 v{nn}, s{sA}, v{m}
    v_lshlrev_b32 v{tt}, 3, v{nn}
    ds_read_b64 {v(u0+4,2)}, v{tt} offset:{L_TB}
    """)
    skip("M_TR")
    for i in ORD:
        a(f"s_mov_b64 exec, {mk(i)}\nds_read_b64 {v(TBv+2*i,2)}, v{NA+i} offset:{L_TB}\nds_read_b32 v{OFv+i}, v{CA+i} offset:{C8O}")
        after("M_TR", i)
    a(f"""
    s_mov_b64 exec, -1
    s_lshl_b32 s{sA}, s{sG}, 5
    s_waitcnt lgkmcnt(12)
    v_readfirstlane_b32 s{sNMAX}, v{u0}
    v_readfirstlane_b32 s{sL}, v{u0+1}
    v_add_u32 v{u0+2}, v{u0+2}, v{u0+3}
    v_cmp_ge_u32 vcc, s{sA}, v{u0+3}
    v_cmp_lt_u32 s[52:53], s{sA}, v{u0+2}
    s_and_b64 s[52:53], s[52:53], vcc
    s_ff1_i32_b32 s{sT}, s52
    s_max_i32 s{sT}, s{sT}, 0
    s_cmp_le_u32 s{sL}, {LMAX}
    s_cbranch_scc1 M_P5
    s_mov_b32 s{sCAP}, 256
    s_branch M_AGAIN
    M_P5:
    """)
    skip("M_SC")
    for i in ORD:
        mm, BB = TBv + 2*i, TBv + 2*i + 1
        a(f"""
        s_mov_b64 exec, {mk(i)}
        s_waitcnt lgkmcnt({2*i + max(0, 5-i)})
        v_add_u32 v{RK+i}, v{RK+i}, v{OFv+i}
        v_lshrrev_b32 v{tt}, 24, v{mm}
        v_mul_u32_u24 v{mm}, v{mm}, v{RK+i}
        v_add_lshl_u32 v{tt}, v{tt}, v{RK+i}, 2
        v_lshrrev_b32 v{mm}, 22, v{mm}
        v_mad_u32_u24 v{tt}, v{mm}, v{BB}, v{tt}
        ds_write2st64_b32 v{tt}, v{RC+i}, v{G+i} offset0:{L_LS//256} offset1:{L_LE//256}
        """)
        after("M_SC", i)
    ca0, ca1, ca2, ca3, kk, oa, fa, da = [EP + i for i in range(8)]
    epi_setup = f"""
    s_lshl_b32 s{sA}, s{sSB}, 7
    s_add_u32 s{sA}, s{sA}, {L_XR}
    s_movk_i32 s{sB}, 0x3fc
    s_movk_i32 s75, 0x3f8
    v_mov_b32 v{kk}, v{u0+5}
    v_lshrrev_b32 v{ca0}, 24, v{u0+4}
    v_mul_u32_u24 v{ca0}, 272, v{ca0}
    v_lshl_add_u32 v{ca0}, v{h16}, 1, v{ca0}
    v_add_u32 v{ca0}, s{sA}, v{ca0}
    v_mov_b32 v{da}, {L_ZR}
    v_cmp_gt_u32 s[56:57], s{sB}, v{kk}
    v_cmp_gt_u32 s[58:59], s75, v{kk}
    v_add_u32 v{ca1}, 272, v{ca0}
    v_add_u32 v{ca2}, 544, v{ca0}
    v_add_u32 v{ca3}, 816, v{ca0}
    v_cmp_gt_u32 vcc, 0x400, v{kk}
    v_cndmask_b32 v{ca1}, v{da}, v{ca1}, s[56:57]
    v_cndmask_b32 v{ca2}, v{da}, v{ca2}, s[58:59]
    v_cndmask_b32 v{ca0}, v{da}, v{ca0}, vcc
    v_cmp_gt_u32 vcc, s{sNB}, v{nn}
    v_lshlrev_b32 v{oa}, 7, v{nn}
    v_lshl_add_u32 v{oa}, v{h16}, 1, v{oa}
    s_lshl_b32 s{sA}, s{sW}, 11
    v_cndmask_b32 v{oa}, v{hz}, v{oa}, vcc
    v_add_u32 v{fa}, s{sA}, v{l16}
    v_mul_u32_u24 v{da}, 272, v{m}
    v_add3_u32 v{da}, v{da}, v{h16}, s{sXRB}
    """
    a(f"""
    s_mov_b64 exec, -1
    s_setprio 0
    """)
    a("s_waitcnt lgkmcnt(0)\ns_barrier")
    stamp("top", 3); stamp("pro", 6); stamp("pri", 1)
    a(f"s_cmp_lg_u32 s{sT}, 0\ns_cbranch_scc1 M_GO")
    a(epi_setup)
    a("s_waitcnt vmcnt(0)\ns_barrier\ns_branch M_BEND\nM_GO:")
    S = []
    ef = OPT["eflags"]
    def le_read(t, p): return (f"ds_read_b32 v{RP+2*p}, v{vLE} offset:{L_LE+1024*t}", f"le{t}")
    def ls_read(t, dst): return (f"ds_read_b128 {v(dst,4)}, v{vLS} offset:{L_LS+1024*t}", f"ls{t}")
    def st_addr(p): return f"v_xor_b32 v{sa}, v{RP+2*p}, v{h16}"
    def st_read(t): return (f"ds_read_b128 {Es(t)}, v{sa}", f"st{t}")
    def d_pre(t, p): return [f"v_cmp_le_u32 vcc, s{sDF}, v{RP+2*p}", f"v_and_or_b32 v{vCr+t%5}, v{RP+2*p}, s{sB30}, 1.0"]
    def d_load(t, p): return ["s_mov_b64 exec, vcc", (f"buffer_load_dwordx4 {Es(t)}, {v(RP+2*p,2)}, s[{sE}:{sE+3}], 0 idxen offen {ef}", f"D{t}"), "s_mov_b64 exec, -1"]
    def x_addr(src): return [f"v_and_or_b32 v{S4+i}, v{src+i}, s{sM7}, v{CX+i}" for i in range(4)]
    def x_dma(t, nop=True, reg=None, soff="0", tag=None):
        o = []
        for i in range(4):
            sr = sP
            o += [f"s_add_u32 m0, s{sXRB}, {(t&1)*4096+i*1024}"] + (["s_nop 0"] if nop else []) + \
                 [(f"buffer_load_dwordx4 v{(reg or S4)+i}, s[{sr}:{sr+3}], {soff} offen {LD} lds", tag or f"X{t}")]
        return o
    def fx_read(t, sx, tag=None): return (f"ds_read_b128 {v(FX+4*sx,4)}, v{XA+sx} offset:{(t&1)*4096}", tag or f"fx{t}")
    def chain(nh, t):
        Dh = v(D + 16 * nh, 16)
        return [f"v_mfma_f32_32x32x16_bf16 {Dh}, {W3f(nh)}, {Es(t)}, {v(Q+16*nh,16)}"] + \
               [f"v_mfma_f32_32x32x16_bf16 {Dh}, {Idf(j)}, {v(FX+8*nh+4*j,4)}, {Dh}" for j in range(2)]
    nd, L1, L2 = D, D + 4, SG
    def ps(i): return [f"s_memrealtime s[{76+2*i}:{77+2*i}]", "s_waitcnt lgkmcnt(0)"] if MODE == "pri" else []
    S += [ls_read(0, S4), (f"ds_read_b32 v{nd}, v{vLE} offset:{L_LS}", "nd")] + [le_read(j, j) for j in range(4)] + [ls_read(1, L1), ls_read(2, L2), ("@W", None, "nd")]
    S += x_addr(S4)
    xa_ = [f"v_bfe_u32 v{nd+1}, v{nd}, 4, 3", f"v_mul_u32_u24 v{nd+1}, {XRS}, v{nd+1}", f"v_bfe_u32 v{nd+2}, v{nd}, 1, 3", f"v_xor_b32 v{nd+2}, v{nd+2}, v{h}"]
    dm = x_dma(0, nop=False)
    for i in range(4): S += [dm[2*i], xa_[i], dm[2*i+1]]
    S += [f"v_and_b32 v{nd}, 15, v{nd}", f"v_lshl_add_u32 v{nd+1}, v{nd}, 7, v{nd+1}", f"v_lshl_add_u32 v{nd+1}, v{nd+2}, 4, v{nd+1}", f"v_add_u32 v{nd+1}, {L_XR+XRO}, v{nd+1}"]
    for sx in range(4):
        S += [(f"ds_read_b128 {v(FX+4*sx,4)}, v{nd+1}", "xd")] + ([f"v_xor_b32 v{nd+1}, {(32, 96, 32)[sx]}, v{nd+1}"] if sx < 3 else [])
    def dl(j): return d_pre(j, j) + [f"s_not_b64 s[{60+2*j}:{61+2*j}], vcc"] + d_load(j, j)
    S += [("@W", None, "ls2")] + dl(0) + ps(2)
    ep = [l.strip() for l in epi_setup.strip().split("\n")]
    S += ep + x_addr(L1) + [("@W", None, "xd")]
    for nh in range(2):
        for sx in range(4):
            S.append(f"v_mfma_f32_32x32x16_bf16 {v(Q+16*nh,16)}, {v(AG+(sx*2+nh)*4,4)}, {v(FX+4*sx,4)}, {'0' if sx == 0 else v(Q+16*nh,16)}")
    S += ["s_waitcnt vmcnt(5)"] + ps(3) + ["s_barrier"] + ps(4)
    S += [st_addr(0), "s_mov_b64 exec, s[60:61]", st_read(0), "s_mov_b64 exec, -1"]
    for j in range(1, 4): S += [st_addr(j), st_read(j)]
    S += [f"s_mov_b32 s74, {f32(-LOG2E)}", f"s_mov_b32 s75, {f32(-LOG2E)}"]
    S += [("@W", "D0", None)] + ps(5) + [fx_read(0, sx) for sx in range(4)]
    S += [f"v_pk_mul_f32 {v(Q+2*i,2)}, {v(Q+2*i,2)}, s[74:75]" for i in range(16)] + [("@W", None, "fx0")]
    S += chain(0, 0) + d_pre(1, 1) + d_load(1, 1) + x_dma(1) + [f"v_and_or_b32 v{L2+i}, v{L2+i}, s{sM7}, v{CX+i}" for i in range(4)] + ps(6)
    if MODE: S += [f"s_mov_b32 s90, s{sT}", f"s_mov_b32 s98, s{sL}", "s_memtime s[94:95]", "s_waitcnt lgkmcnt(0)"]
    if MODE == "top": S += ["s_memrealtime s[84:85]", "s_waitcnt lgkmcnt(0)"]
    def phase(nh, t, mf, fill):
        Db, Ab = D + 16*nh, AG + 16*nh
        c = vCr + t % 5
        cp = f"{v(c & ~1, 2)} " + ("op_sel_hi:[1,0]" if c % 2 == 0 else "op_sel:[0,1] op_sel_hi:[1,1]")
        seq = []
        mf = mf + [None] * (3 - len(mf))
        for q in range(2):
            ex = [f"v_exp_f32 v{T+i}, v{Db+8*q+i}" for i in range(8)]
            rc = [f"v_rcp_f32 v{T+i}, v{T+i}" for i in range(8)]
            ad = [f"v_pk_add_f32 {v(T+2*i,2)}, {v(T+2*i,2)}, {cp}" for i in range(4)]
            fm = [f"v_pk_fma_f32 {v(Ab+8*q+2*i,2)}, {v(Db+8*q+2*i,2)}, {v(T+2*i,2)}, {v(Ab+8*q+2*i,2)}" for i in range(4)]
            if t == 0: fm = [f"v_pk_mul_f32 {v(Ab+8*q+2*i,2)}, {v(Db+8*q+2*i,2)}, {v(T+2*i,2)}" for i in range(4)]
            if q == 0: seq += [mf[0]] + ex + ad + [mf[1]] + rc + fm
            else: seq += [mf[2]] + ex + ad + rc + fm
        res = []; n = 0
        for l in seq:
            if l is None: continue
            res.append(l)
            if l.startswith(("v_exp", "v_rcp")):
                res += fill.get(n, []); n += 1
        return res
    for t in range(LMAX):
        fill = {}
        if t + 4 < LMAX:
            fill[0] = [le_read(t + 4, 0)]
            fill[10] = [("@W", None, f"le{t+4}"), st_addr(0)]; fill[11] = [st_read(t + 4)]
        if t + 3 < LMAX: fill[1] = [ls_read(t + 3, S4)]
        if t + 1 < LMAX:
            fill[16] = [("@W", f"X{t+1}", None)]
            for sx in range(4): fill[17+sx] = [fx_read(t + 1, sx)]
        if t + 3 < LMAX:
            xa = x_addr(S4)
            fill[24] = [("@W", None, f"ls{t+3}"), xa[0]]; fill[25] = [xa[1]]; fill[26] = [xa[2]]; fill[27] = [xa[3]]
        if t == 0:
            fill[2] = d_pre(2, 2); fill[3] = d_load(2, 2)
            dm = x_dma(2, nop=False, reg=L2)
            for i, pos in enumerate((4, 5, 6, 7, 12, 13, 14, 15)): fill[pos] = [dm[i]]
            fill[28] = d_pre(3, 3); fill[29] = d_load(3, 3)
        if int(OPT["prio"]) == 1: S.append("s_setprio 1")
        S += phase(0, t, chain(1, t), fill)
        if int(OPT["prio"]) == 1: S.append("s_setprio 0")
        fill = {}
        if t + 1 < LMAX: fill[0] = [("@W", None, f"fx{t+1}")]
        if t + 3 < LMAX:
            dm = x_dma(t + 3, nop=False)
            for i in range(8): fill[1+i] = [dm[i]]
        if t + 4 < LMAX:
            dp = d_pre(t + 4, 0)
            fill[9] = [dp[0]]; fill[12] = d_load(t + 4, 0); fill[13] = [dp[1]]
        fill[31] = [f"s_cmp_eq_u32 s{sT}, {t+1}"]
        S += phase(1, t, chain(0, t + 1) if t + 1 < LMAX else [], fill)
        if t + 1 < LMAX: S.append("s_cbranch_scc1 M_FLUSH")
    emit(resolve(S))
    a("M_FLUSH:")
    stamp("top", 5); stamp("epi", 1)
    if MODE: a("s_memtime s[96:97]\ns_waitcnt lgkmcnt(0)")
    a("s_waitcnt vmcnt(0)")
    for i in range(8):
        a(f"ds_write_b128 v{da}, {v(AG+4*i,4)} offset:{32*i}")
    A0, A1, A2, OWN, PAR = D, D + 16, Q, Q + 16, Q + 24
    a(f"""
    M_BEND:
    v_cmp_gt_u32 vcc, 0x3f4, v{kk}
    s_mov_b32 s74, {f32(-1.0/LOG2E)}
    s_mov_b32 s75, {f32(-1.0/LOG2E)}
    s_waitcnt lgkmcnt(0)
    """)
    stamp("epi", 2)
    a("s_barrier")
    stamp("epi", 3)
    offs = (0, 16, 64, 80)
    for i in range(4):
        for buf, ca in ((A0, ca0), (A1, ca1), (A2, ca2)):
            a(f"ds_read_b128 {v(buf+4*i,4)}, v{ca} offset:{offs[i]}")
    for i in range(4):
        a(f"s_waitcnt lgkmcnt({9-3*i})")
        for j in range(2): a(f"v_pk_add_f32 {v(A0+4*i+2*j,2)}, {v(A0+4*i+2*j,2)}, {v(A1+4*i+2*j,2)}")
        for j in range(2): a(f"v_pk_add_f32 {v(A0+4*i+2*j,2)}, {v(A0+4*i+2*j,2)}, {v(A2+4*i+2*j,2)}")
    a(f"""
    s_cbranch_vccz M_SUMD
    s_movk_i32 s{sA}, 0x3f4
    M_SUML:
    s_mov_b64 exec, vcc
    """)
    for i in range(4):
        a(f"ds_read_b128 {v(A1+4*i,4)}, v{ca3} offset:{offs[i]}")
    a(f"s_sub_u32 s{sA}, s{sA}, 4\nv_add_u32 v{ca3}, 272, v{ca3}\ns_waitcnt lgkmcnt(0)")
    for i in range(8): a(f"v_pk_add_f32 {v(A0+2*i,2)}, {v(A0+2*i,2)}, {v(A1+2*i,2)}")
    a(f"""
    s_mov_b64 exec, -1
    v_cmp_gt_i32 vcc, s{sA}, v{kk}
    s_nop 4
    s_cbranch_vccnz M_SUML
    M_SUMD:
    s_cmp_le_u32 s{sNMAX}, s{sCAP}
    s_cbranch_scc1 M_EPI
    """)
    srd_off(a, 56, 10, WS_SP, 2048 * 4096)
    a(f"""
    s_lshl_b32 s{sA}, s2, 3
    s_add_u32 s{sA}, s{sA}, s{sW}
    s_lshl_b32 s{sA}, s{sA}, 12
    s_cmp_eq_u32 s{sBASE}, 0
    s_cbranch_scc1 M_NOLD
    """)
    for i in range(4):
        a(f"buffer_load_dwordx4 {v(A1+4*i,4)}, v{l16}, s[56:59], s{sA} offen offset:{1024*i} sc0 sc1")
    a("s_waitcnt vmcnt(0)")
    for i in range(8): a(f"v_pk_add_f32 {v(A0+2*i,2)}, {v(A0+2*i,2)}, {v(A1+2*i,2)}")
    a(f"""
    M_NOLD:
    s_add_u32 s{sBASE}, s{sBASE}, s{sCAP}
    s_cmp_ge_u32 s{sBASE}, s{sNMAX}
    s_cbranch_scc1 M_EPI
    """)
    for i in range(4):
        a(f"buffer_store_dwordx4 {v(A0+4*i,4)}, v{l16}, s[56:59], s{sA} offen offset:{1024*i} sc0 sc1")
    a(f"""
    M_AGAIN:
    s_load_dwordx2 s[60:61], s[0:1], 32
    s_waitcnt vmcnt(0) lgkmcnt(0)
    s_barrier
    """)
    srd(a, 56, 60, 18432)
    a(f"""
    s_lshl_b32 s{sA}, s{sW}, 10
    s_add_u32 s{sA}, s{sA}, 8192
    s_add_u32 m0, s{sA}, {S_W}
    v_lshlrev_b32 v{t0}, 2, v0
    buffer_load_dwordx4 v{l16}, s[56:59], s{sA} offen lds
    ds_write_b32 v{t0}, v{nta}
    v_add_u32 v{t0}, {L_C8}, v{t0}
    ds_write_b32 v{t0}, v{nta}
    ds_write_b32 v{t0}, v{nta} offset:2048
    """)
    xrows()
    a("s_waitcnt vmcnt(0)\ns_barrier")
    w2read()
    a(f"""
    s_waitcnt lgkmcnt(0)
    s_barrier
    s_branch M_BATCH
    M_EPI:
    """)
    srd(a, 56, 8, 3200000)
    for i in range(8): a(f"v_pk_mul_f32 {v(A0+2*i,2)}, {v(A0+2*i,2)}, s[74:75]")
    for i in range(8): a(f"v_cvt_pk_bf16_f32 v{OWN+i}, v{A0+2*i}, v{A0+2*i+1}")
    a(f"""
    ds_write_b128 v{fa}, {v(OWN,4)} offset:{L_FE}
    ds_write_b128 v{fa}, {v(OWN+4,4)} offset:{L_FE+1024}
    v_xor_b32 v{fa}, 0x800, v{fa}
    v_mfma_f32_32x32x16_bf16 {v(U0,16)}, {v(WU,4)}, {v(OWN,4)}, {v(U0,16)}
    v_mfma_f32_32x32x16_bf16 {v(U0,16)}, {v(WU+4,4)}, {v(OWN+4,4)}, {v(U0,16)}
    s_lshl_b32 s{sA}, s{sSB}, 6
    s_add_u32 s{sA}, s{sA}, s{sS0}
    s_mov_b32 s74, {f32(-LOG2E)}
    s_mov_b32 s75, {f32(-LOG2E)}
    s_waitcnt lgkmcnt(0)
    s_barrier
    """)
    stamp("epi", 4)
    a(f"""
    ds_read_b128 {v(PAR,4)}, v{fa} offset:{L_FE}
    ds_read_b128 {v(PAR+4,4)}, v{fa} offset:{L_FE+1024}
    s_waitcnt lgkmcnt(1)
    v_mfma_f32_32x32x16_bf16 {v(U0,16)}, {v(WU+8,4)}, {v(PAR,4)}, {v(U0,16)}
    s_waitcnt lgkmcnt(0)
    v_mfma_f32_32x32x16_bf16 {v(U0,16)}, {v(WU+12,4)}, {v(PAR+4,4)}, {v(U0,16)}
    s_nop 11
    """)
    for q in range(2):
        b = 8 * q
        for i in range(4): a(f"v_pk_mul_f32 {v(AG+b+2*i,2)}, {v(U0+b+2*i,2)}, s[74:75]")
        for i in range(8): a(f"v_exp_f32 v{AG+b+i}, v{AG+b+i}")
        for i in range(4): a(f"v_pk_add_f32 {v(AG+b+2*i,2)}, {v(AG+b+2*i,2)}, 1.0 op_sel_hi:[1,0]")
        for i in range(8): a(f"v_rcp_f32 v{AG+b+i}, v{AG+b+i}")
        for i in range(4): a(f"v_pk_mul_f32 {v(AG+b+2*i,2)}, {v(U0+b+2*i,2)}, {v(AG+b+2*i,2)}")
        for i in range(4): a(f"v_cvt_pk_bf16_f32 v{D+4*q+i}, v{AG+b+2*i}, v{AG+b+2*i+1}")
        a(f"buffer_store_dwordx4 {v(D+4*q,4)}, v{oa}, s[56:59], s{sA} offen offset:{16*q}")
    if MODE:
        stamp("epi", 5)
        a("s_waitcnt vmcnt(0)")
        stamp("top", 6); stamp("epi", 6)
        a(f"s_lshl_b32 s74, s2, 3\ns_add_u32 s74, s74, s{sW}\ns_lshl_b32 s74, s74, 6\ns_add_u32 s74, s74, {WS_ST+0x80000}\ns_add_u32 s52, s10, s74\ns_addc_u32 s53, s11, 0\nv_mov_b32 v0, 0")
        for i in range(8):
            a(f"v_mov_b32 v1, s{76+2*i}\nglobal_store_dword v0, v1, s[52:53] offset:{4*i}")
        a("s_sub_u32 s96, s96, s94\nv_mov_b32 v1, s96\nglobal_store_dword v0, v1, s[52:53] offset:32\nv_mov_b32 v1, s98\nglobal_store_dword v0, v1, s[52:53] offset:36")
    a("M_END:\ns_endpgm")
    return R.n

hdr = f"""; MPNN edge-MLP + segment-sum + node update in one launch of 256 co-resident workgroups:
; @launch grid=(256,1,1) block=(512,1,1) lds={MAIN_LDS}
.amdgcn_target "amdgcn-amd-amdhsa--gfx950"
.text
.globl {KN}
.type {KN},@function
"""
nv = gen()
txt = hdr + a.text() + '.section .rodata,"a"\n.p2align 6\n' + kdesc(KN, 256, 102)
open(sys.argv[1], "w").write(txt)
print("vgprs", nv, "lds", MAIN_LDS)
```

```python
import sys, struct
from asmlib import *

OPT = dict(abl="", stamp=False, eflags="", M0=1280, ns1=5, es='2,3,0', osl=4, xw=256, fst=5, cem=1, Y=False, epf=0, skw=256, xe=0, tlb=0, stl=0, prio=0, ld="sc1")
for arg in sys.argv[2:]:
    k, val = arg.split("=")
    OPT[k] = {"True": True, "False": False}.get(val, val.replace("+", " "))
M0 = int(OPT["M0"])
assert M0 % 32 == 0 and M0 <= 1376 and 3200 - M0 <= 2048
LD = OPT["ld"]
YM = OPT["Y"]
if YM: OPT["es"] = "0,0,0"; OPT["ns1"] = 0
KN = "standalone__mpnn_edge_mlp__graph_kernel"

NCH, CH = 250, 3200
WS_REC, WS_O, WS_F2, WS_ST, WS_P, WS_SP, WS_EM = 0, 0x440000, 0x680000, 0x700000, 0x800000, 0x2000000, 0xB20000
SKW = int(OPT["skw"])
OTS, RCS, EMS = 8192 + SKW, 16384 + SKW, M0 * 32 + SKW
LOG2E = 1.4426950408889634
def f32(x): return "0x%08x" % struct.unpack("<I", struct.pack("<f", x))[0]

a = Asm()
MODE = OPT["stamp"]
def stamp(mode, i):
    if MODE == mode or (MODE and mode == "all"):
        a(f"s_memrealtime s[{76+2*i}:{77+2*i}]\ns_waitcnt lgkmcnt(0)")
def emit(l): a("\n".join(l))

def resolve(stream):
    out = []; vm = []; lg = []
    for it in stream:
        if isinstance(it, tuple) and it[0] == "@W":
            parts = []
            if it[1] is not None:
                idx = max(i for i, t in enumerate(vm) if t == it[1]); n = len(vm) - 1 - idx
                assert n <= 63; parts.append(f"vmcnt({n})")
            if it[2] is not None:
                idx = max(i for i, t in enumerate(lg) if t == it[2]); n = len(lg) - 1 - idx
                parts.append(f"lgkmcnt({min(n, 15)})")
            out.append("s_waitcnt " + " ".join(parts)); continue
        txt, tag = it if isinstance(it, tuple) else (it, None)
        if txt.startswith("buffer_"): vm.append(tag)
        if txt.startswith("ds_"): lg.append(tag)
        out.append(txt)
    return out

LMAX = 17
L_TB = 0
L_CNT = 1024
L_NT = L_CNT + 128
L_MX = L_NT + 16
L_BAS = L_MX + 16
L_F2C = 1408
L_ZR = 1536
L_LS = 2048
LSZ = LMAX * 1024
L_LE = L_LS + LSZ
L_ST = L_LE + LSZ
SCAP = 224
L_XR = L_ST + 8 * SCAP * 32
XRS = 8704
MAIN_LDS = L_XR + 8 * XRS
assert MAIN_LDS <= 163840 and L_XR % 4096 == 0
L_C8 = L_XR + XRS
C8O = XRS
GLO = 6144
XRO = 4096
S_W = L_LS
S_CNT = L_ST
S_STA = S_CNT + 2048
S_SRT = S_STA + 2048
S_E = S_SRT + CH * 4
assert S_E + M0 * 32 <= L_XR + 4096
L_FE = L_LS
DUMMY = 0xC0000000
DFLAG = 1 << 24
SPIN = 200000

def gen():
    R = Regs("v", 1, 256)
    vLS = R.alloc("vLS"); vLE = R.alloc("vLE")
    vCr = R.alloc("vCr", 5)
    RP = R.alloc("RP", 8, 2)
    XA = R.alloc("XA", 4); CX = R.alloc("CX", 4)
    S4 = R.alloc("S4", 4, 4); T = R.alloc("T", 8, 4)
    FX = R.alloc("FX", 16, 4); E = R.alloc("E", 16, 4)
    D = R.alloc("D", 32, 4); Q = R.alloc("Q", 32, 4); AG = R.alloc("AG", 32, 4); W = R.alloc("W", 16, 4)
    U0 = R.alloc("U0", 16, 4); WU = R.alloc("WU", 16, 4); EP = R.alloc("EP", 16, 4)
    SG = R.alloc("SG", 8, 4)
    sa = R.alloc("sa"); lane = R.alloc("lane"); l16 = R.alloc("l16"); m = R.alloc("m"); h = R.alloc("h")
    sac = R.alloc("sac"); lh = R.alloc("lh"); hz = R.alloc("hz"); aN = R.alloc("aN"); one = R.alloc("one"); nta = R.alloc("nta")
    h16 = RP + 1
    def Idf(j): return v(W + 4 * j, 4)
    def W3f(nh): return v(W + 8 + nh * 4, 4)
    def Es(t): return v(E + 4 * (t % 4), 4)
    sX, sE, sREC, sEM, sWS, sP = 16, 20, 24, 28, 32, 36
    sW, sSB, sS0, sSO, sN, sBASE, sCNT, sT, sXRB, sA, sB, sCAP = 40, 41, 42, 43, 44, 45, 46, 47, 48, 49, 50, 51
    sNB, sGL, sNMAX, sG, sL, sM7, sB30, sDF, sNS = 70, 71, 72, 73, 12, 13, 14, 15, 3
    sSTB, sOA, sTAG = 99, 93, 100
    t0, t1, t2, t3, t4, t5, t6, t7 = [T + i for i in range(8)]
    def mk(i): return f"s[{54+2*i}:{55+2*i}]"
    ORD = list(range(7, -1, -1))
    def skip(lab):
        a(f"s_cmp_le_u32 s{sCNT}, 384\ns_cbranch_scc1 {lab}6\ns_cmp_le_u32 s{sCNT}, 448\ns_cbranch_scc1 {lab}7")
    def after(lab, i):
        if i >= 6: a(f"{lab}{i}:")
    ne = 0 if "noe" in OPT["abl"] else 1
    steps = [f"row_shr:{sh} row_mask:0xf bank_mask:0xf bound_ctrl:0" for sh in (1, 2, 4, 8)] + ["row_bcast:15 row_mask:0xa bank_mask:0xf", "row_bcast:31 row_mask:0xc bank_mask:0xf"]

    DS_, SR_, CAD, RNK, PR_ = D, D + 8, D + 16, D + 24, Q
    oA, oB, t16, t4_, idx, rA, rB = [Q + 8 + i for i in range(7)]
    nz = Q + 16
    CS = Q + 20
    NA_, NB_ = M0 // 4, (CH - M0) // 4
    SDW = "dst_sel:DWORD dst_unused:UNUSED_PAD src0_sel:DWORD src1_sel:"
    a(f".p2align 8\n{KN}:")
    a(f"""
    s_cmp_ge_u32 s2, 256
    s_cbranch_scc1 M_END
    s_load_dwordx4 s[56:59], s[0:1], 16
    s_load_dwordx4 s[4:7], s[0:1], 0
    s_load_dwordx4 s[60:63], s[0:1], 32
    s_load_dwordx4 s[8:11], s[0:1], 48
    s_load_dwordx2 s[64:65], s[0:1], 64
    s_memrealtime s[66:67]
    """)
    stamp("all", 0)
    a(f"""
    s_setprio 2
    v_lshlrev_b32 v{t16}, 4, v0
    v_mov_b32 v{hz}, 0x80000000
    v_cmp_gt_u32 vcc, {NA_}, v0
    s_mul_i32 s{sA}, s2, 12800
    s_mov_b64 s[52:53], vcc
    v_cndmask_b32 v{rA}, v{hz}, v{t16}, vcc
    v_cmp_gt_u32 vcc, {NB_}, v0
    s_add_u32 s{sB}, s{sA}, {M0*4}
    s_mov_b64 s[54:55], vcc
    v_cndmask_b32 v{rB}, v{hz}, v{t16}, vcc
    s_mov_b32 s{sE+2}, 3200000
    s_mov_b32 s{sE+3}, 0x20000
    s_mov_b32 s{sEM+2}, 3200000
    s_mov_b32 s{sEM+3}, 0x20000
    v_lshlrev_b32 v{t4_}, 2, v0
    v_mov_b32 v{nta}, 0
    v_lshrrev_b32 v{t0}, 6, v0
    s_waitcnt lgkmcnt(0)
    s_mov_b32 s{sE}, s58
    s_mov_b32 s{sE+1}, s59
    s_mov_b32 s{sEM}, s56
    s_mov_b32 s{sEM+1}, s57
    buffer_load_dwordx4 {v(DS_,4)}, v{rA}, s[{sE}:{sE+3}], s{sA} offen
    buffer_load_dwordx4 {v(DS_+4,4)}, v{rB}, s[{sE}:{sE+3}], s{sB} offen
    buffer_load_dwordx4 {v(SR_,4)}, v{rA}, s[{sEM}:{sEM+3}], s{sA} offen
    buffer_load_dwordx4 {v(SR_+4,4)}, v{rB}, s[{sEM}:{sEM+3}], s{sB} offen
    ds_write_b32 v{t4_}, v{nta} offset:{S_CNT}
    ds_write_b32 v{t4_}, v{nta}
    v_readfirstlane_b32 s{sW}, v{t0}
    s_setprio 0
    """)
    srd(a, sP, 10, 256)
    a(f"""
    s_cmp_lt_u32 s2, {NCH}
    s_cbranch_scc1 S_NOTAG
    s_cmp_lg_u32 s{sW}, 0
    s_cbranch_scc1 S_NOTAG
    s_or_b32 s{sA}, s66, 1
    v_mov_b32 v{nz}, s{sA}
    v_mov_b32 v{nz+1}, s67
    v_mov_b32 v{nz+2}, 0
    v_mov_b32 v{nz+3}, 0
    s_mov_b64 exec, 1
    buffer_atomic_cmpswap_x2 {v(nz,4)}, v{nta}, s[{sP}:{sP+3}], 0 offen sc1
    s_mov_b64 exec, -1
    s_waitcnt vmcnt(0)
    S_NOTAG:
    s_mov_b32 s68, s10
    s_mov_b32 s69, s11
    s_mov_b32 s10, s64
    s_mov_b32 s11, s65
    s_cmp_lt_u32 s2, {NCH}
    s_cselect_b64 s[52:53], s[52:53], 0
    s_cselect_b64 s[54:55], s[54:55], 0
    v_and_b32 v{lane}, 63, v0
    v_lshlrev_b32 v{l16}, 4, v{lane}
    s_mul_i32 s{sL}, s2, {CH*32}
    s_lshl_b32 s{sT}, s{sW}, 10
    """)
    srd(a, sREC, 6, 0 if "nomv" in OPT["abl"] else 25600000)
    a("s_waitcnt lgkmcnt(0)\ns_barrier")
    if int(OPT["stl"]):
        a(f"""
        s_lshl_b32 s{sA}, s{sW}, 21
        s_add_u32 s{sB}, s{sA}, 0x1000000
        s_min_u32 s{sN}, s{sB}, {WS_EM + 256*EMS - 64}
        s_load_dword s66, s[10:11], s{sA}
        s_load_dword s66, s[10:11], s{sN}
        s_min_u32 s{sN}, s{sB}, {25600000 - 64}
        s_load_dword s66, s[6:7], s{sA}
        s_load_dword s66, s[6:7], s{sN}
        s_and_b32 s{sA}, s{sA}, 0x200000
        s_load_dword s66, s[8:9], s{sA}
        """)
    npiece = 0 if YM else M0 // 32
    nr = (npiece + 7) // 8
    ES = [int(x) for x in OPT["es"].split(",")]
    assert sum(ES) == nr
    EC = [sum(ES[:i]) for i in range(4)]
    def edma(slot):
        for r in range(EC[slot], EC[slot+1]):
            if (r + 1) * 8 > npiece:
                a(f"s_min_u32 s{sT}, s{sT}, {(npiece - 8*r - 1)*1024}")
            a(f"s_add_u32 m0, s{sT}, {S_E + r*8192}\ns_add_u32 s{sA}, s{sT}, {r*8192}\ns_add_u32 s{sA}, s{sA}, s{sL}\nbuffer_load_dwordx4 v{l16}, s[{sREC}:{sREC+3}], s{sA} offen lds")
    srd(a, sX, 4, 3200000)
    srd(a, sWS, 60, 18432)
    srd(a, sP, 62, 16384)
    def xrows():
        a(f"""
        v_lshrrev_b32 v{t0}, 4, v{lane}
        v_xor_b32 v{t0}, v{t0}, v{lane}
        v_and_b32 v{t0}, 7, v{t0}
        v_and_b32 v{t1}, 0x380, v{l16}
        v_lshl_or_b32 v{t0}, v{t0}, 4, v{t1}
        v_xor_b32 v{t1}, 64, v{t0}
        s_add_u32 m0, s{sGL}, {XRO - GLO}
        s_lshl_b32 s{sA}, s{sW}, 11
        s_add_u32 s{sB}, s{sA}, s{sS0}
        buffer_load_dwordx4 v{t0}, s[{sX}:{sX+3}], s{sB} offen lds
        buffer_load_dwordx4 v{t1}, s[{sX}:{sX+3}], s{sB} offen offset:1024 lds
        """)
    a(f"""
    s_and_b32 s74, s2, 7
    s_lshl_b32 s74, s74, 5
    s_lshr_b32 s{sA}, s2, 3
    s_add_u32 s74, s74, s{sA}
    s_lshl_b32 s{sA}, s74, 17
    s_add_u32 s{sA}, s{sA}, 1337
    s_mul_hi_u32 s{sS0}, s{sA}, 3209991
    s_add_u32 s{sA}, s{sA}, 131072
    s_mul_hi_u32 s{sNB}, s{sA}, 3209991
    s_min_u32 s{sNB}, s{sNB}, 25000
    s_sub_u32 s{sNB}, s{sNB}, s{sS0}
    s_and_b32 s{sSB}, s{sW}, 1
    s_lshl_b32 s{sSO}, s74, 1
    s_add_u32 s{sSO}, s{sSO}, s{sSB}
    s_mul_i32 s{sSO}, s{sSO}, 49
    s_sub_u32 s{sSO}, s{sSO}, s{sS0}
    s_sub_u32 s{sSO}, s{sSO}, 9
    s_lshl_b32 s{sS0}, s{sS0}, 7
    s_mul_i32 s{sGL}, s{sW}, {XRS}
    s_add_u32 s{sGL}, s{sGL}, {L_XR + GLO}
    """)
    xrows()
    a(f"""
    s_add_u32 m0, s{sA}, {S_W}
    s_lshl_b32 s{sB}, s{sSB}, 10
    buffer_load_dwordx4 v{l16}, s[{sWS}:{sWS+3}], s{sA} offen lds
    buffer_load_dwordx4 v{l16}, s[{sWS}:{sWS+3}], s{sA} offen offset:1024 lds
    s_add_u32 m0, s{sA}, {S_W + 18432}
    s_add_u32 s{sB}, s{sB}, 16384
    buffer_load_dwordx4 v{l16}, s[{sP}:{sP+3}], s{sA} offen lds
    buffer_load_dwordx4 v{l16}, s[{sP}:{sP+3}], s{sA} offen offset:1024 lds
    s_add_u32 m0, s{sB}, {S_W}
    s_nop 0
    buffer_load_dwordx4 v{l16}, s[{sWS}:{sWS+3}], s{sB} offen lds
    """)
    TLB = int(OPT["tlb"])
    srd(a, sWS, 10, 0x4000000)
    if TLB:
        a(f"""
        v_lshl_add_u32 v{t0}, v{lane}, 3, s{sW}
        v_lshlrev_b32 v{t0}, 20, v{t0}
        buffer_load_dword v{vCr+4}, v{t0}, s[{sWS}:{sWS+3}], 0 offen
        """)
    edma(0)
    a(f"""
    v_mov_b32 v{one}, 1
    v_mov_b32 v{t7}, 0x10000
    v_lshlrev_b32 v{idx}, 23, v0
    v_add_u32 v{idx}, 9, v{idx}
    v_lshlrev_b32 v{t6}, 5, v{lane}
    s_mov_b32 s{sB}, -49
    s_mov_b32 s{sM7}, {1<<21}
    s_mov_b32 s{sB30}, {2<<21}
    s_mov_b32 s{sDF}, {3<<21}
    s_setprio 2
    s_waitcnt vmcnt({EC[1]+9+TLB})
    """)
    stamp("srt", 1)
    for g in range(2):
        for i in range(4*g, 4*g + 4):
            a(f"v_mul_u32_u24 v{PR_+i}, 1338, v{DS_+i}\nv_lshlrev_b32_sdwa v{CAD+i}, 2, v{PR_+i} {SDW}WORD_1")
        a(f"s_mov_b64 exec, {'s[52:53]' if g == 0 else 's[54:55]'}")
        for i in range(4*g, 4*g + 4): a(f"ds_add_rtn_u32 v{RNK+i}, v{CAD+i}, v{one if g == 0 else t7} offset:{S_CNT}")
        a("s_mov_b64 exec, -1")
    def recs(rng):
        o = []
        for i in rng:
            o += [f"v_mad_i32_i16 v{PR_+i}, v{PR_+i}, s{sB}, v{DS_+i} op_sel:[1,0,0,0]", f"v_lshl_add_u32 v{PR_+i}, v{SR_+i}, 6, v{PR_+i}",
                  f"v_add3_u32 v{PR_+i}, v{PR_+i}, v{idx}, {('0', f's{sM7}', f's{sB30}', f's{sDF}')[i%4]}"]
        return o
    a("s_waitcnt lgkmcnt(0)\ns_barrier")
    stamp("srt", 2)
    OTG = S4
    a(f"""
    ds_read_b128 {v(CS,4)}, v{t6} offset:{S_CNT}
    ds_read_b128 {v(CS+4,4)}, v{t6} offset:{S_CNT+16}
    ds_read_b32 v{OTG+1}, v{t4_} offset:{S_CNT}
    s_waitcnt vmcnt({EC[1]+7+TLB})
    """)
    emit(recs(range(4)))
    a("s_waitcnt lgkmcnt(1)")
    for j in range(1, 8): a(f"v_add_u32 v{CS+j}, v{CS+j}, v{CS+j-1}")
    a(f"v_mov_b32 v{CS+8}, v{CS+7}")
    rr = recs(range(4, 8))
    for n, stp in enumerate(steps): a(f"{rr[2*n]}\n{rr[2*n+1]}\nv_add_u32_dpp v{CS+8}, v{CS+8}, v{CS+8} {stp}")
    a(f"v_sub_u32 v{CS+8}, v{CS+8}, v{CS+7}\nv_add_u32 v{CS+8}, {M0<<16}, v{CS+8}")
    for j in range(7, 0, -1): a(f"v_add_u32 v{CS+j}, v{CS+j-1}, v{CS+8}")
    a(f"""
    v_mov_b32 v{CS}, v{CS+8}
    ds_write_b128 v{t6}, {v(CS,4)} offset:{S_STA}
    ds_write_b128 v{t6}, {v(CS+4,4)} offset:{S_STA+16}
    """)
    for i in range(8): a(f"ds_read_b32 v{DS_+i}, v{CAD+i} offset:{S_STA}")
    a(f"ds_read_b32 v{OTG}, v{t4_} offset:{S_STA}")
    edma(1)
    for i in range(8):
        if i % 4 == 0: a(f"s_mov_b64 exec, {'s[52:53]' if i == 0 else 's[54:55]'}")
        a(f"""
        s_waitcnt lgkmcnt(8)
        v_add_u32 v{DS_+i}, v{DS_+i}, v{RNK+i}
        v_lshlrev_b32_sdwa v{DS_+i}, 2, v{DS_+i} {SDW}{'WORD_0' if i < 4 else 'WORD_1'}
        ds_write_b32 v{DS_+i}, v{PR_+i} offset:{S_SRT}
        """)
    a("s_mov_b64 exec, -1")
    stamp("srt", 3)
    a(f"s_load_dwordx2 s[{sTAG}:{sTAG+1}], s[68:69], 0")
    a(f"""
    v_lshrrev_b32 v{t1}, 1, v0
    v_lshlrev_b32 v{t1}, 2, v{t1}
    s_waitcnt lgkmcnt(0)
    s_barrier
    """)
    stamp("srt", 4)
    no = 0 if YM else (M0 + 255) // 256
    a(f"ds_read_b128 {v(D,4)}, v{t16} offset:{S_SRT}\nds_read_b128 {v(D+4,4)}, v{t16} offset:{S_SRT+M0*4}")
    for r in range(no): a(f"ds_read_b32 v{SG+r}, v{t1} offset:{S_SRT+1024*r}")
    edma(2)
    a(f"""
    s_mul_i32 s{sA}, s2, {RCS}
    s_add_u32 s{sB}, s{sA}, 8192
    v_and_b32 v{t2}, 1, v0
    v_lshlrev_b32 v{t2}, 4, v{t2}
    s_waitcnt lgkmcnt({no})
    buffer_store_dwordx4 {v(D,4)}, v{rA}, s[{sWS}:{sWS+3}], s{sA} offen sc1
    buffer_store_dwordx4 {v(D+4,4)}, v{rB}, s[{sWS}:{sWS+3}], s{sB} offen sc1
    s_mul_i32 s{sN}, s2, {OTS}
    s_add_u32 s{sN}, s{sN}, {WS_O}
    s_mov_b32 s{sB}, 0
    s_cmp_lg_u32 s{sTAG}, 0
    s_cbranch_scc1 S_TAGD
    S_TAGL:
    s_sleep 8
    global_load_dwordx2 {v(OTG+2,2)}, v{nta}, s[68:69] sc1
    s_add_u32 s{sB}, s{sB}, 1
    s_cmp_gt_u32 s{sB}, {SPIN}
    s_cbranch_scc1 M_END
    s_waitcnt vmcnt(0)
    v_readfirstlane_b32 s{sTAG}, v{OTG+2}
    v_readfirstlane_b32 s{sTAG+1}, v{OTG+3}
    s_nop 0
    s_cmp_eq_u32 s{sTAG}, 0
    s_cbranch_scc1 S_TAGL
    S_TAGD:
    v_add_u32 v{OTG}, {(2048-M0)<<16}, v{OTG}
    v_mov_b32 v{OTG+2}, s{sTAG}
    v_mov_b32 v{OTG+3}, s{sTAG+1}
    buffer_store_dwordx4 {v(OTG,4)}, v{t16}, s[{sWS}:{sWS+3}], s{sN} offen sc1
    s_movk_i32 s{sB}, {(M0 - 256*(no-1))*2}
    v_cmp_gt_u32 vcc, s{sB}, v0
    v_mov_b32 v{t4}, v{t16}
    v_and_b32 v{m}, 31, v{lane}
    v_lshrrev_b32 v{h}, 5, v{lane}
    v_cndmask_b32 v{t6}, v{hz}, v{t16}, vcc
    v_lshlrev_b32 v{t0}, 3, v0
    v_add_u32 v{t0}, {L_C8}, v{t0}
    v_mov_b32 v{D+8}, 0
    v_mov_b32 v{D+9}, 0
    ds_write_b64 v{t0}, {v(D+8,2)}
    v_bfe_u32 v{t1}, v{lane}, 2, 2
    v_lshl_add_u32 v{t1}, v{h}, 3, v{t1}
    v_lshlrev_b32 v{t1}, 7, v{t1}
    v_and_b32 v{t3}, 3, v{lane}
    v_lshl_add_u32 v{aN}, v{t3}, 3, v{t1}
    v_and_b32 v{t3}, 16, v{lane}
    v_lshl_add_u32 v{aN}, v{t3}, 1, v{aN}
    v_add_u32 v{t1}, v{t1}, v{t3}
    v_and_b32 v{t3}, 1, v{lane}
    v_lshl_add_u32 v{t1}, v{t3}, 5, v{t1}
    v_and_b32 v{t3}, 2, v{lane}
    v_lshl_add_u32 v{t1}, v{t3}, 2, v{t1}
    s_lshl_b32 s{sA}, s{sSB}, 6
    v_add_u32 v{sa}, s{sA}, v{t1}
    v_bfe_u32 v{sac}, v{m}, 1, 3
    v_xor_b32 v{sac}, v{sac}, v{h}
    v_lshlrev_b32 v{sac}, 4, v{sac}
    v_and_b32 v{t3}, 15, v{m}
    v_lshl_or_b32 v{sac}, v{t3}, 7, v{sac}
    v_lshrrev_b32 v{t3}, 4, v{m}
    v_mul_u32_u24 v{t3}, {XRS}, v{t3}
    s_and_b32 s{sA}, s{sW}, 6
    s_mul_i32 s{sA}, s{sA}, {XRS}
    s_add_u32 s{sA}, s{sA}, {L_XR + XRO}
    v_add3_u32 v{sac}, v{sac}, v{t3}, s{sA}
    s_waitcnt lgkmcnt(1)
    """)
    for r in range(no):
        a(f"v_lshrrev_b32 v{SG+r}, 21, v{SG+r}\nv_lshl_add_u32 v{SG+r}, v{SG+r}, 5, v{t2}")
    srd_off(a, sEM, 10, WS_EM, 0 if "nomv" in OPT["abl"] else 256 * 131072)
    OG = E + 12
    a(f"""
    s_lshl_b32 s{sOA}, s74, 5
    s_lshl_b32 s{sA}, s{sSB}, 4
    s_add_u32 s{sOA}, s{sOA}, s{sA}
    s_lshr_b32 s{sA}, s{sW}, 1
    s_mul_i32 s{sA}, s{sA}, {64*OTS}
    s_add_u32 s{sOA}, s{sOA}, s{sA}
    s_add_u32 s{sOA}, s{sOA}, {WS_O}
    v_mul_u32_u24 v{lh}, {OTS}, v{lane}
    s_mov_b32 s74, {f32(-LOG2E)}
    s_mov_b32 s75, {f32(-LOG2E)}
    s_waitcnt vmcnt(3) lgkmcnt(0)
    s_barrier
    """)
    stamp("srt", 5); stamp("top", 1)
    XF, W1t, Wx, PD, EO = FX, AG, EP, AG + 16, Q
    def tr(dst, areg, off):
        a(f"ds_read_b64_tr_b16 {v(dst,2)}, v{areg} offset:{S_W+off}\nds_read_b64_tr_b16 {v(dst+2,2)}, v{areg} offset:{S_W+off+512}")
    def w2read():
        for sx in range(4):
            for nh in range(2): tr(AG + (2*sx + nh)*4, aN, 8192 + 2048*sx + 64*nh)
    for r in range(no): a(f"ds_read_b128 {v(EO+4*r,4)}, v{SG+r} offset:{S_E}")
    for sx in range(4):
        a(f"ds_read_b128 {v(XF+4*sx,4)}, v{sac}" + (f"\nv_xor_b32 v{sac}, {(32, 96, 32)[sx]}, v{sac}" if sx < 3 else ""))
        tr(W1t + 4*sx, sa, 2048*sx)
    CEM = int(OPT["cem"])
    a(f"s_mul_i32 s{sA}, s2, {EMS}" if CEM else f"s_lshl_b32 s{sA}, s2, 17")
    for r in range(no):
        a(f"s_waitcnt lgkmcnt({min(15, no-1-r+12)})\nbuffer_store_dwordx4 {v(EO+4*r,4)}, v{t6 if r == no-1 else t4}, s[{sEM}:{sEM+3}], s{sA} offen sc1\ns_add_u32 s{sA}, s{sA}, 8192")
    a("s_waitcnt lgkmcnt(0)")
    for sx in range(4):
        a(f"v_mfma_f32_32x32x16_bf16 {v(PD,16)}, {v(W1t+4*sx,4)}, {v(XF+4*sx,4)}, {'0' if sx == 0 else v(PD,16)}")
    a(f"""
    v_mul_u32_u24 v{t0}, 80, v{m}
    v_lshl_add_u32 v{t0}, v{h}, 5, v{t0}
    v_add_u32 v{t0}, s{sGL}, v{t0}
    v_lshrrev_b32 v{t1}, 2, v{lane}
    v_and_b32 v{t2}, 0x30, v{l16}
    v_mul_u32_u24 v{t3}, 80, v{t1}
    v_add3_u32 v{t3}, v{t3}, v{t2}, s{sGL}
    s_lshr_b32 s{sA}, s{sW}, 1
    s_lshl_b32 s{sA}, s{sA}, 5
    v_add_u32 v{t1}, s{sA}, v{t1}
    v_add_u32 v{t5}, 16, v{t1}
    v_cmp_gt_u32 vcc, s{sNB}, v{t1}
    v_cmp_gt_u32 s[52:53], s{sNB}, v{t5}
    v_lshl_add_u32 v{t1}, v{t1}, 7, v{t2}
    v_lshl_add_u32 v{t5}, v{t5}, 7, v{t2}
    v_cndmask_b32 v{t1}, v{hz}, v{t1}, vcc
    v_cndmask_b32 v{t5}, v{hz}, v{t5}, s[52:53]
    s_lshl_b32 s{sA}, s{sSB}, 6
    s_add_u32 s{sA}, s{sA}, s{sS0}
    s_add_u32 s{sA}, s{sA}, {WS_P}
    """)
    for i in range(8): a(f"v_pk_mul_f32 {v(PD+2*i,2)}, {v(PD+2*i,2)}, s[74:75]")
    for i in range(8): a(f"v_cvt_pk_bf16_f32 v{PD+i}, v{PD+2*i}, v{PD+2*i+1}")
    a(f"""
    ds_write_b128 v{t0}, {v(PD,4)}
    ds_write_b128 v{t0}, {v(PD+4,4)} offset:16
    ds_read_b128 {v(D,4)}, v{t3}
    ds_read_b128 {v(D+4,4)}, v{t3} offset:{16*80}
    s_mov_b32 s{sCAP}, 512
    s_mov_b32 s{sBASE}, 0
    s_waitcnt lgkmcnt(1)
    buffer_store_dwordx4 {v(D,4)}, v{t1}, s[{sWS}:{sWS+3}], s{sA} offen sc1
    s_waitcnt lgkmcnt(0)
    buffer_store_dwordx4 {v(D+4,4)}, v{t5}, s[{sWS}:{sWS+3}], s{sA} offen sc1
    s_mov_b32 s92, 1
    s_lshl_b32 s{sN}, s2, {int(OPT["fst"])}
    s_add_u32 s{sN}, s{sN}, {WS_F2}
    """)
    stamp("srt", 6); stamp("syn", 1)
    FST = int(OPT["fst"])
    f2r = E + 9
    a(f"""
    s_cmp_lg_u32 s{sW}, 0
    s_waitcnt vmcnt(0)
    s_barrier
    s_cbranch_scc1 M_NOPUB
    s_mov_b64 exec, 1
    buffer_store_dwordx2 {v(OTG+2,2)}, v{nta}, s[{sWS}:{sWS+3}], s{sN} offen sc1
    s_mov_b64 exec, -1
    M_NOPUB:
    s_nop 7
    buffer_load_dwordx4 {v(OG,4)}, v{lh}, s[{sWS}:{sWS+3}], s{sOA} offen sc1
    """)
    XE = int(OPT["xe"])
    if XE:
        a(f"""
        s_lshr_b32 s{sA}, s2, 3
        s_lshl_b32 s{sA}, s{sA}, 7
        s_add_u32 s{sA}, s{sA}, {WS_P}
        v_lshl_add_u32 v{t0}, v{lane}, 3, s{sW}
        v_cmpx_gt_u32 vcc, {XE}, v{t0}
        v_lshlrev_b32 v{t0}, 12, v{t0}
        buffer_load_dword v{vCr+4}, v{t0}, s[{sWS}:{sWS+3}], s{sA} offen sc1
        s_mov_b64 exec, -1
        """)
    stamp("syn", 2)
    a(f"s_lshl_b32 s{sB}, s{sSB}, 12\nv_add_u32 v{t2}, s{sB}, v{sa}\nv_subrev_u32 v{t3}, s{sB}, v{sa}")
    for nh in range(2): tr(D + 8 + 4*nh, aN, 128*128 + 64*nh)
    for sx in range(4): tr(Wx + 4*sx, sa, 18432 + 2048*sx)
    a("s_waitcnt lgkmcnt(0)")
    for sx in range(4):
        a(f"v_mfma_f32_32x32x16_bf16 {v(U0,16)}, {v(Wx+4*sx,4)}, {v(XF+4*sx,4)}, {'0' if sx == 0 else v(U0,16)}")
    tr(WU, t2, 18432 + 8192); tr(WU + 4, t2, 18432 + 10240); tr(WU + 8, t3, 18432 + 12288); tr(WU + 12, t3, 18432 + 14336)
    w2read()
    for nh in range(2):
        for i in range(4):
            r = D + 8 + 4*nh + i
            a(f"v_lshlrev_b32 v{t0}, 16, v{r}\nv_and_b32 v{t1}, 0xffff0000, v{r}\nv_pk_mul_f32 {v(t0,2)}, {v(t0,2)}, s[74:75]\nv_cvt_pk_bf16_f32 v{W+8+4*nh+i}, v{t0}, v{t1}")
    srd_off(a, sP, 10, WS_P, 3200000)
    a(f"""
    v_lshlrev_b32 v{t0}, 3, v{h}
    v_sub_u32 v{t0}, v{m}, v{t0}
    v_and_b32 v{t1}, 1, v{t0}
    v_lshlrev_b32 v{t1}, 4, v{t1}
    v_mov_b32 v{t2}, 0x3f80
    v_lshlrev_b32 v{t1}, v{t1}, v{t2}
    v_lshrrev_b32 v{t0}, 1, v{t0}
    """)
    for j in range(2):
        for i in range(4):
            a(f"v_cmp_eq_u32 vcc, {8*j+i}, v{t0}\ns_nop 1\nv_cndmask_b32 v{W+4*j+i}, 0, v{t1}, vcc")
    a(f"""
    s_mul_i32 s{sSTB}, s{sW}, {SCAP*32}
    s_add_u32 s{sSTB}, s{sSTB}, {L_ST}
    s_mov_b32 s{sREC}, s10
    s_or_b32 s{sREC+1}, s11, {4<<16}
    s_mov_b32 s{sREC+2}, {WS_O//4}
    s_mov_b32 s{sREC+3}, 0x20000
    s_sub_u32 s{sE}, s6, {DFLAG*32}
    s_subb_u32 s{sE+1}, s7, 0
    s_or_b32 s{sE+1}, s{sE+1}, {32<<16}
    s_mov_b32 s{sE+2}, {(DFLAG + 800000) * ne}
    s_mov_b32 s{sE+3}, 0x20000
    s_sub_u32 s{sG}, 11, s{sW}
    s_cmp_lt_u32 s{sW}, 4
    s_cselect_b32 s{sG}, s{sW}, s{sG}
    s_mul_i32 s{sXRB}, s{sG}, {XRS}
    s_add_u32 s{sXRB}, s{sXRB}, {L_XR}
    s_mov_b32 s{sM7}, 0xffffff80
    s_mov_b32 s{sB30}, 0x40000000
    s_mov_b32 s{sDF}, {DFLAG}
    v_lshlrev_b32 v{RP+1}, 4, v{h}
    v_lshlrev_b32 v{RP+3}, 4, v{h}
    v_lshlrev_b32 v{RP+5}, 4, v{h}
    v_lshlrev_b32 v{RP+7}, 4, v{h}
    v_lshrrev_b32 v{t0}, 3, v{lane}
    s_lshl_b32 s{sA}, s{sG}, 7
    v_lshl_add_u32 v{vLS}, v{t0}, 4, s{sA}
    v_lshl_add_u32 v{vLE}, v{m}, 2, s{sA}
    v_and_b32 v{t3}, 1, v{t0}
    v_lshlrev_b32 v{t3}, 4, v{t3}
    v_lshl_add_u32 v{sac}, v{lane}, 5, v{t3}
    v_add_u32 v{sac}, s{sSTB}, v{sac}
    v_and_b32 v{t1}, 4, v{t0}
    v_and_b32 v{t2}, 7, v{lane}
    v_xor_b32 v{t1}, v{t1}, v{t2}
    v_lshlrev_b32 v{CX}, 4, v{t1}
    v_xor_b32 v{CX+1}, 16, v{CX}
    v_xor_b32 v{CX+2}, 32, v{CX}
    v_xor_b32 v{CX+3}, 48, v{CX}
    v_and_b32 v{t0}, 3, v{m}
    v_lshrrev_b32 v{t1}, 2, v{m}
    v_lshl_add_u32 v{t1}, v{t0}, 3, v{t1}
    v_lshlrev_b32 v{t1}, 7, v{t1}
    v_add_u32 v{t1}, s{sXRB}, v{t1}
    v_lshrrev_b32 v{t2}, 4, v{m}
    v_lshl_or_b32 v{t0}, v{t2}, 2, v{t0}
    v_xor_b32 v{t0}, v{t0}, v{h}
    v_lshl_add_u32 v{XA}, v{t0}, 4, v{t1}
    v_xor_b32 v{XA+1}, 32, v{XA}
    v_xor_b32 v{XA+2}, 64, v{XA}
    v_xor_b32 v{XA+3}, 0x60, v{XA}
    """)
    stamp("syn", 3)
    a(f"s_mov_b32 s{sA}, 0\ns_waitcnt vmcnt({1 if XE else 0})")
    kk12, c0, c1, g0, g1, p0, p1, tt, qa, f2r, fl0 = [E + i for i in range(11)]
    G, RC, NA, RK = D, D + 8, D + 16, D + 24
    TBv = FX
    OFv, CA = EP, EP + 8
    a(f"""
    s_branch M_POLLC
    M_BATCH:
    v_mul_u32_u24 v{lh}, {OTS}, v{lane}
    s_mov_b32 s{sA}, 0
    M_POLL:
    s_sleep {OPT["osl"]}
    buffer_load_dwordx4 {v(OG,4)}, v{lh}, s[{sWS}:{sWS+3}], s{sOA} offen sc1
    s_add_u32 s{sA}, s{sA}, 1
    s_cmp_gt_u32 s{sA}, {SPIN}
    s_cbranch_scc1 M_END
    s_waitcnt vmcnt(0)
    M_POLLC:
    v_cmpx_ne_u64 vcc, s[{sTAG}:{sTAG+1}], {v(OG+2,2)}
    s_cbranch_execnz M_POLL
    s_mov_b64 exec, -1
    s_lshr_b32 s{sA}, s{sW}, 1
    s_lshl_b32 s{sA}, s{sA}, 6
    v_add_lshl_u32 v{kk12}, v{lane}, s{sA}, 12
    v_lshl_add_u32 v{qa}, v{lane}, 2, s{sGL}
    v_mov_b32 v{t1}, 0xffff
    v_lshrrev_b32 v{lh}, 1, v{lane}
    """)
    stamp("pro", 1); stamp("syn", 4)
    a(f"v_and_b32 v{p0}, v{t1}, v{OG+1}\nv_lshrrev_b32 v{p1}, 16, v{OG+1}")
    fl = [f"v_and_or_b32 v{g0}, v{OG}, v{t1}, v{kk12}", f"v_lshrrev_b32 v{g1}, 16, v{OG}", f"v_or_b32 v{g1}, v{g1}, v{kk12}",
          f"v_and_b32 v{c0}, v{t1}, v{OG+1}", f"v_lshrrev_b32 v{c1}, 16, v{OG+1}", "s_nop 0"]
    for n, stp in enumerate(steps):
        a(f"{fl[n]}\nv_add_u32_dpp v{p0}, v{p0}, v{p0} {stp}\nv_add_u32_dpp v{p1}, v{p1}, v{p1} {stp}")
    a(f"""
    v_readlane_b32 s{sNS}, v{p0}, 63
    v_readlane_b32 s{sN}, v{p1}, 63
    v_sub_u32 v{p0}, v{p0}, v{c0}
    v_sub_u32 v{p1}, v{p1}, v{c1}
    s_add_u32 s{sN}, s{sN}, s{sNS}
    v_add_u32 v{p1}, s{sNS}, v{p1}
    s_mov_b32 s{sCNT}, s{sN}
    s_add_u32 s{sA}, s{sN}, s{sBASE}
    s_cmp_le_u32 s{sA}, s{sCAP}
    s_cbranch_scc0 M_WIN
    s_cmp_eq_u32 s{sBASE}, 0
    s_cbranch_scc1 M_NOWIN
    M_WIN:
    s_sub_i32 s{sCNT}, s{sN}, s{sBASE}
    s_max_i32 s{sCNT}, s{sCNT}, 0
    s_min_u32 s{sCNT}, s{sCNT}, s{sCAP}
    s_sub_i32 s{sNS}, s{sNS}, s{sBASE}
    s_max_i32 s{sNS}, s{sNS}, 0
    """)
    for (pp, cc, gg) in ((p0, c0, g0), (p1, c1, g1)):
        a(f"""
        v_subrev_u32 v{tt}, s{sBASE}, v{pp}
        v_max_i32 v{pp}, 0, v{tt}
        v_add_u32 v{cc}, v{tt}, v{cc}
        v_min_i32 v{cc}, s{sCAP}, v{cc}
        v_sub_u32 v{cc}, v{cc}, v{pp}
        v_sub_u32 v{tt}, v{pp}, v{tt}
        v_add_u32 v{gg}, v{gg}, v{tt}
        """)
    a(f"M_NOWIN:\ns_min_u32 s{sNS}, s{sNS}, {0 if YM else SCAP}")
    pa, ca_, ga, gb = t0, t1, t2, t3
    for n, (pp, cc, gg) in enumerate(((p0, c0, g0), (p1, c1, g1))):
        a(f"""
        v_lshl_add_u32 v{pp}, v{pp}, 2, s{sGL}
        v_add_u32 v{ga}, 1, v{gg}
        v_add_u32 v{gb}, 2, v{gg}
        v_mov_b32 v{ca_}, v{cc}
        v_mov_b32 v{pa}, v{pp}
        M_EXP{n}:
        """)
        for r in (1, 3, 5, 7):
            a(f"v_cmpx_lt_i32 vcc, {r}, v{ca_}\nds_write2_b32 v{pa}, v{ga}, v{gb} offset0:{r} offset1:{r+1}\nv_add_u32 v{ga}, 2, v{ga}\nv_add_u32 v{gb}, 2, v{gb}")
        a(f"""
        v_cmpx_lt_i32 vcc, 9, v{ca_}
        v_add_u32 v{pa}, 32, v{pa}
        v_subrev_u32 v{ca_}, 8, v{ca_}
        s_cbranch_execnz M_EXP{n}
        s_mov_b64 exec, -1
        """)
    a(f"""
    v_cmpx_lt_i32 vcc, 0, v{c0}
    ds_write_b32 v{p0}, v{g0}
    s_mov_b64 exec, -1
    v_cmpx_lt_i32 vcc, 0, v{c1}
    ds_write_b32 v{p1}, v{g1}
    s_mov_b64 exec, -1
    """)
    for i in ORD:
        a(f"ds_read_b32 v{G+i}, v{qa} offset:{256*i}")
    a(f"v_lshl_add_u32 v{t1}, v{lh}, 2, s{sGL}")
    for j in range(7):
        a(f"ds_read_b32 v{SG+j}, v{t1} offset:{128*j}")
    for i in ORD:
        a(f"s_sub_i32 s{sA}, s{sCNT}, {64*i}\nv_cmp_gt_i32 {mk(i)}, s{sA}, v{lane}")
    a(f"""
    v_lshrrev_b32 v{t2}, 4, v{lane}
    v_xor_b32 v{t2}, v{t2}, v{lane}
    v_and_b32 v{t2}, 1, v{t2}
    v_lshlrev_b32 v{t2}, 4, v{t2}
    v_mov_b32 v{fl0}, s{sCNT}
    v_mov_b32 v{fl0+1}, s{sN}
    s_waitcnt lgkmcnt(0)
    """)
    if CEM: a(f"s_mov_b32 s{sA}, {EMS//32-4096}")
    for j in range(7):
        if CEM: a(f"v_lshrrev_b32 v{t3}, 12, v{SG+j}\nv_mad_i32_i24 v{SG+j}, v{t3}, s{sA}, v{SG+j}")
        a(f"v_lshl_add_u32 v{SG+j}, v{SG+j}, 5, v{t2}")
    for i in range(8): a(f"v_lshrrev_b32 v{t3}, 12, v{G+i}\nv_mad_u32_u24 v{RC+i}, v{t3}, {SKW//4}, v{G+i}")
    stamp("pro", 2); stamp("syn", 5)
    a(f"""
    s_cmp_eq_u32 s92, 0
    s_cbranch_scc1 M_READY
    s_mov_b32 s92, 0
    """)
    a(f"""
    s_lshr_b32 s{sB}, s{sW}, 1
    s_lshl_b32 s{sB}, s{sB}, {FST+6}
    s_add_u32 s{sB}, s{sB}, {WS_F2}
    v_lshlrev_b32 v{f2r}, {FST}, v{lane}
    s_mov_b32 s{sA}, 0
    s_branch M_FL1
    M_FL:
    s_sleep {OPT["osl"]}
    M_FL1:
    buffer_load_dwordx2 {v(OG,2)}, v{f2r}, s[{sWS}:{sWS+3}], s{sB} offen sc1
    s_add_u32 s{sA}, s{sA}, 1
    s_cmp_gt_u32 s{sA}, {SPIN}
    s_cbranch_scc1 M_END
    s_waitcnt vmcnt(0)
    v_cmpx_ne_u64 vcc, s[{sTAG}:{sTAG+1}], {v(OG,2)}
    s_cbranch_execnz M_FL
    M_READY:
    """)
    stamp("top", 2); stamp("syn", 6)
    skip("M_GA")
    for i in ORD:
        a(f"s_mov_b64 exec, {mk(i)}\nbuffer_load_dword v{RC+i}, v{RC+i}, s[{sREC}:{sREC+3}], 0 idxen {LD}")
        after("M_GA", i)
    a("s_mov_b64 exec, -1")
    for i in range(4): a(f"v_mov_b32 v{t4+i}, {DUMMY}")
    a(f"v_lshlrev_b32 v{t0}, 4, v0\nv_lshlrev_b32 v{t1}, 2, v0\ns_waitcnt lgkmcnt(0)\ns_barrier")
    def stage(js):
        for j in ([] if YM else js):
            a(f"""
            s_sub_i32 s{sA}, s{sNS}, {32*j}
            s_add_u32 m0, s{sSTB}, {1024*j}
            v_cmpx_gt_i32 vcc, s{sA}, v{lh}
            buffer_load_dwordx4 v{SG+j}, s[{sEM}:{sEM+3}], 0 offen {LD} lds
            """)
        a("s_mov_b64 exec, -1")
    NS1 = int(OPT["ns1"])
    stage(range(NS1))
    XW = int(OPT["xw"])
    def pwarm():
        if XW:
            a(f"""
            s_lshr_b32 s{sA}, s2, 3
            s_mul_i32 s{sA}, s{sA}, {XW*128}
            s_add_u32 s{sA}, s{sA}, {XE*4096}
            v_lshl_add_u32 v{tt}, v{lane}, 3, s{sW}
            v_cmpx_gt_u32 vcc, {XW}, v{tt}
            v_lshlrev_b32 v{tt}, 7, v{tt}
            buffer_load_dword v{vCr+4}, v{tt}, s[{sP}:{sP+3}], s{sA} offen sc1
            s_mov_b64 exec, -1
            """)
    assert 2 * LSZ == 4 * 8192 + 2048
    for i in range(4): a(f"ds_write_b128 v{t0}, {v(t4,4)} offset:{L_LS+8192*i}")
    a(f"ds_write_b32 v{t1}, v{t4} offset:{L_LS+8192*4}")
    a(f"""
    s_mov_b32 s75, {L_C8}
    s_mov_b64 exec, 1
    ds_add_u32 v{nta}, v{fl0} offset:{L_NT}
    ds_max_u32 v{nta}, v{fl0+1} offset:{L_MX}
    """)
    skip("M_RK")
    for i in ORD:
        a(f"""
        s_mov_b64 exec, {mk(i)}
        s_waitcnt vmcnt({i+NS1})
        v_and_b32 v{NA+i}, 63, v{RC+i}
        v_bfe_u32 v{tt}, v{RC+i}, 18, 3
        v_add_u32 v{NA+i}, s{sSO}, v{NA+i}
        v_lshl_add_u32 v{CA+i}, v{NA+i}, 2, s75
        v_lshl_add_u32 v{CA+i}, v{tt}, 9, v{CA+i}
        ds_add_rtn_u32 v{RK+i}, v{CA+i}, v{one}
        """)
        after("M_RK", i)
    def pack(lab):
        a(f"s_movk_i32 s{sB}, {CH}\ns_mov_b32 s74, {int(OPT['epf'])*128}")
        skip(lab)
        for i in ORD:
            a(f"""
            v_lshrrev_b32 v{t0}, 12, v{G+i}
            v_lshrrev_b32 v{tt}, 21, v{RC+i}
            v_bfe_i32 v{t1}, v{G+i}, 11, 1
            v_mad_u32_u24 v{tt}, v{t0}, s{sB}, v{tt}
            v_and_b32 v{t1}, {M0}, v{t1}
            v_bfe_u32 v{RC+i}, v{RC+i}, 6, 15
            v_add3_u32 v{G+i}, v{t1}, v{tt}, s{sDF}
            v_lshl_add_u32 v{RC+i}, v{RC+i}, 7, v{NA+i}
            v_lshlrev_b32 v{NA+i}, 3, v{NA+i}
            """)
            if i < 4 and not YM:
                a(f"""
                s_sub_i32 s{sA}, s{sNS}, {64*i}
                v_cmp_gt_i32 vcc, s{sA}, v{lane}
                v_add_u32 v{tt}, {2048*i}, v{sac}
                s_nop 0
                v_cndmask_b32 v{G+i}, v{G+i}, v{tt}, vcc
                """)
            if int(OPT["epf"]):
                a(f"s_mov_b64 exec, {mk(i)}\nv_cmpx_gt_u32 vcc, s74, v{RC+i}" + ("" if YM or i >= 4 else f"\nv_cmpx_le_u32 vcc, s{sDF}, v{G+i}") + f"\nbuffer_load_dword v{vCr+4}, v{G+i}, s[{sE}:{sE+3}], 0 idxen\ns_mov_b64 exec, -1")
            after(lab, i)
    a("s_mov_b64 exec, -1")
    stamp("pro", 3)
    a(f"""
    s_cmp_eq_u32 s{sW}, 0
    s_cbranch_scc1 M_PK0
    s_lshl_b32 s{sA}, s{sW}, 8
    s_add_u32 s{sA}, s{sA}, {L_C8 - 256}
    v_lshl_add_u32 v{S4}, v{lane}, 2, s{sA}
    v_mov_b32 v{Q+8}, 0
    s_waitcnt lgkmcnt(0)
    s_barrier
    """)
    stamp("pro", 4)
    a(f"s_cmp_gt_u32 s{sW}, 2\ns_cbranch_scc1 M_NOPFX")
    for j in range(3): a(f"ds_read2st64_b32 {v(Q+2*j,2)}, v{S4} offset0:{4*j} offset1:{4*j+2}")
    a(f"s_waitcnt lgkmcnt(0)\nv_mov_b32 v{Q+9}, v{Q}")
    for j in range(1, 6): a(f"v_add_u32 v{Q+9+j}, v{Q+8+j}, v{Q+j}")
    for j in range(4): a(f"ds_write2st64_b32 v{S4}, v{Q+8+2*j}, v{Q+9+2*j} offset0:{C8O//256+4*j} offset1:{C8O//256+4*j+2}")
    a("M_NOPFX:\ns_setprio 0")
    stage(range(NS1, 7)); pwarm(); pack("M_PB")
    a("s_waitcnt lgkmcnt(0)\ns_barrier\ns_branch M_P4E")
    d0, d1, f0, f1, k0, k1, vL, vR, ks, a4, l0, l1, o0, o1, cn, ci = [Q + i for i in range(16)]
    m0_, B0, m1_, B1 = S4, S4+1, S4+2, S4+3
    a(f"""
    M_PK0:
    s_setprio 3
    v_lshlrev_b32 v{a4}, 3, v{lane}
    v_lshlrev_b32 v{cn}, 2, v{lane}
    v_add_u32 v{cn}, {L_C8}, v{cn}
    v_sub_u32 v{ci}, 31, v{m}
    v_lshlrev_b32 v{ci}, 2, v{ci}
    s_mov_b32 s75, {f32(4194304.0)}
    s_waitcnt lgkmcnt(0)
    s_barrier
    """)
    stamp("pro", 4)
    a(f"ds_read_b32 v{ks}, v{nta} offset:{L_NT}")
    for j in range(7): a(f"ds_read2st64_b32 {v(FX+2*j,2)}, v{cn} offset0:{2*j} offset1:{2*j+1}")
    a(f"""
    s_waitcnt lgkmcnt(4)
    v_readfirstlane_b32 s{sL}, v{ks}
    v_add3_u32 v{d0}, v{FX}, v{FX+2}, v{FX+4}
    v_add3_u32 v{d1}, v{FX+1}, v{FX+3}, v{FX+5}
    s_lshr_b32 s{sL}, s{sL}, 8
    s_add_u32 s{sL}, s{sL}, 2
    s_waitcnt lgkmcnt(0)
    v_add3_u32 v{d0}, v{d0}, v{FX+6}, v{FX+8}
    v_add3_u32 v{d1}, v{d1}, v{FX+7}, v{FX+9}
    v_add3_u32 v{d0}, v{d0}, v{FX+10}, v{FX+12}
    v_add3_u32 v{d1}, v{d1}, v{FX+11}, v{FX+13}
    v_cvt_f32_u32 v{f0}, v{d0}
    v_cvt_f32_u32 v{f1}, v{d1}
    M_LS:
    s_add_u32 s{sL}, s{sL}, 1
    s_cmp_gt_u32 s{sL}, {LMAX}
    s_cbranch_scc1 M_P4W
    v_cvt_f32_u32 v{vL}, s{sL}
    v_rcp_f32 v{vR}, v{vL}
    v_add_f32 v{vL}, -0.5, v{vL}
    v_add_f32 v{k0}, v{f0}, v{vL}
    v_add_f32 v{k1}, v{f1}, v{vL}
    v_mul_f32 v{k0}, v{k0}, v{vR}
    v_mul_f32 v{k1}, v{k1}, v{vR}
    v_cvt_u32_f32 v{k0}, v{k0}
    v_cvt_u32_f32 v{k1}, v{k1}
    v_add_u32 v{ks}, v{k0}, v{k1}
    """)
    fillers = [f"v_cvt_f32_u32 v{l0}, v{k0}", f"v_cvt_f32_u32 v{l1}, v{k1}",
               f"v_rcp_f32 v{m0_}, v{l0}", f"v_rcp_f32 v{m1_}, v{l1}",
               f"v_add_f32 v{l0}, v{l0}, v{f0}", f"v_add_f32 v{l1}, v{l1}, v{f1}",
               f"v_add_f32 v{l0}, -0.5, v{l0}", f"v_add_f32 v{l1}, -0.5, v{l1}",
               f"v_mul_f32 v{l0}, v{l0}, v{m0_}", f"v_mul_f32 v{l1}, v{l1}, v{m1_}",
               f"v_cvt_u32_f32 v{l0}, v{l0}", f"v_cvt_u32_f32 v{l1}, v{l1}"]
    for n, stp in enumerate(steps):
        a(f"{fillers[2*n]}\n{fillers[2*n+1]}\nv_add_u32_dpp v{ks}, v{ks}, v{ks} {stp}")
    a(f"""
    v_lshlrev_b32 v{l0}, 2, v{l0}
    v_readlane_b32 s{sA}, v{ks}, 63
    v_lshlrev_b32 v{l1}, 2, v{l1}
    s_cmp_gt_u32 s{sA}, 256
    s_cbranch_scc1 M_LS
    ds_add_rtn_u32 v{o0}, v{l0}, v{k0} offset:{L_CNT}
    ds_add_rtn_u32 v{o1}, v{l1}, v{k1} offset:{L_CNT}
    ds_read_b32 v{cn}, v{ci} offset:{L_CNT}
    v_mul_f32 v{m0_}, s75, v{m0_}
    v_mul_f32 v{m1_}, s75, v{m1_}
    v_cvt_u32_f32 v{m0_}, v{m0_}
    v_cvt_u32_f32 v{m1_}, v{m1_}
    v_add_u32 v{m0_}, 2, v{m0_}
    v_add_u32 v{m1_}, 2, v{m1_}
    v_lshlrev_b32 v{B0}, 2, v{k0}
    v_lshlrev_b32 v{B1}, 2, v{k1}
    v_sub_u32 v{B0}, 1024, v{B0}
    v_sub_u32 v{B1}, 1024, v{B1}
    v_sub_u32 v{l0}, 124, v{l0}
    v_sub_u32 v{l1}, 124, v{l1}
    s_waitcnt lgkmcnt(0)
    v_mov_b32 v{ks}, v{cn}
    """)
    for stp in steps[:5]:
        a(f"s_nop 1\nv_add_u32_dpp v{ks}, v{ks}, v{ks} {stp}")
    a(f"""
    v_sub_u32 v{ks}, v{ks}, v{cn}
    ds_bpermute_b32 v{d0}, v{l0}, v{ks}
    ds_bpermute_b32 v{d1}, v{l1}, v{ks}
    ds_write_b32 v{ci}, v{ks} offset:{L_BAS}
    s_waitcnt lgkmcnt(1)
    v_add_u32 v{o0}, v{o0}, v{d0}
    v_add_u32 v{o1}, v{o1}, v{d1}
    v_lshl_or_b32 v{m0_}, v{o0}, 24, v{m0_}
    v_lshl_or_b32 v{m1_}, v{o1}, 24, v{m1_}
    ds_write2st64_b64 v{a4}, {v(m0_,2)}, {v(m1_,2)} offset0:0 offset1:1
    M_P4W:
    v_mov_b32 v{ks}, s{sL}
    ds_write_b32 v{nta}, v{ks} offset:{L_MX+4}
    s_waitcnt lgkmcnt(0)
    s_barrier
    """)
    stage(range(NS1, 7)); pwarm(); pack("M_PA")
    u0, nn = Q + 20, Q + 26
    a("M_P4E:")
    stamp("pro", 5)
    a(f"""
    ds_read_b64 {v(u0,2)}, v{nta} offset:{L_MX}
    v_lshlrev_b32 v{tt}, 2, v{m}
    ds_read_b32 v{u0+2}, v{tt} offset:{L_CNT}
    ds_read_b32 v{u0+3}, v{tt} offset:{L_BAS}
    s_lshr_b32 s{sA}, s{sW}, 1
    s_lshl_b32 s{sA}, s{sA}, 5
    v_add_u32 v{nn}, s{sA}, v{m}
    v_lshlrev_b32 v{tt}, 3, v{nn}
    ds_read_b64 {v(u0+4,2)}, v{tt} offset:{L_TB}
    """)
    skip("M_TR")
    for i in ORD:
        a(f"s_mov_b64 exec, {mk(i)}\nds_read_b64 {v(TBv+2*i,2)}, v{NA+i} offset:{L_TB}\nds_read_b32 v{OFv+i}, v{CA+i} offset:{C8O}")
        after("M_TR", i)
    a(f"""
    s_mov_b64 exec, -1
    s_lshl_b32 s{sA}, s{sG}, 5
    s_waitcnt lgkmcnt(12)
    v_readfirstlane_b32 s{sNMAX}, v{u0}
    v_readfirstlane_b32 s{sL}, v{u0+1}
    v_add_u32 v{u0+2}, v{u0+2}, v{u0+3}
    v_cmp_ge_u32 vcc, s{sA}, v{u0+3}
    v_cmp_lt_u32 s[52:53], s{sA}, v{u0+2}
    s_and_b64 s[52:53], s[52:53], vcc
    s_ff1_i32_b32 s{sT}, s52
    s_max_i32 s{sT}, s{sT}, 0
    s_cmp_le_u32 s{sL}, {LMAX}
    s_cbranch_scc1 M_P5
    s_mov_b32 s{sCAP}, 256
    s_branch M_AGAIN
    M_P5:
    """)
    skip("M_SC")
    for i in ORD:
        mm, BB = TBv + 2*i, TBv + 2*i + 1
        a(f"""
        s_mov_b64 exec, {mk(i)}
        s_waitcnt lgkmcnt({2*i + max(0, 5-i)})
        v_add_u32 v{RK+i}, v{RK+i}, v{OFv+i}
        v_lshrrev_b32 v{tt}, 24, v{mm}
        v_mul_u32_u24 v{mm}, v{mm}, v{RK+i}
        v_add_lshl_u32 v{tt}, v{tt}, v{RK+i}, 2
        v_lshrrev_b32 v{mm}, 22, v{mm}
        v_mad_u32_u24 v{tt}, v{mm}, v{BB}, v{tt}
        ds_write2st64_b32 v{tt}, v{RC+i}, v{G+i} offset0:{L_LS//256} offset1:{L_LE//256}
        """)
        after("M_SC", i)
    ca0, ca1, ca2, ca3, kk, oa, fa, da = [EP + i for i in range(8)]
    epi_setup = f"""
    s_lshl_b32 s{sA}, s{sSB}, 7
    s_add_u32 s{sA}, s{sA}, {L_XR}
    s_movk_i32 s{sB}, 0x3fc
    s_movk_i32 s75, 0x3f8
    v_mov_b32 v{kk}, v{u0+5}
    v_lshrrev_b32 v{ca0}, 24, v{u0+4}
    v_mul_u32_u24 v{ca0}, 272, v{ca0}
    v_lshl_add_u32 v{ca0}, v{h16}, 1, v{ca0}
    v_add_u32 v{ca0}, s{sA}, v{ca0}
    v_mov_b32 v{da}, {L_ZR}
    v_cmp_gt_u32 s[56:57], s{sB}, v{kk}
    v_cmp_gt_u32 s[58:59], s75, v{kk}
    v_add_u32 v{ca1}, 272, v{ca0}
    v_add_u32 v{ca2}, 544, v{ca0}
    v_add_u32 v{ca3}, 816, v{ca0}
    v_cmp_gt_u32 vcc, 0x400, v{kk}
    v_cndmask_b32 v{ca1}, v{da}, v{ca1}, s[56:57]
    v_cndmask_b32 v{ca2}, v{da}, v{ca2}, s[58:59]
    v_cndmask_b32 v{ca0}, v{da}, v{ca0}, vcc
    v_cmp_gt_u32 vcc, s{sNB}, v{nn}
    v_lshlrev_b32 v{oa}, 7, v{nn}
    v_lshl_add_u32 v{oa}, v{h16}, 1, v{oa}
    s_lshl_b32 s{sA}, s{sW}, 11
    v_cndmask_b32 v{oa}, v{hz}, v{oa}, vcc
    v_add_u32 v{fa}, s{sA}, v{l16}
    v_mul_u32_u24 v{da}, 272, v{m}
    v_add3_u32 v{da}, v{da}, v{h16}, s{sXRB}
    """
    a(f"""
    s_mov_b64 exec, -1
    s_setprio 0
    """)
    a("s_waitcnt lgkmcnt(0)\ns_barrier")
    stamp("top", 3); stamp("pro", 6); stamp("pri", 1)
    a(f"s_cmp_lg_u32 s{sT}, 0\ns_cbranch_scc1 M_GO")
    a(epi_setup)
    a("s_waitcnt vmcnt(0)\ns_barrier\ns_branch M_BEND\nM_GO:")
    S = []
    ef = OPT["eflags"]
    def le_read(t, p): return (f"ds_read_b32 v{RP+2*p}, v{vLE} offset:{L_LE+1024*t}", f"le{t}")
    def ls_read(t, dst): return (f"ds_read_b128 {v(dst,4)}, v{vLS} offset:{L_LS+1024*t}", f"ls{t}")
    def st_addr(p): return f"v_xor_b32 v{sa}, v{RP+2*p}, v{h16}"
    def st_read(t): return (f"ds_read_b128 {Es(t)}, v{sa}", f"st{t}")
    def d_pre(t, p): return [f"v_cmp_le_u32 vcc, s{sDF}, v{RP+2*p}", f"v_and_or_b32 v{vCr+t%5}, v{RP+2*p}, s{sB30}, 1.0"]
    def d_load(t, p): return ["s_mov_b64 exec, vcc", (f"buffer_load_dwordx4 {Es(t)}, {v(RP+2*p,2)}, s[{sE}:{sE+3}], 0 idxen offen {ef}", f"D{t}"), "s_mov_b64 exec, -1"]
    def x_addr(src): return [f"v_and_or_b32 v{S4+i}, v{src+i}, s{sM7}, v{CX+i}" for i in range(4)]
    def x_dma(t, nop=True, reg=None, soff="0", tag=None):
        o = []
        for i in range(4):
            sr = sP
            o += [f"s_add_u32 m0, s{sXRB}, {(t&1)*4096+i*1024}"] + (["s_nop 0"] if nop else []) + \
                 [(f"buffer_load_dwordx4 v{(reg or S4)+i}, s[{sr}:{sr+3}], {soff} offen {LD} lds", tag or f"X{t}")]
        return o
    def fx_read(t, sx, tag=None): return (f"ds_read_b128 {v(FX+4*sx,4)}, v{XA+sx} offset:{(t&1)*4096}", tag or f"fx{t}")
    def chain(nh, t):
        Dh = v(D + 16 * nh, 16)
        return [f"v_mfma_f32_32x32x16_bf16 {Dh}, {W3f(nh)}, {Es(t)}, {v(Q+16*nh,16)}"] + \
               [f"v_mfma_f32_32x32x16_bf16 {Dh}, {Idf(j)}, {v(FX+8*nh+4*j,4)}, {Dh}" for j in range(2)]
    nd, L1, L2 = D, D + 4, SG
    def ps(i): return [f"s_memrealtime s[{76+2*i}:{77+2*i}]", "s_waitcnt lgkmcnt(0)"] if MODE == "pri" else []
    S += [ls_read(0, S4), (f"ds_read_b32 v{nd}, v{vLE} offset:{L_LS}", "nd")] + [le_read(j, j) for j in range(4)] + [ls_read(1, L1), ls_read(2, L2), ("@W", None, "nd")]
    S += x_addr(S4)
    xa_ = [f"v_bfe_u32 v{nd+1}, v{nd}, 4, 3", f"v_mul_u32_u24 v{nd+1}, {XRS}, v{nd+1}", f"v_bfe_u32 v{nd+2}, v{nd}, 1, 3", f"v_xor_b32 v{nd+2}, v{nd+2}, v{h}"]
    dm = x_dma(0, nop=False)
    for i in range(4): S += [dm[2*i], xa_[i], dm[2*i+1]]
    S += [f"v_and_b32 v{nd}, 15, v{nd}", f"v_lshl_add_u32 v{nd+1}, v{nd}, 7, v{nd+1}", f"v_lshl_add_u32 v{nd+1}, v{nd+2}, 4, v{nd+1}", f"v_add_u32 v{nd+1}, {L_XR+XRO}, v{nd+1}"]
    for sx in range(4):
        S += [(f"ds_read_b128 {v(FX+4*sx,4)}, v{nd+1}", "xd")] + ([f"v_xor_b32 v{nd+1}, {(32, 96, 32)[sx]}, v{nd+1}"] if sx < 3 else [])
    def dl(j): return d_pre(j, j) + [f"s_not_b64 s[{60+2*j}:{61+2*j}], vcc"] + d_load(j, j)
    S += [("@W", None, "ls2")] + dl(0) + ps(2)
    ep = [l.strip() for l in epi_setup.strip().split("\n")]
    S += ep + x_addr(L1) + [("@W", None, "xd")]
    for nh in range(2):
        for sx in range(4):
            S.append(f"v_mfma_f32_32x32x16_bf16 {v(Q+16*nh,16)}, {v(AG+(sx*2+nh)*4,4)}, {v(FX+4*sx,4)}, {'0' if sx == 0 else v(Q+16*nh,16)}")
    S += ["s_waitcnt vmcnt(5)"] + ps(3) + ["s_barrier"] + ps(4)
    S += [st_addr(0), "s_mov_b64 exec, s[60:61]", st_read(0), "s_mov_b64 exec, -1"]
    for j in range(1, 4): S += [st_addr(j), st_read(j)]
    S += [f"s_mov_b32 s74, {f32(-LOG2E)}", f"s_mov_b32 s75, {f32(-LOG2E)}"]
    S += [("@W", "D0", None)] + ps(5) + [fx_read(0, sx) for sx in range(4)]
    S += [f"v_pk_mul_f32 {v(Q+2*i,2)}, {v(Q+2*i,2)}, s[74:75]" for i in range(16)] + [("@W", None, "fx0")]
    S += chain(0, 0) + d_pre(1, 1) + d_load(1, 1) + x_dma(1) + [f"v_and_or_b32 v{L2+i}, v{L2+i}, s{sM7}, v{CX+i}" for i in range(4)] + ps(6)
    if MODE: S += [f"s_mov_b32 s90, s{sT}", f"s_mov_b32 s98, s{sL}", "s_memtime s[94:95]", "s_waitcnt lgkmcnt(0)"]
    if MODE == "top": S += ["s_memrealtime s[84:85]", "s_waitcnt lgkmcnt(0)"]
    def phase(nh, t, mf, fill):
        Db, Ab = D + 16*nh, AG + 16*nh
        c = vCr + t % 5
        cp = f"{v(c & ~1, 2)} " + ("op_sel_hi:[1,0]" if c % 2 == 0 else "op_sel:[0,1] op_sel_hi:[1,1]")
        seq = []
        mf = mf + [None] * (3 - len(mf))
        for q in range(2):
            ex = [f"v_exp_f32 v{T+i}, v{Db+8*q+i}" for i in range(8)]
            rc = [f"v_rcp_f32 v{T+i}, v{T+i}" for i in range(8)]
            ad = [f"v_pk_add_f32 {v(T+2*i,2)}, {v(T+2*i,2)}, {cp}" for i in range(4)]
            fm = [f"v_pk_fma_f32 {v(Ab+8*q+2*i,2)}, {v(Db+8*q+2*i,2)}, {v(T+2*i,2)}, {v(Ab+8*q+2*i,2)}" for i in range(4)]
            if t == 0: fm = [f"v_pk_mul_f32 {v(Ab+8*q+2*i,2)}, {v(Db+8*q+2*i,2)}, {v(T+2*i,2)}" for i in range(4)]
            if q == 0: seq += [mf[0]] + ex + ad + [mf[1]] + rc + fm
            else: seq += [mf[2]] + ex + ad + rc + fm
        res = []; n = 0
        for l in seq:
            if l is None: continue
            res.append(l)
            if l.startswith(("v_exp", "v_rcp")):
                res += fill.get(n, []); n += 1
        return res
    for t in range(LMAX):
        fill = {}
        if t + 4 < LMAX:
            fill[0] = [le_read(t + 4, 0)]
            fill[10] = [("@W", None, f"le{t+4}"), st_addr(0)]; fill[11] = [st_read(t + 4)]
        if t + 3 < LMAX: fill[1] = [ls_read(t + 3, S4)]
        if t + 1 < LMAX:
            fill[16] = [("@W", f"X{t+1}", None)]
            for sx in range(4): fill[17+sx] = [fx_read(t + 1, sx)]
        if t + 3 < LMAX:
            xa = x_addr(S4)
            fill[24] = [("@W", None, f"ls{t+3}"), xa[0]]; fill[25] = [xa[1]]; fill[26] = [xa[2]]; fill[27] = [xa[3]]
        if t == 0:
            fill[2] = d_pre(2, 2); fill[3] = d_load(2, 2)
            dm = x_dma(2, nop=False, reg=L2)
            for i, pos in enumerate((4, 5, 6, 7, 12, 13, 14, 15)): fill[pos] = [dm[i]]
            fill[28] = d_pre(3, 3); fill[29] = d_load(3, 3)
        if int(OPT["prio"]) == 1: S.append("s_setprio 1")
        S += phase(0, t, chain(1, t), fill)
        if int(OPT["prio"]) == 1: S.append("s_setprio 0")
        fill = {}
        if t + 1 < LMAX: fill[0] = [("@W", None, f"fx{t+1}")]
        if t + 3 < LMAX:
            dm = x_dma(t + 3, nop=False)
            for i in range(8): fill[1+i] = [dm[i]]
        if t + 4 < LMAX:
            dp = d_pre(t + 4, 0)
            fill[9] = [dp[0]]; fill[12] = d_load(t + 4, 0); fill[13] = [dp[1]]
        fill[31] = [f"s_cmp_eq_u32 s{sT}, {t+1}"]
        S += phase(1, t, chain(0, t + 1) if t + 1 < LMAX else [], fill)
        if t + 1 < LMAX: S.append("s_cbranch_scc1 M_FLUSH")
    emit(resolve(S))
    a("M_FLUSH:")
    stamp("top", 5); stamp("epi", 1)
    if MODE: a("s_memtime s[96:97]\ns_waitcnt lgkmcnt(0)")
    a("s_waitcnt vmcnt(0)")
    for i in range(8):
        a(f"ds_write_b128 v{da}, {v(AG+4*i,4)} offset:{32*i}")
    A0, A1, A2, OWN, PAR = D, D + 16, Q, Q + 16, Q + 24
    a(f"""
    M_BEND:
    v_cmp_gt_u32 vcc, 0x3f4, v{kk}
    s_mov_b32 s74, {f32(-1.0/LOG2E)}
    s_mov_b32 s75, {f32(-1.0/LOG2E)}
    s_waitcnt lgkmcnt(0)
    """)
    stamp("epi", 2)
    a("s_barrier")
    stamp("epi", 3)
    offs = (0, 16, 64, 80)
    for i in range(4):
        for buf, ca in ((A0, ca0), (A1, ca1), (A2, ca2)):
            a(f"ds_read_b128 {v(buf+4*i,4)}, v{ca} offset:{offs[i]}")
    for i in range(4):
        a(f"s_waitcnt lgkmcnt({9-3*i})")
        for j in range(2): a(f"v_pk_add_f32 {v(A0+4*i+2*j,2)}, {v(A0+4*i+2*j,2)}, {v(A1+4*i+2*j,2)}")
        for j in range(2): a(f"v_pk_add_f32 {v(A0+4*i+2*j,2)}, {v(A0+4*i+2*j,2)}, {v(A2+4*i+2*j,2)}")
    a(f"""
    s_cbranch_vccz M_SUMD
    s_movk_i32 s{sA}, 0x3f4
    M_SUML:
    s_mov_b64 exec, vcc
    """)
    for i in range(4):
        a(f"ds_read_b128 {v(A1+4*i,4)}, v{ca3} offset:{offs[i]}")
    a(f"s_sub_u32 s{sA}, s{sA}, 4\nv_add_u32 v{ca3}, 272, v{ca3}\ns_waitcnt lgkmcnt(0)")
    for i in range(8): a(f"v_pk_add_f32 {v(A0+2*i,2)}, {v(A0+2*i,2)}, {v(A1+2*i,2)}")
    a(f"""
    s_mov_b64 exec, -1
    v_cmp_gt_i32 vcc, s{sA}, v{kk}
    s_nop 4
    s_cbranch_vccnz M_SUML
    M_SUMD:
    s_cmp_le_u32 s{sNMAX}, s{sCAP}
    s_cbranch_scc1 M_EPI
    """)
    srd_off(a, 56, 10, WS_SP, 2048 * 4096)
    a(f"""
    s_lshl_b32 s{sA}, s2, 3
    s_add_u32 s{sA}, s{sA}, s{sW}
    s_lshl_b32 s{sA}, s{sA}, 12
    s_cmp_eq_u32 s{sBASE}, 0
    s_cbranch_scc1 M_NOLD
    """)
    for i in range(4):
        a(f"buffer_load_dwordx4 {v(A1+4*i,4)}, v{l16}, s[56:59], s{sA} offen offset:{1024*i} sc0 sc1")
    a("s_waitcnt vmcnt(0)")
    for i in range(8): a(f"v_pk_add_f32 {v(A0+2*i,2)}, {v(A0+2*i,2)}, {v(A1+2*i,2)}")
    a(f"""
    M_NOLD:
    s_add_u32 s{sBASE}, s{sBASE}, s{sCAP}
    s_cmp_ge_u32 s{sBASE}, s{sNMAX}
    s_cbranch_scc1 M_EPI
    """)
    for i in range(4):
        a(f"buffer_store_dwordx4 {v(A0+4*i,4)}, v{l16}, s[56:59], s{sA} offen offset:{1024*i} sc0 sc1")
    a(f"""
    M_AGAIN:
    s_load_dwordx2 s[60:61], s[0:1], 32
    s_waitcnt vmcnt(0) lgkmcnt(0)
    s_barrier
    """)
    srd(a, 56, 60, 18432)
    a(f"""
    s_lshl_b32 s{sA}, s{sW}, 10
    s_add_u32 s{sA}, s{sA}, 8192
    s_add_u32 m0, s{sA}, {S_W}
    v_lshlrev_b32 v{t0}, 2, v0
    buffer_load_dwordx4 v{l16}, s[56:59], s{sA} offen lds
    ds_write_b32 v{t0}, v{nta}
    v_add_u32 v{t0}, {L_C8}, v{t0}
    ds_write_b32 v{t0}, v{nta}
    ds_write_b32 v{t0}, v{nta} offset:2048
    """)
    xrows()
    a("s_waitcnt vmcnt(0)\ns_barrier")
    w2read()
    a(f"""
    s_waitcnt lgkmcnt(0)
    s_barrier
    s_branch M_BATCH
    M_EPI:
    """)
    srd(a, 56, 8, 3200000)
    for i in range(8): a(f"v_pk_mul_f32 {v(A0+2*i,2)}, {v(A0+2*i,2)}, s[74:75]")
    for i in range(8): a(f"v_cvt_pk_bf16_f32 v{OWN+i}, v{A0+2*i}, v{A0+2*i+1}")
    a(f"""
    ds_write_b128 v{fa}, {v(OWN,4)} offset:{L_FE}
    ds_write_b128 v{fa}, {v(OWN+4,4)} offset:{L_FE+1024}
    v_xor_b32 v{fa}, 0x800, v{fa}
    v_mfma_f32_32x32x16_bf16 {v(U0,16)}, {v(WU,4)}, {v(OWN,4)}, {v(U0,16)}
    v_mfma_f32_32x32x16_bf16 {v(U0,16)}, {v(WU+4,4)}, {v(OWN+4,4)}, {v(U0,16)}
    s_lshl_b32 s{sA}, s{sSB}, 6
    s_add_u32 s{sA}, s{sA}, s{sS0}
    s_mov_b32 s74, {f32(-LOG2E)}
    s_mov_b32 s75, {f32(-LOG2E)}
    s_waitcnt lgkmcnt(0)
    s_barrier
    """)
    stamp("epi", 4)
    a(f"""
    ds_read_b128 {v(PAR,4)}, v{fa} offset:{L_FE}
    ds_read_b128 {v(PAR+4,4)}, v{fa} offset:{L_FE+1024}
    s_waitcnt lgkmcnt(1)
    v_mfma_f32_32x32x16_bf16 {v(U0,16)}, {v(WU+8,4)}, {v(PAR,4)}, {v(U0,16)}
    s_waitcnt lgkmcnt(0)
    v_mfma_f32_32x32x16_bf16 {v(U0,16)}, {v(WU+12,4)}, {v(PAR+4,4)}, {v(U0,16)}
    s_nop 11
    """)
    for q in range(2):
        b = 8 * q
        for i in range(4): a(f"v_pk_mul_f32 {v(AG+b+2*i,2)}, {v(U0+b+2*i,2)}, s[74:75]")
        for i in range(8): a(f"v_exp_f32 v{AG+b+i}, v{AG+b+i}")
        for i in range(4): a(f"v_pk_add_f32 {v(AG+b+2*i,2)}, {v(AG+b+2*i,2)}, 1.0 op_sel_hi:[1,0]")
        for i in range(8): a(f"v_rcp_f32 v{AG+b+i}, v{AG+b+i}")
        for i in range(4): a(f"v_pk_mul_f32 {v(AG+b+2*i,2)}, {v(U0+b+2*i,2)}, {v(AG+b+2*i,2)}")
        for i in range(4): a(f"v_cvt_pk_bf16_f32 v{D+4*q+i}, v{AG+b+2*i}, v{AG+b+2*i+1}")
        a(f"buffer_store_dwordx4 {v(D+4*q,4)}, v{oa}, s[56:59], s{sA} offen offset:{16*q}")
    if MODE:
        stamp("epi", 5)
        a("s_waitcnt vmcnt(0)")
        stamp("top", 6); stamp("epi", 6)
        a(f"s_lshl_b32 s74, s2, 3\ns_add_u32 s74, s74, s{sW}\ns_lshl_b32 s74, s74, 6\ns_add_u32 s74, s74, {WS_ST+0x80000}\ns_add_u32 s52, s10, s74\ns_addc_u32 s53, s11, 0\nv_mov_b32 v0, 0")
        for i in range(8):
            a(f"v_mov_b32 v1, s{76+2*i}\nglobal_store_dword v0, v1, s[52:53] offset:{4*i}")
        a("s_sub_u32 s96, s96, s94\nv_mov_b32 v1, s96\nglobal_store_dword v0, v1, s[52:53] offset:32\nv_mov_b32 v1, s98\nglobal_store_dword v0, v1, s[52:53] offset:36")
    a("M_END:\ns_endpgm")
    return R.n

hdr = f"""; MPNN edge-MLP + segment-sum + node update in one launch of 256 co-resident workgroups:
; @launch grid=(256,1,1) block=(512,1,1) lds={MAIN_LDS}
.amdgcn_target "amdgcn-amd-amdhsa--gfx950"
.text
.globl {KN}
.type {KN},@function
"""
nv = gen()
txt = hdr + a.text() + '.section .rodata,"a"\n.p2align 6\n' + kdesc(KN, 256, 102)
open(sys.argv[1], "w").write(txt)
print("vgprs", nv, "lds", MAIN_LDS)
```

```python
import sys, struct
from asmlib import *

OPT = dict(abl="", stamp=False, eflags="", M0=1280, ns1=5, es='2,3,0', osl=4, xw=256, fst=5, cem=1, Y=False, epf=0, skw=256, xe=0, tlb=0, stl=0, eld='nt', ild='nt', xld='nt', wso=0, prio=0, ld="sc1")
for arg in sys.argv[2:]:
    k, val = arg.split("=")
    OPT[k] = {"True": True, "False": False}.get(val, val.replace("+", " "))
M0 = int(OPT["M0"])
assert M0 % 32 == 0 and M0 <= 1376 and 3200 - M0 <= 2048
LD = OPT["ld"]
YM = OPT["Y"]
if YM: OPT["es"] = "0,0,0"; OPT["ns1"] = 0
KN = "standalone__mpnn_edge_mlp__graph_kernel"

NCH, CH = 250, 3200
WS_REC, WS_O, WS_F2, WS_ST, WS_P, WS_SP, WS_EM = 0, 0x440000, 0x680000, 0x700000, 0x800000, 0x1700000, 0xB20000
SKW = int(OPT["skw"])
OTS, RCS, EMS = 8192 + SKW, 16384 + SKW, M0 * 32 + SKW
LOG2E = 1.4426950408889634
def f32(x): return "0x%08x" % struct.unpack("<I", struct.pack("<f", x))[0]

a = Asm()
MODE = OPT["stamp"]
def stamp(mode, i):
    if MODE == mode or (MODE and mode == "all"):
        a(f"s_memrealtime s[{76+2*i}:{77+2*i}]\ns_waitcnt lgkmcnt(0)")
def emit(l): a("\n".join(l))

def resolve(stream):
    out = []; vm = []; lg = []
    for it in stream:
        if isinstance(it, tuple) and it[0] == "@W":
            parts = []
            if it[1] is not None:
                idx = max(i for i, t in enumerate(vm) if t == it[1]); n = len(vm) - 1 - idx
                assert n <= 63; parts.append(f"vmcnt({n})")
            if it[2] is not None:
                idx = max(i for i, t in enumerate(lg) if t == it[2]); n = len(lg) - 1 - idx
                parts.append(f"lgkmcnt({min(n, 15)})")
            out.append("s_waitcnt " + " ".join(parts)); continue
        txt, tag = it if isinstance(it, tuple) else (it, None)
        if txt.startswith("buffer_"): vm.append(tag)
        if txt.startswith("ds_"): lg.append(tag)
        out.append(txt)
    return out

LMAX = 17
L_TB = 0
L_CNT = 1024
L_NT = L_CNT + 128
L_MX = L_NT + 16
L_BAS = L_MX + 16
L_F2C = 1408
L_ZR = 1536
L_LS = 2048
LSZ = LMAX * 1024
L_LE = L_LS + LSZ
L_ST = L_LE + LSZ
SCAP = 224
L_XR = L_ST + 8 * SCAP * 32
XRS = 8704
MAIN_LDS = L_XR + 8 * XRS
assert MAIN_LDS <= 163840 and L_XR % 4096 == 0
L_C8 = L_XR + XRS
C8O = XRS
GLO = 6144
XRO = 4096
S_W = L_LS
S_CNT = L_ST
S_STA = S_CNT + 2048
S_SRT = S_STA + 2048
S_E = S_SRT + CH * 4
assert S_E + M0 * 32 <= L_XR + 4096
L_FE = L_LS
DUMMY = 0xC0000000
DFLAG = 1 << 24
SPIN = 200000

def gen():
    R = Regs("v", 1, 256)
    vLS = R.alloc("vLS"); vLE = R.alloc("vLE")
    vCr = R.alloc("vCr", 5)
    RP = R.alloc("RP", 8, 2)
    XA = R.alloc("XA", 4); CX = R.alloc("CX", 4)
    S4 = R.alloc("S4", 4, 4); T = R.alloc("T", 8, 4)
    FX = R.alloc("FX", 16, 4); E = R.alloc("E", 16, 4)
    D = R.alloc("D", 32, 4); Q = R.alloc("Q", 32, 4); AG = R.alloc("AG", 32, 4); W = R.alloc("W", 16, 4)
    U0 = R.alloc("U0", 16, 4); WU = R.alloc("WU", 16, 4); EP = R.alloc("EP", 16, 4)
    SG = R.alloc("SG", 8, 4)
    sa = R.alloc("sa"); lane = R.alloc("lane"); l16 = R.alloc("l16"); m = R.alloc("m"); h = R.alloc("h")
    sac = R.alloc("sac"); lh = R.alloc("lh"); hz = R.alloc("hz"); aN = R.alloc("aN"); one = R.alloc("one"); nta = R.alloc("nta")
    h16 = RP + 1
    def Idf(j): return v(W + 4 * j, 4)
    def W3f(nh): return v(W + 8 + nh * 4, 4)
    def Es(t): return v(E + 4 * (t % 4), 4)
    sX, sE, sREC, sEM, sWS, sP = 16, 20, 24, 28, 32, 36
    sW, sSB, sS0, sSO, sN, sBASE, sCNT, sT, sXRB, sA, sB, sCAP = 40, 41, 42, 43, 44, 45, 46, 47, 48, 49, 50, 51
    sNB, sGL, sNMAX, sG, sL, sM7, sB30, sDF, sNS = 70, 71, 72, 73, 12, 13, 14, 15, 3
    sSTB, sOA, sTAG = 99, 93, 100
    t0, t1, t2, t3, t4, t5, t6, t7 = [T + i for i in range(8)]
    def mk(i): return f"s[{54+2*i}:{55+2*i}]"
    ORD = list(range(7, -1, -1))
    def skip(lab):
        a(f"s_cmp_le_u32 s{sCNT}, 384\ns_cbranch_scc1 {lab}6\ns_cmp_le_u32 s{sCNT}, 448\ns_cbranch_scc1 {lab}7")
    def after(lab, i):
        if i >= 6: a(f"{lab}{i}:")
    ne = 0 if "noe" in OPT["abl"] else 1
    steps = [f"row_shr:{sh} row_mask:0xf bank_mask:0xf bound_ctrl:0" for sh in (1, 2, 4, 8)] + ["row_bcast:15 row_mask:0xa bank_mask:0xf", "row_bcast:31 row_mask:0xc bank_mask:0xf"]

    DS_, SR_, CAD, RNK, PR_ = D, D + 8, D + 16, D + 24, Q
    oA, oB, t16, t4_, idx, rA, rB = [Q + 8 + i for i in range(7)]
    nz = Q + 16
    CS = Q + 20
    NA_, NB_ = M0 // 4, (CH - M0) // 4
    SDW = "dst_sel:DWORD dst_unused:UNUSED_PAD src0_sel:DWORD src1_sel:"
    a(f".p2align 8\n{KN}:")
    a(f"""
    s_cmp_ge_u32 s2, 256
    s_cbranch_scc1 M_END
    s_load_dwordx4 s[56:59], s[0:1], 16
    s_load_dwordx4 s[4:7], s[0:1], 0
    s_load_dwordx4 s[60:63], s[0:1], 32
    s_load_dwordx4 s[8:11], s[0:1], 48
    s_load_dwordx2 s[64:65], s[0:1], 64
    s_memrealtime s[66:67]
    """)
    stamp("all", 0)
    a(f"""
    s_setprio 2
    v_lshlrev_b32 v{t16}, 4, v0
    v_mov_b32 v{hz}, 0x80000000
    v_cmp_gt_u32 vcc, {NA_}, v0
    s_mul_i32 s{sA}, s2, 12800
    s_mov_b64 s[52:53], vcc
    v_cndmask_b32 v{rA}, v{hz}, v{t16}, vcc
    v_cmp_gt_u32 vcc, {NB_}, v0
    s_add_u32 s{sB}, s{sA}, {M0*4}
    s_mov_b64 s[54:55], vcc
    v_cndmask_b32 v{rB}, v{hz}, v{t16}, vcc
    s_mov_b32 s{sE+2}, 3200000
    s_mov_b32 s{sE+3}, 0x20000
    s_mov_b32 s{sEM+2}, 3200000
    s_mov_b32 s{sEM+3}, 0x20000
    v_lshlrev_b32 v{t4_}, 2, v0
    v_mov_b32 v{nta}, 0
    v_lshrrev_b32 v{t0}, 6, v0
    s_waitcnt lgkmcnt(0)
    s_mov_b32 s{sE}, s58
    s_mov_b32 s{sE+1}, s59
    s_mov_b32 s{sEM}, s56
    s_mov_b32 s{sEM+1}, s57
    buffer_load_dwordx4 {v(DS_,4)}, v{rA}, s[{sE}:{sE+3}], s{sA} offen {OPT['ild']}
    buffer_load_dwordx4 {v(DS_+4,4)}, v{rB}, s[{sE}:{sE+3}], s{sB} offen {OPT['ild']}
    buffer_load_dwordx4 {v(SR_,4)}, v{rA}, s[{sEM}:{sEM+3}], s{sA} offen {OPT['ild']}
    buffer_load_dwordx4 {v(SR_+4,4)}, v{rB}, s[{sEM}:{sEM+3}], s{sB} offen {OPT['ild']}
    ds_write_b32 v{t4_}, v{nta} offset:{S_CNT}
    ds_write_b32 v{t4_}, v{nta}
    v_readfirstlane_b32 s{sW}, v{t0}
    s_setprio 0
    """)
    srd(a, sP, 10, 256)
    a(f"""
    s_cmp_lt_u32 s2, {NCH}
    s_cbranch_scc1 S_NOTAG
    s_cmp_lg_u32 s{sW}, 0
    s_cbranch_scc1 S_NOTAG
    s_or_b32 s{sA}, s66, 1
    v_mov_b32 v{nz}, s{sA}
    v_mov_b32 v{nz+1}, s67
    v_mov_b32 v{nz+2}, 0
    v_mov_b32 v{nz+3}, 0
    s_mov_b64 exec, 1
    buffer_atomic_cmpswap_x2 {v(nz,4)}, v{nta}, s[{sP}:{sP+3}], 0 offen sc1
    s_mov_b64 exec, -1
    s_waitcnt vmcnt(0)
    S_NOTAG:
    s_mov_b32 s68, s10
    s_mov_b32 s69, s11
    s_add_u32 s10, s64, {int(str(OPT["wso"]), 0)}
    s_addc_u32 s11, s65, 0
    s_cmp_lt_u32 s2, {NCH}
    s_cselect_b64 s[52:53], s[52:53], 0
    s_cselect_b64 s[54:55], s[54:55], 0
    v_and_b32 v{lane}, 63, v0
    v_lshlrev_b32 v{l16}, 4, v{lane}
    s_mul_i32 s{sL}, s2, {CH*32}
    s_lshl_b32 s{sT}, s{sW}, 10
    """)
    srd(a, sREC, 6, 0 if "nomv" in OPT["abl"] else 25600000)
    a("s_waitcnt lgkmcnt(0)\ns_barrier")
    if int(OPT["stl"]):
        a(f"""
        s_lshl_b32 s{sA}, s{sW}, 21
        s_add_u32 s{sB}, s{sA}, 0x1000000
        s_min_u32 s{sN}, s{sB}, {WS_EM + 256*EMS - 64}
        s_load_dword s66, s[10:11], s{sA}
        s_load_dword s66, s[10:11], s{sN}
        s_min_u32 s{sN}, s{sB}, {25600000 - 64}
        s_load_dword s66, s[6:7], s{sA}
        s_load_dword s66, s[6:7], s{sN}
        s_and_b32 s{sA}, s{sA}, 0x200000
        s_load_dword s66, s[8:9], s{sA}
        """)
    npiece = 0 if YM else M0 // 32
    nr = (npiece + 7) // 8
    ES = [int(x) for x in OPT["es"].split(",")]
    assert sum(ES) == nr
    EC = [sum(ES[:i]) for i in range(4)]
    def edma(slot):
        for r in range(EC[slot], EC[slot+1]):
            if (r + 1) * 8 > npiece:
                a(f"s_min_u32 s{sT}, s{sT}, {(npiece - 8*r - 1)*1024}")
            a(f"s_add_u32 m0, s{sT}, {S_E + r*8192}\ns_add_u32 s{sA}, s{sT}, {r*8192}\ns_add_u32 s{sA}, s{sA}, s{sL}\nbuffer_load_dwordx4 v{l16}, s[{sREC}:{sREC+3}], s{sA} offen {OPT['eld']} lds")
    srd(a, sX, 4, 3200000)
    srd(a, sWS, 60, 18432)
    srd(a, sP, 62, 16384)
    def xrows():
        a(f"""
        v_lshrrev_b32 v{t0}, 4, v{lane}
        v_xor_b32 v{t0}, v{t0}, v{lane}
        v_and_b32 v{t0}, 7, v{t0}
        v_and_b32 v{t1}, 0x380, v{l16}
        v_lshl_or_b32 v{t0}, v{t0}, 4, v{t1}
        v_xor_b32 v{t1}, 64, v{t0}
        s_add_u32 m0, s{sGL}, {XRO - GLO}
        s_lshl_b32 s{sA}, s{sW}, 11
        s_add_u32 s{sB}, s{sA}, s{sS0}
        buffer_load_dwordx4 v{t0}, s[{sX}:{sX+3}], s{sB} offen {OPT['xld']} lds
        buffer_load_dwordx4 v{t1}, s[{sX}:{sX+3}], s{sB} offen offset:1024 {OPT['xld']} lds
        """)
    a(f"""
    s_and_b32 s74, s2, 7
    s_lshl_b32 s74, s74, 5
    s_lshr_b32 s{sA}, s2, 3
    s_add_u32 s74, s74, s{sA}
    s_lshl_b32 s{sA}, s74, 17
    s_add_u32 s{sA}, s{sA}, 1337
    s_mul_hi_u32 s{sS0}, s{sA}, 3209991
    s_add_u32 s{sA}, s{sA}, 131072
    s_mul_hi_u32 s{sNB}, s{sA}, 3209991
    s_min_u32 s{sNB}, s{sNB}, 25000
    s_sub_u32 s{sNB}, s{sNB}, s{sS0}
    s_and_b32 s{sSB}, s{sW}, 1
    s_lshl_b32 s{sSO}, s74, 1
    s_add_u32 s{sSO}, s{sSO}, s{sSB}
    s_mul_i32 s{sSO}, s{sSO}, 49
    s_sub_u32 s{sSO}, s{sSO}, s{sS0}
    s_sub_u32 s{sSO}, s{sSO}, 9
    s_lshl_b32 s{sS0}, s{sS0}, 7
    s_mul_i32 s{sGL}, s{sW}, {XRS}
    s_add_u32 s{sGL}, s{sGL}, {L_XR + GLO}
    """)
    xrows()
    a(f"""
    s_add_u32 m0, s{sA}, {S_W}
    s_lshl_b32 s{sB}, s{sSB}, 10
    buffer_load_dwordx4 v{l16}, s[{sWS}:{sWS+3}], s{sA} offen lds
    buffer_load_dwordx4 v{l16}, s[{sWS}:{sWS+3}], s{sA} offen offset:1024 lds
    s_add_u32 m0, s{sA}, {S_W + 18432}
    s_add_u32 s{sB}, s{sB}, 16384
    buffer_load_dwordx4 v{l16}, s[{sP}:{sP+3}], s{sA} offen lds
    buffer_load_dwordx4 v{l16}, s[{sP}:{sP+3}], s{sA} offen offset:1024 lds
    s_add_u32 m0, s{sB}, {S_W}
    s_nop 0
    buffer_load_dwordx4 v{l16}, s[{sWS}:{sWS+3}], s{sB} offen lds
    """)
    TLB = int(OPT["tlb"])
    srd(a, sWS, 10, 0x1000000)
    if TLB:
        a(f"""
        v_lshl_add_u32 v{t0}, v{lane}, 3, s{sW}
        v_lshlrev_b32 v{t0}, 20, v{t0}
        buffer_load_dword v{vCr+4}, v{t0}, s[{sWS}:{sWS+3}], 0 offen
        """)
    edma(0)
    a(f"""
    v_mov_b32 v{one}, 1
    v_mov_b32 v{t7}, 0x10000
    v_lshlrev_b32 v{idx}, 23, v0
    v_add_u32 v{idx}, 9, v{idx}
    v_lshlrev_b32 v{t6}, 5, v{lane}
    s_mov_b32 s{sB}, -49
    s_mov_b32 s{sM7}, {1<<21}
    s_mov_b32 s{sB30}, {2<<21}
    s_mov_b32 s{sDF}, {3<<21}
    s_setprio 2
    s_waitcnt vmcnt({EC[1]+9+TLB})
    """)
    stamp("srt", 1)
    for g in range(2):
        for i in range(4*g, 4*g + 4):
            a(f"v_mul_u32_u24 v{PR_+i}, 1338, v{DS_+i}\nv_lshlrev_b32_sdwa v{CAD+i}, 2, v{PR_+i} {SDW}WORD_1")
        a(f"s_mov_b64 exec, {'s[52:53]' if g == 0 else 's[54:55]'}")
        for i in range(4*g, 4*g + 4): a(f"ds_add_rtn_u32 v{RNK+i}, v{CAD+i}, v{one if g == 0 else t7} offset:{S_CNT}")
        a("s_mov_b64 exec, -1")
    def recs(rng):
        o = []
        for i in rng:
            o += [f"v_mad_i32_i16 v{PR_+i}, v{PR_+i}, s{sB}, v{DS_+i} op_sel:[1,0,0,0]", f"v_lshl_add_u32 v{PR_+i}, v{SR_+i}, 6, v{PR_+i}",
                  f"v_add3_u32 v{PR_+i}, v{PR_+i}, v{idx}, {('0', f's{sM7}', f's{sB30}', f's{sDF}')[i%4]}"]
        return o
    a("s_waitcnt lgkmcnt(0)\ns_barrier")
    stamp("srt", 2)
    OTG = S4
    a(f"""
    ds_read_b128 {v(CS,4)}, v{t6} offset:{S_CNT}
    ds_read_b128 {v(CS+4,4)}, v{t6} offset:{S_CNT+16}
    ds_read_b32 v{OTG+1}, v{t4_} offset:{S_CNT}
    s_waitcnt vmcnt({EC[1]+7+TLB})
    """)
    emit(recs(range(4)))
    a("s_waitcnt lgkmcnt(1)")
    for j in range(1, 8): a(f"v_add_u32 v{CS+j}, v{CS+j}, v{CS+j-1}")
    a(f"v_mov_b32 v{CS+8}, v{CS+7}")
    rr = recs(range(4, 8))
    for n, stp in enumerate(steps): a(f"{rr[2*n]}\n{rr[2*n+1]}\nv_add_u32_dpp v{CS+8}, v{CS+8}, v{CS+8} {stp}")
    a(f"v_sub_u32 v{CS+8}, v{CS+8}, v{CS+7}\nv_add_u32 v{CS+8}, {M0<<16}, v{CS+8}")
    for j in range(7, 0, -1): a(f"v_add_u32 v{CS+j}, v{CS+j-1}, v{CS+8}")
    a(f"""
    v_mov_b32 v{CS}, v{CS+8}
    ds_write_b128 v{t6}, {v(CS,4)} offset:{S_STA}
    ds_write_b128 v{t6}, {v(CS+4,4)} offset:{S_STA+16}
    """)
    for i in range(8): a(f"ds_read_b32 v{DS_+i}, v{CAD+i} offset:{S_STA}")
    a(f"ds_read_b32 v{OTG}, v{t4_} offset:{S_STA}")
    edma(1)
    for i in range(8):
        if i % 4 == 0: a(f"s_mov_b64 exec, {'s[52:53]' if i == 0 else 's[54:55]'}")
        a(f"""
        s_waitcnt lgkmcnt(8)
        v_add_u32 v{DS_+i}, v{DS_+i}, v{RNK+i}
        v_lshlrev_b32_sdwa v{DS_+i}, 2, v{DS_+i} {SDW}{'WORD_0' if i < 4 else 'WORD_1'}
        ds_write_b32 v{DS_+i}, v{PR_+i} offset:{S_SRT}
        """)
    a("s_mov_b64 exec, -1")
    stamp("srt", 3)
    a(f"s_load_dwordx2 s[{sTAG}:{sTAG+1}], s[68:69], 0")
    a(f"""
    v_lshrrev_b32 v{t1}, 1, v0
    v_lshlrev_b32 v{t1}, 2, v{t1}
    s_waitcnt lgkmcnt(0)
    s_barrier
    """)
    stamp("srt", 4)
    no = 0 if YM else (M0 + 255) // 256
    a(f"ds_read_b128 {v(D,4)}, v{t16} offset:{S_SRT}\nds_read_b128 {v(D+4,4)}, v{t16} offset:{S_SRT+M0*4}")
    for r in range(no): a(f"ds_read_b32 v{SG+r}, v{t1} offset:{S_SRT+1024*r}")
    edma(2)
    a(f"""
    s_mul_i32 s{sA}, s2, {RCS}
    s_add_u32 s{sB}, s{sA}, 8192
    v_and_b32 v{t2}, 1, v0
    v_lshlrev_b32 v{t2}, 4, v{t2}
    s_waitcnt lgkmcnt({no})
    buffer_store_dwordx4 {v(D,4)}, v{rA}, s[{sWS}:{sWS+3}], s{sA} offen sc1
    buffer_store_dwordx4 {v(D+4,4)}, v{rB}, s[{sWS}:{sWS+3}], s{sB} offen sc1
    s_mul_i32 s{sN}, s2, {OTS}
    s_add_u32 s{sN}, s{sN}, {WS_O}
    s_mov_b32 s{sB}, 0
    s_cmp_lg_u32 s{sTAG}, 0
    s_cbranch_scc1 S_TAGD
    S_TAGL:
    s_sleep 8
    global_load_dwordx2 {v(OTG+2,2)}, v{nta}, s[68:69] sc1
    s_add_u32 s{sB}, s{sB}, 1
    s_cmp_gt_u32 s{sB}, {SPIN}
    s_cbranch_scc1 M_END
    s_waitcnt vmcnt(0)
    v_readfirstlane_b32 s{sTAG}, v{OTG+2}
    v_readfirstlane_b32 s{sTAG+1}, v{OTG+3}
    s_nop 0
    s_cmp_eq_u32 s{sTAG}, 0
    s_cbranch_scc1 S_TAGL
    S_TAGD:
    v_add_u32 v{OTG}, {(2048-M0)<<16}, v{OTG}
    v_mov_b32 v{OTG+2}, s{sTAG}
    v_mov_b32 v{OTG+3}, s{sTAG+1}
    buffer_store_dwordx4 {v(OTG,4)}, v{t16}, s[{sWS}:{sWS+3}], s{sN} offen sc1
    s_movk_i32 s{sB}, {(M0 - 256*(no-1))*2}
    v_cmp_gt_u32 vcc, s{sB}, v0
    v_mov_b32 v{t4}, v{t16}
    v_and_b32 v{m}, 31, v{lane}
    v_lshrrev_b32 v{h}, 5, v{lane}
    v_cndmask_b32 v{t6}, v{hz}, v{t16}, vcc
    v_lshlrev_b32 v{t0}, 3, v0
    v_add_u32 v{t0}, {L_C8}, v{t0}
    v_mov_b32 v{D+8}, 0
    v_mov_b32 v{D+9}, 0
    ds_write_b64 v{t0}, {v(D+8,2)}
    v_bfe_u32 v{t1}, v{lane}, 2, 2
    v_lshl_add_u32 v{t1}, v{h}, 3, v{t1}
    v_lshlrev_b32 v{t1}, 7, v{t1}
    v_and_b32 v{t3}, 3, v{lane}
    v_lshl_add_u32 v{aN}, v{t3}, 3, v{t1}
    v_and_b32 v{t3}, 16, v{lane}
    v_lshl_add_u32 v{aN}, v{t3}, 1, v{aN}
    v_add_u32 v{t1}, v{t1}, v{t3}
    v_and_b32 v{t3}, 1, v{lane}
    v_lshl_add_u32 v{t1}, v{t3}, 5, v{t1}
    v_and_b32 v{t3}, 2, v{lane}
    v_lshl_add_u32 v{t1}, v{t3}, 2, v{t1}
    s_lshl_b32 s{sA}, s{sSB}, 6
    v_add_u32 v{sa}, s{sA}, v{t1}
    v_bfe_u32 v{sac}, v{m}, 1, 3
    v_xor_b32 v{sac}, v{sac}, v{h}
    v_lshlrev_b32 v{sac}, 4, v{sac}
    v_and_b32 v{t3}, 15, v{m}
    v_lshl_or_b32 v{sac}, v{t3}, 7, v{sac}
    v_lshrrev_b32 v{t3}, 4, v{m}
    v_mul_u32_u24 v{t3}, {XRS}, v{t3}
    s_and_b32 s{sA}, s{sW}, 6
    s_mul_i32 s{sA}, s{sA}, {XRS}
    s_add_u32 s{sA}, s{sA}, {L_XR + XRO}
    v_add3_u32 v{sac}, v{sac}, v{t3}, s{sA}
    s_waitcnt lgkmcnt(1)
    """)
    for r in range(no):
        a(f"v_lshrrev_b32 v{SG+r}, 21, v{SG+r}\nv_lshl_add_u32 v{SG+r}, v{SG+r}, 5, v{t2}")
    srd_off(a, sEM, 10, WS_EM, 0 if "nomv" in OPT["abl"] else 256 * EMS)
    OG = E + 12
    a(f"""
    s_lshl_b32 s{sOA}, s74, 5
    s_lshl_b32 s{sA}, s{sSB}, 4
    s_add_u32 s{sOA}, s{sOA}, s{sA}
    s_lshr_b32 s{sA}, s{sW}, 1
    s_mul_i32 s{sA}, s{sA}, {64*OTS}
    s_add_u32 s{sOA}, s{sOA}, s{sA}
    s_add_u32 s{sOA}, s{sOA}, {WS_O}
    v_mul_u32_u24 v{lh}, {OTS}, v{lane}
    s_mov_b32 s74, {f32(-LOG2E)}
    s_mov_b32 s75, {f32(-LOG2E)}
    s_waitcnt vmcnt(3) lgkmcnt(0)
    s_barrier
    """)
    stamp("srt", 5); stamp("top", 1)
    XF, W1t, Wx, PD, EO = FX, AG, EP, AG + 16, Q
    def tr(dst, areg, off):
        a(f"ds_read_b64_tr_b16 {v(dst,2)}, v{areg} offset:{S_W+off}\nds_read_b64_tr_b16 {v(dst+2,2)}, v{areg} offset:{S_W+off+512}")
    def w2read():
        for sx in range(4):
            for nh in range(2): tr(AG + (2*sx + nh)*4, aN, 8192 + 2048*sx + 64*nh)
    for r in range(no): a(f"ds_read_b128 {v(EO+4*r,4)}, v{SG+r} offset:{S_E}")
    for sx in range(4):
        a(f"ds_read_b128 {v(XF+4*sx,4)}, v{sac}" + (f"\nv_xor_b32 v{sac}, {(32, 96, 32)[sx]}, v{sac}" if sx < 3 else ""))
        tr(W1t + 4*sx, sa, 2048*sx)
    CEM = int(OPT["cem"])
    a(f"s_mul_i32 s{sA}, s2, {EMS}" if CEM else f"s_lshl_b32 s{sA}, s2, 17")
    for r in range(no):
        a(f"s_waitcnt lgkmcnt({min(15, no-1-r+12)})\nbuffer_store_dwordx4 {v(EO+4*r,4)}, v{t6 if r == no-1 else t4}, s[{sEM}:{sEM+3}], s{sA} offen sc1\ns_add_u32 s{sA}, s{sA}, 8192")
    a("s_waitcnt lgkmcnt(0)")
    for sx in range(4):
        a(f"v_mfma_f32_32x32x16_bf16 {v(PD,16)}, {v(W1t+4*sx,4)}, {v(XF+4*sx,4)}, {'0' if sx == 0 else v(PD,16)}")
    a(f"""
    v_mul_u32_u24 v{t0}, 80, v{m}
    v_lshl_add_u32 v{t0}, v{h}, 5, v{t0}
    v_add_u32 v{t0}, s{sGL}, v{t0}
    v_lshrrev_b32 v{t1}, 2, v{lane}
    v_and_b32 v{t2}, 0x30, v{l16}
    v_mul_u32_u24 v{t3}, 80, v{t1}
    v_add3_u32 v{t3}, v{t3}, v{t2}, s{sGL}
    s_lshr_b32 s{sA}, s{sW}, 1
    s_lshl_b32 s{sA}, s{sA}, 5
    v_add_u32 v{t1}, s{sA}, v{t1}
    v_add_u32 v{t5}, 16, v{t1}
    v_cmp_gt_u32 vcc, s{sNB}, v{t1}
    v_cmp_gt_u32 s[52:53], s{sNB}, v{t5}
    v_lshl_add_u32 v{t1}, v{t1}, 7, v{t2}
    v_lshl_add_u32 v{t5}, v{t5}, 7, v{t2}
    v_cndmask_b32 v{t1}, v{hz}, v{t1}, vcc
    v_cndmask_b32 v{t5}, v{hz}, v{t5}, s[52:53]
    s_lshl_b32 s{sA}, s{sSB}, 6
    s_add_u32 s{sA}, s{sA}, s{sS0}
    s_add_u32 s{sA}, s{sA}, {WS_P}
    """)
    for i in range(8): a(f"v_pk_mul_f32 {v(PD+2*i,2)}, {v(PD+2*i,2)}, s[74:75]")
    for i in range(8): a(f"v_cvt_pk_bf16_f32 v{PD+i}, v{PD+2*i}, v{PD+2*i+1}")
    a(f"""
    ds_write_b128 v{t0}, {v(PD,4)}
    ds_write_b128 v{t0}, {v(PD+4,4)} offset:16
    ds_read_b128 {v(D,4)}, v{t3}
    ds_read_b128 {v(D+4,4)}, v{t3} offset:{16*80}
    s_mov_b32 s{sCAP}, 512
    s_mov_b32 s{sBASE}, 0
    s_waitcnt lgkmcnt(1)
    buffer_store_dwordx4 {v(D,4)}, v{t1}, s[{sWS}:{sWS+3}], s{sA} offen sc1
    s_waitcnt lgkmcnt(0)
    buffer_store_dwordx4 {v(D+4,4)}, v{t5}, s[{sWS}:{sWS+3}], s{sA} offen sc1
    s_mov_b32 s92, 1
    s_lshl_b32 s{sN}, s2, {int(OPT["fst"])}
    s_add_u32 s{sN}, s{sN}, {WS_F2}
    """)
    stamp("srt", 6); stamp("syn", 1)
    FST = int(OPT["fst"])
    f2r = E + 9
    a(f"""
    s_cmp_lg_u32 s{sW}, 0
    s_waitcnt vmcnt(0)
    s_barrier
    s_cbranch_scc1 M_NOPUB
    s_mov_b64 exec, 1
    buffer_store_dwordx2 {v(OTG+2,2)}, v{nta}, s[{sWS}:{sWS+3}], s{sN} offen sc1
    s_mov_b64 exec, -1
    M_NOPUB:
    s_nop 7
    buffer_load_dwordx4 {v(OG,4)}, v{lh}, s[{sWS}:{sWS+3}], s{sOA} offen sc1
    """)
    XE = int(OPT["xe"])
    if XE:
        a(f"""
        s_lshr_b32 s{sA}, s2, 3
        s_lshl_b32 s{sA}, s{sA}, 7
        s_add_u32 s{sA}, s{sA}, {WS_P}
        v_lshl_add_u32 v{t0}, v{lane}, 3, s{sW}
        v_cmpx_gt_u32 vcc, {XE}, v{t0}
        v_lshlrev_b32 v{t0}, 12, v{t0}
        buffer_load_dword v{vCr+4}, v{t0}, s[{sWS}:{sWS+3}], s{sA} offen sc1
        s_mov_b64 exec, -1
        """)
    stamp("syn", 2)
    a(f"s_lshl_b32 s{sB}, s{sSB}, 12\nv_add_u32 v{t2}, s{sB}, v{sa}\nv_subrev_u32 v{t3}, s{sB}, v{sa}")
    for nh in range(2): tr(D + 8 + 4*nh, aN, 128*128 + 64*nh)
    for sx in range(4): tr(Wx + 4*sx, sa, 18432 + 2048*sx)
    a("s_waitcnt lgkmcnt(0)")
    for sx in range(4):
        a(f"v_mfma_f32_32x32x16_bf16 {v(U0,16)}, {v(Wx+4*sx,4)}, {v(XF+4*sx,4)}, {'0' if sx == 0 else v(U0,16)}")
    tr(WU, t2, 18432 + 8192); tr(WU + 4, t2, 18432 + 10240); tr(WU + 8, t3, 18432 + 12288); tr(WU + 12, t3, 18432 + 14336)
    w2read()
    for nh in range(2):
        for i in range(4):
            r = D + 8 + 4*nh + i
            a(f"v_lshlrev_b32 v{t0}, 16, v{r}\nv_and_b32 v{t1}, 0xffff0000, v{r}\nv_pk_mul_f32 {v(t0,2)}, {v(t0,2)}, s[74:75]\nv_cvt_pk_bf16_f32 v{W+8+4*nh+i}, v{t0}, v{t1}")
    srd_off(a, sP, 10, WS_P, 3200000)
    a(f"""
    v_lshlrev_b32 v{t0}, 3, v{h}
    v_sub_u32 v{t0}, v{m}, v{t0}
    v_and_b32 v{t1}, 1, v{t0}
    v_lshlrev_b32 v{t1}, 4, v{t1}
    v_mov_b32 v{t2}, 0x3f80
    v_lshlrev_b32 v{t1}, v{t1}, v{t2}
    v_lshrrev_b32 v{t0}, 1, v{t0}
    """)
    for j in range(2):
        for i in range(4):
            a(f"v_cmp_eq_u32 vcc, {8*j+i}, v{t0}\ns_nop 1\nv_cndmask_b32 v{W+4*j+i}, 0, v{t1}, vcc")
    a(f"""
    s_mul_i32 s{sSTB}, s{sW}, {SCAP*32}
    s_add_u32 s{sSTB}, s{sSTB}, {L_ST}
    s_mov_b32 s{sREC}, s10
    s_or_b32 s{sREC+1}, s11, {4<<16}
    s_mov_b32 s{sREC+2}, {WS_O//4}
    s_mov_b32 s{sREC+3}, 0x20000
    s_sub_u32 s{sE}, s6, {DFLAG*32}
    s_subb_u32 s{sE+1}, s7, 0
    s_or_b32 s{sE+1}, s{sE+1}, {32<<16}
    s_mov_b32 s{sE+2}, {(DFLAG + 800000) * ne}
    s_mov_b32 s{sE+3}, 0x20000
    s_sub_u32 s{sG}, 11, s{sW}
    s_cmp_lt_u32 s{sW}, 4
    s_cselect_b32 s{sG}, s{sW}, s{sG}
    s_mul_i32 s{sXRB}, s{sG}, {XRS}
    s_add_u32 s{sXRB}, s{sXRB}, {L_XR}
    s_mov_b32 s{sM7}, 0xffffff80
    s_mov_b32 s{sB30}, 0x40000000
    s_mov_b32 s{sDF}, {DFLAG}
    v_lshlrev_b32 v{RP+1}, 4, v{h}
    v_lshlrev_b32 v{RP+3}, 4, v{h}
    v_lshlrev_b32 v{RP+5}, 4, v{h}
    v_lshlrev_b32 v{RP+7}, 4, v{h}
    v_lshrrev_b32 v{t0}, 3, v{lane}
    s_lshl_b32 s{sA}, s{sG}, 7
    v_lshl_add_u32 v{vLS}, v{t0}, 4, s{sA}
    v_lshl_add_u32 v{vLE}, v{m}, 2, s{sA}
    v_and_b32 v{t3}, 1, v{t0}
    v_lshlrev_b32 v{t3}, 4, v{t3}
    v_lshl_add_u32 v{sac}, v{lane}, 5, v{t3}
    v_add_u32 v{sac}, s{sSTB}, v{sac}
    v_and_b32 v{t1}, 4, v{t0}
    v_and_b32 v{t2}, 7, v{lane}
    v_xor_b32 v{t1}, v{t1}, v{t2}
    v_lshlrev_b32 v{CX}, 4, v{t1}
    v_xor_b32 v{CX+1}, 16, v{CX}
    v_xor_b32 v{CX+2}, 32, v{CX}
    v_xor_b32 v{CX+3}, 48, v{CX}
    v_and_b32 v{t0}, 3, v{m}
    v_lshrrev_b32 v{t1}, 2, v{m}
    v_lshl_add_u32 v{t1}, v{t0}, 3, v{t1}
    v_lshlrev_b32 v{t1}, 7, v{t1}
    v_add_u32 v{t1}, s{sXRB}, v{t1}
    v_lshrrev_b32 v{t2}, 4, v{m}
    v_lshl_or_b32 v{t0}, v{t2}, 2, v{t0}
    v_xor_b32 v{t0}, v{t0}, v{h}
    v_lshl_add_u32 v{XA}, v{t0}, 4, v{t1}
    v_xor_b32 v{XA+1}, 32, v{XA}
    v_xor_b32 v{XA+2}, 64, v{XA}
    v_xor_b32 v{XA+3}, 0x60, v{XA}
    """)
    stamp("syn", 3)
    a(f"s_mov_b32 s{sA}, 0\ns_waitcnt vmcnt({1 if XE else 0})")
    kk12, c0, c1, g0, g1, p0, p1, tt, qa, f2r, fl0 = [E + i for i in range(11)]
    G, RC, NA, RK = D, D + 8, D + 16, D + 24
    TBv = FX
    OFv, CA = EP, EP + 8
    a(f"""
    s_branch M_POLLC
    M_BATCH:
    v_mul_u32_u24 v{lh}, {OTS}, v{lane}
    s_mov_b32 s{sA}, 0
    M_POLL:
    s_sleep {OPT["osl"]}
    buffer_load_dwordx4 {v(OG,4)}, v{lh}, s[{sWS}:{sWS+3}], s{sOA} offen sc1
    s_add_u32 s{sA}, s{sA}, 1
    s_cmp_gt_u32 s{sA}, {SPIN}
    s_cbranch_scc1 M_END
    s_waitcnt vmcnt(0)
    M_POLLC:
    v_cmpx_ne_u64 vcc, s[{sTAG}:{sTAG+1}], {v(OG+2,2)}
    s_cbranch_execnz M_POLL
    s_mov_b64 exec, -1
    s_lshr_b32 s{sA}, s{sW}, 1
    s_lshl_b32 s{sA}, s{sA}, 6
    v_add_lshl_u32 v{kk12}, v{lane}, s{sA}, 12
    v_lshl_add_u32 v{qa}, v{lane}, 2, s{sGL}
    v_mov_b32 v{t1}, 0xffff
    v_lshrrev_b32 v{lh}, 1, v{lane}
    """)
    stamp("pro", 1); stamp("syn", 4)
    a(f"v_and_b32 v{p0}, v{t1}, v{OG+1}\nv_lshrrev_b32 v{p1}, 16, v{OG+1}")
    fl = [f"v_and_or_b32 v{g0}, v{OG}, v{t1}, v{kk12}", f"v_lshrrev_b32 v{g1}, 16, v{OG}", f"v_or_b32 v{g1}, v{g1}, v{kk12}",
          f"v_and_b32 v{c0}, v{t1}, v{OG+1}", f"v_lshrrev_b32 v{c1}, 16, v{OG+1}", "s_nop 0"]
    for n, stp in enumerate(steps):
        a(f"{fl[n]}\nv_add_u32_dpp v{p0}, v{p0}, v{p0} {stp}\nv_add_u32_dpp v{p1}, v{p1}, v{p1} {stp}")
    a(f"""
    v_readlane_b32 s{sNS}, v{p0}, 63
    v_readlane_b32 s{sN}, v{p1}, 63
    v_sub_u32 v{p0}, v{p0}, v{c0}
    v_sub_u32 v{p1}, v{p1}, v{c1}
    s_add_u32 s{sN}, s{sN}, s{sNS}
    v_add_u32 v{p1}, s{sNS}, v{p1}
    s_mov_b32 s{sCNT}, s{sN}
    s_add_u32 s{sA}, s{sN}, s{sBASE}
    s_cmp_le_u32 s{sA}, s{sCAP}
    s_cbranch_scc0 M_WIN
    s_cmp_eq_u32 s{sBASE}, 0
    s_cbranch_scc1 M_NOWIN
    M_WIN:
    s_sub_i32 s{sCNT}, s{sN}, s{sBASE}
    s_max_i32 s{sCNT}, s{sCNT}, 0
    s_min_u32 s{sCNT}, s{sCNT}, s{sCAP}
    s_sub_i32 s{sNS}, s{sNS}, s{sBASE}
    s_max_i32 s{sNS}, s{sNS}, 0
    """)
    for (pp, cc, gg) in ((p0, c0, g0), (p1, c1, g1)):
        a(f"""
        v_subrev_u32 v{tt}, s{sBASE}, v{pp}
        v_max_i32 v{pp}, 0, v{tt}
        v_add_u32 v{cc}, v{tt}, v{cc}
        v_min_i32 v{cc}, s{sCAP}, v{cc}
        v_sub_u32 v{cc}, v{cc}, v{pp}
        v_sub_u32 v{tt}, v{pp}, v{tt}
        v_add_u32 v{gg}, v{gg}, v{tt}
        """)
    a(f"M_NOWIN:\ns_min_u32 s{sNS}, s{sNS}, {0 if YM else SCAP}")
    pa, ca_, ga, gb = t0, t1, t2, t3
    for n, (pp, cc, gg) in enumerate(((p0, c0, g0), (p1, c1, g1))):
        a(f"""
        v_lshl_add_u32 v{pp}, v{pp}, 2, s{sGL}
        v_add_u32 v{ga}, 1, v{gg}
        v_add_u32 v{gb}, 2, v{gg}
        v_mov_b32 v{ca_}, v{cc}
        v_mov_b32 v{pa}, v{pp}
        M_EXP{n}:
        """)
        for r in (1, 3, 5, 7):
            a(f"v_cmpx_lt_i32 vcc, {r}, v{ca_}\nds_write2_b32 v{pa}, v{ga}, v{gb} offset0:{r} offset1:{r+1}\nv_add_u32 v{ga}, 2, v{ga}\nv_add_u32 v{gb}, 2, v{gb}")
        a(f"""
        v_cmpx_lt_i32 vcc, 9, v{ca_}
        v_add_u32 v{pa}, 32, v{pa}
        v_subrev_u32 v{ca_}, 8, v{ca_}
        s_cbranch_execnz M_EXP{n}
        s_mov_b64 exec, -1
        """)
    a(f"""
    v_cmpx_lt_i32 vcc, 0, v{c0}
    ds_write_b32 v{p0}, v{g0}
    s_mov_b64 exec, -1
    v_cmpx_lt_i32 vcc, 0, v{c1}
    ds_write_b32 v{p1}, v{g1}
    s_mov_b64 exec, -1
    """)
    for i in ORD:
        a(f"ds_read_b32 v{G+i}, v{qa} offset:{256*i}")
    a(f"v_lshl_add_u32 v{t1}, v{lh}, 2, s{sGL}")
    for j in range(7):
        a(f"ds_read_b32 v{SG+j}, v{t1} offset:{128*j}")
    for i in ORD:
        a(f"s_sub_i32 s{sA}, s{sCNT}, {64*i}\nv_cmp_gt_i32 {mk(i)}, s{sA}, v{lane}")
    a(f"""
    v_lshrrev_b32 v{t2}, 4, v{lane}
    v_xor_b32 v{t2}, v{t2}, v{lane}
    v_and_b32 v{t2}, 1, v{t2}
    v_lshlrev_b32 v{t2}, 4, v{t2}
    v_mov_b32 v{fl0}, s{sCNT}
    v_mov_b32 v{fl0+1}, s{sN}
    s_waitcnt lgkmcnt(0)
    """)
    if CEM: a(f"s_mov_b32 s{sA}, {EMS//32-4096}")
    for j in range(7):
        if CEM: a(f"v_lshrrev_b32 v{t3}, 12, v{SG+j}\nv_mad_i32_i24 v{SG+j}, v{t3}, s{sA}, v{SG+j}")
        a(f"v_lshl_add_u32 v{SG+j}, v{SG+j}, 5, v{t2}")
    for i in range(8): a(f"v_lshrrev_b32 v{t3}, 12, v{G+i}\nv_mad_u32_u24 v{RC+i}, v{t3}, {SKW//4}, v{G+i}")
    stamp("pro", 2); stamp("syn", 5)
    a(f"""
    s_cmp_eq_u32 s92, 0
    s_cbranch_scc1 M_READY
    s_mov_b32 s92, 0
    """)
    a(f"""
    s_lshr_b32 s{sB}, s{sW}, 1
    s_lshl_b32 s{sB}, s{sB}, {FST+6}
    s_add_u32 s{sB}, s{sB}, {WS_F2}
    v_lshlrev_b32 v{f2r}, {FST}, v{lane}
    s_mov_b32 s{sA}, 0
    s_branch M_FL1
    M_FL:
    s_sleep {OPT["osl"]}
    M_FL1:
    buffer_load_dwordx2 {v(OG,2)}, v{f2r}, s[{sWS}:{sWS+3}], s{sB} offen sc1
    s_add_u32 s{sA}, s{sA}, 1
    s_cmp_gt_u32 s{sA}, {SPIN}
    s_cbranch_scc1 M_END
    s_waitcnt vmcnt(0)
    v_cmpx_ne_u64 vcc, s[{sTAG}:{sTAG+1}], {v(OG,2)}
    s_cbranch_execnz M_FL
    M_READY:
    """)
    stamp("top", 2); stamp("syn", 6)
    skip("M_GA")
    for i in ORD:
        a(f"s_mov_b64 exec, {mk(i)}\nbuffer_load_dword v{RC+i}, v{RC+i}, s[{sREC}:{sREC+3}], 0 idxen {LD}")
        after("M_GA", i)
    a("s_mov_b64 exec, -1")
    for i in range(4): a(f"v_mov_b32 v{t4+i}, {DUMMY}")
    a(f"v_lshlrev_b32 v{t0}, 4, v0\nv_lshlrev_b32 v{t1}, 2, v0\ns_waitcnt lgkmcnt(0)\ns_barrier")
    def stage(js):
        for j in ([] if YM else js):
            a(f"""
            s_sub_i32 s{sA}, s{sNS}, {32*j}
            s_add_u32 m0, s{sSTB}, {1024*j}
            v_cmpx_gt_i32 vcc, s{sA}, v{lh}
            buffer_load_dwordx4 v{SG+j}, s[{sEM}:{sEM+3}], 0 offen {LD} lds
            """)
        a("s_mov_b64 exec, -1")
    NS1 = int(OPT["ns1"])
    stage(range(NS1))
    XW = int(OPT["xw"])
    def pwarm():
        if XW:
            a(f"""
            s_lshr_b32 s{sA}, s2, 3
            s_mul_i32 s{sA}, s{sA}, {XW*128}
            s_add_u32 s{sA}, s{sA}, {XE*4096}
            v_lshl_add_u32 v{tt}, v{lane}, 3, s{sW}
            v_cmpx_gt_u32 vcc, {XW}, v{tt}
            v_lshlrev_b32 v{tt}, 7, v{tt}
            buffer_load_dword v{vCr+4}, v{tt}, s[{sP}:{sP+3}], s{sA} offen sc1
            s_mov_b64 exec, -1
            """)
    assert 2 * LSZ == 4 * 8192 + 2048
    for i in range(4): a(f"ds_write_b128 v{t0}, {v(t4,4)} offset:{L_LS+8192*i}")
    a(f"ds_write_b32 v{t1}, v{t4} offset:{L_LS+8192*4}")
    a(f"""
    s_mov_b32 s75, {L_C8}
    s_mov_b64 exec, 1
    ds_add_u32 v{nta}, v{fl0} offset:{L_NT}
    ds_max_u32 v{nta}, v{fl0+1} offset:{L_MX}
    """)
    skip("M_RK")
    for i in ORD:
        a(f"""
        s_mov_b64 exec, {mk(i)}
        s_waitcnt vmcnt({i+NS1})
        v_and_b32 v{NA+i}, 63, v{RC+i}
        v_bfe_u32 v{tt}, v{RC+i}, 18, 3
        v_add_u32 v{NA+i}, s{sSO}, v{NA+i}
        v_lshl_add_u32 v{CA+i}, v{NA+i}, 2, s75
        v_lshl_add_u32 v{CA+i}, v{tt}, 9, v{CA+i}
        ds_add_rtn_u32 v{RK+i}, v{CA+i}, v{one}
        """)
        after("M_RK", i)
    def pack(lab):
        a(f"s_movk_i32 s{sB}, {CH}\ns_mov_b32 s74, {int(OPT['epf'])*128}")
        skip(lab)
        for i in ORD:
            a(f"""
            v_lshrrev_b32 v{t0}, 12, v{G+i}
            v_lshrrev_b32 v{tt}, 21, v{RC+i}
            v_bfe_i32 v{t1}, v{G+i}, 11, 1
            v_mad_u32_u24 v{tt}, v{t0}, s{sB}, v{tt}
            v_and_b32 v{t1}, {M0}, v{t1}
            v_bfe_u32 v{RC+i}, v{RC+i}, 6, 15
            v_add3_u32 v{G+i}, v{t1}, v{tt}, s{sDF}
            v_lshl_add_u32 v{RC+i}, v{RC+i}, 7, v{NA+i}
            v_lshlrev_b32 v{NA+i}, 3, v{NA+i}
            """)
            if i < 4 and not YM:
                a(f"""
                s_sub_i32 s{sA}, s{sNS}, {64*i}
                v_cmp_gt_i32 vcc, s{sA}, v{lane}
                v_add_u32 v{tt}, {2048*i}, v{sac}
                s_nop 0
                v_cndmask_b32 v{G+i}, v{G+i}, v{tt}, vcc
                """)
            if int(OPT["epf"]):
                a(f"s_mov_b64 exec, {mk(i)}\nv_cmpx_gt_u32 vcc, s74, v{RC+i}" + ("" if YM or i >= 4 else f"\nv_cmpx_le_u32 vcc, s{sDF}, v{G+i}") + f"\nbuffer_load_dword v{vCr+4}, v{G+i}, s[{sE}:{sE+3}], 0 idxen\ns_mov_b64 exec, -1")
            after(lab, i)
    a("s_mov_b64 exec, -1")
    stamp("pro", 3)
    a(f"""
    s_cmp_eq_u32 s{sW}, 0
    s_cbranch_scc1 M_PK0
    s_lshl_b32 s{sA}, s{sW}, 8
    s_add_u32 s{sA}, s{sA}, {L_C8 - 256}
    v_lshl_add_u32 v{S4}, v{lane}, 2, s{sA}
    v_mov_b32 v{Q+8}, 0
    s_waitcnt lgkmcnt(0)
    s_barrier
    """)
    stamp("pro", 4)
    a(f"s_cmp_gt_u32 s{sW}, 2\ns_cbranch_scc1 M_NOPFX")
    for j in range(3): a(f"ds_read2st64_b32 {v(Q+2*j,2)}, v{S4} offset0:{4*j} offset1:{4*j+2}")
    a(f"s_waitcnt lgkmcnt(0)\nv_mov_b32 v{Q+9}, v{Q}")
    for j in range(1, 6): a(f"v_add_u32 v{Q+9+j}, v{Q+8+j}, v{Q+j}")
    for j in range(4): a(f"ds_write2st64_b32 v{S4}, v{Q+8+2*j}, v{Q+9+2*j} offset0:{C8O//256+4*j} offset1:{C8O//256+4*j+2}")
    a("M_NOPFX:\ns_setprio 0")
    stage(range(NS1, 7)); pwarm(); pack("M_PB")
    a("s_waitcnt lgkmcnt(0)\ns_barrier\ns_branch M_P4E")
    d0, d1, f0, f1, k0, k1, vL, vR, ks, a4, l0, l1, o0, o1, cn, ci = [Q + i for i in range(16)]
    m0_, B0, m1_, B1 = S4, S4+1, S4+2, S4+3
    a(f"""
    M_PK0:
    s_setprio 3
    v_lshlrev_b32 v{a4}, 3, v{lane}
    v_lshlrev_b32 v{cn}, 2, v{lane}
    v_add_u32 v{cn}, {L_C8}, v{cn}
    v_sub_u32 v{ci}, 31, v{m}
    v_lshlrev_b32 v{ci}, 2, v{ci}
    s_mov_b32 s75, {f32(4194304.0)}
    s_waitcnt lgkmcnt(0)
    s_barrier
    """)
    stamp("pro", 4)
    a(f"ds_read_b32 v{ks}, v{nta} offset:{L_NT}")
    for j in range(7): a(f"ds_read2st64_b32 {v(FX+2*j,2)}, v{cn} offset0:{2*j} offset1:{2*j+1}")
    a(f"""
    s_waitcnt lgkmcnt(4)
    v_readfirstlane_b32 s{sL}, v{ks}
    v_add3_u32 v{d0}, v{FX}, v{FX+2}, v{FX+4}
    v_add3_u32 v{d1}, v{FX+1}, v{FX+3}, v{FX+5}
    s_lshr_b32 s{sL}, s{sL}, 8
    s_add_u32 s{sL}, s{sL}, 2
    s_waitcnt lgkmcnt(0)
    v_add3_u32 v{d0}, v{d0}, v{FX+6}, v{FX+8}
    v_add3_u32 v{d1}, v{d1}, v{FX+7}, v{FX+9}
    v_add3_u32 v{d0}, v{d0}, v{FX+10}, v{FX+12}
    v_add3_u32 v{d1}, v{d1}, v{FX+11}, v{FX+13}
    v_cvt_f32_u32 v{f0}, v{d0}
    v_cvt_f32_u32 v{f1}, v{d1}
    M_LS:
    s_add_u32 s{sL}, s{sL}, 1
    s_cmp_gt_u32 s{sL}, {LMAX}
    s_cbranch_scc1 M_P4W
    v_cvt_f32_u32 v{vL}, s{sL}
    v_rcp_f32 v{vR}, v{vL}
    v_add_f32 v{vL}, -0.5, v{vL}
    v_add_f32 v{k0}, v{f0}, v{vL}
    v_add_f32 v{k1}, v{f1}, v{vL}
    v_mul_f32 v{k0}, v{k0}, v{vR}
    v_mul_f32 v{k1}, v{k1}, v{vR}
    v_cvt_u32_f32 v{k0}, v{k0}
    v_cvt_u32_f32 v{k1}, v{k1}
    v_add_u32 v{ks}, v{k0}, v{k1}
    """)
    fillers = [f"v_cvt_f32_u32 v{l0}, v{k0}", f"v_cvt_f32_u32 v{l1}, v{k1}",
               f"v_rcp_f32 v{m0_}, v{l0}", f"v_rcp_f32 v{m1_}, v{l1}",
               f"v_add_f32 v{l0}, v{l0}, v{f0}", f"v_add_f32 v{l1}, v{l1}, v{f1}",
               f"v_add_f32 v{l0}, -0.5, v{l0}", f"v_add_f32 v{l1}, -0.5, v{l1}",
               f"v_mul_f32 v{l0}, v{l0}, v{m0_}", f"v_mul_f32 v{l1}, v{l1}, v{m1_}",
               f"v_cvt_u32_f32 v{l0}, v{l0}", f"v_cvt_u32_f32 v{l1}, v{l1}"]
    for n, stp in enumerate(steps):
        a(f"{fillers[2*n]}\n{fillers[2*n+1]}\nv_add_u32_dpp v{ks}, v{ks}, v{ks} {stp}")
    a(f"""
    v_lshlrev_b32 v{l0}, 2, v{l0}
    v_readlane_b32 s{sA}, v{ks}, 63
    v_lshlrev_b32 v{l1}, 2, v{l1}
    s_cmp_gt_u32 s{sA}, 256
    s_cbranch_scc1 M_LS
    ds_add_rtn_u32 v{o0}, v{l0}, v{k0} offset:{L_CNT}
    ds_add_rtn_u32 v{o1}, v{l1}, v{k1} offset:{L_CNT}
    ds_read_b32 v{cn}, v{ci} offset:{L_CNT}
    v_mul_f32 v{m0_}, s75, v{m0_}
    v_mul_f32 v{m1_}, s75, v{m1_}
    v_cvt_u32_f32 v{m0_}, v{m0_}
    v_cvt_u32_f32 v{m1_}, v{m1_}
    v_add_u32 v{m0_}, 2, v{m0_}
    v_add_u32 v{m1_}, 2, v{m1_}
    v_lshlrev_b32 v{B0}, 2, v{k0}
    v_lshlrev_b32 v{B1}, 2, v{k1}
    v_sub_u32 v{B0}, 1024, v{B0}
    v_sub_u32 v{B1}, 1024, v{B1}
    v_sub_u32 v{l0}, 124, v{l0}
    v_sub_u32 v{l1}, 124, v{l1}
    s_waitcnt lgkmcnt(0)
    v_mov_b32 v{ks}, v{cn}
    """)
    for stp in steps[:5]:
        a(f"s_nop 1\nv_add_u32_dpp v{ks}, v{ks}, v{ks} {stp}")
    a(f"""
    v_sub_u32 v{ks}, v{ks}, v{cn}
    ds_bpermute_b32 v{d0}, v{l0}, v{ks}
    ds_bpermute_b32 v{d1}, v{l1}, v{ks}
    ds_write_b32 v{ci}, v{ks} offset:{L_BAS}
    s_waitcnt lgkmcnt(1)
    v_add_u32 v{o0}, v{o0}, v{d0}
    v_add_u32 v{o1}, v{o1}, v{d1}
    v_lshl_or_b32 v{m0_}, v{o0}, 24, v{m0_}
    v_lshl_or_b32 v{m1_}, v{o1}, 24, v{m1_}
    ds_write2st64_b64 v{a4}, {v(m0_,2)}, {v(m1_,2)} offset0:0 offset1:1
    M_P4W:
    v_mov_b32 v{ks}, s{sL}
    ds_write_b32 v{nta}, v{ks} offset:{L_MX+4}
    s_waitcnt lgkmcnt(0)
    s_barrier
    """)
    stage(range(NS1, 7)); pwarm(); pack("M_PA")
    u0, nn = Q + 20, Q + 26
    a("M_P4E:")
    stamp("pro", 5)
    a(f"""
    ds_read_b64 {v(u0,2)}, v{nta} offset:{L_MX}
    v_lshlrev_b32 v{tt}, 2, v{m}
    ds_read_b32 v{u0+2}, v{tt} offset:{L_CNT}
    ds_read_b32 v{u0+3}, v{tt} offset:{L_BAS}
    s_lshr_b32 s{sA}, s{sW}, 1
    s_lshl_b32 s{sA}, s{sA}, 5
    v_add_u32 v{nn}, s{sA}, v{m}
    v_lshlrev_b32 v{tt}, 3, v{nn}
    ds_read_b64 {v(u0+4,2)}, v{tt} offset:{L_TB}
    """)
    skip("M_TR")
    for i in ORD:
        a(f"s_mov_b64 exec, {mk(i)}\nds_read_b64 {v(TBv+2*i,2)}, v{NA+i} offset:{L_TB}\nds_read_b32 v{OFv+i}, v{CA+i} offset:{C8O}")
        after("M_TR", i)
    a(f"""
    s_mov_b64 exec, -1
    s_lshl_b32 s{sA}, s{sG}, 5
    s_waitcnt lgkmcnt(12)
    v_readfirstlane_b32 s{sNMAX}, v{u0}
    v_readfirstlane_b32 s{sL}, v{u0+1}
    v_add_u32 v{u0+2}, v{u0+2}, v{u0+3}
    v_cmp_ge_u32 vcc, s{sA}, v{u0+3}
    v_cmp_lt_u32 s[52:53], s{sA}, v{u0+2}
    s_and_b64 s[52:53], s[52:53], vcc
    s_ff1_i32_b32 s{sT}, s52
    s_max_i32 s{sT}, s{sT}, 0
    s_cmp_le_u32 s{sL}, {LMAX}
    s_cbranch_scc1 M_P5
    s_mov_b32 s{sCAP}, 256
    s_branch M_AGAIN
    M_P5:
    """)
    skip("M_SC")
    for i in ORD:
        mm, BB = TBv + 2*i, TBv + 2*i + 1
        a(f"""
        s_mov_b64 exec, {mk(i)}
        s_waitcnt lgkmcnt({2*i + max(0, 5-i)})
        v_add_u32 v{RK+i}, v{RK+i}, v{OFv+i}
        v_lshrrev_b32 v{tt}, 24, v{mm}
        v_mul_u32_u24 v{mm}, v{mm}, v{RK+i}
        v_add_lshl_u32 v{tt}, v{tt}, v{RK+i}, 2
        v_lshrrev_b32 v{mm}, 22, v{mm}
        v_mad_u32_u24 v{tt}, v{mm}, v{BB}, v{tt}
        ds_write2st64_b32 v{tt}, v{RC+i}, v{G+i} offset0:{L_LS//256} offset1:{L_LE//256}
        """)
        after("M_SC", i)
    ca0, ca1, ca2, ca3, kk, oa, fa, da = [EP + i for i in range(8)]
    epi_setup = f"""
    s_lshl_b32 s{sA}, s{sSB}, 7
    s_add_u32 s{sA}, s{sA}, {L_XR}
    s_movk_i32 s{sB}, 0x3fc
    s_movk_i32 s75, 0x3f8
    v_mov_b32 v{kk}, v{u0+5}
    v_lshrrev_b32 v{ca0}, 24, v{u0+4}
    v_mul_u32_u24 v{ca0}, 272, v{ca0}
    v_lshl_add_u32 v{ca0}, v{h16}, 1, v{ca0}
    v_add_u32 v{ca0}, s{sA}, v{ca0}
    v_mov_b32 v{da}, {L_ZR}
    v_cmp_gt_u32 s[56:57], s{sB}, v{kk}
    v_cmp_gt_u32 s[58:59], s75, v{kk}
    v_add_u32 v{ca1}, 272, v{ca0}
    v_add_u32 v{ca2}, 544, v{ca0}
    v_add_u32 v{ca3}, 816, v{ca0}
    v_cmp_gt_u32 vcc, 0x400, v{kk}
    v_cndmask_b32 v{ca1}, v{da}, v{ca1}, s[56:57]
    v_cndmask_b32 v{ca2}, v{da}, v{ca2}, s[58:59]
    v_cndmask_b32 v{ca0}, v{da}, v{ca0}, vcc
    v_cmp_gt_u32 vcc, s{sNB}, v{nn}
    v_lshlrev_b32 v{oa}, 7, v{nn}
    v_lshl_add_u32 v{oa}, v{h16}, 1, v{oa}
    s_lshl_b32 s{sA}, s{sW}, 11
    v_cndmask_b32 v{oa}, v{hz}, v{oa}, vcc
    v_add_u32 v{fa}, s{sA}, v{l16}
    v_mul_u32_u24 v{da}, 272, v{m}
    v_add3_u32 v{da}, v{da}, v{h16}, s{sXRB}
    """
    a(f"""
    s_mov_b64 exec, -1
    s_setprio 0
    """)
    a("s_waitcnt lgkmcnt(0)\ns_barrier")
    stamp("top", 3); stamp("pro", 6); stamp("pri", 1)
    a(f"s_cmp_lg_u32 s{sT}, 0\ns_cbranch_scc1 M_GO")
    a(epi_setup)
    a("s_waitcnt vmcnt(0)\ns_barrier\ns_branch M_BEND\nM_GO:")
    S = []
    ef = OPT["eflags"]
    def le_read(t, p): return (f"ds_read_b32 v{RP+2*p}, v{vLE} offset:{L_LE+1024*t}", f"le{t}")
    def ls_read(t, dst): return (f"ds_read_b128 {v(dst,4)}, v{vLS} offset:{L_LS+1024*t}", f"ls{t}")
    def st_addr(p): return f"v_xor_b32 v{sa}, v{RP+2*p}, v{h16}"
    def st_read(t): return (f"ds_read_b128 {Es(t)}, v{sa}", f"st{t}")
    def d_pre(t, p): return [f"v_cmp_le_u32 vcc, s{sDF}, v{RP+2*p}", f"v_and_or_b32 v{vCr+t%5}, v{RP+2*p}, s{sB30}, 1.0"]
    def d_load(t, p): return ["s_mov_b64 exec, vcc", (f"buffer_load_dwordx4 {Es(t)}, {v(RP+2*p,2)}, s[{sE}:{sE+3}], 0 idxen offen {ef}", f"D{t}"), "s_mov_b64 exec, -1"]
    def x_addr(src): return [f"v_and_or_b32 v{S4+i}, v{src+i}, s{sM7}, v{CX+i}" for i in range(4)]
    def x_dma(t, nop=True, reg=None, soff="0", tag=None):
        o = []
        for i in range(4):
            sr = sP
            o += [f"s_add_u32 m0, s{sXRB}, {(t&1)*4096+i*1024}"] + (["s_nop 0"] if nop else []) + \
                 [(f"buffer_load_dwordx4 v{(reg or S4)+i}, s[{sr}:{sr+3}], {soff} offen {LD} lds", tag or f"X{t}")]
        return o
    def fx_read(t, sx, tag=None): return (f"ds_read_b128 {v(FX+4*sx,4)}, v{XA+sx} offset:{(t&1)*4096}", tag or f"fx{t}")
    def chain(nh, t):
        Dh = v(D + 16 * nh, 16)
        return [f"v_mfma_f32_32x32x16_bf16 {Dh}, {W3f(nh)}, {Es(t)}, {v(Q+16*nh,16)}"] + \
               [f"v_mfma_f32_32x32x16_bf16 {Dh}, {Idf(j)}, {v(FX+8*nh+4*j,4)}, {Dh}" for j in range(2)]
    nd, L1, L2 = D, D + 4, SG
    def ps(i): return [f"s_memrealtime s[{76+2*i}:{77+2*i}]", "s_waitcnt lgkmcnt(0)"] if MODE == "pri" else []
    S += [ls_read(0, S4), (f"ds_read_b32 v{nd}, v{vLE} offset:{L_LS}", "nd")] + [le_read(j, j) for j in range(4)] + [ls_read(1, L1), ls_read(2, L2), ("@W", None, "nd")]
    S += x_addr(S4)
    xa_ = [f"v_bfe_u32 v{nd+1}, v{nd}, 4, 3", f"v_mul_u32_u24 v{nd+1}, {XRS}, v{nd+1}", f"v_bfe_u32 v{nd+2}, v{nd}, 1, 3", f"v_xor_b32 v{nd+2}, v{nd+2}, v{h}"]
    dm = x_dma(0, nop=False)
    for i in range(4): S += [dm[2*i], xa_[i], dm[2*i+1]]
    S += [f"v_and_b32 v{nd}, 15, v{nd}", f"v_lshl_add_u32 v{nd+1}, v{nd}, 7, v{nd+1}", f"v_lshl_add_u32 v{nd+1}, v{nd+2}, 4, v{nd+1}", f"v_add_u32 v{nd+1}, {L_XR+XRO}, v{nd+1}"]
    for sx in range(4):
        S += [(f"ds_read_b128 {v(FX+4*sx,4)}, v{nd+1}", "xd")] + ([f"v_xor_b32 v{nd+1}, {(32, 96, 32)[sx]}, v{nd+1}"] if sx < 3 else [])
    def dl(j): return d_pre(j, j) + [f"s_not_b64 s[{60+2*j}:{61+2*j}], vcc"] + d_load(j, j)
    S += [("@W", None, "ls2")] + dl(0) + ps(2)
    ep = [l.strip() for l in epi_setup.strip().split("\n")]
    S += ep + x_addr(L1) + [("@W", None, "xd")]
    for nh in range(2):
        for sx in range(4):
            S.append(f"v_mfma_f32_32x32x16_bf16 {v(Q+16*nh,16)}, {v(AG+(sx*2+nh)*4,4)}, {v(FX+4*sx,4)}, {'0' if sx == 0 else v(Q+16*nh,16)}")
    S += ["s_waitcnt vmcnt(5)"] + ps(3) + ["s_barrier"] + ps(4)
    S += [st_addr(0), "s_mov_b64 exec, s[60:61]", st_read(0), "s_mov_b64 exec, -1"]
    for j in range(1, 4): S += [st_addr(j), st_read(j)]
    S += [f"s_mov_b32 s74, {f32(-LOG2E)}", f"s_mov_b32 s75, {f32(-LOG2E)}"]
    S += [("@W", "D0", None)] + ps(5) + [fx_read(0, sx) for sx in range(4)]
    S += [f"v_pk_mul_f32 {v(Q+2*i,2)}, {v(Q+2*i,2)}, s[74:75]" for i in range(16)] + [("@W", None, "fx0")]
    S += chain(0, 0) + d_pre(1, 1) + d_load(1, 1) + x_dma(1) + [f"v_and_or_b32 v{L2+i}, v{L2+i}, s{sM7}, v{CX+i}" for i in range(4)] + ps(6)
    if MODE: S += [f"s_mov_b32 s90, s{sT}", f"s_mov_b32 s98, s{sL}", "s_memtime s[94:95]", "s_waitcnt lgkmcnt(0)"]
    if MODE == "top": S += ["s_memrealtime s[84:85]", "s_waitcnt lgkmcnt(0)"]
    def phase(nh, t, mf, fill):
        Db, Ab = D + 16*nh, AG + 16*nh
        c = vCr + t % 5
        cp = f"{v(c & ~1, 2)} " + ("op_sel_hi:[1,0]" if c % 2 == 0 else "op_sel:[0,1] op_sel_hi:[1,1]")
        seq = []
        mf = mf + [None] * (3 - len(mf))
        for q in range(2):
            ex = [f"v_exp_f32 v{T+i}, v{Db+8*q+i}" for i in range(8)]
            rc = [f"v_rcp_f32 v{T+i}, v{T+i}" for i in range(8)]
            ad = [f"v_pk_add_f32 {v(T+2*i,2)}, {v(T+2*i,2)}, {cp}" for i in range(4)]
            fm = [f"v_pk_fma_f32 {v(Ab+8*q+2*i,2)}, {v(Db+8*q+2*i,2)}, {v(T+2*i,2)}, {v(Ab+8*q+2*i,2)}" for i in range(4)]
            if t == 0: fm = [f"v_pk_mul_f32 {v(Ab+8*q+2*i,2)}, {v(Db+8*q+2*i,2)}, {v(T+2*i,2)}" for i in range(4)]
            if q == 0: seq += [mf[0]] + ex + ad + [mf[1]] + rc + fm
            else: seq += [mf[2]] + ex + ad + rc + fm
        res = []; n = 0
        for l in seq:
            if l is None: continue
            res.append(l)
            if l.startswith(("v_exp", "v_rcp")):
                res += fill.get(n, []); n += 1
        return res
    for t in range(LMAX):
        fill = {}
        if t + 4 < LMAX:
            fill[0] = [le_read(t + 4, 0)]
            fill[10] = [("@W", None, f"le{t+4}"), st_addr(0)]; fill[11] = [st_read(t + 4)]
        if t + 3 < LMAX: fill[1] = [ls_read(t + 3, S4)]
        if t + 1 < LMAX:
            fill[16] = [("@W", f"X{t+1}", None)]
            for sx in range(4): fill[17+sx] = [fx_read(t + 1, sx)]
        if t + 3 < LMAX:
            xa = x_addr(S4)
            fill[24] = [("@W", None, f"ls{t+3}"), xa[0]]; fill[25] = [xa[1]]; fill[26] = [xa[2]]; fill[27] = [xa[3]]
        if t == 0:
            fill[2] = d_pre(2, 2); fill[3] = d_load(2, 2)
            dm = x_dma(2, nop=False, reg=L2)
            for i, pos in enumerate((4, 5, 6, 7, 12, 13, 14, 15)): fill[pos] = [dm[i]]
            fill[28] = d_pre(3, 3); fill[29] = d_load(3, 3)
        if int(OPT["prio"]) == 1: S.append("s_setprio 1")
        S += phase(0, t, chain(1, t), fill)
        if int(OPT["prio"]) == 1: S.append("s_setprio 0")
        fill = {}
        if t + 1 < LMAX: fill[0] = [("@W", None, f"fx{t+1}")]
        if t + 3 < LMAX:
            dm = x_dma(t + 3, nop=False)
            for i in range(8): fill[1+i] = [dm[i]]
        if t + 4 < LMAX:
            dp = d_pre(t + 4, 0)
            fill[9] = [dp[0]]; fill[12] = d_load(t + 4, 0); fill[13] = [dp[1]]
        fill[31] = [f"s_cmp_eq_u32 s{sT}, {t+1}"]
        S += phase(1, t, chain(0, t + 1) if t + 1 < LMAX else [], fill)
        if t + 1 < LMAX: S.append("s_cbranch_scc1 M_FLUSH")
    emit(resolve(S))
    a("M_FLUSH:")
    stamp("top", 5); stamp("epi", 1)
    if MODE: a("s_memtime s[96:97]\ns_waitcnt lgkmcnt(0)")
    a("s_waitcnt vmcnt(0)")
    for i in range(8):
        a(f"ds_write_b128 v{da}, {v(AG+4*i,4)} offset:{32*i}")
    A0, A1, A2, OWN, PAR = D, D + 16, Q, Q + 16, Q + 24
    a(f"""
    M_BEND:
    v_cmp_gt_u32 vcc, 0x3f4, v{kk}
    s_mov_b32 s74, {f32(-1.0/LOG2E)}
    s_mov_b32 s75, {f32(-1.0/LOG2E)}
    s_waitcnt lgkmcnt(0)
    """)
    stamp("epi", 2)
    a("s_barrier")
    stamp("epi", 3)
    offs = (0, 16, 64, 80)
    for i in range(4):
        for buf, ca in ((A0, ca0), (A1, ca1), (A2, ca2)):
            a(f"ds_read_b128 {v(buf+4*i,4)}, v{ca} offset:{offs[i]}")
    for i in range(4):
        a(f"s_waitcnt lgkmcnt({9-3*i})")
        for j in range(2): a(f"v_pk_add_f32 {v(A0+4*i+2*j,2)}, {v(A0+4*i+2*j,2)}, {v(A1+4*i+2*j,2)}")
        for j in range(2): a(f"v_pk_add_f32 {v(A0+4*i+2*j,2)}, {v(A0+4*i+2*j,2)}, {v(A2+4*i+2*j,2)}")
    a(f"""
    s_cbranch_vccz M_SUMD
    s_movk_i32 s{sA}, 0x3f4
    M_SUML:
    s_mov_b64 exec, vcc
    """)
    for i in range(4):
        a(f"ds_read_b128 {v(A1+4*i,4)}, v{ca3} offset:{offs[i]}")
    a(f"s_sub_u32 s{sA}, s{sA}, 4\nv_add_u32 v{ca3}, 272, v{ca3}\ns_waitcnt lgkmcnt(0)")
    for i in range(8): a(f"v_pk_add_f32 {v(A0+2*i,2)}, {v(A0+2*i,2)}, {v(A1+2*i,2)}")
    a(f"""
    s_mov_b64 exec, -1
    v_cmp_gt_i32 vcc, s{sA}, v{kk}
    s_nop 4
    s_cbranch_vccnz M_SUML
    M_SUMD:
    s_cmp_le_u32 s{sNMAX}, s{sCAP}
    s_cbranch_scc1 M_EPI
    """)
    srd_off(a, 56, 10, WS_SP, 2048 * 4096)
    a(f"""
    s_lshl_b32 s{sA}, s2, 3
    s_add_u32 s{sA}, s{sA}, s{sW}
    s_lshl_b32 s{sA}, s{sA}, 12
    s_cmp_eq_u32 s{sBASE}, 0
    s_cbranch_scc1 M_NOLD
    """)
    for i in range(4):
        a(f"buffer_load_dwordx4 {v(A1+4*i,4)}, v{l16}, s[56:59], s{sA} offen offset:{1024*i} sc0 sc1")
    a("s_waitcnt vmcnt(0)")
    for i in range(8): a(f"v_pk_add_f32 {v(A0+2*i,2)}, {v(A0+2*i,2)}, {v(A1+2*i,2)}")
    a(f"""
    M_NOLD:
    s_add_u32 s{sBASE}, s{sBASE}, s{sCAP}
    s_cmp_ge_u32 s{sBASE}, s{sNMAX}
    s_cbranch_scc1 M_EPI
    """)
    for i in range(4):
        a(f"buffer_store_dwordx4 {v(A0+4*i,4)}, v{l16}, s[56:59], s{sA} offen offset:{1024*i} sc0 sc1")
    a(f"""
    M_AGAIN:
    s_load_dwordx2 s[60:61], s[0:1], 32
    s_waitcnt vmcnt(0) lgkmcnt(0)
    s_barrier
    """)
    srd(a, 56, 60, 18432)
    a(f"""
    s_lshl_b32 s{sA}, s{sW}, 10
    s_add_u32 s{sA}, s{sA}, 8192
    s_add_u32 m0, s{sA}, {S_W}
    v_lshlrev_b32 v{t0}, 2, v0
    buffer_load_dwordx4 v{l16}, s[56:59], s{sA} offen lds
    ds_write_b32 v{t0}, v{nta}
    v_add_u32 v{t0}, {L_C8}, v{t0}
    ds_write_b32 v{t0}, v{nta}
    ds_write_b32 v{t0}, v{nta} offset:2048
    """)
    xrows()
    a("s_waitcnt vmcnt(0)\ns_barrier")
    w2read()
    a(f"""
    s_waitcnt lgkmcnt(0)
    s_barrier
    s_branch M_BATCH
    M_EPI:
    """)
    srd(a, 56, 8, 3200000)
    for i in range(8): a(f"v_pk_mul_f32 {v(A0+2*i,2)}, {v(A0+2*i,2)}, s[74:75]")
    for i in range(8): a(f"v_cvt_pk_bf16_f32 v{OWN+i}, v{A0+2*i}, v{A0+2*i+1}")
    a(f"""
    ds_write_b128 v{fa}, {v(OWN,4)} offset:{L_FE}
    ds_write_b128 v{fa}, {v(OWN+4,4)} offset:{L_FE+1024}
    v_xor_b32 v{fa}, 0x800, v{fa}
    v_mfma_f32_32x32x16_bf16 {v(U0,16)}, {v(WU,4)}, {v(OWN,4)}, {v(U0,16)}
    v_mfma_f32_32x32x16_bf16 {v(U0,16)}, {v(WU+4,4)}, {v(OWN+4,4)}, {v(U0,16)}
    s_lshl_b32 s{sA}, s{sSB}, 6
    s_add_u32 s{sA}, s{sA}, s{sS0}
    s_mov_b32 s74, {f32(-LOG2E)}
    s_mov_b32 s75, {f32(-LOG2E)}
    s_waitcnt lgkmcnt(0)
    s_barrier
    """)
    stamp("epi", 4)
    a(f"""
    ds_read_b128 {v(PAR,4)}, v{fa} offset:{L_FE}
    ds_read_b128 {v(PAR+4,4)}, v{fa} offset:{L_FE+1024}
    s_waitcnt lgkmcnt(1)
    v_mfma_f32_32x32x16_bf16 {v(U0,16)}, {v(WU+8,4)}, {v(PAR,4)}, {v(U0,16)}
    s_waitcnt lgkmcnt(0)
    v_mfma_f32_32x32x16_bf16 {v(U0,16)}, {v(WU+12,4)}, {v(PAR+4,4)}, {v(U0,16)}
    s_nop 11
    """)
    for q in range(2):
        b = 8 * q
        for i in range(4): a(f"v_pk_mul_f32 {v(AG+b+2*i,2)}, {v(U0+b+2*i,2)}, s[74:75]")
        for i in range(8): a(f"v_exp_f32 v{AG+b+i}, v{AG+b+i}")
        for i in range(4): a(f"v_pk_add_f32 {v(AG+b+2*i,2)}, {v(AG+b+2*i,2)}, 1.0 op_sel_hi:[1,0]")
        for i in range(8): a(f"v_rcp_f32 v{AG+b+i}, v{AG+b+i}")
        for i in range(4): a(f"v_pk_mul_f32 {v(AG+b+2*i,2)}, {v(U0+b+2*i,2)}, {v(AG+b+2*i,2)}")
        for i in range(4): a(f"v_cvt_pk_bf16_f32 v{D+4*q+i}, v{AG+b+2*i}, v{AG+b+2*i+1}")
        a(f"buffer_store_dwordx4 {v(D+4*q,4)}, v{oa}, s[56:59], s{sA} offen offset:{16*q}")
    if MODE:
        stamp("epi", 5)
        a("s_waitcnt vmcnt(0)")
        stamp("top", 6); stamp("epi", 6)
        a(f"s_lshl_b32 s74, s2, 3\ns_add_u32 s74, s74, s{sW}\ns_lshl_b32 s74, s74, 6\ns_add_u32 s74, s74, {WS_ST+0x80000}\ns_load_dwordx2 s[10:11], s[0:1], 64\ns_waitcnt lgkmcnt(0)\ns_add_u32 s52, s10, s74\ns_addc_u32 s53, s11, 0\nv_mov_b32 v0, 0")
        for i in range(8):
            a(f"v_mov_b32 v1, s{76+2*i}\nglobal_store_dword v0, v1, s[52:53] offset:{4*i}")
        a("s_sub_u32 s96, s96, s94\nv_mov_b32 v1, s96\nglobal_store_dword v0, v1, s[52:53] offset:32\nv_mov_b32 v1, s98\nglobal_store_dword v0, v1, s[52:53] offset:36")
    a("M_END:\ns_endpgm")
    return R.n

hdr = f"""; MPNN edge-MLP + segment-sum + node update in one launch of 256 co-resident workgroups:
; @launch grid=(256,1,1) block=(512,1,1) lds={MAIN_LDS}
.amdgcn_target "amdgcn-amd-amdhsa--gfx950"
.text
.globl {KN}
.type {KN},@function
"""
nv = gen()
txt = hdr + a.text() + '.section .rodata,"a"\n.p2align 6\n' + kdesc(KN, 256, 102)
open(sys.argv[1], "w").write(txt)
print("vgprs", nv, "lds", MAIN_LDS)
```

```python
import sys, struct
from asmlib import *

OPT = dict(abl="", stamp=False, eflags="", M0=1152, ns1=3, es='5,0,0', osl=4, xw=128, fst=5, cem=1, Y=False, epf=0, skw=256, xe=0, tlb=0, stl=0, eld='', ild='', xld='', wso=0, tch=0, st='sc1', oe=0, otw=2, smf=1, ns2=7, prio=1, ld="sc1")
for arg in sys.argv[2:]:
    k, val = arg.split("=")
    OPT[k] = {"True": True, "False": False}.get(val, val.replace("+", " "))
M0 = int(OPT["M0"])
assert M0 % 32 == 0 and M0 <= 1792 and 3200 - M0 <= 2048
LD = OPT["ld"]
YM = OPT["Y"]
if YM: OPT["es"] = "0,0,0"; OPT["ns1"] = 0
KN = "standalone__mpnn_edge_mlp__graph_kernel"

NCH, CH = 250, 3200
WS_REC, WS_O, WS_F2, WS_ST, WS_P, WS_SP, WS_EM = 0, 0x440000, 0x680000, 0x700000, 0x800000, 0x1A00000, 0xB20000
SKW = int(OPT["skw"])
OTS, RCS, EMS = 8192 + SKW, 16384 + SKW, M0 * 32 + SKW
LOG2E = 1.4426950408889634
def f32(x): return "0x%08x" % struct.unpack("<I", struct.pack("<f", x))[0]

a = Asm()
MODE = OPT["stamp"]
def stamp(mode, i):
    if MODE == mode or (MODE and mode == "all"):
        a(f"s_memrealtime s[{76+2*i}:{77+2*i}]\ns_waitcnt lgkmcnt(0)")
def emit(l): a("\n".join(l))

def resolve(stream):
    out = []; vm = []; lg = []
    for it in stream:
        if isinstance(it, tuple) and it[0] == "@W":
            parts = []
            if it[1] is not None:
                idx = max(i for i, t in enumerate(vm) if t == it[1]); n = len(vm) - 1 - idx
                assert n <= 63; parts.append(f"vmcnt({n})")
            if it[2] is not None:
                idx = max(i for i, t in enumerate(lg) if t == it[2]); n = len(lg) - 1 - idx
                parts.append(f"lgkmcnt({min(n, 15)})")
            out.append("s_waitcnt " + " ".join(parts)); continue
        txt, tag = it if isinstance(it, tuple) else (it, None)
        if txt.startswith("buffer_"): vm.append(tag)
        if txt.startswith("ds_"): lg.append(tag)
        out.append(txt)
    return out

LMAX = 17
L_TB = 0
L_CNT = 1024
L_NT = L_CNT + 128
L_MX = L_NT + 16
L_BAS = L_MX + 16
L_F2C = 1408
L_ZR = 1536
L_LS = 2048
LSZ = LMAX * 1024
L_LE = L_LS + LSZ
L_ST = L_LE + LSZ
SCAP = 224
L_XR = L_ST + 8 * SCAP * 32
XRS = 8704
MAIN_LDS = L_XR + 8 * XRS
assert MAIN_LDS <= 163840 and L_XR % 4096 == 0
L_C8 = L_XR + XRS
C8O = XRS
GLO = 6144
XRO = 4096
S_W = L_LS
S_WU = L_XR + 4 * XRS
S_CNT = S_W + 18432
S_STA = S_CNT + 2048
S_SRT = S_STA + 2048
S_E = S_SRT + CH * 4
assert S_E + M0 * 32 <= L_XR + 4096
L_FE = L_LS
DUMMY = 0xC0000000
DFLAG = 1 << 24
SPIN = 200000

def gen():
    R = Regs("v", 1, 256)
    vLS = R.alloc("vLS"); vLE = R.alloc("vLE")
    vCr = R.alloc("vCr", 5)
    RP = R.alloc("RP", 8, 2)
    XA = R.alloc("XA", 4); CX = R.alloc("CX", 4)
    S4 = R.alloc("S4", 4, 4); T = R.alloc("T", 8, 4)
    FX = R.alloc("FX", 16, 4); E = R.alloc("E", 16, 4)
    D = R.alloc("D", 32, 4); Q = R.alloc("Q", 32, 4); AG = R.alloc("AG", 32, 4); W = R.alloc("W", 16, 4)
    U0 = R.alloc("U0", 16, 4); WU = R.alloc("WU", 16, 4); EP = R.alloc("EP", 16, 4)
    SG = R.alloc("SG", 8, 4)
    sa = R.alloc("sa"); lane = R.alloc("lane"); l16 = R.alloc("l16"); m = R.alloc("m"); h = R.alloc("h")
    sac = R.alloc("sac"); lh = R.alloc("lh"); hz = R.alloc("hz"); aN = R.alloc("aN"); one = R.alloc("one"); nta = R.alloc("nta")
    h16 = RP + 1
    def Idf(j): return v(W + 4 * j, 4)
    def W3f(nh): return v(W + 8 + nh * 4, 4)
    def Es(t): return v(E + 4 * (t % 4), 4)
    sX, sE, sREC, sEM, sWS, sP = 16, 20, 24, 28, 32, 36
    sW, sSB, sS0, sSO, sN, sBASE, sCNT, sT, sXRB, sA, sB, sCAP = 40, 41, 42, 43, 44, 45, 46, 47, 48, 49, 50, 51
    sNB, sGL, sNMAX, sG, sL, sM7, sB30, sDF, sNS = 70, 71, 72, 73, 12, 13, 14, 15, 3
    sSTB, sOA, sTAG = 99, 93, 100
    t0, t1, t2, t3, t4, t5, t6, t7 = [T + i for i in range(8)]
    def mk(i): return f"s[{54+2*i}:{55+2*i}]"
    ORD = list(range(7, -1, -1))
    def skip(lab):
        a(f"s_cmp_le_u32 s{sCNT}, 384\ns_cbranch_scc1 {lab}6\ns_cmp_le_u32 s{sCNT}, 448\ns_cbranch_scc1 {lab}7")
    def after(lab, i):
        if i >= 6: a(f"{lab}{i}:")
    ne = 0 if "noe" in OPT["abl"] else 1
    steps = [f"row_shr:{sh} row_mask:0xf bank_mask:0xf bound_ctrl:0" for sh in (1, 2, 4, 8)] + ["row_bcast:15 row_mask:0xa bank_mask:0xf", "row_bcast:31 row_mask:0xc bank_mask:0xf"]

    DS_, SR_, CAD, RNK, PR_ = D, D + 8, D + 16, D + 24, Q
    oA, oB, t16, t4_, idx, rA, rB = [Q + 8 + i for i in range(7)]
    nz = Q + 16
    CS = Q + 20
    NA_, NB_ = M0 // 4, (CH - M0) // 4
    SDW = "dst_sel:DWORD dst_unused:UNUSED_PAD src0_sel:DWORD src1_sel:"
    a(f".p2align 8\n{KN}:")
    a(f"""
    s_cmp_ge_u32 s2, 256
    s_cbranch_scc1 M_END
    s_load_dwordx4 s[56:59], s[0:1], 16
    s_load_dwordx4 s[4:7], s[0:1], 0
    s_load_dwordx4 s[60:63], s[0:1], 32
    s_load_dwordx4 s[8:11], s[0:1], 48
    s_load_dwordx2 s[64:65], s[0:1], 64
    s_memrealtime s[66:67]
    """)
    stamp("all", 0)
    a(f"""
    s_setprio 2
    v_lshlrev_b32 v{t16}, 4, v0
    v_mov_b32 v{hz}, 0x80000000
    v_cmp_gt_u32 vcc, {NA_}, v0
    s_mul_i32 s{sA}, s2, 12800
    s_mov_b64 s[52:53], vcc
    v_cndmask_b32 v{rA}, v{hz}, v{t16}, vcc
    v_cmp_gt_u32 vcc, {NB_}, v0
    s_add_u32 s{sB}, s{sA}, {M0*4}
    s_mov_b64 s[54:55], vcc
    v_cndmask_b32 v{rB}, v{hz}, v{t16}, vcc
    s_mov_b32 s{sE+2}, 3200000
    s_mov_b32 s{sE+3}, 0x20000
    s_mov_b32 s{sEM+2}, 3200000
    s_mov_b32 s{sEM+3}, 0x20000
    v_lshlrev_b32 v{t4_}, 2, v0
    v_mov_b32 v{nta}, 0
    v_lshrrev_b32 v{t0}, 6, v0
    s_waitcnt lgkmcnt(0)
    s_mov_b32 s{sE}, s58
    s_mov_b32 s{sE+1}, s59
    s_mov_b32 s{sEM}, s56
    s_mov_b32 s{sEM+1}, s57
    buffer_load_dwordx4 {v(DS_,4)}, v{rA}, s[{sE}:{sE+3}], s{sA} offen {OPT['ild']}
    buffer_load_dwordx4 {v(DS_+4,4)}, v{rB}, s[{sE}:{sE+3}], s{sB} offen {OPT['ild']}
    buffer_load_dwordx4 {v(SR_,4)}, v{rA}, s[{sEM}:{sEM+3}], s{sA} offen {OPT['ild']}
    buffer_load_dwordx4 {v(SR_+4,4)}, v{rB}, s[{sEM}:{sEM+3}], s{sB} offen {OPT['ild']}
    ds_write_b32 v{t4_}, v{nta} offset:{S_CNT}
    ds_write_b32 v{t4_}, v{nta}
    v_readfirstlane_b32 s{sW}, v{t0}
    s_setprio 0
    """)
    srd(a, sP, 10, 256)
    a(f"""
    s_cmp_lt_u32 s2, {NCH}
    s_cbranch_scc1 S_NOTAG
    s_cmp_lg_u32 s{sW}, 0
    s_cbranch_scc1 S_NOTAG
    s_or_b32 s{sA}, s66, 1
    v_mov_b32 v{nz}, s{sA}
    v_mov_b32 v{nz+1}, s67
    v_mov_b32 v{nz+2}, 0
    v_mov_b32 v{nz+3}, 0
    s_mov_b64 exec, 1
    buffer_atomic_cmpswap_x2 {v(nz,4)}, v{nta}, s[{sP}:{sP+3}], 0 offen sc1
    s_mov_b64 exec, -1
    s_waitcnt vmcnt(0)
    S_NOTAG:
    s_mov_b32 s68, s10
    s_mov_b32 s69, s11
    s_add_u32 s10, s64, {int(str(OPT["wso"]), 0)}
    s_addc_u32 s11, s65, 0
    s_cmp_lt_u32 s2, {NCH}
    s_cselect_b64 s[52:53], s[52:53], 0
    s_cselect_b64 s[54:55], s[54:55], 0
    v_and_b32 v{lane}, 63, v0
    v_lshlrev_b32 v{l16}, 4, v{lane}
    s_mul_i32 s{sL}, s2, {CH*32}
    s_lshl_b32 s{sT}, s{sW}, 10
    """)
    srd(a, sREC, 6, 0 if "nomv" in OPT["abl"] else 25600000)
    a("s_waitcnt lgkmcnt(0)\ns_barrier")
    if int(OPT["stl"]):
        a(f"""
        s_lshl_b32 s{sA}, s{sW}, 21
        s_add_u32 s{sB}, s{sA}, 0x1000000
        s_min_u32 s{sN}, s{sB}, {WS_EM + 256*EMS - 64}
        s_load_dword s66, s[10:11], s{sA}
        s_load_dword s66, s[10:11], s{sN}
        s_min_u32 s{sN}, s{sB}, {25600000 - 64}
        s_load_dword s66, s[6:7], s{sA}
        s_load_dword s66, s[6:7], s{sN}
        s_and_b32 s{sA}, s{sA}, 0x200000
        s_load_dword s66, s[8:9], s{sA}
        """)
    npiece = 0 if YM else M0 // 32
    nr = (npiece + 7) // 8
    ES = [int(x) for x in OPT["es"].split(",")]
    assert sum(ES) == nr
    EC = [sum(ES[:i]) for i in range(4)]
    def edma(slot):
        for r in range(EC[slot], EC[slot+1]):
            if (r + 1) * 8 > npiece:
                a(f"s_min_u32 s{sT}, s{sT}, {(npiece - 8*r - 1)*1024}")
            a(f"s_add_u32 m0, s{sT}, {S_E + r*8192}\ns_add_u32 s{sA}, s{sT}, {r*8192}\ns_add_u32 s{sA}, s{sA}, s{sL}\nbuffer_load_dwordx4 v{l16}, s[{sREC}:{sREC+3}], s{sA} offen {OPT['eld']} lds")
    srd(a, sX, 4, 3200000)
    srd(a, sWS, 60, 18432)
    srd(a, sP, 62, 16384)
    def xrows():
        a(f"""
        v_lshrrev_b32 v{t0}, 4, v{lane}
        v_xor_b32 v{t0}, v{t0}, v{lane}
        v_and_b32 v{t0}, 7, v{t0}
        v_and_b32 v{t1}, 0x380, v{l16}
        v_lshl_or_b32 v{t0}, v{t0}, 4, v{t1}
        v_xor_b32 v{t1}, 64, v{t0}
        s_add_u32 m0, s{sGL}, {XRO - GLO}
        s_lshl_b32 s{sA}, s{sW}, 11
        s_add_u32 s{sB}, s{sA}, s{sS0}
        buffer_load_dwordx4 v{t0}, s[{sX}:{sX+3}], s{sB} offen {OPT['xld']} lds
        buffer_load_dwordx4 v{t1}, s[{sX}:{sX+3}], s{sB} offen offset:1024 {OPT['xld']} lds
        """)
    a(f"""
    s_and_b32 s74, s2, 7
    s_lshl_b32 s74, s74, 5
    s_lshr_b32 s{sA}, s2, 3
    s_add_u32 s74, s74, s{sA}
    s_lshl_b32 s{sA}, s74, 17
    s_add_u32 s{sA}, s{sA}, 1337
    s_mul_hi_u32 s{sS0}, s{sA}, 3209991
    s_add_u32 s{sA}, s{sA}, 131072
    s_mul_hi_u32 s{sNB}, s{sA}, 3209991
    s_min_u32 s{sNB}, s{sNB}, 25000
    s_sub_u32 s{sNB}, s{sNB}, s{sS0}
    s_and_b32 s{sSB}, s{sW}, 1
    s_lshl_b32 s{sSO}, s74, 1
    s_add_u32 s{sSO}, s{sSO}, s{sSB}
    s_mul_i32 s{sSO}, s{sSO}, 49
    s_sub_u32 s{sSO}, s{sSO}, s{sS0}
    s_sub_u32 s{sSO}, s{sSO}, 9
    s_lshl_b32 s{sS0}, s{sS0}, 7
    s_mul_i32 s{sGL}, s{sW}, {XRS}
    s_add_u32 s{sGL}, s{sGL}, {L_XR + GLO}
    """)
    xrows()
    a(f"""
    s_add_u32 m0, s{sA}, {S_W}
    s_lshl_b32 s{sB}, s{sSB}, 10
    buffer_load_dwordx4 v{l16}, s[{sWS}:{sWS+3}], s{sA} offen lds
    buffer_load_dwordx4 v{l16}, s[{sWS}:{sWS+3}], s{sA} offen offset:1024 lds
    s_lshr_b32 s{sN}, s{sW}, 1
    s_mul_i32 s{sN}, s{sN}, {XRS - 4096}
    s_add_u32 s{sN}, s{sN}, s{sA}
    s_add_u32 m0, s{sN}, {S_WU}
    s_add_u32 s{sB}, s{sB}, 16384
    buffer_load_dwordx4 v{l16}, s[{sP}:{sP+3}], s{sA} offen lds
    buffer_load_dwordx4 v{l16}, s[{sP}:{sP+3}], s{sA} offen offset:1024 lds
    s_add_u32 m0, s{sB}, {S_W}
    s_nop 0
    buffer_load_dwordx4 v{l16}, s[{sWS}:{sWS+3}], s{sB} offen lds
    """)
    TLB = int(OPT["tlb"])
    srd(a, sWS, 10, 0x1000000)
    if TLB:
        a(f"""
        v_lshl_add_u32 v{t0}, v{lane}, 3, s{sW}
        v_lshlrev_b32 v{t0}, 20, v{t0}
        buffer_load_dword v{vCr+4}, v{t0}, s[{sWS}:{sWS+3}], 0 offen
        """)
    edma(0)
    a(f"""
    v_mov_b32 v{one}, 1
    v_mov_b32 v{t7}, 0x10000
    v_lshlrev_b32 v{idx}, 23, v0
    v_add_u32 v{idx}, 9, v{idx}
    v_lshlrev_b32 v{t6}, 5, v{lane}
    s_mov_b32 s{sB}, -49
    s_mov_b32 s{sM7}, {1<<21}
    s_mov_b32 s{sB30}, {2<<21}
    s_mov_b32 s{sDF}, {3<<21}
    s_setprio 2
    s_waitcnt vmcnt({EC[1]+9+TLB})
    """)
    stamp("srt", 1)
    for g in range(2):
        for i in range(4*g, 4*g + 4):
            a(f"v_mul_u32_u24 v{PR_+i}, 1338, v{DS_+i}\nv_lshlrev_b32_sdwa v{CAD+i}, 2, v{PR_+i} {SDW}WORD_1")
        a(f"s_mov_b64 exec, {'s[52:53]' if g == 0 else 's[54:55]'}")
        for i in range(4*g, 4*g + 4): a(f"ds_add_rtn_u32 v{RNK+i}, v{CAD+i}, v{one if g == 0 else t7} offset:{S_CNT}")
        a("s_mov_b64 exec, -1")
    TCH = int(OPT["tch"])
    if TCH:
        a(f"""
        v_lshl_add_u32 v{t0}, v{lane}, 3, s{sW}
        v_cmpx_gt_u32 vcc, {(WS_EM + 256*EMS + (1<<21) - 1) >> 21}, v{t0}
        v_lshlrev_b32 v{t0}, 21, v{t0}
        global_load_dword v{vCr+4}, v{t0}, s[10:11]
        s_mov_b64 exec, -1
        """)
    def recs(rng):
        o = []
        for i in rng:
            o += [f"v_mad_i32_i16 v{PR_+i}, v{PR_+i}, s{sB}, v{DS_+i} op_sel:[1,0,0,0]", f"v_lshl_add_u32 v{PR_+i}, v{SR_+i}, 6, v{PR_+i}",
                  f"v_add3_u32 v{PR_+i}, v{PR_+i}, v{idx}, {('0', f's{sM7}', f's{sB30}', f's{sDF}')[i%4]}"]
        return o
    a("s_waitcnt lgkmcnt(0)\ns_barrier")
    stamp("srt", 2)
    OTG = S4
    a(f"""
    ds_read_b128 {v(CS,4)}, v{t6} offset:{S_CNT}
    ds_read_b128 {v(CS+4,4)}, v{t6} offset:{S_CNT+16}
    ds_read_b32 v{OTG+1}, v{t4_} offset:{S_CNT}
    s_waitcnt vmcnt({EC[1]+7+TLB+TCH})
    """)
    emit(recs(range(4)))
    a("s_waitcnt lgkmcnt(1)")
    for j in range(1, 8): a(f"v_add_u32 v{CS+j}, v{CS+j}, v{CS+j-1}")
    a(f"v_mov_b32 v{CS+8}, v{CS+7}")
    rr = recs(range(4, 8))
    for n, stp in enumerate(steps): a(f"{rr[2*n]}\n{rr[2*n+1]}\nv_add_u32_dpp v{CS+8}, v{CS+8}, v{CS+8} {stp}")
    a(f"v_sub_u32 v{CS+8}, v{CS+8}, v{CS+7}\nv_add_u32 v{CS+8}, {M0<<16}, v{CS+8}")
    for j in range(7, 0, -1): a(f"v_add_u32 v{CS+j}, v{CS+j-1}, v{CS+8}")
    a(f"""
    v_mov_b32 v{CS}, v{CS+8}
    ds_write_b128 v{t6}, {v(CS,4)} offset:{S_STA}
    ds_write_b128 v{t6}, {v(CS+4,4)} offset:{S_STA+16}
    """)
    for i in range(8): a(f"ds_read_b32 v{DS_+i}, v{CAD+i} offset:{S_STA}")
    a(f"ds_read_b32 v{OTG}, v{t4_} offset:{S_STA}")
    edma(1)
    for i in range(8):
        if i % 4 == 0: a(f"s_mov_b64 exec, {'s[52:53]' if i == 0 else 's[54:55]'}")
        a(f"""
        s_waitcnt lgkmcnt(8)
        v_add_u32 v{DS_+i}, v{DS_+i}, v{RNK+i}
        v_lshlrev_b32_sdwa v{DS_+i}, 2, v{DS_+i} {SDW}{'WORD_0' if i < 4 else 'WORD_1'}
        ds_write_b32 v{DS_+i}, v{PR_+i} offset:{S_SRT}
        """)
    a("s_mov_b64 exec, -1")
    stamp("srt", 3)
    a(f"s_load_dwordx2 s[{sTAG}:{sTAG+1}], s[68:69], 0")
    a(f"""
    v_lshrrev_b32 v{t1}, 1, v0
    v_lshlrev_b32 v{t1}, 2, v{t1}
    s_waitcnt vmcnt({EC[2]+TCH}) lgkmcnt(0)
    s_barrier
    """)
    stamp("srt", 4)
    no = 0 if YM else (M0 + 255) // 256
    a(f"ds_read_b128 {v(D,4)}, v{t16} offset:{S_SRT}\nds_read_b128 {v(D+4,4)}, v{t16} offset:{S_SRT+M0*4}")
    for r in range(no): a(f"ds_read_b32 v{SG+r}, v{t1} offset:{S_SRT+1024*r}")
    edma(2)
    a(f"""
    s_mul_i32 s{sA}, s2, {RCS}
    s_add_u32 s{sB}, s{sA}, 8192
    v_and_b32 v{t2}, 1, v0
    v_lshlrev_b32 v{t2}, 4, v{t2}
    s_waitcnt lgkmcnt({no})
    buffer_store_dwordx4 {v(D,4)}, v{rA}, s[{sWS}:{sWS+3}], s{sA} offen sc1
    buffer_store_dwordx4 {v(D+4,4)}, v{rB}, s[{sWS}:{sWS+3}], s{sB} offen sc1
    s_mul_i32 s{sN}, s2, {OTS}
    s_add_u32 s{sN}, s{sN}, {WS_O}
    s_mov_b32 s{sB}, 0
    s_cmp_lg_u32 s{sTAG}, 0
    s_cbranch_scc1 S_TAGD
    S_TAGL:
    s_sleep 8
    global_load_dwordx2 {v(OTG+2,2)}, v{nta}, s[68:69] sc1
    s_add_u32 s{sB}, s{sB}, 1
    s_cmp_gt_u32 s{sB}, {SPIN}
    s_cbranch_scc1 M_END
    s_waitcnt vmcnt(0)
    v_readfirstlane_b32 s{sTAG}, v{OTG+2}
    v_readfirstlane_b32 s{sTAG+1}, v{OTG+3}
    s_nop 0
    s_cmp_eq_u32 s{sTAG}, 0
    s_cbranch_scc1 S_TAGL
    S_TAGD:
    v_add_u32 v{OTG}, {(2048-M0)<<16}, v{OTG}
    v_mov_b32 v{OTG+2}, s{sTAG}
    v_mov_b32 v{OTG+3}, s{sTAG+1}
    buffer_store_dwordx4 {v(OTG,4)}, v{t16}, s[{sWS}:{sWS+3}], s{sN} offen sc1
    s_movk_i32 s{sB}, {(M0 - 256*(no-1))*2}
    v_cmp_gt_u32 vcc, s{sB}, v0
    v_mov_b32 v{t4}, v{t16}
    v_and_b32 v{m}, 31, v{lane}
    v_lshrrev_b32 v{h}, 5, v{lane}
    v_cndmask_b32 v{t6}, v{hz}, v{t16}, vcc
    v_lshlrev_b32 v{t0}, 3, v0
    v_add_u32 v{t0}, {L_C8}, v{t0}
    v_mov_b32 v{D+8}, 0
    v_mov_b32 v{D+9}, 0
    ds_write_b64 v{t0}, {v(D+8,2)}
    v_bfe_u32 v{t1}, v{lane}, 2, 2
    v_lshl_add_u32 v{t1}, v{h}, 3, v{t1}
    v_lshlrev_b32 v{t1}, 7, v{t1}
    v_and_b32 v{t3}, 3, v{lane}
    v_lshl_add_u32 v{aN}, v{t3}, 3, v{t1}
    v_and_b32 v{t3}, 16, v{lane}
    v_lshl_add_u32 v{aN}, v{t3}, 1, v{aN}
    v_add_u32 v{t1}, v{t1}, v{t3}
    v_and_b32 v{t3}, 1, v{lane}
    v_lshl_add_u32 v{t1}, v{t3}, 5, v{t1}
    v_and_b32 v{t3}, 2, v{lane}
    v_lshl_add_u32 v{t1}, v{t3}, 2, v{t1}
    s_lshl_b32 s{sA}, s{sSB}, 6
    v_add_u32 v{sa}, s{sA}, v{t1}
    v_bfe_u32 v{sac}, v{m}, 1, 3
    v_xor_b32 v{sac}, v{sac}, v{h}
    v_lshlrev_b32 v{sac}, 4, v{sac}
    v_and_b32 v{t3}, 15, v{m}
    v_lshl_or_b32 v{sac}, v{t3}, 7, v{sac}
    v_lshrrev_b32 v{t3}, 4, v{m}
    v_mul_u32_u24 v{t3}, {XRS}, v{t3}
    s_and_b32 s{sA}, s{sW}, 6
    s_mul_i32 s{sA}, s{sA}, {XRS}
    s_add_u32 s{sA}, s{sA}, {L_XR + XRO}
    v_add3_u32 v{sac}, v{sac}, v{t3}, s{sA}
    s_waitcnt lgkmcnt(1)
    """)
    for r in range(no):
        a(f"v_lshrrev_b32 v{SG+r}, 21, v{SG+r}\nv_lshl_add_u32 v{SG+r}, v{SG+r}, 5, v{t2}")
    srd_off(a, sEM, 10, WS_EM, 0 if "nomv" in OPT["abl"] else 256 * EMS)
    OG = E + 12
    a(f"""
    s_lshl_b32 s{sOA}, s74, 5
    s_lshl_b32 s{sA}, s{sSB}, 4
    s_add_u32 s{sOA}, s{sOA}, s{sA}
    s_lshr_b32 s{sA}, s{sW}, 1
    s_mul_i32 s{sA}, s{sA}, {64*OTS}
    s_add_u32 s{sOA}, s{sOA}, s{sA}
    s_add_u32 s{sOA}, s{sOA}, {WS_O}
    v_mul_u32_u24 v{lh}, {OTS}, v{lane}
    s_mov_b32 s74, {f32(-LOG2E)}
    s_mov_b32 s75, {f32(-LOG2E)}
    """)
    XF, W1t, Wx, PD, EO = FX, AG, EP, AG + 16, Q
    def tr(dst, areg, off):
        a(f"ds_read_b64_tr_b16 {v(dst,2)}, v{areg} offset:{S_W+off}\nds_read_b64_tr_b16 {v(dst+2,2)}, v{areg} offset:{S_W+off+512}")
    def w2read():
        for sx in range(4):
            for nh in range(2): tr(AG + (2*sx + nh)*4, aN, 8192 + 2048*sx + 64*nh)
    for sx in range(4):
        a(f"ds_read_b128 {v(XF+4*sx,4)}, v{sac}" + (f"\nv_xor_b32 v{sac}, {(32, 96, 32)[sx]}, v{sac}" if sx < 3 else ""))
        tr(W1t + 4*sx, sa, 2048*sx)
    a("s_waitcnt lgkmcnt(0)")
    for sx in range(4):
        a(f"v_mfma_f32_32x32x16_bf16 {v(PD,16)}, {v(W1t+4*sx,4)}, {v(XF+4*sx,4)}, {'0' if sx == 0 else v(PD,16)}")
    a(f"""
    v_mul_u32_u24 v{t0}, 80, v{m}
    v_lshl_add_u32 v{t0}, v{h}, 5, v{t0}
    v_add_u32 v{t0}, s{sGL}, v{t0}
    v_lshrrev_b32 v{t1}, 2, v{lane}
    v_and_b32 v{t2}, 0x30, v{l16}
    v_mul_u32_u24 v{t3}, 80, v{t1}
    v_add3_u32 v{t3}, v{t3}, v{t2}, s{sGL}
    s_lshr_b32 s{sA}, s{sW}, 1
    s_lshl_b32 s{sA}, s{sA}, 5
    v_add_u32 v{t1}, s{sA}, v{t1}
    v_add_u32 v{t5}, 16, v{t1}
    v_cmp_gt_u32 vcc, s{sNB}, v{t1}
    v_cmp_gt_u32 s[52:53], s{sNB}, v{t5}
    v_lshl_add_u32 v{t1}, v{t1}, 7, v{t2}
    v_lshl_add_u32 v{t5}, v{t5}, 7, v{t2}
    v_cndmask_b32 v{t1}, v{hz}, v{t1}, vcc
    v_cndmask_b32 v{t5}, v{hz}, v{t5}, s[52:53]
    s_lshl_b32 s{sA}, s{sSB}, 6
    s_add_u32 s{sA}, s{sA}, s{sS0}
    s_add_u32 s{sA}, s{sA}, {WS_P}
    """)
    for i in range(8): a(f"v_pk_mul_f32 {v(PD+2*i,2)}, {v(PD+2*i,2)}, s[74:75]")
    for i in range(8): a(f"v_cvt_pk_bf16_f32 v{PD+i}, v{PD+2*i}, v{PD+2*i+1}")
    a(f"""
    ds_write_b128 v{t0}, {v(PD,4)}
    ds_write_b128 v{t0}, {v(PD+4,4)} offset:16
    ds_read_b128 {v(D+16,4)}, v{t3}
    ds_read_b128 {v(D+20,4)}, v{t3} offset:{16*80}
    s_mov_b32 s{sCAP}, 512
    s_mov_b32 s{sBASE}, 0
    s_waitcnt lgkmcnt(1)
    buffer_store_dwordx4 {v(D+16,4)}, v{t1}, s[{sWS}:{sWS+3}], s{sA} offen sc1
    s_waitcnt lgkmcnt(0)
    buffer_store_dwordx4 {v(D+20,4)}, v{t5}, s[{sWS}:{sWS+3}], s{sA} offen sc1
    """)
    a("s_waitcnt vmcnt(5)\ns_barrier")
    stamp("srt", 5); stamp("top", 1)
    for r in range(no): a(f"ds_read_b128 {v(EO+4*r,4)}, v{SG+r} offset:{S_E}")
    CEM = int(OPT["cem"])
    a(f"s_mul_i32 s{sA}, s2, {EMS}" if CEM else f"s_lshl_b32 s{sA}, s2, 17")
    for r in range(no):
        a(f"s_waitcnt lgkmcnt({no-1-r})\nbuffer_store_dwordx4 {v(EO+4*r,4)}, v{t6 if r == no-1 else t4}, s[{sEM}:{sEM+3}], s{sA} offen {OPT['st']}\ns_add_u32 s{sA}, s{sA}, 8192")
    a(f"""
    s_mov_b32 s92, 1
    s_lshl_b32 s{sN}, s2, {int(OPT["fst"])}
    s_add_u32 s{sN}, s{sN}, {WS_F2}
    """)
    stamp("srt", 6); stamp("syn", 1)
    FST = int(OPT["fst"])
    f2r = E + 9
    OE = int(OPT["oe"]); XE = 0
    oload = f"buffer_load_dwordx4 {v(OG,4)}, v{lh}, s[{sWS}:{sWS+3}], s{sOA} offen sc1"
    if OE == 1: a(oload)
    a("s_setprio 0")
    OTW = int(OPT['otw'])
    def wwork():
        a(f"v_add_u32 v{sa}, {S_WU - S_W}, v{sa}\ns_mul_i32 s{sB}, s{sSB}, {XRS}\nv_add_u32 v{t2}, s{sB}, v{sa}\nv_subrev_u32 v{t3}, s{sB}, v{sa}")
        for nh in range(2): tr(D + 8 + 4*nh, aN, 128*128 + 64*nh)
        for sx in range(4): tr(Wx + 4*sx, sa, XRS*(sx>>1) + 2048*(sx&1))
        a("s_waitcnt lgkmcnt(0)")
        for sx in range(4):
            a(f"v_mfma_f32_32x32x16_bf16 {v(U0,16)}, {v(Wx+4*sx,4)}, {v(XF+4*sx,4)}, {'0' if sx == 0 else v(U0,16)}")
        tr(WU, t2, 2*XRS); tr(WU + 4, t2, 2*XRS + 2048); tr(WU + 8, t3, 3*XRS); tr(WU + 12, t3, 3*XRS + 2048)
        w2read()
        for nh in range(2):
            for i in range(4):
                r = D + 8 + 4*nh + i
                a(f"v_lshlrev_b32 v{t0}, 16, v{r}\nv_and_b32 v{t1}, 0xffff0000, v{r}\nv_pk_mul_f32 {v(t0,2)}, {v(t0,2)}, s[74:75]\nv_cvt_pk_bf16_f32 v{W+8+4*nh+i}, v{t0}, v{t1}")
    def lanec():
        srd_off(a, sP, 10, WS_P, 3200000)
        if int(OPT["smf"]):
            a(f"""
            v_and_b32 v{t1}, 1, v{m}
            v_lshlrev_b32 v{t1}, 4, v{t1}
            v_mov_b32 v{t2}, 0x3f80
            v_lshlrev_b32 v{t1}, v{t1}, v{t2}
            v_lshrrev_b32 v{t0}, 2, v{m}
            v_lshlrev_b32 v{t2}, 2, v{h}
            v_sub_u32 v{t0}, v{t0}, v{t2}
            v_bfe_i32 v{t2}, v{m}, 1, 1
            v_and_b32 v{t2}, 0xaaaa, v{t2}
            v_or_b32 v{W+4}, 0x4444, v{t2}
            """)
            for i in range(4):
                a(f"v_cmp_eq_u32 vcc, {i}, v{t0}\ns_nop 1\nv_cndmask_b32 v{W+i}, 0, v{t1}, vcc")
        else:
            a(f"""
            v_lshlrev_b32 v{t0}, 3, v{h}
            v_sub_u32 v{t0}, v{m}, v{t0}
            v_and_b32 v{t1}, 1, v{t0}
            v_lshlrev_b32 v{t1}, 4, v{t1}
            v_mov_b32 v{t2}, 0x3f80
            v_lshlrev_b32 v{t1}, v{t1}, v{t2}
            v_lshrrev_b32 v{t0}, 1, v{t0}
            """)
            for j in range(2):
                for i in range(4):
                    a(f"v_cmp_eq_u32 vcc, {8*j+i}, v{t0}\ns_nop 1\nv_cndmask_b32 v{W+4*j+i}, 0, v{t1}, vcc")
        a(f"""
        s_mul_i32 s{sSTB}, s{sW}, {SCAP*32}
        s_add_u32 s{sSTB}, s{sSTB}, {L_ST}
        s_mov_b32 s{sREC}, s10
        s_or_b32 s{sREC+1}, s11, {4<<16}
        s_mov_b32 s{sREC+2}, {WS_O//4}
        s_mov_b32 s{sREC+3}, 0x20000
        s_sub_u32 s{sE}, s6, {DFLAG*32}
        s_subb_u32 s{sE+1}, s7, 0
        s_or_b32 s{sE+1}, s{sE+1}, {32<<16}
        s_mov_b32 s{sE+2}, {(DFLAG + 800000) * ne}
        s_mov_b32 s{sE+3}, 0x20000
        s_sub_u32 s{sG}, 11, s{sW}
        s_cmp_lt_u32 s{sW}, 4
        s_cselect_b32 s{sG}, s{sW}, s{sG}
        s_mul_i32 s{sXRB}, s{sG}, {XRS}
        s_add_u32 s{sXRB}, s{sXRB}, {L_XR}
        s_mov_b32 s{sM7}, 0xffffff80
        s_mov_b32 s{sB30}, 0x40000000
        s_mov_b32 s{sDF}, {DFLAG}
        v_lshlrev_b32 v{RP+1}, 4, v{h}
        v_lshlrev_b32 v{RP+3}, 4, v{h}
        v_lshlrev_b32 v{RP+5}, 4, v{h}
        v_lshlrev_b32 v{RP+7}, 4, v{h}
        v_lshrrev_b32 v{t0}, 3, v{lane}
        s_lshl_b32 s{sA}, s{sG}, 7
        v_lshl_add_u32 v{vLS}, v{t0}, 4, s{sA}
        v_lshl_add_u32 v{vLE}, v{m}, 2, s{sA}
        v_and_b32 v{t3}, 1, v{t0}
        v_lshlrev_b32 v{t3}, 4, v{t3}
        v_lshl_add_u32 v{sac}, v{lane}, 5, v{t3}
        v_add_u32 v{sac}, s{sSTB}, v{sac}
        v_and_b32 v{t1}, 4, v{t0}
        v_and_b32 v{t2}, 7, v{lane}
        v_xor_b32 v{t1}, v{t1}, v{t2}
        v_lshlrev_b32 v{CX}, 4, v{t1}
        v_xor_b32 v{CX+1}, 16, v{CX}
        v_xor_b32 v{CX+2}, 32, v{CX}
        v_xor_b32 v{CX+3}, 48, v{CX}
        v_and_b32 v{t0}, 3, v{m}
        v_lshrrev_b32 v{t1}, 2, v{m}
        v_lshl_add_u32 v{t1}, v{t0}, 3, v{t1}
        v_lshlrev_b32 v{t1}, 7, v{t1}
        v_add_u32 v{t1}, s{sXRB}, v{t1}
        v_lshrrev_b32 v{t2}, 4, v{m}
        v_lshl_or_b32 v{t0}, v{t2}, 2, v{t0}
        v_xor_b32 v{t0}, v{t0}, v{h}
        v_lshl_add_u32 v{XA}, v{t0}, 4, v{t1}
        v_xor_b32 v{XA+1}, 32, v{XA}
        v_xor_b32 v{XA+2}, 64, v{XA}
        v_xor_b32 v{XA+3}, 0x60, v{XA}
        """)
    if OTW == 0: wwork(); lanec()
    if OTW == 2: wwork()
    if OE == 2: a(oload)
    stamp("syn", 2)
    a(f"""
    s_setprio 2
    s_cmp_lg_u32 s{sW}, 0
    s_waitcnt vmcnt(0)
    s_barrier
    s_cbranch_scc1 M_NOPUB
    s_mov_b64 exec, 1
    buffer_store_dwordx2 {v(OTG+2,2)}, v{nta}, s[{sWS}:{sWS+3}], s{sN} offen sc1
    s_mov_b64 exec, -1
    M_NOPUB:
    s_mov_b32 s{sA}, 0
    """)
    stamp("syn", 3)
    a(f"s_nop 7\n{oload}")
    if OTW: lanec()
    a(f"s_mov_b32 s{sA}, 0\ns_waitcnt vmcnt(0)")
    kk12, c0, c1, g0, g1, p0, p1, tt, qa, f2r, fl0 = [E + i for i in range(11)]
    G, RC, NA, RK = D, D + 8, D + 16, D + 24
    TBv = FX
    OFv, CA = EP, EP + 8
    a(f"""
    s_branch M_POLLC
    M_BATCH:
    v_mul_u32_u24 v{lh}, {OTS}, v{lane}
    s_mov_b32 s{sA}, 0
    M_POLL:
    s_sleep {OPT["osl"]}
    buffer_load_dwordx4 {v(OG,4)}, v{lh}, s[{sWS}:{sWS+3}], s{sOA} offen sc1
    s_add_u32 s{sA}, s{sA}, 1
    s_cmp_gt_u32 s{sA}, {SPIN}
    s_cbranch_scc1 M_END
    s_waitcnt vmcnt(0)
    M_POLLC:
    v_cmpx_ne_u64 vcc, s[{sTAG}:{sTAG+1}], {v(OG+2,2)}
    s_cbranch_execnz M_POLL
    s_mov_b64 exec, -1
    s_lshr_b32 s{sA}, s{sW}, 1
    s_lshl_b32 s{sA}, s{sA}, 6
    v_add_lshl_u32 v{kk12}, v{lane}, s{sA}, 12
    v_lshl_add_u32 v{qa}, v{lane}, 2, s{sGL}
    v_mov_b32 v{t1}, 0xffff
    v_lshrrev_b32 v{lh}, 1, v{lane}
    """)
    stamp("pro", 1); stamp("syn", 4)
    a(f"v_and_b32 v{p0}, v{t1}, v{OG+1}\nv_lshrrev_b32 v{p1}, 16, v{OG+1}")
    fl = [f"v_and_or_b32 v{g0}, v{OG}, v{t1}, v{kk12}", f"v_lshrrev_b32 v{g1}, 16, v{OG}", f"v_or_b32 v{g1}, v{g1}, v{kk12}",
          f"v_and_b32 v{c0}, v{t1}, v{OG+1}", f"v_lshrrev_b32 v{c1}, 16, v{OG+1}", "s_nop 0"]
    for n, stp in enumerate(steps):
        a(f"{fl[n]}\nv_add_u32_dpp v{p0}, v{p0}, v{p0} {stp}\nv_add_u32_dpp v{p1}, v{p1}, v{p1} {stp}")
    a(f"""
    v_readlane_b32 s{sNS}, v{p0}, 63
    v_readlane_b32 s{sN}, v{p1}, 63
    v_sub_u32 v{p0}, v{p0}, v{c0}
    v_sub_u32 v{p1}, v{p1}, v{c1}
    s_add_u32 s{sN}, s{sN}, s{sNS}
    v_add_u32 v{p1}, s{sNS}, v{p1}
    s_mov_b32 s{sCNT}, s{sN}
    s_add_u32 s{sA}, s{sN}, s{sBASE}
    s_cmp_le_u32 s{sA}, s{sCAP}
    s_cbranch_scc0 M_WIN
    s_cmp_eq_u32 s{sBASE}, 0
    s_cbranch_scc1 M_NOWIN
    M_WIN:
    s_sub_i32 s{sCNT}, s{sN}, s{sBASE}
    s_max_i32 s{sCNT}, s{sCNT}, 0
    s_min_u32 s{sCNT}, s{sCNT}, s{sCAP}
    s_sub_i32 s{sNS}, s{sNS}, s{sBASE}
    s_max_i32 s{sNS}, s{sNS}, 0
    """)
    for (pp, cc, gg) in ((p0, c0, g0), (p1, c1, g1)):
        a(f"""
        v_subrev_u32 v{tt}, s{sBASE}, v{pp}
        v_max_i32 v{pp}, 0, v{tt}
        v_add_u32 v{cc}, v{tt}, v{cc}
        v_min_i32 v{cc}, s{sCAP}, v{cc}
        v_sub_u32 v{cc}, v{cc}, v{pp}
        v_sub_u32 v{tt}, v{pp}, v{tt}
        v_add_u32 v{gg}, v{gg}, v{tt}
        """)
    a(f"M_NOWIN:\ns_min_u32 s{sNS}, s{sNS}, {0 if YM else SCAP}")
    pa, ca_, ga, gb = t0, t1, t2, t3
    for n, (pp, cc, gg) in enumerate(((p0, c0, g0), (p1, c1, g1))):
        a(f"""
        v_lshl_add_u32 v{pp}, v{pp}, 2, s{sGL}
        v_add_u32 v{ga}, 1, v{gg}
        v_add_u32 v{gb}, 2, v{gg}
        v_mov_b32 v{ca_}, v{cc}
        v_mov_b32 v{pa}, v{pp}
        M_EXP{n}:
        """)
        for r in (1, 3, 5, 7):
            a(f"v_cmpx_lt_i32 vcc, {r}, v{ca_}\nds_write2_b32 v{pa}, v{ga}, v{gb} offset0:{r} offset1:{r+1}\nv_add_u32 v{ga}, 2, v{ga}\nv_add_u32 v{gb}, 2, v{gb}")
        a(f"""
        v_cmpx_lt_i32 vcc, 9, v{ca_}
        v_add_u32 v{pa}, 32, v{pa}
        v_subrev_u32 v{ca_}, 8, v{ca_}
        s_cbranch_execnz M_EXP{n}
        s_mov_b64 exec, -1
        """)
    a(f"""
    v_cmpx_lt_i32 vcc, 0, v{c0}
    ds_write_b32 v{p0}, v{g0}
    s_mov_b64 exec, -1
    v_cmpx_lt_i32 vcc, 0, v{c1}
    ds_write_b32 v{p1}, v{g1}
    s_mov_b64 exec, -1
    """)
    for i in ORD:
        a(f"ds_read_b32 v{G+i}, v{qa} offset:{256*i}")
    a(f"v_lshl_add_u32 v{t1}, v{lh}, 2, s{sGL}")
    for j in range(7):
        a(f"ds_read_b32 v{SG+j}, v{t1} offset:{128*j}")
    for i in ORD:
        a(f"s_sub_i32 s{sA}, s{sCNT}, {64*i}\nv_cmp_gt_i32 {mk(i)}, s{sA}, v{lane}")
    a(f"""
    v_lshrrev_b32 v{t2}, 4, v{lane}
    v_xor_b32 v{t2}, v{t2}, v{lane}
    v_and_b32 v{t2}, 1, v{t2}
    v_lshlrev_b32 v{t2}, 4, v{t2}
    v_mov_b32 v{fl0}, s{sCNT}
    v_mov_b32 v{fl0+1}, s{sN}
    s_waitcnt lgkmcnt(0)
    """)
    if CEM: a(f"s_mov_b32 s{sA}, {EMS//32-4096}")
    for j in range(7):
        if CEM: a(f"v_lshrrev_b32 v{t3}, 12, v{SG+j}\nv_mad_i32_i24 v{SG+j}, v{t3}, s{sA}, v{SG+j}")
        a(f"v_lshl_add_u32 v{SG+j}, v{SG+j}, 5, v{t2}")
    for i in range(8): a(f"v_lshrrev_b32 v{t3}, 12, v{G+i}\nv_mad_u32_u24 v{RC+i}, v{t3}, {SKW//4}, v{G+i}")
    stamp("pro", 2); stamp("syn", 5)
    a(f"""
    s_cmp_eq_u32 s92, 0
    s_cbranch_scc1 M_READY
    """)
    a(f"""
    s_lshr_b32 s{sB}, s{sW}, 1
    s_lshl_b32 s{sB}, s{sB}, {FST+6}
    s_add_u32 s{sB}, s{sB}, {WS_F2}
    v_lshlrev_b32 v{f2r}, {FST}, v{lane}
    s_mov_b32 s{sA}, 0
    s_branch M_FL1
    M_FL:
    s_sleep {OPT["osl"]}
    M_FL1:
    buffer_load_dwordx2 {v(OG,2)}, v{f2r}, s[{sWS}:{sWS+3}], s{sB} offen sc1
    s_add_u32 s{sA}, s{sA}, 1
    s_cmp_gt_u32 s{sA}, {SPIN}
    s_cbranch_scc1 M_END
    s_waitcnt vmcnt(0)
    v_cmpx_ne_u64 vcc, s[{sTAG}:{sTAG+1}], {v(OG,2)}
    s_cbranch_execnz M_FL
    M_READY:
    """)
    stamp("top", 2); stamp("syn", 6)
    skip("M_GA")
    for i in ORD:
        a(f"s_mov_b64 exec, {mk(i)}\nbuffer_load_dword v{RC+i}, v{RC+i}, s[{sREC}:{sREC+3}], 0 idxen {LD}")
        after("M_GA", i)
    a("s_mov_b64 exec, -1")
    if OTW == 1:
        a("s_cmp_eq_u32 s92, 0\ns_cbranch_scc1 M_NOW\ns_setprio 0")
        wwork()
        a("s_setprio 2\nM_NOW:")
    a("s_mov_b32 s92, 0")
    for i in range(4): a(f"v_mov_b32 v{t4+i}, {DUMMY}")
    a(f"v_lshlrev_b32 v{t0}, 4, v0\nv_lshlrev_b32 v{t1}, 2, v0\ns_waitcnt lgkmcnt(0)\ns_barrier")
    def stage(js):
        for j in ([] if YM else js):
            a(f"""
            s_sub_i32 s{sA}, s{sNS}, {32*j}
            s_add_u32 m0, s{sSTB}, {1024*j}
            v_cmpx_gt_i32 vcc, s{sA}, v{lh}
            buffer_load_dwordx4 v{SG+j}, s[{sEM}:{sEM+3}], 0 offen {LD} lds
            """)
        a("s_mov_b64 exec, -1")
    NS1 = int(OPT["ns1"]); NS2 = int(OPT["ns2"])
    stage(range(NS1))
    XW = int(OPT["xw"])
    def pwarm():
        if XW:
            a(f"""
            s_lshr_b32 s{sA}, s2, 3
            s_mul_i32 s{sA}, s{sA}, {XW*128}
            s_add_u32 s{sA}, s{sA}, {XE*4096}
            v_lshl_add_u32 v{tt}, v{lane}, 3, s{sW}
            v_cmpx_gt_u32 vcc, {XW}, v{tt}
            v_lshlrev_b32 v{tt}, 7, v{tt}
            buffer_load_dword v{vCr+4}, v{tt}, s[{sP}:{sP+3}], s{sA} offen sc1
            s_mov_b64 exec, -1
            """)
    assert 2 * LSZ == 4 * 8192 + 2048
    for i in range(4): a(f"ds_write_b128 v{t0}, {v(t4,4)} offset:{L_LS+8192*i}")
    a(f"ds_write_b32 v{t1}, v{t4} offset:{L_LS+8192*4}")
    a(f"""
    s_mov_b32 s75, {L_C8}
    s_mov_b64 exec, 1
    ds_add_u32 v{nta}, v{fl0} offset:{L_NT}
    ds_max_u32 v{nta}, v{fl0+1} offset:{L_MX}
    """)
    skip("M_RK")
    for i in ORD:
        a(f"""
        s_mov_b64 exec, {mk(i)}
        s_waitcnt vmcnt({i+NS1})
        v_and_b32 v{NA+i}, 63, v{RC+i}
        v_bfe_u32 v{tt}, v{RC+i}, 18, 3
        v_add_u32 v{NA+i}, s{sSO}, v{NA+i}
        v_lshl_add_u32 v{CA+i}, v{NA+i}, 2, s75
        v_lshl_add_u32 v{CA+i}, v{tt}, 9, v{CA+i}
        ds_add_rtn_u32 v{RK+i}, v{CA+i}, v{one}
        """)
        after("M_RK", i)
    def pack(lab):
        a(f"s_movk_i32 s{sB}, {CH}\ns_mov_b32 s74, {int(OPT['epf'])*128}")
        skip(lab)
        for i in ORD:
            a(f"""
            v_lshrrev_b32 v{t0}, 12, v{G+i}
            v_lshrrev_b32 v{tt}, 21, v{RC+i}
            v_bfe_i32 v{t1}, v{G+i}, 11, 1
            v_mad_u32_u24 v{tt}, v{t0}, s{sB}, v{tt}
            v_and_b32 v{t1}, {M0}, v{t1}
            v_bfe_u32 v{RC+i}, v{RC+i}, 6, 15
            v_add3_u32 v{G+i}, v{t1}, v{tt}, s{sDF}
            v_lshl_add_u32 v{RC+i}, v{RC+i}, 7, v{NA+i}
            v_lshlrev_b32 v{NA+i}, 3, v{NA+i}
            """)
            if i < 4 and not YM:
                a(f"""
                s_sub_i32 s{sA}, s{sNS}, {64*i}
                v_cmp_gt_i32 vcc, s{sA}, v{lane}
                v_add_u32 v{tt}, {2048*i}, v{sac}
                s_nop 0
                v_cndmask_b32 v{G+i}, v{G+i}, v{tt}, vcc
                """)
            if int(OPT["epf"]):
                a(f"s_mov_b64 exec, {mk(i)}\nv_cmpx_gt_u32 vcc, s74, v{RC+i}" + ("" if YM or i >= 4 else f"\nv_cmpx_le_u32 vcc, s{sDF}, v{G+i}") + f"\nbuffer_load_dword v{vCr+4}, v{G+i}, s[{sE}:{sE+3}], 0 idxen\ns_mov_b64 exec, -1")
            after(lab, i)
    a("s_mov_b64 exec, -1")
    stamp("pro", 3)
    a(f"""
    s_cmp_eq_u32 s{sW}, 0
    s_cbranch_scc1 M_PK0
    s_lshl_b32 s{sA}, s{sW}, 8
    s_add_u32 s{sA}, s{sA}, {L_C8 - 256}
    v_lshl_add_u32 v{S4}, v{lane}, 2, s{sA}
    v_mov_b32 v{Q+8}, 0
    s_waitcnt lgkmcnt(0)
    s_barrier
    """)
    stamp("pro", 4)
    a(f"s_cmp_gt_u32 s{sW}, 2\ns_cbranch_scc1 M_NOPFX")
    for j in range(3): a(f"ds_read2st64_b32 {v(Q+2*j,2)}, v{S4} offset0:{4*j} offset1:{4*j+2}")
    a(f"s_waitcnt lgkmcnt(0)\nv_mov_b32 v{Q+9}, v{Q}")
    for j in range(1, 6): a(f"v_add_u32 v{Q+9+j}, v{Q+8+j}, v{Q+j}")
    for j in range(4): a(f"ds_write2st64_b32 v{S4}, v{Q+8+2*j}, v{Q+9+2*j} offset0:{C8O//256+4*j} offset1:{C8O//256+4*j+2}")
    a("M_NOPFX:\ns_setprio 0")
    stage(range(NS1, NS2)); pack("M_PB")
    a("s_waitcnt lgkmcnt(0)\ns_barrier\ns_branch M_P4E")
    d0, d1, f0, f1, k0, k1, vL, vR, ks, a4, l0, l1, o0, o1, cn, ci = [Q + i for i in range(16)]
    m0_, B0, m1_, B1 = S4, S4+1, S4+2, S4+3
    a(f"""
    M_PK0:
    s_setprio 3
    v_lshlrev_b32 v{a4}, 3, v{lane}
    v_lshlrev_b32 v{cn}, 2, v{lane}
    v_add_u32 v{cn}, {L_C8}, v{cn}
    v_sub_u32 v{ci}, 31, v{m}
    v_lshlrev_b32 v{ci}, 2, v{ci}
    s_mov_b32 s75, {f32(4194304.0)}
    s_waitcnt lgkmcnt(0)
    s_barrier
    """)
    stamp("pro", 4)
    a(f"ds_read_b32 v{ks}, v{nta} offset:{L_NT}")
    for j in range(7): a(f"ds_read2st64_b32 {v(FX+2*j,2)}, v{cn} offset0:{2*j} offset1:{2*j+1}")
    a(f"""
    s_waitcnt lgkmcnt(4)
    v_readfirstlane_b32 s{sL}, v{ks}
    v_add3_u32 v{d0}, v{FX}, v{FX+2}, v{FX+4}
    v_add3_u32 v{d1}, v{FX+1}, v{FX+3}, v{FX+5}
    s_lshr_b32 s{sL}, s{sL}, 8
    s_add_u32 s{sL}, s{sL}, 2
    s_waitcnt lgkmcnt(0)
    v_add3_u32 v{d0}, v{d0}, v{FX+6}, v{FX+8}
    v_add3_u32 v{d1}, v{d1}, v{FX+7}, v{FX+9}
    v_add3_u32 v{d0}, v{d0}, v{FX+10}, v{FX+12}
    v_add3_u32 v{d1}, v{d1}, v{FX+11}, v{FX+13}
    v_cvt_f32_u32 v{f0}, v{d0}
    v_cvt_f32_u32 v{f1}, v{d1}
    M_LS:
    s_add_u32 s{sL}, s{sL}, 1
    s_cmp_gt_u32 s{sL}, {LMAX}
    s_cbranch_scc1 M_P4W
    v_cvt_f32_u32 v{vL}, s{sL}
    v_rcp_f32 v{vR}, v{vL}
    v_add_f32 v{vL}, -0.5, v{vL}
    v_add_f32 v{k0}, v{f0}, v{vL}
    v_add_f32 v{k1}, v{f1}, v{vL}
    v_mul_f32 v{k0}, v{k0}, v{vR}
    v_mul_f32 v{k1}, v{k1}, v{vR}
    v_cvt_u32_f32 v{k0}, v{k0}
    v_cvt_u32_f32 v{k1}, v{k1}
    v_add_u32 v{ks}, v{k0}, v{k1}
    """)
    fillers = [f"v_cvt_f32_u32 v{l0}, v{k0}", f"v_cvt_f32_u32 v{l1}, v{k1}",
               f"v_rcp_f32 v{m0_}, v{l0}", f"v_rcp_f32 v{m1_}, v{l1}",
               f"v_add_f32 v{l0}, v{l0}, v{f0}", f"v_add_f32 v{l1}, v{l1}, v{f1}",
               f"v_add_f32 v{l0}, -0.5, v{l0}", f"v_add_f32 v{l1}, -0.5, v{l1}",
               f"v_mul_f32 v{l0}, v{l0}, v{m0_}", f"v_mul_f32 v{l1}, v{l1}, v{m1_}",
               f"v_cvt_u32_f32 v{l0}, v{l0}", f"v_cvt_u32_f32 v{l1}, v{l1}"]
    for n, stp in enumerate(steps):
        a(f"{fillers[2*n]}\n{fillers[2*n+1]}\nv_add_u32_dpp v{ks}, v{ks}, v{ks} {stp}")
    a(f"""
    v_lshlrev_b32 v{l0}, 2, v{l0}
    v_readlane_b32 s{sA}, v{ks}, 63
    v_lshlrev_b32 v{l1}, 2, v{l1}
    s_cmp_gt_u32 s{sA}, 256
    s_cbranch_scc1 M_LS
    ds_add_rtn_u32 v{o0}, v{l0}, v{k0} offset:{L_CNT}
    ds_add_rtn_u32 v{o1}, v{l1}, v{k1} offset:{L_CNT}
    ds_read_b32 v{cn}, v{ci} offset:{L_CNT}
    v_mul_f32 v{m0_}, s75, v{m0_}
    v_mul_f32 v{m1_}, s75, v{m1_}
    v_cvt_u32_f32 v{m0_}, v{m0_}
    v_cvt_u32_f32 v{m1_}, v{m1_}
    v_add_u32 v{m0_}, 2, v{m0_}
    v_add_u32 v{m1_}, 2, v{m1_}
    v_lshlrev_b32 v{B0}, 2, v{k0}
    v_lshlrev_b32 v{B1}, 2, v{k1}
    v_sub_u32 v{B0}, 1024, v{B0}
    v_sub_u32 v{B1}, 1024, v{B1}
    v_sub_u32 v{l0}, 124, v{l0}
    v_sub_u32 v{l1}, 124, v{l1}
    s_waitcnt lgkmcnt(0)
    v_mov_b32 v{ks}, v{cn}
    """)
    for stp in steps[:5]:
        a(f"s_nop 1\nv_add_u32_dpp v{ks}, v{ks}, v{ks} {stp}")
    a(f"""
    v_sub_u32 v{ks}, v{ks}, v{cn}
    ds_bpermute_b32 v{d0}, v{l0}, v{ks}
    ds_bpermute_b32 v{d1}, v{l1}, v{ks}
    ds_write_b32 v{ci}, v{ks} offset:{L_BAS}
    s_waitcnt lgkmcnt(1)
    v_add_u32 v{o0}, v{o0}, v{d0}
    v_add_u32 v{o1}, v{o1}, v{d1}
    v_lshl_or_b32 v{m0_}, v{o0}, 24, v{m0_}
    v_lshl_or_b32 v{m1_}, v{o1}, 24, v{m1_}
    ds_write2st64_b64 v{a4}, {v(m0_,2)}, {v(m1_,2)} offset0:0 offset1:1
    M_P4W:
    v_mov_b32 v{ks}, s{sL}
    ds_write_b32 v{nta}, v{ks} offset:{L_MX+4}
    s_waitcnt lgkmcnt(0)
    s_barrier
    """)
    stage(range(NS1, NS2)); pack("M_PA")
    u0, nn = Q + 20, Q + 26
    a("M_P4E:")
    stamp("pro", 5)
    a(f"""
    ds_read_b64 {v(u0,2)}, v{nta} offset:{L_MX}
    v_lshlrev_b32 v{tt}, 2, v{m}
    ds_read_b32 v{u0+2}, v{tt} offset:{L_CNT}
    ds_read_b32 v{u0+3}, v{tt} offset:{L_BAS}
    s_lshr_b32 s{sA}, s{sW}, 1
    s_lshl_b32 s{sA}, s{sA}, 5
    v_add_u32 v{nn}, s{sA}, v{m}
    v_lshlrev_b32 v{tt}, 3, v{nn}
    ds_read_b64 {v(u0+4,2)}, v{tt} offset:{L_TB}
    """)
    skip("M_TR")
    for i in ORD:
        a(f"s_mov_b64 exec, {mk(i)}\nds_read_b64 {v(TBv+2*i,2)}, v{NA+i} offset:{L_TB}\nds_read_b32 v{OFv+i}, v{CA+i} offset:{C8O}")
        after("M_TR", i)
    a(f"""
    s_mov_b64 exec, -1
    s_lshl_b32 s{sA}, s{sG}, 5
    s_waitcnt lgkmcnt(12)
    v_readfirstlane_b32 s{sNMAX}, v{u0}
    v_readfirstlane_b32 s{sL}, v{u0+1}
    v_add_u32 v{u0+2}, v{u0+2}, v{u0+3}
    v_cmp_ge_u32 vcc, s{sA}, v{u0+3}
    v_cmp_lt_u32 s[52:53], s{sA}, v{u0+2}
    s_and_b64 s[52:53], s[52:53], vcc
    s_ff1_i32_b32 s{sT}, s52
    s_max_i32 s{sT}, s{sT}, 0
    s_cmp_le_u32 s{sL}, {LMAX}
    s_cbranch_scc1 M_P5
    s_mov_b32 s{sCAP}, 256
    s_branch M_AGAIN
    M_P5:
    """)
    skip("M_SC")
    for i in ORD:
        mm, BB = TBv + 2*i, TBv + 2*i + 1
        a(f"""
        s_mov_b64 exec, {mk(i)}
        s_waitcnt lgkmcnt({2*i + max(0, 5-i)})
        v_add_u32 v{RK+i}, v{RK+i}, v{OFv+i}
        v_lshrrev_b32 v{tt}, 24, v{mm}
        v_mul_u32_u24 v{mm}, v{mm}, v{RK+i}
        v_add_lshl_u32 v{tt}, v{tt}, v{RK+i}, 2
        v_lshrrev_b32 v{mm}, 22, v{mm}
        v_mad_u32_u24 v{tt}, v{mm}, v{BB}, v{tt}
        ds_write2st64_b32 v{tt}, v{RC+i}, v{G+i} offset0:{L_LS//256} offset1:{L_LE//256}
        """)
        after("M_SC", i)
    ca0, ca1, ca2, ca3, kk, oa, fa, da = [EP + i for i in range(8)]
    epi_setup = f"""
    s_lshl_b32 s{sA}, s{sSB}, 7
    s_add_u32 s{sA}, s{sA}, {L_XR}
    s_movk_i32 s{sB}, 0x3fc
    s_movk_i32 s75, 0x3f8
    v_mov_b32 v{kk}, v{u0+5}
    v_lshrrev_b32 v{ca0}, 24, v{u0+4}
    v_mul_u32_u24 v{ca0}, 272, v{ca0}
    v_lshl_add_u32 v{ca0}, v{h16}, 1, v{ca0}
    v_add_u32 v{ca0}, s{sA}, v{ca0}
    v_mov_b32 v{da}, {L_ZR}
    v_cmp_gt_u32 s[56:57], s{sB}, v{kk}
    v_cmp_gt_u32 s[58:59], s75, v{kk}
    v_add_u32 v{ca1}, 272, v{ca0}
    v_add_u32 v{ca2}, 544, v{ca0}
    v_add_u32 v{ca3}, 816, v{ca0}
    v_cmp_gt_u32 vcc, 0x400, v{kk}
    v_cndmask_b32 v{ca1}, v{da}, v{ca1}, s[56:57]
    v_cndmask_b32 v{ca2}, v{da}, v{ca2}, s[58:59]
    v_cndmask_b32 v{ca0}, v{da}, v{ca0}, vcc
    v_cmp_gt_u32 vcc, s{sNB}, v{nn}
    v_lshlrev_b32 v{oa}, 7, v{nn}
    v_lshl_add_u32 v{oa}, v{h16}, 1, v{oa}
    s_lshl_b32 s{sA}, s{sW}, 11
    v_cndmask_b32 v{oa}, v{hz}, v{oa}, vcc
    v_add_u32 v{fa}, s{sA}, v{l16}
    v_mul_u32_u24 v{da}, 272, v{m}
    v_add3_u32 v{da}, v{da}, v{h16}, s{sXRB}
    """
    a(f"""
    s_mov_b64 exec, -1
    s_setprio 0
    """)
    stage(range(NS2, 7)); pwarm()
    a("s_waitcnt lgkmcnt(0)\ns_barrier")
    stamp("top", 3); stamp("pro", 6); stamp("pri", 1)
    a(f"s_cmp_lg_u32 s{sT}, 0\ns_cbranch_scc1 M_GO")
    a(epi_setup)
    a("s_waitcnt vmcnt(0)\ns_barrier\ns_branch M_BEND\nM_GO:")
    S = []
    ef = OPT["eflags"]
    def le_read(t, p): return (f"ds_read_b32 v{RP+2*p}, v{vLE} offset:{L_LE+1024*t}", f"le{t}")
    def ls_read(t, dst): return (f"ds_read_b128 {v(dst,4)}, v{vLS} offset:{L_LS+1024*t}", f"ls{t}")
    def st_addr(p): return f"v_xor_b32 v{sa}, v{RP+2*p}, v{h16}"
    def st_read(t): return (f"ds_read_b128 {Es(t)}, v{sa}", f"st{t}")
    def d_pre(t, p): return [f"v_cmp_le_u32 vcc, s{sDF}, v{RP+2*p}", f"v_and_or_b32 v{vCr+t%5}, v{RP+2*p}, s{sB30}, 1.0"]
    def d_load(t, p): return ["s_mov_b64 exec, vcc", (f"buffer_load_dwordx4 {Es(t)}, {v(RP+2*p,2)}, s[{sE}:{sE+3}], 0 idxen offen {ef}", f"D{t}"), "s_mov_b64 exec, -1"]
    def x_addr(src): return [f"v_and_or_b32 v{S4+i}, v{src+i}, s{sM7}, v{CX+i}" for i in range(4)]
    def x_dma(t, nop=True, reg=None, soff="0", tag=None):
        o = []
        for i in range(4):
            sr = sP
            o += [f"s_add_u32 m0, s{sXRB}, {(t&1)*4096+i*1024}"] + (["s_nop 0"] if nop else []) + \
                 [(f"buffer_load_dwordx4 v{(reg or S4)+i}, s[{sr}:{sr+3}], {soff} offen {LD} lds", tag or f"X{t}")]
        return o
    def fx_read(t, sx, tag=None): return (f"ds_read_b128 {v(FX+4*sx,4)}, v{XA+sx} offset:{(t&1)*4096}", tag or f"fx{t}")
    def chain(nh, t):
        Dh = v(D + 16 * nh, 16)
        return [f"v_mfma_f32_32x32x16_bf16 {Dh}, {W3f(nh)}, {Es(t)}, {v(Q+16*nh,16)}"] + \
               ([f"v_smfmac_f32_32x32x32_bf16 {Dh}, {Idf(0)}, {v(FX+8*nh,8)}, v{W+4}"] if int(OPT["smf"]) else
                [f"v_mfma_f32_32x32x16_bf16 {Dh}, {Idf(j)}, {v(FX+8*nh+4*j,4)}, {Dh}" for j in range(2)])
    nd, L1, L2 = D, D + 4, SG
    def ps(i): return [f"s_memrealtime s[{76+2*i}:{77+2*i}]", "s_waitcnt lgkmcnt(0)"] if MODE == "pri" else []
    S += [ls_read(0, S4), (f"ds_read_b32 v{nd}, v{vLE} offset:{L_LS}", "nd")] + [le_read(j, j) for j in range(4)] + [ls_read(1, L1), ls_read(2, L2), ("@W", None, "nd")]
    S += x_addr(S4)
    xa_ = [f"v_bfe_u32 v{nd+1}, v{nd}, 4, 3", f"v_mul_u32_u24 v{nd+1}, {XRS}, v{nd+1}", f"v_bfe_u32 v{nd+2}, v{nd}, 1, 3", f"v_xor_b32 v{nd+2}, v{nd+2}, v{h}"]
    dm = x_dma(0, nop=False)
    for i in range(4): S += [dm[2*i], xa_[i], dm[2*i+1]]
    S += [f"v_and_b32 v{nd}, 15, v{nd}", f"v_lshl_add_u32 v{nd+1}, v{nd}, 7, v{nd+1}", f"v_lshl_add_u32 v{nd+1}, v{nd+2}, 4, v{nd+1}", f"v_add_u32 v{nd+1}, {L_XR+XRO}, v{nd+1}"]
    for sx in range(4):
        S += [(f"ds_read_b128 {v(FX+4*sx,4)}, v{nd+1}", "xd")] + ([f"v_xor_b32 v{nd+1}, {(32, 96, 32)[sx]}, v{nd+1}"] if sx < 3 else [])
    def dl(j): return d_pre(j, j) + [f"s_not_b64 s[{60+2*j}:{61+2*j}], vcc"] + d_load(j, j)
    S += [("@W", None, "ls2")] + dl(0) + ps(2)
    ep = [l.strip() for l in epi_setup.strip().split("\n")]
    S += ep + x_addr(L1) + [("@W", None, "xd")]
    for nh in range(2):
        for sx in range(4):
            S.append(f"v_mfma_f32_32x32x16_bf16 {v(Q+16*nh,16)}, {v(AG+(sx*2+nh)*4,4)}, {v(FX+4*sx,4)}, {'0' if sx == 0 else v(Q+16*nh,16)}")
    S += ["s_waitcnt vmcnt(5)"] + ps(3) + ["s_barrier"] + ps(4)
    S += [st_addr(0), "s_mov_b64 exec, s[60:61]", st_read(0), "s_mov_b64 exec, -1"]
    for j in range(1, 4): S += [st_addr(j), st_read(j)]
    S += [f"s_mov_b32 s74, {f32(-LOG2E)}", f"s_mov_b32 s75, {f32(-LOG2E)}"]
    S += [("@W", "D0", None)] + ps(5) + [fx_read(0, sx) for sx in range(4)]
    S += [f"v_pk_mul_f32 {v(Q+2*i,2)}, {v(Q+2*i,2)}, s[74:75]" for i in range(16)] + [("@W", None, "fx0")]
    c00 = chain(0, 0)
    S += [c00[0], "s_nop 7", "s_nop 7"] + c00[1:] + d_pre(1, 1) + d_load(1, 1) + x_dma(1) + [f"v_and_or_b32 v{L2+i}, v{L2+i}, s{sM7}, v{CX+i}" for i in range(4)] + ps(6)
    if MODE: S += [f"s_mov_b32 s90, s{sT}", f"s_mov_b32 s98, s{sL}", "s_memtime s[94:95]", "s_waitcnt lgkmcnt(0)"]
    if MODE == "top": S += ["s_memrealtime s[84:85]", "s_waitcnt lgkmcnt(0)"]
    def phase(nh, t, mf, fill):
        Db, Ab = D + 16*nh, AG + 16*nh
        c = vCr + t % 5
        cp = f"{v(c & ~1, 2)} " + ("op_sel_hi:[1,0]" if c % 2 == 0 else "op_sel:[0,1] op_sel_hi:[1,1]")
        seq = []
        mf = mf + [None] * (3 - len(mf))
        for q in range(2):
            ex = [f"v_exp_f32 v{T+i}, v{Db+8*q+i}" for i in range(8)]
            rc = [f"v_rcp_f32 v{T+i}, v{T+i}" for i in range(8)]
            ad = [f"v_pk_add_f32 {v(T+2*i,2)}, {v(T+2*i,2)}, {cp}" for i in range(4)]
            fm = [f"v_pk_fma_f32 {v(Ab+8*q+2*i,2)}, {v(Db+8*q+2*i,2)}, {v(T+2*i,2)}, {v(Ab+8*q+2*i,2)}" for i in range(4)]
            if t == 0: fm = [f"v_pk_mul_f32 {v(Ab+8*q+2*i,2)}, {v(Db+8*q+2*i,2)}, {v(T+2*i,2)}" for i in range(4)]
            if q == 0: seq += [mf[0]] + ex + ad + [mf[1]] + rc + fm
            else: seq += [mf[2]] + ex + ad + rc + fm
        res = []; n = 0
        for l in seq:
            if l is None: continue
            res.append(l)
            if l.startswith(("v_exp", "v_rcp")):
                res += fill.get(n, []); n += 1
        def txt(l): return l[0] if isinstance(l, tuple) else l
        ab = OPT["abl"]
        if "novm" in ab: res = [l for l in res if not txt(l).startswith(("buffer_", "s_add_u32 m0", "s_mov_b64 exec")) and not (txt(l) == "@W" and l[1])]
        if "nolds" in ab: res = [l for l in res if not txt(l).startswith("ds_") and not (txt(l) == "@W" and l[2])]
        if "nomf" in ab: res = [l for l in res if not txt(l).startswith(("v_mfma", "v_smf"))]
        if "nova" in ab: res = [l for l in res if not txt(l).startswith(("v_and_or", "v_xor", "v_cmp"))]
        return res
    for t in range(LMAX):
        fill = {}
        if t + 4 < LMAX:
            fill[0] = [le_read(t + 4, 0)]
            fill[10] = [("@W", None, f"le{t+4}"), st_addr(0)]; fill[11] = [st_read(t + 4)]
        if t + 3 < LMAX: fill[1] = [ls_read(t + 3, S4)]
        if t + 1 < LMAX:
            fill[16] = [("@W", f"X{t+1}", None)]
            for sx in range(4): fill[17+sx] = [fx_read(t + 1, sx)]
        if t + 3 < LMAX:
            xa = x_addr(S4)
            fill[24] = [("@W", None, f"ls{t+3}"), xa[0]]; fill[25] = [xa[1]]; fill[26] = [xa[2]]; fill[27] = [xa[3]]
        if t == 0:
            fill[2] = d_pre(2, 2); fill[3] = d_load(2, 2)
            dm = x_dma(2, nop=False, reg=L2)
            for i, pos in enumerate((4, 5, 6, 7, 12, 13, 14, 15)): fill[pos] = [dm[i]]
            fill[28] = d_pre(3, 3); fill[29] = d_load(3, 3)
        if int(OPT["prio"]) == 1: S.append("s_setprio 1")
        S += phase(0, t, chain(1, t), fill)
        if int(OPT["prio"]) == 1: S.append("s_setprio 0")
        fill = {}
        if t + 1 < LMAX: fill[0] = [("@W", None, f"fx{t+1}")]
        if t + 3 < LMAX:
            dm = x_dma(t + 3, nop=False)
            for i in range(8): fill[1+i] = [dm[i]]
        if t + 4 < LMAX:
            dp = d_pre(t + 4, 0)
            fill[9] = [dp[0]]; fill[12] = d_load(t + 4, 0); fill[13] = [dp[1]]
        fill[31] = [f"s_cmp_eq_u32 s{sT}, {t+1}"]
        S += phase(1, t, chain(0, t + 1) if t + 1 < LMAX else [], fill)
        if t + 1 < LMAX: S.append("s_cbranch_scc1 M_FLUSH")
    emit(resolve(S))
    a("M_FLUSH:")
    stamp("top", 5); stamp("epi", 1)
    if MODE: a("s_memtime s[96:97]\ns_waitcnt lgkmcnt(0)")
    a("s_waitcnt vmcnt(0)")
    for i in range(8):
        a(f"ds_write_b128 v{da}, {v(AG+4*i,4)} offset:{32*i}")
    A0, A1, A2, OWN, PAR = D, D + 16, Q, Q + 16, Q + 24
    a(f"""
    M_BEND:
    v_cmp_gt_u32 vcc, 0x3f4, v{kk}
    s_mov_b32 s74, {f32(-1.0/LOG2E)}
    s_mov_b32 s75, {f32(-1.0/LOG2E)}
    s_waitcnt lgkmcnt(0)
    """)
    stamp("epi", 2)
    a("s_barrier")
    stamp("epi", 3)
    offs = (0, 16, 64, 80)
    for i in range(4):
        for buf, ca in ((A0, ca0), (A1, ca1), (A2, ca2)):
            a(f"ds_read_b128 {v(buf+4*i,4)}, v{ca} offset:{offs[i]}")
    for i in range(4):
        a(f"s_waitcnt lgkmcnt({9-3*i})")
        for j in range(2): a(f"v_pk_add_f32 {v(A0+4*i+2*j,2)}, {v(A0+4*i+2*j,2)}, {v(A1+4*i+2*j,2)}")
        for j in range(2): a(f"v_pk_add_f32 {v(A0+4*i+2*j,2)}, {v(A0+4*i+2*j,2)}, {v(A2+4*i+2*j,2)}")
    a(f"""
    s_cbranch_vccz M_SUMD
    s_movk_i32 s{sA}, 0x3f4
    M_SUML:
    s_mov_b64 exec, vcc
    """)
    for i in range(4):
        a(f"ds_read_b128 {v(A1+4*i,4)}, v{ca3} offset:{offs[i]}")
    a(f"s_sub_u32 s{sA}, s{sA}, 4\nv_add_u32 v{ca3}, 272, v{ca3}\ns_waitcnt lgkmcnt(0)")
    for i in range(8): a(f"v_pk_add_f32 {v(A0+2*i,2)}, {v(A0+2*i,2)}, {v(A1+2*i,2)}")
    a(f"""
    s_mov_b64 exec, -1
    v_cmp_gt_i32 vcc, s{sA}, v{kk}
    s_nop 4
    s_cbranch_vccnz M_SUML
    M_SUMD:
    s_cmp_le_u32 s{sNMAX}, s{sCAP}
    s_cbranch_scc1 M_EPI
    """)
    srd_off(a, 56, 10, WS_SP, 2048 * 4096)
    a(f"""
    s_lshl_b32 s{sA}, s2, 3
    s_add_u32 s{sA}, s{sA}, s{sW}
    s_lshl_b32 s{sA}, s{sA}, 12
    s_cmp_eq_u32 s{sBASE}, 0
    s_cbranch_scc1 M_NOLD
    """)
    for i in range(4):
        a(f"buffer_load_dwordx4 {v(A1+4*i,4)}, v{l16}, s[56:59], s{sA} offen offset:{1024*i} sc0 sc1")
    a("s_waitcnt vmcnt(0)")
    for i in range(8): a(f"v_pk_add_f32 {v(A0+2*i,2)}, {v(A0+2*i,2)}, {v(A1+2*i,2)}")
    a(f"""
    M_NOLD:
    s_add_u32 s{sBASE}, s{sBASE}, s{sCAP}
    s_cmp_ge_u32 s{sBASE}, s{sNMAX}
    s_cbranch_scc1 M_EPI
    """)
    for i in range(4):
        a(f"buffer_store_dwordx4 {v(A0+4*i,4)}, v{l16}, s[56:59], s{sA} offen offset:{1024*i} sc0 sc1")
    a(f"""
    M_AGAIN:
    s_load_dwordx2 s[60:61], s[0:1], 32
    s_waitcnt vmcnt(0) lgkmcnt(0)
    s_barrier
    """)
    srd(a, 56, 60, 18432)
    a(f"""
    s_lshl_b32 s{sA}, s{sW}, 10
    s_add_u32 s{sA}, s{sA}, 8192
    s_add_u32 m0, s{sA}, {S_W}
    v_lshlrev_b32 v{t0}, 2, v0
    buffer_load_dwordx4 v{l16}, s[56:59], s{sA} offen lds
    ds_write_b32 v{t0}, v{nta}
    v_add_u32 v{t0}, {L_C8}, v{t0}
    ds_write_b32 v{t0}, v{nta}
    ds_write_b32 v{t0}, v{nta} offset:2048
    """)
    xrows()
    a("s_waitcnt vmcnt(0)\ns_barrier")
    w2read()
    a(f"""
    s_waitcnt lgkmcnt(0)
    s_barrier
    s_branch M_BATCH
    M_EPI:
    """)
    srd(a, 56, 8, 3200000)
    for i in range(8): a(f"v_pk_mul_f32 {v(A0+2*i,2)}, {v(A0+2*i,2)}, s[74:75]")
    for i in range(8): a(f"v_cvt_pk_bf16_f32 v{OWN+i}, v{A0+2*i}, v{A0+2*i+1}")
    a(f"""
    ds_write_b128 v{fa}, {v(OWN,4)} offset:{L_FE}
    ds_write_b128 v{fa}, {v(OWN+4,4)} offset:{L_FE+1024}
    v_xor_b32 v{fa}, 0x800, v{fa}
    v_mfma_f32_32x32x16_bf16 {v(U0,16)}, {v(WU,4)}, {v(OWN,4)}, {v(U0,16)}
    v_mfma_f32_32x32x16_bf16 {v(U0,16)}, {v(WU+4,4)}, {v(OWN+4,4)}, {v(U0,16)}
    s_lshl_b32 s{sA}, s{sSB}, 6
    s_add_u32 s{sA}, s{sA}, s{sS0}
    s_mov_b32 s74, {f32(-LOG2E)}
    s_mov_b32 s75, {f32(-LOG2E)}
    s_waitcnt lgkmcnt(0)
    s_barrier
    """)
    stamp("epi", 4)
    a(f"""
    ds_read_b128 {v(PAR,4)}, v{fa} offset:{L_FE}
    ds_read_b128 {v(PAR+4,4)}, v{fa} offset:{L_FE+1024}
    s_waitcnt lgkmcnt(1)
    v_mfma_f32_32x32x16_bf16 {v(U0,16)}, {v(WU+8,4)}, {v(PAR,4)}, {v(U0,16)}
    s_waitcnt lgkmcnt(0)
    v_mfma_f32_32x32x16_bf16 {v(U0,16)}, {v(WU+12,4)}, {v(PAR+4,4)}, {v(U0,16)}
    s_nop 11
    """)
    for q in range(2):
        b = 8 * q
        for i in range(4): a(f"v_pk_mul_f32 {v(AG+b+2*i,2)}, {v(U0+b+2*i,2)}, s[74:75]")
        for i in range(8): a(f"v_exp_f32 v{AG+b+i}, v{AG+b+i}")
        for i in range(4): a(f"v_pk_add_f32 {v(AG+b+2*i,2)}, {v(AG+b+2*i,2)}, 1.0 op_sel_hi:[1,0]")
        for i in range(8): a(f"v_rcp_f32 v{AG+b+i}, v{AG+b+i}")
        for i in range(4): a(f"v_pk_mul_f32 {v(AG+b+2*i,2)}, {v(U0+b+2*i,2)}, {v(AG+b+2*i,2)}")
        for i in range(4): a(f"v_cvt_pk_bf16_f32 v{D+4*q+i}, v{AG+b+2*i}, v{AG+b+2*i+1}")
        a(f"buffer_store_dwordx4 {v(D+4*q,4)}, v{oa}, s[56:59], s{sA} offen offset:{16*q}")
    if MODE:
        stamp("epi", 5)
        a("s_waitcnt vmcnt(0)")
        stamp("top", 6); stamp("epi", 6)
        a(f"s_lshl_b32 s74, s2, 3\ns_add_u32 s74, s74, s{sW}\ns_lshl_b32 s74, s74, 6\ns_add_u32 s74, s74, {WS_ST+0x80000}\ns_load_dwordx2 s[10:11], s[0:1], 64\ns_waitcnt lgkmcnt(0)\ns_add_u32 s52, s10, s74\ns_addc_u32 s53, s11, 0\nv_mov_b32 v0, 0")
        for i in range(8):
            a(f"v_mov_b32 v1, s{76+2*i}\nglobal_store_dword v0, v1, s[52:53] offset:{4*i}")
        a("s_sub_u32 s96, s96, s94\nv_mov_b32 v1, s96\nglobal_store_dword v0, v1, s[52:53] offset:32\nv_mov_b32 v1, s98\nglobal_store_dword v0, v1, s[52:53] offset:36")
    a("M_END:\ns_endpgm")
    return R.n

hdr = f"""; MPNN edge-MLP + segment-sum + node update in one launch of 256 co-resident workgroups:
; @launch grid=(256,1,1) block=(512,1,1) lds={MAIN_LDS}
.amdgcn_target "amdgcn-amd-amdhsa--gfx950"
.text
.globl {KN}
.type {KN},@function
"""
nv = gen()
txt = hdr + a.text() + '.section .rodata,"a"\n.p2align 6\n' + kdesc(KN, 256, 102)
open(sys.argv[1], "w").write(txt)
print("vgprs", nv, "lds", MAIN_LDS)
```

```python
import sys, struct
from asmlib import *

OPT = dict(abl="", stamp=False, eflags="", M0=1152, ns1=3, es='2,3,0,0', xpos=0, df=1, osl=4, xw=0, fst=5, cem=1, Y=False, epf=0, skw=256, xe=0, tlb=0, stl=0, eld='', ild='', xld='', wso=0, tch=0, st='sc1', oe=0, otw=2, smf=1, ns2=7, prio=1, ld="sc1")
for arg in sys.argv[2:]:
    k, val = arg.split("=")
    OPT[k] = {"True": True, "False": False}.get(val, val.replace("+", " "))
M0 = int(OPT["M0"])
assert M0 % 32 == 0 and M0 <= 1792 and 3200 - M0 <= 2048
LD = OPT["ld"]
YM = OPT["Y"]
if YM: OPT["es"] = "0,0,0,0"; OPT["ns1"] = 0
KN = "standalone__mpnn_edge_mlp__graph_kernel"

NCH, CH = 250, 3200
WS_REC, WS_O, WS_F2, WS_ST, WS_P, WS_SP, WS_EM = 0, 0x440000, 0x680000, 0x700000, 0x800000, 0x1A00000, 0xB20000
SKW = int(OPT["skw"])
OTS, RCS, EMS = 8192 + SKW, 16384 + SKW, M0 * 32 + SKW
LOG2E = 1.4426950408889634
def f32(x): return "0x%08x" % struct.unpack("<I", struct.pack("<f", x))[0]

a = Asm()
MODE = OPT["stamp"]
def stamp(mode, i):
    if MODE == mode or (MODE and mode == "all"):
        a(f"s_memrealtime s[{76+2*i}:{77+2*i}]\ns_waitcnt lgkmcnt(0)")
def emit(l): a("\n".join(l))

def resolve(stream):
    out = []; vm = []; lg = []
    for it in stream:
        if isinstance(it, tuple) and it[0] == "@W":
            parts = []
            if it[1] is not None:
                idx = max(i for i, t in enumerate(vm) if t == it[1]); n = len(vm) - 1 - idx
                assert n <= 63; parts.append(f"vmcnt({n})")
            if it[2] is not None:
                idx = max(i for i, t in enumerate(lg) if t == it[2]); n = len(lg) - 1 - idx
                parts.append(f"lgkmcnt({min(n, 15)})")
            out.append("s_waitcnt " + " ".join(parts)); continue
        txt, tag = it if isinstance(it, tuple) else (it, None)
        if txt.startswith("buffer_"): vm.append(tag)
        if txt.startswith("ds_"): lg.append(tag)
        out.append(txt)
    return out

LMAX = 17
L_TB = 0
L_CNT = 1024
L_NT = L_CNT + 128
L_MX = L_NT + 16
L_BAS = L_MX + 16
L_F2C = 1408
L_ZR = 1536
L_LS = 2048
LSZ = LMAX * 1024
L_LE = L_LS + LSZ
L_ST = L_LE + LSZ
SCAP = 224
L_XR = L_ST + 8 * SCAP * 32
XRS = 8704
MAIN_LDS = L_XR + 8 * XRS
assert MAIN_LDS <= 163840 and L_XR % 4096 == 0
L_C8 = L_XR + XRS
C8O = XRS
GLO = 6144
XRO = 4096
S_W = L_LS
S_WU = L_XR + 4 * XRS
S_CNT = S_W + 18432
S_STA = S_CNT + 2048
S_SRT = S_STA + 2048
S_E = S_SRT + CH * 4
assert S_E + M0 * 32 <= L_XR + 4096
L_FE = L_LS
DUMMY = 0xC0000000
DFLAG = 1 << 24
SPIN = 200000

def gen():
    R = Regs("v", 1, 256)
    vLS = R.alloc("vLS"); vLE = R.alloc("vLE")
    vCr = R.alloc("vCr", 5)
    RP = R.alloc("RP", 8, 2)
    XA = R.alloc("XA", 4); CX = R.alloc("CX", 4)
    S4 = R.alloc("S4", 4, 4); T = R.alloc("T", 8, 4)
    FX = R.alloc("FX", 16, 4); E = R.alloc("E", 16, 4)
    D = R.alloc("D", 32, 4); Q = R.alloc("Q", 32, 4); AG = R.alloc("AG", 32, 4); W = R.alloc("W", 16, 4)
    U0 = R.alloc("U0", 16, 4); WU = R.alloc("WU", 16, 4); EP = R.alloc("EP", 16, 4)
    SG = R.alloc("SG", 8, 4)
    sa = R.alloc("sa"); lane = R.alloc("lane"); l16 = R.alloc("l16"); m = R.alloc("m"); h = R.alloc("h")
    sac = R.alloc("sac"); lh = R.alloc("lh"); hz = R.alloc("hz"); aN = R.alloc("aN"); one = R.alloc("one"); nta = R.alloc("nta")
    h16 = RP + 1
    def Idf(j): return v(W + 4 * j, 4)
    def W3f(nh): return v(W + 8 + nh * 4, 4)
    def Es(t): return v(E + 4 * (t % 4), 4)
    sX, sE, sREC, sEM, sWS, sP = 16, 20, 24, 28, 32, 36
    sW, sSB, sS0, sSO, sN, sBASE, sCNT, sT, sXRB, sA, sB, sCAP = 40, 41, 42, 43, 44, 45, 46, 47, 48, 49, 50, 51
    sNB, sGL, sNMAX, sG, sL, sM7, sB30, sDF, sNS = 70, 71, 72, 73, 12, 13, 14, 15, 3
    sSTB, sOA, sTAG = 99, 93, 100
    t0, t1, t2, t3, t4, t5, t6, t7 = [T + i for i in range(8)]
    def mk(i): return f"s[{54+2*i}:{55+2*i}]"
    ORD = list(range(7, -1, -1))
    def skip(lab):
        a(f"s_cmp_le_u32 s{sCNT}, 384\ns_cbranch_scc1 {lab}6\ns_cmp_le_u32 s{sCNT}, 448\ns_cbranch_scc1 {lab}7")
    def after(lab, i):
        if i >= 6: a(f"{lab}{i}:")
    ne = 0 if "noe" in OPT["abl"] else 1
    steps = [f"row_shr:{sh} row_mask:0xf bank_mask:0xf bound_ctrl:0" for sh in (1, 2, 4, 8)] + ["row_bcast:15 row_mask:0xa bank_mask:0xf", "row_bcast:31 row_mask:0xc bank_mask:0xf"]

    DS_, SR_, CAD, RNK, PR_ = D, D + 8, D + 16, D + 24, Q
    oA, oB, t16, t4_, idx, rA, rB = [Q + 8 + i for i in range(7)]
    nz = Q + 16
    CS = Q + 20
    NA_, NB_ = M0 // 4, (CH - M0) // 4
    DF = int(OPT["df"])
    SDW = "dst_sel:DWORD dst_unused:UNUSED_PAD src0_sel:DWORD src1_sel:"
    a(f".p2align 8\n{KN}:")
    a(f"""
    s_cmp_ge_u32 s2, 256
    s_cbranch_scc1 M_END
    {"s_memrealtime s[76:77]" if MODE else ""}
    s_load_dwordx4 s[56:59], s[0:1], 16
    s_load_dwordx4 s[4:7], s[0:1], 0
    s_load_dwordx4 s[60:63], s[0:1], 32
    s_load_dwordx4 s[8:11], s[0:1], 48
    s_load_dwordx2 s[64:65], s[0:1], 64
    s_memrealtime s[66:67]
    """)
    a(f"""
    s_setprio 2
    v_lshlrev_b32 v{t16}, 4, v0
    v_mov_b32 v{hz}, 0x80000000
    v_cmp_gt_u32 vcc, {NA_}, v0
    s_mul_i32 s{sA}, s2, 12800
    s_mov_b64 s[52:53], vcc
    v_cndmask_b32 v{rA}, v{hz}, v{t16}, vcc
    v_cmp_gt_u32 vcc, {NB_}, v0
    s_add_u32 s{sB}, s{sA}, {M0*4}
    s_mov_b64 s[54:55], vcc
    v_cndmask_b32 v{rB}, v{hz}, v{t16}, vcc
    s_mov_b32 s{sE+2}, 3200000
    s_mov_b32 s{sE+3}, 0x20000
    s_mov_b32 s{sEM+2}, 3200000
    s_mov_b32 s{sEM+3}, 0x20000
    v_lshlrev_b32 v{t4_}, 2, v0
    v_mov_b32 v{nta}, 0
    v_lshrrev_b32 v{t0}, 6, v0
    s_waitcnt lgkmcnt(0)
    """)
    stamp("ka", 1)
    a(f"""
    s_mov_b32 s{sE}, s58
    s_mov_b32 s{sE+1}, s59
    s_mov_b32 s{sEM}, s56
    s_mov_b32 s{sEM+1}, s57
    buffer_load_dwordx4 {v(DS_,4)}, v{rA}, s[{sE}:{sE+3}], s{sA} offen {OPT['ild']}
    buffer_load_dwordx4 {v(DS_+4,4)}, v{rB}, s[{sE}:{sE+3}], s{sB} offen {OPT['ild']}
    {"" if DF else f"buffer_load_dwordx4 {v(SR_,4)}, v{rA}, s[{sEM}:{sEM+3}], s{sA} offen"}
    {"" if DF else f"buffer_load_dwordx4 {v(SR_+4,4)}, v{rB}, s[{sEM}:{sEM+3}], s{sB} offen"}
    ds_write_b32 v{t4_}, v{nta} offset:{S_CNT}
    ds_write_b32 v{t4_}, v{nta}
    v_readfirstlane_b32 s{sW}, v{t0}
    s_setprio 0
    """)
    srd(a, sP, 10, 256)
    a(f"""
    s_cmp_lt_u32 s2, {NCH}
    s_cbranch_scc1 S_NOTAG
    s_cmp_lg_u32 s{sW}, 0
    s_cbranch_scc1 S_NOTAG
    s_or_b32 s{sA}, s66, 1
    v_mov_b32 v{nz}, s{sA}
    v_mov_b32 v{nz+1}, s67
    v_mov_b32 v{nz+2}, 0
    v_mov_b32 v{nz+3}, 0
    s_mov_b64 exec, 1
    buffer_atomic_cmpswap_x2 {v(nz,4)}, v{nta}, s[{sP}:{sP+3}], 0 offen sc1
    s_mov_b64 exec, -1
    s_waitcnt vmcnt(0)
    S_NOTAG:
    s_mov_b32 s68, s10
    s_mov_b32 s69, s11
    s_add_u32 s10, s64, {int(str(OPT["wso"]), 0)}
    s_addc_u32 s11, s65, 0
    s_cmp_lt_u32 s2, {NCH}
    s_cselect_b64 s[52:53], s[52:53], 0
    s_cselect_b64 s[54:55], s[54:55], 0
    v_and_b32 v{lane}, 63, v0
    v_lshlrev_b32 v{l16}, 4, v{lane}
    s_mul_i32 s{sL}, s2, {CH*32}
    s_lshl_b32 s{sT}, s{sW}, 10
    """)
    srd(a, sREC, 6, 0 if "nomv" in OPT["abl"] else 25600000)
    a(f"s_mul_i32 s{sA}, s2, 12800\ns_add_u32 s{sB}, s{sA}, {M0*4}\ns_waitcnt lgkmcnt(0)\ns_barrier")
    if DF: a(f"buffer_load_dwordx4 {v(SR_,4)}, v{rA}, s[{sEM}:{sEM+3}], s{sA} offen\nbuffer_load_dwordx4 {v(SR_+4,4)}, v{rB}, s[{sEM}:{sEM+3}], s{sB} offen")
    if int(OPT["stl"]):
        a(f"""
        s_lshl_b32 s{sA}, s{sW}, 21
        s_add_u32 s{sB}, s{sA}, 0x1000000
        s_min_u32 s{sN}, s{sB}, {WS_EM + 256*EMS - 64}
        s_load_dword s66, s[10:11], s{sA}
        s_load_dword s66, s[10:11], s{sN}
        s_min_u32 s{sN}, s{sB}, {25600000 - 64}
        s_load_dword s66, s[6:7], s{sA}
        s_load_dword s66, s[6:7], s{sN}
        s_and_b32 s{sA}, s{sA}, 0x200000
        s_load_dword s66, s[8:9], s{sA}
        """)
    npiece = 0 if YM else M0 // 32
    nr = (npiece + 7) // 8
    ES = [int(x) for x in OPT["es"].split(",")]
    assert sum(ES) == nr
    EC = [sum(ES[:i]) for i in range(5)]
    def edma(slot):
        for r in range(EC[slot], EC[slot+1]):
            if (r + 1) * 8 > npiece:
                a(f"s_min_u32 s{sT}, s{sT}, {(npiece - 8*r - 1)*1024}")
            a(f"s_add_u32 m0, s{sT}, {S_E + r*8192}\ns_add_u32 s{sA}, s{sT}, {r*8192}\ns_add_u32 s{sA}, s{sA}, s{sL}\nbuffer_load_dwordx4 v{l16}, s[{sREC}:{sREC+3}], s{sA} offen {OPT['eld']} lds")
    srd(a, sX, 4, 3200000)
    srd(a, sP, 60, 18432)
    def xrows():
        a(f"""
        v_lshrrev_b32 v{t0}, 4, v{lane}
        v_xor_b32 v{t0}, v{t0}, v{lane}
        v_and_b32 v{t0}, 7, v{t0}
        v_and_b32 v{t1}, 0x380, v{l16}
        v_lshl_or_b32 v{t0}, v{t0}, 4, v{t1}
        v_xor_b32 v{t1}, 64, v{t0}
        s_add_u32 m0, s{sGL}, {XRO - GLO}
        s_lshl_b32 s{sA}, s{sW}, 11
        s_add_u32 s{sB}, s{sA}, s{sS0}
        buffer_load_dwordx4 v{t0}, s[{sX}:{sX+3}], s{sB} offen {OPT['xld']} lds
        buffer_load_dwordx4 v{t1}, s[{sX}:{sX+3}], s{sB} offen offset:1024 {OPT['xld']} lds
        """)
    a(f"""
    s_and_b32 s74, s2, 7
    s_lshl_b32 s74, s74, 5
    s_lshr_b32 s{sA}, s2, 3
    s_add_u32 s74, s74, s{sA}
    s_lshl_b32 s{sA}, s74, 17
    s_add_u32 s{sA}, s{sA}, 1337
    s_mul_hi_u32 s{sS0}, s{sA}, 3209991
    s_add_u32 s{sA}, s{sA}, 131072
    s_mul_hi_u32 s{sNB}, s{sA}, 3209991
    s_min_u32 s{sNB}, s{sNB}, 25000
    s_sub_u32 s{sNB}, s{sNB}, s{sS0}
    s_and_b32 s{sSB}, s{sW}, 1
    s_lshl_b32 s{sSO}, s74, 1
    s_add_u32 s{sSO}, s{sSO}, s{sSB}
    s_mul_i32 s{sSO}, s{sSO}, 49
    s_sub_u32 s{sSO}, s{sSO}, s{sS0}
    s_sub_u32 s{sSO}, s{sSO}, 9
    s_lshl_b32 s{sS0}, s{sS0}, 7
    s_mul_i32 s{sGL}, s{sW}, {XRS}
    s_add_u32 s{sGL}, s{sGL}, {L_XR + GLO}
    """)
    XPOS = int(OPT["xpos"])
    def xw1():
        xrows()
        a(f"""
        s_lshl_b32 s{sA}, s{sW}, 10
        s_add_u32 m0, s{sA}, {S_W}
        s_mov_b32 s{sB}, -49
        buffer_load_dwordx4 v{l16}, s[{sP}:{sP+3}], s{sA} offen lds
        """)
    if XPOS == 0: xw1()
    TLB = int(OPT["tlb"])
    srd(a, sWS, 10, 0x1000000)
    if TLB:
        a(f"""
        v_lshl_add_u32 v{t0}, v{lane}, 3, s{sW}
        v_lshlrev_b32 v{t0}, 20, v{t0}
        buffer_load_dword v{vCr+4}, v{t0}, s[{sWS}:{sWS+3}], 0 offen
        """)
    edma(0)
    a(f"""
    v_mov_b32 v{one}, 1
    v_mov_b32 v{t7}, 0x10000
    v_lshlrev_b32 v{idx}, 23, v0
    v_add_u32 v{idx}, 9, v{idx}
    v_lshlrev_b32 v{t6}, 5, v{lane}
    s_mov_b32 s{sB}, -49
    s_mov_b32 s{sM7}, {1<<21}
    s_mov_b32 s{sB30}, {2<<21}
    s_mov_b32 s{sDF}, {3<<21}
    s_setprio 2
    """)
    stamp("ka", 2)
    a(f"""
    s_waitcnt vmcnt({EC[1]+2+(3 if XPOS == 0 else 0)})
    """)
    stamp("srt", 1); stamp("ka", 3)
    for g in range(2):
        for i in range(4*g, 4*g + 4):
            a(f"v_mul_u32_u24 v{PR_+i}, 1338, v{DS_+i}\nv_lshlrev_b32_sdwa v{CAD+i}, 2, v{PR_+i} {SDW}WORD_1")
        a(f"s_mov_b64 exec, {'s[52:53]' if g == 0 else 's[54:55]'}")
        for i in range(4*g, 4*g + 4): a(f"ds_add_rtn_u32 v{RNK+i}, v{CAD+i}, v{one if g == 0 else t7} offset:{S_CNT}")
        a("s_mov_b64 exec, -1")
    edma(1)
    if XPOS == 1: xw1()
    TCH = int(OPT["tch"])
    if TCH:
        a(f"""
        v_lshl_add_u32 v{t0}, v{lane}, 3, s{sW}
        v_cmpx_gt_u32 vcc, {(WS_EM + 256*EMS + (1<<21) - 1) >> 21}, v{t0}
        v_lshlrev_b32 v{t0}, 21, v{t0}
        global_load_dword v{vCr+4}, v{t0}, s[10:11]
        s_mov_b64 exec, -1
        """)
    def recs(rng):
        o = []
        for i in rng:
            o += [f"v_mad_i32_i16 v{PR_+i}, v{PR_+i}, s{sB}, v{DS_+i} op_sel:[1,0,0,0]", f"v_lshl_add_u32 v{PR_+i}, v{SR_+i}, 6, v{PR_+i}",
                  f"v_add3_u32 v{PR_+i}, v{PR_+i}, v{idx}, {('0', f's{sM7}', f's{sB30}', f's{sDF}')[i%4]}"]
        return o
    a("s_waitcnt lgkmcnt(0)\ns_barrier")
    stamp("srt", 2); stamp("tag", 1); stamp("ka", 4)
    OTG = S4
    a(f"""
    ds_read_b128 {v(CS,4)}, v{t6} offset:{S_CNT}
    ds_read_b128 {v(CS+4,4)}, v{t6} offset:{S_CNT+16}
    ds_read_b32 v{OTG+1}, v{t4_} offset:{S_CNT}
    s_waitcnt vmcnt({EC[2]+3})
    """)
    emit(recs(range(4)))
    a("s_waitcnt lgkmcnt(1)")
    for j in range(1, 8): a(f"v_add_u32 v{CS+j}, v{CS+j}, v{CS+j-1}")
    a(f"v_mov_b32 v{CS+8}, v{CS+7}")
    rr = recs(range(4, 8))
    for n, stp in enumerate(steps): a(f"{rr[2*n]}\n{rr[2*n+1]}\nv_add_u32_dpp v{CS+8}, v{CS+8}, v{CS+8} {stp}")
    a(f"v_sub_u32 v{CS+8}, v{CS+8}, v{CS+7}\nv_add_u32 v{CS+8}, {M0<<16}, v{CS+8}")
    for j in range(7, 0, -1): a(f"v_add_u32 v{CS+j}, v{CS+j-1}, v{CS+8}")
    a(f"""
    v_mov_b32 v{CS}, v{CS+8}
    ds_write_b128 v{t6}, {v(CS,4)} offset:{S_STA}
    ds_write_b128 v{t6}, {v(CS+4,4)} offset:{S_STA+16}
    """)
    for i in range(8): a(f"ds_read_b32 v{DS_+i}, v{CAD+i} offset:{S_STA}")
    a(f"ds_read_b32 v{OTG}, v{t4_} offset:{S_STA}")
    edma(2)
    for i in range(8):
        if i % 4 == 0: a(f"s_mov_b64 exec, {'s[52:53]' if i == 0 else 's[54:55]'}")
        a(f"""
        s_waitcnt lgkmcnt(8)
        v_add_u32 v{DS_+i}, v{DS_+i}, v{RNK+i}
        v_lshlrev_b32_sdwa v{DS_+i}, 2, v{DS_+i} {SDW}{'WORD_0' if i < 4 else 'WORD_1'}
        ds_write_b32 v{DS_+i}, v{PR_+i} offset:{S_SRT}
        """)
    a("s_mov_b64 exec, -1")
    stamp("srt", 3); stamp("ka", 5)
    a(f"s_load_dwordx2 s[{sTAG}:{sTAG+1}], s[68:69], 0")
    a(f"""
    v_lshrrev_b32 v{t1}, 1, v0
    v_lshlrev_b32 v{t1}, 2, v{t1}
    s_waitcnt vmcnt({EC[3] if XPOS == 0 else ES[2]}) lgkmcnt(0)
    s_barrier
    """)
    stamp("srt", 4); stamp("tag", 2); stamp("ka", 6)
    no = 0 if YM else (M0 + 255) // 256
    a(f"ds_read_b128 {v(D,4)}, v{t16} offset:{S_SRT}\nds_read_b128 {v(D+4,4)}, v{t16} offset:{S_SRT+M0*4}")
    for r in range(no): a(f"ds_read_b32 v{SG+r}, v{t1} offset:{S_SRT+1024*r}")
    edma(3)
    a(f"""
    s_mul_i32 s{sA}, s2, {RCS}
    s_add_u32 s{sB}, s{sA}, 8192
    v_and_b32 v{t2}, 1, v0
    v_lshlrev_b32 v{t2}, 4, v{t2}
    s_waitcnt lgkmcnt({no})
    buffer_store_dwordx4 {v(D,4)}, v{rA}, s[{sWS}:{sWS+3}], s{sA} offen sc1
    buffer_store_dwordx4 {v(D+4,4)}, v{rB}, s[{sWS}:{sWS+3}], s{sB} offen sc1
    """)
    stamp("tag", 3)
    a(f"""
    s_mul_i32 s{sN}, s2, {OTS}
    s_add_u32 s{sN}, s{sN}, {WS_O}
    s_mov_b32 s{sB}, 0
    s_cmp_lg_u32 s{sTAG}, 0
    s_cbranch_scc1 S_TAGD
    S_TAGL:
    s_sleep 8
    global_load_dwordx2 {v(OTG+2,2)}, v{nta}, s[68:69] sc1
    s_add_u32 s{sB}, s{sB}, 1
    s_cmp_gt_u32 s{sB}, {SPIN}
    s_cbranch_scc1 M_END
    s_waitcnt vmcnt(0)
    v_readfirstlane_b32 s{sTAG}, v{OTG+2}
    v_readfirstlane_b32 s{sTAG+1}, v{OTG+3}
    s_nop 0
    s_cmp_eq_u32 s{sTAG}, 0
    s_cbranch_scc1 S_TAGL
    S_TAGD:
    """)
    stamp("tag", 4)
    a(f"""
    v_add_u32 v{OTG}, {(2048-M0)<<16}, v{OTG}
    v_mov_b32 v{OTG+2}, s{sTAG}
    v_mov_b32 v{OTG+3}, s{sTAG+1}
    buffer_store_dwordx4 {v(OTG,4)}, v{t16}, s[{sWS}:{sWS+3}], s{sN} offen sc1
    s_movk_i32 s{sB}, {(M0 - 256*(no-1))*2}
    v_cmp_gt_u32 vcc, s{sB}, v0
    v_mov_b32 v{t4}, v{t16}
    v_and_b32 v{m}, 31, v{lane}
    v_lshrrev_b32 v{h}, 5, v{lane}
    v_cndmask_b32 v{t6}, v{hz}, v{t16}, vcc
    v_lshlrev_b32 v{t0}, 3, v0
    v_add_u32 v{t0}, {L_C8}, v{t0}
    v_mov_b32 v{D+8}, 0
    v_mov_b32 v{D+9}, 0
    ds_write_b64 v{t0}, {v(D+8,2)}
    v_bfe_u32 v{t1}, v{lane}, 2, 2
    v_lshl_add_u32 v{t1}, v{h}, 3, v{t1}
    v_lshlrev_b32 v{t1}, 7, v{t1}
    v_and_b32 v{t3}, 3, v{lane}
    v_lshl_add_u32 v{aN}, v{t3}, 3, v{t1}
    v_and_b32 v{t3}, 16, v{lane}
    v_lshl_add_u32 v{aN}, v{t3}, 1, v{aN}
    v_add_u32 v{t1}, v{t1}, v{t3}
    v_and_b32 v{t3}, 1, v{lane}
    v_lshl_add_u32 v{t1}, v{t3}, 5, v{t1}
    v_and_b32 v{t3}, 2, v{lane}
    v_lshl_add_u32 v{t1}, v{t3}, 2, v{t1}
    s_lshl_b32 s{sA}, s{sSB}, 6
    v_add_u32 v{sa}, s{sA}, v{t1}
    v_bfe_u32 v{sac}, v{m}, 1, 3
    v_xor_b32 v{sac}, v{sac}, v{h}
    v_lshlrev_b32 v{sac}, 4, v{sac}
    v_and_b32 v{t3}, 15, v{m}
    v_lshl_or_b32 v{sac}, v{t3}, 7, v{sac}
    v_lshrrev_b32 v{t3}, 4, v{m}
    v_mul_u32_u24 v{t3}, {XRS}, v{t3}
    s_and_b32 s{sA}, s{sW}, 6
    s_mul_i32 s{sA}, s{sA}, {XRS}
    s_add_u32 s{sA}, s{sA}, {L_XR + XRO}
    v_add3_u32 v{sac}, v{sac}, v{t3}, s{sA}
    s_waitcnt lgkmcnt(1)
    """)
    for r in range(no):
        a(f"v_lshrrev_b32 v{SG+r}, 21, v{SG+r}\nv_lshl_add_u32 v{SG+r}, v{SG+r}, 5, v{t2}")
    srd_off(a, sEM, 10, WS_EM, 0 if "nomv" in OPT["abl"] else 256 * EMS)
    OG = E + 12
    a(f"""
    s_lshl_b32 s{sOA}, s74, 5
    s_lshl_b32 s{sA}, s{sSB}, 4
    s_add_u32 s{sOA}, s{sOA}, s{sA}
    s_lshr_b32 s{sA}, s{sW}, 1
    s_mul_i32 s{sA}, s{sA}, {64*OTS}
    s_add_u32 s{sOA}, s{sOA}, s{sA}
    s_add_u32 s{sOA}, s{sOA}, {WS_O}
    v_mul_u32_u24 v{lh}, {OTS}, v{lane}
    s_mov_b32 s74, {f32(-LOG2E)}
    s_mov_b32 s75, {f32(-LOG2E)}
    """)
    XF, W1t, Wx, PD, EO = FX, AG, EP, AG + 16, Q
    def tr(dst, areg, off):
        a(f"ds_read_b64_tr_b16 {v(dst,2)}, v{areg} offset:{S_W+off}\nds_read_b64_tr_b16 {v(dst+2,2)}, v{areg} offset:{S_W+off+512}")
    def w2read():
        for sx in range(4):
            for nh in range(2): tr(AG + (2*sx + nh)*4, aN, 8192 + 2048*sx + 64*nh)
    for sx in range(4):
        a(f"ds_read_b128 {v(XF+4*sx,4)}, v{sac}" + (f"\nv_xor_b32 v{sac}, {(32, 96, 32)[sx]}, v{sac}" if sx < 3 else ""))
        tr(W1t + 4*sx, sa, 2048*sx)
    a("s_waitcnt lgkmcnt(0)")
    for sx in range(4):
        a(f"v_mfma_f32_32x32x16_bf16 {v(PD,16)}, {v(W1t+4*sx,4)}, {v(XF+4*sx,4)}, {'0' if sx == 0 else v(PD,16)}")
    a(f"""
    v_and_b32 v{t0}, 15, v{m}
    v_mul_u32_u24 v{t0}, 144, v{t0}
    v_lshl_add_u32 v{t0}, v{h}, 5, v{t0}
    v_lshrrev_b32 v{t1}, 4, v{m}
    v_mul_u32_u24 v{t1}, {XRS}, v{t1}
    s_mul_i32 s{sA}, s{sSB}, {64 - XRS}
    s_add_u32 s{sA}, s{sA}, s{sGL}
    v_add3_u32 v{t0}, v{t0}, v{t1}, s{sA}
    v_lshrrev_b32 v{t1}, 3, v{lane}
    v_lshl_add_u32 v{t3}, v{t1}, 4, v{l16}
    v_add_u32 v{t3}, s{sGL}, v{t3}
    s_lshl_b32 s{sA}, s{sW}, 11
    s_lshl_b32 s{sB}, s{sNB}, 7
    v_add_u32 v{t1}, s{sA}, v{l16}
    v_add_u32 v{t5}, 1024, v{t1}
    v_cmp_gt_u32 vcc, s{sB}, v{t1}
    v_cmp_gt_u32 s[52:53], s{sB}, v{t5}
    s_mov_b32 s{sCAP}, 512
    s_mov_b32 s{sBASE}, 0
    v_cndmask_b32 v{t1}, v{hz}, v{t1}, vcc
    v_cndmask_b32 v{t5}, v{hz}, v{t5}, s[52:53]
    """)
    for i in range(8): a(f"v_pk_mul_f32 {v(PD+2*i,2)}, {v(PD+2*i,2)}, s[74:75]")
    for i in range(8): a(f"v_cvt_pk_bf16_f32 v{PD+i}, v{PD+2*i}, v{PD+2*i+1}")
    a(f"""
    ds_write_b128 v{t0}, {v(PD,4)}
    ds_write_b128 v{t0}, {v(PD+4,4)} offset:16
    """)
    stamp("tag", 5)
    srd(a, sE, 62, 16384)
    a(f"""
    s_lshl_b32 s{sA}, s{sW}, 10
    s_add_u32 s{sA}, s{sA}, 8192
    s_add_u32 m0, s{sA}, {S_W}
    s_lshl_b32 s{sB}, s{sSB}, 10
    buffer_load_dwordx4 v{l16}, s[{sP}:{sP+3}], s{sA} offen lds
    s_add_u32 s{sB}, s{sB}, 16384
    s_add_u32 m0, s{sB}, {S_W}
    s_lshl_b32 s{sA}, s{sW}, 11
    buffer_load_dwordx4 v{l16}, s[{sP}:{sP+3}], s{sB} offen lds
    s_lshr_b32 s{sN}, s{sW}, 1
    s_mul_i32 s{sN}, s{sN}, {XRS - 4096}
    s_add_u32 s{sN}, s{sN}, s{sA}
    s_add_u32 m0, s{sN}, {S_WU}
    s_nop 0
    buffer_load_dwordx4 v{l16}, s[{sE}:{sE+3}], s{sA} offen lds
    buffer_load_dwordx4 v{l16}, s[{sE}:{sE+3}], s{sA} offen offset:1024 lds
    s_add_u32 s{sB}, s{sS0}, {WS_P}
    s_waitcnt vmcnt(7) lgkmcnt(0)
    s_barrier
    """)
    stamp("srt", 5); stamp("top", 1); stamp("tag", 6)
    a(f"ds_read_b128 {v(D+16,4)}, v{t3}\nds_read_b128 {v(D+20,4)}, v{t3} offset:{8*144}")
    for r in range(no): a(f"ds_read_b128 {v(EO+4*r,4)}, v{SG+r} offset:{S_E}")
    a(f"""
    s_waitcnt lgkmcnt({no})
    buffer_store_dwordx4 {v(D+16,4)}, v{t1}, s[{sWS}:{sWS+3}], s{sB} offen sc1
    buffer_store_dwordx4 {v(D+20,4)}, v{t5}, s[{sWS}:{sWS+3}], s{sB} offen sc1
    """)
    CEM = int(OPT["cem"])
    a(f"s_mul_i32 s{sA}, s2, {EMS}" if CEM else f"s_lshl_b32 s{sA}, s2, 17")
    for r in range(no):
        a(f"s_waitcnt lgkmcnt({no-1-r})\nbuffer_store_dwordx4 {v(EO+4*r,4)}, v{t6 if r == no-1 else t4}, s[{sEM}:{sEM+3}], s{sA} offen {OPT['st']}\ns_add_u32 s{sA}, s{sA}, 8192")
    a(f"""
    s_mov_b32 s92, 1
    s_lshl_b32 s{sN}, s2, {int(OPT["fst"])}
    s_add_u32 s{sN}, s{sN}, {WS_F2}
    """)
    stamp("srt", 6); stamp("syn", 1)
    FST = int(OPT["fst"])
    f2r = E + 9
    OE = int(OPT["oe"]); XE = 0
    oload = f"buffer_load_dwordx4 {v(OG,4)}, v{lh}, s[{sWS}:{sWS+3}], s{sOA} offen sc1"
    if OE == 1: a(oload)
    a("s_setprio 0")
    OTW = int(OPT['otw'])
    def wwork():
        a(f"v_add_u32 v{sa}, {S_WU - S_W}, v{sa}\ns_mul_i32 s{sB}, s{sSB}, {XRS}\nv_add_u32 v{t2}, s{sB}, v{sa}\nv_subrev_u32 v{t3}, s{sB}, v{sa}")
        for nh in range(2): tr(D + 8 + 4*nh, aN, 128*128 + 64*nh)
        for sx in range(4): tr(Wx + 4*sx, sa, XRS*(sx>>1) + 2048*(sx&1))
        a("s_waitcnt lgkmcnt(0)")
        for sx in range(4):
            a(f"v_mfma_f32_32x32x16_bf16 {v(U0,16)}, {v(Wx+4*sx,4)}, {v(XF+4*sx,4)}, {'0' if sx == 0 else v(U0,16)}")
        tr(WU, t2, 2*XRS); tr(WU + 4, t2, 2*XRS + 2048); tr(WU + 8, t3, 3*XRS); tr(WU + 12, t3, 3*XRS + 2048)
        w2read()
        for nh in range(2):
            for i in range(4):
                r = D + 8 + 4*nh + i
                a(f"v_lshlrev_b32 v{t0}, 16, v{r}\nv_and_b32 v{t1}, 0xffff0000, v{r}\nv_pk_mul_f32 {v(t0,2)}, {v(t0,2)}, s[74:75]\nv_cvt_pk_bf16_f32 v{W+8+4*nh+i}, v{t0}, v{t1}")
    def lanec():
        srd_off(a, sP, 10, WS_P, 3200000)
        if int(OPT["smf"]):
            a(f"""
            v_and_b32 v{t1}, 1, v{m}
            v_lshlrev_b32 v{t1}, 4, v{t1}
            v_mov_b32 v{t2}, 0x3f80
            v_lshlrev_b32 v{t1}, v{t1}, v{t2}
            v_lshrrev_b32 v{t0}, 2, v{m}
            v_lshlrev_b32 v{t2}, 2, v{h}
            v_sub_u32 v{t0}, v{t0}, v{t2}
            v_bfe_i32 v{t2}, v{m}, 1, 1
            v_and_b32 v{t2}, 0xaaaa, v{t2}
            v_or_b32 v{W+4}, 0x4444, v{t2}
            """)
            for i in range(4):
                a(f"v_cmp_eq_u32 vcc, {i}, v{t0}\ns_nop 1\nv_cndmask_b32 v{W+i}, 0, v{t1}, vcc")
        else:
            a(f"""
            v_lshlrev_b32 v{t0}, 3, v{h}
            v_sub_u32 v{t0}, v{m}, v{t0}
            v_and_b32 v{t1}, 1, v{t0}
            v_lshlrev_b32 v{t1}, 4, v{t1}
            v_mov_b32 v{t2}, 0x3f80
            v_lshlrev_b32 v{t1}, v{t1}, v{t2}
            v_lshrrev_b32 v{t0}, 1, v{t0}
            """)
            for j in range(2):
                for i in range(4):
                    a(f"v_cmp_eq_u32 vcc, {8*j+i}, v{t0}\ns_nop 1\nv_cndmask_b32 v{W+4*j+i}, 0, v{t1}, vcc")
        a(f"""
        s_mul_i32 s{sSTB}, s{sW}, {SCAP*32}
        s_add_u32 s{sSTB}, s{sSTB}, {L_ST}
        s_mov_b32 s{sREC}, s10
        s_or_b32 s{sREC+1}, s11, {4<<16}
        s_mov_b32 s{sREC+2}, {WS_O//4}
        s_mov_b32 s{sREC+3}, 0x20000
        s_sub_u32 s{sE}, s6, {DFLAG*32}
        s_subb_u32 s{sE+1}, s7, 0
        s_or_b32 s{sE+1}, s{sE+1}, {32<<16}
        s_mov_b32 s{sE+2}, {(DFLAG + 800000) * ne}
        s_mov_b32 s{sE+3}, 0x20000
        s_sub_u32 s{sG}, 11, s{sW}
        s_cmp_lt_u32 s{sW}, 4
        s_cselect_b32 s{sG}, s{sW}, s{sG}
        s_mul_i32 s{sXRB}, s{sG}, {XRS}
        s_add_u32 s{sXRB}, s{sXRB}, {L_XR}
        s_mov_b32 s{sM7}, 0xffffff80
        s_mov_b32 s{sB30}, 0x40000000
        s_mov_b32 s{sDF}, {DFLAG}
        v_lshlrev_b32 v{RP+1}, 4, v{h}
        v_lshlrev_b32 v{RP+3}, 4, v{h}
        v_lshlrev_b32 v{RP+5}, 4, v{h}
        v_lshlrev_b32 v{RP+7}, 4, v{h}
        v_lshrrev_b32 v{t0}, 3, v{lane}
        s_lshl_b32 s{sA}, s{sG}, 7
        v_lshl_add_u32 v{vLS}, v{t0}, 4, s{sA}
        v_lshl_add_u32 v{vLE}, v{m}, 2, s{sA}
        v_and_b32 v{t3}, 1, v{t0}
        v_lshlrev_b32 v{t3}, 4, v{t3}
        v_lshl_add_u32 v{sac}, v{lane}, 5, v{t3}
        v_add_u32 v{sac}, s{sSTB}, v{sac}
        v_and_b32 v{t1}, 4, v{t0}
        v_and_b32 v{t2}, 7, v{lane}
        v_xor_b32 v{t1}, v{t1}, v{t2}
        v_lshlrev_b32 v{CX}, 4, v{t1}
        v_xor_b32 v{CX+1}, 16, v{CX}
        v_xor_b32 v{CX+2}, 32, v{CX}
        v_xor_b32 v{CX+3}, 48, v{CX}
        v_and_b32 v{t0}, 3, v{m}
        v_lshrrev_b32 v{t1}, 2, v{m}
        v_lshl_add_u32 v{t1}, v{t0}, 3, v{t1}
        v_lshlrev_b32 v{t1}, 7, v{t1}
        v_add_u32 v{t1}, s{sXRB}, v{t1}
        v_lshrrev_b32 v{t2}, 4, v{m}
        v_lshl_or_b32 v{t0}, v{t2}, 2, v{t0}
        v_xor_b32 v{t0}, v{t0}, v{h}
        v_lshl_add_u32 v{XA}, v{t0}, 4, v{t1}
        v_xor_b32 v{XA+1}, 32, v{XA}
        v_xor_b32 v{XA+2}, 64, v{XA}
        v_xor_b32 v{XA+3}, 0x60, v{XA}
        """)
    lanec()
    if OE == 2: a(oload)
    stamp("syn", 2)
    a(f"""
    s_setprio 2
    s_cmp_lg_u32 s{sW}, 0
    s_waitcnt vmcnt(0)
    s_barrier
    s_cbranch_scc1 M_NOPUB
    s_mov_b64 exec, 1
    buffer_store_dwordx2 {v(OTG+2,2)}, v{nta}, s[{sWS}:{sWS+3}], s{sN} offen sc1
    s_mov_b64 exec, -1
    M_NOPUB:
    s_mov_b32 s{sA}, 0
    """)
    stamp("syn", 3)
    a(f"s_nop 7\n{oload}")
    wwork()
    a(f"s_mov_b32 s{sA}, 0\ns_waitcnt vmcnt(0)")
    kk12, c0, c1, g0, g1, p0, p1, tt, qa, f2r, fl0 = [E + i for i in range(11)]
    G, RC, NA, RK = D, D + 8, D + 16, D + 24
    TBv = FX
    OFv, CA = EP, EP + 8
    a(f"""
    s_branch M_POLLC
    M_BATCH:
    v_mul_u32_u24 v{lh}, {OTS}, v{lane}
    s_mov_b32 s{sA}, 0
    M_POLL:
    s_sleep {OPT["osl"]}
    buffer_load_dwordx4 {v(OG,4)}, v{lh}, s[{sWS}:{sWS+3}], s{sOA} offen sc1
    s_add_u32 s{sA}, s{sA}, 1
    s_cmp_gt_u32 s{sA}, {SPIN}
    s_cbranch_scc1 M_END
    s_waitcnt vmcnt(0)
    M_POLLC:
    v_cmpx_ne_u64 vcc, s[{sTAG}:{sTAG+1}], {v(OG+2,2)}
    s_cbranch_execnz M_POLL
    s_mov_b64 exec, -1
    s_lshr_b32 s{sA}, s{sW}, 1
    s_lshl_b32 s{sA}, s{sA}, 6
    v_add_lshl_u32 v{kk12}, v{lane}, s{sA}, 12
    v_lshl_add_u32 v{qa}, v{lane}, 2, s{sGL}
    v_mov_b32 v{t1}, 0xffff
    v_lshrrev_b32 v{lh}, 1, v{lane}
    """)
    stamp("pro", 1); stamp("syn", 4)
    a(f"v_and_b32 v{p0}, v{t1}, v{OG+1}\nv_lshrrev_b32 v{p1}, 16, v{OG+1}")
    fl = [f"v_and_or_b32 v{g0}, v{OG}, v{t1}, v{kk12}", f"v_lshrrev_b32 v{g1}, 16, v{OG}", f"v_or_b32 v{g1}, v{g1}, v{kk12}",
          f"v_and_b32 v{c0}, v{t1}, v{OG+1}", f"v_lshrrev_b32 v{c1}, 16, v{OG+1}", "s_nop 0"]
    for n, stp in enumerate(steps):
        a(f"{fl[n]}\nv_add_u32_dpp v{p0}, v{p0}, v{p0} {stp}\nv_add_u32_dpp v{p1}, v{p1}, v{p1} {stp}")
    a(f"""
    v_readlane_b32 s{sNS}, v{p0}, 63
    v_readlane_b32 s{sN}, v{p1}, 63
    v_sub_u32 v{p0}, v{p0}, v{c0}
    v_sub_u32 v{p1}, v{p1}, v{c1}
    s_add_u32 s{sN}, s{sN}, s{sNS}
    v_add_u32 v{p1}, s{sNS}, v{p1}
    s_mov_b32 s{sCNT}, s{sN}
    s_add_u32 s{sA}, s{sN}, s{sBASE}
    s_cmp_le_u32 s{sA}, s{sCAP}
    s_cbranch_scc0 M_WIN
    s_cmp_eq_u32 s{sBASE}, 0
    s_cbranch_scc1 M_NOWIN
    M_WIN:
    s_sub_i32 s{sCNT}, s{sN}, s{sBASE}
    s_max_i32 s{sCNT}, s{sCNT}, 0
    s_min_u32 s{sCNT}, s{sCNT}, s{sCAP}
    s_sub_i32 s{sNS}, s{sNS}, s{sBASE}
    s_max_i32 s{sNS}, s{sNS}, 0
    """)
    for (pp, cc, gg) in ((p0, c0, g0), (p1, c1, g1)):
        a(f"""
        v_subrev_u32 v{tt}, s{sBASE}, v{pp}
        v_max_i32 v{pp}, 0, v{tt}
        v_add_u32 v{cc}, v{tt}, v{cc}
        v_min_i32 v{cc}, s{sCAP}, v{cc}
        v_sub_u32 v{cc}, v{cc}, v{pp}
        v_sub_u32 v{tt}, v{pp}, v{tt}
        v_add_u32 v{gg}, v{gg}, v{tt}
        """)
    a(f"M_NOWIN:\ns_min_u32 s{sNS}, s{sNS}, {0 if YM else SCAP}")
    pa, ca_, ga, gb = t0, t1, t2, t3
    for n, (pp, cc, gg) in enumerate(((p0, c0, g0), (p1, c1, g1))):
        a(f"""
        v_lshl_add_u32 v{pp}, v{pp}, 2, s{sGL}
        v_add_u32 v{ga}, 1, v{gg}
        v_add_u32 v{gb}, 2, v{gg}
        v_mov_b32 v{ca_}, v{cc}
        v_mov_b32 v{pa}, v{pp}
        M_EXP{n}:
        """)
        for r in (1, 3, 5, 7):
            a(f"v_cmpx_lt_i32 vcc, {r}, v{ca_}\nds_write2_b32 v{pa}, v{ga}, v{gb} offset0:{r} offset1:{r+1}\nv_add_u32 v{ga}, 2, v{ga}\nv_add_u32 v{gb}, 2, v{gb}")
        a(f"""
        v_cmpx_lt_i32 vcc, 9, v{ca_}
        v_add_u32 v{pa}, 32, v{pa}
        v_subrev_u32 v{ca_}, 8, v{ca_}
        s_cbranch_execnz M_EXP{n}
        s_mov_b64 exec, -1
        """)
    a(f"""
    v_cmpx_lt_i32 vcc, 0, v{c0}
    ds_write_b32 v{p0}, v{g0}
    s_mov_b64 exec, -1
    v_cmpx_lt_i32 vcc, 0, v{c1}
    ds_write_b32 v{p1}, v{g1}
    s_mov_b64 exec, -1
    """)
    for i in ORD:
        a(f"ds_read_b32 v{G+i}, v{qa} offset:{256*i}")
    a(f"v_lshl_add_u32 v{t1}, v{lh}, 2, s{sGL}")
    for j in range(7):
        a(f"ds_read_b32 v{SG+j}, v{t1} offset:{128*j}")
    for i in ORD:
        a(f"s_sub_i32 s{sA}, s{sCNT}, {64*i}\nv_cmp_gt_i32 {mk(i)}, s{sA}, v{lane}")
    a(f"""
    v_lshrrev_b32 v{t2}, 4, v{lane}
    v_xor_b32 v{t2}, v{t2}, v{lane}
    v_and_b32 v{t2}, 1, v{t2}
    v_lshlrev_b32 v{t2}, 4, v{t2}
    v_mov_b32 v{fl0}, s{sCNT}
    v_mov_b32 v{fl0+1}, s{sN}
    s_waitcnt lgkmcnt(0)
    """)
    if CEM: a(f"s_mov_b32 s{sA}, {EMS//32-4096}")
    for j in range(7):
        if CEM: a(f"v_lshrrev_b32 v{t3}, 12, v{SG+j}\nv_mad_i32_i24 v{SG+j}, v{t3}, s{sA}, v{SG+j}")
        a(f"v_lshl_add_u32 v{SG+j}, v{SG+j}, 5, v{t2}")
    for i in range(8): a(f"v_lshrrev_b32 v{t3}, 12, v{G+i}\nv_mad_u32_u24 v{RC+i}, v{t3}, {SKW//4}, v{G+i}")
    stamp("pro", 2); stamp("syn", 5)
    a(f"""
    s_cmp_eq_u32 s92, 0
    s_cbranch_scc1 M_READY
    """)
    a(f"""
    s_lshr_b32 s{sB}, s{sW}, 1
    s_lshl_b32 s{sB}, s{sB}, {FST+6}
    s_add_u32 s{sB}, s{sB}, {WS_F2}
    v_lshlrev_b32 v{f2r}, {FST}, v{lane}
    s_mov_b32 s{sA}, 0
    s_branch M_FL1
    M_FL:
    s_sleep {OPT["osl"]}
    M_FL1:
    buffer_load_dwordx2 {v(OG,2)}, v{f2r}, s[{sWS}:{sWS+3}], s{sB} offen sc1
    s_add_u32 s{sA}, s{sA}, 1
    s_cmp_gt_u32 s{sA}, {SPIN}
    s_cbranch_scc1 M_END
    s_waitcnt vmcnt(0)
    v_cmpx_ne_u64 vcc, s[{sTAG}:{sTAG+1}], {v(OG,2)}
    s_cbranch_execnz M_FL
    M_READY:
    """)
    stamp("top", 2); stamp("syn", 6)
    skip("M_GA")
    for i in ORD:
        a(f"s_mov_b64 exec, {mk(i)}\nbuffer_load_dword v{RC+i}, v{RC+i}, s[{sREC}:{sREC+3}], 0 idxen {LD}")
        after("M_GA", i)
    a("s_mov_b64 exec, -1")
    if OTW == 1:
        a("s_cmp_eq_u32 s92, 0\ns_cbranch_scc1 M_NOW\ns_setprio 0")
        wwork()
        a("s_setprio 2\nM_NOW:")
    a("s_mov_b32 s92, 0")
    for i in range(4): a(f"v_mov_b32 v{t4+i}, {DUMMY}")
    a(f"v_lshlrev_b32 v{t0}, 4, v0\nv_lshlrev_b32 v{t1}, 2, v0\ns_waitcnt lgkmcnt(0)\ns_barrier")
    def stage(js):
        for j in ([] if YM else js):
            a(f"""
            s_sub_i32 s{sA}, s{sNS}, {32*j}
            s_add_u32 m0, s{sSTB}, {1024*j}
            v_cmpx_gt_i32 vcc, s{sA}, v{lh}
            buffer_load_dwordx4 v{SG+j}, s[{sEM}:{sEM+3}], 0 offen {LD} lds
            """)
        a("s_mov_b64 exec, -1")
    NS1 = int(OPT["ns1"]); NS2 = int(OPT["ns2"])
    stage(range(NS1))
    XW = int(OPT["xw"])
    def pwarm():
        if XW:
            a(f"""
            s_lshr_b32 s{sA}, s2, 3
            s_mul_i32 s{sA}, s{sA}, {XW*128}
            s_add_u32 s{sA}, s{sA}, {XE*4096}
            v_lshl_add_u32 v{tt}, v{lane}, 3, s{sW}
            v_cmpx_gt_u32 vcc, {XW}, v{tt}
            v_lshlrev_b32 v{tt}, 7, v{tt}
            buffer_load_dword v{vCr+4}, v{tt}, s[{sP}:{sP+3}], s{sA} offen sc1
            s_mov_b64 exec, -1
            """)
    assert 2 * LSZ == 4 * 8192 + 2048
    for i in range(4): a(f"ds_write_b128 v{t0}, {v(t4,4)} offset:{L_LS+8192*i}")
    a(f"ds_write_b32 v{t1}, v{t4} offset:{L_LS+8192*4}")
    a(f"""
    s_mov_b32 s75, {L_C8}
    s_mov_b64 exec, 1
    ds_add_u32 v{nta}, v{fl0} offset:{L_NT}
    ds_max_u32 v{nta}, v{fl0+1} offset:{L_MX}
    """)
    skip("M_RK")
    for i in ORD:
        a(f"""
        s_mov_b64 exec, {mk(i)}
        s_waitcnt vmcnt({i+NS1})
        v_and_b32 v{NA+i}, 63, v{RC+i}
        v_bfe_u32 v{tt}, v{RC+i}, 18, 3
        v_add_u32 v{NA+i}, s{sSO}, v{NA+i}
        v_lshl_add_u32 v{CA+i}, v{NA+i}, 2, s75
        v_lshl_add_u32 v{CA+i}, v{tt}, 9, v{CA+i}
        ds_add_rtn_u32 v{RK+i}, v{CA+i}, v{one}
        """)
        after("M_RK", i)
    def pack(lab):
        a(f"s_movk_i32 s{sB}, {CH}\ns_mov_b32 s74, {int(OPT['epf'])*128}")
        skip(lab)
        for i in ORD:
            a(f"""
            v_lshrrev_b32 v{t0}, 12, v{G+i}
            v_lshrrev_b32 v{tt}, 21, v{RC+i}
            v_bfe_i32 v{t1}, v{G+i}, 11, 1
            v_mad_u32_u24 v{tt}, v{t0}, s{sB}, v{tt}
            v_and_b32 v{t1}, {M0}, v{t1}
            v_bfe_u32 v{RC+i}, v{RC+i}, 6, 15
            v_add3_u32 v{G+i}, v{t1}, v{tt}, s{sDF}
            v_lshl_add_u32 v{RC+i}, v{RC+i}, 7, v{NA+i}
            v_lshlrev_b32 v{NA+i}, 3, v{NA+i}
            """)
            if i < 4 and not YM:
                a(f"""
                s_sub_i32 s{sA}, s{sNS}, {64*i}
                v_cmp_gt_i32 vcc, s{sA}, v{lane}
                v_add_u32 v{tt}, {2048*i}, v{sac}
                s_nop 0
                v_cndmask_b32 v{G+i}, v{G+i}, v{tt}, vcc
                """)
            if int(OPT["epf"]):
                a(f"s_mov_b64 exec, {mk(i)}\nv_cmpx_gt_u32 vcc, s74, v{RC+i}" + ("" if YM or i >= 4 else f"\nv_cmpx_le_u32 vcc, s{sDF}, v{G+i}") + f"\nbuffer_load_dword v{vCr+4}, v{G+i}, s[{sE}:{sE+3}], 0 idxen\ns_mov_b64 exec, -1")
            after(lab, i)
    a("s_mov_b64 exec, -1")
    stamp("pro", 3)
    a(f"""
    s_cmp_eq_u32 s{sW}, 0
    s_cbranch_scc1 M_PK0
    s_lshl_b32 s{sA}, s{sW}, 8
    s_add_u32 s{sA}, s{sA}, {L_C8 - 256}
    v_lshl_add_u32 v{S4}, v{lane}, 2, s{sA}
    v_mov_b32 v{Q+8}, 0
    s_waitcnt lgkmcnt(0)
    s_barrier
    """)
    stamp("pro", 4)
    a(f"s_cmp_gt_u32 s{sW}, 2\ns_cbranch_scc1 M_NOPFX")
    for j in range(3): a(f"ds_read2st64_b32 {v(Q+2*j,2)}, v{S4} offset0:{4*j} offset1:{4*j+2}")
    a(f"s_waitcnt lgkmcnt(0)\nv_mov_b32 v{Q+9}, v{Q}")
    for j in range(1, 6): a(f"v_add_u32 v{Q+9+j}, v{Q+8+j}, v{Q+j}")
    for j in range(4): a(f"ds_write2st64_b32 v{S4}, v{Q+8+2*j}, v{Q+9+2*j} offset0:{C8O//256+4*j} offset1:{C8O//256+4*j+2}")
    a("M_NOPFX:\ns_setprio 0")
    stage(range(NS1, NS2)); pack("M_PB")
    a("s_waitcnt lgkmcnt(0)\ns_barrier\ns_branch M_P4E")
    d0, d1, f0, f1, k0, k1, vL, vR, ks, a4, l0, l1, o0, o1, cn, ci = [Q + i for i in range(16)]
    m0_, B0, m1_, B1 = S4, S4+1, S4+2, S4+3
    a(f"""
    M_PK0:
    s_setprio 3
    v_lshlrev_b32 v{a4}, 3, v{lane}
    v_lshlrev_b32 v{cn}, 2, v{lane}
    v_add_u32 v{cn}, {L_C8}, v{cn}
    v_sub_u32 v{ci}, 31, v{m}
    v_lshlrev_b32 v{ci}, 2, v{ci}
    s_mov_b32 s75, {f32(4194304.0)}
    s_waitcnt lgkmcnt(0)
    s_barrier
    """)
    stamp("pro", 4)
    a(f"ds_read_b32 v{ks}, v{nta} offset:{L_NT}")
    for j in range(7): a(f"ds_read2st64_b32 {v(FX+2*j,2)}, v{cn} offset0:{2*j} offset1:{2*j+1}")
    a(f"""
    s_waitcnt lgkmcnt(4)
    v_readfirstlane_b32 s{sL}, v{ks}
    v_add3_u32 v{d0}, v{FX}, v{FX+2}, v{FX+4}
    v_add3_u32 v{d1}, v{FX+1}, v{FX+3}, v{FX+5}
    s_lshr_b32 s{sL}, s{sL}, 8
    s_add_u32 s{sL}, s{sL}, 2
    s_waitcnt lgkmcnt(0)
    v_add3_u32 v{d0}, v{d0}, v{FX+6}, v{FX+8}
    v_add3_u32 v{d1}, v{d1}, v{FX+7}, v{FX+9}
    v_add3_u32 v{d0}, v{d0}, v{FX+10}, v{FX+12}
    v_add3_u32 v{d1}, v{d1}, v{FX+11}, v{FX+13}
    v_cvt_f32_u32 v{f0}, v{d0}
    v_cvt_f32_u32 v{f1}, v{d1}
    M_LS:
    s_add_u32 s{sL}, s{sL}, 1
    s_cmp_gt_u32 s{sL}, {LMAX}
    s_cbranch_scc1 M_P4W
    v_cvt_f32_u32 v{vL}, s{sL}
    v_rcp_f32 v{vR}, v{vL}
    v_add_f32 v{vL}, -0.5, v{vL}
    v_add_f32 v{k0}, v{f0}, v{vL}
    v_add_f32 v{k1}, v{f1}, v{vL}
    v_mul_f32 v{k0}, v{k0}, v{vR}
    v_mul_f32 v{k1}, v{k1}, v{vR}
    v_cvt_u32_f32 v{k0}, v{k0}
    v_cvt_u32_f32 v{k1}, v{k1}
    v_add_u32 v{ks}, v{k0}, v{k1}
    """)
    fillers = [f"v_cvt_f32_u32 v{l0}, v{k0}", f"v_cvt_f32_u32 v{l1}, v{k1}",
               f"v_rcp_f32 v{m0_}, v{l0}", f"v_rcp_f32 v{m1_}, v{l1}",
               f"v_add_f32 v{l0}, v{l0}, v{f0}", f"v_add_f32 v{l1}, v{l1}, v{f1}",
               f"v_add_f32 v{l0}, -0.5, v{l0}", f"v_add_f32 v{l1}, -0.5, v{l1}",
               f"v_mul_f32 v{l0}, v{l0}, v{m0_}", f"v_mul_f32 v{l1}, v{l1}, v{m1_}",
               f"v_cvt_u32_f32 v{l0}, v{l0}", f"v_cvt_u32_f32 v{l1}, v{l1}"]
    for n, stp in enumerate(steps):
        a(f"{fillers[2*n]}\n{fillers[2*n+1]}\nv_add_u32_dpp v{ks}, v{ks}, v{ks} {stp}")
    a(f"""
    v_lshlrev_b32 v{l0}, 2, v{l0}
    v_readlane_b32 s{sA}, v{ks}, 63
    v_lshlrev_b32 v{l1}, 2, v{l1}
    s_cmp_gt_u32 s{sA}, 256
    s_cbranch_scc1 M_LS
    ds_add_rtn_u32 v{o0}, v{l0}, v{k0} offset:{L_CNT}
    ds_add_rtn_u32 v{o1}, v{l1}, v{k1} offset:{L_CNT}
    ds_read_b32 v{cn}, v{ci} offset:{L_CNT}
    v_mul_f32 v{m0_}, s75, v{m0_}
    v_mul_f32 v{m1_}, s75, v{m1_}
    v_cvt_u32_f32 v{m0_}, v{m0_}
    v_cvt_u32_f32 v{m1_}, v{m1_}
    v_add_u32 v{m0_}, 2, v{m0_}
    v_add_u32 v{m1_}, 2, v{m1_}
    v_lshlrev_b32 v{B0}, 2, v{k0}
    v_lshlrev_b32 v{B1}, 2, v{k1}
    v_sub_u32 v{B0}, 1024, v{B0}
    v_sub_u32 v{B1}, 1024, v{B1}
    v_sub_u32 v{l0}, 124, v{l0}
    v_sub_u32 v{l1}, 124, v{l1}
    s_waitcnt lgkmcnt(0)
    v_mov_b32 v{ks}, v{cn}
    """)
    for stp in steps[:5]:
        a(f"s_nop 1\nv_add_u32_dpp v{ks}, v{ks}, v{ks} {stp}")
    a(f"""
    v_sub_u32 v{ks}, v{ks}, v{cn}
    ds_bpermute_b32 v{d0}, v{l0}, v{ks}
    ds_bpermute_b32 v{d1}, v{l1}, v{ks}
    ds_write_b32 v{ci}, v{ks} offset:{L_BAS}
    s_waitcnt lgkmcnt(1)
    v_add_u32 v{o0}, v{o0}, v{d0}
    v_add_u32 v{o1}, v{o1}, v{d1}
    v_lshl_or_b32 v{m0_}, v{o0}, 24, v{m0_}
    v_lshl_or_b32 v{m1_}, v{o1}, 24, v{m1_}
    ds_write2st64_b64 v{a4}, {v(m0_,2)}, {v(m1_,2)} offset0:0 offset1:1
    M_P4W:
    v_mov_b32 v{ks}, s{sL}
    ds_write_b32 v{nta}, v{ks} offset:{L_MX+4}
    s_waitcnt lgkmcnt(0)
    s_barrier
    """)
    stage(range(NS1, NS2)); pack("M_PA")
    u0, nn = Q + 20, Q + 26
    a("M_P4E:")
    stamp("pro", 5)
    a(f"""
    ds_read_b64 {v(u0,2)}, v{nta} offset:{L_MX}
    v_lshlrev_b32 v{tt}, 2, v{m}
    ds_read_b32 v{u0+2}, v{tt} offset:{L_CNT}
    ds_read_b32 v{u0+3}, v{tt} offset:{L_BAS}
    s_lshr_b32 s{sA}, s{sW}, 1
    s_lshl_b32 s{sA}, s{sA}, 5
    v_add_u32 v{nn}, s{sA}, v{m}
    v_lshlrev_b32 v{tt}, 3, v{nn}
    ds_read_b64 {v(u0+4,2)}, v{tt} offset:{L_TB}
    """)
    skip("M_TR")
    for i in ORD:
        a(f"s_mov_b64 exec, {mk(i)}\nds_read_b64 {v(TBv+2*i,2)}, v{NA+i} offset:{L_TB}\nds_read_b32 v{OFv+i}, v{CA+i} offset:{C8O}")
        after("M_TR", i)
    a(f"""
    s_mov_b64 exec, -1
    s_lshl_b32 s{sA}, s{sG}, 5
    s_waitcnt lgkmcnt(12)
    v_readfirstlane_b32 s{sNMAX}, v{u0}
    v_readfirstlane_b32 s{sL}, v{u0+1}
    v_add_u32 v{u0+2}, v{u0+2}, v{u0+3}
    v_cmp_ge_u32 vcc, s{sA}, v{u0+3}
    v_cmp_lt_u32 s[52:53], s{sA}, v{u0+2}
    s_and_b64 s[52:53], s[52:53], vcc
    s_ff1_i32_b32 s{sT}, s52
    s_max_i32 s{sT}, s{sT}, 0
    s_cmp_le_u32 s{sL}, {LMAX}
    s_cbranch_scc1 M_P5
    s_mov_b32 s{sCAP}, 256
    s_branch M_AGAIN
    M_P5:
    """)
    skip("M_SC")
    for i in ORD:
        mm, BB = TBv + 2*i, TBv + 2*i + 1
        a(f"""
        s_mov_b64 exec, {mk(i)}
        s_waitcnt lgkmcnt({2*i + max(0, 5-i)})
        v_add_u32 v{RK+i}, v{RK+i}, v{OFv+i}
        v_lshrrev_b32 v{tt}, 24, v{mm}
        v_mul_u32_u24 v{mm}, v{mm}, v{RK+i}
        v_add_lshl_u32 v{tt}, v{tt}, v{RK+i}, 2
        v_lshrrev_b32 v{mm}, 22, v{mm}
        v_mad_u32_u24 v{tt}, v{mm}, v{BB}, v{tt}
        ds_write2st64_b32 v{tt}, v{RC+i}, v{G+i} offset0:{L_LS//256} offset1:{L_LE//256}
        """)
        after("M_SC", i)
    ca0, ca1, ca2, ca3, kk, oa, fa, da = [EP + i for i in range(8)]
    epi_setup = f"""
    s_lshl_b32 s{sA}, s{sSB}, 7
    s_add_u32 s{sA}, s{sA}, {L_XR}
    s_movk_i32 s{sB}, 0x3fc
    s_movk_i32 s75, 0x3f8
    v_mov_b32 v{kk}, v{u0+5}
    v_lshrrev_b32 v{ca0}, 24, v{u0+4}
    v_mul_u32_u24 v{ca0}, 272, v{ca0}
    v_lshl_add_u32 v{ca0}, v{h16}, 1, v{ca0}
    v_add_u32 v{ca0}, s{sA}, v{ca0}
    v_mov_b32 v{da}, {L_ZR}
    v_cmp_gt_u32 s[56:57], s{sB}, v{kk}
    v_cmp_gt_u32 s[58:59], s75, v{kk}
    v_add_u32 v{ca1}, 272, v{ca0}
    v_add_u32 v{ca2}, 544, v{ca0}
    v_add_u32 v{ca3}, 816, v{ca0}
    v_cmp_gt_u32 vcc, 0x400, v{kk}
    v_cndmask_b32 v{ca1}, v{da}, v{ca1}, s[56:57]
    v_cndmask_b32 v{ca2}, v{da}, v{ca2}, s[58:59]
    v_cndmask_b32 v{ca0}, v{da}, v{ca0}, vcc
    v_cmp_gt_u32 vcc, s{sNB}, v{nn}
    v_lshlrev_b32 v{oa}, 7, v{nn}
    v_lshl_add_u32 v{oa}, v{h16}, 1, v{oa}
    s_lshl_b32 s{sA}, s{sW}, 11
    v_cndmask_b32 v{oa}, v{hz}, v{oa}, vcc
    v_add_u32 v{fa}, s{sA}, v{l16}
    v_mul_u32_u24 v{da}, 272, v{m}
    v_add3_u32 v{da}, v{da}, v{h16}, s{sXRB}
    """
    a(f"""
    s_mov_b64 exec, -1
    s_setprio 0
    """)
    stage(range(NS2, 7)); pwarm()
    a("s_waitcnt lgkmcnt(0)\ns_barrier")
    stamp("top", 3); stamp("pro", 6); stamp("pri", 1)
    a(f"s_cmp_lg_u32 s{sT}, 0\ns_cbranch_scc1 M_GO")
    a(epi_setup)
    a("s_waitcnt vmcnt(0)\ns_barrier\ns_branch M_BEND\nM_GO:")
    S = []
    ef = OPT["eflags"]
    def le_read(t, p): return (f"ds_read_b32 v{RP+2*p}, v{vLE} offset:{L_LE+1024*t}", f"le{t}")
    def ls_read(t, dst): return (f"ds_read_b128 {v(dst,4)}, v{vLS} offset:{L_LS+1024*t}", f"ls{t}")
    def st_addr(p): return f"v_xor_b32 v{sa}, v{RP+2*p}, v{h16}"
    def st_read(t): return (f"ds_read_b128 {Es(t)}, v{sa}", f"st{t}")
    def d_pre(t, p): return [f"v_cmp_le_u32 vcc, s{sDF}, v{RP+2*p}", f"v_and_or_b32 v{vCr+t%5}, v{RP+2*p}, s{sB30}, 1.0"]
    def d_load(t, p): return ["s_mov_b64 exec, vcc", (f"buffer_load_dwordx4 {Es(t)}, {v(RP+2*p,2)}, s[{sE}:{sE+3}], 0 idxen offen {ef}", f"D{t}"), "s_mov_b64 exec, -1"]
    def x_addr(src): return [f"v_and_or_b32 v{S4+i}, v{src+i}, s{sM7}, v{CX+i}" for i in range(4)]
    def x_dma(t, nop=True, reg=None, soff="0", tag=None):
        o = []
        for i in range(4):
            sr = sP
            o += [f"s_add_u32 m0, s{sXRB}, {(t&1)*4096+i*1024}"] + (["s_nop 0"] if nop else []) + \
                 [(f"buffer_load_dwordx4 v{(reg or S4)+i}, s[{sr}:{sr+3}], {soff} offen {LD} lds", tag or f"X{t}")]
        return o
    def fx_read(t, sx, tag=None): return (f"ds_read_b128 {v(FX+4*sx,4)}, v{XA+sx} offset:{(t&1)*4096}", tag or f"fx{t}")
    def chain(nh, t):
        Dh = v(D + 16 * nh, 16)
        return [f"v_mfma_f32_32x32x16_bf16 {Dh}, {W3f(nh)}, {Es(t)}, {v(Q+16*nh,16)}"] + \
               ([f"v_smfmac_f32_32x32x32_bf16 {Dh}, {Idf(0)}, {v(FX+8*nh,8)}, v{W+4}"] if int(OPT["smf"]) else
                [f"v_mfma_f32_32x32x16_bf16 {Dh}, {Idf(j)}, {v(FX+8*nh+4*j,4)}, {Dh}" for j in range(2)])
    nd, L1, L2 = D, D + 4, SG
    def ps(i): return [f"s_memrealtime s[{76+2*i}:{77+2*i}]", "s_waitcnt lgkmcnt(0)"] if MODE == "pri" else []
    S += [ls_read(0, S4), (f"ds_read_b32 v{nd}, v{vLE} offset:{L_LS}", "nd")] + [le_read(j, j) for j in range(4)] + [ls_read(1, L1), ls_read(2, L2), ("@W", None, "nd")]
    S += x_addr(S4)
    xa_ = [f"v_bfe_u32 v{nd+1}, v{nd}, 4, 3", f"v_mul_u32_u24 v{nd+1}, {XRS}, v{nd+1}", f"v_bfe_u32 v{nd+2}, v{nd}, 1, 3", f"v_xor_b32 v{nd+2}, v{nd+2}, v{h}"]
    dm = x_dma(0, nop=False)
    for i in range(4): S += [dm[2*i], xa_[i], dm[2*i+1]]
    S += [f"v_and_b32 v{nd}, 15, v{nd}", f"v_lshl_add_u32 v{nd+1}, v{nd}, 7, v{nd+1}", f"v_lshl_add_u32 v{nd+1}, v{nd+2}, 4, v{nd+1}", f"v_add_u32 v{nd+1}, {L_XR+XRO}, v{nd+1}"]
    for sx in range(4):
        S += [(f"ds_read_b128 {v(FX+4*sx,4)}, v{nd+1}", "xd")] + ([f"v_xor_b32 v{nd+1}, {(32, 96, 32)[sx]}, v{nd+1}"] if sx < 3 else [])
    def dl(j): return d_pre(j, j) + [f"s_not_b64 s[{60+2*j}:{61+2*j}], vcc"] + d_load(j, j)
    S += [("@W", None, "ls2")] + dl(0) + ps(2)
    ep = [l.strip() for l in epi_setup.strip().split("\n")]
    S += ep + x_addr(L1) + [("@W", None, "xd")]
    for nh in range(2):
        for sx in range(4):
            S.append(f"v_mfma_f32_32x32x16_bf16 {v(Q+16*nh,16)}, {v(AG+(sx*2+nh)*4,4)}, {v(FX+4*sx,4)}, {'0' if sx == 0 else v(Q+16*nh,16)}")
    S += ["s_waitcnt vmcnt(5)"] + ps(3) + ["s_barrier"] + ps(4)
    S += [st_addr(0), "s_mov_b64 exec, s[60:61]", st_read(0), "s_mov_b64 exec, -1"]
    for j in range(1, 4): S += [st_addr(j), st_read(j)]
    S += [f"s_mov_b32 s74, {f32(-LOG2E)}", f"s_mov_b32 s75, {f32(-LOG2E)}"]
    S += [("@W", "D0", None)] + ps(5) + [fx_read(0, sx) for sx in range(4)]
    S += [f"v_pk_mul_f32 {v(Q+2*i,2)}, {v(Q+2*i,2)}, s[74:75]" for i in range(16)] + [("@W", None, "fx0")]
    c00 = chain(0, 0)
    S += [c00[0], "s_nop 7", "s_nop 7"] + c00[1:] + d_pre(1, 1) + d_load(1, 1) + x_dma(1) + [f"v_and_or_b32 v{L2+i}, v{L2+i}, s{sM7}, v{CX+i}" for i in range(4)] + ps(6)
    if MODE: S += [f"s_mov_b32 s90, s{sT}", f"s_mov_b32 s98, s{sL}", "s_memtime s[94:95]", "s_waitcnt lgkmcnt(0)"]
    if MODE == "top": S += ["s_memrealtime s[84:85]", "s_waitcnt lgkmcnt(0)"]
    def phase(nh, t, mf, fill):
        Db, Ab = D + 16*nh, AG + 16*nh
        c = vCr + t % 5
        cp = f"{v(c & ~1, 2)} " + ("op_sel_hi:[1,0]" if c % 2 == 0 else "op_sel:[0,1] op_sel_hi:[1,1]")
        seq = []
        mf = mf + [None] * (3 - len(mf))
        for q in range(2):
            ex = [f"v_exp_f32 v{T+i}, v{Db+8*q+i}" for i in range(8)]
            rc = [f"v_rcp_f32 v{T+i}, v{T+i}" for i in range(8)]
            ad = [f"v_pk_add_f32 {v(T+2*i,2)}, {v(T+2*i,2)}, {cp}" for i in range(4)]
            fm = [f"v_pk_fma_f32 {v(Ab+8*q+2*i,2)}, {v(Db+8*q+2*i,2)}, {v(T+2*i,2)}, {v(Ab+8*q+2*i,2)}" for i in range(4)]
            if t == 0: fm = [f"v_pk_mul_f32 {v(Ab+8*q+2*i,2)}, {v(Db+8*q+2*i,2)}, {v(T+2*i,2)}" for i in range(4)]
            if q == 0: seq += [mf[0]] + ex + ad + [mf[1]] + rc + fm
            else: seq += [mf[2]] + ex + ad + rc + fm
        res = []; n = 0
        for l in seq:
            if l is None: continue
            res.append(l)
            if l.startswith(("v_exp", "v_rcp")):
                res += fill.get(n, []); n += 1
        def txt(l): return l[0] if isinstance(l, tuple) else l
        ab = OPT["abl"]
        if "novm" in ab: res = [l for l in res if not txt(l).startswith(("buffer_", "s_add_u32 m0", "s_mov_b64 exec")) and not (txt(l) == "@W" and l[1])]
        if "nolds" in ab: res = [l for l in res if not txt(l).startswith("ds_") and not (txt(l) == "@W" and l[2])]
        if "nomf" in ab: res = [l for l in res if not txt(l).startswith(("v_mfma", "v_smf"))]
        if "nova" in ab: res = [l for l in res if not txt(l).startswith(("v_and_or", "v_xor", "v_cmp"))]
        return res
    for t in range(LMAX):
        fill = {}
        if t + 4 < LMAX:
            fill[0] = [le_read(t + 4, 0)]
            fill[10] = [("@W", None, f"le{t+4}"), st_addr(0)]; fill[11] = [st_read(t + 4)]
        if t + 3 < LMAX: fill[1] = [ls_read(t + 3, S4)]
        if t + 1 < LMAX:
            fill[16] = [("@W", f"X{t+1}", None)]
            for sx in range(4): fill[17+sx] = [fx_read(t + 1, sx)]
        if t + 3 < LMAX:
            xa = x_addr(S4)
            fill[24] = [("@W", None, f"ls{t+3}"), xa[0]]; fill[25] = [xa[1]]; fill[26] = [xa[2]]; fill[27] = [xa[3]]
        if t == 0:
            fill[2] = d_pre(2, 2); fill[3] = d_load(2, 2)
            dm = x_dma(2, nop=False, reg=L2)
            for i, pos in enumerate((4, 5, 6, 7, 12, 13, 14, 15)): fill[pos] = [dm[i]]
            fill[28] = d_pre(3, 3); fill[29] = d_load(3, 3)
        if int(OPT["prio"]) == 1: S.append("s_setprio 1")
        S += phase(0, t, chain(1, t), fill)
        if int(OPT["prio"]) == 1: S.append("s_setprio 0")
        fill = {}
        if t + 1 < LMAX: fill[0] = [("@W", None, f"fx{t+1}")]
        if t + 3 < LMAX:
            dm = x_dma(t + 3, nop=False)
            for i in range(8): fill[1+i] = [dm[i]]
        if t + 4 < LMAX:
            dp = d_pre(t + 4, 0)
            fill[9] = [dp[0]]; fill[12] = d_load(t + 4, 0); fill[13] = [dp[1]]
        fill[31] = [f"s_cmp_eq_u32 s{sT}, {t+1}"]
        S += phase(1, t, chain(0, t + 1) if t + 1 < LMAX else [], fill)
        if t + 1 < LMAX: S.append("s_cbranch_scc1 M_FLUSH")
    emit(resolve(S))
    a("M_FLUSH:")
    stamp("top", 5); stamp("epi", 1)
    if MODE: a("s_memtime s[96:97]\ns_waitcnt lgkmcnt(0)")
    a("s_waitcnt vmcnt(0)")
    for i in range(8):
        a(f"ds_write_b128 v{da}, {v(AG+4*i,4)} offset:{32*i}")
    A0, A1, A2, OWN, PAR = D, D + 16, Q, Q + 16, Q + 24
    a(f"""
    M_BEND:
    v_cmp_gt_u32 vcc, 0x3f4, v{kk}
    s_mov_b32 s74, {f32(-1.0/LOG2E)}
    s_mov_b32 s75, {f32(-1.0/LOG2E)}
    s_waitcnt lgkmcnt(0)
    """)
    stamp("epi", 2)
    a("s_barrier")
    stamp("epi", 3)
    offs = (0, 16, 64, 80)
    for i in range(4):
        for buf, ca in ((A0, ca0), (A1, ca1), (A2, ca2)):
            a(f"ds_read_b128 {v(buf+4*i,4)}, v{ca} offset:{offs[i]}")
    for i in range(4):
        a(f"s_waitcnt lgkmcnt({9-3*i})")
        for j in range(2): a(f"v_pk_add_f32 {v(A0+4*i+2*j,2)}, {v(A0+4*i+2*j,2)}, {v(A1+4*i+2*j,2)}")
        for j in range(2): a(f"v_pk_add_f32 {v(A0+4*i+2*j,2)}, {v(A0+4*i+2*j,2)}, {v(A2+4*i+2*j,2)}")
    a(f"""
    s_cbranch_vccz M_SUMD
    s_movk_i32 s{sA}, 0x3f4
    M_SUML:
    s_mov_b64 exec, vcc
    """)
    for i in range(4):
        a(f"ds_read_b128 {v(A1+4*i,4)}, v{ca3} offset:{offs[i]}")
    a(f"s_sub_u32 s{sA}, s{sA}, 4\nv_add_u32 v{ca3}, 272, v{ca3}\ns_waitcnt lgkmcnt(0)")
    for i in range(8): a(f"v_pk_add_f32 {v(A0+2*i,2)}, {v(A0+2*i,2)}, {v(A1+2*i,2)}")
    a(f"""
    s_mov_b64 exec, -1
    v_cmp_gt_i32 vcc, s{sA}, v{kk}
    s_nop 4
    s_cbranch_vccnz M_SUML
    M_SUMD:
    s_cmp_le_u32 s{sNMAX}, s{sCAP}
    s_cbranch_scc1 M_EPI
    """)
    srd_off(a, 56, 10, WS_SP, 2048 * 4096)
    a(f"""
    s_lshl_b32 s{sA}, s2, 3
    s_add_u32 s{sA}, s{sA}, s{sW}
    s_lshl_b32 s{sA}, s{sA}, 12
    s_cmp_eq_u32 s{sBASE}, 0
    s_cbranch_scc1 M_NOLD
    """)
    for i in range(4):
        a(f"buffer_load_dwordx4 {v(A1+4*i,4)}, v{l16}, s[56:59], s{sA} offen offset:{1024*i} sc0 sc1")
    a("s_waitcnt vmcnt(0)")
    for i in range(8): a(f"v_pk_add_f32 {v(A0+2*i,2)}, {v(A0+2*i,2)}, {v(A1+2*i,2)}")
    a(f"""
    M_NOLD:
    s_add_u32 s{sBASE}, s{sBASE}, s{sCAP}
    s_cmp_ge_u32 s{sBASE}, s{sNMAX}
    s_cbranch_scc1 M_EPI
    """)
    for i in range(4):
        a(f"buffer_store_dwordx4 {v(A0+4*i,4)}, v{l16}, s[56:59], s{sA} offen offset:{1024*i} sc0 sc1")
    a(f"""
    M_AGAIN:
    s_load_dwordx2 s[60:61], s[0:1], 32
    s_waitcnt vmcnt(0) lgkmcnt(0)
    s_barrier
    """)
    srd(a, 56, 60, 18432)
    a(f"""
    s_lshl_b32 s{sA}, s{sW}, 10
    s_add_u32 s{sA}, s{sA}, 8192
    s_add_u32 m0, s{sA}, {S_W}
    v_lshlrev_b32 v{t0}, 2, v0
    buffer_load_dwordx4 v{l16}, s[56:59], s{sA} offen lds
    ds_write_b32 v{t0}, v{nta}
    v_add_u32 v{t0}, {L_C8}, v{t0}
    ds_write_b32 v{t0}, v{nta}
    ds_write_b32 v{t0}, v{nta} offset:2048
    """)
    xrows()
    a("s_waitcnt vmcnt(0)\ns_barrier")
    w2read()
    a(f"""
    s_waitcnt lgkmcnt(0)
    s_barrier
    s_branch M_BATCH
    M_EPI:
    """)
    srd(a, 56, 8, 3200000)
    for i in range(8): a(f"v_pk_mul_f32 {v(A0+2*i,2)}, {v(A0+2*i,2)}, s[74:75]")
    for i in range(8): a(f"v_cvt_pk_bf16_f32 v{OWN+i}, v{A0+2*i}, v{A0+2*i+1}")
    a(f"""
    ds_write_b128 v{fa}, {v(OWN,4)} offset:{L_FE}
    ds_write_b128 v{fa}, {v(OWN+4,4)} offset:{L_FE+1024}
    v_xor_b32 v{fa}, 0x800, v{fa}
    v_mfma_f32_32x32x16_bf16 {v(U0,16)}, {v(WU,4)}, {v(OWN,4)}, {v(U0,16)}
    v_mfma_f32_32x32x16_bf16 {v(U0,16)}, {v(WU+4,4)}, {v(OWN+4,4)}, {v(U0,16)}
    s_lshl_b32 s{sA}, s{sSB}, 6
    s_add_u32 s{sA}, s{sA}, s{sS0}
    s_mov_b32 s74, {f32(-LOG2E)}
    s_mov_b32 s75, {f32(-LOG2E)}
    s_waitcnt lgkmcnt(0)
    s_barrier
    """)
    stamp("epi", 4)
    a(f"""
    ds_read_b128 {v(PAR,4)}, v{fa} offset:{L_FE}
    ds_read_b128 {v(PAR+4,4)}, v{fa} offset:{L_FE+1024}
    s_waitcnt lgkmcnt(1)
    v_mfma_f32_32x32x16_bf16 {v(U0,16)}, {v(WU+8,4)}, {v(PAR,4)}, {v(U0,16)}
    s_waitcnt lgkmcnt(0)
    v_mfma_f32_32x32x16_bf16 {v(U0,16)}, {v(WU+12,4)}, {v(PAR+4,4)}, {v(U0,16)}
    s_nop 11
    """)
    for q in range(2):
        b = 8 * q
        for i in range(4): a(f"v_pk_mul_f32 {v(AG+b+2*i,2)}, {v(U0+b+2*i,2)}, s[74:75]")
        for i in range(8): a(f"v_exp_f32 v{AG+b+i}, v{AG+b+i}")
        for i in range(4): a(f"v_pk_add_f32 {v(AG+b+2*i,2)}, {v(AG+b+2*i,2)}, 1.0 op_sel_hi:[1,0]")
        for i in range(8): a(f"v_rcp_f32 v{AG+b+i}, v{AG+b+i}")
        for i in range(4): a(f"v_pk_mul_f32 {v(AG+b+2*i,2)}, {v(U0+b+2*i,2)}, {v(AG+b+2*i,2)}")
        for i in range(4): a(f"v_cvt_pk_bf16_f32 v{D+4*q+i}, v{AG+b+2*i}, v{AG+b+2*i+1}")
        a(f"buffer_store_dwordx4 {v(D+4*q,4)}, v{oa}, s[56:59], s{sA} offen offset:{16*q}")
    if MODE:
        stamp("epi", 5)
        a("s_waitcnt vmcnt(0)")
        stamp("top", 6); stamp("epi", 6)
        a(f"s_lshl_b32 s74, s2, 3\ns_add_u32 s74, s74, s{sW}\ns_lshl_b32 s74, s74, 6\ns_add_u32 s74, s74, {WS_ST+0x80000}\ns_load_dwordx2 s[10:11], s[0:1], 64\ns_waitcnt lgkmcnt(0)\ns_add_u32 s52, s10, s74\ns_addc_u32 s53, s11, 0\nv_mov_b32 v0, 0")
        for i in range(8):
            a(f"v_mov_b32 v1, s{76+2*i}\nglobal_store_dword v0, v1, s[52:53] offset:{4*i}")
        a("s_sub_u32 s96, s96, s94\nv_mov_b32 v1, s96\nglobal_store_dword v0, v1, s[52:53] offset:32\nv_mov_b32 v1, s98\nglobal_store_dword v0, v1, s[52:53] offset:36")
    a("M_END:\ns_endpgm")
    return R.n

hdr = f"""; MPNN edge-MLP + segment-sum + node update in one launch of 256 co-resident workgroups:
; @launch grid=(256,1,1) block=(512,1,1) lds={MAIN_LDS}
.amdgcn_target "amdgcn-amd-amdhsa--gfx950"
.text
.globl {KN}
.type {KN},@function
"""
nv = gen()
txt = hdr + a.text() + '.section .rodata,"a"\n.p2align 6\n' + kdesc(KN, 256, 102)
open(sys.argv[1], "w").write(txt)
print("vgprs", nv, "lds", MAIN_LDS)
```

```python
import sys, struct
from asmlib import *

OPT = dict(abl="", stamp=False, eflags="", M0=1152, ns1=3, es='0,3,2,0', xpos=0, df=1, hlp=0, es0=0, cpf=1, osl=4, xw=0, fst=5, cem=1, Y=False, epf=0, skw=256, xe=0, tlb=0, stl=0, eld='', ild='', xld='', wso=0, tch=0, st='sc1', oe=0, otw=2, smf=1, ns2=7, prio=1, ld="sc1")
for arg in sys.argv[2:]:
    k, val = arg.split("=")
    OPT[k] = {"True": True, "False": False}.get(val, val.replace("+", " "))
M0 = int(OPT["M0"])
assert M0 % 32 == 0 and M0 <= 1792 and 3200 - M0 <= 2048
LD = OPT["ld"]
YM = OPT["Y"]
if YM: OPT["es"] = "0,0,0,0"; OPT["ns1"] = 0
KN = "standalone__mpnn_edge_mlp__graph_kernel"

NCH, CH = 250, 3200
WS_REC, WS_O, WS_F2, WS_ST, WS_P, WS_SP, WS_EM = 0, 0x440000, 0x680000, 0x700000, 0x800000, 0x1A00000, 0xB20000
SKW = int(OPT["skw"])
OTS, RCS, EMS = 8192 + SKW, 16384 + SKW, M0 * 32 + SKW
LOG2E = 1.4426950408889634
def f32(x): return "0x%08x" % struct.unpack("<I", struct.pack("<f", x))[0]

a = Asm()
MODE = OPT["stamp"]
def stamp(mode, i):
    if MODE == mode or (MODE and mode == "all"):
        a(f"s_memrealtime s[{76+2*i}:{77+2*i}]\ns_waitcnt lgkmcnt(0)")
def emit(l): a("\n".join(l))

def resolve(stream):
    out = []; vm = []; lg = []
    for it in stream:
        if isinstance(it, tuple) and it[0] == "@W":
            parts = []
            if it[1] is not None:
                idx = max(i for i, t in enumerate(vm) if t == it[1]); n = len(vm) - 1 - idx
                assert n <= 63; parts.append(f"vmcnt({n})")
            if it[2] is not None:
                idx = max(i for i, t in enumerate(lg) if t == it[2]); n = len(lg) - 1 - idx
                parts.append(f"lgkmcnt({min(n, 15)})")
            out.append("s_waitcnt " + " ".join(parts)); continue
        txt, tag = it if isinstance(it, tuple) else (it, None)
        if txt.startswith("buffer_"): vm.append(tag)
        if txt.startswith("ds_"): lg.append(tag)
        out.append(txt)
    return out

LMAX = 17
L_TB = 0
L_CNT = 1024
L_NT = L_CNT + 128
L_MX = L_NT + 16
L_BAS = L_MX + 16
L_F2C = 1408
L_ZR = 1536
L_LS = 2048
LSZ = LMAX * 1024
L_LE = L_LS + LSZ
L_ST = L_LE + LSZ
SCAP = 224
L_XR = L_ST + 8 * SCAP * 32
XRS = 8704
MAIN_LDS = L_XR + 8 * XRS
assert MAIN_LDS <= 163840 and L_XR % 4096 == 0
L_C8 = L_XR + XRS
C8O = XRS
GLO = 6144
XRO = 4096
S_W = L_LS
S_WU = L_XR + 4 * XRS
S_CNT = S_W + 18432
S_STA = S_CNT + 2048
S_SRT = S_STA + 2048
S_E = S_SRT + CH * 4
assert S_E + M0 * 32 <= L_XR + 4096
L_FE = L_LS
DUMMY = 0xC0000000
DFLAG = 1 << 24
SPIN = 200000

def gen():
    R = Regs("v", 1, 256)
    vLS = R.alloc("vLS"); vLE = R.alloc("vLE")
    vCr = R.alloc("vCr", 5)
    RP = R.alloc("RP", 8, 2)
    XA = R.alloc("XA", 4); CX = R.alloc("CX", 4)
    S4 = R.alloc("S4", 4, 4); T = R.alloc("T", 8, 4)
    FX = R.alloc("FX", 16, 4); E = R.alloc("E", 16, 4)
    D = R.alloc("D", 32, 4); Q = R.alloc("Q", 32, 4); AG = R.alloc("AG", 32, 4); W = R.alloc("W", 16, 4)
    U0 = R.alloc("U0", 16, 4); WU = R.alloc("WU", 16, 4); EP = R.alloc("EP", 16, 4)
    SG = R.alloc("SG", 8, 4)
    sa = R.alloc("sa"); lane = R.alloc("lane"); l16 = R.alloc("l16"); m = R.alloc("m"); h = R.alloc("h")
    sac = R.alloc("sac"); lh = R.alloc("lh"); hz = R.alloc("hz"); aN = R.alloc("aN"); one = R.alloc("one"); nta = R.alloc("nta")
    h16 = RP + 1
    def Idf(j): return v(W + 4 * j, 4)
    def W3f(nh): return v(W + 8 + nh * 4, 4)
    def Es(t): return v(E + 4 * (t % 4), 4)
    sX, sE, sREC, sEM, sWS, sP = 16, 20, 24, 28, 32, 36
    sW, sSB, sS0, sSO, sN, sBASE, sCNT, sT, sXRB, sA, sB, sCAP = 40, 41, 42, 43, 44, 45, 46, 47, 48, 49, 50, 51
    sNB, sGL, sNMAX, sG, sL, sM7, sB30, sDF, sNS = 70, 71, 72, 73, 12, 13, 14, 15, 3
    sSTB, sOA, sTAG = 99, 93, 100
    t0, t1, t2, t3, t4, t5, t6, t7 = [T + i for i in range(8)]
    def mk(i): return f"s[{54+2*i}:{55+2*i}]"
    ORD = list(range(7, -1, -1))
    def skip(lab):
        a(f"s_cmp_le_u32 s{sCNT}, 384\ns_cbranch_scc1 {lab}6\ns_cmp_le_u32 s{sCNT}, 448\ns_cbranch_scc1 {lab}7")
    def after(lab, i):
        if i >= 6: a(f"{lab}{i}:")
    ne = 0 if "noe" in OPT["abl"] else 1
    steps = [f"row_shr:{sh} row_mask:0xf bank_mask:0xf bound_ctrl:0" for sh in (1, 2, 4, 8)] + ["row_bcast:15 row_mask:0xa bank_mask:0xf", "row_bcast:31 row_mask:0xc bank_mask:0xf"]

    DS_, SR_, CAD, RNK, PR_ = D, D + 8, D + 16, D + 24, Q
    oA, oB, t16, t4_, idx, rA, rB = [Q + 8 + i for i in range(7)]
    nz = Q + 16
    CS = Q + 20
    NA_, NB_ = M0 // 4, (CH - M0) // 4
    DF = int(OPT["df"])
    SDW = "dst_sel:DWORD dst_unused:UNUSED_PAD src0_sel:DWORD src1_sel:"
    a(f".p2align 8\n{KN}:")
    a(f"""
    s_cmp_ge_u32 s2, 256
    s_cbranch_scc1 M_END
    {"s_memrealtime s[76:77]" if MODE else ""}
    s_load_dwordx4 s[56:59], s[0:1], 16
    s_load_dwordx4 s[4:7], s[0:1], 0
    s_load_dwordx4 s[60:63], s[0:1], 32
    s_load_dwordx4 s[8:11], s[0:1], 48
    s_load_dwordx2 s[64:65], s[0:1], 64
    s_memrealtime s[66:67]
    """)
    a(f"""
    s_setprio 2
    """)
    CPF = int(OPT["cpf"])
    if CPF:
        a(f"""
        s_getpc_b64 s[52:53]
        M_PC:
        s_lshr_b32 s{sA}, s2, 3
        s_lshl_b32 s{sA}, s{sA}, 7
        v_lshrrev_b32 v{t1}, 6, v0
        v_lshlrev_b32 v{t1}, 12, v{t1}
        v_add_u32 v{t1}, s{sA}, v{t1}
        v_min_u32 v{t1}, M_END-M_PC, v{t1}
        global_load_dword v{vCr+4}, v{t1}, s[52:53]
        """)
    a(f"""
    v_lshlrev_b32 v{t16}, 4, v0
    v_mov_b32 v{hz}, 0x80000000
    v_cmp_gt_u32 vcc, {NA_}, v0
    s_mul_i32 s{sA}, s2, 12800
    s_mov_b64 s[52:53], vcc
    v_cndmask_b32 v{rA}, v{hz}, v{t16}, vcc
    v_cmp_gt_u32 vcc, {NB_}, v0
    s_add_u32 s{sB}, s{sA}, {M0*4}
    s_mov_b64 s[54:55], vcc
    v_cndmask_b32 v{rB}, v{hz}, v{t16}, vcc
    s_mov_b32 s{sE+2}, 3200000
    s_mov_b32 s{sE+3}, 0x20000
    s_mov_b32 s{sEM+2}, 3200000
    s_mov_b32 s{sEM+3}, 0x20000
    v_lshlrev_b32 v{t4_}, 2, v0
    v_mov_b32 v{nta}, 0
    v_lshrrev_b32 v{t0}, 6, v0
    s_waitcnt lgkmcnt(0)
    """)
    stamp("ka", 1)
    a(f"""
    s_mov_b32 s{sE}, s58
    s_mov_b32 s{sE+1}, s59
    s_mov_b32 s{sEM}, s56
    s_mov_b32 s{sEM+1}, s57
    buffer_load_dwordx4 {v(DS_,4)}, v{rA}, s[{sE}:{sE+3}], s{sA} offen {OPT['ild']}
    buffer_load_dwordx4 {v(DS_+4,4)}, v{rB}, s[{sE}:{sE+3}], s{sB} offen {OPT['ild']}
    {"" if DF else f"buffer_load_dwordx4 {v(SR_,4)}, v{rA}, s[{sEM}:{sEM+3}], s{sA} offen"}
    {"" if DF else f"buffer_load_dwordx4 {v(SR_+4,4)}, v{rB}, s[{sEM}:{sEM+3}], s{sB} offen"}
    ds_write_b32 v{t4_}, v{nta} offset:{S_CNT}
    ds_write_b32 v{t4_}, v{nta}
    v_readfirstlane_b32 s{sW}, v{t0}
    s_setprio 0
    """)
    srd(a, sP, 10, 256)
    a(f"""
    s_cmp_lt_u32 s2, {NCH}
    s_cbranch_scc1 S_NOTAG
    """)
    HLP = int(OPT["hlp"])
    if HLP:
        a(f"""
        v_and_b32 v{t1}, 63, v0
        v_lshl_add_u32 v{t1}, v{t1}, 3, v{t0}
        v_lshlrev_b32 v{t2}, {HLP}, v{t1}
        v_cmpx_gt_u32 vcc, {(WS_EM + 256*EMS + (1<<HLP) - 1) >> HLP}, v{t1}
        global_load_dword v{vCr+4}, v{t2}, s[64:65]
        s_mov_b64 exec, -1
        s_waitcnt vmcnt(0)
        """)
    a(f"""
    s_cmp_lg_u32 s{sW}, 7
    s_cbranch_scc1 S_NOTAG
    s_or_b32 s{sA}, s66, 1
    v_mov_b32 v{nz}, s{sA}
    v_mov_b32 v{nz+1}, s67
    v_mov_b32 v{nz+2}, 0
    v_mov_b32 v{nz+3}, 0
    s_mov_b64 exec, 1
    buffer_atomic_cmpswap_x2 {v(nz,4)}, v{nta}, s[{sP}:{sP+3}], 0 offen sc1
    s_mov_b64 exec, -1
    s_waitcnt vmcnt(0)
    S_NOTAG:
    s_mov_b32 s68, s10
    s_mov_b32 s69, s11
    s_add_u32 s10, s64, {int(str(OPT["wso"]), 0)}
    s_addc_u32 s11, s65, 0
    s_cmp_lt_u32 s2, {NCH}
    s_cselect_b64 s[52:53], s[52:53], 0
    s_cselect_b64 s[54:55], s[54:55], 0
    v_and_b32 v{lane}, 63, v0
    v_lshlrev_b32 v{l16}, 4, v{lane}
    s_mul_i32 s{sL}, s2, {CH*32}
    s_lshl_b32 s{sT}, s{sW}, 10
    """)
    srd(a, sREC, 6, 0 if "nomv" in OPT["abl"] else 25600000)
    a(f"s_mul_i32 s{sA}, s2, 12800\ns_add_u32 s{sB}, s{sA}, {M0*4}\ns_waitcnt lgkmcnt(0)\ns_barrier")
    if DF: a(f"buffer_load_dwordx4 {v(SR_,4)}, v{rA}, s[{sEM}:{sEM+3}], s{sA} offen\nbuffer_load_dwordx4 {v(SR_+4,4)}, v{rB}, s[{sEM}:{sEM+3}], s{sB} offen")
    if int(OPT["stl"]):
        a(f"""
        s_lshl_b32 s{sA}, s{sW}, 21
        s_add_u32 s{sB}, s{sA}, 0x1000000
        s_min_u32 s{sN}, s{sB}, {WS_EM + 256*EMS - 64}
        s_load_dword s66, s[10:11], s{sA}
        s_load_dword s66, s[10:11], s{sN}
        s_min_u32 s{sN}, s{sB}, {25600000 - 64}
        s_load_dword s66, s[6:7], s{sA}
        s_load_dword s66, s[6:7], s{sN}
        s_and_b32 s{sA}, s{sA}, 0x200000
        s_load_dword s66, s[8:9], s{sA}
        """)
    npiece = 0 if YM else M0 // 32
    nr = (npiece + 7) // 8
    ES = [int(x) for x in OPT["es"].split(",")]
    assert sum(ES) == nr
    EC = [sum(ES[:i]) for i in range(5)]
    def edma(slot):
        for r in range(EC[slot], EC[slot+1]):
            if (r + 1) * 8 > npiece:
                a(f"s_min_u32 s{sT}, s{sT}, {(npiece - 8*r - 1)*1024}")
            a(f"s_add_u32 m0, s{sT}, {S_E + r*8192}\ns_add_u32 s{sA}, s{sT}, {r*8192}\ns_add_u32 s{sA}, s{sA}, s{sL}\nbuffer_load_dwordx4 v{l16}, s[{sREC}:{sREC+3}], s{sA} offen {OPT['eld']} lds")
    srd(a, sX, 4, 3200000)
    srd(a, sP, 60, 18432)
    def xrows():
        a(f"""
        v_lshrrev_b32 v{t0}, 4, v{lane}
        v_xor_b32 v{t0}, v{t0}, v{lane}
        v_and_b32 v{t0}, 7, v{t0}
        v_and_b32 v{t1}, 0x380, v{l16}
        v_lshl_or_b32 v{t0}, v{t0}, 4, v{t1}
        v_xor_b32 v{t1}, 64, v{t0}
        s_add_u32 m0, s{sGL}, {XRO - GLO}
        s_lshl_b32 s{sA}, s{sW}, 11
        s_add_u32 s{sB}, s{sA}, s{sS0}
        buffer_load_dwordx4 v{t0}, s[{sX}:{sX+3}], s{sB} offen {OPT['xld']} lds
        buffer_load_dwordx4 v{t1}, s[{sX}:{sX+3}], s{sB} offen offset:1024 {OPT['xld']} lds
        """)
    a(f"""
    s_and_b32 s74, s2, 7
    s_lshl_b32 s74, s74, 5
    s_lshr_b32 s{sA}, s2, 3
    s_add_u32 s74, s74, s{sA}
    s_lshl_b32 s{sA}, s74, 17
    s_add_u32 s{sA}, s{sA}, 1337
    s_mul_hi_u32 s{sS0}, s{sA}, 3209991
    s_add_u32 s{sA}, s{sA}, 131072
    s_mul_hi_u32 s{sNB}, s{sA}, 3209991
    s_min_u32 s{sNB}, s{sNB}, 25000
    s_sub_u32 s{sNB}, s{sNB}, s{sS0}
    s_and_b32 s{sSB}, s{sW}, 1
    s_lshl_b32 s{sSO}, s74, 1
    s_add_u32 s{sSO}, s{sSO}, s{sSB}
    s_mul_i32 s{sSO}, s{sSO}, 49
    s_sub_u32 s{sSO}, s{sSO}, s{sS0}
    s_sub_u32 s{sSO}, s{sSO}, 9
    s_lshl_b32 s{sS0}, s{sS0}, 7
    s_mul_i32 s{sGL}, s{sW}, {XRS}
    s_add_u32 s{sGL}, s{sGL}, {L_XR + GLO}
    """)
    XPOS = int(OPT["xpos"])
    def xw1():
        xrows()
        a(f"""
        s_lshl_b32 s{sA}, s{sW}, 10
        s_add_u32 m0, s{sA}, {S_W}
        s_mov_b32 s{sB}, -49
        buffer_load_dwordx4 v{l16}, s[{sP}:{sP+3}], s{sA} offen lds
        """)
    if XPOS == 0: xw1()
    TLB = int(OPT["tlb"])
    srd(a, sWS, 10, 0x1000000)
    if TLB:
        a(f"""
        v_lshl_add_u32 v{t0}, v{lane}, 3, s{sW}
        v_lshlrev_b32 v{t0}, 20, v{t0}
        buffer_load_dword v{vCr+4}, v{t0}, s[{sWS}:{sWS+3}], 0 offen
        """)
    ES0 = int(OPT["es0"])
    if ES0:
        a(f"s_mul_i32 s{sA}, s2, {RCS}\nbuffer_store_dwordx4 {v(FX,4)}, v{t16}, s[{sWS}:{sWS+3}], s{sA} offen sc1")
    edma(0)
    a(f"""
    v_mov_b32 v{one}, 1
    v_mov_b32 v{t7}, 0x10000
    v_lshlrev_b32 v{idx}, 23, v0
    v_add_u32 v{idx}, 9, v{idx}
    v_lshlrev_b32 v{t6}, 5, v{lane}
    s_mov_b32 s{sB}, -49
    s_mov_b32 s{sM7}, {1<<21}
    s_mov_b32 s{sB30}, {2<<21}
    s_mov_b32 s{sDF}, {3<<21}
    s_setprio 2
    """)
    stamp("ka", 2)
    a(f"""
    s_waitcnt vmcnt({EC[1]+2+ES0+(3 if XPOS == 0 else 0)})
    """)
    stamp("srt", 1); stamp("ka", 3)
    for g in range(2):
        for i in range(4*g, 4*g + 4):
            a(f"v_mul_u32_u24 v{PR_+i}, 1338, v{DS_+i}\nv_lshlrev_b32_sdwa v{CAD+i}, 2, v{PR_+i} {SDW}WORD_1")
        a(f"s_mov_b64 exec, {'s[52:53]' if g == 0 else 's[54:55]'}")
        for i in range(4*g, 4*g + 4): a(f"ds_add_rtn_u32 v{RNK+i}, v{CAD+i}, v{one if g == 0 else t7} offset:{S_CNT}")
        a("s_mov_b64 exec, -1")
    edma(1)
    if XPOS == 1: xw1()
    TCH = int(OPT["tch"])
    if TCH:
        a(f"""
        v_lshl_add_u32 v{t0}, v{lane}, 3, s{sW}
        v_cmpx_gt_u32 vcc, {(WS_EM + 256*EMS + (1<<21) - 1) >> 21}, v{t0}
        v_lshlrev_b32 v{t0}, 21, v{t0}
        global_load_dword v{vCr+4}, v{t0}, s[10:11]
        s_mov_b64 exec, -1
        """)
    def recs(rng):
        o = []
        for i in rng:
            o += [f"v_mad_i32_i16 v{PR_+i}, v{PR_+i}, s{sB}, v{DS_+i} op_sel:[1,0,0,0]", f"v_lshl_add_u32 v{PR_+i}, v{SR_+i}, 6, v{PR_+i}",
                  f"v_add3_u32 v{PR_+i}, v{PR_+i}, v{idx}, {('0', f's{sM7}', f's{sB30}', f's{sDF}')[i%4]}"]
        return o
    a("s_waitcnt lgkmcnt(0)\ns_barrier")
    stamp("srt", 2); stamp("tag", 1); stamp("ka", 4)
    OTG = S4
    a(f"""
    ds_read_b128 {v(CS,4)}, v{t6} offset:{S_CNT}
    ds_read_b128 {v(CS+4,4)}, v{t6} offset:{S_CNT+16}
    ds_read_b32 v{OTG+1}, v{t4_} offset:{S_CNT}
    s_waitcnt vmcnt({EC[2]+3+ES0})
    """)
    emit(recs(range(4)))
    a("s_waitcnt lgkmcnt(1)")
    for j in range(1, 8): a(f"v_add_u32 v{CS+j}, v{CS+j}, v{CS+j-1}")
    a(f"v_mov_b32 v{CS+8}, v{CS+7}")
    rr = recs(range(4, 8))
    for n, stp in enumerate(steps): a(f"{rr[2*n]}\n{rr[2*n+1]}\nv_add_u32_dpp v{CS+8}, v{CS+8}, v{CS+8} {stp}")
    a(f"v_sub_u32 v{CS+8}, v{CS+8}, v{CS+7}\nv_add_u32 v{CS+8}, {M0<<16}, v{CS+8}")
    for j in range(7, 0, -1): a(f"v_add_u32 v{CS+j}, v{CS+j-1}, v{CS+8}")
    a(f"""
    v_mov_b32 v{CS}, v{CS+8}
    ds_write_b128 v{t6}, {v(CS,4)} offset:{S_STA}
    ds_write_b128 v{t6}, {v(CS+4,4)} offset:{S_STA+16}
    """)
    for i in range(8): a(f"ds_read_b32 v{DS_+i}, v{CAD+i} offset:{S_STA}")
    a(f"ds_read_b32 v{OTG}, v{t4_} offset:{S_STA}")
    edma(2)
    for i in range(8):
        if i % 4 == 0: a(f"s_mov_b64 exec, {'s[52:53]' if i == 0 else 's[54:55]'}")
        a(f"""
        s_waitcnt lgkmcnt(8)
        v_add_u32 v{DS_+i}, v{DS_+i}, v{RNK+i}
        v_lshlrev_b32_sdwa v{DS_+i}, 2, v{DS_+i} {SDW}{'WORD_0' if i < 4 else 'WORD_1'}
        ds_write_b32 v{DS_+i}, v{PR_+i} offset:{S_SRT}
        """)
    a("s_mov_b64 exec, -1")
    stamp("srt", 3); stamp("ka", 5)
    a(f"s_load_dwordx2 s[{sTAG}:{sTAG+1}], s[68:69], 0")
    a(f"""
    v_lshrrev_b32 v{t1}, 1, v0
    v_lshlrev_b32 v{t1}, 2, v{t1}
    s_waitcnt vmcnt({EC[3] if XPOS == 0 else ES[2]}) lgkmcnt(0)
    s_barrier
    """)
    if MODE == "ka": a("s_waitcnt vmcnt(0)")
    stamp("srt", 4); stamp("tag", 2); stamp("ka", 6)
    no = 0 if YM else (M0 + 255) // 256
    a(f"ds_read_b128 {v(D,4)}, v{t16} offset:{S_SRT}\nds_read_b128 {v(D+4,4)}, v{t16} offset:{S_SRT+M0*4}")
    for r in range(no): a(f"ds_read_b32 v{SG+r}, v{t1} offset:{S_SRT+1024*r}")
    edma(3)
    a(f"""
    s_mul_i32 s{sA}, s2, {RCS}
    s_add_u32 s{sB}, s{sA}, 8192
    v_and_b32 v{t2}, 1, v0
    v_lshlrev_b32 v{t2}, 4, v{t2}
    s_waitcnt lgkmcnt({no})
    buffer_store_dwordx4 {v(D,4)}, v{rA}, s[{sWS}:{sWS+3}], s{sA} offen sc1
    buffer_store_dwordx4 {v(D+4,4)}, v{rB}, s[{sWS}:{sWS+3}], s{sB} offen sc1
    """)
    stamp("tag", 3)
    a(f"""
    s_mul_i32 s{sN}, s2, {OTS}
    s_add_u32 s{sN}, s{sN}, {WS_O}
    s_mov_b32 s{sB}, 0
    s_cmp_lg_u32 s{sTAG}, 0
    s_cbranch_scc1 S_TAGD
    S_TAGL:
    s_sleep 8
    global_load_dwordx2 {v(OTG+2,2)}, v{nta}, s[68:69] sc1
    s_add_u32 s{sB}, s{sB}, 1
    s_cmp_gt_u32 s{sB}, {SPIN}
    s_cbranch_scc1 M_END
    s_waitcnt vmcnt(0)
    v_readfirstlane_b32 s{sTAG}, v{OTG+2}
    v_readfirstlane_b32 s{sTAG+1}, v{OTG+3}
    s_nop 0
    s_cmp_eq_u32 s{sTAG}, 0
    s_cbranch_scc1 S_TAGL
    S_TAGD:
    """)
    stamp("tag", 4)
    a(f"""
    v_add_u32 v{OTG}, {(2048-M0)<<16}, v{OTG}
    v_mov_b32 v{OTG+2}, s{sTAG}
    v_mov_b32 v{OTG+3}, s{sTAG+1}
    buffer_store_dwordx4 {v(OTG,4)}, v{t16}, s[{sWS}:{sWS+3}], s{sN} offen sc1
    s_movk_i32 s{sB}, {(M0 - 256*(no-1))*2}
    v_cmp_gt_u32 vcc, s{sB}, v0
    v_mov_b32 v{t4}, v{t16}
    v_and_b32 v{m}, 31, v{lane}
    v_lshrrev_b32 v{h}, 5, v{lane}
    v_cndmask_b32 v{t6}, v{hz}, v{t16}, vcc
    v_lshlrev_b32 v{t0}, 3, v0
    v_add_u32 v{t0}, {L_C8}, v{t0}
    v_mov_b32 v{D+8}, 0
    v_mov_b32 v{D+9}, 0
    ds_write_b64 v{t0}, {v(D+8,2)}
    v_bfe_u32 v{t1}, v{lane}, 2, 2
    v_lshl_add_u32 v{t1}, v{h}, 3, v{t1}
    v_lshlrev_b32 v{t1}, 7, v{t1}
    v_and_b32 v{t3}, 3, v{lane}
    v_lshl_add_u32 v{aN}, v{t3}, 3, v{t1}
    v_and_b32 v{t3}, 16, v{lane}
    v_lshl_add_u32 v{aN}, v{t3}, 1, v{aN}
    v_add_u32 v{t1}, v{t1}, v{t3}
    v_and_b32 v{t3}, 1, v{lane}
    v_lshl_add_u32 v{t1}, v{t3}, 5, v{t1}
    v_and_b32 v{t3}, 2, v{lane}
    v_lshl_add_u32 v{t1}, v{t3}, 2, v{t1}
    s_lshl_b32 s{sA}, s{sSB}, 6
    v_add_u32 v{sa}, s{sA}, v{t1}
    v_bfe_u32 v{sac}, v{m}, 1, 3
    v_xor_b32 v{sac}, v{sac}, v{h}
    v_lshlrev_b32 v{sac}, 4, v{sac}
    v_and_b32 v{t3}, 15, v{m}
    v_lshl_or_b32 v{sac}, v{t3}, 7, v{sac}
    v_lshrrev_b32 v{t3}, 4, v{m}
    v_mul_u32_u24 v{t3}, {XRS}, v{t3}
    s_and_b32 s{sA}, s{sW}, 6
    s_mul_i32 s{sA}, s{sA}, {XRS}
    s_add_u32 s{sA}, s{sA}, {L_XR + XRO}
    v_add3_u32 v{sac}, v{sac}, v{t3}, s{sA}
    s_waitcnt lgkmcnt(1)
    """)
    for r in range(no):
        a(f"v_lshrrev_b32 v{SG+r}, 21, v{SG+r}\nv_lshl_add_u32 v{SG+r}, v{SG+r}, 5, v{t2}")
    srd_off(a, sEM, 10, WS_EM, 0 if "nomv" in OPT["abl"] else 256 * EMS)
    OG = E + 12
    a(f"""
    s_lshl_b32 s{sOA}, s74, 5
    s_lshl_b32 s{sA}, s{sSB}, 4
    s_add_u32 s{sOA}, s{sOA}, s{sA}
    s_lshr_b32 s{sA}, s{sW}, 1
    s_mul_i32 s{sA}, s{sA}, {64*OTS}
    s_add_u32 s{sOA}, s{sOA}, s{sA}
    s_add_u32 s{sOA}, s{sOA}, {WS_O}
    v_mul_u32_u24 v{lh}, {OTS}, v{lane}
    s_mov_b32 s74, {f32(-LOG2E)}
    s_mov_b32 s75, {f32(-LOG2E)}
    """)
    XF, W1t, Wx, PD, EO = FX, AG, EP, AG + 16, Q
    def tr(dst, areg, off):
        a(f"ds_read_b64_tr_b16 {v(dst,2)}, v{areg} offset:{S_W+off}\nds_read_b64_tr_b16 {v(dst+2,2)}, v{areg} offset:{S_W+off+512}")
    def w2read():
        for sx in range(4):
            for nh in range(2): tr(AG + (2*sx + nh)*4, aN, 8192 + 2048*sx + 64*nh)
    for sx in range(4):
        a(f"ds_read_b128 {v(XF+4*sx,4)}, v{sac}" + (f"\nv_xor_b32 v{sac}, {(32, 96, 32)[sx]}, v{sac}" if sx < 3 else ""))
        tr(W1t + 4*sx, sa, 2048*sx)
    a("s_waitcnt lgkmcnt(0)")
    for sx in range(4):
        a(f"v_mfma_f32_32x32x16_bf16 {v(PD,16)}, {v(W1t+4*sx,4)}, {v(XF+4*sx,4)}, {'0' if sx == 0 else v(PD,16)}")
    a(f"""
    v_and_b32 v{t0}, 15, v{m}
    v_mul_u32_u24 v{t0}, 144, v{t0}
    v_lshl_add_u32 v{t0}, v{h}, 5, v{t0}
    v_lshrrev_b32 v{t1}, 4, v{m}
    v_mul_u32_u24 v{t1}, {XRS}, v{t1}
    s_mul_i32 s{sA}, s{sSB}, {64 - XRS}
    s_add_u32 s{sA}, s{sA}, s{sGL}
    v_add3_u32 v{t0}, v{t0}, v{t1}, s{sA}
    v_lshrrev_b32 v{t1}, 3, v{lane}
    v_lshl_add_u32 v{t3}, v{t1}, 4, v{l16}
    v_add_u32 v{t3}, s{sGL}, v{t3}
    s_lshl_b32 s{sA}, s{sW}, 11
    s_lshl_b32 s{sB}, s{sNB}, 7
    v_add_u32 v{t1}, s{sA}, v{l16}
    v_add_u32 v{t5}, 1024, v{t1}
    v_cmp_gt_u32 vcc, s{sB}, v{t1}
    v_cmp_gt_u32 s[52:53], s{sB}, v{t5}
    s_mov_b32 s{sCAP}, 512
    s_mov_b32 s{sBASE}, 0
    v_cndmask_b32 v{t1}, v{hz}, v{t1}, vcc
    v_cndmask_b32 v{t5}, v{hz}, v{t5}, s[52:53]
    """)
    for i in range(8): a(f"v_pk_mul_f32 {v(PD+2*i,2)}, {v(PD+2*i,2)}, s[74:75]")
    for i in range(8): a(f"v_cvt_pk_bf16_f32 v{PD+i}, v{PD+2*i}, v{PD+2*i+1}")
    a(f"""
    ds_write_b128 v{t0}, {v(PD,4)}
    ds_write_b128 v{t0}, {v(PD+4,4)} offset:16
    """)
    stamp("tag", 5)
    srd(a, sE, 62, 16384)
    a(f"""
    s_lshl_b32 s{sA}, s{sW}, 10
    s_add_u32 s{sA}, s{sA}, 8192
    s_add_u32 m0, s{sA}, {S_W}
    s_lshl_b32 s{sB}, s{sSB}, 10
    buffer_load_dwordx4 v{l16}, s[{sP}:{sP+3}], s{sA} offen lds
    s_add_u32 s{sB}, s{sB}, 16384
    s_add_u32 m0, s{sB}, {S_W}
    s_lshl_b32 s{sA}, s{sW}, 11
    buffer_load_dwordx4 v{l16}, s[{sP}:{sP+3}], s{sB} offen lds
    s_lshr_b32 s{sN}, s{sW}, 1
    s_mul_i32 s{sN}, s{sN}, {XRS - 4096}
    s_add_u32 s{sN}, s{sN}, s{sA}
    s_add_u32 m0, s{sN}, {S_WU}
    s_nop 0
    buffer_load_dwordx4 v{l16}, s[{sE}:{sE+3}], s{sA} offen lds
    buffer_load_dwordx4 v{l16}, s[{sE}:{sE+3}], s{sA} offen offset:1024 lds
    s_add_u32 s{sB}, s{sS0}, {WS_P}
    s_waitcnt vmcnt(7) lgkmcnt(0)
    s_barrier
    """)
    stamp("srt", 5); stamp("top", 1); stamp("tag", 6)
    a(f"ds_read_b128 {v(D+16,4)}, v{t3}\nds_read_b128 {v(D+20,4)}, v{t3} offset:{8*144}")
    for r in range(no): a(f"ds_read_b128 {v(EO+4*r,4)}, v{SG+r} offset:{S_E}")
    a(f"""
    s_waitcnt lgkmcnt({no})
    buffer_store_dwordx4 {v(D+16,4)}, v{t1}, s[{sWS}:{sWS+3}], s{sB} offen sc1
    buffer_store_dwordx4 {v(D+20,4)}, v{t5}, s[{sWS}:{sWS+3}], s{sB} offen sc1
    """)
    CEM = int(OPT["cem"])
    a(f"s_mul_i32 s{sA}, s2, {EMS}" if CEM else f"s_lshl_b32 s{sA}, s2, 17")
    for r in range(no):
        a(f"s_waitcnt lgkmcnt({no-1-r})\nbuffer_store_dwordx4 {v(EO+4*r,4)}, v{t6 if r == no-1 else t4}, s[{sEM}:{sEM+3}], s{sA} offen {OPT['st']}\ns_add_u32 s{sA}, s{sA}, 8192")
    a(f"""
    s_mov_b32 s92, 1
    s_lshl_b32 s{sN}, s2, {int(OPT["fst"])}
    s_add_u32 s{sN}, s{sN}, {WS_F2}
    """)
    stamp("srt", 6); stamp("syn", 1)
    FST = int(OPT["fst"])
    f2r = E + 9
    OE = int(OPT["oe"]); XE = 0
    oload = f"buffer_load_dwordx4 {v(OG,4)}, v{lh}, s[{sWS}:{sWS+3}], s{sOA} offen sc1"
    if OE == 1: a(oload)
    a("s_setprio 0")
    OTW = int(OPT['otw'])
    def wwork():
        a(f"v_add_u32 v{sa}, {S_WU - S_W}, v{sa}\ns_mul_i32 s{sB}, s{sSB}, {XRS}\nv_add_u32 v{t2}, s{sB}, v{sa}\nv_subrev_u32 v{t3}, s{sB}, v{sa}")
        for nh in range(2): tr(D + 8 + 4*nh, aN, 128*128 + 64*nh)
        for sx in range(4): tr(Wx + 4*sx, sa, XRS*(sx>>1) + 2048*(sx&1))
        a("s_waitcnt lgkmcnt(0)")
        for sx in range(4):
            a(f"v_mfma_f32_32x32x16_bf16 {v(U0,16)}, {v(Wx+4*sx,4)}, {v(XF+4*sx,4)}, {'0' if sx == 0 else v(U0,16)}")
        tr(WU, t2, 2*XRS); tr(WU + 4, t2, 2*XRS + 2048); tr(WU + 8, t3, 3*XRS); tr(WU + 12, t3, 3*XRS + 2048)
        w2read()
        for nh in range(2):
            for i in range(4):
                r = D + 8 + 4*nh + i
                a(f"v_lshlrev_b32 v{t0}, 16, v{r}\nv_and_b32 v{t1}, 0xffff0000, v{r}\nv_pk_mul_f32 {v(t0,2)}, {v(t0,2)}, s[74:75]\nv_cvt_pk_bf16_f32 v{W+8+4*nh+i}, v{t0}, v{t1}")
    def lanec():
        srd_off(a, sP, 10, WS_P, 3200000)
        if int(OPT["smf"]):
            a(f"""
            v_and_b32 v{t1}, 1, v{m}
            v_lshlrev_b32 v{t1}, 4, v{t1}
            v_mov_b32 v{t2}, 0x3f80
            v_lshlrev_b32 v{t1}, v{t1}, v{t2}
            v_lshrrev_b32 v{t0}, 2, v{m}
            v_lshlrev_b32 v{t2}, 2, v{h}
            v_sub_u32 v{t0}, v{t0}, v{t2}
            v_bfe_i32 v{t2}, v{m}, 1, 1
            v_and_b32 v{t2}, 0xaaaa, v{t2}
            v_or_b32 v{W+4}, 0x4444, v{t2}
            """)
            for i in range(4):
                a(f"v_cmp_eq_u32 vcc, {i}, v{t0}\ns_nop 1\nv_cndmask_b32 v{W+i}, 0, v{t1}, vcc")
        else:
            a(f"""
            v_lshlrev_b32 v{t0}, 3, v{h}
            v_sub_u32 v{t0}, v{m}, v{t0}
            v_and_b32 v{t1}, 1, v{t0}
            v_lshlrev_b32 v{t1}, 4, v{t1}
            v_mov_b32 v{t2}, 0x3f80
            v_lshlrev_b32 v{t1}, v{t1}, v{t2}
            v_lshrrev_b32 v{t0}, 1, v{t0}
            """)
            for j in range(2):
                for i in range(4):
                    a(f"v_cmp_eq_u32 vcc, {8*j+i}, v{t0}\ns_nop 1\nv_cndmask_b32 v{W+4*j+i}, 0, v{t1}, vcc")
        a(f"""
        s_mul_i32 s{sSTB}, s{sW}, {SCAP*32}
        s_add_u32 s{sSTB}, s{sSTB}, {L_ST}
        s_mov_b32 s{sREC}, s10
        s_or_b32 s{sREC+1}, s11, {4<<16}
        s_mov_b32 s{sREC+2}, {WS_O//4}
        s_mov_b32 s{sREC+3}, 0x20000
        s_sub_u32 s{sE}, s6, {DFLAG*32}
        s_subb_u32 s{sE+1}, s7, 0
        s_or_b32 s{sE+1}, s{sE+1}, {32<<16}
        s_mov_b32 s{sE+2}, {(DFLAG + 800000) * ne}
        s_mov_b32 s{sE+3}, 0x20000
        s_sub_u32 s{sG}, 11, s{sW}
        s_cmp_lt_u32 s{sW}, 4
        s_cselect_b32 s{sG}, s{sW}, s{sG}
        s_mul_i32 s{sXRB}, s{sG}, {XRS}
        s_add_u32 s{sXRB}, s{sXRB}, {L_XR}
        s_mov_b32 s{sM7}, 0xffffff80
        s_mov_b32 s{sB30}, 0x40000000
        s_mov_b32 s{sDF}, {DFLAG}
        v_lshlrev_b32 v{RP+1}, 4, v{h}
        v_lshlrev_b32 v{RP+3}, 4, v{h}
        v_lshlrev_b32 v{RP+5}, 4, v{h}
        v_lshlrev_b32 v{RP+7}, 4, v{h}
        v_lshrrev_b32 v{t0}, 3, v{lane}
        s_lshl_b32 s{sA}, s{sG}, 7
        v_lshl_add_u32 v{vLS}, v{t0}, 4, s{sA}
        v_lshl_add_u32 v{vLE}, v{m}, 2, s{sA}
        v_and_b32 v{t3}, 1, v{t0}
        v_lshlrev_b32 v{t3}, 4, v{t3}
        v_lshl_add_u32 v{sac}, v{lane}, 5, v{t3}
        v_add_u32 v{sac}, s{sSTB}, v{sac}
        v_and_b32 v{t1}, 4, v{t0}
        v_and_b32 v{t2}, 7, v{lane}
        v_xor_b32 v{t1}, v{t1}, v{t2}
        v_lshlrev_b32 v{CX}, 4, v{t1}
        v_xor_b32 v{CX+1}, 16, v{CX}
        v_xor_b32 v{CX+2}, 32, v{CX}
        v_xor_b32 v{CX+3}, 48, v{CX}
        v_and_b32 v{t0}, 3, v{m}
        v_lshrrev_b32 v{t1}, 2, v{m}
        v_lshl_add_u32 v{t1}, v{t0}, 3, v{t1}
        v_lshlrev_b32 v{t1}, 7, v{t1}
        v_add_u32 v{t1}, s{sXRB}, v{t1}
        v_lshrrev_b32 v{t2}, 4, v{m}
        v_lshl_or_b32 v{t0}, v{t2}, 2, v{t0}
        v_xor_b32 v{t0}, v{t0}, v{h}
        v_lshl_add_u32 v{XA}, v{t0}, 4, v{t1}
        v_xor_b32 v{XA+1}, 32, v{XA}
        v_xor_b32 v{XA+2}, 64, v{XA}
        v_xor_b32 v{XA+3}, 0x60, v{XA}
        """)
    lanec()
    if OE == 2: a(oload)
    stamp("syn", 2)
    a(f"""
    s_setprio 2
    s_cmp_lg_u32 s{sW}, 0
    s_waitcnt vmcnt(0)
    s_barrier
    s_cbranch_scc1 M_NOPUB
    s_mov_b64 exec, 1
    buffer_store_dwordx2 {v(OTG+2,2)}, v{nta}, s[{sWS}:{sWS+3}], s{sN} offen sc1
    s_mov_b64 exec, -1
    M_NOPUB:
    s_mov_b32 s{sA}, 0
    """)
    stamp("syn", 3)
    a(f"s_nop 7\n{oload}")
    wwork()
    a(f"s_mov_b32 s{sA}, 0\ns_waitcnt vmcnt(0)")
    kk12, c0, c1, g0, g1, p0, p1, tt, qa, f2r, fl0 = [E + i for i in range(11)]
    G, RC, NA, RK = D, D + 8, D + 16, D + 24
    TBv = FX
    OFv, CA = EP, EP + 8
    a(f"""
    s_branch M_POLLC
    M_BATCH:
    v_mul_u32_u24 v{lh}, {OTS}, v{lane}
    s_mov_b32 s{sA}, 0
    M_POLL:
    s_sleep {OPT["osl"]}
    buffer_load_dwordx4 {v(OG,4)}, v{lh}, s[{sWS}:{sWS+3}], s{sOA} offen sc1
    s_add_u32 s{sA}, s{sA}, 1
    s_cmp_gt_u32 s{sA}, {SPIN}
    s_cbranch_scc1 M_END
    s_waitcnt vmcnt(0)
    M_POLLC:
    v_cmpx_ne_u64 vcc, s[{sTAG}:{sTAG+1}], {v(OG+2,2)}
    s_cbranch_execnz M_POLL
    s_mov_b64 exec, -1
    s_lshr_b32 s{sA}, s{sW}, 1
    s_lshl_b32 s{sA}, s{sA}, 6
    v_add_lshl_u32 v{kk12}, v{lane}, s{sA}, 12
    v_lshl_add_u32 v{qa}, v{lane}, 2, s{sGL}
    v_mov_b32 v{t1}, 0xffff
    v_lshrrev_b32 v{lh}, 1, v{lane}
    """)
    stamp("pro", 1); stamp("syn", 4)
    a(f"v_and_b32 v{p0}, v{t1}, v{OG+1}\nv_lshrrev_b32 v{p1}, 16, v{OG+1}")
    fl = [f"v_and_or_b32 v{g0}, v{OG}, v{t1}, v{kk12}", f"v_lshrrev_b32 v{g1}, 16, v{OG}", f"v_or_b32 v{g1}, v{g1}, v{kk12}",
          f"v_and_b32 v{c0}, v{t1}, v{OG+1}", f"v_lshrrev_b32 v{c1}, 16, v{OG+1}", "s_nop 0"]
    for n, stp in enumerate(steps):
        a(f"{fl[n]}\nv_add_u32_dpp v{p0}, v{p0}, v{p0} {stp}\nv_add_u32_dpp v{p1}, v{p1}, v{p1} {stp}")
    a(f"""
    v_readlane_b32 s{sNS}, v{p0}, 63
    v_readlane_b32 s{sN}, v{p1}, 63
    v_sub_u32 v{p0}, v{p0}, v{c0}
    v_sub_u32 v{p1}, v{p1}, v{c1}
    s_add_u32 s{sN}, s{sN}, s{sNS}
    v_add_u32 v{p1}, s{sNS}, v{p1}
    s_mov_b32 s{sCNT}, s{sN}
    s_add_u32 s{sA}, s{sN}, s{sBASE}
    s_cmp_le_u32 s{sA}, s{sCAP}
    s_cbranch_scc0 M_WIN
    s_cmp_eq_u32 s{sBASE}, 0
    s_cbranch_scc1 M_NOWIN
    M_WIN:
    s_sub_i32 s{sCNT}, s{sN}, s{sBASE}
    s_max_i32 s{sCNT}, s{sCNT}, 0
    s_min_u32 s{sCNT}, s{sCNT}, s{sCAP}
    s_sub_i32 s{sNS}, s{sNS}, s{sBASE}
    s_max_i32 s{sNS}, s{sNS}, 0
    """)
    for (pp, cc, gg) in ((p0, c0, g0), (p1, c1, g1)):
        a(f"""
        v_subrev_u32 v{tt}, s{sBASE}, v{pp}
        v_max_i32 v{pp}, 0, v{tt}
        v_add_u32 v{cc}, v{tt}, v{cc}
        v_min_i32 v{cc}, s{sCAP}, v{cc}
        v_sub_u32 v{cc}, v{cc}, v{pp}
        v_sub_u32 v{tt}, v{pp}, v{tt}
        v_add_u32 v{gg}, v{gg}, v{tt}
        """)
    a(f"M_NOWIN:\ns_min_u32 s{sNS}, s{sNS}, {0 if YM else SCAP}")
    pa, ca_, ga, gb = t0, t1, t2, t3
    for n, (pp, cc, gg) in enumerate(((p0, c0, g0), (p1, c1, g1))):
        a(f"""
        v_lshl_add_u32 v{pp}, v{pp}, 2, s{sGL}
        v_add_u32 v{ga}, 1, v{gg}
        v_add_u32 v{gb}, 2, v{gg}
        v_mov_b32 v{ca_}, v{cc}
        v_mov_b32 v{pa}, v{pp}
        M_EXP{n}:
        """)
        for r in (1, 3, 5, 7):
            a(f"v_cmpx_lt_i32 vcc, {r}, v{ca_}\nds_write2_b32 v{pa}, v{ga}, v{gb} offset0:{r} offset1:{r+1}\nv_add_u32 v{ga}, 2, v{ga}\nv_add_u32 v{gb}, 2, v{gb}")
        a(f"""
        v_cmpx_lt_i32 vcc, 9, v{ca_}
        v_add_u32 v{pa}, 32, v{pa}
        v_subrev_u32 v{ca_}, 8, v{ca_}
        s_cbranch_execnz M_EXP{n}
        s_mov_b64 exec, -1
        """)
    a(f"""
    v_cmpx_lt_i32 vcc, 0, v{c0}
    ds_write_b32 v{p0}, v{g0}
    s_mov_b64 exec, -1
    v_cmpx_lt_i32 vcc, 0, v{c1}
    ds_write_b32 v{p1}, v{g1}
    s_mov_b64 exec, -1
    """)
    for i in ORD:
        a(f"ds_read_b32 v{G+i}, v{qa} offset:{256*i}")
    a(f"v_lshl_add_u32 v{t1}, v{lh}, 2, s{sGL}")
    for j in range(7):
        a(f"ds_read_b32 v{SG+j}, v{t1} offset:{128*j}")
    for i in ORD:
        a(f"s_sub_i32 s{sA}, s{sCNT}, {64*i}\nv_cmp_gt_i32 {mk(i)}, s{sA}, v{lane}")
    a(f"""
    v_lshrrev_b32 v{t2}, 4, v{lane}
    v_xor_b32 v{t2}, v{t2}, v{lane}
    v_and_b32 v{t2}, 1, v{t2}
    v_lshlrev_b32 v{t2}, 4, v{t2}
    v_mov_b32 v{fl0}, s{sCNT}
    v_mov_b32 v{fl0+1}, s{sN}
    s_waitcnt lgkmcnt(0)
    """)
    if CEM: a(f"s_mov_b32 s{sA}, {EMS//32-4096}")
    for j in range(7):
        if CEM: a(f"v_lshrrev_b32 v{t3}, 12, v{SG+j}\nv_mad_i32_i24 v{SG+j}, v{t3}, s{sA}, v{SG+j}")
        a(f"v_lshl_add_u32 v{SG+j}, v{SG+j}, 5, v{t2}")
    for i in range(8): a(f"v_lshrrev_b32 v{t3}, 12, v{G+i}\nv_mad_u32_u24 v{RC+i}, v{t3}, {SKW//4}, v{G+i}")
    stamp("pro", 2); stamp("syn", 5)
    a(f"""
    s_cmp_eq_u32 s92, 0
    s_cbranch_scc1 M_READY
    """)
    a(f"""
    s_lshr_b32 s{sB}, s{sW}, 1
    s_lshl_b32 s{sB}, s{sB}, {FST+6}
    s_add_u32 s{sB}, s{sB}, {WS_F2}
    v_lshlrev_b32 v{f2r}, {FST}, v{lane}
    s_mov_b32 s{sA}, 0
    s_branch M_FL1
    M_FL:
    s_sleep {OPT["osl"]}
    M_FL1:
    buffer_load_dwordx2 {v(OG,2)}, v{f2r}, s[{sWS}:{sWS+3}], s{sB} offen sc1
    s_add_u32 s{sA}, s{sA}, 1
    s_cmp_gt_u32 s{sA}, {SPIN}
    s_cbranch_scc1 M_END
    s_waitcnt vmcnt(0)
    v_cmpx_ne_u64 vcc, s[{sTAG}:{sTAG+1}], {v(OG,2)}
    s_cbranch_execnz M_FL
    M_READY:
    """)
    stamp("top", 2); stamp("syn", 6)
    skip("M_GA")
    for i in ORD:
        a(f"s_mov_b64 exec, {mk(i)}\nbuffer_load_dword v{RC+i}, v{RC+i}, s[{sREC}:{sREC+3}], 0 idxen {LD}")
        after("M_GA", i)
    a("s_mov_b64 exec, -1")
    if OTW == 1:
        a("s_cmp_eq_u32 s92, 0\ns_cbranch_scc1 M_NOW\ns_setprio 0")
        wwork()
        a("s_setprio 2\nM_NOW:")
    a("s_mov_b32 s92, 0")
    for i in range(4): a(f"v_mov_b32 v{t4+i}, {DUMMY}")
    a(f"v_lshlrev_b32 v{t0}, 4, v0\nv_lshlrev_b32 v{t1}, 2, v0\ns_waitcnt lgkmcnt(0)\ns_barrier")
    def stage(js):
        for j in ([] if YM else js):
            a(f"""
            s_sub_i32 s{sA}, s{sNS}, {32*j}
            s_add_u32 m0, s{sSTB}, {1024*j}
            v_cmpx_gt_i32 vcc, s{sA}, v{lh}
            buffer_load_dwordx4 v{SG+j}, s[{sEM}:{sEM+3}], 0 offen {LD} lds
            """)
        a("s_mov_b64 exec, -1")
    NS1 = int(OPT["ns1"]); NS2 = int(OPT["ns2"])
    stage(range(NS1))
    XW = int(OPT["xw"])
    def pwarm():
        if XW:
            a(f"""
            s_lshr_b32 s{sA}, s2, 3
            s_mul_i32 s{sA}, s{sA}, {XW*128}
            s_add_u32 s{sA}, s{sA}, {XE*4096}
            v_lshl_add_u32 v{tt}, v{lane}, 3, s{sW}
            v_cmpx_gt_u32 vcc, {XW}, v{tt}
            v_lshlrev_b32 v{tt}, 7, v{tt}
            buffer_load_dword v{vCr+4}, v{tt}, s[{sP}:{sP+3}], s{sA} offen sc1
            s_mov_b64 exec, -1
            """)
    assert 2 * LSZ == 4 * 8192 + 2048
    for i in range(4): a(f"ds_write_b128 v{t0}, {v(t4,4)} offset:{L_LS+8192*i}")
    a(f"ds_write_b32 v{t1}, v{t4} offset:{L_LS+8192*4}")
    a(f"""
    s_mov_b32 s75, {L_C8}
    s_mov_b64 exec, 1
    ds_add_u32 v{nta}, v{fl0} offset:{L_NT}
    ds_max_u32 v{nta}, v{fl0+1} offset:{L_MX}
    """)
    skip("M_RK")
    for i in ORD:
        a(f"""
        s_mov_b64 exec, {mk(i)}
        s_waitcnt vmcnt({i+NS1})
        v_and_b32 v{NA+i}, 63, v{RC+i}
        v_bfe_u32 v{tt}, v{RC+i}, 18, 3
        v_add_u32 v{NA+i}, s{sSO}, v{NA+i}
        v_lshl_add_u32 v{CA+i}, v{NA+i}, 2, s75
        v_lshl_add_u32 v{CA+i}, v{tt}, 9, v{CA+i}
        ds_add_rtn_u32 v{RK+i}, v{CA+i}, v{one}
        """)
        after("M_RK", i)
    def pack(lab):
        a(f"s_movk_i32 s{sB}, {CH}\ns_mov_b32 s74, {int(OPT['epf'])*128}")
        skip(lab)
        for i in ORD:
            a(f"""
            v_lshrrev_b32 v{t0}, 12, v{G+i}
            v_lshrrev_b32 v{tt}, 21, v{RC+i}
            v_bfe_i32 v{t1}, v{G+i}, 11, 1
            v_mad_u32_u24 v{tt}, v{t0}, s{sB}, v{tt}
            v_and_b32 v{t1}, {M0}, v{t1}
            v_bfe_u32 v{RC+i}, v{RC+i}, 6, 15
            v_add3_u32 v{G+i}, v{t1}, v{tt}, s{sDF}
            v_lshl_add_u32 v{RC+i}, v{RC+i}, 7, v{NA+i}
            v_lshlrev_b32 v{NA+i}, 3, v{NA+i}
            """)
            if i < 4 and not YM:
                a(f"""
                s_sub_i32 s{sA}, s{sNS}, {64*i}
                v_cmp_gt_i32 vcc, s{sA}, v{lane}
                v_add_u32 v{tt}, {2048*i}, v{sac}
                s_nop 0
                v_cndmask_b32 v{G+i}, v{G+i}, v{tt}, vcc
                """)
            if int(OPT["epf"]):
                a(f"s_mov_b64 exec, {mk(i)}\nv_cmpx_gt_u32 vcc, s74, v{RC+i}" + ("" if YM or i >= 4 else f"\nv_cmpx_le_u32 vcc, s{sDF}, v{G+i}") + f"\nbuffer_load_dword v{vCr+4}, v{G+i}, s[{sE}:{sE+3}], 0 idxen\ns_mov_b64 exec, -1")
            after(lab, i)
    a("s_mov_b64 exec, -1")
    stamp("pro", 3)
    a(f"""
    s_cmp_eq_u32 s{sW}, 0
    s_cbranch_scc1 M_PK0
    s_lshl_b32 s{sA}, s{sW}, 8
    s_add_u32 s{sA}, s{sA}, {L_C8 - 256}
    v_lshl_add_u32 v{S4}, v{lane}, 2, s{sA}
    v_mov_b32 v{Q+8}, 0
    s_waitcnt lgkmcnt(0)
    s_barrier
    """)
    stamp("pro", 4)
    a(f"s_cmp_gt_u32 s{sW}, 2\ns_cbranch_scc1 M_NOPFX")
    for j in range(3): a(f"ds_read2st64_b32 {v(Q+2*j,2)}, v{S4} offset0:{4*j} offset1:{4*j+2}")
    a(f"s_waitcnt lgkmcnt(0)\nv_mov_b32 v{Q+9}, v{Q}")
    for j in range(1, 6): a(f"v_add_u32 v{Q+9+j}, v{Q+8+j}, v{Q+j}")
    for j in range(4): a(f"ds_write2st64_b32 v{S4}, v{Q+8+2*j}, v{Q+9+2*j} offset0:{C8O//256+4*j} offset1:{C8O//256+4*j+2}")
    a("M_NOPFX:\ns_setprio 0")
    stage(range(NS1, NS2)); pack("M_PB")
    a("s_waitcnt lgkmcnt(0)\ns_barrier\ns_branch M_P4E")
    d0, d1, f0, f1, k0, k1, vL, vR, ks, a4, l0, l1, o0, o1, cn, ci = [Q + i for i in range(16)]
    m0_, B0, m1_, B1 = S4, S4+1, S4+2, S4+3
    a(f"""
    M_PK0:
    s_setprio 3
    v_lshlrev_b32 v{a4}, 3, v{lane}
    v_lshlrev_b32 v{cn}, 2, v{lane}
    v_add_u32 v{cn}, {L_C8}, v{cn}
    v_sub_u32 v{ci}, 31, v{m}
    v_lshlrev_b32 v{ci}, 2, v{ci}
    s_mov_b32 s75, {f32(4194304.0)}
    s_waitcnt lgkmcnt(0)
    s_barrier
    """)
    stamp("pro", 4)
    a(f"ds_read_b32 v{ks}, v{nta} offset:{L_NT}")
    for j in range(7): a(f"ds_read2st64_b32 {v(FX+2*j,2)}, v{cn} offset0:{2*j} offset1:{2*j+1}")
    a(f"""
    s_waitcnt lgkmcnt(4)
    v_readfirstlane_b32 s{sL}, v{ks}
    v_add3_u32 v{d0}, v{FX}, v{FX+2}, v{FX+4}
    v_add3_u32 v{d1}, v{FX+1}, v{FX+3}, v{FX+5}
    s_lshr_b32 s{sL}, s{sL}, 8
    s_add_u32 s{sL}, s{sL}, 2
    s_waitcnt lgkmcnt(0)
    v_add3_u32 v{d0}, v{d0}, v{FX+6}, v{FX+8}
    v_add3_u32 v{d1}, v{d1}, v{FX+7}, v{FX+9}
    v_add3_u32 v{d0}, v{d0}, v{FX+10}, v{FX+12}
    v_add3_u32 v{d1}, v{d1}, v{FX+11}, v{FX+13}
    v_cvt_f32_u32 v{f0}, v{d0}
    v_cvt_f32_u32 v{f1}, v{d1}
    M_LS:
    s_add_u32 s{sL}, s{sL}, 1
    s_cmp_gt_u32 s{sL}, {LMAX}
    s_cbranch_scc1 M_P4W
    v_cvt_f32_u32 v{vL}, s{sL}
    v_rcp_f32 v{vR}, v{vL}
    v_add_f32 v{vL}, -0.5, v{vL}
    v_add_f32 v{k0}, v{f0}, v{vL}
    v_add_f32 v{k1}, v{f1}, v{vL}
    v_mul_f32 v{k0}, v{k0}, v{vR}
    v_mul_f32 v{k1}, v{k1}, v{vR}
    v_cvt_u32_f32 v{k0}, v{k0}
    v_cvt_u32_f32 v{k1}, v{k1}
    v_add_u32 v{ks}, v{k0}, v{k1}
    """)
    fillers = [f"v_cvt_f32_u32 v{l0}, v{k0}", f"v_cvt_f32_u32 v{l1}, v{k1}",
               f"v_rcp_f32 v{m0_}, v{l0}", f"v_rcp_f32 v{m1_}, v{l1}",
               f"v_add_f32 v{l0}, v{l0}, v{f0}", f"v_add_f32 v{l1}, v{l1}, v{f1}",
               f"v_add_f32 v{l0}, -0.5, v{l0}", f"v_add_f32 v{l1}, -0.5, v{l1}",
               f"v_mul_f32 v{l0}, v{l0}, v{m0_}", f"v_mul_f32 v{l1}, v{l1}, v{m1_}",
               f"v_cvt_u32_f32 v{l0}, v{l0}", f"v_cvt_u32_f32 v{l1}, v{l1}"]
    for n, stp in enumerate(steps):
        a(f"{fillers[2*n]}\n{fillers[2*n+1]}\nv_add_u32_dpp v{ks}, v{ks}, v{ks} {stp}")
    a(f"""
    v_lshlrev_b32 v{l0}, 2, v{l0}
    v_readlane_b32 s{sA}, v{ks}, 63
    v_lshlrev_b32 v{l1}, 2, v{l1}
    s_cmp_gt_u32 s{sA}, 256
    s_cbranch_scc1 M_LS
    ds_add_rtn_u32 v{o0}, v{l0}, v{k0} offset:{L_CNT}
    ds_add_rtn_u32 v{o1}, v{l1}, v{k1} offset:{L_CNT}
    ds_read_b32 v{cn}, v{ci} offset:{L_CNT}
    v_mul_f32 v{m0_}, s75, v{m0_}
    v_mul_f32 v{m1_}, s75, v{m1_}
    v_cvt_u32_f32 v{m0_}, v{m0_}
    v_cvt_u32_f32 v{m1_}, v{m1_}
    v_add_u32 v{m0_}, 2, v{m0_}
    v_add_u32 v{m1_}, 2, v{m1_}
    v_lshlrev_b32 v{B0}, 2, v{k0}
    v_lshlrev_b32 v{B1}, 2, v{k1}
    v_sub_u32 v{B0}, 1024, v{B0}
    v_sub_u32 v{B1}, 1024, v{B1}
    v_sub_u32 v{l0}, 124, v{l0}
    v_sub_u32 v{l1}, 124, v{l1}
    s_waitcnt lgkmcnt(0)
    v_mov_b32 v{ks}, v{cn}
    """)
    for stp in steps[:5]:
        a(f"s_nop 1\nv_add_u32_dpp v{ks}, v{ks}, v{ks} {stp}")
    a(f"""
    v_sub_u32 v{ks}, v{ks}, v{cn}
    ds_bpermute_b32 v{d0}, v{l0}, v{ks}
    ds_bpermute_b32 v{d1}, v{l1}, v{ks}
    ds_write_b32 v{ci}, v{ks} offset:{L_BAS}
    s_waitcnt lgkmcnt(1)
    v_add_u32 v{o0}, v{o0}, v{d0}
    v_add_u32 v{o1}, v{o1}, v{d1}
    v_lshl_or_b32 v{m0_}, v{o0}, 24, v{m0_}
    v_lshl_or_b32 v{m1_}, v{o1}, 24, v{m1_}
    ds_write2st64_b64 v{a4}, {v(m0_,2)}, {v(m1_,2)} offset0:0 offset1:1
    M_P4W:
    v_mov_b32 v{ks}, s{sL}
    ds_write_b32 v{nta}, v{ks} offset:{L_MX+4}
    s_waitcnt lgkmcnt(0)
    s_barrier
    """)
    stage(range(NS1, NS2)); pack("M_PA")
    u0, nn = Q + 20, Q + 26
    a("M_P4E:")
    stamp("pro", 5)
    a(f"""
    ds_read_b64 {v(u0,2)}, v{nta} offset:{L_MX}
    v_lshlrev_b32 v{tt}, 2, v{m}
    ds_read_b32 v{u0+2}, v{tt} offset:{L_CNT}
    ds_read_b32 v{u0+3}, v{tt} offset:{L_BAS}
    s_lshr_b32 s{sA}, s{sW}, 1
    s_lshl_b32 s{sA}, s{sA}, 5
    v_add_u32 v{nn}, s{sA}, v{m}
    v_lshlrev_b32 v{tt}, 3, v{nn}
    ds_read_b64 {v(u0+4,2)}, v{tt} offset:{L_TB}
    """)
    skip("M_TR")
    for i in ORD:
        a(f"s_mov_b64 exec, {mk(i)}\nds_read_b64 {v(TBv+2*i,2)}, v{NA+i} offset:{L_TB}\nds_read_b32 v{OFv+i}, v{CA+i} offset:{C8O}")
        after("M_TR", i)
    a(f"""
    s_mov_b64 exec, -1
    s_lshl_b32 s{sA}, s{sG}, 5
    s_waitcnt lgkmcnt(12)
    v_readfirstlane_b32 s{sNMAX}, v{u0}
    v_readfirstlane_b32 s{sL}, v{u0+1}
    v_add_u32 v{u0+2}, v{u0+2}, v{u0+3}
    v_cmp_ge_u32 vcc, s{sA}, v{u0+3}
    v_cmp_lt_u32 s[52:53], s{sA}, v{u0+2}
    s_and_b64 s[52:53], s[52:53], vcc
    s_ff1_i32_b32 s{sT}, s52
    s_max_i32 s{sT}, s{sT}, 0
    s_cmp_le_u32 s{sL}, {LMAX}
    s_cbranch_scc1 M_P5
    s_mov_b32 s{sCAP}, 256
    s_branch M_AGAIN
    M_P5:
    """)
    skip("M_SC")
    for i in ORD:
        mm, BB = TBv + 2*i, TBv + 2*i + 1
        a(f"""
        s_mov_b64 exec, {mk(i)}
        s_waitcnt lgkmcnt({2*i + max(0, 5-i)})
        v_add_u32 v{RK+i}, v{RK+i}, v{OFv+i}
        v_lshrrev_b32 v{tt}, 24, v{mm}
        v_mul_u32_u24 v{mm}, v{mm}, v{RK+i}
        v_add_lshl_u32 v{tt}, v{tt}, v{RK+i}, 2
        v_lshrrev_b32 v{mm}, 22, v{mm}
        v_mad_u32_u24 v{tt}, v{mm}, v{BB}, v{tt}
        ds_write2st64_b32 v{tt}, v{RC+i}, v{G+i} offset0:{L_LS//256} offset1:{L_LE//256}
        """)
        after("M_SC", i)
    ca0, ca1, ca2, ca3, kk, oa, fa, da = [EP + i for i in range(8)]
    epi_setup = f"""
    s_lshl_b32 s{sA}, s{sSB}, 7
    s_add_u32 s{sA}, s{sA}, {L_XR}
    s_movk_i32 s{sB}, 0x3fc
    s_movk_i32 s75, 0x3f8
    v_mov_b32 v{kk}, v{u0+5}
    v_lshrrev_b32 v{ca0}, 24, v{u0+4}
    v_mul_u32_u24 v{ca0}, 272, v{ca0}
    v_lshl_add_u32 v{ca0}, v{h16}, 1, v{ca0}
    v_add_u32 v{ca0}, s{sA}, v{ca0}
    v_mov_b32 v{da}, {L_ZR}
    v_cmp_gt_u32 s[56:57], s{sB}, v{kk}
    v_cmp_gt_u32 s[58:59], s75, v{kk}
    v_add_u32 v{ca1}, 272, v{ca0}
    v_add_u32 v{ca2}, 544, v{ca0}
    v_add_u32 v{ca3}, 816, v{ca0}
    v_cmp_gt_u32 vcc, 0x400, v{kk}
    v_cndmask_b32 v{ca1}, v{da}, v{ca1}, s[56:57]
    v_cndmask_b32 v{ca2}, v{da}, v{ca2}, s[58:59]
    v_cndmask_b32 v{ca0}, v{da}, v{ca0}, vcc
    v_cmp_gt_u32 vcc, s{sNB}, v{nn}
    v_lshlrev_b32 v{oa}, 7, v{nn}
    v_lshl_add_u32 v{oa}, v{h16}, 1, v{oa}
    s_lshl_b32 s{sA}, s{sW}, 11
    v_cndmask_b32 v{oa}, v{hz}, v{oa}, vcc
    v_add_u32 v{fa}, s{sA}, v{l16}
    v_mul_u32_u24 v{da}, 272, v{m}
    v_add3_u32 v{da}, v{da}, v{h16}, s{sXRB}
    """
    a(f"""
    s_mov_b64 exec, -1
    s_setprio 0
    """)
    stage(range(NS2, 7)); pwarm()
    a("s_waitcnt lgkmcnt(0)\ns_barrier")
    stamp("top", 3); stamp("pro", 6); stamp("pri", 1)
    a(f"s_cmp_lg_u32 s{sT}, 0\ns_cbranch_scc1 M_GO")
    a(epi_setup)
    a("s_waitcnt vmcnt(0)\ns_barrier\ns_branch M_BEND\nM_GO:")
    S = []
    ef = OPT["eflags"]
    def le_read(t, p): return (f"ds_read_b32 v{RP+2*p}, v{vLE} offset:{L_LE+1024*t}", f"le{t}")
    def ls_read(t, dst): return (f"ds_read_b128 {v(dst,4)}, v{vLS} offset:{L_LS+1024*t}", f"ls{t}")
    def st_addr(p): return f"v_xor_b32 v{sa}, v{RP+2*p}, v{h16}"
    def st_read(t): return (f"ds_read_b128 {Es(t)}, v{sa}", f"st{t}")
    def d_pre(t, p): return [f"v_cmp_le_u32 vcc, s{sDF}, v{RP+2*p}", f"v_and_or_b32 v{vCr+t%5}, v{RP+2*p}, s{sB30}, 1.0"]
    def d_load(t, p): return ["s_mov_b64 exec, vcc", (f"buffer_load_dwordx4 {Es(t)}, {v(RP+2*p,2)}, s[{sE}:{sE+3}], 0 idxen offen {ef}", f"D{t}"), "s_mov_b64 exec, -1"]
    def x_addr(src): return [f"v_and_or_b32 v{S4+i}, v{src+i}, s{sM7}, v{CX+i}" for i in range(4)]
    def x_dma(t, nop=True, reg=None, soff="0", tag=None):
        o = []
        for i in range(4):
            sr = sP
            o += [f"s_add_u32 m0, s{sXRB}, {(t&1)*4096+i*1024}"] + (["s_nop 0"] if nop else []) + \
                 [(f"buffer_load_dwordx4 v{(reg or S4)+i}, s[{sr}:{sr+3}], {soff} offen {LD} lds", tag or f"X{t}")]
        return o
    def fx_read(t, sx, tag=None): return (f"ds_read_b128 {v(FX+4*sx,4)}, v{XA+sx} offset:{(t&1)*4096}", tag or f"fx{t}")
    def chain(nh, t):
        Dh = v(D + 16 * nh, 16)
        return [f"v_mfma_f32_32x32x16_bf16 {Dh}, {W3f(nh)}, {Es(t)}, {v(Q+16*nh,16)}"] + \
               ([f"v_smfmac_f32_32x32x32_bf16 {Dh}, {Idf(0)}, {v(FX+8*nh,8)}, v{W+4}"] if int(OPT["smf"]) else
                [f"v_mfma_f32_32x32x16_bf16 {Dh}, {Idf(j)}, {v(FX+8*nh+4*j,4)}, {Dh}" for j in range(2)])
    nd, L1, L2 = D, D + 4, SG
    def ps(i): return [f"s_memrealtime s[{76+2*i}:{77+2*i}]", "s_waitcnt lgkmcnt(0)"] if MODE == "pri" else []
    S += [ls_read(0, S4), (f"ds_read_b32 v{nd}, v{vLE} offset:{L_LS}", "nd")] + [le_read(j, j) for j in range(4)] + [ls_read(1, L1), ls_read(2, L2), ("@W", None, "nd")]
    S += x_addr(S4)
    xa_ = [f"v_bfe_u32 v{nd+1}, v{nd}, 4, 3", f"v_mul_u32_u24 v{nd+1}, {XRS}, v{nd+1}", f"v_bfe_u32 v{nd+2}, v{nd}, 1, 3", f"v_xor_b32 v{nd+2}, v{nd+2}, v{h}"]
    dm = x_dma(0, nop=False)
    for i in range(4): S += [dm[2*i], xa_[i], dm[2*i+1]]
    S += [f"v_and_b32 v{nd}, 15, v{nd}", f"v_lshl_add_u32 v{nd+1}, v{nd}, 7, v{nd+1}", f"v_lshl_add_u32 v{nd+1}, v{nd+2}, 4, v{nd+1}", f"v_add_u32 v{nd+1}, {L_XR+XRO}, v{nd+1}"]
    for sx in range(4):
        S += [(f"ds_read_b128 {v(FX+4*sx,4)}, v{nd+1}", "xd")] + ([f"v_xor_b32 v{nd+1}, {(32, 96, 32)[sx]}, v{nd+1}"] if sx < 3 else [])
    def dl(j): return d_pre(j, j) + [f"s_not_b64 s[{60+2*j}:{61+2*j}], vcc"] + d_load(j, j)
    S += [("@W", None, "ls2")] + dl(0) + ps(2)
    ep = [l.strip() for l in epi_setup.strip().split("\n")]
    S += ep + x_addr(L1) + [("@W", None, "xd")]
    for nh in range(2):
        for sx in range(4):
            S.append(f"v_mfma_f32_32x32x16_bf16 {v(Q+16*nh,16)}, {v(AG+(sx*2+nh)*4,4)}, {v(FX+4*sx,4)}, {'0' if sx == 0 else v(Q+16*nh,16)}")
    S += ["s_waitcnt vmcnt(5)"] + ps(3) + ["s_barrier"] + ps(4)
    S += [st_addr(0), "s_mov_b64 exec, s[60:61]", st_read(0), "s_mov_b64 exec, -1"]
    for j in range(1, 4): S += [st_addr(j), st_read(j)]
    S += [f"s_mov_b32 s74, {f32(-LOG2E)}", f"s_mov_b32 s75, {f32(-LOG2E)}"]
    S += [("@W", "D0", None)] + ps(5) + [fx_read(0, sx) for sx in range(4)]
    S += [f"v_pk_mul_f32 {v(Q+2*i,2)}, {v(Q+2*i,2)}, s[74:75]" for i in range(16)] + [("@W", None, "fx0")]
    c00 = chain(0, 0)
    S += [c00[0], "s_nop 7", "s_nop 7"] + c00[1:] + d_pre(1, 1) + d_load(1, 1) + x_dma(1) + [f"v_and_or_b32 v{L2+i}, v{L2+i}, s{sM7}, v{CX+i}" for i in range(4)] + ps(6)
    if MODE: S += [f"s_mov_b32 s90, s{sT}", f"s_mov_b32 s98, s{sL}", "s_memtime s[94:95]", "s_waitcnt lgkmcnt(0)"]
    if MODE == "top": S += ["s_memrealtime s[84:85]", "s_waitcnt lgkmcnt(0)"]
    def phase(nh, t, mf, fill):
        Db, Ab = D + 16*nh, AG + 16*nh
        c = vCr + t % 5
        cp = f"{v(c & ~1, 2)} " + ("op_sel_hi:[1,0]" if c % 2 == 0 else "op_sel:[0,1] op_sel_hi:[1,1]")
        seq = []
        mf = mf + [None] * (3 - len(mf))
        for q in range(2):
            ex = [f"v_exp_f32 v{T+i}, v{Db+8*q+i}" for i in range(8)]
            rc = [f"v_rcp_f32 v{T+i}, v{T+i}" for i in range(8)]
            ad = [f"v_pk_add_f32 {v(T+2*i,2)}, {v(T+2*i,2)}, {cp}" for i in range(4)]
            fm = [f"v_pk_fma_f32 {v(Ab+8*q+2*i,2)}, {v(Db+8*q+2*i,2)}, {v(T+2*i,2)}, {v(Ab+8*q+2*i,2)}" for i in range(4)]
            if t == 0: fm = [f"v_pk_mul_f32 {v(Ab+8*q+2*i,2)}, {v(Db+8*q+2*i,2)}, {v(T+2*i,2)}" for i in range(4)]
            if q == 0: seq += [mf[0]] + ex + ad + [mf[1]] + rc + fm
            else: seq += [mf[2]] + ex + ad + rc + fm
        res = []; n = 0
        for l in seq:
            if l is None: continue
            res.append(l)
            if l.startswith(("v_exp", "v_rcp")):
                res += fill.get(n, []); n += 1
        def txt(l): return l[0] if isinstance(l, tuple) else l
        ab = OPT["abl"]
        if "novm" in ab: res = [l for l in res if not txt(l).startswith(("buffer_", "s_add_u32 m0", "s_mov_b64 exec")) and not (txt(l) == "@W" and l[1])]
        if "nolds" in ab: res = [l for l in res if not txt(l).startswith("ds_") and not (txt(l) == "@W" and l[2])]
        if "nomf" in ab: res = [l for l in res if not txt(l).startswith(("v_mfma", "v_smf"))]
        if "nova" in ab: res = [l for l in res if not txt(l).startswith(("v_and_or", "v_xor", "v_cmp"))]
        return res
    for t in range(LMAX):
        fill = {}
        if t + 4 < LMAX:
            fill[0] = [le_read(t + 4, 0)]
            fill[10] = [("@W", None, f"le{t+4}"), st_addr(0)]; fill[11] = [st_read(t + 4)]
        if t + 3 < LMAX: fill[1] = [ls_read(t + 3, S4)]
        if t + 1 < LMAX:
            fill[16] = [("@W", f"X{t+1}", None)]
            for sx in range(4): fill[17+sx] = [fx_read(t + 1, sx)]
        if t + 3 < LMAX:
            xa = x_addr(S4)
            fill[24] = [("@W", None, f"ls{t+3}"), xa[0]]; fill[25] = [xa[1]]; fill[26] = [xa[2]]; fill[27] = [xa[3]]
        if t == 0:
            fill[2] = d_pre(2, 2); fill[3] = d_load(2, 2)
            dm = x_dma(2, nop=False, reg=L2)
            for i, pos in enumerate((4, 5, 6, 7, 12, 13, 14, 15)): fill[pos] = [dm[i]]
            fill[28] = d_pre(3, 3); fill[29] = d_load(3, 3)
        if int(OPT["prio"]) == 1: S.append("s_setprio 1")
        S += phase(0, t, chain(1, t), fill)
        if int(OPT["prio"]) == 1: S.append("s_setprio 0")
        fill = {}
        if t + 1 < LMAX: fill[0] = [("@W", None, f"fx{t+1}")]
        if t + 3 < LMAX:
            dm = x_dma(t + 3, nop=False)
            for i in range(8): fill[1+i] = [dm[i]]
        if t + 4 < LMAX:
            dp = d_pre(t + 4, 0)
            fill[9] = [dp[0]]; fill[12] = d_load(t + 4, 0); fill[13] = [dp[1]]
        fill[31] = [f"s_cmp_eq_u32 s{sT}, {t+1}"]
        S += phase(1, t, chain(0, t + 1) if t + 1 < LMAX else [], fill)
        if t + 1 < LMAX: S.append("s_cbranch_scc1 M_FLUSH")
    emit(resolve(S))
    a("M_FLUSH:")
    stamp("top", 5); stamp("epi", 1)
    if MODE: a("s_memtime s[96:97]\ns_waitcnt lgkmcnt(0)")
    a("s_waitcnt vmcnt(0)")
    for i in range(8):
        a(f"ds_write_b128 v{da}, {v(AG+4*i,4)} offset:{32*i}")
    A0, A1, A2, OWN, PAR = D, D + 16, Q, Q + 16, Q + 24
    a(f"""
    M_BEND:
    v_cmp_gt_u32 vcc, 0x3f4, v{kk}
    s_mov_b32 s74, {f32(-1.0/LOG2E)}
    s_mov_b32 s75, {f32(-1.0/LOG2E)}
    s_waitcnt lgkmcnt(0)
    """)
    stamp("epi", 2)
    a("s_barrier")
    stamp("epi", 3)
    offs = (0, 16, 64, 80)
    for i in range(4):
        for buf, ca in ((A0, ca0), (A1, ca1), (A2, ca2)):
            a(f"ds_read_b128 {v(buf+4*i,4)}, v{ca} offset:{offs[i]}")
    for i in range(4):
        a(f"s_waitcnt lgkmcnt({9-3*i})")
        for j in range(2): a(f"v_pk_add_f32 {v(A0+4*i+2*j,2)}, {v(A0+4*i+2*j,2)}, {v(A1+4*i+2*j,2)}")
        for j in range(2): a(f"v_pk_add_f32 {v(A0+4*i+2*j,2)}, {v(A0+4*i+2*j,2)}, {v(A2+4*i+2*j,2)}")
    a(f"""
    s_cbranch_vccz M_SUMD
    s_movk_i32 s{sA}, 0x3f4
    M_SUML:
    s_mov_b64 exec, vcc
    """)
    for i in range(4):
        a(f"ds_read_b128 {v(A1+4*i,4)}, v{ca3} offset:{offs[i]}")
    a(f"s_sub_u32 s{sA}, s{sA}, 4\nv_add_u32 v{ca3}, 272, v{ca3}\ns_waitcnt lgkmcnt(0)")
    for i in range(8): a(f"v_pk_add_f32 {v(A0+2*i,2)}, {v(A0+2*i,2)}, {v(A1+2*i,2)}")
    a(f"""
    s_mov_b64 exec, -1
    v_cmp_gt_i32 vcc, s{sA}, v{kk}
    s_nop 4
    s_cbranch_vccnz M_SUML
    M_SUMD:
    s_cmp_le_u32 s{sNMAX}, s{sCAP}
    s_cbranch_scc1 M_EPI
    """)
    srd_off(a, 56, 10, WS_SP, 2048 * 4096)
    a(f"""
    s_lshl_b32 s{sA}, s2, 3
    s_add_u32 s{sA}, s{sA}, s{sW}
    s_lshl_b32 s{sA}, s{sA}, 12
    s_cmp_eq_u32 s{sBASE}, 0
    s_cbranch_scc1 M_NOLD
    """)
    for i in range(4):
        a(f"buffer_load_dwordx4 {v(A1+4*i,4)}, v{l16}, s[56:59], s{sA} offen offset:{1024*i} sc0 sc1")
    a("s_waitcnt vmcnt(0)")
    for i in range(8): a(f"v_pk_add_f32 {v(A0+2*i,2)}, {v(A0+2*i,2)}, {v(A1+2*i,2)}")
    a(f"""
    M_NOLD:
    s_add_u32 s{sBASE}, s{sBASE}, s{sCAP}
    s_cmp_ge_u32 s{sBASE}, s{sNMAX}
    s_cbranch_scc1 M_EPI
    """)
    for i in range(4):
        a(f"buffer_store_dwordx4 {v(A0+4*i,4)}, v{l16}, s[56:59], s{sA} offen offset:{1024*i} sc0 sc1")
    a(f"""
    M_AGAIN:
    s_load_dwordx2 s[60:61], s[0:1], 32
    s_waitcnt vmcnt(0) lgkmcnt(0)
    s_barrier
    """)
    srd(a, 56, 60, 18432)
    a(f"""
    s_lshl_b32 s{sA}, s{sW}, 10
    s_add_u32 s{sA}, s{sA}, 8192
    s_add_u32 m0, s{sA}, {S_W}
    v_lshlrev_b32 v{t0}, 2, v0
    buffer_load_dwordx4 v{l16}, s[56:59], s{sA} offen lds
    ds_write_b32 v{t0}, v{nta}
    v_add_u32 v{t0}, {L_C8}, v{t0}
    ds_write_b32 v{t0}, v{nta}
    ds_write_b32 v{t0}, v{nta} offset:2048
    """)
    xrows()
    a("s_waitcnt vmcnt(0)\ns_barrier")
    w2read()
    a(f"""
    s_waitcnt lgkmcnt(0)
    s_barrier
    s_branch M_BATCH
    M_EPI:
    """)
    srd(a, 56, 8, 3200000)
    for i in range(8): a(f"v_pk_mul_f32 {v(A0+2*i,2)}, {v(A0+2*i,2)}, s[74:75]")
    for i in range(8): a(f"v_cvt_pk_bf16_f32 v{OWN+i}, v{A0+2*i}, v{A0+2*i+1}")
    a(f"""
    ds_write_b128 v{fa}, {v(OWN,4)} offset:{L_FE}
    ds_write_b128 v{fa}, {v(OWN+4,4)} offset:{L_FE+1024}
    v_xor_b32 v{fa}, 0x800, v{fa}
    v_mfma_f32_32x32x16_bf16 {v(U0,16)}, {v(WU,4)}, {v(OWN,4)}, {v(U0,16)}
    v_mfma_f32_32x32x16_bf16 {v(U0,16)}, {v(WU+4,4)}, {v(OWN+4,4)}, {v(U0,16)}
    s_lshl_b32 s{sA}, s{sSB}, 6
    s_add_u32 s{sA}, s{sA}, s{sS0}
    s_mov_b32 s74, {f32(-LOG2E)}
    s_mov_b32 s75, {f32(-LOG2E)}
    s_waitcnt lgkmcnt(0)
    s_barrier
    """)
    stamp("epi", 4)
    a(f"""
    ds_read_b128 {v(PAR,4)}, v{fa} offset:{L_FE}
    ds_read_b128 {v(PAR+4,4)}, v{fa} offset:{L_FE+1024}
    s_waitcnt lgkmcnt(1)
    v_mfma_f32_32x32x16_bf16 {v(U0,16)}, {v(WU+8,4)}, {v(PAR,4)}, {v(U0,16)}
    s_waitcnt lgkmcnt(0)
    v_mfma_f32_32x32x16_bf16 {v(U0,16)}, {v(WU+12,4)}, {v(PAR+4,4)}, {v(U0,16)}
    s_nop 11
    """)
    for q in range(2):
        b = 8 * q
        for i in range(4): a(f"v_pk_mul_f32 {v(AG+b+2*i,2)}, {v(U0+b+2*i,2)}, s[74:75]")
        for i in range(8): a(f"v_exp_f32 v{AG+b+i}, v{AG+b+i}")
        for i in range(4): a(f"v_pk_add_f32 {v(AG+b+2*i,2)}, {v(AG+b+2*i,2)}, 1.0 op_sel_hi:[1,0]")
        for i in range(8): a(f"v_rcp_f32 v{AG+b+i}, v{AG+b+i}")
        for i in range(4): a(f"v_pk_mul_f32 {v(AG+b+2*i,2)}, {v(U0+b+2*i,2)}, {v(AG+b+2*i,2)}")
        for i in range(4): a(f"v_cvt_pk_bf16_f32 v{D+4*q+i}, v{AG+b+2*i}, v{AG+b+2*i+1}")
        a(f"buffer_store_dwordx4 {v(D+4*q,4)}, v{oa}, s[56:59], s{sA} offen offset:{16*q}")
    if MODE:
        stamp("epi", 5)
        a("s_waitcnt vmcnt(0)")
        stamp("top", 6); stamp("epi", 6)
        a(f"s_lshl_b32 s74, s2, 3\ns_add_u32 s74, s74, s{sW}\ns_lshl_b32 s74, s74, 6\ns_add_u32 s74, s74, {WS_ST+0x80000}\ns_load_dwordx2 s[10:11], s[0:1], 64\ns_waitcnt lgkmcnt(0)\ns_add_u32 s52, s10, s74\ns_addc_u32 s53, s11, 0\nv_mov_b32 v0, 0")
        for i in range(8):
            a(f"v_mov_b32 v1, s{76+2*i}\nglobal_store_dword v0, v1, s[52:53] offset:{4*i}")
        a("s_sub_u32 s96, s96, s94\nv_mov_b32 v1, s96\nglobal_store_dword v0, v1, s[52:53] offset:32\nv_mov_b32 v1, s98\nglobal_store_dword v0, v1, s[52:53] offset:36")
    a("M_END:\ns_endpgm")
    return R.n

hdr = f"""; MPNN edge-MLP + segment-sum + node update in one launch of 256 co-resident workgroups:
; @launch grid=(256,1,1) block=(512,1,1) lds={MAIN_LDS}
.amdgcn_target "amdgcn-amd-amdhsa--gfx950"
.text
.globl {KN}
.type {KN},@function
"""
nv = gen()
txt = hdr + a.text() + '.section .rodata,"a"\n.p2align 6\n' + kdesc(KN, 256, 102)
open(sys.argv[1], "w").write(txt)
print("vgprs", nv, "lds", MAIN_LDS)
```

```python
import sys
src = open(sys.argv[1]).read().replace("; @launch grid=", "; @launch kernel=standalone__mpnn_edge_mlp__graph_kernel grid=")
A = sys.argv[3].split(":"); B = sys.argv[4].split(":")
NW = {0: 250*16, 1: 256*8}
def red(spec, sreg):
    op, region, idx = spec[0], int(spec[1]), int(spec[2])
    if op == "avg":
        base = 0x700000 + region*0x80000 + idx*4
        o = f"v_mov_b32 v2, 0\ns_mov_b32 s20, {base}\ns_mov_b32 s21, 31\nDLA:\nbuffer_load_dword v3, v1, s[8:11], s20 offen sc0 sc1\ns_waitcnt vmcnt(0)\nv_subrev_u32 v3, s30, v3\nv_add_u32 v2, v2, v3\ns_add_u32 s20, s20, 4096\ns_sub_u32 s21, s21, 1\ns_cmp_lg_u32 s21, 0\ns_cbranch_scc1 DLA\n"
        o += f"s_nop 1\nv_readlane_b32 s{sreg}, v2, 0\n"
        for l in range(1, 64): o += f"v_readlane_b32 s22, v2, {l}\ns_nop 0\ns_add_u32 s{sreg}, s{sreg}, s22\n"
        o += f"s_mul_hi_u32 s{sreg}, s{sreg}, {(1<<32)//(31*64)}\ns_add_u32 s{sreg}, s{sreg}, s30\n"
        return o
    base = 0x700000 + region*0x80000 + idx*4
    o = f"v_mov_b32 v2, {'-1' if op=='min' else '0'}\n"
    o += f"s_mov_b32 s20, {base}\n"
    n = NW[region]//64
    lab = f"DL{sreg}"
    o += f"s_mov_b32 s21, {n}\nv_mov_b32 v6, v0\n{lab}:\nbuffer_load_dword v3, v1, s[8:11], s20 offen sc0 sc1\n"
    if region == 1 and "lds=147456" in src:
        o += """v_lshrrev_b32 v7, 3, v6
v_and_b32 v8, 7, v7
v_lshrrev_b32 v7, 3, v7
v_mul_u32_u24 v8, 125, v8
v_add_u32 v9, 125, v8
v_lshrrev_b32 v8, 2, v8
v_lshrrev_b32 v9, 2, v9
v_add_u32 v7, v7, v8
v_cmp_lt_u32 vcc, v7, v9
s_waitcnt vmcnt(0)
s_nop 1
v_cndmask_b32 v3, v2, v3, vcc
"""
    o += f"s_waitcnt vmcnt(0)\nv_{op}_u32 v2, v2, v3\nv_add_u32 v6, 64, v6\ns_add_u32 s20, s20, 4096\ns_sub_u32 s21, s21, 1\ns_cmp_lg_u32 s21, 0\ns_cbranch_scc1 {lab}\n"
    o += f"s_nop 1\nv_readlane_b32 s{sreg}, v2, 0\n"
    for l in range(1, 64):
        o += f"v_readlane_b32 s22, v2, {l}\ns_nop 0\ns_{op}_u32 s{sreg}, s{sreg}, s22\n"
    return o
k = """.p2align 8
diag_kernel:
s_cmp_ge_u32 s2, 1
s_cbranch_scc1 DEND
s_load_dwordx2 s[4:5], s[0:1], 64
s_waitcnt lgkmcnt(0)
s_mov_b32 s8, s4
s_mov_b32 s9, s5
s_mov_b32 s10, 0x1000000
s_mov_b32 s11, 0x20000
v_lshlrev_b32 v1, 6, v0
""" + red(A, 30) + red(B, 31) + """
s_sub_u32 s32, s31, s30
s_min_u32 s32, s32, 20000
s_mul_i32 s32, s32, 20
s_memrealtime s[34:35]
s_waitcnt lgkmcnt(0)
DSPIN:
s_memrealtime s[36:37]
s_waitcnt lgkmcnt(0)
s_sub_u32 s38, s36, s34
s_cmp_lt_u32 s38, s32
s_cbranch_scc1 DSPIN
DEND:
s_endpgm
"""
kd = """.p2align 6
.amdhsa_kernel diag_kernel
  .amdhsa_next_free_vgpr 16
  .amdhsa_next_free_sgpr 48
  .amdhsa_accum_offset 16
  .amdhsa_group_segment_fixed_size 0
  .amdhsa_kernarg_size 72
  .amdhsa_user_sgpr_count 2
  .amdhsa_user_sgpr_kernarg_segment_ptr 1
  .amdhsa_system_sgpr_workgroup_id_x 1
.end_amdhsa_kernel
"""
lines = src.split("\n")
last = max(i for i, l in enumerate(lines) if l.startswith("; @launch"))
lines.insert(last + 1, "; @launch kernel=diag_kernel grid=(1,1,1) block=(64,1,1) lds=0")
src = "\n".join(lines).replace('.section .rodata', k + '.section .rodata', 1) + kd
open(sys.argv[2], "w").write(src)
```

```python
import sys, struct
from asmlib import *

OPT = dict(abl="", stamp=False, eflags="", M0=1152, ns1=3, es='0,3,2,0', xpos=0, df=1, hlp=0, es0=0, cpf=0, fxp=16, dmp='23,24,25,26,27,28,29,30', dpos=12, sp='0,0,0,0', dl=2, xl=2, osl=4, xw=0, fst=5, cem=1, Y=False, epf=0, skw=256, xe=0, tlb=0, stl=0, eld='', ild='', xld='', wso=0, tch=0, st='sc1', oe=0, otw=2, smf=1, ns2=7, prio=1, ld="sc1")
for arg in sys.argv[2:]:
    k, val = arg.split("=")
    OPT[k] = {"True": True, "False": False}.get(val, val.replace("+", " "))
M0 = int(OPT["M0"])
assert M0 % 32 == 0 and M0 <= 1792 and 3200 - M0 <= 2048
LD = OPT["ld"]
YM = OPT["Y"]
if YM: OPT["es"] = "0,0,0,0"; OPT["ns1"] = 0
KN = "standalone__mpnn_edge_mlp__graph_kernel"

NCH, CH = 250, 3200
WS_REC, WS_O, WS_F2, WS_ST, WS_P, WS_SP, WS_EM = 0, 0x440000, 0x680000, 0x700000, 0x800000, 0x1A00000, 0xB20000
SKW = int(OPT["skw"])
OTS, RCS, EMS = 8192 + SKW, 16384 + SKW, M0 * 32 + SKW
LOG2E = 1.4426950408889634
def f32(x): return "0x%08x" % struct.unpack("<I", struct.pack("<f", x))[0]

a = Asm()
MODE = OPT["stamp"]
def stamp(mode, i):
    if MODE == mode or (MODE and mode == "all"):
        a(f"s_memrealtime s[{76+2*i}:{77+2*i}]\ns_waitcnt lgkmcnt(0)")
def emit(l): a("\n".join(l))

def resolve(stream):
    out = []; vm = []; lg = []
    for it in stream:
        if isinstance(it, tuple) and it[0] == "@W":
            parts = []
            if it[1] is not None:
                idx = max(i for i, t in enumerate(vm) if t == it[1]); n = len(vm) - 1 - idx
                assert n <= 63; parts.append(f"vmcnt({n})")
            if it[2] is not None:
                idx = max(i for i, t in enumerate(lg) if t == it[2]); n = len(lg) - 1 - idx
                parts.append(f"lgkmcnt({min(n, 15)})")
            out.append("s_waitcnt " + " ".join(parts)); continue
        txt, tag = it if isinstance(it, tuple) else (it, None)
        if txt.startswith("buffer_"): vm.append(tag)
        if txt.startswith("ds_"): lg.append(tag)
        out.append(txt)
    return out

LMAX = 17
L_TB = 0
L_CNT = 1024
L_NT = L_CNT + 128
L_MX = L_NT + 16
L_BAS = L_MX + 16
L_F2C = 1408
L_ZR = 1536
L_LS = 2048
LSZ = LMAX * 1024
L_LE = L_LS + LSZ
L_ST = L_LE + LSZ
SCAP = 224
L_XR = L_ST + 8 * SCAP * 32
XRS = 8704
MAIN_LDS = L_XR + 8 * XRS
assert MAIN_LDS <= 163840 and L_XR % 4096 == 0
L_C8 = L_XR + XRS
C8O = XRS
GLO = 6144
XRO = 4096
S_W = L_LS
S_WU = L_XR + 4 * XRS
S_CNT = S_W + 18432
S_STA = S_CNT + 2048
S_SRT = S_STA + 2048
S_E = S_SRT + CH * 4
assert S_E + M0 * 32 <= L_XR + 4096
L_FE = L_LS
DUMMY = 0xC0000000
DFLAG = 1 << 24
SPIN = 200000

def gen():
    R = Regs("v", 1, 256)
    vLS = R.alloc("vLS"); vLE = R.alloc("vLE")
    vCr = R.alloc("vCr", 5)
    RP = R.alloc("RP", 8, 2)
    XA = R.alloc("XA", 4); CX = R.alloc("CX", 4)
    S4 = R.alloc("S4", 4, 4); T = R.alloc("T", 8, 4)
    FX = R.alloc("FX", 16, 4); E = R.alloc("E", 16, 4)
    D = R.alloc("D", 32, 4); Q = R.alloc("Q", 32, 4); AG = R.alloc("AG", 32, 4); W = R.alloc("W", 16, 4)
    U0 = R.alloc("U0", 16, 4); WU = R.alloc("WU", 16, 4); EP = R.alloc("EP", 16, 4)
    SG = R.alloc("SG", 8, 4)
    sa = R.alloc("sa"); lane = R.alloc("lane"); l16 = R.alloc("l16"); m = R.alloc("m"); h = R.alloc("h")
    sac = R.alloc("sac"); lh = R.alloc("lh"); hz = R.alloc("hz"); aN = R.alloc("aN"); one = R.alloc("one"); nta = R.alloc("nta")
    h16 = RP + 1
    def Idf(j): return v(W + 4 * j, 4)
    def W3f(nh): return v(W + 8 + nh * 4, 4)
    def Es(t): return v(E + 4 * (t % 4), 4)
    sX, sE, sREC, sEM, sWS, sP = 16, 20, 24, 28, 32, 36
    sW, sSB, sS0, sSO, sN, sBASE, sCNT, sT, sXRB, sA, sB, sCAP = 40, 41, 42, 43, 44, 45, 46, 47, 48, 49, 50, 51
    sNB, sGL, sNMAX, sG, sL, sM7, sB30, sDF, sNS = 70, 71, 72, 73, 12, 13, 14, 15, 3
    sSTB, sOA, sTAG = 99, 93, 100
    t0, t1, t2, t3, t4, t5, t6, t7 = [T + i for i in range(8)]
    def mk(i): return f"s[{54+2*i}:{55+2*i}]"
    ORD = list(range(7, -1, -1))
    def skip(lab):
        a(f"s_cmp_le_u32 s{sCNT}, 384\ns_cbranch_scc1 {lab}6\ns_cmp_le_u32 s{sCNT}, 448\ns_cbranch_scc1 {lab}7")
    def after(lab, i):
        if i >= 6: a(f"{lab}{i}:")
    ne = 0 if "noe" in OPT["abl"] else 1
    steps = [f"row_shr:{sh} row_mask:0xf bank_mask:0xf bound_ctrl:0" for sh in (1, 2, 4, 8)] + ["row_bcast:15 row_mask:0xa bank_mask:0xf", "row_bcast:31 row_mask:0xc bank_mask:0xf"]

    DS_, SR_, CAD, RNK, PR_ = D, D + 8, D + 16, D + 24, Q
    oA, oB, t16, t4_, idx, rA, rB = [Q + 8 + i for i in range(7)]
    nz = Q + 16
    CS = Q + 20
    NA_, NB_ = M0 // 4, (CH - M0) // 4
    DF = int(OPT["df"])
    SDW = "dst_sel:DWORD dst_unused:UNUSED_PAD src0_sel:DWORD src1_sel:"
    a(f".p2align 8\n{KN}:")
    a(f"""
    s_cmp_ge_u32 s2, 256
    s_cbranch_scc1 M_END
    {"s_memrealtime s[76:77]" if MODE else ""}
    s_load_dwordx4 s[56:59], s[0:1], 16
    s_load_dwordx4 s[4:7], s[0:1], 0
    s_load_dwordx4 s[60:63], s[0:1], 32
    s_load_dwordx4 s[8:11], s[0:1], 48
    s_load_dwordx2 s[64:65], s[0:1], 64
    s_memrealtime s[66:67]
    """)
    a(f"""
    s_setprio 2
    """)
    CPF = int(OPT["cpf"])
    if CPF:
        a(f"""
        s_getpc_b64 s[52:53]
        M_PC:
        s_lshr_b32 s{sA}, s2, 3
        s_lshl_b32 s{sA}, s{sA}, 7
        v_lshrrev_b32 v{t1}, 6, v0
        v_lshlrev_b32 v{t1}, 12, v{t1}
        v_add_u32 v{t1}, s{sA}, v{t1}
        v_min_u32 v{t1}, M_END-M_PC, v{t1}
        global_load_dword v{vCr+4}, v{t1}, s[52:53]
        """)
    a(f"""
    v_lshlrev_b32 v{t16}, 4, v0
    v_mov_b32 v{hz}, 0x80000000
    v_cmp_gt_u32 vcc, {NA_}, v0
    s_mul_i32 s{sA}, s2, 12800
    s_mov_b64 s[52:53], vcc
    v_cndmask_b32 v{rA}, v{hz}, v{t16}, vcc
    v_cmp_gt_u32 vcc, {NB_}, v0
    s_add_u32 s{sB}, s{sA}, {M0*4}
    s_mov_b64 s[54:55], vcc
    v_cndmask_b32 v{rB}, v{hz}, v{t16}, vcc
    s_mov_b32 s{sE+2}, 3200000
    s_mov_b32 s{sE+3}, 0x20000
    s_mov_b32 s{sEM+2}, 3200000
    s_mov_b32 s{sEM+3}, 0x20000
    v_lshlrev_b32 v{t4_}, 2, v0
    v_mov_b32 v{nta}, 0
    v_lshrrev_b32 v{t0}, 6, v0
    s_waitcnt lgkmcnt(0)
    """)
    stamp("ka", 1)
    a(f"""
    s_mov_b32 s{sE}, s58
    s_mov_b32 s{sE+1}, s59
    s_mov_b32 s{sEM}, s56
    s_mov_b32 s{sEM+1}, s57
    buffer_load_dwordx4 {v(DS_,4)}, v{rA}, s[{sE}:{sE+3}], s{sA} offen {OPT['ild']}
    buffer_load_dwordx4 {v(DS_+4,4)}, v{rB}, s[{sE}:{sE+3}], s{sB} offen {OPT['ild']}
    {"" if DF else f"buffer_load_dwordx4 {v(SR_,4)}, v{rA}, s[{sEM}:{sEM+3}], s{sA} offen"}
    {"" if DF else f"buffer_load_dwordx4 {v(SR_+4,4)}, v{rB}, s[{sEM}:{sEM+3}], s{sB} offen"}
    ds_write_b32 v{t4_}, v{nta} offset:{S_CNT}
    ds_write_b32 v{t4_}, v{nta}
    v_readfirstlane_b32 s{sW}, v{t0}
    s_setprio 0
    """)
    srd(a, sP, 10, 256)
    a(f"""
    s_cmp_lt_u32 s2, {NCH}
    s_cbranch_scc1 S_NOTAG
    """)
    HLP = int(OPT["hlp"])
    if HLP:
        a(f"""
        v_and_b32 v{t1}, 63, v0
        v_lshl_add_u32 v{t1}, v{t1}, 3, v{t0}
        v_lshlrev_b32 v{t2}, {HLP}, v{t1}
        v_cmpx_gt_u32 vcc, {(WS_EM + 256*EMS + (1<<HLP) - 1) >> HLP}, v{t1}
        global_load_dword v{vCr+4}, v{t2}, s[64:65]
        s_mov_b64 exec, -1
        s_waitcnt vmcnt(0)
        """)
    a(f"""
    s_cmp_lg_u32 s{sW}, 7
    s_cbranch_scc1 S_NOTAG
    s_or_b32 s{sA}, s66, 1
    v_mov_b32 v{nz}, s{sA}
    v_mov_b32 v{nz+1}, s67
    v_mov_b32 v{nz+2}, 0
    v_mov_b32 v{nz+3}, 0
    s_mov_b64 exec, 1
    buffer_atomic_cmpswap_x2 {v(nz,4)}, v{nta}, s[{sP}:{sP+3}], 0 offen sc1
    s_mov_b64 exec, -1
    s_waitcnt vmcnt(0)
    S_NOTAG:
    s_mov_b32 s68, s10
    s_mov_b32 s69, s11
    s_add_u32 s10, s64, {int(str(OPT["wso"]), 0)}
    s_addc_u32 s11, s65, 0
    s_cmp_lt_u32 s2, {NCH}
    s_cselect_b64 s[52:53], s[52:53], 0
    s_cselect_b64 s[54:55], s[54:55], 0
    v_and_b32 v{lane}, 63, v0
    v_lshlrev_b32 v{l16}, 4, v{lane}
    s_mul_i32 s{sL}, s2, {CH*32}
    s_lshl_b32 s{sT}, s{sW}, 10
    """)
    srd(a, sREC, 6, 0 if "nomv" in OPT["abl"] else 25600000)
    a(f"s_mul_i32 s{sA}, s2, 12800\ns_add_u32 s{sB}, s{sA}, {M0*4}\ns_waitcnt lgkmcnt(0)\ns_barrier")
    if DF: a(f"buffer_load_dwordx4 {v(SR_,4)}, v{rA}, s[{sEM}:{sEM+3}], s{sA} offen\nbuffer_load_dwordx4 {v(SR_+4,4)}, v{rB}, s[{sEM}:{sEM+3}], s{sB} offen")
    if int(OPT["stl"]):
        a(f"""
        s_lshl_b32 s{sA}, s{sW}, 21
        s_add_u32 s{sB}, s{sA}, 0x1000000
        s_min_u32 s{sN}, s{sB}, {WS_EM + 256*EMS - 64}
        s_load_dword s66, s[10:11], s{sA}
        s_load_dword s66, s[10:11], s{sN}
        s_min_u32 s{sN}, s{sB}, {25600000 - 64}
        s_load_dword s66, s[6:7], s{sA}
        s_load_dword s66, s[6:7], s{sN}
        s_and_b32 s{sA}, s{sA}, 0x200000
        s_load_dword s66, s[8:9], s{sA}
        """)
    npiece = 0 if YM else M0 // 32
    nr = (npiece + 7) // 8
    ES = [int(x) for x in OPT["es"].split(",")]
    assert sum(ES) == nr
    EC = [sum(ES[:i]) for i in range(5)]
    def edma(slot):
        for r in range(EC[slot], EC[slot+1]):
            if (r + 1) * 8 > npiece:
                a(f"s_min_u32 s{sT}, s{sT}, {(npiece - 8*r - 1)*1024}")
            a(f"s_add_u32 m0, s{sT}, {S_E + r*8192}\ns_add_u32 s{sA}, s{sT}, {r*8192}\ns_add_u32 s{sA}, s{sA}, s{sL}\nbuffer_load_dwordx4 v{l16}, s[{sREC}:{sREC+3}], s{sA} offen {OPT['eld']} lds")
    srd(a, sX, 4, 3200000)
    srd(a, sP, 60, 18432)
    def xrows():
        a(f"""
        v_lshrrev_b32 v{t0}, 4, v{lane}
        v_xor_b32 v{t0}, v{t0}, v{lane}
        v_and_b32 v{t0}, 7, v{t0}
        v_and_b32 v{t1}, 0x380, v{l16}
        v_lshl_or_b32 v{t0}, v{t0}, 4, v{t1}
        v_xor_b32 v{t1}, 64, v{t0}
        s_add_u32 m0, s{sGL}, {XRO - GLO}
        s_lshl_b32 s{sA}, s{sW}, 11
        s_add_u32 s{sB}, s{sA}, s{sS0}
        buffer_load_dwordx4 v{t0}, s[{sX}:{sX+3}], s{sB} offen {OPT['xld']} lds
        buffer_load_dwordx4 v{t1}, s[{sX}:{sX+3}], s{sB} offen offset:1024 {OPT['xld']} lds
        """)
    a(f"""
    s_and_b32 s74, s2, 7
    s_lshl_b32 s74, s74, 5
    s_lshr_b32 s{sA}, s2, 3
    s_add_u32 s74, s74, s{sA}
    s_lshl_b32 s{sA}, s74, 17
    s_add_u32 s{sA}, s{sA}, 1337
    s_mul_hi_u32 s{sS0}, s{sA}, 3209991
    s_add_u32 s{sA}, s{sA}, 131072
    s_mul_hi_u32 s{sNB}, s{sA}, 3209991
    s_min_u32 s{sNB}, s{sNB}, 25000
    s_sub_u32 s{sNB}, s{sNB}, s{sS0}
    s_and_b32 s{sSB}, s{sW}, 1
    s_lshl_b32 s{sSO}, s74, 1
    s_add_u32 s{sSO}, s{sSO}, s{sSB}
    s_mul_i32 s{sSO}, s{sSO}, 49
    s_sub_u32 s{sSO}, s{sSO}, s{sS0}
    s_sub_u32 s{sSO}, s{sSO}, 9
    s_lshl_b32 s{sS0}, s{sS0}, 7
    s_mul_i32 s{sGL}, s{sW}, {XRS}
    s_add_u32 s{sGL}, s{sGL}, {L_XR + GLO}
    """)
    XPOS = int(OPT["xpos"])
    def xw1():
        xrows()
        a(f"""
        s_lshl_b32 s{sA}, s{sW}, 10
        s_add_u32 m0, s{sA}, {S_W}
        s_mov_b32 s{sB}, -49
        buffer_load_dwordx4 v{l16}, s[{sP}:{sP+3}], s{sA} offen lds
        """)
    if XPOS == 0: xw1()
    TLB = int(OPT["tlb"])
    srd(a, sWS, 10, 0x1000000)
    if TLB:
        a(f"""
        v_lshl_add_u32 v{t0}, v{lane}, 3, s{sW}
        v_lshlrev_b32 v{t0}, 20, v{t0}
        buffer_load_dword v{vCr+4}, v{t0}, s[{sWS}:{sWS+3}], 0 offen
        """)
    ES0 = int(OPT["es0"])
    if ES0:
        a(f"s_mul_i32 s{sA}, s2, {RCS}\nbuffer_store_dwordx4 {v(FX,4)}, v{t16}, s[{sWS}:{sWS+3}], s{sA} offen sc1")
    edma(0)
    a(f"""
    v_mov_b32 v{one}, 1
    v_mov_b32 v{t7}, 0x10000
    v_lshlrev_b32 v{idx}, 23, v0
    v_add_u32 v{idx}, 9, v{idx}
    v_lshlrev_b32 v{t6}, 5, v{lane}
    s_mov_b32 s{sB}, -49
    s_mov_b32 s{sM7}, {1<<21}
    s_mov_b32 s{sB30}, {2<<21}
    s_mov_b32 s{sDF}, {3<<21}
    s_setprio 2
    """)
    stamp("ka", 2)
    a(f"""
    s_waitcnt vmcnt({EC[1]+2+ES0+(3 if XPOS == 0 else 0)})
    """)
    stamp("srt", 1); stamp("ka", 3)
    for g in range(2):
        for i in range(4*g, 4*g + 4):
            a(f"v_mul_u32_u24 v{PR_+i}, 1338, v{DS_+i}\nv_lshlrev_b32_sdwa v{CAD+i}, 2, v{PR_+i} {SDW}WORD_1")
        a(f"s_mov_b64 exec, {'s[52:53]' if g == 0 else 's[54:55]'}")
        for i in range(4*g, 4*g + 4): a(f"ds_add_rtn_u32 v{RNK+i}, v{CAD+i}, v{one if g == 0 else t7} offset:{S_CNT}")
        a("s_mov_b64 exec, -1")
    edma(1)
    if XPOS == 1: xw1()
    TCH = int(OPT["tch"])
    if TCH:
        a(f"""
        v_lshl_add_u32 v{t0}, v{lane}, 3, s{sW}
        v_cmpx_gt_u32 vcc, {(WS_EM + 256*EMS + (1<<21) - 1) >> 21}, v{t0}
        v_lshlrev_b32 v{t0}, 21, v{t0}
        global_load_dword v{vCr+4}, v{t0}, s[10:11]
        s_mov_b64 exec, -1
        """)
    def recs(rng):
        o = []
        for i in rng:
            o += [f"v_mad_i32_i16 v{PR_+i}, v{PR_+i}, s{sB}, v{DS_+i} op_sel:[1,0,0,0]", f"v_lshl_add_u32 v{PR_+i}, v{SR_+i}, 6, v{PR_+i}",
                  f"v_add3_u32 v{PR_+i}, v{PR_+i}, v{idx}, {('0', f's{sM7}', f's{sB30}', f's{sDF}')[i%4]}"]
        return o
    a("s_waitcnt lgkmcnt(0)\ns_barrier")
    stamp("srt", 2); stamp("tag", 1); stamp("ka", 4)
    OTG = S4
    a(f"""
    ds_read_b128 {v(CS,4)}, v{t6} offset:{S_CNT}
    ds_read_b128 {v(CS+4,4)}, v{t6} offset:{S_CNT+16}
    ds_read_b32 v{OTG+1}, v{t4_} offset:{S_CNT}
    s_waitcnt vmcnt({EC[2]+3+ES0})
    """)
    emit(recs(range(4)))
    a("s_waitcnt lgkmcnt(1)")
    for j in range(1, 8): a(f"v_add_u32 v{CS+j}, v{CS+j}, v{CS+j-1}")
    a(f"v_mov_b32 v{CS+8}, v{CS+7}")
    rr = recs(range(4, 8))
    for n, stp in enumerate(steps): a(f"{rr[2*n]}\n{rr[2*n+1]}\nv_add_u32_dpp v{CS+8}, v{CS+8}, v{CS+8} {stp}")
    a(f"v_sub_u32 v{CS+8}, v{CS+8}, v{CS+7}\nv_add_u32 v{CS+8}, {M0<<16}, v{CS+8}")
    for j in range(7, 0, -1): a(f"v_add_u32 v{CS+j}, v{CS+j-1}, v{CS+8}")
    a(f"""
    v_mov_b32 v{CS}, v{CS+8}
    ds_write_b128 v{t6}, {v(CS,4)} offset:{S_STA}
    ds_write_b128 v{t6}, {v(CS+4,4)} offset:{S_STA+16}
    """)
    for i in range(8): a(f"ds_read_b32 v{DS_+i}, v{CAD+i} offset:{S_STA}")
    a(f"ds_read_b32 v{OTG}, v{t4_} offset:{S_STA}")
    edma(2)
    for i in range(8):
        if i % 4 == 0: a(f"s_mov_b64 exec, {'s[52:53]' if i == 0 else 's[54:55]'}")
        a(f"""
        s_waitcnt lgkmcnt(8)
        v_add_u32 v{DS_+i}, v{DS_+i}, v{RNK+i}
        v_lshlrev_b32_sdwa v{DS_+i}, 2, v{DS_+i} {SDW}{'WORD_0' if i < 4 else 'WORD_1'}
        ds_write_b32 v{DS_+i}, v{PR_+i} offset:{S_SRT}
        """)
    a("s_mov_b64 exec, -1")
    stamp("srt", 3); stamp("ka", 5)
    a(f"s_load_dwordx2 s[{sTAG}:{sTAG+1}], s[68:69], 0")
    a(f"""
    v_lshrrev_b32 v{t1}, 1, v0
    v_lshlrev_b32 v{t1}, 2, v{t1}
    s_waitcnt vmcnt({EC[3] if XPOS == 0 else ES[2]}) lgkmcnt(0)
    s_barrier
    """)
    if MODE == "ka": a("s_waitcnt vmcnt(0)")
    stamp("srt", 4); stamp("tag", 2); stamp("ka", 6)
    no = 0 if YM else (M0 + 255) // 256
    a(f"ds_read_b128 {v(D,4)}, v{t16} offset:{S_SRT}\nds_read_b128 {v(D+4,4)}, v{t16} offset:{S_SRT+M0*4}")
    for r in range(no): a(f"ds_read_b32 v{SG+r}, v{t1} offset:{S_SRT+1024*r}")
    edma(3)
    a(f"""
    s_mul_i32 s{sA}, s2, {RCS}
    s_add_u32 s{sB}, s{sA}, 8192
    v_and_b32 v{t2}, 1, v0
    v_lshlrev_b32 v{t2}, 4, v{t2}
    s_waitcnt lgkmcnt({no})
    buffer_store_dwordx4 {v(D,4)}, v{rA}, s[{sWS}:{sWS+3}], s{sA} offen sc1
    buffer_store_dwordx4 {v(D+4,4)}, v{rB}, s[{sWS}:{sWS+3}], s{sB} offen sc1
    """)
    stamp("tag", 3)
    a(f"""
    s_mul_i32 s{sN}, s2, {OTS}
    s_add_u32 s{sN}, s{sN}, {WS_O}
    s_mov_b32 s{sB}, 0
    s_cmp_lg_u32 s{sTAG}, 0
    s_cbranch_scc1 S_TAGD
    S_TAGL:
    s_sleep 8
    global_load_dwordx2 {v(OTG+2,2)}, v{nta}, s[68:69] sc1
    s_add_u32 s{sB}, s{sB}, 1
    s_cmp_gt_u32 s{sB}, {SPIN}
    s_cbranch_scc1 M_END
    s_waitcnt vmcnt(0)
    v_readfirstlane_b32 s{sTAG}, v{OTG+2}
    v_readfirstlane_b32 s{sTAG+1}, v{OTG+3}
    s_nop 0
    s_cmp_eq_u32 s{sTAG}, 0
    s_cbranch_scc1 S_TAGL
    S_TAGD:
    """)
    stamp("tag", 4)
    a(f"""
    v_add_u32 v{OTG}, {(2048-M0)<<16}, v{OTG}
    v_mov_b32 v{OTG+2}, s{sTAG}
    v_mov_b32 v{OTG+3}, s{sTAG+1}
    buffer_store_dwordx4 {v(OTG,4)}, v{t16}, s[{sWS}:{sWS+3}], s{sN} offen sc1
    s_movk_i32 s{sB}, {(M0 - 256*(no-1))*2}
    v_cmp_gt_u32 vcc, s{sB}, v0
    v_mov_b32 v{t4}, v{t16}
    v_and_b32 v{m}, 31, v{lane}
    v_lshrrev_b32 v{h}, 5, v{lane}
    v_cndmask_b32 v{t6}, v{hz}, v{t16}, vcc
    v_lshlrev_b32 v{t0}, 3, v0
    v_add_u32 v{t0}, {L_C8}, v{t0}
    v_mov_b32 v{D+8}, 0
    v_mov_b32 v{D+9}, 0
    ds_write_b64 v{t0}, {v(D+8,2)}
    v_bfe_u32 v{t1}, v{lane}, 2, 2
    v_lshl_add_u32 v{t1}, v{h}, 3, v{t1}
    v_lshlrev_b32 v{t1}, 7, v{t1}
    v_and_b32 v{t3}, 3, v{lane}
    v_lshl_add_u32 v{aN}, v{t3}, 3, v{t1}
    v_and_b32 v{t3}, 16, v{lane}
    v_lshl_add_u32 v{aN}, v{t3}, 1, v{aN}
    v_add_u32 v{t1}, v{t1}, v{t3}
    v_and_b32 v{t3}, 1, v{lane}
    v_lshl_add_u32 v{t1}, v{t3}, 5, v{t1}
    v_and_b32 v{t3}, 2, v{lane}
    v_lshl_add_u32 v{t1}, v{t3}, 2, v{t1}
    s_lshl_b32 s{sA}, s{sSB}, 6
    v_add_u32 v{sa}, s{sA}, v{t1}
    v_bfe_u32 v{sac}, v{m}, 1, 3
    v_xor_b32 v{sac}, v{sac}, v{h}
    v_lshlrev_b32 v{sac}, 4, v{sac}
    v_and_b32 v{t3}, 15, v{m}
    v_lshl_or_b32 v{sac}, v{t3}, 7, v{sac}
    v_lshrrev_b32 v{t3}, 4, v{m}
    v_mul_u32_u24 v{t3}, {XRS}, v{t3}
    s_and_b32 s{sA}, s{sW}, 6
    s_mul_i32 s{sA}, s{sA}, {XRS}
    s_add_u32 s{sA}, s{sA}, {L_XR + XRO}
    v_add3_u32 v{sac}, v{sac}, v{t3}, s{sA}
    s_waitcnt lgkmcnt(1)
    """)
    for r in range(no):
        a(f"v_lshrrev_b32 v{SG+r}, 21, v{SG+r}\nv_lshl_add_u32 v{SG+r}, v{SG+r}, 5, v{t2}")
    srd_off(a, sEM, 10, WS_EM, 0 if "nomv" in OPT["abl"] else 256 * EMS)
    OG = E + 12
    a(f"""
    s_lshl_b32 s{sOA}, s74, 5
    s_lshl_b32 s{sA}, s{sSB}, 4
    s_add_u32 s{sOA}, s{sOA}, s{sA}
    s_lshr_b32 s{sA}, s{sW}, 1
    s_mul_i32 s{sA}, s{sA}, {64*OTS}
    s_add_u32 s{sOA}, s{sOA}, s{sA}
    s_add_u32 s{sOA}, s{sOA}, {WS_O}
    v_mul_u32_u24 v{lh}, {OTS}, v{lane}
    s_mov_b32 s74, {f32(-LOG2E)}
    s_mov_b32 s75, {f32(-LOG2E)}
    """)
    XF, W1t, Wx, PD, EO = FX, AG, EP, AG + 16, Q
    def tr(dst, areg, off):
        a(f"ds_read_b64_tr_b16 {v(dst,2)}, v{areg} offset:{S_W+off}\nds_read_b64_tr_b16 {v(dst+2,2)}, v{areg} offset:{S_W+off+512}")
    def w2read():
        for sx in range(4):
            for nh in range(2): tr(AG + (2*sx + nh)*4, aN, 8192 + 2048*sx + 64*nh)
    for sx in range(4):
        a(f"ds_read_b128 {v(XF+4*sx,4)}, v{sac}" + (f"\nv_xor_b32 v{sac}, {(32, 96, 32)[sx]}, v{sac}" if sx < 3 else ""))
        tr(W1t + 4*sx, sa, 2048*sx)
    a("s_waitcnt lgkmcnt(0)")
    for sx in range(4):
        a(f"v_mfma_f32_32x32x16_bf16 {v(PD,16)}, {v(W1t+4*sx,4)}, {v(XF+4*sx,4)}, {'0' if sx == 0 else v(PD,16)}")
    a(f"""
    v_and_b32 v{t0}, 15, v{m}
    v_mul_u32_u24 v{t0}, 144, v{t0}
    v_lshl_add_u32 v{t0}, v{h}, 5, v{t0}
    v_lshrrev_b32 v{t1}, 4, v{m}
    v_mul_u32_u24 v{t1}, {XRS}, v{t1}
    s_mul_i32 s{sA}, s{sSB}, {64 - XRS}
    s_add_u32 s{sA}, s{sA}, s{sGL}
    v_add3_u32 v{t0}, v{t0}, v{t1}, s{sA}
    v_lshrrev_b32 v{t1}, 3, v{lane}
    v_lshl_add_u32 v{t3}, v{t1}, 4, v{l16}
    v_add_u32 v{t3}, s{sGL}, v{t3}
    s_lshl_b32 s{sA}, s{sW}, 11
    s_lshl_b32 s{sB}, s{sNB}, 7
    v_add_u32 v{t1}, s{sA}, v{l16}
    v_add_u32 v{t5}, 1024, v{t1}
    v_cmp_gt_u32 vcc, s{sB}, v{t1}
    v_cmp_gt_u32 s[52:53], s{sB}, v{t5}
    s_mov_b32 s{sCAP}, 512
    s_mov_b32 s{sBASE}, 0
    v_cndmask_b32 v{t1}, v{hz}, v{t1}, vcc
    v_cndmask_b32 v{t5}, v{hz}, v{t5}, s[52:53]
    """)
    for i in range(8): a(f"v_pk_mul_f32 {v(PD+2*i,2)}, {v(PD+2*i,2)}, s[74:75]")
    for i in range(8): a(f"v_cvt_pk_bf16_f32 v{PD+i}, v{PD+2*i}, v{PD+2*i+1}")
    a(f"""
    ds_write_b128 v{t0}, {v(PD,4)}
    ds_write_b128 v{t0}, {v(PD+4,4)} offset:16
    """)
    stamp("tag", 5)
    srd(a, sE, 62, 16384)
    a(f"""
    s_lshl_b32 s{sA}, s{sW}, 10
    s_add_u32 s{sA}, s{sA}, 8192
    s_add_u32 m0, s{sA}, {S_W}
    s_lshl_b32 s{sB}, s{sSB}, 10
    buffer_load_dwordx4 v{l16}, s[{sP}:{sP+3}], s{sA} offen lds
    s_add_u32 s{sB}, s{sB}, 16384
    s_add_u32 m0, s{sB}, {S_W}
    s_lshl_b32 s{sA}, s{sW}, 11
    buffer_load_dwordx4 v{l16}, s[{sP}:{sP+3}], s{sB} offen lds
    s_lshr_b32 s{sN}, s{sW}, 1
    s_mul_i32 s{sN}, s{sN}, {XRS - 4096}
    s_add_u32 s{sN}, s{sN}, s{sA}
    s_add_u32 m0, s{sN}, {S_WU}
    s_nop 0
    buffer_load_dwordx4 v{l16}, s[{sE}:{sE+3}], s{sA} offen lds
    buffer_load_dwordx4 v{l16}, s[{sE}:{sE+3}], s{sA} offen offset:1024 lds
    s_add_u32 s{sB}, s{sS0}, {WS_P}
    s_waitcnt vmcnt(7) lgkmcnt(0)
    s_barrier
    """)
    stamp("srt", 5); stamp("top", 1); stamp("tag", 6)
    a(f"ds_read_b128 {v(D+16,4)}, v{t3}\nds_read_b128 {v(D+20,4)}, v{t3} offset:{8*144}")
    for r in range(no): a(f"ds_read_b128 {v(EO+4*r,4)}, v{SG+r} offset:{S_E}")
    a(f"""
    s_waitcnt lgkmcnt({no})
    buffer_store_dwordx4 {v(D+16,4)}, v{t1}, s[{sWS}:{sWS+3}], s{sB} offen sc1
    buffer_store_dwordx4 {v(D+20,4)}, v{t5}, s[{sWS}:{sWS+3}], s{sB} offen sc1
    """)
    CEM = int(OPT["cem"])
    a(f"s_mul_i32 s{sA}, s2, {EMS}" if CEM else f"s_lshl_b32 s{sA}, s2, 17")
    for r in range(no):
        a(f"s_waitcnt lgkmcnt({no-1-r})\nbuffer_store_dwordx4 {v(EO+4*r,4)}, v{t6 if r == no-1 else t4}, s[{sEM}:{sEM+3}], s{sA} offen {OPT['st']}\ns_add_u32 s{sA}, s{sA}, 8192")
    a(f"""
    s_mov_b32 s92, 1
    s_lshl_b32 s{sN}, s2, {int(OPT["fst"])}
    s_add_u32 s{sN}, s{sN}, {WS_F2}
    """)
    stamp("srt", 6); stamp("syn", 1)
    FST = int(OPT["fst"])
    f2r = E + 9
    OE = int(OPT["oe"]); XE = 0
    oload = f"buffer_load_dwordx4 {v(OG,4)}, v{lh}, s[{sWS}:{sWS+3}], s{sOA} offen sc1"
    if OE == 1: a(oload)
    a("s_setprio 0")
    OTW = int(OPT['otw'])
    def wwork():
        a(f"v_add_u32 v{sa}, {S_WU - S_W}, v{sa}\ns_mul_i32 s{sB}, s{sSB}, {XRS}\nv_add_u32 v{t2}, s{sB}, v{sa}\nv_subrev_u32 v{t3}, s{sB}, v{sa}")
        for nh in range(2): tr(D + 8 + 4*nh, aN, 128*128 + 64*nh)
        for sx in range(4): tr(Wx + 4*sx, sa, XRS*(sx>>1) + 2048*(sx&1))
        a("s_waitcnt lgkmcnt(0)")
        for sx in range(4):
            a(f"v_mfma_f32_32x32x16_bf16 {v(U0,16)}, {v(Wx+4*sx,4)}, {v(XF+4*sx,4)}, {'0' if sx == 0 else v(U0,16)}")
        tr(WU, t2, 2*XRS); tr(WU + 4, t2, 2*XRS + 2048); tr(WU + 8, t3, 3*XRS); tr(WU + 12, t3, 3*XRS + 2048)
        w2read()
        for nh in range(2):
            for i in range(4):
                r = D + 8 + 4*nh + i
                a(f"v_lshlrev_b32 v{t0}, 16, v{r}\nv_and_b32 v{t1}, 0xffff0000, v{r}\nv_pk_mul_f32 {v(t0,2)}, {v(t0,2)}, s[74:75]\nv_cvt_pk_bf16_f32 v{W+8+4*nh+i}, v{t0}, v{t1}")
    def lanec():
        srd_off(a, sP, 10, WS_P, 3200000)
        if int(OPT["smf"]):
            a(f"""
            v_and_b32 v{t1}, 1, v{m}
            v_lshlrev_b32 v{t1}, 4, v{t1}
            v_mov_b32 v{t2}, 0x3f80
            v_lshlrev_b32 v{t1}, v{t1}, v{t2}
            v_lshrrev_b32 v{t0}, 2, v{m}
            v_lshlrev_b32 v{t2}, 2, v{h}
            v_sub_u32 v{t0}, v{t0}, v{t2}
            v_bfe_i32 v{t2}, v{m}, 1, 1
            v_and_b32 v{t2}, 0xaaaa, v{t2}
            v_or_b32 v{W+4}, 0x4444, v{t2}
            """)
            for i in range(4):
                a(f"v_cmp_eq_u32 vcc, {i}, v{t0}\ns_nop 1\nv_cndmask_b32 v{W+i}, 0, v{t1}, vcc")
        else:
            a(f"""
            v_lshlrev_b32 v{t0}, 3, v{h}
            v_sub_u32 v{t0}, v{m}, v{t0}
            v_and_b32 v{t1}, 1, v{t0}
            v_lshlrev_b32 v{t1}, 4, v{t1}
            v_mov_b32 v{t2}, 0x3f80
            v_lshlrev_b32 v{t1}, v{t1}, v{t2}
            v_lshrrev_b32 v{t0}, 1, v{t0}
            """)
            for j in range(2):
                for i in range(4):
                    a(f"v_cmp_eq_u32 vcc, {8*j+i}, v{t0}\ns_nop 1\nv_cndmask_b32 v{W+4*j+i}, 0, v{t1}, vcc")
        a(f"""
        s_mul_i32 s{sSTB}, s{sW}, {SCAP*32}
        s_add_u32 s{sSTB}, s{sSTB}, {L_ST}
        s_mov_b32 s{sREC}, s10
        s_or_b32 s{sREC+1}, s11, {4<<16}
        s_mov_b32 s{sREC+2}, {WS_O//4}
        s_mov_b32 s{sREC+3}, 0x20000
        s_sub_u32 s{sE}, s6, {DFLAG*32}
        s_subb_u32 s{sE+1}, s7, 0
        s_or_b32 s{sE+1}, s{sE+1}, {32<<16}
        s_mov_b32 s{sE+2}, {(DFLAG + 800000) * ne}
        s_mov_b32 s{sE+3}, 0x20000
        s_sub_u32 s{sG}, 11, s{sW}
        s_cmp_lt_u32 s{sW}, 4
        s_cselect_b32 s{sG}, s{sW}, s{sG}
        s_mul_i32 s{sXRB}, s{sG}, {XRS}
        s_add_u32 s{sXRB}, s{sXRB}, {L_XR}
        s_mov_b32 s{sM7}, 0xffffff80
        s_mov_b32 s{sB30}, 0x40000000
        s_mov_b32 s{sDF}, {DFLAG}
        v_lshlrev_b32 v{RP+1}, 4, v{h}
        v_lshlrev_b32 v{RP+3}, 4, v{h}
        v_lshlrev_b32 v{RP+5}, 4, v{h}
        v_lshlrev_b32 v{RP+7}, 4, v{h}
        v_lshrrev_b32 v{t0}, 3, v{lane}
        s_lshl_b32 s{sA}, s{sG}, 7
        v_lshl_add_u32 v{vLS}, v{t0}, 4, s{sA}
        v_lshl_add_u32 v{vLE}, v{m}, 2, s{sA}
        v_and_b32 v{t3}, 1, v{t0}
        v_lshlrev_b32 v{t3}, 4, v{t3}
        v_lshl_add_u32 v{sac}, v{lane}, 5, v{t3}
        v_add_u32 v{sac}, s{sSTB}, v{sac}
        v_and_b32 v{t1}, 4, v{t0}
        v_and_b32 v{t2}, 7, v{lane}
        v_xor_b32 v{t1}, v{t1}, v{t2}
        v_lshlrev_b32 v{CX}, 4, v{t1}
        v_xor_b32 v{CX+1}, 16, v{CX}
        v_xor_b32 v{CX+2}, 32, v{CX}
        v_xor_b32 v{CX+3}, 48, v{CX}
        v_and_b32 v{t0}, 3, v{m}
        v_lshrrev_b32 v{t1}, 2, v{m}
        v_lshl_add_u32 v{t1}, v{t0}, 3, v{t1}
        v_lshlrev_b32 v{t1}, 7, v{t1}
        v_add_u32 v{t1}, s{sXRB}, v{t1}
        v_lshrrev_b32 v{t2}, 4, v{m}
        v_lshl_or_b32 v{t0}, v{t2}, 2, v{t0}
        v_xor_b32 v{t0}, v{t0}, v{h}
        v_lshl_add_u32 v{XA}, v{t0}, 4, v{t1}
        v_xor_b32 v{XA+1}, 32, v{XA}
        v_xor_b32 v{XA+2}, 64, v{XA}
        v_xor_b32 v{XA+3}, 0x60, v{XA}
        """)
    lanec()
    if OE == 2: a(oload)
    SP = [int(x) for x in OPT["sp"].split(",")]
    spn = [0]
    def sshot(k):
        for _ in range(SP[k]):
            if spn[0] and spn[0] % 32 == 0: a("s_add_u32 s4, s4, 0x100000\ns_addc_u32 s5, s5, 0")
            a(f"s_load_dword s7, s[4:5], {(spn[0] % 32) * 32768}"); spn[0] += 1
    if sum(SP):
        a(f"""
        s_lshr_b32 s{sA}, s2, 3
        s_lshl_b32 s{sA}, s{sA}, 7
        s_lshl_b32 s{sB}, s{sW}, 12
        s_add_u32 s{sA}, s{sA}, s{sB}
        s_add_u32 s{sA}, s{sA}, {WS_P}
        s_add_u32 s4, s10, s{sA}
        s_addc_u32 s5, s11, 0
        """)
    sshot(0)
    stamp("syn", 2)
    a(f"""
    s_setprio 2
    s_cmp_lg_u32 s{sW}, 0
    s_waitcnt vmcnt(0)
    s_barrier
    s_cbranch_scc1 M_NOPUB
    s_mov_b64 exec, 1
    buffer_store_dwordx2 {v(OTG+2,2)}, v{nta}, s[{sWS}:{sWS+3}], s{sN} offen sc1
    s_mov_b64 exec, -1
    M_NOPUB:
    s_mov_b32 s{sA}, 0
    """)
    stamp("syn", 3)
    a(f"s_nop 7\n{oload}")
    wwork()
    sshot(1)
    a(f"s_mov_b32 s{sA}, 0\ns_waitcnt vmcnt(0)")
    kk12, c0, c1, g0, g1, p0, p1, tt, qa, f2r, fl0 = [E + i for i in range(11)]
    G, RC, NA, RK = D, D + 8, D + 16, D + 24
    TBv = FX
    OFv, CA = EP, EP + 8
    a(f"""
    s_branch M_POLLC
    M_BATCH:
    v_mul_u32_u24 v{lh}, {OTS}, v{lane}
    s_mov_b32 s{sA}, 0
    M_POLL:
    s_sleep {OPT["osl"]}
    buffer_load_dwordx4 {v(OG,4)}, v{lh}, s[{sWS}:{sWS+3}], s{sOA} offen sc1
    s_add_u32 s{sA}, s{sA}, 1
    s_cmp_gt_u32 s{sA}, {SPIN}
    s_cbranch_scc1 M_END
    s_waitcnt vmcnt(0)
    M_POLLC:
    v_cmpx_ne_u64 vcc, s[{sTAG}:{sTAG+1}], {v(OG+2,2)}
    s_cbranch_execnz M_POLL
    s_mov_b64 exec, -1
    s_lshr_b32 s{sA}, s{sW}, 1
    s_lshl_b32 s{sA}, s{sA}, 6
    v_add_lshl_u32 v{kk12}, v{lane}, s{sA}, 12
    v_lshl_add_u32 v{qa}, v{lane}, 2, s{sGL}
    v_mov_b32 v{t1}, 0xffff
    v_lshrrev_b32 v{lh}, 1, v{lane}
    """)
    stamp("pro", 1); stamp("syn", 4)
    a(f"v_and_b32 v{p0}, v{t1}, v{OG+1}\nv_lshrrev_b32 v{p1}, 16, v{OG+1}")
    fl = [f"v_and_or_b32 v{g0}, v{OG}, v{t1}, v{kk12}", f"v_lshrrev_b32 v{g1}, 16, v{OG}", f"v_or_b32 v{g1}, v{g1}, v{kk12}",
          f"v_and_b32 v{c0}, v{t1}, v{OG+1}", f"v_lshrrev_b32 v{c1}, 16, v{OG+1}", "s_nop 0"]
    for n, stp in enumerate(steps):
        a(f"{fl[n]}\nv_add_u32_dpp v{p0}, v{p0}, v{p0} {stp}\nv_add_u32_dpp v{p1}, v{p1}, v{p1} {stp}")
    a(f"""
    v_readlane_b32 s{sNS}, v{p0}, 63
    v_readlane_b32 s{sN}, v{p1}, 63
    v_sub_u32 v{p0}, v{p0}, v{c0}
    v_sub_u32 v{p1}, v{p1}, v{c1}
    s_add_u32 s{sN}, s{sN}, s{sNS}
    v_add_u32 v{p1}, s{sNS}, v{p1}
    s_mov_b32 s{sCNT}, s{sN}
    s_add_u32 s{sA}, s{sN}, s{sBASE}
    s_cmp_le_u32 s{sA}, s{sCAP}
    s_cbranch_scc0 M_WIN
    s_cmp_eq_u32 s{sBASE}, 0
    s_cbranch_scc1 M_NOWIN
    M_WIN:
    s_sub_i32 s{sCNT}, s{sN}, s{sBASE}
    s_max_i32 s{sCNT}, s{sCNT}, 0
    s_min_u32 s{sCNT}, s{sCNT}, s{sCAP}
    s_sub_i32 s{sNS}, s{sNS}, s{sBASE}
    s_max_i32 s{sNS}, s{sNS}, 0
    """)
    for (pp, cc, gg) in ((p0, c0, g0), (p1, c1, g1)):
        a(f"""
        v_subrev_u32 v{tt}, s{sBASE}, v{pp}
        v_max_i32 v{pp}, 0, v{tt}
        v_add_u32 v{cc}, v{tt}, v{cc}
        v_min_i32 v{cc}, s{sCAP}, v{cc}
        v_sub_u32 v{cc}, v{cc}, v{pp}
        v_sub_u32 v{tt}, v{pp}, v{tt}
        v_add_u32 v{gg}, v{gg}, v{tt}
        """)
    a(f"M_NOWIN:\ns_min_u32 s{sNS}, s{sNS}, {0 if YM else SCAP}")
    pa, ca_, ga, gb = t0, t1, t2, t3
    for n, (pp, cc, gg) in enumerate(((p0, c0, g0), (p1, c1, g1))):
        a(f"""
        v_lshl_add_u32 v{pp}, v{pp}, 2, s{sGL}
        v_add_u32 v{ga}, 1, v{gg}
        v_add_u32 v{gb}, 2, v{gg}
        v_mov_b32 v{ca_}, v{cc}
        v_mov_b32 v{pa}, v{pp}
        M_EXP{n}:
        """)
        for r in (1, 3, 5, 7):
            a(f"v_cmpx_lt_i32 vcc, {r}, v{ca_}\nds_write2_b32 v{pa}, v{ga}, v{gb} offset0:{r} offset1:{r+1}\nv_add_u32 v{ga}, 2, v{ga}\nv_add_u32 v{gb}, 2, v{gb}")
        a(f"""
        v_cmpx_lt_i32 vcc, 9, v{ca_}
        v_add_u32 v{pa}, 32, v{pa}
        v_subrev_u32 v{ca_}, 8, v{ca_}
        s_cbranch_execnz M_EXP{n}
        s_mov_b64 exec, -1
        """)
    a(f"""
    v_cmpx_lt_i32 vcc, 0, v{c0}
    ds_write_b32 v{p0}, v{g0}
    s_mov_b64 exec, -1
    v_cmpx_lt_i32 vcc, 0, v{c1}
    ds_write_b32 v{p1}, v{g1}
    s_mov_b64 exec, -1
    """)
    for i in ORD:
        a(f"ds_read_b32 v{G+i}, v{qa} offset:{256*i}")
    a(f"v_lshl_add_u32 v{t1}, v{lh}, 2, s{sGL}")
    for j in range(7):
        a(f"ds_read_b32 v{SG+j}, v{t1} offset:{128*j}")
    for i in ORD:
        a(f"s_sub_i32 s{sA}, s{sCNT}, {64*i}\nv_cmp_gt_i32 {mk(i)}, s{sA}, v{lane}")
    a(f"""
    v_lshrrev_b32 v{t2}, 4, v{lane}
    v_xor_b32 v{t2}, v{t2}, v{lane}
    v_and_b32 v{t2}, 1, v{t2}
    v_lshlrev_b32 v{t2}, 4, v{t2}
    v_mov_b32 v{fl0}, s{sCNT}
    v_mov_b32 v{fl0+1}, s{sN}
    s_waitcnt lgkmcnt(0)
    """)
    if CEM: a(f"s_mov_b32 s{sA}, {EMS//32-4096}")
    for j in range(7):
        if CEM: a(f"v_lshrrev_b32 v{t3}, 12, v{SG+j}\nv_mad_i32_i24 v{SG+j}, v{t3}, s{sA}, v{SG+j}")
        a(f"v_lshl_add_u32 v{SG+j}, v{SG+j}, 5, v{t2}")
    for i in range(8): a(f"v_lshrrev_b32 v{t3}, 12, v{G+i}\nv_mad_u32_u24 v{RC+i}, v{t3}, {SKW//4}, v{G+i}")
    stamp("pro", 2); stamp("syn", 5)
    a(f"""
    s_cmp_eq_u32 s92, 0
    s_cbranch_scc1 M_READY
    """)
    sshot(2)
    a(f"""
    s_lshr_b32 s{sB}, s{sW}, 1
    s_lshl_b32 s{sB}, s{sB}, {FST+6}
    s_add_u32 s{sB}, s{sB}, {WS_F2}
    v_lshlrev_b32 v{f2r}, {FST}, v{lane}
    s_mov_b32 s{sA}, 0
    s_branch M_FL1
    M_FL:
    s_sleep {OPT["osl"]}
    M_FL1:
    buffer_load_dwordx2 {v(OG,2)}, v{f2r}, s[{sWS}:{sWS+3}], s{sB} offen sc1
    s_add_u32 s{sA}, s{sA}, 1
    s_cmp_gt_u32 s{sA}, {SPIN}
    s_cbranch_scc1 M_END
    s_waitcnt vmcnt(0)
    v_cmpx_ne_u64 vcc, s[{sTAG}:{sTAG+1}], {v(OG,2)}
    s_cbranch_execnz M_FL
    M_READY:
    """)
    stamp("top", 2); stamp("syn", 6)
    skip("M_GA")
    for i in ORD:
        a(f"s_mov_b64 exec, {mk(i)}\nbuffer_load_dword v{RC+i}, v{RC+i}, s[{sREC}:{sREC+3}], 0 idxen {LD}")
        after("M_GA", i)
    a("s_mov_b64 exec, -1")
    if OTW == 1:
        a("s_cmp_eq_u32 s92, 0\ns_cbranch_scc1 M_NOW\ns_setprio 0")
        wwork()
        a("s_setprio 2\nM_NOW:")
    a("s_mov_b32 s92, 0")
    for i in range(4): a(f"v_mov_b32 v{t4+i}, {DUMMY}")
    a(f"v_lshlrev_b32 v{t0}, 4, v0\nv_lshlrev_b32 v{t1}, 2, v0\ns_waitcnt lgkmcnt(0)\ns_barrier")
    def stage(js):
        for j in ([] if YM else js):
            a(f"""
            s_sub_i32 s{sA}, s{sNS}, {32*j}
            s_add_u32 m0, s{sSTB}, {1024*j}
            v_cmpx_gt_i32 vcc, s{sA}, v{lh}
            buffer_load_dwordx4 v{SG+j}, s[{sEM}:{sEM+3}], 0 offen {LD} lds
            """)
        a("s_mov_b64 exec, -1")
    NS1 = int(OPT["ns1"]); NS2 = int(OPT["ns2"])
    stage(range(NS1))
    XW = int(OPT["xw"])
    def pwarm():
        if XW:
            a(f"""
            s_lshr_b32 s{sA}, s2, 3
            s_mul_i32 s{sA}, s{sA}, {XW*128}
            s_add_u32 s{sA}, s{sA}, {XE*4096}
            v_lshl_add_u32 v{tt}, v{lane}, 3, s{sW}
            v_cmpx_gt_u32 vcc, {XW}, v{tt}
            v_lshlrev_b32 v{tt}, 7, v{tt}
            buffer_load_dword v{vCr+4}, v{tt}, s[{sP}:{sP+3}], s{sA} offen sc1
            s_mov_b64 exec, -1
            """)
    assert 2 * LSZ == 4 * 8192 + 2048
    for i in range(4): a(f"ds_write_b128 v{t0}, {v(t4,4)} offset:{L_LS+8192*i}")
    a(f"ds_write_b32 v{t1}, v{t4} offset:{L_LS+8192*4}")
    assert sum(SP) <= 32 or SP[3] == 0
    sshot(3)
    a(f"""
    s_mov_b32 s75, {L_C8}
    s_mov_b64 exec, 1
    ds_add_u32 v{nta}, v{fl0} offset:{L_NT}
    ds_max_u32 v{nta}, v{fl0+1} offset:{L_MX}
    """)
    skip("M_RK")
    for i in ORD:
        a(f"""
        s_mov_b64 exec, {mk(i)}
        s_waitcnt vmcnt({i+NS1})
        v_and_b32 v{NA+i}, 63, v{RC+i}
        v_bfe_u32 v{tt}, v{RC+i}, 18, 3
        v_add_u32 v{NA+i}, s{sSO}, v{NA+i}
        v_lshl_add_u32 v{CA+i}, v{NA+i}, 2, s75
        v_lshl_add_u32 v{CA+i}, v{tt}, 9, v{CA+i}
        ds_add_rtn_u32 v{RK+i}, v{CA+i}, v{one}
        """)
        after("M_RK", i)
    def pack(lab):
        a(f"s_movk_i32 s{sB}, {CH}\ns_mov_b32 s74, {int(OPT['epf'])*128}")
        skip(lab)
        for i in ORD:
            a(f"""
            v_lshrrev_b32 v{t0}, 12, v{G+i}
            v_lshrrev_b32 v{tt}, 21, v{RC+i}
            v_bfe_i32 v{t1}, v{G+i}, 11, 1
            v_mad_u32_u24 v{tt}, v{t0}, s{sB}, v{tt}
            v_and_b32 v{t1}, {M0}, v{t1}
            v_bfe_u32 v{RC+i}, v{RC+i}, 6, 15
            v_add3_u32 v{G+i}, v{t1}, v{tt}, s{sDF}
            v_lshl_add_u32 v{RC+i}, v{RC+i}, 7, v{NA+i}
            v_lshlrev_b32 v{NA+i}, 3, v{NA+i}
            """)
            if i < 4 and not YM:
                a(f"""
                s_sub_i32 s{sA}, s{sNS}, {64*i}
                v_cmp_gt_i32 vcc, s{sA}, v{lane}
                v_add_u32 v{tt}, {2048*i}, v{sac}
                s_nop 0
                v_cndmask_b32 v{G+i}, v{G+i}, v{tt}, vcc
                """)
            if int(OPT["epf"]):
                a(f"s_mov_b64 exec, {mk(i)}\nv_cmpx_gt_u32 vcc, s74, v{RC+i}" + ("" if YM or i >= 4 else f"\nv_cmpx_le_u32 vcc, s{sDF}, v{G+i}") + f"\nbuffer_load_dword v{vCr+4}, v{G+i}, s[{sE}:{sE+3}], 0 idxen\ns_mov_b64 exec, -1")
            after(lab, i)
    a("s_mov_b64 exec, -1")
    stamp("pro", 3)
    a(f"""
    s_cmp_eq_u32 s{sW}, 0
    s_cbranch_scc1 M_PK0
    s_lshl_b32 s{sA}, s{sW}, 8
    s_add_u32 s{sA}, s{sA}, {L_C8 - 256}
    v_lshl_add_u32 v{S4}, v{lane}, 2, s{sA}
    v_mov_b32 v{Q+8}, 0
    s_waitcnt lgkmcnt(0)
    s_barrier
    """)
    stamp("pro", 4)
    a(f"s_cmp_gt_u32 s{sW}, 2\ns_cbranch_scc1 M_NOPFX")
    for j in range(3): a(f"ds_read2st64_b32 {v(Q+2*j,2)}, v{S4} offset0:{4*j} offset1:{4*j+2}")
    a(f"s_waitcnt lgkmcnt(0)\nv_mov_b32 v{Q+9}, v{Q}")
    for j in range(1, 6): a(f"v_add_u32 v{Q+9+j}, v{Q+8+j}, v{Q+j}")
    for j in range(4): a(f"ds_write2st64_b32 v{S4}, v{Q+8+2*j}, v{Q+9+2*j} offset0:{C8O//256+4*j} offset1:{C8O//256+4*j+2}")
    a("M_NOPFX:\ns_setprio 0")
    stage(range(NS1, NS2)); pack("M_PB")
    a("s_waitcnt lgkmcnt(0)\ns_barrier\ns_branch M_P4E")
    d0, d1, f0, f1, k0, k1, vL, vR, ks, a4, l0, l1, o0, o1, cn, ci = [Q + i for i in range(16)]
    m0_, B0, m1_, B1 = S4, S4+1, S4+2, S4+3
    a(f"""
    M_PK0:
    s_setprio 3
    v_lshlrev_b32 v{a4}, 3, v{lane}
    v_lshlrev_b32 v{cn}, 2, v{lane}
    v_add_u32 v{cn}, {L_C8}, v{cn}
    v_sub_u32 v{ci}, 31, v{m}
    v_lshlrev_b32 v{ci}, 2, v{ci}
    s_mov_b32 s75, {f32(4194304.0)}
    s_waitcnt lgkmcnt(0)
    s_barrier
    """)
    stamp("pro", 4)
    a(f"ds_read_b32 v{ks}, v{nta} offset:{L_NT}")
    for j in range(7): a(f"ds_read2st64_b32 {v(FX+2*j,2)}, v{cn} offset0:{2*j} offset1:{2*j+1}")
    a(f"""
    s_waitcnt lgkmcnt(4)
    v_readfirstlane_b32 s{sL}, v{ks}
    v_add3_u32 v{d0}, v{FX}, v{FX+2}, v{FX+4}
    v_add3_u32 v{d1}, v{FX+1}, v{FX+3}, v{FX+5}
    s_lshr_b32 s{sL}, s{sL}, 8
    s_add_u32 s{sL}, s{sL}, 2
    s_waitcnt lgkmcnt(0)
    v_add3_u32 v{d0}, v{d0}, v{FX+6}, v{FX+8}
    v_add3_u32 v{d1}, v{d1}, v{FX+7}, v{FX+9}
    v_add3_u32 v{d0}, v{d0}, v{FX+10}, v{FX+12}
    v_add3_u32 v{d1}, v{d1}, v{FX+11}, v{FX+13}
    v_cvt_f32_u32 v{f0}, v{d0}
    v_cvt_f32_u32 v{f1}, v{d1}
    M_LS:
    s_add_u32 s{sL}, s{sL}, 1
    s_cmp_gt_u32 s{sL}, {LMAX}
    s_cbranch_scc1 M_P4W
    v_cvt_f32_u32 v{vL}, s{sL}
    v_rcp_f32 v{vR}, v{vL}
    v_add_f32 v{vL}, -0.5, v{vL}
    v_add_f32 v{k0}, v{f0}, v{vL}
    v_add_f32 v{k1}, v{f1}, v{vL}
    v_mul_f32 v{k0}, v{k0}, v{vR}
    v_mul_f32 v{k1}, v{k1}, v{vR}
    v_cvt_u32_f32 v{k0}, v{k0}
    v_cvt_u32_f32 v{k1}, v{k1}
    v_add_u32 v{ks}, v{k0}, v{k1}
    """)
    fillers = [f"v_cvt_f32_u32 v{l0}, v{k0}", f"v_cvt_f32_u32 v{l1}, v{k1}",
               f"v_rcp_f32 v{m0_}, v{l0}", f"v_rcp_f32 v{m1_}, v{l1}",
               f"v_add_f32 v{l0}, v{l0}, v{f0}", f"v_add_f32 v{l1}, v{l1}, v{f1}",
               f"v_add_f32 v{l0}, -0.5, v{l0}", f"v_add_f32 v{l1}, -0.5, v{l1}",
               f"v_mul_f32 v{l0}, v{l0}, v{m0_}", f"v_mul_f32 v{l1}, v{l1}, v{m1_}",
               f"v_cvt_u32_f32 v{l0}, v{l0}", f"v_cvt_u32_f32 v{l1}, v{l1}"]
    for n, stp in enumerate(steps):
        a(f"{fillers[2*n]}\n{fillers[2*n+1]}\nv_add_u32_dpp v{ks}, v{ks}, v{ks} {stp}")
    a(f"""
    v_lshlrev_b32 v{l0}, 2, v{l0}
    v_readlane_b32 s{sA}, v{ks}, 63
    v_lshlrev_b32 v{l1}, 2, v{l1}
    s_cmp_gt_u32 s{sA}, 256
    s_cbranch_scc1 M_LS
    ds_add_rtn_u32 v{o0}, v{l0}, v{k0} offset:{L_CNT}
    ds_add_rtn_u32 v{o1}, v{l1}, v{k1} offset:{L_CNT}
    ds_read_b32 v{cn}, v{ci} offset:{L_CNT}
    v_mul_f32 v{m0_}, s75, v{m0_}
    v_mul_f32 v{m1_}, s75, v{m1_}
    v_cvt_u32_f32 v{m0_}, v{m0_}
    v_cvt_u32_f32 v{m1_}, v{m1_}
    v_add_u32 v{m0_}, 2, v{m0_}
    v_add_u32 v{m1_}, 2, v{m1_}
    v_lshlrev_b32 v{B0}, 2, v{k0}
    v_lshlrev_b32 v{B1}, 2, v{k1}
    v_sub_u32 v{B0}, 1024, v{B0}
    v_sub_u32 v{B1}, 1024, v{B1}
    v_sub_u32 v{l0}, 124, v{l0}
    v_sub_u32 v{l1}, 124, v{l1}
    s_waitcnt lgkmcnt(0)
    v_mov_b32 v{ks}, v{cn}
    """)
    for stp in steps[:5]:
        a(f"s_nop 1\nv_add_u32_dpp v{ks}, v{ks}, v{ks} {stp}")
    a(f"""
    v_sub_u32 v{ks}, v{ks}, v{cn}
    ds_bpermute_b32 v{d0}, v{l0}, v{ks}
    ds_bpermute_b32 v{d1}, v{l1}, v{ks}
    ds_write_b32 v{ci}, v{ks} offset:{L_BAS}
    s_waitcnt lgkmcnt(1)
    v_add_u32 v{o0}, v{o0}, v{d0}
    v_add_u32 v{o1}, v{o1}, v{d1}
    v_lshl_or_b32 v{m0_}, v{o0}, 24, v{m0_}
    v_lshl_or_b32 v{m1_}, v{o1}, 24, v{m1_}
    ds_write2st64_b64 v{a4}, {v(m0_,2)}, {v(m1_,2)} offset0:0 offset1:1
    M_P4W:
    v_mov_b32 v{ks}, s{sL}
    ds_write_b32 v{nta}, v{ks} offset:{L_MX+4}
    s_waitcnt lgkmcnt(0)
    s_barrier
    """)
    stage(range(NS1, NS2)); pack("M_PA")
    u0, nn = Q + 20, Q + 26
    a("M_P4E:")
    stamp("pro", 5)
    a(f"""
    ds_read_b64 {v(u0,2)}, v{nta} offset:{L_MX}
    v_lshlrev_b32 v{tt}, 2, v{m}
    ds_read_b32 v{u0+2}, v{tt} offset:{L_CNT}
    ds_read_b32 v{u0+3}, v{tt} offset:{L_BAS}
    s_lshr_b32 s{sA}, s{sW}, 1
    s_lshl_b32 s{sA}, s{sA}, 5
    v_add_u32 v{nn}, s{sA}, v{m}
    v_lshlrev_b32 v{tt}, 3, v{nn}
    ds_read_b64 {v(u0+4,2)}, v{tt} offset:{L_TB}
    """)
    skip("M_TR")
    for i in ORD:
        a(f"s_mov_b64 exec, {mk(i)}\nds_read_b64 {v(TBv+2*i,2)}, v{NA+i} offset:{L_TB}\nds_read_b32 v{OFv+i}, v{CA+i} offset:{C8O}")
        after("M_TR", i)
    a(f"""
    s_mov_b64 exec, -1
    s_lshl_b32 s{sA}, s{sG}, 5
    s_waitcnt lgkmcnt(12)
    v_readfirstlane_b32 s{sNMAX}, v{u0}
    v_readfirstlane_b32 s{sL}, v{u0+1}
    v_add_u32 v{u0+2}, v{u0+2}, v{u0+3}
    v_cmp_ge_u32 vcc, s{sA}, v{u0+3}
    v_cmp_lt_u32 s[52:53], s{sA}, v{u0+2}
    s_and_b64 s[52:53], s[52:53], vcc
    s_ff1_i32_b32 s{sT}, s52
    s_max_i32 s{sT}, s{sT}, 0
    s_cmp_le_u32 s{sL}, {LMAX}
    s_cbranch_scc1 M_P5
    s_mov_b32 s{sCAP}, 256
    s_branch M_AGAIN
    M_P5:
    """)
    skip("M_SC")
    for i in ORD:
        mm, BB = TBv + 2*i, TBv + 2*i + 1
        a(f"""
        s_mov_b64 exec, {mk(i)}
        s_waitcnt lgkmcnt({2*i + max(0, 5-i)})
        v_add_u32 v{RK+i}, v{RK+i}, v{OFv+i}
        v_lshrrev_b32 v{tt}, 24, v{mm}
        v_mul_u32_u24 v{mm}, v{mm}, v{RK+i}
        v_add_lshl_u32 v{tt}, v{tt}, v{RK+i}, 2
        v_lshrrev_b32 v{mm}, 22, v{mm}
        v_mad_u32_u24 v{tt}, v{mm}, v{BB}, v{tt}
        ds_write2st64_b32 v{tt}, v{RC+i}, v{G+i} offset0:{L_LS//256} offset1:{L_LE//256}
        """)
        after("M_SC", i)
    ca0, ca1, ca2, ca3, kk, oa, fa, da = [EP + i for i in range(8)]
    epi_setup = f"""
    s_lshl_b32 s{sA}, s{sSB}, 7
    s_add_u32 s{sA}, s{sA}, {L_XR}
    s_movk_i32 s{sB}, 0x3fc
    s_movk_i32 s75, 0x3f8
    v_mov_b32 v{kk}, v{u0+5}
    v_lshrrev_b32 v{ca0}, 24, v{u0+4}
    v_mul_u32_u24 v{ca0}, 272, v{ca0}
    v_lshl_add_u32 v{ca0}, v{h16}, 1, v{ca0}
    v_add_u32 v{ca0}, s{sA}, v{ca0}
    v_mov_b32 v{da}, {L_ZR}
    v_cmp_gt_u32 s[56:57], s{sB}, v{kk}
    v_cmp_gt_u32 s[58:59], s75, v{kk}
    v_add_u32 v{ca1}, 272, v{ca0}
    v_add_u32 v{ca2}, 544, v{ca0}
    v_add_u32 v{ca3}, 816, v{ca0}
    v_cmp_gt_u32 vcc, 0x400, v{kk}
    v_cndmask_b32 v{ca1}, v{da}, v{ca1}, s[56:57]
    v_cndmask_b32 v{ca2}, v{da}, v{ca2}, s[58:59]
    v_cndmask_b32 v{ca0}, v{da}, v{ca0}, vcc
    v_cmp_gt_u32 vcc, s{sNB}, v{nn}
    v_lshlrev_b32 v{oa}, 7, v{nn}
    v_lshl_add_u32 v{oa}, v{h16}, 1, v{oa}
    s_lshl_b32 s{sA}, s{sW}, 11
    v_cndmask_b32 v{oa}, v{hz}, v{oa}, vcc
    v_add_u32 v{fa}, s{sA}, v{l16}
    v_mul_u32_u24 v{da}, 272, v{m}
    v_add3_u32 v{da}, v{da}, v{h16}, s{sXRB}
    """
    a(f"""
    s_mov_b64 exec, -1
    s_setprio 0
    """)
    stage(range(NS2, 7)); pwarm()
    a("s_waitcnt lgkmcnt(0)\ns_barrier")
    stamp("top", 3); stamp("pro", 6); stamp("pri", 1)
    a(f"s_cmp_lg_u32 s{sT}, 0\ns_cbranch_scc1 M_GO")
    a(epi_setup)
    a("s_waitcnt vmcnt(0)\ns_barrier\ns_branch M_BEND\nM_GO:")
    S = []
    ef = OPT["eflags"]
    def le_read(t, p): return (f"ds_read_b32 v{RP+2*p}, v{vLE} offset:{L_LE+1024*t}", f"le{t}")
    def ls_read(t, dst): return (f"ds_read_b128 {v(dst,4)}, v{vLS} offset:{L_LS+1024*t}", f"ls{t}")
    def st_addr(p): return f"v_xor_b32 v{sa}, v{RP+2*p}, v{h16}"
    def st_read(t): return (f"ds_read_b128 {Es(t)}, v{sa}", f"st{t}")
    def d_pre(t, p): return [f"v_cmp_le_u32 vcc, s{sDF}, v{RP+2*p}", f"v_and_or_b32 v{vCr+t%5}, v{RP+2*p}, s{sB30}, 1.0"]
    def d_load(t, p): return ["s_mov_b64 exec, vcc", (f"buffer_load_dwordx4 {Es(t)}, {v(RP+2*p,2)}, s[{sE}:{sE+3}], 0 idxen offen {ef}", f"D{t}"), "s_mov_b64 exec, -1"]
    def x_addr(src): return [f"v_and_or_b32 v{S4+i}, v{src+i}, s{sM7}, v{CX+i}" for i in range(4)]
    def x_dma(t, nop=True, reg=None, soff="0", tag=None):
        o = []
        for i in range(4):
            sr = sP
            o += [f"s_add_u32 m0, s{sXRB}, {(t&1)*4096+i*1024}"] + (["s_nop 0"] if nop else []) + \
                 [(f"buffer_load_dwordx4 v{(reg or S4)+i}, s[{sr}:{sr+3}], {soff} offen {LD} lds", tag or f"X{t}")]
        return o
    def fx_read(t, sx, tag=None): return (f"ds_read_b128 {v(FX+4*sx,4)}, v{XA+sx} offset:{(t&1)*4096}", tag or f"fx{t}")
    def chain(nh, t):
        Dh = v(D + 16 * nh, 16)
        return [f"v_mfma_f32_32x32x16_bf16 {Dh}, {W3f(nh)}, {Es(t)}, {v(Q+16*nh,16)}"] + \
               ([f"v_smfmac_f32_32x32x32_bf16 {Dh}, {Idf(0)}, {v(FX+8*nh,8)}, v{W+4}"] if int(OPT["smf"]) else
                [f"v_mfma_f32_32x32x16_bf16 {Dh}, {Idf(j)}, {v(FX+8*nh+4*j,4)}, {Dh}" for j in range(2)])
    nd, L1, L2 = D, D + 4, SG
    def ps(i): return [f"s_memrealtime s[{76+2*i}:{77+2*i}]", "s_waitcnt lgkmcnt(0)"] if MODE == "pri" else []
    S += [ls_read(0, S4), (f"ds_read_b32 v{nd}, v{vLE} offset:{L_LS}", "nd")] + [le_read(j, j) for j in range(4)] + [ls_read(1, L1), ls_read(2, L2), ("@W", None, "nd")]
    S += x_addr(S4)
    xa_ = [f"v_bfe_u32 v{nd+1}, v{nd}, 4, 3", f"v_mul_u32_u24 v{nd+1}, {XRS}, v{nd+1}", f"v_bfe_u32 v{nd+2}, v{nd}, 1, 3", f"v_xor_b32 v{nd+2}, v{nd+2}, v{h}"]
    dm = x_dma(0, nop=False)
    for i in range(4): S += [dm[2*i], xa_[i], dm[2*i+1]]
    S += [f"v_and_b32 v{nd}, 15, v{nd}", f"v_lshl_add_u32 v{nd+1}, v{nd}, 7, v{nd+1}", f"v_lshl_add_u32 v{nd+1}, v{nd+2}, 4, v{nd+1}", f"v_add_u32 v{nd+1}, {L_XR+XRO}, v{nd+1}"]
    for sx in range(4):
        S += [(f"ds_read_b128 {v(FX+4*sx,4)}, v{nd+1}", "xd")] + ([f"v_xor_b32 v{nd+1}, {(32, 96, 32)[sx]}, v{nd+1}"] if sx < 3 else [])
    def dl(j): return d_pre(j, j) + [f"s_not_b64 s[{60+2*j}:{61+2*j}], vcc"] + d_load(j, j)
    S += [("@W", None, "ls2")] + dl(0) + ps(2)
    ep = [l.strip() for l in epi_setup.strip().split("\n")]
    S += ep + x_addr(L1) + [("@W", None, "xd")]
    for nh in range(2):
        for sx in range(4):
            S.append(f"v_mfma_f32_32x32x16_bf16 {v(Q+16*nh,16)}, {v(AG+(sx*2+nh)*4,4)}, {v(FX+4*sx,4)}, {'0' if sx == 0 else v(Q+16*nh,16)}")
    S += ["s_waitcnt vmcnt(5)"] + ps(3) + ["s_barrier"] + ps(4)
    S += [st_addr(0), "s_mov_b64 exec, s[60:61]", st_read(0), "s_mov_b64 exec, -1"]
    for j in range(1, 4): S += [st_addr(j), st_read(j)]
    S += [f"s_mov_b32 s74, {f32(-LOG2E)}", f"s_mov_b32 s75, {f32(-LOG2E)}"]
    S += [("@W", "D0", None)] + ps(5) + [fx_read(0, sx) for sx in range(4)]
    S += [f"v_pk_mul_f32 {v(Q+2*i,2)}, {v(Q+2*i,2)}, s[74:75]" for i in range(16)] + [("@W", None, "fx0")]
    c00 = chain(0, 0)
    S += [c00[0], "s_nop 7", "s_nop 7"] + c00[1:] + d_pre(1, 1) + d_load(1, 1) + x_dma(1) + [f"v_and_or_b32 v{L2+i}, v{L2+i}, s{sM7}, v{CX+i}" for i in range(4)] + ps(6)
    if MODE: S += [f"s_mov_b32 s90, s{sT}", f"s_mov_b32 s98, s{sL}", "s_memtime s[94:95]", "s_waitcnt lgkmcnt(0)"]
    if MODE == "top": S += ["s_memrealtime s[84:85]", "s_waitcnt lgkmcnt(0)"]
    def phase(nh, t, mf, fill):
        Db, Ab = D + 16*nh, AG + 16*nh
        c = vCr + t % 5
        cp = f"{v(c & ~1, 2)} " + ("op_sel_hi:[1,0]" if c % 2 == 0 else "op_sel:[0,1] op_sel_hi:[1,1]")
        seq = []
        mf = mf + [None] * (3 - len(mf))
        for q in range(2):
            ex = [f"v_exp_f32 v{T+i}, v{Db+8*q+i}" for i in range(8)]
            rc = [f"v_rcp_f32 v{T+i}, v{T+i}" for i in range(8)]
            ad = [f"v_pk_add_f32 {v(T+2*i,2)}, {v(T+2*i,2)}, {cp}" for i in range(4)]
            fm = [f"v_pk_fma_f32 {v(Ab+8*q+2*i,2)}, {v(Db+8*q+2*i,2)}, {v(T+2*i,2)}, {v(Ab+8*q+2*i,2)}" for i in range(4)]
            if t == 0: fm = [f"v_pk_mul_f32 {v(Ab+8*q+2*i,2)}, {v(Db+8*q+2*i,2)}, {v(T+2*i,2)}" for i in range(4)]
            if q == 0: seq += [mf[0]] + ex + ad + [mf[1]] + rc + fm
            else: seq += [mf[2]] + ex + ad + rc + fm
        res = []; n = 0
        for l in seq:
            if l is None: continue
            res.append(l)
            if l.startswith(("v_exp", "v_rcp")):
                res += fill.get(n, []); n += 1
        def txt(l): return l[0] if isinstance(l, tuple) else l
        ab = OPT["abl"]
        if "novm" in ab: res = [l for l in res if not txt(l).startswith(("buffer_", "s_add_u32 m0", "s_mov_b64 exec")) and not (txt(l) == "@W" and l[1])]
        if "nolds" in ab: res = [l for l in res if not txt(l).startswith("ds_") and not (txt(l) == "@W" and l[2])]
        if "nomf" in ab: res = [l for l in res if not txt(l).startswith(("v_mfma", "v_smf"))]
        if "nova" in ab: res = [l for l in res if not txt(l).startswith(("v_and_or", "v_xor", "v_cmp"))]
        return res
    DL = int(OPT["dl"])
    def last_of(S_, tags):
        seen = [it[1] for it in S_ if isinstance(it, tuple) and it[0] != "@W"]
        return max(tags, key=lambda g: max(i for i, x in enumerate(seen) if x == g))
    for t in range(LMAX):
        fill = {}
        td = t + DL
        pr = td if td < 4 else 0
        if 4 <= td < LMAX:
            fill[0] = [le_read(td, 0)]
            fill[10] = [("@W", None, f"le{td}"), st_addr(0)]; fill[11] = [st_read(td)]
        if t + 3 < LMAX: fill[1] = [ls_read(t + 3, S4)]
        if t + 1 < LMAX:
            FXP = int(OPT["fxp"])
            fill[FXP] = [("@W", f"X{t+1}", None)]
            for sx in range(4): fill[FXP+1+sx] = fill.get(FXP+1+sx, []) + [fx_read(t + 1, sx)]
        if t + 3 < LMAX:
            xa = x_addr(S4)
            xp = 21 if int(OPT["fxp"]) < 17 else 16
            fill[xp] = [("@W", None, f"ls{t+3}"), xa[0]]; fill[xp+1] = [xa[1]]; fill[xp+2] = [xa[2]]; fill[xp+3] = [xa[3]]
        XL = int(OPT["xl"])
        if XL == 2:
            for k_ in (1, 16, 17, 18, 19, 21, 22, 23, 24):
                if k_ in fill and not any((x[0] if isinstance(x, tuple) else x).startswith(("ds_read_b128 v[%d" % FX, "ds_read_b128 v[%d" % (FX+4), "ds_read_b128 v[%d" % (FX+8), "ds_read_b128 v[%d" % (FX+12))) or (isinstance(x, tuple) and x[0] == "@W" and x[1]) for x in fill[k_]): del fill[k_]
            if t + 2 < LMAX:
                dm = x_dma(t + 2, nop=False, reg=L2 if t == 0 else None)
                for i, pos in enumerate(int(x) for x in OPT["dmp"].split(",")): fill[pos] = fill.get(pos, []) + [dm[i]]
        if t == 0 and XL == 3:
            if DL > 2: fill[2] = d_pre(2, 2); fill[3] = d_load(2, 2)
            dm = x_dma(2, nop=False, reg=L2)
            for i, pos in enumerate((4, 5, 6, 7, 12, 13, 14, 15)): fill[pos] = [dm[i]]
            if DL > 3: fill[25] = fill.get(25, []) + d_pre(3, 3) + d_load(3, 3)
        PR = {0: (None, None), 1: (1, 0), 2: (0, 1)}[int(OPT["prio"])]
        if PR[0] is not None: S.append(f"s_setprio {PR[0]}")
        S += phase(0, t, chain(1, t), fill)
        if PR[0] is not None: S.append(f"s_setprio {PR[1]}")
        if t + 1 < LMAX and last_of(S, [f"X{t+1}", f"D{t+1}"]) == f"D{t+1}": S.append(("@W", f"D{t+1}", None))
        fill = {}
        if t + 1 < LMAX: fill[0] = [("@W", None, f"fx{t+1}")]
        if t + 3 < LMAX and XL == 3:
            dm = x_dma(t + 3, nop=False)
            for i, pos in enumerate(int(x) for x in OPT["dmp"].split(",")): fill[pos] = [dm[i]]
        if t + 3 < LMAX and XL == 2:
            xa = x_addr(S4)
            fill[4] = [ls_read(t + 3, S4)]
            fill[20] = [("@W", None, f"ls{t+3}"), xa[0]]; fill[21] = [xa[1]]; fill[22] = [xa[2]]; fill[23] = [xa[3]]
        if td < LMAX:
            dp = d_pre(td, pr)
            DP = int(OPT["dpos"])
            fill[DP-1] = fill.get(DP-1, []) + [dp[0], dp[1]]; fill[DP] = d_load(td, pr)
        fill[31] = [f"s_cmp_eq_u32 s{sT}, {t+1}"]
        S += phase(1, t, chain(0, t + 1) if t + 1 < LMAX else [], fill)
        if t + 1 < LMAX: S.append("s_cbranch_scc1 M_FLUSH")
    emit(resolve(S))
    a("M_FLUSH:")
    stamp("top", 5); stamp("epi", 1)
    if MODE: a("s_memtime s[96:97]\ns_waitcnt lgkmcnt(0)")
    a("s_waitcnt vmcnt(0)")
    for i in range(8):
        a(f"ds_write_b128 v{da}, {v(AG+4*i,4)} offset:{32*i}")
    A0, A1, A2, OWN, PAR = D, D + 16, Q, Q + 16, Q + 24
    a(f"""
    M_BEND:
    v_cmp_gt_u32 vcc, 0x3f4, v{kk}
    s_mov_b32 s74, {f32(-1.0/LOG2E)}
    s_mov_b32 s75, {f32(-1.0/LOG2E)}
    s_waitcnt lgkmcnt(0)
    """)
    stamp("epi", 2)
    a("s_barrier")
    stamp("epi", 3)
    offs = (0, 16, 64, 80)
    for i in range(4):
        for buf, ca in ((A0, ca0), (A1, ca1), (A2, ca2)):
            a(f"ds_read_b128 {v(buf+4*i,4)}, v{ca} offset:{offs[i]}")
    for i in range(4):
        a(f"s_waitcnt lgkmcnt({9-3*i})")
        for j in range(2): a(f"v_pk_add_f32 {v(A0+4*i+2*j,2)}, {v(A0+4*i+2*j,2)}, {v(A1+4*i+2*j,2)}")
        for j in range(2): a(f"v_pk_add_f32 {v(A0+4*i+2*j,2)}, {v(A0+4*i+2*j,2)}, {v(A2+4*i+2*j,2)}")
    a(f"""
    s_cbranch_vccz M_SUMD
    s_movk_i32 s{sA}, 0x3f4
    M_SUML:
    s_mov_b64 exec, vcc
    """)
    for i in range(4):
        a(f"ds_read_b128 {v(A1+4*i,4)}, v{ca3} offset:{offs[i]}")
    a(f"s_sub_u32 s{sA}, s{sA}, 4\nv_add_u32 v{ca3}, 272, v{ca3}\ns_waitcnt lgkmcnt(0)")
    for i in range(8): a(f"v_pk_add_f32 {v(A0+2*i,2)}, {v(A0+2*i,2)}, {v(A1+2*i,2)}")
    a(f"""
    s_mov_b64 exec, -1
    v_cmp_gt_i32 vcc, s{sA}, v{kk}
    s_nop 4
    s_cbranch_vccnz M_SUML
    M_SUMD:
    s_cmp_le_u32 s{sNMAX}, s{sCAP}
    s_cbranch_scc1 M_EPI
    """)
    srd_off(a, 56, 10, WS_SP, 2048 * 4096)
    a(f"""
    s_lshl_b32 s{sA}, s2, 3
    s_add_u32 s{sA}, s{sA}, s{sW}
    s_lshl_b32 s{sA}, s{sA}, 12
    s_cmp_eq_u32 s{sBASE}, 0
    s_cbranch_scc1 M_NOLD
    """)
    for i in range(4):
        a(f"buffer_load_dwordx4 {v(A1+4*i,4)}, v{l16}, s[56:59], s{sA} offen offset:{1024*i} sc0 sc1")
    a("s_waitcnt vmcnt(0)")
    for i in range(8): a(f"v_pk_add_f32 {v(A0+2*i,2)}, {v(A0+2*i,2)}, {v(A1+2*i,2)}")
    a(f"""
    M_NOLD:
    s_add_u32 s{sBASE}, s{sBASE}, s{sCAP}
    s_cmp_ge_u32 s{sBASE}, s{sNMAX}
    s_cbranch_scc1 M_EPI
    """)
    for i in range(4):
        a(f"buffer_store_dwordx4 {v(A0+4*i,4)}, v{l16}, s[56:59], s{sA} offen offset:{1024*i} sc0 sc1")
    a(f"""
    M_AGAIN:
    s_load_dwordx2 s[60:61], s[0:1], 32
    s_waitcnt vmcnt(0) lgkmcnt(0)
    s_barrier
    """)
    srd(a, 56, 60, 18432)
    a(f"""
    s_lshl_b32 s{sA}, s{sW}, 10
    s_add_u32 s{sA}, s{sA}, 8192
    s_add_u32 m0, s{sA}, {S_W}
    v_lshlrev_b32 v{t0}, 2, v0
    buffer_load_dwordx4 v{l16}, s[56:59], s{sA} offen lds
    ds_write_b32 v{t0}, v{nta}
    v_add_u32 v{t0}, {L_C8}, v{t0}
    ds_write_b32 v{t0}, v{nta}
    ds_write_b32 v{t0}, v{nta} offset:2048
    """)
    xrows()
    a("s_waitcnt vmcnt(0)\ns_barrier")
    w2read()
    a(f"""
    s_waitcnt lgkmcnt(0)
    s_barrier
    s_branch M_BATCH
    M_EPI:
    """)
    srd(a, 56, 8, 3200000)
    for i in range(8): a(f"v_pk_mul_f32 {v(A0+2*i,2)}, {v(A0+2*i,2)}, s[74:75]")
    for i in range(8): a(f"v_cvt_pk_bf16_f32 v{OWN+i}, v{A0+2*i}, v{A0+2*i+1}")
    a(f"""
    ds_write_b128 v{fa}, {v(OWN,4)} offset:{L_FE}
    ds_write_b128 v{fa}, {v(OWN+4,4)} offset:{L_FE+1024}
    v_xor_b32 v{fa}, 0x800, v{fa}
    v_mfma_f32_32x32x16_bf16 {v(U0,16)}, {v(WU,4)}, {v(OWN,4)}, {v(U0,16)}
    v_mfma_f32_32x32x16_bf16 {v(U0,16)}, {v(WU+4,4)}, {v(OWN+4,4)}, {v(U0,16)}
    s_lshl_b32 s{sA}, s{sSB}, 6
    s_add_u32 s{sA}, s{sA}, s{sS0}
    s_mov_b32 s74, {f32(-LOG2E)}
    s_mov_b32 s75, {f32(-LOG2E)}
    s_waitcnt lgkmcnt(0)
    s_barrier
    """)
    stamp("epi", 4)
    a(f"""
    ds_read_b128 {v(PAR,4)}, v{fa} offset:{L_FE}
    ds_read_b128 {v(PAR+4,4)}, v{fa} offset:{L_FE+1024}
    s_waitcnt lgkmcnt(1)
    v_mfma_f32_32x32x16_bf16 {v(U0,16)}, {v(WU+8,4)}, {v(PAR,4)}, {v(U0,16)}
    s_waitcnt lgkmcnt(0)
    v_mfma_f32_32x32x16_bf16 {v(U0,16)}, {v(WU+12,4)}, {v(PAR+4,4)}, {v(U0,16)}
    s_nop 11
    """)
    for q in range(2):
        b = 8 * q
        for i in range(4): a(f"v_pk_mul_f32 {v(AG+b+2*i,2)}, {v(U0+b+2*i,2)}, s[74:75]")
        for i in range(8): a(f"v_exp_f32 v{AG+b+i}, v{AG+b+i}")
        for i in range(4): a(f"v_pk_add_f32 {v(AG+b+2*i,2)}, {v(AG+b+2*i,2)}, 1.0 op_sel_hi:[1,0]")
        for i in range(8): a(f"v_rcp_f32 v{AG+b+i}, v{AG+b+i}")
        for i in range(4): a(f"v_pk_mul_f32 {v(AG+b+2*i,2)}, {v(U0+b+2*i,2)}, {v(AG+b+2*i,2)}")
        for i in range(4): a(f"v_cvt_pk_bf16_f32 v{D+4*q+i}, v{AG+b+2*i}, v{AG+b+2*i+1}")
        a(f"buffer_store_dwordx4 {v(D+4*q,4)}, v{oa}, s[56:59], s{sA} offen offset:{16*q}")
    if MODE:
        stamp("epi", 5)
        a("s_waitcnt vmcnt(0)")
        stamp("top", 6); stamp("epi", 6)
        a(f"s_lshl_b32 s74, s2, 3\ns_add_u32 s74, s74, s{sW}\ns_lshl_b32 s74, s74, 6\ns_add_u32 s74, s74, {WS_ST+0x80000}\ns_load_dwordx2 s[10:11], s[0:1], 64\ns_waitcnt lgkmcnt(0)\ns_add_u32 s52, s10, s74\ns_addc_u32 s53, s11, 0\nv_mov_b32 v0, 0")
        for i in range(8):
            a(f"v_mov_b32 v1, s{76+2*i}\nglobal_store_dword v0, v1, s[52:53] offset:{4*i}")
        a("s_sub_u32 s96, s96, s94\nv_mov_b32 v1, s96\nglobal_store_dword v0, v1, s[52:53] offset:32\nv_mov_b32 v1, s98\nglobal_store_dword v0, v1, s[52:53] offset:36")
    a("M_END:\ns_endpgm")
    return R.n

hdr = f"""; MPNN edge-MLP + segment-sum + node update in one launch of 256 co-resident workgroups:
; @launch grid=(256,1,1) block=(512,1,1) lds={MAIN_LDS}
.amdgcn_target "amdgcn-amd-amdhsa--gfx950"
.text
.globl {KN}
.type {KN},@function
"""
nv = gen()
txt = hdr + a.text() + '.section .rodata,"a"\n.p2align 6\n' + kdesc(KN, 256, 102)
open(sys.argv[1], "w").write(txt)
print("vgprs", nv, "lds", MAIN_LDS)
```

```python
import sys, struct
from asmlib import *

OPT = dict(abl="", stamp=False, eflags="", M0=1152, ns1=3, es='0,3,2,0', xpos=0, df=1, hlp=0, es0=0, cpf=0, fxp=16, dmp='23,24,25,26,27,28,29,30', dpos=12, sp='0,0,0,0', dl=2, xl=2, barA=1, epos=1, osl=4, xw=0, fst=5, cem=1, Y=False, epf=2500, skw=256, xe=0, tlb=0, stl=0, eld='', ild='', xld='', wso=0, tch=0, st='sc1', oe=0, otw=2, smf=1, ns2=7, prio=1, ld="sc1")
for arg in sys.argv[2:]:
    k, val = arg.split("=")
    OPT[k] = {"True": True, "False": False}.get(val, val.replace("+", " "))
M0 = int(OPT["M0"])
assert M0 % 32 == 0 and M0 <= 1792 and 3200 - M0 <= 2048
LD = OPT["ld"]
YM = OPT["Y"]
if YM: OPT["es"] = "0,0,0,0"; OPT["ns1"] = 0
KN = "standalone__mpnn_edge_mlp__graph_kernel"

NCH, CH = 250, 3200
WS_REC, WS_O, WS_F2, WS_ST, WS_P, WS_SP, WS_EM = 0, 0x440000, 0x680000, 0x700000, 0x800000, 0x1A00000, 0xB20000
SKW = int(OPT["skw"])
OTS, RCS, EMS = 8192 + SKW, 16384 + SKW, M0 * 32 + SKW
LOG2E = 1.4426950408889634
def f32(x): return "0x%08x" % struct.unpack("<I", struct.pack("<f", x))[0]

a = Asm()
MODE = OPT["stamp"]
def stamp(mode, i):
    if MODE == mode or (MODE and mode == "all"):
        a(f"s_memrealtime s[{76+2*i}:{77+2*i}]\ns_waitcnt lgkmcnt(0)")
def emit(l): a("\n".join(l))

def resolve(stream):
    out = []; vm = []; lg = []
    for it in stream:
        if isinstance(it, tuple) and it[0] == "@W":
            parts = []
            if it[1] is not None:
                idx = max(i for i, t in enumerate(vm) if t == it[1]); n = len(vm) - 1 - idx
                assert n <= 63; parts.append(f"vmcnt({n})")
            if it[2] is not None:
                idx = max(i for i, t in enumerate(lg) if t == it[2]); n = len(lg) - 1 - idx
                parts.append(f"lgkmcnt({min(n, 15)})")
            out.append("s_waitcnt " + " ".join(parts)); continue
        txt, tag = it if isinstance(it, tuple) else (it, None)
        if txt.startswith("buffer_"): vm.append(tag)
        if txt.startswith("ds_"): lg.append(tag)
        out.append(txt)
    return out

LMAX = 17
L_TB = 0
L_CNT = 1024
L_NT = L_CNT + 128
L_MX = L_NT + 16
L_BAS = L_MX + 16
L_F2C = 1408
L_ZR = 1536
L_LS = 2048
LSZ = LMAX * 1024
L_LE = L_LS + LSZ
L_ST = L_LE + LSZ
SCAP = 160
NSP = SCAP // 32
L_XD = L_ST + 8 * SCAP * 32
L_XR = L_XD + 16384
XRS = 8704
MAIN_LDS = L_XR + 8 * XRS
assert MAIN_LDS <= 163840 and L_XR % 4096 == 0
L_C8 = L_XR + XRS
C8O = XRS
GLO = 6144
S_W = L_LS
S_WU = L_XR + 4 * XRS
S_CNT = S_W + 18432
S_STA = S_CNT + 2048
S_SRT = S_STA + 2048
S_E = S_SRT + CH * 4
assert S_E + M0 * 32 <= L_XD
L_FE = L_LS
DUMMY = 0xC0000000
DFLAG = 1 << 24
SPIN = 200000

def gen():
    R = Regs("v", 1, 256)
    vLS = R.alloc("vLS"); vLE = R.alloc("vLE")
    vCr = R.alloc("vCr", 5)
    RP = R.alloc("RP", 8, 2)
    XA = R.alloc("XA", 4); CX = R.alloc("CX", 4)
    S4 = R.alloc("S4", 4, 4); T = R.alloc("T", 8, 4)
    FX = R.alloc("FX", 16, 4); E = R.alloc("E", 16, 4)
    D = R.alloc("D", 32, 4); Q = R.alloc("Q", 32, 4); AG = R.alloc("AG", 32, 4); W = R.alloc("W", 16, 4)
    U0 = R.alloc("U0", 16, 4); WU = R.alloc("WU", 16, 4); EP = R.alloc("EP", 16, 4)
    SG = R.alloc("SG", 8, 4)
    sa = R.alloc("sa"); lane = R.alloc("lane"); l16 = R.alloc("l16"); m = R.alloc("m"); h = R.alloc("h")
    sac = R.alloc("sac"); lh = R.alloc("lh"); hz = R.alloc("hz"); aN = R.alloc("aN"); one = R.alloc("one"); nta = R.alloc("nta")
    h16 = RP + 1
    def Idf(j): return v(W + 4 * j, 4)
    def W3f(nh): return v(W + 8 + nh * 4, 4)
    def Es(t): return v(E + 4 * (t % 4), 4)
    sX, sE, sREC, sEM, sWS, sP = 16, 20, 24, 28, 32, 36
    sW, sSB, sS0, sSO, sN, sBASE, sCNT, sT, sXRB, sA, sB, sCAP = 40, 41, 42, 43, 44, 45, 46, 47, 48, 49, 50, 51
    sNB, sGL, sNMAX, sG, sL, sM7, sB30, sDF, sNS = 70, 71, 72, 73, 12, 13, 14, 15, 3
    sSTB, sOA, sTAG = 99, 93, 100
    t0, t1, t2, t3, t4, t5, t6, t7 = [T + i for i in range(8)]
    def mk(i): return f"s[{54+2*i}:{55+2*i}]"
    ORD = list(range(7, -1, -1))
    def skip(lab):
        a(f"s_cmp_le_u32 s{sCNT}, 384\ns_cbranch_scc1 {lab}6\ns_cmp_le_u32 s{sCNT}, 448\ns_cbranch_scc1 {lab}7")
    def after(lab, i):
        if i >= 6: a(f"{lab}{i}:")
    ne = 0 if "noe" in OPT["abl"] else 1
    steps = [f"row_shr:{sh} row_mask:0xf bank_mask:0xf bound_ctrl:0" for sh in (1, 2, 4, 8)] + ["row_bcast:15 row_mask:0xa bank_mask:0xf", "row_bcast:31 row_mask:0xc bank_mask:0xf"]

    DS_, SR_, CAD, RNK, PR_ = D, D + 8, D + 16, D + 24, Q
    oA, oB, t16, t4_, idx, rA, rB = [Q + 8 + i for i in range(7)]
    nz = Q + 16
    CS = Q + 20
    NA_, NB_ = M0 // 4, (CH - M0) // 4
    DF = int(OPT["df"])
    SDW = "dst_sel:DWORD dst_unused:UNUSED_PAD src0_sel:DWORD src1_sel:"
    a(f".p2align 8\n{KN}:")
    a(f"""
    s_cmp_ge_u32 s2, 256
    s_cbranch_scc1 M_END
    {"s_memrealtime s[76:77]" if MODE else ""}
    s_load_dwordx4 s[56:59], s[0:1], 16
    s_load_dwordx4 s[4:7], s[0:1], 0
    s_load_dwordx4 s[60:63], s[0:1], 32
    s_load_dwordx4 s[8:11], s[0:1], 48
    s_load_dwordx2 s[64:65], s[0:1], 64
    s_memrealtime s[66:67]
    """)
    a(f"""
    s_setprio 2
    """)
    CPF = int(OPT["cpf"])
    if CPF:
        a(f"""
        s_getpc_b64 s[52:53]
        M_PC:
        s_lshr_b32 s{sA}, s2, 3
        s_lshl_b32 s{sA}, s{sA}, 7
        v_lshrrev_b32 v{t1}, 6, v0
        v_lshlrev_b32 v{t1}, 12, v{t1}
        v_add_u32 v{t1}, s{sA}, v{t1}
        v_min_u32 v{t1}, M_END-M_PC, v{t1}
        global_load_dword v{vCr+4}, v{t1}, s[52:53]
        """)
    a(f"""
    v_lshlrev_b32 v{t16}, 4, v0
    v_mov_b32 v{hz}, 0x80000000
    v_cmp_gt_u32 vcc, {NA_}, v0
    s_mul_i32 s{sA}, s2, 12800
    s_mov_b64 s[52:53], vcc
    v_cndmask_b32 v{rA}, v{hz}, v{t16}, vcc
    v_cmp_gt_u32 vcc, {NB_}, v0
    s_add_u32 s{sB}, s{sA}, {M0*4}
    s_mov_b64 s[54:55], vcc
    v_cndmask_b32 v{rB}, v{hz}, v{t16}, vcc
    s_mov_b32 s{sE+2}, 3200000
    s_mov_b32 s{sE+3}, 0x20000
    s_mov_b32 s{sEM+2}, 3200000
    s_mov_b32 s{sEM+3}, 0x20000
    v_lshlrev_b32 v{t4_}, 2, v0
    v_mov_b32 v{nta}, 0
    v_lshrrev_b32 v{t0}, 6, v0
    s_waitcnt lgkmcnt(0)
    """)
    stamp("ka", 1)
    a(f"""
    s_mov_b32 s{sE}, s58
    s_mov_b32 s{sE+1}, s59
    s_mov_b32 s{sEM}, s56
    s_mov_b32 s{sEM+1}, s57
    buffer_load_dwordx4 {v(DS_,4)}, v{rA}, s[{sE}:{sE+3}], s{sA} offen {OPT['ild']}
    buffer_load_dwordx4 {v(DS_+4,4)}, v{rB}, s[{sE}:{sE+3}], s{sB} offen {OPT['ild']}
    {"" if DF else f"buffer_load_dwordx4 {v(SR_,4)}, v{rA}, s[{sEM}:{sEM+3}], s{sA} offen"}
    {"" if DF else f"buffer_load_dwordx4 {v(SR_+4,4)}, v{rB}, s[{sEM}:{sEM+3}], s{sB} offen"}
    ds_write_b32 v{t4_}, v{nta} offset:{S_CNT}
    ds_write_b32 v{t4_}, v{nta}
    v_readfirstlane_b32 s{sW}, v{t0}
    s_setprio 0
    """)
    srd(a, sP, 10, 256)
    a(f"""
    s_cmp_lt_u32 s2, {NCH}
    s_cbranch_scc1 S_NOTAG
    """)
    HLP = int(OPT["hlp"])
    if HLP:
        a(f"""
        v_and_b32 v{t1}, 63, v0
        v_lshl_add_u32 v{t1}, v{t1}, 3, v{t0}
        v_lshlrev_b32 v{t2}, {HLP}, v{t1}
        v_cmpx_gt_u32 vcc, {(WS_EM + 256*EMS + (1<<HLP) - 1) >> HLP}, v{t1}
        global_load_dword v{vCr+4}, v{t2}, s[64:65]
        s_mov_b64 exec, -1
        s_waitcnt vmcnt(0)
        """)
    a(f"""
    s_cmp_lg_u32 s{sW}, 7
    s_cbranch_scc1 S_NOTAG
    s_or_b32 s{sA}, s66, 1
    v_mov_b32 v{nz}, s{sA}
    v_mov_b32 v{nz+1}, s67
    v_mov_b32 v{nz+2}, 0
    v_mov_b32 v{nz+3}, 0
    s_mov_b64 exec, 1
    buffer_atomic_cmpswap_x2 {v(nz,4)}, v{nta}, s[{sP}:{sP+3}], 0 offen sc1
    s_mov_b64 exec, -1
    s_waitcnt vmcnt(0)
    S_NOTAG:
    s_mov_b32 s68, s10
    s_mov_b32 s69, s11
    s_add_u32 s10, s64, {int(str(OPT["wso"]), 0)}
    s_addc_u32 s11, s65, 0
    s_cmp_lt_u32 s2, {NCH}
    s_cselect_b64 s[52:53], s[52:53], 0
    s_cselect_b64 s[54:55], s[54:55], 0
    v_and_b32 v{lane}, 63, v0
    v_lshlrev_b32 v{l16}, 4, v{lane}
    s_mul_i32 s{sL}, s2, {CH*32}
    s_lshl_b32 s{sT}, s{sW}, 10
    """)
    srd(a, sREC, 6, 0 if "nomv" in OPT["abl"] else 25600000)
    a(f"s_mul_i32 s{sA}, s2, 12800\ns_add_u32 s{sB}, s{sA}, {M0*4}\ns_waitcnt lgkmcnt(0)\ns_barrier")
    if DF: a(f"buffer_load_dwordx4 {v(SR_,4)}, v{rA}, s[{sEM}:{sEM+3}], s{sA} offen\nbuffer_load_dwordx4 {v(SR_+4,4)}, v{rB}, s[{sEM}:{sEM+3}], s{sB} offen")
    if int(OPT["stl"]):
        a(f"""
        s_lshl_b32 s{sA}, s{sW}, 21
        s_add_u32 s{sB}, s{sA}, 0x1000000
        s_min_u32 s{sN}, s{sB}, {WS_EM + 256*EMS - 64}
        s_load_dword s66, s[10:11], s{sA}
        s_load_dword s66, s[10:11], s{sN}
        s_min_u32 s{sN}, s{sB}, {25600000 - 64}
        s_load_dword s66, s[6:7], s{sA}
        s_load_dword s66, s[6:7], s{sN}
        s_and_b32 s{sA}, s{sA}, 0x200000
        s_load_dword s66, s[8:9], s{sA}
        """)
    npiece = 0 if YM else M0 // 32
    nr = (npiece + 7) // 8
    ES = [int(x) for x in OPT["es"].split(",")]
    assert sum(ES) == nr
    EC = [sum(ES[:i]) for i in range(5)]
    def edma(slot):
        for r in range(EC[slot], EC[slot+1]):
            if (r + 1) * 8 > npiece:
                a(f"s_min_u32 s{sT}, s{sT}, {(npiece - 8*r - 1)*1024}")
            a(f"s_add_u32 m0, s{sT}, {S_E + r*8192}\ns_add_u32 s{sA}, s{sT}, {r*8192}\ns_add_u32 s{sA}, s{sA}, s{sL}\nbuffer_load_dwordx4 v{l16}, s[{sREC}:{sREC+3}], s{sA} offen {OPT['eld']} lds")
    srd(a, sX, 4, 3200000)
    srd(a, sP, 60, 18432)
    def xrows():
        a(f"""
        v_lshrrev_b32 v{t0}, 4, v{lane}
        v_xor_b32 v{t0}, v{t0}, v{lane}
        v_and_b32 v{t0}, 7, v{t0}
        v_and_b32 v{t1}, 0x380, v{l16}
        v_lshl_or_b32 v{t0}, v{t0}, 4, v{t1}
        v_xor_b32 v{t1}, 64, v{t0}
        s_lshl_b32 s{sA}, s{sW}, 11
        s_add_u32 m0, s{sA}, {L_XD}
        s_add_u32 s{sB}, s{sA}, s{sS0}
        buffer_load_dwordx4 v{t0}, s[{sX}:{sX+3}], s{sB} offen {OPT['xld']} lds
        buffer_load_dwordx4 v{t1}, s[{sX}:{sX+3}], s{sB} offen offset:1024 {OPT['xld']} lds
        """)
    a(f"""
    s_and_b32 s74, s2, 7
    s_lshl_b32 s74, s74, 5
    s_lshr_b32 s{sA}, s2, 3
    s_add_u32 s74, s74, s{sA}
    s_lshl_b32 s{sA}, s74, 17
    s_add_u32 s{sA}, s{sA}, 1337
    s_mul_hi_u32 s{sS0}, s{sA}, 3209991
    s_add_u32 s{sA}, s{sA}, 131072
    s_mul_hi_u32 s{sNB}, s{sA}, 3209991
    s_min_u32 s{sNB}, s{sNB}, 25000
    s_sub_u32 s{sNB}, s{sNB}, s{sS0}
    s_and_b32 s{sSB}, s{sW}, 1
    s_lshl_b32 s{sSO}, s74, 1
    s_add_u32 s{sSO}, s{sSO}, s{sSB}
    s_mul_i32 s{sSO}, s{sSO}, 49
    s_sub_u32 s{sSO}, s{sSO}, s{sS0}
    s_sub_u32 s{sSO}, s{sSO}, 9
    s_lshl_b32 s{sS0}, s{sS0}, 7
    s_mul_i32 s{sGL}, s{sW}, {XRS}
    s_add_u32 s{sGL}, s{sGL}, {L_XR + GLO}
    """)
    XPOS = int(OPT["xpos"])
    def xw1():
        xrows()
        a(f"""
        s_lshl_b32 s{sA}, s{sW}, 10
        s_add_u32 m0, s{sA}, {S_W}
        s_mov_b32 s{sB}, -49
        buffer_load_dwordx4 v{l16}, s[{sP}:{sP+3}], s{sA} offen lds
        """)
    if XPOS == 0: xw1()
    TLB = int(OPT["tlb"])
    srd(a, sWS, 10, 0x1000000)
    if TLB:
        a(f"""
        v_lshl_add_u32 v{t0}, v{lane}, 3, s{sW}
        v_lshlrev_b32 v{t0}, 20, v{t0}
        buffer_load_dword v{vCr+4}, v{t0}, s[{sWS}:{sWS+3}], 0 offen
        """)
    ES0 = int(OPT["es0"])
    if ES0:
        a(f"s_mul_i32 s{sA}, s2, {RCS}\nbuffer_store_dwordx4 {v(FX,4)}, v{t16}, s[{sWS}:{sWS+3}], s{sA} offen sc1")
    edma(0)
    a(f"""
    v_mov_b32 v{one}, 1
    v_mov_b32 v{t7}, 0x10000
    v_lshlrev_b32 v{idx}, 23, v0
    v_add_u32 v{idx}, 9, v{idx}
    v_lshlrev_b32 v{t6}, 5, v{lane}
    s_mov_b32 s{sB}, -49
    s_mov_b32 s{sM7}, {1<<21}
    s_mov_b32 s{sB30}, {2<<21}
    s_mov_b32 s{sDF}, {3<<21}
    s_setprio 2
    """)
    stamp("ka", 2)
    a(f"""
    s_waitcnt vmcnt({EC[1]+2+ES0+(3 if XPOS == 0 else 0)})
    """)
    stamp("srt", 1); stamp("ka", 3)
    for g in range(2):
        for i in range(4*g, 4*g + 4):
            a(f"v_mul_u32_u24 v{PR_+i}, 1338, v{DS_+i}\nv_lshlrev_b32_sdwa v{CAD+i}, 2, v{PR_+i} {SDW}WORD_1")
        a(f"s_mov_b64 exec, {'s[52:53]' if g == 0 else 's[54:55]'}")
        for i in range(4*g, 4*g + 4): a(f"ds_add_rtn_u32 v{RNK+i}, v{CAD+i}, v{one if g == 0 else t7} offset:{S_CNT}")
        a("s_mov_b64 exec, -1")
    edma(1)
    if XPOS == 1: xw1()
    TCH = int(OPT["tch"])
    if TCH:
        a(f"""
        v_lshl_add_u32 v{t0}, v{lane}, 3, s{sW}
        v_cmpx_gt_u32 vcc, {(WS_EM + 256*EMS + (1<<21) - 1) >> 21}, v{t0}
        v_lshlrev_b32 v{t0}, 21, v{t0}
        global_load_dword v{vCr+4}, v{t0}, s[10:11]
        s_mov_b64 exec, -1
        """)
    def recs(rng):
        o = []
        for i in rng:
            o += [f"v_mad_i32_i16 v{PR_+i}, v{PR_+i}, s{sB}, v{DS_+i} op_sel:[1,0,0,0]", f"v_lshl_add_u32 v{PR_+i}, v{SR_+i}, 6, v{PR_+i}",
                  f"v_add3_u32 v{PR_+i}, v{PR_+i}, v{idx}, {('0', f's{sM7}', f's{sB30}', f's{sDF}')[i%4]}"]
        return o
    a("s_waitcnt lgkmcnt(0)\ns_barrier")
    stamp("srt", 2); stamp("tag", 1); stamp("ka", 4)
    OTG = S4
    a(f"""
    ds_read_b128 {v(CS,4)}, v{t6} offset:{S_CNT}
    ds_read_b128 {v(CS+4,4)}, v{t6} offset:{S_CNT+16}
    ds_read_b32 v{OTG+1}, v{t4_} offset:{S_CNT}
    s_waitcnt vmcnt({EC[2]+3+ES0})
    """)
    emit(recs(range(4)))
    a("s_waitcnt lgkmcnt(1)")
    for j in range(1, 8): a(f"v_add_u32 v{CS+j}, v{CS+j}, v{CS+j-1}")
    a(f"v_mov_b32 v{CS+8}, v{CS+7}")
    rr = recs(range(4, 8))
    for n, stp in enumerate(steps): a(f"{rr[2*n]}\n{rr[2*n+1]}\nv_add_u32_dpp v{CS+8}, v{CS+8}, v{CS+8} {stp}")
    a(f"v_sub_u32 v{CS+8}, v{CS+8}, v{CS+7}\nv_add_u32 v{CS+8}, {M0<<16}, v{CS+8}")
    for j in range(7, 0, -1): a(f"v_add_u32 v{CS+j}, v{CS+j-1}, v{CS+8}")
    a(f"""
    v_mov_b32 v{CS}, v{CS+8}
    ds_write_b128 v{t6}, {v(CS,4)} offset:{S_STA}
    ds_write_b128 v{t6}, {v(CS+4,4)} offset:{S_STA+16}
    """)
    for i in range(8): a(f"ds_read_b32 v{DS_+i}, v{CAD+i} offset:{S_STA}")
    a(f"ds_read_b32 v{OTG}, v{t4_} offset:{S_STA}")
    edma(2)
    for i in range(8):
        if i % 4 == 0: a(f"s_mov_b64 exec, {'s[52:53]' if i == 0 else 's[54:55]'}")
        a(f"""
        s_waitcnt lgkmcnt(8)
        v_add_u32 v{DS_+i}, v{DS_+i}, v{RNK+i}
        v_lshlrev_b32_sdwa v{DS_+i}, 2, v{DS_+i} {SDW}{'WORD_0' if i < 4 else 'WORD_1'}
        ds_write_b32 v{DS_+i}, v{PR_+i} offset:{S_SRT}
        """)
    a("s_mov_b64 exec, -1")
    stamp("srt", 3); stamp("ka", 5)
    a(f"s_load_dwordx2 s[{sTAG}:{sTAG+1}], s[68:69], 0")
    a(f"""
    v_lshrrev_b32 v{t1}, 1, v0
    v_lshlrev_b32 v{t1}, 2, v{t1}
    s_waitcnt vmcnt({EC[3] if XPOS == 0 else ES[2]}) lgkmcnt(0)
    s_barrier
    """)
    if MODE == "ka": a("s_waitcnt vmcnt(0)")
    stamp("srt", 4); stamp("tag", 2); stamp("ka", 6)
    no = 0 if YM else (M0 + 255) // 256
    a(f"ds_read_b128 {v(D,4)}, v{t16} offset:{S_SRT}\nds_read_b128 {v(D+4,4)}, v{t16} offset:{S_SRT+M0*4}")
    for r in range(no): a(f"ds_read_b32 v{SG+r}, v{t1} offset:{S_SRT+1024*r}")
    edma(3)
    a(f"""
    s_mul_i32 s{sA}, s2, {RCS}
    s_add_u32 s{sB}, s{sA}, 8192
    v_and_b32 v{t2}, 1, v0
    v_lshlrev_b32 v{t2}, 4, v{t2}
    s_waitcnt lgkmcnt({no})
    buffer_store_dwordx4 {v(D,4)}, v{rA}, s[{sWS}:{sWS+3}], s{sA} offen sc1
    buffer_store_dwordx4 {v(D+4,4)}, v{rB}, s[{sWS}:{sWS+3}], s{sB} offen sc1
    """)
    stamp("tag", 3)
    a(f"""
    s_mul_i32 s{sN}, s2, {OTS}
    s_add_u32 s{sN}, s{sN}, {WS_O}
    s_mov_b32 s{sB}, 0
    s_cmp_lg_u32 s{sTAG}, 0
    s_cbranch_scc1 S_TAGD
    S_TAGL:
    s_sleep 8
    global_load_dwordx2 {v(OTG+2,2)}, v{nta}, s[68:69] sc1
    s_add_u32 s{sB}, s{sB}, 1
    s_cmp_gt_u32 s{sB}, {SPIN}
    s_cbranch_scc1 M_END
    s_waitcnt vmcnt(0)
    v_readfirstlane_b32 s{sTAG}, v{OTG+2}
    v_readfirstlane_b32 s{sTAG+1}, v{OTG+3}
    s_nop 0
    s_cmp_eq_u32 s{sTAG}, 0
    s_cbranch_scc1 S_TAGL
    S_TAGD:
    """)
    stamp("tag", 4)
    a(f"""
    v_add_u32 v{OTG}, {(2048-M0)<<16}, v{OTG}
    v_mov_b32 v{OTG+2}, s{sTAG}
    v_mov_b32 v{OTG+3}, s{sTAG+1}
    buffer_store_dwordx4 {v(OTG,4)}, v{t16}, s[{sWS}:{sWS+3}], s{sN} offen sc1
    s_movk_i32 s{sB}, {(M0 - 256*(no-1))*2}
    v_cmp_gt_u32 vcc, s{sB}, v0
    v_mov_b32 v{t4}, v{t16}
    v_and_b32 v{m}, 31, v{lane}
    v_lshrrev_b32 v{h}, 5, v{lane}
    v_cndmask_b32 v{t6}, v{hz}, v{t16}, vcc
    v_lshlrev_b32 v{t0}, 3, v0
    v_add_u32 v{t0}, {L_C8}, v{t0}
    v_mov_b32 v{D+8}, 0
    v_mov_b32 v{D+9}, 0
    ds_write_b64 v{t0}, {v(D+8,2)}
    v_bfe_u32 v{t1}, v{lane}, 2, 2
    v_lshl_add_u32 v{t1}, v{h}, 3, v{t1}
    v_lshlrev_b32 v{t1}, 7, v{t1}
    v_and_b32 v{t3}, 3, v{lane}
    v_lshl_add_u32 v{aN}, v{t3}, 3, v{t1}
    v_and_b32 v{t3}, 16, v{lane}
    v_lshl_add_u32 v{aN}, v{t3}, 1, v{aN}
    v_add_u32 v{t1}, v{t1}, v{t3}
    v_and_b32 v{t3}, 1, v{lane}
    v_lshl_add_u32 v{t1}, v{t3}, 5, v{t1}
    v_and_b32 v{t3}, 2, v{lane}
    v_lshl_add_u32 v{t1}, v{t3}, 2, v{t1}
    s_lshl_b32 s{sA}, s{sSB}, 6
    v_add_u32 v{sa}, s{sA}, v{t1}
    v_bfe_u32 v{sac}, v{m}, 1, 3
    v_xor_b32 v{sac}, v{sac}, v{h}
    v_lshlrev_b32 v{sac}, 4, v{sac}
    v_lshl_or_b32 v{sac}, v{m}, 7, v{sac}
    s_and_b32 s{sA}, s{sW}, 6
    s_lshl_b32 s{sA}, s{sA}, 11
    s_add_u32 s{sA}, s{sA}, {L_XD}
    v_add_u32 v{sac}, s{sA}, v{sac}
    s_waitcnt lgkmcnt(1)
    """)
    for r in range(no):
        a(f"v_lshrrev_b32 v{SG+r}, 21, v{SG+r}\nv_lshl_add_u32 v{SG+r}, v{SG+r}, 5, v{t2}")
    srd_off(a, sEM, 10, WS_EM, 0 if "nomv" in OPT["abl"] else 256 * EMS)
    OG = E + 12
    a(f"""
    s_lshl_b32 s{sOA}, s74, 5
    s_lshl_b32 s{sA}, s{sSB}, 4
    s_add_u32 s{sOA}, s{sOA}, s{sA}
    s_lshr_b32 s{sA}, s{sW}, 1
    s_mul_i32 s{sA}, s{sA}, {64*OTS}
    s_add_u32 s{sOA}, s{sOA}, s{sA}
    s_add_u32 s{sOA}, s{sOA}, {WS_O}
    v_mul_u32_u24 v{lh}, {OTS}, v{lane}
    s_mov_b32 s74, {f32(-LOG2E)}
    s_mov_b32 s75, {f32(-LOG2E)}
    """)
    XF, W1t, Wx, PD, EO = FX, AG, EP, AG + 16, Q
    def tr(dst, areg, off):
        a(f"ds_read_b64_tr_b16 {v(dst,2)}, v{areg} offset:{S_W+off}\nds_read_b64_tr_b16 {v(dst+2,2)}, v{areg} offset:{S_W+off+512}")
    def w2read():
        for sx in range(4):
            for nh in range(2): tr(AG + (2*sx + nh)*4, aN, 8192 + 2048*sx + 64*nh)
    for sx in range(4):
        a(f"ds_read_b128 {v(XF+4*sx,4)}, v{sac}" + (f"\nv_xor_b32 v{sac}, {(32, 96, 32)[sx]}, v{sac}" if sx < 3 else ""))
        tr(W1t + 4*sx, sa, 2048*sx)
    a("s_waitcnt lgkmcnt(0)")
    for sx in range(4):
        a(f"v_mfma_f32_32x32x16_bf16 {v(PD,16)}, {v(W1t+4*sx,4)}, {v(XF+4*sx,4)}, {'0' if sx == 0 else v(PD,16)}")
    a(f"""
    v_and_b32 v{t0}, 15, v{m}
    v_mul_u32_u24 v{t0}, 144, v{t0}
    v_lshl_add_u32 v{t0}, v{h}, 5, v{t0}
    v_lshrrev_b32 v{t1}, 4, v{m}
    v_mul_u32_u24 v{t1}, {XRS}, v{t1}
    s_mul_i32 s{sA}, s{sSB}, {64 - XRS}
    s_add_u32 s{sA}, s{sA}, s{sGL}
    v_add3_u32 v{t0}, v{t0}, v{t1}, s{sA}
    v_lshrrev_b32 v{t1}, 3, v{lane}
    v_lshl_add_u32 v{t3}, v{t1}, 4, v{l16}
    v_add_u32 v{t3}, s{sGL}, v{t3}
    s_lshl_b32 s{sA}, s{sW}, 11
    s_lshl_b32 s{sB}, s{sNB}, 7
    v_add_u32 v{t1}, s{sA}, v{l16}
    v_add_u32 v{t5}, 1024, v{t1}
    v_cmp_gt_u32 vcc, s{sB}, v{t1}
    v_cmp_gt_u32 s[52:53], s{sB}, v{t5}
    s_mov_b32 s{sCAP}, 512
    s_mov_b32 s{sBASE}, 0
    v_cndmask_b32 v{t1}, v{hz}, v{t1}, vcc
    v_cndmask_b32 v{t5}, v{hz}, v{t5}, s[52:53]
    """)
    for i in range(8): a(f"v_pk_mul_f32 {v(PD+2*i,2)}, {v(PD+2*i,2)}, s[74:75]")
    for i in range(8): a(f"v_cvt_pk_bf16_f32 v{PD+i}, v{PD+2*i}, v{PD+2*i+1}")
    a(f"""
    ds_write_b128 v{t0}, {v(PD,4)}
    ds_write_b128 v{t0}, {v(PD+4,4)} offset:16
    """)
    stamp("tag", 5)
    srd(a, sE, 62, 16384)
    a(f"""
    s_lshl_b32 s{sA}, s{sW}, 10
    s_add_u32 s{sA}, s{sA}, 8192
    s_add_u32 m0, s{sA}, {S_W}
    s_lshl_b32 s{sB}, s{sSB}, 10
    buffer_load_dwordx4 v{l16}, s[{sP}:{sP+3}], s{sA} offen lds
    s_add_u32 s{sB}, s{sB}, 16384
    s_add_u32 m0, s{sB}, {S_W}
    s_lshl_b32 s{sA}, s{sW}, 11
    buffer_load_dwordx4 v{l16}, s[{sP}:{sP+3}], s{sB} offen lds
    s_lshr_b32 s{sN}, s{sW}, 1
    s_mul_i32 s{sN}, s{sN}, {XRS - 4096}
    s_add_u32 s{sN}, s{sN}, s{sA}
    s_add_u32 m0, s{sN}, {S_WU}
    s_nop 0
    buffer_load_dwordx4 v{l16}, s[{sE}:{sE+3}], s{sA} offen lds
    buffer_load_dwordx4 v{l16}, s[{sE}:{sE+3}], s{sA} offen offset:1024 lds
    s_add_u32 s{sB}, s{sS0}, {WS_P}
    s_waitcnt vmcnt(7) lgkmcnt(0)
    s_barrier
    """)
    stamp("srt", 5); stamp("top", 1); stamp("tag", 6)
    a(f"ds_read_b128 {v(D+16,4)}, v{t3}\nds_read_b128 {v(D+20,4)}, v{t3} offset:{8*144}")
    for r in range(no): a(f"ds_read_b128 {v(EO+4*r,4)}, v{SG+r} offset:{S_E}")
    a(f"""
    s_waitcnt lgkmcnt({no})
    buffer_store_dwordx4 {v(D+16,4)}, v{t1}, s[{sWS}:{sWS+3}], s{sB} offen sc1
    buffer_store_dwordx4 {v(D+20,4)}, v{t5}, s[{sWS}:{sWS+3}], s{sB} offen sc1
    """)
    CEM = int(OPT["cem"])
    a(f"s_mul_i32 s{sA}, s2, {EMS}" if CEM else f"s_lshl_b32 s{sA}, s2, 17")
    for r in range(no):
        a(f"s_waitcnt lgkmcnt({no-1-r})\nbuffer_store_dwordx4 {v(EO+4*r,4)}, v{t6 if r == no-1 else t4}, s[{sEM}:{sEM+3}], s{sA} offen {OPT['st']}\ns_add_u32 s{sA}, s{sA}, 8192")
    a(f"""
    s_mov_b32 s92, 1
    s_lshl_b32 s{sN}, s2, {int(OPT["fst"])}
    s_add_u32 s{sN}, s{sN}, {WS_F2}
    """)
    stamp("srt", 6); stamp("syn", 1)
    FST = int(OPT["fst"])
    f2r = E + 9
    OE = int(OPT["oe"]); XE = 0
    oload = f"buffer_load_dwordx4 {v(OG,4)}, v{lh}, s[{sWS}:{sWS+3}], s{sOA} offen sc1"
    if OE == 1: a(oload)
    a("s_setprio 0")
    OTW = int(OPT['otw'])
    def wwork():
        a(f"v_add_u32 v{sa}, {S_WU - S_W}, v{sa}\ns_mul_i32 s{sB}, s{sSB}, {XRS}\nv_add_u32 v{t2}, s{sB}, v{sa}\nv_subrev_u32 v{t3}, s{sB}, v{sa}")
        for nh in range(2): tr(D + 8 + 4*nh, aN, 128*128 + 64*nh)
        for sx in range(4): tr(Wx + 4*sx, sa, XRS*(sx>>1) + 2048*(sx&1))
        a("s_waitcnt lgkmcnt(0)")
        for sx in range(4):
            a(f"v_mfma_f32_32x32x16_bf16 {v(U0,16)}, {v(Wx+4*sx,4)}, {v(XF+4*sx,4)}, {'0' if sx == 0 else v(U0,16)}")
        tr(WU, t2, 2*XRS); tr(WU + 4, t2, 2*XRS + 2048); tr(WU + 8, t3, 3*XRS); tr(WU + 12, t3, 3*XRS + 2048)
        w2read()
        for nh in range(2):
            for i in range(4):
                r = D + 8 + 4*nh + i
                a(f"v_lshlrev_b32 v{t0}, 16, v{r}\nv_and_b32 v{t1}, 0xffff0000, v{r}\nv_pk_mul_f32 {v(t0,2)}, {v(t0,2)}, s[74:75]\nv_cvt_pk_bf16_f32 v{W+8+4*nh+i}, v{t0}, v{t1}")
    def lanec():
        srd_off(a, sP, 10, WS_P, 3200000)
        if int(OPT["smf"]):
            a(f"""
            v_and_b32 v{t1}, 1, v{m}
            v_lshlrev_b32 v{t1}, 4, v{t1}
            v_mov_b32 v{t2}, 0x3f80
            v_lshlrev_b32 v{t1}, v{t1}, v{t2}
            v_lshrrev_b32 v{t0}, 2, v{m}
            v_lshlrev_b32 v{t2}, 2, v{h}
            v_sub_u32 v{t0}, v{t0}, v{t2}
            v_bfe_i32 v{t2}, v{m}, 1, 1
            v_and_b32 v{t2}, 0xaaaa, v{t2}
            v_or_b32 v{W+4}, 0x4444, v{t2}
            """)
            for i in range(4):
                a(f"v_cmp_eq_u32 vcc, {i}, v{t0}\ns_nop 1\nv_cndmask_b32 v{W+i}, 0, v{t1}, vcc")
        else:
            a(f"""
            v_lshlrev_b32 v{t0}, 3, v{h}
            v_sub_u32 v{t0}, v{m}, v{t0}
            v_and_b32 v{t1}, 1, v{t0}
            v_lshlrev_b32 v{t1}, 4, v{t1}
            v_mov_b32 v{t2}, 0x3f80
            v_lshlrev_b32 v{t1}, v{t1}, v{t2}
            v_lshrrev_b32 v{t0}, 1, v{t0}
            """)
            for j in range(2):
                for i in range(4):
                    a(f"v_cmp_eq_u32 vcc, {8*j+i}, v{t0}\ns_nop 1\nv_cndmask_b32 v{W+4*j+i}, 0, v{t1}, vcc")
        a(f"""
        s_mul_i32 s{sSTB}, s{sW}, {SCAP*32}
        s_add_u32 s{sSTB}, s{sSTB}, {L_ST}
        s_mov_b32 s{sREC}, s10
        s_or_b32 s{sREC+1}, s11, {4<<16}
        s_mov_b32 s{sREC+2}, {WS_O//4}
        s_mov_b32 s{sREC+3}, 0x20000
        s_sub_u32 s{sE}, s6, {DFLAG*32}
        s_subb_u32 s{sE+1}, s7, 0
        s_or_b32 s{sE+1}, s{sE+1}, {32<<16}
        s_mov_b32 s{sE+2}, {(DFLAG + 800000) * ne}
        s_mov_b32 s{sE+3}, 0x20000
        s_sub_u32 s{sG}, 11, s{sW}
        s_cmp_lt_u32 s{sW}, 4
        s_cselect_b32 s{sG}, s{sW}, s{sG}
        s_mul_i32 s{sXRB}, s{sG}, {XRS}
        s_add_u32 s{sXRB}, s{sXRB}, {L_XR}
        s_mov_b32 s{sM7}, 0xffffff80
        s_mov_b32 s{sB30}, 0x40000000
        s_mov_b32 s{sDF}, {DFLAG}
        v_lshlrev_b32 v{RP+1}, 4, v{h}
        v_lshlrev_b32 v{RP+3}, 4, v{h}
        v_lshlrev_b32 v{RP+5}, 4, v{h}
        v_lshlrev_b32 v{RP+7}, 4, v{h}
        v_lshrrev_b32 v{t0}, 3, v{lane}
        s_lshl_b32 s{sA}, s{sG}, 7
        v_lshl_add_u32 v{vLS}, v{t0}, 4, s{sA}
        v_lshl_add_u32 v{vLE}, v{m}, 2, s{sA}
        v_and_b32 v{t3}, 1, v{t0}
        v_lshlrev_b32 v{t3}, 4, v{t3}
        v_lshl_add_u32 v{sac}, v{lane}, 5, v{t3}
        v_add_u32 v{sac}, s{sSTB}, v{sac}
        v_and_b32 v{t1}, 4, v{t0}
        v_and_b32 v{t2}, 7, v{lane}
        v_xor_b32 v{t1}, v{t1}, v{t2}
        v_lshlrev_b32 v{CX}, 4, v{t1}
        v_xor_b32 v{CX+1}, 16, v{CX}
        v_xor_b32 v{CX+2}, 32, v{CX}
        v_xor_b32 v{CX+3}, 48, v{CX}
        v_and_b32 v{t0}, 3, v{m}
        v_lshrrev_b32 v{t1}, 2, v{m}
        v_lshl_add_u32 v{t1}, v{t0}, 3, v{t1}
        v_lshlrev_b32 v{t1}, 7, v{t1}
        v_add_u32 v{t1}, s{sXRB}, v{t1}
        v_lshrrev_b32 v{t2}, 4, v{m}
        v_lshl_or_b32 v{t0}, v{t2}, 2, v{t0}
        v_xor_b32 v{t0}, v{t0}, v{h}
        v_lshl_add_u32 v{XA}, v{t0}, 4, v{t1}
        v_xor_b32 v{XA+1}, 32, v{XA}
        v_xor_b32 v{XA+2}, 64, v{XA}
        v_xor_b32 v{XA+3}, 0x60, v{XA}
        """)
    lanec()
    if OE == 2: a(oload)
    SP = [int(x) for x in OPT["sp"].split(",")]
    spn = [0]
    def sshot(k):
        for _ in range(SP[k]):
            if spn[0] and spn[0] % 32 == 0: a("s_add_u32 s4, s4, 0x100000\ns_addc_u32 s5, s5, 0")
            a(f"s_load_dword s7, s[4:5], {(spn[0] % 32) * 32768}"); spn[0] += 1
    if sum(SP):
        a(f"""
        s_lshr_b32 s{sA}, s2, 3
        s_lshl_b32 s{sA}, s{sA}, 7
        s_lshl_b32 s{sB}, s{sW}, 12
        s_add_u32 s{sA}, s{sA}, s{sB}
        s_add_u32 s{sA}, s{sA}, {WS_P}
        s_add_u32 s4, s10, s{sA}
        s_addc_u32 s5, s11, 0
        """)
    sshot(0)
    stamp("syn", 2)
    a(f"""
    s_setprio 2
    s_cmp_lg_u32 s{sW}, 0
    s_waitcnt vmcnt(0)
    s_barrier
    s_cbranch_scc1 M_NOPUB
    s_mov_b64 exec, 1
    buffer_store_dwordx2 {v(OTG+2,2)}, v{nta}, s[{sWS}:{sWS+3}], s{sN} offen sc1
    s_mov_b64 exec, -1
    M_NOPUB:
    s_mov_b32 s{sA}, 0
    """)
    stamp("syn", 3)
    a(f"s_nop 7\n{oload}")
    wwork()
    sshot(1)
    a(f"s_mov_b32 s{sA}, 0\ns_waitcnt vmcnt(0)")
    kk12, c0, c1, g0, g1, p0, p1, tt, qa, f2r, fl0 = [E + i for i in range(11)]
    G, RC, NA, RK = D, D + 8, D + 16, D + 24
    TBv = FX
    OFv, CA = EP, EP + 8
    a(f"""
    s_branch M_POLLC
    M_BATCH:
    v_mul_u32_u24 v{lh}, {OTS}, v{lane}
    s_mov_b32 s{sA}, 0
    M_POLL:
    s_sleep {OPT["osl"]}
    buffer_load_dwordx4 {v(OG,4)}, v{lh}, s[{sWS}:{sWS+3}], s{sOA} offen sc1
    s_add_u32 s{sA}, s{sA}, 1
    s_cmp_gt_u32 s{sA}, {SPIN}
    s_cbranch_scc1 M_END
    s_waitcnt vmcnt(0)
    M_POLLC:
    v_cmpx_ne_u64 vcc, s[{sTAG}:{sTAG+1}], {v(OG+2,2)}
    s_cbranch_execnz M_POLL
    s_mov_b64 exec, -1
    s_lshr_b32 s{sA}, s{sW}, 1
    s_lshl_b32 s{sA}, s{sA}, 6
    v_add_lshl_u32 v{kk12}, v{lane}, s{sA}, 12
    v_lshl_add_u32 v{qa}, v{lane}, 2, s{sGL}
    v_mov_b32 v{t1}, 0xffff
    v_lshrrev_b32 v{lh}, 1, v{lane}
    s_lshr_b32 s4, s{sW}, 1
    s_lshl_b32 s4, s4, {FST+6}
    s_add_u32 s4, s4, {WS_F2}
    v_lshlrev_b32 v{vCr}, {FST}, v{lane}
    """)
    FV = vCr + 1
    fl_ = f"buffer_load_dwordx2 {v(FV,2)}, v{vCr}, s[{sWS}:{sWS+3}], s4 offen sc1"
    stamp("pro", 1); stamp("syn", 4)
    a(f"v_and_b32 v{p0}, v{t1}, v{OG+1}\nv_lshrrev_b32 v{p1}, 16, v{OG+1}")
    fl = [f"v_and_or_b32 v{g0}, v{OG}, v{t1}, v{kk12}", f"v_lshrrev_b32 v{g1}, 16, v{OG}", f"v_or_b32 v{g1}, v{g1}, v{kk12}",
          f"v_and_b32 v{c0}, v{t1}, v{OG+1}", f"v_lshrrev_b32 v{c1}, 16, v{OG+1}", "s_nop 0"]
    for n, stp in enumerate(steps):
        a(f"{fl[n]}\nv_add_u32_dpp v{p0}, v{p0}, v{p0} {stp}\nv_add_u32_dpp v{p1}, v{p1}, v{p1} {stp}")
    a(f"""
    v_readlane_b32 s{sNS}, v{p0}, 63
    v_readlane_b32 s{sN}, v{p1}, 63
    v_sub_u32 v{p0}, v{p0}, v{c0}
    v_sub_u32 v{p1}, v{p1}, v{c1}
    s_add_u32 s{sN}, s{sN}, s{sNS}
    v_add_u32 v{p1}, s{sNS}, v{p1}
    s_mov_b32 s{sCNT}, s{sN}
    s_add_u32 s{sA}, s{sN}, s{sBASE}
    s_cmp_le_u32 s{sA}, s{sCAP}
    s_cbranch_scc0 M_WIN
    s_cmp_eq_u32 s{sBASE}, 0
    s_cbranch_scc1 M_NOWIN
    M_WIN:
    s_sub_i32 s{sCNT}, s{sN}, s{sBASE}
    s_max_i32 s{sCNT}, s{sCNT}, 0
    s_min_u32 s{sCNT}, s{sCNT}, s{sCAP}
    s_sub_i32 s{sNS}, s{sNS}, s{sBASE}
    s_max_i32 s{sNS}, s{sNS}, 0
    """)
    for (pp, cc, gg) in ((p0, c0, g0), (p1, c1, g1)):
        a(f"""
        v_subrev_u32 v{tt}, s{sBASE}, v{pp}
        v_max_i32 v{pp}, 0, v{tt}
        v_add_u32 v{cc}, v{tt}, v{cc}
        v_min_i32 v{cc}, s{sCAP}, v{cc}
        v_sub_u32 v{cc}, v{cc}, v{pp}
        v_sub_u32 v{tt}, v{pp}, v{tt}
        v_add_u32 v{gg}, v{gg}, v{tt}
        """)
    a(f"M_NOWIN:\ns_min_u32 s{sNS}, s{sNS}, {0 if YM else SCAP}")
    pa, ca_, ga, gb = t0, t1, t2, t3
    for n, (pp, cc, gg) in enumerate(((p0, c0, g0), (p1, c1, g1))):
        a(f"""
        v_lshl_add_u32 v{pp}, v{pp}, 2, s{sGL}
        v_add_u32 v{ga}, 1, v{gg}
        v_add_u32 v{gb}, 2, v{gg}
        v_mov_b32 v{ca_}, v{cc}
        v_mov_b32 v{pa}, v{pp}
        M_EXP{n}:
        """)
        for r in (1, 3, 5, 7):
            a(f"v_cmpx_lt_i32 vcc, {r}, v{ca_}\nds_write2_b32 v{pa}, v{ga}, v{gb} offset0:{r} offset1:{r+1}\nv_add_u32 v{ga}, 2, v{ga}\nv_add_u32 v{gb}, 2, v{gb}")
        a(f"""
        v_cmpx_lt_i32 vcc, 9, v{ca_}
        v_add_u32 v{pa}, 32, v{pa}
        v_subrev_u32 v{ca_}, 8, v{ca_}
        s_cbranch_execnz M_EXP{n}
        s_mov_b64 exec, -1
        """)
    a(f"""
    v_cmpx_lt_i32 vcc, 0, v{c0}
    ds_write_b32 v{p0}, v{g0}
    s_mov_b64 exec, -1
    v_cmpx_lt_i32 vcc, 0, v{c1}
    ds_write_b32 v{p1}, v{g1}
    s_mov_b64 exec, -1
    """)
    a(fl_)
    for i in ORD:
        a(f"ds_read_b32 v{G+i}, v{qa} offset:{256*i}")
    a(f"v_lshl_add_u32 v{t1}, v{lh}, 2, s{sGL}")
    for j in range(NSP):
        a(f"ds_read_b32 v{SG+j}, v{t1} offset:{128*j}")
    for i in ORD:
        a(f"s_sub_i32 s{sA}, s{sCNT}, {64*i}\nv_cmp_gt_i32 {mk(i)}, s{sA}, v{lane}")
    a(f"""
    v_lshrrev_b32 v{t2}, 4, v{lane}
    v_xor_b32 v{t2}, v{t2}, v{lane}
    v_and_b32 v{t2}, 1, v{t2}
    v_lshlrev_b32 v{t2}, 4, v{t2}
    v_mov_b32 v{fl0}, s{sCNT}
    v_mov_b32 v{fl0+1}, s{sN}
    s_waitcnt lgkmcnt(0)
    """)
    if CEM: a(f"s_mov_b32 s{sA}, {EMS//32-4096}")
    for j in range(NSP):
        if CEM: a(f"v_lshrrev_b32 v{t3}, 12, v{SG+j}\nv_mad_i32_i24 v{SG+j}, v{t3}, s{sA}, v{SG+j}")
        a(f"v_lshl_add_u32 v{SG+j}, v{SG+j}, 5, v{t2}")
    for i in range(8): a(f"v_lshrrev_b32 v{t3}, 12, v{G+i}\nv_mad_u32_u24 v{RC+i}, v{t3}, {SKW//4}, v{G+i}")
    stamp("pro", 2); stamp("syn", 5)
    a(f"""
    s_mov_b32 s{sA}, 0
    s_branch M_FL1
    M_FL:
    s_sleep {OPT["osl"]}
    {fl_}
    s_add_u32 s{sA}, s{sA}, 1
    s_cmp_gt_u32 s{sA}, {SPIN}
    s_cbranch_scc1 M_END
    M_FL1:
    s_waitcnt vmcnt(0)
    v_cmpx_ne_u64 vcc, s[{sTAG}:{sTAG+1}], {v(FV,2)}
    s_cbranch_execnz M_FL
    M_READY:
    """)
    stamp("top", 2); stamp("syn", 6); stamp("lb", 1)
    skip("M_GA")
    for i in ORD:
        a(f"s_mov_b64 exec, {mk(i)}\nbuffer_load_dword v{RC+i}, v{RC+i}, s[{sREC}:{sREC+3}], 0 idxen {LD}")
        after("M_GA", i)
    a("s_mov_b64 exec, -1")
    if OTW == 1:
        a("s_cmp_eq_u32 s92, 0\ns_cbranch_scc1 M_NOW\ns_setprio 0")
        wwork()
        a("s_setprio 2\nM_NOW:")
    stamp("lb", 2)
    if int(OPT["barA"]): a("s_barrier")
    stamp("lb", 3)
    def stage(js):
        for j in ([] if YM else js):
            a(f"""
            s_sub_i32 s{sA}, s{sNS}, {32*j}
            s_add_u32 m0, s{sSTB}, {1024*j}
            v_cmpx_gt_i32 vcc, s{sA}, v{lh}
            buffer_load_dwordx4 v{SG+j}, s[{sEM}:{sEM+3}], 0 offen {LD} lds
            """)
        a("s_mov_b64 exec, -1")
    NS1 = int(OPT["ns1"]); NS2 = int(OPT["ns2"])
    stage(range(NS1))
    XW = int(OPT["xw"])
    def pwarm():
        if XW:
            a(f"""
            s_lshr_b32 s{sA}, s2, 3
            s_mul_i32 s{sA}, s{sA}, {XW*128}
            s_add_u32 s{sA}, s{sA}, {XE*4096}
            v_lshl_add_u32 v{tt}, v{lane}, 3, s{sW}
            v_cmpx_gt_u32 vcc, {XW}, v{tt}
            v_lshlrev_b32 v{tt}, 7, v{tt}
            buffer_load_dword v{vCr+4}, v{tt}, s[{sP}:{sP+3}], s{sA} offen sc1
            s_mov_b64 exec, -1
            """)
    a(f"""
    s_mov_b32 s75, {L_C8}
    s_mov_b64 exec, 1
    ds_add_u32 v{nta}, v{fl0} offset:{L_NT}
    ds_max_u32 v{nta}, v{fl0+1} offset:{L_MX}
    """)
    stamp("lb", 4)
    skip("M_RK")
    for i in ORD:
        a(f"""
        s_mov_b64 exec, {mk(i)}
        s_waitcnt vmcnt({i+NS1})
        v_and_b32 v{NA+i}, 63, v{RC+i}
        v_bfe_u32 v{tt}, v{RC+i}, 18, 3
        v_add_u32 v{NA+i}, s{sSO}, v{NA+i}
        v_lshl_add_u32 v{CA+i}, v{NA+i}, 2, s75
        v_lshl_add_u32 v{CA+i}, v{tt}, 9, v{CA+i}
        ds_add_rtn_u32 v{RK+i}, v{CA+i}, v{one}
        """)
        after("M_RK", i)
    def pack(lab):
        a(f"s_movk_i32 s{sB}, {CH}\ns_mov_b32 s74, {int(OPT['epf'])*128}")
        skip(lab)
        for i in ORD:
            a(f"""
            v_lshrrev_b32 v{t0}, 12, v{G+i}
            v_lshrrev_b32 v{tt}, 21, v{RC+i}
            v_bfe_i32 v{t1}, v{G+i}, 11, 1
            v_mad_u32_u24 v{tt}, v{t0}, s{sB}, v{tt}
            v_and_b32 v{t1}, {M0}, v{t1}
            v_bfe_u32 v{RC+i}, v{RC+i}, 6, 15
            v_add3_u32 v{G+i}, v{t1}, v{tt}, s{sDF}
            v_lshl_add_u32 v{RC+i}, v{RC+i}, 7, v{NA+i}
            v_lshlrev_b32 v{NA+i}, 3, v{NA+i}
            """)
            if 64 * i < SCAP and not YM:
                a(f"""
                s_sub_i32 s{sA}, s{sNS}, {64*i}
                v_cmp_gt_i32 vcc, s{sA}, v{lane}
                v_add_u32 v{tt}, {2048*i}, v{sac}
                s_nop 0
                v_cndmask_b32 v{G+i}, v{G+i}, v{tt}, vcc
                """)
            after(lab, i)
    EPOS = int(OPT["epos"]); NEP = 0
    def eprefetch():
        if not int(OPT["epf"]): return
        for i in (6, 5, 4, 3, 2):
            a(f"s_mov_b64 exec, {mk(i)}\nv_cmpx_gt_u32 vcc, s74, v{RC+i}" + ("" if 64 * i >= SCAP else f"\nv_cmpx_le_u32 vcc, s{sDF}, v{G+i}") + f"\nbuffer_load_dword v{vCr+4}, v{G+i}, s[{sE}:{sE+3}], 0 idxen")
        a("s_mov_b64 exec, -1")
    if int(OPT["epf"]): NEP = 5
    a("s_mov_b64 exec, -1")
    stamp("pro", 3); stamp("lb", 5)
    a(f"""
    s_cmp_eq_u32 s{sW}, 0
    s_cbranch_scc1 M_PK0
    s_lshl_b32 s{sA}, s{sW}, 8
    s_add_u32 s{sA}, s{sA}, {L_C8 - 256}
    v_lshl_add_u32 v{S4}, v{lane}, 2, s{sA}
    v_mov_b32 v{Q+8}, 0
    s_waitcnt lgkmcnt(0)
    s_barrier
    """)
    stamp("pro", 4); stamp("lb", 6)
    a(f"s_cmp_gt_u32 s{sW}, 2\ns_cbranch_scc1 M_NOPFX")
    for j in range(3): a(f"ds_read2st64_b32 {v(Q+2*j,2)}, v{S4} offset0:{4*j} offset1:{4*j+2}")
    a(f"s_waitcnt lgkmcnt(0)\nv_mov_b32 v{Q+9}, v{Q}")
    for j in range(1, 6): a(f"v_add_u32 v{Q+9+j}, v{Q+8+j}, v{Q+j}")
    for j in range(4): a(f"ds_write2st64_b32 v{S4}, v{Q+8+2*j}, v{Q+9+2*j} offset0:{C8O//256+4*j} offset1:{C8O//256+4*j+2}")
    a(f"M_NOPFX:\ns_setprio 0\ns_cmp_lt_u32 s{sW}, 4\ns_cbranch_scc1 M_NOFILL")
    for i in range(4): a(f"v_mov_b32 v{t4+i}, {DUMMY}")
    a(f"v_lshlrev_b32 v{t0}, 4, v0\nv_lshlrev_b32 v{t1}, 3, v0")
    assert 2 * LSZ == 8 * 4096 + 2048 and L_LS == 2048
    for i in range(8): a(f"ds_write_b128 v{t0}, {v(t4,4)} offset:{4096*i}")
    a(f"ds_write_b64 v{t1}, {v(t4,2)}\nM_NOFILL:")
    pack("M_PB"); stage(range(NS1, NSP))
    if EPOS == 0: eprefetch()
    a("s_waitcnt lgkmcnt(0)\ns_barrier\ns_branch M_P4E")
    d0, d1, f0, f1, k0, k1, vL, vR, ks, a4, l0, l1, o0, o1, cn, ci = [Q + i for i in range(16)]
    m0_, B0, m1_, B1 = S4, S4+1, S4+2, S4+3
    a(f"""
    M_PK0:
    s_setprio 3
    v_lshlrev_b32 v{a4}, 3, v{lane}
    v_lshlrev_b32 v{cn}, 2, v{lane}
    v_add_u32 v{cn}, {L_C8}, v{cn}
    v_sub_u32 v{ci}, 31, v{m}
    v_lshlrev_b32 v{ci}, 2, v{ci}
    s_mov_b32 s75, {f32(4194304.0)}
    s_waitcnt lgkmcnt(0)
    s_barrier
    """)
    stamp("pro", 4); stamp("lb", 6)
    a(f"ds_read_b32 v{ks}, v{nta} offset:{L_NT}")
    for j in range(7): a(f"ds_read2st64_b32 {v(FX+2*j,2)}, v{cn} offset0:{2*j} offset1:{2*j+1}")
    a(f"""
    s_waitcnt lgkmcnt(4)
    v_readfirstlane_b32 s{sL}, v{ks}
    v_add3_u32 v{d0}, v{FX}, v{FX+2}, v{FX+4}
    v_add3_u32 v{d1}, v{FX+1}, v{FX+3}, v{FX+5}
    s_lshr_b32 s{sL}, s{sL}, 8
    s_add_u32 s{sL}, s{sL}, 2
    s_waitcnt lgkmcnt(0)
    v_add3_u32 v{d0}, v{d0}, v{FX+6}, v{FX+8}
    v_add3_u32 v{d1}, v{d1}, v{FX+7}, v{FX+9}
    v_add3_u32 v{d0}, v{d0}, v{FX+10}, v{FX+12}
    v_add3_u32 v{d1}, v{d1}, v{FX+11}, v{FX+13}
    v_cvt_f32_u32 v{f0}, v{d0}
    v_cvt_f32_u32 v{f1}, v{d1}
    M_LS:
    s_add_u32 s{sL}, s{sL}, 1
    s_cmp_gt_u32 s{sL}, {LMAX}
    s_cbranch_scc1 M_P4W
    v_cvt_f32_u32 v{vL}, s{sL}
    v_rcp_f32 v{vR}, v{vL}
    v_add_f32 v{vL}, -0.5, v{vL}
    v_add_f32 v{k0}, v{f0}, v{vL}
    v_add_f32 v{k1}, v{f1}, v{vL}
    v_mul_f32 v{k0}, v{k0}, v{vR}
    v_mul_f32 v{k1}, v{k1}, v{vR}
    v_cvt_u32_f32 v{k0}, v{k0}
    v_cvt_u32_f32 v{k1}, v{k1}
    v_add_u32 v{ks}, v{k0}, v{k1}
    """)
    fillers = [f"v_cvt_f32_u32 v{l0}, v{k0}", f"v_cvt_f32_u32 v{l1}, v{k1}",
               f"v_rcp_f32 v{m0_}, v{l0}", f"v_rcp_f32 v{m1_}, v{l1}",
               f"v_add_f32 v{l0}, v{l0}, v{f0}", f"v_add_f32 v{l1}, v{l1}, v{f1}",
               f"v_add_f32 v{l0}, -0.5, v{l0}", f"v_add_f32 v{l1}, -0.5, v{l1}",
               f"v_mul_f32 v{l0}, v{l0}, v{m0_}", f"v_mul_f32 v{l1}, v{l1}, v{m1_}",
               f"v_cvt_u32_f32 v{l0}, v{l0}", f"v_cvt_u32_f32 v{l1}, v{l1}"]
    for n, stp in enumerate(steps):
        a(f"{fillers[2*n]}\n{fillers[2*n+1]}\nv_add_u32_dpp v{ks}, v{ks}, v{ks} {stp}")
    a(f"""
    v_lshlrev_b32 v{l0}, 2, v{l0}
    v_readlane_b32 s{sA}, v{ks}, 63
    v_lshlrev_b32 v{l1}, 2, v{l1}
    s_cmp_gt_u32 s{sA}, 256
    s_cbranch_scc1 M_LS
    ds_add_rtn_u32 v{o0}, v{l0}, v{k0} offset:{L_CNT}
    ds_add_rtn_u32 v{o1}, v{l1}, v{k1} offset:{L_CNT}
    ds_read_b32 v{cn}, v{ci} offset:{L_CNT}
    v_mul_f32 v{m0_}, s75, v{m0_}
    v_mul_f32 v{m1_}, s75, v{m1_}
    v_cvt_u32_f32 v{m0_}, v{m0_}
    v_cvt_u32_f32 v{m1_}, v{m1_}
    v_add_u32 v{m0_}, 2, v{m0_}
    v_add_u32 v{m1_}, 2, v{m1_}
    v_lshlrev_b32 v{B0}, 2, v{k0}
    v_lshlrev_b32 v{B1}, 2, v{k1}
    v_sub_u32 v{B0}, 1024, v{B0}
    v_sub_u32 v{B1}, 1024, v{B1}
    v_sub_u32 v{l0}, 124, v{l0}
    v_sub_u32 v{l1}, 124, v{l1}
    s_waitcnt lgkmcnt(0)
    v_mov_b32 v{ks}, v{cn}
    """)
    for stp in steps[:5]:
        a(f"s_nop 1\nv_add_u32_dpp v{ks}, v{ks}, v{ks} {stp}")
    a(f"""
    v_sub_u32 v{ks}, v{ks}, v{cn}
    ds_bpermute_b32 v{d0}, v{l0}, v{ks}
    ds_bpermute_b32 v{d1}, v{l1}, v{ks}
    ds_write_b32 v{ci}, v{ks} offset:{L_BAS}
    s_waitcnt lgkmcnt(1)
    v_add_u32 v{o0}, v{o0}, v{d0}
    v_add_u32 v{o1}, v{o1}, v{d1}
    v_lshl_or_b32 v{m0_}, v{o0}, 24, v{m0_}
    v_lshl_or_b32 v{m1_}, v{o1}, 24, v{m1_}
    ds_write2st64_b64 v{a4}, {v(m0_,2)}, {v(m1_,2)} offset0:0 offset1:1
    M_P4W:
    v_mov_b32 v{ks}, s{sL}
    ds_write_b32 v{nta}, v{ks} offset:{L_MX+4}
    s_waitcnt lgkmcnt(0)
    s_barrier
    """)
    stage(range(NS1, NSP)); pack("M_PA")
    if EPOS == 0: eprefetch()
    u0, nn = Q + 20, Q + 26
    a("M_P4E:")
    stamp("pro", 5)
    a(f"""
    ds_read_b64 {v(u0,2)}, v{nta} offset:{L_MX}
    v_lshlrev_b32 v{tt}, 2, v{m}
    ds_read_b32 v{u0+2}, v{tt} offset:{L_CNT}
    ds_read_b32 v{u0+3}, v{tt} offset:{L_BAS}
    s_lshr_b32 s{sA}, s{sW}, 1
    s_lshl_b32 s{sA}, s{sA}, 5
    v_add_u32 v{nn}, s{sA}, v{m}
    v_lshlrev_b32 v{tt}, 3, v{nn}
    ds_read_b64 {v(u0+4,2)}, v{tt} offset:{L_TB}
    """)
    skip("M_TR")
    for i in ORD:
        a(f"s_mov_b64 exec, {mk(i)}\nds_read_b64 {v(TBv+2*i,2)}, v{NA+i} offset:{L_TB}\nds_read_b32 v{OFv+i}, v{CA+i} offset:{C8O}")
        after("M_TR", i)
    a(f"""
    s_mov_b64 exec, -1
    """)
    if EPOS == 1: eprefetch()
    a(f"""
    s_lshl_b32 s{sA}, s{sG}, 5
    s_waitcnt lgkmcnt(12)
    v_readfirstlane_b32 s{sNMAX}, v{u0}
    v_readfirstlane_b32 s{sL}, v{u0+1}
    v_add_u32 v{u0+2}, v{u0+2}, v{u0+3}
    v_cmp_ge_u32 vcc, s{sA}, v{u0+3}
    v_cmp_lt_u32 s[52:53], s{sA}, v{u0+2}
    s_and_b64 s[52:53], s[52:53], vcc
    s_ff1_i32_b32 s{sT}, s52
    s_max_i32 s{sT}, s{sT}, 0
    s_cmp_le_u32 s{sL}, {LMAX}
    s_cbranch_scc1 M_P5
    s_mov_b32 s{sCAP}, 256
    s_branch M_AGAIN
    M_P5:
    """)
    skip("M_SC")
    for i in ORD:
        mm, BB = TBv + 2*i, TBv + 2*i + 1
        a(f"""
        s_mov_b64 exec, {mk(i)}
        s_waitcnt lgkmcnt({2*i + max(0, 5-i)})
        v_add_u32 v{RK+i}, v{RK+i}, v{OFv+i}
        v_lshrrev_b32 v{tt}, 24, v{mm}
        v_mul_u32_u24 v{mm}, v{mm}, v{RK+i}
        v_add_lshl_u32 v{tt}, v{tt}, v{RK+i}, 2
        v_lshrrev_b32 v{mm}, 22, v{mm}
        v_mad_u32_u24 v{tt}, v{mm}, v{BB}, v{tt}
        ds_write2st64_b32 v{tt}, v{RC+i}, v{G+i} offset0:{L_LS//256} offset1:{L_LE//256}
        """)
        after("M_SC", i)
    ca0, ca1, ca2, ca3, kk, oa, fa, da = [EP + i for i in range(8)]
    epi_setup = f"""
    s_lshl_b32 s{sA}, s{sSB}, 7
    s_add_u32 s{sA}, s{sA}, {L_XR}
    s_movk_i32 s{sB}, 0x3fc
    s_movk_i32 s75, 0x3f8
    v_mov_b32 v{kk}, v{u0+5}
    v_lshrrev_b32 v{ca0}, 24, v{u0+4}
    v_mul_u32_u24 v{ca0}, 272, v{ca0}
    v_lshl_add_u32 v{ca0}, v{h16}, 1, v{ca0}
    v_add_u32 v{ca0}, s{sA}, v{ca0}
    v_mov_b32 v{da}, {L_ZR}
    v_cmp_gt_u32 s[56:57], s{sB}, v{kk}
    v_cmp_gt_u32 s[58:59], s75, v{kk}
    v_add_u32 v{ca1}, 272, v{ca0}
    v_add_u32 v{ca2}, 544, v{ca0}
    v_add_u32 v{ca3}, 816, v{ca0}
    v_cmp_gt_u32 vcc, 0x400, v{kk}
    v_cndmask_b32 v{ca1}, v{da}, v{ca1}, s[56:57]
    v_cndmask_b32 v{ca2}, v{da}, v{ca2}, s[58:59]
    v_cndmask_b32 v{ca0}, v{da}, v{ca0}, vcc
    v_cmp_gt_u32 vcc, s{sNB}, v{nn}
    v_lshlrev_b32 v{oa}, 7, v{nn}
    v_lshl_add_u32 v{oa}, v{h16}, 1, v{oa}
    s_lshl_b32 s{sA}, s{sW}, 11
    v_cndmask_b32 v{oa}, v{hz}, v{oa}, vcc
    v_add_u32 v{fa}, s{sA}, v{l16}
    v_mul_u32_u24 v{da}, 272, v{m}
    v_add3_u32 v{da}, v{da}, v{h16}, s{sXRB}
    """
    a(f"""
    s_mov_b64 exec, -1
    s_setprio 0
    """)
    if EPOS == 2: eprefetch()
    a(f"s_waitcnt vmcnt({NEP}) lgkmcnt(0)\ns_barrier")
    stamp("top", 3); stamp("pro", 6); stamp("pri", 1)
    a(f"s_cmp_lg_u32 s{sT}, 0\ns_cbranch_scc1 M_GO")
    a(epi_setup)
    a("s_branch M_BEND\nM_GO:")
    S = []
    ef = OPT["eflags"]
    def le_read(t, p): return (f"ds_read_b32 v{RP+2*p}, v{vLE} offset:{L_LE+1024*t}", f"le{t}")
    def ls_read(t, dst): return (f"ds_read_b128 {v(dst,4)}, v{vLS} offset:{L_LS+1024*t}", f"ls{t}")
    def st_addr(p): return f"v_xor_b32 v{sa}, v{RP+2*p}, v{h16}"
    def st_read(t): return (f"ds_read_b128 {Es(t)}, v{sa}", f"st{t}")
    def d_pre(t, p): return [f"v_cmp_le_u32 vcc, s{sDF}, v{RP+2*p}", f"v_and_or_b32 v{vCr+t%5}, v{RP+2*p}, s{sB30}, 1.0"]
    def d_load(t, p): return ["s_mov_b64 exec, vcc", (f"buffer_load_dwordx4 {Es(t)}, {v(RP+2*p,2)}, s[{sE}:{sE+3}], 0 idxen offen {ef}", f"D{t}"), "s_mov_b64 exec, -1"]
    def x_addr(src): return [f"v_and_or_b32 v{S4+i}, v{src+i}, s{sM7}, v{CX+i}" for i in range(4)]
    def x_dma(t, nop=True, reg=None, soff="0", tag=None):
        o = []
        for i in range(4):
            sr = sP
            o += [f"s_add_u32 m0, s{sXRB}, {i*1024}"] + (["s_nop 0"] if nop else []) + \
                 [(f"buffer_load_dwordx4 v{(reg or S4)+i}, s[{sr}:{sr+3}], {soff} offen {LD} lds", tag or f"X{t}")]
        return o
    def fx_read(t, sx, tag=None): return (f"ds_read_b128 {v(FX+4*sx,4)}, v{XA+sx}", tag or f"fx{t}")
    def chain(nh, t):
        Dh = v(D + 16 * nh, 16)
        return [f"v_mfma_f32_32x32x16_bf16 {Dh}, {W3f(nh)}, {Es(t)}, {v(Q+16*nh,16)}"] + \
               ([f"v_smfmac_f32_32x32x32_bf16 {Dh}, {Idf(0)}, {v(FX+8*nh,8)}, v{W+4}"] if int(OPT["smf"]) else
                [f"v_mfma_f32_32x32x16_bf16 {Dh}, {Idf(j)}, {v(FX+8*nh+4*j,4)}, {Dh}" for j in range(2)])
    nd, L1, L2 = D, D + 4, SG
    def ps(i): return [f"s_memrealtime s[{76+2*i}:{77+2*i}]", "s_waitcnt lgkmcnt(0)"] if MODE == "pri" else []
    S += [ls_read(0, S4), (f"ds_read_b32 v{nd}, v{vLE} offset:{L_LS}", "nd")] + [le_read(j, j) for j in range(4)] + [ls_read(1, L1), ls_read(2, L2), ("@W", None, "nd")]
    S += x_addr(S4)
    xa_ = [f"v_and_b32 v{nd+1}, 127, v{nd}", f"v_lshlrev_b32 v{nd+1}, 7, v{nd+1}", f"v_bfe_u32 v{nd+2}, v{nd}, 1, 3", f"v_xor_b32 v{nd+2}, v{nd+2}, v{h}"]
    dm = x_dma(0, nop=False)
    for i in range(4): S += [dm[2*i], xa_[i], dm[2*i+1]]
    S += [f"v_lshl_add_u32 v{nd+1}, v{nd+2}, 4, v{nd+1}", f"v_add_u32 v{nd+1}, {L_XD}, v{nd+1}"]
    for sx in range(4):
        S += [(f"ds_read_b128 {v(FX+4*sx,4)}, v{nd+1}", "xd")] + ([f"v_xor_b32 v{nd+1}, {(32, 96, 32)[sx]}, v{nd+1}"] if sx < 3 else [])
    S += [("@W", None, "ls2")] + d_pre(0, 0) + ["s_not_b64 s[60:61], vcc"] + d_load(0, 0) + ps(2)
    S += [st_addr(0), "s_mov_b64 exec, s[60:61]", st_read(0), "s_mov_b64 exec, -1"]
    for j in range(1, 4): S += [st_addr(j), st_read(j)]
    ep = [l.strip() for l in epi_setup.strip().split("\n")]
    S += [f"v_mov_b32 v{SG+4}, v{u0+4}", f"v_mov_b32 v{SG+5}, v{u0+5}", f"v_mov_b32 v{SG+6}, v{nn}", ("@W", None, "xd")]
    ep = [l.replace(f"v{u0+4}", f"v{SG+4}").replace(f"v{u0+5}", f"v{SG+5}").replace(f"v{nn}", f"v{SG+6}") for l in ep] + x_addr(L1)
    k_ = 0
    for nh in range(2):
        for sx in range(4):
            S.append(f"v_mfma_f32_32x32x16_bf16 {v(Q+16*nh,16)}, {v(AG+(sx*2+nh)*4,4)}, {v(FX+4*sx,4)}, {'0' if sx == 0 else v(Q+16*nh,16)}")
            S += ep[k_:k_+4]; k_ += 4
    S += ep[k_:] + ps(3) + ps(4)
    S += [f"s_mov_b32 s74, {f32(-LOG2E)}", f"s_mov_b32 s75, {f32(-LOG2E)}"]
    S += [("@W", "D0", None)] + ps(5) + [fx_read(0, sx) for sx in range(4)]
    S += [f"v_pk_mul_f32 {v(Q+2*i,2)}, {v(Q+2*i,2)}, s[74:75]" for i in range(16)] + [("@W", None, "fx0")]
    c00 = chain(0, 0)
    S += [c00[0], "s_nop 7", "s_nop 7"] + c00[1:] + d_pre(1, 1) + d_load(1, 1) + x_dma(1) + [f"v_and_or_b32 v{L2+i}, v{L2+i}, s{sM7}, v{CX+i}" for i in range(4)] + ps(6)
    if MODE: S += [f"s_mov_b32 s90, s{sT}", f"s_mov_b32 s98, s{sL}", "s_memtime s[94:95]", "s_waitcnt lgkmcnt(0)"]
    if MODE == "top": S += ["s_memrealtime s[84:85]", "s_waitcnt lgkmcnt(0)"]
    def phase(nh, t, mf, fill):
        Db, Ab = D + 16*nh, AG + 16*nh
        c = vCr + t % 5
        cp = f"{v(c & ~1, 2)} " + ("op_sel_hi:[1,0]" if c % 2 == 0 else "op_sel:[0,1] op_sel_hi:[1,1]")
        seq = []
        mf = mf + [None] * (3 - len(mf))
        for q in range(2):
            ex = [f"v_exp_f32 v{T+i}, v{Db+8*q+i}" for i in range(8)]
            rc = [f"v_rcp_f32 v{T+i}, v{T+i}" for i in range(8)]
            ad = [f"v_pk_add_f32 {v(T+2*i,2)}, {v(T+2*i,2)}, {cp}" for i in range(4)]
            fm = [f"v_pk_fma_f32 {v(Ab+8*q+2*i,2)}, {v(Db+8*q+2*i,2)}, {v(T+2*i,2)}, {v(Ab+8*q+2*i,2)}" for i in range(4)]
            if t == 0: fm = [f"v_pk_mul_f32 {v(Ab+8*q+2*i,2)}, {v(Db+8*q+2*i,2)}, {v(T+2*i,2)}" for i in range(4)]
            if q == 0: seq += [mf[0]] + ex + ad + [mf[1]] + rc + fm
            else: seq += [mf[2]] + ex + ad + rc + fm
        res = []; n = 0
        for l in seq:
            if l is None: continue
            res.append(l)
            if l.startswith(("v_exp", "v_rcp")):
                res += fill.get(n, []); n += 1
        def txt(l): return l[0] if isinstance(l, tuple) else l
        ab = OPT["abl"]
        if "novm" in ab: res = [l for l in res if not txt(l).startswith(("buffer_", "s_add_u32 m0", "s_mov_b64 exec")) and not (txt(l) == "@W" and l[1])]
        if "nolds" in ab: res = [l for l in res if not txt(l).startswith("ds_") and not (txt(l) == "@W" and l[2])]
        if "nomf" in ab: res = [l for l in res if not txt(l).startswith(("v_mfma", "v_smf"))]
        if "nova" in ab: res = [l for l in res if not txt(l).startswith(("v_and_or", "v_xor", "v_cmp"))]
        return res
    DL = int(OPT["dl"])
    def last_of(S_, tags):
        seen = [it[1] for it in S_ if isinstance(it, tuple) and it[0] != "@W"]
        return max(tags, key=lambda g: max(i for i, x in enumerate(seen) if x == g))
    for t in range(LMAX):
        fill = {}
        td = t + DL
        pr = td if td < 4 else 0
        if 4 <= td < LMAX:
            fill[0] = [le_read(td, 0)]
            fill[10] = [("@W", None, f"le{td}"), st_addr(0)]; fill[11] = [st_read(td)]
        if t + 3 < LMAX: fill[1] = [ls_read(t + 3, S4)]
        if t + 1 < LMAX:
            FXP = int(OPT["fxp"])
            fill[FXP] = [("@W", f"X{t+1}", None)]
            for sx in range(4): fill[FXP+1+sx] = fill.get(FXP+1+sx, []) + [fx_read(t + 1, sx)]
        if t + 3 < LMAX:
            xa = x_addr(S4)
            xp = 21 if int(OPT["fxp"]) < 17 else 16
            fill[xp] = [("@W", None, f"ls{t+3}"), xa[0]]; fill[xp+1] = [xa[1]]; fill[xp+2] = [xa[2]]; fill[xp+3] = [xa[3]]
        XL = int(OPT["xl"])
        if XL == 2:
            for k_ in (1, 16, 17, 18, 19, 21, 22, 23, 24):
                if k_ in fill and not any((x[0] if isinstance(x, tuple) else x).startswith(("ds_read_b128 v[%d" % FX, "ds_read_b128 v[%d" % (FX+4), "ds_read_b128 v[%d" % (FX+8), "ds_read_b128 v[%d" % (FX+12))) or (isinstance(x, tuple) and x[0] == "@W" and x[1]) for x in fill[k_]): del fill[k_]
            if t + 2 < LMAX:
                dm = x_dma(t + 2, nop=False, reg=L2 if t == 0 else None)
                for i, pos in enumerate(int(x) for x in OPT["dmp"].split(",")): fill[pos] = fill.get(pos, []) + ([("@W", None, f"fx{t+1}")] if i == 1 else []) + [dm[i]]
        if t == 0 and XL == 3:
            if DL > 2: fill[2] = d_pre(2, 2); fill[3] = d_load(2, 2)
            dm = x_dma(2, nop=False, reg=L2)
            for i, pos in enumerate((4, 5, 6, 7, 12, 13, 14, 15)): fill[pos] = [dm[i]]
            if DL > 3: fill[25] = fill.get(25, []) + d_pre(3, 3) + d_load(3, 3)
        PR = {0: (None, None), 1: (1, 0), 2: (0, 1)}[int(OPT["prio"])]
        if PR[0] is not None: S.append(f"s_setprio {PR[0]}")
        S += phase(0, t, chain(1, t), fill)
        if PR[0] is not None: S.append(f"s_setprio {PR[1]}")
        if t + 1 < LMAX and last_of(S, [f"X{t+1}", f"D{t+1}"]) == f"D{t+1}": S.append(("@W", f"D{t+1}", None))
        fill = {}
        if t + 1 < LMAX: fill[0] = [("@W", None, f"fx{t+1}")]
        if t + 3 < LMAX and XL == 3:
            dm = x_dma(t + 3, nop=False)
            for i, pos in enumerate(int(x) for x in OPT["dmp"].split(",")): fill[pos] = [dm[i]]
        if t + 3 < LMAX and XL == 2:
            xa = x_addr(S4)
            fill[4] = [ls_read(t + 3, S4)]
            fill[20] = [("@W", None, f"ls{t+3}"), xa[0]]; fill[21] = [xa[1]]; fill[22] = [xa[2]]; fill[23] = [xa[3]]
        if td < LMAX:
            dp = d_pre(td, pr)
            DP = int(OPT["dpos"])
            fill[DP-1] = fill.get(DP-1, []) + [dp[0], dp[1]]; fill[DP] = d_load(td, pr)
        fill[31] = [f"s_cmp_eq_u32 s{sT}, {t+1}"]
        S += phase(1, t, chain(0, t + 1) if t + 1 < LMAX else [], fill)
        if t + 1 < LMAX: S.append("s_cbranch_scc1 M_FLUSH")
    emit(resolve(S))
    a("M_FLUSH:")
    stamp("top", 5); stamp("epi", 1)
    if MODE: a("s_memtime s[96:97]\ns_waitcnt lgkmcnt(0)")
    a("s_waitcnt vmcnt(0)")
    for i in range(8):
        a(f"ds_write_b128 v{da}, {v(AG+4*i,4)} offset:{32*i}")
    A0, A1, A2, OWN, PAR = D, D + 16, Q, Q + 16, Q + 24
    a(f"""
    M_BEND:
    v_cmp_gt_u32 vcc, 0x3f4, v{kk}
    s_mov_b32 s74, {f32(-1.0/LOG2E)}
    s_mov_b32 s75, {f32(-1.0/LOG2E)}
    s_waitcnt lgkmcnt(0)
    """)
    stamp("epi", 2)
    a("s_barrier")
    stamp("epi", 3)
    offs = (0, 16, 64, 80)
    for i in range(4):
        for buf, ca in ((A0, ca0), (A1, ca1), (A2, ca2)):
            a(f"ds_read_b128 {v(buf+4*i,4)}, v{ca} offset:{offs[i]}")
    for i in range(4):
        a(f"s_waitcnt lgkmcnt({9-3*i})")
        for j in range(2): a(f"v_pk_add_f32 {v(A0+4*i+2*j,2)}, {v(A0+4*i+2*j,2)}, {v(A1+4*i+2*j,2)}")
        for j in range(2): a(f"v_pk_add_f32 {v(A0+4*i+2*j,2)}, {v(A0+4*i+2*j,2)}, {v(A2+4*i+2*j,2)}")
    a(f"""
    s_cbranch_vccz M_SUMD
    s_movk_i32 s{sA}, 0x3f4
    M_SUML:
    s_mov_b64 exec, vcc
    """)
    for i in range(4):
        a(f"ds_read_b128 {v(A1+4*i,4)}, v{ca3} offset:{offs[i]}")
    a(f"s_sub_u32 s{sA}, s{sA}, 4\nv_add_u32 v{ca3}, 272, v{ca3}\ns_waitcnt lgkmcnt(0)")
    for i in range(8): a(f"v_pk_add_f32 {v(A0+2*i,2)}, {v(A0+2*i,2)}, {v(A1+2*i,2)}")
    a(f"""
    s_mov_b64 exec, -1
    v_cmp_gt_i32 vcc, s{sA}, v{kk}
    s_nop 4
    s_cbranch_vccnz M_SUML
    M_SUMD:
    s_cmp_le_u32 s{sNMAX}, s{sCAP}
    s_cbranch_scc1 M_EPI
    """)
    srd_off(a, 56, 10, WS_SP, 2048 * 4096)
    a(f"""
    s_lshl_b32 s{sA}, s2, 3
    s_add_u32 s{sA}, s{sA}, s{sW}
    s_lshl_b32 s{sA}, s{sA}, 12
    s_cmp_eq_u32 s{sBASE}, 0
    s_cbranch_scc1 M_NOLD
    """)
    for i in range(4):
        a(f"buffer_load_dwordx4 {v(A1+4*i,4)}, v{l16}, s[56:59], s{sA} offen offset:{1024*i} sc0 sc1")
    a("s_waitcnt vmcnt(0)")
    for i in range(8): a(f"v_pk_add_f32 {v(A0+2*i,2)}, {v(A0+2*i,2)}, {v(A1+2*i,2)}")
    a(f"""
    M_NOLD:
    s_add_u32 s{sBASE}, s{sBASE}, s{sCAP}
    s_cmp_ge_u32 s{sBASE}, s{sNMAX}
    s_cbranch_scc1 M_EPI
    """)
    for i in range(4):
        a(f"buffer_store_dwordx4 {v(A0+4*i,4)}, v{l16}, s[56:59], s{sA} offen offset:{1024*i} sc0 sc1")
    a(f"""
    M_AGAIN:
    s_load_dwordx2 s[60:61], s[0:1], 32
    s_waitcnt vmcnt(0) lgkmcnt(0)
    s_barrier
    """)
    srd(a, 56, 60, 18432)
    a(f"""
    s_lshl_b32 s{sA}, s{sW}, 10
    s_add_u32 s{sA}, s{sA}, 8192
    s_add_u32 m0, s{sA}, {S_W}
    v_lshlrev_b32 v{t0}, 2, v0
    buffer_load_dwordx4 v{l16}, s[56:59], s{sA} offen lds
    ds_write_b32 v{t0}, v{nta}
    v_add_u32 v{t0}, {L_C8}, v{t0}
    ds_write_b32 v{t0}, v{nta}
    ds_write_b32 v{t0}, v{nta} offset:2048
    """)
    a("s_waitcnt vmcnt(0)\ns_barrier")
    w2read()
    a(f"""
    s_waitcnt lgkmcnt(0)
    s_barrier
    s_branch M_BATCH
    M_EPI:
    """)
    srd(a, 56, 8, 3200000)
    for i in range(8): a(f"v_pk_mul_f32 {v(A0+2*i,2)}, {v(A0+2*i,2)}, s[74:75]")
    for i in range(8): a(f"v_cvt_pk_bf16_f32 v{OWN+i}, v{A0+2*i}, v{A0+2*i+1}")
    a(f"""
    ds_write_b128 v{fa}, {v(OWN,4)} offset:{L_FE}
    ds_write_b128 v{fa}, {v(OWN+4,4)} offset:{L_FE+1024}
    v_xor_b32 v{fa}, 0x800, v{fa}
    v_mfma_f32_32x32x16_bf16 {v(U0,16)}, {v(WU,4)}, {v(OWN,4)}, {v(U0,16)}
    v_mfma_f32_32x32x16_bf16 {v(U0,16)}, {v(WU+4,4)}, {v(OWN+4,4)}, {v(U0,16)}
    s_lshl_b32 s{sA}, s{sSB}, 6
    s_add_u32 s{sA}, s{sA}, s{sS0}
    s_mov_b32 s74, {f32(-LOG2E)}
    s_mov_b32 s75, {f32(-LOG2E)}
    s_waitcnt lgkmcnt(0)
    s_barrier
    """)
    stamp("epi", 4)
    a(f"""
    ds_read_b128 {v(PAR,4)}, v{fa} offset:{L_FE}
    ds_read_b128 {v(PAR+4,4)}, v{fa} offset:{L_FE+1024}
    s_waitcnt lgkmcnt(1)
    v_mfma_f32_32x32x16_bf16 {v(U0,16)}, {v(WU+8,4)}, {v(PAR,4)}, {v(U0,16)}
    s_waitcnt lgkmcnt(0)
    v_mfma_f32_32x32x16_bf16 {v(U0,16)}, {v(WU+12,4)}, {v(PAR+4,4)}, {v(U0,16)}
    s_nop 11
    """)
    for q in range(2):
        b = 8 * q
        for i in range(4): a(f"v_pk_mul_f32 {v(AG+b+2*i,2)}, {v(U0+b+2*i,2)}, s[74:75]")
        for i in range(8): a(f"v_exp_f32 v{AG+b+i}, v{AG+b+i}")
        for i in range(4): a(f"v_pk_add_f32 {v(AG+b+2*i,2)}, {v(AG+b+2*i,2)}, 1.0 op_sel_hi:[1,0]")
        for i in range(8): a(f"v_rcp_f32 v{AG+b+i}, v{AG+b+i}")
        for i in range(4): a(f"v_pk_mul_f32 {v(AG+b+2*i,2)}, {v(U0+b+2*i,2)}, {v(AG+b+2*i,2)}")
        for i in range(4): a(f"v_cvt_pk_bf16_f32 v{D+4*q+i}, v{AG+b+2*i}, v{AG+b+2*i+1}")
        a(f"buffer_store_dwordx4 {v(D+4*q,4)}, v{oa}, s[56:59], s{sA} offen offset:{16*q}")
    if MODE:
        stamp("epi", 5)
        a("s_waitcnt vmcnt(0)")
        stamp("top", 6); stamp("epi", 6)
        a(f"s_lshl_b32 s74, s2, 3\ns_add_u32 s74, s74, s{sW}\ns_lshl_b32 s74, s74, 6\ns_add_u32 s74, s74, {WS_ST+0x80000}\ns_load_dwordx2 s[10:11], s[0:1], 64\ns_waitcnt lgkmcnt(0)\ns_add_u32 s52, s10, s74\ns_addc_u32 s53, s11, 0\nv_mov_b32 v0, 0")
        for i in range(8):
            a(f"v_mov_b32 v1, s{76+2*i}\nglobal_store_dword v0, v1, s[52:53] offset:{4*i}")
        a("s_sub_u32 s96, s96, s94\nv_mov_b32 v1, s96\nglobal_store_dword v0, v1, s[52:53] offset:32\nv_mov_b32 v1, s98\nglobal_store_dword v0, v1, s[52:53] offset:36")
    a("M_END:\ns_endpgm")
    return R.n

hdr = f"""; MPNN edge-MLP + segment-sum + node update in one launch of 256 co-resident workgroups:
; @launch grid=(256,1,1) block=(512,1,1) lds={MAIN_LDS}
.amdgcn_target "amdgcn-amd-amdhsa--gfx950"
.text
.globl {KN}
.type {KN},@function
"""
nv = gen()
txt = hdr + a.text() + '.section .rodata,"a"\n.p2align 6\n' + kdesc(KN, 256, 102)
open(sys.argv[1], "w").write(txt)
print("vgprs", nv, "lds", MAIN_LDS)
```

```python
import sys, struct
from asmlib import *

OPT = dict(abl="", stamp=False, eflags="", M0=1152, ns1=3, es='0,3,2,0', xpos=0, df=1, hlp=0, es0=0, cpf=1, fxp=16, dmp='23,24,25,26,27,28,29,30', dpos=12, sp='0,0,0,0', dl=2, xl=2, barA=1, wpos=0, epos=1, osl=4, xw=0, fst=5, cem=1, Y=False, epf=2000, skw=256, xe=0, tlb=0, stl=0, eld='', ild='', xld='', wso=0, tch=0, st='sc1', oe=0, otw=2, smf=1, ns2=7, prio=1, ld="sc1")
for arg in sys.argv[2:]:
    k, val = arg.split("=")
    OPT[k] = {"True": True, "False": False}.get(val, val.replace("+", " "))
M0 = int(OPT["M0"])
assert M0 % 32 == 0 and M0 <= 1792 and 3200 - M0 <= 2048
LD = OPT["ld"]
YM = OPT["Y"]
if YM: OPT["es"] = "0,0,0,0"; OPT["ns1"] = 0
KN = "standalone__mpnn_edge_mlp__graph_kernel"

NCH, CH = 250, 3200
WS_REC, WS_O, WS_F2, WS_ST, WS_P, WS_SP, WS_EM = 0, 0x440000, 0x680000, 0x700000, 0x800000, 0x1A00000, 0xB20000
SKW = int(OPT["skw"])
OTS, RCS, EMS = 8192 + SKW, 16384 + SKW, M0 * 32 + SKW
LOG2E = 1.4426950408889634
def f32(x): return "0x%08x" % struct.unpack("<I", struct.pack("<f", x))[0]

a = Asm()
MODE = OPT["stamp"]
def stamp(mode, i):
    if MODE == mode or (MODE and mode == "all"):
        a(f"s_memrealtime s[{76+2*i}:{77+2*i}]\ns_waitcnt lgkmcnt(0)")
def emit(l): a("\n".join(l))

def resolve(stream):
    out = []; vm = []; lg = []
    for it in stream:
        if isinstance(it, tuple) and it[0] == "@W":
            parts = []
            if it[1] is not None:
                idx = max(i for i, t in enumerate(vm) if t == it[1]); n = len(vm) - 1 - idx
                assert n <= 63; parts.append(f"vmcnt({n})")
            if it[2] is not None:
                idx = max(i for i, t in enumerate(lg) if t == it[2]); n = len(lg) - 1 - idx
                parts.append(f"lgkmcnt({min(n, 15)})")
            out.append("s_waitcnt " + " ".join(parts)); continue
        txt, tag = it if isinstance(it, tuple) else (it, None)
        if txt.startswith("buffer_"): vm.append(tag)
        if txt.startswith("ds_"): lg.append(tag)
        out.append(txt)
    return out

LMAX = 17
L_TB = 0
L_CNT = 1024
L_NT = L_CNT + 128
L_MX = L_NT + 16
L_BAS = L_MX + 16
L_F2C = 1408
L_ZR = 1536
L_LS = 2048
LSZ = LMAX * 1024
L_LE = L_LS + LSZ
L_ST = L_LE + LSZ
SCAP = 160
NSP = SCAP // 32
L_XD = L_ST + 8 * SCAP * 32
L_XR = L_XD + 16384
XRS = 8704
MAIN_LDS = L_XR + 8 * XRS
assert MAIN_LDS <= 163840 and L_XR % 4096 == 0
L_C8 = L_XR + XRS
C8O = XRS
GLO = 6144
S_W = L_LS
S_WU = L_XR + 4 * XRS
S_CNT = S_W + 18432
S_STA = S_CNT + 2048
S_SRT = S_STA + 2048
S_E = S_SRT + CH * 4
assert S_E + M0 * 32 <= L_XD
L_FE = L_LS
DUMMY = 0xC0000000
DFLAG = 1 << 24
SPIN = 200000

def gen():
    R = Regs("v", 1, 256)
    vLS = R.alloc("vLS"); vLE = R.alloc("vLE")
    vCr = R.alloc("vCr", 5)
    RP = R.alloc("RP", 8, 2)
    XA = R.alloc("XA", 4); CX = R.alloc("CX", 4)
    S4 = R.alloc("S4", 4, 4); T = R.alloc("T", 8, 4)
    FX = R.alloc("FX", 16, 4); E = R.alloc("E", 16, 4)
    D = R.alloc("D", 32, 4); Q = R.alloc("Q", 32, 4); AG = R.alloc("AG", 32, 4); W = R.alloc("W", 16, 4)
    U0 = R.alloc("U0", 16, 4); WU = R.alloc("WU", 16, 4); EP = R.alloc("EP", 16, 4)
    SG = R.alloc("SG", 8, 4)
    sa = R.alloc("sa"); lane = R.alloc("lane"); l16 = R.alloc("l16"); m = R.alloc("m"); h = R.alloc("h")
    sac = R.alloc("sac"); lh = R.alloc("lh"); hz = R.alloc("hz"); aN = R.alloc("aN"); one = R.alloc("one"); nta = R.alloc("nta")
    h16 = RP + 1
    def Idf(j): return v(W + 4 * j, 4)
    def W3f(nh): return v(W + 8 + nh * 4, 4)
    def Es(t): return v(E + 4 * (t % 4), 4)
    sX, sE, sREC, sEM, sWS, sP = 16, 20, 24, 28, 32, 36
    sW, sSB, sS0, sSO, sN, sBASE, sCNT, sT, sXRB, sA, sB, sCAP = 40, 41, 42, 43, 44, 45, 46, 47, 48, 49, 50, 51
    sNB, sGL, sNMAX, sG, sL, sM7, sB30, sDF, sNS = 70, 71, 72, 73, 12, 13, 14, 15, 3
    sSTB, sOA, sTAG = 99, 93, 100
    t0, t1, t2, t3, t4, t5, t6, t7 = [T + i for i in range(8)]
    def mk(i): return f"s[{54+2*i}:{55+2*i}]"
    ORD = list(range(7, -1, -1))
    def skip(lab):
        a(f"s_cmp_le_u32 s{sCNT}, 384\ns_cbranch_scc1 {lab}6\ns_cmp_le_u32 s{sCNT}, 448\ns_cbranch_scc1 {lab}7")
    def after(lab, i):
        if i >= 6: a(f"{lab}{i}:")
    ne = 0 if "noe" in OPT["abl"] else 1
    steps = [f"row_shr:{sh} row_mask:0xf bank_mask:0xf bound_ctrl:0" for sh in (1, 2, 4, 8)] + ["row_bcast:15 row_mask:0xa bank_mask:0xf", "row_bcast:31 row_mask:0xc bank_mask:0xf"]

    DS_, SR_, CAD, RNK, PR_ = D, D + 8, D + 16, D + 24, Q
    oA, oB, t16, t4_, idx, rA, rB = [Q + 8 + i for i in range(7)]
    nz = Q + 16
    CS = Q + 20
    NA_, NB_ = M0 // 4, (CH - M0) // 4
    DF = int(OPT["df"])
    SDW = "dst_sel:DWORD dst_unused:UNUSED_PAD src0_sel:DWORD src1_sel:"
    a(f".p2align 8\n{KN}:")
    a(f"""
    s_cmp_ge_u32 s2, 256
    s_cbranch_scc1 M_END
    {"s_memrealtime s[76:77]" if MODE else ""}
    s_load_dwordx4 s[56:59], s[0:1], 16
    s_load_dwordx4 s[4:7], s[0:1], 0
    s_load_dwordx4 s[60:63], s[0:1], 32
    s_load_dwordx4 s[8:11], s[0:1], 48
    s_load_dwordx2 s[64:65], s[0:1], 64
    s_memrealtime s[66:67]
    """)
    a(f"""
    s_setprio 2
    """)
    CPF = int(OPT["cpf"])
    if CPF:
        a(f"""
        s_getpc_b64 s[52:53]
        M_PC:
        s_lshr_b32 s{sA}, s2, 3
        s_lshl_b32 s{sA}, s{sA}, 7
        v_lshrrev_b32 v{t1}, 6, v0
        v_lshlrev_b32 v{t1}, 12, v{t1}
        v_add_u32 v{t1}, s{sA}, v{t1}
        v_min_u32 v{t1}, M_END-M_PC, v{t1}
        global_load_dword v{vCr+4}, v{t1}, s[52:53]
        """)
    a(f"""
    v_lshlrev_b32 v{t16}, 4, v0
    v_mov_b32 v{hz}, 0x80000000
    v_cmp_gt_u32 vcc, {NA_}, v0
    s_mul_i32 s{sA}, s2, 12800
    s_mov_b64 s[52:53], vcc
    v_cndmask_b32 v{rA}, v{hz}, v{t16}, vcc
    v_cmp_gt_u32 vcc, {NB_}, v0
    s_add_u32 s{sB}, s{sA}, {M0*4}
    s_mov_b64 s[54:55], vcc
    v_cndmask_b32 v{rB}, v{hz}, v{t16}, vcc
    s_mov_b32 s{sE+2}, 3200000
    s_mov_b32 s{sE+3}, 0x20000
    s_mov_b32 s{sEM+2}, 3200000
    s_mov_b32 s{sEM+3}, 0x20000
    v_lshlrev_b32 v{t4_}, 2, v0
    v_mov_b32 v{nta}, 0
    v_lshrrev_b32 v{t0}, 6, v0
    s_waitcnt lgkmcnt(0)
    """)
    stamp("ka", 1)
    a(f"""
    s_mov_b32 s{sE}, s58
    s_mov_b32 s{sE+1}, s59
    s_mov_b32 s{sEM}, s56
    s_mov_b32 s{sEM+1}, s57
    buffer_load_dwordx4 {v(DS_,4)}, v{rA}, s[{sE}:{sE+3}], s{sA} offen {OPT['ild']}
    buffer_load_dwordx4 {v(DS_+4,4)}, v{rB}, s[{sE}:{sE+3}], s{sB} offen {OPT['ild']}
    {"" if DF else f"buffer_load_dwordx4 {v(SR_,4)}, v{rA}, s[{sEM}:{sEM+3}], s{sA} offen"}
    {"" if DF else f"buffer_load_dwordx4 {v(SR_+4,4)}, v{rB}, s[{sEM}:{sEM+3}], s{sB} offen"}
    ds_write_b32 v{t4_}, v{nta} offset:{S_CNT}
    ds_write_b32 v{t4_}, v{nta}
    v_readfirstlane_b32 s{sW}, v{t0}
    s_setprio 0
    """)
    srd(a, sP, 10, 256)
    a(f"""
    s_cmp_lt_u32 s2, {NCH}
    s_cbranch_scc1 S_NOTAG
    """)
    HLP = int(OPT["hlp"])
    if HLP:
        a(f"""
        v_and_b32 v{t1}, 63, v0
        v_lshl_add_u32 v{t1}, v{t1}, 3, v{t0}
        v_lshlrev_b32 v{t2}, {HLP}, v{t1}
        v_cmpx_gt_u32 vcc, {(WS_EM + 256*EMS + (1<<HLP) - 1) >> HLP}, v{t1}
        global_load_dword v{vCr+4}, v{t2}, s[64:65]
        s_mov_b64 exec, -1
        s_waitcnt vmcnt(0)
        """)
    a(f"""
    s_cmp_lg_u32 s{sW}, 7
    s_cbranch_scc1 S_NOTAG
    s_or_b32 s{sA}, s66, 1
    v_mov_b32 v{nz}, s{sA}
    v_mov_b32 v{nz+1}, s67
    v_mov_b32 v{nz+2}, 0
    v_mov_b32 v{nz+3}, 0
    s_mov_b64 exec, 1
    buffer_atomic_cmpswap_x2 {v(nz,4)}, v{nta}, s[{sP}:{sP+3}], 0 offen sc1
    s_mov_b64 exec, -1
    s_waitcnt vmcnt(0)
    S_NOTAG:
    s_mov_b32 s68, s10
    s_mov_b32 s69, s11
    s_add_u32 s10, s64, {int(str(OPT["wso"]), 0)}
    s_addc_u32 s11, s65, 0
    s_cmp_lt_u32 s2, {NCH}
    s_cselect_b64 s[52:53], s[52:53], 0
    s_cselect_b64 s[54:55], s[54:55], 0
    v_and_b32 v{lane}, 63, v0
    v_lshlrev_b32 v{l16}, 4, v{lane}
    s_mul_i32 s{sL}, s2, {CH*32}
    s_lshl_b32 s{sT}, s{sW}, 10
    """)
    srd(a, sREC, 6, 0 if "nomv" in OPT["abl"] else 25600000)
    a(f"s_mul_i32 s{sA}, s2, 12800\ns_add_u32 s{sB}, s{sA}, {M0*4}\ns_waitcnt lgkmcnt(0)\ns_barrier")
    if DF: a(f"buffer_load_dwordx4 {v(SR_,4)}, v{rA}, s[{sEM}:{sEM+3}], s{sA} offen\nbuffer_load_dwordx4 {v(SR_+4,4)}, v{rB}, s[{sEM}:{sEM+3}], s{sB} offen")
    if int(OPT["stl"]):
        a(f"""
        s_lshl_b32 s{sA}, s{sW}, 21
        s_add_u32 s{sB}, s{sA}, 0x1000000
        s_min_u32 s{sN}, s{sB}, {WS_EM + 256*EMS - 64}
        s_load_dword s66, s[10:11], s{sA}
        s_load_dword s66, s[10:11], s{sN}
        s_min_u32 s{sN}, s{sB}, {25600000 - 64}
        s_load_dword s66, s[6:7], s{sA}
        s_load_dword s66, s[6:7], s{sN}
        s_and_b32 s{sA}, s{sA}, 0x200000
        s_load_dword s66, s[8:9], s{sA}
        """)
    npiece = 0 if YM else M0 // 32
    nr = (npiece + 7) // 8
    ES = [int(x) for x in OPT["es"].split(",")]
    assert sum(ES) == nr
    EC = [sum(ES[:i]) for i in range(5)]
    def edma(slot):
        for r in range(EC[slot], EC[slot+1]):
            if (r + 1) * 8 > npiece:
                a(f"s_min_u32 s{sT}, s{sT}, {(npiece - 8*r - 1)*1024}")
            a(f"s_add_u32 m0, s{sT}, {S_E + r*8192}\ns_add_u32 s{sA}, s{sT}, {r*8192}\ns_add_u32 s{sA}, s{sA}, s{sL}\nbuffer_load_dwordx4 v{l16}, s[{sREC}:{sREC+3}], s{sA} offen {OPT['eld']} lds")
    srd(a, sX, 4, 3200000)
    srd(a, sP, 60, 18432)
    def xrows():
        a(f"""
        v_lshrrev_b32 v{t0}, 4, v{lane}
        v_xor_b32 v{t0}, v{t0}, v{lane}
        v_and_b32 v{t0}, 7, v{t0}
        v_and_b32 v{t1}, 0x380, v{l16}
        v_lshl_or_b32 v{t0}, v{t0}, 4, v{t1}
        v_xor_b32 v{t1}, 64, v{t0}
        s_lshl_b32 s{sA}, s{sW}, 11
        s_add_u32 m0, s{sA}, {L_XD}
        s_add_u32 s{sB}, s{sA}, s{sS0}
        buffer_load_dwordx4 v{t0}, s[{sX}:{sX+3}], s{sB} offen {OPT['xld']} lds
        buffer_load_dwordx4 v{t1}, s[{sX}:{sX+3}], s{sB} offen offset:1024 {OPT['xld']} lds
        """)
    a(f"""
    s_and_b32 s74, s2, 7
    s_lshl_b32 s74, s74, 5
    s_lshr_b32 s{sA}, s2, 3
    s_add_u32 s74, s74, s{sA}
    s_lshl_b32 s{sA}, s74, 17
    s_add_u32 s{sA}, s{sA}, 1337
    s_mul_hi_u32 s{sS0}, s{sA}, 3209991
    s_add_u32 s{sA}, s{sA}, 131072
    s_mul_hi_u32 s{sNB}, s{sA}, 3209991
    s_min_u32 s{sNB}, s{sNB}, 25000
    s_sub_u32 s{sNB}, s{sNB}, s{sS0}
    s_and_b32 s{sSB}, s{sW}, 1
    s_mul_i32 s{sSO}, s74, 98
    s_sub_u32 s{sSO}, s{sSO}, s{sS0}
    s_sub_u32 s{sSO}, s{sSO}, 9
    s_lshl_b32 s{sS0}, s{sS0}, 7
    s_mul_i32 s{sGL}, s{sW}, {XRS}
    s_add_u32 s{sGL}, s{sGL}, {L_XR + GLO}
    """)
    XPOS = int(OPT["xpos"])
    def xw1():
        xrows()
        a(f"""
        s_lshl_b32 s{sA}, s{sW}, 10
        s_add_u32 m0, s{sA}, {S_W}
        s_mov_b32 s{sB}, -49
        buffer_load_dwordx4 v{l16}, s[{sP}:{sP+3}], s{sA} offen lds
        """)
    if XPOS == 0: xw1()
    TLB = int(OPT["tlb"])
    srd(a, sWS, 10, 0x1000000)
    if TLB:
        a(f"""
        v_lshl_add_u32 v{t0}, v{lane}, 3, s{sW}
        v_lshlrev_b32 v{t0}, 20, v{t0}
        buffer_load_dword v{vCr+4}, v{t0}, s[{sWS}:{sWS+3}], 0 offen
        """)
    ES0 = int(OPT["es0"])
    if ES0:
        a(f"s_mul_i32 s{sA}, s2, {RCS}\nbuffer_store_dwordx4 {v(FX,4)}, v{t16}, s[{sWS}:{sWS+3}], s{sA} offen sc1")
    edma(0)
    a(f"""
    v_mov_b32 v{one}, 1
    v_mov_b32 v{t7}, 0x10000
    v_lshlrev_b32 v{idx}, 23, v0
    v_add_u32 v{idx}, 9, v{idx}
    v_lshlrev_b32 v{t6}, 5, v{lane}
    s_mov_b32 s{sB}, -49
    s_mov_b32 s{sM7}, {1<<21}
    s_mov_b32 s{sB30}, {2<<21}
    s_mov_b32 s{sDF}, {3<<21}
    s_setprio 2
    """)
    stamp("ka", 2)
    a(f"""
    s_waitcnt vmcnt({EC[1]+2+ES0+(3 if XPOS == 0 else 0)})
    """)
    stamp("srt", 1); stamp("ka", 3)
    for g in range(2):
        for i in range(4*g, 4*g + 4):
            a(f"v_mul_u32_u24 v{PR_+i}, 1338, v{DS_+i}\nv_lshlrev_b32_sdwa v{CAD+i}, 2, v{PR_+i} {SDW}WORD_1")
        a(f"s_mov_b64 exec, {'s[52:53]' if g == 0 else 's[54:55]'}")
        for i in range(4*g, 4*g + 4): a(f"ds_add_rtn_u32 v{RNK+i}, v{CAD+i}, v{one if g == 0 else t7} offset:{S_CNT}")
        a("s_mov_b64 exec, -1")
    edma(1)
    if XPOS == 1: xw1()
    TCH = int(OPT["tch"])
    if TCH:
        a(f"""
        v_lshl_add_u32 v{t0}, v{lane}, 3, s{sW}
        v_cmpx_gt_u32 vcc, {(WS_EM + 256*EMS + (1<<21) - 1) >> 21}, v{t0}
        v_lshlrev_b32 v{t0}, 21, v{t0}
        global_load_dword v{vCr+4}, v{t0}, s[10:11]
        s_mov_b64 exec, -1
        """)
    def recs(rng):
        o = []
        for i in rng:
            o += [f"v_mad_i32_i16 v{PR_+i}, v{PR_+i}, s{sB}, v{DS_+i} op_sel:[1,0,0,0]", f"v_lshl_add_u32 v{PR_+i}, v{SR_+i}, 6, v{PR_+i}",
                  f"v_add3_u32 v{PR_+i}, v{PR_+i}, v{idx}, {('0', f's{sM7}', f's{sB30}', f's{sDF}')[i%4]}"]
        return o
    a("s_waitcnt lgkmcnt(0)\ns_barrier")
    stamp("srt", 2); stamp("tag", 1); stamp("ka", 4)
    OTG = S4
    a(f"""
    ds_read_b128 {v(CS,4)}, v{t6} offset:{S_CNT}
    ds_read_b128 {v(CS+4,4)}, v{t6} offset:{S_CNT+16}
    ds_read_b32 v{OTG+1}, v{t4_} offset:{S_CNT}
    s_waitcnt vmcnt({EC[2]+3+ES0})
    """)
    emit(recs(range(4)))
    a("s_waitcnt lgkmcnt(1)")
    for j in range(1, 8): a(f"v_add_u32 v{CS+j}, v{CS+j}, v{CS+j-1}")
    a(f"v_mov_b32 v{CS+8}, v{CS+7}")
    rr = recs(range(4, 8))
    for n, stp in enumerate(steps): a(f"{rr[2*n]}\n{rr[2*n+1]}\nv_add_u32_dpp v{CS+8}, v{CS+8}, v{CS+8} {stp}")
    a(f"v_sub_u32 v{CS+8}, v{CS+8}, v{CS+7}\nv_add_u32 v{CS+8}, {M0<<16}, v{CS+8}")
    for j in range(7, 0, -1): a(f"v_add_u32 v{CS+j}, v{CS+j-1}, v{CS+8}")
    a(f"""
    v_mov_b32 v{CS}, v{CS+8}
    ds_write_b128 v{t6}, {v(CS,4)} offset:{S_STA}
    ds_write_b128 v{t6}, {v(CS+4,4)} offset:{S_STA+16}
    """)
    for i in range(8): a(f"ds_read_b32 v{DS_+i}, v{CAD+i} offset:{S_STA}")
    a(f"ds_read_b32 v{OTG}, v{t4_} offset:{S_STA}")
    edma(2)
    for i in range(8):
        if i % 4 == 0: a(f"s_mov_b64 exec, {'s[52:53]' if i == 0 else 's[54:55]'}")
        a(f"""
        s_waitcnt lgkmcnt(8)
        v_add_u32 v{DS_+i}, v{DS_+i}, v{RNK+i}
        v_lshlrev_b32_sdwa v{DS_+i}, 2, v{DS_+i} {SDW}{'WORD_0' if i < 4 else 'WORD_1'}
        ds_write_b32 v{DS_+i}, v{PR_+i} offset:{S_SRT}
        """)
    a("s_mov_b64 exec, -1")
    stamp("srt", 3); stamp("ka", 5)
    a(f"s_load_dwordx2 s[{sTAG}:{sTAG+1}], s[68:69], 0")
    WPOS = int(OPT["wpos"])
    def wrest():
        srd(a, sE, 62, 16384)
        a(f"""
        s_lshl_b32 s{sA}, s{sW}, 10
        s_add_u32 s{sA}, s{sA}, 8192
        s_add_u32 m0, s{sA}, {S_W}
        s_lshl_b32 s{sB}, s{sSB}, 10
        buffer_load_dwordx4 v{l16}, s[{sP}:{sP+3}], s{sA} offen lds
        s_add_u32 s{sB}, s{sB}, 16384
        s_add_u32 m0, s{sB}, {S_W}
        s_lshl_b32 s{sA}, s{sW}, 11
        buffer_load_dwordx4 v{l16}, s[{sP}:{sP+3}], s{sB} offen lds
        s_lshr_b32 s{sN}, s{sW}, 1
        s_mul_i32 s{sN}, s{sN}, {XRS - 4096}
        s_add_u32 s{sN}, s{sN}, s{sA}
        s_add_u32 m0, s{sN}, {S_WU}
        s_nop 0
        buffer_load_dwordx4 v{l16}, s[{sE}:{sE+3}], s{sA} offen lds
        buffer_load_dwordx4 v{l16}, s[{sE}:{sE+3}], s{sA} offen offset:1024 lds
        """)
    if WPOS == 1: wrest()
    a(f"""
    v_lshrrev_b32 v{t1}, 1, v0
    v_lshlrev_b32 v{t1}, 2, v{t1}
    s_waitcnt vmcnt({(EC[3] if XPOS == 0 else ES[2]) + 4*WPOS}) lgkmcnt(0)
    s_barrier
    """)
    if MODE == "ka": a("s_waitcnt vmcnt(0)")
    stamp("srt", 4); stamp("tag", 2); stamp("ka", 6)
    no = 0 if YM else (M0 + 255) // 256
    a(f"ds_read_b128 {v(D,4)}, v{t16} offset:{S_SRT}\nds_read_b128 {v(D+4,4)}, v{t16} offset:{S_SRT+M0*4}")
    for r in range(no): a(f"ds_read_b32 v{SG+r}, v{t1} offset:{S_SRT+1024*r}")
    edma(3)
    a(f"""
    s_mul_i32 s{sA}, s2, {RCS}
    s_add_u32 s{sB}, s{sA}, 8192
    v_and_b32 v{t2}, 1, v0
    v_lshlrev_b32 v{t2}, 4, v{t2}
    s_waitcnt lgkmcnt({no})
    buffer_store_dwordx4 {v(D,4)}, v{rA}, s[{sWS}:{sWS+3}], s{sA} offen sc1
    buffer_store_dwordx4 {v(D+4,4)}, v{rB}, s[{sWS}:{sWS+3}], s{sB} offen sc1
    """)
    stamp("tag", 3)
    a(f"""
    s_mul_i32 s{sN}, s2, {OTS}
    s_add_u32 s{sN}, s{sN}, {WS_O}
    s_mov_b32 s{sB}, 0
    s_cmp_lg_u32 s{sTAG}, 0
    s_cbranch_scc1 S_TAGD
    S_TAGL:
    s_sleep 8
    global_load_dwordx2 {v(OTG+2,2)}, v{nta}, s[68:69] sc1
    s_add_u32 s{sB}, s{sB}, 1
    s_cmp_gt_u32 s{sB}, {SPIN}
    s_cbranch_scc1 M_END
    s_waitcnt vmcnt(0)
    v_readfirstlane_b32 s{sTAG}, v{OTG+2}
    v_readfirstlane_b32 s{sTAG+1}, v{OTG+3}
    s_nop 0
    s_cmp_eq_u32 s{sTAG}, 0
    s_cbranch_scc1 S_TAGL
    S_TAGD:
    """)
    stamp("tag", 4)
    a(f"""
    v_add_u32 v{OTG}, {(2048-M0)<<16}, v{OTG}
    v_mov_b32 v{OTG+2}, s{sTAG}
    v_mov_b32 v{OTG+3}, s{sTAG+1}
    buffer_store_dwordx4 {v(OTG,4)}, v{t16}, s[{sWS}:{sWS+3}], s{sN} offen sc1
    s_movk_i32 s{sB}, {(M0 - 256*(no-1))*2}
    v_cmp_gt_u32 vcc, s{sB}, v0
    v_mov_b32 v{t4}, v{t16}
    v_and_b32 v{m}, 31, v{lane}
    v_lshrrev_b32 v{h}, 5, v{lane}
    v_cndmask_b32 v{t6}, v{hz}, v{t16}, vcc
    v_lshlrev_b32 v{t0}, 3, v0
    v_add_u32 v{t0}, {L_C8}, v{t0}
    v_mov_b32 v{D+8}, 0
    v_mov_b32 v{D+9}, 0
    ds_write_b64 v{t0}, {v(D+8,2)}
    v_bfe_u32 v{t1}, v{lane}, 2, 2
    v_lshl_add_u32 v{t1}, v{h}, 3, v{t1}
    v_lshlrev_b32 v{t1}, 7, v{t1}
    v_and_b32 v{t3}, 3, v{lane}
    v_lshl_add_u32 v{aN}, v{t3}, 3, v{t1}
    v_and_b32 v{t3}, 16, v{lane}
    v_lshl_add_u32 v{aN}, v{t3}, 1, v{aN}
    v_add_u32 v{t1}, v{t1}, v{t3}
    v_and_b32 v{t3}, 1, v{lane}
    v_lshl_add_u32 v{t1}, v{t3}, 5, v{t1}
    v_and_b32 v{t3}, 2, v{lane}
    v_lshl_add_u32 v{t1}, v{t3}, 2, v{t1}
    s_lshl_b32 s{sA}, s{sSB}, 6
    v_add_u32 v{sa}, s{sA}, v{t1}
    v_bfe_u32 v{sac}, v{m}, 1, 3
    v_xor_b32 v{sac}, v{sac}, v{h}
    v_lshlrev_b32 v{sac}, 4, v{sac}
    v_lshl_or_b32 v{sac}, v{m}, 7, v{sac}
    s_and_b32 s{sA}, s{sW}, 6
    s_lshl_b32 s{sA}, s{sA}, 11
    s_add_u32 s{sA}, s{sA}, {L_XD}
    v_add_u32 v{sac}, s{sA}, v{sac}
    s_waitcnt lgkmcnt(1)
    """)
    for r in range(no):
        a(f"v_lshrrev_b32 v{SG+r}, 21, v{SG+r}\nv_lshl_add_u32 v{SG+r}, v{SG+r}, 5, v{t2}")
    srd_off(a, sEM, 10, WS_EM, 0 if "nomv" in OPT["abl"] else 256 * EMS)
    OG = E + 12
    a(f"""
    s_lshl_b32 s{sOA}, s74, 5
    s_mul_i32 s{sA}, s{sW}, {32*OTS}
    s_add_u32 s{sOA}, s{sOA}, s{sA}
    s_add_u32 s{sOA}, s{sOA}, {WS_O}
    v_lshrrev_b32 v{lh}, 1, v{lane}
    v_mul_u32_u24 v{lh}, {OTS - 32}, v{lh}
    v_add_u32 v{lh}, v{lh}, v{l16}
    s_mov_b32 s74, {f32(-LOG2E)}
    s_mov_b32 s75, {f32(-LOG2E)}
    """)
    XF, W1t, Wx, PD, EO = FX, AG, EP, AG + 16, Q
    def tr(dst, areg, off):
        a(f"ds_read_b64_tr_b16 {v(dst,2)}, v{areg} offset:{S_W+off}\nds_read_b64_tr_b16 {v(dst+2,2)}, v{areg} offset:{S_W+off+512}")
    def w2read():
        for sx in range(4):
            for nh in range(2): tr(AG + (2*sx + nh)*4, aN, 8192 + 2048*sx + 64*nh)
    for sx in range(4):
        a(f"ds_read_b128 {v(XF+4*sx,4)}, v{sac}" + (f"\nv_xor_b32 v{sac}, {(32, 96, 32)[sx]}, v{sac}" if sx < 3 else ""))
        tr(W1t + 4*sx, sa, 2048*sx)
    a("s_waitcnt lgkmcnt(0)")
    for sx in range(4):
        a(f"v_mfma_f32_32x32x16_bf16 {v(PD,16)}, {v(W1t+4*sx,4)}, {v(XF+4*sx,4)}, {'0' if sx == 0 else v(PD,16)}")
    a(f"""
    v_and_b32 v{t0}, 15, v{m}
    v_mul_u32_u24 v{t0}, 144, v{t0}
    v_lshl_add_u32 v{t0}, v{h}, 5, v{t0}
    v_lshrrev_b32 v{t1}, 4, v{m}
    v_mul_u32_u24 v{t1}, {XRS}, v{t1}
    s_mul_i32 s{sA}, s{sSB}, {64 - XRS}
    s_add_u32 s{sA}, s{sA}, s{sGL}
    v_add3_u32 v{t0}, v{t0}, v{t1}, s{sA}
    v_lshrrev_b32 v{t1}, 3, v{lane}
    v_lshl_add_u32 v{t3}, v{t1}, 4, v{l16}
    v_add_u32 v{t3}, s{sGL}, v{t3}
    s_lshl_b32 s{sA}, s{sW}, 11
    s_lshl_b32 s{sB}, s{sNB}, 7
    v_add_u32 v{t1}, s{sA}, v{l16}
    v_add_u32 v{t5}, 1024, v{t1}
    v_cmp_gt_u32 vcc, s{sB}, v{t1}
    v_cmp_gt_u32 s[52:53], s{sB}, v{t5}
    s_mov_b32 s{sCAP}, 512
    s_mov_b32 s{sBASE}, 0
    v_cndmask_b32 v{t1}, v{hz}, v{t1}, vcc
    v_cndmask_b32 v{t5}, v{hz}, v{t5}, s[52:53]
    """)
    for i in range(8): a(f"v_pk_mul_f32 {v(PD+2*i,2)}, {v(PD+2*i,2)}, s[74:75]")
    for i in range(8): a(f"v_cvt_pk_bf16_f32 v{PD+i}, v{PD+2*i}, v{PD+2*i+1}")
    a(f"""
    ds_write_b128 v{t0}, {v(PD,4)}
    ds_write_b128 v{t0}, {v(PD+4,4)} offset:16
    """)
    stamp("tag", 5)
    if WPOS == 0: wrest()
    a(f"""
    s_add_u32 s{sB}, s{sS0}, {WS_P}
    s_waitcnt vmcnt({7 if WPOS == 0 else 3}) lgkmcnt(0)
    s_barrier
    """)
    stamp("srt", 5); stamp("top", 1); stamp("tag", 6)
    a(f"ds_read_b128 {v(D+16,4)}, v{t3}\nds_read_b128 {v(D+20,4)}, v{t3} offset:{8*144}")
    for r in range(no): a(f"ds_read_b128 {v(EO+4*r,4)}, v{SG+r} offset:{S_E}")
    a(f"""
    s_waitcnt lgkmcnt({no})
    buffer_store_dwordx4 {v(D+16,4)}, v{t1}, s[{sWS}:{sWS+3}], s{sB} offen sc1
    buffer_store_dwordx4 {v(D+20,4)}, v{t5}, s[{sWS}:{sWS+3}], s{sB} offen sc1
    """)
    CEM = int(OPT["cem"])
    a(f"s_mul_i32 s{sA}, s2, {EMS}" if CEM else f"s_lshl_b32 s{sA}, s2, 17")
    for r in range(no):
        a(f"s_waitcnt lgkmcnt({no-1-r})\nbuffer_store_dwordx4 {v(EO+4*r,4)}, v{t6 if r == no-1 else t4}, s[{sEM}:{sEM+3}], s{sA} offen {OPT['st']}\ns_add_u32 s{sA}, s{sA}, 8192")
    a(f"""
    s_mov_b32 s92, 1
    s_lshl_b32 s{sN}, s2, {int(OPT["fst"])}
    s_add_u32 s{sN}, s{sN}, {WS_F2}
    """)
    stamp("srt", 6); stamp("syn", 1)
    FST = int(OPT["fst"])
    f2r = E + 9
    OE = int(OPT["oe"]); XE = 0
    oload = f"buffer_load_dwordx4 {v(OG,4)}, v{lh}, s[{sWS}:{sWS+3}], s{sOA} offen sc1"
    if OE == 1: a(oload)
    a("s_setprio 0")
    OTW = int(OPT['otw'])
    def wwork():
        a(f"v_add_u32 v{sa}, {S_WU - S_W}, v{sa}\ns_mul_i32 s{sB}, s{sSB}, {XRS}\nv_add_u32 v{t2}, s{sB}, v{sa}\nv_subrev_u32 v{t3}, s{sB}, v{sa}")
        for nh in range(2): tr(D + 8 + 4*nh, aN, 128*128 + 64*nh)
        for sx in range(4): tr(Wx + 4*sx, sa, XRS*(sx>>1) + 2048*(sx&1))
        a("s_waitcnt lgkmcnt(0)")
        for sx in range(4):
            a(f"v_mfma_f32_32x32x16_bf16 {v(U0,16)}, {v(Wx+4*sx,4)}, {v(XF+4*sx,4)}, {'0' if sx == 0 else v(U0,16)}")
        tr(WU, t2, 2*XRS); tr(WU + 4, t2, 2*XRS + 2048); tr(WU + 8, t3, 3*XRS); tr(WU + 12, t3, 3*XRS + 2048)
        w2read()
        for nh in range(2):
            for i in range(4):
                r = D + 8 + 4*nh + i
                a(f"v_lshlrev_b32 v{t0}, 16, v{r}\nv_and_b32 v{t1}, 0xffff0000, v{r}\nv_pk_mul_f32 {v(t0,2)}, {v(t0,2)}, s[74:75]\nv_cvt_pk_bf16_f32 v{W+8+4*nh+i}, v{t0}, v{t1}")
    def lanec():
        srd_off(a, sP, 10, WS_P, 3200000)
        if int(OPT["smf"]):
            a(f"""
            v_and_b32 v{t1}, 1, v{m}
            v_lshlrev_b32 v{t1}, 4, v{t1}
            v_mov_b32 v{t2}, 0x3f80
            v_lshlrev_b32 v{t1}, v{t1}, v{t2}
            v_lshrrev_b32 v{t0}, 2, v{m}
            v_lshlrev_b32 v{t2}, 2, v{h}
            v_sub_u32 v{t0}, v{t0}, v{t2}
            v_bfe_i32 v{t2}, v{m}, 1, 1
            v_and_b32 v{t2}, 0xaaaa, v{t2}
            v_or_b32 v{W+4}, 0x4444, v{t2}
            """)
            for i in range(4):
                a(f"v_cmp_eq_u32 vcc, {i}, v{t0}\ns_nop 1\nv_cndmask_b32 v{W+i}, 0, v{t1}, vcc")
        else:
            a(f"""
            v_lshlrev_b32 v{t0}, 3, v{h}
            v_sub_u32 v{t0}, v{m}, v{t0}
            v_and_b32 v{t1}, 1, v{t0}
            v_lshlrev_b32 v{t1}, 4, v{t1}
            v_mov_b32 v{t2}, 0x3f80
            v_lshlrev_b32 v{t1}, v{t1}, v{t2}
            v_lshrrev_b32 v{t0}, 1, v{t0}
            """)
            for j in range(2):
                for i in range(4):
                    a(f"v_cmp_eq_u32 vcc, {8*j+i}, v{t0}\ns_nop 1\nv_cndmask_b32 v{W+4*j+i}, 0, v{t1}, vcc")
        a(f"""
        s_mul_i32 s{sSTB}, s{sW}, {SCAP*32}
        s_add_u32 s{sSTB}, s{sSTB}, {L_ST}
        s_mov_b32 s{sREC}, s10
        s_or_b32 s{sREC+1}, s11, {4<<16}
        s_mov_b32 s{sREC+2}, {WS_O//4}
        s_mov_b32 s{sREC+3}, 0x20000
        s_sub_u32 s{sE}, s6, {DFLAG*32}
        s_subb_u32 s{sE+1}, s7, 0
        s_or_b32 s{sE+1}, s{sE+1}, {32<<16}
        s_mov_b32 s{sE+2}, {(DFLAG + 800000) * ne}
        s_mov_b32 s{sE+3}, 0x20000
        s_sub_u32 s{sG}, 11, s{sW}
        s_cmp_lt_u32 s{sW}, 4
        s_cselect_b32 s{sG}, s{sW}, s{sG}
        s_mul_i32 s{sXRB}, s{sG}, {XRS}
        s_add_u32 s{sXRB}, s{sXRB}, {L_XR}
        s_mov_b32 s{sM7}, 0xffffff80
        s_mov_b32 s{sB30}, 0x40000000
        s_mov_b32 s{sDF}, {DFLAG}
        v_lshlrev_b32 v{RP+1}, 4, v{h}
        v_lshlrev_b32 v{RP+3}, 4, v{h}
        v_lshlrev_b32 v{RP+5}, 4, v{h}
        v_lshlrev_b32 v{RP+7}, 4, v{h}
        v_lshrrev_b32 v{t0}, 3, v{lane}
        s_lshl_b32 s{sA}, s{sG}, 7
        v_lshl_add_u32 v{vLS}, v{t0}, 4, s{sA}
        v_lshl_add_u32 v{vLE}, v{m}, 2, s{sA}
        v_and_b32 v{t3}, 1, v{t0}
        v_lshlrev_b32 v{t3}, 4, v{t3}
        v_lshl_add_u32 v{sac}, v{lane}, 5, v{t3}
        v_add_u32 v{sac}, s{sSTB}, v{sac}
        v_and_b32 v{t1}, 4, v{t0}
        v_and_b32 v{t2}, 7, v{lane}
        v_xor_b32 v{t1}, v{t1}, v{t2}
        v_lshlrev_b32 v{CX}, 4, v{t1}
        v_xor_b32 v{CX+1}, 16, v{CX}
        v_xor_b32 v{CX+2}, 32, v{CX}
        v_xor_b32 v{CX+3}, 48, v{CX}
        v_and_b32 v{t0}, 3, v{m}
        v_lshrrev_b32 v{t1}, 2, v{m}
        v_lshl_add_u32 v{t1}, v{t0}, 3, v{t1}
        v_lshlrev_b32 v{t1}, 7, v{t1}
        v_add_u32 v{t1}, s{sXRB}, v{t1}
        v_lshrrev_b32 v{t2}, 4, v{m}
        v_lshl_or_b32 v{t0}, v{t2}, 2, v{t0}
        v_xor_b32 v{t0}, v{t0}, v{h}
        v_lshl_add_u32 v{XA}, v{t0}, 4, v{t1}
        v_xor_b32 v{XA+1}, 32, v{XA}
        v_xor_b32 v{XA+2}, 64, v{XA}
        v_xor_b32 v{XA+3}, 0x60, v{XA}
        """)
    if WPOS: wwork()
    else: lanec()
    if OE == 2: a(oload)
    SP = [int(x) for x in OPT["sp"].split(",")]
    spn = [0]
    def sshot(k):
        for _ in range(SP[k]):
            if spn[0] and spn[0] % 32 == 0: a("s_add_u32 s4, s4, 0x100000\ns_addc_u32 s5, s5, 0")
            a(f"s_load_dword s7, s[4:5], {(spn[0] % 32) * 32768}"); spn[0] += 1
    if sum(SP):
        a(f"""
        s_lshr_b32 s{sA}, s2, 3
        s_lshl_b32 s{sA}, s{sA}, 7
        s_lshl_b32 s{sB}, s{sW}, 12
        s_add_u32 s{sA}, s{sA}, s{sB}
        s_add_u32 s{sA}, s{sA}, {WS_P}
        s_add_u32 s4, s10, s{sA}
        s_addc_u32 s5, s11, 0
        """)
    sshot(0)
    stamp("syn", 2)
    a(f"""
    s_setprio 2
    s_cmp_lg_u32 s{sW}, 0
    s_waitcnt vmcnt(0)
    s_barrier
    s_cbranch_scc1 M_NOPUB
    s_mov_b64 exec, 1
    buffer_store_dwordx2 {v(OTG+2,2)}, v{nta}, s[{sWS}:{sWS+3}], s{sN} offen sc1
    s_mov_b64 exec, -1
    M_NOPUB:
    s_mov_b32 s{sA}, 0
    """)
    stamp("syn", 3)
    a(f"s_nop 7\n{oload}")
    XE = int(OPT["xe"])
    if XE:
        a(f"""
        s_lshr_b32 s{sA}, s2, 3
        s_lshl_b32 s{sA}, s{sA}, 7
        v_lshl_add_u32 v{t0}, v{lane}, 3, s{sW}
        v_cmpx_gt_u32 vcc, {XE}, v{t0}
        v_lshlrev_b32 v{t0}, 12, v{t0}
        buffer_load_dword v{vCr+4}, v{t0}, s[{sP}:{sP+3}], s{sA} offen sc1
        s_mov_b64 exec, -1
        """)
    if WPOS: lanec()
    else: wwork()
    a(f"s_mov_b32 s{sA}, 0\ns_waitcnt vmcnt({1 if XE else 0})")
    kk12, c0, c1, g0, g1, p0, p1, tt, qa, f2r, fl0 = [E + i for i in range(11)]
    G, RC, NA, RK = D, D + 8, D + 16, D + 24
    TBv = FX
    OFv, CA = EP, EP + 8
    a(f"""
    s_branch M_POLLC
    M_BATCH:
    v_lshrrev_b32 v{lh}, 1, v{lane}
    v_mul_u32_u24 v{lh}, {OTS - 32}, v{lh}
    v_add_u32 v{lh}, v{lh}, v{l16}
    s_mov_b32 s{sA}, 0
    M_POLL:
    s_sleep {OPT["osl"]}
    buffer_load_dwordx4 {v(OG,4)}, v{lh}, s[{sWS}:{sWS+3}], s{sOA} offen sc1
    s_add_u32 s{sA}, s{sA}, 1
    s_cmp_gt_u32 s{sA}, {SPIN}
    s_cbranch_scc1 M_END
    s_waitcnt vmcnt(0)
    M_POLLC:
    v_cmpx_ne_u64 vcc, s[{sTAG}:{sTAG+1}], {v(OG+2,2)}
    s_cbranch_execnz M_POLL
    s_mov_b64 exec, -1
    s_lshl_b32 s{sA}, s{sW}, 5
    v_lshrrev_b32 v{lh}, 1, v{lane}
    v_add_lshl_u32 v{kk12}, v{lh}, s{sA}, 12
    v_lshl_or_b32 v{kk12}, v{lane}, 31, v{kk12}
    v_lshl_add_u32 v{qa}, v{lane}, 2, s{sGL}
    v_mov_b32 v{t1}, 0xffff
    s_lshl_b32 s4, s{sW}, {FST+5}
    s_add_u32 s4, s4, {WS_F2}
    v_lshlrev_b32 v{vCr}, {FST}, v{m}
    """)
    FV = vCr + 1
    fl_ = f"buffer_load_dwordx2 {v(FV,2)}, v{vCr}, s[{sWS}:{sWS+3}], s4 offen sc1"
    stamp("pro", 1); stamp("syn", 4)
    a(f"v_and_b32 v{p0}, v{t1}, v{OG+1}\nv_lshrrev_b32 v{p1}, 16, v{OG+1}")
    fl = [f"v_and_or_b32 v{g0}, v{OG}, v{t1}, v{kk12}", f"v_lshrrev_b32 v{g1}, 16, v{OG}", f"v_or_b32 v{g1}, v{g1}, v{kk12}",
          f"v_and_b32 v{c0}, v{t1}, v{OG+1}", f"v_lshrrev_b32 v{c1}, 16, v{OG+1}", "s_nop 0"]
    for n, stp in enumerate(steps):
        a(f"{fl[n]}\nv_add_u32_dpp v{p0}, v{p0}, v{p0} {stp}\nv_add_u32_dpp v{p1}, v{p1}, v{p1} {stp}")
    a(f"""
    v_readlane_b32 s{sNS}, v{p0}, 63
    v_readlane_b32 s{sN}, v{p1}, 63
    v_sub_u32 v{p0}, v{p0}, v{c0}
    v_sub_u32 v{p1}, v{p1}, v{c1}
    s_add_u32 s{sN}, s{sN}, s{sNS}
    v_add_u32 v{p1}, s{sNS}, v{p1}
    s_mov_b32 s{sCNT}, s{sN}
    s_add_u32 s{sA}, s{sN}, s{sBASE}
    s_cmp_le_u32 s{sA}, s{sCAP}
    s_cbranch_scc0 M_WIN
    s_cmp_eq_u32 s{sBASE}, 0
    s_cbranch_scc1 M_NOWIN
    M_WIN:
    s_sub_i32 s{sCNT}, s{sN}, s{sBASE}
    s_max_i32 s{sCNT}, s{sCNT}, 0
    s_min_u32 s{sCNT}, s{sCNT}, s{sCAP}
    s_sub_i32 s{sNS}, s{sNS}, s{sBASE}
    s_max_i32 s{sNS}, s{sNS}, 0
    """)
    for (pp, cc, gg) in ((p0, c0, g0), (p1, c1, g1)):
        a(f"""
        v_subrev_u32 v{tt}, s{sBASE}, v{pp}
        v_max_i32 v{pp}, 0, v{tt}
        v_add_u32 v{cc}, v{tt}, v{cc}
        v_min_i32 v{cc}, s{sCAP}, v{cc}
        v_sub_u32 v{cc}, v{cc}, v{pp}
        v_sub_u32 v{tt}, v{pp}, v{tt}
        v_add_u32 v{gg}, v{gg}, v{tt}
        """)
    a(f"M_NOWIN:\ns_min_u32 s{sNS}, s{sNS}, {0 if YM else SCAP}")
    pa, ca_, ga, gb = t0, t1, t2, t3
    for n, (pp, cc, gg) in enumerate(((p0, c0, g0), (p1, c1, g1))):
        a(f"""
        v_lshl_add_u32 v{pp}, v{pp}, 2, s{sGL}
        v_add_u32 v{ga}, 1, v{gg}
        v_add_u32 v{gb}, 2, v{gg}
        v_mov_b32 v{ca_}, v{cc}
        v_mov_b32 v{pa}, v{pp}
        M_EXP{n}:
        """)
        for r in (1, 3, 5, 7):
            a(f"v_cmpx_lt_i32 vcc, {r}, v{ca_}\nds_write2_b32 v{pa}, v{ga}, v{gb} offset0:{r} offset1:{r+1}\nv_add_u32 v{ga}, 2, v{ga}\nv_add_u32 v{gb}, 2, v{gb}")
        a(f"""
        v_cmpx_lt_i32 vcc, 9, v{ca_}
        v_add_u32 v{pa}, 32, v{pa}
        v_subrev_u32 v{ca_}, 8, v{ca_}
        s_cbranch_execnz M_EXP{n}
        s_mov_b64 exec, -1
        """)
    a(f"""
    v_cmpx_lt_i32 vcc, 0, v{c0}
    ds_write_b32 v{p0}, v{g0}
    s_mov_b64 exec, -1
    v_cmpx_lt_i32 vcc, 0, v{c1}
    ds_write_b32 v{p1}, v{g1}
    s_mov_b64 exec, -1
    """)
    a(fl_)
    for i in ORD:
        a(f"ds_read_b32 v{G+i}, v{qa} offset:{256*i}")
    a(f"v_lshl_add_u32 v{t1}, v{lh}, 2, s{sGL}")
    for j in range(NSP):
        a(f"ds_read_b32 v{SG+j}, v{t1} offset:{128*j}")
    for i in ORD:
        a(f"s_sub_i32 s{sA}, s{sCNT}, {64*i}\nv_cmp_gt_i32 {mk(i)}, s{sA}, v{lane}")
    a(f"""
    v_lshrrev_b32 v{t2}, 4, v{lane}
    v_xor_b32 v{t2}, v{t2}, v{lane}
    v_and_b32 v{t2}, 1, v{t2}
    v_lshlrev_b32 v{t2}, 4, v{t2}
    v_mov_b32 v{fl0}, s{sCNT}
    v_mov_b32 v{fl0+1}, s{sN}
    s_waitcnt lgkmcnt(0)
    """)
    if CEM: a(f"s_mov_b32 s{sA}, {EMS//32-4096}")
    for j in range(NSP):
        if CEM: a(f"v_bfe_u32 v{t3}, v{SG+j}, 12, 8\nv_mad_i32_i24 v{SG+j}, v{t3}, s{sA}, v{SG+j}")
        a(f"v_lshl_add_u32 v{SG+j}, v{SG+j}, 5, v{t2}")
    a(f"v_mov_b32 v{t2}, s{sSO}")
    skip("M_IX")
    for i in ORD:
        a(f"""
        v_lshrrev_b32 v{NA+i}, 31, v{G+i}
        v_lshlrev_b32 v{RC+i}, 2, v{G+i}
        v_mad_u32_u24 v{NA+i}, v{NA+i}, 49, v{t2}
        v_lshrrev_b32 v{RK+i}, 14, v{RC+i}
        v_lshl_add_u32 v{RC+i}, v{RK+i}, 8, v{RC+i}
        """)
        after("M_IX", i)
    assert SKW == 256
    stamp("pro", 2); stamp("syn", 5)
    a(f"""
    s_mov_b32 s{sA}, 0
    s_branch M_FL1
    M_FL:
    s_sleep {OPT["osl"]}
    {fl_}
    s_add_u32 s{sA}, s{sA}, 1
    s_cmp_gt_u32 s{sA}, {SPIN}
    s_cbranch_scc1 M_END
    M_FL1:
    s_waitcnt vmcnt(0)
    v_cmpx_ne_u64 vcc, s[{sTAG}:{sTAG+1}], {v(FV,2)}
    s_cbranch_execnz M_FL
    M_READY:
    """)
    stamp("top", 2); stamp("syn", 6); stamp("lb", 1)
    skip("M_GA")
    for i in ORD:
        a(f"s_mov_b64 exec, {mk(i)}\nbuffer_load_dword v{RC+i}, v{RC+i}, s[{sWS}:{sWS+3}], 0 offen {LD}")
        after("M_GA", i)
    a("s_mov_b64 exec, -1")
    if OTW == 1:
        a("s_cmp_eq_u32 s92, 0\ns_cbranch_scc1 M_NOW\ns_setprio 0")
        wwork()
        a("s_setprio 2\nM_NOW:")
    stamp("lb", 2)
    if int(OPT["barA"]): a("s_barrier")
    stamp("lb", 3)
    def stage(js):
        for j in ([] if YM else js):
            a(f"""
            s_sub_i32 s{sA}, s{sNS}, {32*j}
            s_add_u32 m0, s{sSTB}, {1024*j}
            v_cmpx_gt_i32 vcc, s{sA}, v{lh}
            buffer_load_dwordx4 v{SG+j}, s[{sEM}:{sEM+3}], 0 offen {LD} lds
            """)
        a("s_mov_b64 exec, -1")
    NS1 = int(OPT["ns1"]); NS2 = int(OPT["ns2"])
    stage(range(NS1))
    XW = int(OPT["xw"])
    def pwarm():
        if XW:
            a(f"""
            s_lshr_b32 s{sA}, s2, 3
            s_mul_i32 s{sA}, s{sA}, {XW*128}
            s_add_u32 s{sA}, s{sA}, {XE*4096}
            v_lshl_add_u32 v{tt}, v{lane}, 3, s{sW}
            v_cmpx_gt_u32 vcc, {XW}, v{tt}
            v_lshlrev_b32 v{tt}, 7, v{tt}
            buffer_load_dword v{vCr+4}, v{tt}, s[{sP}:{sP+3}], s{sA} offen sc1
            s_mov_b64 exec, -1
            """)
    a(f"s_movk_i32 s{sB}, {CH}\nv_mov_b32 v{t0}, s{sDF}")
    skip("M_DW")
    for i in ORD:
        a(f"""
        v_bfe_i32 v{G+i}, v{G+i}, 11, 1
        v_mad_u32_u24 v{RK+i}, v{RK+i}, s{sB}, v{t0}
        v_and_b32 v{G+i}, {M0}, v{G+i}
        v_add_u32 v{G+i}, v{G+i}, v{RK+i}
        """)
        after("M_DW", i)
    a(f"""
    s_mov_b32 s75, {L_C8}
    s_mov_b64 exec, 1
    ds_add_u32 v{nta}, v{fl0} offset:{L_NT}
    ds_max_u32 v{nta}, v{fl0+1} offset:{L_MX}
    """)
    stamp("lb", 4)
    skip("M_RK")
    for i in ORD:
        a(f"""
        s_mov_b64 exec, {mk(i)}
        s_waitcnt vmcnt({i+NS1})
        v_and_b32 v{CA+i}, 63, v{RC+i}
        v_bfe_u32 v{tt}, v{RC+i}, 18, 3
        v_add_u32 v{NA+i}, v{CA+i}, v{NA+i}
        v_lshl_add_u32 v{CA+i}, v{NA+i}, 2, s75
        v_lshl_add_u32 v{CA+i}, v{tt}, 9, v{CA+i}
        ds_add_rtn_u32 v{RK+i}, v{CA+i}, v{one}
        """)
        after("M_RK", i)
    def pack(lab):
        a(f"s_movk_i32 s{sB}, {CH}\ns_mov_b32 s74, {int(OPT['epf'])*128}")
        skip(lab)
        for i in ORD:
            a(f"""
            v_lshrrev_b32 v{tt}, 21, v{RC+i}
            v_bfe_u32 v{RC+i}, v{RC+i}, 6, 15
            v_add_u32 v{G+i}, v{G+i}, v{tt}
            v_lshl_add_u32 v{RC+i}, v{RC+i}, 7, v{NA+i}
            v_lshlrev_b32 v{NA+i}, 3, v{NA+i}
            """)
            if 64 * i < SCAP and not YM:
                a(f"""
                s_sub_i32 s{sA}, s{sNS}, {64*i}
                v_cmp_gt_i32 vcc, s{sA}, v{lane}
                v_add_u32 v{tt}, {2048*i}, v{sac}
                s_nop 0
                v_cndmask_b32 v{G+i}, v{G+i}, v{tt}, vcc
                """)
            after(lab, i)
    EPOS = int(OPT["epos"]); NEP = 0
    def eprefetch():
        if not int(OPT["epf"]): return
        for i in (6, 5, 4, 3, 2):
            a(f"s_mov_b64 exec, {mk(i)}\nv_cmpx_gt_u32 vcc, s74, v{RC+i}" + ("" if 64 * i >= SCAP else f"\nv_cmpx_le_u32 vcc, s{sDF}, v{G+i}") + f"\nbuffer_load_dword v{vCr+4}, v{G+i}, s[{sE}:{sE+3}], 0 idxen")
        a("s_mov_b64 exec, -1")
    if int(OPT["epf"]): NEP = 5
    a("s_mov_b64 exec, -1")
    stamp("pro", 3); stamp("lb", 5)
    a(f"""
    s_cmp_eq_u32 s{sW}, 0
    s_cbranch_scc1 M_PK0
    s_lshl_b32 s{sA}, s{sW}, 8
    s_add_u32 s{sA}, s{sA}, {L_C8 - 256}
    v_lshl_add_u32 v{S4}, v{lane}, 2, s{sA}
    v_mov_b32 v{Q+8}, 0
    s_waitcnt lgkmcnt(0)
    s_barrier
    """)
    stamp("pro", 4); stamp("lb", 6)
    a(f"s_cmp_gt_u32 s{sW}, 2\ns_cbranch_scc1 M_NOPFX")
    for j in range(3): a(f"ds_read2st64_b32 {v(Q+2*j,2)}, v{S4} offset0:{4*j} offset1:{4*j+2}")
    a(f"s_waitcnt lgkmcnt(0)\nv_mov_b32 v{Q+9}, v{Q}")
    for j in range(1, 6): a(f"v_add_u32 v{Q+9+j}, v{Q+8+j}, v{Q+j}")
    for j in range(4): a(f"ds_write2st64_b32 v{S4}, v{Q+8+2*j}, v{Q+9+2*j} offset0:{C8O//256+4*j} offset1:{C8O//256+4*j+2}")
    a(f"M_NOPFX:\ns_setprio 0\ns_cmp_lt_u32 s{sW}, 4\ns_cbranch_scc1 M_NOFILL")
    for i in range(4): a(f"v_mov_b32 v{t4+i}, {DUMMY}")
    a(f"v_lshlrev_b32 v{t0}, 4, v0\nv_lshlrev_b32 v{t1}, 3, v0")
    assert 2 * LSZ == 8 * 4096 + 2048 and L_LS == 2048
    for i in range(8): a(f"ds_write_b128 v{t0}, {v(t4,4)} offset:{4096*i}")
    a(f"ds_write_b64 v{t1}, {v(t4,2)}\nM_NOFILL:")
    pack("M_PB"); stage(range(NS1, NSP))
    if EPOS == 0: eprefetch()
    a("s_waitcnt lgkmcnt(0)\ns_barrier\ns_branch M_P4E")
    d0, d1, f0, f1, k0, k1, vL, vR, ks, a4, l0, l1, o0, o1, cn, ci = [Q + i for i in range(16)]
    m0_, B0, m1_, B1 = S4, S4+1, S4+2, S4+3
    a(f"""
    M_PK0:
    s_setprio 3
    v_lshlrev_b32 v{a4}, 3, v{lane}
    v_lshlrev_b32 v{cn}, 2, v{lane}
    v_add_u32 v{cn}, {L_C8}, v{cn}
    v_sub_u32 v{ci}, 31, v{m}
    v_lshlrev_b32 v{ci}, 2, v{ci}
    s_mov_b32 s75, {f32(4194304.0)}
    s_waitcnt lgkmcnt(0)
    s_barrier
    """)
    stamp("pro", 4); stamp("lb", 6)
    a(f"ds_read_b32 v{ks}, v{nta} offset:{L_NT}")
    for j in range(7): a(f"ds_read2st64_b32 {v(FX+2*j,2)}, v{cn} offset0:{2*j} offset1:{2*j+1}")
    a(f"""
    s_waitcnt lgkmcnt(4)
    v_readfirstlane_b32 s{sL}, v{ks}
    v_add3_u32 v{d0}, v{FX}, v{FX+2}, v{FX+4}
    v_add3_u32 v{d1}, v{FX+1}, v{FX+3}, v{FX+5}
    s_lshr_b32 s{sL}, s{sL}, 8
    s_add_u32 s{sL}, s{sL}, 1
    s_waitcnt lgkmcnt(0)
    v_add3_u32 v{d0}, v{d0}, v{FX+6}, v{FX+8}
    v_add3_u32 v{d1}, v{d1}, v{FX+7}, v{FX+9}
    v_add3_u32 v{d0}, v{d0}, v{FX+10}, v{FX+12}
    v_add3_u32 v{d1}, v{d1}, v{FX+11}, v{FX+13}
    v_cvt_f32_u32 v{f0}, v{d0}
    v_cvt_f32_u32 v{f1}, v{d1}
    v_add_f32 v{f0}, -0.5, v{f0}
    v_add_f32 v{f1}, -0.5, v{f1}
    M_LS:
    s_add_u32 s{sL}, s{sL}, 2
    s_cmp_gt_u32 s{sL}, {LMAX}
    s_cbranch_scc1 M_P4W
    """)
    Lf, Rc, Ka = FX, FX + 3, FX + 6
    a(f"""
    v_cvt_f32_u32 v{Lf+1}, s{sL}
    v_add_f32 v{Lf}, -1.0, v{Lf+1}
    v_add_f32 v{Lf+2}, 1.0, v{Lf+1}
    v_rcp_f32 v{Rc}, v{Lf}
    v_rcp_f32 v{Rc+1}, v{Lf+1}
    v_rcp_f32 v{Rc+2}, v{Lf+2}
    """)
    for j in range(3): a(f"v_fma_f32 v{Ka+2*j}, v{f0}, v{Rc+j}, 1.0\nv_fma_f32 v{Ka+2*j+1}, v{f1}, v{Rc+j}, 1.0")
    for j in range(6): a(f"v_cvt_u32_f32 v{Ka+j}, v{Ka+j}")
    a(f"""
    v_lshl_or_b32 v{k0}, v{Ka+2}, 10, v{Ka}
    v_lshl_or_b32 v{k1}, v{Ka+3}, 10, v{Ka+1}
    v_lshl_or_b32 v{k0}, v{Ka+4}, 20, v{k0}
    v_lshl_or_b32 v{k1}, v{Ka+5}, 20, v{k1}
    v_add_u32 v{ks}, v{k0}, v{k1}
    """)
    wave_scan(a, ks)
    a(f"""
    v_sub_u32 v{vL}, v{ks}, v{k1}
    v_readlane_b32 s{sA}, v{ks}, 63
    s_mov_b32 s{sB}, 0
    s_bfe_u32 s52, s{sA}, 0xa000a
    s_cmp_le_u32 s52, 256
    s_cbranch_scc1 M_LOK
    s_lshr_b32 s52, s{sA}, 20
    s_cmp_gt_u32 s52, 256
    s_cbranch_scc1 M_LS
    s_mov_b32 s{sB}, 10
    s_add_u32 s{sL}, s{sL}, 1
    s_cmp_gt_u32 s{sL}, {LMAX}
    s_cbranch_scc1 M_P4W
    M_LOK:
    s_sub_u32 s52, 256, s52
    s_add_u32 s53, s{sB}, 10
    v_bfe_u32 v{l0}, v{vL}, s{sB}, 10
    v_bfe_u32 v{l1}, v{ks}, s{sB}, 10
    v_bfe_u32 v{vL}, v{vL}, s53, 10
    v_bfe_u32 v{vR}, v{ks}, s53, 10
    v_sub_u32 v{l0}, v{l0}, v{vL}
    v_sub_u32 v{l1}, v{l1}, v{vR}
    v_mov_b32 v{vL}, s53
    v_mov_b32 v{vR}, s{sB}
    v_cmp_ge_u32 vcc, s52, v{l0}
    v_cmp_ge_u32 s[52:53], s52, v{l1}
    s_nop 0
    v_cndmask_b32 v{l0}, v{vL}, v{vR}, vcc
    v_cndmask_b32 v{l1}, v{vL}, v{vR}, s[52:53]
    v_bfe_u32 v{k0}, v{k0}, v{l0}, 10
    v_bfe_u32 v{k1}, v{k1}, v{l1}, 10
    v_cvt_f32_u32 v{l0}, v{k0}
    v_cvt_f32_u32 v{l1}, v{k1}
    v_rcp_f32 v{m0_}, v{l0}
    v_rcp_f32 v{m1_}, v{l1}
    s_nop 0
    v_fma_f32 v{l0}, v{f0}, v{m0_}, 1.0
    v_fma_f32 v{l1}, v{f1}, v{m1_}, 1.0
    v_cvt_u32_f32 v{l0}, v{l0}
    v_cvt_u32_f32 v{l1}, v{l1}
    v_lshlrev_b32 v{l0}, 2, v{l0}
    v_lshlrev_b32 v{l1}, 2, v{l1}
    ds_add_rtn_u32 v{o0}, v{l0}, v{k0} offset:{L_CNT}
    ds_add_rtn_u32 v{o1}, v{l1}, v{k1} offset:{L_CNT}
    ds_read_b32 v{cn}, v{ci} offset:{L_CNT}
    v_mul_f32 v{m0_}, s75, v{m0_}
    v_mul_f32 v{m1_}, s75, v{m1_}
    v_cvt_u32_f32 v{m0_}, v{m0_}
    v_cvt_u32_f32 v{m1_}, v{m1_}
    v_add_u32 v{m0_}, 2, v{m0_}
    v_add_u32 v{m1_}, 2, v{m1_}
    v_lshlrev_b32 v{B0}, 2, v{k0}
    v_lshlrev_b32 v{B1}, 2, v{k1}
    v_sub_u32 v{B0}, 1024, v{B0}
    v_sub_u32 v{B1}, 1024, v{B1}
    v_sub_u32 v{l0}, 124, v{l0}
    v_sub_u32 v{l1}, 124, v{l1}
    s_waitcnt lgkmcnt(0)
    v_mov_b32 v{ks}, v{cn}
    """)
    for stp in steps[:5]:
        a(f"s_nop 1\nv_add_u32_dpp v{ks}, v{ks}, v{ks} {stp}")
    a(f"""
    v_sub_u32 v{ks}, v{ks}, v{cn}
    ds_bpermute_b32 v{d0}, v{l0}, v{ks}
    ds_bpermute_b32 v{d1}, v{l1}, v{ks}
    ds_write_b32 v{ci}, v{ks} offset:{L_BAS}
    s_waitcnt lgkmcnt(1)
    v_add_u32 v{o0}, v{o0}, v{d0}
    v_add_u32 v{o1}, v{o1}, v{d1}
    v_lshl_or_b32 v{m0_}, v{o0}, 24, v{m0_}
    v_lshl_or_b32 v{m1_}, v{o1}, 24, v{m1_}
    ds_write2st64_b64 v{a4}, {v(m0_,2)}, {v(m1_,2)} offset0:0 offset1:1
    M_P4W:
    v_mov_b32 v{ks}, s{sL}
    ds_write_b32 v{nta}, v{ks} offset:{L_MX+4}
    s_waitcnt lgkmcnt(0)
    s_barrier
    """)
    stage(range(NS1, NSP)); pack("M_PA")
    if EPOS == 0: eprefetch()
    u0, nn = Q + 20, Q + 26
    a("M_P4E:")
    stamp("pro", 5)
    a(f"""
    ds_read_b64 {v(u0,2)}, v{nta} offset:{L_MX}
    v_lshlrev_b32 v{tt}, 2, v{m}
    ds_read_b32 v{u0+2}, v{tt} offset:{L_CNT}
    ds_read_b32 v{u0+3}, v{tt} offset:{L_BAS}
    s_lshr_b32 s{sA}, s{sW}, 1
    s_lshl_b32 s{sA}, s{sA}, 5
    v_add_u32 v{nn}, s{sA}, v{m}
    v_lshlrev_b32 v{tt}, 3, v{nn}
    ds_read_b64 {v(u0+4,2)}, v{tt} offset:{L_TB}
    """)
    skip("M_TR")
    for i in ORD:
        a(f"s_mov_b64 exec, {mk(i)}\nds_read_b64 {v(TBv+2*i,2)}, v{NA+i} offset:{L_TB}\nds_read_b32 v{OFv+i}, v{CA+i} offset:{C8O}")
        after("M_TR", i)
    a(f"""
    s_mov_b64 exec, -1
    """)
    if EPOS == 1: eprefetch()
    a(f"""
    s_lshl_b32 s{sA}, s{sG}, 5
    s_waitcnt lgkmcnt(12)
    v_readfirstlane_b32 s{sNMAX}, v{u0}
    v_readfirstlane_b32 s{sL}, v{u0+1}
    v_add_u32 v{u0+2}, v{u0+2}, v{u0+3}
    v_cmp_ge_u32 vcc, s{sA}, v{u0+3}
    v_cmp_lt_u32 s[52:53], s{sA}, v{u0+2}
    s_and_b64 s[52:53], s[52:53], vcc
    s_ff1_i32_b32 s{sT}, s52
    s_max_i32 s{sT}, s{sT}, 0
    s_cmp_le_u32 s{sL}, {LMAX}
    s_cbranch_scc1 M_P5
    s_mov_b32 s{sCAP}, 256
    s_branch M_AGAIN
    M_P5:
    """)
    skip("M_SC")
    for i in ORD:
        mm, BB = TBv + 2*i, TBv + 2*i + 1
        a(f"""
        s_mov_b64 exec, {mk(i)}
        s_waitcnt lgkmcnt({2*i + max(0, 5-i)})
        v_add_u32 v{RK+i}, v{RK+i}, v{OFv+i}
        v_lshrrev_b32 v{tt}, 24, v{mm}
        v_mul_u32_u24 v{mm}, v{mm}, v{RK+i}
        v_add_lshl_u32 v{tt}, v{tt}, v{RK+i}, 2
        v_lshrrev_b32 v{mm}, 22, v{mm}
        v_mad_u32_u24 v{tt}, v{mm}, v{BB}, v{tt}
        ds_write2st64_b32 v{tt}, v{RC+i}, v{G+i} offset0:{L_LS//256} offset1:{L_LE//256}
        """)
        after("M_SC", i)
    ca0, ca1, ca2, ca3, kk, oa, fa, da = [EP + i for i in range(8)]
    epi_setup = f"""
    s_lshl_b32 s{sA}, s{sSB}, 7
    s_add_u32 s{sA}, s{sA}, {L_XR}
    s_movk_i32 s{sB}, 0x3fc
    s_movk_i32 s75, 0x3f8
    v_mov_b32 v{kk}, v{u0+5}
    v_lshrrev_b32 v{ca0}, 24, v{u0+4}
    v_mul_u32_u24 v{ca0}, 272, v{ca0}
    v_lshl_add_u32 v{ca0}, v{h16}, 1, v{ca0}
    v_add_u32 v{ca0}, s{sA}, v{ca0}
    v_mov_b32 v{da}, {L_ZR}
    v_cmp_gt_u32 s[56:57], s{sB}, v{kk}
    v_cmp_gt_u32 s[58:59], s75, v{kk}
    v_add_u32 v{ca1}, 272, v{ca0}
    v_add_u32 v{ca2}, 544, v{ca0}
    v_add_u32 v{ca3}, 816, v{ca0}
    v_cmp_gt_u32 vcc, 0x400, v{kk}
    v_cndmask_b32 v{ca1}, v{da}, v{ca1}, s[56:57]
    v_cndmask_b32 v{ca2}, v{da}, v{ca2}, s[58:59]
    v_cndmask_b32 v{ca0}, v{da}, v{ca0}, vcc
    v_cmp_gt_u32 vcc, s{sNB}, v{nn}
    v_lshlrev_b32 v{oa}, 7, v{nn}
    v_lshl_add_u32 v{oa}, v{h16}, 1, v{oa}
    s_lshl_b32 s{sA}, s{sW}, 11
    v_cndmask_b32 v{oa}, v{hz}, v{oa}, vcc
    v_add_u32 v{fa}, s{sA}, v{l16}
    v_mul_u32_u24 v{da}, 272, v{m}
    v_add3_u32 v{da}, v{da}, v{h16}, s{sXRB}
    """
    a(f"""
    s_mov_b64 exec, -1
    s_setprio 0
    """)
    if EPOS == 2: eprefetch()
    a(f"s_waitcnt vmcnt({NEP}) lgkmcnt(0)\ns_barrier")
    stamp("top", 3); stamp("pro", 6); stamp("pri", 1)
    a(f"s_cmp_lg_u32 s{sT}, 0\ns_cbranch_scc1 M_GO")
    a(epi_setup)
    a("s_branch M_BEND\nM_GO:")
    S = []
    ef = OPT["eflags"]
    def le_read(t, p): return (f"ds_read_b32 v{RP+2*p}, v{vLE} offset:{L_LE+1024*t}", f"le{t}")
    def ls_read(t, dst): return (f"ds_read_b128 {v(dst,4)}, v{vLS} offset:{L_LS+1024*t}", f"ls{t}")
    def st_addr(p): return f"v_xor_b32 v{sa}, v{RP+2*p}, v{h16}"
    def st_read(t): return (f"ds_read_b128 {Es(t)}, v{sa}", f"st{t}")
    def d_pre(t, p): return [f"v_cmp_le_u32 vcc, s{sDF}, v{RP+2*p}", f"v_and_or_b32 v{vCr+t%5}, v{RP+2*p}, s{sB30}, 1.0"]
    def d_load(t, p): return ["s_mov_b64 exec, vcc", (f"buffer_load_dwordx4 {Es(t)}, {v(RP+2*p,2)}, s[{sE}:{sE+3}], 0 idxen offen {ef}", f"D{t}"), "s_mov_b64 exec, -1"]
    def x_addr(src): return [f"v_and_or_b32 v{S4+i}, v{src+i}, s{sM7}, v{CX+i}" for i in range(4)]
    def x_dma(t, nop=True, reg=None, soff="0", tag=None):
        o = []
        for i in range(4):
            sr = sP
            o += [f"s_add_u32 m0, s{sXRB}, {i*1024}"] + (["s_nop 0"] if nop else []) + \
                 [(f"buffer_load_dwordx4 v{(reg or S4)+i}, s[{sr}:{sr+3}], {soff} offen {LD} lds", tag or f"X{t}")]
        return o
    def fx_read(t, sx, tag=None): return (f"ds_read_b128 {v(FX+4*sx,4)}, v{XA+sx}", tag or f"fx{t}")
    def chain(nh, t):
        Dh = v(D + 16 * nh, 16)
        return [f"v_mfma_f32_32x32x16_bf16 {Dh}, {W3f(nh)}, {Es(t)}, {v(Q+16*nh,16)}"] + \
               ([f"v_smfmac_f32_32x32x32_bf16 {Dh}, {Idf(0)}, {v(FX+8*nh,8)}, v{W+4}"] if int(OPT["smf"]) else
                [f"v_mfma_f32_32x32x16_bf16 {Dh}, {Idf(j)}, {v(FX+8*nh+4*j,4)}, {Dh}" for j in range(2)])
    nd, L1, L2 = D, D + 4, SG
    def ps(i): return [f"s_memrealtime s[{76+2*i}:{77+2*i}]", "s_waitcnt lgkmcnt(0)"] if MODE == "pri" else []
    S += [ls_read(0, S4), (f"ds_read_b32 v{nd}, v{vLE} offset:{L_LS}", "nd")] + [le_read(j, j) for j in range(4)] + [ls_read(1, L1), ls_read(2, L2), ("@W", None, "nd")]
    S += x_addr(S4)
    xa_ = [f"v_and_b32 v{nd+1}, 127, v{nd}", f"v_lshlrev_b32 v{nd+1}, 7, v{nd+1}", f"v_bfe_u32 v{nd+2}, v{nd}, 1, 3", f"v_xor_b32 v{nd+2}, v{nd+2}, v{h}"]
    dm = x_dma(0, nop=False)
    for i in range(4): S += [dm[2*i], xa_[i], dm[2*i+1]]
    S += [f"v_lshl_add_u32 v{nd+1}, v{nd+2}, 4, v{nd+1}", f"v_add_u32 v{nd+1}, {L_XD}, v{nd+1}"]
    for sx in range(4):
        S += [(f"ds_read_b128 {v(FX+4*sx,4)}, v{nd+1}", "xd")] + ([f"v_xor_b32 v{nd+1}, {(32, 96, 32)[sx]}, v{nd+1}"] if sx < 3 else [])
    S += [("@W", None, "ls2")] + d_pre(0, 0) + ["s_not_b64 s[60:61], vcc"] + d_load(0, 0) + ps(2)
    S += [st_addr(0), "s_mov_b64 exec, s[60:61]", st_read(0), "s_mov_b64 exec, -1"]
    for j in range(1, 4): S += [st_addr(j), st_read(j)]
    ep = [l.strip() for l in epi_setup.strip().split("\n")]
    S += [f"v_mov_b32 v{SG+4}, v{u0+4}", f"v_mov_b32 v{SG+5}, v{u0+5}", f"v_mov_b32 v{SG+6}, v{nn}", ("@W", None, "xd")]
    ep = [l.replace(f"v{u0+4}", f"v{SG+4}").replace(f"v{u0+5}", f"v{SG+5}").replace(f"v{nn}", f"v{SG+6}") for l in ep] + x_addr(L1)
    k_ = 0
    for nh in range(2):
        for sx in range(4):
            S.append(f"v_mfma_f32_32x32x16_bf16 {v(Q+16*nh,16)}, {v(AG+(sx*2+nh)*4,4)}, {v(FX+4*sx,4)}, {'0' if sx == 0 else v(Q+16*nh,16)}")
            S += ep[k_:k_+4]; k_ += 4
    S += ep[k_:] + ps(3) + ps(4)
    S += [f"s_mov_b32 s74, {f32(-LOG2E)}", f"s_mov_b32 s75, {f32(-LOG2E)}"]
    S += [("@W", "D0", None)] + ps(5) + [fx_read(0, sx) for sx in range(4)]
    S += [f"v_pk_mul_f32 {v(Q+2*i,2)}, {v(Q+2*i,2)}, s[74:75]" for i in range(16)] + [("@W", None, "fx0")]
    c00 = chain(0, 0)
    S += [c00[0], "s_nop 7", "s_nop 7"] + c00[1:] + d_pre(1, 1) + d_load(1, 1) + x_dma(1) + [f"v_and_or_b32 v{L2+i}, v{L2+i}, s{sM7}, v{CX+i}" for i in range(4)] + ps(6)
    if MODE: S += [f"s_mov_b32 s90, s{sT}", f"s_mov_b32 s98, s{sL}", "s_memtime s[94:95]", "s_waitcnt lgkmcnt(0)"]
    if MODE == "top": S += ["s_memrealtime s[84:85]", "s_waitcnt lgkmcnt(0)"]
    def phase(nh, t, mf, fill):
        Db, Ab = D + 16*nh, AG + 16*nh
        c = vCr + t % 5
        cp = f"{v(c & ~1, 2)} " + ("op_sel_hi:[1,0]" if c % 2 == 0 else "op_sel:[0,1] op_sel_hi:[1,1]")
        seq = []
        mf = mf + [None] * (3 - len(mf))
        for q in range(2):
            ex = [f"v_exp_f32 v{T+i}, v{Db+8*q+i}" for i in range(8)]
            rc = [f"v_rcp_f32 v{T+i}, v{T+i}" for i in range(8)]
            ad = [f"v_pk_add_f32 {v(T+2*i,2)}, {v(T+2*i,2)}, {cp}" for i in range(4)]
            fm = [f"v_pk_fma_f32 {v(Ab+8*q+2*i,2)}, {v(Db+8*q+2*i,2)}, {v(T+2*i,2)}, {v(Ab+8*q+2*i,2)}" for i in range(4)]
            if t == 0: fm = [f"v_pk_mul_f32 {v(Ab+8*q+2*i,2)}, {v(Db+8*q+2*i,2)}, {v(T+2*i,2)}" for i in range(4)]
            if q == 0: seq += [mf[0]] + ex + ad + [mf[1]] + rc + fm
            else: seq += [mf[2]] + ex + ad + rc + fm
        res = []; n = 0
        for l in seq:
            if l is None: continue
            res.append(l)
            if l.startswith(("v_exp", "v_rcp")):
                res += fill.get(n, []); n += 1
        def txt(l): return l[0] if isinstance(l, tuple) else l
        ab = OPT["abl"]
        if "novm" in ab: res = [l for l in res if not txt(l).startswith(("buffer_", "s_add_u32 m0", "s_mov_b64 exec")) and not (txt(l) == "@W" and l[1])]
        if "nolds" in ab: res = [l for l in res if not txt(l).startswith("ds_") and not (txt(l) == "@W" and l[2])]
        if "nomf" in ab: res = [l for l in res if not txt(l).startswith(("v_mfma", "v_smf"))]
        if "nova" in ab: res = [l for l in res if not txt(l).startswith(("v_and_or", "v_xor", "v_cmp"))]
        return res
    DL = int(OPT["dl"])
    def last_of(S_, tags):
        seen = [it[1] for it in S_ if isinstance(it, tuple) and it[0] != "@W"]
        return max(tags, key=lambda g: max(i for i, x in enumerate(seen) if x == g))
    for t in range(LMAX):
        fill = {}
        td = t + DL
        pr = td if td < 4 else 0
        if 4 <= td < LMAX:
            fill[0] = [le_read(td, 0)]
            fill[10] = [("@W", None, f"le{td}"), st_addr(0)]; fill[11] = [st_read(td)]
        if t + 3 < LMAX: fill[1] = [ls_read(t + 3, S4)]
        if t + 1 < LMAX:
            FXP = int(OPT["fxp"])
            fill[FXP] = [("@W", f"X{t+1}", None)]
            for sx in range(4): fill[FXP+1+sx] = fill.get(FXP+1+sx, []) + [fx_read(t + 1, sx)]
        if t + 3 < LMAX:
            xa = x_addr(S4)
            xp = 21 if int(OPT["fxp"]) < 17 else 16
            fill[xp] = [("@W", None, f"ls{t+3}"), xa[0]]; fill[xp+1] = [xa[1]]; fill[xp+2] = [xa[2]]; fill[xp+3] = [xa[3]]
        XL = int(OPT["xl"])
        if XL == 2:
            for k_ in (1, 16, 17, 18, 19, 21, 22, 23, 24):
                if k_ in fill and not any((x[0] if isinstance(x, tuple) else x).startswith(("ds_read_b128 v[%d" % FX, "ds_read_b128 v[%d" % (FX+4), "ds_read_b128 v[%d" % (FX+8), "ds_read_b128 v[%d" % (FX+12))) or (isinstance(x, tuple) and x[0] == "@W" and x[1]) for x in fill[k_]): del fill[k_]
            if t + 2 < LMAX:
                dm = x_dma(t + 2, nop=False, reg=L2 if t == 0 else None)
                for i, pos in enumerate(int(x) for x in OPT["dmp"].split(",")): fill[pos] = fill.get(pos, []) + ([("@W", None, f"fx{t+1}")] if i == 1 else []) + [dm[i]]
        if t == 0 and XL == 3:
            if DL > 2: fill[2] = d_pre(2, 2); fill[3] = d_load(2, 2)
            dm = x_dma(2, nop=False, reg=L2)
            for i, pos in enumerate((4, 5, 6, 7, 12, 13, 14, 15)): fill[pos] = [dm[i]]
            if DL > 3: fill[25] = fill.get(25, []) + d_pre(3, 3) + d_load(3, 3)
        PR = {0: (None, None), 1: (1, 0), 2: (0, 1)}[int(OPT["prio"])]
        if PR[0] is not None: S.append(f"s_setprio {PR[0]}")
        S += phase(0, t, chain(1, t), fill)
        if PR[0] is not None: S.append(f"s_setprio {PR[1]}")
        if t + 1 < LMAX and last_of(S, [f"X{t+1}", f"D{t+1}"]) == f"D{t+1}": S.append(("@W", f"D{t+1}", None))
        fill = {}
        if t + 1 < LMAX: fill[0] = [("@W", None, f"fx{t+1}")]
        if t + 3 < LMAX and XL == 3:
            dm = x_dma(t + 3, nop=False)
            for i, pos in enumerate(int(x) for x in OPT["dmp"].split(",")): fill[pos] = [dm[i]]
        if t + 3 < LMAX and XL == 2:
            xa = x_addr(S4)
            fill[4] = [ls_read(t + 3, S4)]
            fill[20] = [("@W", None, f"ls{t+3}"), xa[0]]; fill[21] = [xa[1]]; fill[22] = [xa[2]]; fill[23] = [xa[3]]
        if td < LMAX:
            dp = d_pre(td, pr)
            DP = int(OPT["dpos"])
            fill[DP-1] = fill.get(DP-1, []) + [dp[0], dp[1]]; fill[DP] = d_load(td, pr)
        fill[31] = [f"s_cmp_eq_u32 s{sT}, {t+1}"]
        S += phase(1, t, chain(0, t + 1) if t + 1 < LMAX else [], fill)
        if t + 1 < LMAX: S.append("s_cbranch_scc1 M_FLUSH")
    emit(resolve(S))
    a("M_FLUSH:")
    stamp("top", 5); stamp("epi", 1)
    if MODE: a("s_memtime s[96:97]\ns_waitcnt lgkmcnt(0)")
    a("s_waitcnt vmcnt(0)")
    for i in range(8):
        a(f"ds_write_b128 v{da}, {v(AG+4*i,4)} offset:{32*i}")
    A0, A1, A2, OWN, PAR = D, D + 16, Q, Q + 16, Q + 24
    a(f"""
    M_BEND:
    v_cmp_gt_u32 vcc, 0x3f4, v{kk}
    s_mov_b32 s74, {f32(-1.0/LOG2E)}
    s_mov_b32 s75, {f32(-1.0/LOG2E)}
    s_waitcnt lgkmcnt(0)
    """)
    stamp("epi", 2)
    a("s_barrier")
    stamp("epi", 3)
    offs = (0, 16, 64, 80)
    for i in range(4):
        for buf, ca in ((A0, ca0), (A1, ca1), (A2, ca2)):
            a(f"ds_read_b128 {v(buf+4*i,4)}, v{ca} offset:{offs[i]}")
    for i in range(4):
        a(f"s_waitcnt lgkmcnt({9-3*i})")
        for j in range(2): a(f"v_pk_add_f32 {v(A0+4*i+2*j,2)}, {v(A0+4*i+2*j,2)}, {v(A1+4*i+2*j,2)}")
        for j in range(2): a(f"v_pk_add_f32 {v(A0+4*i+2*j,2)}, {v(A0+4*i+2*j,2)}, {v(A2+4*i+2*j,2)}")
    a(f"""
    s_cbranch_vccz M_SUMD
    s_movk_i32 s{sA}, 0x3f4
    M_SUML:
    s_mov_b64 exec, vcc
    """)
    for i in range(4):
        a(f"ds_read_b128 {v(A1+4*i,4)}, v{ca3} offset:{offs[i]}")
    a(f"s_sub_u32 s{sA}, s{sA}, 4\nv_add_u32 v{ca3}, 272, v{ca3}\ns_waitcnt lgkmcnt(0)")
    for i in range(8): a(f"v_pk_add_f32 {v(A0+2*i,2)}, {v(A0+2*i,2)}, {v(A1+2*i,2)}")
    a(f"""
    s_mov_b64 exec, -1
    v_cmp_gt_i32 vcc, s{sA}, v{kk}
    s_nop 4
    s_cbranch_vccnz M_SUML
    M_SUMD:
    s_cmp_le_u32 s{sNMAX}, s{sCAP}
    s_cbranch_scc1 M_EPI
    """)
    srd_off(a, 56, 10, WS_SP, 2048 * 4096)
    a(f"""
    s_lshl_b32 s{sA}, s2, 3
    s_add_u32 s{sA}, s{sA}, s{sW}
    s_lshl_b32 s{sA}, s{sA}, 12
    s_cmp_eq_u32 s{sBASE}, 0
    s_cbranch_scc1 M_NOLD
    """)
    for i in range(4):
        a(f"buffer_load_dwordx4 {v(A1+4*i,4)}, v{l16}, s[56:59], s{sA} offen offset:{1024*i} sc0 sc1")
    a("s_waitcnt vmcnt(0)")
    for i in range(8): a(f"v_pk_add_f32 {v(A0+2*i,2)}, {v(A0+2*i,2)}, {v(A1+2*i,2)}")
    a(f"""
    M_NOLD:
    s_add_u32 s{sBASE}, s{sBASE}, s{sCAP}
    s_cmp_ge_u32 s{sBASE}, s{sNMAX}
    s_cbranch_scc1 M_EPI
    """)
    for i in range(4):
        a(f"buffer_store_dwordx4 {v(A0+4*i,4)}, v{l16}, s[56:59], s{sA} offen offset:{1024*i} sc0 sc1")
    a(f"""
    M_AGAIN:
    s_load_dwordx2 s[60:61], s[0:1], 32
    s_waitcnt vmcnt(0) lgkmcnt(0)
    s_barrier
    """)
    srd(a, 56, 60, 18432)
    a(f"""
    s_lshl_b32 s{sA}, s{sW}, 10
    s_add_u32 s{sA}, s{sA}, 8192
    s_add_u32 m0, s{sA}, {S_W}
    v_lshlrev_b32 v{t0}, 2, v0
    buffer_load_dwordx4 v{l16}, s[56:59], s{sA} offen lds
    ds_write_b32 v{t0}, v{nta}
    v_add_u32 v{t0}, {L_C8}, v{t0}
    ds_write_b32 v{t0}, v{nta}
    ds_write_b32 v{t0}, v{nta} offset:2048
    """)
    a("s_waitcnt vmcnt(0)\ns_barrier")
    w2read()
    a(f"""
    s_waitcnt lgkmcnt(0)
    s_barrier
    s_branch M_BATCH
    M_EPI:
    """)
    srd(a, 56, 8, 3200000)
    for i in range(8): a(f"v_pk_mul_f32 {v(A0+2*i,2)}, {v(A0+2*i,2)}, s[74:75]")
    for i in range(8): a(f"v_cvt_pk_bf16_f32 v{OWN+i}, v{A0+2*i}, v{A0+2*i+1}")
    a(f"""
    ds_write_b128 v{fa}, {v(OWN,4)} offset:{L_FE}
    ds_write_b128 v{fa}, {v(OWN+4,4)} offset:{L_FE+1024}
    v_xor_b32 v{fa}, 0x800, v{fa}
    v_mfma_f32_32x32x16_bf16 {v(U0,16)}, {v(WU,4)}, {v(OWN,4)}, {v(U0,16)}
    v_mfma_f32_32x32x16_bf16 {v(U0,16)}, {v(WU+4,4)}, {v(OWN+4,4)}, {v(U0,16)}
    s_lshl_b32 s{sA}, s{sSB}, 6
    s_add_u32 s{sA}, s{sA}, s{sS0}
    s_mov_b32 s74, {f32(-LOG2E)}
    s_mov_b32 s75, {f32(-LOG2E)}
    s_waitcnt lgkmcnt(0)
    s_barrier
    """)
    stamp("epi", 4)
    a(f"""
    ds_read_b128 {v(PAR,4)}, v{fa} offset:{L_FE}
    ds_read_b128 {v(PAR+4,4)}, v{fa} offset:{L_FE+1024}
    s_waitcnt lgkmcnt(1)
    v_mfma_f32_32x32x16_bf16 {v(U0,16)}, {v(WU+8,4)}, {v(PAR,4)}, {v(U0,16)}
    s_waitcnt lgkmcnt(0)
    v_mfma_f32_32x32x16_bf16 {v(U0,16)}, {v(WU+12,4)}, {v(PAR+4,4)}, {v(U0,16)}
    s_nop 11
    """)
    for q in range(2):
        b = 8 * q
        for i in range(4): a(f"v_pk_mul_f32 {v(AG+b+2*i,2)}, {v(U0+b+2*i,2)}, s[74:75]")
        for i in range(8): a(f"v_exp_f32 v{AG+b+i}, v{AG+b+i}")
        for i in range(4): a(f"v_pk_add_f32 {v(AG+b+2*i,2)}, {v(AG+b+2*i,2)}, 1.0 op_sel_hi:[1,0]")
        for i in range(8): a(f"v_rcp_f32 v{AG+b+i}, v{AG+b+i}")
        for i in range(4): a(f"v_pk_mul_f32 {v(AG+b+2*i,2)}, {v(U0+b+2*i,2)}, {v(AG+b+2*i,2)}")
        for i in range(4): a(f"v_cvt_pk_bf16_f32 v{D+4*q+i}, v{AG+b+2*i}, v{AG+b+2*i+1}")
        a(f"buffer_store_dwordx4 {v(D+4*q,4)}, v{oa}, s[56:59], s{sA} offen offset:{16*q}")
    if MODE:
        stamp("epi", 5)
        a("s_waitcnt vmcnt(0)")
        stamp("top", 6); stamp("epi", 6)
        a(f"s_lshl_b32 s74, s2, 3\ns_add_u32 s74, s74, s{sW}\ns_lshl_b32 s74, s74, 6\ns_add_u32 s74, s74, {WS_ST+0x80000}\ns_load_dwordx2 s[10:11], s[0:1], 64\ns_waitcnt lgkmcnt(0)\ns_add_u32 s52, s10, s74\ns_addc_u32 s53, s11, 0\nv_mov_b32 v0, 0")
        for i in range(8):
            a(f"v_mov_b32 v1, s{76+2*i}\nglobal_store_dword v0, v1, s[52:53] offset:{4*i}")
        a("s_sub_u32 s96, s96, s94\nv_mov_b32 v1, s96\nglobal_store_dword v0, v1, s[52:53] offset:32\nv_mov_b32 v1, s98\nglobal_store_dword v0, v1, s[52:53] offset:36")
    a("M_END:\ns_endpgm")
    return R.n

hdr = f"""; MPNN edge-MLP + segment-sum + node update in one launch of 256 co-resident workgroups:
; @launch grid=(256,1,1) block=(512,1,1) lds={MAIN_LDS}
.amdgcn_target "amdgcn-amd-amdhsa--gfx950"
.text
.globl {KN}
.type {KN},@function
"""
nv = gen()
txt = hdr + a.text() + '.section .rodata,"a"\n.p2align 6\n' + kdesc(KN, 256, 102)
open(sys.argv[1], "w").write(txt)
print("vgprs", nv, "lds", MAIN_LDS)
```

```python
import sys, struct
from asmlib import *

OPT = dict(abl="", stamp=False, eflags="", M0=1152, ns1=3, es='0,3,2,0', xpos=0, df=1, hlp=0, es0=0, cpf=1, fxp=16, dmp='23,24,25,26,27,28,29,30', dpos=12, sp='0,0,0,0', dl=2, xl=2, barA=1, ofl='', wpos=0, epos=1, osl=4, xw=0, fst=5, cem=1, Y=False, epf=2000, skw=256, xe=0, tlb=0, stl=0, eld='', ild='', xld='', wso=0, tch=0, st='sc1', oe=0, otw=2, smf=1, ns2=7, prio=1, ld="sc1")
for arg in sys.argv[2:]:
    k, val = arg.split("=")
    OPT[k] = {"True": True, "False": False}.get(val, val.replace("+", " "))
M0 = int(OPT["M0"])
assert M0 % 32 == 0 and M0 <= 1792 and 3200 - M0 <= 2048
LD = OPT["ld"]
YM = OPT["Y"]
if YM: OPT["es"] = "0,0,0,0"; OPT["ns1"] = 0
KN = "standalone__mpnn_edge_mlp__graph_kernel"

NCH, CH = 250, 3200
WS_REC, WS_O, WS_F2, WS_ST, WS_P, WS_SP, WS_EM = 0, 0x440000, 0x680000, 0x700000, 0x800000, 0x1A00000, 0xB20000
SKW = int(OPT["skw"])
OTS, RCS, EMS = 8192 + SKW, 16384, M0 * 32 + SKW
LOG2E = 1.4426950408889634
def f32(x): return "0x%08x" % struct.unpack("<I", struct.pack("<f", x))[0]

a = Asm()
MODE = OPT["stamp"]
def stamp(mode, i):
    if MODE == mode or (MODE and mode == "all"):
        a(f"s_memrealtime s[{76+2*i}:{77+2*i}]\ns_waitcnt lgkmcnt(0)")
def emit(l): a("\n".join(l))

def resolve(stream):
    out = []; vm = []; lg = []
    for it in stream:
        if isinstance(it, tuple) and it[0] == "@W":
            parts = []
            if it[1] is not None:
                idx = max(i for i, t in enumerate(vm) if t == it[1]); n = len(vm) - 1 - idx
                assert n <= 63; parts.append(f"vmcnt({n})")
            if it[2] is not None:
                idx = max(i for i, t in enumerate(lg) if t == it[2]); n = len(lg) - 1 - idx
                parts.append(f"lgkmcnt({min(n, 15)})")
            out.append("s_waitcnt " + " ".join(parts)); continue
        txt, tag = it if isinstance(it, tuple) else (it, None)
        if txt.startswith("buffer_"): vm.append(tag)
        if txt.startswith("ds_"): lg.append(tag)
        out.append(txt)
    return out

LMAX = 17
L_TB = 0
L_CNT = 1024
L_NT = L_CNT + 128
L_MX = L_NT + 16
L_BAS = L_MX + 16
L_F2C = 1408
L_ZR = 1536
L_LS = 2048
LSZ = LMAX * 1024
L_LE = L_LS + LSZ
L_ST = L_LE + LSZ
SCAP = 160
NSP = SCAP // 32
L_XD = L_ST + 8 * SCAP * 32
L_XR = L_XD + 16384
XRS = 8704
MAIN_LDS = L_XR + 8 * XRS
assert MAIN_LDS <= 163840 and L_XR % 4096 == 0
L_C8 = L_XR + XRS
C8O = XRS
GLO = 6144
S_W = L_LS
S_WU = L_XR + 4 * XRS
S_CNT = S_W + 18432
S_STA = S_CNT + 2048
S_SRT = S_STA + 2048
S_E = S_SRT + CH * 4
assert S_E + M0 * 32 <= L_XD
L_FE = L_LS
DUMMY = 0xC0000000
DFLAG = 1 << 24
SPIN = 200000

def gen():
    R = Regs("v", 1, 256)
    vLS = R.alloc("vLS"); vLE = R.alloc("vLE")
    vCr = R.alloc("vCr", 5)
    RP = R.alloc("RP", 8, 2)
    XA = R.alloc("XA", 4); CX = R.alloc("CX", 4)
    S4 = R.alloc("S4", 4, 4); T = R.alloc("T", 8, 4)
    FX = R.alloc("FX", 16, 4); E = R.alloc("E", 16, 4)
    D = R.alloc("D", 32, 4); Q = R.alloc("Q", 32, 4); AG = R.alloc("AG", 32, 4); W = R.alloc("W", 16, 4)
    U0 = R.alloc("U0", 16, 4); WU = R.alloc("WU", 16, 4); EP = R.alloc("EP", 16, 4)
    SG = R.alloc("SG", 8, 4)
    sa = R.alloc("sa"); lane = R.alloc("lane"); l16 = R.alloc("l16"); m = R.alloc("m"); h = R.alloc("h")
    sac = R.alloc("sac"); lh = R.alloc("lh"); hz = R.alloc("hz"); aN = R.alloc("aN"); one = R.alloc("one"); nta = R.alloc("nta")
    h16 = RP + 1
    def Idf(j): return v(W + 4 * j, 4)
    def W3f(nh): return v(W + 8 + nh * 4, 4)
    def Es(t): return v(E + 4 * (t % 4), 4)
    sX, sE, sREC, sEM, sWS, sP = 16, 20, 24, 28, 32, 36
    sW, sSB, sS0, sSO, sN, sBASE, sCNT, sT, sXRB, sA, sB, sCAP = 40, 41, 42, 43, 44, 45, 46, 47, 48, 49, 50, 51
    sNB, sGL, sNMAX, sG, sL, sM7, sB30, sDF, sNS = 70, 71, 72, 73, 12, 13, 14, 15, 3
    sSTB, sOA, sTAG = 99, 93, 100
    t0, t1, t2, t3, t4, t5, t6, t7 = [T + i for i in range(8)]
    def mk(i): return f"s[{54+2*i}:{55+2*i}]"
    ORD = list(range(7, -1, -1))
    def skip(lab):
        a(f"s_cmp_le_u32 s{sCNT}, 384\ns_cbranch_scc1 {lab}6\ns_cmp_le_u32 s{sCNT}, 448\ns_cbranch_scc1 {lab}7")
    def after(lab, i):
        if i >= 6: a(f"{lab}{i}:")
    ne = 0 if "noe" in OPT["abl"] else 1
    steps = [f"row_shr:{sh} row_mask:0xf bank_mask:0xf bound_ctrl:0" for sh in (1, 2, 4, 8)] + ["row_bcast:15 row_mask:0xa bank_mask:0xf", "row_bcast:31 row_mask:0xc bank_mask:0xf"]

    DS_, SR_, CAD, RNK, PR_ = D, D + 8, D + 16, D + 24, Q
    oA, oB, t16, t4_, idx, rA, rB = [Q + 8 + i for i in range(7)]
    nz = Q + 16
    CS = Q + 20
    NA_, NB_ = M0 // 4, (CH - M0) // 4
    DF = int(OPT["df"])
    SDW = "dst_sel:DWORD dst_unused:UNUSED_PAD src0_sel:DWORD src1_sel:"
    a(f".p2align 8\n{KN}:")
    a(f"""
    s_cmp_ge_u32 s2, 256
    s_cbranch_scc1 M_END
    {"s_memrealtime s[76:77]" if MODE else ""}
    s_load_dwordx4 s[56:59], s[0:1], 16
    s_load_dwordx4 s[4:7], s[0:1], 0
    s_load_dwordx4 s[60:63], s[0:1], 32
    s_load_dwordx4 s[8:11], s[0:1], 48
    s_load_dwordx2 s[64:65], s[0:1], 64
    s_memrealtime s[66:67]
    """)
    a(f"""
    s_setprio 2
    """)
    CPF = int(OPT["cpf"])
    if CPF:
        a(f"""
        s_getpc_b64 s[52:53]
        M_PC:
        s_lshr_b32 s{sA}, s2, 3
        s_lshl_b32 s{sA}, s{sA}, 7
        v_lshrrev_b32 v{t1}, 6, v0
        v_lshlrev_b32 v{t1}, 12, v{t1}
        v_add_u32 v{t1}, s{sA}, v{t1}
        v_min_u32 v{t1}, M_END-M_PC, v{t1}
        global_load_dword v{vCr+4}, v{t1}, s[52:53]
        """)
    a(f"""
    v_lshlrev_b32 v{t16}, 4, v0
    v_mov_b32 v{hz}, 0x80000000
    v_cmp_gt_u32 vcc, {NA_}, v0
    s_mul_i32 s{sA}, s2, 12800
    s_mov_b64 s[52:53], vcc
    v_cndmask_b32 v{rA}, v{hz}, v{t16}, vcc
    v_cmp_gt_u32 vcc, {NB_}, v0
    s_add_u32 s{sB}, s{sA}, {M0*4}
    s_mov_b64 s[54:55], vcc
    v_cndmask_b32 v{rB}, v{hz}, v{t16}, vcc
    s_mov_b32 s{sE+2}, 3200000
    s_mov_b32 s{sE+3}, 0x20000
    s_mov_b32 s{sEM+2}, 3200000
    s_mov_b32 s{sEM+3}, 0x20000
    v_lshlrev_b32 v{t4_}, 2, v0
    v_mov_b32 v{nta}, 0
    v_lshrrev_b32 v{t0}, 6, v0
    s_waitcnt lgkmcnt(0)
    """)
    stamp("ka", 1)
    a(f"""
    s_mov_b32 s{sE}, s58
    s_mov_b32 s{sE+1}, s59
    s_mov_b32 s{sEM}, s56
    s_mov_b32 s{sEM+1}, s57
    buffer_load_dwordx4 {v(DS_,4)}, v{rA}, s[{sE}:{sE+3}], s{sA} offen {OPT['ild']}
    buffer_load_dwordx4 {v(DS_+4,4)}, v{rB}, s[{sE}:{sE+3}], s{sB} offen {OPT['ild']}
    {"" if DF else f"buffer_load_dwordx4 {v(SR_,4)}, v{rA}, s[{sEM}:{sEM+3}], s{sA} offen"}
    {"" if DF else f"buffer_load_dwordx4 {v(SR_+4,4)}, v{rB}, s[{sEM}:{sEM+3}], s{sB} offen"}
    ds_write_b32 v{t4_}, v{nta} offset:{S_CNT}
    ds_write_b32 v{t4_}, v{nta}
    v_readfirstlane_b32 s{sW}, v{t0}
    s_setprio 0
    """)
    srd(a, sP, 10, 256)
    a(f"""
    s_cmp_lt_u32 s2, {NCH}
    s_cbranch_scc1 S_NOTAG
    """)
    HLP = int(OPT["hlp"])
    if HLP:
        a(f"""
        v_and_b32 v{t1}, 63, v0
        v_lshl_add_u32 v{t1}, v{t1}, 3, v{t0}
        v_lshlrev_b32 v{t2}, {HLP}, v{t1}
        v_cmpx_gt_u32 vcc, {(WS_EM + 256*EMS + (1<<HLP) - 1) >> HLP}, v{t1}
        global_load_dword v{vCr+4}, v{t2}, s[64:65]
        s_mov_b64 exec, -1
        s_waitcnt vmcnt(0)
        """)
    a(f"""
    s_cmp_lg_u32 s{sW}, 7
    s_cbranch_scc1 S_NOTAG
    s_or_b32 s{sA}, s66, 1
    v_mov_b32 v{nz}, s{sA}
    v_mov_b32 v{nz+1}, s67
    v_mov_b32 v{nz+2}, 0
    v_mov_b32 v{nz+3}, 0
    s_mov_b64 exec, 1
    buffer_atomic_cmpswap_x2 {v(nz,4)}, v{nta}, s[{sP}:{sP+3}], 0 offen sc1
    s_mov_b64 exec, -1
    s_waitcnt vmcnt(0)
    S_NOTAG:
    s_mov_b32 s68, s10
    s_mov_b32 s69, s11
    s_add_u32 s10, s64, {int(str(OPT["wso"]), 0)}
    s_addc_u32 s11, s65, 0
    s_cmp_lt_u32 s2, {NCH}
    s_cselect_b64 s[52:53], s[52:53], 0
    s_cselect_b64 s[54:55], s[54:55], 0
    v_and_b32 v{lane}, 63, v0
    v_lshlrev_b32 v{l16}, 4, v{lane}
    s_mul_i32 s{sL}, s2, {CH*32}
    s_lshl_b32 s{sT}, s{sW}, 10
    """)
    srd(a, sREC, 6, 0 if "nomv" in OPT["abl"] else 25600000)
    a(f"s_mul_i32 s{sA}, s2, 12800\ns_add_u32 s{sB}, s{sA}, {M0*4}\ns_waitcnt lgkmcnt(0)\ns_barrier")
    if DF: a(f"buffer_load_dwordx4 {v(SR_,4)}, v{rA}, s[{sEM}:{sEM+3}], s{sA} offen\nbuffer_load_dwordx4 {v(SR_+4,4)}, v{rB}, s[{sEM}:{sEM+3}], s{sB} offen")
    if int(OPT["stl"]):
        a(f"""
        s_lshl_b32 s{sA}, s{sW}, 21
        s_add_u32 s{sB}, s{sA}, 0x1000000
        s_min_u32 s{sN}, s{sB}, {WS_EM + 256*EMS - 64}
        s_load_dword s66, s[10:11], s{sA}
        s_load_dword s66, s[10:11], s{sN}
        s_min_u32 s{sN}, s{sB}, {25600000 - 64}
        s_load_dword s66, s[6:7], s{sA}
        s_load_dword s66, s[6:7], s{sN}
        s_and_b32 s{sA}, s{sA}, 0x200000
        s_load_dword s66, s[8:9], s{sA}
        """)
    npiece = 0 if YM else M0 // 32
    nr = (npiece + 7) // 8
    ES = [int(x) for x in OPT["es"].split(",")]
    assert sum(ES) == nr
    EC = [sum(ES[:i]) for i in range(5)]
    def edma(slot):
        for r in range(EC[slot], EC[slot+1]):
            if (r + 1) * 8 > npiece:
                a(f"s_min_u32 s{sT}, s{sT}, {(npiece - 8*r - 1)*1024}")
            a(f"s_add_u32 m0, s{sT}, {S_E + r*8192}\ns_add_u32 s{sA}, s{sT}, {r*8192}\ns_add_u32 s{sA}, s{sA}, s{sL}\nbuffer_load_dwordx4 v{l16}, s[{sREC}:{sREC+3}], s{sA} offen {OPT['eld']} lds")
    srd(a, sX, 4, 3200000)
    srd(a, sP, 60, 18432)
    def xrows():
        a(f"""
        v_lshrrev_b32 v{t0}, 4, v{lane}
        v_xor_b32 v{t0}, v{t0}, v{lane}
        v_and_b32 v{t0}, 7, v{t0}
        v_and_b32 v{t1}, 0x380, v{l16}
        v_lshl_or_b32 v{t0}, v{t0}, 4, v{t1}
        v_xor_b32 v{t1}, 64, v{t0}
        s_lshl_b32 s{sA}, s{sW}, 11
        s_add_u32 m0, s{sA}, {L_XD}
        s_add_u32 s{sB}, s{sA}, s{sS0}
        buffer_load_dwordx4 v{t0}, s[{sX}:{sX+3}], s{sB} offen {OPT['xld']} lds
        buffer_load_dwordx4 v{t1}, s[{sX}:{sX+3}], s{sB} offen offset:1024 {OPT['xld']} lds
        """)
    a(f"""
    s_and_b32 s74, s2, 7
    s_lshl_b32 s74, s74, 5
    s_lshr_b32 s{sA}, s2, 3
    s_add_u32 s74, s74, s{sA}
    s_lshl_b32 s{sA}, s74, 17
    s_add_u32 s{sA}, s{sA}, 1337
    s_mul_hi_u32 s{sS0}, s{sA}, 3209991
    s_add_u32 s{sA}, s{sA}, 131072
    s_mul_hi_u32 s{sNB}, s{sA}, 3209991
    s_min_u32 s{sNB}, s{sNB}, 25000
    s_sub_u32 s{sNB}, s{sNB}, s{sS0}
    s_and_b32 s{sSB}, s{sW}, 1
    s_mul_i32 s{sSO}, s74, 98
    s_sub_u32 s{sSO}, s{sSO}, s{sS0}
    s_sub_u32 s{sSO}, s{sSO}, 9
    s_lshl_b32 s{sS0}, s{sS0}, 7
    s_mul_i32 s{sGL}, s{sW}, {XRS}
    s_add_u32 s{sGL}, s{sGL}, {L_XR + GLO}
    """)
    XPOS = int(OPT["xpos"])
    def xw1():
        xrows()
        a(f"""
        s_lshl_b32 s{sA}, s{sW}, 10
        s_add_u32 m0, s{sA}, {S_W}
        s_mov_b32 s{sB}, -49
        buffer_load_dwordx4 v{l16}, s[{sP}:{sP+3}], s{sA} offen lds
        """)
    if XPOS == 0: xw1()
    TLB = int(OPT["tlb"])
    srd(a, sWS, 10, 0x1000000)
    if TLB:
        a(f"""
        v_lshl_add_u32 v{t0}, v{lane}, 3, s{sW}
        v_lshlrev_b32 v{t0}, 20, v{t0}
        buffer_load_dword v{vCr+4}, v{t0}, s[{sWS}:{sWS+3}], 0 offen
        """)
    ES0 = int(OPT["es0"])
    if ES0:
        a(f"s_mul_i32 s{sA}, s2, {RCS}\nbuffer_store_dwordx4 {v(FX,4)}, v{t16}, s[{sWS}:{sWS+3}], s{sA} offen sc1")
    edma(0)
    a(f"""
    v_mov_b32 v{one}, 1
    v_mov_b32 v{t7}, 0x10000
    v_lshlrev_b32 v{idx}, 23, v0
    v_add_u32 v{idx}, 9, v{idx}
    v_lshlrev_b32 v{t6}, 5, v{lane}
    s_mov_b32 s{sB}, -49
    s_mov_b32 s{sM7}, {1<<21}
    s_mov_b32 s{sB30}, {2<<21}
    s_mov_b32 s{sDF}, {3<<21}
    s_setprio 2
    """)
    stamp("ka", 2)
    a(f"""
    s_waitcnt vmcnt({EC[1]+2+ES0+(3 if XPOS == 0 else 0)})
    """)
    stamp("srt", 1); stamp("ka", 3)
    for g in range(2):
        for i in range(4*g, 4*g + 4):
            a(f"v_mul_u32_u24 v{PR_+i}, 1338, v{DS_+i}\nv_lshlrev_b32_sdwa v{CAD+i}, 2, v{PR_+i} {SDW}WORD_1")
        a(f"s_mov_b64 exec, {'s[52:53]' if g == 0 else 's[54:55]'}")
        for i in range(4*g, 4*g + 4): a(f"ds_add_rtn_u32 v{RNK+i}, v{CAD+i}, v{one if g == 0 else t7} offset:{S_CNT}")
        a("s_mov_b64 exec, -1")
    edma(1)
    if XPOS == 1: xw1()
    TCH = int(OPT["tch"])
    if TCH:
        a(f"""
        v_lshl_add_u32 v{t0}, v{lane}, 3, s{sW}
        v_cmpx_gt_u32 vcc, {(WS_EM + 256*EMS + (1<<21) - 1) >> 21}, v{t0}
        v_lshlrev_b32 v{t0}, 21, v{t0}
        global_load_dword v{vCr+4}, v{t0}, s[10:11]
        s_mov_b64 exec, -1
        """)
    def recs(rng):
        o = []
        for i in rng:
            o += [f"v_mad_i32_i16 v{PR_+i}, v{PR_+i}, s{sB}, v{DS_+i} op_sel:[1,0,0,0]", f"v_lshl_add_u32 v{PR_+i}, v{SR_+i}, 6, v{PR_+i}",
                  f"v_add3_u32 v{PR_+i}, v{PR_+i}, v{idx}, {('0', f's{sM7}', f's{sB30}', f's{sDF}')[i%4]}"]
        return o
    a("s_waitcnt lgkmcnt(0)\ns_barrier")
    stamp("srt", 2); stamp("tag", 1); stamp("ka", 4)
    OTG = S4
    a(f"""
    ds_read_b128 {v(CS,4)}, v{t6} offset:{S_CNT}
    ds_read_b128 {v(CS+4,4)}, v{t6} offset:{S_CNT+16}
    ds_read_b32 v{OTG+1}, v{t4_} offset:{S_CNT}
    s_waitcnt vmcnt({EC[2]+3+ES0})
    """)
    emit(recs(range(4)))
    a("s_waitcnt lgkmcnt(1)")
    for j in range(1, 8): a(f"v_add_u32 v{CS+j}, v{CS+j}, v{CS+j-1}")
    a(f"v_mov_b32 v{CS+8}, v{CS+7}")
    rr = recs(range(4, 8))
    for n, stp in enumerate(steps): a(f"{rr[2*n]}\n{rr[2*n+1]}\nv_add_u32_dpp v{CS+8}, v{CS+8}, v{CS+8} {stp}")
    a(f"v_sub_u32 v{CS+8}, v{CS+8}, v{CS+7}\nv_add_u32 v{CS+8}, {M0<<16}, v{CS+8}")
    for j in range(7, 0, -1): a(f"v_add_u32 v{CS+j}, v{CS+j-1}, v{CS+8}")
    a(f"""
    v_mov_b32 v{CS}, v{CS+8}
    ds_write_b128 v{t6}, {v(CS,4)} offset:{S_STA}
    ds_write_b128 v{t6}, {v(CS+4,4)} offset:{S_STA+16}
    """)
    for i in range(8): a(f"ds_read_b32 v{DS_+i}, v{CAD+i} offset:{S_STA}")
    a(f"ds_read_b32 v{OTG}, v{t4_} offset:{S_STA}")
    edma(2)
    for i in range(8):
        if i % 4 == 0: a(f"s_mov_b64 exec, {'s[52:53]' if i == 0 else 's[54:55]'}")
        a(f"""
        s_waitcnt lgkmcnt(8)
        v_add_u32 v{DS_+i}, v{DS_+i}, v{RNK+i}
        v_lshlrev_b32_sdwa v{DS_+i}, 2, v{DS_+i} {SDW}{'WORD_0' if i < 4 else 'WORD_1'}
        ds_write_b32 v{DS_+i}, v{PR_+i} offset:{S_SRT}
        """)
    a("s_mov_b64 exec, -1")
    stamp("srt", 3); stamp("ka", 5)
    a(f"s_load_dwordx2 s[{sTAG}:{sTAG+1}], s[68:69], 0")
    WPOS = int(OPT["wpos"])
    def wrest():
        srd(a, sE, 62, 16384)
        a(f"""
        s_lshl_b32 s{sA}, s{sW}, 10
        s_add_u32 s{sA}, s{sA}, 8192
        s_add_u32 m0, s{sA}, {S_W}
        s_lshl_b32 s{sB}, s{sSB}, 10
        buffer_load_dwordx4 v{l16}, s[{sP}:{sP+3}], s{sA} offen lds
        s_add_u32 s{sB}, s{sB}, 16384
        s_add_u32 m0, s{sB}, {S_W}
        s_lshl_b32 s{sA}, s{sW}, 11
        buffer_load_dwordx4 v{l16}, s[{sP}:{sP+3}], s{sB} offen lds
        s_lshr_b32 s{sN}, s{sW}, 1
        s_mul_i32 s{sN}, s{sN}, {XRS - 4096}
        s_add_u32 s{sN}, s{sN}, s{sA}
        s_add_u32 m0, s{sN}, {S_WU}
        s_nop 0
        buffer_load_dwordx4 v{l16}, s[{sE}:{sE+3}], s{sA} offen lds
        buffer_load_dwordx4 v{l16}, s[{sE}:{sE+3}], s{sA} offen offset:1024 lds
        """)
    if WPOS == 1: wrest()
    a(f"""
    v_lshrrev_b32 v{t1}, 1, v0
    v_lshlrev_b32 v{t1}, 2, v{t1}
    s_waitcnt vmcnt({(EC[3] if XPOS == 0 else ES[2]) + 4*WPOS}) lgkmcnt(0)
    s_barrier
    """)
    if MODE == "ka": a("s_waitcnt vmcnt(0)")
    stamp("srt", 4); stamp("tag", 2); stamp("ka", 6)
    no = 0 if YM else (M0 + 255) // 256
    a(f"ds_read_b128 {v(D,4)}, v{t16} offset:{S_SRT}\nds_read_b128 {v(D+4,4)}, v{t16} offset:{S_SRT+M0*4}")
    for r in range(no): a(f"ds_read_b32 v{SG+r}, v{t1} offset:{S_SRT+1024*r}")
    edma(3)
    a(f"""
    s_mul_i32 s{sA}, s2, {RCS}
    s_add_u32 s{sB}, s{sA}, 8192
    v_and_b32 v{t2}, 1, v0
    v_lshlrev_b32 v{t2}, 4, v{t2}
    s_waitcnt lgkmcnt({no})
    buffer_store_dwordx4 {v(D,4)}, v{rA}, s[{sWS}:{sWS+3}], s{sA} offen sc1
    buffer_store_dwordx4 {v(D+4,4)}, v{rB}, s[{sWS}:{sWS+3}], s{sB} offen sc1
    """)
    stamp("tag", 3)
    a(f"""
    s_mul_i32 s{sN}, s2, {OTS}
    s_add_u32 s{sN}, s{sN}, {WS_O}
    s_mov_b32 s{sB}, 0
    s_cmp_lg_u32 s{sTAG}, 0
    s_cbranch_scc1 S_TAGD
    S_TAGL:
    s_sleep 8
    global_load_dwordx2 {v(OTG+2,2)}, v{nta}, s[68:69] sc1
    s_add_u32 s{sB}, s{sB}, 1
    s_cmp_gt_u32 s{sB}, {SPIN}
    s_cbranch_scc1 M_END
    s_waitcnt vmcnt(0)
    v_readfirstlane_b32 s{sTAG}, v{OTG+2}
    v_readfirstlane_b32 s{sTAG+1}, v{OTG+3}
    s_nop 0
    s_cmp_eq_u32 s{sTAG}, 0
    s_cbranch_scc1 S_TAGL
    S_TAGD:
    """)
    stamp("tag", 4)
    a(f"""
    v_add_u32 v{OTG}, {(2048-M0)<<16}, v{OTG}
    v_mov_b32 v{OTG+2}, s{sTAG}
    v_mov_b32 v{OTG+3}, s{sTAG+1}
    buffer_store_dwordx4 {v(OTG,4)}, v{t16}, s[{sWS}:{sWS+3}], s{sN} offen sc1
    s_movk_i32 s{sB}, {(M0 - 256*(no-1))*2}
    v_cmp_gt_u32 vcc, s{sB}, v0
    v_mov_b32 v{t4}, v{t16}
    v_and_b32 v{m}, 31, v{lane}
    v_lshrrev_b32 v{h}, 5, v{lane}
    v_cndmask_b32 v{t6}, v{hz}, v{t16}, vcc
    v_lshlrev_b32 v{t0}, 3, v0
    v_add_u32 v{t0}, {L_C8}, v{t0}
    v_mov_b32 v{D+8}, 0
    v_mov_b32 v{D+9}, 0
    ds_write_b64 v{t0}, {v(D+8,2)}
    v_bfe_u32 v{t1}, v{lane}, 2, 2
    v_lshl_add_u32 v{t1}, v{h}, 3, v{t1}
    v_lshlrev_b32 v{t1}, 7, v{t1}
    v_and_b32 v{t3}, 3, v{lane}
    v_lshl_add_u32 v{aN}, v{t3}, 3, v{t1}
    v_and_b32 v{t3}, 16, v{lane}
    v_lshl_add_u32 v{aN}, v{t3}, 1, v{aN}
    v_add_u32 v{t1}, v{t1}, v{t3}
    v_and_b32 v{t3}, 1, v{lane}
    v_lshl_add_u32 v{t1}, v{t3}, 5, v{t1}
    v_and_b32 v{t3}, 2, v{lane}
    v_lshl_add_u32 v{t1}, v{t3}, 2, v{t1}
    s_lshl_b32 s{sA}, s{sSB}, 6
    v_add_u32 v{sa}, s{sA}, v{t1}
    v_bfe_u32 v{sac}, v{m}, 1, 3
    v_xor_b32 v{sac}, v{sac}, v{h}
    v_lshlrev_b32 v{sac}, 4, v{sac}
    v_lshl_or_b32 v{sac}, v{m}, 7, v{sac}
    s_and_b32 s{sA}, s{sW}, 6
    s_lshl_b32 s{sA}, s{sA}, 11
    s_add_u32 s{sA}, s{sA}, {L_XD}
    v_add_u32 v{sac}, s{sA}, v{sac}
    s_waitcnt lgkmcnt(1)
    """)
    for r in range(no):
        a(f"v_lshrrev_b32 v{SG+r}, 21, v{SG+r}\nv_lshl_add_u32 v{SG+r}, v{SG+r}, 5, v{t2}")
    srd_off(a, sEM, 10, WS_EM, 0 if "nomv" in OPT["abl"] else 256 * EMS)
    OG = E + 12
    a(f"""
    s_lshl_b32 s{sOA}, s74, 5
    s_mul_i32 s{sA}, s{sW}, {32*OTS}
    s_add_u32 s{sOA}, s{sOA}, s{sA}
    s_add_u32 s{sOA}, s{sOA}, {WS_O}
    v_lshrrev_b32 v{lh}, 1, v{lane}
    v_mul_u32_u24 v{lh}, {OTS - 32}, v{lh}
    v_add_u32 v{lh}, v{lh}, v{l16}
    s_mov_b32 s74, {f32(-LOG2E)}
    s_mov_b32 s75, {f32(-LOG2E)}
    """)
    XF, W1t, Wx, PD, EO = FX, AG, EP, AG + 16, Q
    def tr(dst, areg, off):
        a(f"ds_read_b64_tr_b16 {v(dst,2)}, v{areg} offset:{S_W+off}\nds_read_b64_tr_b16 {v(dst+2,2)}, v{areg} offset:{S_W+off+512}")
    def w2read():
        for sx in range(4):
            for nh in range(2): tr(AG + (2*sx + nh)*4, aN, 8192 + 2048*sx + 64*nh)
    for sx in range(4):
        a(f"ds_read_b128 {v(XF+4*sx,4)}, v{sac}" + (f"\nv_xor_b32 v{sac}, {(32, 96, 32)[sx]}, v{sac}" if sx < 3 else ""))
        tr(W1t + 4*sx, sa, 2048*sx)
    a("s_waitcnt lgkmcnt(0)")
    for sx in range(4):
        a(f"v_mfma_f32_32x32x16_bf16 {v(PD,16)}, {v(W1t+4*sx,4)}, {v(XF+4*sx,4)}, {'0' if sx == 0 else v(PD,16)}")
    a(f"""
    v_and_b32 v{t0}, 15, v{m}
    v_mul_u32_u24 v{t0}, 144, v{t0}
    v_lshl_add_u32 v{t0}, v{h}, 5, v{t0}
    v_lshrrev_b32 v{t1}, 4, v{m}
    v_mul_u32_u24 v{t1}, {XRS}, v{t1}
    s_mul_i32 s{sA}, s{sSB}, {64 - XRS}
    s_add_u32 s{sA}, s{sA}, s{sGL}
    v_add3_u32 v{t0}, v{t0}, v{t1}, s{sA}
    v_lshrrev_b32 v{t1}, 3, v{lane}
    v_lshl_add_u32 v{t3}, v{t1}, 4, v{l16}
    v_add_u32 v{t3}, s{sGL}, v{t3}
    s_lshl_b32 s{sA}, s{sW}, 11
    s_lshl_b32 s{sB}, s{sNB}, 7
    v_add_u32 v{t1}, s{sA}, v{l16}
    v_add_u32 v{t5}, 1024, v{t1}
    v_cmp_gt_u32 vcc, s{sB}, v{t1}
    v_cmp_gt_u32 s[52:53], s{sB}, v{t5}
    s_mov_b32 s{sCAP}, 512
    s_mov_b32 s{sBASE}, 0
    v_cndmask_b32 v{t1}, v{hz}, v{t1}, vcc
    v_cndmask_b32 v{t5}, v{hz}, v{t5}, s[52:53]
    """)
    for i in range(8): a(f"v_pk_mul_f32 {v(PD+2*i,2)}, {v(PD+2*i,2)}, s[74:75]")
    for i in range(8): a(f"v_cvt_pk_bf16_f32 v{PD+i}, v{PD+2*i}, v{PD+2*i+1}")
    a(f"""
    ds_write_b128 v{t0}, {v(PD,4)}
    ds_write_b128 v{t0}, {v(PD+4,4)} offset:16
    """)
    stamp("tag", 5)
    if WPOS == 0: wrest()
    a(f"""
    s_add_u32 s{sB}, s{sS0}, {WS_P}
    s_waitcnt vmcnt({7 if WPOS == 0 else 3}) lgkmcnt(0)
    s_barrier
    """)
    stamp("srt", 5); stamp("top", 1); stamp("tag", 6)
    a(f"ds_read_b128 {v(D+16,4)}, v{t3}\nds_read_b128 {v(D+20,4)}, v{t3} offset:{8*144}")
    for r in range(no): a(f"ds_read_b128 {v(EO+4*r,4)}, v{SG+r} offset:{S_E}")
    a(f"""
    s_waitcnt lgkmcnt({no})
    buffer_store_dwordx4 {v(D+16,4)}, v{t1}, s[{sWS}:{sWS+3}], s{sB} offen sc1
    buffer_store_dwordx4 {v(D+20,4)}, v{t5}, s[{sWS}:{sWS+3}], s{sB} offen sc1
    """)
    CEM = int(OPT["cem"])
    a(f"s_mul_i32 s{sA}, s2, {EMS}" if CEM else f"s_lshl_b32 s{sA}, s2, 17")
    for r in range(no):
        a(f"s_waitcnt lgkmcnt({no-1-r})\nbuffer_store_dwordx4 {v(EO+4*r,4)}, v{t6 if r == no-1 else t4}, s[{sEM}:{sEM+3}], s{sA} offen {OPT['st']}\ns_add_u32 s{sA}, s{sA}, 8192")
    a(f"""
    s_mov_b32 s92, 1
    s_lshl_b32 s{sN}, s2, {int(OPT["fst"])}
    s_add_u32 s{sN}, s{sN}, {WS_F2}
    """)
    stamp("srt", 6); stamp("syn", 1)
    FST = int(OPT["fst"])
    f2r = E + 9
    OE = int(OPT["oe"]); XE = 0
    oload = f"buffer_load_dwordx4 {v(OG,4)}, v{lh}, s[{sWS}:{sWS+3}], s{sOA} offen sc1"
    if OE == 1: a(oload)
    a("s_setprio 0")
    OTW = int(OPT['otw'])
    def wwork():
        a(f"v_add_u32 v{sa}, {S_WU - S_W}, v{sa}\ns_mul_i32 s{sB}, s{sSB}, {XRS}\nv_add_u32 v{t2}, s{sB}, v{sa}\nv_subrev_u32 v{t3}, s{sB}, v{sa}")
        for nh in range(2): tr(D + 8 + 4*nh, aN, 128*128 + 64*nh)
        for sx in range(4): tr(Wx + 4*sx, sa, XRS*(sx>>1) + 2048*(sx&1))
        a("s_waitcnt lgkmcnt(0)")
        for sx in range(4):
            a(f"v_mfma_f32_32x32x16_bf16 {v(U0,16)}, {v(Wx+4*sx,4)}, {v(XF+4*sx,4)}, {'0' if sx == 0 else v(U0,16)}")
        tr(WU, t2, 2*XRS); tr(WU + 4, t2, 2*XRS + 2048); tr(WU + 8, t3, 3*XRS); tr(WU + 12, t3, 3*XRS + 2048)
        w2read()
        for nh in range(2):
            for i in range(4):
                r = D + 8 + 4*nh + i
                a(f"v_lshlrev_b32 v{t0}, 16, v{r}\nv_and_b32 v{t1}, 0xffff0000, v{r}\nv_pk_mul_f32 {v(t0,2)}, {v(t0,2)}, s[74:75]\nv_cvt_pk_bf16_f32 v{W+8+4*nh+i}, v{t0}, v{t1}")
    def lanec():
        srd_off(a, sP, 10, WS_P, 3200000)
        if int(OPT["smf"]):
            a(f"""
            v_and_b32 v{t1}, 1, v{m}
            v_lshlrev_b32 v{t1}, 4, v{t1}
            v_mov_b32 v{t2}, 0x3f80
            v_lshlrev_b32 v{t1}, v{t1}, v{t2}
            v_lshrrev_b32 v{t0}, 2, v{m}
            v_lshlrev_b32 v{t2}, 2, v{h}
            v_sub_u32 v{t0}, v{t0}, v{t2}
            v_bfe_i32 v{t2}, v{m}, 1, 1
            v_and_b32 v{t2}, 0xaaaa, v{t2}
            v_or_b32 v{W+4}, 0x4444, v{t2}
            """)
            for i in range(4):
                a(f"v_cmp_eq_u32 vcc, {i}, v{t0}\ns_nop 1\nv_cndmask_b32 v{W+i}, 0, v{t1}, vcc")
        else:
            a(f"""
            v_lshlrev_b32 v{t0}, 3, v{h}
            v_sub_u32 v{t0}, v{m}, v{t0}
            v_and_b32 v{t1}, 1, v{t0}
            v_lshlrev_b32 v{t1}, 4, v{t1}
            v_mov_b32 v{t2}, 0x3f80
            v_lshlrev_b32 v{t1}, v{t1}, v{t2}
            v_lshrrev_b32 v{t0}, 1, v{t0}
            """)
            for j in range(2):
                for i in range(4):
                    a(f"v_cmp_eq_u32 vcc, {8*j+i}, v{t0}\ns_nop 1\nv_cndmask_b32 v{W+4*j+i}, 0, v{t1}, vcc")
        a(f"""
        s_mul_i32 s{sSTB}, s{sW}, {SCAP*32}
        s_add_u32 s{sSTB}, s{sSTB}, {L_ST}
        s_mov_b32 s{sREC}, s10
        s_or_b32 s{sREC+1}, s11, {4<<16}
        s_mov_b32 s{sREC+2}, {WS_O//4}
        s_mov_b32 s{sREC+3}, 0x20000
        s_sub_u32 s{sE}, s6, {DFLAG*32}
        s_subb_u32 s{sE+1}, s7, 0
        s_or_b32 s{sE+1}, s{sE+1}, {32<<16}
        s_mov_b32 s{sE+2}, {(DFLAG + 800000) * ne}
        s_mov_b32 s{sE+3}, 0x20000
        s_sub_u32 s{sG}, 11, s{sW}
        s_cmp_lt_u32 s{sW}, 4
        s_cselect_b32 s{sG}, s{sW}, s{sG}
        s_mul_i32 s{sXRB}, s{sG}, {XRS}
        s_add_u32 s{sXRB}, s{sXRB}, {L_XR}
        s_mov_b32 s{sM7}, 0xffffff80
        s_mov_b32 s{sB30}, 0x40000000
        s_mov_b32 s{sDF}, {DFLAG}
        v_lshlrev_b32 v{RP+1}, 4, v{h}
        v_lshlrev_b32 v{RP+3}, 4, v{h}
        v_lshlrev_b32 v{RP+5}, 4, v{h}
        v_lshlrev_b32 v{RP+7}, 4, v{h}
        v_lshrrev_b32 v{t0}, 3, v{lane}
        s_lshl_b32 s{sA}, s{sG}, 7
        v_lshl_add_u32 v{vLS}, v{t0}, 4, s{sA}
        v_lshl_add_u32 v{vLE}, v{m}, 2, s{sA}
        v_and_b32 v{t3}, 1, v{t0}
        v_lshlrev_b32 v{t3}, 4, v{t3}
        v_lshl_add_u32 v{sac}, v{lane}, 5, v{t3}
        v_add_u32 v{sac}, s{sSTB}, v{sac}
        v_and_b32 v{t1}, 4, v{t0}
        v_and_b32 v{t2}, 7, v{lane}
        v_xor_b32 v{t1}, v{t1}, v{t2}
        v_lshlrev_b32 v{CX}, 4, v{t1}
        v_xor_b32 v{CX+1}, 16, v{CX}
        v_xor_b32 v{CX+2}, 32, v{CX}
        v_xor_b32 v{CX+3}, 48, v{CX}
        v_and_b32 v{t0}, 3, v{m}
        v_lshrrev_b32 v{t1}, 2, v{m}
        v_lshl_add_u32 v{t1}, v{t0}, 3, v{t1}
        v_lshlrev_b32 v{t1}, 7, v{t1}
        v_add_u32 v{t1}, s{sXRB}, v{t1}
        v_lshrrev_b32 v{t2}, 4, v{m}
        v_lshl_or_b32 v{t0}, v{t2}, 2, v{t0}
        v_xor_b32 v{t0}, v{t0}, v{h}
        v_lshl_add_u32 v{XA}, v{t0}, 4, v{t1}
        v_xor_b32 v{XA+1}, 32, v{XA}
        v_xor_b32 v{XA+2}, 64, v{XA}
        v_xor_b32 v{XA+3}, 0x60, v{XA}
        """)
    if WPOS: wwork()
    else: lanec()
    if OE == 2: a(oload)
    SP = [int(x) for x in OPT["sp"].split(",")]
    spn = [0]
    def sshot(k):
        for _ in range(SP[k]):
            if spn[0] and spn[0] % 32 == 0: a("s_add_u32 s4, s4, 0x100000\ns_addc_u32 s5, s5, 0")
            a(f"s_load_dword s7, s[4:5], {(spn[0] % 32) * 32768}"); spn[0] += 1
    if sum(SP):
        a(f"""
        s_lshr_b32 s{sA}, s2, 3
        s_lshl_b32 s{sA}, s{sA}, 7
        s_lshl_b32 s{sB}, s{sW}, 12
        s_add_u32 s{sA}, s{sA}, s{sB}
        s_add_u32 s{sA}, s{sA}, {WS_P}
        s_add_u32 s4, s10, s{sA}
        s_addc_u32 s5, s11, 0
        """)
    sshot(0)
    stamp("syn", 2)
    a(f"""
    s_setprio 2
    s_cmp_lg_u32 s{sW}, 0
    s_waitcnt vmcnt(0)
    s_barrier
    s_cbranch_scc1 M_NOPUB
    s_mov_b64 exec, 1
    buffer_store_dwordx2 {v(OTG+2,2)}, v{nta}, s[{sWS}:{sWS+3}], s{sN} offen sc1
    s_mov_b64 exec, -1
    M_NOPUB:
    s_mov_b32 s{sA}, 0
    """)
    stamp("syn", 3)
    a(f"s_nop 7\n{oload}")
    XE = int(OPT["xe"])
    if XE:
        a(f"""
        s_lshr_b32 s{sA}, s2, 3
        s_lshl_b32 s{sA}, s{sA}, 7
        v_lshl_add_u32 v{t0}, v{lane}, 3, s{sW}
        v_cmpx_gt_u32 vcc, {XE}, v{t0}
        v_lshlrev_b32 v{t0}, 12, v{t0}
        buffer_load_dword v{vCr+4}, v{t0}, s[{sP}:{sP+3}], s{sA} offen sc1
        s_mov_b64 exec, -1
        """)
    if WPOS: lanec()
    else: wwork()
    a(f"s_mov_b32 s{sA}, 0\ns_waitcnt vmcnt({1 if XE else 0})")
    kk12, c0, c1, g0, g1, p0, p1, tt, qa, f2r, fl0 = [E + i for i in range(11)]
    G, RC, NA, RK = D, D + 8, D + 16, D + 24
    TBv = FX
    OFv, CA = EP, EP + 8
    a(f"""
    s_branch M_POLLC
    M_BATCH:
    v_lshrrev_b32 v{lh}, 1, v{lane}
    v_mul_u32_u24 v{lh}, {OTS - 32}, v{lh}
    v_add_u32 v{lh}, v{lh}, v{l16}
    s_mov_b32 s{sA}, 0
    M_POLL:
    s_sleep {OPT["osl"]}
    buffer_load_dwordx4 {v(OG,4)}, v{lh}, s[{sWS}:{sWS+3}], s{sOA} offen sc1
    s_add_u32 s{sA}, s{sA}, 1
    s_cmp_gt_u32 s{sA}, {SPIN}
    s_cbranch_scc1 M_END
    s_waitcnt vmcnt(0)
    M_POLLC:
    v_cmpx_ne_u64 vcc, s[{sTAG}:{sTAG+1}], {v(OG+2,2)}
    s_cbranch_execnz M_POLL
    s_mov_b64 exec, -1
    s_lshl_b32 s{sA}, s{sW}, 5
    v_lshrrev_b32 v{lh}, 1, v{lane}
    v_add_lshl_u32 v{kk12}, v{lh}, s{sA}, 12
    v_lshl_or_b32 v{kk12}, v{lane}, 31, v{kk12}
    v_lshl_add_u32 v{qa}, v{lane}, 2, s{sGL}
    v_mov_b32 v{t1}, 0xffff
    s_lshl_b32 s4, s{sW}, {FST+5}
    s_add_u32 s4, s4, {WS_F2}
    v_lshlrev_b32 v{vCr}, {FST}, v{m}
    """)
    FV = vCr + 1
    fl_ = f"buffer_load_dwordx2 {v(FV,2)}, v{vCr}, s[{sWS}:{sWS+3}], s4 offen sc1"
    stamp("pro", 1); stamp("syn", 4)
    a(f"v_and_b32 v{p0}, v{t1}, v{OG+1}\nv_lshrrev_b32 v{p1}, 16, v{OG+1}")
    fl = [f"v_and_or_b32 v{g0}, v{OG}, v{t1}, v{kk12}", f"v_lshrrev_b32 v{g1}, 16, v{OG}", f"v_or_b32 v{g1}, v{g1}, v{kk12}",
          f"v_and_b32 v{c0}, v{t1}, v{OG+1}", f"v_lshrrev_b32 v{c1}, 16, v{OG+1}", "s_nop 0"]
    for n, stp in enumerate(steps):
        a(f"{fl[n]}\nv_add_u32_dpp v{p0}, v{p0}, v{p0} {stp}\nv_add_u32_dpp v{p1}, v{p1}, v{p1} {stp}")
    a(f"""
    v_readlane_b32 s{sNS}, v{p0}, 63
    v_readlane_b32 s{sN}, v{p1}, 63
    v_sub_u32 v{p0}, v{p0}, v{c0}
    v_sub_u32 v{p1}, v{p1}, v{c1}
    s_add_u32 s{sN}, s{sN}, s{sNS}
    v_add_u32 v{p1}, s{sNS}, v{p1}
    s_mov_b32 s{sCNT}, s{sN}
    s_add_u32 s{sA}, s{sN}, s{sBASE}
    s_cmp_le_u32 s{sA}, s{sCAP}
    s_cbranch_scc0 M_WIN
    s_cmp_eq_u32 s{sBASE}, 0
    s_cbranch_scc1 M_NOWIN
    M_WIN:
    s_sub_i32 s{sCNT}, s{sN}, s{sBASE}
    s_max_i32 s{sCNT}, s{sCNT}, 0
    s_min_u32 s{sCNT}, s{sCNT}, s{sCAP}
    s_sub_i32 s{sNS}, s{sNS}, s{sBASE}
    s_max_i32 s{sNS}, s{sNS}, 0
    """)
    for (pp, cc, gg) in ((p0, c0, g0), (p1, c1, g1)):
        a(f"""
        v_subrev_u32 v{tt}, s{sBASE}, v{pp}
        v_max_i32 v{pp}, 0, v{tt}
        v_add_u32 v{cc}, v{tt}, v{cc}
        v_min_i32 v{cc}, s{sCAP}, v{cc}
        v_sub_u32 v{cc}, v{cc}, v{pp}
        v_sub_u32 v{tt}, v{pp}, v{tt}
        v_add_u32 v{gg}, v{gg}, v{tt}
        """)
    a(f"M_NOWIN:\ns_min_u32 s{sNS}, s{sNS}, {0 if YM else SCAP}")
    pa, ca_, ga, gb = t0, t1, t2, t3
    for n, (pp, cc, gg) in enumerate(((p0, c0, g0), (p1, c1, g1))):
        a(f"""
        v_lshl_add_u32 v{pp}, v{pp}, 2, s{sGL}
        v_add_u32 v{ga}, 1, v{gg}
        v_add_u32 v{gb}, 2, v{gg}
        v_mov_b32 v{ca_}, v{cc}
        v_mov_b32 v{pa}, v{pp}
        M_EXP{n}:
        """)
        for r in (1, 3, 5, 7):
            a(f"v_cmpx_lt_i32 vcc, {r}, v{ca_}\nds_write2_b32 v{pa}, v{ga}, v{gb} offset0:{r} offset1:{r+1}\nv_add_u32 v{ga}, 2, v{ga}\nv_add_u32 v{gb}, 2, v{gb}")
        a(f"""
        v_cmpx_lt_i32 vcc, 9, v{ca_}
        v_add_u32 v{pa}, 32, v{pa}
        v_subrev_u32 v{ca_}, 8, v{ca_}
        s_cbranch_execnz M_EXP{n}
        s_mov_b64 exec, -1
        """)
    a(f"""
    v_cmpx_lt_i32 vcc, 0, v{c0}
    ds_write_b32 v{p0}, v{g0}
    s_mov_b64 exec, -1
    v_cmpx_lt_i32 vcc, 0, v{c1}
    ds_write_b32 v{p1}, v{g1}
    s_mov_b64 exec, -1
    """)
    a(fl_)
    for i in ORD:
        a(f"ds_read_b32 v{G+i}, v{qa} offset:{256*i}")
    a(f"v_lshl_add_u32 v{t1}, v{lh}, 2, s{sGL}")
    for j in range(NSP):
        a(f"ds_read_b32 v{SG+j}, v{t1} offset:{128*j}")
    for i in ORD:
        a(f"s_sub_i32 s{sA}, s{sCNT}, {64*i}\nv_cmp_gt_i32 {mk(i)}, s{sA}, v{lane}")
    a(f"s_waitcnt lgkmcnt({NSP})")
    for i in ORD: a(f"v_lshlrev_b32 v{RC+i}, 2, v{G+i}")
    stamp("pro", 2); stamp("syn", 5)
    a(f"""
    s_mov_b32 s{sA}, 0
    s_branch M_FL1
    M_FL:
    s_sleep {OPT["osl"]}
    {fl_}
    s_add_u32 s{sA}, s{sA}, 1
    s_cmp_gt_u32 s{sA}, {SPIN}
    s_cbranch_scc1 M_END
    M_FL1:
    s_waitcnt vmcnt(0)
    v_cmpx_ne_u64 vcc, s[{sTAG}:{sTAG+1}], {v(FV,2)}
    s_cbranch_execnz M_FL
    M_READY:
    """)
    stamp("top", 2); stamp("syn", 6); stamp("lb", 1)
    skip("M_GA")
    for i in ORD:
        a(f"s_mov_b64 exec, {mk(i)}\nbuffer_load_dword v{RC+i}, v{RC+i}, s[{sWS}:{sWS+3}], 0 offen {LD}")
        after("M_GA", i)
    a("s_mov_b64 exec, -1")
    if OTW == 1:
        a("s_cmp_eq_u32 s92, 0\ns_cbranch_scc1 M_NOW\ns_setprio 0")
        wwork()
        a("s_setprio 2\nM_NOW:")
    a(f"""
    v_lshrrev_b32 v{t2}, 4, v{lane}
    v_xor_b32 v{t2}, v{t2}, v{lane}
    v_and_b32 v{t2}, 1, v{t2}
    v_lshlrev_b32 v{t2}, 4, v{t2}
    v_mov_b32 v{fl0}, s{sCNT}
    v_mov_b32 v{fl0+1}, s{sN}
    s_waitcnt lgkmcnt(0)
    """)
    if CEM: a(f"s_mov_b32 s{sA}, {EMS//32-4096}")
    for j in range(NSP):
        if CEM: a(f"v_bfe_u32 v{t3}, v{SG+j}, 12, 8\nv_mad_i32_i24 v{SG+j}, v{t3}, s{sA}, v{SG+j}")
        a(f"v_lshl_add_u32 v{SG+j}, v{SG+j}, 5, v{t2}")
    stamp("lb", 2)
    if int(OPT["barA"]): a("s_barrier")
    stamp("lb", 3)
    def stage(js):
        for j in ([] if YM else js):
            a(f"""
            s_sub_i32 s{sA}, s{sNS}, {32*j}
            s_add_u32 m0, s{sSTB}, {1024*j}
            v_cmpx_gt_i32 vcc, s{sA}, v{lh}
            buffer_load_dwordx4 v{SG+j}, s[{sEM}:{sEM+3}], 0 offen {LD} lds
            """)
        a("s_mov_b64 exec, -1")
    NS1 = int(OPT["ns1"]); NS2 = int(OPT["ns2"])
    stage(range(NS1))
    XW = int(OPT["xw"])
    def pwarm():
        if XW:
            a(f"""
            s_lshr_b32 s{sA}, s2, 3
            s_mul_i32 s{sA}, s{sA}, {XW*128}
            s_add_u32 s{sA}, s{sA}, {XE*4096}
            v_lshl_add_u32 v{tt}, v{lane}, 3, s{sW}
            v_cmpx_gt_u32 vcc, {XW}, v{tt}
            v_lshlrev_b32 v{tt}, 7, v{tt}
            buffer_load_dword v{vCr+4}, v{tt}, s[{sP}:{sP+3}], s{sA} offen sc1
            s_mov_b64 exec, -1
            """)
    a(f"s_movk_i32 s{sB}, {CH}\nv_mov_b32 v{t0}, s{sDF}\nv_mov_b32 v{t2}, s{sSO}")
    skip("M_DW")
    for i in ORD:
        a(f"""
        v_lshrrev_b32 v{NA+i}, 31, v{G+i}
        v_mad_u32_u24 v{NA+i}, v{NA+i}, 49, v{t2}
        """)
        after("M_DW", i)
    a(f"""
    s_mov_b32 s75, {L_C8}
    s_mov_b64 exec, 1
    ds_add_u32 v{nta}, v{fl0} offset:{L_NT}
    ds_max_u32 v{nta}, v{fl0+1} offset:{L_MX}
    """)
    stamp("lb", 4)
    skip("M_RK")
    for i in ORD:
        a(f"""
        s_mov_b64 exec, {mk(i)}
        s_waitcnt vmcnt({i+NS1})
        v_and_b32 v{CA+i}, 63, v{RC+i}
        v_bfe_u32 v{tt}, v{RC+i}, 18, 3
        v_add_u32 v{NA+i}, v{CA+i}, v{NA+i}
        v_lshl_add_u32 v{CA+i}, v{NA+i}, 2, s75
        v_lshl_add_u32 v{CA+i}, v{tt}, 9, v{CA+i}
        ds_add_rtn_u32 v{RK+i}, v{CA+i}, v{one}
        """)
        after("M_RK", i)
    def pack(lab):
        a(f"s_movk_i32 s{sB}, {CH}\ns_mov_b32 s74, {int(OPT['epf'])*128}")
        skip(lab)
        for i in ORD:
            a(f"""
            v_bfe_u32 v{t0}, v{G+i}, 12, 8
            v_lshrrev_b32 v{tt}, 21, v{RC+i}
            v_bfe_i32 v{t1}, v{G+i}, 11, 1
            v_mad_u32_u24 v{tt}, v{t0}, s{sB}, v{tt}
            v_and_b32 v{t1}, {M0}, v{t1}
            v_bfe_u32 v{RC+i}, v{RC+i}, 6, 15
            v_add3_u32 v{G+i}, v{t1}, v{tt}, s{sDF}
            v_lshl_add_u32 v{RC+i}, v{RC+i}, 7, v{NA+i}
            v_lshlrev_b32 v{NA+i}, 3, v{NA+i}
            """)
            if 64 * i < SCAP and not YM:
                a(f"""
                s_sub_i32 s{sA}, s{sNS}, {64*i}
                v_cmp_gt_i32 vcc, s{sA}, v{lane}
                v_add_u32 v{tt}, {2048*i}, v{sac}
                s_nop 0
                v_cndmask_b32 v{G+i}, v{G+i}, v{tt}, vcc
                """)
            after(lab, i)
    EPOS = int(OPT["epos"]); NEP = 0
    def eprefetch():
        if not int(OPT["epf"]): return
        for i in (6, 5, 4, 3, 2):
            a(f"s_mov_b64 exec, {mk(i)}\nv_cmpx_gt_u32 vcc, s74, v{RC+i}" + ("" if 64 * i >= SCAP else f"\nv_cmpx_le_u32 vcc, s{sDF}, v{G+i}") + f"\nbuffer_load_dword v{vCr+4}, v{G+i}, s[{sE}:{sE+3}], 0 idxen")
        a("s_mov_b64 exec, -1")
    if int(OPT["epf"]): NEP = 5
    a("s_mov_b64 exec, -1")
    stamp("pro", 3); stamp("lb", 5)
    a(f"""
    s_cmp_eq_u32 s{sW}, 0
    s_cbranch_scc1 M_PK0
    s_lshl_b32 s{sA}, s{sW}, 8
    s_add_u32 s{sA}, s{sA}, {L_C8 - 256}
    v_lshl_add_u32 v{S4}, v{lane}, 2, s{sA}
    v_mov_b32 v{Q+8}, 0
    s_waitcnt lgkmcnt(0)
    s_barrier
    """)
    stamp("pro", 4); stamp("lb", 6)
    a(f"s_cmp_gt_u32 s{sW}, 2\ns_cbranch_scc1 M_NOPFX")
    for j in range(3): a(f"ds_read2st64_b32 {v(Q+2*j,2)}, v{S4} offset0:{4*j} offset1:{4*j+2}")
    a(f"s_waitcnt lgkmcnt(0)\nv_mov_b32 v{Q+9}, v{Q}")
    for j in range(1, 6): a(f"v_add_u32 v{Q+9+j}, v{Q+8+j}, v{Q+j}")
    for j in range(4): a(f"ds_write2st64_b32 v{S4}, v{Q+8+2*j}, v{Q+9+2*j} offset0:{C8O//256+4*j} offset1:{C8O//256+4*j+2}")
    a(f"M_NOPFX:\ns_setprio 0\ns_cmp_lt_u32 s{sW}, 4\ns_cbranch_scc1 M_NOFILL")
    for i in range(4): a(f"v_mov_b32 v{t4+i}, {DUMMY}")
    a(f"v_lshlrev_b32 v{t0}, 4, v0\nv_lshlrev_b32 v{t1}, 3, v0")
    assert 2 * LSZ == 8 * 4096 + 2048 and L_LS == 2048
    for i in range(8): a(f"ds_write_b128 v{t0}, {v(t4,4)} offset:{4096*i}")
    a(f"ds_write_b64 v{t1}, {v(t4,2)}\nM_NOFILL:")
    pack("M_PB"); stage(range(NS1, NSP))
    if EPOS == 0: eprefetch()
    a("s_waitcnt lgkmcnt(0)\ns_barrier\ns_branch M_P4E")
    d0, d1, f0, f1, k0, k1, vL, vR, ks, a4, l0, l1, o0, o1, cn, ci = [Q + i for i in range(16)]
    m0_, B0, m1_, B1 = S4, S4+1, S4+2, S4+3
    a(f"""
    M_PK0:
    s_setprio 3
    v_lshlrev_b32 v{a4}, 3, v{lane}
    v_lshlrev_b32 v{cn}, 2, v{lane}
    v_add_u32 v{cn}, {L_C8}, v{cn}
    v_sub_u32 v{ci}, 31, v{m}
    v_lshlrev_b32 v{ci}, 2, v{ci}
    s_mov_b32 s75, {f32(4194304.0)}
    s_waitcnt lgkmcnt(0)
    s_barrier
    """)
    stamp("pro", 4); stamp("lb", 6)
    a(f"ds_read_b32 v{ks}, v{nta} offset:{L_NT}")
    for j in range(7): a(f"ds_read2st64_b32 {v(FX+2*j,2)}, v{cn} offset0:{2*j} offset1:{2*j+1}")
    a(f"""
    s_waitcnt lgkmcnt(4)
    v_readfirstlane_b32 s{sL}, v{ks}
    v_add3_u32 v{d0}, v{FX}, v{FX+2}, v{FX+4}
    v_add3_u32 v{d1}, v{FX+1}, v{FX+3}, v{FX+5}
    s_lshr_b32 s{sL}, s{sL}, 8
    s_add_u32 s{sL}, s{sL}, 1
    s_waitcnt lgkmcnt(0)
    v_add3_u32 v{d0}, v{d0}, v{FX+6}, v{FX+8}
    v_add3_u32 v{d1}, v{d1}, v{FX+7}, v{FX+9}
    v_add3_u32 v{d0}, v{d0}, v{FX+10}, v{FX+12}
    v_add3_u32 v{d1}, v{d1}, v{FX+11}, v{FX+13}
    v_cvt_f32_u32 v{f0}, v{d0}
    v_cvt_f32_u32 v{f1}, v{d1}
    v_add_f32 v{f0}, -0.5, v{f0}
    v_add_f32 v{f1}, -0.5, v{f1}
    M_LS:
    s_add_u32 s{sL}, s{sL}, 2
    s_cmp_gt_u32 s{sL}, {LMAX}
    s_cbranch_scc1 M_P4W
    """)
    Lf, Rc, Ka = FX, FX + 3, FX + 6
    a(f"""
    v_cvt_f32_u32 v{Lf+1}, s{sL}
    v_add_f32 v{Lf}, -1.0, v{Lf+1}
    v_add_f32 v{Lf+2}, 1.0, v{Lf+1}
    v_rcp_f32 v{Rc}, v{Lf}
    v_rcp_f32 v{Rc+1}, v{Lf+1}
    v_rcp_f32 v{Rc+2}, v{Lf+2}
    """)
    for j in range(3): a(f"v_fma_f32 v{Ka+2*j}, v{f0}, v{Rc+j}, 1.0\nv_fma_f32 v{Ka+2*j+1}, v{f1}, v{Rc+j}, 1.0")
    for j in range(6): a(f"v_cvt_u32_f32 v{Ka+j}, v{Ka+j}")
    a(f"""
    v_lshl_or_b32 v{k0}, v{Ka+2}, 10, v{Ka}
    v_lshl_or_b32 v{k1}, v{Ka+3}, 10, v{Ka+1}
    v_lshl_or_b32 v{k0}, v{Ka+4}, 20, v{k0}
    v_lshl_or_b32 v{k1}, v{Ka+5}, 20, v{k1}
    v_add_u32 v{ks}, v{k0}, v{k1}
    """)
    wave_scan(a, ks)
    a(f"""
    v_sub_u32 v{vL}, v{ks}, v{k1}
    v_readlane_b32 s{sA}, v{ks}, 63
    s_mov_b32 s{sB}, 0
    s_bfe_u32 s52, s{sA}, 0xa000a
    s_cmp_le_u32 s52, 256
    s_cbranch_scc1 M_LOK
    s_lshr_b32 s52, s{sA}, 20
    s_cmp_gt_u32 s52, 256
    s_cbranch_scc1 M_LS
    s_mov_b32 s{sB}, 10
    s_add_u32 s{sL}, s{sL}, 1
    s_cmp_gt_u32 s{sL}, {LMAX}
    s_cbranch_scc1 M_P4W
    M_LOK:
    s_sub_u32 s52, 256, s52
    s_add_u32 s53, s{sB}, 10
    v_bfe_u32 v{l0}, v{vL}, s{sB}, 10
    v_bfe_u32 v{l1}, v{ks}, s{sB}, 10
    v_bfe_u32 v{vL}, v{vL}, s53, 10
    v_bfe_u32 v{vR}, v{ks}, s53, 10
    v_sub_u32 v{l0}, v{l0}, v{vL}
    v_sub_u32 v{l1}, v{l1}, v{vR}
    v_mov_b32 v{vL}, s53
    v_mov_b32 v{vR}, s{sB}
    v_cmp_ge_u32 vcc, s52, v{l0}
    v_cmp_ge_u32 s[52:53], s52, v{l1}
    s_nop 0
    v_cndmask_b32 v{l0}, v{vL}, v{vR}, vcc
    v_cndmask_b32 v{l1}, v{vL}, v{vR}, s[52:53]
    v_bfe_u32 v{k0}, v{k0}, v{l0}, 10
    v_bfe_u32 v{k1}, v{k1}, v{l1}, 10
    v_cvt_f32_u32 v{l0}, v{k0}
    v_cvt_f32_u32 v{l1}, v{k1}
    v_rcp_f32 v{m0_}, v{l0}
    v_rcp_f32 v{m1_}, v{l1}
    s_nop 0
    v_fma_f32 v{l0}, v{f0}, v{m0_}, 1.0
    v_fma_f32 v{l1}, v{f1}, v{m1_}, 1.0
    v_cvt_u32_f32 v{l0}, v{l0}
    v_cvt_u32_f32 v{l1}, v{l1}
    v_lshlrev_b32 v{l0}, 2, v{l0}
    v_lshlrev_b32 v{l1}, 2, v{l1}
    ds_add_rtn_u32 v{o0}, v{l0}, v{k0} offset:{L_CNT}
    ds_add_rtn_u32 v{o1}, v{l1}, v{k1} offset:{L_CNT}
    ds_read_b32 v{cn}, v{ci} offset:{L_CNT}
    v_mul_f32 v{m0_}, s75, v{m0_}
    v_mul_f32 v{m1_}, s75, v{m1_}
    v_cvt_u32_f32 v{m0_}, v{m0_}
    v_cvt_u32_f32 v{m1_}, v{m1_}
    v_add_u32 v{m0_}, 2, v{m0_}
    v_add_u32 v{m1_}, 2, v{m1_}
    v_lshlrev_b32 v{B0}, 2, v{k0}
    v_lshlrev_b32 v{B1}, 2, v{k1}
    v_sub_u32 v{B0}, 1024, v{B0}
    v_sub_u32 v{B1}, 1024, v{B1}
    v_sub_u32 v{l0}, 124, v{l0}
    v_sub_u32 v{l1}, 124, v{l1}
    s_waitcnt lgkmcnt(0)
    v_mov_b32 v{ks}, v{cn}
    """)
    for stp in steps[:5]:
        a(f"s_nop 1\nv_add_u32_dpp v{ks}, v{ks}, v{ks} {stp}")
    a(f"""
    v_sub_u32 v{ks}, v{ks}, v{cn}
    ds_bpermute_b32 v{d0}, v{l0}, v{ks}
    ds_bpermute_b32 v{d1}, v{l1}, v{ks}
    ds_write_b32 v{ci}, v{ks} offset:{L_BAS}
    s_waitcnt lgkmcnt(1)
    v_add_u32 v{o0}, v{o0}, v{d0}
    v_add_u32 v{o1}, v{o1}, v{d1}
    v_lshl_or_b32 v{m0_}, v{o0}, 24, v{m0_}
    v_lshl_or_b32 v{m1_}, v{o1}, 24, v{m1_}
    ds_write2st64_b64 v{a4}, {v(m0_,2)}, {v(m1_,2)} offset0:0 offset1:1
    M_P4W:
    v_mov_b32 v{ks}, s{sL}
    ds_write_b32 v{nta}, v{ks} offset:{L_MX+4}
    s_waitcnt lgkmcnt(0)
    s_barrier
    """)
    stage(range(NS1, NSP)); pack("M_PA")
    if EPOS == 0: eprefetch()
    u0, nn = Q + 20, Q + 26
    a("M_P4E:")
    stamp("pro", 5)
    a(f"""
    ds_read_b64 {v(u0,2)}, v{nta} offset:{L_MX}
    v_lshlrev_b32 v{tt}, 2, v{m}
    ds_read_b32 v{u0+2}, v{tt} offset:{L_CNT}
    ds_read_b32 v{u0+3}, v{tt} offset:{L_BAS}
    s_lshr_b32 s{sA}, s{sW}, 1
    s_lshl_b32 s{sA}, s{sA}, 5
    v_add_u32 v{nn}, s{sA}, v{m}
    v_lshlrev_b32 v{tt}, 3, v{nn}
    ds_read_b64 {v(u0+4,2)}, v{tt} offset:{L_TB}
    """)
    skip("M_TR")
    for i in ORD:
        a(f"s_mov_b64 exec, {mk(i)}\nds_read_b64 {v(TBv+2*i,2)}, v{NA+i} offset:{L_TB}\nds_read_b32 v{OFv+i}, v{CA+i} offset:{C8O}")
        after("M_TR", i)
    a(f"""
    s_mov_b64 exec, -1
    """)
    if EPOS == 1: eprefetch()
    a(f"""
    s_lshl_b32 s{sA}, s{sG}, 5
    s_waitcnt lgkmcnt(12)
    v_readfirstlane_b32 s{sNMAX}, v{u0}
    v_readfirstlane_b32 s{sL}, v{u0+1}
    v_add_u32 v{u0+2}, v{u0+2}, v{u0+3}
    v_cmp_ge_u32 vcc, s{sA}, v{u0+3}
    v_cmp_lt_u32 s[52:53], s{sA}, v{u0+2}
    s_and_b64 s[52:53], s[52:53], vcc
    s_ff1_i32_b32 s{sT}, s52
    s_max_i32 s{sT}, s{sT}, 0
    s_cmp_le_u32 s{sL}, {LMAX}
    s_cbranch_scc1 M_P5
    s_mov_b32 s{sCAP}, 256
    s_branch M_AGAIN
    M_P5:
    """)
    skip("M_SC")
    for i in ORD:
        mm, BB = TBv + 2*i, TBv + 2*i + 1
        a(f"""
        s_mov_b64 exec, {mk(i)}
        s_waitcnt lgkmcnt({2*i + max(0, 5-i)})
        v_add_u32 v{RK+i}, v{RK+i}, v{OFv+i}
        v_lshrrev_b32 v{tt}, 24, v{mm}
        v_mul_u32_u24 v{mm}, v{mm}, v{RK+i}
        v_add_lshl_u32 v{tt}, v{tt}, v{RK+i}, 2
        v_lshrrev_b32 v{mm}, 22, v{mm}
        v_mad_u32_u24 v{tt}, v{mm}, v{BB}, v{tt}
        ds_write2st64_b32 v{tt}, v{RC+i}, v{G+i} offset0:{L_LS//256} offset1:{L_LE//256}
        """)
        after("M_SC", i)
    ca0, ca1, ca2, ca3, kk, oa, fa, da = [EP + i for i in range(8)]
    epi_setup = f"""
    s_lshl_b32 s{sA}, s{sSB}, 7
    s_add_u32 s{sA}, s{sA}, {L_XR}
    s_movk_i32 s{sB}, 0x3fc
    s_movk_i32 s75, 0x3f8
    v_mov_b32 v{kk}, v{u0+5}
    v_lshrrev_b32 v{ca0}, 24, v{u0+4}
    v_mul_u32_u24 v{ca0}, 272, v{ca0}
    v_lshl_add_u32 v{ca0}, v{h16}, 1, v{ca0}
    v_add_u32 v{ca0}, s{sA}, v{ca0}
    v_mov_b32 v{da}, {L_ZR}
    v_cmp_gt_u32 s[56:57], s{sB}, v{kk}
    v_cmp_gt_u32 s[58:59], s75, v{kk}
    v_add_u32 v{ca1}, 272, v{ca0}
    v_add_u32 v{ca2}, 544, v{ca0}
    v_add_u32 v{ca3}, 816, v{ca0}
    v_cmp_gt_u32 vcc, 0x400, v{kk}
    v_cndmask_b32 v{ca1}, v{da}, v{ca1}, s[56:57]
    v_cndmask_b32 v{ca2}, v{da}, v{ca2}, s[58:59]
    v_cndmask_b32 v{ca0}, v{da}, v{ca0}, vcc
    v_cmp_gt_u32 vcc, s{sNB}, v{nn}
    v_lshlrev_b32 v{oa}, 7, v{nn}
    v_lshl_add_u32 v{oa}, v{h16}, 1, v{oa}
    s_lshl_b32 s{sA}, s{sW}, 11
    v_cndmask_b32 v{oa}, v{hz}, v{oa}, vcc
    v_add_u32 v{fa}, s{sA}, v{l16}
    v_mul_u32_u24 v{da}, 272, v{m}
    v_add3_u32 v{da}, v{da}, v{h16}, s{sXRB}
    """
    a(f"""
    s_mov_b64 exec, -1
    s_setprio 0
    """)
    if EPOS == 2: eprefetch()
    a(f"s_waitcnt vmcnt({NEP}) lgkmcnt(0)\ns_barrier")
    stamp("top", 3); stamp("pro", 6); stamp("pri", 1)
    a(f"s_cmp_lg_u32 s{sT}, 0\ns_cbranch_scc1 M_GO")
    a(epi_setup)
    a("s_branch M_BEND\nM_GO:")
    S = []
    ef = OPT["eflags"]
    def le_read(t, p): return (f"ds_read_b32 v{RP+2*p}, v{vLE} offset:{L_LE+1024*t}", f"le{t}")
    def ls_read(t, dst): return (f"ds_read_b128 {v(dst,4)}, v{vLS} offset:{L_LS+1024*t}", f"ls{t}")
    def st_addr(p): return f"v_xor_b32 v{sa}, v{RP+2*p}, v{h16}"
    def st_read(t): return (f"ds_read_b128 {Es(t)}, v{sa}", f"st{t}")
    def d_pre(t, p): return [f"v_cmp_le_u32 vcc, s{sDF}, v{RP+2*p}", f"v_and_or_b32 v{vCr+t%5}, v{RP+2*p}, s{sB30}, 1.0"]
    def d_load(t, p): return ["s_mov_b64 exec, vcc", (f"buffer_load_dwordx4 {Es(t)}, {v(RP+2*p,2)}, s[{sE}:{sE+3}], 0 idxen offen {ef}", f"D{t}"), "s_mov_b64 exec, -1"]
    def x_addr(src): return [f"v_and_or_b32 v{S4+i}, v{src+i}, s{sM7}, v{CX+i}" for i in range(4)]
    def x_dma(t, nop=True, reg=None, soff="0", tag=None):
        o = []
        for i in range(4):
            sr = sP
            o += [f"s_add_u32 m0, s{sXRB}, {i*1024}"] + (["s_nop 0"] if nop else []) + \
                 [(f"buffer_load_dwordx4 v{(reg or S4)+i}, s[{sr}:{sr+3}], {soff} offen {LD} lds", tag or f"X{t}")]
        return o
    def fx_read(t, sx, tag=None): return (f"ds_read_b128 {v(FX+4*sx,4)}, v{XA+sx}", tag or f"fx{t}")
    def chain(nh, t):
        Dh = v(D + 16 * nh, 16)
        return [f"v_mfma_f32_32x32x16_bf16 {Dh}, {W3f(nh)}, {Es(t)}, {v(Q+16*nh,16)}"] + \
               ([f"v_smfmac_f32_32x32x32_bf16 {Dh}, {Idf(0)}, {v(FX+8*nh,8)}, v{W+4}"] if int(OPT["smf"]) else
                [f"v_mfma_f32_32x32x16_bf16 {Dh}, {Idf(j)}, {v(FX+8*nh+4*j,4)}, {Dh}" for j in range(2)])
    nd, L1, L2 = D, D + 4, SG
    def ps(i): return [f"s_memrealtime s[{76+2*i}:{77+2*i}]", "s_waitcnt lgkmcnt(0)"] if MODE == "pri" else []
    S += [ls_read(0, S4), (f"ds_read_b32 v{nd}, v{vLE} offset:{L_LS}", "nd")] + [le_read(j, j) for j in range(4)] + [ls_read(1, L1), ls_read(2, L2), ("@W", None, "nd")]
    S += x_addr(S4)
    xa_ = [f"v_and_b32 v{nd+1}, 127, v{nd}", f"v_lshlrev_b32 v{nd+1}, 7, v{nd+1}", f"v_bfe_u32 v{nd+2}, v{nd}, 1, 3", f"v_xor_b32 v{nd+2}, v{nd+2}, v{h}"]
    dm = x_dma(0, nop=False)
    for i in range(4): S += [dm[2*i], xa_[i], dm[2*i+1]]
    S += [f"v_lshl_add_u32 v{nd+1}, v{nd+2}, 4, v{nd+1}", f"v_add_u32 v{nd+1}, {L_XD}, v{nd+1}"]
    for sx in range(4):
        S += [(f"ds_read_b128 {v(FX+4*sx,4)}, v{nd+1}", "xd")] + ([f"v_xor_b32 v{nd+1}, {(32, 96, 32)[sx]}, v{nd+1}"] if sx < 3 else [])
    S += [("@W", None, "ls2")] + d_pre(0, 0) + ["s_not_b64 s[60:61], vcc"] + d_load(0, 0) + ps(2)
    S += [st_addr(0), "s_mov_b64 exec, s[60:61]", st_read(0), "s_mov_b64 exec, -1"]
    for j in range(1, 4): S += [st_addr(j), st_read(j)]
    ep = [l.strip() for l in epi_setup.strip().split("\n")]
    S += [f"v_mov_b32 v{SG+4}, v{u0+4}", f"v_mov_b32 v{SG+5}, v{u0+5}", f"v_mov_b32 v{SG+6}, v{nn}", ("@W", None, "xd")]
    ep = [l.replace(f"v{u0+4}", f"v{SG+4}").replace(f"v{u0+5}", f"v{SG+5}").replace(f"v{nn}", f"v{SG+6}") for l in ep] + x_addr(L1)
    k_ = 0
    for nh in range(2):
        for sx in range(4):
            S.append(f"v_mfma_f32_32x32x16_bf16 {v(Q+16*nh,16)}, {v(AG+(sx*2+nh)*4,4)}, {v(FX+4*sx,4)}, {'0' if sx == 0 else v(Q+16*nh,16)}")
            S += ep[k_:k_+4]; k_ += 4
    S += ep[k_:] + ps(3) + ps(4)
    S += [f"s_mov_b32 s74, {f32(-LOG2E)}", f"s_mov_b32 s75, {f32(-LOG2E)}"]
    S += [("@W", "D0", None)] + ps(5) + [fx_read(0, sx) for sx in range(4)]
    S += [f"v_pk_mul_f32 {v(Q+2*i,2)}, {v(Q+2*i,2)}, s[74:75]" for i in range(16)] + [("@W", None, "fx0")]
    c00 = chain(0, 0)
    S += [c00[0], "s_nop 7", "s_nop 7"] + c00[1:] + d_pre(1, 1) + d_load(1, 1) + x_dma(1) + [f"v_and_or_b32 v{L2+i}, v{L2+i}, s{sM7}, v{CX+i}" for i in range(4)] + ps(6)
    if MODE: S += [f"s_mov_b32 s90, s{sT}", f"s_mov_b32 s98, s{sL}", "s_memtime s[94:95]", "s_waitcnt lgkmcnt(0)"]
    if MODE == "top": S += ["s_memrealtime s[84:85]", "s_waitcnt lgkmcnt(0)"]
    def phase(nh, t, mf, fill):
        Db, Ab = D + 16*nh, AG + 16*nh
        c = vCr + t % 5
        cp = f"{v(c & ~1, 2)} " + ("op_sel_hi:[1,0]" if c % 2 == 0 else "op_sel:[0,1] op_sel_hi:[1,1]")
        seq = []
        mf = mf + [None] * (3 - len(mf))
        for q in range(2):
            ex = [f"v_exp_f32 v{T+i}, v{Db+8*q+i}" for i in range(8)]
            rc = [f"v_rcp_f32 v{T+i}, v{T+i}" for i in range(8)]
            ad = [f"v_pk_add_f32 {v(T+2*i,2)}, {v(T+2*i,2)}, {cp}" for i in range(4)]
            fm = [f"v_pk_fma_f32 {v(Ab+8*q+2*i,2)}, {v(Db+8*q+2*i,2)}, {v(T+2*i,2)}, {v(Ab+8*q+2*i,2)}" for i in range(4)]
            if t == 0: fm = [f"v_pk_mul_f32 {v(Ab+8*q+2*i,2)}, {v(Db+8*q+2*i,2)}, {v(T+2*i,2)}" for i in range(4)]
            if q == 0: seq += [mf[0]] + ex + ad + [mf[1]] + rc + fm
            else: seq += [mf[2]] + ex + ad + rc + fm
        res = []; n = 0
        for l in seq:
            if l is None: continue
            res.append(l)
            if l.startswith(("v_exp", "v_rcp")):
                res += fill.get(n, []); n += 1
        def txt(l): return l[0] if isinstance(l, tuple) else l
        ab = OPT["abl"]
        if "novm" in ab: res = [l for l in res if not txt(l).startswith(("buffer_", "s_add_u32 m0", "s_mov_b64 exec")) and not (txt(l) == "@W" and l[1])]
        if "nolds" in ab: res = [l for l in res if not txt(l).startswith("ds_") and not (txt(l) == "@W" and l[2])]
        if "nomf" in ab: res = [l for l in res if not txt(l).startswith(("v_mfma", "v_smf"))]
        if "nova" in ab: res = [l for l in res if not txt(l).startswith(("v_and_or", "v_xor", "v_cmp"))]
        return res
    DL = int(OPT["dl"])
    def last_of(S_, tags):
        seen = [it[1] for it in S_ if isinstance(it, tuple) and it[0] != "@W"]
        return max(tags, key=lambda g: max(i for i, x in enumerate(seen) if x == g))
    for t in range(LMAX):
        fill = {}
        td = t + DL
        pr = td if td < 4 else 0
        if 4 <= td < LMAX:
            fill[0] = [le_read(td, 0)]
            fill[10] = [("@W", None, f"le{td}"), st_addr(0)]; fill[11] = [st_read(td)]
        if t + 3 < LMAX: fill[1] = [ls_read(t + 3, S4)]
        if t + 1 < LMAX:
            FXP = int(OPT["fxp"])
            fill[FXP] = [("@W", f"X{t+1}", None)]
            for sx in range(4): fill[FXP+1+sx] = fill.get(FXP+1+sx, []) + [fx_read(t + 1, sx)]
        if t + 3 < LMAX:
            xa = x_addr(S4)
            xp = 21 if int(OPT["fxp"]) < 17 else 16
            fill[xp] = [("@W", None, f"ls{t+3}"), xa[0]]; fill[xp+1] = [xa[1]]; fill[xp+2] = [xa[2]]; fill[xp+3] = [xa[3]]
        XL = int(OPT["xl"])
        if XL == 2:
            for k_ in (1, 16, 17, 18, 19, 21, 22, 23, 24):
                if k_ in fill and not any((x[0] if isinstance(x, tuple) else x).startswith(("ds_read_b128 v[%d" % FX, "ds_read_b128 v[%d" % (FX+4), "ds_read_b128 v[%d" % (FX+8), "ds_read_b128 v[%d" % (FX+12))) or (isinstance(x, tuple) and x[0] == "@W" and x[1]) for x in fill[k_]): del fill[k_]
            if t + 2 < LMAX:
                dm = x_dma(t + 2, nop=False, reg=L2 if t == 0 else None)
                for i, pos in enumerate(int(x) for x in OPT["dmp"].split(",")): fill[pos] = fill.get(pos, []) + ([("@W", None, f"fx{t+1}")] if i == 1 else []) + [dm[i]]
        if t == 0 and XL == 3:
            if DL > 2: fill[2] = d_pre(2, 2); fill[3] = d_load(2, 2)
            dm = x_dma(2, nop=False, reg=L2)
            for i, pos in enumerate((4, 5, 6, 7, 12, 13, 14, 15)): fill[pos] = [dm[i]]
            if DL > 3: fill[25] = fill.get(25, []) + d_pre(3, 3) + d_load(3, 3)
        PR = {0: (None, None), 1: (1, 0), 2: (0, 1)}[int(OPT["prio"])]
        if PR[0] is not None: S.append(f"s_setprio {PR[0]}")
        S += phase(0, t, chain(1, t), fill)
        if PR[0] is not None: S.append(f"s_setprio {PR[1]}")
        if t + 1 < LMAX and last_of(S, [f"X{t+1}", f"D{t+1}"]) == f"D{t+1}": S.append(("@W", f"D{t+1}", None))
        fill = {}
        if t + 1 < LMAX: fill[0] = [("@W", None, f"fx{t+1}")]
        if t + 3 < LMAX and XL == 3:
            dm = x_dma(t + 3, nop=False)
            for i, pos in enumerate(int(x) for x in OPT["dmp"].split(",")): fill[pos] = [dm[i]]
        if t + 3 < LMAX and XL == 2:
            xa = x_addr(S4)
            fill[4] = [ls_read(t + 3, S4)]
            fill[20] = [("@W", None, f"ls{t+3}"), xa[0]]; fill[21] = [xa[1]]; fill[22] = [xa[2]]; fill[23] = [xa[3]]
        if td < LMAX:
            dp = d_pre(td, pr)
            DP = int(OPT["dpos"])
            fill[DP-1] = fill.get(DP-1, []) + [dp[0], dp[1]]; fill[DP] = d_load(td, pr)
        fill[31] = [f"s_cmp_eq_u32 s{sT}, {t+1}"]
        S += phase(1, t, chain(0, t + 1) if t + 1 < LMAX else [], fill)
        if t + 1 < LMAX: S.append("s_cbranch_scc1 M_FLUSH")
    emit(resolve(S))
    a("M_FLUSH:")
    stamp("top", 5); stamp("epi", 1)
    if MODE: a("s_memtime s[96:97]\ns_waitcnt lgkmcnt(0)")
    a("s_waitcnt vmcnt(0)")
    for i in range(8):
        a(f"ds_write_b128 v{da}, {v(AG+4*i,4)} offset:{32*i}")
    A0, A1, A2, OWN, PAR = D, D + 16, Q, Q + 16, Q + 24
    a(f"""
    M_BEND:
    v_cmp_gt_u32 vcc, 0x3f4, v{kk}
    s_mov_b32 s74, {f32(-1.0/LOG2E)}
    s_mov_b32 s75, {f32(-1.0/LOG2E)}
    s_waitcnt lgkmcnt(0)
    """)
    stamp("epi", 2)
    a("s_barrier")
    stamp("epi", 3)
    offs = (0, 16, 64, 80)
    for i in range(4):
        for buf, ca in ((A0, ca0), (A1, ca1), (A2, ca2)):
            a(f"ds_read_b128 {v(buf+4*i,4)}, v{ca} offset:{offs[i]}")
    for i in range(4):
        a(f"s_waitcnt lgkmcnt({9-3*i})")
        for j in range(2): a(f"v_pk_add_f32 {v(A0+4*i+2*j,2)}, {v(A0+4*i+2*j,2)}, {v(A1+4*i+2*j,2)}")
        for j in range(2): a(f"v_pk_add_f32 {v(A0+4*i+2*j,2)}, {v(A0+4*i+2*j,2)}, {v(A2+4*i+2*j,2)}")
    a(f"""
    s_cbranch_vccz M_SUMD
    s_movk_i32 s{sA}, 0x3f4
    M_SUML:
    s_mov_b64 exec, vcc
    """)
    for i in range(4):
        a(f"ds_read_b128 {v(A1+4*i,4)}, v{ca3} offset:{offs[i]}")
    a(f"s_sub_u32 s{sA}, s{sA}, 4\nv_add_u32 v{ca3}, 272, v{ca3}\ns_waitcnt lgkmcnt(0)")
    for i in range(8): a(f"v_pk_add_f32 {v(A0+2*i,2)}, {v(A0+2*i,2)}, {v(A1+2*i,2)}")
    a(f"""
    s_mov_b64 exec, -1
    v_cmp_gt_i32 vcc, s{sA}, v{kk}
    s_nop 4
    s_cbranch_vccnz M_SUML
    M_SUMD:
    s_cmp_le_u32 s{sNMAX}, s{sCAP}
    s_cbranch_scc1 M_EPI
    """)
    srd_off(a, 56, 10, WS_SP, 2048 * 4096)
    a(f"""
    s_lshl_b32 s{sA}, s2, 3
    s_add_u32 s{sA}, s{sA}, s{sW}
    s_lshl_b32 s{sA}, s{sA}, 12
    s_cmp_eq_u32 s{sBASE}, 0
    s_cbranch_scc1 M_NOLD
    """)
    for i in range(4):
        a(f"buffer_load_dwordx4 {v(A1+4*i,4)}, v{l16}, s[56:59], s{sA} offen offset:{1024*i} sc0 sc1")
    a("s_waitcnt vmcnt(0)")
    for i in range(8): a(f"v_pk_add_f32 {v(A0+2*i,2)}, {v(A0+2*i,2)}, {v(A1+2*i,2)}")
    a(f"""
    M_NOLD:
    s_add_u32 s{sBASE}, s{sBASE}, s{sCAP}
    s_cmp_ge_u32 s{sBASE}, s{sNMAX}
    s_cbranch_scc1 M_EPI
    """)
    for i in range(4):
        a(f"buffer_store_dwordx4 {v(A0+4*i,4)}, v{l16}, s[56:59], s{sA} offen offset:{1024*i} sc0 sc1")
    a(f"""
    M_AGAIN:
    s_load_dwordx2 s[60:61], s[0:1], 32
    s_waitcnt vmcnt(0) lgkmcnt(0)
    s_barrier
    """)
    srd(a, 56, 60, 18432)
    a(f"""
    s_lshl_b32 s{sA}, s{sW}, 10
    s_add_u32 s{sA}, s{sA}, 8192
    s_add_u32 m0, s{sA}, {S_W}
    v_lshlrev_b32 v{t0}, 2, v0
    buffer_load_dwordx4 v{l16}, s[56:59], s{sA} offen lds
    ds_write_b32 v{t0}, v{nta}
    v_add_u32 v{t0}, {L_C8}, v{t0}
    ds_write_b32 v{t0}, v{nta}
    ds_write_b32 v{t0}, v{nta} offset:2048
    """)
    a("s_waitcnt vmcnt(0)\ns_barrier")
    w2read()
    a(f"""
    s_waitcnt lgkmcnt(0)
    s_barrier
    s_branch M_BATCH
    M_EPI:
    """)
    srd(a, 56, 8, 3200000)
    for i in range(8): a(f"v_pk_mul_f32 {v(A0+2*i,2)}, {v(A0+2*i,2)}, s[74:75]")
    for i in range(8): a(f"v_cvt_pk_bf16_f32 v{OWN+i}, v{A0+2*i}, v{A0+2*i+1}")
    a(f"""
    ds_write_b128 v{fa}, {v(OWN,4)} offset:{L_FE}
    ds_write_b128 v{fa}, {v(OWN+4,4)} offset:{L_FE+1024}
    v_xor_b32 v{fa}, 0x800, v{fa}
    v_mfma_f32_32x32x16_bf16 {v(U0,16)}, {v(WU,4)}, {v(OWN,4)}, {v(U0,16)}
    v_mfma_f32_32x32x16_bf16 {v(U0,16)}, {v(WU+4,4)}, {v(OWN+4,4)}, {v(U0,16)}
    s_lshl_b32 s{sA}, s{sSB}, 6
    s_add_u32 s{sA}, s{sA}, s{sS0}
    s_mov_b32 s74, {f32(-LOG2E)}
    s_mov_b32 s75, {f32(-LOG2E)}
    s_waitcnt lgkmcnt(0)
    s_barrier
    """)
    stamp("epi", 4)
    a(f"""
    ds_read_b128 {v(PAR,4)}, v{fa} offset:{L_FE}
    ds_read_b128 {v(PAR+4,4)}, v{fa} offset:{L_FE+1024}
    s_waitcnt lgkmcnt(1)
    v_mfma_f32_32x32x16_bf16 {v(U0,16)}, {v(WU+8,4)}, {v(PAR,4)}, {v(U0,16)}
    s_waitcnt lgkmcnt(0)
    v_mfma_f32_32x32x16_bf16 {v(U0,16)}, {v(WU+12,4)}, {v(PAR+4,4)}, {v(U0,16)}
    s_nop 11
    """)
    for q in range(2):
        b = 8 * q
        for i in range(4): a(f"v_pk_mul_f32 {v(AG+b+2*i,2)}, {v(U0+b+2*i,2)}, s[74:75]")
        for i in range(8): a(f"v_exp_f32 v{AG+b+i}, v{AG+b+i}")
        for i in range(4): a(f"v_pk_add_f32 {v(AG+b+2*i,2)}, {v(AG+b+2*i,2)}, 1.0 op_sel_hi:[1,0]")
        for i in range(8): a(f"v_rcp_f32 v{AG+b+i}, v{AG+b+i}")
        for i in range(4): a(f"v_pk_mul_f32 {v(AG+b+2*i,2)}, {v(U0+b+2*i,2)}, {v(AG+b+2*i,2)}")
        for i in range(4): a(f"v_cvt_pk_bf16_f32 v{D+4*q+i}, v{AG+b+2*i}, v{AG+b+2*i+1}")
        a(f"buffer_store_dwordx4 {v(D+4*q,4)}, v{oa}, s[56:59], s{sA} offen offset:{16*q} {OPT['ofl']}")
    if MODE:
        stamp("epi", 5)
        a("s_waitcnt vmcnt(0)")
        stamp("top", 6); stamp("epi", 6)
        a(f"s_lshl_b32 s74, s2, 3\ns_add_u32 s74, s74, s{sW}\ns_lshl_b32 s74, s74, 6\ns_add_u32 s74, s74, {WS_ST+0x80000}\ns_load_dwordx2 s[10:11], s[0:1], 64\ns_waitcnt lgkmcnt(0)\ns_add_u32 s52, s10, s74\ns_addc_u32 s53, s11, 0\nv_mov_b32 v0, 0")
        for i in range(8):
            a(f"v_mov_b32 v1, s{76+2*i}\nglobal_store_dword v0, v1, s[52:53] offset:{4*i}")
        a("s_sub_u32 s96, s96, s94\nv_mov_b32 v1, s96\nglobal_store_dword v0, v1, s[52:53] offset:32\nv_mov_b32 v1, s98\nglobal_store_dword v0, v1, s[52:53] offset:36")
    a("M_END:\ns_endpgm")
    return R.n

hdr = f"""; MPNN edge-MLP + segment-sum + node update in one launch of 256 co-resident workgroups:
; @launch grid=(256,1,1) block=(512,1,1) lds={MAIN_LDS}
.amdgcn_target "amdgcn-amd-amdhsa--gfx950"
.text
.globl {KN}
.type {KN},@function
"""
nv = gen()
txt = hdr + a.text() + '.section .rodata,"a"\n.p2align 6\n' + kdesc(KN, 256, 102)
open(sys.argv[1], "w").write(txt)
print("vgprs", nv, "lds", MAIN_LDS)
```

```python
import sys, struct
from asmlib import *

OPT = dict(abl="", stamp=False, eflags="", M0=1152, ns1=3, es='0,3,2,0', xpos=0, df=1, hlp=0, es0=0, cpf=1, fxp=16, dmp='23,24,25,26,27,28,29,30', dpos=12, sp='0,0,0,0', dl=2, xl=2, barA=1, nmm=0, ofl='', wpos=0, epos=1, osl=4, xw=0, fst=5, cem=1, Y=False, epf=2000, skw=256, xe=0, tlb=0, stl=0, eld='', ild='', xld='', wso=0, tch=0, st='sc1', oe=0, otw=2, smf=1, ns2=7, prio=1, ld="sc1")
for arg in sys.argv[2:]:
    k, val = arg.split("=")
    OPT[k] = {"True": True, "False": False}.get(val, val.replace("+", " "))
M0 = int(OPT["M0"])
assert M0 % 32 == 0 and M0 <= 1792 and 3200 - M0 <= 2048
LD = OPT["ld"]
YM = OPT["Y"]
if YM: OPT["es"] = "0,0,0,0"; OPT["ns1"] = 0
KN = "standalone__mpnn_edge_mlp__graph_kernel"

NCH, CH = 250, 3200
WS_REC, WS_O, WS_F2, WS_ST, WS_P, WS_SP, WS_EM = 0, 0x440000, 0x680000, 0x700000, 0x800000, 0x1A00000, 0xB20000
SKW = int(OPT["skw"])
OTS, RCS, EMS = 8192 + SKW, 16384, M0 * 32 + SKW
LOG2E = 1.4426950408889634
def f32(x): return "0x%08x" % struct.unpack("<I", struct.pack("<f", x))[0]

a = Asm()
MODE = OPT["stamp"]
def stamp(mode, i):
    if MODE == mode or (MODE and mode == "all"):
        a(f"s_memrealtime s[{76+2*i}:{77+2*i}]\ns_waitcnt lgkmcnt(0)")
def emit(l): a("\n".join(l))

def resolve(stream):
    out = []; vm = []; lg = []
    for it in stream:
        if isinstance(it, tuple) and it[0] == "@W":
            parts = []
            if it[1] is not None:
                idx = max(i for i, t in enumerate(vm) if t == it[1]); n = len(vm) - 1 - idx
                assert n <= 63; parts.append(f"vmcnt({n})")
            if it[2] is not None:
                idx = max(i for i, t in enumerate(lg) if t == it[2]); n = len(lg) - 1 - idx
                parts.append(f"lgkmcnt({min(n, 15)})")
            out.append("s_waitcnt " + " ".join(parts)); continue
        txt, tag = it if isinstance(it, tuple) else (it, None)
        if txt.startswith("buffer_"): vm.append(tag)
        if txt.startswith("ds_"): lg.append(tag)
        out.append(txt)
    return out

LMAX = 17
L_TB = 0
L_CNT = 1024
L_NT = L_CNT + 128
L_MX = L_NT + 16
L_BAS = L_MX + 16
L_F2C = 1408
L_ZR = 1536
L_LS = 2048
LSZ = LMAX * 1024
L_LE = L_LS + LSZ
L_ST = L_LE + LSZ
SCAP = 160
NSP = SCAP // 32
L_XD = L_ST + 8 * SCAP * 32
L_XR = L_XD + 16384
XRS = 8704
MAIN_LDS = L_XR + 8 * XRS
assert MAIN_LDS <= 163840 and L_XR % 4096 == 0
L_C8 = L_XR + XRS
C8O = XRS
GLO = 6144
S_W = L_LS
S_WU = L_XR + 4 * XRS
S_CNT = S_W + 18432
S_STA = S_CNT + 2048
S_SRT = S_STA + 2048
S_E = S_SRT + CH * 4
assert S_E + M0 * 32 <= L_XD
L_FE = L_LS
DUMMY = 0xC0000000
DFLAG = 1 << 24
SPIN = 200000

def gen():
    R = Regs("v", 1, 256)
    vLS = R.alloc("vLS"); vLE = R.alloc("vLE")
    vCr = R.alloc("vCr", 5)
    RP = R.alloc("RP", 8, 2)
    XA = R.alloc("XA", 4); CX = R.alloc("CX", 4)
    S4 = R.alloc("S4", 4, 4); T = R.alloc("T", 8, 4)
    FX = R.alloc("FX", 16, 4); E = R.alloc("E", 16, 4)
    D = R.alloc("D", 32, 4); Q = R.alloc("Q", 32, 4); AG = R.alloc("AG", 32, 4); W = R.alloc("W", 16, 4)
    U0 = R.alloc("U0", 16, 4); WU = R.alloc("WU", 16, 4); EP = R.alloc("EP", 16, 4)
    SG = R.alloc("SG", 8, 4)
    sa = R.alloc("sa"); lane = R.alloc("lane"); l16 = R.alloc("l16"); m = R.alloc("m"); h = R.alloc("h")
    sac = R.alloc("sac"); lh = R.alloc("lh"); hz = R.alloc("hz"); aN = R.alloc("aN"); one = R.alloc("one"); nta = R.alloc("nta")
    h16 = RP + 1
    def Idf(j): return v(W + 4 * j, 4)
    def W3f(nh): return v(W + 8 + nh * 4, 4)
    def Es(t): return v(E + 4 * (t % 4), 4)
    sX, sE, sREC, sEM, sWS, sP = 16, 20, 24, 28, 32, 36
    sW, sSB, sS0, sSO, sN, sBASE, sCNT, sT, sXRB, sA, sB, sCAP = 40, 41, 42, 43, 44, 45, 46, 47, 48, 49, 50, 51
    sNB, sGL, sNMAX, sG, sL, sM7, sB30, sDF, sNS = 70, 71, 72, 73, 12, 13, 14, 15, 3
    sSTB, sOA, sTAG = 99, 93, 100
    t0, t1, t2, t3, t4, t5, t6, t7 = [T + i for i in range(8)]
    def mk(i): return f"s[{54+2*i}:{55+2*i}]"
    ORD = list(range(7, -1, -1))
    def skip(lab):
        a(f"s_cmp_le_u32 s{sCNT}, 384\ns_cbranch_scc1 {lab}6\ns_cmp_le_u32 s{sCNT}, 448\ns_cbranch_scc1 {lab}7")
    def after(lab, i):
        if i >= 6: a(f"{lab}{i}:")
    ne = 0 if "noe" in OPT["abl"] else 1
    steps = [f"row_shr:{sh} row_mask:0xf bank_mask:0xf bound_ctrl:0" for sh in (1, 2, 4, 8)] + ["row_bcast:15 row_mask:0xa bank_mask:0xf", "row_bcast:31 row_mask:0xc bank_mask:0xf"]

    DS_, SR_, CAD, RNK, PR_ = D, D + 8, D + 16, D + 24, Q
    oA, oB, t16, t4_, idx, rA, rB = [Q + 8 + i for i in range(7)]
    nz = Q + 16
    CS = Q + 20
    NA_, NB_ = M0 // 4, (CH - M0) // 4
    DF = int(OPT["df"])
    SDW = "dst_sel:DWORD dst_unused:UNUSED_PAD src0_sel:DWORD src1_sel:"
    a(f".p2align 8\n{KN}:")
    a(f"""
    s_cmp_ge_u32 s2, 256
    s_cbranch_scc1 M_END
    {"s_memrealtime s[76:77]" if MODE else ""}
    s_load_dwordx4 s[56:59], s[0:1], 16
    s_load_dwordx4 s[4:7], s[0:1], 0
    s_load_dwordx4 s[60:63], s[0:1], 32
    s_load_dwordx4 s[8:11], s[0:1], 48
    s_load_dwordx2 s[64:65], s[0:1], 64
    s_memrealtime s[66:67]
    """)
    a(f"""
    s_setprio 2
    """)
    CPF = int(OPT["cpf"])
    if CPF:
        a(f"""
        s_getpc_b64 s[52:53]
        M_PC:
        s_lshr_b32 s{sA}, s2, 3
        s_lshl_b32 s{sA}, s{sA}, 7
        v_lshrrev_b32 v{t1}, 6, v0
        v_lshlrev_b32 v{t1}, 12, v{t1}
        v_add_u32 v{t1}, s{sA}, v{t1}
        v_min_u32 v{t1}, M_END-M_PC, v{t1}
        global_load_dword v{vCr+4}, v{t1}, s[52:53]
        """)
    a(f"""
    v_lshlrev_b32 v{t16}, 4, v0
    v_mov_b32 v{hz}, 0x80000000
    v_cmp_gt_u32 vcc, {NA_}, v0
    s_mul_i32 s{sA}, s2, 12800
    s_mov_b64 s[52:53], vcc
    v_cndmask_b32 v{rA}, v{hz}, v{t16}, vcc
    v_cmp_gt_u32 vcc, {NB_}, v0
    s_add_u32 s{sB}, s{sA}, {M0*4}
    s_mov_b64 s[54:55], vcc
    v_cndmask_b32 v{rB}, v{hz}, v{t16}, vcc
    s_mov_b32 s{sE+2}, 3200000
    s_mov_b32 s{sE+3}, 0x20000
    s_mov_b32 s{sEM+2}, 3200000
    s_mov_b32 s{sEM+3}, 0x20000
    v_lshlrev_b32 v{t4_}, 2, v0
    v_mov_b32 v{nta}, 0
    v_lshrrev_b32 v{t0}, 6, v0
    s_waitcnt lgkmcnt(0)
    """)
    stamp("ka", 1)
    a(f"""
    s_mov_b32 s{sE}, s58
    s_mov_b32 s{sE+1}, s59
    s_mov_b32 s{sEM}, s56
    s_mov_b32 s{sEM+1}, s57
    buffer_load_dwordx4 {v(DS_,4)}, v{rA}, s[{sE}:{sE+3}], s{sA} offen {OPT['ild']}
    buffer_load_dwordx4 {v(DS_+4,4)}, v{rB}, s[{sE}:{sE+3}], s{sB} offen {OPT['ild']}
    {"" if DF else f"buffer_load_dwordx4 {v(SR_,4)}, v{rA}, s[{sEM}:{sEM+3}], s{sA} offen"}
    {"" if DF else f"buffer_load_dwordx4 {v(SR_+4,4)}, v{rB}, s[{sEM}:{sEM+3}], s{sB} offen"}
    ds_write_b32 v{t4_}, v{nta} offset:{S_CNT}
    ds_write_b32 v{t4_}, v{nta}
    v_readfirstlane_b32 s{sW}, v{t0}
    s_setprio 0
    """)
    srd(a, sP, 10, 256)
    a(f"""
    s_cmp_lt_u32 s2, {NCH}
    s_cbranch_scc1 S_NOTAG
    """)
    HLP = int(OPT["hlp"])
    if HLP:
        a(f"""
        v_and_b32 v{t1}, 63, v0
        v_lshl_add_u32 v{t1}, v{t1}, 3, v{t0}
        v_lshlrev_b32 v{t2}, {HLP}, v{t1}
        v_cmpx_gt_u32 vcc, {(WS_EM + 256*EMS + (1<<HLP) - 1) >> HLP}, v{t1}
        global_load_dword v{vCr+4}, v{t2}, s[64:65]
        s_mov_b64 exec, -1
        s_waitcnt vmcnt(0)
        """)
    a(f"""
    s_cmp_lg_u32 s{sW}, 7
    s_cbranch_scc1 S_NOTAG
    s_or_b32 s{sA}, s66, 1
    v_mov_b32 v{nz}, s{sA}
    v_mov_b32 v{nz+1}, s67
    v_mov_b32 v{nz+2}, 0
    v_mov_b32 v{nz+3}, 0
    s_mov_b64 exec, 1
    buffer_atomic_cmpswap_x2 {v(nz,4)}, v{nta}, s[{sP}:{sP+3}], 0 offen sc1
    s_mov_b64 exec, -1
    s_waitcnt vmcnt(0)
    S_NOTAG:
    s_mov_b32 s68, s10
    s_mov_b32 s69, s11
    s_add_u32 s10, s64, {int(str(OPT["wso"]), 0)}
    s_addc_u32 s11, s65, 0
    s_cmp_lt_u32 s2, {NCH}
    s_cselect_b64 s[52:53], s[52:53], 0
    s_cselect_b64 s[54:55], s[54:55], 0
    v_and_b32 v{lane}, 63, v0
    v_lshlrev_b32 v{l16}, 4, v{lane}
    s_mul_i32 s{sL}, s2, {CH*32}
    s_lshl_b32 s{sT}, s{sW}, 10
    """)
    srd(a, sREC, 6, 0 if "nomv" in OPT["abl"] else 25600000)
    NMM = int(OPT["nmm"])
    if NMM: a(f"s_and_b32 s{sA}, s2, {NMM<<3}\ns_cmp_eq_u32 s{sA}, {NMM<<3}\ns_cselect_b32 s{sREC+2}, 0, s{sREC+2}")
    a(f"s_mul_i32 s{sA}, s2, 12800\ns_add_u32 s{sB}, s{sA}, {M0*4}\ns_waitcnt lgkmcnt(0)\ns_barrier")
    if DF: a(f"buffer_load_dwordx4 {v(SR_,4)}, v{rA}, s[{sEM}:{sEM+3}], s{sA} offen\nbuffer_load_dwordx4 {v(SR_+4,4)}, v{rB}, s[{sEM}:{sEM+3}], s{sB} offen")
    if int(OPT["stl"]):
        a(f"""
        s_lshl_b32 s{sA}, s{sW}, 21
        s_add_u32 s{sB}, s{sA}, 0x1000000
        s_min_u32 s{sN}, s{sB}, {WS_EM + 256*EMS - 64}
        s_load_dword s66, s[10:11], s{sA}
        s_load_dword s66, s[10:11], s{sN}
        s_min_u32 s{sN}, s{sB}, {25600000 - 64}
        s_load_dword s66, s[6:7], s{sA}
        s_load_dword s66, s[6:7], s{sN}
        s_and_b32 s{sA}, s{sA}, 0x200000
        s_load_dword s66, s[8:9], s{sA}
        """)
    npiece = 0 if YM else M0 // 32
    nr = (npiece + 7) // 8
    ES = [int(x) for x in OPT["es"].split(",")]
    assert sum(ES) == nr
    EC = [sum(ES[:i]) for i in range(5)]
    def edma(slot):
        for r in range(EC[slot], EC[slot+1]):
            if (r + 1) * 8 > npiece:
                a(f"s_min_u32 s{sT}, s{sT}, {(npiece - 8*r - 1)*1024}")
            a(f"s_add_u32 m0, s{sT}, {S_E + r*8192}\ns_add_u32 s{sA}, s{sT}, {r*8192}\ns_add_u32 s{sA}, s{sA}, s{sL}\nbuffer_load_dwordx4 v{l16}, s[{sREC}:{sREC+3}], s{sA} offen {OPT['eld']} lds")
    srd(a, sX, 4, 3200000)
    srd(a, sP, 60, 18432)
    def xrows():
        a(f"""
        v_lshrrev_b32 v{t0}, 4, v{lane}
        v_xor_b32 v{t0}, v{t0}, v{lane}
        v_and_b32 v{t0}, 7, v{t0}
        v_and_b32 v{t1}, 0x380, v{l16}
        v_lshl_or_b32 v{t0}, v{t0}, 4, v{t1}
        v_xor_b32 v{t1}, 64, v{t0}
        s_lshl_b32 s{sA}, s{sW}, 11
        s_add_u32 m0, s{sA}, {L_XD}
        s_add_u32 s{sB}, s{sA}, s{sS0}
        buffer_load_dwordx4 v{t0}, s[{sX}:{sX+3}], s{sB} offen {OPT['xld']} lds
        buffer_load_dwordx4 v{t1}, s[{sX}:{sX+3}], s{sB} offen offset:1024 {OPT['xld']} lds
        """)
    a(f"""
    s_and_b32 s74, s2, 7
    s_lshl_b32 s74, s74, 5
    s_lshr_b32 s{sA}, s2, 3
    s_add_u32 s74, s74, s{sA}
    s_lshl_b32 s{sA}, s74, 17
    s_add_u32 s{sA}, s{sA}, 1337
    s_mul_hi_u32 s{sS0}, s{sA}, 3209991
    s_add_u32 s{sA}, s{sA}, 131072
    s_mul_hi_u32 s{sNB}, s{sA}, 3209991
    s_min_u32 s{sNB}, s{sNB}, 25000
    s_sub_u32 s{sNB}, s{sNB}, s{sS0}
    s_and_b32 s{sSB}, s{sW}, 1
    s_mul_i32 s{sSO}, s74, 98
    s_sub_u32 s{sSO}, s{sSO}, s{sS0}
    s_sub_u32 s{sSO}, s{sSO}, 9
    s_lshl_b32 s{sS0}, s{sS0}, 7
    s_mul_i32 s{sGL}, s{sW}, {XRS}
    s_add_u32 s{sGL}, s{sGL}, {L_XR + GLO}
    """)
    XPOS = int(OPT["xpos"])
    def xw1():
        xrows()
        a(f"""
        s_lshl_b32 s{sA}, s{sW}, 10
        s_add_u32 m0, s{sA}, {S_W}
        s_mov_b32 s{sB}, -49
        buffer_load_dwordx4 v{l16}, s[{sP}:{sP+3}], s{sA} offen lds
        """)
    if XPOS == 0: xw1()
    TLB = int(OPT["tlb"])
    srd(a, sWS, 10, 0x1000000)
    if TLB:
        a(f"""
        v_lshl_add_u32 v{t0}, v{lane}, 3, s{sW}
        v_lshlrev_b32 v{t0}, 20, v{t0}
        buffer_load_dword v{vCr+4}, v{t0}, s[{sWS}:{sWS+3}], 0 offen
        """)
    ES0 = int(OPT["es0"])
    if ES0:
        a(f"s_mul_i32 s{sA}, s2, {RCS}\nbuffer_store_dwordx4 {v(FX,4)}, v{t16}, s[{sWS}:{sWS+3}], s{sA} offen sc1")
    edma(0)
    a(f"""
    v_mov_b32 v{one}, 1
    v_mov_b32 v{t7}, 0x10000
    v_lshlrev_b32 v{idx}, 23, v0
    v_add_u32 v{idx}, 9, v{idx}
    v_lshlrev_b32 v{t6}, 5, v{lane}
    s_mov_b32 s{sB}, -49
    s_mov_b32 s{sM7}, {1<<21}
    s_mov_b32 s{sB30}, {2<<21}
    s_mov_b32 s{sDF}, {3<<21}
    s_setprio 2
    """)
    stamp("ka", 2)
    a(f"""
    s_waitcnt vmcnt({EC[1]+2+ES0+(3 if XPOS == 0 else 0)})
    """)
    stamp("srt", 1); stamp("ka", 3)
    for g in range(2):
        for i in range(4*g, 4*g + 4):
            a(f"v_mul_u32_u24 v{PR_+i}, 1338, v{DS_+i}\nv_lshlrev_b32_sdwa v{CAD+i}, 2, v{PR_+i} {SDW}WORD_1")
        a(f"s_mov_b64 exec, {'s[52:53]' if g == 0 else 's[54:55]'}")
        for i in range(4*g, 4*g + 4): a(f"ds_add_rtn_u32 v{RNK+i}, v{CAD+i}, v{one if g == 0 else t7} offset:{S_CNT}")
        a("s_mov_b64 exec, -1")
    edma(1)
    if XPOS == 1: xw1()
    TCH = int(OPT["tch"])
    if TCH:
        a(f"""
        v_lshl_add_u32 v{t0}, v{lane}, 3, s{sW}
        v_cmpx_gt_u32 vcc, {(WS_EM + 256*EMS + (1<<21) - 1) >> 21}, v{t0}
        v_lshlrev_b32 v{t0}, 21, v{t0}
        global_load_dword v{vCr+4}, v{t0}, s[10:11]
        s_mov_b64 exec, -1
        """)
    def recs(rng):
        o = []
        for i in rng:
            o += [f"v_mad_i32_i16 v{PR_+i}, v{PR_+i}, s{sB}, v{DS_+i} op_sel:[1,0,0,0]", f"v_lshl_add_u32 v{PR_+i}, v{SR_+i}, 6, v{PR_+i}",
                  f"v_add3_u32 v{PR_+i}, v{PR_+i}, v{idx}, {('0', f's{sM7}', f's{sB30}', f's{sDF}')[i%4]}"]
        return o
    a("s_waitcnt lgkmcnt(0)\ns_barrier")
    stamp("srt", 2); stamp("tag", 1); stamp("ka", 4)
    OTG = S4
    a(f"""
    ds_read_b128 {v(CS,4)}, v{t6} offset:{S_CNT}
    ds_read_b128 {v(CS+4,4)}, v{t6} offset:{S_CNT+16}
    ds_read_b32 v{OTG+1}, v{t4_} offset:{S_CNT}
    s_waitcnt vmcnt({EC[2]+3+ES0})
    """)
    emit(recs(range(4)))
    a("s_waitcnt lgkmcnt(1)")
    for j in range(1, 8): a(f"v_add_u32 v{CS+j}, v{CS+j}, v{CS+j-1}")
    a(f"v_mov_b32 v{CS+8}, v{CS+7}")
    rr = recs(range(4, 8))
    for n, stp in enumerate(steps): a(f"{rr[2*n]}\n{rr[2*n+1]}\nv_add_u32_dpp v{CS+8}, v{CS+8}, v{CS+8} {stp}")
    a(f"v_sub_u32 v{CS+8}, v{CS+8}, v{CS+7}\nv_add_u32 v{CS+8}, {M0<<16}, v{CS+8}")
    for j in range(7, 0, -1): a(f"v_add_u32 v{CS+j}, v{CS+j-1}, v{CS+8}")
    a(f"""
    v_mov_b32 v{CS}, v{CS+8}
    ds_write_b128 v{t6}, {v(CS,4)} offset:{S_STA}
    ds_write_b128 v{t6}, {v(CS+4,4)} offset:{S_STA+16}
    """)
    for i in range(8): a(f"ds_read_b32 v{DS_+i}, v{CAD+i} offset:{S_STA}")
    a(f"ds_read_b32 v{OTG}, v{t4_} offset:{S_STA}")
    edma(2)
    for i in range(8):
        if i % 4 == 0: a(f"s_mov_b64 exec, {'s[52:53]' if i == 0 else 's[54:55]'}")
        a(f"""
        s_waitcnt lgkmcnt(8)
        v_add_u32 v{DS_+i}, v{DS_+i}, v{RNK+i}
        v_lshlrev_b32_sdwa v{DS_+i}, 2, v{DS_+i} {SDW}{'WORD_0' if i < 4 else 'WORD_1'}
        ds_write_b32 v{DS_+i}, v{PR_+i} offset:{S_SRT}
        """)
    a("s_mov_b64 exec, -1")
    stamp("srt", 3); stamp("ka", 5)
    a(f"s_load_dwordx2 s[{sTAG}:{sTAG+1}], s[68:69], 0")
    WPOS = int(OPT["wpos"])
    def wrest():
        srd(a, sE, 62, 16384)
        a(f"""
        s_lshl_b32 s{sA}, s{sW}, 10
        s_add_u32 s{sA}, s{sA}, 8192
        s_add_u32 m0, s{sA}, {S_W}
        s_lshl_b32 s{sB}, s{sSB}, 10
        buffer_load_dwordx4 v{l16}, s[{sP}:{sP+3}], s{sA} offen lds
        s_add_u32 s{sB}, s{sB}, 16384
        s_add_u32 m0, s{sB}, {S_W}
        s_lshl_b32 s{sA}, s{sW}, 11
        buffer_load_dwordx4 v{l16}, s[{sP}:{sP+3}], s{sB} offen lds
        s_lshr_b32 s{sN}, s{sW}, 1
        s_mul_i32 s{sN}, s{sN}, {XRS - 4096}
        s_add_u32 s{sN}, s{sN}, s{sA}
        s_add_u32 m0, s{sN}, {S_WU}
        s_nop 0
        buffer_load_dwordx4 v{l16}, s[{sE}:{sE+3}], s{sA} offen lds
        buffer_load_dwordx4 v{l16}, s[{sE}:{sE+3}], s{sA} offen offset:1024 lds
        """)
    if WPOS == 1: wrest()
    a(f"""
    v_lshrrev_b32 v{t1}, 1, v0
    v_lshlrev_b32 v{t1}, 2, v{t1}
    s_waitcnt vmcnt({(EC[3] if XPOS == 0 else ES[2]) + 4*WPOS}) lgkmcnt(0)
    s_barrier
    """)
    if MODE == "ka": a("s_waitcnt vmcnt(0)")
    stamp("srt", 4); stamp("tag", 2); stamp("ka", 6)
    no = 0 if YM else (M0 + 255) // 256
    a(f"ds_read_b128 {v(D,4)}, v{t16} offset:{S_SRT}\nds_read_b128 {v(D+4,4)}, v{t16} offset:{S_SRT+M0*4}")
    for r in range(no): a(f"ds_read_b32 v{SG+r}, v{t1} offset:{S_SRT+1024*r}")
    edma(3)
    a(f"""
    s_mul_i32 s{sA}, s2, {RCS}
    s_add_u32 s{sB}, s{sA}, 8192
    v_and_b32 v{t2}, 1, v0
    v_lshlrev_b32 v{t2}, 4, v{t2}
    s_waitcnt lgkmcnt({no})
    buffer_store_dwordx4 {v(D,4)}, v{rA}, s[{sWS}:{sWS+3}], s{sA} offen sc1
    buffer_store_dwordx4 {v(D+4,4)}, v{rB}, s[{sWS}:{sWS+3}], s{sB} offen sc1
    """)
    stamp("tag", 3)
    a(f"""
    s_mul_i32 s{sN}, s2, {OTS}
    s_add_u32 s{sN}, s{sN}, {WS_O}
    s_mov_b32 s{sB}, 0
    s_cmp_lg_u32 s{sTAG}, 0
    s_cbranch_scc1 S_TAGD
    S_TAGL:
    s_sleep 8
    global_load_dwordx2 {v(OTG+2,2)}, v{nta}, s[68:69] sc1
    s_add_u32 s{sB}, s{sB}, 1
    s_cmp_gt_u32 s{sB}, {SPIN}
    s_cbranch_scc1 M_END
    s_waitcnt vmcnt(0)
    v_readfirstlane_b32 s{sTAG}, v{OTG+2}
    v_readfirstlane_b32 s{sTAG+1}, v{OTG+3}
    s_nop 0
    s_cmp_eq_u32 s{sTAG}, 0
    s_cbranch_scc1 S_TAGL
    S_TAGD:
    """)
    stamp("tag", 4)
    a(f"""
    v_add_u32 v{OTG}, {(2048-M0)<<16}, v{OTG}
    v_mov_b32 v{OTG+2}, s{sTAG}
    v_mov_b32 v{OTG+3}, s{sTAG+1}
    buffer_store_dwordx4 {v(OTG,4)}, v{t16}, s[{sWS}:{sWS+3}], s{sN} offen sc1
    s_movk_i32 s{sB}, {(M0 - 256*(no-1))*2}
    v_cmp_gt_u32 vcc, s{sB}, v0
    v_mov_b32 v{t4}, v{t16}
    v_and_b32 v{m}, 31, v{lane}
    v_lshrrev_b32 v{h}, 5, v{lane}
    v_cndmask_b32 v{t6}, v{hz}, v{t16}, vcc
    v_lshlrev_b32 v{t0}, 3, v0
    v_add_u32 v{t0}, {L_C8}, v{t0}
    v_mov_b32 v{D+8}, 0
    v_mov_b32 v{D+9}, 0
    ds_write_b64 v{t0}, {v(D+8,2)}
    v_bfe_u32 v{t1}, v{lane}, 2, 2
    v_lshl_add_u32 v{t1}, v{h}, 3, v{t1}
    v_lshlrev_b32 v{t1}, 7, v{t1}
    v_and_b32 v{t3}, 3, v{lane}
    v_lshl_add_u32 v{aN}, v{t3}, 3, v{t1}
    v_and_b32 v{t3}, 16, v{lane}
    v_lshl_add_u32 v{aN}, v{t3}, 1, v{aN}
    v_add_u32 v{t1}, v{t1}, v{t3}
    v_and_b32 v{t3}, 1, v{lane}
    v_lshl_add_u32 v{t1}, v{t3}, 5, v{t1}
    v_and_b32 v{t3}, 2, v{lane}
    v_lshl_add_u32 v{t1}, v{t3}, 2, v{t1}
    s_lshl_b32 s{sA}, s{sSB}, 6
    v_add_u32 v{sa}, s{sA}, v{t1}
    v_bfe_u32 v{sac}, v{m}, 1, 3
    v_xor_b32 v{sac}, v{sac}, v{h}
    v_lshlrev_b32 v{sac}, 4, v{sac}
    v_lshl_or_b32 v{sac}, v{m}, 7, v{sac}
    s_and_b32 s{sA}, s{sW}, 6
    s_lshl_b32 s{sA}, s{sA}, 11
    s_add_u32 s{sA}, s{sA}, {L_XD}
    v_add_u32 v{sac}, s{sA}, v{sac}
    s_waitcnt lgkmcnt(1)
    """)
    for r in range(no):
        a(f"v_lshrrev_b32 v{SG+r}, 21, v{SG+r}\nv_lshl_add_u32 v{SG+r}, v{SG+r}, 5, v{t2}")
    srd_off(a, sEM, 10, WS_EM, 0 if "nomv" in OPT["abl"] else 256 * EMS)
    OG = E + 12
    a(f"""
    s_lshl_b32 s{sOA}, s74, 5
    s_mul_i32 s{sA}, s{sW}, {32*OTS}
    s_add_u32 s{sOA}, s{sOA}, s{sA}
    s_add_u32 s{sOA}, s{sOA}, {WS_O}
    v_lshrrev_b32 v{lh}, 1, v{lane}
    v_mul_u32_u24 v{lh}, {OTS - 32}, v{lh}
    v_add_u32 v{lh}, v{lh}, v{l16}
    s_mov_b32 s74, {f32(-LOG2E)}
    s_mov_b32 s75, {f32(-LOG2E)}
    """)
    XF, W1t, Wx, PD, EO = FX, AG, EP, AG + 16, Q
    def tr(dst, areg, off):
        a(f"ds_read_b64_tr_b16 {v(dst,2)}, v{areg} offset:{S_W+off}\nds_read_b64_tr_b16 {v(dst+2,2)}, v{areg} offset:{S_W+off+512}")
    def w2read():
        for sx in range(4):
            for nh in range(2): tr(AG + (2*sx + nh)*4, aN, 8192 + 2048*sx + 64*nh)
    for sx in range(4):
        a(f"ds_read_b128 {v(XF+4*sx,4)}, v{sac}" + (f"\nv_xor_b32 v{sac}, {(32, 96, 32)[sx]}, v{sac}" if sx < 3 else ""))
        tr(W1t + 4*sx, sa, 2048*sx)
    a("s_waitcnt lgkmcnt(0)")
    for sx in range(4):
        a(f"v_mfma_f32_32x32x16_bf16 {v(PD,16)}, {v(W1t+4*sx,4)}, {v(XF+4*sx,4)}, {'0' if sx == 0 else v(PD,16)}")
    a(f"""
    v_and_b32 v{t0}, 15, v{m}
    v_mul_u32_u24 v{t0}, 144, v{t0}
    v_lshl_add_u32 v{t0}, v{h}, 5, v{t0}
    v_lshrrev_b32 v{t1}, 4, v{m}
    v_mul_u32_u24 v{t1}, {XRS}, v{t1}
    s_mul_i32 s{sA}, s{sSB}, {64 - XRS}
    s_add_u32 s{sA}, s{sA}, s{sGL}
    v_add3_u32 v{t0}, v{t0}, v{t1}, s{sA}
    v_lshrrev_b32 v{t1}, 3, v{lane}
    v_lshl_add_u32 v{t3}, v{t1}, 4, v{l16}
    v_add_u32 v{t3}, s{sGL}, v{t3}
    s_lshl_b32 s{sA}, s{sW}, 11
    s_lshl_b32 s{sB}, s{sNB}, 7
    v_add_u32 v{t1}, s{sA}, v{l16}
    v_add_u32 v{t5}, 1024, v{t1}
    v_cmp_gt_u32 vcc, s{sB}, v{t1}
    v_cmp_gt_u32 s[52:53], s{sB}, v{t5}
    s_mov_b32 s{sCAP}, 512
    s_mov_b32 s{sBASE}, 0
    v_cndmask_b32 v{t1}, v{hz}, v{t1}, vcc
    v_cndmask_b32 v{t5}, v{hz}, v{t5}, s[52:53]
    """)
    for i in range(8): a(f"v_pk_mul_f32 {v(PD+2*i,2)}, {v(PD+2*i,2)}, s[74:75]")
    for i in range(8): a(f"v_cvt_pk_bf16_f32 v{PD+i}, v{PD+2*i}, v{PD+2*i+1}")
    a(f"""
    ds_write_b128 v{t0}, {v(PD,4)}
    ds_write_b128 v{t0}, {v(PD+4,4)} offset:16
    """)
    stamp("tag", 5)
    if WPOS == 0: wrest()
    a(f"""
    s_add_u32 s{sB}, s{sS0}, {WS_P}
    s_waitcnt vmcnt({7 if WPOS == 0 else 3}) lgkmcnt(0)
    s_barrier
    """)
    stamp("srt", 5); stamp("top", 1); stamp("tag", 6)
    a(f"ds_read_b128 {v(D+16,4)}, v{t3}\nds_read_b128 {v(D+20,4)}, v{t3} offset:{8*144}")
    for r in range(no): a(f"ds_read_b128 {v(EO+4*r,4)}, v{SG+r} offset:{S_E}")
    a(f"""
    s_waitcnt lgkmcnt({no})
    buffer_store_dwordx4 {v(D+16,4)}, v{t1}, s[{sWS}:{sWS+3}], s{sB} offen sc1
    buffer_store_dwordx4 {v(D+20,4)}, v{t5}, s[{sWS}:{sWS+3}], s{sB} offen sc1
    """)
    CEM = int(OPT["cem"])
    if NMM: a(f"s_and_b32 s{sA}, s2, {NMM<<3}\ns_cmp_eq_u32 s{sA}, {NMM<<3}\ns_cbranch_scc1 S_NOEM")
    a(f"s_mul_i32 s{sA}, s2, {EMS}" if CEM else f"s_lshl_b32 s{sA}, s2, 17")
    for r in range(no):
        a(f"s_waitcnt lgkmcnt({no-1-r})\nbuffer_store_dwordx4 {v(EO+4*r,4)}, v{t6 if r == no-1 else t4}, s[{sEM}:{sEM+3}], s{sA} offen {OPT['st']}\ns_add_u32 s{sA}, s{sA}, 8192")
    a(f"""
    S_NOEM:
    s_mov_b32 s92, 1
    s_lshl_b32 s{sN}, s2, {int(OPT["fst"])}
    s_add_u32 s{sN}, s{sN}, {WS_F2}
    """)
    stamp("srt", 6); stamp("syn", 1)
    FST = int(OPT["fst"])
    f2r = E + 9
    OE = int(OPT["oe"]); XE = 0
    oload = f"buffer_load_dwordx4 {v(OG,4)}, v{lh}, s[{sWS}:{sWS+3}], s{sOA} offen sc1"
    if OE == 1: a(oload)
    a("s_setprio 0")
    OTW = int(OPT['otw'])
    def wwork():
        a(f"v_add_u32 v{sa}, {S_WU - S_W}, v{sa}\ns_mul_i32 s{sB}, s{sSB}, {XRS}\nv_add_u32 v{t2}, s{sB}, v{sa}\nv_subrev_u32 v{t3}, s{sB}, v{sa}")
        for nh in range(2): tr(D + 8 + 4*nh, aN, 128*128 + 64*nh)
        for sx in range(4): tr(Wx + 4*sx, sa, XRS*(sx>>1) + 2048*(sx&1))
        a("s_waitcnt lgkmcnt(0)")
        for sx in range(4):
            a(f"v_mfma_f32_32x32x16_bf16 {v(U0,16)}, {v(Wx+4*sx,4)}, {v(XF+4*sx,4)}, {'0' if sx == 0 else v(U0,16)}")
        tr(WU, t2, 2*XRS); tr(WU + 4, t2, 2*XRS + 2048); tr(WU + 8, t3, 3*XRS); tr(WU + 12, t3, 3*XRS + 2048)
        w2read()
        for nh in range(2):
            for i in range(4):
                r = D + 8 + 4*nh + i
                a(f"v_lshlrev_b32 v{t0}, 16, v{r}\nv_and_b32 v{t1}, 0xffff0000, v{r}\nv_pk_mul_f32 {v(t0,2)}, {v(t0,2)}, s[74:75]\nv_cvt_pk_bf16_f32 v{W+8+4*nh+i}, v{t0}, v{t1}")
    def lanec():
        srd_off(a, sP, 10, WS_P, 3200000)
        if int(OPT["smf"]):
            a(f"""
            v_and_b32 v{t1}, 1, v{m}
            v_lshlrev_b32 v{t1}, 4, v{t1}
            v_mov_b32 v{t2}, 0x3f80
            v_lshlrev_b32 v{t1}, v{t1}, v{t2}
            v_lshrrev_b32 v{t0}, 2, v{m}
            v_lshlrev_b32 v{t2}, 2, v{h}
            v_sub_u32 v{t0}, v{t0}, v{t2}
            v_bfe_i32 v{t2}, v{m}, 1, 1
            v_and_b32 v{t2}, 0xaaaa, v{t2}
            v_or_b32 v{W+4}, 0x4444, v{t2}
            """)
            for i in range(4):
                a(f"v_cmp_eq_u32 vcc, {i}, v{t0}\ns_nop 1\nv_cndmask_b32 v{W+i}, 0, v{t1}, vcc")
        else:
            a(f"""
            v_lshlrev_b32 v{t0}, 3, v{h}
            v_sub_u32 v{t0}, v{m}, v{t0}
            v_and_b32 v{t1}, 1, v{t0}
            v_lshlrev_b32 v{t1}, 4, v{t1}
            v_mov_b32 v{t2}, 0x3f80
            v_lshlrev_b32 v{t1}, v{t1}, v{t2}
            v_lshrrev_b32 v{t0}, 1, v{t0}
            """)
            for j in range(2):
                for i in range(4):
                    a(f"v_cmp_eq_u32 vcc, {8*j+i}, v{t0}\ns_nop 1\nv_cndmask_b32 v{W+4*j+i}, 0, v{t1}, vcc")
        a(f"""
        s_mul_i32 s{sSTB}, s{sW}, {SCAP*32}
        s_add_u32 s{sSTB}, s{sSTB}, {L_ST}
        s_mov_b32 s{sREC}, s10
        s_or_b32 s{sREC+1}, s11, {4<<16}
        s_mov_b32 s{sREC+2}, {WS_O//4}
        s_mov_b32 s{sREC+3}, 0x20000
        s_sub_u32 s{sE}, s6, {DFLAG*32}
        s_subb_u32 s{sE+1}, s7, 0
        s_or_b32 s{sE+1}, s{sE+1}, {32<<16}
        s_mov_b32 s{sE+2}, {(DFLAG + 800000) * ne}
        s_mov_b32 s{sE+3}, 0x20000
        s_sub_u32 s{sG}, 11, s{sW}
        s_cmp_lt_u32 s{sW}, 4
        s_cselect_b32 s{sG}, s{sW}, s{sG}
        s_mul_i32 s{sXRB}, s{sG}, {XRS}
        s_add_u32 s{sXRB}, s{sXRB}, {L_XR}
        s_mov_b32 s{sM7}, 0xffffff80
        s_mov_b32 s{sB30}, 0x40000000
        s_mov_b32 s{sDF}, {DFLAG}
        v_lshlrev_b32 v{RP+1}, 4, v{h}
        v_lshlrev_b32 v{RP+3}, 4, v{h}
        v_lshlrev_b32 v{RP+5}, 4, v{h}
        v_lshlrev_b32 v{RP+7}, 4, v{h}
        v_lshrrev_b32 v{t0}, 3, v{lane}
        s_lshl_b32 s{sA}, s{sG}, 7
        v_lshl_add_u32 v{vLS}, v{t0}, 4, s{sA}
        v_lshl_add_u32 v{vLE}, v{m}, 2, s{sA}
        v_and_b32 v{t3}, 1, v{t0}
        v_lshlrev_b32 v{t3}, 4, v{t3}
        v_lshl_add_u32 v{sac}, v{lane}, 5, v{t3}
        v_add_u32 v{sac}, s{sSTB}, v{sac}
        v_and_b32 v{t1}, 4, v{t0}
        v_and_b32 v{t2}, 7, v{lane}
        v_xor_b32 v{t1}, v{t1}, v{t2}
        v_lshlrev_b32 v{CX}, 4, v{t1}
        v_xor_b32 v{CX+1}, 16, v{CX}
        v_xor_b32 v{CX+2}, 32, v{CX}
        v_xor_b32 v{CX+3}, 48, v{CX}
        v_and_b32 v{t0}, 3, v{m}
        v_lshrrev_b32 v{t1}, 2, v{m}
        v_lshl_add_u32 v{t1}, v{t0}, 3, v{t1}
        v_lshlrev_b32 v{t1}, 7, v{t1}
        v_add_u32 v{t1}, s{sXRB}, v{t1}
        v_lshrrev_b32 v{t2}, 4, v{m}
        v_lshl_or_b32 v{t0}, v{t2}, 2, v{t0}
        v_xor_b32 v{t0}, v{t0}, v{h}
        v_lshl_add_u32 v{XA}, v{t0}, 4, v{t1}
        v_xor_b32 v{XA+1}, 32, v{XA}
        v_xor_b32 v{XA+2}, 64, v{XA}
        v_xor_b32 v{XA+3}, 0x60, v{XA}
        """)
    if WPOS: wwork()
    else: lanec()
    if OE == 2: a(oload)
    SP = [int(x) for x in OPT["sp"].split(",")]
    spn = [0]
    def sshot(k):
        for _ in range(SP[k]):
            if spn[0] and spn[0] % 32 == 0: a("s_add_u32 s4, s4, 0x100000\ns_addc_u32 s5, s5, 0")
            a(f"s_load_dword s7, s[4:5], {(spn[0] % 32) * 32768}"); spn[0] += 1
    if sum(SP):
        a(f"""
        s_lshr_b32 s{sA}, s2, 3
        s_lshl_b32 s{sA}, s{sA}, 7
        s_lshl_b32 s{sB}, s{sW}, 12
        s_add_u32 s{sA}, s{sA}, s{sB}
        s_add_u32 s{sA}, s{sA}, {WS_P}
        s_add_u32 s4, s10, s{sA}
        s_addc_u32 s5, s11, 0
        """)
    sshot(0)
    stamp("syn", 2)
    a(f"""
    s_setprio 2
    s_cmp_lg_u32 s{sW}, 0
    s_waitcnt vmcnt(0)
    s_barrier
    s_cbranch_scc1 M_NOPUB
    s_mov_b64 exec, 1
    buffer_store_dwordx2 {v(OTG+2,2)}, v{nta}, s[{sWS}:{sWS+3}], s{sN} offen sc1
    s_mov_b64 exec, -1
    M_NOPUB:
    s_mov_b32 s{sA}, 0
    """)
    stamp("syn", 3)
    a(f"s_nop 7\n{oload}")
    XE = int(OPT["xe"])
    if XE:
        a(f"""
        s_lshr_b32 s{sA}, s2, 3
        s_lshl_b32 s{sA}, s{sA}, 7
        v_lshl_add_u32 v{t0}, v{lane}, 3, s{sW}
        v_cmpx_gt_u32 vcc, {XE}, v{t0}
        v_lshlrev_b32 v{t0}, 12, v{t0}
        buffer_load_dword v{vCr+4}, v{t0}, s[{sP}:{sP+3}], s{sA} offen sc1
        s_mov_b64 exec, -1
        """)
    if WPOS: lanec()
    else: wwork()
    a(f"s_mov_b32 s{sA}, 0\ns_waitcnt vmcnt({1 if XE else 0})")
    kk12, c0, c1, g0, g1, p0, p1, tt, qa, f2r, fl0 = [E + i for i in range(11)]
    G, RC, NA, RK = D, D + 8, D + 16, D + 24
    TBv = FX
    OFv, CA = EP, EP + 8
    a(f"""
    s_branch M_POLLC
    M_BATCH:
    v_lshrrev_b32 v{lh}, 1, v{lane}
    v_mul_u32_u24 v{lh}, {OTS - 32}, v{lh}
    v_add_u32 v{lh}, v{lh}, v{l16}
    s_mov_b32 s{sA}, 0
    M_POLL:
    s_sleep {OPT["osl"]}
    buffer_load_dwordx4 {v(OG,4)}, v{lh}, s[{sWS}:{sWS+3}], s{sOA} offen sc1
    s_add_u32 s{sA}, s{sA}, 1
    s_cmp_gt_u32 s{sA}, {SPIN}
    s_cbranch_scc1 M_END
    s_waitcnt vmcnt(0)
    M_POLLC:
    v_cmpx_ne_u64 vcc, s[{sTAG}:{sTAG+1}], {v(OG+2,2)}
    s_cbranch_execnz M_POLL
    s_mov_b64 exec, -1
    s_lshl_b32 s{sA}, s{sW}, 5
    v_lshrrev_b32 v{lh}, 1, v{lane}
    v_add_lshl_u32 v{kk12}, v{lh}, s{sA}, 12
    v_lshl_or_b32 v{kk12}, v{lane}, 31, v{kk12}
    v_lshl_add_u32 v{qa}, v{lane}, 2, s{sGL}
    v_mov_b32 v{t1}, 0xffff
    s_lshl_b32 s4, s{sW}, {FST+5}
    s_add_u32 s4, s4, {WS_F2}
    v_lshlrev_b32 v{vCr}, {FST}, v{m}
    """)
    FV = vCr + 1
    fl_ = f"buffer_load_dwordx2 {v(FV,2)}, v{vCr}, s[{sWS}:{sWS+3}], s4 offen sc1"
    stamp("pro", 1); stamp("syn", 4)
    a(f"v_and_b32 v{p0}, v{t1}, v{OG+1}\nv_lshrrev_b32 v{p1}, 16, v{OG+1}")
    if NMM:
        a(f"""
        v_and_b32 v{tt}, {NMM<<4}, v{lane}
        v_cmp_eq_u32 s[52:53], {NMM<<4}, v{tt}
        v_add_u32 v{tt}, v{p0}, v{p1}
        s_nop 0
        v_cndmask_b32 v{p1}, v{p1}, v{tt}, s[52:53]
        v_cndmask_b32 v{p0}, v{p0}, 0, s[52:53]
        """)
    fl = [f"v_and_or_b32 v{g0}, v{OG}, v{t1}, v{kk12}", f"v_lshrrev_b32 v{g1}, 16, v{OG}", f"v_or_b32 v{g1}, v{g1}, v{kk12}",
          f"v_and_b32 v{c0}, v{t1}, v{OG+1}", f"v_lshrrev_b32 v{c1}, 16, v{OG+1}", "s_nop 0"]
    for n, stp in enumerate(steps):
        a(f"{fl[n]}\nv_add_u32_dpp v{p0}, v{p0}, v{p0} {stp}\nv_add_u32_dpp v{p1}, v{p1}, v{p1} {stp}")
    a(f"""
    v_readlane_b32 s{sNS}, v{p0}, 63
    v_readlane_b32 s{sN}, v{p1}, 63
    v_sub_u32 v{p0}, v{p0}, v{c0}
    v_sub_u32 v{p1}, v{p1}, v{c1}
    s_add_u32 s{sN}, s{sN}, s{sNS}
    v_add_u32 v{p1}, s{sNS}, v{p1}
    {f"v_sub_u32 v{tt}, v{p1}, v{c0}" if NMM else ""}
    {f"v_cndmask_b32 v{p0}, v{p0}, v{tt}, s[52:53]" if NMM else ""}
    s_mov_b32 s{sCNT}, s{sN}
    s_add_u32 s{sA}, s{sN}, s{sBASE}
    s_cmp_le_u32 s{sA}, s{sCAP}
    s_cbranch_scc0 M_WIN
    s_cmp_eq_u32 s{sBASE}, 0
    s_cbranch_scc1 M_NOWIN
    M_WIN:
    s_sub_i32 s{sCNT}, s{sN}, s{sBASE}
    s_max_i32 s{sCNT}, s{sCNT}, 0
    s_min_u32 s{sCNT}, s{sCNT}, s{sCAP}
    s_sub_i32 s{sNS}, s{sNS}, s{sBASE}
    s_max_i32 s{sNS}, s{sNS}, 0
    """)
    for (pp, cc, gg) in ((p0, c0, g0), (p1, c1, g1)):
        a(f"""
        v_subrev_u32 v{tt}, s{sBASE}, v{pp}
        v_max_i32 v{pp}, 0, v{tt}
        v_add_u32 v{cc}, v{tt}, v{cc}
        v_min_i32 v{cc}, s{sCAP}, v{cc}
        v_sub_u32 v{cc}, v{cc}, v{pp}
        v_sub_u32 v{tt}, v{pp}, v{tt}
        v_add_u32 v{gg}, v{gg}, v{tt}
        """)
    a(f"M_NOWIN:\ns_min_u32 s{sNS}, s{sNS}, {0 if YM else SCAP}")
    pa, ca_, ga, gb = t0, t1, t2, t3
    for n, (pp, cc, gg) in enumerate(((p0, c0, g0), (p1, c1, g1))):
        a(f"""
        v_lshl_add_u32 v{pp}, v{pp}, 2, s{sGL}
        v_add_u32 v{ga}, 1, v{gg}
        v_add_u32 v{gb}, 2, v{gg}
        v_mov_b32 v{ca_}, v{cc}
        v_mov_b32 v{pa}, v{pp}
        M_EXP{n}:
        """)
        for r in (1, 3, 5, 7):
            a(f"v_cmpx_lt_i32 vcc, {r}, v{ca_}\nds_write2_b32 v{pa}, v{ga}, v{gb} offset0:{r} offset1:{r+1}\nv_add_u32 v{ga}, 2, v{ga}\nv_add_u32 v{gb}, 2, v{gb}")
        a(f"""
        v_cmpx_lt_i32 vcc, 9, v{ca_}
        v_add_u32 v{pa}, 32, v{pa}
        v_subrev_u32 v{ca_}, 8, v{ca_}
        s_cbranch_execnz M_EXP{n}
        s_mov_b64 exec, -1
        """)
    a(f"""
    v_cmpx_lt_i32 vcc, 0, v{c0}
    ds_write_b32 v{p0}, v{g0}
    s_mov_b64 exec, -1
    v_cmpx_lt_i32 vcc, 0, v{c1}
    ds_write_b32 v{p1}, v{g1}
    s_mov_b64 exec, -1
    """)
    a(fl_)
    for i in ORD:
        a(f"ds_read_b32 v{G+i}, v{qa} offset:{256*i}")
    a(f"v_lshl_add_u32 v{t1}, v{lh}, 2, s{sGL}")
    for j in range(NSP):
        a(f"ds_read_b32 v{SG+j}, v{t1} offset:{128*j}")
    for i in ORD:
        a(f"s_sub_i32 s{sA}, s{sCNT}, {64*i}\nv_cmp_gt_i32 {mk(i)}, s{sA}, v{lane}")
    a(f"s_waitcnt lgkmcnt({NSP})")
    for i in ORD: a(f"v_lshlrev_b32 v{RC+i}, 2, v{G+i}")
    stamp("pro", 2); stamp("syn", 5)
    a(f"""
    s_mov_b32 s{sA}, 0
    s_branch M_FL1
    M_FL:
    s_sleep {OPT["osl"]}
    {fl_}
    s_add_u32 s{sA}, s{sA}, 1
    s_cmp_gt_u32 s{sA}, {SPIN}
    s_cbranch_scc1 M_END
    M_FL1:
    s_waitcnt vmcnt(0)
    v_cmpx_ne_u64 vcc, s[{sTAG}:{sTAG+1}], {v(FV,2)}
    s_cbranch_execnz M_FL
    M_READY:
    """)
    stamp("top", 2); stamp("syn", 6); stamp("lb", 1)
    skip("M_GA")
    for i in ORD:
        a(f"s_mov_b64 exec, {mk(i)}\nbuffer_load_dword v{RC+i}, v{RC+i}, s[{sWS}:{sWS+3}], 0 offen {LD}")
        after("M_GA", i)
    a("s_mov_b64 exec, -1")
    if OTW == 1:
        a("s_cmp_eq_u32 s92, 0\ns_cbranch_scc1 M_NOW\ns_setprio 0")
        wwork()
        a("s_setprio 2\nM_NOW:")
    a(f"""
    v_lshrrev_b32 v{t2}, 4, v{lane}
    v_xor_b32 v{t2}, v{t2}, v{lane}
    v_and_b32 v{t2}, 1, v{t2}
    v_lshlrev_b32 v{t2}, 4, v{t2}
    v_mov_b32 v{fl0}, s{sCNT}
    v_mov_b32 v{fl0+1}, s{sN}
    s_waitcnt lgkmcnt(0)
    """)
    if CEM: a(f"s_mov_b32 s{sA}, {EMS//32-4096}")
    for j in range(NSP):
        if CEM: a(f"v_bfe_u32 v{t3}, v{SG+j}, 12, 8\nv_mad_i32_i24 v{SG+j}, v{t3}, s{sA}, v{SG+j}")
        a(f"v_lshl_add_u32 v{SG+j}, v{SG+j}, 5, v{t2}")
    stamp("lb", 2)
    if int(OPT["barA"]): a("s_barrier")
    stamp("lb", 3)
    def stage(js):
        for j in ([] if YM else js):
            a(f"""
            s_sub_i32 s{sA}, s{sNS}, {32*j}
            s_add_u32 m0, s{sSTB}, {1024*j}
            v_cmpx_gt_i32 vcc, s{sA}, v{lh}
            buffer_load_dwordx4 v{SG+j}, s[{sEM}:{sEM+3}], 0 offen {LD} lds
            """)
        a("s_mov_b64 exec, -1")
    NS1 = int(OPT["ns1"]); NS2 = int(OPT["ns2"])
    stage(range(NS1))
    XW = int(OPT["xw"])
    def pwarm():
        if XW:
            a(f"""
            s_lshr_b32 s{sA}, s2, 3
            s_mul_i32 s{sA}, s{sA}, {XW*128}
            s_add_u32 s{sA}, s{sA}, {XE*4096}
            v_lshl_add_u32 v{tt}, v{lane}, 3, s{sW}
            v_cmpx_gt_u32 vcc, {XW}, v{tt}
            v_lshlrev_b32 v{tt}, 7, v{tt}
            buffer_load_dword v{vCr+4}, v{tt}, s[{sP}:{sP+3}], s{sA} offen sc1
            s_mov_b64 exec, -1
            """)
    a(f"s_movk_i32 s{sB}, {CH}\nv_mov_b32 v{t0}, s{sDF}\nv_mov_b32 v{t2}, s{sSO}")
    skip("M_DW")
    for i in ORD:
        a(f"""
        v_lshrrev_b32 v{NA+i}, 31, v{G+i}
        v_mad_u32_u24 v{NA+i}, v{NA+i}, 49, v{t2}
        """)
        after("M_DW", i)
    a(f"""
    s_mov_b32 s75, {L_C8}
    s_mov_b64 exec, 1
    ds_add_u32 v{nta}, v{fl0} offset:{L_NT}
    ds_max_u32 v{nta}, v{fl0+1} offset:{L_MX}
    """)
    stamp("lb", 4)
    skip("M_RK")
    for i in ORD:
        a(f"""
        s_mov_b64 exec, {mk(i)}
        s_waitcnt vmcnt({i+NS1})
        v_and_b32 v{CA+i}, 63, v{RC+i}
        v_bfe_u32 v{tt}, v{RC+i}, 18, 3
        v_add_u32 v{NA+i}, v{CA+i}, v{NA+i}
        v_lshl_add_u32 v{CA+i}, v{NA+i}, 2, s75
        v_lshl_add_u32 v{CA+i}, v{tt}, 9, v{CA+i}
        ds_add_rtn_u32 v{RK+i}, v{CA+i}, v{one}
        """)
        after("M_RK", i)
    def pack(lab):
        a(f"s_movk_i32 s{sB}, {CH}\ns_mov_b32 s74, {int(OPT['epf'])*128}")
        skip(lab)
        for i in ORD:
            a(f"""
            v_bfe_u32 v{t0}, v{G+i}, 12, 8
            v_lshrrev_b32 v{tt}, 21, v{RC+i}
            v_bfe_i32 v{t1}, v{G+i}, 11, 1
            v_mad_u32_u24 v{tt}, v{t0}, s{sB}, v{tt}
            v_and_b32 v{t1}, {M0}, v{t1}
            v_bfe_u32 v{RC+i}, v{RC+i}, 6, 15
            v_add3_u32 v{G+i}, v{t1}, v{tt}, s{sDF}
            v_lshl_add_u32 v{RC+i}, v{RC+i}, 7, v{NA+i}
            v_lshlrev_b32 v{NA+i}, 3, v{NA+i}
            """)
            if 64 * i < SCAP and not YM:
                a(f"""
                s_sub_i32 s{sA}, s{sNS}, {64*i}
                v_cmp_gt_i32 vcc, s{sA}, v{lane}
                v_add_u32 v{tt}, {2048*i}, v{sac}
                s_nop 0
                v_cndmask_b32 v{G+i}, v{G+i}, v{tt}, vcc
                """)
            after(lab, i)
    EPOS = int(OPT["epos"]); NEP = 0
    def eprefetch():
        if not int(OPT["epf"]): return
        for i in ((6, 5, 4, 3, 2, 1) if NMM else (6, 5, 4, 3, 2)):
            a(f"s_mov_b64 exec, {mk(i)}\nv_cmpx_gt_u32 vcc, s74, v{RC+i}" + ("" if 64 * i >= SCAP else f"\nv_cmpx_le_u32 vcc, s{sDF}, v{G+i}") + f"\nbuffer_load_dword v{vCr+4}, v{G+i}, s[{sE}:{sE+3}], 0 idxen")
        a("s_mov_b64 exec, -1")
    if int(OPT["epf"]): NEP = 6 if NMM else 5
    a("s_mov_b64 exec, -1")
    stamp("pro", 3); stamp("lb", 5)
    a(f"""
    s_cmp_eq_u32 s{sW}, 0
    s_cbranch_scc1 M_PK0
    s_lshl_b32 s{sA}, s{sW}, 8
    s_add_u32 s{sA}, s{sA}, {L_C8 - 256}
    v_lshl_add_u32 v{S4}, v{lane}, 2, s{sA}
    v_mov_b32 v{Q+8}, 0
    s_waitcnt lgkmcnt(0)
    s_barrier
    """)
    stamp("pro", 4); stamp("lb", 6)
    a(f"s_cmp_gt_u32 s{sW}, 2\ns_cbranch_scc1 M_NOPFX")
    for j in range(3): a(f"ds_read2st64_b32 {v(Q+2*j,2)}, v{S4} offset0:{4*j} offset1:{4*j+2}")
    a(f"s_waitcnt lgkmcnt(0)\nv_mov_b32 v{Q+9}, v{Q}")
    for j in range(1, 6): a(f"v_add_u32 v{Q+9+j}, v{Q+8+j}, v{Q+j}")
    for j in range(4): a(f"ds_write2st64_b32 v{S4}, v{Q+8+2*j}, v{Q+9+2*j} offset0:{C8O//256+4*j} offset1:{C8O//256+4*j+2}")
    a(f"M_NOPFX:\ns_setprio 0\ns_cmp_lt_u32 s{sW}, 4\ns_cbranch_scc1 M_NOFILL")
    for i in range(4): a(f"v_mov_b32 v{t4+i}, {DUMMY}")
    a(f"v_lshlrev_b32 v{t0}, 4, v0\nv_lshlrev_b32 v{t1}, 3, v0")
    assert 2 * LSZ == 8 * 4096 + 2048 and L_LS == 2048
    for i in range(8): a(f"ds_write_b128 v{t0}, {v(t4,4)} offset:{4096*i}")
    a(f"ds_write_b64 v{t1}, {v(t4,2)}\nM_NOFILL:")
    pack("M_PB"); stage(range(NS1, NSP))
    if EPOS == 0: eprefetch()
    a("s_waitcnt lgkmcnt(0)\ns_barrier\ns_branch M_P4E")
    d0, d1, f0, f1, k0, k1, vL, vR, ks, a4, l0, l1, o0, o1, cn, ci = [Q + i for i in range(16)]
    m0_, B0, m1_, B1 = S4, S4+1, S4+2, S4+3
    a(f"""
    M_PK0:
    s_setprio 3
    v_lshlrev_b32 v{a4}, 3, v{lane}
    v_lshlrev_b32 v{cn}, 2, v{lane}
    v_add_u32 v{cn}, {L_C8}, v{cn}
    v_sub_u32 v{ci}, 31, v{m}
    v_lshlrev_b32 v{ci}, 2, v{ci}
    s_mov_b32 s75, {f32(4194304.0)}
    s_waitcnt lgkmcnt(0)
    s_barrier
    """)
    stamp("pro", 4); stamp("lb", 6)
    a(f"ds_read_b32 v{ks}, v{nta} offset:{L_NT}")
    for j in range(7): a(f"ds_read2st64_b32 {v(FX+2*j,2)}, v{cn} offset0:{2*j} offset1:{2*j+1}")
    a(f"""
    s_waitcnt lgkmcnt(4)
    v_readfirstlane_b32 s{sL}, v{ks}
    v_add3_u32 v{d0}, v{FX}, v{FX+2}, v{FX+4}
    v_add3_u32 v{d1}, v{FX+1}, v{FX+3}, v{FX+5}
    s_lshr_b32 s{sL}, s{sL}, 8
    s_add_u32 s{sL}, s{sL}, 1
    s_waitcnt lgkmcnt(0)
    v_add3_u32 v{d0}, v{d0}, v{FX+6}, v{FX+8}
    v_add3_u32 v{d1}, v{d1}, v{FX+7}, v{FX+9}
    v_add3_u32 v{d0}, v{d0}, v{FX+10}, v{FX+12}
    v_add3_u32 v{d1}, v{d1}, v{FX+11}, v{FX+13}
    v_cvt_f32_u32 v{f0}, v{d0}
    v_cvt_f32_u32 v{f1}, v{d1}
    v_add_f32 v{f0}, -0.5, v{f0}
    v_add_f32 v{f1}, -0.5, v{f1}
    M_LS:
    s_add_u32 s{sL}, s{sL}, 2
    s_cmp_gt_u32 s{sL}, {LMAX}
    s_cbranch_scc1 M_P4W
    """)
    Lf, Rc, Ka = FX, FX + 3, FX + 6
    a(f"""
    v_cvt_f32_u32 v{Lf+1}, s{sL}
    v_add_f32 v{Lf}, -1.0, v{Lf+1}
    v_add_f32 v{Lf+2}, 1.0, v{Lf+1}
    v_rcp_f32 v{Rc}, v{Lf}
    v_rcp_f32 v{Rc+1}, v{Lf+1}
    v_rcp_f32 v{Rc+2}, v{Lf+2}
    """)
    for j in range(3): a(f"v_fma_f32 v{Ka+2*j}, v{f0}, v{Rc+j}, 1.0\nv_fma_f32 v{Ka+2*j+1}, v{f1}, v{Rc+j}, 1.0")
    for j in range(6): a(f"v_cvt_u32_f32 v{Ka+j}, v{Ka+j}")
    a(f"""
    v_lshl_or_b32 v{k0}, v{Ka+2}, 10, v{Ka}
    v_lshl_or_b32 v{k1}, v{Ka+3}, 10, v{Ka+1}
    v_lshl_or_b32 v{k0}, v{Ka+4}, 20, v{k0}
    v_lshl_or_b32 v{k1}, v{Ka+5}, 20, v{k1}
    v_add_u32 v{ks}, v{k0}, v{k1}
    """)
    wave_scan(a, ks)
    a(f"""
    v_sub_u32 v{vL}, v{ks}, v{k1}
    v_readlane_b32 s{sA}, v{ks}, 63
    s_mov_b32 s{sB}, 0
    s_bfe_u32 s52, s{sA}, 0xa000a
    s_cmp_le_u32 s52, 256
    s_cbranch_scc1 M_LOK
    s_lshr_b32 s52, s{sA}, 20
    s_cmp_gt_u32 s52, 256
    s_cbranch_scc1 M_LS
    s_mov_b32 s{sB}, 10
    s_add_u32 s{sL}, s{sL}, 1
    s_cmp_gt_u32 s{sL}, {LMAX}
    s_cbranch_scc1 M_P4W
    M_LOK:
    s_sub_u32 s52, 256, s52
    s_add_u32 s53, s{sB}, 10
    v_bfe_u32 v{l0}, v{vL}, s{sB}, 10
    v_bfe_u32 v{l1}, v{ks}, s{sB}, 10
    v_bfe_u32 v{vL}, v{vL}, s53, 10
    v_bfe_u32 v{vR}, v{ks}, s53, 10
    v_sub_u32 v{l0}, v{l0}, v{vL}
    v_sub_u32 v{l1}, v{l1}, v{vR}
    v_mov_b32 v{vL}, s53
    v_mov_b32 v{vR}, s{sB}
    v_cmp_ge_u32 vcc, s52, v{l0}
    v_cmp_ge_u32 s[52:53], s52, v{l1}
    s_nop 0
    v_cndmask_b32 v{l0}, v{vL}, v{vR}, vcc
    v_cndmask_b32 v{l1}, v{vL}, v{vR}, s[52:53]
    v_bfe_u32 v{k0}, v{k0}, v{l0}, 10
    v_bfe_u32 v{k1}, v{k1}, v{l1}, 10
    v_cvt_f32_u32 v{l0}, v{k0}
    v_cvt_f32_u32 v{l1}, v{k1}
    v_rcp_f32 v{m0_}, v{l0}
    v_rcp_f32 v{m1_}, v{l1}
    s_nop 0
    v_fma_f32 v{l0}, v{f0}, v{m0_}, 1.0
    v_fma_f32 v{l1}, v{f1}, v{m1_}, 1.0
    v_cvt_u32_f32 v{l0}, v{l0}
    v_cvt_u32_f32 v{l1}, v{l1}
    v_lshlrev_b32 v{l0}, 2, v{l0}
    v_lshlrev_b32 v{l1}, 2, v{l1}
    ds_add_rtn_u32 v{o0}, v{l0}, v{k0} offset:{L_CNT}
    ds_add_rtn_u32 v{o1}, v{l1}, v{k1} offset:{L_CNT}
    ds_read_b32 v{cn}, v{ci} offset:{L_CNT}
    v_mul_f32 v{m0_}, s75, v{m0_}
    v_mul_f32 v{m1_}, s75, v{m1_}
    v_cvt_u32_f32 v{m0_}, v{m0_}
    v_cvt_u32_f32 v{m1_}, v{m1_}
    v_add_u32 v{m0_}, 2, v{m0_}
    v_add_u32 v{m1_}, 2, v{m1_}
    v_lshlrev_b32 v{B0}, 2, v{k0}
    v_lshlrev_b32 v{B1}, 2, v{k1}
    v_sub_u32 v{B0}, 1024, v{B0}
    v_sub_u32 v{B1}, 1024, v{B1}
    v_sub_u32 v{l0}, 124, v{l0}
    v_sub_u32 v{l1}, 124, v{l1}
    s_waitcnt lgkmcnt(0)
    v_mov_b32 v{ks}, v{cn}
    """)
    for stp in steps[:5]:
        a(f"s_nop 1\nv_add_u32_dpp v{ks}, v{ks}, v{ks} {stp}")
    a(f"""
    v_sub_u32 v{ks}, v{ks}, v{cn}
    ds_bpermute_b32 v{d0}, v{l0}, v{ks}
    ds_bpermute_b32 v{d1}, v{l1}, v{ks}
    ds_write_b32 v{ci}, v{ks} offset:{L_BAS}
    s_waitcnt lgkmcnt(1)
    v_add_u32 v{o0}, v{o0}, v{d0}
    v_add_u32 v{o1}, v{o1}, v{d1}
    v_lshl_or_b32 v{m0_}, v{o0}, 24, v{m0_}
    v_lshl_or_b32 v{m1_}, v{o1}, 24, v{m1_}
    ds_write2st64_b64 v{a4}, {v(m0_,2)}, {v(m1_,2)} offset0:0 offset1:1
    M_P4W:
    v_mov_b32 v{ks}, s{sL}
    ds_write_b32 v{nta}, v{ks} offset:{L_MX+4}
    s_waitcnt lgkmcnt(0)
    s_barrier
    """)
    stage(range(NS1, NSP)); pack("M_PA")
    if EPOS == 0: eprefetch()
    u0, nn = Q + 20, Q + 26
    a("M_P4E:")
    stamp("pro", 5)
    a(f"""
    ds_read_b64 {v(u0,2)}, v{nta} offset:{L_MX}
    v_lshlrev_b32 v{tt}, 2, v{m}
    ds_read_b32 v{u0+2}, v{tt} offset:{L_CNT}
    ds_read_b32 v{u0+3}, v{tt} offset:{L_BAS}
    s_lshr_b32 s{sA}, s{sW}, 1
    s_lshl_b32 s{sA}, s{sA}, 5
    v_add_u32 v{nn}, s{sA}, v{m}
    v_lshlrev_b32 v{tt}, 3, v{nn}
    ds_read_b64 {v(u0+4,2)}, v{tt} offset:{L_TB}
    """)
    skip("M_TR")
    for i in ORD:
        a(f"s_mov_b64 exec, {mk(i)}\nds_read_b64 {v(TBv+2*i,2)}, v{NA+i} offset:{L_TB}\nds_read_b32 v{OFv+i}, v{CA+i} offset:{C8O}")
        after("M_TR", i)
    a(f"""
    s_mov_b64 exec, -1
    """)
    if EPOS == 1: eprefetch()
    a(f"""
    s_lshl_b32 s{sA}, s{sG}, 5
    s_waitcnt lgkmcnt(12)
    v_readfirstlane_b32 s{sNMAX}, v{u0}
    v_readfirstlane_b32 s{sL}, v{u0+1}
    v_add_u32 v{u0+2}, v{u0+2}, v{u0+3}
    v_cmp_ge_u32 vcc, s{sA}, v{u0+3}
    v_cmp_lt_u32 s[52:53], s{sA}, v{u0+2}
    s_and_b64 s[52:53], s[52:53], vcc
    s_ff1_i32_b32 s{sT}, s52
    s_max_i32 s{sT}, s{sT}, 0
    s_cmp_le_u32 s{sL}, {LMAX}
    s_cbranch_scc1 M_P5
    s_mov_b32 s{sCAP}, 256
    s_branch M_AGAIN
    M_P5:
    """)
    skip("M_SC")
    for i in ORD:
        mm, BB = TBv + 2*i, TBv + 2*i + 1
        a(f"""
        s_mov_b64 exec, {mk(i)}
        s_waitcnt lgkmcnt({2*i + max(0, 5-i)})
        v_add_u32 v{RK+i}, v{RK+i}, v{OFv+i}
        v_lshrrev_b32 v{tt}, 24, v{mm}
        v_mul_u32_u24 v{mm}, v{mm}, v{RK+i}
        v_add_lshl_u32 v{tt}, v{tt}, v{RK+i}, 2
        v_lshrrev_b32 v{mm}, 22, v{mm}
        v_mad_u32_u24 v{tt}, v{mm}, v{BB}, v{tt}
        ds_write2st64_b32 v{tt}, v{RC+i}, v{G+i} offset0:{L_LS//256} offset1:{L_LE//256}
        """)
        after("M_SC", i)
    ca0, ca1, ca2, ca3, kk, oa, fa, da = [EP + i for i in range(8)]
    epi_setup = f"""
    s_lshl_b32 s{sA}, s{sSB}, 7
    s_add_u32 s{sA}, s{sA}, {L_XR}
    s_movk_i32 s{sB}, 0x3fc
    s_movk_i32 s75, 0x3f8
    v_mov_b32 v{kk}, v{u0+5}
    v_lshrrev_b32 v{ca0}, 24, v{u0+4}
    v_mul_u32_u24 v{ca0}, 272, v{ca0}
    v_lshl_add_u32 v{ca0}, v{h16}, 1, v{ca0}
    v_add_u32 v{ca0}, s{sA}, v{ca0}
    v_mov_b32 v{da}, {L_ZR}
    v_cmp_gt_u32 s[56:57], s{sB}, v{kk}
    v_cmp_gt_u32 s[58:59], s75, v{kk}
    v_add_u32 v{ca1}, 272, v{ca0}
    v_add_u32 v{ca2}, 544, v{ca0}
    v_add_u32 v{ca3}, 816, v{ca0}
    v_cmp_gt_u32 vcc, 0x400, v{kk}
    v_cndmask_b32 v{ca1}, v{da}, v{ca1}, s[56:57]
    v_cndmask_b32 v{ca2}, v{da}, v{ca2}, s[58:59]
    v_cndmask_b32 v{ca0}, v{da}, v{ca0}, vcc
    v_cmp_gt_u32 vcc, s{sNB}, v{nn}
    v_lshlrev_b32 v{oa}, 7, v{nn}
    v_lshl_add_u32 v{oa}, v{h16}, 1, v{oa}
    s_lshl_b32 s{sA}, s{sW}, 11
    v_cndmask_b32 v{oa}, v{hz}, v{oa}, vcc
    v_add_u32 v{fa}, s{sA}, v{l16}
    v_mul_u32_u24 v{da}, 272, v{m}
    v_add3_u32 v{da}, v{da}, v{h16}, s{sXRB}
    """
    a(f"""
    s_mov_b64 exec, -1
    s_setprio 0
    """)
    if EPOS == 2: eprefetch()
    a(f"s_waitcnt vmcnt({NEP}) lgkmcnt(0)\ns_barrier")
    stamp("top", 3); stamp("pro", 6); stamp("pri", 1)
    a(f"s_cmp_lg_u32 s{sT}, 0\ns_cbranch_scc1 M_GO")
    a(epi_setup)
    a("s_branch M_BEND\nM_GO:")
    S = []
    ef = OPT["eflags"]
    def le_read(t, p): return (f"ds_read_b32 v{RP+2*p}, v{vLE} offset:{L_LE+1024*t}", f"le{t}")
    def ls_read(t, dst): return (f"ds_read_b128 {v(dst,4)}, v{vLS} offset:{L_LS+1024*t}", f"ls{t}")
    def st_addr(p): return f"v_xor_b32 v{sa}, v{RP+2*p}, v{h16}"
    def st_read(t): return (f"ds_read_b128 {Es(t)}, v{sa}", f"st{t}")
    def d_pre(t, p): return [f"v_cmp_le_u32 vcc, s{sDF}, v{RP+2*p}", f"v_and_or_b32 v{vCr+t%5}, v{RP+2*p}, s{sB30}, 1.0"]
    def d_load(t, p): return ["s_mov_b64 exec, vcc", (f"buffer_load_dwordx4 {Es(t)}, {v(RP+2*p,2)}, s[{sE}:{sE+3}], 0 idxen offen {ef}", f"D{t}"), "s_mov_b64 exec, -1"]
    def x_addr(src): return [f"v_and_or_b32 v{S4+i}, v{src+i}, s{sM7}, v{CX+i}" for i in range(4)]
    def x_dma(t, nop=True, reg=None, soff="0", tag=None):
        o = []
        for i in range(4):
            sr = sP
            o += [f"s_add_u32 m0, s{sXRB}, {i*1024}"] + (["s_nop 0"] if nop else []) + \
                 [(f"buffer_load_dwordx4 v{(reg or S4)+i}, s[{sr}:{sr+3}], {soff} offen {LD} lds", tag or f"X{t}")]
        return o
    def fx_read(t, sx, tag=None): return (f"ds_read_b128 {v(FX+4*sx,4)}, v{XA+sx}", tag or f"fx{t}")
    def chain(nh, t):
        Dh = v(D + 16 * nh, 16)
        return [f"v_mfma_f32_32x32x16_bf16 {Dh}, {W3f(nh)}, {Es(t)}, {v(Q+16*nh,16)}"] + \
               ([f"v_smfmac_f32_32x32x32_bf16 {Dh}, {Idf(0)}, {v(FX+8*nh,8)}, v{W+4}"] if int(OPT["smf"]) else
                [f"v_mfma_f32_32x32x16_bf16 {Dh}, {Idf(j)}, {v(FX+8*nh+4*j,4)}, {Dh}" for j in range(2)])
    nd, L1, L2 = D, D + 4, SG
    def ps(i): return [f"s_memrealtime s[{76+2*i}:{77+2*i}]", "s_waitcnt lgkmcnt(0)"] if MODE == "pri" else []
    S += [ls_read(0, S4), (f"ds_read_b32 v{nd}, v{vLE} offset:{L_LS}", "nd")] + [le_read(j, j) for j in range(4)] + [ls_read(1, L1), ls_read(2, L2), ("@W", None, "nd")]
    S += x_addr(S4)
    xa_ = [f"v_and_b32 v{nd+1}, 127, v{nd}", f"v_lshlrev_b32 v{nd+1}, 7, v{nd+1}", f"v_bfe_u32 v{nd+2}, v{nd}, 1, 3", f"v_xor_b32 v{nd+2}, v{nd+2}, v{h}"]
    dm = x_dma(0, nop=False)
    for i in range(4): S += [dm[2*i], xa_[i], dm[2*i+1]]
    S += [f"v_lshl_add_u32 v{nd+1}, v{nd+2}, 4, v{nd+1}", f"v_add_u32 v{nd+1}, {L_XD}, v{nd+1}"]
    for sx in range(4):
        S += [(f"ds_read_b128 {v(FX+4*sx,4)}, v{nd+1}", "xd")] + ([f"v_xor_b32 v{nd+1}, {(32, 96, 32)[sx]}, v{nd+1}"] if sx < 3 else [])
    S += [("@W", None, "ls2")] + d_pre(0, 0) + ["s_not_b64 s[60:61], vcc"] + d_load(0, 0) + ps(2)
    S += [st_addr(0), "s_mov_b64 exec, s[60:61]", st_read(0), "s_mov_b64 exec, -1"]
    for j in range(1, 4): S += [st_addr(j), st_read(j)]
    ep = [l.strip() for l in epi_setup.strip().split("\n")]
    S += [f"v_mov_b32 v{SG+4}, v{u0+4}", f"v_mov_b32 v{SG+5}, v{u0+5}", f"v_mov_b32 v{SG+6}, v{nn}", ("@W", None, "xd")]
    ep = [l.replace(f"v{u0+4}", f"v{SG+4}").replace(f"v{u0+5}", f"v{SG+5}").replace(f"v{nn}", f"v{SG+6}") for l in ep] + x_addr(L1)
    k_ = 0
    for nh in range(2):
        for sx in range(4):
            S.append(f"v_mfma_f32_32x32x16_bf16 {v(Q+16*nh,16)}, {v(AG+(sx*2+nh)*4,4)}, {v(FX+4*sx,4)}, {'0' if sx == 0 else v(Q+16*nh,16)}")
            S += ep[k_:k_+4]; k_ += 4
    S += ep[k_:] + ps(3) + ps(4)
    S += [f"s_mov_b32 s74, {f32(-LOG2E)}", f"s_mov_b32 s75, {f32(-LOG2E)}"]
    S += [("@W", "D0", None)] + ps(5) + [fx_read(0, sx) for sx in range(4)]
    S += [f"v_pk_mul_f32 {v(Q+2*i,2)}, {v(Q+2*i,2)}, s[74:75]" for i in range(16)] + [("@W", None, "fx0")]
    c00 = chain(0, 0)
    S += [c00[0], "s_nop 7", "s_nop 7"] + c00[1:] + d_pre(1, 1) + d_load(1, 1) + x_dma(1) + [f"v_and_or_b32 v{L2+i}, v{L2+i}, s{sM7}, v{CX+i}" for i in range(4)] + ps(6)
    if MODE: S += [f"s_mov_b32 s90, s{sT}", f"s_mov_b32 s98, s{sL}", "s_memtime s[94:95]", "s_waitcnt lgkmcnt(0)"]
    if MODE == "top": S += ["s_memrealtime s[84:85]", "s_waitcnt lgkmcnt(0)"]
    def phase(nh, t, mf, fill):
        Db, Ab = D + 16*nh, AG + 16*nh
        c = vCr + t % 5
        cp = f"{v(c & ~1, 2)} " + ("op_sel_hi:[1,0]" if c % 2 == 0 else "op_sel:[0,1] op_sel_hi:[1,1]")
        seq = []
        mf = mf + [None] * (3 - len(mf))
        for q in range(2):
            ex = [f"v_exp_f32 v{T+i}, v{Db+8*q+i}" for i in range(8)]
            rc = [f"v_rcp_f32 v{T+i}, v{T+i}" for i in range(8)]
            ad = [f"v_pk_add_f32 {v(T+2*i,2)}, {v(T+2*i,2)}, {cp}" for i in range(4)]
            fm = [f"v_pk_fma_f32 {v(Ab+8*q+2*i,2)}, {v(Db+8*q+2*i,2)}, {v(T+2*i,2)}, {v(Ab+8*q+2*i,2)}" for i in range(4)]
            if t == 0: fm = [f"v_pk_mul_f32 {v(Ab+8*q+2*i,2)}, {v(Db+8*q+2*i,2)}, {v(T+2*i,2)}" for i in range(4)]
            if q == 0: seq += [mf[0]] + ex + ad + [mf[1]] + rc + fm
            else: seq += [mf[2]] + ex + ad + rc + fm
        res = []; n = 0
        for l in seq:
            if l is None: continue
            res.append(l)
            if l.startswith(("v_exp", "v_rcp")):
                res += fill.get(n, []); n += 1
        def txt(l): return l[0] if isinstance(l, tuple) else l
        ab = OPT["abl"]
        if "novm" in ab: res = [l for l in res if not txt(l).startswith(("buffer_", "s_add_u32 m0", "s_mov_b64 exec")) and not (txt(l) == "@W" and l[1])]
        if "nolds" in ab: res = [l for l in res if not txt(l).startswith("ds_") and not (txt(l) == "@W" and l[2])]
        if "nomf" in ab: res = [l for l in res if not txt(l).startswith(("v_mfma", "v_smf"))]
        if "nova" in ab: res = [l for l in res if not txt(l).startswith(("v_and_or", "v_xor", "v_cmp"))]
        return res
    DL = int(OPT["dl"])
    def last_of(S_, tags):
        seen = [it[1] for it in S_ if isinstance(it, tuple) and it[0] != "@W"]
        return max(tags, key=lambda g: max(i for i, x in enumerate(seen) if x == g))
    for t in range(LMAX):
        fill = {}
        td = t + DL
        pr = td if td < 4 else 0
        if 4 <= td < LMAX:
            fill[0] = [le_read(td, 0)]
            fill[10] = [("@W", None, f"le{td}"), st_addr(0)]; fill[11] = [st_read(td)]
        if t + 3 < LMAX: fill[1] = [ls_read(t + 3, S4)]
        if t + 1 < LMAX:
            FXP = int(OPT["fxp"])
            fill[FXP] = [("@W", f"X{t+1}", None)]
            for sx in range(4): fill[FXP+1+sx] = fill.get(FXP+1+sx, []) + [fx_read(t + 1, sx)]
        if t + 3 < LMAX:
            xa = x_addr(S4)
            xp = 21 if int(OPT["fxp"]) < 17 else 16
            fill[xp] = [("@W", None, f"ls{t+3}"), xa[0]]; fill[xp+1] = [xa[1]]; fill[xp+2] = [xa[2]]; fill[xp+3] = [xa[3]]
        XL = int(OPT["xl"])
        if XL == 2:
            for k_ in (1, 16, 17, 18, 19, 21, 22, 23, 24):
                if k_ in fill and not any((x[0] if isinstance(x, tuple) else x).startswith(("ds_read_b128 v[%d" % FX, "ds_read_b128 v[%d" % (FX+4), "ds_read_b128 v[%d" % (FX+8), "ds_read_b128 v[%d" % (FX+12))) or (isinstance(x, tuple) and x[0] == "@W" and x[1]) for x in fill[k_]): del fill[k_]
            if t + 2 < LMAX:
                dm = x_dma(t + 2, nop=False, reg=L2 if t == 0 else None)
                for i, pos in enumerate(int(x) for x in OPT["dmp"].split(",")): fill[pos] = fill.get(pos, []) + ([("@W", None, f"fx{t+1}")] if i == 1 else []) + [dm[i]]
        if t == 0 and XL == 3:
            if DL > 2: fill[2] = d_pre(2, 2); fill[3] = d_load(2, 2)
            dm = x_dma(2, nop=False, reg=L2)
            for i, pos in enumerate((4, 5, 6, 7, 12, 13, 14, 15)): fill[pos] = [dm[i]]
            if DL > 3: fill[25] = fill.get(25, []) + d_pre(3, 3) + d_load(3, 3)
        PR = {0: (None, None), 1: (1, 0), 2: (0, 1)}[int(OPT["prio"])]
        if PR[0] is not None: S.append(f"s_setprio {PR[0]}")
        S += phase(0, t, chain(1, t), fill)
        if PR[0] is not None: S.append(f"s_setprio {PR[1]}")
        if t + 1 < LMAX and last_of(S, [f"X{t+1}", f"D{t+1}"]) == f"D{t+1}": S.append(("@W", f"D{t+1}", None))
        fill = {}
        if t + 1 < LMAX: fill[0] = [("@W", None, f"fx{t+1}")]
        if t + 3 < LMAX and XL == 3:
            dm = x_dma(t + 3, nop=False)
            for i, pos in enumerate(int(x) for x in OPT["dmp"].split(",")): fill[pos] = [dm[i]]
        if t + 3 < LMAX and XL == 2:
            xa = x_addr(S4)
            fill[4] = [ls_read(t + 3, S4)]
            fill[20] = [("@W", None, f"ls{t+3}"), xa[0]]; fill[21] = [xa[1]]; fill[22] = [xa[2]]; fill[23] = [xa[3]]
        if td < LMAX:
            dp = d_pre(td, pr)
            DP = int(OPT["dpos"])
            fill[DP-1] = fill.get(DP-1, []) + [dp[0], dp[1]]; fill[DP] = d_load(td, pr)
        fill[31] = [f"s_cmp_eq_u32 s{sT}, {t+1}"]
        S += phase(1, t, chain(0, t + 1) if t + 1 < LMAX else [], fill)
        if t + 1 < LMAX: S.append("s_cbranch_scc1 M_FLUSH")
    emit(resolve(S))
    a("M_FLUSH:")
    stamp("top", 5); stamp("epi", 1)
    if MODE: a("s_memtime s[96:97]\ns_waitcnt lgkmcnt(0)")
    a("s_waitcnt vmcnt(0)")
    for i in range(8):
        a(f"ds_write_b128 v{da}, {v(AG+4*i,4)} offset:{32*i}")
    A0, A1, A2, OWN, PAR = D, D + 16, Q, Q + 16, Q + 24
    a(f"""
    M_BEND:
    v_cmp_gt_u32 vcc, 0x3f4, v{kk}
    s_mov_b32 s74, {f32(-1.0/LOG2E)}
    s_mov_b32 s75, {f32(-1.0/LOG2E)}
    s_waitcnt lgkmcnt(0)
    """)
    stamp("epi", 2)
    a("s_barrier")
    stamp("epi", 3)
    offs = (0, 16, 64, 80)
    for i in range(4):
        for buf, ca in ((A0, ca0), (A1, ca1), (A2, ca2)):
            a(f"ds_read_b128 {v(buf+4*i,4)}, v{ca} offset:{offs[i]}")
    for i in range(4):
        a(f"s_waitcnt lgkmcnt({9-3*i})")
        for j in range(2): a(f"v_pk_add_f32 {v(A0+4*i+2*j,2)}, {v(A0+4*i+2*j,2)}, {v(A1+4*i+2*j,2)}")
        for j in range(2): a(f"v_pk_add_f32 {v(A0+4*i+2*j,2)}, {v(A0+4*i+2*j,2)}, {v(A2+4*i+2*j,2)}")
    a(f"""
    s_cbranch_vccz M_SUMD
    s_movk_i32 s{sA}, 0x3f4
    M_SUML:
    s_mov_b64 exec, vcc
    """)
    for i in range(4):
        a(f"ds_read_b128 {v(A1+4*i,4)}, v{ca3} offset:{offs[i]}")
    a(f"s_sub_u32 s{sA}, s{sA}, 4\nv_add_u32 v{ca3}, 272, v{ca3}\ns_waitcnt lgkmcnt(0)")
    for i in range(8): a(f"v_pk_add_f32 {v(A0+2*i,2)}, {v(A0+2*i,2)}, {v(A1+2*i,2)}")
    a(f"""
    s_mov_b64 exec, -1
    v_cmp_gt_i32 vcc, s{sA}, v{kk}
    s_nop 4
    s_cbranch_vccnz M_SUML
    M_SUMD:
    s_cmp_le_u32 s{sNMAX}, s{sCAP}
    s_cbranch_scc1 M_EPI
    """)
    srd_off(a, 56, 10, WS_SP, 2048 * 4096)
    a(f"""
    s_lshl_b32 s{sA}, s2, 3
    s_add_u32 s{sA}, s{sA}, s{sW}
    s_lshl_b32 s{sA}, s{sA}, 12
    s_cmp_eq_u32 s{sBASE}, 0
    s_cbranch_scc1 M_NOLD
    """)
    for i in range(4):
        a(f"buffer_load_dwordx4 {v(A1+4*i,4)}, v{l16}, s[56:59], s{sA} offen offset:{1024*i} sc0 sc1")
    a("s_waitcnt vmcnt(0)")
    for i in range(8): a(f"v_pk_add_f32 {v(A0+2*i,2)}, {v(A0+2*i,2)}, {v(A1+2*i,2)}")
    a(f"""
    M_NOLD:
    s_add_u32 s{sBASE}, s{sBASE}, s{sCAP}
    s_cmp_ge_u32 s{sBASE}, s{sNMAX}
    s_cbranch_scc1 M_EPI
    """)
    for i in range(4):
        a(f"buffer_store_dwordx4 {v(A0+4*i,4)}, v{l16}, s[56:59], s{sA} offen offset:{1024*i} sc0 sc1")
    a(f"""
    M_AGAIN:
    s_load_dwordx2 s[60:61], s[0:1], 32
    s_waitcnt vmcnt(0) lgkmcnt(0)
    s_barrier
    """)
    srd(a, 56, 60, 18432)
    a(f"""
    s_lshl_b32 s{sA}, s{sW}, 10
    s_add_u32 s{sA}, s{sA}, 8192
    s_add_u32 m0, s{sA}, {S_W}
    v_lshlrev_b32 v{t0}, 2, v0
    buffer_load_dwordx4 v{l16}, s[56:59], s{sA} offen lds
    ds_write_b32 v{t0}, v{nta}
    v_add_u32 v{t0}, {L_C8}, v{t0}
    ds_write_b32 v{t0}, v{nta}
    ds_write_b32 v{t0}, v{nta} offset:2048
    """)
    a("s_waitcnt vmcnt(0)\ns_barrier")
    w2read()
    a(f"""
    s_waitcnt lgkmcnt(0)
    s_barrier
    s_branch M_BATCH
    M_EPI:
    """)
    srd(a, 56, 8, 3200000)
    for i in range(8): a(f"v_pk_mul_f32 {v(A0+2*i,2)}, {v(A0+2*i,2)}, s[74:75]")
    for i in range(8): a(f"v_cvt_pk_bf16_f32 v{OWN+i}, v{A0+2*i}, v{A0+2*i+1}")
    a(f"""
    ds_write_b128 v{fa}, {v(OWN,4)} offset:{L_FE}
    ds_write_b128 v{fa}, {v(OWN+4,4)} offset:{L_FE+1024}
    v_xor_b32 v{fa}, 0x800, v{fa}
    v_mfma_f32_32x32x16_bf16 {v(U0,16)}, {v(WU,4)}, {v(OWN,4)}, {v(U0,16)}
    v_mfma_f32_32x32x16_bf16 {v(U0,16)}, {v(WU+4,4)}, {v(OWN+4,4)}, {v(U0,16)}
    s_lshl_b32 s{sA}, s{sSB}, 6
    s_add_u32 s{sA}, s{sA}, s{sS0}
    s_mov_b32 s74, {f32(-LOG2E)}
    s_mov_b32 s75, {f32(-LOG2E)}
    s_waitcnt lgkmcnt(0)
    s_barrier
    """)
    stamp("epi", 4)
    a(f"""
    ds_read_b128 {v(PAR,4)}, v{fa} offset:{L_FE}
    ds_read_b128 {v(PAR+4,4)}, v{fa} offset:{L_FE+1024}
    s_waitcnt lgkmcnt(1)
    v_mfma_f32_32x32x16_bf16 {v(U0,16)}, {v(WU+8,4)}, {v(PAR,4)}, {v(U0,16)}
    s_waitcnt lgkmcnt(0)
    v_mfma_f32_32x32x16_bf16 {v(U0,16)}, {v(WU+12,4)}, {v(PAR+4,4)}, {v(U0,16)}
    s_nop 11
    """)
    for q in range(2):
        b = 8 * q
        for i in range(4): a(f"v_pk_mul_f32 {v(AG+b+2*i,2)}, {v(U0+b+2*i,2)}, s[74:75]")
        for i in range(8): a(f"v_exp_f32 v{AG+b+i}, v{AG+b+i}")
        for i in range(4): a(f"v_pk_add_f32 {v(AG+b+2*i,2)}, {v(AG+b+2*i,2)}, 1.0 op_sel_hi:[1,0]")
        for i in range(8): a(f"v_rcp_f32 v{AG+b+i}, v{AG+b+i}")
        for i in range(4): a(f"v_pk_mul_f32 {v(AG+b+2*i,2)}, {v(U0+b+2*i,2)}, {v(AG+b+2*i,2)}")
        for i in range(4): a(f"v_cvt_pk_bf16_f32 v{D+4*q+i}, v{AG+b+2*i}, v{AG+b+2*i+1}")
        a(f"buffer_store_dwordx4 {v(D+4*q,4)}, v{oa}, s[56:59], s{sA} offen offset:{16*q} {OPT['ofl']}")
    if MODE:
        stamp("epi", 5)
        a("s_waitcnt vmcnt(0)")
        stamp("top", 6); stamp("epi", 6)
        a(f"s_lshl_b32 s74, s2, 3\ns_add_u32 s74, s74, s{sW}\ns_lshl_b32 s74, s74, 6\ns_add_u32 s74, s74, {WS_ST+0x80000}\ns_load_dwordx2 s[10:11], s[0:1], 64\ns_waitcnt lgkmcnt(0)\ns_add_u32 s52, s10, s74\ns_addc_u32 s53, s11, 0\nv_mov_b32 v0, 0")
        for i in range(8):
            a(f"v_mov_b32 v1, s{76+2*i}\nglobal_store_dword v0, v1, s[52:53] offset:{4*i}")
        a("s_sub_u32 s96, s96, s94\nv_mov_b32 v1, s96\nglobal_store_dword v0, v1, s[52:53] offset:32\nv_mov_b32 v1, s98\nglobal_store_dword v0, v1, s[52:53] offset:36")
    a("M_END:\ns_endpgm")
    return R.n

hdr = f"""; MPNN edge-MLP + segment-sum + node update in one launch of 256 co-resident workgroups:
; @launch grid=(256,1,1) block=(512,1,1) lds={MAIN_LDS}
.amdgcn_target "amdgcn-amd-amdhsa--gfx950"
.text
.globl {KN}
.type {KN},@function
"""
nv = gen()
txt = hdr + a.text() + '.section .rodata,"a"\n.p2align 6\n' + kdesc(KN, 256, 102)
open(sys.argv[1], "w").write(txt)
print("vgprs", nv, "lds", MAIN_LDS)
```

```python
import sys, struct
from asmlib import *

OPT = dict(abl="", stamp=False, eflags="", M0=1152, ns1=3, es='0,3,2,0', xpos=0, df=1, hlp=0, es0=0, cpf=1, fxp=16, dmp='23,24,25,26,27,28,29,30', dpos=12, sp='0,0,0,0', dl=2, xl=2, barA=1, nmm=0, ofl='', wpos=0, epos=0, osl=4, xw=0, fst=5, cem=1, Y=False, epf=1400, skw=256, xe=0, tlb=0, stl=0, eld='', ild='', xld='', wso=0, tch=0, st='sc1', oe=0, otw=2, smf=1, ns2=7, prio=1, ld="sc1")
for arg in sys.argv[2:]:
    k, val = arg.split("=")
    OPT[k] = {"True": True, "False": False}.get(val, val.replace("+", " "))
M0 = int(OPT["M0"])
assert M0 % 32 == 0 and M0 <= 1792 and 3200 - M0 <= 2048
LD = OPT["ld"]
YM = OPT["Y"]
if YM: OPT["es"] = "0,0,0,0"; OPT["ns1"] = 0
KN = "standalone__mpnn_edge_mlp__graph_kernel"

NCH, CH = 250, 3200
WS_REC, WS_O, WS_F2, WS_ST, WS_P, WS_SP, WS_EM = 0, 0x440000, 0x680000, 0x700000, 0x800000, 0x1A00000, 0xB20000
SKW = int(OPT["skw"])
OTS, RCS, EMS = 8192 + SKW, 16384, M0 * 32 + SKW
LOG2E = 1.4426950408889634
def f32(x): return "0x%08x" % struct.unpack("<I", struct.pack("<f", x))[0]

a = Asm()
MODE = OPT["stamp"]
def stamp(mode, i):
    if MODE == mode or (MODE and mode == "all"):
        a(f"s_memrealtime s[{76+2*i}:{77+2*i}]\ns_waitcnt lgkmcnt(0)")
def emit(l): a("\n".join(l))

def resolve(stream):
    out = []; vm = []; lg = []
    for it in stream:
        if isinstance(it, tuple) and it[0] == "@W":
            parts = []
            if it[1] is not None:
                idx = max(i for i, t in enumerate(vm) if t == it[1]); n = len(vm) - 1 - idx
                assert n <= 63; parts.append(f"vmcnt({n})")
            if it[2] is not None:
                idx = max(i for i, t in enumerate(lg) if t == it[2]); n = len(lg) - 1 - idx
                parts.append(f"lgkmcnt({min(n, 15)})")
            out.append("s_waitcnt " + " ".join(parts)); continue
        txt, tag = it if isinstance(it, tuple) else (it, None)
        if txt.startswith("buffer_"): vm.append(tag)
        if txt.startswith("ds_"): lg.append(tag)
        out.append(txt)
    return out

LMAX = 17
L_TB = 0
L_CNT = 1024
L_NT = L_CNT + 128
L_MX = L_NT + 16
L_BAS = L_MX + 16
L_F2C = 1408
L_ZR = 1536
L_LS = 2048
LSZ = LMAX * 1024
L_LE = L_LS + LSZ
L_ST = L_LE + LSZ
SCAP = 160
NSP = SCAP // 32
L_XD = L_ST + 8 * SCAP * 32
L_XR = L_XD + 16384
XRS = 8704
MAIN_LDS = L_XR + 8 * XRS
assert MAIN_LDS <= 163840 and L_XR % 4096 == 0
L_C8 = L_XR + XRS
C8O = XRS
GLO = 6144
S_W = L_LS
S_WU = L_XR + 4 * XRS
S_CNT = S_W + 18432
S_STA = S_CNT + 2048
S_SRT = S_STA + 2048
S_E = S_SRT + CH * 4
assert S_E + M0 * 32 <= L_XD
L_FE = L_LS
DUMMY = 0xC0000000
DFLAG = 1 << 24
SPIN = 200000

def gen():
    R = Regs("v", 1, 256)
    vLS = R.alloc("vLS"); vLE = R.alloc("vLE")
    vCr = R.alloc("vCr", 5)
    RP = R.alloc("RP", 8, 2)
    XA = R.alloc("XA", 4); CX = R.alloc("CX", 4)
    S4 = R.alloc("S4", 4, 4); T = R.alloc("T", 8, 4)
    FX = R.alloc("FX", 16, 4); E = R.alloc("E", 16, 4)
    D = R.alloc("D", 32, 4); Q = R.alloc("Q", 32, 4); AG = R.alloc("AG", 32, 4); W = R.alloc("W", 16, 4)
    U0 = R.alloc("U0", 16, 4); WU = R.alloc("WU", 16, 4); EP = R.alloc("EP", 16, 4)
    SG = R.alloc("SG", 8, 4)
    sa = R.alloc("sa"); lane = R.alloc("lane"); l16 = R.alloc("l16"); m = R.alloc("m"); h = R.alloc("h")
    sac = R.alloc("sac"); lh = R.alloc("lh"); hz = R.alloc("hz"); aN = R.alloc("aN"); one = R.alloc("one"); nta = R.alloc("nta")
    h16 = RP + 1
    def Idf(j): return v(W + 4 * j, 4)
    def W3f(nh): return v(W + 8 + nh * 4, 4)
    def Es(t): return v(E + 4 * (t % 4), 4)
    sX, sE, sREC, sEM, sWS, sP = 16, 20, 24, 28, 32, 36
    sW, sSB, sS0, sSO, sN, sBASE, sCNT, sT, sXRB, sA, sB, sCAP = 40, 41, 42, 43, 44, 45, 46, 47, 48, 49, 50, 51
    sNB, sGL, sNMAX, sG, sL, sM7, sB30, sDF, sNS = 70, 71, 72, 73, 12, 13, 14, 15, 3
    sSTB, sOA, sTAG = 99, 93, 100
    t0, t1, t2, t3, t4, t5, t6, t7 = [T + i for i in range(8)]
    def mk(i): return f"s[{54+2*i}:{55+2*i}]"
    ORD = list(range(7, -1, -1))
    def skip(lab):
        a(f"s_cmp_le_u32 s{sCNT}, 384\ns_cbranch_scc1 {lab}6\ns_cmp_le_u32 s{sCNT}, 448\ns_cbranch_scc1 {lab}7")
    def after(lab, i):
        if i >= 6: a(f"{lab}{i}:")
    ne = 0 if "noe" in OPT["abl"] else 1
    steps = [f"row_shr:{sh} row_mask:0xf bank_mask:0xf bound_ctrl:0" for sh in (1, 2, 4, 8)] + ["row_bcast:15 row_mask:0xa bank_mask:0xf", "row_bcast:31 row_mask:0xc bank_mask:0xf"]

    DS_, SR_, CAD, RNK, PR_ = D, D + 8, D + 16, D + 24, Q
    oA, oB, t16, t4_, idx, rA, rB = [Q + 8 + i for i in range(7)]
    nz = Q + 16
    CS = Q + 20
    NA_, NB_ = M0 // 4, (CH - M0) // 4
    DF = int(OPT["df"])
    SDW = "dst_sel:DWORD dst_unused:UNUSED_PAD src0_sel:DWORD src1_sel:"
    a(f".p2align 8\n{KN}:")
    a(f"""
    s_cmp_ge_u32 s2, 256
    s_cbranch_scc1 M_END
    {"s_memrealtime s[76:77]" if MODE else ""}
    s_load_dwordx4 s[56:59], s[0:1], 16
    s_load_dwordx4 s[4:7], s[0:1], 0
    s_load_dwordx4 s[60:63], s[0:1], 32
    s_load_dwordx4 s[8:11], s[0:1], 48
    s_load_dwordx2 s[64:65], s[0:1], 64
    s_memrealtime s[66:67]
    """)
    a(f"""
    s_setprio 2
    """)
    CPF = int(OPT["cpf"])
    if CPF:
        a(f"""
        s_getpc_b64 s[52:53]
        M_PC:
        s_lshr_b32 s{sA}, s2, 3
        s_lshl_b32 s{sA}, s{sA}, 7
        v_lshrrev_b32 v{t1}, 6, v0
        v_lshlrev_b32 v{t1}, 12, v{t1}
        v_add_u32 v{t1}, s{sA}, v{t1}
        v_min_u32 v{t1}, M_END-M_PC, v{t1}
        global_load_dword v{vCr+4}, v{t1}, s[52:53]
        """)
    a(f"""
    v_lshlrev_b32 v{t16}, 4, v0
    v_mov_b32 v{hz}, 0x80000000
    v_cmp_gt_u32 vcc, {NA_}, v0
    s_mul_i32 s{sA}, s2, 12800
    s_mov_b64 s[52:53], vcc
    v_cndmask_b32 v{rA}, v{hz}, v{t16}, vcc
    v_cmp_gt_u32 vcc, {NB_}, v0
    s_add_u32 s{sB}, s{sA}, {M0*4}
    s_mov_b64 s[54:55], vcc
    v_cndmask_b32 v{rB}, v{hz}, v{t16}, vcc
    s_mov_b32 s{sE+2}, 3200000
    s_mov_b32 s{sE+3}, 0x20000
    s_mov_b32 s{sEM+2}, 3200000
    s_mov_b32 s{sEM+3}, 0x20000
    v_lshlrev_b32 v{t4_}, 2, v0
    v_mov_b32 v{nta}, 0
    v_lshrrev_b32 v{t0}, 6, v0
    s_waitcnt lgkmcnt(0)
    """)
    stamp("ka", 1)
    a(f"""
    s_mov_b32 s{sE}, s58
    s_mov_b32 s{sE+1}, s59
    s_mov_b32 s{sEM}, s56
    s_mov_b32 s{sEM+1}, s57
    buffer_load_dwordx4 {v(DS_,4)}, v{rA}, s[{sE}:{sE+3}], s{sA} offen {OPT['ild']}
    buffer_load_dwordx4 {v(DS_+4,4)}, v{rB}, s[{sE}:{sE+3}], s{sB} offen {OPT['ild']}
    {"" if DF else f"buffer_load_dwordx4 {v(SR_,4)}, v{rA}, s[{sEM}:{sEM+3}], s{sA} offen"}
    {"" if DF else f"buffer_load_dwordx4 {v(SR_+4,4)}, v{rB}, s[{sEM}:{sEM+3}], s{sB} offen"}
    ds_write_b32 v{t4_}, v{nta} offset:{S_CNT}
    ds_write_b32 v{t4_}, v{nta}
    v_readfirstlane_b32 s{sW}, v{t0}
    s_setprio 0
    """)
    srd(a, sP, 10, 256)
    a(f"""
    s_cmp_lt_u32 s2, {NCH}
    s_cbranch_scc1 S_NOTAG
    """)
    HLP = int(OPT["hlp"])
    if HLP:
        a(f"""
        v_and_b32 v{t1}, 63, v0
        v_lshl_add_u32 v{t1}, v{t1}, 3, v{t0}
        v_lshlrev_b32 v{t2}, {HLP}, v{t1}
        v_cmpx_gt_u32 vcc, {(WS_EM + 256*EMS + (1<<HLP) - 1) >> HLP}, v{t1}
        global_load_dword v{vCr+4}, v{t2}, s[64:65]
        s_mov_b64 exec, -1
        s_waitcnt vmcnt(0)
        """)
    a(f"""
    s_cmp_lg_u32 s{sW}, 7
    s_cbranch_scc1 S_NOTAG
    s_or_b32 s{sA}, s66, 1
    v_mov_b32 v{nz}, s{sA}
    v_mov_b32 v{nz+1}, s67
    v_mov_b32 v{nz+2}, 0
    v_mov_b32 v{nz+3}, 0
    s_mov_b64 exec, 1
    buffer_atomic_cmpswap_x2 {v(nz,4)}, v{nta}, s[{sP}:{sP+3}], 0 offen sc1
    s_mov_b64 exec, -1
    s_waitcnt vmcnt(0)
    S_NOTAG:
    s_mov_b32 s68, s10
    s_mov_b32 s69, s11
    s_add_u32 s10, s64, {int(str(OPT["wso"]), 0)}
    s_addc_u32 s11, s65, 0
    s_cmp_lt_u32 s2, {NCH}
    s_cselect_b64 s[52:53], s[52:53], 0
    s_cselect_b64 s[54:55], s[54:55], 0
    v_and_b32 v{lane}, 63, v0
    v_lshlrev_b32 v{l16}, 4, v{lane}
    s_mul_i32 s{sL}, s2, {CH*32}
    s_lshl_b32 s{sT}, s{sW}, 10
    """)
    srd(a, sREC, 6, 0 if "nomv" in OPT["abl"] else 25600000)
    NMM = int(OPT["nmm"])
    if NMM: a(f"s_and_b32 s{sA}, s2, {NMM<<3}\ns_cmp_eq_u32 s{sA}, {NMM<<3}\ns_cselect_b32 s{sREC+2}, 0, s{sREC+2}")
    a(f"s_mul_i32 s{sA}, s2, 12800\ns_add_u32 s{sB}, s{sA}, {M0*4}\ns_waitcnt lgkmcnt(0)\ns_barrier")
    if DF: a(f"buffer_load_dwordx4 {v(SR_,4)}, v{rA}, s[{sEM}:{sEM+3}], s{sA} offen\nbuffer_load_dwordx4 {v(SR_+4,4)}, v{rB}, s[{sEM}:{sEM+3}], s{sB} offen")
    if int(OPT["stl"]):
        a(f"""
        s_lshl_b32 s{sA}, s{sW}, 21
        s_add_u32 s{sB}, s{sA}, 0x1000000
        s_min_u32 s{sN}, s{sB}, {WS_EM + 256*EMS - 64}
        s_load_dword s66, s[10:11], s{sA}
        s_load_dword s66, s[10:11], s{sN}
        s_min_u32 s{sN}, s{sB}, {25600000 - 64}
        s_load_dword s66, s[6:7], s{sA}
        s_load_dword s66, s[6:7], s{sN}
        s_and_b32 s{sA}, s{sA}, 0x200000
        s_load_dword s66, s[8:9], s{sA}
        """)
    npiece = 0 if YM else M0 // 32
    nr = (npiece + 7) // 8
    ES = [int(x) for x in OPT["es"].split(",")]
    assert sum(ES) == nr
    EC = [sum(ES[:i]) for i in range(5)]
    def edma(slot):
        for r in range(EC[slot], EC[slot+1]):
            if (r + 1) * 8 > npiece:
                a(f"s_min_u32 s{sT}, s{sT}, {(npiece - 8*r - 1)*1024}")
            a(f"s_add_u32 m0, s{sT}, {S_E + r*8192}\ns_add_u32 s{sA}, s{sT}, {r*8192}\ns_add_u32 s{sA}, s{sA}, s{sL}\nbuffer_load_dwordx4 v{l16}, s[{sREC}:{sREC+3}], s{sA} offen {OPT['eld']} lds")
    srd(a, sX, 4, 3200000)
    srd(a, sP, 60, 18432)
    def xrows():
        a(f"""
        v_lshrrev_b32 v{t0}, 4, v{lane}
        v_xor_b32 v{t0}, v{t0}, v{lane}
        v_and_b32 v{t0}, 7, v{t0}
        v_and_b32 v{t1}, 0x380, v{l16}
        v_lshl_or_b32 v{t0}, v{t0}, 4, v{t1}
        v_xor_b32 v{t1}, 64, v{t0}
        s_lshl_b32 s{sA}, s{sW}, 11
        s_add_u32 m0, s{sA}, {L_XD}
        s_add_u32 s{sB}, s{sA}, s{sS0}
        buffer_load_dwordx4 v{t0}, s[{sX}:{sX+3}], s{sB} offen {OPT['xld']} lds
        buffer_load_dwordx4 v{t1}, s[{sX}:{sX+3}], s{sB} offen offset:1024 {OPT['xld']} lds
        """)
    a(f"""
    s_and_b32 s74, s2, 7
    s_lshl_b32 s74, s74, 5
    s_lshr_b32 s{sA}, s2, 3
    s_add_u32 s74, s74, s{sA}
    s_lshl_b32 s{sA}, s74, 17
    s_add_u32 s{sA}, s{sA}, 1337
    s_mul_hi_u32 s{sS0}, s{sA}, 3209991
    s_add_u32 s{sA}, s{sA}, 131072
    s_mul_hi_u32 s{sNB}, s{sA}, 3209991
    s_min_u32 s{sNB}, s{sNB}, 25000
    s_sub_u32 s{sNB}, s{sNB}, s{sS0}
    s_and_b32 s{sSB}, s{sW}, 1
    s_mul_i32 s{sSO}, s74, 98
    s_sub_u32 s{sSO}, s{sSO}, s{sS0}
    s_sub_u32 s{sSO}, s{sSO}, 9
    s_lshl_b32 s{sS0}, s{sS0}, 7
    s_mul_i32 s{sGL}, s{sW}, {XRS}
    s_add_u32 s{sGL}, s{sGL}, {L_XR + GLO}
    """)
    XPOS = int(OPT["xpos"])
    def xw1():
        xrows()
        a(f"""
        s_lshl_b32 s{sA}, s{sW}, 10
        s_add_u32 m0, s{sA}, {S_W}
        s_mov_b32 s{sB}, -49
        buffer_load_dwordx4 v{l16}, s[{sP}:{sP+3}], s{sA} offen lds
        """)
    if XPOS == 0: xw1()
    TLB = int(OPT["tlb"])
    srd(a, sWS, 10, 0x1000000)
    if TLB:
        a(f"""
        v_lshl_add_u32 v{t0}, v{lane}, 3, s{sW}
        v_lshlrev_b32 v{t0}, 20, v{t0}
        buffer_load_dword v{vCr+4}, v{t0}, s[{sWS}:{sWS+3}], 0 offen
        """)
    ES0 = int(OPT["es0"])
    if ES0:
        a(f"s_mul_i32 s{sA}, s2, {RCS}\nbuffer_store_dwordx4 {v(FX,4)}, v{t16}, s[{sWS}:{sWS+3}], s{sA} offen sc1")
    edma(0)
    a(f"""
    v_mov_b32 v{one}, 1
    v_mov_b32 v{t7}, 0x10000
    v_lshlrev_b32 v{idx}, 23, v0
    v_add_u32 v{idx}, 9, v{idx}
    v_lshlrev_b32 v{t6}, 5, v{lane}
    s_mov_b32 s{sB}, -49
    s_mov_b32 s{sM7}, {1<<21}
    s_mov_b32 s{sB30}, {2<<21}
    s_mov_b32 s{sDF}, {3<<21}
    s_setprio 2
    """)
    stamp("ka", 2)
    a(f"""
    s_waitcnt vmcnt({EC[1]+2+ES0+(3 if XPOS == 0 else 0)})
    """)
    stamp("srt", 1); stamp("ka", 3)
    for g in range(2):
        for i in range(4*g, 4*g + 4):
            a(f"v_mul_u32_u24 v{PR_+i}, 1338, v{DS_+i}\nv_lshlrev_b32_sdwa v{CAD+i}, 2, v{PR_+i} {SDW}WORD_1")
        a(f"s_mov_b64 exec, {'s[52:53]' if g == 0 else 's[54:55]'}")
        for i in range(4*g, 4*g + 4): a(f"ds_add_rtn_u32 v{RNK+i}, v{CAD+i}, v{one if g == 0 else t7} offset:{S_CNT}")
        a("s_mov_b64 exec, -1")
    edma(1)
    if XPOS == 1: xw1()
    TCH = int(OPT["tch"])
    if TCH:
        a(f"""
        v_lshl_add_u32 v{t0}, v{lane}, 3, s{sW}
        v_cmpx_gt_u32 vcc, {(WS_EM + 256*EMS + (1<<21) - 1) >> 21}, v{t0}
        v_lshlrev_b32 v{t0}, 21, v{t0}
        global_load_dword v{vCr+4}, v{t0}, s[10:11]
        s_mov_b64 exec, -1
        """)
    def recs(rng):
        o = []
        for i in rng:
            o += [f"v_mad_i32_i16 v{PR_+i}, v{PR_+i}, s{sB}, v{DS_+i} op_sel:[1,0,0,0]", f"v_lshl_add_u32 v{PR_+i}, v{SR_+i}, 6, v{PR_+i}",
                  f"v_add3_u32 v{PR_+i}, v{PR_+i}, v{idx}, {('0', f's{sM7}', f's{sB30}', f's{sDF}')[i%4]}"]
        return o
    a("s_waitcnt lgkmcnt(0)\ns_barrier")
    stamp("srt", 2); stamp("tag", 1); stamp("ka", 4)
    OTG = S4
    a(f"""
    ds_read_b128 {v(CS,4)}, v{t6} offset:{S_CNT}
    ds_read_b128 {v(CS+4,4)}, v{t6} offset:{S_CNT+16}
    ds_read_b32 v{OTG+1}, v{t4_} offset:{S_CNT}
    s_waitcnt vmcnt({EC[2]+3+ES0})
    """)
    emit(recs(range(4)))
    a("s_waitcnt lgkmcnt(1)")
    for j in range(1, 8): a(f"v_add_u32 v{CS+j}, v{CS+j}, v{CS+j-1}")
    a(f"v_mov_b32 v{CS+8}, v{CS+7}")
    rr = recs(range(4, 8))
    for n, stp in enumerate(steps): a(f"{rr[2*n]}\n{rr[2*n+1]}\nv_add_u32_dpp v{CS+8}, v{CS+8}, v{CS+8} {stp}")
    a(f"v_sub_u32 v{CS+8}, v{CS+8}, v{CS+7}\nv_add_u32 v{CS+8}, {M0<<16}, v{CS+8}")
    for j in range(7, 0, -1): a(f"v_add_u32 v{CS+j}, v{CS+j-1}, v{CS+8}")
    a(f"""
    v_mov_b32 v{CS}, v{CS+8}
    ds_write_b128 v{t6}, {v(CS,4)} offset:{S_STA}
    ds_write_b128 v{t6}, {v(CS+4,4)} offset:{S_STA+16}
    """)
    for i in range(8): a(f"ds_read_b32 v{DS_+i}, v{CAD+i} offset:{S_STA}")
    a(f"ds_read_b32 v{OTG}, v{t4_} offset:{S_STA}")
    edma(2)
    for i in range(8):
        if i % 4 == 0: a(f"s_mov_b64 exec, {'s[52:53]' if i == 0 else 's[54:55]'}")
        a(f"""
        s_waitcnt lgkmcnt(8)
        v_add_u32 v{DS_+i}, v{DS_+i}, v{RNK+i}
        v_lshlrev_b32_sdwa v{DS_+i}, 2, v{DS_+i} {SDW}{'WORD_0' if i < 4 else 'WORD_1'}
        ds_write_b32 v{DS_+i}, v{PR_+i} offset:{S_SRT}
        """)
    a("s_mov_b64 exec, -1")
    stamp("srt", 3); stamp("ka", 5)
    a(f"s_load_dwordx2 s[{sTAG}:{sTAG+1}], s[68:69], 0")
    WPOS = int(OPT["wpos"])
    def wrest():
        srd(a, sE, 62, 16384)
        a(f"""
        s_lshl_b32 s{sA}, s{sW}, 10
        s_add_u32 s{sA}, s{sA}, 8192
        s_add_u32 m0, s{sA}, {S_W}
        s_lshl_b32 s{sB}, s{sSB}, 10
        buffer_load_dwordx4 v{l16}, s[{sP}:{sP+3}], s{sA} offen lds
        s_add_u32 s{sB}, s{sB}, 16384
        s_add_u32 m0, s{sB}, {S_W}
        s_lshl_b32 s{sA}, s{sW}, 11
        buffer_load_dwordx4 v{l16}, s[{sP}:{sP+3}], s{sB} offen lds
        s_lshr_b32 s{sN}, s{sW}, 1
        s_mul_i32 s{sN}, s{sN}, {XRS - 4096}
        s_add_u32 s{sN}, s{sN}, s{sA}
        s_add_u32 m0, s{sN}, {S_WU}
        s_nop 0
        buffer_load_dwordx4 v{l16}, s[{sE}:{sE+3}], s{sA} offen lds
        buffer_load_dwordx4 v{l16}, s[{sE}:{sE+3}], s{sA} offen offset:1024 lds
        """)
    if WPOS == 1: wrest()
    a(f"""
    v_lshrrev_b32 v{t1}, 1, v0
    v_lshlrev_b32 v{t1}, 2, v{t1}
    s_waitcnt vmcnt({(EC[3] if XPOS == 0 else ES[2]) + 4*WPOS}) lgkmcnt(0)
    s_barrier
    """)
    if MODE == "ka": a("s_waitcnt vmcnt(0)")
    stamp("srt", 4); stamp("tag", 2); stamp("ka", 6)
    no = 0 if YM else (M0 + 255) // 256
    a(f"ds_read_b128 {v(D,4)}, v{t16} offset:{S_SRT}\nds_read_b128 {v(D+4,4)}, v{t16} offset:{S_SRT+M0*4}")
    for r in range(no): a(f"ds_read_b32 v{SG+r}, v{t1} offset:{S_SRT+1024*r}")
    edma(3)
    a(f"""
    s_mul_i32 s{sA}, s2, {RCS}
    s_add_u32 s{sB}, s{sA}, 8192
    v_and_b32 v{t2}, 1, v0
    v_lshlrev_b32 v{t2}, 4, v{t2}
    s_waitcnt lgkmcnt({no})
    buffer_store_dwordx4 {v(D,4)}, v{rA}, s[{sWS}:{sWS+3}], s{sA} offen sc1
    buffer_store_dwordx4 {v(D+4,4)}, v{rB}, s[{sWS}:{sWS+3}], s{sB} offen sc1
    """)
    stamp("tag", 3)
    a(f"""
    s_mul_i32 s{sN}, s2, {OTS}
    s_add_u32 s{sN}, s{sN}, {WS_O}
    s_mov_b32 s{sB}, 0
    s_cmp_lg_u32 s{sTAG}, 0
    s_cbranch_scc1 S_TAGD
    S_TAGL:
    s_sleep 8
    global_load_dwordx2 {v(OTG+2,2)}, v{nta}, s[68:69] sc1
    s_add_u32 s{sB}, s{sB}, 1
    s_cmp_gt_u32 s{sB}, {SPIN}
    s_cbranch_scc1 M_END
    s_waitcnt vmcnt(0)
    v_readfirstlane_b32 s{sTAG}, v{OTG+2}
    v_readfirstlane_b32 s{sTAG+1}, v{OTG+3}
    s_nop 0
    s_cmp_eq_u32 s{sTAG}, 0
    s_cbranch_scc1 S_TAGL
    S_TAGD:
    """)
    stamp("tag", 4)
    a(f"""
    v_add_u32 v{OTG}, {(2048-M0)<<16}, v{OTG}
    v_mov_b32 v{OTG+2}, s{sTAG}
    v_mov_b32 v{OTG+3}, s{sTAG+1}
    buffer_store_dwordx4 {v(OTG,4)}, v{t16}, s[{sWS}:{sWS+3}], s{sN} offen sc1
    s_movk_i32 s{sB}, {(M0 - 256*(no-1))*2}
    v_cmp_gt_u32 vcc, s{sB}, v0
    v_mov_b32 v{t4}, v{t16}
    v_and_b32 v{m}, 31, v{lane}
    v_lshrrev_b32 v{h}, 5, v{lane}
    v_cndmask_b32 v{t6}, v{hz}, v{t16}, vcc
    v_lshlrev_b32 v{t0}, 3, v0
    v_add_u32 v{t0}, {L_C8}, v{t0}
    v_mov_b32 v{D+8}, 0
    v_mov_b32 v{D+9}, 0
    ds_write_b64 v{t0}, {v(D+8,2)}
    v_bfe_u32 v{t1}, v{lane}, 2, 2
    v_lshl_add_u32 v{t1}, v{h}, 3, v{t1}
    v_lshlrev_b32 v{t1}, 7, v{t1}
    v_and_b32 v{t3}, 3, v{lane}
    v_lshl_add_u32 v{aN}, v{t3}, 3, v{t1}
    v_and_b32 v{t3}, 16, v{lane}
    v_lshl_add_u32 v{aN}, v{t3}, 1, v{aN}
    v_add_u32 v{t1}, v{t1}, v{t3}
    v_and_b32 v{t3}, 1, v{lane}
    v_lshl_add_u32 v{t1}, v{t3}, 5, v{t1}
    v_and_b32 v{t3}, 2, v{lane}
    v_lshl_add_u32 v{t1}, v{t3}, 2, v{t1}
    s_lshl_b32 s{sA}, s{sSB}, 6
    v_add_u32 v{sa}, s{sA}, v{t1}
    v_bfe_u32 v{sac}, v{m}, 1, 3
    v_xor_b32 v{sac}, v{sac}, v{h}
    v_lshlrev_b32 v{sac}, 4, v{sac}
    v_lshl_or_b32 v{sac}, v{m}, 7, v{sac}
    s_and_b32 s{sA}, s{sW}, 6
    s_lshl_b32 s{sA}, s{sA}, 11
    s_add_u32 s{sA}, s{sA}, {L_XD}
    v_add_u32 v{sac}, s{sA}, v{sac}
    s_waitcnt lgkmcnt(1)
    """)
    for r in range(no):
        a(f"v_lshrrev_b32 v{SG+r}, 21, v{SG+r}\nv_lshl_add_u32 v{SG+r}, v{SG+r}, 5, v{t2}")
    srd_off(a, sEM, 10, WS_EM, 0 if "nomv" in OPT["abl"] else 256 * EMS)
    OG = E + 12
    a(f"""
    s_lshl_b32 s{sOA}, s74, 5
    s_mul_i32 s{sA}, s{sW}, {32*OTS}
    s_add_u32 s{sOA}, s{sOA}, s{sA}
    s_add_u32 s{sOA}, s{sOA}, {WS_O}
    v_lshrrev_b32 v{lh}, 1, v{lane}
    v_mul_u32_u24 v{lh}, {OTS - 32}, v{lh}
    v_add_u32 v{lh}, v{lh}, v{l16}
    s_mov_b32 s74, {f32(-LOG2E)}
    s_mov_b32 s75, {f32(-LOG2E)}
    """)
    XF, W1t, Wx, PD, EO = FX, AG, EP, AG + 16, Q
    def tr(dst, areg, off):
        a(f"ds_read_b64_tr_b16 {v(dst,2)}, v{areg} offset:{S_W+off}\nds_read_b64_tr_b16 {v(dst+2,2)}, v{areg} offset:{S_W+off+512}")
    def w2read():
        for sx in range(4):
            for nh in range(2): tr(AG + (2*sx + nh)*4, aN, 8192 + 2048*sx + 64*nh)
    for sx in range(4):
        a(f"ds_read_b128 {v(XF+4*sx,4)}, v{sac}" + (f"\nv_xor_b32 v{sac}, {(32, 96, 32)[sx]}, v{sac}" if sx < 3 else ""))
        tr(W1t + 4*sx, sa, 2048*sx)
    a("s_waitcnt lgkmcnt(0)")
    for sx in range(4):
        a(f"v_mfma_f32_32x32x16_bf16 {v(PD,16)}, {v(W1t+4*sx,4)}, {v(XF+4*sx,4)}, {'0' if sx == 0 else v(PD,16)}")
    a(f"""
    v_and_b32 v{t0}, 15, v{m}
    v_mul_u32_u24 v{t0}, 144, v{t0}
    v_lshl_add_u32 v{t0}, v{h}, 5, v{t0}
    v_lshrrev_b32 v{t1}, 4, v{m}
    v_mul_u32_u24 v{t1}, {XRS}, v{t1}
    s_mul_i32 s{sA}, s{sSB}, {64 - XRS}
    s_add_u32 s{sA}, s{sA}, s{sGL}
    v_add3_u32 v{t0}, v{t0}, v{t1}, s{sA}
    v_lshrrev_b32 v{t1}, 3, v{lane}
    v_lshl_add_u32 v{t3}, v{t1}, 4, v{l16}
    v_add_u32 v{t3}, s{sGL}, v{t3}
    s_lshl_b32 s{sA}, s{sW}, 11
    s_lshl_b32 s{sB}, s{sNB}, 7
    v_add_u32 v{t1}, s{sA}, v{l16}
    v_add_u32 v{t5}, 1024, v{t1}
    v_cmp_gt_u32 vcc, s{sB}, v{t1}
    v_cmp_gt_u32 s[52:53], s{sB}, v{t5}
    s_mov_b32 s{sCAP}, 512
    s_mov_b32 s{sBASE}, 0
    v_cndmask_b32 v{t1}, v{hz}, v{t1}, vcc
    v_cndmask_b32 v{t5}, v{hz}, v{t5}, s[52:53]
    """)
    for i in range(8): a(f"v_pk_mul_f32 {v(PD+2*i,2)}, {v(PD+2*i,2)}, s[74:75]")
    for i in range(8): a(f"v_cvt_pk_bf16_f32 v{PD+i}, v{PD+2*i}, v{PD+2*i+1}")
    a(f"""
    ds_write_b128 v{t0}, {v(PD,4)}
    ds_write_b128 v{t0}, {v(PD+4,4)} offset:16
    """)
    stamp("tag", 5)
    if WPOS == 0: wrest()
    a(f"""
    s_add_u32 s{sB}, s{sS0}, {WS_P}
    s_waitcnt vmcnt({7 if WPOS == 0 else 3}) lgkmcnt(0)
    s_barrier
    """)
    stamp("srt", 5); stamp("top", 1); stamp("tag", 6)
    a(f"ds_read_b128 {v(D+16,4)}, v{t3}\nds_read_b128 {v(D+20,4)}, v{t3} offset:{8*144}")
    for r in range(no): a(f"ds_read_b128 {v(EO+4*r,4)}, v{SG+r} offset:{S_E}")
    a(f"""
    s_waitcnt lgkmcnt({no})
    buffer_store_dwordx4 {v(D+16,4)}, v{t1}, s[{sWS}:{sWS+3}], s{sB} offen sc1
    buffer_store_dwordx4 {v(D+20,4)}, v{t5}, s[{sWS}:{sWS+3}], s{sB} offen sc1
    """)
    CEM = int(OPT["cem"])
    if NMM: a(f"s_and_b32 s{sA}, s2, {NMM<<3}\ns_cmp_eq_u32 s{sA}, {NMM<<3}\ns_cbranch_scc1 S_NOEM")
    a(f"s_mul_i32 s{sA}, s2, {EMS}" if CEM else f"s_lshl_b32 s{sA}, s2, 17")
    for r in range(no):
        a(f"s_waitcnt lgkmcnt({no-1-r})\nbuffer_store_dwordx4 {v(EO+4*r,4)}, v{t6 if r == no-1 else t4}, s[{sEM}:{sEM+3}], s{sA} offen {OPT['st']}\ns_add_u32 s{sA}, s{sA}, 8192")
    a(f"""
    S_NOEM:
    s_mov_b32 s92, 1
    s_lshl_b32 s{sN}, s2, {int(OPT["fst"])}
    s_add_u32 s{sN}, s{sN}, {WS_F2}
    """)
    stamp("srt", 6); stamp("syn", 1)
    FST = int(OPT["fst"])
    f2r = E + 9
    OE = int(OPT["oe"]); XE = 0
    oload = f"buffer_load_dwordx4 {v(OG,4)}, v{lh}, s[{sWS}:{sWS+3}], s{sOA} offen sc1"
    if OE == 1: a(oload)
    a("s_setprio 0")
    OTW = int(OPT['otw'])
    def wwork():
        a(f"v_add_u32 v{sa}, {S_WU - S_W}, v{sa}\ns_mul_i32 s{sB}, s{sSB}, {XRS}\nv_add_u32 v{t2}, s{sB}, v{sa}\nv_subrev_u32 v{t3}, s{sB}, v{sa}")
        for nh in range(2): tr(D + 8 + 4*nh, aN, 128*128 + 64*nh)
        for sx in range(4): tr(Wx + 4*sx, sa, XRS*(sx>>1) + 2048*(sx&1))
        a("s_waitcnt lgkmcnt(0)")
        for sx in range(4):
            a(f"v_mfma_f32_32x32x16_bf16 {v(U0,16)}, {v(Wx+4*sx,4)}, {v(XF+4*sx,4)}, {'0' if sx == 0 else v(U0,16)}")
        tr(WU, t2, 2*XRS); tr(WU + 4, t2, 2*XRS + 2048); tr(WU + 8, t3, 3*XRS); tr(WU + 12, t3, 3*XRS + 2048)
        w2read()
        for nh in range(2):
            for i in range(4):
                r = D + 8 + 4*nh + i
                a(f"v_lshlrev_b32 v{t0}, 16, v{r}\nv_and_b32 v{t1}, 0xffff0000, v{r}\nv_pk_mul_f32 {v(t0,2)}, {v(t0,2)}, s[74:75]\nv_cvt_pk_bf16_f32 v{W+8+4*nh+i}, v{t0}, v{t1}")
    def lanec():
        srd_off(a, sP, 10, WS_P, 3200000)
        if int(OPT["smf"]):
            a(f"""
            v_and_b32 v{t1}, 1, v{m}
            v_lshlrev_b32 v{t1}, 4, v{t1}
            v_mov_b32 v{t2}, 0x3f80
            v_lshlrev_b32 v{t1}, v{t1}, v{t2}
            v_lshrrev_b32 v{t0}, 2, v{m}
            v_lshlrev_b32 v{t2}, 2, v{h}
            v_sub_u32 v{t0}, v{t0}, v{t2}
            v_bfe_i32 v{t2}, v{m}, 1, 1
            v_and_b32 v{t2}, 0xaaaa, v{t2}
            v_or_b32 v{W+4}, 0x4444, v{t2}
            """)
            for i in range(4):
                a(f"v_cmp_eq_u32 vcc, {i}, v{t0}\ns_nop 1\nv_cndmask_b32 v{W+i}, 0, v{t1}, vcc")
        else:
            a(f"""
            v_lshlrev_b32 v{t0}, 3, v{h}
            v_sub_u32 v{t0}, v{m}, v{t0}
            v_and_b32 v{t1}, 1, v{t0}
            v_lshlrev_b32 v{t1}, 4, v{t1}
            v_mov_b32 v{t2}, 0x3f80
            v_lshlrev_b32 v{t1}, v{t1}, v{t2}
            v_lshrrev_b32 v{t0}, 1, v{t0}
            """)
            for j in range(2):
                for i in range(4):
                    a(f"v_cmp_eq_u32 vcc, {8*j+i}, v{t0}\ns_nop 1\nv_cndmask_b32 v{W+4*j+i}, 0, v{t1}, vcc")
        a(f"""
        s_mul_i32 s{sSTB}, s{sW}, {SCAP*32}
        s_add_u32 s{sSTB}, s{sSTB}, {L_ST}
        s_mov_b32 s{sREC}, s10
        s_or_b32 s{sREC+1}, s11, {4<<16}
        s_mov_b32 s{sREC+2}, {WS_O//4}
        s_mov_b32 s{sREC+3}, 0x20000
        s_sub_u32 s{sE}, s6, {DFLAG*32}
        s_subb_u32 s{sE+1}, s7, 0
        s_or_b32 s{sE+1}, s{sE+1}, {32<<16}
        s_mov_b32 s{sE+2}, {(DFLAG + 800000) * ne}
        s_mov_b32 s{sE+3}, 0x20000
        s_sub_u32 s{sG}, 11, s{sW}
        s_cmp_lt_u32 s{sW}, 4
        s_cselect_b32 s{sG}, s{sW}, s{sG}
        s_mul_i32 s{sXRB}, s{sG}, {XRS}
        s_add_u32 s{sXRB}, s{sXRB}, {L_XR}
        s_mov_b32 s{sM7}, 0xffffff80
        s_mov_b32 s{sB30}, 0x40000000
        s_mov_b32 s{sDF}, {DFLAG}
        v_lshlrev_b32 v{RP+1}, 4, v{h}
        v_lshlrev_b32 v{RP+3}, 4, v{h}
        v_lshlrev_b32 v{RP+5}, 4, v{h}
        v_lshlrev_b32 v{RP+7}, 4, v{h}
        v_lshrrev_b32 v{t0}, 3, v{lane}
        s_lshl_b32 s{sA}, s{sG}, 7
        v_lshl_add_u32 v{vLS}, v{t0}, 4, s{sA}
        v_lshl_add_u32 v{vLE}, v{m}, 2, s{sA}
        v_and_b32 v{t3}, 1, v{t0}
        v_lshlrev_b32 v{t3}, 4, v{t3}
        v_lshl_add_u32 v{sac}, v{lane}, 5, v{t3}
        v_add_u32 v{sac}, s{sSTB}, v{sac}
        v_and_b32 v{t1}, 4, v{t0}
        v_and_b32 v{t2}, 7, v{lane}
        v_xor_b32 v{t1}, v{t1}, v{t2}
        v_lshlrev_b32 v{CX}, 4, v{t1}
        v_xor_b32 v{CX+1}, 16, v{CX}
        v_xor_b32 v{CX+2}, 32, v{CX}
        v_xor_b32 v{CX+3}, 48, v{CX}
        v_and_b32 v{t0}, 3, v{m}
        v_lshrrev_b32 v{t1}, 2, v{m}
        v_lshl_add_u32 v{t1}, v{t0}, 3, v{t1}
        v_lshlrev_b32 v{t1}, 7, v{t1}
        v_add_u32 v{t1}, s{sXRB}, v{t1}
        v_lshrrev_b32 v{t2}, 4, v{m}
        v_lshl_or_b32 v{t0}, v{t2}, 2, v{t0}
        v_xor_b32 v{t0}, v{t0}, v{h}
        v_lshl_add_u32 v{XA}, v{t0}, 4, v{t1}
        v_xor_b32 v{XA+1}, 32, v{XA}
        v_xor_b32 v{XA+2}, 64, v{XA}
        v_xor_b32 v{XA+3}, 0x60, v{XA}
        """)
    if WPOS: wwork()
    else: lanec()
    if OE == 2: a(oload)
    SP = [int(x) for x in OPT["sp"].split(",")]
    spn = [0]
    def sshot(k):
        for _ in range(SP[k]):
            if spn[0] and spn[0] % 32 == 0: a("s_add_u32 s4, s4, 0x100000\ns_addc_u32 s5, s5, 0")
            a(f"s_load_dword s7, s[4:5], {(spn[0] % 32) * 32768}"); spn[0] += 1
    if sum(SP):
        a(f"""
        s_lshr_b32 s{sA}, s2, 3
        s_lshl_b32 s{sA}, s{sA}, 7
        s_lshl_b32 s{sB}, s{sW}, 12
        s_add_u32 s{sA}, s{sA}, s{sB}
        s_add_u32 s{sA}, s{sA}, {WS_P}
        s_add_u32 s4, s10, s{sA}
        s_addc_u32 s5, s11, 0
        """)
    sshot(0)
    stamp("syn", 2)
    a(f"""
    s_setprio 2
    s_cmp_lg_u32 s{sW}, 0
    s_waitcnt vmcnt(0)
    s_barrier
    s_cbranch_scc1 M_NOPUB
    s_mov_b64 exec, 1
    buffer_store_dwordx2 {v(OTG+2,2)}, v{nta}, s[{sWS}:{sWS+3}], s{sN} offen sc1
    s_mov_b64 exec, -1
    M_NOPUB:
    s_mov_b32 s{sA}, 0
    """)
    stamp("syn", 3)
    a(f"s_nop 7\n{oload}")
    XE = int(OPT["xe"])
    if XE:
        a(f"""
        s_lshr_b32 s{sA}, s2, 3
        s_lshl_b32 s{sA}, s{sA}, 7
        v_lshl_add_u32 v{t0}, v{lane}, 3, s{sW}
        v_cmpx_gt_u32 vcc, {XE}, v{t0}
        v_lshlrev_b32 v{t0}, 12, v{t0}
        buffer_load_dword v{vCr+4}, v{t0}, s[{sP}:{sP+3}], s{sA} offen sc1
        s_mov_b64 exec, -1
        """)
    if WPOS: lanec()
    else: wwork()
    a(f"s_mov_b32 s{sA}, 0\ns_waitcnt vmcnt({1 if XE else 0})")
    kk12, c0, c1, g0, g1, p0, p1, tt, qa, f2r, fl0 = [E + i for i in range(11)]
    G, RC, NA, RK = D, D + 8, D + 16, D + 24
    TBv = FX
    OFv, CA = EP, EP + 8
    a(f"""
    s_branch M_POLLC
    M_BATCH:
    v_lshrrev_b32 v{lh}, 1, v{lane}
    v_mul_u32_u24 v{lh}, {OTS - 32}, v{lh}
    v_add_u32 v{lh}, v{lh}, v{l16}
    s_mov_b32 s{sA}, 0
    M_POLL:
    s_sleep {OPT["osl"]}
    buffer_load_dwordx4 {v(OG,4)}, v{lh}, s[{sWS}:{sWS+3}], s{sOA} offen sc1
    s_add_u32 s{sA}, s{sA}, 1
    s_cmp_gt_u32 s{sA}, {SPIN}
    s_cbranch_scc1 M_END
    s_waitcnt vmcnt(0)
    M_POLLC:
    v_cmpx_ne_u64 vcc, s[{sTAG}:{sTAG+1}], {v(OG+2,2)}
    s_cbranch_execnz M_POLL
    s_mov_b64 exec, -1
    s_lshl_b32 s{sA}, s{sW}, 5
    v_lshrrev_b32 v{lh}, 1, v{lane}
    v_add_lshl_u32 v{kk12}, v{lh}, s{sA}, 12
    v_lshl_or_b32 v{kk12}, v{lane}, 31, v{kk12}
    v_lshl_add_u32 v{qa}, v{lane}, 2, s{sGL}
    v_mov_b32 v{t1}, 0xffff
    s_lshl_b32 s4, s{sW}, {FST+5}
    s_add_u32 s4, s4, {WS_F2}
    v_lshlrev_b32 v{vCr}, {FST}, v{m}
    """)
    FV = vCr + 1
    fl_ = f"buffer_load_dwordx2 {v(FV,2)}, v{vCr}, s[{sWS}:{sWS+3}], s4 offen sc1"
    stamp("pro", 1); stamp("syn", 4)
    a(f"v_and_b32 v{p0}, v{t1}, v{OG+1}\nv_lshrrev_b32 v{p1}, 16, v{OG+1}")
    if NMM:
        a(f"""
        v_and_b32 v{tt}, {NMM<<4}, v{lane}
        v_cmp_eq_u32 s[52:53], {NMM<<4}, v{tt}
        v_add_u32 v{tt}, v{p0}, v{p1}
        s_nop 0
        v_cndmask_b32 v{p1}, v{p1}, v{tt}, s[52:53]
        v_cndmask_b32 v{p0}, v{p0}, 0, s[52:53]
        """)
    fl = [f"v_and_or_b32 v{g0}, v{OG}, v{t1}, v{kk12}", f"v_lshrrev_b32 v{g1}, 16, v{OG}", f"v_or_b32 v{g1}, v{g1}, v{kk12}",
          f"v_and_b32 v{c0}, v{t1}, v{OG+1}", f"v_lshrrev_b32 v{c1}, 16, v{OG+1}", "s_nop 0"]
    for n, stp in enumerate(steps):
        a(f"{fl[n]}\nv_add_u32_dpp v{p0}, v{p0}, v{p0} {stp}\nv_add_u32_dpp v{p1}, v{p1}, v{p1} {stp}")
    a(f"""
    v_readlane_b32 s{sNS}, v{p0}, 63
    v_readlane_b32 s{sN}, v{p1}, 63
    v_sub_u32 v{p0}, v{p0}, v{c0}
    v_sub_u32 v{p1}, v{p1}, v{c1}
    s_add_u32 s{sN}, s{sN}, s{sNS}
    v_add_u32 v{p1}, s{sNS}, v{p1}
    {f"v_sub_u32 v{tt}, v{p1}, v{c0}" if NMM else ""}
    {f"v_cndmask_b32 v{p0}, v{p0}, v{tt}, s[52:53]" if NMM else ""}
    s_mov_b32 s{sCNT}, s{sN}
    s_add_u32 s{sA}, s{sN}, s{sBASE}
    s_cmp_le_u32 s{sA}, s{sCAP}
    s_cbranch_scc0 M_WIN
    s_cmp_eq_u32 s{sBASE}, 0
    s_cbranch_scc1 M_NOWIN
    M_WIN:
    s_sub_i32 s{sCNT}, s{sN}, s{sBASE}
    s_max_i32 s{sCNT}, s{sCNT}, 0
    s_min_u32 s{sCNT}, s{sCNT}, s{sCAP}
    s_sub_i32 s{sNS}, s{sNS}, s{sBASE}
    s_max_i32 s{sNS}, s{sNS}, 0
    """)
    for (pp, cc, gg) in ((p0, c0, g0), (p1, c1, g1)):
        a(f"""
        v_subrev_u32 v{tt}, s{sBASE}, v{pp}
        v_max_i32 v{pp}, 0, v{tt}
        v_add_u32 v{cc}, v{tt}, v{cc}
        v_min_i32 v{cc}, s{sCAP}, v{cc}
        v_sub_u32 v{cc}, v{cc}, v{pp}
        v_sub_u32 v{tt}, v{pp}, v{tt}
        v_add_u32 v{gg}, v{gg}, v{tt}
        """)
    a(f"M_NOWIN:\ns_min_u32 s{sNS}, s{sNS}, {0 if YM else SCAP}")
    pa, ca_, ga, gb = t0, t1, t2, t3
    for n, (pp, cc, gg) in enumerate(((p0, c0, g0), (p1, c1, g1))):
        a(f"""
        v_lshl_add_u32 v{pp}, v{pp}, 2, s{sGL}
        v_add_u32 v{ga}, 1, v{gg}
        v_add_u32 v{gb}, 2, v{gg}
        v_mov_b32 v{ca_}, v{cc}
        v_mov_b32 v{pa}, v{pp}
        M_EXP{n}:
        """)
        for r in (1, 3, 5, 7):
            a(f"v_cmpx_lt_i32 vcc, {r}, v{ca_}\nds_write2_b32 v{pa}, v{ga}, v{gb} offset0:{r} offset1:{r+1}\nv_add_u32 v{ga}, 2, v{ga}\nv_add_u32 v{gb}, 2, v{gb}")
        a(f"""
        v_cmpx_lt_i32 vcc, 9, v{ca_}
        v_add_u32 v{pa}, 32, v{pa}
        v_subrev_u32 v{ca_}, 8, v{ca_}
        s_cbranch_execnz M_EXP{n}
        s_mov_b64 exec, -1
        """)
    a(f"""
    v_cmpx_lt_i32 vcc, 0, v{c0}
    ds_write_b32 v{p0}, v{g0}
    s_mov_b64 exec, -1
    v_cmpx_lt_i32 vcc, 0, v{c1}
    ds_write_b32 v{p1}, v{g1}
    s_mov_b64 exec, -1
    """)
    a(fl_)
    for i in ORD:
        a(f"ds_read_b32 v{G+i}, v{qa} offset:{256*i}")
    a(f"v_lshl_add_u32 v{t1}, v{lh}, 2, s{sGL}")
    for j in range(NSP):
        a(f"ds_read_b32 v{SG+j}, v{t1} offset:{128*j}")
    for i in ORD:
        a(f"s_sub_i32 s{sA}, s{sCNT}, {64*i}\nv_cmp_gt_i32 {mk(i)}, s{sA}, v{lane}")
    a(f"s_waitcnt lgkmcnt({NSP})")
    for i in ORD: a(f"v_lshlrev_b32 v{RC+i}, 2, v{G+i}")
    stamp("pro", 2); stamp("syn", 5)
    a(f"""
    s_mov_b32 s{sA}, 0
    s_branch M_FL1
    M_FL:
    s_sleep {OPT["osl"]}
    {fl_}
    s_add_u32 s{sA}, s{sA}, 1
    s_cmp_gt_u32 s{sA}, {SPIN}
    s_cbranch_scc1 M_END
    M_FL1:
    s_waitcnt vmcnt(0)
    v_cmpx_ne_u64 vcc, s[{sTAG}:{sTAG+1}], {v(FV,2)}
    s_cbranch_execnz M_FL
    M_READY:
    """)
    stamp("top", 2); stamp("syn", 6); stamp("lb", 1)
    skip("M_GA")
    for i in ORD:
        a(f"s_mov_b64 exec, {mk(i)}\nbuffer_load_dword v{RC+i}, v{RC+i}, s[{sWS}:{sWS+3}], 0 offen {LD}")
        after("M_GA", i)
    a("s_mov_b64 exec, -1")
    if OTW == 1:
        a("s_cmp_eq_u32 s92, 0\ns_cbranch_scc1 M_NOW\ns_setprio 0")
        wwork()
        a("s_setprio 2\nM_NOW:")
    a(f"""
    v_lshrrev_b32 v{t2}, 4, v{lane}
    v_xor_b32 v{t2}, v{t2}, v{lane}
    v_and_b32 v{t2}, 1, v{t2}
    v_lshlrev_b32 v{t2}, 4, v{t2}
    v_mov_b32 v{fl0}, s{sCNT}
    v_mov_b32 v{fl0+1}, s{sN}
    s_waitcnt lgkmcnt(0)
    """)
    if CEM: a(f"s_mov_b32 s{sA}, {EMS//32-4096}")
    for j in range(NSP):
        if CEM: a(f"v_bfe_u32 v{t3}, v{SG+j}, 12, 8\nv_mad_i32_i24 v{SG+j}, v{t3}, s{sA}, v{SG+j}")
        a(f"v_lshl_add_u32 v{SG+j}, v{SG+j}, 5, v{t2}")
    stamp("lb", 2)
    if int(OPT["barA"]): a("s_barrier")
    stamp("lb", 3)
    def stage(js):
        for j in ([] if YM else js):
            a(f"""
            s_sub_i32 s{sA}, s{sNS}, {32*j}
            s_add_u32 m0, s{sSTB}, {1024*j}
            v_cmpx_gt_i32 vcc, s{sA}, v{lh}
            buffer_load_dwordx4 v{SG+j}, s[{sEM}:{sEM+3}], 0 offen {LD} lds
            """)
        a("s_mov_b64 exec, -1")
    NS1 = int(OPT["ns1"]); NS2 = int(OPT["ns2"])
    stage(range(NS1))
    XW = int(OPT["xw"])
    def pwarm():
        if XW:
            a(f"""
            s_lshr_b32 s{sA}, s2, 3
            s_mul_i32 s{sA}, s{sA}, {XW*128}
            s_add_u32 s{sA}, s{sA}, {XE*4096}
            v_lshl_add_u32 v{tt}, v{lane}, 3, s{sW}
            v_cmpx_gt_u32 vcc, {XW}, v{tt}
            v_lshlrev_b32 v{tt}, 7, v{tt}
            buffer_load_dword v{vCr+4}, v{tt}, s[{sP}:{sP+3}], s{sA} offen sc1
            s_mov_b64 exec, -1
            """)
    a(f"s_movk_i32 s{sB}, {CH}\nv_mov_b32 v{t0}, s{sDF}\nv_mov_b32 v{t2}, s{sSO}")
    skip("M_DW")
    for i in ORD:
        a(f"""
        v_lshrrev_b32 v{NA+i}, 31, v{G+i}
        v_mad_u32_u24 v{NA+i}, v{NA+i}, 49, v{t2}
        """)
        after("M_DW", i)
    a(f"""
    s_mov_b32 s75, {L_C8}
    s_mov_b64 exec, 1
    ds_add_u32 v{nta}, v{fl0} offset:{L_NT}
    ds_max_u32 v{nta}, v{fl0+1} offset:{L_MX}
    """)
    stamp("lb", 4)
    skip("M_RK")
    for i in ORD:
        a(f"""
        s_mov_b64 exec, {mk(i)}
        s_waitcnt vmcnt({i+NS1})
        v_and_b32 v{CA+i}, 63, v{RC+i}
        v_bfe_u32 v{tt}, v{RC+i}, 18, 3
        v_add_u32 v{NA+i}, v{CA+i}, v{NA+i}
        v_lshl_add_u32 v{CA+i}, v{NA+i}, 2, s75
        v_lshl_add_u32 v{CA+i}, v{tt}, 9, v{CA+i}
        ds_add_rtn_u32 v{RK+i}, v{CA+i}, v{one}
        """)
        after("M_RK", i)
    def pack(lab):
        a(f"s_movk_i32 s{sB}, {CH}\ns_mov_b32 s74, {int(OPT['epf'])*128}")
        skip(lab)
        for i in ORD:
            a(f"""
            v_bfe_u32 v{t0}, v{G+i}, 12, 8
            v_lshrrev_b32 v{tt}, 21, v{RC+i}
            v_bfe_i32 v{t1}, v{G+i}, 11, 1
            v_mad_u32_u24 v{tt}, v{t0}, s{sB}, v{tt}
            v_and_b32 v{t1}, {M0}, v{t1}
            v_bfe_u32 v{RC+i}, v{RC+i}, 6, 15
            v_add3_u32 v{G+i}, v{t1}, v{tt}, s{sDF}
            v_lshl_add_u32 v{RC+i}, v{RC+i}, 7, v{NA+i}
            v_lshlrev_b32 v{NA+i}, 3, v{NA+i}
            """)
            if 64 * i < SCAP and not YM:
                a(f"""
                s_sub_i32 s{sA}, s{sNS}, {64*i}
                v_cmp_gt_i32 vcc, s{sA}, v{lane}
                v_add_u32 v{tt}, {2048*i}, v{sac}
                s_nop 0
                v_cndmask_b32 v{G+i}, v{G+i}, v{tt}, vcc
                """)
            after(lab, i)
    EPOS = int(OPT["epos"]); NEP = 0
    def eprefetch():
        if not int(OPT["epf"]): return
        for i in ((6, 5, 4, 3, 2, 1) if NMM else (6, 5, 4, 3, 2)):
            a(f"s_mov_b64 exec, {mk(i)}\nv_cmpx_gt_u32 vcc, s74, v{RC+i}" + ("" if 64 * i >= SCAP else f"\nv_cmpx_le_u32 vcc, s{sDF}, v{G+i}") + f"\nbuffer_load_dword v{vCr+4}, v{G+i}, s[{sE}:{sE+3}], 0 idxen")
        a("s_mov_b64 exec, -1")
    if int(OPT["epf"]): NEP = 6 if NMM else 5
    if XW: NEP += 1
    a("s_mov_b64 exec, -1")
    stamp("pro", 3); stamp("lb", 5)
    a(f"""
    s_cmp_eq_u32 s{sW}, 0
    s_cbranch_scc1 M_PK0
    s_lshl_b32 s{sA}, s{sW}, 8
    s_add_u32 s{sA}, s{sA}, {L_C8 - 256}
    v_lshl_add_u32 v{S4}, v{lane}, 2, s{sA}
    v_mov_b32 v{Q+8}, 0
    s_waitcnt lgkmcnt(0)
    s_barrier
    """)
    stamp("pro", 4); stamp("lb", 6)
    a(f"s_cmp_gt_u32 s{sW}, 2\ns_cbranch_scc1 M_NOPFX")
    for j in range(3): a(f"ds_read2st64_b32 {v(Q+2*j,2)}, v{S4} offset0:{4*j} offset1:{4*j+2}")
    a(f"s_waitcnt lgkmcnt(0)\nv_mov_b32 v{Q+9}, v{Q}")
    for j in range(1, 6): a(f"v_add_u32 v{Q+9+j}, v{Q+8+j}, v{Q+j}")
    for j in range(4): a(f"ds_write2st64_b32 v{S4}, v{Q+8+2*j}, v{Q+9+2*j} offset0:{C8O//256+4*j} offset1:{C8O//256+4*j+2}")
    a(f"M_NOPFX:\ns_setprio 0\ns_cmp_lt_u32 s{sW}, 4\ns_cbranch_scc1 M_NOFILL")
    for i in range(4): a(f"v_mov_b32 v{t4+i}, {DUMMY}")
    a(f"v_lshlrev_b32 v{t0}, 4, v0\nv_lshlrev_b32 v{t1}, 3, v0")
    assert 2 * LSZ == 8 * 4096 + 2048 and L_LS == 2048
    for i in range(8): a(f"ds_write_b128 v{t0}, {v(t4,4)} offset:{4096*i}")
    a(f"ds_write_b64 v{t1}, {v(t4,2)}\nM_NOFILL:")
    pack("M_PB"); stage(range(NS1, NSP))
    if EPOS == 0: pwarm(); eprefetch()
    a("s_waitcnt lgkmcnt(0)\ns_barrier\ns_branch M_P4E")
    d0, d1, f0, f1, k0, k1, vL, vR, ks, a4, l0, l1, o0, o1, cn, ci = [Q + i for i in range(16)]
    m0_, B0, m1_, B1 = S4, S4+1, S4+2, S4+3
    a(f"""
    M_PK0:
    s_setprio 3
    v_lshlrev_b32 v{a4}, 3, v{lane}
    v_lshlrev_b32 v{cn}, 2, v{lane}
    v_add_u32 v{cn}, {L_C8}, v{cn}
    v_sub_u32 v{ci}, 31, v{m}
    v_lshlrev_b32 v{ci}, 2, v{ci}
    s_mov_b32 s75, {f32(4194304.0)}
    s_waitcnt lgkmcnt(0)
    s_barrier
    """)
    stamp("pro", 4); stamp("lb", 6)
    a(f"ds_read_b32 v{ks}, v{nta} offset:{L_NT}")
    for j in range(7): a(f"ds_read2st64_b32 {v(FX+2*j,2)}, v{cn} offset0:{2*j} offset1:{2*j+1}")
    a(f"""
    s_waitcnt lgkmcnt(4)
    v_readfirstlane_b32 s{sL}, v{ks}
    v_add3_u32 v{d0}, v{FX}, v{FX+2}, v{FX+4}
    v_add3_u32 v{d1}, v{FX+1}, v{FX+3}, v{FX+5}
    s_lshr_b32 s{sL}, s{sL}, 8
    s_add_u32 s{sL}, s{sL}, 1
    s_waitcnt lgkmcnt(0)
    v_add3_u32 v{d0}, v{d0}, v{FX+6}, v{FX+8}
    v_add3_u32 v{d1}, v{d1}, v{FX+7}, v{FX+9}
    v_add3_u32 v{d0}, v{d0}, v{FX+10}, v{FX+12}
    v_add3_u32 v{d1}, v{d1}, v{FX+11}, v{FX+13}
    v_cvt_f32_u32 v{f0}, v{d0}
    v_cvt_f32_u32 v{f1}, v{d1}
    v_add_f32 v{f0}, -0.5, v{f0}
    v_add_f32 v{f1}, -0.5, v{f1}
    M_LS:
    s_add_u32 s{sL}, s{sL}, 2
    s_cmp_gt_u32 s{sL}, {LMAX}
    s_cbranch_scc1 M_P4W
    """)
    Lf, Rc, Ka = FX, FX + 3, FX + 6
    a(f"""
    v_cvt_f32_u32 v{Lf+1}, s{sL}
    v_add_f32 v{Lf}, -1.0, v{Lf+1}
    v_add_f32 v{Lf+2}, 1.0, v{Lf+1}
    v_rcp_f32 v{Rc}, v{Lf}
    v_rcp_f32 v{Rc+1}, v{Lf+1}
    v_rcp_f32 v{Rc+2}, v{Lf+2}
    """)
    for j in range(3): a(f"v_fma_f32 v{Ka+2*j}, v{f0}, v{Rc+j}, 1.0\nv_fma_f32 v{Ka+2*j+1}, v{f1}, v{Rc+j}, 1.0")
    for j in range(6): a(f"v_cvt_u32_f32 v{Ka+j}, v{Ka+j}")
    a(f"""
    v_lshl_or_b32 v{k0}, v{Ka+2}, 10, v{Ka}
    v_lshl_or_b32 v{k1}, v{Ka+3}, 10, v{Ka+1}
    v_lshl_or_b32 v{k0}, v{Ka+4}, 20, v{k0}
    v_lshl_or_b32 v{k1}, v{Ka+5}, 20, v{k1}
    v_add_u32 v{ks}, v{k0}, v{k1}
    """)
    wave_scan(a, ks)
    a(f"""
    v_sub_u32 v{vL}, v{ks}, v{k1}
    v_readlane_b32 s{sA}, v{ks}, 63
    s_mov_b32 s{sB}, 0
    s_bfe_u32 s52, s{sA}, 0xa000a
    s_cmp_le_u32 s52, 256
    s_cbranch_scc1 M_LOK
    s_lshr_b32 s52, s{sA}, 20
    s_cmp_gt_u32 s52, 256
    s_cbranch_scc1 M_LS
    s_mov_b32 s{sB}, 10
    s_add_u32 s{sL}, s{sL}, 1
    s_cmp_gt_u32 s{sL}, {LMAX}
    s_cbranch_scc1 M_P4W
    M_LOK:
    s_sub_u32 s52, 256, s52
    s_add_u32 s53, s{sB}, 10
    v_bfe_u32 v{l0}, v{vL}, s{sB}, 10
    v_bfe_u32 v{l1}, v{ks}, s{sB}, 10
    v_bfe_u32 v{vL}, v{vL}, s53, 10
    v_bfe_u32 v{vR}, v{ks}, s53, 10
    v_sub_u32 v{l0}, v{l0}, v{vL}
    v_sub_u32 v{l1}, v{l1}, v{vR}
    v_mov_b32 v{vL}, s53
    v_mov_b32 v{vR}, s{sB}
    v_cmp_ge_u32 vcc, s52, v{l0}
    v_cmp_ge_u32 s[52:53], s52, v{l1}
    s_nop 0
    v_cndmask_b32 v{l0}, v{vL}, v{vR}, vcc
    v_cndmask_b32 v{l1}, v{vL}, v{vR}, s[52:53]
    v_bfe_u32 v{k0}, v{k0}, v{l0}, 10
    v_bfe_u32 v{k1}, v{k1}, v{l1}, 10
    v_cvt_f32_u32 v{l0}, v{k0}
    v_cvt_f32_u32 v{l1}, v{k1}
    v_rcp_f32 v{m0_}, v{l0}
    v_rcp_f32 v{m1_}, v{l1}
    s_nop 0
    v_fma_f32 v{l0}, v{f0}, v{m0_}, 1.0
    v_fma_f32 v{l1}, v{f1}, v{m1_}, 1.0
    v_cvt_u32_f32 v{l0}, v{l0}
    v_cvt_u32_f32 v{l1}, v{l1}
    v_lshlrev_b32 v{l0}, 2, v{l0}
    v_lshlrev_b32 v{l1}, 2, v{l1}
    ds_add_rtn_u32 v{o0}, v{l0}, v{k0} offset:{L_CNT}
    ds_add_rtn_u32 v{o1}, v{l1}, v{k1} offset:{L_CNT}
    ds_read_b32 v{cn}, v{ci} offset:{L_CNT}
    v_mul_f32 v{m0_}, s75, v{m0_}
    v_mul_f32 v{m1_}, s75, v{m1_}
    v_cvt_u32_f32 v{m0_}, v{m0_}
    v_cvt_u32_f32 v{m1_}, v{m1_}
    v_add_u32 v{m0_}, 2, v{m0_}
    v_add_u32 v{m1_}, 2, v{m1_}
    v_lshlrev_b32 v{B0}, 2, v{k0}
    v_lshlrev_b32 v{B1}, 2, v{k1}
    v_sub_u32 v{B0}, 1024, v{B0}
    v_sub_u32 v{B1}, 1024, v{B1}
    v_sub_u32 v{l0}, 124, v{l0}
    v_sub_u32 v{l1}, 124, v{l1}
    s_waitcnt lgkmcnt(0)
    v_mov_b32 v{ks}, v{cn}
    """)
    for stp in steps[:5]:
        a(f"s_nop 1\nv_add_u32_dpp v{ks}, v{ks}, v{ks} {stp}")
    a(f"""
    v_sub_u32 v{ks}, v{ks}, v{cn}
    ds_bpermute_b32 v{d0}, v{l0}, v{ks}
    ds_bpermute_b32 v{d1}, v{l1}, v{ks}
    ds_write_b32 v{ci}, v{ks} offset:{L_BAS}
    s_waitcnt lgkmcnt(1)
    v_add_u32 v{o0}, v{o0}, v{d0}
    v_add_u32 v{o1}, v{o1}, v{d1}
    v_lshl_or_b32 v{m0_}, v{o0}, 24, v{m0_}
    v_lshl_or_b32 v{m1_}, v{o1}, 24, v{m1_}
    ds_write2st64_b64 v{a4}, {v(m0_,2)}, {v(m1_,2)} offset0:0 offset1:1
    M_P4W:
    v_mov_b32 v{ks}, s{sL}
    ds_write_b32 v{nta}, v{ks} offset:{L_MX+4}
    s_waitcnt lgkmcnt(0)
    s_barrier
    """)
    stage(range(NS1, NSP)); pack("M_PA")
    if EPOS == 0: pwarm(); eprefetch()
    u0, nn = Q + 20, Q + 26
    a("M_P4E:")
    stamp("pro", 5)
    a(f"""
    ds_read_b64 {v(u0,2)}, v{nta} offset:{L_MX}
    v_lshlrev_b32 v{tt}, 2, v{m}
    ds_read_b32 v{u0+2}, v{tt} offset:{L_CNT}
    ds_read_b32 v{u0+3}, v{tt} offset:{L_BAS}
    s_lshr_b32 s{sA}, s{sW}, 1
    s_lshl_b32 s{sA}, s{sA}, 5
    v_add_u32 v{nn}, s{sA}, v{m}
    v_lshlrev_b32 v{tt}, 3, v{nn}
    ds_read_b64 {v(u0+4,2)}, v{tt} offset:{L_TB}
    """)
    skip("M_TR")
    for i in ORD:
        a(f"s_mov_b64 exec, {mk(i)}\nds_read_b64 {v(TBv+2*i,2)}, v{NA+i} offset:{L_TB}\nds_read_b32 v{OFv+i}, v{CA+i} offset:{C8O}")
        after("M_TR", i)
    a(f"""
    s_mov_b64 exec, -1
    """)
    if EPOS == 1: eprefetch()
    a(f"""
    s_lshl_b32 s{sA}, s{sG}, 5
    s_waitcnt lgkmcnt(12)
    v_readfirstlane_b32 s{sNMAX}, v{u0}
    v_readfirstlane_b32 s{sL}, v{u0+1}
    v_add_u32 v{u0+2}, v{u0+2}, v{u0+3}
    v_cmp_ge_u32 vcc, s{sA}, v{u0+3}
    v_cmp_lt_u32 s[52:53], s{sA}, v{u0+2}
    s_and_b64 s[52:53], s[52:53], vcc
    s_ff1_i32_b32 s{sT}, s52
    s_max_i32 s{sT}, s{sT}, 0
    s_cmp_le_u32 s{sL}, {LMAX}
    s_cbranch_scc1 M_P5
    s_mov_b32 s{sCAP}, 256
    s_branch M_AGAIN
    M_P5:
    """)
    skip("M_SC")
    for i in ORD:
        mm, BB = TBv + 2*i, TBv + 2*i + 1
        a(f"""
        s_mov_b64 exec, {mk(i)}
        s_waitcnt lgkmcnt({2*i + max(0, 5-i)})
        v_add_u32 v{RK+i}, v{RK+i}, v{OFv+i}
        v_lshrrev_b32 v{tt}, 24, v{mm}
        v_mul_u32_u24 v{mm}, v{mm}, v{RK+i}
        v_add_lshl_u32 v{tt}, v{tt}, v{RK+i}, 2
        v_lshrrev_b32 v{mm}, 22, v{mm}
        v_mad_u32_u24 v{tt}, v{mm}, v{BB}, v{tt}
        ds_write2st64_b32 v{tt}, v{RC+i}, v{G+i} offset0:{L_LS//256} offset1:{L_LE//256}
        """)
        after("M_SC", i)
    ca0, ca1, ca2, ca3, kk, oa, fa, da = [EP + i for i in range(8)]
    epi_setup = f"""
    s_lshl_b32 s{sA}, s{sSB}, 7
    s_add_u32 s{sA}, s{sA}, {L_XR}
    s_movk_i32 s{sB}, 0x3fc
    s_movk_i32 s75, 0x3f8
    v_mov_b32 v{kk}, v{u0+5}
    v_lshrrev_b32 v{ca0}, 24, v{u0+4}
    v_mul_u32_u24 v{ca0}, 272, v{ca0}
    v_lshl_add_u32 v{ca0}, v{h16}, 1, v{ca0}
    v_add_u32 v{ca0}, s{sA}, v{ca0}
    v_mov_b32 v{da}, {L_ZR}
    v_cmp_gt_u32 s[56:57], s{sB}, v{kk}
    v_cmp_gt_u32 s[58:59], s75, v{kk}
    v_add_u32 v{ca1}, 272, v{ca0}
    v_add_u32 v{ca2}, 544, v{ca0}
    v_add_u32 v{ca3}, 816, v{ca0}
    v_cmp_gt_u32 vcc, 0x400, v{kk}
    v_cndmask_b32 v{ca1}, v{da}, v{ca1}, s[56:57]
    v_cndmask_b32 v{ca2}, v{da}, v{ca2}, s[58:59]
    v_cndmask_b32 v{ca0}, v{da}, v{ca0}, vcc
    v_cmp_gt_u32 vcc, s{sNB}, v{nn}
    v_lshlrev_b32 v{oa}, 7, v{nn}
    v_lshl_add_u32 v{oa}, v{h16}, 1, v{oa}
    s_lshl_b32 s{sA}, s{sW}, 11
    v_cndmask_b32 v{oa}, v{hz}, v{oa}, vcc
    v_add_u32 v{fa}, s{sA}, v{l16}
    v_mul_u32_u24 v{da}, 272, v{m}
    v_add3_u32 v{da}, v{da}, v{h16}, s{sXRB}
    """
    a(f"""
    s_mov_b64 exec, -1
    s_setprio 0
    """)
    if EPOS == 2: eprefetch()
    a(f"s_waitcnt vmcnt({NEP}) lgkmcnt(0)\ns_barrier")
    stamp("top", 3); stamp("pro", 6); stamp("pri", 1)
    a(f"s_cmp_lg_u32 s{sT}, 0\ns_cbranch_scc1 M_GO")
    a(epi_setup)
    a("s_branch M_BEND\nM_GO:")
    S = []
    ef = OPT["eflags"]
    def le_read(t, p): return (f"ds_read_b32 v{RP+2*p}, v{vLE} offset:{L_LE+1024*t}", f"le{t}")
    def ls_read(t, dst): return (f"ds_read_b128 {v(dst,4)}, v{vLS} offset:{L_LS+1024*t}", f"ls{t}")
    def st_addr(p): return f"v_xor_b32 v{sa}, v{RP+2*p}, v{h16}"
    def st_read(t): return (f"ds_read_b128 {Es(t)}, v{sa}", f"st{t}")
    def d_pre(t, p): return [f"v_cmp_le_u32 vcc, s{sDF}, v{RP+2*p}", f"v_and_or_b32 v{vCr+t%5}, v{RP+2*p}, s{sB30}, 1.0"]
    def d_load(t, p): return ["s_mov_b64 exec, vcc", (f"buffer_load_dwordx4 {Es(t)}, {v(RP+2*p,2)}, s[{sE}:{sE+3}], 0 idxen offen {ef}", f"D{t}"), "s_mov_b64 exec, -1"]
    def x_addr(src): return [f"v_and_or_b32 v{S4+i}, v{src+i}, s{sM7}, v{CX+i}" for i in range(4)]
    def x_dma(t, nop=True, reg=None, soff="0", tag=None):
        o = []
        for i in range(4):
            sr = sP
            o += [f"s_add_u32 m0, s{sXRB}, {i*1024}"] + (["s_nop 0"] if nop else []) + \
                 [(f"buffer_load_dwordx4 v{(reg or S4)+i}, s[{sr}:{sr+3}], {soff} offen {LD} lds", tag or f"X{t}")]
        return o
    def fx_read(t, sx, tag=None): return (f"ds_read_b128 {v(FX+4*sx,4)}, v{XA+sx}", tag or f"fx{t}")
    def chain(nh, t):
        Dh = v(D + 16 * nh, 16)
        return [f"v_mfma_f32_32x32x16_bf16 {Dh}, {W3f(nh)}, {Es(t)}, {v(Q+16*nh,16)}"] + \
               ([f"v_smfmac_f32_32x32x32_bf16 {Dh}, {Idf(0)}, {v(FX+8*nh,8)}, v{W+4}"] if int(OPT["smf"]) else
                [f"v_mfma_f32_32x32x16_bf16 {Dh}, {Idf(j)}, {v(FX+8*nh+4*j,4)}, {Dh}" for j in range(2)])
    nd, L1, L2 = D, D + 4, SG
    def ps(i): return [f"s_memrealtime s[{76+2*i}:{77+2*i}]", "s_waitcnt lgkmcnt(0)"] if MODE == "pri" else []
    S += [ls_read(0, S4), (f"ds_read_b32 v{nd}, v{vLE} offset:{L_LS}", "nd")] + [le_read(j, j) for j in range(4)] + [ls_read(1, L1), ls_read(2, L2), ("@W", None, "nd")]
    S += x_addr(S4)
    xa_ = [f"v_and_b32 v{nd+1}, 127, v{nd}", f"v_lshlrev_b32 v{nd+1}, 7, v{nd+1}", f"v_bfe_u32 v{nd+2}, v{nd}, 1, 3", f"v_xor_b32 v{nd+2}, v{nd+2}, v{h}"]
    dm = x_dma(0, nop=False)
    for i in range(4): S += [dm[2*i], xa_[i], dm[2*i+1]]
    S += [f"v_lshl_add_u32 v{nd+1}, v{nd+2}, 4, v{nd+1}", f"v_add_u32 v{nd+1}, {L_XD}, v{nd+1}"]
    for sx in range(4):
        S += [(f"ds_read_b128 {v(FX+4*sx,4)}, v{nd+1}", "xd")] + ([f"v_xor_b32 v{nd+1}, {(32, 96, 32)[sx]}, v{nd+1}"] if sx < 3 else [])
    S += [("@W", None, "ls2")] + d_pre(0, 0) + ["s_not_b64 s[60:61], vcc"] + d_load(0, 0) + ps(2)
    S += [st_addr(0), "s_mov_b64 exec, s[60:61]", st_read(0), "s_mov_b64 exec, -1"]
    for j in range(1, 4): S += [st_addr(j), st_read(j)]
    ep = [l.strip() for l in epi_setup.strip().split("\n")]
    S += [f"v_mov_b32 v{SG+4}, v{u0+4}", f"v_mov_b32 v{SG+5}, v{u0+5}", f"v_mov_b32 v{SG+6}, v{nn}", ("@W", None, "xd")]
    ep = [l.replace(f"v{u0+4}", f"v{SG+4}").replace(f"v{u0+5}", f"v{SG+5}").replace(f"v{nn}", f"v{SG+6}") for l in ep] + x_addr(L1)
    k_ = 0
    for nh in range(2):
        for sx in range(4):
            S.append(f"v_mfma_f32_32x32x16_bf16 {v(Q+16*nh,16)}, {v(AG+(sx*2+nh)*4,4)}, {v(FX+4*sx,4)}, {'0' if sx == 0 else v(Q+16*nh,16)}")
            S += ep[k_:k_+4]; k_ += 4
    S += ep[k_:] + ps(3) + ps(4)
    S += [f"s_mov_b32 s74, {f32(-LOG2E)}", f"s_mov_b32 s75, {f32(-LOG2E)}"]
    S += [("@W", "D0", None)] + ps(5) + [fx_read(0, sx) for sx in range(4)]
    S += [f"v_pk_mul_f32 {v(Q+2*i,2)}, {v(Q+2*i,2)}, s[74:75]" for i in range(16)] + [("@W", None, "fx0")]
    c00 = chain(0, 0)
    S += [c00[0], "s_nop 7", "s_nop 7"] + c00[1:] + d_pre(1, 1) + d_load(1, 1) + x_dma(1) + [f"v_and_or_b32 v{L2+i}, v{L2+i}, s{sM7}, v{CX+i}" for i in range(4)] + ps(6)
    if MODE: S += [f"s_mov_b32 s90, s{sT}", f"s_mov_b32 s98, s{sL}", "s_memtime s[94:95]", "s_waitcnt lgkmcnt(0)"]
    if MODE == "top": S += ["s_memrealtime s[84:85]", "s_waitcnt lgkmcnt(0)"]
    def phase(nh, t, mf, fill):
        Db, Ab = D + 16*nh, AG + 16*nh
        c = vCr + t % 5
        cp = f"{v(c & ~1, 2)} " + ("op_sel_hi:[1,0]" if c % 2 == 0 else "op_sel:[0,1] op_sel_hi:[1,1]")
        seq = []
        mf = mf + [None] * (3 - len(mf))
        for q in range(2):
            ex = [f"v_exp_f32 v{T+i}, v{Db+8*q+i}" for i in range(8)]
            rc = [f"v_rcp_f32 v{T+i}, v{T+i}" for i in range(8)]
            ad = [f"v_pk_add_f32 {v(T+2*i,2)}, {v(T+2*i,2)}, {cp}" for i in range(4)]
            fm = [f"v_pk_fma_f32 {v(Ab+8*q+2*i,2)}, {v(Db+8*q+2*i,2)}, {v(T+2*i,2)}, {v(Ab+8*q+2*i,2)}" for i in range(4)]
            if t == 0: fm = [f"v_pk_mul_f32 {v(Ab+8*q+2*i,2)}, {v(Db+8*q+2*i,2)}, {v(T+2*i,2)}" for i in range(4)]
            if q == 0: seq += [mf[0]] + ex + ad + [mf[1]] + rc + fm
            else: seq += [mf[2]] + ex + ad + rc + fm
        res = []; n = 0
        for l in seq:
            if l is None: continue
            res.append(l)
            if l.startswith(("v_exp", "v_rcp")):
                res += fill.get(n, []); n += 1
        def txt(l): return l[0] if isinstance(l, tuple) else l
        ab = OPT["abl"]
        if "novm" in ab: res = [l for l in res if not txt(l).startswith(("buffer_", "s_add_u32 m0", "s_mov_b64 exec")) and not (txt(l) == "@W" and l[1])]
        if "nolds" in ab: res = [l for l in res if not txt(l).startswith("ds_") and not (txt(l) == "@W" and l[2])]
        if "nomf" in ab: res = [l for l in res if not txt(l).startswith(("v_mfma", "v_smf"))]
        if "nova" in ab: res = [l for l in res if not txt(l).startswith(("v_and_or", "v_xor", "v_cmp"))]
        return res
    DL = int(OPT["dl"])
    def last_of(S_, tags):
        seen = [it[1] for it in S_ if isinstance(it, tuple) and it[0] != "@W"]
        return max(tags, key=lambda g: max(i for i, x in enumerate(seen) if x == g))
    for t in range(LMAX):
        fill = {}
        td = t + DL
        pr = td if td < 4 else 0
        if 4 <= td < LMAX:
            fill[0] = [le_read(td, 0)]
            fill[10] = [("@W", None, f"le{td}"), st_addr(0)]; fill[11] = [st_read(td)]
        if t + 3 < LMAX: fill[1] = [ls_read(t + 3, S4)]
        if t + 1 < LMAX:
            FXP = int(OPT["fxp"])
            fill[FXP] = [("@W", f"X{t+1}", None)]
            for sx in range(4): fill[FXP+1+sx] = fill.get(FXP+1+sx, []) + [fx_read(t + 1, sx)]
        if t + 3 < LMAX:
            xa = x_addr(S4)
            xp = 21 if int(OPT["fxp"]) < 17 else 16
            fill[xp] = [("@W", None, f"ls{t+3}"), xa[0]]; fill[xp+1] = [xa[1]]; fill[xp+2] = [xa[2]]; fill[xp+3] = [xa[3]]
        XL = int(OPT["xl"])
        if XL == 2:
            for k_ in (1, 16, 17, 18, 19, 21, 22, 23, 24):
                if k_ in fill and not any((x[0] if isinstance(x, tuple) else x).startswith(("ds_read_b128 v[%d" % FX, "ds_read_b128 v[%d" % (FX+4), "ds_read_b128 v[%d" % (FX+8), "ds_read_b128 v[%d" % (FX+12))) or (isinstance(x, tuple) and x[0] == "@W" and x[1]) for x in fill[k_]): del fill[k_]
            if t + 2 < LMAX:
                dm = x_dma(t + 2, nop=False, reg=L2 if t == 0 else None)
                for i, pos in enumerate(int(x) for x in OPT["dmp"].split(",")): fill[pos] = fill.get(pos, []) + ([("@W", None, f"fx{t+1}")] if i == 1 else []) + [dm[i]]
        if t == 0 and XL == 3:
            if DL > 2: fill[2] = d_pre(2, 2); fill[3] = d_load(2, 2)
            dm = x_dma(2, nop=False, reg=L2)
            for i, pos in enumerate((4, 5, 6, 7, 12, 13, 14, 15)): fill[pos] = [dm[i]]
            if DL > 3: fill[25] = fill.get(25, []) + d_pre(3, 3) + d_load(3, 3)
        PR = {0: (None, None), 1: (1, 0), 2: (0, 1)}[int(OPT["prio"])]
        if PR[0] is not None: S.append(f"s_setprio {PR[0]}")
        S += phase(0, t, chain(1, t), fill)
        if PR[0] is not None: S.append(f"s_setprio {PR[1]}")
        if t + 1 < LMAX and last_of(S, [f"X{t+1}", f"D{t+1}"]) == f"D{t+1}": S.append(("@W", f"D{t+1}", None))
        fill = {}
        if t + 1 < LMAX: fill[0] = [("@W", None, f"fx{t+1}")]
        if t + 3 < LMAX and XL == 3:
            dm = x_dma(t + 3, nop=False)
            for i, pos in enumerate(int(x) for x in OPT["dmp"].split(",")): fill[pos] = [dm[i]]
        if t + 3 < LMAX and XL == 2:
            xa = x_addr(S4)
            fill[4] = [ls_read(t + 3, S4)]
            fill[20] = [("@W", None, f"ls{t+3}"), xa[0]]; fill[21] = [xa[1]]; fill[22] = [xa[2]]; fill[23] = [xa[3]]
        if td < LMAX:
            dp = d_pre(td, pr)
            DP = int(OPT["dpos"])
            fill[DP-1] = fill.get(DP-1, []) + [dp[0], dp[1]]; fill[DP] = d_load(td, pr)
        fill[31] = [f"s_cmp_eq_u32 s{sT}, {t+1}"]
        S += phase(1, t, chain(0, t + 1) if t + 1 < LMAX else [], fill)
        if t + 1 < LMAX: S.append("s_cbranch_scc1 M_FLUSH")
    emit(resolve(S))
    a("M_FLUSH:")
    stamp("top", 5); stamp("epi", 1)
    if MODE: a("s_memtime s[96:97]\ns_waitcnt lgkmcnt(0)")
    a("s_waitcnt vmcnt(0)")
    for i in range(8):
        a(f"ds_write_b128 v{da}, {v(AG+4*i,4)} offset:{32*i}")
    A0, A1, A2, OWN, PAR = D, D + 16, Q, Q + 16, Q + 24
    a(f"""
    M_BEND:
    v_cmp_gt_u32 vcc, 0x3f4, v{kk}
    s_mov_b32 s74, {f32(-1.0/LOG2E)}
    s_mov_b32 s75, {f32(-1.0/LOG2E)}
    s_waitcnt lgkmcnt(0)
    """)
    stamp("epi", 2)
    a("s_barrier")
    stamp("epi", 3)
    offs = (0, 16, 64, 80)
    for i in range(4):
        for buf, ca in ((A0, ca0), (A1, ca1), (A2, ca2)):
            a(f"ds_read_b128 {v(buf+4*i,4)}, v{ca} offset:{offs[i]}")
    for i in range(4):
        a(f"s_waitcnt lgkmcnt({9-3*i})")
        for j in range(2): a(f"v_pk_add_f32 {v(A0+4*i+2*j,2)}, {v(A0+4*i+2*j,2)}, {v(A1+4*i+2*j,2)}")
        for j in range(2): a(f"v_pk_add_f32 {v(A0+4*i+2*j,2)}, {v(A0+4*i+2*j,2)}, {v(A2+4*i+2*j,2)}")
    a(f"""
    s_cbranch_vccz M_SUMD
    s_movk_i32 s{sA}, 0x3f4
    M_SUML:
    s_mov_b64 exec, vcc
    """)
    for i in range(4):
        a(f"ds_read_b128 {v(A1+4*i,4)}, v{ca3} offset:{offs[i]}")
    a(f"s_sub_u32 s{sA}, s{sA}, 4\nv_add_u32 v{ca3}, 272, v{ca3}\ns_waitcnt lgkmcnt(0)")
    for i in range(8): a(f"v_pk_add_f32 {v(A0+2*i,2)}, {v(A0+2*i,2)}, {v(A1+2*i,2)}")
    a(f"""
    s_mov_b64 exec, -1
    v_cmp_gt_i32 vcc, s{sA}, v{kk}
    s_nop 4
    s_cbranch_vccnz M_SUML
    M_SUMD:
    s_cmp_le_u32 s{sNMAX}, s{sCAP}
    s_cbranch_scc1 M_EPI
    """)
    srd_off(a, 56, 10, WS_SP, 2048 * 4096)
    a(f"""
    s_lshl_b32 s{sA}, s2, 3
    s_add_u32 s{sA}, s{sA}, s{sW}
    s_lshl_b32 s{sA}, s{sA}, 12
    s_cmp_eq_u32 s{sBASE}, 0
    s_cbranch_scc1 M_NOLD
    """)
    for i in range(4):
        a(f"buffer_load_dwordx4 {v(A1+4*i,4)}, v{l16}, s[56:59], s{sA} offen offset:{1024*i} sc0 sc1")
    a("s_waitcnt vmcnt(0)")
    for i in range(8): a(f"v_pk_add_f32 {v(A0+2*i,2)}, {v(A0+2*i,2)}, {v(A1+2*i,2)}")
    a(f"""
    M_NOLD:
    s_add_u32 s{sBASE}, s{sBASE}, s{sCAP}
    s_cmp_ge_u32 s{sBASE}, s{sNMAX}
    s_cbranch_scc1 M_EPI
    """)
    for i in range(4):
        a(f"buffer_store_dwordx4 {v(A0+4*i,4)}, v{l16}, s[56:59], s{sA} offen offset:{1024*i} sc0 sc1")
    a(f"""
    M_AGAIN:
    s_load_dwordx2 s[60:61], s[0:1], 32
    s_waitcnt vmcnt(0) lgkmcnt(0)
    s_barrier
    """)
    srd(a, 56, 60, 18432)
    a(f"""
    s_lshl_b32 s{sA}, s{sW}, 10
    s_add_u32 s{sA}, s{sA}, 8192
    s_add_u32 m0, s{sA}, {S_W}
    v_lshlrev_b32 v{t0}, 2, v0
    buffer_load_dwordx4 v{l16}, s[56:59], s{sA} offen lds
    ds_write_b32 v{t0}, v{nta}
    v_add_u32 v{t0}, {L_C8}, v{t0}
    ds_write_b32 v{t0}, v{nta}
    ds_write_b32 v{t0}, v{nta} offset:2048
    """)
    a("s_waitcnt vmcnt(0)\ns_barrier")
    w2read()
    a(f"""
    s_waitcnt lgkmcnt(0)
    s_barrier
    s_branch M_BATCH
    M_EPI:
    """)
    srd(a, 56, 8, 3200000)
    for i in range(8): a(f"v_pk_mul_f32 {v(A0+2*i,2)}, {v(A0+2*i,2)}, s[74:75]")
    for i in range(8): a(f"v_cvt_pk_bf16_f32 v{OWN+i}, v{A0+2*i}, v{A0+2*i+1}")
    a(f"""
    ds_write_b128 v{fa}, {v(OWN,4)} offset:{L_FE}
    ds_write_b128 v{fa}, {v(OWN+4,4)} offset:{L_FE+1024}
    v_xor_b32 v{fa}, 0x800, v{fa}
    v_mfma_f32_32x32x16_bf16 {v(U0,16)}, {v(WU,4)}, {v(OWN,4)}, {v(U0,16)}
    v_mfma_f32_32x32x16_bf16 {v(U0,16)}, {v(WU+4,4)}, {v(OWN+4,4)}, {v(U0,16)}
    s_lshl_b32 s{sA}, s{sSB}, 6
    s_add_u32 s{sA}, s{sA}, s{sS0}
    s_mov_b32 s74, {f32(-LOG2E)}
    s_mov_b32 s75, {f32(-LOG2E)}
    s_waitcnt lgkmcnt(0)
    s_barrier
    """)
    stamp("epi", 4)
    a(f"""
    ds_read_b128 {v(PAR,4)}, v{fa} offset:{L_FE}
    ds_read_b128 {v(PAR+4,4)}, v{fa} offset:{L_FE+1024}
    s_waitcnt lgkmcnt(1)
    v_mfma_f32_32x32x16_bf16 {v(U0,16)}, {v(WU+8,4)}, {v(PAR,4)}, {v(U0,16)}
    s_waitcnt lgkmcnt(0)
    v_mfma_f32_32x32x16_bf16 {v(U0,16)}, {v(WU+12,4)}, {v(PAR+4,4)}, {v(U0,16)}
    s_nop 11
    """)
    for q in range(2):
        b = 8 * q
        for i in range(4): a(f"v_pk_mul_f32 {v(AG+b+2*i,2)}, {v(U0+b+2*i,2)}, s[74:75]")
        for i in range(8): a(f"v_exp_f32 v{AG+b+i}, v{AG+b+i}")
        for i in range(4): a(f"v_pk_add_f32 {v(AG+b+2*i,2)}, {v(AG+b+2*i,2)}, 1.0 op_sel_hi:[1,0]")
        for i in range(8): a(f"v_rcp_f32 v{AG+b+i}, v{AG+b+i}")
        for i in range(4): a(f"v_pk_mul_f32 {v(AG+b+2*i,2)}, {v(U0+b+2*i,2)}, {v(AG+b+2*i,2)}")
        for i in range(4): a(f"v_cvt_pk_bf16_f32 v{D+4*q+i}, v{AG+b+2*i}, v{AG+b+2*i+1}")
        a(f"buffer_store_dwordx4 {v(D+4*q,4)}, v{oa}, s[56:59], s{sA} offen offset:{16*q} {OPT['ofl']}")
    if MODE:
        stamp("epi", 5)
        a("s_waitcnt vmcnt(0)")
        stamp("top", 6); stamp("epi", 6)
        a(f"s_lshl_b32 s74, s2, 3\ns_add_u32 s74, s74, s{sW}\ns_lshl_b32 s74, s74, 6\ns_add_u32 s74, s74, {WS_ST+0x80000}\ns_load_dwordx2 s[10:11], s[0:1], 64\ns_waitcnt lgkmcnt(0)\ns_add_u32 s52, s10, s74\ns_addc_u32 s53, s11, 0\nv_mov_b32 v0, 0")
        for i in range(8):
            a(f"v_mov_b32 v1, s{76+2*i}\nglobal_store_dword v0, v1, s[52:53] offset:{4*i}")
        a("s_sub_u32 s96, s96, s94\nv_mov_b32 v1, s96\nglobal_store_dword v0, v1, s[52:53] offset:32\nv_mov_b32 v1, s98\nglobal_store_dword v0, v1, s[52:53] offset:36")
    a("M_END:\ns_endpgm")
    return R.n

hdr = f"""; MPNN edge-MLP + segment-sum + node update in one launch of 256 co-resident workgroups:
; @launch grid=(256,1,1) block=(512,1,1) lds={MAIN_LDS}
.amdgcn_target "amdgcn-amd-amdhsa--gfx950"
.text
.globl {KN}
.type {KN},@function
"""
nv = gen()
txt = hdr + a.text() + '.section .rodata,"a"\n.p2align 6\n' + kdesc(KN, 256, 102)
open(sys.argv[1], "w").write(txt)
print("vgprs", nv, "lds", MAIN_LDS)
```

```python
import sys, struct
from asmlib import *

OPT = dict(abl="", stamp=False, eflags="", M0=1152, ns1=3, es='0,3,2,0', xpos=0, df=1, hlp=0, es0=0, cpf=0, fxp=16, dmp='23,24,25,26,27,28,29,30', dpos=12, sp='0,0,0,0', dl=2, xl=2, barA=1, nmm=0, ofl='', wpos=0, epos=0, osl=4, xw=0, fst=5, cem=1, Y=False, epf=1400, skw=256, xe=0, tlb=0, stl=0, eld='', ild='', xld='', wso=0, tch=0, st='sc1', oe=0, otw=2, smf=1, ns2=7, prio=1, ld="sc1")
for arg in sys.argv[2:]:
    k, val = arg.split("=")
    OPT[k] = {"True": True, "False": False}.get(val, val.replace("+", " "))
M0 = int(OPT["M0"])
assert M0 % 32 == 0 and M0 <= 1792 and 3200 - M0 <= 2048
LD = OPT["ld"]
YM = OPT["Y"]
if YM: OPT["es"] = "0,0,0,0"; OPT["ns1"] = 0
KN = "standalone__mpnn_edge_mlp__graph_kernel"

NCH, CH = 250, 3200
WS_REC, WS_O, WS_F2, WS_ST, WS_P, WS_SP, WS_EM = 0, 0x440000, 0x680000, 0x700000, 0x800000, 0x1A00000, 0xB20000
SKW = int(OPT["skw"])
OTS, RCS, EMS = 8192 + SKW, 16384, M0 * 32 + SKW
LOG2E = 1.4426950408889634
def f32(x): return "0x%08x" % struct.unpack("<I", struct.pack("<f", x))[0]

a = Asm()
MODE = OPT["stamp"]
def stamp(mode, i):
    if MODE == mode or (MODE and mode == "all"):
        a(f"s_memrealtime s[{76+2*i}:{77+2*i}]\ns_waitcnt lgkmcnt(0)")
def emit(l): a("\n".join(l))

def resolve(stream):
    out = []; vm = []; lg = []
    for it in stream:
        if isinstance(it, tuple) and it[0] == "@W":
            parts = []
            if it[1] is not None:
                idx = max(i for i, t in enumerate(vm) if t == it[1]); n = len(vm) - 1 - idx
                assert n <= 63; parts.append(f"vmcnt({n})")
            if it[2] is not None:
                idx = max(i for i, t in enumerate(lg) if t == it[2]); n = len(lg) - 1 - idx
                parts.append(f"lgkmcnt({min(n, 15)})")
            out.append("s_waitcnt " + " ".join(parts)); continue
        txt, tag = it if isinstance(it, tuple) else (it, None)
        if txt.startswith("buffer_"): vm.append(tag)
        if txt.startswith("ds_"): lg.append(tag)
        out.append(txt)
    return out

LMAX = 17
L_TB = 0
L_CNT = 1024
L_NT = L_CNT + 128
L_MX = L_NT + 16
L_BAS = L_MX + 16
L_F2C = 1408
L_ZR = 1536
L_LS = 2048
LSZ = LMAX * 1024
L_LE = L_LS + LSZ
L_ST = L_LE + LSZ
SCAP = 160
NSP = SCAP // 32
L_XD = L_ST + 8 * SCAP * 32
L_XR = L_XD + 16384
XRS = 8704
MAIN_LDS = L_XR + 8 * XRS
assert MAIN_LDS <= 163840 and L_XR % 4096 == 0
L_C8 = L_XR + XRS
C8O = XRS
GLO = 6144
S_W = L_LS
S_WU = L_XR + 4 * XRS
S_CNT = S_W + 18432
S_STA = S_CNT + 2048
S_SRT = S_STA + 2048
S_E = S_SRT + CH * 4
assert S_E + M0 * 32 <= L_XD
L_FE = L_LS
DUMMY = 0xC0000000
DFLAG = 1 << 24
SPIN = 200000

def gen():
    R = Regs("v", 1, 256)
    vLS = R.alloc("vLS"); vLE = R.alloc("vLE")
    vCr = R.alloc("vCr", 5)
    RP = R.alloc("RP", 8, 2)
    XA = R.alloc("XA", 4); CX = R.alloc("CX", 4)
    S4 = R.alloc("S4", 4, 4); T = R.alloc("T", 8, 4)
    FX = R.alloc("FX", 16, 4); E = R.alloc("E", 16, 4)
    D = R.alloc("D", 32, 4); Q = R.alloc("Q", 32, 4); AG = R.alloc("AG", 32, 4); W = R.alloc("W", 16, 4)
    U0 = R.alloc("U0", 16, 4); WU = R.alloc("WU", 16, 4); EP = R.alloc("EP", 16, 4)
    SG = R.alloc("SG", 8, 4)
    sa = R.alloc("sa"); lane = R.alloc("lane"); l16 = R.alloc("l16"); m = R.alloc("m"); h = R.alloc("h")
    sac = R.alloc("sac"); lh = R.alloc("lh"); hz = R.alloc("hz"); aN = R.alloc("aN"); one = R.alloc("one"); nta = R.alloc("nta")
    h16 = RP + 1
    def Idf(j): return v(W + 4 * j, 4)
    def W3f(nh): return v(W + 8 + nh * 4, 4)
    def Es(t): return v(E + 4 * (t % 4), 4)
    sX, sE, sREC, sEM, sWS, sP = 16, 20, 24, 28, 32, 36
    sW, sSB, sS0, sSO, sN, sBASE, sCNT, sT, sXRB, sA, sB, sCAP = 40, 41, 42, 43, 44, 45, 46, 47, 48, 49, 50, 51
    sNB, sGL, sNMAX, sG, sL, sM7, sB30, sDF, sNS = 70, 71, 72, 73, 12, 13, 14, 15, 3
    sSTB, sOA, sTAG = 99, 93, 100
    t0, t1, t2, t3, t4, t5, t6, t7 = [T + i for i in range(8)]
    def mk(i): return f"s[{54+2*i}:{55+2*i}]"
    ORD = list(range(7, -1, -1))
    def skip(lab):
        a(f"s_cmp_le_u32 s{sCNT}, 384\ns_cbranch_scc1 {lab}6\ns_cmp_le_u32 s{sCNT}, 448\ns_cbranch_scc1 {lab}7")
    def after(lab, i):
        if i >= 6: a(f"{lab}{i}:")
    ne = 0 if "noe" in OPT["abl"] else 1
    steps = [f"row_shr:{sh} row_mask:0xf bank_mask:0xf bound_ctrl:0" for sh in (1, 2, 4, 8)] + ["row_bcast:15 row_mask:0xa bank_mask:0xf", "row_bcast:31 row_mask:0xc bank_mask:0xf"]

    DS_, SR_, CAD, RNK, PR_ = D, D + 8, D + 16, D + 24, Q
    oA, oB, t16, t4_, idx, rA, rB = [Q + 8 + i for i in range(7)]
    nz = Q + 16
    CS = Q + 20
    NA_, NB_ = M0 // 4, (CH - M0) // 4
    DF = int(OPT["df"])
    SDW = "dst_sel:DWORD dst_unused:UNUSED_PAD src0_sel:DWORD src1_sel:"
    a(f".p2align 8\n{KN}:")
    a(f"""
    s_cmp_ge_u32 s2, 256
    s_cbranch_scc1 M_END
    {"s_memrealtime s[76:77]" if MODE else ""}
    s_load_dwordx4 s[56:59], s[0:1], 16
    s_load_dwordx4 s[4:7], s[0:1], 0
    s_load_dwordx4 s[60:63], s[0:1], 32
    s_load_dwordx4 s[8:11], s[0:1], 48
    s_load_dwordx2 s[64:65], s[0:1], 64
    s_memrealtime s[66:67]
    """)
    a(f"""
    s_setprio 2
    """)
    CPF = int(OPT["cpf"])
    if CPF:
        a(f"""
        s_getpc_b64 s[52:53]
        M_PC:
        s_lshr_b32 s{sA}, s2, 3
        s_lshl_b32 s{sA}, s{sA}, 7
        v_lshrrev_b32 v{t1}, 6, v0
        v_lshlrev_b32 v{t1}, 12, v{t1}
        v_add_u32 v{t1}, s{sA}, v{t1}
        v_min_u32 v{t1}, M_END-M_PC, v{t1}
        global_load_dword v{vCr+4}, v{t1}, s[52:53]
        """)
    a(f"""
    v_lshlrev_b32 v{t16}, 4, v0
    v_mov_b32 v{hz}, 0x80000000
    v_cmp_gt_u32 vcc, {NA_}, v0
    s_mul_i32 s{sA}, s2, 12800
    s_mov_b64 s[52:53], vcc
    v_cndmask_b32 v{rA}, v{hz}, v{t16}, vcc
    v_cmp_gt_u32 vcc, {NB_}, v0
    s_add_u32 s{sB}, s{sA}, {M0*4}
    s_mov_b64 s[54:55], vcc
    v_cndmask_b32 v{rB}, v{hz}, v{t16}, vcc
    s_mov_b32 s{sE+2}, 3200000
    s_mov_b32 s{sE+3}, 0x20000
    s_mov_b32 s{sEM+2}, 3200000
    s_mov_b32 s{sEM+3}, 0x20000
    v_lshlrev_b32 v{t4_}, 2, v0
    v_mov_b32 v{nta}, 0
    v_lshrrev_b32 v{t0}, 6, v0
    s_waitcnt lgkmcnt(0)
    """)
    stamp("ka", 1)
    a(f"""
    s_mov_b32 s{sE}, s58
    s_mov_b32 s{sE+1}, s59
    s_mov_b32 s{sEM}, s56
    s_mov_b32 s{sEM+1}, s57
    buffer_load_dwordx4 {v(DS_,4)}, v{rA}, s[{sE}:{sE+3}], s{sA} offen {OPT['ild']}
    buffer_load_dwordx4 {v(DS_+4,4)}, v{rB}, s[{sE}:{sE+3}], s{sB} offen {OPT['ild']}
    {"" if DF else f"buffer_load_dwordx4 {v(SR_,4)}, v{rA}, s[{sEM}:{sEM+3}], s{sA} offen"}
    {"" if DF else f"buffer_load_dwordx4 {v(SR_+4,4)}, v{rB}, s[{sEM}:{sEM+3}], s{sB} offen"}
    ds_write_b32 v{t4_}, v{nta} offset:{S_CNT}
    ds_write_b32 v{t4_}, v{nta}
    v_readfirstlane_b32 s{sW}, v{t0}
    s_setprio 0
    """)
    srd(a, sP, 10, 256)
    a(f"""
    s_cmp_lt_u32 s2, {NCH}
    s_cbranch_scc1 S_NOTAG
    """)
    HLP = int(OPT["hlp"])
    if HLP:
        a(f"""
        v_and_b32 v{t1}, 63, v0
        v_lshl_add_u32 v{t1}, v{t1}, 3, v{t0}
        v_lshlrev_b32 v{t2}, {HLP}, v{t1}
        v_cmpx_gt_u32 vcc, {(WS_EM + 256*EMS + (1<<HLP) - 1) >> HLP}, v{t1}
        global_load_dword v{vCr+4}, v{t2}, s[64:65]
        s_mov_b64 exec, -1
        s_waitcnt vmcnt(0)
        """)
    a(f"""
    s_cmp_lg_u32 s{sW}, 7
    s_cbranch_scc1 S_NOTAG
    s_or_b32 s{sA}, s66, 1
    v_mov_b32 v{nz}, s{sA}
    v_mov_b32 v{nz+1}, s67
    v_mov_b32 v{nz+2}, 0
    v_mov_b32 v{nz+3}, 0
    s_mov_b64 exec, 1
    buffer_atomic_cmpswap_x2 {v(nz,4)}, v{nta}, s[{sP}:{sP+3}], 0 offen sc1
    s_mov_b64 exec, -1
    s_waitcnt vmcnt(0)
    S_NOTAG:
    s_mov_b32 s68, s10
    s_mov_b32 s69, s11
    s_add_u32 s10, s64, {int(str(OPT["wso"]), 0)}
    s_addc_u32 s11, s65, 0
    s_cmp_lt_u32 s2, {NCH}
    s_cselect_b64 s[52:53], s[52:53], 0
    s_cselect_b64 s[54:55], s[54:55], 0
    v_and_b32 v{lane}, 63, v0
    v_lshlrev_b32 v{l16}, 4, v{lane}
    s_mul_i32 s{sL}, s2, {CH*32}
    s_lshl_b32 s{sT}, s{sW}, 10
    """)
    srd(a, sREC, 6, 0 if "nomv" in OPT["abl"] else 25600000)
    NMM = int(OPT["nmm"])
    if NMM: a(f"s_and_b32 s{sA}, s2, {NMM<<3}\ns_cmp_eq_u32 s{sA}, {NMM<<3}\ns_cselect_b32 s{sREC+2}, 0, s{sREC+2}")
    a(f"s_mul_i32 s{sA}, s2, 12800\ns_add_u32 s{sB}, s{sA}, {M0*4}\ns_waitcnt lgkmcnt(0)\ns_barrier")
    if DF: a(f"buffer_load_dwordx4 {v(SR_,4)}, v{rA}, s[{sEM}:{sEM+3}], s{sA} offen\nbuffer_load_dwordx4 {v(SR_+4,4)}, v{rB}, s[{sEM}:{sEM+3}], s{sB} offen")
    if int(OPT["stl"]):
        a(f"""
        s_lshl_b32 s{sA}, s{sW}, 21
        s_add_u32 s{sB}, s{sA}, 0x1000000
        s_min_u32 s{sN}, s{sB}, {WS_EM + 256*EMS - 64}
        s_load_dword s66, s[10:11], s{sA}
        s_load_dword s66, s[10:11], s{sN}
        s_min_u32 s{sN}, s{sB}, {25600000 - 64}
        s_load_dword s66, s[6:7], s{sA}
        s_load_dword s66, s[6:7], s{sN}
        s_and_b32 s{sA}, s{sA}, 0x200000
        s_load_dword s66, s[8:9], s{sA}
        """)
    npiece = 0 if YM else M0 // 32
    nr = (npiece + 7) // 8
    ES = [int(x) for x in OPT["es"].split(",")]
    assert sum(ES) == nr
    EC = [sum(ES[:i]) for i in range(5)]
    def edma(slot):
        for r in range(EC[slot], EC[slot+1]):
            if (r + 1) * 8 > npiece:
                a(f"s_min_u32 s{sT}, s{sT}, {(npiece - 8*r - 1)*1024}")
            a(f"s_add_u32 m0, s{sT}, {S_E + r*8192}\ns_add_u32 s{sA}, s{sT}, {r*8192}\ns_add_u32 s{sA}, s{sA}, s{sL}\nbuffer_load_dwordx4 v{l16}, s[{sREC}:{sREC+3}], s{sA} offen {OPT['eld']} lds")
    srd(a, sX, 4, 3200000)
    srd(a, sP, 60, 18432)
    def xrows():
        a(f"""
        v_lshrrev_b32 v{t0}, 4, v{lane}
        v_xor_b32 v{t0}, v{t0}, v{lane}
        v_and_b32 v{t0}, 7, v{t0}
        v_and_b32 v{t1}, 0x380, v{l16}
        v_lshl_or_b32 v{t0}, v{t0}, 4, v{t1}
        v_xor_b32 v{t1}, 64, v{t0}
        s_lshl_b32 s{sA}, s{sW}, 11
        s_add_u32 m0, s{sA}, {L_XD}
        s_add_u32 s{sB}, s{sA}, s{sS0}
        buffer_load_dwordx4 v{t0}, s[{sX}:{sX+3}], s{sB} offen {OPT['xld']} lds
        buffer_load_dwordx4 v{t1}, s[{sX}:{sX+3}], s{sB} offen offset:1024 {OPT['xld']} lds
        """)
    a(f"""
    s_and_b32 s74, s2, 7
    s_lshl_b32 s74, s74, 5
    s_lshr_b32 s{sA}, s2, 3
    s_add_u32 s74, s74, s{sA}
    s_lshl_b32 s{sA}, s74, 17
    s_add_u32 s{sA}, s{sA}, 1337
    s_mul_hi_u32 s{sS0}, s{sA}, 3209991
    s_add_u32 s{sA}, s{sA}, 131072
    s_mul_hi_u32 s{sNB}, s{sA}, 3209991
    s_min_u32 s{sNB}, s{sNB}, 25000
    s_sub_u32 s{sNB}, s{sNB}, s{sS0}
    s_and_b32 s{sSB}, s{sW}, 1
    s_mul_i32 s{sSO}, s74, 98
    s_sub_u32 s{sSO}, s{sSO}, s{sS0}
    s_sub_u32 s{sSO}, s{sSO}, 9
    s_lshl_b32 s{sS0}, s{sS0}, 7
    s_mul_i32 s{sGL}, s{sW}, {XRS}
    s_add_u32 s{sGL}, s{sGL}, {L_XR + GLO}
    """)
    XPOS = int(OPT["xpos"])
    def xw1():
        xrows()
        a(f"""
        s_lshl_b32 s{sA}, s{sW}, 10
        s_add_u32 m0, s{sA}, {S_W}
        s_mov_b32 s{sB}, -49
        buffer_load_dwordx4 v{l16}, s[{sP}:{sP+3}], s{sA} offen lds
        """)
    if XPOS == 0: xw1()
    TLB = int(OPT["tlb"])
    srd(a, sWS, 10, 0x1000000)
    if TLB:
        a(f"""
        v_lshl_add_u32 v{t0}, v{lane}, 3, s{sW}
        v_lshlrev_b32 v{t0}, 20, v{t0}
        buffer_load_dword v{vCr+4}, v{t0}, s[{sWS}:{sWS+3}], 0 offen
        """)
    ES0 = int(OPT["es0"])
    if ES0:
        a(f"s_mul_i32 s{sA}, s2, {RCS}\nbuffer_store_dwordx4 {v(FX,4)}, v{t16}, s[{sWS}:{sWS+3}], s{sA} offen sc1")
    edma(0)
    a(f"""
    v_mov_b32 v{one}, 1
    v_mov_b32 v{t7}, 0x10000
    v_lshlrev_b32 v{idx}, 23, v0
    v_add_u32 v{idx}, 9, v{idx}
    v_lshlrev_b32 v{t6}, 5, v{lane}
    s_mov_b32 s{sB}, -49
    s_mov_b32 s{sM7}, {1<<21}
    s_mov_b32 s{sB30}, {2<<21}
    s_mov_b32 s{sDF}, {3<<21}
    s_setprio 2
    """)
    stamp("ka", 2)
    a(f"""
    s_waitcnt vmcnt({EC[1]+2+ES0+(3 if XPOS == 0 else 0)})
    """)
    stamp("srt", 1); stamp("ka", 3)
    for g in range(2):
        for i in range(4*g, 4*g + 4):
            a(f"v_mul_u32_u24 v{PR_+i}, 1338, v{DS_+i}\nv_lshlrev_b32_sdwa v{CAD+i}, 2, v{PR_+i} {SDW}WORD_1")
        a(f"s_mov_b64 exec, {'s[52:53]' if g == 0 else 's[54:55]'}")
        for i in range(4*g, 4*g + 4): a(f"ds_add_rtn_u32 v{RNK+i}, v{CAD+i}, v{one if g == 0 else t7} offset:{S_CNT}")
        a("s_mov_b64 exec, -1")
    edma(1)
    if XPOS == 1: xw1()
    TCH = int(OPT["tch"])
    if TCH:
        a(f"""
        v_lshl_add_u32 v{t0}, v{lane}, 3, s{sW}
        v_cmpx_gt_u32 vcc, {(WS_EM + 256*EMS + (1<<21) - 1) >> 21}, v{t0}
        v_lshlrev_b32 v{t0}, 21, v{t0}
        global_load_dword v{vCr+4}, v{t0}, s[10:11]
        s_mov_b64 exec, -1
        """)
    def recs(rng):
        o = []
        for i in rng:
            o += [f"v_mad_i32_i16 v{PR_+i}, v{PR_+i}, s{sB}, v{DS_+i} op_sel:[1,0,0,0]", f"v_lshl_add_u32 v{PR_+i}, v{SR_+i}, 6, v{PR_+i}",
                  f"v_add3_u32 v{PR_+i}, v{PR_+i}, v{idx}, {('0', f's{sM7}', f's{sB30}', f's{sDF}')[i%4]}"]
        return o
    a("s_waitcnt lgkmcnt(0)\ns_barrier")
    stamp("srt", 2); stamp("tag", 1); stamp("ka", 4)
    OTG = S4
    a(f"""
    ds_read_b128 {v(CS,4)}, v{t6} offset:{S_CNT}
    ds_read_b128 {v(CS+4,4)}, v{t6} offset:{S_CNT+16}
    ds_read_b32 v{OTG+1}, v{t4_} offset:{S_CNT}
    s_waitcnt vmcnt({EC[2]+3+ES0})
    """)
    emit(recs(range(4)))
    a("s_waitcnt lgkmcnt(1)")
    for j in range(1, 8): a(f"v_add_u32 v{CS+j}, v{CS+j}, v{CS+j-1}")
    a(f"v_mov_b32 v{CS+8}, v{CS+7}")
    rr = recs(range(4, 8))
    for n, stp in enumerate(steps): a(f"{rr[2*n]}\n{rr[2*n+1]}\nv_add_u32_dpp v{CS+8}, v{CS+8}, v{CS+8} {stp}")
    a(f"v_sub_u32 v{CS+8}, v{CS+8}, v{CS+7}\nv_add_u32 v{CS+8}, {M0<<16}, v{CS+8}")
    for j in range(7, 0, -1): a(f"v_add_u32 v{CS+j}, v{CS+j-1}, v{CS+8}")
    a(f"""
    v_mov_b32 v{CS}, v{CS+8}
    ds_write_b128 v{t6}, {v(CS,4)} offset:{S_STA}
    ds_write_b128 v{t6}, {v(CS+4,4)} offset:{S_STA+16}
    """)
    for i in range(8): a(f"ds_read_b32 v{DS_+i}, v{CAD+i} offset:{S_STA}")
    a(f"ds_read_b32 v{OTG}, v{t4_} offset:{S_STA}")
    edma(2)
    for i in range(8):
        if i % 4 == 0: a(f"s_mov_b64 exec, {'s[52:53]' if i == 0 else 's[54:55]'}")
        a(f"""
        s_waitcnt lgkmcnt(8)
        v_add_u32 v{DS_+i}, v{DS_+i}, v{RNK+i}
        v_lshlrev_b32_sdwa v{DS_+i}, 2, v{DS_+i} {SDW}{'WORD_0' if i < 4 else 'WORD_1'}
        ds_write_b32 v{DS_+i}, v{PR_+i} offset:{S_SRT}
        """)
    a("s_mov_b64 exec, -1")
    stamp("srt", 3); stamp("ka", 5)
    a(f"s_load_dwordx2 s[{sTAG}:{sTAG+1}], s[68:69], 0")
    WPOS = int(OPT["wpos"])
    def wrest():
        srd(a, sE, 62, 16384)
        a(f"""
        s_lshl_b32 s{sA}, s{sW}, 10
        s_add_u32 s{sA}, s{sA}, 8192
        s_add_u32 m0, s{sA}, {S_W}
        s_lshl_b32 s{sB}, s{sSB}, 10
        buffer_load_dwordx4 v{l16}, s[{sP}:{sP+3}], s{sA} offen lds
        s_add_u32 s{sB}, s{sB}, 16384
        s_add_u32 m0, s{sB}, {S_W}
        s_lshl_b32 s{sA}, s{sW}, 11
        buffer_load_dwordx4 v{l16}, s[{sP}:{sP+3}], s{sB} offen lds
        s_lshr_b32 s{sN}, s{sW}, 1
        s_mul_i32 s{sN}, s{sN}, {XRS - 4096}
        s_add_u32 s{sN}, s{sN}, s{sA}
        s_add_u32 m0, s{sN}, {S_WU}
        s_nop 0
        buffer_load_dwordx4 v{l16}, s[{sE}:{sE+3}], s{sA} offen lds
        buffer_load_dwordx4 v{l16}, s[{sE}:{sE+3}], s{sA} offen offset:1024 lds
        """)
    if WPOS == 1: wrest()
    a(f"""
    v_lshrrev_b32 v{t1}, 1, v0
    v_lshlrev_b32 v{t1}, 2, v{t1}
    s_waitcnt vmcnt({(EC[3] if XPOS == 0 else ES[2]) + 4*WPOS}) lgkmcnt(0)
    s_barrier
    """)
    if MODE == "ka": a("s_waitcnt vmcnt(0)")
    stamp("srt", 4); stamp("tag", 2); stamp("ka", 6)
    no = 0 if YM else (M0 + 255) // 256
    a(f"ds_read_b128 {v(D,4)}, v{t16} offset:{S_SRT}\nds_read_b128 {v(D+4,4)}, v{t16} offset:{S_SRT+M0*4}")
    for r in range(no): a(f"ds_read_b32 v{SG+r}, v{t1} offset:{S_SRT+1024*r}")
    edma(3)
    a(f"""
    s_mul_i32 s{sA}, s2, {RCS}
    s_add_u32 s{sB}, s{sA}, 8192
    v_and_b32 v{t2}, 1, v0
    v_lshlrev_b32 v{t2}, 4, v{t2}
    s_waitcnt lgkmcnt({no})
    buffer_store_dwordx4 {v(D,4)}, v{rA}, s[{sWS}:{sWS+3}], s{sA} offen sc1
    buffer_store_dwordx4 {v(D+4,4)}, v{rB}, s[{sWS}:{sWS+3}], s{sB} offen sc1
    """)
    stamp("tag", 3)
    a(f"""
    s_mul_i32 s{sN}, s2, {OTS}
    s_add_u32 s{sN}, s{sN}, {WS_O}
    s_mov_b32 s{sB}, 0
    s_cmp_lg_u32 s{sTAG}, 0
    s_cbranch_scc1 S_TAGD
    S_TAGL:
    s_sleep 8
    global_load_dwordx2 {v(OTG+2,2)}, v{nta}, s[68:69] sc1
    s_add_u32 s{sB}, s{sB}, 1
    s_cmp_gt_u32 s{sB}, {SPIN}
    s_cbranch_scc1 M_END
    s_waitcnt vmcnt(0)
    v_readfirstlane_b32 s{sTAG}, v{OTG+2}
    v_readfirstlane_b32 s{sTAG+1}, v{OTG+3}
    s_nop 0
    s_cmp_eq_u32 s{sTAG}, 0
    s_cbranch_scc1 S_TAGL
    S_TAGD:
    """)
    stamp("tag", 4)
    a(f"""
    v_add_u32 v{OTG}, {(2048-M0)<<16}, v{OTG}
    v_mov_b32 v{OTG+2}, s{sTAG}
    v_mov_b32 v{OTG+3}, s{sTAG+1}
    buffer_store_dwordx4 {v(OTG,4)}, v{t16}, s[{sWS}:{sWS+3}], s{sN} offen sc1
    s_movk_i32 s{sB}, {(M0 - 256*(no-1))*2}
    v_cmp_gt_u32 vcc, s{sB}, v0
    v_mov_b32 v{t4}, v{t16}
    v_and_b32 v{m}, 31, v{lane}
    v_lshrrev_b32 v{h}, 5, v{lane}
    v_cndmask_b32 v{t6}, v{hz}, v{t16}, vcc
    v_lshlrev_b32 v{t0}, 3, v0
    v_add_u32 v{t0}, {L_C8}, v{t0}
    v_mov_b32 v{D+8}, 0
    v_mov_b32 v{D+9}, 0
    ds_write_b64 v{t0}, {v(D+8,2)}
    v_bfe_u32 v{t1}, v{lane}, 2, 2
    v_lshl_add_u32 v{t1}, v{h}, 3, v{t1}
    v_lshlrev_b32 v{t1}, 7, v{t1}
    v_and_b32 v{t3}, 3, v{lane}
    v_lshl_add_u32 v{aN}, v{t3}, 3, v{t1}
    v_and_b32 v{t3}, 16, v{lane}
    v_lshl_add_u32 v{aN}, v{t3}, 1, v{aN}
    v_add_u32 v{t1}, v{t1}, v{t3}
    v_and_b32 v{t3}, 1, v{lane}
    v_lshl_add_u32 v{t1}, v{t3}, 5, v{t1}
    v_and_b32 v{t3}, 2, v{lane}
    v_lshl_add_u32 v{t1}, v{t3}, 2, v{t1}
    s_lshl_b32 s{sA}, s{sSB}, 6
    v_add_u32 v{sa}, s{sA}, v{t1}
    v_bfe_u32 v{sac}, v{m}, 1, 3
    v_xor_b32 v{sac}, v{sac}, v{h}
    v_lshlrev_b32 v{sac}, 4, v{sac}
    v_lshl_or_b32 v{sac}, v{m}, 7, v{sac}
    s_and_b32 s{sA}, s{sW}, 6
    s_lshl_b32 s{sA}, s{sA}, 11
    s_add_u32 s{sA}, s{sA}, {L_XD}
    v_add_u32 v{sac}, s{sA}, v{sac}
    s_waitcnt lgkmcnt(1)
    """)
    for r in range(no):
        a(f"v_lshrrev_b32 v{SG+r}, 21, v{SG+r}\nv_lshl_add_u32 v{SG+r}, v{SG+r}, 5, v{t2}")
    srd_off(a, sEM, 10, WS_EM, 0 if "nomv" in OPT["abl"] else 256 * EMS)
    OG = E + 12
    a(f"""
    s_lshl_b32 s{sOA}, s74, 5
    s_mul_i32 s{sA}, s{sW}, {32*OTS}
    s_add_u32 s{sOA}, s{sOA}, s{sA}
    s_add_u32 s{sOA}, s{sOA}, {WS_O}
    v_lshrrev_b32 v{lh}, 1, v{lane}
    v_mul_u32_u24 v{lh}, {OTS - 32}, v{lh}
    v_add_u32 v{lh}, v{lh}, v{l16}
    s_mov_b32 s74, {f32(-LOG2E)}
    s_mov_b32 s75, {f32(-LOG2E)}
    """)
    XF, W1t, Wx, PD, EO = FX, AG, EP, AG + 16, Q
    def tr(dst, areg, off):
        a(f"ds_read_b64_tr_b16 {v(dst,2)}, v{areg} offset:{S_W+off}\nds_read_b64_tr_b16 {v(dst+2,2)}, v{areg} offset:{S_W+off+512}")
    def w2read():
        for sx in range(4):
            for nh in range(2): tr(AG + (2*sx + nh)*4, aN, 8192 + 2048*sx + 64*nh)
    for sx in range(4):
        a(f"ds_read_b128 {v(XF+4*sx,4)}, v{sac}" + (f"\nv_xor_b32 v{sac}, {(32, 96, 32)[sx]}, v{sac}" if sx < 3 else ""))
        tr(W1t + 4*sx, sa, 2048*sx)
    a("s_waitcnt lgkmcnt(0)")
    for sx in range(4):
        a(f"v_mfma_f32_32x32x16_bf16 {v(PD,16)}, {v(W1t+4*sx,4)}, {v(XF+4*sx,4)}, {'0' if sx == 0 else v(PD,16)}")
    a(f"""
    v_and_b32 v{t0}, 15, v{m}
    v_mul_u32_u24 v{t0}, 144, v{t0}
    v_lshl_add_u32 v{t0}, v{h}, 5, v{t0}
    v_lshrrev_b32 v{t1}, 4, v{m}
    v_mul_u32_u24 v{t1}, {XRS}, v{t1}
    s_mul_i32 s{sA}, s{sSB}, {64 - XRS}
    s_add_u32 s{sA}, s{sA}, s{sGL}
    v_add3_u32 v{t0}, v{t0}, v{t1}, s{sA}
    v_lshrrev_b32 v{t1}, 3, v{lane}
    v_lshl_add_u32 v{t3}, v{t1}, 4, v{l16}
    v_add_u32 v{t3}, s{sGL}, v{t3}
    s_lshl_b32 s{sA}, s{sW}, 11
    s_lshl_b32 s{sB}, s{sNB}, 7
    v_add_u32 v{t1}, s{sA}, v{l16}
    v_add_u32 v{t5}, 1024, v{t1}
    v_cmp_gt_u32 vcc, s{sB}, v{t1}
    v_cmp_gt_u32 s[52:53], s{sB}, v{t5}
    s_mov_b32 s{sCAP}, 512
    s_mov_b32 s{sBASE}, 0
    v_cndmask_b32 v{t1}, v{hz}, v{t1}, vcc
    v_cndmask_b32 v{t5}, v{hz}, v{t5}, s[52:53]
    """)
    for i in range(8): a(f"v_pk_mul_f32 {v(PD+2*i,2)}, {v(PD+2*i,2)}, s[74:75]")
    for i in range(8): a(f"v_cvt_pk_bf16_f32 v{PD+i}, v{PD+2*i}, v{PD+2*i+1}")
    a(f"""
    ds_write_b128 v{t0}, {v(PD,4)}
    ds_write_b128 v{t0}, {v(PD+4,4)} offset:16
    """)
    stamp("tag", 5)
    if WPOS == 0: wrest()
    a(f"""
    s_add_u32 s{sB}, s{sS0}, {WS_P}
    s_waitcnt vmcnt({7 if WPOS == 0 else 3}) lgkmcnt(0)
    s_barrier
    """)
    stamp("srt", 5); stamp("top", 1); stamp("tag", 6)
    a(f"ds_read_b128 {v(D+16,4)}, v{t3}\nds_read_b128 {v(D+20,4)}, v{t3} offset:{8*144}")
    for r in range(no): a(f"ds_read_b128 {v(EO+4*r,4)}, v{SG+r} offset:{S_E}")
    a(f"""
    s_waitcnt lgkmcnt({no})
    buffer_store_dwordx4 {v(D+16,4)}, v{t1}, s[{sWS}:{sWS+3}], s{sB} offen sc1
    buffer_store_dwordx4 {v(D+20,4)}, v{t5}, s[{sWS}:{sWS+3}], s{sB} offen sc1
    """)
    CEM = int(OPT["cem"])
    if NMM: a(f"s_and_b32 s{sA}, s2, {NMM<<3}\ns_cmp_eq_u32 s{sA}, {NMM<<3}\ns_cbranch_scc1 S_NOEM")
    a(f"s_mul_i32 s{sA}, s2, {EMS}" if CEM else f"s_lshl_b32 s{sA}, s2, 17")
    for r in range(no):
        a(f"s_waitcnt lgkmcnt({no-1-r})\nbuffer_store_dwordx4 {v(EO+4*r,4)}, v{t6 if r == no-1 else t4}, s[{sEM}:{sEM+3}], s{sA} offen {OPT['st']}\ns_add_u32 s{sA}, s{sA}, 8192")
    a(f"""
    S_NOEM:
    s_mov_b32 s92, 1
    s_lshl_b32 s{sN}, s2, {int(OPT["fst"])}
    s_add_u32 s{sN}, s{sN}, {WS_F2}
    """)
    stamp("srt", 6); stamp("syn", 1)
    FST = int(OPT["fst"])
    f2r = E + 9
    OE = int(OPT["oe"]); XE = 0
    oload = f"buffer_load_dwordx4 {v(OG,4)}, v{lh}, s[{sWS}:{sWS+3}], s{sOA} offen sc1"
    if OE == 1: a(oload)
    a("s_setprio 0")
    OTW = int(OPT['otw'])
    def wwork():
        a(f"v_add_u32 v{sa}, {S_WU - S_W}, v{sa}\ns_mul_i32 s{sB}, s{sSB}, {XRS}\nv_add_u32 v{t2}, s{sB}, v{sa}\nv_subrev_u32 v{t3}, s{sB}, v{sa}")
        for nh in range(2): tr(D + 8 + 4*nh, aN, 128*128 + 64*nh)
        for sx in range(4): tr(Wx + 4*sx, sa, XRS*(sx>>1) + 2048*(sx&1))
        a("s_waitcnt lgkmcnt(0)")
        for sx in range(4):
            a(f"v_mfma_f32_32x32x16_bf16 {v(U0,16)}, {v(Wx+4*sx,4)}, {v(XF+4*sx,4)}, {'0' if sx == 0 else v(U0,16)}")
        tr(WU, t2, 2*XRS); tr(WU + 4, t2, 2*XRS + 2048); tr(WU + 8, t3, 3*XRS); tr(WU + 12, t3, 3*XRS + 2048)
        w2read()
        for nh in range(2):
            for i in range(4):
                r = D + 8 + 4*nh + i
                a(f"v_lshlrev_b32 v{t0}, 16, v{r}\nv_and_b32 v{t1}, 0xffff0000, v{r}\nv_pk_mul_f32 {v(t0,2)}, {v(t0,2)}, s[74:75]\nv_cvt_pk_bf16_f32 v{W+8+4*nh+i}, v{t0}, v{t1}")
    def lanec():
        srd_off(a, sP, 10, WS_P, 3200000)
        if int(OPT["smf"]):
            a(f"""
            v_and_b32 v{t1}, 1, v{m}
            v_lshlrev_b32 v{t1}, 4, v{t1}
            v_mov_b32 v{t2}, 0x3f80
            v_lshlrev_b32 v{t1}, v{t1}, v{t2}
            v_lshrrev_b32 v{t0}, 2, v{m}
            v_lshlrev_b32 v{t2}, 2, v{h}
            v_sub_u32 v{t0}, v{t0}, v{t2}
            v_bfe_i32 v{t2}, v{m}, 1, 1
            v_and_b32 v{t2}, 0xaaaa, v{t2}
            v_or_b32 v{W+4}, 0x4444, v{t2}
            """)
            for i in range(4):
                a(f"v_cmp_eq_u32 vcc, {i}, v{t0}\ns_nop 1\nv_cndmask_b32 v{W+i}, 0, v{t1}, vcc")
        else:
            a(f"""
            v_lshlrev_b32 v{t0}, 3, v{h}
            v_sub_u32 v{t0}, v{m}, v{t0}
            v_and_b32 v{t1}, 1, v{t0}
            v_lshlrev_b32 v{t1}, 4, v{t1}
            v_mov_b32 v{t2}, 0x3f80
            v_lshlrev_b32 v{t1}, v{t1}, v{t2}
            v_lshrrev_b32 v{t0}, 1, v{t0}
            """)
            for j in range(2):
                for i in range(4):
                    a(f"v_cmp_eq_u32 vcc, {8*j+i}, v{t0}\ns_nop 1\nv_cndmask_b32 v{W+4*j+i}, 0, v{t1}, vcc")
        a(f"""
        s_mul_i32 s{sSTB}, s{sW}, {SCAP*32}
        s_add_u32 s{sSTB}, s{sSTB}, {L_ST}
        s_mov_b32 s{sREC}, s10
        s_or_b32 s{sREC+1}, s11, {4<<16}
        s_mov_b32 s{sREC+2}, {WS_O//4}
        s_mov_b32 s{sREC+3}, 0x20000
        s_sub_u32 s{sE}, s6, {DFLAG*32}
        s_subb_u32 s{sE+1}, s7, 0
        s_or_b32 s{sE+1}, s{sE+1}, {32<<16}
        s_mov_b32 s{sE+2}, {(DFLAG + 800000) * ne}
        s_mov_b32 s{sE+3}, 0x20000
        s_sub_u32 s{sG}, 11, s{sW}
        s_cmp_lt_u32 s{sW}, 4
        s_cselect_b32 s{sG}, s{sW}, s{sG}
        s_mul_i32 s{sXRB}, s{sG}, {XRS}
        s_add_u32 s{sXRB}, s{sXRB}, {L_XR}
        s_mov_b32 s{sM7}, 0xffffff80
        s_mov_b32 s{sB30}, 0x40000000
        s_mov_b32 s{sDF}, {DFLAG}
        v_lshlrev_b32 v{RP+1}, 4, v{h}
        v_lshlrev_b32 v{RP+3}, 4, v{h}
        v_lshlrev_b32 v{RP+5}, 4, v{h}
        v_lshlrev_b32 v{RP+7}, 4, v{h}
        v_lshrrev_b32 v{t0}, 3, v{lane}
        s_lshl_b32 s{sA}, s{sG}, 7
        v_lshl_add_u32 v{vLS}, v{t0}, 4, s{sA}
        v_lshl_add_u32 v{vLE}, v{m}, 2, s{sA}
        v_and_b32 v{t3}, 1, v{t0}
        v_lshlrev_b32 v{t3}, 4, v{t3}
        v_lshl_add_u32 v{sac}, v{lane}, 5, v{t3}
        v_add_u32 v{sac}, s{sSTB}, v{sac}
        v_and_b32 v{t1}, 4, v{t0}
        v_and_b32 v{t2}, 7, v{lane}
        v_xor_b32 v{t1}, v{t1}, v{t2}
        v_lshlrev_b32 v{CX}, 4, v{t1}
        v_xor_b32 v{CX+1}, 16, v{CX}
        v_xor_b32 v{CX+2}, 32, v{CX}
        v_xor_b32 v{CX+3}, 48, v{CX}
        v_and_b32 v{t0}, 3, v{m}
        v_lshrrev_b32 v{t1}, 2, v{m}
        v_lshl_add_u32 v{t1}, v{t0}, 3, v{t1}
        v_lshlrev_b32 v{t1}, 7, v{t1}
        v_add_u32 v{t1}, s{sXRB}, v{t1}
        v_lshrrev_b32 v{t2}, 4, v{m}
        v_lshl_or_b32 v{t0}, v{t2}, 2, v{t0}
        v_xor_b32 v{t0}, v{t0}, v{h}
        v_lshl_add_u32 v{XA}, v{t0}, 4, v{t1}
        v_xor_b32 v{XA+1}, 32, v{XA}
        v_xor_b32 v{XA+2}, 64, v{XA}
        v_xor_b32 v{XA+3}, 0x60, v{XA}
        """)
    if WPOS: wwork()
    else: lanec()
    if OE == 2: a(oload)
    SP = [int(x) for x in OPT["sp"].split(",")]
    spn = [0]
    def sshot(k):
        for _ in range(SP[k]):
            if spn[0] and spn[0] % 32 == 0: a("s_add_u32 s4, s4, 0x100000\ns_addc_u32 s5, s5, 0")
            a(f"s_load_dword s7, s[4:5], {(spn[0] % 32) * 32768}"); spn[0] += 1
    if sum(SP):
        a(f"""
        s_lshr_b32 s{sA}, s2, 3
        s_lshl_b32 s{sA}, s{sA}, 7
        s_lshl_b32 s{sB}, s{sW}, 12
        s_add_u32 s{sA}, s{sA}, s{sB}
        s_add_u32 s{sA}, s{sA}, {WS_P}
        s_add_u32 s4, s10, s{sA}
        s_addc_u32 s5, s11, 0
        """)
    sshot(0)
    stamp("syn", 2)
    a(f"""
    s_setprio 2
    v_cmp_eq_u32 vcc, 0, v0
    s_mov_b64 exec, vcc
    s_waitcnt vmcnt(0)
    s_barrier
    buffer_store_dwordx2 {v(OTG+2,2)}, v{nta}, s[{sWS}:{sWS+3}], s{sN} offen sc1
    s_mov_b64 exec, -1
    s_mov_b32 s{sA}, 0
    """)
    stamp("syn", 3)
    a(oload)
    XE = int(OPT["xe"])
    if XE:
        a(f"""
        s_lshr_b32 s{sA}, s2, 3
        s_lshl_b32 s{sA}, s{sA}, 7
        v_lshl_add_u32 v{t0}, v{lane}, 3, s{sW}
        v_cmpx_gt_u32 vcc, {XE}, v{t0}
        v_lshlrev_b32 v{t0}, 12, v{t0}
        buffer_load_dword v{vCr+4}, v{t0}, s[{sP}:{sP+3}], s{sA} offen sc1
        s_mov_b64 exec, -1
        """)
    if WPOS: lanec()
    else: wwork()
    a(f"s_mov_b32 s{sA}, 0\ns_waitcnt vmcnt({1 if XE else 0})")
    kk12, c0, c1, g0, g1, p0, p1, tt, qa, f2r, fl0 = [E + i for i in range(11)]
    G, RC, NA, RK = D, D + 8, D + 16, D + 24
    TBv = FX
    OFv, CA = EP, EP + 8
    a(f"""
    s_branch M_POLLC
    M_BATCH:
    v_lshrrev_b32 v{lh}, 1, v{lane}
    v_mul_u32_u24 v{lh}, {OTS - 32}, v{lh}
    v_add_u32 v{lh}, v{lh}, v{l16}
    s_mov_b32 s{sA}, 0
    M_POLL:
    s_sleep {OPT["osl"]}
    buffer_load_dwordx4 {v(OG,4)}, v{lh}, s[{sWS}:{sWS+3}], s{sOA} offen sc1
    s_add_u32 s{sA}, s{sA}, 1
    s_cmp_gt_u32 s{sA}, {SPIN}
    s_cbranch_scc1 M_END
    s_waitcnt vmcnt(0)
    M_POLLC:
    v_cmpx_ne_u64 vcc, s[{sTAG}:{sTAG+1}], {v(OG+2,2)}
    s_cbranch_execnz M_POLL
    s_mov_b64 exec, -1
    s_lshl_b32 s{sA}, s{sW}, 5
    v_lshrrev_b32 v{lh}, 1, v{lane}
    v_add_lshl_u32 v{kk12}, v{lh}, s{sA}, 12
    v_lshl_or_b32 v{kk12}, v{lane}, 31, v{kk12}
    v_lshl_add_u32 v{qa}, v{lane}, 2, s{sGL}
    v_mov_b32 v{t1}, 0xffff
    s_lshl_b32 s4, s{sW}, {FST+5}
    s_add_u32 s4, s4, {WS_F2}
    v_lshlrev_b32 v{vCr}, {FST}, v{m}
    """)
    FV = vCr + 1
    fl_ = f"buffer_load_dwordx2 {v(FV,2)}, v{vCr}, s[{sWS}:{sWS+3}], s4 offen sc1"
    stamp("pro", 1); stamp("syn", 4)
    a(f"v_and_b32 v{p0}, v{t1}, v{OG+1}\nv_lshrrev_b32 v{p1}, 16, v{OG+1}")
    if NMM:
        a(f"""
        v_and_b32 v{tt}, {NMM<<4}, v{lane}
        v_cmp_eq_u32 s[52:53], {NMM<<4}, v{tt}
        v_add_u32 v{tt}, v{p0}, v{p1}
        s_nop 0
        v_cndmask_b32 v{p1}, v{p1}, v{tt}, s[52:53]
        v_cndmask_b32 v{p0}, v{p0}, 0, s[52:53]
        """)
    fl = [f"v_and_or_b32 v{g0}, v{OG}, v{t1}, v{kk12}", f"v_lshrrev_b32 v{g1}, 16, v{OG}", f"v_or_b32 v{g1}, v{g1}, v{kk12}",
          f"v_and_b32 v{c0}, v{t1}, v{OG+1}", f"v_lshrrev_b32 v{c1}, 16, v{OG+1}", "s_nop 0"]
    for n, stp in enumerate(steps):
        a(f"{fl[n]}\nv_add_u32_dpp v{p0}, v{p0}, v{p0} {stp}\nv_add_u32_dpp v{p1}, v{p1}, v{p1} {stp}")
    a(f"""
    v_readlane_b32 s{sNS}, v{p0}, 63
    v_readlane_b32 s{sN}, v{p1}, 63
    v_sub_u32 v{p0}, v{p0}, v{c0}
    v_sub_u32 v{p1}, v{p1}, v{c1}
    s_add_u32 s{sN}, s{sN}, s{sNS}
    v_add_u32 v{p1}, s{sNS}, v{p1}
    {f"v_sub_u32 v{tt}, v{p1}, v{c0}" if NMM else ""}
    {f"v_cndmask_b32 v{p0}, v{p0}, v{tt}, s[52:53]" if NMM else ""}
    s_mov_b32 s{sCNT}, s{sN}
    s_add_u32 s{sA}, s{sN}, s{sBASE}
    s_cmp_le_u32 s{sA}, s{sCAP}
    s_cbranch_scc0 M_WIN
    s_cmp_eq_u32 s{sBASE}, 0
    s_cbranch_scc1 M_NOWIN
    M_WIN:
    s_sub_i32 s{sCNT}, s{sN}, s{sBASE}
    s_max_i32 s{sCNT}, s{sCNT}, 0
    s_min_u32 s{sCNT}, s{sCNT}, s{sCAP}
    s_sub_i32 s{sNS}, s{sNS}, s{sBASE}
    s_max_i32 s{sNS}, s{sNS}, 0
    """)
    for (pp, cc, gg) in ((p0, c0, g0), (p1, c1, g1)):
        a(f"""
        v_subrev_u32 v{tt}, s{sBASE}, v{pp}
        v_max_i32 v{pp}, 0, v{tt}
        v_add_u32 v{cc}, v{tt}, v{cc}
        v_min_i32 v{cc}, s{sCAP}, v{cc}
        v_sub_u32 v{cc}, v{cc}, v{pp}
        v_sub_u32 v{tt}, v{pp}, v{tt}
        v_add_u32 v{gg}, v{gg}, v{tt}
        """)
    a(f"M_NOWIN:\ns_min_u32 s{sNS}, s{sNS}, {0 if YM else SCAP}")
    pa, ca_, ga, gb = t0, t1, t2, t3
    for n, (pp, cc, gg) in enumerate(((p0, c0, g0), (p1, c1, g1))):
        a(f"""
        v_lshl_add_u32 v{pp}, v{pp}, 2, s{sGL}
        v_add_u32 v{ga}, 1, v{gg}
        v_add_u32 v{gb}, 2, v{gg}
        v_mov_b32 v{ca_}, v{cc}
        v_mov_b32 v{pa}, v{pp}
        M_EXP{n}:
        """)
        for r in (1, 3, 5, 7):
            a(f"v_cmpx_lt_i32 vcc, {r}, v{ca_}\nds_write2_b32 v{pa}, v{ga}, v{gb} offset0:{r} offset1:{r+1}\nv_add_u32 v{ga}, 2, v{ga}\nv_add_u32 v{gb}, 2, v{gb}")
        a(f"""
        v_cmpx_lt_i32 vcc, 9, v{ca_}
        v_add_u32 v{pa}, 32, v{pa}
        v_subrev_u32 v{ca_}, 8, v{ca_}
        s_cbranch_execnz M_EXP{n}
        s_mov_b64 exec, -1
        """)
    a(f"""
    v_cmpx_lt_i32 vcc, 0, v{c0}
    ds_write_b32 v{p0}, v{g0}
    s_mov_b64 exec, -1
    v_cmpx_lt_i32 vcc, 0, v{c1}
    ds_write_b32 v{p1}, v{g1}
    s_mov_b64 exec, -1
    """)
    a(fl_)
    for i in ORD:
        a(f"ds_read_b32 v{G+i}, v{qa} offset:{256*i}")
    a(f"v_lshl_add_u32 v{t1}, v{lh}, 2, s{sGL}")
    for j in range(NSP):
        a(f"ds_read_b32 v{SG+j}, v{t1} offset:{128*j}")
    for i in ORD:
        a(f"s_sub_i32 s{sA}, s{sCNT}, {64*i}\nv_cmp_gt_i32 {mk(i)}, s{sA}, v{lane}")
    a(f"s_waitcnt lgkmcnt({NSP})")
    for i in ORD: a(f"v_lshlrev_b32 v{RC+i}, 2, v{G+i}")
    stamp("pro", 2); stamp("syn", 5)
    a(f"""
    s_mov_b32 s{sA}, 0
    s_branch M_FL1
    M_FL:
    s_sleep {OPT["osl"]}
    {fl_}
    s_add_u32 s{sA}, s{sA}, 1
    s_cmp_gt_u32 s{sA}, {SPIN}
    s_cbranch_scc1 M_END
    M_FL1:
    s_waitcnt vmcnt(0)
    v_cmpx_ne_u64 vcc, s[{sTAG}:{sTAG+1}], {v(FV,2)}
    s_cbranch_execnz M_FL
    M_READY:
    """)
    stamp("top", 2); stamp("syn", 6); stamp("lb", 1)
    skip("M_GA")
    for i in ORD:
        a(f"s_mov_b64 exec, {mk(i)}\nbuffer_load_dword v{RC+i}, v{RC+i}, s[{sWS}:{sWS+3}], 0 offen {LD}")
        after("M_GA", i)
    a("s_mov_b64 exec, -1")
    if OTW == 1:
        a("s_cmp_eq_u32 s92, 0\ns_cbranch_scc1 M_NOW\ns_setprio 0")
        wwork()
        a("s_setprio 2\nM_NOW:")
    a(f"""
    v_lshrrev_b32 v{t2}, 4, v{lane}
    v_xor_b32 v{t2}, v{t2}, v{lane}
    v_and_b32 v{t2}, 1, v{t2}
    v_lshlrev_b32 v{t2}, 4, v{t2}
    v_mov_b32 v{fl0}, s{sCNT}
    v_mov_b32 v{fl0+1}, s{sN}
    s_waitcnt lgkmcnt(0)
    """)
    if CEM: a(f"s_mov_b32 s{sA}, {EMS//32-4096}")
    for j in range(NSP):
        if CEM: a(f"v_bfe_u32 v{t3}, v{SG+j}, 12, 8\nv_mad_i32_i24 v{SG+j}, v{t3}, s{sA}, v{SG+j}")
        a(f"v_lshl_add_u32 v{SG+j}, v{SG+j}, 5, v{t2}")
    stamp("lb", 2)
    if int(OPT["barA"]): a("s_barrier")
    stamp("lb", 3)
    def stage(js):
        for j in ([] if YM else js):
            a(f"""
            s_sub_i32 s{sA}, s{sNS}, {32*j}
            s_add_u32 m0, s{sSTB}, {1024*j}
            v_cmpx_gt_i32 vcc, s{sA}, v{lh}
            buffer_load_dwordx4 v{SG+j}, s[{sEM}:{sEM+3}], 0 offen {LD} lds
            """)
        a("s_mov_b64 exec, -1")
    NS1 = int(OPT["ns1"]); NS2 = int(OPT["ns2"])
    stage(range(NS1))
    XW = int(OPT["xw"])
    def pwarm():
        if XW:
            a(f"""
            s_lshr_b32 s{sA}, s2, 3
            s_mul_i32 s{sA}, s{sA}, {XW*128}
            s_add_u32 s{sA}, s{sA}, {XE*4096}
            v_lshl_add_u32 v{tt}, v{lane}, 3, s{sW}
            v_cmpx_gt_u32 vcc, {XW}, v{tt}
            v_lshlrev_b32 v{tt}, 7, v{tt}
            buffer_load_dword v{vCr+4}, v{tt}, s[{sP}:{sP+3}], s{sA} offen sc1
            s_mov_b64 exec, -1
            """)
    a(f"s_movk_i32 s{sB}, {CH}\nv_mov_b32 v{t0}, s{sDF}\nv_mov_b32 v{t2}, s{sSO}")
    skip("M_DW")
    for i in ORD:
        a(f"""
        v_lshrrev_b32 v{NA+i}, 31, v{G+i}
        v_mad_u32_u24 v{NA+i}, v{NA+i}, 49, v{t2}
        """)
        after("M_DW", i)
    a(f"""
    s_mov_b32 s75, {L_C8}
    s_mov_b64 exec, 1
    ds_add_u32 v{nta}, v{fl0} offset:{L_NT}
    ds_max_u32 v{nta}, v{fl0+1} offset:{L_MX}
    """)
    stamp("lb", 4)
    skip("M_RK")
    for i in ORD:
        a(f"""
        s_mov_b64 exec, {mk(i)}
        s_waitcnt vmcnt({i+NS1})
        v_and_b32 v{CA+i}, 63, v{RC+i}
        v_bfe_u32 v{tt}, v{RC+i}, 18, 3
        v_add_u32 v{NA+i}, v{CA+i}, v{NA+i}
        v_lshl_add_u32 v{CA+i}, v{NA+i}, 2, s75
        v_lshl_add_u32 v{CA+i}, v{tt}, 9, v{CA+i}
        ds_add_rtn_u32 v{RK+i}, v{CA+i}, v{one}
        """)
        after("M_RK", i)
    def pack(lab):
        a(f"s_movk_i32 s{sB}, {CH}\ns_mov_b32 s74, {int(OPT['epf'])*128}")
        skip(lab)
        for i in ORD:
            a(f"""
            v_bfe_u32 v{t0}, v{G+i}, 12, 8
            v_lshrrev_b32 v{tt}, 21, v{RC+i}
            v_bfe_i32 v{t1}, v{G+i}, 11, 1
            v_mad_u32_u24 v{tt}, v{t0}, s{sB}, v{tt}
            v_and_b32 v{t1}, {M0}, v{t1}
            v_bfe_u32 v{RC+i}, v{RC+i}, 6, 15
            v_add3_u32 v{G+i}, v{t1}, v{tt}, s{sDF}
            v_lshl_add_u32 v{RC+i}, v{RC+i}, 7, v{NA+i}
            v_lshlrev_b32 v{NA+i}, 3, v{NA+i}
            """)
            if 64 * i < SCAP and not YM:
                a(f"""
                s_sub_i32 s{sA}, s{sNS}, {64*i}
                v_cmp_gt_i32 vcc, s{sA}, v{lane}
                v_add_u32 v{tt}, {2048*i}, v{sac}
                s_nop 0
                v_cndmask_b32 v{G+i}, v{G+i}, v{tt}, vcc
                """)
            after(lab, i)
    EPOS = int(OPT["epos"]); NEP = 0
    def eprefetch():
        if not int(OPT["epf"]): return
        for i in ((6, 5, 4, 3, 2, 1) if NMM else (6, 5, 4, 3, 2)):
            a(f"s_mov_b64 exec, {mk(i)}\nv_cmpx_gt_u32 vcc, s74, v{RC+i}" + ("" if 64 * i >= SCAP else f"\nv_cmpx_le_u32 vcc, s{sDF}, v{G+i}") + f"\nbuffer_load_dword v{vCr+4}, v{G+i}, s[{sE}:{sE+3}], 0 idxen")
        a("s_mov_b64 exec, -1")
    if int(OPT["epf"]): NEP = 6 if NMM else 5
    if XW: NEP += 1
    a("s_mov_b64 exec, -1")
    stamp("pro", 3); stamp("lb", 5)
    a(f"""
    s_cmp_eq_u32 s{sW}, 0
    s_cbranch_scc1 M_PK0
    s_lshl_b32 s{sA}, s{sW}, 8
    s_add_u32 s{sA}, s{sA}, {L_C8 - 256}
    v_lshl_add_u32 v{S4}, v{lane}, 2, s{sA}
    v_mov_b32 v{Q+8}, 0
    s_waitcnt lgkmcnt(0)
    s_barrier
    """)
    stamp("pro", 4); stamp("lb", 6)
    a(f"s_cmp_gt_u32 s{sW}, 2\ns_cbranch_scc1 M_NOPFX")
    for j in range(3): a(f"ds_read2st64_b32 {v(Q+2*j,2)}, v{S4} offset0:{4*j} offset1:{4*j+2}")
    a(f"s_waitcnt lgkmcnt(0)\nv_mov_b32 v{Q+9}, v{Q}")
    for j in range(1, 6): a(f"v_add_u32 v{Q+9+j}, v{Q+8+j}, v{Q+j}")
    for j in range(4): a(f"ds_write2st64_b32 v{S4}, v{Q+8+2*j}, v{Q+9+2*j} offset0:{C8O//256+4*j} offset1:{C8O//256+4*j+2}")
    a(f"M_NOPFX:\ns_setprio 0\ns_cmp_lt_u32 s{sW}, 4\ns_cbranch_scc1 M_NOFILL")
    for i in range(4): a(f"v_mov_b32 v{t4+i}, {DUMMY}")
    a(f"v_lshlrev_b32 v{t0}, 4, v0\nv_lshlrev_b32 v{t1}, 3, v0")
    assert 2 * LSZ == 8 * 4096 + 2048 and L_LS == 2048
    for i in range(8): a(f"ds_write_b128 v{t0}, {v(t4,4)} offset:{4096*i}")
    a(f"ds_write_b64 v{t1}, {v(t4,2)}\nM_NOFILL:")
    pack("M_PB"); stage(range(NS1, NSP))
    if EPOS == 0: pwarm(); eprefetch()
    a("s_waitcnt lgkmcnt(0)\ns_barrier\ns_branch M_P4E")
    d0, d1, f0, f1, k0, k1, vL, vR, ks, a4, l0, l1, o0, o1, cn, ci = [Q + i for i in range(16)]
    m0_, B0, m1_, B1 = S4, S4+1, S4+2, S4+3
    a(f"""
    M_PK0:
    s_setprio 3
    v_lshlrev_b32 v{a4}, 3, v{lane}
    v_lshlrev_b32 v{cn}, 2, v{lane}
    v_add_u32 v{cn}, {L_C8}, v{cn}
    v_sub_u32 v{ci}, 31, v{m}
    v_lshlrev_b32 v{ci}, 2, v{ci}
    s_mov_b32 s75, {f32(4194304.0)}
    s_waitcnt lgkmcnt(0)
    s_barrier
    """)
    stamp("pro", 4); stamp("lb", 6)
    a(f"ds_read_b32 v{ks}, v{nta} offset:{L_NT}")
    for j in range(7): a(f"ds_read2st64_b32 {v(FX+2*j,2)}, v{cn} offset0:{2*j} offset1:{2*j+1}")
    a(f"""
    s_waitcnt lgkmcnt(4)
    v_readfirstlane_b32 s{sL}, v{ks}
    v_add3_u32 v{d0}, v{FX}, v{FX+2}, v{FX+4}
    v_add3_u32 v{d1}, v{FX+1}, v{FX+3}, v{FX+5}
    s_lshr_b32 s{sL}, s{sL}, 8
    s_add_u32 s{sL}, s{sL}, 1
    s_waitcnt lgkmcnt(0)
    v_add3_u32 v{d0}, v{d0}, v{FX+6}, v{FX+8}
    v_add3_u32 v{d1}, v{d1}, v{FX+7}, v{FX+9}
    v_add3_u32 v{d0}, v{d0}, v{FX+10}, v{FX+12}
    v_add3_u32 v{d1}, v{d1}, v{FX+11}, v{FX+13}
    v_cvt_f32_u32 v{f0}, v{d0}
    v_cvt_f32_u32 v{f1}, v{d1}
    v_add_f32 v{f0}, -0.5, v{f0}
    v_add_f32 v{f1}, -0.5, v{f1}
    M_LS:
    s_add_u32 s{sL}, s{sL}, 2
    s_cmp_gt_u32 s{sL}, {LMAX}
    s_cbranch_scc1 M_P4W
    """)
    Lf, Rc, Ka = FX, FX + 3, FX + 6
    a(f"""
    v_cvt_f32_u32 v{Lf+1}, s{sL}
    v_add_f32 v{Lf}, -1.0, v{Lf+1}
    v_add_f32 v{Lf+2}, 1.0, v{Lf+1}
    v_rcp_f32 v{Rc}, v{Lf}
    v_rcp_f32 v{Rc+1}, v{Lf+1}
    v_rcp_f32 v{Rc+2}, v{Lf+2}
    """)
    for j in range(3): a(f"v_fma_f32 v{Ka+2*j}, v{f0}, v{Rc+j}, 1.0\nv_fma_f32 v{Ka+2*j+1}, v{f1}, v{Rc+j}, 1.0")
    for j in range(6): a(f"v_cvt_u32_f32 v{Ka+j}, v{Ka+j}")
    a(f"""
    v_lshl_or_b32 v{k0}, v{Ka+2}, 10, v{Ka}
    v_lshl_or_b32 v{k1}, v{Ka+3}, 10, v{Ka+1}
    v_lshl_or_b32 v{k0}, v{Ka+4}, 20, v{k0}
    v_lshl_or_b32 v{k1}, v{Ka+5}, 20, v{k1}
    v_add_u32 v{ks}, v{k0}, v{k1}
    """)
    wave_scan(a, ks)
    a(f"""
    v_sub_u32 v{vL}, v{ks}, v{k1}
    v_readlane_b32 s{sA}, v{ks}, 63
    s_mov_b32 s{sB}, 0
    s_bfe_u32 s52, s{sA}, 0xa000a
    s_cmp_le_u32 s52, 256
    s_cbranch_scc1 M_LOK
    s_lshr_b32 s52, s{sA}, 20
    s_cmp_gt_u32 s52, 256
    s_cbranch_scc1 M_LS
    s_mov_b32 s{sB}, 10
    s_add_u32 s{sL}, s{sL}, 1
    s_cmp_gt_u32 s{sL}, {LMAX}
    s_cbranch_scc1 M_P4W
    M_LOK:
    s_sub_u32 s52, 256, s52
    s_add_u32 s53, s{sB}, 10
    v_bfe_u32 v{l0}, v{vL}, s{sB}, 10
    v_bfe_u32 v{l1}, v{ks}, s{sB}, 10
    v_bfe_u32 v{vL}, v{vL}, s53, 10
    v_bfe_u32 v{vR}, v{ks}, s53, 10
    v_sub_u32 v{l0}, v{l0}, v{vL}
    v_sub_u32 v{l1}, v{l1}, v{vR}
    v_mov_b32 v{vL}, s53
    v_mov_b32 v{vR}, s{sB}
    v_cmp_ge_u32 vcc, s52, v{l0}
    v_cmp_ge_u32 s[52:53], s52, v{l1}
    s_nop 0
    v_cndmask_b32 v{l0}, v{vL}, v{vR}, vcc
    v_cndmask_b32 v{l1}, v{vL}, v{vR}, s[52:53]
    v_bfe_u32 v{k0}, v{k0}, v{l0}, 10
    v_bfe_u32 v{k1}, v{k1}, v{l1}, 10
    v_cvt_f32_u32 v{l0}, v{k0}
    v_cvt_f32_u32 v{l1}, v{k1}
    v_rcp_f32 v{m0_}, v{l0}
    v_rcp_f32 v{m1_}, v{l1}
    s_nop 0
    v_fma_f32 v{l0}, v{f0}, v{m0_}, 1.0
    v_fma_f32 v{l1}, v{f1}, v{m1_}, 1.0
    v_cvt_u32_f32 v{l0}, v{l0}
    v_cvt_u32_f32 v{l1}, v{l1}
    v_lshlrev_b32 v{l0}, 2, v{l0}
    v_lshlrev_b32 v{l1}, 2, v{l1}
    ds_add_rtn_u32 v{o0}, v{l0}, v{k0} offset:{L_CNT}
    ds_add_rtn_u32 v{o1}, v{l1}, v{k1} offset:{L_CNT}
    ds_read_b32 v{cn}, v{ci} offset:{L_CNT}
    v_mul_f32 v{m0_}, s75, v{m0_}
    v_mul_f32 v{m1_}, s75, v{m1_}
    v_cvt_u32_f32 v{m0_}, v{m0_}
    v_cvt_u32_f32 v{m1_}, v{m1_}
    v_add_u32 v{m0_}, 2, v{m0_}
    v_add_u32 v{m1_}, 2, v{m1_}
    v_lshlrev_b32 v{B0}, 2, v{k0}
    v_lshlrev_b32 v{B1}, 2, v{k1}
    v_sub_u32 v{B0}, 1024, v{B0}
    v_sub_u32 v{B1}, 1024, v{B1}
    v_sub_u32 v{l0}, 124, v{l0}
    v_sub_u32 v{l1}, 124, v{l1}
    s_waitcnt lgkmcnt(0)
    v_mov_b32 v{ks}, v{cn}
    """)
    for stp in steps[:5]:
        a(f"s_nop 1\nv_add_u32_dpp v{ks}, v{ks}, v{ks} {stp}")
    a(f"""
    v_sub_u32 v{ks}, v{ks}, v{cn}
    ds_bpermute_b32 v{d0}, v{l0}, v{ks}
    ds_bpermute_b32 v{d1}, v{l1}, v{ks}
    ds_write_b32 v{ci}, v{ks} offset:{L_BAS}
    s_waitcnt lgkmcnt(1)
    v_add_u32 v{o0}, v{o0}, v{d0}
    v_add_u32 v{o1}, v{o1}, v{d1}
    v_lshl_or_b32 v{m0_}, v{o0}, 24, v{m0_}
    v_lshl_or_b32 v{m1_}, v{o1}, 24, v{m1_}
    ds_write2st64_b64 v{a4}, {v(m0_,2)}, {v(m1_,2)} offset0:0 offset1:1
    M_P4W:
    v_mov_b32 v{ks}, s{sL}
    ds_write_b32 v{nta}, v{ks} offset:{L_MX+4}
    s_waitcnt lgkmcnt(0)
    s_barrier
    """)
    stage(range(NS1, NSP)); pack("M_PA")
    if EPOS == 0: pwarm(); eprefetch()
    u0, nn = Q + 20, Q + 26
    a("M_P4E:")
    stamp("pro", 5)
    a(f"""
    ds_read_b64 {v(u0,2)}, v{nta} offset:{L_MX}
    v_lshlrev_b32 v{tt}, 2, v{m}
    ds_read_b32 v{u0+2}, v{tt} offset:{L_CNT}
    ds_read_b32 v{u0+3}, v{tt} offset:{L_BAS}
    s_lshr_b32 s{sA}, s{sW}, 1
    s_lshl_b32 s{sA}, s{sA}, 5
    v_add_u32 v{nn}, s{sA}, v{m}
    v_lshlrev_b32 v{tt}, 3, v{nn}
    ds_read_b64 {v(u0+4,2)}, v{tt} offset:{L_TB}
    """)
    skip("M_TR")
    for i in ORD:
        a(f"s_mov_b64 exec, {mk(i)}\nds_read_b64 {v(TBv+2*i,2)}, v{NA+i} offset:{L_TB}\nds_read_b32 v{OFv+i}, v{CA+i} offset:{C8O}")
        after("M_TR", i)
    a(f"""
    s_mov_b64 exec, -1
    """)
    if EPOS == 1: eprefetch()
    a(f"""
    s_lshl_b32 s{sA}, s{sG}, 5
    s_waitcnt lgkmcnt(12)
    v_readfirstlane_b32 s{sNMAX}, v{u0}
    v_readfirstlane_b32 s{sL}, v{u0+1}
    v_add_u32 v{u0+2}, v{u0+2}, v{u0+3}
    v_cmp_ge_u32 vcc, s{sA}, v{u0+3}
    v_cmp_lt_u32 s[52:53], s{sA}, v{u0+2}
    s_and_b64 s[52:53], s[52:53], vcc
    s_ff1_i32_b32 s{sT}, s52
    s_max_i32 s{sT}, s{sT}, 0
    s_cmp_le_u32 s{sL}, {LMAX}
    s_cbranch_scc1 M_P5
    s_mov_b32 s{sCAP}, 256
    s_branch M_AGAIN
    M_P5:
    """)
    skip("M_SC")
    for i in ORD:
        mm, BB = TBv + 2*i, TBv + 2*i + 1
        a(f"""
        s_mov_b64 exec, {mk(i)}
        s_waitcnt lgkmcnt({2*i + max(0, 5-i)})
        v_add_u32 v{RK+i}, v{RK+i}, v{OFv+i}
        v_lshrrev_b32 v{tt}, 24, v{mm}
        v_mul_u32_u24 v{mm}, v{mm}, v{RK+i}
        v_add_lshl_u32 v{tt}, v{tt}, v{RK+i}, 2
        v_lshrrev_b32 v{mm}, 22, v{mm}
        v_mad_u32_u24 v{tt}, v{mm}, v{BB}, v{tt}
        ds_write2st64_b32 v{tt}, v{RC+i}, v{G+i} offset0:{L_LS//256} offset1:{L_LE//256}
        """)
        after("M_SC", i)
    ca0, ca1, ca2, ca3, kk, oa, fa, da = [EP + i for i in range(8)]
    epi_setup = f"""
    s_lshl_b32 s{sA}, s{sSB}, 7
    s_add_u32 s{sA}, s{sA}, {L_XR}
    s_movk_i32 s{sB}, 0x3fc
    s_movk_i32 s75, 0x3f8
    v_mov_b32 v{kk}, v{u0+5}
    v_lshrrev_b32 v{ca0}, 24, v{u0+4}
    v_mul_u32_u24 v{ca0}, 272, v{ca0}
    v_lshl_add_u32 v{ca0}, v{h16}, 1, v{ca0}
    v_add_u32 v{ca0}, s{sA}, v{ca0}
    v_mov_b32 v{da}, {L_ZR}
    v_cmp_gt_u32 s[56:57], s{sB}, v{kk}
    v_cmp_gt_u32 s[58:59], s75, v{kk}
    v_add_u32 v{ca1}, 272, v{ca0}
    v_add_u32 v{ca2}, 544, v{ca0}
    v_add_u32 v{ca3}, 816, v{ca0}
    v_cmp_gt_u32 vcc, 0x400, v{kk}
    v_cndmask_b32 v{ca1}, v{da}, v{ca1}, s[56:57]
    v_cndmask_b32 v{ca2}, v{da}, v{ca2}, s[58:59]
    v_cndmask_b32 v{ca0}, v{da}, v{ca0}, vcc
    v_cmp_gt_u32 vcc, s{sNB}, v{nn}
    v_lshlrev_b32 v{oa}, 7, v{nn}
    v_lshl_add_u32 v{oa}, v{h16}, 1, v{oa}
    s_lshl_b32 s{sA}, s{sW}, 11
    v_cndmask_b32 v{oa}, v{hz}, v{oa}, vcc
    v_add_u32 v{fa}, s{sA}, v{l16}
    v_mul_u32_u24 v{da}, 272, v{m}
    v_add3_u32 v{da}, v{da}, v{h16}, s{sXRB}
    """
    a(f"""
    s_mov_b64 exec, -1
    s_setprio 0
    """)
    if EPOS == 2: eprefetch()
    a(f"s_waitcnt vmcnt({NEP}) lgkmcnt(0)\ns_barrier")
    stamp("top", 3); stamp("pro", 6); stamp("pri", 1)
    a(f"s_cmp_lg_u32 s{sT}, 0\ns_cbranch_scc1 M_GO")
    a(epi_setup)
    a("s_branch M_BEND\nM_GO:")
    S = []
    ef = OPT["eflags"]
    def le_read(t, p): return (f"ds_read_b32 v{RP+2*p}, v{vLE} offset:{L_LE+1024*t}", f"le{t}")
    def ls_read(t, dst): return (f"ds_read_b128 {v(dst,4)}, v{vLS} offset:{L_LS+1024*t}", f"ls{t}")
    def st_addr(p): return f"v_xor_b32 v{sa}, v{RP+2*p}, v{h16}"
    def st_read(t): return (f"ds_read_b128 {Es(t)}, v{sa}", f"st{t}")
    def d_pre(t, p): return [f"v_cmp_le_u32 vcc, s{sDF}, v{RP+2*p}", f"v_and_or_b32 v{vCr+t%5}, v{RP+2*p}, s{sB30}, 1.0"]
    def d_load(t, p): return ["s_mov_b64 exec, vcc", (f"buffer_load_dwordx4 {Es(t)}, {v(RP+2*p,2)}, s[{sE}:{sE+3}], 0 idxen offen {ef}", f"D{t}"), "s_mov_b64 exec, -1"]
    def x_addr(src): return [f"v_and_or_b32 v{S4+i}, v{src+i}, s{sM7}, v{CX+i}" for i in range(4)]
    def x_dma(t, nop=True, reg=None, soff="0", tag=None):
        o = []
        for i in range(4):
            sr = sP
            o += [f"s_add_u32 m0, s{sXRB}, {i*1024}"] + (["s_nop 0"] if nop else []) + \
                 [(f"buffer_load_dwordx4 v{(reg or S4)+i}, s[{sr}:{sr+3}], {soff} offen {LD} lds", tag or f"X{t}")]
        return o
    def fx_read(t, sx, tag=None): return (f"ds_read_b128 {v(FX+4*sx,4)}, v{XA+sx}", tag or f"fx{t}")
    def chain(nh, t):
        Dh = v(D + 16 * nh, 16)
        return [f"v_mfma_f32_32x32x16_bf16 {Dh}, {W3f(nh)}, {Es(t)}, {v(Q+16*nh,16)}"] + \
               ([f"v_smfmac_f32_32x32x32_bf16 {Dh}, {Idf(0)}, {v(FX+8*nh,8)}, v{W+4}"] if int(OPT["smf"]) else
                [f"v_mfma_f32_32x32x16_bf16 {Dh}, {Idf(j)}, {v(FX+8*nh+4*j,4)}, {Dh}" for j in range(2)])
    nd, L1, L2 = D, D + 4, SG
    def ps(i): return [f"s_memrealtime s[{76+2*i}:{77+2*i}]", "s_waitcnt lgkmcnt(0)"] if MODE == "pri" else []
    S += [ls_read(0, S4), (f"ds_read_b32 v{nd}, v{vLE} offset:{L_LS}", "nd")] + [le_read(j, j) for j in range(4)] + [ls_read(1, L1), ls_read(2, L2), ("@W", None, "nd")]
    S += x_addr(S4)
    xa_ = [f"v_and_b32 v{nd+1}, 127, v{nd}", f"v_lshlrev_b32 v{nd+1}, 7, v{nd+1}", f"v_bfe_u32 v{nd+2}, v{nd}, 1, 3", f"v_xor_b32 v{nd+2}, v{nd+2}, v{h}"]
    dm = x_dma(0, nop=False)
    for i in range(4): S += [dm[2*i], xa_[i], dm[2*i+1]]
    S += [f"v_lshl_add_u32 v{nd+1}, v{nd+2}, 4, v{nd+1}", f"v_add_u32 v{nd+1}, {L_XD}, v{nd+1}"]
    for sx in range(4):
        S += [(f"ds_read_b128 {v(FX+4*sx,4)}, v{nd+1}", "xd")] + ([f"v_xor_b32 v{nd+1}, {(32, 96, 32)[sx]}, v{nd+1}"] if sx < 3 else [])
    S += [("@W", None, "ls2")] + d_pre(0, 0) + ["s_not_b64 s[60:61], vcc"] + d_load(0, 0) + ps(2)
    S += [st_addr(0), "s_mov_b64 exec, s[60:61]", st_read(0), "s_mov_b64 exec, -1"]
    for j in range(1, 4): S += [st_addr(j), st_read(j)]
    ep = [l.strip() for l in epi_setup.strip().split("\n")]
    S += [f"v_mov_b32 v{SG+4}, v{u0+4}", f"v_mov_b32 v{SG+5}, v{u0+5}", f"v_mov_b32 v{SG+6}, v{nn}", ("@W", None, "xd")]
    ep = [l.replace(f"v{u0+4}", f"v{SG+4}").replace(f"v{u0+5}", f"v{SG+5}").replace(f"v{nn}", f"v{SG+6}") for l in ep] + x_addr(L1)
    k_ = 0
    for nh in range(2):
        for sx in range(4):
            S.append(f"v_mfma_f32_32x32x16_bf16 {v(Q+16*nh,16)}, {v(AG+(sx*2+nh)*4,4)}, {v(FX+4*sx,4)}, {'0' if sx == 0 else v(Q+16*nh,16)}")
            S += ep[k_:k_+4]; k_ += 4
    S += ep[k_:] + ps(3) + ps(4)
    S += [f"s_mov_b32 s74, {f32(-LOG2E)}", f"s_mov_b32 s75, {f32(-LOG2E)}"]
    S += [("@W", "D0", None)] + ps(5) + [fx_read(0, sx) for sx in range(4)]
    S += [f"v_pk_mul_f32 {v(Q+2*i,2)}, {v(Q+2*i,2)}, s[74:75]" for i in range(16)] + [("@W", None, "fx0")]
    c00 = chain(0, 0)
    S += [c00[0], "s_nop 7", "s_nop 7"] + c00[1:] + d_pre(1, 1) + d_load(1, 1) + x_dma(1) + [f"v_and_or_b32 v{L2+i}, v{L2+i}, s{sM7}, v{CX+i}" for i in range(4)] + ps(6)
    if MODE: S += [f"s_mov_b32 s90, s{sT}", f"s_mov_b32 s98, s{sL}", "s_memtime s[94:95]", "s_waitcnt lgkmcnt(0)"]
    if MODE == "top": S += ["s_memrealtime s[84:85]", "s_waitcnt lgkmcnt(0)"]
    def phase(nh, t, mf, fill):
        Db, Ab = D + 16*nh, AG + 16*nh
        c = vCr + t % 5
        cp = f"{v(c & ~1, 2)} " + ("op_sel_hi:[1,0]" if c % 2 == 0 else "op_sel:[0,1] op_sel_hi:[1,1]")
        seq = []
        mf = mf + [None] * (3 - len(mf))
        for q in range(2):
            ex = [f"v_exp_f32 v{T+i}, v{Db+8*q+i}" for i in range(8)]
            rc = [f"v_rcp_f32 v{T+i}, v{T+i}" for i in range(8)]
            ad = [f"v_pk_add_f32 {v(T+2*i,2)}, {v(T+2*i,2)}, {cp}" for i in range(4)]
            fm = [f"v_pk_fma_f32 {v(Ab+8*q+2*i,2)}, {v(Db+8*q+2*i,2)}, {v(T+2*i,2)}, {v(Ab+8*q+2*i,2)}" for i in range(4)]
            if t == 0: fm = [f"v_pk_mul_f32 {v(Ab+8*q+2*i,2)}, {v(Db+8*q+2*i,2)}, {v(T+2*i,2)}" for i in range(4)]
            if q == 0: seq += [mf[0]] + ex + ad + [mf[1]] + rc + fm
            else: seq += [mf[2]] + ex + ad + rc + fm
        res = []; n = 0
        for l in seq:
            if l is None: continue
            res.append(l)
            if l.startswith(("v_exp", "v_rcp")):
                res += fill.get(n, []); n += 1
        def txt(l): return l[0] if isinstance(l, tuple) else l
        ab = OPT["abl"]
        if "novm" in ab: res = [l for l in res if not txt(l).startswith(("buffer_", "s_add_u32 m0", "s_mov_b64 exec")) and not (txt(l) == "@W" and l[1])]
        if "nolds" in ab: res = [l for l in res if not txt(l).startswith("ds_") and not (txt(l) == "@W" and l[2])]
        if "nomf" in ab: res = [l for l in res if not txt(l).startswith(("v_mfma", "v_smf"))]
        if "nova" in ab: res = [l for l in res if not txt(l).startswith(("v_and_or", "v_xor", "v_cmp"))]
        return res
    DL = int(OPT["dl"])
    def last_of(S_, tags):
        seen = [it[1] for it in S_ if isinstance(it, tuple) and it[0] != "@W"]
        return max(tags, key=lambda g: max(i for i, x in enumerate(seen) if x == g))
    for t in range(LMAX):
        fill = {}
        td = t + DL
        pr = td if td < 4 else 0
        if 4 <= td < LMAX:
            fill[0] = [le_read(td, 0)]
            fill[10] = [("@W", None, f"le{td}"), st_addr(0)]; fill[11] = [st_read(td)]
        if t + 3 < LMAX: fill[1] = [ls_read(t + 3, S4)]
        if t + 1 < LMAX:
            FXP = int(OPT["fxp"])
            fill[FXP] = [("@W", f"X{t+1}", None)]
            for sx in range(4): fill[FXP+1+sx] = fill.get(FXP+1+sx, []) + [fx_read(t + 1, sx)]
        if t + 3 < LMAX:
            xa = x_addr(S4)
            xp = 21 if int(OPT["fxp"]) < 17 else 16
            fill[xp] = [("@W", None, f"ls{t+3}"), xa[0]]; fill[xp+1] = [xa[1]]; fill[xp+2] = [xa[2]]; fill[xp+3] = [xa[3]]
        XL = int(OPT["xl"])
        if XL == 2:
            for k_ in (1, 16, 17, 18, 19, 21, 22, 23, 24):
                if k_ in fill and not any((x[0] if isinstance(x, tuple) else x).startswith(("ds_read_b128 v[%d" % FX, "ds_read_b128 v[%d" % (FX+4), "ds_read_b128 v[%d" % (FX+8), "ds_read_b128 v[%d" % (FX+12))) or (isinstance(x, tuple) and x[0] == "@W" and x[1]) for x in fill[k_]): del fill[k_]
            if t + 2 < LMAX:
                dm = x_dma(t + 2, nop=False, reg=L2 if t == 0 else None)
                for i, pos in enumerate(int(x) for x in OPT["dmp"].split(",")): fill[pos] = fill.get(pos, []) + ([("@W", None, f"fx{t+1}")] if i == 1 else []) + [dm[i]]
        if t == 0 and XL == 3:
            if DL > 2: fill[2] = d_pre(2, 2); fill[3] = d_load(2, 2)
            dm = x_dma(2, nop=False, reg=L2)
            for i, pos in enumerate((4, 5, 6, 7, 12, 13, 14, 15)): fill[pos] = [dm[i]]
            if DL > 3: fill[25] = fill.get(25, []) + d_pre(3, 3) + d_load(3, 3)
        PR = {0: (None, None), 1: (1, 0), 2: (0, 1)}[int(OPT["prio"])]
        if PR[0] is not None: S.append(f"s_setprio {PR[0]}")
        S += phase(0, t, chain(1, t), fill)
        if PR[0] is not None: S.append(f"s_setprio {PR[1]}")
        if t + 1 < LMAX and last_of(S, [f"X{t+1}", f"D{t+1}"]) == f"D{t+1}": S.append(("@W", f"D{t+1}", None))
        fill = {}
        if t + 1 < LMAX: fill[0] = [("@W", None, f"fx{t+1}")]
        if t + 3 < LMAX and XL == 3:
            dm = x_dma(t + 3, nop=False)
            for i, pos in enumerate(int(x) for x in OPT["dmp"].split(",")): fill[pos] = [dm[i]]
        if t + 3 < LMAX and XL == 2:
            xa = x_addr(S4)
            fill[4] = [ls_read(t + 3, S4)]
            fill[20] = [("@W", None, f"ls{t+3}"), xa[0]]; fill[21] = [xa[1]]; fill[22] = [xa[2]]; fill[23] = [xa[3]]
        if td < LMAX:
            dp = d_pre(td, pr)
            DP = int(OPT["dpos"])
            fill[DP-1] = fill.get(DP-1, []) + [dp[0], dp[1]]; fill[DP] = d_load(td, pr)
        fill[31] = [f"s_cmp_eq_u32 s{sT}, {t+1}"]
        S += phase(1, t, chain(0, t + 1) if t + 1 < LMAX else [], fill)
        if t + 1 < LMAX: S.append("s_cbranch_scc1 M_FLUSH")
    emit(resolve(S))
    a("M_FLUSH:")
    stamp("top", 5); stamp("epi", 1)
    if MODE: a("s_memtime s[96:97]\ns_waitcnt lgkmcnt(0)")
    a("s_waitcnt vmcnt(0)")
    for i in range(8):
        a(f"ds_write_b128 v{da}, {v(AG+4*i,4)} offset:{32*i}")
    A0, A1, A2, OWN, PAR = D, D + 16, Q, Q + 16, Q + 24
    a(f"""
    M_BEND:
    v_cmp_gt_u32 vcc, 0x3f4, v{kk}
    s_mov_b32 s74, {f32(-1.0/LOG2E)}
    s_mov_b32 s75, {f32(-1.0/LOG2E)}
    s_waitcnt lgkmcnt(0)
    """)
    stamp("epi", 2)
    a("s_barrier")
    stamp("epi", 3)
    offs = (0, 16, 64, 80)
    for i in range(4):
        for buf, ca in ((A0, ca0), (A1, ca1), (A2, ca2)):
            a(f"ds_read_b128 {v(buf+4*i,4)}, v{ca} offset:{offs[i]}")
    for i in range(4):
        a(f"s_waitcnt lgkmcnt({9-3*i})")
        for j in range(2): a(f"v_pk_add_f32 {v(A0+4*i+2*j,2)}, {v(A0+4*i+2*j,2)}, {v(A1+4*i+2*j,2)}")
        for j in range(2): a(f"v_pk_add_f32 {v(A0+4*i+2*j,2)}, {v(A0+4*i+2*j,2)}, {v(A2+4*i+2*j,2)}")
    a(f"""
    s_cbranch_vccz M_SUMD
    s_movk_i32 s{sA}, 0x3f4
    M_SUML:
    s_mov_b64 exec, vcc
    """)
    for i in range(4):
        a(f"ds_read_b128 {v(A1+4*i,4)}, v{ca3} offset:{offs[i]}")
    a(f"s_sub_u32 s{sA}, s{sA}, 4\nv_add_u32 v{ca3}, 272, v{ca3}\ns_waitcnt lgkmcnt(0)")
    for i in range(8): a(f"v_pk_add_f32 {v(A0+2*i,2)}, {v(A0+2*i,2)}, {v(A1+2*i,2)}")
    a(f"""
    s_mov_b64 exec, -1
    v_cmp_gt_i32 vcc, s{sA}, v{kk}
    s_nop 4
    s_cbranch_vccnz M_SUML
    M_SUMD:
    s_cmp_le_u32 s{sNMAX}, s{sCAP}
    s_cbranch_scc1 M_EPI
    """)
    srd_off(a, 56, 10, WS_SP, 2048 * 4096)
    a(f"""
    s_lshl_b32 s{sA}, s2, 3
    s_add_u32 s{sA}, s{sA}, s{sW}
    s_lshl_b32 s{sA}, s{sA}, 12
    s_cmp_eq_u32 s{sBASE}, 0
    s_cbranch_scc1 M_NOLD
    """)
    for i in range(4):
        a(f"buffer_load_dwordx4 {v(A1+4*i,4)}, v{l16}, s[56:59], s{sA} offen offset:{1024*i} sc0 sc1")
    a("s_waitcnt vmcnt(0)")
    for i in range(8): a(f"v_pk_add_f32 {v(A0+2*i,2)}, {v(A0+2*i,2)}, {v(A1+2*i,2)}")
    a(f"""
    M_NOLD:
    s_add_u32 s{sBASE}, s{sBASE}, s{sCAP}
    s_cmp_ge_u32 s{sBASE}, s{sNMAX}
    s_cbranch_scc1 M_EPI
    """)
    for i in range(4):
        a(f"buffer_store_dwordx4 {v(A0+4*i,4)}, v{l16}, s[56:59], s{sA} offen offset:{1024*i} sc0 sc1")
    a(f"""
    M_AGAIN:
    s_load_dwordx2 s[60:61], s[0:1], 32
    s_waitcnt vmcnt(0) lgkmcnt(0)
    s_barrier
    """)
    srd(a, 56, 60, 18432)
    a(f"""
    s_lshl_b32 s{sA}, s{sW}, 10
    s_add_u32 s{sA}, s{sA}, 8192
    s_add_u32 m0, s{sA}, {S_W}
    v_lshlrev_b32 v{t0}, 2, v0
    buffer_load_dwordx4 v{l16}, s[56:59], s{sA} offen lds
    ds_write_b32 v{t0}, v{nta}
    v_add_u32 v{t0}, {L_C8}, v{t0}
    ds_write_b32 v{t0}, v{nta}
    ds_write_b32 v{t0}, v{nta} offset:2048
    """)
    a("s_waitcnt vmcnt(0)\ns_barrier")
    w2read()
    a(f"""
    s_waitcnt lgkmcnt(0)
    s_barrier
    s_branch M_BATCH
    M_EPI:
    """)
    srd(a, 56, 8, 3200000)
    for i in range(8): a(f"v_pk_mul_f32 {v(A0+2*i,2)}, {v(A0+2*i,2)}, s[74:75]")
    for i in range(8): a(f"v_cvt_pk_bf16_f32 v{OWN+i}, v{A0+2*i}, v{A0+2*i+1}")
    a(f"""
    ds_write_b128 v{fa}, {v(OWN,4)} offset:{L_FE}
    ds_write_b128 v{fa}, {v(OWN+4,4)} offset:{L_FE+1024}
    v_xor_b32 v{fa}, 0x800, v{fa}
    v_mfma_f32_32x32x16_bf16 {v(U0,16)}, {v(WU,4)}, {v(OWN,4)}, {v(U0,16)}
    v_mfma_f32_32x32x16_bf16 {v(U0,16)}, {v(WU+4,4)}, {v(OWN+4,4)}, {v(U0,16)}
    s_lshl_b32 s{sA}, s{sSB}, 6
    s_add_u32 s{sA}, s{sA}, s{sS0}
    s_mov_b32 s74, {f32(-LOG2E)}
    s_mov_b32 s75, {f32(-LOG2E)}
    s_waitcnt lgkmcnt(0)
    s_barrier
    """)
    stamp("epi", 4)
    a(f"""
    ds_read_b128 {v(PAR,4)}, v{fa} offset:{L_FE}
    ds_read_b128 {v(PAR+4,4)}, v{fa} offset:{L_FE+1024}
    s_waitcnt lgkmcnt(1)
    v_mfma_f32_32x32x16_bf16 {v(U0,16)}, {v(WU+8,4)}, {v(PAR,4)}, {v(U0,16)}
    s_waitcnt lgkmcnt(0)
    v_mfma_f32_32x32x16_bf16 {v(U0,16)}, {v(WU+12,4)}, {v(PAR+4,4)}, {v(U0,16)}
    s_nop 11
    """)
    for q in range(2):
        b = 8 * q
        for i in range(4): a(f"v_pk_mul_f32 {v(AG+b+2*i,2)}, {v(U0+b+2*i,2)}, s[74:75]")
        for i in range(8): a(f"v_exp_f32 v{AG+b+i}, v{AG+b+i}")
        for i in range(4): a(f"v_pk_add_f32 {v(AG+b+2*i,2)}, {v(AG+b+2*i,2)}, 1.0 op_sel_hi:[1,0]")
        for i in range(8): a(f"v_rcp_f32 v{AG+b+i}, v{AG+b+i}")
        for i in range(4): a(f"v_pk_mul_f32 {v(AG+b+2*i,2)}, {v(U0+b+2*i,2)}, {v(AG+b+2*i,2)}")
        for i in range(4): a(f"v_cvt_pk_bf16_f32 v{D+4*q+i}, v{AG+b+2*i}, v{AG+b+2*i+1}")
        a(f"buffer_store_dwordx4 {v(D+4*q,4)}, v{oa}, s[56:59], s{sA} offen offset:{16*q} {OPT['ofl']}")
    if MODE:
        stamp("epi", 5)
        a("s_waitcnt vmcnt(0)")
        stamp("top", 6); stamp("epi", 6)
        a(f"s_lshl_b32 s74, s2, 3\ns_add_u32 s74, s74, s{sW}\ns_lshl_b32 s74, s74, 6\ns_add_u32 s74, s74, {WS_ST+0x80000}\ns_load_dwordx2 s[10:11], s[0:1], 64\ns_waitcnt lgkmcnt(0)\ns_add_u32 s52, s10, s74\ns_addc_u32 s53, s11, 0\nv_mov_b32 v0, 0")
        for i in range(8):
            a(f"v_mov_b32 v1, s{76+2*i}\nglobal_store_dword v0, v1, s[52:53] offset:{4*i}")
        a("s_sub_u32 s96, s96, s94\nv_mov_b32 v1, s96\nglobal_store_dword v0, v1, s[52:53] offset:32\nv_mov_b32 v1, s98\nglobal_store_dword v0, v1, s[52:53] offset:36")
    a("M_END:\ns_endpgm")
    return R.n

hdr = f"""; MPNN edge-MLP + segment-sum + node update in one launch of 256 co-resident workgroups:
; @launch grid=(256,1,1) block=(512,1,1) lds={MAIN_LDS}
.amdgcn_target "amdgcn-amd-amdhsa--gfx950"
.text
.globl {KN}
.type {KN},@function
"""
nv = gen()
txt = hdr + a.text() + '.section .rodata,"a"\n.p2align 6\n' + kdesc(KN, 256, 102)
open(sys.argv[1], "w").write(txt)
print("vgprs", nv, "lds", MAIN_LDS)
```

```python
import sys, struct
from asmlib import *

OPT = dict(abl="", stamp=False, eflags="", M0=1152, ns1=3, es='0,3,2,0', xpos=0, df=1, hlp=0, es0=0, cpf=1, roll=0, fxp=16, dmp='23,24,25,26,27,28,29,30', dpos=12, sp='0,0,0,0', dl=2, xl=2, barA=1, nmm=0, ofl='', wpos=0, epos=0, osl=4, xw=0, fst=5, cem=1, Y=False, epf=1400, skw=256, xe=0, tlb=0, stl=0, eld='', ild='', xld='', wso=0, tch=0, st='sc1', oe=0, otw=2, smf=1, ns2=7, prio=1, ld="sc1")
for arg in sys.argv[2:]:
    k, val = arg.split("=")
    OPT[k] = {"True": True, "False": False}.get(val, val.replace("+", " "))
M0 = int(OPT["M0"])
assert M0 % 32 == 0 and M0 <= 1792 and 3200 - M0 <= 2048
LD = OPT["ld"]
YM = OPT["Y"]
if YM: OPT["es"] = "0,0,0,0"; OPT["ns1"] = 0
KN = "standalone__mpnn_edge_mlp__graph_kernel"

NCH, CH = 250, 3200
WS_REC, WS_O, WS_F2, WS_ST, WS_P, WS_SP, WS_EM = 0, 0x440000, 0x680000, 0x700000, 0x800000, 0x1A00000, 0xB20000
SKW = int(OPT["skw"])
OTS, RCS, EMS = 8192 + SKW, 16384, M0 * 32 + SKW
LOG2E = 1.4426950408889634
def f32(x): return "0x%08x" % struct.unpack("<I", struct.pack("<f", x))[0]

a = Asm()
MODE = OPT["stamp"]
def stamp(mode, i):
    if MODE == mode or (MODE and mode == "all"):
        a(f"s_memrealtime s[{76+2*i}:{77+2*i}]\ns_waitcnt lgkmcnt(0)")
def emit(l): a("\n".join(l))

def resolve(stream):
    out = []; vm = []; lg = []
    for it in stream:
        if isinstance(it, tuple) and it[0] == "@W":
            parts = []
            if it[1] is not None:
                idx = max(i for i, t in enumerate(vm) if t == it[1]); n = len(vm) - 1 - idx
                assert n <= 63; parts.append(f"vmcnt({n})")
            if it[2] is not None:
                idx = max(i for i, t in enumerate(lg) if t == it[2]); n = len(lg) - 1 - idx
                parts.append(f"lgkmcnt({min(n, 15)})")
            out.append("s_waitcnt " + " ".join(parts)); continue
        txt, tag = it if isinstance(it, tuple) else (it, None)
        if txt.startswith("buffer_"): vm.append(tag)
        if txt.startswith("ds_"): lg.append(tag)
        out.append(txt)
    return out

LMAX = 17
L_TB = 0
L_CNT = 1024
L_NT = L_CNT + 128
L_MX = L_NT + 16
L_BAS = L_MX + 16
L_F2C = 1408
L_ZR = 1536
L_LS = 2048
LSZ = LMAX * 1024
L_LE = L_LS + LSZ
L_ST = L_LE + LSZ
SCAP = 160
NSP = SCAP // 32
L_XD = L_ST + 8 * SCAP * 32
L_XR = L_XD + 16384
XRS = 8704
MAIN_LDS = L_XR + 8 * XRS
assert MAIN_LDS <= 163840 and L_XR % 4096 == 0
L_C8 = L_XR + XRS
C8O = XRS
GLO = 6144
S_W = L_LS
S_WU = L_XR + 4 * XRS
S_CNT = S_W + 18432
S_STA = S_CNT + 2048
S_SRT = S_STA + 2048
S_E = S_SRT + CH * 4
assert S_E + M0 * 32 <= L_XD
L_FE = L_LS
DUMMY = 0xC0000000
DFLAG = 1 << 24
SPIN = 200000

def gen():
    R = Regs("v", 1, 256)
    vLS = R.alloc("vLS"); vLE = R.alloc("vLE")
    vCr = R.alloc("vCr", 5)
    RP = R.alloc("RP", 8, 2)
    XA = R.alloc("XA", 4); CX = R.alloc("CX", 4)
    S4 = R.alloc("S4", 4, 4); T = R.alloc("T", 8, 4)
    FX = R.alloc("FX", 16, 4); E = R.alloc("E", 16, 4)
    D = R.alloc("D", 32, 4); Q = R.alloc("Q", 32, 4); AG = R.alloc("AG", 32, 4); W = R.alloc("W", 16, 4)
    U0 = R.alloc("U0", 16, 4); WU = R.alloc("WU", 16, 4); EP = R.alloc("EP", 16, 4)
    SG = R.alloc("SG", 8, 4)
    sa = R.alloc("sa"); lane = R.alloc("lane"); l16 = R.alloc("l16"); m = R.alloc("m"); h = R.alloc("h")
    sac = R.alloc("sac"); lh = R.alloc("lh"); hz = R.alloc("hz"); aN = R.alloc("aN"); one = R.alloc("one"); nta = R.alloc("nta")
    h16 = RP + 1
    def Idf(j): return v(W + 4 * j, 4)
    def W3f(nh): return v(W + 8 + nh * 4, 4)
    def Es(t): return v(E + 4 * (t % 4), 4)
    sX, sE, sREC, sEM, sWS, sP = 16, 20, 24, 28, 32, 36
    sW, sSB, sS0, sSO, sN, sBASE, sCNT, sT, sXRB, sA, sB, sCAP = 40, 41, 42, 43, 44, 45, 46, 47, 48, 49, 50, 51
    sNB, sGL, sNMAX, sG, sL, sM7, sB30, sDF, sNS = 70, 71, 72, 73, 12, 13, 14, 15, 3
    sSTB, sOA, sTAG = 99, 93, 100
    t0, t1, t2, t3, t4, t5, t6, t7 = [T + i for i in range(8)]
    def mk(i): return f"s[{54+2*i}:{55+2*i}]"
    ORD = list(range(7, -1, -1))
    def skip(lab):
        a(f"s_cmp_le_u32 s{sCNT}, 384\ns_cbranch_scc1 {lab}6\ns_cmp_le_u32 s{sCNT}, 448\ns_cbranch_scc1 {lab}7")
    def after(lab, i):
        if i >= 6: a(f"{lab}{i}:")
    ne = 0 if "noe" in OPT["abl"] else 1
    steps = [f"row_shr:{sh} row_mask:0xf bank_mask:0xf bound_ctrl:0" for sh in (1, 2, 4, 8)] + ["row_bcast:15 row_mask:0xa bank_mask:0xf", "row_bcast:31 row_mask:0xc bank_mask:0xf"]

    DS_, SR_, CAD, RNK, PR_ = D, D + 8, D + 16, D + 24, Q
    oA, oB, t16, t4_, idx, rA, rB = [Q + 8 + i for i in range(7)]
    nz = Q + 16
    CS = Q + 20
    NA_, NB_ = M0 // 4, (CH - M0) // 4
    DF = int(OPT["df"])
    SDW = "dst_sel:DWORD dst_unused:UNUSED_PAD src0_sel:DWORD src1_sel:"
    a(f".p2align 8\n{KN}:")
    a(f"""
    s_cmp_ge_u32 s2, 256
    s_cbranch_scc1 M_END
    {"s_memrealtime s[76:77]" if MODE else ""}
    s_load_dwordx4 s[56:59], s[0:1], 16
    s_load_dwordx4 s[4:7], s[0:1], 0
    s_load_dwordx4 s[60:63], s[0:1], 32
    s_load_dwordx4 s[8:11], s[0:1], 48
    s_load_dwordx2 s[64:65], s[0:1], 64
    s_memrealtime s[66:67]
    """)
    a(f"""
    s_setprio 2
    """)
    CPF = int(OPT["cpf"])
    if CPF:
        a(f"""
        s_getpc_b64 s[52:53]
        M_PC:
        s_lshr_b32 s{sA}, s2, 3
        s_lshl_b32 s{sA}, s{sA}, 7
        v_lshrrev_b32 v{t2}, 6, v0
        v_lshlrev_b32 v{t2}, 12, v{t2}
        v_add_u32 v{t2}, s{sA}, v{t2}
        v_min_u32 v{t2}, M_END-M_PC, v{t2}
        v_mov_b32 v{t3}, s53
        v_add_co_u32 v{t2}, vcc, s52, v{t2}
        s_nop 1
        v_addc_co_u32 v{t3}, vcc, 0, v{t3}, vcc
        global_load_dword v{vCr+4}, {v(t2,2)}, off
        """)
    a(f"""
    v_lshlrev_b32 v{t16}, 4, v0
    v_mov_b32 v{hz}, 0x80000000
    v_cmp_gt_u32 vcc, {NA_}, v0
    s_mul_i32 s{sA}, s2, 12800
    s_mov_b64 s[52:53], vcc
    v_cndmask_b32 v{rA}, v{hz}, v{t16}, vcc
    v_cmp_gt_u32 vcc, {NB_}, v0
    s_add_u32 s{sB}, s{sA}, {M0*4}
    s_mov_b64 s[54:55], vcc
    v_cndmask_b32 v{rB}, v{hz}, v{t16}, vcc
    s_mov_b32 s{sE+2}, 3200000
    s_mov_b32 s{sE+3}, 0x20000
    s_mov_b32 s{sEM+2}, 3200000
    s_mov_b32 s{sEM+3}, 0x20000
    v_lshlrev_b32 v{t4_}, 2, v0
    v_mov_b32 v{nta}, 0
    v_lshrrev_b32 v{t0}, 6, v0
    s_waitcnt lgkmcnt(0)
    """)
    stamp("ka", 1)
    a(f"""
    s_mov_b32 s{sE}, s58
    s_mov_b32 s{sE+1}, s59
    s_mov_b32 s{sEM}, s56
    s_mov_b32 s{sEM+1}, s57
    buffer_load_dwordx4 {v(DS_,4)}, v{rA}, s[{sE}:{sE+3}], s{sA} offen {OPT['ild']}
    buffer_load_dwordx4 {v(DS_+4,4)}, v{rB}, s[{sE}:{sE+3}], s{sB} offen {OPT['ild']}
    {"" if DF else f"buffer_load_dwordx4 {v(SR_,4)}, v{rA}, s[{sEM}:{sEM+3}], s{sA} offen"}
    {"" if DF else f"buffer_load_dwordx4 {v(SR_+4,4)}, v{rB}, s[{sEM}:{sEM+3}], s{sB} offen"}
    ds_write_b32 v{t4_}, v{nta} offset:{S_CNT}
    ds_write_b32 v{t4_}, v{nta}
    v_readfirstlane_b32 s{sW}, v{t0}
    s_setprio 0
    """)
    srd(a, sP, 10, 256)
    a(f"""
    s_cmp_lt_u32 s2, {NCH}
    s_cbranch_scc1 S_NOTAG
    """)
    HLP = int(OPT["hlp"])
    if HLP:
        a(f"""
        v_and_b32 v{t1}, 63, v0
        v_lshl_add_u32 v{t1}, v{t1}, 3, v{t0}
        v_lshlrev_b32 v{t2}, {HLP}, v{t1}
        v_cmpx_gt_u32 vcc, {(WS_EM + 256*EMS + (1<<HLP) - 1) >> HLP}, v{t1}
        global_load_dword v{vCr+4}, v{t2}, s[64:65]
        s_mov_b64 exec, -1
        s_waitcnt vmcnt(0)
        """)
    a(f"""
    s_cmp_lg_u32 s{sW}, 7
    s_cbranch_scc1 S_NOTAG
    s_or_b32 s{sA}, s66, 1
    v_mov_b32 v{nz}, s{sA}
    v_mov_b32 v{nz+1}, s67
    v_mov_b32 v{nz+2}, 0
    v_mov_b32 v{nz+3}, 0
    s_mov_b64 exec, 1
    buffer_atomic_cmpswap_x2 {v(nz,4)}, v{nta}, s[{sP}:{sP+3}], 0 offen sc1
    s_mov_b64 exec, -1
    s_waitcnt vmcnt(0)
    S_NOTAG:
    s_mov_b32 s68, s10
    s_mov_b32 s69, s11
    s_add_u32 s10, s64, {int(str(OPT["wso"]), 0)}
    s_addc_u32 s11, s65, 0
    s_cmp_lt_u32 s2, {NCH}
    s_cselect_b64 s[52:53], s[52:53], 0
    s_cselect_b64 s[54:55], s[54:55], 0
    v_and_b32 v{lane}, 63, v0
    v_lshlrev_b32 v{l16}, 4, v{lane}
    s_mul_i32 s{sL}, s2, {CH*32}
    s_lshl_b32 s{sT}, s{sW}, 10
    """)
    srd(a, sREC, 6, 0 if "nomv" in OPT["abl"] else 25600000)
    NMM = int(OPT["nmm"])
    if NMM: a(f"s_and_b32 s{sA}, s2, {NMM<<3}\ns_cmp_eq_u32 s{sA}, {NMM<<3}\ns_cselect_b32 s{sREC+2}, 0, s{sREC+2}")
    a(f"s_mul_i32 s{sA}, s2, 12800\ns_add_u32 s{sB}, s{sA}, {M0*4}\ns_waitcnt lgkmcnt(0)\ns_barrier")
    if DF: a(f"buffer_load_dwordx4 {v(SR_,4)}, v{rA}, s[{sEM}:{sEM+3}], s{sA} offen\nbuffer_load_dwordx4 {v(SR_+4,4)}, v{rB}, s[{sEM}:{sEM+3}], s{sB} offen")
    if int(OPT["stl"]):
        a(f"""
        s_lshl_b32 s{sA}, s{sW}, 21
        s_add_u32 s{sB}, s{sA}, 0x1000000
        s_min_u32 s{sN}, s{sB}, {WS_EM + 256*EMS - 64}
        s_load_dword s66, s[10:11], s{sA}
        s_load_dword s66, s[10:11], s{sN}
        s_min_u32 s{sN}, s{sB}, {25600000 - 64}
        s_load_dword s66, s[6:7], s{sA}
        s_load_dword s66, s[6:7], s{sN}
        s_and_b32 s{sA}, s{sA}, 0x200000
        s_load_dword s66, s[8:9], s{sA}
        """)
    npiece = 0 if YM else M0 // 32
    nr = (npiece + 7) // 8
    ES = [int(x) for x in OPT["es"].split(",")]
    assert sum(ES) == nr
    EC = [sum(ES[:i]) for i in range(5)]
    def edma(slot):
        for r in range(EC[slot], EC[slot+1]):
            if (r + 1) * 8 > npiece:
                a(f"s_min_u32 s{sT}, s{sT}, {(npiece - 8*r - 1)*1024}")
            a(f"s_add_u32 m0, s{sT}, {S_E + r*8192}\ns_add_u32 s{sA}, s{sT}, {r*8192}\ns_add_u32 s{sA}, s{sA}, s{sL}\nbuffer_load_dwordx4 v{l16}, s[{sREC}:{sREC+3}], s{sA} offen {OPT['eld']} lds")
    srd(a, sX, 4, 3200000)
    srd(a, sP, 60, 18432)
    def xrows():
        a(f"""
        v_lshrrev_b32 v{t0}, 4, v{lane}
        v_xor_b32 v{t0}, v{t0}, v{lane}
        v_and_b32 v{t0}, 7, v{t0}
        v_and_b32 v{t1}, 0x380, v{l16}
        v_lshl_or_b32 v{t0}, v{t0}, 4, v{t1}
        v_xor_b32 v{t1}, 64, v{t0}
        s_lshl_b32 s{sA}, s{sW}, 11
        s_add_u32 m0, s{sA}, {L_XD}
        s_add_u32 s{sB}, s{sA}, s{sS0}
        buffer_load_dwordx4 v{t0}, s[{sX}:{sX+3}], s{sB} offen {OPT['xld']} lds
        buffer_load_dwordx4 v{t1}, s[{sX}:{sX+3}], s{sB} offen offset:1024 {OPT['xld']} lds
        """)
    a(f"""
    s_and_b32 s74, s2, 7
    s_lshl_b32 s74, s74, 5
    s_lshr_b32 s{sA}, s2, 3
    s_add_u32 s74, s74, s{sA}
    s_lshl_b32 s{sA}, s74, 17
    s_add_u32 s{sA}, s{sA}, 1337
    s_mul_hi_u32 s{sS0}, s{sA}, 3209991
    s_add_u32 s{sA}, s{sA}, 131072
    s_mul_hi_u32 s{sNB}, s{sA}, 3209991
    s_min_u32 s{sNB}, s{sNB}, 25000
    s_sub_u32 s{sNB}, s{sNB}, s{sS0}
    s_and_b32 s{sSB}, s{sW}, 1
    s_mul_i32 s{sSO}, s74, 98
    s_sub_u32 s{sSO}, s{sSO}, s{sS0}
    s_sub_u32 s{sSO}, s{sSO}, 9
    s_lshl_b32 s{sS0}, s{sS0}, 7
    s_mul_i32 s{sGL}, s{sW}, {XRS}
    s_add_u32 s{sGL}, s{sGL}, {L_XR + GLO}
    """)
    XPOS = int(OPT["xpos"])
    def xw1():
        xrows()
        a(f"""
        s_lshl_b32 s{sA}, s{sW}, 10
        s_add_u32 m0, s{sA}, {S_W}
        s_mov_b32 s{sB}, -49
        buffer_load_dwordx4 v{l16}, s[{sP}:{sP+3}], s{sA} offen lds
        """)
    if XPOS == 0: xw1()
    TLB = int(OPT["tlb"])
    srd(a, sWS, 10, 0x1000000)
    if TLB:
        a(f"""
        v_lshl_add_u32 v{t0}, v{lane}, 3, s{sW}
        v_lshlrev_b32 v{t0}, 20, v{t0}
        buffer_load_dword v{vCr+4}, v{t0}, s[{sWS}:{sWS+3}], 0 offen
        """)
    ES0 = int(OPT["es0"])
    if ES0:
        a(f"s_mul_i32 s{sA}, s2, {RCS}\nbuffer_store_dwordx4 {v(FX,4)}, v{t16}, s[{sWS}:{sWS+3}], s{sA} offen sc1")
    edma(0)
    a(f"""
    v_mov_b32 v{one}, 1
    v_mov_b32 v{t7}, 0x10000
    v_lshlrev_b32 v{idx}, 23, v0
    v_add_u32 v{idx}, 9, v{idx}
    v_lshlrev_b32 v{t6}, 5, v{lane}
    s_mov_b32 s{sB}, -49
    s_mov_b32 s{sM7}, {1<<21}
    s_mov_b32 s{sB30}, {2<<21}
    s_mov_b32 s{sDF}, {3<<21}
    s_setprio 2
    """)
    stamp("ka", 2)
    a(f"""
    s_waitcnt vmcnt({EC[1]+2+ES0+(3 if XPOS == 0 else 0)})
    """)
    stamp("srt", 1); stamp("ka", 3)
    for g in range(2):
        for i in range(4*g, 4*g + 4):
            a(f"v_mul_u32_u24 v{PR_+i}, 1338, v{DS_+i}\nv_lshlrev_b32_sdwa v{CAD+i}, 2, v{PR_+i} {SDW}WORD_1")
        a(f"s_mov_b64 exec, {'s[52:53]' if g == 0 else 's[54:55]'}")
        for i in range(4*g, 4*g + 4): a(f"ds_add_rtn_u32 v{RNK+i}, v{CAD+i}, v{one if g == 0 else t7} offset:{S_CNT}")
        a("s_mov_b64 exec, -1")
    edma(1)
    if XPOS == 1: xw1()
    TCH = int(OPT["tch"])
    if TCH:
        a(f"""
        v_lshl_add_u32 v{t0}, v{lane}, 3, s{sW}
        v_cmpx_gt_u32 vcc, {(WS_EM + 256*EMS + (1<<21) - 1) >> 21}, v{t0}
        v_lshlrev_b32 v{t0}, 21, v{t0}
        global_load_dword v{vCr+4}, v{t0}, s[10:11]
        s_mov_b64 exec, -1
        """)
    def recs(rng):
        o = []
        for i in rng:
            o += [f"v_mad_i32_i16 v{PR_+i}, v{PR_+i}, s{sB}, v{DS_+i} op_sel:[1,0,0,0]", f"v_lshl_add_u32 v{PR_+i}, v{SR_+i}, 6, v{PR_+i}",
                  f"v_add3_u32 v{PR_+i}, v{PR_+i}, v{idx}, {('0', f's{sM7}', f's{sB30}', f's{sDF}')[i%4]}"]
        return o
    a("s_waitcnt lgkmcnt(0)\ns_barrier")
    stamp("srt", 2); stamp("tag", 1); stamp("ka", 4)
    OTG = S4
    a(f"""
    ds_read_b128 {v(CS,4)}, v{t6} offset:{S_CNT}
    ds_read_b128 {v(CS+4,4)}, v{t6} offset:{S_CNT+16}
    ds_read_b32 v{OTG+1}, v{t4_} offset:{S_CNT}
    s_waitcnt vmcnt({EC[2]+3+ES0})
    """)
    emit(recs(range(4)))
    a("s_waitcnt lgkmcnt(1)")
    for j in range(1, 8): a(f"v_add_u32 v{CS+j}, v{CS+j}, v{CS+j-1}")
    a(f"v_mov_b32 v{CS+8}, v{CS+7}")
    rr = recs(range(4, 8))
    for n, stp in enumerate(steps): a(f"{rr[2*n]}\n{rr[2*n+1]}\nv_add_u32_dpp v{CS+8}, v{CS+8}, v{CS+8} {stp}")
    a(f"v_sub_u32 v{CS+8}, v{CS+8}, v{CS+7}\nv_add_u32 v{CS+8}, {M0<<16}, v{CS+8}")
    for j in range(7, 0, -1): a(f"v_add_u32 v{CS+j}, v{CS+j-1}, v{CS+8}")
    a(f"""
    v_mov_b32 v{CS}, v{CS+8}
    ds_write_b128 v{t6}, {v(CS,4)} offset:{S_STA}
    ds_write_b128 v{t6}, {v(CS+4,4)} offset:{S_STA+16}
    """)
    for i in range(8): a(f"ds_read_b32 v{DS_+i}, v{CAD+i} offset:{S_STA}")
    a(f"ds_read_b32 v{OTG}, v{t4_} offset:{S_STA}")
    edma(2)
    for i in range(8):
        if i % 4 == 0: a(f"s_mov_b64 exec, {'s[52:53]' if i == 0 else 's[54:55]'}")
        a(f"""
        s_waitcnt lgkmcnt(8)
        v_add_u32 v{DS_+i}, v{DS_+i}, v{RNK+i}
        v_lshlrev_b32_sdwa v{DS_+i}, 2, v{DS_+i} {SDW}{'WORD_0' if i < 4 else 'WORD_1'}
        ds_write_b32 v{DS_+i}, v{PR_+i} offset:{S_SRT}
        """)
    a("s_mov_b64 exec, -1")
    stamp("srt", 3); stamp("ka", 5)
    a(f"s_load_dwordx2 s[{sTAG}:{sTAG+1}], s[68:69], 0")
    WPOS = int(OPT["wpos"])
    def wrest():
        srd(a, sE, 62, 16384)
        a(f"""
        s_lshl_b32 s{sA}, s{sW}, 10
        s_add_u32 s{sA}, s{sA}, 8192
        s_add_u32 m0, s{sA}, {S_W}
        s_lshl_b32 s{sB}, s{sSB}, 10
        buffer_load_dwordx4 v{l16}, s[{sP}:{sP+3}], s{sA} offen lds
        s_add_u32 s{sB}, s{sB}, 16384
        s_add_u32 m0, s{sB}, {S_W}
        s_lshl_b32 s{sA}, s{sW}, 11
        buffer_load_dwordx4 v{l16}, s[{sP}:{sP+3}], s{sB} offen lds
        s_lshr_b32 s{sN}, s{sW}, 1
        s_mul_i32 s{sN}, s{sN}, {XRS - 4096}
        s_add_u32 s{sN}, s{sN}, s{sA}
        s_add_u32 m0, s{sN}, {S_WU}
        s_nop 0
        buffer_load_dwordx4 v{l16}, s[{sE}:{sE+3}], s{sA} offen lds
        buffer_load_dwordx4 v{l16}, s[{sE}:{sE+3}], s{sA} offen offset:1024 lds
        """)
    if WPOS == 1: wrest()
    a(f"""
    v_lshrrev_b32 v{t1}, 1, v0
    v_lshlrev_b32 v{t1}, 2, v{t1}
    s_waitcnt vmcnt({(EC[3] if XPOS == 0 else ES[2]) + 4*WPOS}) lgkmcnt(0)
    s_barrier
    """)
    if MODE == "ka": a("s_waitcnt vmcnt(0)")
    stamp("srt", 4); stamp("tag", 2); stamp("ka", 6)
    no = 0 if YM else (M0 + 255) // 256
    a(f"ds_read_b128 {v(D,4)}, v{t16} offset:{S_SRT}\nds_read_b128 {v(D+4,4)}, v{t16} offset:{S_SRT+M0*4}")
    for r in range(no): a(f"ds_read_b32 v{SG+r}, v{t1} offset:{S_SRT+1024*r}")
    edma(3)
    a(f"""
    s_mul_i32 s{sA}, s2, {RCS}
    s_add_u32 s{sB}, s{sA}, 8192
    v_and_b32 v{t2}, 1, v0
    v_lshlrev_b32 v{t2}, 4, v{t2}
    s_waitcnt lgkmcnt({no})
    buffer_store_dwordx4 {v(D,4)}, v{rA}, s[{sWS}:{sWS+3}], s{sA} offen sc1
    buffer_store_dwordx4 {v(D+4,4)}, v{rB}, s[{sWS}:{sWS+3}], s{sB} offen sc1
    """)
    stamp("tag", 3)
    a(f"""
    s_mul_i32 s{sN}, s2, {OTS}
    s_add_u32 s{sN}, s{sN}, {WS_O}
    s_mov_b32 s{sB}, 0
    s_cmp_lg_u32 s{sTAG}, 0
    s_cbranch_scc1 S_TAGD
    S_TAGL:
    s_sleep 8
    global_load_dwordx2 {v(OTG+2,2)}, v{nta}, s[68:69] sc1
    s_add_u32 s{sB}, s{sB}, 1
    s_cmp_gt_u32 s{sB}, {SPIN}
    s_cbranch_scc1 M_END
    s_waitcnt vmcnt(0)
    v_readfirstlane_b32 s{sTAG}, v{OTG+2}
    v_readfirstlane_b32 s{sTAG+1}, v{OTG+3}
    s_nop 0
    s_cmp_eq_u32 s{sTAG}, 0
    s_cbranch_scc1 S_TAGL
    S_TAGD:
    """)
    stamp("tag", 4)
    a(f"""
    v_add_u32 v{OTG}, {(2048-M0)<<16}, v{OTG}
    v_mov_b32 v{OTG+2}, s{sTAG}
    v_mov_b32 v{OTG+3}, s{sTAG+1}
    buffer_store_dwordx4 {v(OTG,4)}, v{t16}, s[{sWS}:{sWS+3}], s{sN} offen sc1
    s_movk_i32 s{sB}, {(M0 - 256*(no-1))*2}
    v_cmp_gt_u32 vcc, s{sB}, v0
    v_mov_b32 v{t4}, v{t16}
    v_and_b32 v{m}, 31, v{lane}
    v_lshrrev_b32 v{h}, 5, v{lane}
    v_cndmask_b32 v{t6}, v{hz}, v{t16}, vcc
    v_lshlrev_b32 v{t0}, 3, v0
    v_add_u32 v{t0}, {L_C8}, v{t0}
    v_mov_b32 v{D+8}, 0
    v_mov_b32 v{D+9}, 0
    ds_write_b64 v{t0}, {v(D+8,2)}
    v_bfe_u32 v{t1}, v{lane}, 2, 2
    v_lshl_add_u32 v{t1}, v{h}, 3, v{t1}
    v_lshlrev_b32 v{t1}, 7, v{t1}
    v_and_b32 v{t3}, 3, v{lane}
    v_lshl_add_u32 v{aN}, v{t3}, 3, v{t1}
    v_and_b32 v{t3}, 16, v{lane}
    v_lshl_add_u32 v{aN}, v{t3}, 1, v{aN}
    v_add_u32 v{t1}, v{t1}, v{t3}
    v_and_b32 v{t3}, 1, v{lane}
    v_lshl_add_u32 v{t1}, v{t3}, 5, v{t1}
    v_and_b32 v{t3}, 2, v{lane}
    v_lshl_add_u32 v{t1}, v{t3}, 2, v{t1}
    s_lshl_b32 s{sA}, s{sSB}, 6
    v_add_u32 v{sa}, s{sA}, v{t1}
    v_bfe_u32 v{sac}, v{m}, 1, 3
    v_xor_b32 v{sac}, v{sac}, v{h}
    v_lshlrev_b32 v{sac}, 4, v{sac}
    v_lshl_or_b32 v{sac}, v{m}, 7, v{sac}
    s_and_b32 s{sA}, s{sW}, 6
    s_lshl_b32 s{sA}, s{sA}, 11
    s_add_u32 s{sA}, s{sA}, {L_XD}
    v_add_u32 v{sac}, s{sA}, v{sac}
    s_waitcnt lgkmcnt(1)
    """)
    for r in range(no):
        a(f"v_lshrrev_b32 v{SG+r}, 21, v{SG+r}\nv_lshl_add_u32 v{SG+r}, v{SG+r}, 5, v{t2}")
    srd_off(a, sEM, 10, WS_EM, 0 if "nomv" in OPT["abl"] else 256 * EMS)
    OG = E + 12
    a(f"""
    s_lshl_b32 s{sOA}, s74, 5
    s_mul_i32 s{sA}, s{sW}, {32*OTS}
    s_add_u32 s{sOA}, s{sOA}, s{sA}
    s_add_u32 s{sOA}, s{sOA}, {WS_O}
    v_lshrrev_b32 v{lh}, 1, v{lane}
    v_mul_u32_u24 v{lh}, {OTS - 32}, v{lh}
    v_add_u32 v{lh}, v{lh}, v{l16}
    s_mov_b32 s74, {f32(-LOG2E)}
    s_mov_b32 s75, {f32(-LOG2E)}
    """)
    XF, W1t, Wx, PD, EO = FX, AG, EP, AG + 16, Q
    def tr(dst, areg, off):
        a(f"ds_read_b64_tr_b16 {v(dst,2)}, v{areg} offset:{S_W+off}\nds_read_b64_tr_b16 {v(dst+2,2)}, v{areg} offset:{S_W+off+512}")
    def w2read():
        for sx in range(4):
            for nh in range(2): tr(AG + (2*sx + nh)*4, aN, 8192 + 2048*sx + 64*nh)
    for sx in range(4):
        a(f"ds_read_b128 {v(XF+4*sx,4)}, v{sac}" + (f"\nv_xor_b32 v{sac}, {(32, 96, 32)[sx]}, v{sac}" if sx < 3 else ""))
        tr(W1t + 4*sx, sa, 2048*sx)
    a("s_waitcnt lgkmcnt(0)")
    for sx in range(4):
        a(f"v_mfma_f32_32x32x16_bf16 {v(PD,16)}, {v(W1t+4*sx,4)}, {v(XF+4*sx,4)}, {'0' if sx == 0 else v(PD,16)}")
    a(f"""
    v_and_b32 v{t0}, 15, v{m}
    v_mul_u32_u24 v{t0}, 144, v{t0}
    v_lshl_add_u32 v{t0}, v{h}, 5, v{t0}
    v_lshrrev_b32 v{t1}, 4, v{m}
    v_mul_u32_u24 v{t1}, {XRS}, v{t1}
    s_mul_i32 s{sA}, s{sSB}, {64 - XRS}
    s_add_u32 s{sA}, s{sA}, s{sGL}
    v_add3_u32 v{t0}, v{t0}, v{t1}, s{sA}
    v_lshrrev_b32 v{t1}, 3, v{lane}
    v_lshl_add_u32 v{t3}, v{t1}, 4, v{l16}
    v_add_u32 v{t3}, s{sGL}, v{t3}
    s_lshl_b32 s{sA}, s{sW}, 11
    s_lshl_b32 s{sB}, s{sNB}, 7
    v_add_u32 v{t1}, s{sA}, v{l16}
    v_add_u32 v{t5}, 1024, v{t1}
    v_cmp_gt_u32 vcc, s{sB}, v{t1}
    v_cmp_gt_u32 s[52:53], s{sB}, v{t5}
    s_mov_b32 s{sCAP}, 512
    s_mov_b32 s{sBASE}, 0
    v_cndmask_b32 v{t1}, v{hz}, v{t1}, vcc
    v_cndmask_b32 v{t5}, v{hz}, v{t5}, s[52:53]
    """)
    for i in range(8): a(f"v_pk_mul_f32 {v(PD+2*i,2)}, {v(PD+2*i,2)}, s[74:75]")
    for i in range(8): a(f"v_cvt_pk_bf16_f32 v{PD+i}, v{PD+2*i}, v{PD+2*i+1}")
    a(f"""
    ds_write_b128 v{t0}, {v(PD,4)}
    ds_write_b128 v{t0}, {v(PD+4,4)} offset:16
    """)
    stamp("tag", 5)
    if WPOS == 0: wrest()
    a(f"""
    s_add_u32 s{sB}, s{sS0}, {WS_P}
    s_waitcnt vmcnt({7 if WPOS == 0 else 3}) lgkmcnt(0)
    s_barrier
    """)
    stamp("srt", 5); stamp("top", 1); stamp("tag", 6)
    a(f"ds_read_b128 {v(D+16,4)}, v{t3}\nds_read_b128 {v(D+20,4)}, v{t3} offset:{8*144}")
    for r in range(no): a(f"ds_read_b128 {v(EO+4*r,4)}, v{SG+r} offset:{S_E}")
    a(f"""
    s_waitcnt lgkmcnt({no})
    buffer_store_dwordx4 {v(D+16,4)}, v{t1}, s[{sWS}:{sWS+3}], s{sB} offen sc1
    buffer_store_dwordx4 {v(D+20,4)}, v{t5}, s[{sWS}:{sWS+3}], s{sB} offen sc1
    """)
    CEM = int(OPT["cem"])
    if NMM: a(f"s_and_b32 s{sA}, s2, {NMM<<3}\ns_cmp_eq_u32 s{sA}, {NMM<<3}\ns_cbranch_scc1 S_NOEM")
    a(f"s_mul_i32 s{sA}, s2, {EMS}" if CEM else f"s_lshl_b32 s{sA}, s2, 17")
    for r in range(no):
        a(f"s_waitcnt lgkmcnt({no-1-r})\nbuffer_store_dwordx4 {v(EO+4*r,4)}, v{t6 if r == no-1 else t4}, s[{sEM}:{sEM+3}], s{sA} offen {OPT['st']}\ns_add_u32 s{sA}, s{sA}, 8192")
    a(f"""
    S_NOEM:
    s_mov_b32 s92, 1
    s_lshl_b32 s{sN}, s2, {int(OPT["fst"])}
    s_add_u32 s{sN}, s{sN}, {WS_F2}
    """)
    stamp("srt", 6); stamp("syn", 1)
    FST = int(OPT["fst"])
    f2r = E + 9
    OE = int(OPT["oe"]); XE = 0
    oload = f"buffer_load_dwordx4 {v(OG,4)}, v{lh}, s[{sWS}:{sWS+3}], s{sOA} offen sc1"
    if OE == 1: a(oload)
    a("s_setprio 0")
    OTW = int(OPT['otw'])
    def wwork():
        a(f"v_add_u32 v{sa}, {S_WU - S_W}, v{sa}\ns_mul_i32 s{sB}, s{sSB}, {XRS}\nv_add_u32 v{t2}, s{sB}, v{sa}\nv_subrev_u32 v{t3}, s{sB}, v{sa}")
        for nh in range(2): tr(D + 8 + 4*nh, aN, 128*128 + 64*nh)
        for sx in range(4): tr(Wx + 4*sx, sa, XRS*(sx>>1) + 2048*(sx&1))
        a("s_waitcnt lgkmcnt(0)")
        for sx in range(4):
            a(f"v_mfma_f32_32x32x16_bf16 {v(U0,16)}, {v(Wx+4*sx,4)}, {v(XF+4*sx,4)}, {'0' if sx == 0 else v(U0,16)}")
        tr(WU, t2, 2*XRS); tr(WU + 4, t2, 2*XRS + 2048); tr(WU + 8, t3, 3*XRS); tr(WU + 12, t3, 3*XRS + 2048)
        w2read()
        for nh in range(2):
            for i in range(4):
                r = D + 8 + 4*nh + i
                a(f"v_lshlrev_b32 v{t0}, 16, v{r}\nv_and_b32 v{t1}, 0xffff0000, v{r}\nv_pk_mul_f32 {v(t0,2)}, {v(t0,2)}, s[74:75]\nv_cvt_pk_bf16_f32 v{W+8+4*nh+i}, v{t0}, v{t1}")
    def lanec():
        srd_off(a, sP, 10, WS_P, 3200000)
        if int(OPT["smf"]):
            a(f"""
            v_and_b32 v{t1}, 1, v{m}
            v_lshlrev_b32 v{t1}, 4, v{t1}
            v_mov_b32 v{t2}, 0x3f80
            v_lshlrev_b32 v{t1}, v{t1}, v{t2}
            v_lshrrev_b32 v{t0}, 2, v{m}
            v_lshlrev_b32 v{t2}, 2, v{h}
            v_sub_u32 v{t0}, v{t0}, v{t2}
            v_bfe_i32 v{t2}, v{m}, 1, 1
            v_and_b32 v{t2}, 0xaaaa, v{t2}
            v_or_b32 v{W+4}, 0x4444, v{t2}
            """)
            for i in range(4):
                a(f"v_cmp_eq_u32 vcc, {i}, v{t0}\ns_nop 1\nv_cndmask_b32 v{W+i}, 0, v{t1}, vcc")
        else:
            a(f"""
            v_lshlrev_b32 v{t0}, 3, v{h}
            v_sub_u32 v{t0}, v{m}, v{t0}
            v_and_b32 v{t1}, 1, v{t0}
            v_lshlrev_b32 v{t1}, 4, v{t1}
            v_mov_b32 v{t2}, 0x3f80
            v_lshlrev_b32 v{t1}, v{t1}, v{t2}
            v_lshrrev_b32 v{t0}, 1, v{t0}
            """)
            for j in range(2):
                for i in range(4):
                    a(f"v_cmp_eq_u32 vcc, {8*j+i}, v{t0}\ns_nop 1\nv_cndmask_b32 v{W+4*j+i}, 0, v{t1}, vcc")
        a(f"""
        s_mul_i32 s{sSTB}, s{sW}, {SCAP*32}
        s_add_u32 s{sSTB}, s{sSTB}, {L_ST}
        s_mov_b32 s{sREC}, s10
        s_or_b32 s{sREC+1}, s11, {4<<16}
        s_mov_b32 s{sREC+2}, {WS_O//4}
        s_mov_b32 s{sREC+3}, 0x20000
        s_sub_u32 s{sE}, s6, {DFLAG*32}
        s_subb_u32 s{sE+1}, s7, 0
        s_or_b32 s{sE+1}, s{sE+1}, {32<<16}
        s_mov_b32 s{sE+2}, {(DFLAG + 800000) * ne}
        s_mov_b32 s{sE+3}, 0x20000
        s_sub_u32 s{sG}, 11, s{sW}
        s_cmp_lt_u32 s{sW}, 4
        s_cselect_b32 s{sG}, s{sW}, s{sG}
        s_mul_i32 s{sXRB}, s{sG}, {XRS}
        s_add_u32 s{sXRB}, s{sXRB}, {L_XR}
        s_mov_b32 s{sM7}, 0xffffff80
        s_mov_b32 s{sB30}, 0x40000000
        s_mov_b32 s{sDF}, {DFLAG}
        v_lshlrev_b32 v{RP+1}, 4, v{h}
        v_lshlrev_b32 v{RP+3}, 4, v{h}
        v_lshlrev_b32 v{RP+5}, 4, v{h}
        v_lshlrev_b32 v{RP+7}, 4, v{h}
        v_lshrrev_b32 v{t0}, 3, v{lane}
        s_lshl_b32 s{sA}, s{sG}, 7
        v_lshl_add_u32 v{vLS}, v{t0}, 4, s{sA}
        v_lshl_add_u32 v{vLE}, v{m}, 2, s{sA}
        v_and_b32 v{t3}, 1, v{t0}
        v_lshlrev_b32 v{t3}, 4, v{t3}
        v_lshl_add_u32 v{sac}, v{lane}, 5, v{t3}
        v_add_u32 v{sac}, s{sSTB}, v{sac}
        v_and_b32 v{t1}, 4, v{t0}
        v_and_b32 v{t2}, 7, v{lane}
        v_xor_b32 v{t1}, v{t1}, v{t2}
        v_lshlrev_b32 v{CX}, 4, v{t1}
        v_xor_b32 v{CX+1}, 16, v{CX}
        v_xor_b32 v{CX+2}, 32, v{CX}
        v_xor_b32 v{CX+3}, 48, v{CX}
        v_and_b32 v{t0}, 3, v{m}
        v_lshrrev_b32 v{t1}, 2, v{m}
        v_lshl_add_u32 v{t1}, v{t0}, 3, v{t1}
        v_lshlrev_b32 v{t1}, 7, v{t1}
        v_add_u32 v{t1}, s{sXRB}, v{t1}
        v_lshrrev_b32 v{t2}, 4, v{m}
        v_lshl_or_b32 v{t0}, v{t2}, 2, v{t0}
        v_xor_b32 v{t0}, v{t0}, v{h}
        v_lshl_add_u32 v{XA}, v{t0}, 4, v{t1}
        v_xor_b32 v{XA+1}, 32, v{XA}
        v_xor_b32 v{XA+2}, 64, v{XA}
        v_xor_b32 v{XA+3}, 0x60, v{XA}
        """)
    if WPOS: wwork()
    else: lanec()
    if OE == 2: a(oload)
    SP = [int(x) for x in OPT["sp"].split(",")]
    spn = [0]
    def sshot(k):
        for _ in range(SP[k]):
            if spn[0] and spn[0] % 32 == 0: a("s_add_u32 s4, s4, 0x100000\ns_addc_u32 s5, s5, 0")
            a(f"s_load_dword s7, s[4:5], {(spn[0] % 32) * 32768}"); spn[0] += 1
    if sum(SP):
        a(f"""
        s_lshr_b32 s{sA}, s2, 3
        s_lshl_b32 s{sA}, s{sA}, 7
        s_lshl_b32 s{sB}, s{sW}, 12
        s_add_u32 s{sA}, s{sA}, s{sB}
        s_add_u32 s{sA}, s{sA}, {WS_P}
        s_add_u32 s4, s10, s{sA}
        s_addc_u32 s5, s11, 0
        """)
    sshot(0)
    stamp("syn", 2)
    a(f"""
    s_setprio 2
    v_cmp_eq_u32 vcc, 0, v0
    s_mov_b64 exec, vcc
    s_waitcnt vmcnt(0)
    s_barrier
    buffer_store_dwordx2 {v(OTG+2,2)}, v{nta}, s[{sWS}:{sWS+3}], s{sN} offen sc1
    s_mov_b64 exec, -1
    s_mov_b32 s{sA}, 0
    """)
    stamp("syn", 3)
    a(oload)
    XE = int(OPT["xe"])
    if XE:
        a(f"""
        s_lshr_b32 s{sA}, s2, 3
        s_lshl_b32 s{sA}, s{sA}, 7
        v_lshl_add_u32 v{t0}, v{lane}, 3, s{sW}
        v_cmpx_gt_u32 vcc, {XE}, v{t0}
        v_lshlrev_b32 v{t0}, 12, v{t0}
        buffer_load_dword v{vCr+4}, v{t0}, s[{sP}:{sP+3}], s{sA} offen sc1
        s_mov_b64 exec, -1
        """)
    if WPOS: lanec()
    else: wwork()
    a(f"s_mov_b32 s{sA}, 0\ns_waitcnt vmcnt({1 if XE else 0})")
    kk12, c0, c1, g0, g1, p0, p1, tt, qa, f2r, fl0 = [E + i for i in range(11)]
    G, RC, NA, RK = D, D + 8, D + 16, D + 24
    TBv = FX
    OFv, CA = EP, EP + 8
    a(f"""
    s_branch M_POLLC
    M_BATCH:
    v_lshrrev_b32 v{lh}, 1, v{lane}
    v_mul_u32_u24 v{lh}, {OTS - 32}, v{lh}
    v_add_u32 v{lh}, v{lh}, v{l16}
    s_mov_b32 s{sA}, 0
    M_POLL:
    s_sleep {OPT["osl"]}
    buffer_load_dwordx4 {v(OG,4)}, v{lh}, s[{sWS}:{sWS+3}], s{sOA} offen sc1
    s_add_u32 s{sA}, s{sA}, 1
    s_cmp_gt_u32 s{sA}, {SPIN}
    s_cbranch_scc1 M_END
    s_waitcnt vmcnt(0)
    M_POLLC:
    v_cmpx_ne_u64 vcc, s[{sTAG}:{sTAG+1}], {v(OG+2,2)}
    s_cbranch_execnz M_POLL
    s_mov_b64 exec, -1
    s_lshl_b32 s{sA}, s{sW}, 5
    v_lshrrev_b32 v{lh}, 1, v{lane}
    v_add_lshl_u32 v{kk12}, v{lh}, s{sA}, 12
    v_lshl_or_b32 v{kk12}, v{lane}, 31, v{kk12}
    v_lshl_add_u32 v{qa}, v{lane}, 2, s{sGL}
    v_mov_b32 v{t1}, 0xffff
    s_lshl_b32 s4, s{sW}, {FST+5}
    s_add_u32 s4, s4, {WS_F2}
    v_lshlrev_b32 v{vCr}, {FST}, v{m}
    """)
    FV = vCr + 1
    fl_ = f"buffer_load_dwordx2 {v(FV,2)}, v{vCr}, s[{sWS}:{sWS+3}], s4 offen sc1"
    stamp("pro", 1); stamp("syn", 4)
    a(f"v_and_b32 v{p0}, v{t1}, v{OG+1}\nv_lshrrev_b32 v{p1}, 16, v{OG+1}")
    if NMM:
        a(f"""
        v_and_b32 v{tt}, {NMM<<4}, v{lane}
        v_cmp_eq_u32 s[52:53], {NMM<<4}, v{tt}
        v_add_u32 v{tt}, v{p0}, v{p1}
        s_nop 0
        v_cndmask_b32 v{p1}, v{p1}, v{tt}, s[52:53]
        v_cndmask_b32 v{p0}, v{p0}, 0, s[52:53]
        """)
    fl = [f"v_and_or_b32 v{g0}, v{OG}, v{t1}, v{kk12}", f"v_lshrrev_b32 v{g1}, 16, v{OG}", f"v_or_b32 v{g1}, v{g1}, v{kk12}",
          f"v_and_b32 v{c0}, v{t1}, v{OG+1}", f"v_lshrrev_b32 v{c1}, 16, v{OG+1}", "s_nop 0"]
    for n, stp in enumerate(steps):
        a(f"{fl[n]}\nv_add_u32_dpp v{p0}, v{p0}, v{p0} {stp}\nv_add_u32_dpp v{p1}, v{p1}, v{p1} {stp}")
    a(f"""
    v_readlane_b32 s{sNS}, v{p0}, 63
    v_readlane_b32 s{sN}, v{p1}, 63
    v_sub_u32 v{p0}, v{p0}, v{c0}
    v_sub_u32 v{p1}, v{p1}, v{c1}
    s_add_u32 s{sN}, s{sN}, s{sNS}
    v_add_u32 v{p1}, s{sNS}, v{p1}
    {f"v_sub_u32 v{tt}, v{p1}, v{c0}" if NMM else ""}
    {f"v_cndmask_b32 v{p0}, v{p0}, v{tt}, s[52:53]" if NMM else ""}
    s_mov_b32 s{sCNT}, s{sN}
    s_add_u32 s{sA}, s{sN}, s{sBASE}
    s_cmp_le_u32 s{sA}, s{sCAP}
    s_cbranch_scc0 M_WIN
    s_cmp_eq_u32 s{sBASE}, 0
    s_cbranch_scc1 M_NOWIN
    M_WIN:
    s_sub_i32 s{sCNT}, s{sN}, s{sBASE}
    s_max_i32 s{sCNT}, s{sCNT}, 0
    s_min_u32 s{sCNT}, s{sCNT}, s{sCAP}
    s_sub_i32 s{sNS}, s{sNS}, s{sBASE}
    s_max_i32 s{sNS}, s{sNS}, 0
    """)
    for (pp, cc, gg) in ((p0, c0, g0), (p1, c1, g1)):
        a(f"""
        v_subrev_u32 v{tt}, s{sBASE}, v{pp}
        v_max_i32 v{pp}, 0, v{tt}
        v_add_u32 v{cc}, v{tt}, v{cc}
        v_min_i32 v{cc}, s{sCAP}, v{cc}
        v_sub_u32 v{cc}, v{cc}, v{pp}
        v_sub_u32 v{tt}, v{pp}, v{tt}
        v_add_u32 v{gg}, v{gg}, v{tt}
        """)
    a(f"M_NOWIN:\ns_min_u32 s{sNS}, s{sNS}, {0 if YM else SCAP}")
    pa, ca_, ga, gb = t0, t1, t2, t3
    for n, (pp, cc, gg) in enumerate(((p0, c0, g0), (p1, c1, g1))):
        a(f"""
        v_lshl_add_u32 v{pp}, v{pp}, 2, s{sGL}
        v_add_u32 v{ga}, 1, v{gg}
        v_add_u32 v{gb}, 2, v{gg}
        v_mov_b32 v{ca_}, v{cc}
        v_mov_b32 v{pa}, v{pp}
        M_EXP{n}:
        """)
        for r in (1, 3, 5, 7):
            a(f"v_cmpx_lt_i32 vcc, {r}, v{ca_}\nds_write2_b32 v{pa}, v{ga}, v{gb} offset0:{r} offset1:{r+1}\nv_add_u32 v{ga}, 2, v{ga}\nv_add_u32 v{gb}, 2, v{gb}")
        a(f"""
        v_cmpx_lt_i32 vcc, 9, v{ca_}
        v_add_u32 v{pa}, 32, v{pa}
        v_subrev_u32 v{ca_}, 8, v{ca_}
        s_cbranch_execnz M_EXP{n}
        s_mov_b64 exec, -1
        """)
    a(f"""
    v_cmpx_lt_i32 vcc, 0, v{c0}
    ds_write_b32 v{p0}, v{g0}
    s_mov_b64 exec, -1
    v_cmpx_lt_i32 vcc, 0, v{c1}
    ds_write_b32 v{p1}, v{g1}
    s_mov_b64 exec, -1
    """)
    a(fl_)
    for i in ORD:
        a(f"ds_read_b32 v{G+i}, v{qa} offset:{256*i}")
    a(f"v_lshl_add_u32 v{t1}, v{lh}, 2, s{sGL}")
    for j in range(NSP):
        a(f"ds_read_b32 v{SG+j}, v{t1} offset:{128*j}")
    for i in ORD:
        a(f"s_sub_i32 s{sA}, s{sCNT}, {64*i}\nv_cmp_gt_i32 {mk(i)}, s{sA}, v{lane}")
    a(f"s_waitcnt lgkmcnt({NSP})")
    for i in ORD: a(f"v_lshlrev_b32 v{RC+i}, 2, v{G+i}")
    stamp("pro", 2); stamp("syn", 5)
    a(f"""
    s_mov_b32 s{sA}, 0
    s_branch M_FL1
    M_FL:
    s_sleep {OPT["osl"]}
    {fl_}
    s_add_u32 s{sA}, s{sA}, 1
    s_cmp_gt_u32 s{sA}, {SPIN}
    s_cbranch_scc1 M_END
    M_FL1:
    s_waitcnt vmcnt(0)
    v_cmpx_ne_u64 vcc, s[{sTAG}:{sTAG+1}], {v(FV,2)}
    s_cbranch_execnz M_FL
    M_READY:
    """)
    stamp("top", 2); stamp("syn", 6); stamp("lb", 1)
    skip("M_GA")
    for i in ORD:
        a(f"s_mov_b64 exec, {mk(i)}\nbuffer_load_dword v{RC+i}, v{RC+i}, s[{sWS}:{sWS+3}], 0 offen {LD}")
        after("M_GA", i)
    a("s_mov_b64 exec, -1")
    if OTW == 1:
        a("s_cmp_eq_u32 s92, 0\ns_cbranch_scc1 M_NOW\ns_setprio 0")
        wwork()
        a("s_setprio 2\nM_NOW:")
    a(f"""
    v_lshrrev_b32 v{t2}, 4, v{lane}
    v_xor_b32 v{t2}, v{t2}, v{lane}
    v_and_b32 v{t2}, 1, v{t2}
    v_lshlrev_b32 v{t2}, 4, v{t2}
    v_mov_b32 v{fl0}, s{sCNT}
    v_mov_b32 v{fl0+1}, s{sN}
    s_waitcnt lgkmcnt(0)
    """)
    if CEM: a(f"s_mov_b32 s{sA}, {EMS//32-4096}")
    for j in range(NSP):
        if CEM: a(f"v_bfe_u32 v{t3}, v{SG+j}, 12, 8\nv_mad_i32_i24 v{SG+j}, v{t3}, s{sA}, v{SG+j}")
        a(f"v_lshl_add_u32 v{SG+j}, v{SG+j}, 5, v{t2}")
    stamp("lb", 2)
    if int(OPT["barA"]): a("s_barrier")
    stamp("lb", 3)
    def stage(js):
        for j in ([] if YM else js):
            a(f"""
            s_sub_i32 s{sA}, s{sNS}, {32*j}
            s_add_u32 m0, s{sSTB}, {1024*j}
            v_cmpx_gt_i32 vcc, s{sA}, v{lh}
            buffer_load_dwordx4 v{SG+j}, s[{sEM}:{sEM+3}], 0 offen {LD} lds
            """)
        a("s_mov_b64 exec, -1")
    NS1 = int(OPT["ns1"]); NS2 = int(OPT["ns2"])
    stage(range(NS1))
    XW = int(OPT["xw"])
    def pwarm():
        if XW:
            a(f"""
            s_lshr_b32 s{sA}, s2, 3
            s_mul_i32 s{sA}, s{sA}, {XW*128}
            s_add_u32 s{sA}, s{sA}, {XE*4096}
            v_lshl_add_u32 v{tt}, v{lane}, 3, s{sW}
            v_cmpx_gt_u32 vcc, {XW}, v{tt}
            v_lshlrev_b32 v{tt}, 7, v{tt}
            buffer_load_dword v{vCr+4}, v{tt}, s[{sP}:{sP+3}], s{sA} offen sc1
            s_mov_b64 exec, -1
            """)
    a(f"s_movk_i32 s{sB}, {CH}\nv_mov_b32 v{t0}, s{sDF}\nv_mov_b32 v{t2}, s{sSO}")
    skip("M_DW")
    for i in ORD:
        a(f"""
        v_lshrrev_b32 v{NA+i}, 31, v{G+i}
        v_mad_u32_u24 v{NA+i}, v{NA+i}, 49, v{t2}
        """)
        after("M_DW", i)
    a(f"""
    s_mov_b32 s75, {L_C8}
    s_mov_b64 exec, 1
    ds_add_u32 v{nta}, v{fl0} offset:{L_NT}
    ds_max_u32 v{nta}, v{fl0+1} offset:{L_MX}
    """)
    stamp("lb", 4)
    skip("M_RK")
    for i in ORD:
        a(f"""
        s_mov_b64 exec, {mk(i)}
        s_waitcnt vmcnt({i+NS1})
        v_and_b32 v{CA+i}, 63, v{RC+i}
        v_bfe_u32 v{tt}, v{RC+i}, 18, 3
        v_add_u32 v{NA+i}, v{CA+i}, v{NA+i}
        v_lshl_add_u32 v{CA+i}, v{NA+i}, 2, s75
        v_lshl_add_u32 v{CA+i}, v{tt}, 9, v{CA+i}
        ds_add_rtn_u32 v{RK+i}, v{CA+i}, v{one}
        """)
        after("M_RK", i)
    def pack(lab):
        a(f"s_movk_i32 s{sB}, {CH}\ns_mov_b32 s74, {int(OPT['epf'])*128}")
        skip(lab)
        for i in ORD:
            a(f"""
            v_bfe_u32 v{t0}, v{G+i}, 12, 8
            v_lshrrev_b32 v{tt}, 21, v{RC+i}
            v_bfe_i32 v{t1}, v{G+i}, 11, 1
            v_mad_u32_u24 v{tt}, v{t0}, s{sB}, v{tt}
            v_and_b32 v{t1}, {M0}, v{t1}
            v_bfe_u32 v{RC+i}, v{RC+i}, 6, 15
            v_add3_u32 v{G+i}, v{t1}, v{tt}, s{sDF}
            v_lshl_add_u32 v{RC+i}, v{RC+i}, 7, v{NA+i}
            v_lshlrev_b32 v{NA+i}, 3, v{NA+i}
            """)
            if 64 * i < SCAP and not YM:
                a(f"""
                s_sub_i32 s{sA}, s{sNS}, {64*i}
                v_cmp_gt_i32 vcc, s{sA}, v{lane}
                v_add_u32 v{tt}, {2048*i}, v{sac}
                s_nop 0
                v_cndmask_b32 v{G+i}, v{G+i}, v{tt}, vcc
                """)
            after(lab, i)
    EPOS = int(OPT["epos"]); NEP = 0
    def eprefetch():
        if not int(OPT["epf"]): return
        for i in ((6, 5, 4, 3, 2, 1) if NMM else (6, 5, 4, 3, 2)):
            a(f"s_mov_b64 exec, {mk(i)}\nv_cmpx_gt_u32 vcc, s74, v{RC+i}" + ("" if 64 * i >= SCAP else f"\nv_cmpx_le_u32 vcc, s{sDF}, v{G+i}") + f"\nbuffer_load_dword v{vCr+4}, v{G+i}, s[{sE}:{sE+3}], 0 idxen")
        a("s_mov_b64 exec, -1")
    if int(OPT["epf"]): NEP = 6 if NMM else 5
    if XW: NEP += 1
    a("s_mov_b64 exec, -1")
    stamp("pro", 3); stamp("lb", 5)
    a(f"""
    s_cmp_eq_u32 s{sW}, 0
    s_cbranch_scc1 M_PK0
    s_lshl_b32 s{sA}, s{sW}, 8
    s_add_u32 s{sA}, s{sA}, {L_C8 - 256}
    v_lshl_add_u32 v{S4}, v{lane}, 2, s{sA}
    v_mov_b32 v{Q+8}, 0
    s_waitcnt lgkmcnt(0)
    s_barrier
    """)
    stamp("pro", 4); stamp("lb", 6)
    a(f"s_cmp_gt_u32 s{sW}, 2\ns_cbranch_scc1 M_NOPFX")
    for j in range(3): a(f"ds_read2st64_b32 {v(Q+2*j,2)}, v{S4} offset0:{4*j} offset1:{4*j+2}")
    a(f"s_waitcnt lgkmcnt(0)\nv_mov_b32 v{Q+9}, v{Q}")
    for j in range(1, 6): a(f"v_add_u32 v{Q+9+j}, v{Q+8+j}, v{Q+j}")
    for j in range(4): a(f"ds_write2st64_b32 v{S4}, v{Q+8+2*j}, v{Q+9+2*j} offset0:{C8O//256+4*j} offset1:{C8O//256+4*j+2}")
    a(f"M_NOPFX:\ns_setprio 0\ns_cmp_lt_u32 s{sW}, 4\ns_cbranch_scc1 M_NOFILL")
    for i in range(4): a(f"v_mov_b32 v{t4+i}, {DUMMY}")
    a(f"v_lshlrev_b32 v{t0}, 4, v0\nv_lshlrev_b32 v{t1}, 3, v0")
    assert 2 * LSZ == 8 * 4096 + 2048 and L_LS == 2048
    for i in range(8): a(f"ds_write_b128 v{t0}, {v(t4,4)} offset:{4096*i}")
    a(f"ds_write_b64 v{t1}, {v(t4,2)}\nM_NOFILL:")
    pack("M_PB"); stage(range(NS1, NSP))
    if EPOS == 0: pwarm(); eprefetch()
    a("s_waitcnt lgkmcnt(0)\ns_barrier\ns_branch M_P4E")
    d0, d1, f0, f1, k0, k1, vL, vR, ks, a4, l0, l1, o0, o1, cn, ci = [Q + i for i in range(16)]
    m0_, B0, m1_, B1 = S4, S4+1, S4+2, S4+3
    a(f"""
    M_PK0:
    s_setprio 3
    v_lshlrev_b32 v{a4}, 3, v{lane}
    v_lshlrev_b32 v{cn}, 2, v{lane}
    v_add_u32 v{cn}, {L_C8}, v{cn}
    v_sub_u32 v{ci}, 31, v{m}
    v_lshlrev_b32 v{ci}, 2, v{ci}
    s_mov_b32 s75, {f32(4194304.0)}
    s_waitcnt lgkmcnt(0)
    s_barrier
    """)
    stamp("pro", 4); stamp("lb", 6)
    a(f"ds_read_b32 v{ks}, v{nta} offset:{L_NT}")
    for j in range(7): a(f"ds_read2st64_b32 {v(FX+2*j,2)}, v{cn} offset0:{2*j} offset1:{2*j+1}")
    a(f"""
    s_waitcnt lgkmcnt(4)
    v_readfirstlane_b32 s{sL}, v{ks}
    v_add3_u32 v{d0}, v{FX}, v{FX+2}, v{FX+4}
    v_add3_u32 v{d1}, v{FX+1}, v{FX+3}, v{FX+5}
    s_lshr_b32 s{sL}, s{sL}, 8
    s_add_u32 s{sL}, s{sL}, 1
    s_waitcnt lgkmcnt(0)
    v_add3_u32 v{d0}, v{d0}, v{FX+6}, v{FX+8}
    v_add3_u32 v{d1}, v{d1}, v{FX+7}, v{FX+9}
    v_add3_u32 v{d0}, v{d0}, v{FX+10}, v{FX+12}
    v_add3_u32 v{d1}, v{d1}, v{FX+11}, v{FX+13}
    v_cvt_f32_u32 v{f0}, v{d0}
    v_cvt_f32_u32 v{f1}, v{d1}
    v_add_f32 v{f0}, -0.5, v{f0}
    v_add_f32 v{f1}, -0.5, v{f1}
    M_LS:
    s_add_u32 s{sL}, s{sL}, 2
    s_cmp_gt_u32 s{sL}, {LMAX}
    s_cbranch_scc1 M_P4W
    """)
    Lf, Rc, Ka = FX, FX + 3, FX + 6
    a(f"""
    v_cvt_f32_u32 v{Lf+1}, s{sL}
    v_add_f32 v{Lf}, -1.0, v{Lf+1}
    v_add_f32 v{Lf+2}, 1.0, v{Lf+1}
    v_rcp_f32 v{Rc}, v{Lf}
    v_rcp_f32 v{Rc+1}, v{Lf+1}
    v_rcp_f32 v{Rc+2}, v{Lf+2}
    """)
    for j in range(3): a(f"v_fma_f32 v{Ka+2*j}, v{f0}, v{Rc+j}, 1.0\nv_fma_f32 v{Ka+2*j+1}, v{f1}, v{Rc+j}, 1.0")
    for j in range(6): a(f"v_cvt_u32_f32 v{Ka+j}, v{Ka+j}")
    a(f"""
    v_lshl_or_b32 v{k0}, v{Ka+2}, 10, v{Ka}
    v_lshl_or_b32 v{k1}, v{Ka+3}, 10, v{Ka+1}
    v_lshl_or_b32 v{k0}, v{Ka+4}, 20, v{k0}
    v_lshl_or_b32 v{k1}, v{Ka+5}, 20, v{k1}
    v_add_u32 v{ks}, v{k0}, v{k1}
    """)
    wave_scan(a, ks)
    a(f"""
    v_sub_u32 v{vL}, v{ks}, v{k1}
    v_readlane_b32 s{sA}, v{ks}, 63
    s_mov_b32 s{sB}, 0
    s_bfe_u32 s52, s{sA}, 0xa000a
    s_cmp_le_u32 s52, 256
    s_cbranch_scc1 M_LOK
    s_lshr_b32 s52, s{sA}, 20
    s_cmp_gt_u32 s52, 256
    s_cbranch_scc1 M_LS
    s_mov_b32 s{sB}, 10
    s_add_u32 s{sL}, s{sL}, 1
    s_cmp_gt_u32 s{sL}, {LMAX}
    s_cbranch_scc1 M_P4W
    M_LOK:
    s_sub_u32 s52, 256, s52
    s_add_u32 s53, s{sB}, 10
    v_bfe_u32 v{l0}, v{vL}, s{sB}, 10
    v_bfe_u32 v{l1}, v{ks}, s{sB}, 10
    v_bfe_u32 v{vL}, v{vL}, s53, 10
    v_bfe_u32 v{vR}, v{ks}, s53, 10
    v_sub_u32 v{l0}, v{l0}, v{vL}
    v_sub_u32 v{l1}, v{l1}, v{vR}
    v_mov_b32 v{vL}, s53
    v_mov_b32 v{vR}, s{sB}
    v_cmp_ge_u32 vcc, s52, v{l0}
    v_cmp_ge_u32 s[52:53], s52, v{l1}
    s_nop 0
    v_cndmask_b32 v{l0}, v{vL}, v{vR}, vcc
    v_cndmask_b32 v{l1}, v{vL}, v{vR}, s[52:53]
    v_bfe_u32 v{k0}, v{k0}, v{l0}, 10
    v_bfe_u32 v{k1}, v{k1}, v{l1}, 10
    v_cvt_f32_u32 v{l0}, v{k0}
    v_cvt_f32_u32 v{l1}, v{k1}
    v_rcp_f32 v{m0_}, v{l0}
    v_rcp_f32 v{m1_}, v{l1}
    s_nop 0
    v_fma_f32 v{l0}, v{f0}, v{m0_}, 1.0
    v_fma_f32 v{l1}, v{f1}, v{m1_}, 1.0
    v_cvt_u32_f32 v{l0}, v{l0}
    v_cvt_u32_f32 v{l1}, v{l1}
    v_lshlrev_b32 v{l0}, 2, v{l0}
    v_lshlrev_b32 v{l1}, 2, v{l1}
    ds_add_rtn_u32 v{o0}, v{l0}, v{k0} offset:{L_CNT}
    ds_add_rtn_u32 v{o1}, v{l1}, v{k1} offset:{L_CNT}
    ds_read_b32 v{cn}, v{ci} offset:{L_CNT}
    v_mul_f32 v{m0_}, s75, v{m0_}
    v_mul_f32 v{m1_}, s75, v{m1_}
    v_cvt_u32_f32 v{m0_}, v{m0_}
    v_cvt_u32_f32 v{m1_}, v{m1_}
    v_add_u32 v{m0_}, 2, v{m0_}
    v_add_u32 v{m1_}, 2, v{m1_}
    v_lshlrev_b32 v{B0}, 2, v{k0}
    v_lshlrev_b32 v{B1}, 2, v{k1}
    v_sub_u32 v{B0}, 1024, v{B0}
    v_sub_u32 v{B1}, 1024, v{B1}
    v_sub_u32 v{l0}, 124, v{l0}
    v_sub_u32 v{l1}, 124, v{l1}
    s_waitcnt lgkmcnt(0)
    v_mov_b32 v{ks}, v{cn}
    """)
    for stp in steps[:5]:
        a(f"s_nop 1\nv_add_u32_dpp v{ks}, v{ks}, v{ks} {stp}")
    a(f"""
    v_sub_u32 v{ks}, v{ks}, v{cn}
    ds_bpermute_b32 v{d0}, v{l0}, v{ks}
    ds_bpermute_b32 v{d1}, v{l1}, v{ks}
    ds_write_b32 v{ci}, v{ks} offset:{L_BAS}
    s_waitcnt lgkmcnt(1)
    v_add_u32 v{o0}, v{o0}, v{d0}
    v_add_u32 v{o1}, v{o1}, v{d1}
    v_lshl_or_b32 v{m0_}, v{o0}, 24, v{m0_}
    v_lshl_or_b32 v{m1_}, v{o1}, 24, v{m1_}
    ds_write2st64_b64 v{a4}, {v(m0_,2)}, {v(m1_,2)} offset0:0 offset1:1
    M_P4W:
    v_mov_b32 v{ks}, s{sL}
    ds_write_b32 v{nta}, v{ks} offset:{L_MX+4}
    s_waitcnt lgkmcnt(0)
    s_barrier
    """)
    stage(range(NS1, NSP)); pack("M_PA")
    if EPOS == 0: pwarm(); eprefetch()
    u0, nn = Q + 20, Q + 26
    a("M_P4E:")
    stamp("pro", 5)
    a(f"""
    ds_read_b64 {v(u0,2)}, v{nta} offset:{L_MX}
    v_lshlrev_b32 v{tt}, 2, v{m}
    ds_read_b32 v{u0+2}, v{tt} offset:{L_CNT}
    ds_read_b32 v{u0+3}, v{tt} offset:{L_BAS}
    s_lshr_b32 s{sA}, s{sW}, 1
    s_lshl_b32 s{sA}, s{sA}, 5
    v_add_u32 v{nn}, s{sA}, v{m}
    v_lshlrev_b32 v{tt}, 3, v{nn}
    ds_read_b64 {v(u0+4,2)}, v{tt} offset:{L_TB}
    """)
    skip("M_TR")
    for i in ORD:
        a(f"s_mov_b64 exec, {mk(i)}\nds_read_b64 {v(TBv+2*i,2)}, v{NA+i} offset:{L_TB}\nds_read_b32 v{OFv+i}, v{CA+i} offset:{C8O}")
        after("M_TR", i)
    a(f"""
    s_mov_b64 exec, -1
    """)
    if EPOS == 1: eprefetch()
    a(f"""
    s_lshl_b32 s{sA}, s{sG}, 5
    s_waitcnt lgkmcnt(12)
    v_readfirstlane_b32 s{sNMAX}, v{u0}
    v_readfirstlane_b32 s{sL}, v{u0+1}
    v_add_u32 v{u0+2}, v{u0+2}, v{u0+3}
    v_cmp_ge_u32 vcc, s{sA}, v{u0+3}
    v_cmp_lt_u32 s[52:53], s{sA}, v{u0+2}
    s_and_b64 s[52:53], s[52:53], vcc
    s_ff1_i32_b32 s{sT}, s52
    s_max_i32 s{sT}, s{sT}, 0
    s_cmp_le_u32 s{sL}, {LMAX}
    s_cbranch_scc1 M_P5
    s_mov_b32 s{sCAP}, 256
    s_branch M_AGAIN
    M_P5:
    """)
    skip("M_SC")
    for i in ORD:
        mm, BB = TBv + 2*i, TBv + 2*i + 1
        a(f"""
        s_mov_b64 exec, {mk(i)}
        s_waitcnt lgkmcnt({2*i + max(0, 5-i)})
        v_add_u32 v{RK+i}, v{RK+i}, v{OFv+i}
        v_lshrrev_b32 v{tt}, 24, v{mm}
        v_mul_u32_u24 v{mm}, v{mm}, v{RK+i}
        v_add_lshl_u32 v{tt}, v{tt}, v{RK+i}, 2
        v_lshrrev_b32 v{mm}, 22, v{mm}
        v_mad_u32_u24 v{tt}, v{mm}, v{BB}, v{tt}
        ds_write2st64_b32 v{tt}, v{RC+i}, v{G+i} offset0:{L_LS//256} offset1:{L_LE//256}
        """)
        after("M_SC", i)
    ca0, ca1, ca2, ca3, kk, oa, fa, da = [EP + i for i in range(8)]
    epi_setup = f"""
    s_lshl_b32 s{sA}, s{sSB}, 7
    s_add_u32 s{sA}, s{sA}, {L_XR}
    s_movk_i32 s{sB}, 0x3fc
    s_movk_i32 s75, 0x3f8
    v_mov_b32 v{kk}, v{u0+5}
    v_lshrrev_b32 v{ca0}, 24, v{u0+4}
    v_mul_u32_u24 v{ca0}, 272, v{ca0}
    v_lshl_add_u32 v{ca0}, v{h16}, 1, v{ca0}
    v_add_u32 v{ca0}, s{sA}, v{ca0}
    v_mov_b32 v{da}, {L_ZR}
    v_cmp_gt_u32 s[56:57], s{sB}, v{kk}
    v_cmp_gt_u32 s[58:59], s75, v{kk}
    v_add_u32 v{ca1}, 272, v{ca0}
    v_add_u32 v{ca2}, 544, v{ca0}
    v_add_u32 v{ca3}, 816, v{ca0}
    v_cmp_gt_u32 vcc, 0x400, v{kk}
    v_cndmask_b32 v{ca1}, v{da}, v{ca1}, s[56:57]
    v_cndmask_b32 v{ca2}, v{da}, v{ca2}, s[58:59]
    v_cndmask_b32 v{ca0}, v{da}, v{ca0}, vcc
    v_cmp_gt_u32 vcc, s{sNB}, v{nn}
    v_lshlrev_b32 v{oa}, 7, v{nn}
    v_lshl_add_u32 v{oa}, v{h16}, 1, v{oa}
    s_lshl_b32 s{sA}, s{sW}, 11
    v_cndmask_b32 v{oa}, v{hz}, v{oa}, vcc
    v_add_u32 v{fa}, s{sA}, v{l16}
    v_mul_u32_u24 v{da}, 272, v{m}
    v_add3_u32 v{da}, v{da}, v{h16}, s{sXRB}
    """
    a(f"""
    s_mov_b64 exec, -1
    s_setprio 0
    """)
    if EPOS == 2: eprefetch()
    a(f"s_waitcnt vmcnt({NEP}) lgkmcnt(0)\ns_barrier")
    stamp("top", 3); stamp("pro", 6); stamp("pri", 1)
    a(f"s_cmp_lg_u32 s{sT}, 0\ns_cbranch_scc1 M_GO")
    a(epi_setup)
    a("s_branch M_BEND\nM_GO:")
    S = []
    ef = OPT["eflags"]
    ROLL = int(OPT["roll"])
    def Es(t): return v(E + 4 * (t % 2), 4)
    def pw(t): return RP + 2 * (t % 2)
    def le_read(t): return (f"ds_read_b32 v{pw(t)}, v{vLE} offset:{L_LE+1024*t}", f"le{t}")
    def ls_read(t, dst): return (f"ds_read_b128 {v(dst,4)}, v{vLS} offset:{L_LS+1024*t}", f"ls{t}")
    def st_addr(t): return f"v_xor_b32 v{sa}, v{pw(t)}, v{h16}"
    def st_read(t): return (f"ds_read_b128 {Es(t)}, v{sa}", f"st{t}")
    def d_cmp(t): return f"v_cmp_le_u32 vcc, s{sDF}, v{pw(t)}"
    def d_load(t): return ["s_mov_b64 exec, vcc", (f"buffer_load_dwordx4 {Es(t)}, {v(pw(t),2)}, s[{sE}:{sE+3}], 0 idxen offen {ef}", f"D{t}"), "s_mov_b64 exec, -1"]
    def x_addr(src): return [f"v_and_or_b32 v{S4+i}, v{src+i}, s{sM7}, v{CX+i}" for i in range(4)]
    def x_dma(t, nop=True):
        o = []
        for i in range(4):
            o += [f"s_add_u32 m0, s{sXRB}, {i*1024}"] + (["s_nop 0"] if nop else []) + [(f"buffer_load_dwordx4 v{S4+i}, s[{sP}:{sP+3}], 0 offen {LD} lds", f"X{t}")]
        return o
    def fx_read(t, sx): return (f"ds_read_b128 {v(FX+4*sx,4)}, v{XA+sx}", f"fx{t}")
    def chain(nh, t):
        Dh = v(D + 16 * nh, 16)
        return [f"v_mfma_f32_32x32x16_bf16 {Dh}, {W3f(nh)}, {Es(t)}, {v(Q+16*nh,16)}", f"v_smfmac_f32_32x32x32_bf16 {Dh}, {Idf(0)}, {v(FX+8*nh,8)}, v{W+4}"]
    nd, L1, L2 = D, D + 4, SG
    def ps(i): return [f"s_memrealtime s[{76+2*i}:{77+2*i}]", "s_waitcnt lgkmcnt(0)"] if MODE == "pri" else []
    S += [f"s_lshl_b32 s{sA}, s{sG}, 7", f"v_lshrrev_b32 v{vLS}, 3, v{lane}", f"v_lshl_add_u32 v{vLS}, v{vLS}, 4, s{sA}", f"v_lshl_add_u32 v{vLE}, v{m}, 2, s{sA}"]
    S += [ls_read(0, S4), (f"ds_read_b32 v{nd}, v{vLE} offset:{L_LS}", "nd"), le_read(0), le_read(1), ls_read(1, L1), ls_read(2, L2), ("@W", None, "nd")]
    S += x_addr(S4)
    xa_ = [f"v_and_b32 v{nd+1}, 127, v{nd}", f"v_lshlrev_b32 v{nd+1}, 7, v{nd+1}", f"v_bfe_u32 v{nd+2}, v{nd}, 1, 3", f"v_xor_b32 v{nd+2}, v{nd+2}, v{h}"]
    dm = x_dma(0, nop=False)
    for i in range(4): S += [dm[2*i], xa_[i], dm[2*i+1]]
    S += [f"v_lshl_add_u32 v{nd+1}, v{nd+2}, 4, v{nd+1}", f"v_add_u32 v{nd+1}, {L_XD}, v{nd+1}"]
    for sx in range(4):
        S += [(f"ds_read_b128 {v(FX+4*sx,4)}, v{nd+1}", "xd")] + ([f"v_xor_b32 v{nd+1}, {(32, 96, 32)[sx]}, v{nd+1}"] if sx < 3 else [])
    S += [("@W", None, "ls2"), d_cmp(0), st_addr(0), "s_not_b64 s[60:61], vcc"] + d_load(0) + ps(2)
    S += ["s_mov_b64 exec, s[60:61]", st_read(0), "s_mov_b64 exec, -1", st_addr(1), st_read(1)]
    ep = [l.strip() for l in epi_setup.strip().split("\n")]
    S += [f"v_mov_b32 v{SG+4}, v{u0+4}", f"v_mov_b32 v{SG+5}, v{u0+5}", f"v_mov_b32 v{SG+6}, v{nn}", ("@W", None, "xd")]
    ep = [l.replace(f"v{u0+4}", f"v{SG+4}").replace(f"v{u0+5}", f"v{SG+5}").replace(f"v{nn}", f"v{SG+6}") for l in ep] + x_addr(L1)
    k_ = 0
    for nh in range(2):
        for sx in range(4):
            S.append(f"v_mfma_f32_32x32x16_bf16 {v(Q+16*nh,16)}, {v(AG+(sx*2+nh)*4,4)}, {v(FX+4*sx,4)}, {'0' if sx == 0 else v(Q+16*nh,16)}")
            S += ep[k_:k_+4]; k_ += 4
    S += ep[k_:] + ps(3) + ps(4)
    S += [f"s_mov_b32 s74, {f32(-LOG2E)}", f"s_mov_b32 s75, {f32(-LOG2E)}"]
    S += [("@W", "D0", None)] + ps(5) + [fx_read(0, sx) for sx in range(4)]
    S += [f"v_pk_mul_f32 {v(Q+2*i,2)}, {v(Q+2*i,2)}, s[74:75]" for i in range(16)] + [("@W", None, "fx0")]
    c00 = chain(0, 0)
    S += [c00[0]] + x_dma(1) + [d_cmp(1), c00[1]] + d_load(1) + x_addr(L2) + ["s_nop 7", "s_nop 3"] + ps(6)
    if MODE: S += [f"s_mov_b32 s90, s{sT}", f"s_mov_b32 s98, s{sL}", "s_memtime s[94:95]", "s_waitcnt lgkmcnt(0)"]
    if MODE == "top": S += ["s_memrealtime s[84:85]", "s_waitcnt lgkmcnt(0)"]
    vC = vCr + 1
    def phase(nh, t, mf, fill):
        Db, Ab = D + 16*nh, AG + 16*nh
        seq = []
        mf = mf + [None] * (2 - len(mf))
        for q in range(2):
            ex = [f"v_exp_f32 v{T+i}, v{Db+8*q+i}" for i in range(8)]
            rc = [f"v_rcp_f32 v{T+i}, v{T+i}" for i in range(8)]
            ad = [f"v_pk_add_f32 {v(T+2*i,2)}, {v(T+2*i,2)}, {v(vC,2)} op_sel_hi:[1,0]" for i in range(4)]
            fm = [f"v_pk_fma_f32 {v(Ab+8*q+2*i,2)}, {v(Db+8*q+2*i,2)}, {v(T+2*i,2)}, {v(Ab+8*q+2*i,2)}" for i in range(4)]
            if t == 0: fm = [f"v_pk_mul_f32 {v(Ab+8*q+2*i,2)}, {v(Db+8*q+2*i,2)}, {v(T+2*i,2)}" for i in range(4)]
            if q == 0: seq += [mf[0]] + ex + ad + [mf[1]] + rc + fm
            else: seq += ex + ad + rc + fm
        res = []; n = 0
        for l in seq:
            if l is None: continue
            res.append(l)
            if l.startswith(("v_exp", "v_rcp")):
                res += fill.get(n, []); n += 1
        return res
    FXP, DP = int(OPT["fxp"]), int(OPT["dpos"])
    NT = 5 if ROLL else LMAX
    for t in range(NT):
        live = lambda u: ROLL or u < LMAX
        if ROLL and t == 1: S.append("M_LOOP:")
        if ROLL and t == 3: S.append("@CUT")
        fill = {0: [f"v_and_or_b32 v{vC}, v{pw(t)}, s{sB30}, 1.0"]}
        if live(t + 2):
            fill[1] = [le_read(t + 2)]
            fill[10] = [("@W", None, f"le{t+2}"), st_addr(t + 2)]; fill[11] = [st_read(t + 2)]
        if live(t + 1):
            fill[FXP] = [("@W", f"X{t+1}", None)]
            for sx in range(4): fill[FXP+1+sx] = [fx_read(t + 1, sx)]
        if live(t + 2):
            dm = x_dma(t + 2, nop=False)
            for i, pos in enumerate(int(x) for x in OPT["dmp"].split(",")): fill[pos] = ([("@W", None, f"fx{t+1}")] if i == 1 else []) + [dm[i]]
        S.append("s_setprio 1")
        S += phase(0, t, chain(1, t), fill)
        S.append("s_setprio 0")
        if live(t + 1): S.append(("@W", f"D{t+1}", f"fx{t+1}"))
        fill = {}
        if live(t + 3):
            xa = x_addr(S4)
            fill[4] = [ls_read(t + 3, S4)]
            fill[20] = [("@W", None, f"ls{t+3}"), xa[0]]; fill[21] = [xa[1]]; fill[22] = [xa[2]]; fill[23] = [xa[3]]
        if live(t + 2): fill[DP-1] = [d_cmp(t + 2)]; fill[DP] = d_load(t + 2)
        if ROLL:
            if t % 2 == 0 and t > 0: fill[26] = [f"v_add_u32 v{vLS}, 2048, v{vLS}"]; fill[27] = [f"v_add_u32 v{vLE}, 2048, v{vLE}"]
            fill[30] = [f"s_sub_u32 s{sT}, s{sT}, 1"]; fill[31] = [f"s_cmp_eq_u32 s{sT}, 0"]
        else:
            fill[31] = [f"s_cmp_eq_u32 s{sT}, {t+1}"]
        S += phase(1, t, chain(0, t + 1) if live(t + 1) else [], fill)
        if ROLL and t % 2 == 0 and t > 0: S.append("s_cbranch_scc0 M_LOOP")
        elif live(t + 1): S.append("s_cbranch_scc1 M_FLUSH")
    R_ = resolve(S)
    if ROLL:
        i0, i1 = R_.index("M_LOOP:"), R_.index("@CUT")
        w1 = [l for l in R_[i0:i1] if l.startswith("s_waitcnt")]; w2 = [l for l in R_[i1:] if l.startswith("s_waitcnt")]
        assert w1 == w2, (w1, w2)
        R_ = R_[:i1]
    emit(R_)
    a("M_FLUSH:")
    stamp("top", 5); stamp("epi", 1)
    if MODE: a("s_memtime s[96:97]\ns_waitcnt lgkmcnt(0)")
    a("s_waitcnt vmcnt(0)")
    for i in range(8):
        a(f"ds_write_b128 v{da}, {v(AG+4*i,4)} offset:{32*i}")
    A0, A1, A2, OWN, PAR = D, D + 16, Q, Q + 16, Q + 24
    a(f"""
    M_BEND:
    v_cmp_gt_u32 vcc, 0x3f4, v{kk}
    s_mov_b32 s74, {f32(-1.0/LOG2E)}
    s_mov_b32 s75, {f32(-1.0/LOG2E)}
    s_waitcnt lgkmcnt(0)
    """)
    stamp("epi", 2)
    a("s_barrier")
    stamp("epi", 3)
    offs = (0, 16, 64, 80)
    for i in range(4):
        for buf, ca in ((A0, ca0), (A1, ca1), (A2, ca2)):
            a(f"ds_read_b128 {v(buf+4*i,4)}, v{ca} offset:{offs[i]}")
    for i in range(4):
        a(f"s_waitcnt lgkmcnt({9-3*i})")
        for j in range(2): a(f"v_pk_add_f32 {v(A0+4*i+2*j,2)}, {v(A0+4*i+2*j,2)}, {v(A1+4*i+2*j,2)}")
        for j in range(2): a(f"v_pk_add_f32 {v(A0+4*i+2*j,2)}, {v(A0+4*i+2*j,2)}, {v(A2+4*i+2*j,2)}")
    a(f"""
    s_cbranch_vccz M_SUMD
    s_movk_i32 s{sA}, 0x3f4
    M_SUML:
    s_mov_b64 exec, vcc
    """)
    for i in range(4):
        a(f"ds_read_b128 {v(A1+4*i,4)}, v{ca3} offset:{offs[i]}")
    a(f"s_sub_u32 s{sA}, s{sA}, 4\nv_add_u32 v{ca3}, 272, v{ca3}\ns_waitcnt lgkmcnt(0)")
    for i in range(8): a(f"v_pk_add_f32 {v(A0+2*i,2)}, {v(A0+2*i,2)}, {v(A1+2*i,2)}")
    a(f"""
    s_mov_b64 exec, -1
    v_cmp_gt_i32 vcc, s{sA}, v{kk}
    s_nop 4
    s_cbranch_vccnz M_SUML
    M_SUMD:
    s_cmp_le_u32 s{sNMAX}, s{sCAP}
    s_cbranch_scc1 M_EPI
    """)
    srd_off(a, 56, 10, WS_SP, 2048 * 4096)
    a(f"""
    s_lshl_b32 s{sA}, s2, 3
    s_add_u32 s{sA}, s{sA}, s{sW}
    s_lshl_b32 s{sA}, s{sA}, 12
    s_cmp_eq_u32 s{sBASE}, 0
    s_cbranch_scc1 M_NOLD
    """)
    for i in range(4):
        a(f"buffer_load_dwordx4 {v(A1+4*i,4)}, v{l16}, s[56:59], s{sA} offen offset:{1024*i} sc0 sc1")
    a("s_waitcnt vmcnt(0)")
    for i in range(8): a(f"v_pk_add_f32 {v(A0+2*i,2)}, {v(A0+2*i,2)}, {v(A1+2*i,2)}")
    a(f"""
    M_NOLD:
    s_add_u32 s{sBASE}, s{sBASE}, s{sCAP}
    s_cmp_ge_u32 s{sBASE}, s{sNMAX}
    s_cbranch_scc1 M_EPI
    """)
    for i in range(4):
        a(f"buffer_store_dwordx4 {v(A0+4*i,4)}, v{l16}, s[56:59], s{sA} offen offset:{1024*i} sc0 sc1")
    a(f"""
    M_AGAIN:
    s_load_dwordx2 s[60:61], s[0:1], 32
    s_waitcnt vmcnt(0) lgkmcnt(0)
    s_barrier
    """)
    srd(a, 56, 60, 18432)
    a(f"""
    s_lshl_b32 s{sA}, s{sW}, 10
    s_add_u32 s{sA}, s{sA}, 8192
    s_add_u32 m0, s{sA}, {S_W}
    v_lshlrev_b32 v{t0}, 2, v0
    buffer_load_dwordx4 v{l16}, s[56:59], s{sA} offen lds
    ds_write_b32 v{t0}, v{nta}
    v_add_u32 v{t0}, {L_C8}, v{t0}
    ds_write_b32 v{t0}, v{nta}
    ds_write_b32 v{t0}, v{nta} offset:2048
    """)
    a("s_waitcnt vmcnt(0)\ns_barrier")
    w2read()
    a(f"""
    s_waitcnt lgkmcnt(0)
    s_barrier
    s_branch M_BATCH
    M_EPI:
    """)
    srd(a, 56, 8, 3200000)
    for i in range(8): a(f"v_pk_mul_f32 {v(A0+2*i,2)}, {v(A0+2*i,2)}, s[74:75]")
    for i in range(8): a(f"v_cvt_pk_bf16_f32 v{OWN+i}, v{A0+2*i}, v{A0+2*i+1}")
    a(f"""
    ds_write_b128 v{fa}, {v(OWN,4)} offset:{L_FE}
    ds_write_b128 v{fa}, {v(OWN+4,4)} offset:{L_FE+1024}
    v_xor_b32 v{fa}, 0x800, v{fa}
    v_mfma_f32_32x32x16_bf16 {v(U0,16)}, {v(WU,4)}, {v(OWN,4)}, {v(U0,16)}
    v_mfma_f32_32x32x16_bf16 {v(U0,16)}, {v(WU+4,4)}, {v(OWN+4,4)}, {v(U0,16)}
    s_lshl_b32 s{sA}, s{sSB}, 6
    s_add_u32 s{sA}, s{sA}, s{sS0}
    s_mov_b32 s74, {f32(-LOG2E)}
    s_mov_b32 s75, {f32(-LOG2E)}
    s_waitcnt lgkmcnt(0)
    s_barrier
    """)
    stamp("epi", 4)
    a(f"""
    ds_read_b128 {v(PAR,4)}, v{fa} offset:{L_FE}
    ds_read_b128 {v(PAR+4,4)}, v{fa} offset:{L_FE+1024}
    s_waitcnt lgkmcnt(1)
    v_mfma_f32_32x32x16_bf16 {v(U0,16)}, {v(WU+8,4)}, {v(PAR,4)}, {v(U0,16)}
    s_waitcnt lgkmcnt(0)
    v_mfma_f32_32x32x16_bf16 {v(U0,16)}, {v(WU+12,4)}, {v(PAR+4,4)}, {v(U0,16)}
    s_nop 11
    """)
    for q in range(2):
        b = 8 * q
        for i in range(4): a(f"v_pk_mul_f32 {v(AG+b+2*i,2)}, {v(U0+b+2*i,2)}, s[74:75]")
        for i in range(8): a(f"v_exp_f32 v{AG+b+i}, v{AG+b+i}")
        for i in range(4): a(f"v_pk_add_f32 {v(AG+b+2*i,2)}, {v(AG+b+2*i,2)}, 1.0 op_sel_hi:[1,0]")
        for i in range(8): a(f"v_rcp_f32 v{AG+b+i}, v{AG+b+i}")
        for i in range(4): a(f"v_pk_mul_f32 {v(AG+b+2*i,2)}, {v(U0+b+2*i,2)}, {v(AG+b+2*i,2)}")
        for i in range(4): a(f"v_cvt_pk_bf16_f32 v{D+4*q+i}, v{AG+b+2*i}, v{AG+b+2*i+1}")
        a(f"buffer_store_dwordx4 {v(D+4*q,4)}, v{oa}, s[56:59], s{sA} offen offset:{16*q} {OPT['ofl']}")
    if MODE:
        stamp("epi", 5)
        a("s_waitcnt vmcnt(0)")
        stamp("top", 6); stamp("epi", 6)
        a(f"s_lshl_b32 s74, s2, 3\ns_add_u32 s74, s74, s{sW}\ns_lshl_b32 s74, s74, 6\ns_add_u32 s74, s74, {WS_ST+0x80000}\ns_load_dwordx2 s[10:11], s[0:1], 64\ns_waitcnt lgkmcnt(0)\ns_add_u32 s52, s10, s74\ns_addc_u32 s53, s11, 0\nv_mov_b32 v0, 0")
        for i in range(8):
            a(f"v_mov_b32 v1, s{76+2*i}\nglobal_store_dword v0, v1, s[52:53] offset:{4*i}")
        a("s_sub_u32 s96, s96, s94\nv_mov_b32 v1, s96\nglobal_store_dword v0, v1, s[52:53] offset:32\nv_mov_b32 v1, s98\nglobal_store_dword v0, v1, s[52:53] offset:36")
    a("M_END:\ns_endpgm")
    return R.n

hdr = f"""; MPNN edge-MLP + segment-sum + node update in one launch of 256 co-resident workgroups:
; @launch grid=(256,1,1) block=(512,1,1) lds={MAIN_LDS}
.amdgcn_target "amdgcn-amd-amdhsa--gfx950"
.text
.globl {KN}
.type {KN},@function
"""
nv = gen()
txt = hdr + a.text() + '.section .rodata,"a"\n.p2align 6\n' + kdesc(KN, 256, 102)
open(sys.argv[1], "w").write(txt)
print("vgprs", nv, "lds", MAIN_LDS)
```
